```python
import torch

def _softmax(x, axis=-1):
    return torch.softmax(x, dim=axis)
def _gelu(x):
    return torch.nn.functional.gelu(x, approximate="tanh")
def _silu(x):
    return torch.nn.functional.silu(x)
def _sigmoid(x):
    return torch.sigmoid(x)
def _layernorm(x, axis=-1, eps=1e-5):
    m = x.mean(dim=axis, keepdim=True)
    v = x.var(dim=axis, keepdim=True, unbiased=False)
    return (x - m) / torch.sqrt(v + eps)
def _scatter_add(tgt, idx, src, axis=0):
    return tgt.clone().index_add_(axis, idx, src)
def _segment_sum(src, seg, n):
    out = torch.zeros((n,) + src.shape[1:], dtype=src.dtype)
    return out.index_add_(0, seg, src)
def _pad(x, pw):
    flat = tuple(v for pair in reversed(pw) for v in pair)
    return torch.nn.functional.pad(x, flat)

kernel_name = 'recurrent_scan__sliding_block_cached__glu_gated_bilinear__prompt'

def setup_inputs():

    _w = (lambda a: (lambda t: t.to(torch.bfloat16) if t.is_floating_point() else t)(torch.as_tensor(a)))
    def _A_setup():
        B, Sq, D = 1, 2048, 640
        Hq, Hkv, Sk, Dh = 32, 32, 2048, 192
        assert Hq % Hkv == 0, (Hq, Hkv)
        return {
            "x": _w((lambda *s: torch.randn(*s, dtype=torch.bfloat16) * 0.05)(B, Sq, D)),
            "k_cache": _w((lambda *s: torch.randn(*s, dtype=torch.bfloat16) * 1.6)(B, Hkv, Sk, Dh)),
            "v_cache": _w((lambda *s: torch.randn(*s, dtype=torch.bfloat16) * 1.6)(B, Hkv, Sk, Dh)),
            "wq": _w((lambda *s: torch.randn(*s, dtype=torch.bfloat16) * 1.6)(D, Hq * Dh) * (D ** -0.5)),
            "wo": _w((lambda *s: torch.randn(*s, dtype=torch.bfloat16) * 1.6)(Hq * Dh, D) * ((Hq * Dh) ** -0.5)),
        }
    _A_in = _A_setup()

    def _B_setup():
        B, S, D, F = 1, 2048, 640, 1536
        return {
            "x": _w((lambda *s: torch.randn(*s, dtype=torch.bfloat16) * 0.05)(B, S, D)),
            "w_gate": _w((lambda *s: torch.randn(*s, dtype=torch.bfloat16) * 0.2)(D, F) * (D ** -0.5)),
            "w_up": _w((lambda *s: torch.randn(*s, dtype=torch.bfloat16) * 0.2)(D, F) * (D ** -0.5)),
            "w_down": _w((lambda *s: torch.randn(*s, dtype=torch.bfloat16) * 0.2)(F, D) * (F ** -0.5)),
        }
    _B_in = _B_setup()

    return {
        "A_x": _A_in["x"],
        "A_k_cache": _A_in["k_cache"],
        "A_v_cache": _A_in["v_cache"],
        "A_wq": _A_in["wq"],
        "A_wo": _A_in["wo"],
        "B_x": _B_in["x"],
        "B_w_gate": _B_in["w_gate"],
        "B_w_up": _B_in["w_up"],
        "B_w_down": _B_in["w_down"],
    }

def reference(A_x, A_k_cache, A_v_cache, A_wq, A_wo, B_x, B_w_gate, B_w_up, B_w_down):
    def _A_ref(x, k_cache, v_cache, wq, wo):
        B, Sq, D = x.shape
        Hq, Dh = 32, 192
        Hkv, Sk = k_cache.shape[1], k_cache.shape[2]
        W = min(4096, max(256, Sk // 4))
        rep = Hq // Hkv
        q = (lambda x, *d: x.permute(*d))((x @ wq).reshape(B, Sq, Hq, Dh), 0, 2, 1, 3)
        k = (lambda x, n, axis: torch.repeat_interleave(x, n, dim=axis))(k_cache[:, :, Sk - W:, :], rep, axis=1)
        v = (lambda x, n, axis: torch.repeat_interleave(x, n, dim=axis))(v_cache[:, :, Sk - W:, :], rep, axis=1)
        scores = torch.einsum("bhqd,bhkd->bhqk", q, k) * (Dh ** -0.5)
        p = _softmax(scores, axis=-1)
        o = torch.einsum("bhqk,bhkd->bhqd", p, v)
        return (lambda x, *d: x.permute(*d))(o, 0, 2, 1, 3).reshape(B, Sq, Hq * Dh) @ wo

    def _B_ref(x, w_gate, w_up, w_down):
        g = torch.einsum("bsd,df->bsf", x, w_gate)
        u = torch.einsum("bsd,df->bsf", x, w_up)
        h = g * u
        return torch.einsum("bsf,fd->bsd", h, w_down)

    x = A_x
    xn = _layernorm(x, axis=-1)
    s = _A_ref(xn, A_k_cache, A_v_cache, A_wq, A_wo)
    g = _silu(_B_ref(xn, B_w_gate, B_w_up, B_w_down))
    return x + s * g
```

```python
import re

def _expand(op):
    op = op.strip()
    op = op.lstrip('-')
    if op.startswith('abs(') or op.startswith('|'):
        op = op.replace('abs(', '').replace(')', '').replace('|', '')
    m = re.fullmatch(r'([vas])\[(\d+):(\d+)\]', op)
    if m:
        return [f"{m.group(1)}{i}" for i in range(int(m.group(2)), int(m.group(3)) + 1)]
    m = re.fullmatch(r'([vas])(\d+)', op)
    if m:
        return [op]
    if op in ('vcc', 'm0', 'exec', 'scc'):
        return [op]
    if op in ('vcc_lo', 'vcc_hi'):
        return ['vcc']
    return []

TRANS = ('v_exp_f32', 'v_log_f32', 'v_rcp_f32', 'v_rsq_f32', 'v_sqrt_f32', 'v_sin_f32', 'v_cos_f32')
SCC_W = ('s_add_', 's_sub_', 's_addc_', 's_subb_', 's_and_', 's_or_', 's_xor_', 's_lshl_', 's_lshr_', 's_ashr_', 's_cmp', 's_min_', 's_max_', 's_andn2', 's_addk', 's_bfe', 's_not', 's_lshl1', 's_lshl2', 's_lshl3', 's_lshl4')

class Ins:
    __slots__ = ('text', 'kind', 'reads', 'writes', 'after', 'before', 'tag_r', 'tag_w', 'prio', 'uid', 'wait_lgkm', 'wait_vm', 'comment', 'gap')
    _n = 0
    def __init__(self, text, rd=(), wr=(), after=None, before=None, tag_r=None, tag_w=None, prio=0):
        self.text = text.strip()
        self.after = after; self.before = before
        self.tag_r = tag_r; self.tag_w = tag_w
        self.prio = prio
        self.uid = Ins._n; Ins._n += 1
        self.gap = None
        self._parse()
        self.reads |= set(rd); self.writes |= set(wr)
    def _parse(self):
        t = self.text
        self.reads = set(); self.writes = set()
        if t.endswith(':') or t.startswith('.') or t.startswith(';') or not t:
            self.kind = 'label'; return
        parts = t.split(None, 1)
        mn = parts[0]
        rest = parts[1] if len(parts) > 1 else ''
        ops = [o.strip() for o in rest.split(',')] if rest else []
        mods = ''
        if ops:
            sp = ops[-1].split(None, 1)
            ops[-1] = sp[0]
            mods = sp[1] if len(sp) > 1 else ''
        R = lambda i: set(_expand(ops[i])) if i < len(ops) else set()
        allr = lambda a: set().union(*[R(i) for i in range(a, len(ops))]) if len(ops) > a else set()
        if mn.startswith('v_mfma'):
            self.kind = 'mfma'; self.writes = R(0); self.reads = allr(1)
        elif mn.startswith('ds_read') or mn.startswith('ds_bpermute') or mn.startswith('ds_swizzle'):
            self.kind = 'ds'; self.writes = R(0); self.reads = allr(1)
        elif mn.startswith('ds_write') or mn.startswith('ds_add') or mn.startswith('ds_or'):
            self.kind = 'ds'; self.reads = allr(0)
        elif mn.startswith('buffer_load') or mn.startswith('global_load'):
            self.kind = 'vmem'
            if re.search(r'\blds\b', mods) or 'load_lds' in mn:
                self.reads = allr(0) | {'m0'}
            else:
                self.writes = R(0); self.reads = allr(1)
        elif mn.startswith('buffer_store') or mn.startswith('global_store'):
            self.kind = 'vmem'; self.reads = allr(0)
        elif mn.startswith('buffer_atomic') or mn.startswith('global_atomic'):
            self.kind = 'vmem'; self.reads = allr(0)
            if 'sc0' in mods: self.writes = R(0)
        elif mn.startswith('buffer_wbl2') or mn.startswith('buffer_inv'):
            self.kind = 'vmem'
        elif mn.startswith('s_waitcnt') or mn == 's_nop' or mn == 's_sleep' or mn == 's_setprio':
            self.kind = 'wait'
        elif mn == 's_barrier':
            self.kind = 'barrier'
        elif mn.startswith('s_cbranch') or mn == 's_branch' or mn == 's_endpgm':
            self.kind = 'branch'
            if 'scc' in mn: self.reads = {'scc'}
            if 'vcc' in mn: self.reads = {'vcc'}
            if 'exec' in mn: self.reads = {'exec'}
        elif mn.startswith('s_load') or mn.startswith('s_memtime') or mn.startswith('s_memrealtime') or mn.startswith('s_buffer_load'):
            self.kind = 'smem'; self.writes = R(0); self.reads = allr(1)
        elif mn.startswith('s_'):
            self.kind = 'salu'
            if mn.startswith('s_cmp') or mn.startswith('s_bitcmp'):
                self.reads = allr(0); self.writes = {'scc'}
            else:
                self.writes = R(0); self.reads = allr(1)
                if mn.startswith(SCC_W): self.writes.add('scc')
                if mn.startswith('s_cselect') or mn.startswith('s_addc') or mn.startswith('s_subb') or mn.startswith('s_cmov'): self.reads.add('scc')
                if mn.startswith('s_cmov') or mn.startswith('s_addk') or mn.startswith('s_mulk'): self.reads |= R(0)
                if 'saveexec' in mn: self.writes |= {'exec', 'scc'}; self.reads.add('exec')
        elif mn.startswith('v_'):
            base = mn.replace('_e32', '').replace('_e64', '')
            self.kind = 'trans' if base in TRANS else 'valu'
            if 'swap' in mn:
                self.writes = R(0) | R(1); self.reads = R(0) | R(1)
            else:
                self.writes = R(0); self.reads = allr(1)
                if base.startswith('v_fmac') or base.startswith('v_dot2c') or base.startswith('v_writelane') or 'dpp' in mn or 'row_' in mods or 'quad_perm' in mods: self.reads |= R(0)
                if base.startswith('v_add_co') or base.startswith('v_addc_co') or base.startswith('v_sub_co'):
                    self.writes |= R(1); self.reads = allr(2)
                if base.startswith('v_cmpx'): self.writes.add('exec')
        else:
            raise ValueError("unknown instr: " + t)
    def __repr__(self): return self.text

def I(text, **kw): return Ins(text, **kw)

MFMA_RAW_GAPS = 3
DS_LAT_GAPS = 8

def schedule(serial, name="", ds_lat=DS_LAT_GAPS, verbose=False):
    mf = [x for x in serial if x.kind == 'mfma']
    n = len(mf)
    midx = {x.uid: i for i, x in enumerate(mf)}
    fill = [x for x in serial if x.kind != 'mfma']
    preds = {x.uid: [] for x in fill}
    lo = {x.uid: -1 for x in fill}
    hi = {x.uid: n - 1 for x in fill}
    soft = {x.uid: n - 1 for x in fill}
    lastw = {}; readers = {}
    succs = {x.uid: [] for x in fill}
    def dep(a, b, typ):
        if a is b: return
        if a.kind == 'mfma' and b.kind == 'mfma': return
        if a.kind == 'mfma':
            i = midx[a.uid]
            if typ in ('raw', 'waw'): lo[b.uid] = max(lo[b.uid], min(i + MFMA_RAW_GAPS, n - 1))
            elif typ == 'warc': lo[b.uid] = max(lo[b.uid], min(i + 2, n - 1))
            else: lo[b.uid] = max(lo[b.uid], i)
        elif b.kind == 'mfma':
            i = midx[b.uid]
            if typ == 'raw':
                if a.kind in ('ds',):
                    hi[a.uid] = min(hi[a.uid], i - 1); soft[a.uid] = min(soft[a.uid], i - 1 - ds_lat)
                else:
                    hi[a.uid] = min(hi[a.uid], i - 1); soft[a.uid] = min(soft[a.uid], i - 2)
            else:
                hi[a.uid] = min(hi[a.uid], i - 1); soft[a.uid] = min(soft[a.uid], i - 1)
        else:
            preds[b.uid].append((a, typ)); succs[a.uid].append((b, typ))
    prev_by_kind = {}
    for x in serial:
        for r in x.reads:
            if r in lastw: dep(lastw[r], x, 'raw')
        for r in x.writes:
            if r in lastw: dep(lastw[r], x, 'waw')
            for y in readers.get(r, []):
                typ = 'war'
                if y.kind == 'mfma':
                    ops = [o.strip() for o in y.text.split(None, 1)[1].split(',')]
                    if r in _expand(ops[3]): typ = 'warc'
                dep(y, x, typ)
        for r in x.reads: readers.setdefault(r, []).append(x)
        for r in x.writes: lastw[r] = x; readers[r] = []
        if x.kind in ('ds', 'vmem', 'barrier'):
            k = 'vm' if x.kind in ('vmem', 'barrier') else 'ds'
            if k in prev_by_kind: dep(prev_by_kind[k], x, 'order')
            prev_by_kind[k] = x
    for x in fill:
        if x.after is not None: lo[x.uid] = max(lo[x.uid], x.after)
        if x.before is not None:
            soft[x.uid] = min(soft[x.uid], x.before)
    for x in reversed(fill):
        for (b, typ) in succs[x.uid]:
            hi[x.uid] = min(hi[x.uid], hi[b.uid])
            d = 1 if (typ == 'raw' or x.kind in ('ds', 'vmem', 'trans')) else 0
            soft[x.uid] = min(soft[x.uid], soft[b.uid] - d)
    for x in fill:
        for (a, typ) in preds[x.uid]:
            lo[x.uid] = max(lo[x.uid], lo[a.uid])
        if lo[x.uid] > hi[x.uid]:
            lo[x.uid] = hi[x.uid]
    wantwait = set()
    seen = set()
    dsw = {}
    for x in serial:
        if x.kind == 'mfma':
            for r in x.reads:
                key = (r, dsw.get(r, -1))
                if (r in dsw or r.startswith('a') or r.startswith('v')) and key not in seen and r in dsw:
                    wantwait.add(midx[x.uid] - 1)
                seen.add(key)
        if x.kind == 'ds':
            for r in x.writes: dsw[r] = x.uid
    placed = {}
    gaps = {g: [] for g in range(-1, n)}
    remaining = list(fill)
    over = 0
    for g in range(-1, n):
        scalar_free = (g not in wantwait)
        vec = 2
        has_valu = False; has_ds = False
        while True:
            cands = []
            for x in remaining:
                if lo[x.uid] > g: continue
                ok = True
                for (a, typ) in preds[x.uid]:
                    if a.uid not in placed: ok = False; break
                if not ok: continue
                cands.append(x)
            if not cands: break
            cands.sort(key=lambda x: (soft[x.uid], -x.prio, x.uid))
            pick = None
            for x in cands:
                forced = hi[x.uid] <= g
                samegap_raw = any(placed[a.uid] == g and typ == 'raw' and not (a.kind == 'valu' and x.kind == 'valu') for (a, typ) in preds[x.uid])
                samegap_any = any(placed[a.uid] == g for (a, typ) in preds[x.uid])
                fits = False
                if g >= 0 and not samegap_raw:
                    if x.kind in ('salu', 'wait', 'barrier'):
                        fits = scalar_free and not samegap_any
                    elif x.kind == 'ds':
                        fits = vec >= 1 and not has_ds and not any(placed[a.uid] == g and a.kind in ('valu', 'trans') for (a, typ) in preds[x.uid])
                    elif x.kind == 'valu':
                        fits = vec >= 1
                    elif x.kind in ('trans', 'vmem'):
                        fits = vec >= 2
                if fits or forced:
                    pick = x; pfits = fits; break
            if pick is None: break
            x = pick
            if not pfits: over += 1
            if x.kind in ('salu', 'wait', 'barrier'):
                scalar_free = False
            elif x.kind == 'ds': vec -= 1; has_ds = True
            elif x.kind == 'valu': vec -= 1
            else: vec -= 2
            placed[x.uid] = g; x.gap = g
            gaps[g].append((x, pfits))
            remaining.remove(x)
    assert not remaining, remaining
    out = []
    for g in range(-1, n):
        if g >= 0: out.append(mf[g])
        items = gaps[g]
        if all(f for _, f in items):
            order = {'salu': 0, 'wait': 0, 'barrier': 0, 'ds': 1, 'vmem': 1, 'valu': 2, 'trans': 2}
            items = sorted(items, key=lambda it: order[it[0].kind])
        out += [x for x, _ in items]
    if verbose: print(f"; schedule {name}: {n} mfma, {len(fill)} fillers, {over} overflow")
    return out

class Prog:
    def __init__(self):
        self.blocks = []
        self.trace = []
    def block(self, name, ins):
        self.blocks.append([name, list(ins)])
    def get(self, name):
        for b in self.blocks:
            if b[0] == name: return b
        raise KeyError(name)
    def dyn(self):
        for (name, env) in self.trace:
            for x in self.get(name)[1]:
                yield x, env, name

    def insert_waits(self):
        need = {}
        anchor_of = {}
        for name, ins in self.blocks:
            last_after_mfma = None
            for i, x in enumerate(ins):
                if i > 0 and ins[i - 1].kind == 'mfma': last_after_mfma = x
                if x.kind in ('label', 'branch'): last_after_mfma = None
                anchor_of[x.uid] = last_after_mfma if (last_after_mfma is not None and x.kind == 'mfma') else x
        for _pass in range(6):
            changed = False
            q = {'lgkm': [], 'vm': []}
            seq = {'lgkm': 0, 'vm': 0}
            at_anchor = {}
            smem_out = False
            for x, env, name in self.dyn():
                at_anchor[x.uid] = (seq['lgkm'], seq['vm'])
                if x.uid in need:
                    l, v = need[x.uid]
                    if l is not None: q['lgkm'] = q['lgkm'][len(q['lgkm']) - l:] if l < len(q['lgkm']) and l > 0 else ([] if l == 0 else q['lgkm'])
                    if v is not None: q['vm'] = q['vm'][len(q['vm']) - v:] if v < len(q['vm']) and v > 0 else ([] if v == 0 else q['vm'])
                if x.kind == 'wait' and x.text.startswith('s_waitcnt'):
                    m = re.search(r'lgkmcnt\((\d+)\)', x.text)
                    if m:
                        l = int(m.group(1)); q['lgkm'] = q['lgkm'][len(q['lgkm']) - l:] if 0 < l < len(q['lgkm']) else ([] if l == 0 else q['lgkm'])
                    m = re.search(r'vmcnt\((\d+)\)', x.text)
                    if m:
                        v = int(m.group(1)); q['vm'] = q['vm'][len(q['vm']) - v:] if 0 < v < len(q['vm']) else ([] if v == 0 else q['vm'])
                touched = set(x.reads) | set(x.writes)
                if x.tag_r is not None:
                    t = x.tag_r(env) if callable(x.tag_r) else x.tag_r
                    touched |= set(t if isinstance(t, (list, tuple, set)) else [t])
                for ci, c in enumerate(('lgkm', 'vm')):
                    hit = None
                    for (s, regs, issm) in q[c]:
                        if regs & touched: hit = (s, issm)
                    if hit is not None:
                        a = anchor_of[x.uid]
                        sa = at_anchor[a.uid][ci]
                        if hit[0] >= sa:
                            a = x; sa = seq[c]
                        N = sa - hit[0] - 1
                        if any(sm for (_, _, sm) in q[c]): N = 0; a = x
                        N = min(N, 15 if c == 'lgkm' else 63)
                        cur = need.setdefault(a.uid, [None, None])
                        if cur[ci] is None or N < cur[ci]:
                            cur[ci] = N; changed = True
                        q[c] = [e for e in q[c] if e[0] > hit[0]] if N > 0 or a is not x else []
                if x.kind in ('ds', 'smem'):
                    w = set(x.writes)
                    if x.tag_w is not None:
                        t = x.tag_w(env) if callable(x.tag_w) else x.tag_w
                        w |= set(t if isinstance(t, (list, tuple, set)) else [t])
                    q['lgkm'].append((seq['lgkm'], w, x.kind == 'smem')); seq['lgkm'] += 1
                elif x.kind == 'vmem':
                    w = set(x.writes)
                    if x.tag_w is not None:
                        t = x.tag_w(env) if callable(x.tag_w) else x.tag_w
                        w |= set(t if isinstance(t, (list, tuple, set)) else [t])
                    q['vm'].append((seq['vm'], w, False)); seq['vm'] += 1
            if not changed: break
        else:
            raise RuntimeError("wait insertion did not converge")
        for b in self.blocks:
            out = []
            for x in b[1]:
                if x.uid in need:
                    l, v = need[x.uid]
                    s = "s_waitcnt" + (f" vmcnt({v})" if v is not None else "") + (f" lgkmcnt({l})" if l is not None else "")
                    out.append(I(s))
                out.append(x)
            b[1] = out

    def fix_hazards(self, verbose=False):
        total = 0
        for _pass in range(8):
            pad = {}
            hist = []
            for x, env, name in self.dyn():
                if x.kind == 'label': continue
                need = 0
                dist = 0
                for y in reversed(hist):
                    req = hazard(y, x)
                    if req > dist: need = max(need, req - dist)
                    dist += states(y)
                    if dist > 20: break
                if need:
                    pad[x.uid] = max(pad.get(x.uid, 0), need)
                    hist.append(I(f"s_nop {need-1}"))
                hist.append(x)
                if len(hist) > 40: hist = hist[-30:]
            if not pad: break
            for b in self.blocks:
                out = []
                for x in b[1]:
                    if x.uid in pad:
                        out.append(I(f"s_nop {pad[x.uid]-1}")); total += 1
                        if verbose: print(f"; hazard pad {pad[x.uid]} before {x.text} in {b[0]}")
                    out.append(x)
                b[1] = out
        return total

    def text(self):
        L = []
        for name, ins in self.blocks:
            L.append(f"; ---- {name}")
            for x in ins:
                L.append(x.text if x.kind == 'label' else "  " + x.text)
        return "\n".join(L)

    def estimate(self):
        tot = 0; cur = None; per = {}
        def flush(c):
            return max(16, c)
        gap = None
        for x, env, name in self.dyn():
            if x.kind == 'label': continue
            if x.kind == 'mfma':
                if gap is not None:
                    c = flush(gap[0]); tot += c; per[gap[2]] = per.get(gap[2], 0) + c
                gap = [8, True, name, 'mfma']
            else:
                cost = 4
                if x.kind in ('trans', 'vmem'): cost = 8
                if x.text.startswith('s_nop'): cost = 4 * (int(x.text.split()[1]) + 1)
                if gap is None:
                    tot += cost; per[name] = per.get(name, 0) + cost; continue
                if x.kind in ('salu', 'wait', 'barrier', 'branch') and gap[1] and cost == 4: cost = 0
                if x.kind == 'ds' and gap[3] in ('valu', 'trans'): cost += 8
                if x.kind == 'ds' and gap[3] == 'ds': cost += 4
                gap[1] = False; gap[0] += cost; gap[3] = x.kind
        if gap is not None:
            c = flush(gap[0]); tot += c; per[gap[2]] = per.get(gap[2], 0) + c
        return tot, per

def states(y):
    if y.text.startswith('s_nop'): return int(y.text.split()[1]) + 1
    return 1

def _vregs(s): return {r for r in s if r[0] in 'va' and r[1:].isdigit()}
def _sregs(s): return {r for r in s if (r[0] == 's' and r[1:].isdigit()) or r == 'vcc'}

def hazard(y, x):
    req = 0
    yv = y.kind in ('valu', 'trans')
    xv = x.kind in ('valu', 'trans')
    if y.kind == 'mfma':
        big = '32x32' in y.text
        D = y.writes
        ops = [o.strip() for o in y.text.split(None, 1)[1].split(',')]
        C = set(_expand(ops[3]))
        if x.kind == 'mfma':
            xo = [o.strip() for o in x.text.split(None, 1)[1].split(',')]
            if D & (set(_expand(xo[1])) | set(_expand(xo[2]))): req = max(req, 12 if big else 8)
            xc = set(_expand(xo[3]))
            if D & xc and xc != D: req = max(req, 10 if big else 6)
            if D & x.writes and not (D & xc): req = max(req, 10 if big else 6)
        elif xv or x.kind in ('ds', 'vmem'):
            if D & (x.reads | x.writes): req = max(req, 12 if big else 8)
            if xv and (C & x.writes): req = max(req, 7 if big else 3)
    if yv:
        W = _vregs(y.writes)
        if x.kind == 'mfma' and W & x.reads: req = max(req, 2)
        if 'permlane' in x.text and W & x.reads: req = max(req, 2)
        if ('dpp' in x.text or 'row_' in x.text or 'quad_perm' in x.text) and W & x.reads: req = max(req, 2)
        if (x.text.startswith('v_readfirstlane') or x.text.startswith('v_readlane')) and W & x.reads: req = max(req, 1)
        if y.kind == 'trans' and x.kind == 'valu' and W & x.reads: req = max(req, 1)
        S = _sregs(y.writes)
        if S:
            if x.kind == 'vmem' and S & x.reads: req = max(req, 5)
            if xv and S & x.reads: req = max(req, 2)
            if x.kind in ('salu', 'branch') and S & x.reads: req = max(req, 2)
        if 'exec' in y.writes: req = max(req, 5)
    if y.kind == 'salu' and 'm0' in y.writes and x.kind == 'vmem' and 'm0' in x.reads: req = max(req, 1)
    if y.kind == 'vmem' and ('store_dwordx4' in y.text or 'store_dwordx3' in y.text):
        data = set(_expand(y.text.split(None, 1)[1].split(',')[0 if y.text.startswith('buffer') else 1]))
        if data & x.writes: req = max(req, 2)
    return req
```

```python
import sys, math, struct
from asmlib import *

NAME = "recurrent_scan__sliding_block_cached__glu_gated_bilinear__prompt"
A_X, A_K, A_V, A_WQ, A_WO, A_BX, A_WG, A_WU, A_WD, A_OUT, A_DBG, A_WS = [8 * i for i in range(12)]
XN_OFF = 0; XN_SIZE = 2048 * 640 * 2
OH_OFF = 0x400000; OH_SIZE = 2048 * 7680 * 2
PART_OFF = 0x2400000
SLOT = 24576; NS = 5

def f2u(x): return struct.unpack('<I', struct.pack('<f', x))[0]
def vr(a, n): return f"v[{a}:{a+n-1}]" if n > 1 else f"v{a}"
def ar(a, n): return f"a[{a}:{a+n-1}]" if n > 1 else f"a{a}"
def sr(a, n): return f"s[{a}:{a+n-1}]" if n > 1 else f"s{a}"
def L(txt): return [I(t) for t in txt.strip().split("\n") if t.strip()]
def mfma(d, a, b, c): return I(f"v_mfma_f32_16x16x32_bf16 {d}, {a}, {b}, {c}")

def kd(name, vgpr, accum, sgpr=102):
    return f""".amdhsa_kernel {name}
  .amdhsa_next_free_vgpr {vgpr}
  .amdhsa_next_free_sgpr {sgpr}
  .amdhsa_accum_offset {accum}
  .amdhsa_group_segment_fixed_size 0
  .amdhsa_kernarg_size 96
  .amdhsa_user_sgpr_count 2
  .amdhsa_user_sgpr_kernarg_segment_ptr 1
  .amdhsa_system_sgpr_workgroup_id_x 1
  .amdhsa_float_denorm_mode_32 3
.end_amdhsa_kernel"""

def header(name):
    return f".globl {name}\n.p2align 8\n.type {name},@function\n{name}:"

def srd(d, base, size, off=0):
    r = []
    if off:
        r += [I(f"s_add_u32 s{d}, s{base}, {hex(off)}"), I(f"s_addc_u32 s{d+1}, s{base+1}, 0")]
    else:
        r += [I(f"s_mov_b32 s{d}, s{base}"), I(f"s_mov_b32 s{d+1}, s{base+1}")]
    r += [I(f"s_mov_b32 s{d+2}, {hex(size)}"), I(f"s_mov_b32 s{d+3}, 0x20000")]
    return r

def xreduce(v, t, op):
    return L(f"""v_mov_b32 v{t}, v{v}
v_permlane16_swap_b32 v{v}, v{t}
{op} v{v}, v{v}, v{t}
v_mov_b32 v{t}, v{v}
v_permlane32_swap_b32 v{v}, v{t}
{op} v{v}, v{v}, v{t}""")

def divmod_const(q, r, src, c, tmp_s):
    magic = (65536 + c - 1) // c
    for x in range(1400):
        assert (x * magic) >> 16 == x // c
    return L(f"""v_mul_u32_u24 v{q}, {magic}, v{src}
v_lshrrev_b32 v{q}, 16, v{q}
v_mul_u32_u24 v{r}, {c}, v{q}
v_sub_u32 v{r}, v{src}, v{r}""")

def gen_k0():
    P = Prog()
    c = L(f"""s_cmp_ge_u32 s2, 128
s_cbranch_scc1 L_k0_end
s_load_dwordx2 s[4:5], s[0:1], {A_X}
s_load_dwordx2 s[6:7], s[0:1], {A_WS}
v_and_b32 v1, 63, v0
v_lshrrev_b32 v2, 6, v0
v_and_b32 v3, 15, v1
v_lshrrev_b32 v4, 4, v1
v_mul_u32_u24 v5, 1280, v3
v_lshl_add_u32 v5, v4, 4, v5
v_mul_u32_u24 v6, 320, v2
v_add_u32 v5, v5, v6
s_mul_i32 s3, s2, {16*1280}
s_waitcnt lgkmcnt(0)""")
    c += srd(8, 4, 2048 * 640 * 2) + srd(12, 6, XN_SIZE, XN_OFF)
    for i in range(5):
        c.append(I(f"buffer_load_dwordx4 {vr(8+4*i,4)}, v5, s[8:11], s3 offen offset:{64*i}"))
    c += L(f"""v_lshlrev_b32 v6, 6, v2
v_lshl_add_u32 v6, v3, 2, v6
v_lshlrev_b32 v7, 2, v3""")
    for i in range(20):
        c.append(I(f"v_lshlrev_b32 v{32+2*i}, 16, v{8+i}"))
        c.append(I(f"v_and_b32 v{33+2*i}, 0xffff0000, v{8+i}"))
    for k in range(4): c.append(I(f"v_add_f32 v{72+k}, v{32+k}, v{36+k}"))
    for i in range(8, 40): c.append(I(f"v_add_f32 v{72+i%4}, v{72+i%4}, v{32+i}"))
    c += L("v_add_f32 v72, v72, v73\nv_add_f32 v74, v74, v75\nv_add_f32 v72, v72, v74")
    c += xreduce(72, 73, "v_add_f32")
    c += L(f"""ds_write_b32 v6, v72
s_waitcnt lgkmcnt(0)
s_barrier
ds_read_b32 v72, v7
ds_read_b32 v73, v7 offset:64
ds_read_b32 v74, v7 offset:128
ds_read_b32 v75, v7 offset:192
v_add_f32 v72, v72, v73
v_add_f32 v74, v74, v75
v_add_f32 v72, v72, v74
v_mul_f32 v76, {hex(f2u(1.0/640))}, v72""")
    for k in range(4):
        c.append(I(f"v_sub_f32 v77, v{32+k}, v76")); c.append(I(f"v_mul_f32 v{72+k}, v77, v77"))
    for i in range(4, 40):
        c.append(I(f"v_sub_f32 v{77+i%2}, v{32+i}, v76")); c.append(I(f"v_fmac_f32 v{72+i%4}, v{77+i%2}, v{77+i%2}"))
    c += L("v_add_f32 v72, v72, v73\nv_add_f32 v74, v74, v75\nv_add_f32 v72, v72, v74")
    c += xreduce(72, 73, "v_add_f32")
    c += L(f"""ds_write_b32 v6, v72 offset:256
s_waitcnt lgkmcnt(0)
s_barrier
ds_read_b32 v72, v7 offset:256
ds_read_b32 v73, v7 offset:320
ds_read_b32 v74, v7 offset:384
ds_read_b32 v75, v7 offset:448
v_add_f32 v72, v72, v73
v_add_f32 v74, v74, v75
v_add_f32 v72, v72, v74
v_mul_f32 v72, {hex(f2u(1.0/640))}, v72
v_cvt_pk_bf16_f32 v72, v72, v76
v_and_b32 v76, 0xffff0000, v72
v_lshlrev_b32 v72, 16, v72
v_add_f32 v72, {hex(f2u(1e-5))}, v72
v_cvt_pk_bf16_f32 v72, v72, v72
v_lshlrev_b32 v72, 16, v72
v_sqrt_f32 v72, v72
v_cvt_pk_bf16_f32 v72, v72, v72
v_lshlrev_b32 v72, 16, v72
v_rcp_f32 v72, v72""")
    for i in range(20):
        a, b = 32 + 2 * i, 33 + 2 * i
        c += L(f"""v_sub_f32 v{a}, v{a}, v76
v_sub_f32 v{b}, v{b}, v76
v_cvt_pk_bf16_f32 v{a}, v{a}, v{b}
v_and_b32 v{b}, 0xffff0000, v{a}
v_lshlrev_b32 v{a}, 16, v{a}
v_mul_f32 v{a}, v{a}, v72
v_mul_f32 v{b}, v{b}, v72
v_cvt_pk_bf16_f32 v{8+i}, v{a}, v{b}""")
    c += L(f"""s_lshr_b32 s16, s2, 2
s_and_b32 s17, s2, 3
s_mul_i32 s16, s16, {20*4096}
s_lshl_b32 s17, s17, 10
s_add_u32 s16, s16, s17
v_mul_u32_u24 v5, {5*4096}, v2
v_lshl_add_u32 v5, v1, 4, v5""")
    for i in range(5):
        c.append(I(f"buffer_store_dwordx4 {vr(8+4*i,4)}, v5, s[12:15], s16 offen sc1"))
        if i < 4: c.append(I("s_add_u32 s16, s16, 4096"))
    c += L("L_k0_end:\ns_endpgm")
    P.block("k0", c); P.trace = [("k0", {})]
    P.insert_waits(); P.fix_hazards()
    return header("ln_kernel") + "\n" + P.text(), kd("ln_kernel", 80, 80)

sX, sY, sXN, sOH = 4, 8, 12, 16
sK, sV, sG = 20, 22, 24
sOffX, sOffY, sStr, sMX, sMY, sWr, sRd, sDl, sCnt, sOffB, sH, sB, sW, sT0, sT1, sOffO, sScale, sT2 = range(26, 44)
sOffK0, sOffV0, sOffG0, sOffH = 44, 45, 46, 47
vL16 = 1; vX = 2; vY = 5; vKo = 8; vVo = 11; vGo = 14
vWa = 17; vKa = 19; vVa = 21; vGa = 25
vLs = 26; vT = 30; vNm = 32; vTmp = 48
vAcc = 64; vQ = 64
vS01 = 160; vS23 = 176; vP01 = 208; vP23 = 224; vVs = 232
aK = 192

def dma_group(stage_tag, hint0=None, step=4):
    r = []
    k = 0
    for (srdn, vo, so, mo) in ((sX, vX, sOffX, sMX), (sY, vY, sOffY, sMY)):
        r.append(I(f"s_add_u32 m0, s{sWr}, s{mo}"))
        for n in range(3):
            r.append(I(f"buffer_load_dwordx4 v{vo+n}, {sr(srdn,4)}, s{so} offen offset:{1024*n} lds", tag_w=stage_tag, rd=['stg'],
                       after=None if hint0 is None else hint0 + step * k))
            k += 1
        r.append(I(f"s_add_u32 s{so}, s{so}, s{sStr}"))
    r += L(f"""s_add_u32 s{sWr}, s{sWr}, {SLOT}
s_cmp_eq_u32 s{sWr}, {SLOT*NS}
s_cmov_b32 s{sWr}, 0""")
    return r

def ring_advance():
    return L(f"""s_add_u32 s{sRd}, s{sRd}, {SLOT}
s_mov_b32 s{sDl}, {SLOT}
s_cmp_eq_u32 s{sRd}, {SLOT*NS}
s_cmov_b32 s{sDl}, {hex((-SLOT*(NS-1)) & 0xffffffff)}
s_cmov_b32 s{sRd}, 0""")

def barrier(tag, after=None):
    return I("s_barrier", tag_r=tag, wr=['stg'], after=after)

def acc1(T, j): return vAcc + ((T // 2) * 4 + j) * 8 + (T % 2) * 4
def w_reads(T):
    slot = 64 + (T % 3) * 8
    p, t = T // 2, T % 2
    r = []
    for ks in range(2):
        for u in range(2):
            r.append(I(f"ds_read_b64_tr_b16 {ar(slot+ks*4+u*2,2)}, v{vWa+p%2} offset:{ks*12288+u*6144+(p//2)*128+8*t}", rd=['stg']))
    return r
def b_loads(base, hint0=0, step=2):
    r = []
    for u in range(2):
        for j in range(4):
            r.append(I(f"buffer_load_dwordx4 {ar(base+(u*4+j)*4,4)}, v{vL16}, {sr(sXN,4)}, s{sOffB} offen offset:{1024*j}", after=hint0 + step * (u * 4 + j)))
        r.append(I(f"s_add_u32 s{sOffB}, s{sOffB}, 4096"))
    return r
def k_reads(kt):
    return [I(f"ds_read_b128 {ar(aK+kt*24+s*4,4)}, v{vKa+s%2} offset:{kt*6144+(s//2)*128}", rd=['stg']) for s in range(6)]
def v_reads(T):
    return [I(f"ds_read_b64_tr_b16 {vr(vVs+(T%6)*4+u*2,2)}, v{vVa+T%4} offset:{12288+u*6144+(T//4)*128}", rd=['stg']) for u in range(2)]

def p1_step(e, last=False):
    s = []
    if not last: s += b_loads(32 * (1 - e), 0, 2)
    s += dma_group(lambda env: f"st{env['sg']+3}", 18, 4)
    for T in range(12):
        if T + 2 < 12: s += w_reads(T + 2)
        elif T == 10:
            s += ring_advance()
            s.append(barrier(lambda env: f"st{env['sg']+1}", after=72))
            if not last:
                s += [I(f"v_add_u32 v{vWa+i}, s{sDl}, v{vWa+i}") for i in range(2)]
                s += w_reads(0)
            else:
                s += k_reads(0)
        elif not last: s += w_reads(1)
        slot = 64 + (T % 3) * 8
        for j in range(4):
            for ks in range(2):
                d = vr(acc1(T, j), 4)
                s.append(mfma(d, ar(slot + ks * 4, 4), ar(32 * e + (ks * 4 + j) * 4, 4), d))
        if last and T % 2 == 1:
            p = T // 2
            for j in range(4):
                a = acc1(2 * p, j); q = vQ + (p * 4 + j) * 4
                for i in range(8): s.append(I(f"v_mul_f32 v{a+i}, s{sScale}, v{a+i}"))
                for i in range(4): s.append(I(f"v_cvt_pk_bf16_f32 v{q+i}, v{a+2*i}, v{a+2*i+1}"))
    return s

def Sreg(kt, j, buf, first=False):
    if j < 2: return (vTmp if first else vS01) + (j * 2 + kt) * 4
    return vS23 + buf * 16 + ((j - 2) * 2 + kt) * 4
def Preg(j, buf):
    return vP01 + buf * 8 + j * 4 if j < 2 else vP23 + (j - 2) * 4
def qk(kt, buf, first=False):
    s = []
    for j in range(4):
        d = vr(Sreg(kt, j, buf, first), 4)
        for p in range(6):
            c = d if p else ("0" if first else vr(vNm + 4 * j, 4))
            s.append(mfma(d, ar(aK + kt * 24 + p * 4, 4), vr(vQ + (p * 4 + j) * 4, 4), c))
    return s
def softmax(j, buf, first=False):
    s = []
    for kt in range(2):
        a = Sreg(kt, j, buf, first)
        for i in range(4): s.append(I(f"v_exp_f32 v{a+i}, v{a+i}"))
        for i in range(4): s.append(I(f"v_add_f32 v{vLs+j}, v{vLs+j}, v{a+i}"))
        for i in range(2): s.append(I(f"v_cvt_pk_bf16_f32 v{Preg(j,buf)+kt*2+i}, v{a+2*i}, v{a+2*i+1}"))
    return s
def pv_T(T, buf, first=False):
    s = []
    for j in range(4):
        d = ar((T * 4 + j) * 4, 4)
        s.append(mfma(d, vr(vVs + (T % 6) * 4, 4), vr(Preg(j, buf), 4), "0" if first else d))
    return s

def p2_iter(e, base=0, first=False):
    s = []
    s += k_reads(1)
    s += dma_group(lambda env: f"st{env['sg']+3}", base + 8, 6)
    if not first:
        s += softmax(2, e) + softmax(3, e)
    s += qk(0, 1 - e) + qk(1, 1 - e)
    for T in range(6): s += v_reads(T)
    s += softmax(0, 1 - e) + softmax(1, 1 - e)
    for T in range(12):
        s += pv_T(T, e, first)
        if T < 6: s += v_reads(T + 6)
        if T == 5:
            s += ring_advance()
            s.append(barrier(lambda env: f"st{env['sg']+1}", after=base + 70))
            s += [I(f"v_add_u32 v{vKa+i}, s{sDl}, v{vKa+i}") for i in range(2)]
            s += k_reads(0)
            s += [I(f"v_add_u32 v{vVa+i}, s{sDl}, v{vVa+i}") for i in range(4)]
    return s

def first_tile():
    s = []
    s += k_reads(1)
    s += dma_group("st13", 96 + 4, 6)
    s += qk(0, 0, True)
    s += ring_advance()
    s.append(barrier("st11", after=96 + 26))
    s += [I(f"v_add_u32 v{vKa+i}, s{sDl}, v{vKa+i}") for i in range(2)]
    s += k_reads(0)
    s += qk(1, 0, True)
    for j in range(4):
        a = Sreg(0, j, 0, True); b = Sreg(1, j, 0, True); m = vNm + 4 * j; t = m + 1
        s += L(f"""v_max3_f32 v{m}, v{a}, v{a+1}, v{a+2}
v_max3_f32 v{m}, v{m}, v{a+3}, v{b}
v_max3_f32 v{m}, v{m}, v{b+1}, v{b+2}
v_max_f32 v{m}, v{m}, v{b+3}""")
        s += xreduce(m, t, "v_max_f32")
        s += L(f"""v_sub_f32 v{m+1}, 0, v{m}
v_sub_f32 v{m+2}, 0, v{m}
v_sub_f32 v{m+3}, 0, v{m}
v_sub_f32 v{m}, 0, v{m}""")
        for i in range(4):
            s.append(I(f"v_add_f32 v{a+i}, v{a+i}, v{m}")); s.append(I(f"v_add_f32 v{b+i}, v{b+i}, v{m}"))
    for j in range(4): s += softmax(j, 0, True)
    return s

vGA = 160
vOP = 184
def g_reads(n):
    ds, grp = n // 6, n % 6
    T3, mat = grp // 2, grp % 2
    slot = vGA + (n % 3) * 8
    r = []
    for ks in range(2):
        kk = (ds % 2) * 2 + ks
        for u in range(2):
            r.append(I(f"ds_read_b64_tr_b16 {vr(slot+ks*4+u*2,2)}, v{vGa} offset:{mat*12288+(kk*32+16*u)*96+32*T3}", rd=['stg']))
    return r
def acc3(grp, j): return vAcc + (grp * 4 + j) * 4

def tail_pv():
    s = []
    for T in range(6): s += v_reads(T)
    s += softmax(2, 1) + softmax(3, 1)
    s += L(f"s_sub_u32 s{sOffB}, s{sOffB}, {20*4096}")
    s += b_loads(aK, 2, 2)
    s += dma_group("st29", 20, 3)
    for T in range(12):
        s += pv_T(T, 1)
        if T < 6: s += v_reads(T + 6)
        if T == 5:
            s.append(barrier("st27", after=26))
            s += g_reads(0) + g_reads(1)
    for j in range(4):
        s += xreduce(vLs + j, vT + j % 2, "v_add_f32")
    s += L(f"""v_add_f32 v{vT+1}, v{vLs}, v{vLs+1}
v_add_f32 v{vT}, v{vLs+2}, v{vLs+3}
v_add_f32 v{vT}, v{vT}, v{vT+1}
v_cmp_ngt_f32 vcc, {hex(f2u(2.0**40))}, v{vT}""")
    for j in range(4): s.append(I(f"v_rcp_f32 v{vLs+j}, v{vLs+j}"))
    return s

def p3_all():
    s = []
    oe = []
    n = 0
    for p in range(6):
        for j in range(4):
            t = vTmp + (n % 2) * 8; o = vOP + (n % 6) * 4
            it = []
            for tt in range(2):
                for i in range(4): it.append(I(f"v_accvgpr_read_b32 v{t+tt*4+i}, a{((2*p+tt)*4+j)*4+i}"))
            for i in range(8): it.append(I(f"v_mul_f32 v{t+i}, v{t+i}, v{vLs+j}"))
            for i in range(4): it.append(I(f"v_cvt_pk_bf16_f32 v{o+i}, v{t+2*i}, v{t+2*i+1}"))
            it.append(I(f"buffer_store_dwordx4 {vr(o,4)}, v{vL16}, {sr(sOH,4)}, s{sOffO} offen offset:{1024*j} sc1"))
            if j == 3: it.append(I(f"s_add_u32 s{sOffO}, s{sOffO}, 4096"))
            oe.append(it); n += 1
    for ds in range(10):
        e = ds % 2
        base = ds * 48
        if ds < 9: s += b_loads(aK + 32 * (1 - e), base, 2)
        if ds in (0, 2): s += dma_group(f"st{27+ds//2+3}", base + 18, 3)
        for k in range(3):
            if oe: s += oe.pop(0)
        for grp in range(6):
            n = ds * 6 + grp
            if n + 2 < 60:
                if (n + 2) % 12 == 0:
                    st = 27 + (n + 2) // 12
                    s.append(barrier(f"st{st}", after=base + 24))
                    d = (st % NS - (st - 1) % NS) * SLOT
                    s.append(I(f"v_add_u32 v{vGa}, {hex(d & 0xffffffff)}, v{vGa}"))
                s += g_reads(n + 2)
            slot = vGA + (n % 3) * 8
            for j in range(4):
                for ks in range(2):
                    d = vr(acc3(grp, j), 4)
                    s.append(mfma(d, vr(slot + ks * 4, 4), ar(aK + 32 * e + (ks * 4 + j) * 4, 4), "0" if (ds == 0 and ks == 0) else d))
            if ds == 9 and grp % 2 == 1:
                T3 = grp // 2
                for jp in range(2):
                    o = vOP + ((T3 * 2 + jp) % 6) * 4
                    for jj in range(2):
                        j = jp * 2 + jj
                        g = acc3(2 * T3, j); u = acc3(2 * T3 + 1, j)
                        for i in range(4): s.append(I(f"v_mul_f32 v{g+i}, v{g+i}, v{u+i}"))
                        for i in range(2): s.append(I(f"v_cvt_pk_bf16_f32 v{o+jj*2+i}, v{g+2*i}, v{g+2*i+1}"))
                    for i in range(2): s.append(I(f"v_permlane32_swap_b32 v{o+i}, v{o+2+i}"))
                    s.append(I(f"buffer_store_dwordx4 {vr(o,4)}, v{vT}, {sr(sOH,4)}, s{sOffH+T3} offen offset:{2048*jp} sc1"))
    assert not oe
    return s

def gen_k1(dbg=False):
    P = Prog()
    c = L(f"""s_cmp_ge_u32 s2, 256
s_cbranch_scc1 L_k1_end
s_load_dwordx4 s[20:23], s[0:1], {A_K}
s_load_dwordx2 s[50:51], s[0:1], {A_WQ}
s_load_dwordx4 s[52:55], s[0:1], {A_WG}
s_load_dwordx2 s[56:57], s[0:1], {A_WS}
v_lshrrev_b32 v30, 6, v0
v_and_b32 v0, 63, v0
v_readfirstlane_b32 s{sW}, v30
v_lshlrev_b32 v{vL16}, 4, v0
s_and_b32 s{sT0}, s2, 7
s_lshr_b32 s{sT1}, s2, 3
s_and_b32 s{sH}, s{sT1}, 3
s_lshl_b32 s{sT0}, s{sT0}, 2
s_add_u32 s{sH}, s{sH}, s{sT0}
s_lshr_b32 s{sB}, s{sT1}, 2""")
    for n in range(3):
        c.append(I(f"v_add_u32 v48, {64*n}, v0"))
        c += divmod_const(49, 50, 48, 24, sT0)
        c += L(f"""v_and_b32 v51, 6, v49
v_xor_b32 v51, v50, v51
v_lshlrev_b32 v51, 4, v51
v_subrev_u32 v51, {1024*n}, v51
v_mul_u32_u24 v52, 384, v49
v_add_u32 v{vVo+n}, v52, v51
v_and_b32 v53, 4, v49
v_add_u32 v53, v53, v49
v_mul_u32_u24 v53, 12288, v53
v_add_u32 v{vX+n}, v53, v51
v_mov_b32 v{vY+n}, v{vX+n}
v_lshrrev_b32 v53, 1, v49
v_lshl_add_u32 v53, v30, 2, v53
v_and_b32 v53, 7, v53
v_xor_b32 v53, v50, v53
v_lshlrev_b32 v53, 4, v53
v_subrev_u32 v53, {1024*n}, v53
v_add_u32 v{vKo+n}, v52, v53""")
        c += divmod_const(49, 50, 48, 6, sT0)
        c += L(f"""v_bfe_u32 v51, v49, 2, 2
v_lshlrev_b32 v51, 3, v51
v_lshrrev_b32 v52, 4, v49
v_lshl_add_u32 v51, v52, 2, v51
v_and_b32 v52, 3, v49
v_add_u32 v51, v51, v52
v_mul_u32_u24 v51, 3072, v51
v_lshl_add_u32 v51, v50, 4, v51
v_subrev_u32 v{vGo+n}, {1024*n}, v51""")
    c += L("s_waitcnt lgkmcnt(0)")
    c += srd(sX, 50, 640 * 6144 * 2) + srd(sY, 50, 640 * 6144 * 2)
    c += srd(sXN, 56, XN_SIZE, XN_OFF) + srd(sOH, 56, OH_SIZE, OH_OFF)
    c += L(f"""s_lshr_b32 s{sT0}, s{sW}, 1
s_and_b32 s{sT1}, s{sW}, 1
s_lshl_b32 s{sT2}, s{sT0}, 5
s_lshl2_add_u32 s{sT2}, s{sT1}, s{sT2}
s_mul_i32 s{sOffX}, s{sT2}, 12288
s_mul_i32 s{sT2}, s{sH}, 384
s_add_u32 s{sOffX}, s{sOffX}, s{sT2}
s_add_u32 s{sOffY}, s{sOffX}, {16*12288}
s_mov_b32 s{sStr}, {64*12288}
s_mul_i32 s{sMX}, s{sW}, 6144
s_add_u32 s{sMY}, s{sMX}, 3072
s_mov_b32 s{sWr}, 0
s_mov_b32 s{sRd}, 0
s_lshl2_add_u32 s{sT2}, s{sB}, s{sW}
s_mul_i32 s{sOffB}, s{sT2}, {20*4096}""")
    c += dma_group("st0") + b_loads(0) + dma_group("st1") + dma_group("st2")
    c += L(f"""s_cmp_eq_u32 s{sT0}, 0
s_cselect_b32 s{sG}, s52, s54
s_cselect_b32 s{sG+1}, s53, s55
s_mul_i32 s{sOffG0}, s{sT1}, {64*3072}
s_mul_i32 s{sT0}, s{sH}, 96
s_add_u32 s{sOffG0}, s{sOffG0}, s{sT0}
s_mul_i32 s{sOffK0}, s{sH}, 786432
s_mul_i32 s{sT0}, s{sW}, 3072
s_add_u32 s{sOffK0}, s{sOffK0}, s{sT0}
s_add_u32 s{sOffK0}, s{sOffK0}, {1536*384}
s_sub_u32 s{sOffV0}, s{sOffK0}, 12288
s_mul_i32 s{sT2}, s{sT2}, {240*4096}
s_mul_i32 s{sT0}, s{sH}, {6*4096}
s_add_u32 s{sOffO}, s{sT2}, s{sT0}
s_add_u32 s{sT2}, s{sT2}, {192*4096}
s_mul_i32 s{sT0}, s{sH}, 3""")
    for T3 in range(3):
        c += L(f"""s_lshr_b32 s{sT1}, s{sT0}, 1
s_lshl_b32 s{sT1}, s{sT1}, 12
s_add_u32 s{sOffH+T3}, s{sT2}, s{sT1}
s_and_b32 s{sT1}, s{sT0}, 1
s_lshl_b32 s{sT1}, s{sT1}, 9
s_add_u32 s{sOffH+T3}, s{sOffH+T3}, s{sT1}
s_add_u32 s{sT0}, s{sT0}, 1""")
    c += L(f"s_mov_b32 s{sScale}, {hex(f2u(math.log2(math.e) / math.sqrt(192.0)))}\ns_mov_b32 s{sCnt}, 0")
    c += L(f"""v_lshrrev_b32 v48, 4, v0
v_and_b32 v49, 15, v0
v_lshrrev_b32 v50, 2, v49
v_and_b32 v51, 3, v0
v_lshl_add_u32 v52, v48, 2, v50
v_bfe_u32 v53, v52, 1, 2
v_mul_u32_u24 v54, 384, v52
v_lshlrev_b32 v55, 1, v53
v_xor_b32 v55, v55, v51
v_lshl_add_u32 v{vWa}, v55, 4, v54
v_xor_b32 v55, 4, v55
v_lshl_add_u32 v{vWa+1}, v55, 4, v54
v_lshl_add_u32 v56, v51, 3, v54
v_add_u32 v56, {SLOT*(11%NS)}, v56""")
    for x in range(4):
        c += L(f"""v_xor_b32 v55, {x}, v53
v_lshl_add_u32 v{vVa+x}, v55, 5, v56""")
    c += L(f"""v_mul_u32_u24 v54, 96, v52
v_lshl_add_u32 v{vGa}, v51, 3, v54
v_add_u32 v{vGa}, {SLOT*(27%NS)}, v{vGa}
v_mul_u32_u24 v54, 384, v49
v_add_u32 v54, {SLOT*(10%NS)}, v54
v_lshrrev_b32 v55, 1, v49
v_xor_b32 v55, v55, v48
v_lshl_add_u32 v{vKa}, v55, 4, v54
v_xor_b32 v55, 4, v55
v_lshl_add_u32 v{vKa+1}, v55, 4, v54""")
    for i in range(4): c.append(I(f"v_mov_b32 v{vLs+i}, 0"))
    for i in range(192): c.append(I(f"v_mov_b32 v{vAcc+i}, 0"))
    c.append(barrier("st0"))
    c += w_reads(0) + w_reads(1)
    P.block("pro", c)
    P.block("p1_top", L(".p2align 6\nL_p1:"))
    P.block("p1_even", schedule(p1_step(0), "p1_even", verbose=dbg))
    P.block("p1_mid", L(f"""s_cmp_eq_u32 s{sCnt}, 4
s_cbranch_scc1 L_p1_last
s_cmp_eq_u32 s{sCnt}, 3
s_cbranch_scc0 L_p1_odd"""))
    sw = srd(sX, sK, 32 * 2048 * 192 * 2) + srd(sY, sV, 32 * 2048 * 192 * 2)
    sw += L(f"""s_mov_b32 s{sOffX}, s{sOffK0}
s_mov_b32 s{sOffY}, s{sOffV0}
s_mov_b32 s{sStr}, 12288
s_mul_i32 s{sMX}, s{sW}, 3072
s_add_u32 s{sMY}, s{sMX}, 12288""")
    for n in range(3):
        sw += L(f"v_mov_b32 v{vX+n}, v{vKo+n}\nv_mov_b32 v{vY+n}, v{vVo+n}")
    P.block("p1_switch", sw)
    P.block("p1_odd", L("L_p1_odd:") + schedule(p1_step(1), "p1_odd", verbose=dbg) + L(f"s_add_u32 s{sCnt}, s{sCnt}, 1\ns_branch L_p1"))
    big = p1_step(1, last=True)
    for x in big:
        if callable(x.tag_r): x.tag_r = x.tag_r({'sg': 9})
        if callable(x.tag_w): x.tag_w = x.tag_w({'sg': 9})
    big += first_tile()
    it0 = p2_iter(0, base=96 + 48, first=True)
    for x in it0:
        if callable(x.tag_r): x.tag_r = x.tag_r({'sg': 11})
        if callable(x.tag_w): x.tag_w = x.tag_w({'sg': 11})
    big += it0
    P.block("p1_last", L("L_p1_last:") + schedule(big, "p1_last+first", verbose=dbg) + L(f"s_mov_b32 s{sCnt}, 0"))
    P.block("p2_top", L(".p2align 6\nL_p2:"))
    P.block("p2_chk", L(f"s_cmp_eq_u32 s{sCnt}, 6\ns_cbranch_scc0 L_p2_odd"))
    sw = srd(sX, sG, 640 * 1536 * 2) + srd(sY, sG, 640 * 1536 * 2)
    sw += L(f"""s_mov_b32 s{sOffX}, s{sOffG0}
s_add_u32 s{sOffY}, s{sOffG0}, {32*3072}
s_mov_b32 s{sStr}, {128*3072}
s_mul_i32 s{sMX}, s{sW}, 6144
s_add_u32 s{sMY}, s{sMX}, 3072""")
    for n in range(3):
        sw += L(f"v_mov_b32 v{vX+n}, v{vGo+n}\nv_mov_b32 v{vY+n}, v{vGo+n}")
    P.block("p2_switch", sw)
    P.block("p2_odd", L("L_p2_odd:") + schedule(p2_iter(1), "p2_odd", verbose=dbg))
    P.block("p2_even", schedule(p2_iter(0), "p2_even", verbose=dbg) + L(f"s_add_u32 s{sCnt}, s{sCnt}, 1\ns_cmp_lt_u32 s{sCnt}, 7\ns_cbranch_scc1 L_p2"))
    P.block("tail", schedule(tail_pv(), "tail", verbose=dbg))
    P.block("p3_pre", L(f"""v_and_b32 v{vT}, 32, v0
v_lshlrev_b32 v{vT}, 4, v{vT}
v_add_u32 v{vT}, v{vT}, v{vL16}"""))
    P.block("p3", schedule(p3_all(), "p3", verbose=dbg))
    P.block("end", L("L_k1_end:\ns_endpgm"))
    tr = [("pro", {})]
    for i in range(5):
        tr += [("p1_top", {}), ("p1_even", {'sg': 2 * i}), ("p1_mid", {})]
        if i == 3: tr.append(("p1_switch", {}))
        if i < 4: tr.append(("p1_odd", {'sg': 2 * i + 1}))
    tr.append(("p1_last", {}))
    for i in range(7):
        tr += [("p2_top", {}), ("p2_chk", {})]
        if i == 6: tr.append(("p2_switch", {}))
        tr += [("p2_odd", {'sg': 12 + 2 * i}), ("p2_even", {'sg': 13 + 2 * i})]
    tr += [("tail", {}), ("p3_pre", {}), ("p3", {}), ("end", {})]
    P.trace = tr
    P.insert_waits()
    n = P.fix_hazards(verbose=dbg)
    if dbg: print("; K1 estimate", P.estimate(), "pads", n)
    return header("attn_kernel") + "\n" + P.text(), kd("attn_kernel", 512, 256)


SL2 = 36864
def gen_k2(dbg=False):
    P = Prog()
    sWd, sBd, sPd = 4, 8, 12
    sOffW, sOffBB, sMW, sMB, sCn, sN, sS, sMb, sNb, sWv, t0, t1, t2, sOffP = range(16, 30)
    vWo = 2
    vA = 8
    vAc = 32
    def fA(e, t, ks): return 0 + e * 72 + (t * 2 + ks) * 4
    def fB(e, j, ks): return 40 + e * 72 + (ks * 4 + j) * 4
    c = L(f"""s_cmp_ge_u32 s2, 256
s_cbranch_scc1 L_k2_end
s_load_dwordx2 s[40:41], s[0:1], {A_WO}
s_load_dwordx2 s[42:43], s[0:1], {A_WD}
s_load_dwordx2 s[44:45], s[0:1], {A_WS}
v_lshrrev_b32 v30, 6, v0
v_and_b32 v0, 63, v0
v_readfirstlane_b32 s{sWv}, v30
v_lshlrev_b32 v1, 4, v0
s_and_b32 s{t0}, s2, 7
s_lshr_b32 s{t1}, s2, 3
s_lshr_b32 s{sS}, s{t0}, 1
s_and_b32 s{t0}, s{t0}, 1
s_lshr_b32 s{sMb}, s{t1}, 2
s_lshl3_add_u32 s{sMb}, s{t0}, s{sMb}
s_and_b32 s{sNb}, s{t1}, 3
s_cmp_eq_u32 s{sS}, 3
s_cselect_b32 s{sN}, 6, 8
s_cselect_b32 s{t2}, 8, 0""")
    for n in range(5):
        c.append(I(f"v_add_u32 v24, {64*n}, v0"))
        c += divmod_const(25, 26, 24, 20, t0)
        c += L(f"""v_bfe_u32 v27, v25, 2, 1
v_lshlrev_b32 v27, 1, v27
v_xor_b32 v26, v26, v27
v_and_b32 v27, s{t2}, v25
v_add_u32 v25, v25, v27
v_mul_u32_u24 v25, 1280, v25
v_lshl_add_u32 v25, v26, 4, v25
v_subrev_u32 v{vWo+n}, {1024*(n%4)}, v25""")
    c += L(f"""s_waitcnt lgkmcnt(0)
s_cmp_eq_u32 s{sS}, 3
s_cselect_b32 s{sWd}, s42, s40
s_cselect_b32 s{sWd+1}, s43, s41
s_mov_b32 s{sWd+2}, {hex(6144*640*2)}
s_cmov_b32 s{sWd+2}, {hex(1536*640*2)}
s_mov_b32 s{sWd+3}, 0x20000
s_cselect_b32 s{t0}, 0, s{sS}
s_cselect_b32 s{t2}, 8, 16
s_lshl_b32 s{t0}, s{t0}, 11
s_lshr_b32 s{t1}, s{sWv}, 1
s_lshl_b32 s{t1}, s{t1}, 5
s_add_u32 s{t0}, s{t0}, s{t1}
s_and_b32 s{t1}, s{sWv}, 1
s_mul_i32 s{t1}, s{t1}, s{t2}
s_add_u32 s{t0}, s{t0}, s{t1}
s_mul_i32 s{sOffW}, s{t0}, 1280
s_mul_i32 s{t0}, s{sNb}, 320
s_add_u32 s{sOffW}, s{sOffW}, s{t0}
s_mul_i32 s{sMW}, s{sWv}, 5120
s_lshl_b32 s{sMB}, s{sWv}, 12
s_add_u32 s{sMB}, s{sMB}, 20480
s_and_b32 s{t0}, s{sWv}, 1
s_lshl1_add_u32 s{t0}, s{sMb}, s{t0}
s_mul_i32 s{t0}, s{t0}, 240
s_lshl_b32 s{t1}, s{sS}, 6
s_add_u32 s{t0}, s{t0}, s{t1}
s_lshr_b32 s{t1}, s{sWv}, 1
s_add_u32 s{t0}, s{t0}, s{t1}
s_lshl_b32 s{sOffBB}, s{t0}, 12""")
    c += srd(sBd, 44, OH_SIZE, OH_OFF) + srd(sPd, 44, 4 * 2048 * 640 * 4, PART_OFF)
    def dmaW(slot, tag, h0=None):
        r = [I(f"s_add_u32 m0, s{sMW}, {slot*SL2}")]
        for n in range(5):
            if n == 4: r.append(I(f"s_add_u32 m0, s{sMW}, {slot*SL2+4096}"))
            r.append(I(f"buffer_load_dwordx4 v{vWo+n}, {sr(sWd,4)}, s{sOffW} offen offset:{1024*(n%4)} lds", tag_w=tag, rd=['stg'], after=None if h0 is None else h0 + 6 * n))
        r.append(I(f"s_add_u32 s{sOffW}, s{sOffW}, {64*1280}"))
        return r
    def dmaB(slot, tag):
        r = [I(f"s_add_u32 m0, s{sMB}, {slot*SL2}")]
        for n in range(4):
            r.append(I(f"buffer_load_dwordx4 v1, {sr(sBd,4)}, s{sOffBB} offen offset:{1024*n} lds", tag_w=tag, rd=['stg'], before=n + 1))
        r.append(I(f"s_add_u32 s{sOffBB}, s{sOffBB}, 8192"))
        return r
    def reads(slot, e, tag):
        r = []
        bl = [I(f"ds_read_b128 {ar(fB(e,j,ks),4)}, v{vA+slot*3+2} offset:{ks*8192+j*1024}", rd=['stg'], tag_w=tag) for j in range(4) for ks in range(2)]
        al = [[I(f"ds_read_b64_tr_b16 {ar(fA(e,t,ks)+2*u,2)}, v{vA+slot*3+t%2} offset:{32*t+ks*10240+u*5120}", rd=['stg'], tag_w=tag) for ks in range(2) for u in range(2)] for t in range(5)]
        r += al[0] + bl
        for t in range(1, 5): r += al[t]
        return r
    for st in range(3): c += dmaW(st, f"st{st}") + dmaB(st, f"st{st}")
    c += dmaW(3, "st3")
    c += L(f"""v_lshrrev_b32 v24, 4, v0
v_bfe_u32 v25, v0, 2, 2
v_and_b32 v26, 3, v0
v_lshl_add_u32 v25, v24, 2, v25
v_mul_u32_u24 v25, 320, v25
v_lshl_add_u32 v25, v26, 3, v25
v_and_b32 v26, 1, v30
v_mul_u32_u24 v27, 160, v26
v_add_u32 v25, v25, v27
v_and_b32 v24, 1, v24
v_lshlrev_b32 v24, 5, v24
v_add_u32 v27, v25, v24
v_sub_u32 v28, v25, v24
v_cmp_eq_u32 vcc, 0, v26
v_cndmask_b32 v24, v28, v27, vcc
v_cndmask_b32 v25, v27, v28, vcc
v_lshrrev_b32 v26, 1, v30
v_lshlrev_b32 v26, 12, v26
v_add_u32 v26, v26, v1
v_add_u32 v26, 20480, v26""")
    for sl in range(4):
        c += L(f"v_add_u32 v{vA+sl*3}, {sl*SL2}, v24\nv_add_u32 v{vA+sl*3+1}, {sl*SL2}, v25\nv_add_u32 v{vA+sl*3+2}, {sl*SL2}, v26")
    for i in range(80): c.append(I(f"v_mov_b32 v{vAc+i}, 0"))
    c += L(f"""s_lshl2_add_u32 s{t0}, s{sMb}, s{sNb}
s_lshl_b32 s{t1}, s{sS}, 6
s_add_u32 s{t0}, s{t0}, s{t1}
s_lshl2_add_u32 s{t0}, s{t0}, s{sWv}
s_mul_i32 s{sOffP}, s{t0}, 20480
s_mov_b32 s{sCn}, 1""")
    c.append(I("s_barrier", tag_r="st0"))
    c += reads(0, 0, "rd0")
    P.block("pro", c)
    P.block("top", L(f""".p2align 6
L_k2:
s_cmp_eq_u32 s{sCn}, s{sN}
s_cmov_b32 s{sWd+2}, 0"""))
    for q in range(4):
        e = q % 2
        s = dmaB((q + 3) % 4, (lambda q: lambda env: f"st{4*env['it']+q+3}")(q))
        if q == 0:
            s += L(f"s_cmp_eq_u32 s{sCn}, s{sN}\ns_cmov_b32 s{sBd+2}, 0")
        s.append(I("s_barrier", tag_r=(lambda q: lambda env: [f"st{4*env['it']+q+1}", f"rd{4*env['it']+q}"])(q), wr=['stg'], after=4))
        s += dmaW(q, (lambda q: lambda env: f"st{4*env['it']+q+4}")(q), 8)
        s += reads((q + 1) % 4, 1 - e, (lambda q: lambda env: f"rd{4*env['it']+q+1}")(q))
        for t in range(5):
            for j in range(4):
                for ks in range(2):
                    d = vr(vAc + (t * 4 + j) * 4, 4)
                    s.append(mfma(d, ar(fA(e, t, ks), 4), ar(fB(e, j, ks), 4), d))
        P.block(f"b{q}", schedule(s, f"k2_b{q}", verbose=dbg))
    P.block("loop", L(f"s_add_u32 s{sCn}, s{sCn}, 1\ns_cmp_le_u32 s{sCn}, s{sN}\ns_cbranch_scc1 L_k2"))
    ep = []
    for t in range(5):
        for j in range(4):
            ep.append(I(f"buffer_store_dwordx4 {vr(vAc+(t*4+j)*4,4)}, v1, {sr(sPd,4)}, s{sOffP} offen offset:{1024*j} sc1"))
        ep.append(I(f"s_add_u32 s{sOffP}, s{sOffP}, 4096"))
    ep += L("L_k2_end:\ns_endpgm")
    P.block("ep", ep)
    tr = [("pro", {})]
    for it in range(8):
        tr.append(("top", {}))
        tr += [(f"b{q}", {'it': it}) for q in range(4)]
        tr.append(("loop", {}))
    tr.append(("ep", {}))
    P.trace = tr
    P.insert_waits(); n = P.fix_hazards(verbose=dbg)
    if dbg: print("; K2 estimate", P.estimate(), "pads", n)
    return header("oproj_kernel") + "\n" + P.text(), kd("oproj_kernel", 128 + 144, 128)

def gen_k3():
    P = Prog()
    c = L(f"""s_cmp_ge_u32 s2, 256
s_cbranch_scc1 L_k3_end
s_load_dwordx2 s[20:21], s[0:1], {A_X}
s_load_dwordx2 s[22:23], s[0:1], {A_OUT}
s_load_dwordx2 s[24:25], s[0:1], {A_WS}
v_lshrrev_b32 v2, 6, v0
v_and_b32 v0, 63, v0
v_lshlrev_b32 v1, 4, v0
v_lshl_add_u32 v1, v2, 10, v1
s_mul_i32 s3, s2, 20480
s_lshr_b32 s16, s2, 4
s_bfe_u32 s17, s2, 0x20002
s_and_b32 s18, s2, 1
s_bfe_u32 s19, s2, 0x10001
s_lshl1_add_u32 s16, s16, s19
s_mul_i32 s16, s16, {64*1280}
s_mul_i32 s17, s17, 320
s_mul_i32 s18, s18, 160
s_add_u32 s16, s16, s17
s_add_u32 s16, s16, s18
v_and_b32 v3, 15, v0
v_lshl_add_u32 v3, v2, 4, v3
v_mul_u32_u24 v3, 1280, v3
v_lshrrev_b32 v4, 4, v0
v_lshl_add_u32 v3, v4, 3, v3
s_waitcnt lgkmcnt(0)""")
    c += srd(4, 20, 2048 * 640 * 2) + srd(8, 22, 2048 * 640 * 2) + srd(12, 24, 4 * 2048 * 640 * 4, PART_OFF)
    for t in range(5):
        for s in range(4):
            c.append(I(f"s_add_u32 s26, s3, {s*256*20480+t*4096}"))
            c.append(I(f"buffer_load_dwordx4 {vr(16+(t*4+s)*4,4)}, v1, s[12:15], s26 offen"))
        c.append(I(f"buffer_load_dwordx2 {vr(96+2*t,2)}, v3, s[4:7], s16 offen offset:{32*t}"))
    for t in range(5):
        b = 16 + t * 16
        for i in range(4):
            c += L(f"""v_add_f32 v{b+i}, v{b+i}, v{b+4+i}
v_add_f32 v{b+i}, v{b+i}, v{b+8+i}
v_mul_f32 v{b+4+i}, {hex(f2u(-math.log2(math.e)))}, v{b+12+i}
v_exp_f32 v{b+4+i}, v{b+4+i}
v_mul_f32 v{b+i}, v{b+i}, v{b+12+i}
v_add_f32 v{b+4+i}, 1.0, v{b+4+i}
v_rcp_f32 v{b+4+i}, v{b+4+i}""")
        c += L(f"""v_lshlrev_b32 v{b+8}, 16, v{96+2*t}
v_and_b32 v{b+9}, 0xffff0000, v{96+2*t}
v_lshlrev_b32 v{b+10}, 16, v{97+2*t}
v_and_b32 v{b+11}, 0xffff0000, v{97+2*t}""")
        for i in range(4): c.append(I(f"v_fmac_f32 v{b+8+i}, v{b+i}, v{b+4+i}"))
        c += L(f"""v_cvt_pk_bf16_f32 v{b}, v{b+8}, v{b+9}
v_cvt_pk_bf16_f32 v{b+1}, v{b+10}, v{b+11}
buffer_store_dwordx2 {vr(b,2)}, v3, s[8:11], s16 offen offset:{32*t}""")
    c += L("L_k3_end:\ns_endpgm")
    P.block("k3", c); P.trace = [("k3", {})]
    P.insert_waits(); P.fix_hazards()
    return header("fin_kernel") + "\n" + P.text(), kd("fin_kernel", 112, 112)

def build(path, dbg=False):
    parts = [gen_k0(), gen_k1(dbg), gen_k2(dbg), gen_k3()]
    head = f"""; @launch kernel=ln_kernel grid=(128,1,1) block=(256,1,1) lds=512
; @launch kernel=attn_kernel grid=(256,1,1) block=(256,1,1) lds={SLOT*NS}
; @launch kernel=oproj_kernel grid=(256,1,1) block=(256,1,1) lds={SL2*4}
; @launch kernel=fin_kernel grid=(256,1,1) block=(256,1,1) lds=0
.amdgcn_target "amdgcn-amd-amdhsa--gfx950"
.text
"""
    txt = head + "\n".join(p[0] for p in parts) + '\n.section .rodata,"a"\n' + "\n".join(".p2align 6\n" + p[1] for p in parts) + "\n"
    open(path, "w").write(txt)

if __name__ == "__main__":
    build(sys.argv[1] if len(sys.argv) > 1 else f"cdna_kernels/{NAME}.s", dbg=True)
```

```python
import re

def _expand(op):
    op = op.strip()
    op = op.lstrip('-')
    if op.startswith('abs(') or op.startswith('|'):
        op = op.replace('abs(', '').replace(')', '').replace('|', '')
    m = re.fullmatch(r'([vas])\[(\d+):(\d+)\]', op)
    if m:
        return [f"{m.group(1)}{i}" for i in range(int(m.group(2)), int(m.group(3)) + 1)]
    m = re.fullmatch(r'([vas])(\d+)', op)
    if m:
        return [op]
    if op in ('vcc', 'm0', 'exec', 'scc'):
        return [op]
    if op in ('vcc_lo', 'vcc_hi'):
        return ['vcc']
    return []

TRANS = ('v_exp_f32', 'v_log_f32', 'v_rcp_f32', 'v_rsq_f32', 'v_sqrt_f32', 'v_sin_f32', 'v_cos_f32')
SCC_W = ('s_add_', 's_sub_', 's_addc_', 's_subb_', 's_and_', 's_or_', 's_xor_', 's_lshl_', 's_lshr_', 's_ashr_', 's_cmp', 's_min_', 's_max_', 's_andn2', 's_addk', 's_bfe', 's_not', 's_lshl1', 's_lshl2', 's_lshl3', 's_lshl4')

class Ins:
    __slots__ = ('text', 'kind', 'reads', 'writes', 'after', 'before', 'tag_r', 'tag_w', 'prio', 'uid', 'wait_lgkm', 'wait_vm', 'comment', 'gap')
    _n = 0
    def __init__(self, text, rd=(), wr=(), after=None, before=None, tag_r=None, tag_w=None, prio=0):
        self.text = text.strip()
        self.after = after; self.before = before
        self.tag_r = tag_r; self.tag_w = tag_w
        self.prio = prio
        self.uid = Ins._n; Ins._n += 1
        self.gap = None
        self._parse()
        self.reads |= set(rd); self.writes |= set(wr)
    def _parse(self):
        t = self.text
        self.reads = set(); self.writes = set()
        if t.endswith(':') or t.startswith('.') or t.startswith(';') or not t:
            self.kind = 'label'; return
        parts = t.split(None, 1)
        mn = parts[0]
        rest = parts[1] if len(parts) > 1 else ''
        ops = [o.strip() for o in rest.split(',')] if rest else []
        mods = ''
        if ops:
            sp = ops[-1].split(None, 1)
            ops[-1] = sp[0]
            mods = sp[1] if len(sp) > 1 else ''
        R = lambda i: set(_expand(ops[i])) if i < len(ops) else set()
        allr = lambda a: set().union(*[R(i) for i in range(a, len(ops))]) if len(ops) > a else set()
        if mn.startswith('v_mfma'):
            self.kind = 'mfma'; self.writes = R(0); self.reads = allr(1)
        elif mn.startswith('ds_read') or mn.startswith('ds_bpermute') or mn.startswith('ds_swizzle'):
            self.kind = 'ds'; self.writes = R(0); self.reads = allr(1)
        elif mn.startswith('ds_write') or mn.startswith('ds_add') or mn.startswith('ds_or'):
            self.kind = 'ds'; self.reads = allr(0)
        elif mn.startswith('buffer_load') or mn.startswith('global_load'):
            self.kind = 'vmem'
            if re.search(r'\blds\b', mods) or 'load_lds' in mn:
                self.reads = allr(0) | {'m0'}
            else:
                self.writes = R(0); self.reads = allr(1)
        elif mn.startswith('buffer_store') or mn.startswith('global_store'):
            self.kind = 'vmem'; self.reads = allr(0)
        elif mn.startswith('buffer_atomic') or mn.startswith('global_atomic'):
            self.kind = 'vmem'; self.reads = allr(0)
            if 'sc0' in mods: self.writes = R(0)
        elif mn.startswith('buffer_wbl2') or mn.startswith('buffer_inv'):
            self.kind = 'vmem'
        elif mn.startswith('s_waitcnt') or mn == 's_nop' or mn == 's_sleep' or mn == 's_setprio':
            self.kind = 'wait'
        elif mn == 's_barrier':
            self.kind = 'barrier'
        elif mn.startswith('s_cbranch') or mn == 's_branch' or mn == 's_endpgm':
            self.kind = 'branch'
            if 'scc' in mn: self.reads = {'scc'}
            if 'vcc' in mn: self.reads = {'vcc'}
            if 'exec' in mn: self.reads = {'exec'}
        elif mn.startswith('s_load') or mn.startswith('s_memtime') or mn.startswith('s_memrealtime') or mn.startswith('s_buffer_load'):
            self.kind = 'smem'; self.writes = R(0); self.reads = allr(1)
        elif mn.startswith('s_'):
            self.kind = 'salu'
            if mn.startswith('s_cmp') or mn.startswith('s_bitcmp'):
                self.reads = allr(0); self.writes = {'scc'}
            else:
                self.writes = R(0); self.reads = allr(1)
                if mn.startswith(SCC_W): self.writes.add('scc')
                if mn.startswith('s_cselect') or mn.startswith('s_addc') or mn.startswith('s_subb') or mn.startswith('s_cmov'): self.reads.add('scc')
                if mn.startswith('s_cmov') or mn.startswith('s_addk') or mn.startswith('s_mulk'): self.reads |= R(0)
                if 'saveexec' in mn: self.writes |= {'exec', 'scc'}; self.reads.add('exec')
        elif mn.startswith('v_'):
            base = mn.replace('_e32', '').replace('_e64', '')
            self.kind = 'trans' if base in TRANS else 'valu'
            if 'swap' in mn:
                self.writes = R(0) | R(1); self.reads = R(0) | R(1)
            else:
                self.writes = R(0); self.reads = allr(1)
                if base.startswith('v_fmac') or base.startswith('v_dot2c') or base.startswith('v_writelane') or 'dpp' in mn or 'row_' in mods or 'quad_perm' in mods: self.reads |= R(0)
                if base.startswith('v_add_co') or base.startswith('v_addc_co') or base.startswith('v_sub_co'):
                    self.writes |= R(1); self.reads = allr(2)
                if base.startswith('v_cmpx'): self.writes.add('exec')
        else:
            raise ValueError("unknown instr: " + t)
    def __repr__(self): return self.text

def I(text, **kw): return Ins(text, **kw)

MFMA_RAW_GAPS = 3
DS_LAT_GAPS = 8

def schedule(serial, name="", ds_lat=DS_LAT_GAPS, verbose=False, vm_min=4):
    mf = [x for x in serial if x.kind == 'mfma']
    n = len(mf)
    midx = {x.uid: i for i, x in enumerate(mf)}
    fill = [x for x in serial if x.kind != 'mfma']
    preds = {x.uid: [] for x in fill}
    lo = {x.uid: -1 for x in fill}
    hi = {x.uid: n - 1 for x in fill}
    soft = {x.uid: n - 1 for x in fill}
    lastw = {}; readers = {}
    succs = {x.uid: [] for x in fill}
    def dep(a, b, typ):
        if a is b: return
        if a.kind == 'mfma' and b.kind == 'mfma': return
        if a.kind == 'mfma':
            i = midx[a.uid]
            if typ in ('raw', 'waw'): lo[b.uid] = max(lo[b.uid], min(i + MFMA_RAW_GAPS, n - 1))
            elif typ == 'warc': lo[b.uid] = max(lo[b.uid], min(i + 2, n - 1))
            else: lo[b.uid] = max(lo[b.uid], i)
        elif b.kind == 'mfma':
            i = midx[b.uid]
            if typ == 'raw':
                if a.kind in ('ds',):
                    hi[a.uid] = min(hi[a.uid], i - 1); soft[a.uid] = min(soft[a.uid], i - 1 - ds_lat)
                else:
                    hi[a.uid] = min(hi[a.uid], i - 1); soft[a.uid] = min(soft[a.uid], i - 2)
            else:
                hi[a.uid] = min(hi[a.uid], i - 1); soft[a.uid] = min(soft[a.uid], i - 1)
        else:
            preds[b.uid].append((a, typ)); succs[a.uid].append((b, typ))
    prev_by_kind = {}
    for x in serial:
        for r in x.reads:
            if r in lastw: dep(lastw[r], x, 'raw')
        for r in x.writes:
            if r in lastw: dep(lastw[r], x, 'waw')
            for y in readers.get(r, []):
                typ = 'war'
                if y.kind == 'mfma':
                    ops = [o.strip() for o in y.text.split(None, 1)[1].split(',')]
                    if r in _expand(ops[3]): typ = 'warc'
                dep(y, x, typ)
        for r in x.reads: readers.setdefault(r, []).append(x)
        for r in x.writes: lastw[r] = x; readers[r] = []
        if x.kind in ('ds', 'vmem', 'barrier'):
            k = x.kind
            if k in prev_by_kind: dep(prev_by_kind[k], x, 'order')
            prev_by_kind[k] = x
    for x in fill:
        if x.kind == 'vmem' and x.after is not None and x.before is None:
            soft[x.uid] = min(soft[x.uid], x.after - 6)
        if x.after is not None: lo[x.uid] = max(lo[x.uid], x.after)
        if x.before is not None:
            soft[x.uid] = min(soft[x.uid], x.before)
    for x in reversed(fill):
        for (b, typ) in succs[x.uid]:
            hi[x.uid] = min(hi[x.uid], hi[b.uid])
            d = 1 if (typ == 'raw' or x.kind in ('ds', 'vmem', 'trans')) else 0
            soft[x.uid] = min(soft[x.uid], soft[b.uid] - d)
    for x in fill:
        for (a, typ) in preds[x.uid]:
            lo[x.uid] = max(lo[x.uid], lo[a.uid])
        if lo[x.uid] > hi[x.uid]:
            lo[x.uid] = hi[x.uid]
    wantwait = set()
    seen = set()
    dsw = {}
    for x in serial:
        if x.kind == 'mfma':
            for r in x.reads:
                key = (r, dsw.get(r, -1))
                if (r in dsw or r.startswith('a') or r.startswith('v')) and key not in seen and r in dsw:
                    wantwait.add(midx[x.uid] - 1)
                seen.add(key)
        if x.kind == 'ds':
            for r in x.writes: dsw[r] = x.uid
    placed = {}
    gaps = {g: [] for g in range(-1, n)}
    remaining = list(fill)
    over = 0
    last_vm = -100
    for g in range(-1, n):
        scalar_free = (g not in wantwait)
        vec = 2
        has_valu = False; has_ds = False
        while True:
            cands = []
            for x in remaining:
                if lo[x.uid] > g: continue
                ok = True
                for (a, typ) in preds[x.uid]:
                    if a.uid not in placed: ok = False; break
                if not ok: continue
                cands.append(x)
            if not cands: break
            cands.sort(key=lambda x: (soft[x.uid], -x.prio, x.uid))
            pick = None
            for x in cands:
                forced = hi[x.uid] <= g
                samegap_raw = any(placed[a.uid] == g and typ == 'raw' and not (a.kind == 'valu' and x.kind == 'valu') for (a, typ) in preds[x.uid])
                samegap_any = any(placed[a.uid] == g for (a, typ) in preds[x.uid])
                fits = False
                if g >= 0 and not samegap_raw:
                    if x.kind in ('salu', 'wait', 'barrier'):
                        fits = scalar_free and not samegap_any
                    elif x.kind == 'ds':
                        fits = vec >= 1 and not has_ds and not any(placed[a.uid] == g and a.kind in ('valu', 'trans') for (a, typ) in preds[x.uid])
                    elif x.kind == 'valu':
                        fits = vec >= 1
                    elif x.kind == 'trans':
                        fits = vec >= 2
                    elif x.kind == 'vmem':
                        fits = vec >= 2 and g - last_vm >= vm_min
                if fits or forced:
                    pick = x; pfits = fits; break
            if pick is None: break
            x = pick
            if not pfits: over += 1
            if x.kind in ('salu', 'wait', 'barrier'):
                scalar_free = False
            elif x.kind == 'ds': vec -= 1; has_ds = True
            elif x.kind == 'valu': vec -= 1
            else: vec -= 2
            if x.kind == 'vmem': last_vm = g
            placed[x.uid] = g; x.gap = g
            gaps[g].append((x, pfits))
            remaining.remove(x)
    assert not remaining, remaining
    out = []
    for g in range(-1, n):
        if g >= 0: out.append(mf[g])
        items = gaps[g]
        if all(f for _, f in items):
            order = {'salu': 0, 'wait': 0, 'barrier': 0, 'ds': 1, 'vmem': 1, 'valu': 2, 'trans': 2}
            items = sorted(items, key=lambda it: order[it[0].kind])
        out += [x for x, _ in items]
    if verbose: print(f"; schedule {name}: {n} mfma, {len(fill)} fillers, {over} overflow")
    return out

class Prog:
    def __init__(self):
        self.blocks = []
        self.trace = []
    def block(self, name, ins):
        self.blocks.append([name, list(ins)])
    def get(self, name):
        for b in self.blocks:
            if b[0] == name: return b
        raise KeyError(name)
    def dyn(self):
        for (name, env) in self.trace:
            for x in self.get(name)[1]:
                yield x, env, name

    def insert_waits(self):
        need = {}
        anchor_of = {}
        for name, ins in self.blocks:
            last_after_mfma = None
            for i, x in enumerate(ins):
                if i > 0 and ins[i - 1].kind == 'mfma': last_after_mfma = x
                if x.kind in ('label', 'branch'): last_after_mfma = None
                anchor_of[x.uid] = last_after_mfma if (last_after_mfma is not None and x.kind == 'mfma') else x
        for _pass in range(6):
            changed = False
            q = {'lgkm': [], 'vm': []}
            seq = {'lgkm': 0, 'vm': 0}
            at_anchor = {}
            smem_out = False
            for x, env, name in self.dyn():
                at_anchor[x.uid] = (seq['lgkm'], seq['vm'])
                if x.uid in need:
                    l, v = need[x.uid]
                    if l is not None: q['lgkm'] = q['lgkm'][len(q['lgkm']) - l:] if l < len(q['lgkm']) and l > 0 else ([] if l == 0 else q['lgkm'])
                    if v is not None: q['vm'] = q['vm'][len(q['vm']) - v:] if v < len(q['vm']) and v > 0 else ([] if v == 0 else q['vm'])
                if x.kind == 'wait' and x.text.startswith('s_waitcnt'):
                    m = re.search(r'lgkmcnt\((\d+)\)', x.text)
                    if m:
                        l = int(m.group(1)); q['lgkm'] = q['lgkm'][len(q['lgkm']) - l:] if 0 < l < len(q['lgkm']) else ([] if l == 0 else q['lgkm'])
                    m = re.search(r'vmcnt\((\d+)\)', x.text)
                    if m:
                        v = int(m.group(1)); q['vm'] = q['vm'][len(q['vm']) - v:] if 0 < v < len(q['vm']) else ([] if v == 0 else q['vm'])
                touched = set(x.reads) | set(x.writes)
                if x.tag_r is not None:
                    t = x.tag_r(env) if callable(x.tag_r) else x.tag_r
                    touched |= set(t if isinstance(t, (list, tuple, set)) else [t])
                for ci, c in enumerate(('lgkm', 'vm')):
                    hit = None
                    for (s, regs, issm) in q[c]:
                        if regs & touched: hit = (s, issm)
                    if hit is not None:
                        a = anchor_of[x.uid]
                        sa = at_anchor[a.uid][ci]
                        if hit[0] >= sa:
                            a = x; sa = seq[c]
                        N = sa - hit[0] - 1
                        if any(sm for (_, _, sm) in q[c]): N = 0; a = x
                        N = min(N, 15 if c == 'lgkm' else 63)
                        cur = need.setdefault(a.uid, [None, None])
                        if cur[ci] is None or N < cur[ci]:
                            cur[ci] = N; changed = True
                        q[c] = [e for e in q[c] if e[0] > hit[0]] if N > 0 or a is not x else []
                if x.kind in ('ds', 'smem'):
                    w = set(x.writes)
                    if x.tag_w is not None:
                        t = x.tag_w(env) if callable(x.tag_w) else x.tag_w
                        w |= set(t if isinstance(t, (list, tuple, set)) else [t])
                    q['lgkm'].append((seq['lgkm'], w, x.kind == 'smem')); seq['lgkm'] += 1
                elif x.kind == 'vmem':
                    w = set(x.writes)
                    if x.tag_w is not None:
                        t = x.tag_w(env) if callable(x.tag_w) else x.tag_w
                        w |= set(t if isinstance(t, (list, tuple, set)) else [t])
                    q['vm'].append((seq['vm'], w, False)); seq['vm'] += 1
            if not changed: break
        else:
            raise RuntimeError("wait insertion did not converge")
        for b in self.blocks:
            out = []
            for x in b[1]:
                if x.uid in need:
                    l, v = need[x.uid]
                    s = "s_waitcnt" + (f" vmcnt({v})" if v is not None else "") + (f" lgkmcnt({l})" if l is not None else "")
                    out.append(I(s))
                out.append(x)
            b[1] = out

    def fix_hazards(self, verbose=False):
        total = 0
        for _pass in range(8):
            pad = {}
            hist = []
            for x, env, name in self.dyn():
                if x.kind == 'label': continue
                need = 0
                dist = 0
                for y in reversed(hist):
                    req = hazard(y, x)
                    if req > dist: need = max(need, req - dist)
                    dist += states(y)
                    if dist > 20: break
                if need:
                    pad[x.uid] = max(pad.get(x.uid, 0), need)
                    hist.append(I(f"s_nop {need-1}"))
                hist.append(x)
                if len(hist) > 40: hist = hist[-30:]
            if not pad: break
            for b in self.blocks:
                out = []
                for x in b[1]:
                    if x.uid in pad:
                        out.append(I(f"s_nop {pad[x.uid]-1}")); total += 1
                        if verbose: print(f"; hazard pad {pad[x.uid]} before {x.text} in {b[0]}")
                    out.append(x)
                b[1] = out
        return total

    def text(self):
        L = []
        for name, ins in self.blocks:
            L.append(f"; ---- {name}")
            for x in ins:
                L.append(x.text if x.kind == 'label' else "  " + x.text)
        return "\n".join(L)

    def estimate(self):
        tot = 0; cur = None; per = {}
        def flush(c):
            return max(16, c)
        gap = None
        for x, env, name in self.dyn():
            if x.kind == 'label': continue
            if x.kind == 'mfma':
                if gap is not None:
                    c = flush(gap[0]); tot += c; per[gap[2]] = per.get(gap[2], 0) + c
                gap = [8, True, name, 'mfma']
            else:
                cost = 4
                if x.kind in ('trans', 'vmem'): cost = 8
                if x.text.startswith('s_nop'): cost = 4 * (int(x.text.split()[1]) + 1)
                if gap is None:
                    tot += cost; per[name] = per.get(name, 0) + cost; continue
                if x.kind in ('salu', 'wait', 'barrier', 'branch') and gap[1] and cost == 4: cost = 0
                if x.kind == 'ds' and gap[3] in ('valu', 'trans'): cost += 8
                if x.kind == 'ds' and gap[3] == 'ds': cost += 4
                gap[1] = False; gap[0] += cost; gap[3] = x.kind
        if gap is not None:
            c = flush(gap[0]); tot += c; per[gap[2]] = per.get(gap[2], 0) + c
        return tot, per

def states(y):
    if y.text.startswith('s_nop'): return int(y.text.split()[1]) + 1
    return 1

def _vregs(s): return {r for r in s if r[0] in 'va' and r[1:].isdigit()}
def _sregs(s): return {r for r in s if (r[0] == 's' and r[1:].isdigit()) or r == 'vcc'}

def hazard(y, x):
    req = 0
    yv = y.kind in ('valu', 'trans')
    xv = x.kind in ('valu', 'trans')
    if y.kind == 'mfma':
        big = '32x32' in y.text
        D = y.writes
        ops = [o.strip() for o in y.text.split(None, 1)[1].split(',')]
        C = set(_expand(ops[3]))
        if x.kind == 'mfma':
            xo = [o.strip() for o in x.text.split(None, 1)[1].split(',')]
            if D & (set(_expand(xo[1])) | set(_expand(xo[2]))): req = max(req, 12 if big else 8)
            xc = set(_expand(xo[3]))
            if D & xc and xc != D: req = max(req, 10 if big else 6)
            if D & x.writes and not (D & xc): req = max(req, 10 if big else 6)
        elif xv or x.kind in ('ds', 'vmem'):
            if D & (x.reads | x.writes): req = max(req, 12 if big else 8)
            if xv and (C & x.writes): req = max(req, 7 if big else 3)
    if yv:
        W = _vregs(y.writes)
        if x.kind == 'mfma' and W & x.reads: req = max(req, 2)
        if 'permlane' in x.text and W & x.reads: req = max(req, 2)
        if ('dpp' in x.text or 'row_' in x.text or 'quad_perm' in x.text) and W & x.reads: req = max(req, 2)
        if (x.text.startswith('v_readfirstlane') or x.text.startswith('v_readlane')) and W & x.reads: req = max(req, 1)
        if y.kind == 'trans' and x.kind == 'valu' and W & x.reads: req = max(req, 1)
        S = _sregs(y.writes)
        if S:
            if x.kind == 'vmem' and S & x.reads: req = max(req, 5)
            if xv and S & x.reads: req = max(req, 2)
            if x.kind in ('salu', 'branch') and S & x.reads: req = max(req, 2)
        if 'exec' in y.writes: req = max(req, 5)
    if y.kind == 'salu' and 'm0' in y.writes and x.kind == 'vmem' and 'm0' in x.reads: req = max(req, 1)
    if y.kind == 'vmem' and ('store_dwordx4' in y.text or 'store_dwordx3' in y.text):
        data = set(_expand(y.text.split(None, 1)[1].split(',')[0 if y.text.startswith('buffer') else 1]))
        if data & x.writes: req = max(req, 2)
    return req
```

```python
import sys, math, struct, os
from asmlib import *
KN = set(os.environ.get("KN", "").split(","))
NAME = "recurrent_scan__sliding_block_cached__glu_gated_bilinear__prompt"
KNAME = NAME + "_kernel"
XN_OFF = 0; OH_OFF = 0x400000; GP_OFF = 0x2200000; WOP_OFF = 0x2600000; WDP_OFF = 0x2E00000; PART_OFF = 0x3000000
FL_OFF = 0x3A00000
FXN = FL_OFF; FO = FL_OFF + 0x8000; FH = FL_OFF + 0x10000; FP = FL_OFF + 0x18000; FG = FL_OFF + 0x20000; FW = FL_OFF + 0x21000
WS_SIZE = 0x3B00000
STAMP_OFF = 0x8000000
SLOT = 28672; NS = 5; SL2 = 36864
LDS_X = 147456
LDS_TOTAL = 163840
STAMPS = False
SPIN_MAX = 200000

def f2u(x): return struct.unpack('<I', struct.pack('<f', x))[0]
def vr(a, n): return f"v[{a}:{a+n-1}]" if n > 1 else f"v{a}"
def ar(a, n): return f"a[{a}:{a+n-1}]" if n > 1 else f"a{a}"
def sr(a, n): return f"s[{a}:{a+n-1}]" if n > 1 else f"s{a}"
def rr(x, n=4):
    return vr(x[1], n) if x[0] == 'v' else ar(x[1], n)
def L(txt): return [I(t) for t in txt.strip().split("\n") if t.strip()]
def mfma(d, a, b, c): return I(f"v_mfma_f32_16x16x32_bf16 {d}, {a}, {b}, {c}")

sX, sY, sWS, sR = 4, 8, 12, 16
(sOffX, sOffY, sStr, sMX, sMY, sWr, sRd, sDl, sCnt, sOffB, sH, sB, sW, sT0, sT1, sT2, sOffO, sScale,
 sOffK0, sOffG0, sOffH0, sOffH1, sOffH2, sNonce, sOffR, sStrR, sMR, sOffD, sIncD, sOffRo, sOffRd, sOffDo, sOffDd,
 sS, sMb, sNb, sFl, sSpin, sT3, sOffP, sQg) = range(20, 61)
sOffH = sOffH0
pX, pK, pV, pWq, pWo, pBx, pWg, pWu, pWd, pOut, pDbg, pWs = range(64, 88, 2)
sSt = 88
sOut = 92
sXin = 96
vL16 = 1; vX = 2; vY = 5; vKo = 8; vVo = 11
vRo = 14; vRo2 = 15; vRa = 16
vWa = 17; vKa = 19; vVa = 21; vGa = 25
vLs = 26; vT = 30; vNm = 32; vTmp = 48
vAcc = 64; vQ = 64
vS01 = 160; vS23 = 176; vP01 = 208; vP23 = 224; vVs = 232
aK = 192; aR = 240
aFl = 244
vFo = 17
vNon = 18
vStamp = 0

def srd(d, base, size):
    return [I(f"s_mov_b32 s{d}, s{base}"), I(f"s_mov_b32 s{d+1}, s{base+1}"), I(f"s_mov_b32 s{d+2}, {hex(size)}"), I(f"s_mov_b32 s{d+3}, 0x20000")]

def xreduce(v, t, op):
    return L(f"""v_mov_b32 v{t}, v{v}
v_permlane16_swap_b32 v{v}, v{t}
{op} v{v}, v{v}, v{t}
v_mov_b32 v{t}, v{v}
v_permlane32_swap_b32 v{v}, v{t}
{op} v{v}, v{v}, v{t}""")

def divmod_const(q, r, src, c):
    magic = (65536 + c - 1) // c
    for x in range(1400): assert (x * magic) >> 16 == x // c
    return L(f"""v_mul_u32_u24 v{q}, {magic}, v{src}
v_lshrrev_b32 v{q}, 16, v{q}
v_mul_u32_u24 v{r}, {c}, v{q}
v_sub_u32 v{r}, v{src}, v{r}""")
def sdivmod(q, r, src, c):
    magic = (65536 + c - 1) // c
    for x in range(1400): assert (x * magic) >> 16 == x // c
    return L(f"""s_mul_i32 s{q}, s{src}, {magic}
s_lshr_b32 s{q}, s{q}, 16
s_mul_i32 s{r}, s{q}, {c}
s_sub_u32 s{r}, s{src}, s{r}""")

vSt = 31
def stamp(k):
    if not STAMPS: return []
    return L(f"""s_memrealtime s[{sSt}:{sSt+1}]
s_memtime s[{sSt+2}:{sSt+3}]
s_waitcnt lgkmcnt(0)
v_writelane_b32 v{vSt}, s{sSt}, {2*k}
v_writelane_b32 v{vSt}, s{sSt+2}, {2*k+1}""")
def stamp_store(n):
    if not STAMPS: return []
    return stamp(n - 1) + L("s_waitcnt vmcnt(0)") + stamp(n) + L(f"""s_add_u32 s{sX}, s{pWs}, {hex(STAMP_OFF)}
s_addc_u32 s{sX+1}, s{pWs+1}, 0
s_mov_b32 s{sX+2}, {1024*256}
s_mov_b32 s{sX+3}, 0x20000
s_lshl2_add_u32 s{sT0}, s2, s{sW}
s_lshl_b32 s{sT0}, s{sT0}, 8
v_lshlrev_b32 v2, 2, v0
buffer_store_dword v{vSt}, v2, {sr(sX,4)}, s{sT0} offen""")

OUTL = []
def poll_load(dst, vaddr, soff, n=1, **kw):
    op = "buffer_load_dword" if n == 1 else "buffer_load_dwordx4"
    return I(f"{op} {vr(dst,n)}, v{vaddr}, {sr(sWS,4)}, {soff} offen sc1", **kw)
def poll_cmp(dst, n):
    if n == 1: return L(f"v_cmp_ne_u32 vcc, s{sNonce}, v{dst}")
    return L(f"""v_xor_b32 v{dst}, s{sNonce}, v{dst}
v_xor_b32 v{dst+1}, s{sNonce}, v{dst+1}
v_xor_b32 v{dst+2}, s{sNonce}, v{dst+2}
v_xor_b32 v{dst+3}, s{sNonce}, v{dst+3}
v_or3_b32 v{dst}, v{dst}, v{dst+1}, v{dst+2}
v_or_b32 v{dst}, v{dst}, v{dst+3}
v_cmp_ne_u32 vcc, 0, v{dst}""")
def poll_check(name, dst, vaddr, soff, n=1):
    o = L(f"L_spin_{name}:\ns_mov_b32 s{sSpin}, {SPIN_MAX}\nL_spin2_{name}:\ns_sleep 1")
    o += [poll_load(dst, vaddr, soff, n)] + L("s_waitcnt vmcnt(0)") + poll_cmp(dst, n)
    o += L(f"""s_nop 4
s_cbranch_vccz L_back_{name}
s_sub_u32 s{sSpin}, s{sSpin}, 1
s_cmp_lg_u32 s{sSpin}, 0
s_cbranch_scc1 L_spin2_{name}
s_branch L_back_{name}""")
    OUTL.append((f"spin_{name}", o))
    return poll_cmp(dst, n) + L(f"s_nop 4\ns_cbranch_vccnz L_spin_{name}\nL_back_{name}:")
def set_flag(soff, tag, **kw):
    return I(f"buffer_store_dword v{vNon}, v{vFo}, {sr(sWS,4)}, {soff} offen sc1", tag_r=tag, **kw)

def dma_group(stage_tag, hint0=None, step=4, withR=False):
    r = []; k = 0
    for (srdn, vo, so, mo) in ((sX, vX, sOffX, sMX), (sY, vY, sOffY, sMY)):
        r.append(I(f"s_add_u32 m0, s{sWr}, s{mo}"))
        for n in range(3):
            r.append(I(f"buffer_load_dwordx4 v{vo+n}, {sr(srdn,4)}, s{so} offen offset:{1024*n} sc1 lds", tag_w=stage_tag, rd=['stg'],
                       after=None if hint0 is None else hint0 + step * k)); k += 1
        r.append(I(f"s_add_u32 s{so}, s{so}, s{sStr}"))
    if withR:
        r.append(I(f"s_add_u32 m0, s{sWr}, s{sMR}"))
        r.append(I(f"buffer_load_dwordx4 v{vRo}, {sr(sR,4)}, s{sOffR} offen lds", tag_w=stage_tag, rd=['stg'], after=None if hint0 is None else hint0 + step * k))
        r.append(I(f"s_add_u32 s{sOffR}, s{sOffR}, s{sStrR}"))
    r += L(f"s_add_u32 s{sWr}, s{sWr}, {SLOT}\ns_cmp_eq_u32 s{sWr}, {SLOT*NS}\ns_cmov_b32 s{sWr}, 0")
    return r
def ring_advance():
    return L(f"""s_add_u32 s{sRd}, s{sRd}, {SLOT}
s_mov_b32 s{sDl}, {SLOT}
s_cmp_eq_u32 s{sRd}, {SLOT*NS}
s_cmov_b32 s{sDl}, {hex((-SLOT*(NS-1)) & 0xffffffff)}
s_cmov_b32 s{sRd}, 0""")
def barrier(tag, after=None): return I("s_barrier", tag_r=tag, wr=['stg'], after=after)

def acc1(T, j): return vAcc + ((T // 2) * 4 + j) * 8 + (T % 2) * 4
def w_reads(T):
    slot = 64 + (T % 3) * 8
    p, t = T // 2, T % 2
    return [I(f"ds_read_b64_tr_b16 {ar(slot+ks*4+u*2,2)}, v{vWa+p%2} offset:{ks*12288+u*6144+(p//2)*128+8*t}", rd=['stg']) for ks in range(2) for u in range(2)]
def b_loads(base, hint0=0, step=2):
    r = []
    for u in range(2):
        for j in range(4):
            r.append(I(f"buffer_load_dwordx4 {rr((base[0], base[1]+(u*4+j)*4))}, v{vL16}, {sr(sWS,4)}, s{sOffB} offen offset:{1024*j} sc1", after=None if hint0 is None else int(hint0 + step * (u * 4 + j))))
        r.append(I(f"s_add_u32 s{sOffB}, s{sOffB}, 4096"))
    return r
def k_reads(kt):
    return [I(f"ds_read_b128 {ar(aK+kt*24+s*4,4)}, v{vKa+s%2} offset:{kt*6144+(s//2)*128}", rd=['stg']) for s in range(6)]
def v_reads(T):
    return [I(f"ds_read_b64_tr_b16 {vr(vVs+(T%6)*4+u*2,2)}, v{vVa+T%4} offset:{12288+u*6144+(T//4)*128}", rd=['stg']) for u in range(2)]

def p1_step(e, last=False):
    s = []
    if not last: s += b_loads(('a', 32 * (1 - e)), 1, 5)
    s += dma_group(lambda env: f"st{env['sg']+3}", 41 if not last else 2, 5 if not last else 9, withR=last)
    for T in range(12):
        if T + 2 < 12: s += w_reads(T + 2)
        elif T == 10:
            s += ring_advance()
            s.append(barrier(lambda env: f"st{env['sg']+1}", after=72))
            if not last:
                s += [I(f"v_add_u32 v{vWa+i}, s{sDl}, v{vWa+i}") for i in range(2)]
                s += w_reads(0)
            else: s += k_reads(0)
        elif not last: s += w_reads(1)
        slot = 64 + (T % 3) * 8
        for j in range(4):
            for ks in range(2):
                d = vr(acc1(T, j), 4)
                s.append(mfma(d, ar(slot + ks * 4, 4), ar(32 * e + (ks * 4 + j) * 4, 4), d))
        if last and T % 2 == 1:
            p = T // 2
            for j in range(4):
                a = acc1(2 * p, j); q = vQ + (p * 4 + j) * 4
                for i in range(8): s.append(I(f"v_mul_f32 v{a+i}, s{sScale}, v{a+i}"))
                for i in range(4): s.append(I(f"v_cvt_pk_bf16_f32 v{q+i}, v{a+2*i}, v{a+2*i+1}"))
    return s

def Sreg(kt, j, buf, first=False):
    if j < 2: return (vTmp if first else vS01) + (j * 2 + kt) * 4
    return vS23 + buf * 16 + ((j - 2) * 2 + kt) * 4
def Preg(j, buf): return vP01 + buf * 8 + j * 4 if j < 2 else vP23 + (j - 2) * 4
def qk(kt, buf, first=False):
    s = []
    for j in range(4):
        d = vr(Sreg(kt, j, buf, first), 4)
        for p in range(6):
            c = d if p else ("0" if first else vr(vNm + 4 * j, 4))
            s.append(mfma(d, ar(aK + kt * 24 + p * 4, 4), vr(vQ + (p * 4 + j) * 4, 4), c))
    return s
def softmax(j, buf, first=False):
    s = []
    for kt in range(2):
        a = Sreg(kt, j, buf, first)
        for i in range(4): s.append(I(f"v_exp_f32 v{a+i}, v{a+i}"))
        for i in range(4): s.append(I(f"v_add_f32 v{vLs+j}, v{vLs+j}, v{a+i}"))
        for i in range(2): s.append(I(f"v_cvt_pk_bf16_f32 v{Preg(j,buf)+kt*2+i}, v{a+2*i}, v{a+2*i+1}"))
    return s
def pv_T(T, buf, first=False):
    s = []
    for j in range(4):
        d = ar((T * 4 + j) * 4, 4)
        s.append(mfma(d, vr(vVs + (T % 6) * 4, 4), vr(Preg(j, buf), 4), "0" if first else d))
    return s

def p2_iter(e, base=0, first=False):
    s = []
    s += k_reads(1)
    if not first:
        s += [I(f"ds_read_b64_tr_b16 {ar(aR+2*u,2)}, v{vRa} offset:{2048*u}", rd=['stg']) for u in range(2)]
    s += dma_group(lambda env: f"st{env['sg']+3}", base + 4, 9, withR=True)
    if not first:
        s += softmax(2, e) + softmax(3, e)
    s += qk(0, 1 - e) + qk(1, 1 - e)
    for T in range(6): s += v_reads(T)
    s += softmax(0, 1 - e) + softmax(1, 1 - e)
    for T in range(12):
        s += pv_T(T, e, first)
        if T < 6: s += v_reads(T + 6)
        if T == 5:
            s += ring_advance()
            s.append(barrier(lambda env: f"st{env['sg']+1}", after=base + 70))
            s += [I(f"v_add_u32 v{vKa+i}, s{sDl}, v{vKa+i}") for i in range(2)]
            s += k_reads(0)
            s += [I(f"v_add_u32 v{vVa+i}, s{sDl}, v{vVa+i}") for i in range(4)]
            if not first:
                s.append(I(f"v_add_u32 v{vRa}, s{sDl}, v{vRa}"))
                s.append(I(f"buffer_store_dwordx4 {ar(aR,4)}, v{vL16}, {sr(sWS,4)}, s{sOffD} offen sc1", after=base + 90,
                           tag_w=lambda env: "Gst" if env['sg'] < 16 else "Wst"))
                s.append(I(f"s_add_u32 s{sOffD}, s{sOffD}, s{sIncD}"))
    return s

def first_tile():
    s = []
    s += k_reads(1)
    s += dma_group("st13", 96 + 2, 4, withR=True)
    s += qk(0, 0, True)
    s += ring_advance()
    s.append(barrier("st11", after=96 + 28))
    s += [I(f"v_add_u32 v{vKa+i}, s{sDl}, v{vKa+i}") for i in range(2)]
    s += k_reads(0)
    s += qk(1, 0, True)
    for j in range(4):
        a = Sreg(0, j, 0, True); b = Sreg(1, j, 0, True); m = vNm + 4 * j; t = m + 1
        s += L(f"""v_max3_f32 v{m}, v{a}, v{a+1}, v{a+2}
v_max3_f32 v{m}, v{m}, v{a+3}, v{b}
v_max3_f32 v{m}, v{m}, v{b+1}, v{b+2}
v_max_f32 v{m}, v{m}, v{b+3}""")
        s += xreduce(m, t, "v_max_f32")
        s += L(f"v_sub_f32 v{m+1}, 0, v{m}\nv_sub_f32 v{m+2}, 0, v{m}\nv_sub_f32 v{m+3}, 0, v{m}\nv_sub_f32 v{m}, 0, v{m}")
        for i in range(4):
            s.append(I(f"v_add_f32 v{a+i}, v{a+i}, v{m}")); s.append(I(f"v_add_f32 v{b+i}, v{b+i}, v{m}"))
    for j in range(4): s += softmax(j, 0, True)
    return s

vGA = 160; vOP = 184
BBUF = [('a', 192), ('a', 224), ('v', 208), ('a', 0)]
def g_reads(n):
    ds, grp = n // 6, n % 6
    slot = vGA + (n % 3) * 8
    return [I(f"ds_read_b128 {vr(slot+ks*4,4)}, v{vGa} offset:{(((ds%2)*2+ks)*6+grp)*1024}", rd=['stg']) for ks in range(2)]
def acc3(grp, j): return vAcc + (grp * 4 + j) * 4

def tail_pv():
    s = []
    for T in range(6): s += v_reads(T)
    s += softmax(2, 1) + softmax(3, 1)
    s += L(f"s_sub_u32 s{sOffB}, s{sOffB}, {20*4096}")
    s += b_loads(BBUF[0], 0, 3)
    for T in range(12):
        s += pv_T(T, 1)
        if T < 6: s += v_reads(T + 6)
        if T == 5:
            s.append(barrier("st27", after=26))
            s += g_reads(0) + g_reads(1)
            s += b_loads(BBUF[1], 26, 3)
    for j in range(4): s += xreduce(vLs + j, vTmp + j, "v_add_f32")
    s += L(f"""v_add_f32 v{vTmp}, v{vLs}, v{vLs+1}
v_add_f32 v{vTmp+1}, v{vLs+2}, v{vLs+3}
v_add_f32 v{vTmp}, v{vTmp}, v{vTmp+1}
v_cmp_ngt_f32 vcc, {hex(f2u(2.0**40))}, v{vTmp}""")
    for j in range(4): s.append(I(f"v_rcp_f32 v{vLs+j}, v{vLs+j}"))
    return s

def p3_all():
    s = []
    oe = []
    n = 0
    for p in range(6):
        for j in range(4):
            t = vTmp + (n % 2) * 8; o = vOP + (n % 6) * 4
            it = []
            for tt in range(2):
                for i in range(4): it.append(I(f"v_accvgpr_read_b32 v{t+tt*4+i}, a{((2*p+tt)*4+j)*4+i}"))
            for i in range(8): it.append(I(f"v_mul_f32 v{t+i}, v{t+i}, v{vLs+j}"))
            for i in range(4): it.append(I(f"v_cvt_pk_bf16_f32 v{o+i}, v{t+2*i}, v{t+2*i+1}"))
            it.append(I(f"buffer_store_dwordx4 {vr(o,4)}, v{vL16}, {sr(sWS,4)}, s{sOffO} offen offset:{1024*j} sc1", tag_w="Ost"))
            if j == 3: it.append(I(f"s_add_u32 s{sOffO}, s{sOffO}, 4096"))
            oe.append(it); n += 1
    plan = {ds: [] for ds in range(10)}
    def split(lst):
        ch = []; cur = []
        for x in lst:
            cur.append(x)
            if x.kind == 'vmem': ch.append(cur); cur = []
        if cur: ch[-1] += cur
        return ch
    bq = []
    for ds in range(2, 10): bq.append((ds, split(b_loads(BBUF[ds % 4], None))))
    dm = {0: split(dma_group("st29")), 2: split(dma_group("st30")), 4: split(dma_group("st31"))}
    for ds in range(10):
        base = ds * 48
        items = []
        take = []
        if ds == 0: want = [2]
        elif ds == 1: want = [3]
        else: want = [ds + 2]
        for (d, ch) in bq:
            if d in want: take += ch
        st = [oe.pop(0) for _ in range(min(len(oe), 4 if ds < 2 else 3))]
        dd = dm.get(ds, []) [:3] + dm.get(ds - 1, [])[3:]
        seq = []
        q = [take, dd, st]
        tot = len(take) + len(dd) + len(st)
        acc = [0.0, 0.0, 0.0]; w = [len(take), len(dd), len(st)]
        for k in range(tot):
            for z in range(3): acc[z] += w[z]
            z = max((z for z in range(3) if q[z]), key=lambda z: acc[z])
            acc[z] -= tot; seq.append(q[z].pop(0))
        if ds == 1: seq.insert(0, [set_flag(f"s{sT3}", "Wst")])
        if ds == 9: seq.insert(0, [set_flag(f"s{sFl}", "Ost")])
        for k, ch in enumerate(seq):
            for x in ch:
                if x.kind == 'vmem': x.after = base + int(k * 46 / max(len(seq), 1))
            items += ch
        s += items
        for grp in range(6):
            n = ds * 6 + grp
            if n + 2 < 60:
                if (n + 2) % 12 == 0:
                    stg = 27 + (n + 2) // 12
                    s.append(I("s_barrier", tag_r=f"st{stg}", wr=['stg2'], after=base + 24))
                    d = (stg % NS - (stg - 1) % NS) * SLOT
                    s.append(I(f"v_add_u32 v{vGa}, {hex(d & 0xffffffff)}, v{vGa}"))
                rd = g_reads(n + 2)
                for x in rd: x.reads.discard('stg'); x.reads.add('stg2')
                s += rd
            slot = vGA + (n % 3) * 8
            B = BBUF[ds % 4]
            for j in range(4):
                for ks in range(2):
                    d = vr(acc3(grp, j), 4)
                    s.append(mfma(d, vr(slot + ks * 4, 4), rr((B[0], B[1] + (ks * 4 + j) * 4)), "0" if (ds == 0 and ks == 0) else d))
            if ds == 9 and grp % 2 == 1:
                T3 = grp // 2
                for jp in range(2):
                    o = vOP + ((T3 * 2 + jp) % 6) * 4
                    for jj in range(2):
                        j = jp * 2 + jj
                        g = acc3(2 * T3, j); u = acc3(2 * T3 + 1, j)
                        for i in range(4): s.append(I(f"v_mul_f32 v{g+i}, v{g+i}, v{u+i}"))
                        for i in range(2): s.append(I(f"v_cvt_pk_bf16_f32 v{o+jj*2+i}, v{g+2*i}, v{g+2*i+1}"))
                    for i in range(2): s.append(I(f"v_permlane32_swap_b32 v{o+i}, v{o+2+i}"))
                    s.append(I(f"buffer_store_dwordx4 {vr(o,4)}, v{vT}, {sr(sWS,4)}, s{sOffH+T3} offen offset:{2048*jp} sc1", tag_w="Hst"))
    assert not oe
    return s

vA2 = 32
vAc = 64
vDc = 144
vPk = 164
vXr = 204
vPl = 64
vOa = 40; vPo = 41; vFa = 42; vFl = 44
sOffA, sOffBB, sStrB, sMA, sMB = sOffX, sOffY, sStr, sMX, sMY
def fA(e, t, ks): return e * 72 + (t * 2 + ks) * 4
def fB(e, j, ks): return 40 + e * 72 + (ks * 4 + j) * 4
def dA(e, n): return e * 96 + n * 4
def dB(e, ks): return e * 96 + 80 + ks * 4
def dmaA(slot, tag, h0=None, step=8):
    r = [I(f"s_add_u32 m0, s{sMA}, {slot*SL2}")]
    for n in range(5):
        if n == 4: r += L(f"s_add_u32 m0, s{sMA}, {slot*SL2+4096}\ns_add_u32 s{sOffA}, s{sOffA}, 4096")
        r.append(I(f"buffer_load_dwordx4 v{vL16}, {sr(sX,4)}, s{sOffA} offen offset:{1024*(n%4)} sc1 lds", tag_w=tag, rd=['stg'], after=None if h0 is None else int(h0 + step * n)))
    r.append(I(f"s_add_u32 s{sOffA}, s{sOffA}, {20480-4096}"))
    return r
def dmaB(slot, tag, h0=None, step=8):
    r = [I(f"s_add_u32 m0, s{sMB}, {slot*SL2}")]
    for n in range(4):
        r.append(I(f"buffer_load_dwordx4 v{vL16}, {sr(sX,4)}, s{sOffBB} offen offset:{1024*n} sc1 lds", tag_w=tag, rd=['stg'], after=None if h0 is None else int(h0 + step * n)))
    r.append(I(f"s_add_u32 s{sOffBB}, s{sOffBB}, s{sStrB}"))
    return r
def o_reads(slot, e, tag):
    bl = [I(f"ds_read_b128 {ar(fB(e,j,ks),4)}, v{vA2+slot*2+1} offset:{ks*8192+j*1024}", rd=['stg'], tag_w=tag) for j in range(4) for ks in range(2)]
    al = [[I(f"ds_read_b128 {ar(fA(e,t,ks),4)}, v{vA2+slot*2} offset:{(ks*10+t)*1024}", rd=['stg'], tag_w=tag) for ks in range(2)] for t in range(5)]
    r = al[0] + bl
    for t in range(1, 5): r += al[t]
    return r
def d_reads(slot, e, tag):
    r = [I(f"ds_read_b128 {ar(dB(e,ks),4)}, v{vA2+slot*2+1} offset:{ks*4096}", rd=['stg'], tag_w=tag) for ks in range(4)]
    for T in range(5):
        r += [I(f"ds_read_b128 {ar(dA(e,ks*5+T),4)}, v{vA2+slot*2} offset:{(ks*5+T)*1024}", rd=['stg'], tag_w=tag) for ks in range(4)]
    return r
def tg(pre, off): return lambda env: f"{pre}{4*env['it']+off}"
def o_block(q):
    e = q % 2
    s = [I("s_barrier", tag_r=(lambda env: [f"ot{4*env['it']+q+1}", f"rd{4*env['it']+q}"]), wr=['stg'], after=2)]
    s += o_reads((q + 1) % 4, 1 - e, tg("rd", q + 1))
    s += dmaB(q, tg("ot", q + 4), 4, 4) + dmaA(q, tg("ot", q + 4), 20, 4)
    for t in range(5):
        for j in range(4):
            for ks in range(2):
                d = vr(vAc + (t * 4 + j) * 4, 4)
                s.append(mfma(d, ar(fA(e, t, ks), 4), ar(fB(e, j, ks), 4), d))
    return s
def d_block(q, dma=True, nxt=True, extra=()):
    e = q % 2
    s = []
    if nxt:
        s += [I("s_barrier", tag_r=(lambda env: [f"ot{4*env['it']+q+1}", f"rd{4*env['it']+q}"]), wr=['stg'], after=0)]
        s += d_reads((q + 1) % 4, 1 - e, tg("rd", q + 1))
    if dma: s += dmaB(q, tg("ot", q + 4), 1, 2) + dmaA(q, tg("ot", q + 4), 9, 2)
    s += list(extra)
    for T in range(5):
        d = vr(vDc + T * 4, 4)
        for ks in range(4): s.append(mfma(d, ar(dA(e, ks * 5 + T), 4), ar(dB(e, ks), 4), d))
    return s

def gen_fallback():
    F = Prog()
    vK = 232; vS = 176; vP = 208
    vf, vv, va = 48, 49, 50
    sK_, sV_ = sR, sOut
    def kload():
        return [I(f"buffer_load_dwordx4 {vr(vK+4*p,4)}, v{vf}, {sr(sK_,4)}, s{sT0} offen offset:{64*p}") for p in range(6)] + L(f"s_add_u32 s{sT0}, s{sT0}, 6144")
    def chains(kt, c0):
        s = []
        for j in range(4):
            d = vr(vS + (j * 2 + kt) * 4, 4)
            for p in range(6): s.append(mfma(d, vr(vK + 4 * p, 4), vr(vQ + (p * 4 + j) * 4, 4), d if p else c0(j)))
        return s
    c = L("L_fb:\ns_waitcnt vmcnt(0) lgkmcnt(0)\ns_nop 15")
    c += srd(sK_, pK, 32 * 2048 * 192 * 2) + srd(sV_, pV, 32 * 2048 * 192 * 2)
    c += L(f"""v_and_b32 v54, 15, v0
v_lshrrev_b32 v55, 4, v0
v_mul_u32_u24 v{vf}, 384, v54
v_lshl_add_u32 v{vf}, v55, 4, v{vf}
v_lshrrev_b32 v56, 3, v0
v_and_b32 v57, 7, v0
v_and_b32 v58, 6, v56
v_xor_b32 v57, v57, v58
v_mul_u32_u24 v{vv}, 384, v56
v_lshl_add_u32 v{vv}, v57, 4, v{vv}
v_lshrrev_b32 v56, 2, v54
v_lshl_add_u32 v56, v55, 2, v56
v_bfe_u32 v57, v56, 1, 2
v_lshlrev_b32 v56, 7, v56
v_and_b32 v58, 3, v0
v_lshl_add_u32 v56, v58, 3, v56
s_lshl_b32 s{sT2}, s{sW}, 12
s_add_u32 s{sT2}, s{sT2}, {LDS_X}
v_add_u32 v56, s{sT2}, v56""")
    for x in range(4): c += L(f"v_xor_b32 v58, {x}, v57\nv_lshl_add_u32 v{va+x}, v58, 5, v56")
    c += L(f"""s_mul_i32 s{sT1}, s{sH}, 786432
s_add_u32 s{sT1}, s{sT1}, {1536*384}
s_mov_b32 s{sT0}, s{sT1}
s_mov_b32 s{sSpin}, 0""")
    for j in range(4): c += L(f"v_mov_b32 v{vNm+4*j}, 0xff800000")
    F.block("a", c)
    c = L("L_fb1:") + kload() + chains(0, lambda j: "0")
    for j in range(4):
        a = vS + j * 8; m = vNm + 4 * j
        c += L(f"v_max3_f32 v{m}, v{m}, v{a}, v{a+1}\nv_max3_f32 v{m}, v{m}, v{a+2}, v{a+3}")
    c += L(f"s_add_u32 s{sSpin}, s{sSpin}, 1\ns_cmp_lt_u32 s{sSpin}, 32\ns_cbranch_scc1 L_fb1")
    F.block("b", c)
    c = []
    for j in range(4):
        m = vNm + 4 * j
        c += xreduce(m, m + 1, "v_max_f32")
        c += L(f"v_sub_f32 v{m+1}, 0, v{m}\nv_sub_f32 v{m+2}, 0, v{m}\nv_sub_f32 v{m+3}, 0, v{m}\nv_sub_f32 v{m}, 0, v{m}\nv_mov_b32 v{vLs+j}, 0")
    for i in range(192): c.append(I(f"v_accvgpr_write_b32 a{i}, 0"))
    c += L(f"s_mov_b32 s{sT0}, s{sT1}\ns_mov_b32 s{sSpin}, 0")
    F.block("c", c)
    c = L("L_fb2:")
    for kt in range(2): c += kload() + chains(kt, lambda j: vr(vNm + 4 * j, 4)) + L("s_nop 7")
    for j in range(4):
        for kt in range(2):
            a = vS + (j * 2 + kt) * 4
            for i in range(4): c.append(I(f"v_exp_f32 v{a+i}, v{a+i}"))
            for i in range(4): c.append(I(f"v_add_f32 v{vLs+j}, v{vLs+j}, v{a+i}"))
            for i in range(2): c.append(I(f"v_cvt_pk_bf16_f32 v{vP+j*4+kt*2+i}, v{a+2*i}, v{a+2*i+1}"))
    for cg in range(3):
        for a in range(4):
            c += L(f"""s_add_u32 m0, s{sT2}, {1024*a}
s_add_u32 s{sOffP}, s{sT1}, {3072*a+128*cg}
buffer_load_dwordx4 v{vv}, {sr(sV_,4)}, s{sOffP} offen lds""")
        c += L("s_waitcnt vmcnt(0)")
        for x in range(4):
            for u in range(2): c.append(I(f"ds_read_b64_tr_b16 {vr(vK+4*x+2*u,2)}, v{va+x} offset:{2048*u}"))
        c += L("s_waitcnt lgkmcnt(0)")
        for x in range(4):
            for j in range(4):
                d = ar(((cg * 4 + x) * 4 + j) * 4, 4)
                c.append(mfma(d, vr(vK + 4 * x, 4), vr(vP + 4 * j, 4), d))
        c += L("s_nop 7")
    c += L(f"s_add_u32 s{sT1}, s{sT1}, 12288\ns_add_u32 s{sSpin}, s{sSpin}, 1\ns_cmp_lt_u32 s{sSpin}, 16\ns_cbranch_scc1 L_fb2")
    F.block("d", c)
    c = []
    for j in range(4): c += xreduce(vLs + j, vTmp + j, "v_add_f32")
    for j in range(4): c.append(I(f"v_rcp_f32 v{vLs+j}, v{vLs+j}"))
    c += L("s_nop 15\ns_branch L_fb_back")
    F.block("e", c)
    F.trace = [("a", {}), ("b", {}), ("b", {}), ("c", {}), ("d", {}), ("d", {}), ("e", {})]
    F.insert_waits(); F.fix_hazards()
    return F.text()

def fix_tags(lst, env):
    for x in lst:
        if callable(x.tag_r): x.tag_r = x.tag_r(env)
        if callable(x.tag_w): x.tag_w = x.tag_w(env)
    return lst

def gen(dbg=False):
    P = Prog()
    OUTL.clear()
    sch = lambda s, name, **kw: schedule(s, name, verbose=dbg, **kw)
    c = L(f"""s_cmp_ge_u32 s2, 256
s_cbranch_scc1 L_end
s_load_dwordx16 s[64:79], s[0:1], 0
s_load_dwordx8 s[80:87], s[0:1], 64
s_memrealtime s[{sSt}:{sSt+1}]
v_lshrrev_b32 v30, 6, v0
v_and_b32 v0, 63, v0
v_readfirstlane_b32 s{sW}, v30
v_lshlrev_b32 v{vL16}, 4, v0
v_and_b32 v48, 7, v0
v_lshrrev_b32 v49, 3, v0
v_mul_u32_u24 v50, 1280, v48
v_lshl_add_u32 v50, v49, 4, v50
v_lshl_add_u32 v50, v30, 7, v50
s_mul_i32 s{sT0}, s2, {8*1280}
s_and_b32 s{sT1}, s2, 7
s_lshr_b32 s{sT2}, s2, 3
s_and_b32 s{sH}, s{sT2}, 3
s_lshl2_add_u32 s{sH}, s{sT1}, s{sH}
s_lshr_b32 s{sB}, s{sT2}, 2
s_lshr_b32 s{sS}, s{sT1}, 1
s_and_b32 s{sT1}, s{sT1}, 1
s_lshl3_add_u32 s{sMb}, s{sT1}, s{sB}
s_and_b32 s{sNb}, s{sT2}, 3
v_cmp_eq_u32 vcc, 0, v0
v_bfrev_b32 v51, 1
v_cndmask_b32 v52, v51, 0, vcc
v_cmp_gt_u32 vcc, 2, v30
v_add_u32 v53, 1024, v50
v_cndmask_b32 v53, v51, v53, vcc""")
    if STAMPS: c += L(f"v_mov_b32 v{vSt}, 0")
    for n in range(3):
        c.append(I(f"v_add_u32 v54, {64*n}, v0"))
        c += divmod_const(55, 56, 54, 24)
        c += L(f"""v_and_b32 v57, 6, v55
v_xor_b32 v57, v56, v57
v_lshlrev_b32 v57, 4, v57
v_subrev_u32 v57, {1024*n}, v57
v_mul_u32_u24 v58, 384, v55
v_add_u32 v{vVo+n}, v58, v57
v_and_b32 v59, 4, v55
v_add_u32 v59, v59, v55
v_mul_u32_u24 v59, 12288, v59
v_add_u32 v{vX+n}, v59, v57
v_mov_b32 v{vY+n}, v{vX+n}
v_lshrrev_b32 v59, 1, v55
v_lshl_add_u32 v59, v30, 2, v59
v_and_b32 v59, 7, v59
v_xor_b32 v59, v56, v59
v_lshlrev_b32 v59, 4, v59
v_subrev_u32 v59, {1024*n}, v59
v_add_u32 v{vKo+n}, v58, v59""")
    c += L("s_waitcnt lgkmcnt(0)")
    c += srd(sXin, pX, 2048 * 640 * 2)
    c += L(f"""buffer_load_dwordx4 v[64:67], v50, {sr(sXin,4)}, s{sT0} offen
buffer_load_dwordx4 v[68:71], v50, {sr(sXin,4)}, s{sT0} offen offset:512
buffer_load_dwordx4 v[72:75], v53, {sr(sXin,4)}, s{sT0} offen""")
    c += srd(sR, pDbg, 256)
    c += L(f"""s_or_b32 s{sNonce}, s{sSt}, 1
v_mov_b32 v54, s{sNonce}
s_or_b32 s{sT1}, s2, s{sW}
s_cmp_eq_u32 s{sT1}, 0
s_cselect_b32 s{sT1}, 0, 0x100
buffer_store_dword v54, v52, {sr(sR,4)}, s{sT1} offen sc1""")
    c += stamp(0)
    c += srd(sX, pWq, 640 * 6144 * 2) + srd(sY, pWq, 640 * 6144 * 2) + srd(sWS, pWs, WS_SIZE)
    c += L(f"""s_lshr_b32 s{sT0}, s{sW}, 1
s_and_b32 s{sT1}, s{sW}, 1
s_lshl_b32 s{sT2}, s{sT0}, 5
s_lshl2_add_u32 s{sT2}, s{sT1}, s{sT2}
s_mul_i32 s{sOffX}, s{sT2}, 12288
s_mul_i32 s{sT2}, s{sH}, 384
s_add_u32 s{sOffX}, s{sOffX}, s{sT2}
s_add_u32 s{sOffY}, s{sOffX}, {16*12288}
s_mov_b32 s{sStr}, {64*12288}
s_mul_i32 s{sMX}, s{sW}, 6144
s_add_u32 s{sMY}, s{sMX}, 3072
s_mov_b32 s{sWr}, 0
s_mov_b32 s{sRd}, 0""")
    c += dma_group("st0") + dma_group("st1") + dma_group("st2")
    c += L(f"v_mov_b32 v60, 0\nbuffer_load_dword v61, v60, {sr(sR,4)}, 0 offen sc1")
    c += L(f"""s_lshl2_add_u32 s{sQg}, s{sB}, s{sW}
s_mul_i32 s{sOffB}, s{sQg}, {20*4096}
s_mul_i32 s{sOffG0}, s{sH}, {20*6144}
s_mul_i32 s{sT2}, s{sW}, 6144
s_add_u32 s{sOffG0}, s{sOffG0}, s{sT2}
s_add_u32 s{sOffG0}, s{sOffG0}, {hex(GP_OFF)}
s_mul_i32 s{sOffK0}, s{sH}, 786432
s_mul_i32 s{sT2}, s{sW}, 3072
s_add_u32 s{sOffK0}, s{sOffK0}, s{sT2}
s_add_u32 s{sOffK0}, s{sOffK0}, {1536*384}
s_mul_i32 s{sT2}, s{sQg}, {240*4096}
s_add_u32 s{sT2}, s{sT2}, {hex(OH_OFF)}
s_mul_i32 s{sT3}, s{sH}, {6*4096}
s_add_u32 s{sOffO}, s{sT2}, s{sT3}
s_add_u32 s{sT2}, s{sT2}, {192*4096}
s_mul_i32 s{sT3}, s{sH}, 3""")
    for T3 in range(3):
        c += L(f"""s_lshr_b32 s{sSpin}, s{sT3}, 1
s_lshl_b32 s{sSpin}, s{sSpin}, 12
s_add_u32 s{sOffH+T3}, s{sT2}, s{sSpin}
s_and_b32 s{sSpin}, s{sT3}, 1
s_lshl_b32 s{sSpin}, s{sSpin}, 9
s_add_u32 s{sOffH+T3}, s{sOffH+T3}, s{sSpin}
s_add_u32 s{sT3}, s{sT3}, 1""")
    c += L(f"s_mov_b32 s{sScale}, {hex(f2u(math.log2(math.e) / math.sqrt(192.0)))}\ns_mov_b32 s{sCnt}, 0")
    c += L(f"""s_sub_u32 s{sT2}, s2, 240
s_cmp_lt_u32 s2, 240
s_cselect_b32 s{sT2}, s2, s{sT2}""")
    c += sdivmod(sT3, sSpin, sT2, 10)
    c += L(f"""s_lshl_b32 s{sOffRo}, s{sT3}, 8
s_lshl3_add_u32 s{sOffRo}, s{sW}, s{sOffRo}
s_mul_i32 s{sOffRo}, s{sOffRo}, 1280
s_lshl_b32 s{sFl}, s{sSpin}, 7
s_add_u32 s{sOffRo}, s{sOffRo}, s{sFl}
s_lshl_b32 s{sOffRd}, s{sT3}, 6
s_lshl4_add_u32 s{sOffRd}, s{sT1}, s{sOffRd}
s_lshl3_add_u32 s{sOffRd}, s{sT0}, s{sOffRd}
s_mul_i32 s{sOffRd}, s{sOffRd}, 1280
s_add_u32 s{sOffRd}, s{sOffRd}, s{sFl}
s_lshl2_add_u32 s{sSpin}, s{sSpin}, s{sW}""")
    c += sdivmod(sFl, sOffP, sSpin, 10)
    c += L(f"""s_mul_i32 s{sFl}, s{sFl}, 192
s_lshl3_add_u32 s{sFl}, s{sT3}, s{sFl}
s_mul_i32 s{sFl}, s{sFl}, 10
s_add_u32 s{sFl}, s{sFl}, s{sOffP}
s_lshl_b32 s{sFl}, s{sFl}, 10
s_add_u32 s{sOffDo}, s{sFl}, {hex(WOP_OFF)}""")
    c += sdivmod(sFl, sOffP, sSpin, 5)
    c += L(f"""s_mul_i32 s{sFl}, s{sFl}, 48
s_lshl1_add_u32 s{sFl}, s{sT3}, s{sFl}
s_mul_i32 s{sFl}, s{sFl}, 5
s_add_u32 s{sFl}, s{sFl}, s{sOffP}
s_lshl_b32 s{sFl}, s{sFl}, 10
s_add_u32 s{sOffDd}, s{sFl}, {hex(WDP_OFF)}""")
    c += sdivmod(sT3, sSpin, sT2, 48)
    c += L(f"""s_cmp_ge_u32 s{sSpin}, 24
s_cselect_b32 s{pBx}, s{pWu}, s{pWg}
s_cselect_b32 s{pBx+1}, s{pWu+1}, s{pWg+1}
s_cselect_b32 s{sT2}, 1, 0
s_cselect_b32 s{sFl}, 24, 0
s_sub_u32 s{sSpin}, s{sSpin}, s{sFl}
s_lshl_b32 s{sOffR}, s{sT3}, 7
s_lshl4_add_u32 s{sOffR}, s{sT1}, s{sOffR}
s_lshl2_add_u32 s{sOffR}, s{sT0}, s{sOffR}
s_mul_i32 s{sOffR}, s{sOffR}, 3072
s_lshl_b32 s{sFl}, s{sSpin}, 7
s_add_u32 s{sOffR}, s{sOffR}, s{sFl}
s_mov_b32 s{sStrR}, {32*3072}
s_lshl_b32 s{sMR}, s{sW}, 10
s_add_u32 s{sMR}, s{sMR}, 24576
s_lshl2_add_u32 s{sSpin}, s{sSpin}, s{sW}""")
    c += sdivmod(sFl, sOffP, sSpin, 3)
    c += L(f"""s_mul_i32 s{sFl}, s{sFl}, 20
s_lshl2_add_u32 s{sFl}, s{sT3}, s{sFl}
s_mul_i32 s{sFl}, s{sFl}, 6
s_lshl1_add_u32 s{sFl}, s{sOffP}, s{sFl}
s_add_u32 s{sFl}, s{sFl}, s{sT2}
s_lshl_b32 s{sFl}, s{sFl}, 10
s_add_u32 s{sOffD}, s{sFl}, {hex(GP_OFF)}
s_mov_b32 s{sIncD}, 6144""")
    c += L(f"""v_and_b32 v54, 6, v49
v_xor_b32 v54, v54, v48
v_lshlrev_b32 v54, 4, v54
v_mul_u32_u24 v55, 1280, v49
v_add_u32 v{vRo2}, v55, v54
v_and_b32 v55, 4, v49
v_add_u32 v55, v55, v49
v_mul_u32_u24 v55, 3072, v55
v_add_u32 v{vRo}, v55, v54""")
    c += L(f"""v_lshrrev_b32 v54, 4, v0
v_and_b32 v55, 15, v0
v_lshrrev_b32 v56, 2, v55
v_and_b32 v57, 3, v0
v_lshl_add_u32 v58, v54, 2, v56
v_bfe_u32 v59, v58, 1, 2
v_mul_u32_u24 v62, 384, v58
v_lshlrev_b32 v63, 1, v59
v_xor_b32 v63, v63, v57
v_lshl_add_u32 v{vWa}, v63, 4, v62
v_xor_b32 v63, 4, v63
v_lshl_add_u32 v{vWa+1}, v63, 4, v62
v_lshl_add_u32 v62, v57, 3, v62
v_add_u32 v62, {SLOT*(11%NS)}, v62""")
    for x in range(4):
        c += L(f"v_xor_b32 v63, {x}, v59\nv_lshl_add_u32 v{vVa+x}, v63, 5, v62")
    c += L(f"""v_lshlrev_b32 v62, 7, v58
v_lshl_add_u32 v62, v57, 3, v62
v_xor_b32 v63, v30, v59
v_lshl_add_u32 v62, v63, 5, v62
v_add_u32 v{vRa}, {SLOT*(12%NS)+24576}, v62
v_add_u32 v{vGa}, {SLOT*(27%NS)}, v{vL16}
v_mul_u32_u24 v62, 384, v55
v_add_u32 v62, {SLOT*(10%NS)}, v62
v_lshrrev_b32 v63, 1, v55
v_xor_b32 v63, v63, v54
v_lshl_add_u32 v{vKa}, v63, 4, v62
v_xor_b32 v63, 4, v63
v_lshl_add_u32 v{vKa+1}, v63, 4, v62""")
    c += L(f"""v_lshlrev_b32 v56, 2, v48
v_add_u32 v56, {LDS_X}, v56
v_lshl_add_u32 v57, v30, 5, v56
s_cmp_lt_u32 s{sW}, 2
s_cselect_b32 s{sT0}, 1.0, 0""")
    for i in range(12):
        c += L(f"v_lshlrev_b32 v{80+2*i}, 16, v{64+i}\nv_and_b32 v{81+2*i}, 0xffff0000, v{64+i}")
    def red8(v, t):
        return L(f"v_add_f32_dpp v{v}, v{v}, v{v} row_ror:8 row_mask:0xf bank_mask:0xf") + xreduce(v, t, "v_add_f32")
    for k in range(4): c.append(I(f"v_add_f32 v{104+k}, v{80+k}, v{84+k}"))
    for i in range(8, 24): c.append(I(f"v_add_f32 v{104+i%4}, v{104+i%4}, v{80+i}"))
    c += L("v_add_f32 v104, v104, v105\nv_add_f32 v106, v106, v107\nv_add_f32 v104, v104, v106")
    c += red8(104, 105)
    c += L(f"""ds_write_b32 v57, v104
s_waitcnt lgkmcnt(0)
s_barrier
ds_read_b32 v104, v56
ds_read_b32 v105, v56 offset:32
ds_read_b32 v106, v56 offset:64
ds_read_b32 v107, v56 offset:96
v_add_f32 v104, v104, v105
v_add_f32 v106, v106, v107
v_add_f32 v104, v104, v106
v_mul_f32 v108, {hex(f2u(1.0/640))}, v104""")
    for i in range(24):
        t = 109 + i % 2; a = 104 + (i % 2) + (2 if i >= 16 else 0)
        c.append(I(f"v_sub_f32 v{t}, v{80+i}, v108"))
        c.append(I(f"v_mul_f32 v{a}, v{t}, v{t}" if i in (0, 1, 16, 17) else f"v_fmac_f32 v{a}, v{t}, v{t}"))
    c += L(f"v_add_f32 v104, v104, v105\nv_add_f32 v106, v106, v107\nv_fmac_f32 v104, s{sT0}, v106")
    c += red8(104, 105)
    c += L(f"""ds_write_b32 v57, v104 offset:128
s_waitcnt lgkmcnt(0)
s_barrier
ds_read_b32 v104, v56 offset:128
ds_read_b32 v105, v56 offset:160
ds_read_b32 v106, v56 offset:192
ds_read_b32 v107, v56 offset:224
v_add_f32 v104, v104, v105
v_add_f32 v106, v106, v107
v_add_f32 v104, v104, v106
v_mul_f32 v104, {hex(f2u(1.0/640))}, v104
v_cvt_pk_bf16_f32 v104, v104, v108
v_and_b32 v108, 0xffff0000, v104
v_lshlrev_b32 v104, 16, v104
v_add_f32 v104, {hex(f2u(1e-5))}, v104
v_cvt_pk_bf16_f32 v104, v104, v104
v_lshlrev_b32 v104, 16, v104
v_sqrt_f32 v104, v104
v_cvt_pk_bf16_f32 v104, v104, v104
v_lshlrev_b32 v104, 16, v104
v_rcp_f32 v104, v104""")
    c += L(f"""v_lshrrev_b32 v56, 2, v49
v_lshl_add_u32 v56, v30, 1, v56
v_lshlrev_b32 v56, 12, v56
v_and_b32 v57, 3, v49
v_lshl_add_u32 v56, v57, 8, v56
v_lshl_add_u32 v56, v48, 4, v56
v_add_u32 v57, {16*4096}, v56
v_cndmask_b32 v57, v51, v57, vcc
s_lshr_b32 s{sT0}, s2, 3
s_mul_i32 s{sT0}, s{sT0}, {20*4096}
s_bfe_u32 s{sT1}, s2, 0x20001
s_lshl_b32 s{sT1}, s{sT1}, 10
s_add_u32 s{sT0}, s{sT0}, s{sT1}
s_and_b32 s{sT1}, s2, 1
s_lshl_b32 s{sT1}, s{sT1}, 7
s_add_u32 s{sT0}, s{sT0}, s{sT1}
s_add_u32 s{sT1}, s{sT0}, {8*4096}""")
    for i in range(12):
        a, b = 80 + 2 * i, 81 + 2 * i
        c += L(f"""v_sub_f32 v{a}, v{a}, v108
v_sub_f32 v{b}, v{b}, v108
v_cvt_pk_bf16_f32 v{a}, v{a}, v{b}
v_and_b32 v{b}, 0xffff0000, v{a}
v_lshlrev_b32 v{a}, 16, v{a}
v_mul_f32 v{a}, v{a}, v104
v_mul_f32 v{b}, v{b}, v104
v_cvt_pk_bf16_f32 v{64+i}, v{a}, v{b}""")
        if i == 3: c.append(I(f"buffer_store_dwordx4 v[64:67], v56, {sr(sWS,4)}, s{sT0} offen sc1"))
        if i == 7: c.append(I(f"buffer_store_dwordx4 v[68:71], v56, {sr(sWS,4)}, s{sT1} offen sc1"))
        if i == 11: c.append(I(f"buffer_store_dwordx4 v[72:75], v57, {sr(sWS,4)}, s{sT0} offen sc1"))
    c += stamp(1)
    c += L(f"""s_mov_b32 s{sSpin}, {SPIN_MAX}
L_nonce:
s_waitcnt vmcnt(0)
v_readfirstlane_b32 s{sNonce}, v61
s_nop 3
s_cmp_lg_u32 s{sNonce}, 0
s_cbranch_scc1 L_nonce_ok
buffer_load_dword v61, v60, {sr(sR,4)}, 0 offen sc1
s_sub_u32 s{sSpin}, s{sSpin}, 1
s_cmp_lg_u32 s{sSpin}, 0
s_cbranch_scc1 L_nonce
L_nonce_ok:
s_lshl_b32 s{sT0}, s2, 7
s_lshl2_add_u32 s{sT0}, s{sW}, s{sT0}
s_add_u32 s{sT0}, s{sT0}, {hex(FXN)}
buffer_store_dword v61, v52, {sr(sWS,4)}, s{sT0} offen sc1
v_bfe_u32 v56, v0, 2, 3
v_lshlrev_b32 v56, 7, v56
v_and_b32 v57, 3, v0
v_lshl_add_u32 v56, v57, 2, v56
s_lshl_b32 s{sT0}, s{sQg}, 10
s_add_u32 s{sT0}, s{sT0}, {hex(FXN)}""")
    c += srd(sR, pBx, 640 * 1536 * 2)
    for i in range(4): c.append(I(f"v_mov_b32 v{vLs+i}, 0"))
    for i in range(96): c.append(I(f"v_mov_b32 v{vAcc+i}, 0"))
    c += [poll_load(57, 56, f"s{sT0}")]
    for i in range(96, 192): c.append(I(f"v_mov_b32 v{vAcc+i}, 0"))
    c += poll_check("xn", 57, 56, f"s{sT0}")
    c += stamp(2)
    c += b_loads(('a', 0), None)
    c.append(barrier("st0"))
    c += w_reads(0) + w_reads(1)
    P.block("pro", c)
    P.block("p1_top", L(".p2align 6\nL_p1:"))
    P.block("p1_even", sch(p1_step(0), "p1_even"))
    P.block("p1_mid", L(f"s_cmp_eq_u32 s{sCnt}, 4\ns_cbranch_scc1 L_p1_last\ns_cmp_eq_u32 s{sCnt}, 3\ns_cbranch_scc0 L_p1_odd"))
    sw = srd(sX, pK, 32 * 2048 * 192 * 2) + srd(sY, pV, 32 * 2048 * 192 * 2)
    sw += L(f"""s_mov_b32 s{sOffX}, s{sOffK0}
s_sub_u32 s{sOffY}, s{sOffK0}, 12288
s_mov_b32 s{sStr}, 12288
s_mul_i32 s{sMX}, s{sW}, 3072
s_add_u32 s{sMY}, s{sMX}, 12288""")
    for n in range(3): sw += L(f"v_mov_b32 v{vX+n}, v{vKo+n}\nv_mov_b32 v{vY+n}, v{vVo+n}")
    P.block("p1_switch", sw)
    P.block("p1_odd", L("L_p1_odd:") + sch(p1_step(1), "p1_odd") + L(f"s_add_u32 s{sCnt}, s{sCnt}, 1\ns_branch L_p1"))
    big = fix_tags(p1_step(1, last=True), {'sg': 9}) + first_tile() + fix_tags(p2_iter(0, base=96 + 48, first=True), {'sg': 11})
    big += L(f"""v_cmp_eq_u32 vcc, 0, v0
v_bfrev_b32 v{vNon}, 1
v_cndmask_b32 v{vFo}, v{vNon}, 0, vcc
v_mov_b32 v{vNon}, s{sNonce}""")
    P.block("p1_last", L("L_p1_last:") + stamp(3) + sch(big, "p1_last+first") + stamp(4) + L(f"s_mov_b32 s{sCnt}, 0"))
    tops = {}; mids = {}
    tops[2] = L(f"s_mov_b32 s{sOffD}, s{sOffDo}\ns_mov_b32 s{sIncD}, 10240")
    tops[3] = L(f"s_lshl2_add_u32 s{sT0}, s2, s{sW}\ns_lshl_b32 s{sT0}, s{sT0}, 2\ns_add_u32 s{sT3}, s{sT0}, {hex(FW)}\ns_add_u32 s{sT0}, s{sT0}, {hex(FG)}") + [set_flag(f"s{sT0}", "Gst")]
    tops[5] = L(f"s_lshl_b32 s{sT0}, s{sW}, 10\ns_add_u32 s{sT0}, s{sT0}, {hex(FG)}") + [poll_load(vTmp, vL16, f"s{sT0}", 4)]
    sw = L(f"s_mov_b32 s{sOffD}, s{sOffDd}\ns_mov_b32 s{sIncD}, 5120")
    sw += srd(sX, pWs, WS_SIZE) + srd(sY, pWs, WS_SIZE)
    sw += L(f"""s_mov_b32 s{sOffX}, s{sOffG0}
s_add_u32 s{sOffY}, s{sOffG0}, 3072
s_mov_b32 s{sStr}, 24576
s_mul_i32 s{sMX}, s{sW}, 6144
s_add_u32 s{sMY}, s{sMX}, 3072""")
    for n in range(3): sw += L(f"v_mov_b32 v{vX+n}, v{vL16}\nv_mov_b32 v{vY+n}, v{vL16}")
    tops[6] = sw
    mids[0] = srd(sR, pWo, 6144 * 640 * 2) + L(f"s_mov_b32 s{sOffR}, s{sOffRo}\ns_mov_b32 s{sStrR}, {32*1280}\nv_mov_b32 v{vRo}, v{vRo2}")
    mids[4] = srd(sR, pWd, 1536 * 640 * 2) + L(f"s_mov_b32 s{sOffR}, s{sOffRd}")
    mids[5] = L(f"s_mov_b32 s{sR+2}, 0") + poll_check("g", vTmp, vL16, f"s{sT0}", 4)
    def disp(nm, d):
        mask = sum(1 << k for k in d)
        inl = L(f"s_bitcmp1_b32 {hex(mask)}, s{sCnt}\ns_cbranch_scc1 L_{nm}_disp\nL_{nm}_back:")
        keys = sorted(d)
        hd = L(f"L_{nm}_disp:")
        for k in keys[1:]: hd += L(f"s_cmp_eq_u32 s{sCnt}, {k}\ns_cbranch_scc1 L_{nm}_{k}")
        OUTL.append((f"{nm}_disp", hd))
        for k in keys: OUTL.append((f"{nm}_{k}", L(f"L_{nm}_{k}:") + d[k] + L(f"s_branch L_{nm}_back")))
        return inl
    P.block("p2_top", L(".p2align 6\nL_p2:") + disp("top", tops))
    P.block("p2_odd", sch(p2_iter(1), "p2_odd"))
    P.block("p2_mid", disp("mid", mids))
    P.block("p2_even", sch(p2_iter(0), "p2_even") + L(f"s_add_u32 s{sCnt}, s{sCnt}, 1\ns_cmp_lt_u32 s{sCnt}, 7\ns_cbranch_scc1 L_p2"))
    P.block("tail", stamp(5) + sch(tail_pv(), "tail", vm_min=3))
    P.block("p3_pre", L("s_cbranch_vccnz L_fb\nL_fb_back:") + stamp(6) + L(f"""v_and_b32 v{vT}, 32, v0
v_lshlrev_b32 v{vT}, 4, v{vT}
v_add_u32 v{vT}, v{vT}, v{vL16}
s_lshl_b32 s{sFl}, s{sB}, 5
s_add_u32 s{sFl}, s{sFl}, s{sH}
s_lshl_b32 s{sFl}, s{sFl}, 7
s_lshl2_add_u32 s{sFl}, s{sW}, s{sFl}
s_add_u32 s{sFl}, s{sFl}, {hex(FO)}"""))
    P.block("p3", sch(p3_all(), "p3", vm_min=3))
    c = stamp(7)
    c += L(f"""s_lshl_b32 s{sT0}, s{sW}, 10
s_add_u32 s{sT0}, s{sT0}, {hex(FW)}""")
    c += [poll_load(vTmp, vL16, f"s{sT0}", 4)]
    c += L(f"""s_lshr_b32 s{sT1}, s{sMb}, 1
s_lshl_b32 s{sT1}, s{sT1}, 5
s_lshl3_add_u32 s{sT1}, s{sS}, s{sT1}
s_lshl_b32 s{sT1}, s{sT1}, 7
s_and_b32 s{sT2}, s{sMb}, 1
s_and_b32 s{sT3}, s{sW}, 1
s_lshl1_add_u32 s{sT2}, s{sT2}, s{sT3}
s_lshl2_add_u32 s{sT1}, s{sT2}, s{sT1}
s_add_u32 s{sT1}, s{sT1}, {hex(FO)}
v_and_b32 v{vFa}, 7, v0
v_lshlrev_b32 v{vFa}, 7, v{vFa}""")
    c += [poll_load(vFl, vFa, f"s{sT1}")]
    c += L(f"""s_mul_i32 s{sOffA}, s{sNb}, 192
s_mul_i32 s{sT2}, s{sS}, 48
s_add_u32 s{sOffA}, s{sOffA}, s{sT2}
s_mul_i32 s{sOffA}, s{sOffA}, 10240
s_mul_i32 s{sMA}, s{sW}, 5120
s_add_u32 s{sOffA}, s{sOffA}, s{sMA}
s_add_u32 s{sOffA}, s{sOffA}, {hex(WOP_OFF)}
s_lshl1_add_u32 s{sOffBB}, s{sMb}, s{sT3}
s_mul_i32 s{sOffBB}, s{sOffBB}, 240
s_add_u32 s{sOffBB}, s{sOffBB}, s{sT2}
s_lshr_b32 s{sT2}, s{sW}, 1
s_add_u32 s{sOffBB}, s{sOffBB}, s{sT2}
s_lshl_b32 s{sOffBB}, s{sOffBB}, 12
s_add_u32 s{sOffBB}, s{sOffBB}, {hex(OH_OFF)}
s_mov_b32 s{sStrB}, 8192
s_lshl_b32 s{sMB}, s{sW}, 12
s_add_u32 s{sMB}, s{sMB}, 20480
s_mul_i32 s{sT3}, s{sT3}, 5120
s_lshl_b32 s{sT2}, s{sT2}, 12
s_add_u32 s{sT2}, s{sT2}, 20480""")
    for sl in range(4):
        c += L(f"""v_add_u32 v{vA2+sl*2}, s{sT3}, v{vL16}
v_add_u32 v{vA2+sl*2+1}, s{sT2}, v{vL16}
s_add_u32 s{sT3}, s{sT3}, {SL2}
s_add_u32 s{sT2}, s{sT2}, {SL2}""")
    for i in range(100): c.append(I(f"v_mov_b32 v{vAc+i}, 0"))
    c += poll_check("w", vTmp, vL16, f"s{sT0}", 4)
    c += L("s_barrier")
    c += dmaA(0, "ot0")
    c += poll_check("o", vFl, vFa, f"s{sT1}")
    c += stamp(8)
    c += dmaB(0, "ot0")
    for st in range(1, 4): c += dmaB(st, f"ot{st}") + dmaA(st, f"ot{st}")
    c += L(f"s_add_u32 s{sFl}, s{sFl}, {FH-FO}") + [set_flag(f"s{sFl}", "Hst")]
    c += L(f"s_mov_b32 s{sCnt}, 0")
    c.append(I("s_barrier", tag_r="ot0"))
    c += stamp(9)
    c += o_reads(0, 0, "rd0")
    P.block("o_pro", c)
    ot = {}
    ot[3] = L(f"""s_lshr_b32 s{sT2}, s{sS}, 1
s_lshl1_add_u32 s{sQg}, s{sMb}, s{sT2}
s_lshr_b32 s{sT1}, s{sMb}, 1
s_lshl_b32 s{sT1}, s{sT1}, 12
s_and_b32 s{sT2}, s{sQg}, 3
s_lshl2_add_u32 s{sT1}, s{sT2}, s{sT1}
s_add_u32 s{sT1}, s{sT1}, {hex(FH)}
v_and_b32 v{vFa}, 31, v0
v_lshlrev_b32 v{vFa}, 7, v{vFa}""") + [poll_load(vFl, vFa, f"s{sT1}")]
    ot[5] = poll_check("h", vFl, vFa, f"s{sT1}") + L(f"""s_and_b32 s{sT2}, s{sS}, 1
s_lshl1_add_u32 s{sT2}, s{sNb}, s{sT2}
s_mul_i32 s{sOffA}, s{sT2}, {48*5120}
s_add_u32 s{sOffA}, s{sOffA}, s{sMA}
s_add_u32 s{sOffA}, s{sOffA}, {hex(WDP_OFF)}
s_mul_i32 s{sOffBB}, s{sQg}, 240
s_add_u32 s{sOffBB}, s{sOffBB}, s{sW}
s_add_u32 s{sOffBB}, s{sOffBB}, 192
s_lshl_b32 s{sOffBB}, s{sOffBB}, 12
s_add_u32 s{sOffBB}, s{sOffBB}, {hex(OH_OFF)}
s_mov_b32 s{sStrB}, 16384""")
    P.block("o_top", L(".p2align 6\nL_o:") + disp("ot", ot))
    for q in range(4): P.block(f"o{q}", sch(o_block(q), f"o{q}"))
    P.block("o_loop", L(f"s_add_u32 s{sCnt}, s{sCnt}, 1\ns_cmp_lt_u32 s{sCnt}, 6\ns_cbranch_scc1 L_o"))
    c = stamp(10)
    c += L(f"s_lshl_b32 s{sT2}, s{sW}, 10\ns_add_u32 s{sT2}, s{sT2}, 20480\ns_mov_b32 s{sT3}, 0")
    for sl in range(4):
        c += L(f"""v_add_u32 v{vA2+sl*2}, s{sT3}, v{vL16}
v_add_u32 v{vA2+sl*2+1}, s{sT2}, v{vL16}
s_add_u32 s{sT3}, s{sT3}, {SL2}
s_add_u32 s{sT2}, s{sT2}, {SL2}""")
    c += d_reads(0, 0, "rd24")
    c += L(f"""s_lshl2_add_u32 s{sT0}, s{sMb}, s{sNb}
s_lshl2_add_u32 s{sT1}, s{sT0}, s{sS}
s_lshl2_add_u32 s{sT2}, s{sT1}, s{sW}
s_mul_i32 s{sOffP}, s{sT2}, 10240
s_add_u32 s{sOffP}, s{sOffP}, {hex(PART_OFF)}
s_lshl_b32 s{sFl}, s{sT1}, 7
s_lshl2_add_u32 s{sFl}, s{sW}, s{sFl}
s_add_u32 s{sFl}, s{sFl}, {hex(FP)}""")
    def pk(dst, t, j):
        a = vAc + (t * 4 + j) * 4
        return L(f"v_cvt_pk_bf16_f32 v{dst}, v{a}, v{a+1}\nv_cvt_pk_bf16_f32 v{dst+1}, v{a+2}, v{a+3}")
    n = 0
    for j in range(4):
        for tp in range(2):
            o = vPk + n * 4
            c += pk(o, 2 * tp, j) + pk(o + 2, 2 * tp + 1, j)
            c.append(I(f"buffer_store_dwordx4 {vr(o,4)}, v{vL16}, {sr(sWS,4)}, s{sOffP} offen offset:{(n%4)*1024} sc1", tag_w="Pst"))
            n += 1
            if n % 4 == 0: c.append(I(f"s_add_u32 s{sOffP}, s{sOffP}, 4096"))
    for jp in range(2):
        o = vPk + n * 4
        c += pk(o, 4, 2 * jp) + pk(o + 2, 4, 2 * jp + 1)
        c.append(I(f"buffer_store_dwordx4 {vr(o,4)}, v{vL16}, {sr(sWS,4)}, s{sOffP} offen offset:{jp*1024} sc1", tag_w="Pst"))
        n += 1
    c += srd(sOut, pOut, 2048 * 640 * 2)
    c += L(f"""v_and_b32 v{vOa}, 15, v0
v_mul_u32_u24 v{vOa}, 1280, v{vOa}
v_lshrrev_b32 v{vPo}, 4, v0
v_lshl_add_u32 v{vOa}, v{vPo}, 3, v{vOa}
s_lshl2_add_u32 s{sT2}, s{sQg}, s{sW}
s_mul_i32 s{sOffO}, s{sT2}, {16*1280}
s_and_b32 s{sT2}, s{sS}, 1
s_lshl1_add_u32 s{sT2}, s{sNb}, s{sT2}
s_mul_i32 s{sT2}, s{sT2}, 160
s_add_u32 s{sOffO}, s{sOffO}, s{sT2}
s_lshl_b32 s{sT1}, s{sT0}, 9
s_lshl2_add_u32 s{sT1}, s{sS}, s{sT1}
s_add_u32 s{sT1}, s{sT1}, {hex(FP)}
v_and_b32 v{vFa}, 3, v0
v_lshlrev_b32 v{vFa}, 7, v{vFa}
s_lshl4_add_u32 s{sT2}, s{sT0}, s{sS}
s_mul_i32 s{sOffP}, s{sT2}, 10240
s_add_u32 s{sOffP}, s{sOffP}, {hex(PART_OFF)}
s_lshl_b32 s{sT2}, s{sW}, 11
s_add_u32 s{sOffH0}, s{sOffP}, s{sT2}
s_lshr_b32 s{sT2}, s{sW}, 1
s_lshl_b32 s{sT2}, s{sT2}, 10
s_and_b32 s{sT3}, s{sW}, 1
s_lshl3_add_u32 s{sT2}, s{sT3}, s{sT2}
s_add_u32 s{sT2}, s{sT2}, 8192
s_add_u32 s{sOffH1}, s{sOffP}, s{sT2}
s_mov_b32 s{sCnt}, 6""")
    P.block("d_pro", c)
    dt = {7: [set_flag(f"s{sFl}", "Pst")]}
    P.block("d_top", L(".p2align 6\nL_d:") + disp("dt", dt))
    for q in range(4): P.block(f"d{q}", sch(d_block(q), f"d{q}", vm_min=2))
    P.block("d_loop", L(f"s_add_u32 s{sCnt}, s{sCnt}, 1\ns_cmp_lt_u32 s{sCnt}, 8\ns_cbranch_scc1 L_d"))
    xl = [I(f"buffer_load_dwordx2 {vr(vXr+2*t,2)}, v{vOa}, {sr(sXin,4)}, s{sOffO} offen offset:{32*t}") for t in range(5)]
    P.block("e0", sch(d_block(0, dma=False, extra=[poll_load(vFl, vFa, f"s{sT1}")] + xl), "e0", vm_min=2))
    P.block("e1", sch(d_block(1, dma=False), "e1"))
    pl = []
    for sd in range(4):
        for tp in range(2): pl.append(I(f"buffer_load_dwordx4 {vr(vPl+sd*12+tp*4,4)}, v{vL16}, {sr(sWS,4)}, s{sOffH0} offen offset:{1024*tp} sc1"))
        pl.append(I(f"buffer_load_dwordx2 {vr(vPl+sd*12+8,2)}, v{vL16}, {sr(sWS,4)}, s{sOffH1} offen sc1"))
        pl += L(f"s_add_u32 s{sOffH0}, s{sOffH0}, {4*10240}\ns_add_u32 s{sOffH1}, s{sOffH1}, {4*10240}")
    P.block("e_chk", poll_check("p", vFl, vFa, f"s{sT1}") + pl)
    P.block("e2", sch(d_block(2, dma=False), "e2"))
    P.block("e3", sch(d_block(3, dma=False, nxt=False), "e3"))
    c = stamp(11)
    t0 = 112
    for t in range(5):
        h = vDc + 4 * t
        for i in range(4):
            c += L(f"v_mul_f32 v{t0+4*t+i}, {hex(f2u(-math.log2(math.e)))}, v{h+i}\nv_exp_f32 v{t0+4*t+i}, v{t0+4*t+i}")
        for i in range(4):
            c += L(f"v_add_f32 v{t0+4*t+i}, 1.0, v{t0+4*t+i}\nv_rcp_f32 v{t0+4*t+i}, v{t0+4*t+i}")
        for i in range(4): c += L(f"v_mul_f32 v{h+i}, v{h+i}, v{t0+4*t+i}")
    for t in range(5):
        h = vDc + 4 * t; a = t0 + 4 * t; u = 132
        for sd in range(4):
            for hf in range(2):
                src = vPl + sd * 12 + 2 * t + hf
                if sd == 0:
                    c += L(f"v_lshlrev_b32 v{a+2*hf}, 16, v{src}\nv_and_b32 v{a+2*hf+1}, 0xffff0000, v{src}")
                else:
                    c += L(f"""v_lshlrev_b32 v{u+2*hf}, 16, v{src}
v_and_b32 v{u+2*hf+1}, 0xffff0000, v{src}
v_add_f32 v{a+2*hf}, v{a+2*hf}, v{u+2*hf}
v_add_f32 v{a+2*hf+1}, v{a+2*hf+1}, v{u+2*hf+1}""")
        c += L(f"""v_lshlrev_b32 v{u+4}, 16, v{vXr+2*t}
v_and_b32 v{u+5}, 0xffff0000, v{vXr+2*t}
v_lshlrev_b32 v{u+6}, 16, v{vXr+2*t+1}
v_and_b32 v{u+7}, 0xffff0000, v{vXr+2*t+1}""")
        for i in range(4): c.append(I(f"v_fmac_f32 v{u+4+i}, v{a+i}, v{h+i}"))
        c += L(f"""v_cvt_pk_bf16_f32 v{a}, v{u+4}, v{u+5}
v_cvt_pk_bf16_f32 v{a+1}, v{u+6}, v{u+7}
buffer_store_dwordx2 {vr(a,2)}, v{vOa}, {sr(sOut,4)}, s{sOffO} offen offset:{32*t}""")
    c += stamp_store(13)
    c += L("L_end:\ns_endpgm")
    P.block("fin", c)
    for nm, ins in OUTL: P.block(nm, ins)
    tr = [("pro", {})]
    for i in range(5):
        tr += [("p1_top", {}), ("p1_even", {'sg': 2 * i}), ("p1_mid", {})]
        if i == 3: tr.append(("p1_switch", {}))
        if i < 4: tr.append(("p1_odd", {'sg': 2 * i + 1}))
    tr.append(("p1_last", {}))
    for i in range(7):
        tr.append(("p2_top", {}))
        if i in tops: tr += [("top_disp", {}), (f"top_{i}", {})]
        tr += [("p2_odd", {'sg': 12 + 2 * i}), ("p2_mid", {})]
        if i in mids: tr += [("mid_disp", {}), (f"mid_{i}", {})]
        tr.append(("p2_even", {'sg': 13 + 2 * i}))
    tr += [("tail", {}), ("p3_pre", {}), ("p3", {}), ("o_pro", {})]
    for it in range(6):
        tr.append(("o_top", {}))
        if it in ot: tr += [("ot_disp", {}), (f"ot_{it}", {})]
        tr += [(f"o{q}", {'it': it}) for q in range(4)] + [("o_loop", {})]
    tr.append(("d_pro", {}))
    for it in range(6, 8):
        tr.append(("d_top", {}))
        if it in dt: tr += [("dt_disp", {}), (f"dt_{it}", {})]
        tr += [(f"d{q}", {'it': it}) for q in range(4)] + [("d_loop", {})]
    tr += [("e0", {'it': 8}), ("e1", {'it': 8}), ("e_chk", {}), ("e2", {'it': 8}), ("e3", {'it': 8}), ("fin", {})]
    P.trace = tr
    P.insert_waits()
    n = P.fix_hazards(verbose=False)
    if dbg: print("; estimate", P.estimate(), "pads", n)
    return P.text() + "\n" + gen_fallback()

def build(path, dbg=False):
    body = gen(dbg)
    txt = f"""; @launch grid=(256,1,1) block=(256,1,1) lds={LDS_TOTAL}
.amdgcn_target "amdgcn-amd-amdhsa--gfx950"
.text
.globl {KNAME}
.p2align 8
.type {KNAME},@function
{KNAME}:
{body}
.section .rodata,"a"
.p2align 6
.amdhsa_kernel {KNAME}
  .amdhsa_next_free_vgpr 512
  .amdhsa_next_free_sgpr 102
  .amdhsa_accum_offset 256
  .amdhsa_group_segment_fixed_size 0
  .amdhsa_kernarg_size 96
  .amdhsa_user_sgpr_count 2
  .amdhsa_user_sgpr_kernarg_segment_ptr 1
  .amdhsa_system_sgpr_workgroup_id_x 1
  .amdhsa_float_denorm_mode_32 3
.end_amdhsa_kernel
"""
    open(path, "w").write(txt)

if __name__ == "__main__":
    if "--stamps" in sys.argv:
        STAMPS = True; sys.argv.remove("--stamps")
    build(sys.argv[1], dbg=True)
```

```python
import sys, math, struct, os
from asmlib import *
KN = set(os.environ.get("KN", "").split(","))
NAME = "recurrent_scan__sliding_block_cached__glu_gated_bilinear__prompt"
KNAME = NAME + "_kernel"
XN_OFF = 0; OH_OFF = 0x400000; GP_OFF = 0x2200000; WOP_OFF = 0x2600000; WDP_OFF = 0x2E00000; PART_OFF = 0x3000000
FL_OFF = 0x3A00000
FXN = FL_OFF; FO = FL_OFF + 0x8000; FH = FL_OFF + 0x10000; FP = FL_OFF + 0x18000; FG = FL_OFF + 0x20000; FW = FL_OFF + 0x21000
WS_SIZE = 0x3B00000
STAMP_OFF = 0x8000000
SLOT = 28672; NS = 5; SL2 = 36864
LDS_X = 147456
LDS_TOTAL = 163840
STAMPS = False
SPIN_MAX = 200000

def f2u(x): return struct.unpack('<I', struct.pack('<f', x))[0]
def vr(a, n): return f"v[{a}:{a+n-1}]" if n > 1 else f"v{a}"
def ar(a, n): return f"a[{a}:{a+n-1}]" if n > 1 else f"a{a}"
def sr(a, n): return f"s[{a}:{a+n-1}]" if n > 1 else f"s{a}"
def rr(x, n=4):
    return vr(x[1], n) if x[0] == 'v' else ar(x[1], n)
def L(txt): return [I(t) for t in txt.strip().split("\n") if t.strip()]
def mfma(d, a, b, c): return I(f"v_mfma_f32_16x16x32_bf16 {d}, {a}, {b}, {c}")

sX, sY, sWS, sR = 4, 8, 12, 16
(sOffX, sOffY, sStr, sMX, sMY, sWr, sRd, sDl, sCnt, sOffB, sH, sB, sW, sT0, sT1, sT2, sOffO, sScale,
 sOffK0, sOffG0, sOffH0, sOffH1, sOffH2, sNonce, sOffR, sStrR, sMR, sOffD, sIncD, sOffRo, sOffRd, sOffDo, sOffDd,
 sS, sMb, sNb, sFl, sSpin, sT3, sOffP, sQg) = range(20, 61)
sOffH = sOffH0
pX, pK, pV, pWq, pWo, pBx, pWg, pWu, pWd, pOut, pDbg, pWs = range(64, 88, 2)
sSt = 88
sOut = 92
sXin = 96
vL16 = 1; vX = 2; vY = 5; vKo = 8; vVo = 11
vRo = 14; vRo2 = 15; vRa = 16
vWa = 17; vKa = 19; vVa = 21; vGa = 25
vLs = 26; vT = 30; vNm = 32; vTmp = 48
vAcc = 64; vQ = 64
vS01 = 160; vS23 = 176; vP01 = 208; vP23 = 224; vVs = 232
aK = 192; aR = 240
aFl = 244
vFo = 17
vNon = 18
vStamp = 0

def srd(d, base, size):
    return [I(f"s_mov_b32 s{d}, s{base}"), I(f"s_mov_b32 s{d+1}, s{base+1}"), I(f"s_mov_b32 s{d+2}, {hex(size)}"), I(f"s_mov_b32 s{d+3}, 0x20000")]

def xreduce(v, t, op):
    return L(f"""v_mov_b32 v{t}, v{v}
v_permlane16_swap_b32 v{v}, v{t}
{op} v{v}, v{v}, v{t}
v_mov_b32 v{t}, v{v}
v_permlane32_swap_b32 v{v}, v{t}
{op} v{v}, v{v}, v{t}""")

def divmod_const(q, r, src, c):
    magic = (65536 + c - 1) // c
    for x in range(1400): assert (x * magic) >> 16 == x // c
    return L(f"""v_mul_u32_u24 v{q}, {magic}, v{src}
v_lshrrev_b32 v{q}, 16, v{q}
v_mul_u32_u24 v{r}, {c}, v{q}
v_sub_u32 v{r}, v{src}, v{r}""")
def sdivmod(q, r, src, c):
    magic = (65536 + c - 1) // c
    for x in range(1400): assert (x * magic) >> 16 == x // c
    return L(f"""s_mul_i32 s{q}, s{src}, {magic}
s_lshr_b32 s{q}, s{q}, 16
s_mul_i32 s{r}, s{q}, {c}
s_sub_u32 s{r}, s{src}, s{r}""")

vSt = 31
def stamp(k):
    if not STAMPS: return []
    return L(f"""s_memrealtime s[{sSt}:{sSt+1}]
s_memtime s[{sSt+2}:{sSt+3}]
s_waitcnt lgkmcnt(0)
v_writelane_b32 v{vSt}, s{sSt}, {2*k}
v_writelane_b32 v{vSt}, s{sSt+2}, {2*k+1}""")
def stamp_store(n):
    if not STAMPS: return []
    return stamp(n - 1) + L("s_waitcnt vmcnt(0)") + stamp(n) + L(f"""s_add_u32 s{sX}, s{pWs}, {hex(STAMP_OFF)}
s_addc_u32 s{sX+1}, s{pWs+1}, 0
s_mov_b32 s{sX+2}, {1024*256}
s_mov_b32 s{sX+3}, 0x20000
s_lshl2_add_u32 s{sT0}, s2, s{sW}
s_lshl_b32 s{sT0}, s{sT0}, 8
v_lshlrev_b32 v2, 2, v0
buffer_store_dword v{vSt}, v2, {sr(sX,4)}, s{sT0} offen
s_mov_b32 s{sX}, s{pDbg}
s_mov_b32 s{sX+1}, s{pDbg+1}
s_mov_b32 s{sX+2}, 64
s_lshl2_add_u32 s{sT0}, s2, s{sW}
s_cmp_eq_u32 s{sT0}, 148
s_cselect_b32 s{sT0}, 4, 0x100
v_and_b32 v3, 1, v0
v_lshlrev_b32 v3, 8, v3
v_lshl_add_u32 v2, v0, 1, v3
buffer_store_dword v{vSt}, v2, {sr(sX,4)}, s{sT0} offen""")

OUTL = []
def poll_load(dst, vaddr, soff, n=1, **kw):
    op = "buffer_load_dword" if n == 1 else "buffer_load_dwordx4"
    return I(f"{op} {vr(dst,n)}, v{vaddr}, {sr(sWS,4)}, {soff} offen sc1", **kw)
def poll_cmp(dst, n):
    if n == 1: return L(f"v_cmp_ne_u32 vcc, s{sNonce}, v{dst}")
    return L(f"""v_xor_b32 v{dst}, s{sNonce}, v{dst}
v_xor_b32 v{dst+1}, s{sNonce}, v{dst+1}
v_xor_b32 v{dst+2}, s{sNonce}, v{dst+2}
v_xor_b32 v{dst+3}, s{sNonce}, v{dst+3}
v_or3_b32 v{dst}, v{dst}, v{dst+1}, v{dst+2}
v_or_b32 v{dst}, v{dst}, v{dst+3}
v_cmp_ne_u32 vcc, 0, v{dst}""")
def poll_check(name, dst, vaddr, soff, n=1):
    o = L(f"L_spin_{name}:\ns_mov_b32 s{sSpin}, {SPIN_MAX}\nL_spin2_{name}:\ns_sleep 1")
    o += [poll_load(dst, vaddr, soff, n)] + L("s_waitcnt vmcnt(0)") + poll_cmp(dst, n)
    o += L(f"""s_nop 4
s_cbranch_vccz L_back_{name}
s_sub_u32 s{sSpin}, s{sSpin}, 1
s_cmp_lg_u32 s{sSpin}, 0
s_cbranch_scc1 L_spin2_{name}
s_branch L_back_{name}""")
    OUTL.append((f"spin_{name}", o))
    return poll_cmp(dst, n) + L(f"s_nop 4\ns_cbranch_vccnz L_spin_{name}\nL_back_{name}:")
def set_flag(soff, tag, **kw):
    return I(f"buffer_store_dword v{vNon}, v{vFo}, {sr(sWS,4)}, {soff} offen sc1", tag_r=tag, **kw)

def dma_group(stage_tag, hint0=None, step=4, withR=False):
    r = []; k = 0
    for (srdn, vo, so, mo) in ((sX, vX, sOffX, sMX), (sY, vY, sOffY, sMY)):
        r.append(I(f"s_add_u32 m0, s{sWr}, s{mo}"))
        for n in range(3):
            r.append(I(f"buffer_load_dwordx4 v{vo+n}, {sr(srdn,4)}, s{so} offen offset:{1024*n} sc1 lds", tag_w=stage_tag, rd=['stg'],
                       after=None if hint0 is None else hint0 + step * k)); k += 1
        r.append(I(f"s_add_u32 s{so}, s{so}, s{sStr}"))
    if withR:
        r.append(I(f"s_add_u32 m0, s{sWr}, s{sMR}"))
        r.append(I(f"buffer_load_dwordx4 v{vRo}, {sr(sR,4)}, s{sOffR} offen lds", tag_w=stage_tag, rd=['stg'], after=None if hint0 is None else hint0 + step * k))
        r.append(I(f"s_add_u32 s{sOffR}, s{sOffR}, s{sStrR}"))
    r += L(f"s_add_u32 s{sWr}, s{sWr}, {SLOT}\ns_cmp_eq_u32 s{sWr}, {SLOT*NS}\ns_cmov_b32 s{sWr}, 0")
    return r
def ring_advance():
    return L(f"""s_add_u32 s{sRd}, s{sRd}, {SLOT}
s_mov_b32 s{sDl}, {SLOT}
s_cmp_eq_u32 s{sRd}, {SLOT*NS}
s_cmov_b32 s{sDl}, {hex((-SLOT*(NS-1)) & 0xffffffff)}
s_cmov_b32 s{sRd}, 0""")
def barrier(tag, after=None): return I("s_barrier", tag_r=tag, wr=['stg'], after=after)

def acc1(T, j): return vAcc + ((T // 2) * 4 + j) * 8 + (T % 2) * 4
def w_reads(T):
    slot = 64 + (T % 3) * 8
    p, t = T // 2, T % 2
    return [I(f"ds_read_b64_tr_b16 {ar(slot+ks*4+u*2,2)}, v{vWa+p%2} offset:{ks*12288+u*6144+(p//2)*128+8*t}", rd=['stg']) for ks in range(2) for u in range(2)]
def b_loads(base, hint0=0, step=2):
    r = []
    for u in range(2):
        for j in range(4):
            r.append(I(f"buffer_load_dwordx4 {rr((base[0], base[1]+(u*4+j)*4))}, v{vL16}, {sr(sWS,4)}, s{sOffB} offen offset:{1024*j} sc1", after=None if hint0 is None else int(hint0 + step * (u * 4 + j))))
        r.append(I(f"s_add_u32 s{sOffB}, s{sOffB}, 4096"))
    return r
def k_reads(kt):
    return [I(f"ds_read_b128 {ar(aK+kt*24+s*4,4)}, v{vKa+s%2} offset:{kt*6144+(s//2)*128}", rd=['stg']) for s in range(6)]
def v_reads(T):
    return [I(f"ds_read_b64_tr_b16 {vr(vVs+(T%6)*4+u*2,2)}, v{vVa+T%4} offset:{12288+u*6144+(T//4)*128}", rd=['stg']) for u in range(2)]

def p1_step(e, last=False):
    s = []
    if not last: s += b_loads(('a', 32 * (1 - e)), 1, 5)
    s += dma_group(lambda env: f"st{env['sg']+3}", 41 if not last else 2, 5 if not last else 9, withR=last)
    for T in range(12):
        if T + 2 < 12: s += w_reads(T + 2)
        elif T == 10:
            s += ring_advance()
            s.append(barrier(lambda env: f"st{env['sg']+1}", after=72))
            if not last:
                s += [I(f"v_add_u32 v{vWa+i}, s{sDl}, v{vWa+i}") for i in range(2)]
                s += w_reads(0)
            else: s += k_reads(0)
        elif not last: s += w_reads(1)
        slot = 64 + (T % 3) * 8
        for j in range(4):
            for ks in range(2):
                d = vr(acc1(T, j), 4)
                s.append(mfma(d, ar(slot + ks * 4, 4), ar(32 * e + (ks * 4 + j) * 4, 4), d))
        if last and T % 2 == 1:
            p = T // 2
            for j in range(4):
                a = acc1(2 * p, j); q = vQ + (p * 4 + j) * 4
                for i in range(8): s.append(I(f"v_mul_f32 v{a+i}, s{sScale}, v{a+i}"))
                for i in range(4): s.append(I(f"v_cvt_pk_bf16_f32 v{q+i}, v{a+2*i}, v{a+2*i+1}"))
    return s

def Sreg(kt, j, buf, first=False):
    if j < 2: return (vTmp if first else vS01) + (j * 2 + kt) * 4
    return vS23 + buf * 16 + ((j - 2) * 2 + kt) * 4
def Preg(j, buf): return vP01 + buf * 8 + j * 4 if j < 2 else vP23 + (j - 2) * 4
def qk(kt, buf, first=False):
    s = []
    for j in range(4):
        d = vr(Sreg(kt, j, buf, first), 4)
        for p in range(6):
            c = d if p else ("0" if first else vr(vNm + 4 * j, 4))
            s.append(mfma(d, ar(aK + kt * 24 + p * 4, 4), vr(vQ + (p * 4 + j) * 4, 4), c))
    return s
def softmax(j, buf, first=False):
    s = []
    for kt in range(2):
        a = Sreg(kt, j, buf, first)
        for i in range(4): s.append(I(f"v_exp_f32 v{a+i}, v{a+i}"))
        for i in range(4): s.append(I(f"v_add_f32 v{vLs+j}, v{vLs+j}, v{a+i}"))
        for i in range(2): s.append(I(f"v_cvt_pk_bf16_f32 v{Preg(j,buf)+kt*2+i}, v{a+2*i}, v{a+2*i+1}"))
    return s
def pv_T(T, buf, first=False):
    s = []
    for j in range(4):
        d = ar((T * 4 + j) * 4, 4)
        s.append(mfma(d, vr(vVs + (T % 6) * 4, 4), vr(Preg(j, buf), 4), "0" if first else d))
    return s

def p2_iter(e, base=0, first=False):
    s = []
    s += k_reads(1)
    if not first:
        s += [I(f"ds_read_b64_tr_b16 {ar(aR+2*u,2)}, v{vRa} offset:{2048*u}", rd=['stg']) for u in range(2)]
    s += dma_group(lambda env: f"st{env['sg']+3}", base + 4, 9, withR=True)
    if not first:
        s += softmax(2, e) + softmax(3, e)
    s += qk(0, 1 - e) + qk(1, 1 - e)
    for T in range(6): s += v_reads(T)
    s += softmax(0, 1 - e) + softmax(1, 1 - e)
    for T in range(12):
        s += pv_T(T, e, first)
        if T < 6: s += v_reads(T + 6)
        if T == 5:
            s += ring_advance()
            s.append(barrier(lambda env: f"st{env['sg']+1}", after=base + 70))
            s += [I(f"v_add_u32 v{vKa+i}, s{sDl}, v{vKa+i}") for i in range(2)]
            s += k_reads(0)
            s += [I(f"v_add_u32 v{vVa+i}, s{sDl}, v{vVa+i}") for i in range(4)]
            if not first:
                s.append(I(f"v_add_u32 v{vRa}, s{sDl}, v{vRa}"))
                s.append(I(f"buffer_store_dwordx4 {ar(aR,4)}, v{vL16}, {sr(sWS,4)}, s{sOffD} offen sc1", after=base + 90,
                           tag_w=lambda env: "Gst" if env['sg'] < 16 else "Wst"))
                s.append(I(f"s_add_u32 s{sOffD}, s{sOffD}, s{sIncD}"))
    return s

def first_tile():
    s = []
    s += k_reads(1)
    s += dma_group("st13", 96 + 2, 4, withR=True)
    s += qk(0, 0, True)
    s += ring_advance()
    s.append(barrier("st11", after=96 + 28))
    s += [I(f"v_add_u32 v{vKa+i}, s{sDl}, v{vKa+i}") for i in range(2)]
    s += k_reads(0)
    s += qk(1, 0, True)
    for j in range(4):
        a = Sreg(0, j, 0, True); b = Sreg(1, j, 0, True); m = vNm + 4 * j; t = m + 1
        s += L(f"""v_max3_f32 v{m}, v{a}, v{a+1}, v{a+2}
v_max3_f32 v{m}, v{m}, v{a+3}, v{b}
v_max3_f32 v{m}, v{m}, v{b+1}, v{b+2}
v_max_f32 v{m}, v{m}, v{b+3}""")
        s += xreduce(m, t, "v_max_f32")
        s += L(f"v_sub_f32 v{m+1}, 0, v{m}\nv_sub_f32 v{m+2}, 0, v{m}\nv_sub_f32 v{m+3}, 0, v{m}\nv_sub_f32 v{m}, 0, v{m}")
        for i in range(4):
            s.append(I(f"v_add_f32 v{a+i}, v{a+i}, v{m}")); s.append(I(f"v_add_f32 v{b+i}, v{b+i}, v{m}"))
    for j in range(4): s += softmax(j, 0, True)
    return s

vGA = 160; vOP = 184
BBUF = [('a', 192), ('a', 224), ('v', 208), ('a', 0)]
def g_reads(n):
    ds, grp = n // 6, n % 6
    slot = vGA + (n % 3) * 8
    return [I(f"ds_read_b128 {vr(slot+ks*4,4)}, v{vGa} offset:{(((ds%2)*2+ks)*6+grp)*1024}", rd=['stg']) for ks in range(2)]
def acc3(grp, j): return vAcc + (grp * 4 + j) * 4

def tail_pv():
    s = []
    for T in range(6): s += v_reads(T)
    s += softmax(2, 1) + softmax(3, 1)
    s += L(f"s_sub_u32 s{sOffB}, s{sOffB}, {20*4096}")
    s += b_loads(BBUF[0], 0, 3)
    for T in range(12):
        s += pv_T(T, 1)
        if T < 6: s += v_reads(T + 6)
        if T == 5:
            s.append(barrier("st27", after=26))
            s += g_reads(0) + g_reads(1)
            s += b_loads(BBUF[1], 26, 3)
    for j in range(4): s += xreduce(vLs + j, vTmp + j, "v_add_f32")
    s += L(f"""v_add_f32 v{vTmp}, v{vLs}, v{vLs+1}
v_add_f32 v{vTmp+1}, v{vLs+2}, v{vLs+3}
v_add_f32 v{vTmp}, v{vTmp}, v{vTmp+1}
v_cmp_ngt_f32 vcc, {hex(f2u(2.0**40))}, v{vTmp}""")
    for j in range(4): s.append(I(f"v_rcp_f32 v{vLs+j}, v{vLs+j}"))
    return s

def p3_all():
    s = []
    oe = []
    n = 0
    for p in range(6):
        for j in range(4):
            t = vTmp + (n % 2) * 8; o = vOP + (n % 6) * 4
            it = []
            for tt in range(2):
                for i in range(4): it.append(I(f"v_accvgpr_read_b32 v{t+tt*4+i}, a{((2*p+tt)*4+j)*4+i}"))
            for i in range(8): it.append(I(f"v_mul_f32 v{t+i}, v{t+i}, v{vLs+j}"))
            for i in range(4): it.append(I(f"v_cvt_pk_bf16_f32 v{o+i}, v{t+2*i}, v{t+2*i+1}"))
            it.append(I(f"buffer_store_dwordx4 {vr(o,4)}, v{vL16}, {sr(sWS,4)}, s{sOffO} offen offset:{1024*j} sc1", tag_w="Ost"))
            if j == 3: it.append(I(f"s_add_u32 s{sOffO}, s{sOffO}, 4096"))
            oe.append(it); n += 1
    plan = {ds: [] for ds in range(10)}
    def split(lst):
        ch = []; cur = []
        for x in lst:
            cur.append(x)
            if x.kind == 'vmem': ch.append(cur); cur = []
        if cur: ch[-1] += cur
        return ch
    bq = []
    for ds in range(2, 10): bq.append((ds, split(b_loads(BBUF[ds % 4], None))))
    dm = {0: split(dma_group("st29")), 2: split(dma_group("st30")), 4: split(dma_group("st31"))}
    for ds in range(10):
        base = ds * 48
        items = []
        take = []
        if ds == 0: want = [2]
        elif ds == 1: want = [3]
        else: want = [ds + 2]
        for (d, ch) in bq:
            if d in want: take += ch
        st = [oe.pop(0) for _ in range(min(len(oe), 4 if ds < 2 else 3))]
        dd = dm.get(ds, []) [:3] + dm.get(ds - 1, [])[3:]
        seq = []
        q = [take, dd, st]
        tot = len(take) + len(dd) + len(st)
        acc = [0.0, 0.0, 0.0]; w = [len(take), len(dd), len(st)]
        for k in range(tot):
            for z in range(3): acc[z] += w[z]
            z = max((z for z in range(3) if q[z]), key=lambda z: acc[z])
            acc[z] -= tot; seq.append(q[z].pop(0))
        if ds == 1: seq.insert(0, [set_flag(f"s{sT3}", "Wst")])
        if ds == 9: seq.insert(0, [set_flag(f"s{sFl}", "Ost")])
        for k, ch in enumerate(seq):
            for x in ch:
                if x.kind == 'vmem': x.after = base + int(k * 46 / max(len(seq), 1))
            items += ch
        s += items
        for grp in range(6):
            n = ds * 6 + grp
            if n + 2 < 60:
                if (n + 2) % 12 == 0:
                    stg = 27 + (n + 2) // 12
                    s.append(I("s_barrier", tag_r=f"st{stg}", wr=['stg2'], after=base + 24))
                    d = (stg % NS - (stg - 1) % NS) * SLOT
                    s.append(I(f"v_add_u32 v{vGa}, {hex(d & 0xffffffff)}, v{vGa}"))
                rd = g_reads(n + 2)
                for x in rd: x.reads.discard('stg'); x.reads.add('stg2')
                s += rd
            slot = vGA + (n % 3) * 8
            B = BBUF[ds % 4]
            for j in range(4):
                for ks in range(2):
                    d = vr(acc3(grp, j), 4)
                    s.append(mfma(d, vr(slot + ks * 4, 4), rr((B[0], B[1] + (ks * 4 + j) * 4)), "0" if (ds == 0 and ks == 0) else d))
            if ds == 9 and grp % 2 == 1:
                T3 = grp // 2
                for jp in range(2):
                    o = vOP + ((T3 * 2 + jp) % 6) * 4
                    for jj in range(2):
                        j = jp * 2 + jj
                        g = acc3(2 * T3, j); u = acc3(2 * T3 + 1, j)
                        for i in range(4): s.append(I(f"v_mul_f32 v{g+i}, v{g+i}, v{u+i}"))
                        for i in range(2): s.append(I(f"v_cvt_pk_bf16_f32 v{o+jj*2+i}, v{g+2*i}, v{g+2*i+1}"))
                    for i in range(2): s.append(I(f"v_permlane32_swap_b32 v{o+i}, v{o+2+i}"))
                    s.append(I(f"buffer_store_dwordx4 {vr(o,4)}, v{vT}, {sr(sWS,4)}, s{sOffH+T3} offen offset:{2048*jp} sc1", tag_w="Hst"))
    assert not oe
    return s

vA2 = 32
vAc = 64
vDc = 144
vPk = 164
vXr = 204
vPl = 64
vOa = 40; vPo = 41; vFa = 42; vFl = 44
sOffA, sOffBB, sStrB, sMA, sMB = sOffX, sOffY, sStr, sMX, sMY
def fA(e, t, ks): return e * 72 + (t * 2 + ks) * 4
def fB(e, j, ks): return 40 + e * 72 + (ks * 4 + j) * 4
def dA(e, n): return e * 96 + n * 4
def dB(e, ks): return e * 96 + 80 + ks * 4
def dmaA(slot, tag, h0=None, step=8):
    r = [I(f"s_add_u32 m0, s{sMA}, {slot*SL2}")]
    for n in range(5):
        if n == 4: r += L(f"s_add_u32 m0, s{sMA}, {slot*SL2+4096}\ns_add_u32 s{sOffA}, s{sOffA}, 4096")
        r.append(I(f"buffer_load_dwordx4 v{vL16}, {sr(sX,4)}, s{sOffA} offen offset:{1024*(n%4)} sc1 lds", tag_w=tag, rd=['stg'], after=None if h0 is None else int(h0 + step * n)))
    r.append(I(f"s_add_u32 s{sOffA}, s{sOffA}, {20480-4096}"))
    return r
def dmaB(slot, tag, h0=None, step=8):
    r = [I(f"s_add_u32 m0, s{sMB}, {slot*SL2}")]
    for n in range(4):
        r.append(I(f"buffer_load_dwordx4 v{vL16}, {sr(sX,4)}, s{sOffBB} offen offset:{1024*n} sc1 lds", tag_w=tag, rd=['stg'], after=None if h0 is None else int(h0 + step * n)))
    r.append(I(f"s_add_u32 s{sOffBB}, s{sOffBB}, s{sStrB}"))
    return r
def o_reads(slot, e, tag):
    bl = [I(f"ds_read_b128 {ar(fB(e,j,ks),4)}, v{vA2+slot*2+1} offset:{ks*8192+j*1024}", rd=['stg'], tag_w=tag) for j in range(4) for ks in range(2)]
    al = [[I(f"ds_read_b128 {ar(fA(e,t,ks),4)}, v{vA2+slot*2} offset:{(ks*10+t)*1024}", rd=['stg'], tag_w=tag) for ks in range(2)] for t in range(5)]
    r = al[0] + bl
    for t in range(1, 5): r += al[t]
    return r
def d_reads(slot, e, tag):
    r = [I(f"ds_read_b128 {ar(dB(e,ks),4)}, v{vA2+slot*2+1} offset:{ks*4096}", rd=['stg'], tag_w=tag) for ks in range(4)]
    for T in range(5):
        r += [I(f"ds_read_b128 {ar(dA(e,ks*5+T),4)}, v{vA2+slot*2} offset:{(ks*5+T)*1024}", rd=['stg'], tag_w=tag) for ks in range(4)]
    return r
def tg(pre, off): return lambda env: f"{pre}{4*env['it']+off}"
def o_block(q):
    e = q % 2
    s = [I("s_barrier", tag_r=(lambda env: [f"ot{4*env['it']+q+1}", f"rd{4*env['it']+q}"]), wr=['stg'], after=2)]
    s += o_reads((q + 1) % 4, 1 - e, tg("rd", q + 1))
    s += dmaB(q, tg("ot", q + 4), 4, 4) + dmaA(q, tg("ot", q + 4), 20, 4)
    for t in range(5):
        for j in range(4):
            for ks in range(2):
                d = vr(vAc + (t * 4 + j) * 4, 4)
                s.append(mfma(d, ar(fA(e, t, ks), 4), ar(fB(e, j, ks), 4), d))
    return s
def d_block(q, dma=True, nxt=True, extra=()):
    e = q % 2
    s = []
    if nxt:
        s += [I("s_barrier", tag_r=(lambda env: [f"ot{4*env['it']+q+1}", f"rd{4*env['it']+q}"]), wr=['stg'], after=0)]
        s += d_reads((q + 1) % 4, 1 - e, tg("rd", q + 1))
    if dma: s += dmaB(q, tg("ot", q + 4), 1, 2) + dmaA(q, tg("ot", q + 4), 9, 2)
    s += list(extra)
    for T in range(5):
        d = vr(vDc + T * 4, 4)
        for ks in range(4): s.append(mfma(d, ar(dA(e, ks * 5 + T), 4), ar(dB(e, ks), 4), d))
    return s

def gen_fallback():
    F = Prog()
    vK = 232; vS = 176; vP = 208
    vf, vv, va = 48, 49, 50
    sK_, sV_ = sR, sOut
    def kload():
        return [I(f"buffer_load_dwordx4 {vr(vK+4*p,4)}, v{vf}, {sr(sK_,4)}, s{sT0} offen offset:{64*p}") for p in range(6)] + L(f"s_add_u32 s{sT0}, s{sT0}, 6144")
    def chains(kt, c0):
        s = []
        for j in range(4):
            d = vr(vS + (j * 2 + kt) * 4, 4)
            for p in range(6): s.append(mfma(d, vr(vK + 4 * p, 4), vr(vQ + (p * 4 + j) * 4, 4), d if p else c0(j)))
        return s
    c = L("L_fb:\ns_waitcnt vmcnt(0) lgkmcnt(0)\ns_nop 15")
    c += srd(sK_, pK, 32 * 2048 * 192 * 2) + srd(sV_, pV, 32 * 2048 * 192 * 2)
    c += L(f"""v_and_b32 v54, 15, v0
v_lshrrev_b32 v55, 4, v0
v_mul_u32_u24 v{vf}, 384, v54
v_lshl_add_u32 v{vf}, v55, 4, v{vf}
v_lshrrev_b32 v56, 3, v0
v_and_b32 v57, 7, v0
v_and_b32 v58, 6, v56
v_xor_b32 v57, v57, v58
v_mul_u32_u24 v{vv}, 384, v56
v_lshl_add_u32 v{vv}, v57, 4, v{vv}
v_lshrrev_b32 v56, 2, v54
v_lshl_add_u32 v56, v55, 2, v56
v_bfe_u32 v57, v56, 1, 2
v_lshlrev_b32 v56, 7, v56
v_and_b32 v58, 3, v0
v_lshl_add_u32 v56, v58, 3, v56
s_lshl_b32 s{sT2}, s{sW}, 12
s_add_u32 s{sT2}, s{sT2}, {LDS_X}
v_add_u32 v56, s{sT2}, v56""")
    for x in range(4): c += L(f"v_xor_b32 v58, {x}, v57\nv_lshl_add_u32 v{va+x}, v58, 5, v56")
    c += L(f"""s_mul_i32 s{sT1}, s{sH}, 786432
s_add_u32 s{sT1}, s{sT1}, {1536*384}
s_mov_b32 s{sT0}, s{sT1}
s_mov_b32 s{sSpin}, 0""")
    for j in range(4): c += L(f"v_mov_b32 v{vNm+4*j}, 0xff800000")
    F.block("a", c)
    c = L("L_fb1:") + kload() + chains(0, lambda j: "0")
    for j in range(4):
        a = vS + j * 8; m = vNm + 4 * j
        c += L(f"v_max3_f32 v{m}, v{m}, v{a}, v{a+1}\nv_max3_f32 v{m}, v{m}, v{a+2}, v{a+3}")
    c += L(f"s_add_u32 s{sSpin}, s{sSpin}, 1\ns_cmp_lt_u32 s{sSpin}, 32\ns_cbranch_scc1 L_fb1")
    F.block("b", c)
    c = []
    for j in range(4):
        m = vNm + 4 * j
        c += xreduce(m, m + 1, "v_max_f32")
        c += L(f"v_sub_f32 v{m+1}, 0, v{m}\nv_sub_f32 v{m+2}, 0, v{m}\nv_sub_f32 v{m+3}, 0, v{m}\nv_sub_f32 v{m}, 0, v{m}\nv_mov_b32 v{vLs+j}, 0")
    for i in range(192): c.append(I(f"v_accvgpr_write_b32 a{i}, 0"))
    c += L(f"s_mov_b32 s{sT0}, s{sT1}\ns_mov_b32 s{sSpin}, 0")
    F.block("c", c)
    c = L("L_fb2:")
    for kt in range(2): c += kload() + chains(kt, lambda j: vr(vNm + 4 * j, 4)) + L("s_nop 7")
    for j in range(4):
        for kt in range(2):
            a = vS + (j * 2 + kt) * 4
            for i in range(4): c.append(I(f"v_exp_f32 v{a+i}, v{a+i}"))
            for i in range(4): c.append(I(f"v_add_f32 v{vLs+j}, v{vLs+j}, v{a+i}"))
            for i in range(2): c.append(I(f"v_cvt_pk_bf16_f32 v{vP+j*4+kt*2+i}, v{a+2*i}, v{a+2*i+1}"))
    for cg in range(3):
        for a in range(4):
            c += L(f"""s_add_u32 m0, s{sT2}, {1024*a}
s_add_u32 s{sOffP}, s{sT1}, {3072*a+128*cg}
buffer_load_dwordx4 v{vv}, {sr(sV_,4)}, s{sOffP} offen lds""")
        c += L("s_waitcnt vmcnt(0)")
        for x in range(4):
            for u in range(2): c.append(I(f"ds_read_b64_tr_b16 {vr(vK+4*x+2*u,2)}, v{va+x} offset:{2048*u}"))
        c += L("s_waitcnt lgkmcnt(0)")
        for x in range(4):
            for j in range(4):
                d = ar(((cg * 4 + x) * 4 + j) * 4, 4)
                c.append(mfma(d, vr(vK + 4 * x, 4), vr(vP + 4 * j, 4), d))
        c += L("s_nop 7")
    c += L(f"s_add_u32 s{sT1}, s{sT1}, 12288\ns_add_u32 s{sSpin}, s{sSpin}, 1\ns_cmp_lt_u32 s{sSpin}, 16\ns_cbranch_scc1 L_fb2")
    F.block("d", c)
    c = []
    for j in range(4): c += xreduce(vLs + j, vTmp + j, "v_add_f32")
    for j in range(4): c.append(I(f"v_rcp_f32 v{vLs+j}, v{vLs+j}"))
    c += L("s_nop 15\ns_branch L_fb_back")
    F.block("e", c)
    F.trace = [("a", {}), ("b", {}), ("b", {}), ("c", {}), ("d", {}), ("d", {}), ("e", {})]
    F.insert_waits(); F.fix_hazards()
    return F.text()

def fix_tags(lst, env):
    for x in lst:
        if callable(x.tag_r): x.tag_r = x.tag_r(env)
        if callable(x.tag_w): x.tag_w = x.tag_w(env)
    return lst

def gen(dbg=False):
    P = Prog()
    OUTL.clear()
    sch = lambda s, name, **kw: schedule(s, name, verbose=dbg, **kw)
    c = L(f"""s_cmp_ge_u32 s2, 256
s_cbranch_scc1 L_end
s_load_dwordx16 s[64:79], s[0:1], 0
s_load_dwordx8 s[80:87], s[0:1], 64
s_memrealtime s[{sSt}:{sSt+1}]
v_lshrrev_b32 v30, 6, v0
v_and_b32 v0, 63, v0
v_readfirstlane_b32 s{sW}, v30
v_lshlrev_b32 v{vL16}, 4, v0
v_and_b32 v48, 7, v0
v_lshrrev_b32 v49, 3, v0
v_mul_u32_u24 v50, 1280, v48
v_lshl_add_u32 v50, v49, 4, v50
v_lshl_add_u32 v50, v30, 7, v50
s_mul_i32 s{sT0}, s2, {8*1280}
s_and_b32 s{sT1}, s2, 7
s_lshr_b32 s{sT2}, s2, 3
s_and_b32 s{sH}, s{sT2}, 3
s_lshl2_add_u32 s{sH}, s{sT1}, s{sH}
s_lshr_b32 s{sB}, s{sT2}, 2
s_lshr_b32 s{sS}, s{sT1}, 1
s_and_b32 s{sT1}, s{sT1}, 1
s_lshl3_add_u32 s{sMb}, s{sT1}, s{sB}
s_and_b32 s{sNb}, s{sT2}, 3
v_cmp_eq_u32 vcc, 0, v0
v_bfrev_b32 v51, 1
v_cndmask_b32 v52, v51, 0, vcc
v_cmp_gt_u32 vcc, 2, v30
v_add_u32 v53, 1024, v50
v_cndmask_b32 v53, v51, v53, vcc""")
    if STAMPS: c += L(f"v_mov_b32 v{vSt}, 0")
    for n in range(3):
        c.append(I(f"v_add_u32 v54, {64*n}, v0"))
        c += divmod_const(55, 56, 54, 24)
        c += L(f"""v_and_b32 v57, 6, v55
v_xor_b32 v57, v56, v57
v_lshlrev_b32 v57, 4, v57
v_subrev_u32 v57, {1024*n}, v57
v_mul_u32_u24 v58, 384, v55
v_add_u32 v{vVo+n}, v58, v57
v_and_b32 v59, 4, v55
v_add_u32 v59, v59, v55
v_mul_u32_u24 v59, 12288, v59
v_add_u32 v{vX+n}, v59, v57
v_mov_b32 v{vY+n}, v{vX+n}
v_lshrrev_b32 v59, 1, v55
v_lshl_add_u32 v59, v30, 2, v59
v_and_b32 v59, 7, v59
v_xor_b32 v59, v56, v59
v_lshlrev_b32 v59, 4, v59
v_subrev_u32 v59, {1024*n}, v59
v_add_u32 v{vKo+n}, v58, v59""")
    c += L("s_waitcnt lgkmcnt(0)")
    c += srd(sXin, pX, 2048 * 640 * 2)
    c += L(f"""buffer_load_dwordx4 v[64:67], v50, {sr(sXin,4)}, s{sT0} offen
buffer_load_dwordx4 v[68:71], v50, {sr(sXin,4)}, s{sT0} offen offset:512
buffer_load_dwordx4 v[72:75], v53, {sr(sXin,4)}, s{sT0} offen""")
    c += srd(sR, pDbg, 256)
    c += L(f"""s_or_b32 s{sNonce}, s{sSt}, 1
v_mov_b32 v54, s{sNonce}
s_or_b32 s{sT1}, s2, s{sW}
s_cmp_eq_u32 s{sT1}, 0
s_cselect_b32 s{sT1}, 0, 0x100
buffer_store_dword v54, v52, {sr(sR,4)}, s{sT1} offen sc1""")
    c += stamp(0)
    c += srd(sX, pWq, 640 * 6144 * 2) + srd(sY, pWq, 640 * 6144 * 2) + srd(sWS, pWs, WS_SIZE)
    c += L(f"""s_lshr_b32 s{sT0}, s{sW}, 1
s_and_b32 s{sT1}, s{sW}, 1
s_lshl_b32 s{sT2}, s{sT0}, 5
s_lshl2_add_u32 s{sT2}, s{sT1}, s{sT2}
s_mul_i32 s{sOffX}, s{sT2}, 12288
s_mul_i32 s{sT2}, s{sH}, 384
s_add_u32 s{sOffX}, s{sOffX}, s{sT2}
s_add_u32 s{sOffY}, s{sOffX}, {16*12288}
s_mov_b32 s{sStr}, {64*12288}
s_mul_i32 s{sMX}, s{sW}, 6144
s_add_u32 s{sMY}, s{sMX}, 3072
s_mov_b32 s{sWr}, 0
s_mov_b32 s{sRd}, 0""")
    c += dma_group("st0") + dma_group("st1") + dma_group("st2")
    c += L(f"v_mov_b32 v60, 0\nbuffer_load_dword v61, v60, {sr(sR,4)}, 0 offen sc1")
    c += L(f"""s_lshl2_add_u32 s{sQg}, s{sB}, s{sW}
s_mul_i32 s{sOffB}, s{sQg}, {20*4096}
s_mul_i32 s{sOffG0}, s{sH}, {20*6144}
s_mul_i32 s{sT2}, s{sW}, 6144
s_add_u32 s{sOffG0}, s{sOffG0}, s{sT2}
s_add_u32 s{sOffG0}, s{sOffG0}, {hex(GP_OFF)}
s_mul_i32 s{sOffK0}, s{sH}, 786432
s_mul_i32 s{sT2}, s{sW}, 3072
s_add_u32 s{sOffK0}, s{sOffK0}, s{sT2}
s_add_u32 s{sOffK0}, s{sOffK0}, {1536*384}
s_mul_i32 s{sT2}, s{sQg}, {240*4096}
s_add_u32 s{sT2}, s{sT2}, {hex(OH_OFF)}
s_mul_i32 s{sT3}, s{sH}, {6*4096}
s_add_u32 s{sOffO}, s{sT2}, s{sT3}
s_add_u32 s{sT2}, s{sT2}, {192*4096}
s_mul_i32 s{sT3}, s{sH}, 3""")
    for T3 in range(3):
        c += L(f"""s_lshr_b32 s{sSpin}, s{sT3}, 1
s_lshl_b32 s{sSpin}, s{sSpin}, 12
s_add_u32 s{sOffH+T3}, s{sT2}, s{sSpin}
s_and_b32 s{sSpin}, s{sT3}, 1
s_lshl_b32 s{sSpin}, s{sSpin}, 9
s_add_u32 s{sOffH+T3}, s{sOffH+T3}, s{sSpin}
s_add_u32 s{sT3}, s{sT3}, 1""")
    c += L(f"s_mov_b32 s{sScale}, {hex(f2u(math.log2(math.e) / math.sqrt(192.0)))}\ns_mov_b32 s{sCnt}, 0")
    c += L(f"""s_sub_u32 s{sT2}, s2, 240
s_cmp_lt_u32 s2, 240
s_cselect_b32 s{sT2}, s2, s{sT2}""")
    c += sdivmod(sT3, sSpin, sT2, 10)
    c += L(f"""s_lshl_b32 s{sOffRo}, s{sT3}, 8
s_lshl3_add_u32 s{sOffRo}, s{sW}, s{sOffRo}
s_mul_i32 s{sOffRo}, s{sOffRo}, 1280
s_lshl_b32 s{sFl}, s{sSpin}, 7
s_add_u32 s{sOffRo}, s{sOffRo}, s{sFl}
s_lshl_b32 s{sOffRd}, s{sT3}, 6
s_lshl4_add_u32 s{sOffRd}, s{sT1}, s{sOffRd}
s_lshl3_add_u32 s{sOffRd}, s{sT0}, s{sOffRd}
s_mul_i32 s{sOffRd}, s{sOffRd}, 1280
s_add_u32 s{sOffRd}, s{sOffRd}, s{sFl}
s_lshl2_add_u32 s{sSpin}, s{sSpin}, s{sW}""")
    c += sdivmod(sFl, sOffP, sSpin, 10)
    c += L(f"""s_mul_i32 s{sFl}, s{sFl}, 192
s_lshl3_add_u32 s{sFl}, s{sT3}, s{sFl}
s_mul_i32 s{sFl}, s{sFl}, 10
s_add_u32 s{sFl}, s{sFl}, s{sOffP}
s_lshl_b32 s{sFl}, s{sFl}, 10
s_add_u32 s{sOffDo}, s{sFl}, {hex(WOP_OFF)}""")
    c += sdivmod(sFl, sOffP, sSpin, 5)
    c += L(f"""s_mul_i32 s{sFl}, s{sFl}, 48
s_lshl1_add_u32 s{sFl}, s{sT3}, s{sFl}
s_mul_i32 s{sFl}, s{sFl}, 5
s_add_u32 s{sFl}, s{sFl}, s{sOffP}
s_lshl_b32 s{sFl}, s{sFl}, 10
s_add_u32 s{sOffDd}, s{sFl}, {hex(WDP_OFF)}""")
    c += sdivmod(sT3, sSpin, sT2, 48)
    c += L(f"""s_cmp_ge_u32 s{sSpin}, 24
s_cselect_b32 s{pBx}, s{pWu}, s{pWg}
s_cselect_b32 s{pBx+1}, s{pWu+1}, s{pWg+1}
s_cselect_b32 s{sT2}, 1, 0
s_cselect_b32 s{sFl}, 24, 0
s_sub_u32 s{sSpin}, s{sSpin}, s{sFl}
s_lshl_b32 s{sOffR}, s{sT3}, 7
s_lshl4_add_u32 s{sOffR}, s{sT1}, s{sOffR}
s_lshl2_add_u32 s{sOffR}, s{sT0}, s{sOffR}
s_mul_i32 s{sOffR}, s{sOffR}, 3072
s_lshl_b32 s{sFl}, s{sSpin}, 7
s_add_u32 s{sOffR}, s{sOffR}, s{sFl}
s_mov_b32 s{sStrR}, {32*3072}
s_lshl_b32 s{sMR}, s{sW}, 10
s_add_u32 s{sMR}, s{sMR}, 24576
s_lshl2_add_u32 s{sSpin}, s{sSpin}, s{sW}""")
    c += sdivmod(sFl, sOffP, sSpin, 3)
    c += L(f"""s_mul_i32 s{sFl}, s{sFl}, 20
s_lshl2_add_u32 s{sFl}, s{sT3}, s{sFl}
s_mul_i32 s{sFl}, s{sFl}, 6
s_lshl1_add_u32 s{sFl}, s{sOffP}, s{sFl}
s_add_u32 s{sFl}, s{sFl}, s{sT2}
s_lshl_b32 s{sFl}, s{sFl}, 10
s_add_u32 s{sOffD}, s{sFl}, {hex(GP_OFF)}
s_mov_b32 s{sIncD}, 6144""")
    c += L(f"""v_and_b32 v54, 6, v49
v_xor_b32 v54, v54, v48
v_lshlrev_b32 v54, 4, v54
v_mul_u32_u24 v55, 1280, v49
v_add_u32 v{vRo2}, v55, v54
v_and_b32 v55, 4, v49
v_add_u32 v55, v55, v49
v_mul_u32_u24 v55, 3072, v55
v_add_u32 v{vRo}, v55, v54""")
    c += L(f"""v_lshrrev_b32 v54, 4, v0
v_and_b32 v55, 15, v0
v_lshrrev_b32 v56, 2, v55
v_and_b32 v57, 3, v0
v_lshl_add_u32 v58, v54, 2, v56
v_bfe_u32 v59, v58, 1, 2
v_mul_u32_u24 v62, 384, v58
v_lshlrev_b32 v63, 1, v59
v_xor_b32 v63, v63, v57
v_lshl_add_u32 v{vWa}, v63, 4, v62
v_xor_b32 v63, 4, v63
v_lshl_add_u32 v{vWa+1}, v63, 4, v62
v_lshl_add_u32 v62, v57, 3, v62
v_add_u32 v62, {SLOT*(11%NS)}, v62""")
    for x in range(4):
        c += L(f"v_xor_b32 v63, {x}, v59\nv_lshl_add_u32 v{vVa+x}, v63, 5, v62")
    c += L(f"""v_lshlrev_b32 v62, 7, v58
v_lshl_add_u32 v62, v57, 3, v62
v_xor_b32 v63, v30, v59
v_lshl_add_u32 v62, v63, 5, v62
v_add_u32 v{vRa}, {SLOT*(12%NS)+24576}, v62
v_add_u32 v{vGa}, {SLOT*(27%NS)}, v{vL16}
v_mul_u32_u24 v62, 384, v55
v_add_u32 v62, {SLOT*(10%NS)}, v62
v_lshrrev_b32 v63, 1, v55
v_xor_b32 v63, v63, v54
v_lshl_add_u32 v{vKa}, v63, 4, v62
v_xor_b32 v63, 4, v63
v_lshl_add_u32 v{vKa+1}, v63, 4, v62""")
    c += L(f"""v_lshlrev_b32 v56, 2, v48
v_add_u32 v56, {LDS_X}, v56
v_lshl_add_u32 v57, v30, 5, v56
s_cmp_lt_u32 s{sW}, 2
s_cselect_b32 s{sT0}, 1.0, 0""")
    for i in range(12):
        c += L(f"v_lshlrev_b32 v{80+2*i}, 16, v{64+i}\nv_and_b32 v{81+2*i}, 0xffff0000, v{64+i}")
    def red8(v, t):
        return L(f"v_add_f32_dpp v{v}, v{v}, v{v} row_ror:8 row_mask:0xf bank_mask:0xf") + xreduce(v, t, "v_add_f32")
    for k in range(4): c.append(I(f"v_add_f32 v{104+k}, v{80+k}, v{84+k}"))
    for i in range(8, 24): c.append(I(f"v_add_f32 v{104+i%4}, v{104+i%4}, v{80+i}"))
    c += L("v_add_f32 v104, v104, v105\nv_add_f32 v106, v106, v107\nv_add_f32 v104, v104, v106")
    c += red8(104, 105)
    c += L(f"""ds_write_b32 v57, v104
s_waitcnt lgkmcnt(0)
s_barrier
ds_read_b32 v104, v56
ds_read_b32 v105, v56 offset:32
ds_read_b32 v106, v56 offset:64
ds_read_b32 v107, v56 offset:96
v_add_f32 v104, v104, v105
v_add_f32 v106, v106, v107
v_add_f32 v104, v104, v106
v_mul_f32 v108, {hex(f2u(1.0/640))}, v104""")
    for i in range(24):
        t = 109 + i % 2; a = 104 + (i % 2) + (2 if i >= 16 else 0)
        c.append(I(f"v_sub_f32 v{t}, v{80+i}, v108"))
        c.append(I(f"v_mul_f32 v{a}, v{t}, v{t}" if i in (0, 1, 16, 17) else f"v_fmac_f32 v{a}, v{t}, v{t}"))
    c += L(f"v_add_f32 v104, v104, v105\nv_add_f32 v106, v106, v107\nv_fmac_f32 v104, s{sT0}, v106")
    c += red8(104, 105)
    c += L(f"""ds_write_b32 v57, v104 offset:128
s_waitcnt lgkmcnt(0)
s_barrier
ds_read_b32 v104, v56 offset:128
ds_read_b32 v105, v56 offset:160
ds_read_b32 v106, v56 offset:192
ds_read_b32 v107, v56 offset:224
v_add_f32 v104, v104, v105
v_add_f32 v106, v106, v107
v_add_f32 v104, v104, v106
v_mul_f32 v104, {hex(f2u(1.0/640))}, v104
v_cvt_pk_bf16_f32 v104, v104, v108
v_and_b32 v108, 0xffff0000, v104
v_lshlrev_b32 v104, 16, v104
v_add_f32 v104, {hex(f2u(1e-5))}, v104
v_cvt_pk_bf16_f32 v104, v104, v104
v_lshlrev_b32 v104, 16, v104
v_sqrt_f32 v104, v104
v_cvt_pk_bf16_f32 v104, v104, v104
v_lshlrev_b32 v104, 16, v104
v_rcp_f32 v104, v104""")
    c += L(f"""v_lshrrev_b32 v56, 2, v49
v_lshl_add_u32 v56, v30, 1, v56
v_lshlrev_b32 v56, 12, v56
v_and_b32 v57, 3, v49
v_lshl_add_u32 v56, v57, 8, v56
v_lshl_add_u32 v56, v48, 4, v56
v_add_u32 v57, {16*4096}, v56
v_cndmask_b32 v57, v51, v57, vcc
s_lshr_b32 s{sT0}, s2, 3
s_mul_i32 s{sT0}, s{sT0}, {20*4096}
s_bfe_u32 s{sT1}, s2, 0x20001
s_lshl_b32 s{sT1}, s{sT1}, 10
s_add_u32 s{sT0}, s{sT0}, s{sT1}
s_and_b32 s{sT1}, s2, 1
s_lshl_b32 s{sT1}, s{sT1}, 7
s_add_u32 s{sT0}, s{sT0}, s{sT1}
s_add_u32 s{sT1}, s{sT0}, {8*4096}""")
    for i in range(12):
        a, b = 80 + 2 * i, 81 + 2 * i
        c += L(f"""v_sub_f32 v{a}, v{a}, v108
v_sub_f32 v{b}, v{b}, v108
v_cvt_pk_bf16_f32 v{a}, v{a}, v{b}
v_and_b32 v{b}, 0xffff0000, v{a}
v_lshlrev_b32 v{a}, 16, v{a}
v_mul_f32 v{a}, v{a}, v104
v_mul_f32 v{b}, v{b}, v104
v_cvt_pk_bf16_f32 v{64+i}, v{a}, v{b}""")
        if i == 3: c.append(I(f"buffer_store_dwordx4 v[64:67], v56, {sr(sWS,4)}, s{sT0} offen sc1"))
        if i == 7: c.append(I(f"buffer_store_dwordx4 v[68:71], v56, {sr(sWS,4)}, s{sT1} offen sc1"))
        if i == 11: c.append(I(f"buffer_store_dwordx4 v[72:75], v57, {sr(sWS,4)}, s{sT0} offen sc1"))
    c += stamp(1)
    c += L(f"""s_mov_b32 s{sSpin}, {SPIN_MAX}
L_nonce:
s_waitcnt vmcnt(0)
v_readfirstlane_b32 s{sNonce}, v61
s_nop 3
s_cmp_lg_u32 s{sNonce}, 0
s_cbranch_scc1 L_nonce_ok
buffer_load_dword v61, v60, {sr(sR,4)}, 0 offen sc1
s_sub_u32 s{sSpin}, s{sSpin}, 1
s_cmp_lg_u32 s{sSpin}, 0
s_cbranch_scc1 L_nonce
L_nonce_ok:
s_lshl_b32 s{sT0}, s2, 7
s_lshl2_add_u32 s{sT0}, s{sW}, s{sT0}
s_add_u32 s{sT0}, s{sT0}, {hex(FXN)}
buffer_store_dword v61, v52, {sr(sWS,4)}, s{sT0} offen sc1
v_bfe_u32 v56, v0, 2, 3
v_lshlrev_b32 v56, 7, v56
v_and_b32 v57, 3, v0
v_lshl_add_u32 v56, v57, 2, v56
s_lshl_b32 s{sT0}, s{sQg}, 10
s_add_u32 s{sT0}, s{sT0}, {hex(FXN)}""")
    c += srd(sR, pBx, 640 * 1536 * 2)
    for i in range(4): c.append(I(f"v_mov_b32 v{vLs+i}, 0"))
    for i in range(96): c.append(I(f"v_mov_b32 v{vAcc+i}, 0"))
    c += [poll_load(57, 56, f"s{sT0}")]
    for i in range(96, 192): c.append(I(f"v_mov_b32 v{vAcc+i}, 0"))
    c += poll_check("xn", 57, 56, f"s{sT0}")
    c += stamp(2)
    c += b_loads(('a', 0), None)
    c.append(barrier("st0"))
    c += w_reads(0) + w_reads(1)
    P.block("pro", c)
    P.block("p1_top", L(".p2align 6\nL_p1:"))
    P.block("p1_even", sch(p1_step(0), "p1_even"))
    P.block("p1_mid", L(f"s_cmp_eq_u32 s{sCnt}, 4\ns_cbranch_scc1 L_p1_last\ns_cmp_eq_u32 s{sCnt}, 3\ns_cbranch_scc0 L_p1_odd"))
    sw = srd(sX, pK, 32 * 2048 * 192 * 2) + srd(sY, pV, 32 * 2048 * 192 * 2)
    sw += L(f"""s_mov_b32 s{sOffX}, s{sOffK0}
s_sub_u32 s{sOffY}, s{sOffK0}, 12288
s_mov_b32 s{sStr}, 12288
s_mul_i32 s{sMX}, s{sW}, 3072
s_add_u32 s{sMY}, s{sMX}, 12288""")
    for n in range(3): sw += L(f"v_mov_b32 v{vX+n}, v{vKo+n}\nv_mov_b32 v{vY+n}, v{vVo+n}")
    P.block("p1_switch", sw)
    P.block("p1_odd", L("L_p1_odd:") + sch(p1_step(1), "p1_odd") + L(f"s_add_u32 s{sCnt}, s{sCnt}, 1\ns_branch L_p1"))
    big = fix_tags(p1_step(1, last=True), {'sg': 9}) + first_tile() + fix_tags(p2_iter(0, base=96 + 48, first=True), {'sg': 11})
    big += L(f"""v_cmp_eq_u32 vcc, 0, v0
v_bfrev_b32 v{vNon}, 1
v_cndmask_b32 v{vFo}, v{vNon}, 0, vcc
v_mov_b32 v{vNon}, s{sNonce}""")
    P.block("p1_last", L("L_p1_last:") + stamp(3) + sch(big, "p1_last+first") + stamp(4) + L(f"s_mov_b32 s{sCnt}, 0"))
    tops = {}; mids = {}
    tops[2] = L(f"s_mov_b32 s{sOffD}, s{sOffDo}\ns_mov_b32 s{sIncD}, 10240")
    tops[3] = L(f"s_lshl2_add_u32 s{sT0}, s2, s{sW}\ns_lshl_b32 s{sT0}, s{sT0}, 2\ns_add_u32 s{sT3}, s{sT0}, {hex(FW)}\ns_add_u32 s{sT0}, s{sT0}, {hex(FG)}") + [set_flag(f"s{sT0}", "Gst")]
    tops[5] = L(f"s_lshl_b32 s{sT0}, s{sW}, 10\ns_add_u32 s{sT0}, s{sT0}, {hex(FG)}") + [poll_load(vTmp, vL16, f"s{sT0}", 4)]
    sw = L(f"s_mov_b32 s{sOffD}, s{sOffDd}\ns_mov_b32 s{sIncD}, 5120")
    sw += srd(sX, pWs, WS_SIZE) + srd(sY, pWs, WS_SIZE)
    sw += L(f"""s_mov_b32 s{sOffX}, s{sOffG0}
s_add_u32 s{sOffY}, s{sOffG0}, 3072
s_mov_b32 s{sStr}, 24576
s_mul_i32 s{sMX}, s{sW}, 6144
s_add_u32 s{sMY}, s{sMX}, 3072""")
    for n in range(3): sw += L(f"v_mov_b32 v{vX+n}, v{vL16}\nv_mov_b32 v{vY+n}, v{vL16}")
    tops[6] = sw
    mids[0] = srd(sR, pWo, 6144 * 640 * 2) + L(f"s_mov_b32 s{sOffR}, s{sOffRo}\ns_mov_b32 s{sStrR}, {32*1280}\nv_mov_b32 v{vRo}, v{vRo2}")
    mids[4] = srd(sR, pWd, 1536 * 640 * 2) + L(f"s_mov_b32 s{sOffR}, s{sOffRd}")
    mids[5] = L(f"s_mov_b32 s{sR+2}, 0") + poll_check("g", vTmp, vL16, f"s{sT0}", 4)
    def disp(nm, d):
        mask = sum(1 << k for k in d)
        inl = L(f"s_bitcmp1_b32 {hex(mask)}, s{sCnt}\ns_cbranch_scc1 L_{nm}_disp\nL_{nm}_back:")
        keys = sorted(d)
        hd = L(f"L_{nm}_disp:")
        for k in keys[1:]: hd += L(f"s_cmp_eq_u32 s{sCnt}, {k}\ns_cbranch_scc1 L_{nm}_{k}")
        OUTL.append((f"{nm}_disp", hd))
        for k in keys: OUTL.append((f"{nm}_{k}", L(f"L_{nm}_{k}:") + d[k] + L(f"s_branch L_{nm}_back")))
        return inl
    P.block("p2_top", L(".p2align 6\nL_p2:") + disp("top", tops))
    P.block("p2_odd", sch(p2_iter(1), "p2_odd"))
    P.block("p2_mid", disp("mid", mids))
    P.block("p2_even", sch(p2_iter(0), "p2_even") + L(f"s_add_u32 s{sCnt}, s{sCnt}, 1\ns_cmp_lt_u32 s{sCnt}, 7\ns_cbranch_scc1 L_p2"))
    P.block("tail", stamp(5) + sch(tail_pv(), "tail", vm_min=3))
    P.block("p3_pre", L("s_cbranch_vccnz L_fb\nL_fb_back:") + stamp(6) + L(f"""v_and_b32 v{vT}, 32, v0
v_lshlrev_b32 v{vT}, 4, v{vT}
v_add_u32 v{vT}, v{vT}, v{vL16}
s_lshl_b32 s{sFl}, s{sB}, 5
s_add_u32 s{sFl}, s{sFl}, s{sH}
s_lshl_b32 s{sFl}, s{sFl}, 7
s_lshl2_add_u32 s{sFl}, s{sW}, s{sFl}
s_add_u32 s{sFl}, s{sFl}, {hex(FO)}"""))
    P.block("p3", sch(p3_all(), "p3", vm_min=3))
    c = stamp(7)
    c += L(f"""s_lshl_b32 s{sT0}, s{sW}, 10
s_add_u32 s{sT0}, s{sT0}, {hex(FW)}""")
    c += [poll_load(vTmp, vL16, f"s{sT0}", 4)]
    c += L(f"""s_lshr_b32 s{sT1}, s{sMb}, 1
s_lshl_b32 s{sT1}, s{sT1}, 5
s_lshl3_add_u32 s{sT1}, s{sS}, s{sT1}
s_lshl_b32 s{sT1}, s{sT1}, 7
s_and_b32 s{sT2}, s{sMb}, 1
s_and_b32 s{sT3}, s{sW}, 1
s_lshl1_add_u32 s{sT2}, s{sT2}, s{sT3}
s_lshl2_add_u32 s{sT1}, s{sT2}, s{sT1}
s_add_u32 s{sT1}, s{sT1}, {hex(FO)}
v_and_b32 v{vFa}, 7, v0
v_lshlrev_b32 v{vFa}, 7, v{vFa}""")
    c += [poll_load(vFl, vFa, f"s{sT1}")]
    c += L(f"""s_mul_i32 s{sOffA}, s{sNb}, 192
s_mul_i32 s{sT2}, s{sS}, 48
s_add_u32 s{sOffA}, s{sOffA}, s{sT2}
s_mul_i32 s{sOffA}, s{sOffA}, 10240
s_mul_i32 s{sMA}, s{sW}, 5120
s_add_u32 s{sOffA}, s{sOffA}, s{sMA}
s_add_u32 s{sOffA}, s{sOffA}, {hex(WOP_OFF)}
s_lshl1_add_u32 s{sOffBB}, s{sMb}, s{sT3}
s_mul_i32 s{sOffBB}, s{sOffBB}, 240
s_add_u32 s{sOffBB}, s{sOffBB}, s{sT2}
s_lshr_b32 s{sT2}, s{sW}, 1
s_add_u32 s{sOffBB}, s{sOffBB}, s{sT2}
s_lshl_b32 s{sOffBB}, s{sOffBB}, 12
s_add_u32 s{sOffBB}, s{sOffBB}, {hex(OH_OFF)}
s_mov_b32 s{sStrB}, 8192
s_lshl_b32 s{sMB}, s{sW}, 12
s_add_u32 s{sMB}, s{sMB}, 20480
s_mul_i32 s{sT3}, s{sT3}, 5120
s_lshl_b32 s{sT2}, s{sT2}, 12
s_add_u32 s{sT2}, s{sT2}, 20480""")
    for sl in range(4):
        c += L(f"""v_add_u32 v{vA2+sl*2}, s{sT3}, v{vL16}
v_add_u32 v{vA2+sl*2+1}, s{sT2}, v{vL16}
s_add_u32 s{sT3}, s{sT3}, {SL2}
s_add_u32 s{sT2}, s{sT2}, {SL2}""")
    for i in range(100): c.append(I(f"v_mov_b32 v{vAc+i}, 0"))
    c += poll_check("w", vTmp, vL16, f"s{sT0}", 4)
    c += L("s_barrier")
    c += dmaA(0, "ot0")
    c += poll_check("o", vFl, vFa, f"s{sT1}")
    c += stamp(8)
    c += dmaB(0, "ot0")
    for st in range(1, 4): c += dmaB(st, f"ot{st}") + dmaA(st, f"ot{st}")
    c += L(f"s_add_u32 s{sFl}, s{sFl}, {FH-FO}") + [set_flag(f"s{sFl}", "Hst")]
    c += L(f"s_mov_b32 s{sCnt}, 0")
    c.append(I("s_barrier", tag_r="ot0"))
    c += stamp(9)
    c += o_reads(0, 0, "rd0")
    P.block("o_pro", c)
    ot = {}
    ot[3] = L(f"""s_lshr_b32 s{sT2}, s{sS}, 1
s_lshl1_add_u32 s{sQg}, s{sMb}, s{sT2}
s_lshr_b32 s{sT1}, s{sMb}, 1
s_lshl_b32 s{sT1}, s{sT1}, 12
s_and_b32 s{sT2}, s{sQg}, 3
s_lshl2_add_u32 s{sT1}, s{sT2}, s{sT1}
s_add_u32 s{sT1}, s{sT1}, {hex(FH)}
v_and_b32 v{vFa}, 31, v0
v_lshlrev_b32 v{vFa}, 7, v{vFa}""") + [poll_load(vFl, vFa, f"s{sT1}")]
    ot[5] = poll_check("h", vFl, vFa, f"s{sT1}") + L(f"""s_and_b32 s{sT2}, s{sS}, 1
s_lshl1_add_u32 s{sT2}, s{sNb}, s{sT2}
s_mul_i32 s{sOffA}, s{sT2}, {48*5120}
s_add_u32 s{sOffA}, s{sOffA}, s{sMA}
s_add_u32 s{sOffA}, s{sOffA}, {hex(WDP_OFF)}
s_mul_i32 s{sOffBB}, s{sQg}, 240
s_add_u32 s{sOffBB}, s{sOffBB}, s{sW}
s_add_u32 s{sOffBB}, s{sOffBB}, 192
s_lshl_b32 s{sOffBB}, s{sOffBB}, 12
s_add_u32 s{sOffBB}, s{sOffBB}, {hex(OH_OFF)}
s_mov_b32 s{sStrB}, 16384""")
    P.block("o_top", L(".p2align 6\nL_o:") + disp("ot", ot))
    for q in range(4): P.block(f"o{q}", sch(o_block(q), f"o{q}"))
    P.block("o_loop", L(f"s_add_u32 s{sCnt}, s{sCnt}, 1\ns_cmp_lt_u32 s{sCnt}, 6\ns_cbranch_scc1 L_o"))
    c = stamp(10)
    c += L(f"s_lshl_b32 s{sT2}, s{sW}, 10\ns_add_u32 s{sT2}, s{sT2}, 20480\ns_mov_b32 s{sT3}, 0")
    for sl in range(4):
        c += L(f"""v_add_u32 v{vA2+sl*2}, s{sT3}, v{vL16}
v_add_u32 v{vA2+sl*2+1}, s{sT2}, v{vL16}
s_add_u32 s{sT3}, s{sT3}, {SL2}
s_add_u32 s{sT2}, s{sT2}, {SL2}""")
    c += d_reads(0, 0, "rd24")
    c += L(f"""s_lshl2_add_u32 s{sT0}, s{sMb}, s{sNb}
s_lshl2_add_u32 s{sT1}, s{sT0}, s{sS}
s_lshl2_add_u32 s{sT2}, s{sT1}, s{sW}
s_mul_i32 s{sOffP}, s{sT2}, 10240
s_add_u32 s{sOffP}, s{sOffP}, {hex(PART_OFF)}
s_lshl_b32 s{sFl}, s{sT1}, 7
s_lshl2_add_u32 s{sFl}, s{sW}, s{sFl}
s_add_u32 s{sFl}, s{sFl}, {hex(FP)}""")
    def pk(dst, t, j):
        a = vAc + (t * 4 + j) * 4
        return L(f"v_cvt_pk_bf16_f32 v{dst}, v{a}, v{a+1}\nv_cvt_pk_bf16_f32 v{dst+1}, v{a+2}, v{a+3}")
    n = 0
    for j in range(4):
        for tp in range(2):
            o = vPk + n * 4
            c += pk(o, 2 * tp, j) + pk(o + 2, 2 * tp + 1, j)
            c.append(I(f"buffer_store_dwordx4 {vr(o,4)}, v{vL16}, {sr(sWS,4)}, s{sOffP} offen offset:{(n%4)*1024} sc1", tag_w="Pst"))
            n += 1
            if n % 4 == 0: c.append(I(f"s_add_u32 s{sOffP}, s{sOffP}, 4096"))
    for jp in range(2):
        o = vPk + n * 4
        c += pk(o, 4, 2 * jp) + pk(o + 2, 4, 2 * jp + 1)
        c.append(I(f"buffer_store_dwordx4 {vr(o,4)}, v{vL16}, {sr(sWS,4)}, s{sOffP} offen offset:{jp*1024} sc1", tag_w="Pst"))
        n += 1
    c += srd(sOut, pOut, 2048 * 640 * 2)
    c += L(f"""v_and_b32 v{vOa}, 15, v0
v_mul_u32_u24 v{vOa}, 1280, v{vOa}
v_lshrrev_b32 v{vPo}, 4, v0
v_lshl_add_u32 v{vOa}, v{vPo}, 3, v{vOa}
s_lshl2_add_u32 s{sT2}, s{sQg}, s{sW}
s_mul_i32 s{sOffO}, s{sT2}, {16*1280}
s_and_b32 s{sT2}, s{sS}, 1
s_lshl1_add_u32 s{sT2}, s{sNb}, s{sT2}
s_mul_i32 s{sT2}, s{sT2}, 160
s_add_u32 s{sOffO}, s{sOffO}, s{sT2}
s_lshl_b32 s{sT1}, s{sT0}, 9
s_lshl2_add_u32 s{sT1}, s{sS}, s{sT1}
s_add_u32 s{sT1}, s{sT1}, {hex(FP)}
v_and_b32 v{vFa}, 3, v0
v_lshlrev_b32 v{vFa}, 7, v{vFa}
s_lshl4_add_u32 s{sT2}, s{sT0}, s{sS}
s_mul_i32 s{sOffP}, s{sT2}, 10240
s_add_u32 s{sOffP}, s{sOffP}, {hex(PART_OFF)}
s_lshl_b32 s{sT2}, s{sW}, 11
s_add_u32 s{sOffH0}, s{sOffP}, s{sT2}
s_lshr_b32 s{sT2}, s{sW}, 1
s_lshl_b32 s{sT2}, s{sT2}, 10
s_and_b32 s{sT3}, s{sW}, 1
s_lshl3_add_u32 s{sT2}, s{sT3}, s{sT2}
s_add_u32 s{sT2}, s{sT2}, 8192
s_add_u32 s{sOffH1}, s{sOffP}, s{sT2}
s_mov_b32 s{sCnt}, 6""")
    P.block("d_pro", c)
    dt = {7: [set_flag(f"s{sFl}", "Pst")]}
    P.block("d_top", L(".p2align 6\nL_d:") + disp("dt", dt))
    for q in range(4): P.block(f"d{q}", sch(d_block(q), f"d{q}", vm_min=2))
    P.block("d_loop", L(f"s_add_u32 s{sCnt}, s{sCnt}, 1\ns_cmp_lt_u32 s{sCnt}, 8\ns_cbranch_scc1 L_d"))
    xl = [I(f"buffer_load_dwordx2 {vr(vXr+2*t,2)}, v{vOa}, {sr(sXin,4)}, s{sOffO} offen offset:{32*t}") for t in range(5)]
    P.block("e0", sch(d_block(0, dma=False, extra=[poll_load(vFl, vFa, f"s{sT1}")] + xl), "e0", vm_min=2))
    P.block("e1", sch(d_block(1, dma=False), "e1"))
    pl = []
    for sd in range(4):
        for tp in range(2): pl.append(I(f"buffer_load_dwordx4 {vr(vPl+sd*12+tp*4,4)}, v{vL16}, {sr(sWS,4)}, s{sOffH0} offen offset:{1024*tp} sc1"))
        pl.append(I(f"buffer_load_dwordx2 {vr(vPl+sd*12+8,2)}, v{vL16}, {sr(sWS,4)}, s{sOffH1} offen sc1"))
        pl += L(f"s_add_u32 s{sOffH0}, s{sOffH0}, {4*10240}\ns_add_u32 s{sOffH1}, s{sOffH1}, {4*10240}")
    P.block("e_chk", poll_check("p", vFl, vFa, f"s{sT1}") + pl)
    P.block("e2", sch(d_block(2, dma=False), "e2"))
    P.block("e3", sch(d_block(3, dma=False, nxt=False), "e3"))
    c = stamp(11)
    t0 = 112
    for t in range(5):
        h = vDc + 4 * t
        for i in range(4):
            c += L(f"v_mul_f32 v{t0+4*t+i}, {hex(f2u(-math.log2(math.e)))}, v{h+i}\nv_exp_f32 v{t0+4*t+i}, v{t0+4*t+i}")
        for i in range(4):
            c += L(f"v_add_f32 v{t0+4*t+i}, 1.0, v{t0+4*t+i}\nv_rcp_f32 v{t0+4*t+i}, v{t0+4*t+i}")
        for i in range(4): c += L(f"v_mul_f32 v{h+i}, v{h+i}, v{t0+4*t+i}")
    for t in range(5):
        h = vDc + 4 * t; a = t0 + 4 * t; u = 132
        for sd in range(4):
            for hf in range(2):
                src = vPl + sd * 12 + 2 * t + hf
                if sd == 0:
                    c += L(f"v_lshlrev_b32 v{a+2*hf}, 16, v{src}\nv_and_b32 v{a+2*hf+1}, 0xffff0000, v{src}")
                else:
                    c += L(f"""v_lshlrev_b32 v{u+2*hf}, 16, v{src}
v_and_b32 v{u+2*hf+1}, 0xffff0000, v{src}
v_add_f32 v{a+2*hf}, v{a+2*hf}, v{u+2*hf}
v_add_f32 v{a+2*hf+1}, v{a+2*hf+1}, v{u+2*hf+1}""")
        c += L(f"""v_lshlrev_b32 v{u+4}, 16, v{vXr+2*t}
v_and_b32 v{u+5}, 0xffff0000, v{vXr+2*t}
v_lshlrev_b32 v{u+6}, 16, v{vXr+2*t+1}
v_and_b32 v{u+7}, 0xffff0000, v{vXr+2*t+1}""")
        for i in range(4): c.append(I(f"v_fmac_f32 v{u+4+i}, v{a+i}, v{h+i}"))
        c += L(f"""v_cvt_pk_bf16_f32 v{a}, v{u+4}, v{u+5}
v_cvt_pk_bf16_f32 v{a+1}, v{u+6}, v{u+7}
buffer_store_dwordx2 {vr(a,2)}, v{vOa}, {sr(sOut,4)}, s{sOffO} offen offset:{32*t}""")
    c += stamp_store(13)
    c += L("L_end:\ns_endpgm")
    P.block("fin", c)
    for nm, ins in OUTL: P.block(nm, ins)
    tr = [("pro", {})]
    for i in range(5):
        tr += [("p1_top", {}), ("p1_even", {'sg': 2 * i}), ("p1_mid", {})]
        if i == 3: tr.append(("p1_switch", {}))
        if i < 4: tr.append(("p1_odd", {'sg': 2 * i + 1}))
    tr.append(("p1_last", {}))
    for i in range(7):
        tr.append(("p2_top", {}))
        if i in tops: tr += [("top_disp", {}), (f"top_{i}", {})]
        tr += [("p2_odd", {'sg': 12 + 2 * i}), ("p2_mid", {})]
        if i in mids: tr += [("mid_disp", {}), (f"mid_{i}", {})]
        tr.append(("p2_even", {'sg': 13 + 2 * i}))
    tr += [("tail", {}), ("p3_pre", {}), ("p3", {}), ("o_pro", {})]
    for it in range(6):
        tr.append(("o_top", {}))
        if it in ot: tr += [("ot_disp", {}), (f"ot_{it}", {})]
        tr += [(f"o{q}", {'it': it}) for q in range(4)] + [("o_loop", {})]
    tr.append(("d_pro", {}))
    for it in range(6, 8):
        tr.append(("d_top", {}))
        if it in dt: tr += [("dt_disp", {}), (f"dt_{it}", {})]
        tr += [(f"d{q}", {'it': it}) for q in range(4)] + [("d_loop", {})]
    tr += [("e0", {'it': 8}), ("e1", {'it': 8}), ("e_chk", {}), ("e2", {'it': 8}), ("e3", {'it': 8}), ("fin", {})]
    P.trace = tr
    P.insert_waits()
    n = P.fix_hazards(verbose=False)
    if dbg: print("; estimate", P.estimate(), "pads", n)
    return P.text() + "\n" + gen_fallback()

def build(path, dbg=False):
    body = gen(dbg)
    txt = f"""; @launch grid=(256,1,1) block=(256,1,1) lds={LDS_TOTAL}
.amdgcn_target "amdgcn-amd-amdhsa--gfx950"
.text
.globl {KNAME}
.p2align 8
.type {KNAME},@function
{KNAME}:
{body}
.section .rodata,"a"
.p2align 6
.amdhsa_kernel {KNAME}
  .amdhsa_next_free_vgpr 512
  .amdhsa_next_free_sgpr 102
  .amdhsa_accum_offset 256
  .amdhsa_group_segment_fixed_size 0
  .amdhsa_kernarg_size 96
  .amdhsa_user_sgpr_count 2
  .amdhsa_user_sgpr_kernarg_segment_ptr 1
  .amdhsa_system_sgpr_workgroup_id_x 1
  .amdhsa_float_denorm_mode_32 3
.end_amdhsa_kernel
"""
    open(path, "w").write(txt)

if __name__ == "__main__":
    if "--stamps" in sys.argv:
        STAMPS = True; sys.argv.remove("--stamps")
    build(sys.argv[1], dbg=True)
```

```python
import sys, math, struct, os
from asmlib import *
KN = set(os.environ.get("KN", "").split(","))
NAME = "recurrent_scan__sliding_block_cached__glu_gated_bilinear__prompt"
KNAME = NAME + "_kernel"
XN_OFF = 0; OH_OFF = 0x400000; GP_OFF = 0x2200000; WOP_OFF = 0x2600000; WDP_OFF = 0x2E00000; PART_OFF = 0x3000000
FL_OFF = 0x3A00000
FXN = FL_OFF; FO = FL_OFF + 0x8000; FH = FL_OFF + 0x10000; FP = FL_OFF + 0x18000; FG = FL_OFF + 0x20000; FW = FL_OFF + 0x21000
WS_SIZE = 0x3B00000
STAMP_OFF = 0x8000000
SLOT = 28672; NS = 5; SL2 = 36864
LDS_X = 147456
LDS_TOTAL = 163840
STAMPS = False
SPIN_MAX = 200000

def f2u(x): return struct.unpack('<I', struct.pack('<f', x))[0]
def vr(a, n): return f"v[{a}:{a+n-1}]" if n > 1 else f"v{a}"
def ar(a, n): return f"a[{a}:{a+n-1}]" if n > 1 else f"a{a}"
def sr(a, n): return f"s[{a}:{a+n-1}]" if n > 1 else f"s{a}"
def rr(x, n=4):
    return vr(x[1], n) if x[0] == 'v' else ar(x[1], n)
def L(txt): return [I(t) for t in txt.strip().split("\n") if t.strip()]
def mfma(d, a, b, c): return I(f"v_mfma_f32_16x16x32_bf16 {d}, {a}, {b}, {c}")

sX, sY, sWS, sR = 4, 8, 12, 16
(sOffX, sOffY, sStr, sMX, sMY, sWr, sRd, sDl, sCnt, sOffB, sH, sB, sW, sT0, sT1, sT2, sOffO, sScale,
 sOffK0, sOffG0, sOffH0, sOffH1, sOffH2, sNonce, sOffR, sStrR, sMR, sOffD, sIncD, sOffRo, sOffRd, sOffDo, sOffDd,
 sS, sMb, sNb, sFl, sSpin, sT3, sOffP, sQg) = range(20, 61)
sOffH = sOffH0
pX, pK, pV, pWq, pWo, pBx, pWg, pWu, pWd, pOut, pDbg, pWs = range(64, 88, 2)
sSt = 88
sOut = 92
sXin = 96
vL16 = 1; vX = 2; vY = 5; vKo = 8; vVo = 11
vRo = 14; vRo2 = 15; vRa = 16
vWa = 17; vKa = 19; vVa = 21; vGa = 25
vLs = 26; vT = 30; vNm = 32; vTmp = 48
vAcc = 64; vQ = 64
vS01 = 160; vS23 = 176; vP01 = 208; vP23 = 224; vVs = 232
aK = 192; aR = 240
aFl = 244
vFo = 17
vNon = 18
vStamp = 0

def srd(d, base, size):
    return [I(f"s_mov_b32 s{d}, s{base}"), I(f"s_mov_b32 s{d+1}, s{base+1}"), I(f"s_mov_b32 s{d+2}, {hex(size)}"), I(f"s_mov_b32 s{d+3}, 0x20000")]

def xreduce(v, t, op):
    return L(f"""v_mov_b32 v{t}, v{v}
v_permlane16_swap_b32 v{v}, v{t}
{op} v{v}, v{v}, v{t}
v_mov_b32 v{t}, v{v}
v_permlane32_swap_b32 v{v}, v{t}
{op} v{v}, v{v}, v{t}""")

def divmod_const(q, r, src, c):
    magic = (65536 + c - 1) // c
    for x in range(1400): assert (x * magic) >> 16 == x // c
    return L(f"""v_mul_u32_u24 v{q}, {magic}, v{src}
v_lshrrev_b32 v{q}, 16, v{q}
v_mul_u32_u24 v{r}, {c}, v{q}
v_sub_u32 v{r}, v{src}, v{r}""")
def sdivmod(q, r, src, c):
    magic = (65536 + c - 1) // c
    for x in range(1400): assert (x * magic) >> 16 == x // c
    return L(f"""s_mul_i32 s{q}, s{src}, {magic}
s_lshr_b32 s{q}, s{q}, 16
s_mul_i32 s{r}, s{q}, {c}
s_sub_u32 s{r}, s{src}, s{r}""")

vSt = 31
def stamp(k):
    if not STAMPS: return []
    return L(f"""s_memrealtime s[{sSt}:{sSt+1}]
s_memtime s[{sSt+2}:{sSt+3}]
s_waitcnt lgkmcnt(0)
v_writelane_b32 v{vSt}, s{sSt}, {2*k}
v_writelane_b32 v{vSt}, s{sSt+2}, {2*k+1}""")
def stamp_store(n):
    if not STAMPS: return []
    return stamp(n - 1) + L("s_waitcnt vmcnt(0)") + stamp(n) + L(f"""s_add_u32 s{sX}, s{pWs}, {hex(STAMP_OFF)}
s_addc_u32 s{sX+1}, s{pWs+1}, 0
s_mov_b32 s{sX+2}, {1024*256}
s_mov_b32 s{sX+3}, 0x20000
s_lshl2_add_u32 s{sT0}, s2, s{sW}
s_lshl_b32 s{sT0}, s{sT0}, 8
v_lshlrev_b32 v2, 2, v0
buffer_store_dword v{vSt}, v2, {sr(sX,4)}, s{sT0} offen
s_mov_b32 s{sX}, s{pDbg}
s_mov_b32 s{sX+1}, s{pDbg+1}
s_mov_b32 s{sX+2}, 64
s_lshl2_add_u32 s{sT0}, s2, s{sW}
s_cmp_eq_u32 s{sT0}, 148
s_cselect_b32 s{sT0}, 4, 0x100
v_and_b32 v3, 1, v0
v_lshlrev_b32 v3, 8, v3
v_lshl_add_u32 v2, v0, 1, v3
buffer_store_dword v{vSt}, v2, {sr(sX,4)}, s{sT0} offen""")

OUTL = []
def poll_load(dst, vaddr, soff, n=1, **kw):
    op = "buffer_load_dword" if n == 1 else "buffer_load_dwordx4"
    return I(f"{op} {vr(dst,n)}, v{vaddr}, {sr(sWS,4)}, {soff} offen sc1", **kw)
def poll_cmp(dst, n):
    if n == 1: return L(f"v_cmp_ne_u32 vcc, s{sNonce}, v{dst}")
    return L(f"""v_xor_b32 v{dst}, s{sNonce}, v{dst}
v_xor_b32 v{dst+1}, s{sNonce}, v{dst+1}
v_xor_b32 v{dst+2}, s{sNonce}, v{dst+2}
v_xor_b32 v{dst+3}, s{sNonce}, v{dst+3}
v_or3_b32 v{dst}, v{dst}, v{dst+1}, v{dst+2}
v_or_b32 v{dst}, v{dst}, v{dst+3}
v_cmp_ne_u32 vcc, 0, v{dst}""")
def poll_check(name, dst, vaddr, soff, n=1):
    o = L(f"L_spin_{name}:\ns_mov_b32 s{sSpin}, {SPIN_MAX}\nL_spin2_{name}:\ns_sleep 1")
    o += [poll_load(dst, vaddr, soff, n)] + L("s_waitcnt vmcnt(0)") + poll_cmp(dst, n)
    o += L(f"""s_nop 4
s_cbranch_vccz L_back_{name}
s_sub_u32 s{sSpin}, s{sSpin}, 1
s_cmp_lg_u32 s{sSpin}, 0
s_cbranch_scc1 L_spin2_{name}
s_branch L_back_{name}""")
    OUTL.append((f"spin_{name}", o))
    return poll_cmp(dst, n) + L(f"s_nop 4\ns_cbranch_vccnz L_spin_{name}\nL_back_{name}:")
def set_flag(soff, tag, **kw):
    return I(f"buffer_store_dword v{vNon}, v{vFo}, {sr(sWS,4)}, {soff} offen sc1", tag_r=tag, **kw)

def dma_group(stage_tag, hint0=None, step=4, withR=False):
    r = []; k = 0
    for (srdn, vo, so, mo) in ((sX, vX, sOffX, sMX), (sY, vY, sOffY, sMY)):
        r.append(I(f"s_add_u32 m0, s{sWr}, s{mo}"))
        for n in range(3):
            r.append(I(f"buffer_load_dwordx4 v{vo+n}, {sr(srdn,4)}, s{so} offen offset:{1024*n} sc1 lds", tag_w=stage_tag, rd=['stg'],
                       after=None if hint0 is None else hint0 + step * k)); k += 1
        r.append(I(f"s_add_u32 s{so}, s{so}, s{sStr}"))
    if withR:
        r.append(I(f"s_add_u32 m0, s{sWr}, s{sMR}"))
        r.append(I(f"buffer_load_dwordx4 v{vRo}, {sr(sR,4)}, s{sOffR} offen lds", tag_w=stage_tag, rd=['stg'], after=None if hint0 is None else hint0 + step * k))
        r.append(I(f"s_add_u32 s{sOffR}, s{sOffR}, s{sStrR}"))
    r += L(f"s_add_u32 s{sWr}, s{sWr}, {SLOT}\ns_cmp_eq_u32 s{sWr}, {SLOT*NS}\ns_cmov_b32 s{sWr}, 0")
    return r
def ring_advance():
    return L(f"""s_add_u32 s{sRd}, s{sRd}, {SLOT}
s_mov_b32 s{sDl}, {SLOT}
s_cmp_eq_u32 s{sRd}, {SLOT*NS}
s_cmov_b32 s{sDl}, {hex((-SLOT*(NS-1)) & 0xffffffff)}
s_cmov_b32 s{sRd}, 0""")
def barrier(tag, after=None): return I("s_barrier", tag_r=tag, wr=['stg'], after=after)

def acc1(T, j): return vAcc + ((T // 2) * 4 + j) * 8 + (T % 2) * 4
def w_reads(T):
    slot = 64 + (T % 3) * 8
    p, t = T // 2, T % 2
    return [I(f"ds_read_b64_tr_b16 {ar(slot+ks*4+u*2,2)}, v{vWa+p%2} offset:{ks*12288+u*6144+(p//2)*128+8*t}", rd=['stg']) for ks in range(2) for u in range(2)]
def b_loads(base, hint0=0, step=2):
    r = []
    for u in range(2):
        for j in range(4):
            r.append(I(f"buffer_load_dwordx4 {rr((base[0], base[1]+(u*4+j)*4))}, v{vL16}, {sr(sWS,4)}, s{sOffB} offen offset:{1024*j} sc1", after=None if hint0 is None else int(hint0 + step * (u * 4 + j))))
        r.append(I(f"s_add_u32 s{sOffB}, s{sOffB}, 4096"))
    return r
def k_reads(kt):
    return [I(f"ds_read_b128 {ar(aK+kt*24+s*4,4)}, v{vKa+s%2} offset:{kt*6144+(s//2)*128}", rd=['stg']) for s in range(6)]
def v_reads(T):
    return [I(f"ds_read_b64_tr_b16 {vr(vVs+(T%6)*4+u*2,2)}, v{vVa+T%4} offset:{12288+u*6144+(T//4)*128}", rd=['stg']) for u in range(2)]

def p1_step(e, last=False):
    s = []
    if not last: s += b_loads(('a', 32 * (1 - e)), 1, 5)
    s += dma_group(lambda env: f"st{env['sg']+3}", 41 if not last else 2, 5 if not last else 9, withR=last)
    for T in range(12):
        if T + 2 < 12: s += w_reads(T + 2)
        elif T == 10:
            s += ring_advance()
            s.append(barrier(lambda env: f"st{env['sg']+1}", after=72))
            if not last:
                s += [I(f"v_add_u32 v{vWa+i}, s{sDl}, v{vWa+i}") for i in range(2)]
                s += w_reads(0)
            else: s += k_reads(0)
        elif not last: s += w_reads(1)
        slot = 64 + (T % 3) * 8
        for j in range(4):
            for ks in range(2):
                d = vr(acc1(T, j), 4)
                s.append(mfma(d, ar(slot + ks * 4, 4), ar(32 * e + (ks * 4 + j) * 4, 4), d))
        if last and T % 2 == 1:
            p = T // 2
            for j in range(4):
                a = acc1(2 * p, j); q = vQ + (p * 4 + j) * 4
                for i in range(8): s.append(I(f"v_mul_f32 v{a+i}, s{sScale}, v{a+i}"))
                for i in range(4): s.append(I(f"v_cvt_pk_bf16_f32 v{q+i}, v{a+2*i}, v{a+2*i+1}"))
    return s

def Sreg(kt, j, buf, first=False):
    if j < 2: return (vTmp if first else vS01) + (j * 2 + kt) * 4
    return vS23 + buf * 16 + ((j - 2) * 2 + kt) * 4
def Preg(j, buf): return vP01 + buf * 8 + j * 4 if j < 2 else vP23 + (j - 2) * 4
def qk(kt, buf, first=False):
    s = []
    for j in range(4):
        d = vr(Sreg(kt, j, buf, first), 4)
        for p in range(6):
            c = d if p else ("0" if first else vr(vNm + 4 * j, 4))
            s.append(mfma(d, ar(aK + kt * 24 + p * 4, 4), vr(vQ + (p * 4 + j) * 4, 4), c))
    return s
def softmax(j, buf, first=False):
    s = []
    for kt in range(2):
        a = Sreg(kt, j, buf, first)
        for i in range(4): s.append(I(f"v_exp_f32 v{a+i}, v{a+i}"))
        for i in range(4): s.append(I(f"v_add_f32 v{vLs+j}, v{vLs+j}, v{a+i}"))
        for i in range(2): s.append(I(f"v_cvt_pk_bf16_f32 v{Preg(j,buf)+kt*2+i}, v{a+2*i}, v{a+2*i+1}"))
    return s
def pv_T(T, buf, first=False):
    s = []
    for j in range(4):
        d = ar((T * 4 + j) * 4, 4)
        s.append(mfma(d, vr(vVs + (T % 6) * 4, 4), vr(Preg(j, buf), 4), "0" if first else d))
    return s

def p2_iter(e, base=0, first=False):
    s = []
    s += k_reads(1)
    if not first:
        s += [I(f"ds_read_b64_tr_b16 {ar(aR+2*u,2)}, v{vRa} offset:{2048*u}", rd=['stg']) for u in range(2)]
    s += dma_group(lambda env: f"st{env['sg']+3}", base + 4, 9, withR=True)
    if not first:
        s += softmax(2, e) + softmax(3, e)
    s += qk(0, 1 - e) + qk(1, 1 - e)
    for T in range(6): s += v_reads(T)
    s += softmax(0, 1 - e) + softmax(1, 1 - e)
    for T in range(12):
        s += pv_T(T, e, first)
        if T < 6: s += v_reads(T + 6)
        if T == 5:
            s += ring_advance()
            s.append(barrier(lambda env: f"st{env['sg']+1}", after=base + 70))
            s += [I(f"v_add_u32 v{vKa+i}, s{sDl}, v{vKa+i}") for i in range(2)]
            s += k_reads(0)
            s += [I(f"v_add_u32 v{vVa+i}, s{sDl}, v{vVa+i}") for i in range(4)]
            if not first:
                s.append(I(f"v_add_u32 v{vRa}, s{sDl}, v{vRa}"))
                s.append(I(f"buffer_store_dwordx4 {ar(aR,4)}, v{vL16}, {sr(sWS,4)}, s{sOffD} offen sc1", after=base + 90,
                           tag_w=lambda env: "Gst" if env['sg'] < 16 else "Wst"))
                s.append(I(f"s_add_u32 s{sOffD}, s{sOffD}, s{sIncD}"))
    return s

def first_tile():
    s = []
    s += k_reads(1)
    s += dma_group("st13", 96 + 2, 4, withR=True)
    s += qk(0, 0, True)
    s += ring_advance()
    s.append(barrier("st11", after=96 + 28))
    s += [I(f"v_add_u32 v{vKa+i}, s{sDl}, v{vKa+i}") for i in range(2)]
    s += k_reads(0)
    s += qk(1, 0, True)
    for j in range(4):
        a = Sreg(0, j, 0, True); b = Sreg(1, j, 0, True); m = vNm + 4 * j; t = m + 1
        s += L(f"""v_max3_f32 v{m}, v{a}, v{a+1}, v{a+2}
v_max3_f32 v{m}, v{m}, v{a+3}, v{b}
v_max3_f32 v{m}, v{m}, v{b+1}, v{b+2}
v_max_f32 v{m}, v{m}, v{b+3}""")
        s += xreduce(m, t, "v_max_f32")
        s += L(f"v_sub_f32 v{m+1}, 0, v{m}\nv_sub_f32 v{m+2}, 0, v{m}\nv_sub_f32 v{m+3}, 0, v{m}\nv_sub_f32 v{m}, 0, v{m}")
        for i in range(4):
            s.append(I(f"v_add_f32 v{a+i}, v{a+i}, v{m}")); s.append(I(f"v_add_f32 v{b+i}, v{b+i}, v{m}"))
    for j in range(4): s += softmax(j, 0, True)
    return s

vGA = 160; vOP = 184
BBUF = [('a', 192), ('a', 224), ('v', 208), ('a', 0)]
def g_reads(n):
    ds, grp = n // 6, n % 6
    slot = vGA + (n % 3) * 8
    return [I(f"ds_read_b128 {vr(slot+ks*4,4)}, v{vGa} offset:{(((ds%2)*2+ks)*6+grp)*1024}", rd=['stg']) for ks in range(2)]
def acc3(grp, j): return vAcc + (grp * 4 + j) * 4

def tail_pv():
    s = []
    for T in range(6): s += v_reads(T)
    s += softmax(2, 1) + softmax(3, 1)
    s += L(f"s_sub_u32 s{sOffB}, s{sOffB}, {20*4096}")
    s += b_loads(BBUF[0], 0, 3)
    for T in range(12):
        s += pv_T(T, 1)
        if T < 6: s += v_reads(T + 6)
        if T == 5:
            s.append(barrier("st27", after=26))
            s += g_reads(0) + g_reads(1)
            s += b_loads(BBUF[1], 26, 3)
    for j in range(4): s += xreduce(vLs + j, vTmp + j, "v_add_f32")
    s += L(f"""v_add_f32 v{vTmp}, v{vLs}, v{vLs+1}
v_add_f32 v{vTmp+1}, v{vLs+2}, v{vLs+3}
v_add_f32 v{vTmp}, v{vTmp}, v{vTmp+1}
v_cmp_ngt_f32 vcc, {hex(f2u(2.0**40))}, v{vTmp}""")
    for j in range(4): s.append(I(f"v_rcp_f32 v{vLs+j}, v{vLs+j}"))
    return s

def p3_all():
    s = []
    oe = []
    n = 0
    for p in range(6):
        for j in range(4):
            t = vTmp + (n % 2) * 8; o = vOP + (n % 6) * 4
            it = []
            for tt in range(2):
                for i in range(4): it.append(I(f"v_accvgpr_read_b32 v{t+tt*4+i}, a{((2*p+tt)*4+j)*4+i}"))
            for i in range(8): it.append(I(f"v_mul_f32 v{t+i}, v{t+i}, v{vLs+j}"))
            for i in range(4): it.append(I(f"v_cvt_pk_bf16_f32 v{o+i}, v{t+2*i}, v{t+2*i+1}"))
            it.append(I(f"buffer_store_dwordx4 {vr(o,4)}, v{vL16}, {sr(sWS,4)}, s{sOffO} offen offset:{1024*j} sc1", tag_w="Ost"))
            if j == 3: it.append(I(f"s_add_u32 s{sOffO}, s{sOffO}, 4096"))
            oe.append(it); n += 1
    plan = {ds: [] for ds in range(10)}
    def split(lst):
        ch = []; cur = []
        for x in lst:
            cur.append(x)
            if x.kind == 'vmem': ch.append(cur); cur = []
        if cur: ch[-1] += cur
        return ch
    bq = []
    for ds in range(2, 10): bq.append((ds, split(b_loads(BBUF[ds % 4], None))))
    dm = {0: split(dma_group("st29")), 2: split(dma_group("st30")), 4: split(dma_group("st31"))}
    for ds in range(10):
        base = ds * 48
        items = []
        take = []
        if ds == 0: want = [2]
        elif ds == 1: want = [3]
        else: want = [ds + 2]
        for (d, ch) in bq:
            if d in want: take += ch
        st = [oe.pop(0) for _ in range(min(len(oe), 4 if ds < 2 else 3))]
        dd = dm.get(ds, []) [:3] + dm.get(ds - 1, [])[3:]
        seq = []
        q = [take, dd, st]
        tot = len(take) + len(dd) + len(st)
        acc = [0.0, 0.0, 0.0]; w = [len(take), len(dd), len(st)]
        for k in range(tot):
            for z in range(3): acc[z] += w[z]
            z = max((z for z in range(3) if q[z]), key=lambda z: acc[z])
            acc[z] -= tot; seq.append(q[z].pop(0))
        if ds == 1: seq.insert(0, [set_flag(f"s{sT3}", "Wst")])
        if ds == 9: seq.insert(0, [set_flag(f"s{sFl}", "Ost")])
        for k, ch in enumerate(seq):
            for x in ch:
                if x.kind == 'vmem': x.after = base + int(k * 46 / max(len(seq), 1))
            items += ch
        s += items
        for grp in range(6):
            n = ds * 6 + grp
            if n + 2 < 60:
                if (n + 2) % 12 == 0:
                    stg = 27 + (n + 2) // 12
                    s.append(I("s_barrier", tag_r=f"st{stg}", wr=['stg2'], after=base + 24))
                    d = (stg % NS - (stg - 1) % NS) * SLOT
                    s.append(I(f"v_add_u32 v{vGa}, {hex(d & 0xffffffff)}, v{vGa}"))
                rd = g_reads(n + 2)
                for x in rd: x.reads.discard('stg'); x.reads.add('stg2')
                s += rd
            slot = vGA + (n % 3) * 8
            B = BBUF[ds % 4]
            for j in range(4):
                for ks in range(2):
                    d = vr(acc3(grp, j), 4)
                    s.append(mfma(d, vr(slot + ks * 4, 4), rr((B[0], B[1] + (ks * 4 + j) * 4)), "0" if (ds == 0 and ks == 0) else d))
            if ds == 9 and grp % 2 == 1:
                T3 = grp // 2
                for jp in range(2):
                    o = vOP + ((T3 * 2 + jp) % 6) * 4
                    for jj in range(2):
                        j = jp * 2 + jj
                        g = acc3(2 * T3, j); u = acc3(2 * T3 + 1, j)
                        for i in range(4): s.append(I(f"v_mul_f32 v{g+i}, v{g+i}, v{u+i}"))
                        for i in range(2): s.append(I(f"v_cvt_pk_bf16_f32 v{o+jj*2+i}, v{g+2*i}, v{g+2*i+1}"))
                    for i in range(2): s.append(I(f"v_permlane32_swap_b32 v{o+i}, v{o+2+i}"))
                    s.append(I(f"buffer_store_dwordx4 {vr(o,4)}, v{vT}, {sr(sWS,4)}, s{sOffH+T3} offen offset:{2048*jp} sc1", tag_w="Hst"))
    assert not oe
    return s

vA2 = 32
vAc = 64
vDc = 144
vPk = 164
vXr = 204
vPl = 64
vOa = 40; vPo = 41; vFa = 42; vFl = 44
sOffA, sOffBB, sStrB, sMA, sMB = sOffX, sOffY, sStr, sMX, sMY
def fA(e, t, ks): return e * 72 + (t * 2 + ks) * 4
def fB(e, j, ks): return 40 + e * 72 + (ks * 4 + j) * 4
def dA(e, n): return e * 96 + n * 4
def dB(e, ks): return e * 96 + 80 + ks * 4
def dmaA(slot, tag, h0=None, step=8):
    r = [I(f"s_add_u32 m0, s{sMA}, {slot*SL2}")]
    for n in range(5):
        if n == 4: r += L(f"s_add_u32 m0, s{sMA}, {slot*SL2+4096}\ns_add_u32 s{sOffA}, s{sOffA}, 4096")
        r.append(I(f"buffer_load_dwordx4 v{vL16}, {sr(sX,4)}, s{sOffA} offen offset:{1024*(n%4)} sc1 lds", tag_w=tag, rd=['stg'], after=None if h0 is None else int(h0 + step * n)))
    r.append(I(f"s_add_u32 s{sOffA}, s{sOffA}, {20480-4096}"))
    return r
def dmaB(slot, tag, h0=None, step=8):
    r = [I(f"s_add_u32 m0, s{sMB}, {slot*SL2}")]
    for n in range(4):
        r.append(I(f"buffer_load_dwordx4 v{vL16}, {sr(sX,4)}, s{sOffBB} offen offset:{1024*n} sc1 lds", tag_w=tag, rd=['stg'], after=None if h0 is None else int(h0 + step * n)))
    r.append(I(f"s_add_u32 s{sOffBB}, s{sOffBB}, s{sStrB}"))
    return r
def o_reads(slot, e, tag):
    bl = [I(f"ds_read_b128 {ar(fB(e,j,ks),4)}, v{vA2+slot*2+1} offset:{ks*8192+j*1024}", rd=['stg'], tag_w=tag) for j in range(4) for ks in range(2)]
    al = [[I(f"ds_read_b128 {ar(fA(e,t,ks),4)}, v{vA2+slot*2} offset:{(ks*10+t)*1024}", rd=['stg'], tag_w=tag) for ks in range(2)] for t in range(5)]
    r = al[0] + bl
    for t in range(1, 5): r += al[t]
    return r
def d_reads(slot, e, tag):
    r = [I(f"ds_read_b128 {ar(dB(e,ks),4)}, v{vA2+slot*2+1} offset:{ks*4096}", rd=['stg'], tag_w=tag) for ks in range(4)]
    for T in range(5):
        r += [I(f"ds_read_b128 {ar(dA(e,ks*5+T),4)}, v{vA2+slot*2} offset:{(ks*5+T)*1024}", rd=['stg'], tag_w=tag) for ks in range(4)]
    return r
def tg(pre, off): return lambda env: f"{pre}{4*env['it']+off}"
def o_block(q):
    e = q % 2
    s = [I("s_barrier", tag_r=(lambda env: [f"ot{4*env['it']+q+1}", f"rd{4*env['it']+q}"]), wr=['stg'], after=2)]
    s += o_reads((q + 1) % 4, 1 - e, tg("rd", q + 1))
    s += dmaB(q, tg("ot", q + 4), 4, 4) + dmaA(q, tg("ot", q + 4), 20, 4)
    for t in range(5):
        for j in range(4):
            for ks in range(2):
                d = vr(vAc + (t * 4 + j) * 4, 4)
                s.append(mfma(d, ar(fA(e, t, ks), 4), ar(fB(e, j, ks), 4), d))
    return s
def d_block(q, dma=True, nxt=True, extra=()):
    e = q % 2
    s = []
    if nxt:
        s += [I("s_barrier", tag_r=(lambda env: [f"ot{4*env['it']+q+1}", f"rd{4*env['it']+q}"]), wr=['stg'], after=0)]
        s += d_reads((q + 1) % 4, 1 - e, tg("rd", q + 1))
    if dma: s += dmaB(q, tg("ot", q + 4), 1, 2) + dmaA(q, tg("ot", q + 4), 9, 2)
    s += list(extra)
    for T in range(5):
        d = vr(vDc + T * 4, 4)
        for ks in range(4): s.append(mfma(d, ar(dA(e, ks * 5 + T), 4), ar(dB(e, ks), 4), d))
    return s

def gen_fallback():
    F = Prog()
    vK = 232; vS = 176; vP = 208
    vf, vv, va = 48, 49, 50
    sK_, sV_ = sR, sOut
    def kload():
        return [I(f"buffer_load_dwordx4 {vr(vK+4*p,4)}, v{vf}, {sr(sK_,4)}, s{sT0} offen offset:{64*p}") for p in range(6)] + L(f"s_add_u32 s{sT0}, s{sT0}, 6144")
    def chains(kt, c0):
        s = []
        for j in range(4):
            d = vr(vS + (j * 2 + kt) * 4, 4)
            for p in range(6): s.append(mfma(d, vr(vK + 4 * p, 4), vr(vQ + (p * 4 + j) * 4, 4), d if p else c0(j)))
        return s
    c = L("L_fb:\ns_waitcnt vmcnt(0) lgkmcnt(0)\ns_nop 15")
    c += srd(sK_, pK, 32 * 2048 * 192 * 2) + srd(sV_, pV, 32 * 2048 * 192 * 2)
    c += L(f"""v_and_b32 v54, 15, v0
v_lshrrev_b32 v55, 4, v0
v_mul_u32_u24 v{vf}, 384, v54
v_lshl_add_u32 v{vf}, v55, 4, v{vf}
v_lshrrev_b32 v56, 3, v0
v_and_b32 v57, 7, v0
v_and_b32 v58, 6, v56
v_xor_b32 v57, v57, v58
v_mul_u32_u24 v{vv}, 384, v56
v_lshl_add_u32 v{vv}, v57, 4, v{vv}
v_lshrrev_b32 v56, 2, v54
v_lshl_add_u32 v56, v55, 2, v56
v_bfe_u32 v57, v56, 1, 2
v_lshlrev_b32 v56, 7, v56
v_and_b32 v58, 3, v0
v_lshl_add_u32 v56, v58, 3, v56
s_lshl_b32 s{sT2}, s{sW}, 12
s_add_u32 s{sT2}, s{sT2}, {LDS_X}
v_add_u32 v56, s{sT2}, v56""")
    for x in range(4): c += L(f"v_xor_b32 v58, {x}, v57\nv_lshl_add_u32 v{va+x}, v58, 5, v56")
    c += L(f"""s_mul_i32 s{sT1}, s{sH}, 786432
s_add_u32 s{sT1}, s{sT1}, {1536*384}
s_mov_b32 s{sT0}, s{sT1}
s_mov_b32 s{sSpin}, 0""")
    for j in range(4): c += L(f"v_mov_b32 v{vNm+4*j}, 0xff800000")
    F.block("a", c)
    c = L("L_fb1:") + kload() + chains(0, lambda j: "0")
    for j in range(4):
        a = vS + j * 8; m = vNm + 4 * j
        c += L(f"v_max3_f32 v{m}, v{m}, v{a}, v{a+1}\nv_max3_f32 v{m}, v{m}, v{a+2}, v{a+3}")
    c += L(f"s_add_u32 s{sSpin}, s{sSpin}, 1\ns_cmp_lt_u32 s{sSpin}, 32\ns_cbranch_scc1 L_fb1")
    F.block("b", c)
    c = []
    for j in range(4):
        m = vNm + 4 * j
        c += xreduce(m, m + 1, "v_max_f32")
        c += L(f"v_sub_f32 v{m+1}, 0, v{m}\nv_sub_f32 v{m+2}, 0, v{m}\nv_sub_f32 v{m+3}, 0, v{m}\nv_sub_f32 v{m}, 0, v{m}\nv_mov_b32 v{vLs+j}, 0")
    for i in range(192): c.append(I(f"v_accvgpr_write_b32 a{i}, 0"))
    c += L(f"s_mov_b32 s{sT0}, s{sT1}\ns_mov_b32 s{sSpin}, 0")
    F.block("c", c)
    c = L("L_fb2:")
    for kt in range(2): c += kload() + chains(kt, lambda j: vr(vNm + 4 * j, 4)) + L("s_nop 7")
    for j in range(4):
        for kt in range(2):
            a = vS + (j * 2 + kt) * 4
            for i in range(4): c.append(I(f"v_exp_f32 v{a+i}, v{a+i}"))
            for i in range(4): c.append(I(f"v_add_f32 v{vLs+j}, v{vLs+j}, v{a+i}"))
            for i in range(2): c.append(I(f"v_cvt_pk_bf16_f32 v{vP+j*4+kt*2+i}, v{a+2*i}, v{a+2*i+1}"))
    for cg in range(3):
        for a in range(4):
            c += L(f"""s_add_u32 m0, s{sT2}, {1024*a}
s_add_u32 s{sOffP}, s{sT1}, {3072*a+128*cg}
buffer_load_dwordx4 v{vv}, {sr(sV_,4)}, s{sOffP} offen lds""")
        c += L("s_waitcnt vmcnt(0)")
        for x in range(4):
            for u in range(2): c.append(I(f"ds_read_b64_tr_b16 {vr(vK+4*x+2*u,2)}, v{va+x} offset:{2048*u}"))
        c += L("s_waitcnt lgkmcnt(0)")
        for x in range(4):
            for j in range(4):
                d = ar(((cg * 4 + x) * 4 + j) * 4, 4)
                c.append(mfma(d, vr(vK + 4 * x, 4), vr(vP + 4 * j, 4), d))
        c += L("s_nop 7")
    c += L(f"s_add_u32 s{sT1}, s{sT1}, 12288\ns_add_u32 s{sSpin}, s{sSpin}, 1\ns_cmp_lt_u32 s{sSpin}, 16\ns_cbranch_scc1 L_fb2")
    F.block("d", c)
    c = []
    for j in range(4): c += xreduce(vLs + j, vTmp + j, "v_add_f32")
    for j in range(4): c.append(I(f"v_rcp_f32 v{vLs+j}, v{vLs+j}"))
    c += L("s_nop 15\ns_branch L_fb_back")
    F.block("e", c)
    F.trace = [("a", {}), ("b", {}), ("b", {}), ("c", {}), ("d", {}), ("d", {}), ("e", {})]
    F.insert_waits(); F.fix_hazards()
    return F.text()

def fix_tags(lst, env):
    for x in lst:
        if callable(x.tag_r): x.tag_r = x.tag_r(env)
        if callable(x.tag_w): x.tag_w = x.tag_w(env)
    return lst

def gen(dbg=False):
    P = Prog()
    OUTL.clear()
    sch = lambda s, name, **kw: schedule(s, name, verbose=dbg, **kw)
    c = L(f"""s_cmp_ge_u32 s2, 256
s_cbranch_scc1 L_end
s_load_dwordx16 s[64:79], s[0:1], 0
s_load_dwordx8 s[80:87], s[0:1], 64
s_memrealtime s[{sSt}:{sSt+1}]
v_lshrrev_b32 v30, 6, v0
v_and_b32 v0, 63, v0
v_readfirstlane_b32 s{sW}, v30
v_lshlrev_b32 v{vL16}, 4, v0
v_and_b32 v48, 7, v0
v_lshrrev_b32 v49, 3, v0
v_mul_u32_u24 v50, 1280, v48
v_lshl_add_u32 v50, v49, 4, v50
v_lshl_add_u32 v50, v30, 7, v50
s_mul_i32 s{sT0}, s2, {8*1280}
s_and_b32 s{sT1}, s2, 7
s_lshr_b32 s{sT2}, s2, 3
s_and_b32 s{sH}, s{sT2}, 3
s_lshl2_add_u32 s{sH}, s{sT1}, s{sH}
s_lshr_b32 s{sB}, s{sT2}, 2
s_lshr_b32 s{sS}, s{sT1}, 1
s_and_b32 s{sT1}, s{sT1}, 1
s_lshl3_add_u32 s{sMb}, s{sT1}, s{sB}
s_and_b32 s{sNb}, s{sT2}, 3
v_cmp_eq_u32 vcc, 0, v0
v_bfrev_b32 v51, 1
v_cndmask_b32 v52, v51, 0, vcc
v_cmp_gt_u32 vcc, 2, v30
v_add_u32 v53, 1024, v50
v_cndmask_b32 v53, v51, v53, vcc""")
    if STAMPS: c += L(f"v_mov_b32 v{vSt}, 0")
    for n in range(3):
        c.append(I(f"v_add_u32 v54, {64*n}, v0"))
        c += divmod_const(55, 56, 54, 24)
        c += L(f"""v_and_b32 v57, 6, v55
v_xor_b32 v57, v56, v57
v_lshlrev_b32 v57, 4, v57
v_subrev_u32 v57, {1024*n}, v57
v_mul_u32_u24 v58, 384, v55
v_add_u32 v{vVo+n}, v58, v57
v_and_b32 v59, 4, v55
v_add_u32 v59, v59, v55
v_mul_u32_u24 v59, 12288, v59
v_add_u32 v{vX+n}, v59, v57
v_mov_b32 v{vY+n}, v{vX+n}
v_lshrrev_b32 v59, 1, v55
v_lshl_add_u32 v59, v30, 2, v59
v_and_b32 v59, 7, v59
v_xor_b32 v59, v56, v59
v_lshlrev_b32 v59, 4, v59
v_subrev_u32 v59, {1024*n}, v59
v_add_u32 v{vKo+n}, v58, v59""")
    c += L("s_waitcnt lgkmcnt(0)")
    c += srd(sXin, pX, 2048 * 640 * 2)
    c += L(f"""buffer_load_dwordx4 v[64:67], v50, {sr(sXin,4)}, s{sT0} offen
buffer_load_dwordx4 v[68:71], v50, {sr(sXin,4)}, s{sT0} offen offset:512
buffer_load_dwordx4 v[72:75], v53, {sr(sXin,4)}, s{sT0} offen""")
    c += srd(sR, pDbg, 256)
    c += L(f"""s_or_b32 s{sNonce}, s{sSt}, 1
v_mov_b32 v54, s{sNonce}
s_or_b32 s{sT1}, s2, s{sW}
s_cmp_eq_u32 s{sT1}, 0
s_cselect_b32 s{sT1}, 0, 0x100
buffer_store_dword v54, v52, {sr(sR,4)}, s{sT1} offen sc1""")
    c += stamp(0)
    c += srd(sX, pWq, 640 * 6144 * 2) + srd(sY, pWq, 640 * 6144 * 2) + srd(sWS, pWs, WS_SIZE)
    c += L(f"""s_lshr_b32 s{sT0}, s{sW}, 1
s_and_b32 s{sT1}, s{sW}, 1
s_lshl_b32 s{sT2}, s{sT0}, 5
s_lshl2_add_u32 s{sT2}, s{sT1}, s{sT2}
s_mul_i32 s{sOffX}, s{sT2}, 12288
s_mul_i32 s{sT2}, s{sH}, 384
s_add_u32 s{sOffX}, s{sOffX}, s{sT2}
s_add_u32 s{sOffY}, s{sOffX}, {16*12288}
s_mov_b32 s{sStr}, {64*12288}
s_mul_i32 s{sMX}, s{sW}, 6144
s_add_u32 s{sMY}, s{sMX}, 3072
s_mov_b32 s{sWr}, 0
s_mov_b32 s{sRd}, 0""")
    c += dma_group("st0") + dma_group("st1") + dma_group("st2")
    c += L(f"v_mov_b32 v60, 0\nbuffer_load_dword v61, v60, {sr(sR,4)}, 0 offen sc1")
    c += L(f"""s_lshl2_add_u32 s{sQg}, s{sB}, s{sW}
s_mul_i32 s{sOffB}, s{sQg}, {20*4096}
s_mul_i32 s{sOffG0}, s{sH}, {20*6144}
s_mul_i32 s{sT2}, s{sW}, 6144
s_add_u32 s{sOffG0}, s{sOffG0}, s{sT2}
s_add_u32 s{sOffG0}, s{sOffG0}, {hex(GP_OFF)}
s_mul_i32 s{sOffK0}, s{sH}, 786432
s_mul_i32 s{sT2}, s{sW}, 3072
s_add_u32 s{sOffK0}, s{sOffK0}, s{sT2}
s_add_u32 s{sOffK0}, s{sOffK0}, {1536*384}
s_mul_i32 s{sT2}, s{sQg}, {240*4096}
s_add_u32 s{sT2}, s{sT2}, {hex(OH_OFF)}
s_mul_i32 s{sT3}, s{sH}, {6*4096}
s_add_u32 s{sOffO}, s{sT2}, s{sT3}
s_add_u32 s{sT2}, s{sT2}, {192*4096}
s_mul_i32 s{sT3}, s{sH}, 3""")
    for T3 in range(3):
        c += L(f"""s_lshr_b32 s{sSpin}, s{sT3}, 1
s_lshl_b32 s{sSpin}, s{sSpin}, 12
s_add_u32 s{sOffH+T3}, s{sT2}, s{sSpin}
s_and_b32 s{sSpin}, s{sT3}, 1
s_lshl_b32 s{sSpin}, s{sSpin}, 9
s_add_u32 s{sOffH+T3}, s{sOffH+T3}, s{sSpin}
s_add_u32 s{sT3}, s{sT3}, 1""")
    c += L(f"s_mov_b32 s{sScale}, {hex(f2u(math.log2(math.e) / math.sqrt(192.0)))}\ns_mov_b32 s{sCnt}, 0")
    c += L(f"""s_sub_u32 s{sT2}, s2, 240
s_cmp_lt_u32 s2, 240
s_cselect_b32 s{sT2}, s2, s{sT2}""")
    c += sdivmod(sT3, sSpin, sT2, 10)
    c += L(f"""s_lshl_b32 s{sOffRo}, s{sT3}, 8
s_lshl3_add_u32 s{sOffRo}, s{sW}, s{sOffRo}
s_mul_i32 s{sOffRo}, s{sOffRo}, 1280
s_lshl_b32 s{sFl}, s{sSpin}, 7
s_add_u32 s{sOffRo}, s{sOffRo}, s{sFl}
s_lshl_b32 s{sOffRd}, s{sT3}, 6
s_lshl4_add_u32 s{sOffRd}, s{sT1}, s{sOffRd}
s_lshl3_add_u32 s{sOffRd}, s{sT0}, s{sOffRd}
s_mul_i32 s{sOffRd}, s{sOffRd}, 1280
s_add_u32 s{sOffRd}, s{sOffRd}, s{sFl}
s_lshl2_add_u32 s{sSpin}, s{sSpin}, s{sW}""")
    c += sdivmod(sFl, sOffP, sSpin, 10)
    c += L(f"""s_mul_i32 s{sFl}, s{sFl}, 192
s_lshl3_add_u32 s{sFl}, s{sT3}, s{sFl}
s_mul_i32 s{sFl}, s{sFl}, 10
s_add_u32 s{sFl}, s{sFl}, s{sOffP}
s_lshl_b32 s{sFl}, s{sFl}, 10
s_add_u32 s{sOffDo}, s{sFl}, {hex(WOP_OFF)}""")
    c += sdivmod(sFl, sOffP, sSpin, 5)
    c += L(f"""s_mul_i32 s{sFl}, s{sFl}, 48
s_lshl1_add_u32 s{sFl}, s{sT3}, s{sFl}
s_mul_i32 s{sFl}, s{sFl}, 5
s_add_u32 s{sFl}, s{sFl}, s{sOffP}
s_lshl_b32 s{sFl}, s{sFl}, 10
s_add_u32 s{sOffDd}, s{sFl}, {hex(WDP_OFF)}""")
    c += sdivmod(sT3, sSpin, sT2, 48)
    c += L(f"""s_cmp_ge_u32 s{sSpin}, 24
s_cselect_b32 s{pBx}, s{pWu}, s{pWg}
s_cselect_b32 s{pBx+1}, s{pWu+1}, s{pWg+1}
s_cselect_b32 s{sT2}, 1, 0
s_cselect_b32 s{sFl}, 24, 0
s_sub_u32 s{sSpin}, s{sSpin}, s{sFl}
s_lshl_b32 s{sOffR}, s{sT3}, 7
s_lshl4_add_u32 s{sOffR}, s{sT1}, s{sOffR}
s_lshl2_add_u32 s{sOffR}, s{sT0}, s{sOffR}
s_mul_i32 s{sOffR}, s{sOffR}, 3072
s_lshl_b32 s{sFl}, s{sSpin}, 7
s_add_u32 s{sOffR}, s{sOffR}, s{sFl}
s_mov_b32 s{sStrR}, {32*3072}
s_lshl_b32 s{sMR}, s{sW}, 10
s_add_u32 s{sMR}, s{sMR}, 24576
s_lshl2_add_u32 s{sSpin}, s{sSpin}, s{sW}""")
    c += sdivmod(sFl, sOffP, sSpin, 3)
    c += L(f"""s_mul_i32 s{sFl}, s{sFl}, 20
s_lshl2_add_u32 s{sFl}, s{sT3}, s{sFl}
s_mul_i32 s{sFl}, s{sFl}, 6
s_lshl1_add_u32 s{sFl}, s{sOffP}, s{sFl}
s_add_u32 s{sFl}, s{sFl}, s{sT2}
s_lshl_b32 s{sFl}, s{sFl}, 10
s_add_u32 s{sOffD}, s{sFl}, {hex(GP_OFF)}
s_mov_b32 s{sIncD}, 6144""")
    c += L(f"""v_and_b32 v54, 6, v49
v_xor_b32 v54, v54, v48
v_lshlrev_b32 v54, 4, v54
v_mul_u32_u24 v55, 1280, v49
v_add_u32 v{vRo2}, v55, v54
v_and_b32 v55, 4, v49
v_add_u32 v55, v55, v49
v_mul_u32_u24 v55, 3072, v55
v_add_u32 v{vRo}, v55, v54""")
    c += L(f"""v_lshrrev_b32 v54, 4, v0
v_and_b32 v55, 15, v0
v_lshrrev_b32 v56, 2, v55
v_and_b32 v57, 3, v0
v_lshl_add_u32 v58, v54, 2, v56
v_bfe_u32 v59, v58, 1, 2
v_mul_u32_u24 v62, 384, v58
v_lshlrev_b32 v63, 1, v59
v_xor_b32 v63, v63, v57
v_lshl_add_u32 v{vWa}, v63, 4, v62
v_xor_b32 v63, 4, v63
v_lshl_add_u32 v{vWa+1}, v63, 4, v62
v_lshl_add_u32 v62, v57, 3, v62
v_add_u32 v62, {SLOT*(11%NS)}, v62""")
    for x in range(4):
        c += L(f"v_xor_b32 v63, {x}, v59\nv_lshl_add_u32 v{vVa+x}, v63, 5, v62")
    c += L(f"""v_lshlrev_b32 v62, 7, v58
v_lshl_add_u32 v62, v57, 3, v62
v_xor_b32 v63, v30, v59
v_lshl_add_u32 v62, v63, 5, v62
v_add_u32 v{vRa}, {SLOT*(12%NS)+24576}, v62
v_add_u32 v{vGa}, {SLOT*(27%NS)}, v{vL16}
v_mul_u32_u24 v62, 384, v55
v_add_u32 v62, {SLOT*(10%NS)}, v62
v_lshrrev_b32 v63, 1, v55
v_xor_b32 v63, v63, v54
v_lshl_add_u32 v{vKa}, v63, 4, v62
v_xor_b32 v63, 4, v63
v_lshl_add_u32 v{vKa+1}, v63, 4, v62""")
    c += L(f"""v_lshlrev_b32 v56, 2, v48
v_add_u32 v56, {LDS_X}, v56
v_lshl_add_u32 v57, v30, 5, v56
s_cmp_lt_u32 s{sW}, 2
s_cselect_b32 s{sT0}, 1.0, 0""")
    for i in range(12):
        c += L(f"v_lshlrev_b32 v{80+2*i}, 16, v{64+i}\nv_and_b32 v{81+2*i}, 0xffff0000, v{64+i}")
    def red8(v, t):
        return L(f"v_add_f32_dpp v{v}, v{v}, v{v} row_ror:8 row_mask:0xf bank_mask:0xf") + xreduce(v, t, "v_add_f32")
    for k in range(4): c.append(I(f"v_add_f32 v{104+k}, v{80+k}, v{84+k}"))
    for i in range(8, 24): c.append(I(f"v_add_f32 v{104+i%4}, v{104+i%4}, v{80+i}"))
    c += L("v_add_f32 v104, v104, v105\nv_add_f32 v106, v106, v107\nv_add_f32 v104, v104, v106")
    c += red8(104, 105)
    c += L(f"""ds_write_b32 v57, v104
s_waitcnt lgkmcnt(0)
s_barrier
ds_read_b32 v104, v56
ds_read_b32 v105, v56 offset:32
ds_read_b32 v106, v56 offset:64
ds_read_b32 v107, v56 offset:96
v_add_f32 v104, v104, v105
v_add_f32 v106, v106, v107
v_add_f32 v104, v104, v106
v_mul_f32 v108, {hex(f2u(1.0/640))}, v104""")
    for i in range(24):
        t = 109 + i % 2; a = 104 + (i % 2) + (2 if i >= 16 else 0)
        c.append(I(f"v_sub_f32 v{t}, v{80+i}, v108"))
        c.append(I(f"v_mul_f32 v{a}, v{t}, v{t}" if i in (0, 1, 16, 17) else f"v_fmac_f32 v{a}, v{t}, v{t}"))
    c += L(f"v_add_f32 v104, v104, v105\nv_add_f32 v106, v106, v107\nv_fmac_f32 v104, s{sT0}, v106")
    c += red8(104, 105)
    c += L(f"""ds_write_b32 v57, v104 offset:128
s_waitcnt lgkmcnt(0)
s_barrier
ds_read_b32 v104, v56 offset:128
ds_read_b32 v105, v56 offset:160
ds_read_b32 v106, v56 offset:192
ds_read_b32 v107, v56 offset:224
v_add_f32 v104, v104, v105
v_add_f32 v106, v106, v107
v_add_f32 v104, v104, v106
v_mul_f32 v104, {hex(f2u(1.0/640))}, v104
v_cvt_pk_bf16_f32 v104, v104, v108
v_and_b32 v108, 0xffff0000, v104
v_lshlrev_b32 v104, 16, v104
v_add_f32 v104, {hex(f2u(1e-5))}, v104
v_cvt_pk_bf16_f32 v104, v104, v104
v_lshlrev_b32 v104, 16, v104
v_sqrt_f32 v104, v104
v_cvt_pk_bf16_f32 v104, v104, v104
v_lshlrev_b32 v104, 16, v104
v_rcp_f32 v104, v104""")
    c += L(f"""v_lshrrev_b32 v56, 2, v49
v_lshl_add_u32 v56, v30, 1, v56
v_lshlrev_b32 v56, 12, v56
v_and_b32 v57, 3, v49
v_lshl_add_u32 v56, v57, 8, v56
v_lshl_add_u32 v56, v48, 4, v56
v_add_u32 v57, {16*4096}, v56
v_cndmask_b32 v57, v51, v57, vcc
s_lshr_b32 s{sT0}, s2, 3
s_mul_i32 s{sT0}, s{sT0}, {20*4096}
s_bfe_u32 s{sT1}, s2, 0x20001
s_lshl_b32 s{sT1}, s{sT1}, 10
s_add_u32 s{sT0}, s{sT0}, s{sT1}
s_and_b32 s{sT1}, s2, 1
s_lshl_b32 s{sT1}, s{sT1}, 7
s_add_u32 s{sT0}, s{sT0}, s{sT1}
s_add_u32 s{sT1}, s{sT0}, {8*4096}""")
    for i in range(12):
        a, b = 80 + 2 * i, 81 + 2 * i
        c += L(f"""v_sub_f32 v{a}, v{a}, v108
v_sub_f32 v{b}, v{b}, v108
v_cvt_pk_bf16_f32 v{a}, v{a}, v{b}
v_and_b32 v{b}, 0xffff0000, v{a}
v_lshlrev_b32 v{a}, 16, v{a}
v_mul_f32 v{a}, v{a}, v104
v_mul_f32 v{b}, v{b}, v104
v_cvt_pk_bf16_f32 v{64+i}, v{a}, v{b}""")
        if i == 3: c.append(I(f"buffer_store_dwordx4 v[64:67], v56, {sr(sWS,4)}, s{sT0} offen sc1"))
        if i == 7: c.append(I(f"buffer_store_dwordx4 v[68:71], v56, {sr(sWS,4)}, s{sT1} offen sc1"))
        if i == 11: c.append(I(f"buffer_store_dwordx4 v[72:75], v57, {sr(sWS,4)}, s{sT0} offen sc1"))
    c += stamp(1)
    c += L(f"""s_mov_b32 s{sSpin}, {SPIN_MAX}
L_nonce:
s_waitcnt vmcnt(0)
v_readfirstlane_b32 s{sNonce}, v61
s_nop 3
s_cmp_lg_u32 s{sNonce}, 0
s_cbranch_scc1 L_nonce_ok
buffer_load_dword v61, v60, {sr(sR,4)}, 0 offen sc1
s_sub_u32 s{sSpin}, s{sSpin}, 1
s_cmp_lg_u32 s{sSpin}, 0
s_cbranch_scc1 L_nonce
L_nonce_ok:
s_lshl_b32 s{sT0}, s2, 7
s_lshl2_add_u32 s{sT0}, s{sW}, s{sT0}
s_add_u32 s{sT0}, s{sT0}, {hex(FXN)}
buffer_store_dword v61, v52, {sr(sWS,4)}, s{sT0} offen sc1
v_bfe_u32 v56, v0, 2, 3
v_lshlrev_b32 v56, 7, v56
v_and_b32 v57, 3, v0
v_lshl_add_u32 v56, v57, 2, v56
s_lshl_b32 s{sT0}, s{sQg}, 10
s_add_u32 s{sT0}, s{sT0}, {hex(FXN)}""")
    c += srd(sR, pBx, 640 * 1536 * 2)
    for i in range(4): c.append(I(f"v_mov_b32 v{vLs+i}, 0"))
    for i in range(96): c.append(I(f"v_mov_b32 v{vAcc+i}, 0"))
    c += [poll_load(57, 56, f"s{sT0}")]
    for i in range(96, 192): c.append(I(f"v_mov_b32 v{vAcc+i}, 0"))
    c += poll_check("xn", 57, 56, f"s{sT0}")
    c += stamp(2)
    c += b_loads(('a', 0), None)
    c.append(barrier("st0"))
    c += w_reads(0) + w_reads(1)
    P.block("pro", c)
    P.block("p1_top", L(".p2align 6\nL_p1:"))
    P.block("p1_even", sch(p1_step(0), "p1_even"))
    P.block("p1_mid", L(f"s_cmp_eq_u32 s{sCnt}, 4\ns_cbranch_scc1 L_p1_last\ns_cmp_eq_u32 s{sCnt}, 3\ns_cbranch_scc0 L_p1_odd"))
    sw = srd(sX, pK, 32 * 2048 * 192 * 2) + srd(sY, pV, 32 * 2048 * 192 * 2)
    sw += L(f"""s_mov_b32 s{sOffX}, s{sOffK0}
s_sub_u32 s{sOffY}, s{sOffK0}, 12288
s_mov_b32 s{sStr}, 12288
s_mul_i32 s{sMX}, s{sW}, 3072
s_add_u32 s{sMY}, s{sMX}, 12288""")
    for n in range(3): sw += L(f"v_mov_b32 v{vX+n}, v{vKo+n}\nv_mov_b32 v{vY+n}, v{vVo+n}")
    P.block("p1_switch", sw)
    P.block("p1_odd", L("L_p1_odd:") + sch(p1_step(1), "p1_odd") + L(f"s_add_u32 s{sCnt}, s{sCnt}, 1\ns_branch L_p1"))
    big = fix_tags(p1_step(1, last=True), {'sg': 9}) + first_tile() + fix_tags(p2_iter(0, base=96 + 48, first=True), {'sg': 11})
    big += L(f"""v_cmp_eq_u32 vcc, 0, v0
v_bfrev_b32 v{vNon}, 1
v_cndmask_b32 v{vFo}, v{vNon}, 0, vcc
v_mov_b32 v{vNon}, s{sNonce}""")
    P.block("p1_last", L("L_p1_last:") + stamp(3) + sch(big, "p1_last+first") + stamp(4) + L(f"s_mov_b32 s{sCnt}, 0"))
    tops = {}; mids = {}
    tops[2] = L(f"s_mov_b32 s{sOffD}, s{sOffDo}\ns_mov_b32 s{sIncD}, 10240")
    tops[3] = L(f"s_lshl2_add_u32 s{sT0}, s2, s{sW}\ns_lshl_b32 s{sT0}, s{sT0}, 2\ns_add_u32 s{sT3}, s{sT0}, {hex(FW)}\ns_add_u32 s{sT0}, s{sT0}, {hex(FG)}") + [set_flag(f"s{sT0}", "Gst")]
    tops[5] = L(f"s_lshl_b32 s{sT0}, s{sW}, 10\ns_add_u32 s{sT0}, s{sT0}, {hex(FG)}") + [poll_load(vTmp, vL16, f"s{sT0}", 4)]
    sw = L(f"s_mov_b32 s{sOffD}, s{sOffDd}\ns_mov_b32 s{sIncD}, 5120")
    sw += srd(sX, pWs, WS_SIZE) + srd(sY, pWs, WS_SIZE)
    sw += L(f"""s_mov_b32 s{sOffX}, s{sOffG0}
s_add_u32 s{sOffY}, s{sOffG0}, 3072
s_mov_b32 s{sStr}, 24576
s_mul_i32 s{sMX}, s{sW}, 6144
s_add_u32 s{sMY}, s{sMX}, 3072""")
    for n in range(3): sw += L(f"v_mov_b32 v{vX+n}, v{vL16}\nv_mov_b32 v{vY+n}, v{vL16}")
    tops[6] = sw
    mids[0] = srd(sR, pWo, 6144 * 640 * 2) + L(f"s_mov_b32 s{sOffR}, s{sOffRo}\ns_mov_b32 s{sStrR}, {32*1280}\nv_mov_b32 v{vRo}, v{vRo2}")
    mids[4] = srd(sR, pWd, 1536 * 640 * 2) + L(f"s_mov_b32 s{sOffR}, s{sOffRd}")
    mids[5] = L(f"s_mov_b32 s{sR+2}, 0") + poll_check("g", vTmp, vL16, f"s{sT0}", 4)
    def disp(nm, d):
        mask = sum(1 << k for k in d)
        inl = L(f"s_bitcmp1_b32 {hex(mask)}, s{sCnt}\ns_cbranch_scc1 L_{nm}_disp\nL_{nm}_back:")
        keys = sorted(d)
        hd = L(f"L_{nm}_disp:")
        for k in keys[1:]: hd += L(f"s_cmp_eq_u32 s{sCnt}, {k}\ns_cbranch_scc1 L_{nm}_{k}")
        OUTL.append((f"{nm}_disp", hd))
        for k in keys: OUTL.append((f"{nm}_{k}", L(f"L_{nm}_{k}:") + d[k] + L(f"s_branch L_{nm}_back")))
        return inl
    P.block("p2_top", L(".p2align 6\nL_p2:") + disp("top", tops))
    P.block("p2_odd", sch(p2_iter(1), "p2_odd"))
    P.block("p2_mid", disp("mid", mids))
    P.block("p2_even", sch(p2_iter(0), "p2_even") + L(f"s_add_u32 s{sCnt}, s{sCnt}, 1\ns_cmp_lt_u32 s{sCnt}, 7\ns_cbranch_scc1 L_p2"))
    P.block("tail", stamp(5) + sch(tail_pv(), "tail", vm_min=3))
    P.block("p3_pre", L("s_cbranch_vccnz L_fb\nL_fb_back:") + stamp(6) + L(f"""v_and_b32 v{vT}, 32, v0
v_lshlrev_b32 v{vT}, 4, v{vT}
v_add_u32 v{vT}, v{vT}, v{vL16}
s_lshl_b32 s{sFl}, s{sB}, 5
s_add_u32 s{sFl}, s{sFl}, s{sH}
s_lshl_b32 s{sFl}, s{sFl}, 7
s_lshl2_add_u32 s{sFl}, s{sW}, s{sFl}
s_add_u32 s{sFl}, s{sFl}, {hex(FO)}"""))
    P.block("p3", sch(p3_all(), "p3", vm_min=3))
    c = stamp(7)
    c += L(f"""s_lshl_b32 s{sT0}, s{sW}, 10
s_add_u32 s{sT0}, s{sT0}, {hex(FW)}""")
    c += [poll_load(vTmp, vL16, f"s{sT0}", 4)]
    c += L(f"""s_lshr_b32 s{sT1}, s{sMb}, 1
s_lshl_b32 s{sT1}, s{sT1}, 5
s_lshl3_add_u32 s{sT1}, s{sS}, s{sT1}
s_lshl_b32 s{sT1}, s{sT1}, 7
s_and_b32 s{sT2}, s{sMb}, 1
s_and_b32 s{sT3}, s{sW}, 1
s_lshl1_add_u32 s{sT2}, s{sT2}, s{sT3}
s_lshl2_add_u32 s{sT1}, s{sT2}, s{sT1}
s_add_u32 s{sT1}, s{sT1}, {hex(FO)}
v_and_b32 v{vFa}, 7, v0
v_lshlrev_b32 v{vFa}, 7, v{vFa}""")
    c += [poll_load(vFl, vFa, f"s{sT1}")]
    c += L(f"""s_mul_i32 s{sOffA}, s{sNb}, 192
s_mul_i32 s{sT2}, s{sS}, 48
s_add_u32 s{sOffA}, s{sOffA}, s{sT2}
s_mul_i32 s{sOffA}, s{sOffA}, 10240
s_mul_i32 s{sMA}, s{sW}, 5120
s_add_u32 s{sOffA}, s{sOffA}, s{sMA}
s_add_u32 s{sOffA}, s{sOffA}, {hex(WOP_OFF)}
s_lshl1_add_u32 s{sOffBB}, s{sMb}, s{sT3}
s_mul_i32 s{sOffBB}, s{sOffBB}, 240
s_add_u32 s{sOffBB}, s{sOffBB}, s{sT2}
s_lshr_b32 s{sT2}, s{sW}, 1
s_add_u32 s{sOffBB}, s{sOffBB}, s{sT2}
s_lshl_b32 s{sOffBB}, s{sOffBB}, 12
s_add_u32 s{sOffBB}, s{sOffBB}, {hex(OH_OFF)}
s_mov_b32 s{sStrB}, 8192
s_lshl_b32 s{sMB}, s{sW}, 12
s_add_u32 s{sMB}, s{sMB}, 20480
s_mul_i32 s{sT3}, s{sT3}, 5120
s_lshl_b32 s{sT2}, s{sT2}, 12
s_add_u32 s{sT2}, s{sT2}, 20480""")
    for sl in range(4):
        c += L(f"""v_add_u32 v{vA2+sl*2}, s{sT3}, v{vL16}
v_add_u32 v{vA2+sl*2+1}, s{sT2}, v{vL16}
s_add_u32 s{sT3}, s{sT3}, {SL2}
s_add_u32 s{sT2}, s{sT2}, {SL2}""")
    for i in range(100): c.append(I(f"v_mov_b32 v{vAc+i}, 0"))
    c += poll_check("w", vTmp, vL16, f"s{sT0}", 4)
    c += L("s_barrier")
    c += dmaA(0, "ot0")
    c += poll_check("o", vFl, vFa, f"s{sT1}")
    c += stamp(8)
    c += dmaB(0, "ot0")
    for st in range(1, 4): c += dmaB(st, f"ot{st}") + dmaA(st, f"ot{st}")
    c += L(f"s_add_u32 s{sFl}, s{sFl}, {FH-FO}") + [set_flag(f"s{sFl}", "Hst")]
    c += L(f"s_mov_b32 s{sCnt}, 0")
    c.append(I("s_barrier", tag_r="ot0"))
    c += stamp(9)
    c += o_reads(0, 0, "rd0")
    P.block("o_pro", c)
    ot = {}
    ot[3] = L(f"""s_lshr_b32 s{sT2}, s{sS}, 1
s_lshl1_add_u32 s{sQg}, s{sMb}, s{sT2}
s_lshr_b32 s{sT1}, s{sMb}, 1
s_lshl_b32 s{sT1}, s{sT1}, 12
s_and_b32 s{sT2}, s{sQg}, 3
s_lshl2_add_u32 s{sT1}, s{sT2}, s{sT1}
s_add_u32 s{sT1}, s{sT1}, {hex(FH)}
v_and_b32 v{vFa}, 31, v0
v_lshlrev_b32 v{vFa}, 7, v{vFa}""") + [poll_load(vFl, vFa, f"s{sT1}")]
    ot[5] = poll_check("h", vFl, vFa, f"s{sT1}") + L(f"""s_and_b32 s{sT2}, s{sS}, 1
s_lshl1_add_u32 s{sT2}, s{sNb}, s{sT2}
s_mul_i32 s{sOffA}, s{sT2}, {48*5120}
s_add_u32 s{sOffA}, s{sOffA}, s{sMA}
s_add_u32 s{sOffA}, s{sOffA}, {hex(WDP_OFF)}
s_mul_i32 s{sOffBB}, s{sQg}, 240
s_add_u32 s{sOffBB}, s{sOffBB}, s{sW}
s_add_u32 s{sOffBB}, s{sOffBB}, 192
s_lshl_b32 s{sOffBB}, s{sOffBB}, 12
s_add_u32 s{sOffBB}, s{sOffBB}, {hex(OH_OFF)}
s_mov_b32 s{sStrB}, 16384""")
    P.block("o_top", L(".p2align 6\nL_o:") + disp("ot", ot))
    for q in range(4): P.block(f"o{q}", sch(o_block(q), f"o{q}"))
    P.block("o_loop", L(f"s_add_u32 s{sCnt}, s{sCnt}, 1\ns_cmp_lt_u32 s{sCnt}, 6\ns_cbranch_scc1 L_o"))
    c = stamp(10)
    c += L(f"s_lshl_b32 s{sT2}, s{sW}, 10\ns_add_u32 s{sT2}, s{sT2}, 20480\ns_mov_b32 s{sT3}, 0")
    for sl in range(4):
        c += L(f"""v_add_u32 v{vA2+sl*2}, s{sT3}, v{vL16}
v_add_u32 v{vA2+sl*2+1}, s{sT2}, v{vL16}
s_add_u32 s{sT3}, s{sT3}, {SL2}
s_add_u32 s{sT2}, s{sT2}, {SL2}""")
    c += d_reads(0, 0, "rd24")
    c += L(f"""s_lshl2_add_u32 s{sT0}, s{sMb}, s{sNb}
s_lshl2_add_u32 s{sT1}, s{sT0}, s{sS}
s_lshl2_add_u32 s{sT2}, s{sT1}, s{sW}
s_mul_i32 s{sOffP}, s{sT2}, 10240
s_add_u32 s{sOffP}, s{sOffP}, {hex(PART_OFF)}
s_lshl_b32 s{sFl}, s{sT1}, 7
s_lshl2_add_u32 s{sFl}, s{sW}, s{sFl}
s_add_u32 s{sFl}, s{sFl}, {hex(FP)}""")
    def pk(dst, t, j):
        a = vAc + (t * 4 + j) * 4
        return L(f"v_cvt_pk_bf16_f32 v{dst}, v{a}, v{a+1}\nv_cvt_pk_bf16_f32 v{dst+1}, v{a+2}, v{a+3}")
    n = 0
    for j in range(4):
        for tp in range(2):
            o = vPk + n * 4
            c += pk(o, 2 * tp, j) + pk(o + 2, 2 * tp + 1, j)
            c.append(I(f"buffer_store_dwordx4 {vr(o,4)}, v{vL16}, {sr(sWS,4)}, s{sOffP} offen offset:{(n%4)*1024} sc1", tag_w="Pst"))
            n += 1
            if n % 4 == 0: c.append(I(f"s_add_u32 s{sOffP}, s{sOffP}, 4096"))
    for jp in range(2):
        o = vPk + n * 4
        c += pk(o, 4, 2 * jp) + pk(o + 2, 4, 2 * jp + 1)
        c.append(I(f"buffer_store_dwordx4 {vr(o,4)}, v{vL16}, {sr(sWS,4)}, s{sOffP} offen offset:{jp*1024} sc1", tag_w="Pst"))
        n += 1
    c += srd(sOut, pOut, 2048 * 640 * 2)
    c += L(f"""v_and_b32 v{vOa}, 15, v0
v_mul_u32_u24 v{vOa}, 1280, v{vOa}
v_lshrrev_b32 v{vPo}, 4, v0
v_lshl_add_u32 v{vOa}, v{vPo}, 3, v{vOa}
s_lshl2_add_u32 s{sT2}, s{sQg}, s{sW}
s_mul_i32 s{sOffO}, s{sT2}, {16*1280}
s_and_b32 s{sT2}, s{sS}, 1
s_lshl1_add_u32 s{sT2}, s{sNb}, s{sT2}
s_mul_i32 s{sT2}, s{sT2}, 160
s_add_u32 s{sOffO}, s{sOffO}, s{sT2}
s_lshl_b32 s{sT1}, s{sT0}, 9
s_lshl2_add_u32 s{sT1}, s{sS}, s{sT1}
s_add_u32 s{sT1}, s{sT1}, {hex(FP)}
v_and_b32 v{vFa}, 3, v0
v_lshlrev_b32 v{vFa}, 7, v{vFa}
s_lshl4_add_u32 s{sT2}, s{sT0}, s{sS}
s_mul_i32 s{sOffP}, s{sT2}, 10240
s_add_u32 s{sOffP}, s{sOffP}, {hex(PART_OFF)}
s_lshl_b32 s{sT2}, s{sW}, 11
s_add_u32 s{sOffH0}, s{sOffP}, s{sT2}
s_lshr_b32 s{sT2}, s{sW}, 1
s_lshl_b32 s{sT2}, s{sT2}, 10
s_and_b32 s{sT3}, s{sW}, 1
s_lshl3_add_u32 s{sT2}, s{sT3}, s{sT2}
s_add_u32 s{sT2}, s{sT2}, 8192
s_add_u32 s{sOffH1}, s{sOffP}, s{sT2}
s_mov_b32 s{sCnt}, 6""")
    P.block("d_pro", c)
    dt = {7: [set_flag(f"s{sFl}", "Pst")]}
    P.block("d_top", L(".p2align 6\nL_d:") + disp("dt", dt))
    for q in range(4): P.block(f"d{q}", sch(d_block(q), f"d{q}", vm_min=2))
    P.block("d_loop", L(f"s_add_u32 s{sCnt}, s{sCnt}, 1\ns_cmp_lt_u32 s{sCnt}, 8\ns_cbranch_scc1 L_d"))
    xl = [I(f"buffer_load_dwordx2 {vr(vXr+2*t,2)}, v{vOa}, {sr(sXin,4)}, s{sOffO} offen offset:{32*t}") for t in range(5)]
    P.block("e0", sch(d_block(0, dma=False, extra=[poll_load(vFl, vFa, f"s{sT1}")] + xl), "e0", vm_min=2))
    P.block("e1", sch(d_block(1, dma=False), "e1"))
    pl = []
    for sd in range(4):
        for tp in range(2): pl.append(I(f"buffer_load_dwordx4 {vr(vPl+sd*12+tp*4,4)}, v{vL16}, {sr(sWS,4)}, s{sOffH0} offen offset:{1024*tp} sc1"))
        pl.append(I(f"buffer_load_dwordx2 {vr(vPl+sd*12+8,2)}, v{vL16}, {sr(sWS,4)}, s{sOffH1} offen sc1"))
        pl += L(f"s_add_u32 s{sOffH0}, s{sOffH0}, {4*10240}\ns_add_u32 s{sOffH1}, s{sOffH1}, {4*10240}")
    P.block("e_chk", poll_check("p", vFl, vFa, f"s{sT1}") + pl)
    P.block("e2", sch(d_block(2, dma=False), "e2"))
    P.block("e3", sch(d_block(3, dma=False, nxt=False), "e3"))
    c = stamp(11)
    t0 = 112
    for t in range(5):
        h = vDc + 4 * t
        for i in range(4):
            c += L(f"v_mul_f32 v{t0+4*t+i}, {hex(f2u(-math.log2(math.e)))}, v{h+i}\nv_exp_f32 v{t0+4*t+i}, v{t0+4*t+i}")
        for i in range(4):
            c += L(f"v_add_f32 v{t0+4*t+i}, 1.0, v{t0+4*t+i}\nv_rcp_f32 v{t0+4*t+i}, v{t0+4*t+i}")
        for i in range(4): c += L(f"v_mul_f32 v{h+i}, v{h+i}, v{t0+4*t+i}")
    for t in range(5):
        h = vDc + 4 * t; a = t0 + 4 * t; u = 132
        for sd in range(4):
            for hf in range(2):
                src = vPl + sd * 12 + 2 * t + hf
                if sd == 0:
                    c += L(f"v_lshlrev_b32 v{a+2*hf}, 16, v{src}\nv_and_b32 v{a+2*hf+1}, 0xffff0000, v{src}")
                else:
                    c += L(f"""v_lshlrev_b32 v{u+2*hf}, 16, v{src}
v_and_b32 v{u+2*hf+1}, 0xffff0000, v{src}
v_add_f32 v{a+2*hf}, v{a+2*hf}, v{u+2*hf}
v_add_f32 v{a+2*hf+1}, v{a+2*hf+1}, v{u+2*hf+1}""")
        c += L(f"""v_lshlrev_b32 v{u+4}, 16, v{vXr+2*t}
v_and_b32 v{u+5}, 0xffff0000, v{vXr+2*t}
v_lshlrev_b32 v{u+6}, 16, v{vXr+2*t+1}
v_and_b32 v{u+7}, 0xffff0000, v{vXr+2*t+1}""")
        for i in range(4): c.append(I(f"v_fmac_f32 v{u+4+i}, v{a+i}, v{h+i}"))
        c += L(f"""v_cvt_pk_bf16_f32 v{a}, v{u+4}, v{u+5}
v_cvt_pk_bf16_f32 v{a+1}, v{u+6}, v{u+7}
buffer_store_dwordx2 {vr(a,2)}, v{vOa}, {sr(sOut,4)}, s{sOffO} offen offset:{32*t}""")
    c += stamp_store(13)
    amp = os.environ.get("AMP")
    if amp and STAMPS:
        k1, k2, mult = map(int, amp.split(","))
        first = f"v_readlane_b32 s{sT0}, v{vSt}, {2*k1}" if k1 >= 0 else f"s_mov_b32 s{sT0}, s{sNonce}"
        c += L(f"""{first}
v_readlane_b32 s{sT1}, v{vSt}, {2*k2}
v_readlane_b32 s{sT2}, v{vSt}, 26
s_nop 4
s_sub_u32 s{sT0}, s{sT1}, s{sT0}
s_mul_i32 s{sT0}, s{sT0}, {mult}
s_min_u32 s{sT0}, s{sT0}, 100000
L_amp:
s_memrealtime s[{sSt}:{sSt+1}]
s_waitcnt lgkmcnt(0)
s_sub_u32 s{sT1}, s{sSt}, s{sT2}
s_cmp_lt_u32 s{sT1}, s{sT0}
s_cbranch_scc1 L_amp""")
    c += L("L_end:\ns_endpgm")
    P.block("fin", c)
    for nm, ins in OUTL: P.block(nm, ins)
    tr = [("pro", {})]
    for i in range(5):
        tr += [("p1_top", {}), ("p1_even", {'sg': 2 * i}), ("p1_mid", {})]
        if i == 3: tr.append(("p1_switch", {}))
        if i < 4: tr.append(("p1_odd", {'sg': 2 * i + 1}))
    tr.append(("p1_last", {}))
    for i in range(7):
        tr.append(("p2_top", {}))
        if i in tops: tr += [("top_disp", {}), (f"top_{i}", {})]
        tr += [("p2_odd", {'sg': 12 + 2 * i}), ("p2_mid", {})]
        if i in mids: tr += [("mid_disp", {}), (f"mid_{i}", {})]
        tr.append(("p2_even", {'sg': 13 + 2 * i}))
    tr += [("tail", {}), ("p3_pre", {}), ("p3", {}), ("o_pro", {})]
    for it in range(6):
        tr.append(("o_top", {}))
        if it in ot: tr += [("ot_disp", {}), (f"ot_{it}", {})]
        tr += [(f"o{q}", {'it': it}) for q in range(4)] + [("o_loop", {})]
    tr.append(("d_pro", {}))
    for it in range(6, 8):
        tr.append(("d_top", {}))
        if it in dt: tr += [("dt_disp", {}), (f"dt_{it}", {})]
        tr += [(f"d{q}", {'it': it}) for q in range(4)] + [("d_loop", {})]
    tr += [("e0", {'it': 8}), ("e1", {'it': 8}), ("e_chk", {}), ("e2", {'it': 8}), ("e3", {'it': 8}), ("fin", {})]
    P.trace = tr
    P.insert_waits()
    n = P.fix_hazards(verbose=False)
    if dbg: print("; estimate", P.estimate(), "pads", n)
    return P.text() + "\n" + gen_fallback()

def build(path, dbg=False):
    body = gen(dbg)
    txt = f"""; @launch grid=(256,1,1) block=(256,1,1) lds={LDS_TOTAL}
.amdgcn_target "amdgcn-amd-amdhsa--gfx950"
.text
.globl {KNAME}
.p2align 8
.type {KNAME},@function
{KNAME}:
{body}
.section .rodata,"a"
.p2align 6
.amdhsa_kernel {KNAME}
  .amdhsa_next_free_vgpr 512
  .amdhsa_next_free_sgpr 102
  .amdhsa_accum_offset 256
  .amdhsa_group_segment_fixed_size 0
  .amdhsa_kernarg_size 96
  .amdhsa_user_sgpr_count 2
  .amdhsa_user_sgpr_kernarg_segment_ptr 1
  .amdhsa_system_sgpr_workgroup_id_x 1
  .amdhsa_float_denorm_mode_32 3
.end_amdhsa_kernel
"""
    open(path, "w").write(txt)

if __name__ == "__main__":
    if "--stamps" in sys.argv:
        STAMPS = True; sys.argv.remove("--stamps")
    build(sys.argv[1], dbg=True)
```

```python
import re

def _expand(op):
    op = op.strip()
    op = op.lstrip('-')
    if op.startswith('abs(') or op.startswith('|'):
        op = op.replace('abs(', '').replace(')', '').replace('|', '')
    m = re.fullmatch(r'([vas])\[(\d+):(\d+)\]', op)
    if m:
        return [f"{m.group(1)}{i}" for i in range(int(m.group(2)), int(m.group(3)) + 1)]
    m = re.fullmatch(r'([vas])(\d+)', op)
    if m:
        return [op]
    if op in ('vcc', 'm0', 'exec', 'scc'):
        return [op]
    if op in ('vcc_lo', 'vcc_hi'):
        return ['vcc']
    return []

TRANS = ('v_exp_f32', 'v_log_f32', 'v_rcp_f32', 'v_rsq_f32', 'v_sqrt_f32', 'v_sin_f32', 'v_cos_f32')
SCC_W = ('s_add_', 's_sub_', 's_addc_', 's_subb_', 's_and_', 's_or_', 's_xor_', 's_lshl_', 's_lshr_', 's_ashr_', 's_cmp', 's_min_', 's_max_', 's_andn2', 's_addk', 's_bfe', 's_not', 's_lshl1', 's_lshl2', 's_lshl3', 's_lshl4')

class Ins:
    __slots__ = ('text', 'kind', 'reads', 'writes', 'after', 'before', 'tag_r', 'tag_w', 'prio', 'uid', 'wait_lgkm', 'wait_vm', 'comment', 'gap')
    _n = 0
    def __init__(self, text, rd=(), wr=(), after=None, before=None, tag_r=None, tag_w=None, prio=0):
        self.text = text.strip()
        self.after = after; self.before = before
        self.tag_r = tag_r; self.tag_w = tag_w
        self.prio = prio
        self.uid = Ins._n; Ins._n += 1
        self.gap = None
        self._parse()
        self.reads |= set(rd); self.writes |= set(wr)
    def _parse(self):
        t = self.text
        self.reads = set(); self.writes = set()
        if t.endswith(':') or t.startswith('.') or t.startswith(';') or not t:
            self.kind = 'label'; return
        parts = t.split(None, 1)
        mn = parts[0]
        rest = parts[1] if len(parts) > 1 else ''
        rest = re.sub(r'\s+(neg_lo|neg_hi|op_sel|op_sel_hi):\[[^\]]*\]', '', rest)
        ops = [o.strip() for o in rest.split(',')] if rest else []
        mods = ''
        if ops:
            sp = ops[-1].split(None, 1)
            ops[-1] = sp[0]
            mods = sp[1] if len(sp) > 1 else ''
        R = lambda i: set(_expand(ops[i])) if i < len(ops) else set()
        allr = lambda a: set().union(*[R(i) for i in range(a, len(ops))]) if len(ops) > a else set()
        if mn.startswith('v_mfma'):
            self.kind = 'mfma'; self.writes = R(0); self.reads = allr(1)
        elif mn.startswith('ds_read') or mn.startswith('ds_bpermute') or mn.startswith('ds_swizzle'):
            self.kind = 'ds'; self.writes = R(0); self.reads = allr(1)
        elif mn.startswith('ds_write') or mn.startswith('ds_add') or mn.startswith('ds_or'):
            self.kind = 'ds'; self.reads = allr(0)
        elif mn.startswith('buffer_load') or mn.startswith('global_load'):
            self.kind = 'vmem'
            if re.search(r'\blds\b', mods) or 'load_lds' in mn:
                self.reads = allr(0) | {'m0'}
            else:
                self.writes = R(0); self.reads = allr(1)
        elif mn.startswith('buffer_store') or mn.startswith('global_store'):
            self.kind = 'vmem'; self.reads = allr(0)
        elif mn.startswith('buffer_atomic') or mn.startswith('global_atomic'):
            self.kind = 'vmem'; self.reads = allr(0)
            if 'sc0' in mods: self.writes = R(0)
        elif mn.startswith('buffer_wbl2') or mn.startswith('buffer_inv'):
            self.kind = 'vmem'
        elif mn.startswith('s_waitcnt') or mn == 's_nop' or mn == 's_sleep' or mn == 's_setprio':
            self.kind = 'wait'
        elif mn == 's_barrier':
            self.kind = 'barrier'
        elif mn.startswith('s_cbranch') or mn == 's_branch' or mn == 's_endpgm':
            self.kind = 'branch'
            if 'scc' in mn: self.reads = {'scc'}
            if 'vcc' in mn: self.reads = {'vcc'}
            if 'exec' in mn: self.reads = {'exec'}
        elif mn.startswith('s_load') or mn.startswith('s_memtime') or mn.startswith('s_memrealtime') or mn.startswith('s_buffer_load'):
            self.kind = 'smem'; self.writes = R(0); self.reads = allr(1)
        elif mn.startswith('s_'):
            self.kind = 'salu'
            if mn.startswith('s_cmp') or mn.startswith('s_bitcmp'):
                self.reads = allr(0); self.writes = {'scc'}
            else:
                self.writes = R(0); self.reads = allr(1)
                if mn.startswith(SCC_W): self.writes.add('scc')
                if mn.startswith('s_cselect') or mn.startswith('s_addc') or mn.startswith('s_subb') or mn.startswith('s_cmov'): self.reads.add('scc')
                if mn.startswith('s_cmov') or mn.startswith('s_addk') or mn.startswith('s_mulk'): self.reads |= R(0)
                if 'saveexec' in mn: self.writes |= {'exec', 'scc'}; self.reads.add('exec')
        elif mn.startswith('v_'):
            base = mn.replace('_e32', '').replace('_e64', '')
            self.kind = 'trans' if base in TRANS else 'valu'
            if 'swap' in mn:
                self.writes = R(0) | R(1); self.reads = R(0) | R(1)
            else:
                self.writes = R(0); self.reads = allr(1)
                if base.startswith('v_fmac') or base.startswith('v_dot2c') or base.startswith('v_writelane') or 'dpp' in mn or 'row_' in mods or 'quad_perm' in mods: self.reads |= R(0)
                if base.startswith('v_add_co') or base.startswith('v_addc_co') or base.startswith('v_sub_co'):
                    self.writes |= R(1); self.reads = allr(2)
                if base.startswith('v_cmpx'): self.writes.add('exec')
        else:
            raise ValueError("unknown instr: " + t)
    def __repr__(self): return self.text

def I(text, **kw): return Ins(text, **kw)

MFMA_RAW_GAPS = 3
DS_LAT_GAPS = 8

def schedule(serial, name="", ds_lat=DS_LAT_GAPS, verbose=False, vm_min=4):
    mf = [x for x in serial if x.kind == 'mfma']
    n = len(mf)
    midx = {x.uid: i for i, x in enumerate(mf)}
    fill = [x for x in serial if x.kind != 'mfma']
    preds = {x.uid: [] for x in fill}
    lo = {x.uid: -1 for x in fill}
    hi = {x.uid: n - 1 for x in fill}
    soft = {x.uid: n - 1 for x in fill}
    lastw = {}; readers = {}
    succs = {x.uid: [] for x in fill}
    def dep(a, b, typ):
        if a is b: return
        if a.kind == 'mfma' and b.kind == 'mfma': return
        if a.kind == 'mfma':
            i = midx[a.uid]
            if typ in ('raw', 'waw'): lo[b.uid] = max(lo[b.uid], min(i + MFMA_RAW_GAPS, n - 1))
            elif typ == 'warc': lo[b.uid] = max(lo[b.uid], min(i + 2, n - 1))
            else: lo[b.uid] = max(lo[b.uid], i)
        elif b.kind == 'mfma':
            i = midx[b.uid]
            if typ == 'raw':
                if a.kind in ('ds',):
                    hi[a.uid] = min(hi[a.uid], i - 1); soft[a.uid] = min(soft[a.uid], i - 1 - ds_lat)
                else:
                    hi[a.uid] = min(hi[a.uid], i - 1); soft[a.uid] = min(soft[a.uid], i - 2)
            else:
                hi[a.uid] = min(hi[a.uid], i - 1); soft[a.uid] = min(soft[a.uid], i - 1)
        else:
            preds[b.uid].append((a, typ)); succs[a.uid].append((b, typ))
    prev_by_kind = {}
    for x in serial:
        for r in x.reads:
            if r in lastw: dep(lastw[r], x, 'raw')
        for r in x.writes:
            if r in lastw: dep(lastw[r], x, 'waw')
            for y in readers.get(r, []):
                typ = 'war'
                if y.kind == 'mfma':
                    ops = [o.strip() for o in y.text.split(None, 1)[1].split(',')]
                    if r in _expand(ops[3]): typ = 'warc'
                dep(y, x, typ)
        for r in x.reads: readers.setdefault(r, []).append(x)
        for r in x.writes: lastw[r] = x; readers[r] = []
        if x.kind in ('ds', 'vmem', 'barrier'):
            k = x.kind
            if k in prev_by_kind: dep(prev_by_kind[k], x, 'order')
            prev_by_kind[k] = x
    for x in fill:
        if x.kind == 'vmem' and x.after is not None and x.before is None:
            soft[x.uid] = min(soft[x.uid], x.after - 6)
        if x.after is not None: lo[x.uid] = max(lo[x.uid], x.after)
        if x.before is not None:
            soft[x.uid] = min(soft[x.uid], x.before)
    for x in reversed(fill):
        for (b, typ) in succs[x.uid]:
            hi[x.uid] = min(hi[x.uid], hi[b.uid])
            d = 1 if (typ == 'raw' or x.kind in ('ds', 'vmem', 'trans')) else 0
            soft[x.uid] = min(soft[x.uid], soft[b.uid] - d)
    for x in fill:
        for (a, typ) in preds[x.uid]:
            lo[x.uid] = max(lo[x.uid], lo[a.uid])
        if lo[x.uid] > hi[x.uid]:
            lo[x.uid] = hi[x.uid]
    wantwait = set()
    seen = set()
    dsw = {}
    for x in serial:
        if x.kind == 'mfma':
            for r in x.reads:
                key = (r, dsw.get(r, -1))
                if (r in dsw or r.startswith('a') or r.startswith('v')) and key not in seen and r in dsw:
                    wantwait.add(midx[x.uid] - 1)
                seen.add(key)
        if x.kind == 'ds':
            for r in x.writes: dsw[r] = x.uid
    placed = {}
    gaps = {g: [] for g in range(-1, n)}
    npred = {x.uid: len(set(a.uid for a, _ in preds[x.uid])) for x in fill}
    succ_u = {x.uid: {} for x in fill}
    for x in fill:
        for (b, typ) in succs[x.uid]: succ_u[x.uid][b.uid] = b
    ready = [x for x in fill if npred[x.uid] == 0]
    nleft = len(fill)
    over = 0
    last_vm = -100
    for g in range(-1, n):
        scalar_free = (g not in wantwait)
        vec = 2
        has_ds = False
        while True:
            cands = [x for x in ready if lo[x.uid] <= g]
            if not cands: break
            cands.sort(key=lambda x: (soft[x.uid], -x.prio, x.uid))
            pick = None
            for x in cands:
                forced = hi[x.uid] <= g
                samegap_raw = any(placed[a.uid] == g and typ == 'raw' and not (a.kind == 'valu' and x.kind == 'valu') for (a, typ) in preds[x.uid])
                samegap_any = any(placed[a.uid] == g for (a, typ) in preds[x.uid])
                fits = False
                if g >= 0 and not samegap_raw:
                    if x.kind in ('salu', 'wait', 'barrier'):
                        fits = scalar_free and not samegap_any
                    elif x.kind == 'ds':
                        fits = vec >= 1 and not has_ds and not any(placed[a.uid] == g and a.kind in ('valu', 'trans') for (a, typ) in preds[x.uid])
                    elif x.kind == 'valu':
                        fits = vec >= 1
                    elif x.kind == 'trans':
                        fits = vec >= 2
                    elif x.kind == 'vmem':
                        fits = vec >= 2 and g - last_vm >= vm_min
                if fits or forced:
                    pick = x; pfits = fits; break
            if pick is None: break
            x = pick
            if not pfits: over += 1
            if x.kind in ('salu', 'wait', 'barrier'):
                scalar_free = False
            elif x.kind == 'ds': vec -= 1; has_ds = True
            elif x.kind == 'valu': vec -= 1
            else: vec -= 2
            if x.kind == 'vmem': last_vm = g
            placed[x.uid] = g; x.gap = g
            gaps[g].append((x, pfits))
            ready.remove(x); nleft -= 1
            for b in succ_u[x.uid].values():
                npred[b.uid] -= 1
                if npred[b.uid] == 0: ready.append(b)
    assert nleft == 0
    out = []
    for g in range(-1, n):
        if g >= 0: out.append(mf[g])
        items = gaps[g]
        if all(f for _, f in items):
            order = {'salu': 0, 'wait': 0, 'barrier': 0, 'ds': 1, 'vmem': 1, 'valu': 2, 'trans': 2}
            items = sorted(items, key=lambda it: order[it[0].kind])
        out += [x for x, _ in items]
    if verbose: print(f"; schedule {name}: {n} mfma, {len(fill)} fillers, {over} overflow")
    return out

class Prog:
    def __init__(self):
        self.blocks = []
        self.trace = []
    def block(self, name, ins):
        self.blocks.append([name, list(ins)])
    def get(self, name):
        if not hasattr(self, '_idx') or len(self._idx) != len(self.blocks):
            self._idx = {b[0]: b for b in self.blocks}
        return self._idx[name]
    def dyn(self):
        for (name, env) in self.trace:
            for x in self.get(name)[1]:
                yield x, env, name

    def insert_waits(self):
        need = {}
        anchor_of = {}
        for name, ins in self.blocks:
            last_after_mfma = None
            for i, x in enumerate(ins):
                if i > 0 and ins[i - 1].kind == 'mfma': last_after_mfma = x
                if x.kind in ('label', 'branch'): last_after_mfma = None
                anchor_of[x.uid] = last_after_mfma if (last_after_mfma is not None and x.kind == 'mfma') else x
        for _pass in range(6):
            changed = False
            q = {'lgkm': [], 'vm': []}
            seq = {'lgkm': 0, 'vm': 0}
            at_anchor = {}
            smem_out = False
            for x, env, name in self.dyn():
                at_anchor[x.uid] = (seq['lgkm'], seq['vm'])
                if x.uid in need:
                    l, v = need[x.uid]
                    if l is not None: q['lgkm'] = q['lgkm'][len(q['lgkm']) - l:] if l < len(q['lgkm']) and l > 0 else ([] if l == 0 else q['lgkm'])
                    if v is not None: q['vm'] = q['vm'][len(q['vm']) - v:] if v < len(q['vm']) and v > 0 else ([] if v == 0 else q['vm'])
                if x.kind == 'wait' and x.text.startswith('s_waitcnt'):
                    m = re.search(r'lgkmcnt\((\d+)\)', x.text)
                    if m:
                        l = int(m.group(1)); q['lgkm'] = q['lgkm'][len(q['lgkm']) - l:] if 0 < l < len(q['lgkm']) else ([] if l == 0 else q['lgkm'])
                    m = re.search(r'vmcnt\((\d+)\)', x.text)
                    if m:
                        v = int(m.group(1)); q['vm'] = q['vm'][len(q['vm']) - v:] if 0 < v < len(q['vm']) else ([] if v == 0 else q['vm'])
                touched = set(x.reads) | set(x.writes)
                if x.tag_r is not None:
                    t = x.tag_r(env) if callable(x.tag_r) else x.tag_r
                    touched |= set(t if isinstance(t, (list, tuple, set)) else [t])
                for ci, c in enumerate(('lgkm', 'vm')):
                    hit = None
                    for (s, regs, issm) in q[c]:
                        if regs & touched: hit = (s, issm)
                    if hit is not None:
                        a = anchor_of[x.uid]
                        sa = at_anchor[a.uid][ci]
                        if hit[0] >= sa:
                            a = x; sa = seq[c]
                        N = sa - hit[0] - 1
                        if any(sm for (_, _, sm) in q[c]): N = 0; a = x
                        N = min(N, 15 if c == 'lgkm' else 63)
                        cur = need.setdefault(a.uid, [None, None])
                        if cur[ci] is None or N < cur[ci]:
                            cur[ci] = N; changed = True
                        q[c] = [e for e in q[c] if e[0] > hit[0]] if N > 0 or a is not x else []
                if x.kind in ('ds', 'smem'):
                    w = set(x.writes)
                    if x.tag_w is not None:
                        t = x.tag_w(env) if callable(x.tag_w) else x.tag_w
                        w |= set(t if isinstance(t, (list, tuple, set)) else [t])
                    q['lgkm'].append((seq['lgkm'], w, x.kind == 'smem')); seq['lgkm'] += 1
                elif x.kind == 'vmem':
                    w = set(x.writes)
                    if x.tag_w is not None:
                        t = x.tag_w(env) if callable(x.tag_w) else x.tag_w
                        w |= set(t if isinstance(t, (list, tuple, set)) else [t])
                    q['vm'].append((seq['vm'], w, False)); seq['vm'] += 1
            if not changed: break
        else:
            raise RuntimeError("wait insertion did not converge")
        for b in self.blocks:
            out = []
            for x in b[1]:
                if x.uid in need:
                    l, v = need[x.uid]
                    s = "s_waitcnt" + (f" vmcnt({v})" if v is not None else "") + (f" lgkmcnt({l})" if l is not None else "")
                    out.append(I(s))
                out.append(x)
            b[1] = out

    def fix_hazards(self, verbose=False):
        total = 0
        for _pass in range(8):
            pad = {}
            hist = []
            for x, env, name in self.dyn():
                if x.kind == 'label': continue
                need = 0
                dist = 0
                for y in reversed(hist):
                    req = hazard(y, x)
                    if req > dist: need = max(need, req - dist)
                    dist += states(y)
                    if dist > 20: break
                if need:
                    pad[x.uid] = max(pad.get(x.uid, 0), need)
                    hist.append(I(f"s_nop {need-1}"))
                hist.append(x)
                if len(hist) > 40: hist = hist[-30:]
            if not pad: break
            for b in self.blocks:
                out = []
                for x in b[1]:
                    if x.uid in pad:
                        out.append(I(f"s_nop {pad[x.uid]-1}")); total += 1
                        if verbose: print(f"; hazard pad {pad[x.uid]} before {x.text} in {b[0]}")
                    out.append(x)
                b[1] = out
        return total

    def text(self):
        L = []
        for name, ins in self.blocks:
            L.append(f"; ---- {name}")
            for x in ins:
                L.append(x.text if x.kind == 'label' else "  " + x.text)
        return "\n".join(L)

    def estimate(self):
        tot = 0; cur = None; per = {}
        def flush(c):
            return max(16, c)
        gap = None
        for x, env, name in self.dyn():
            if x.kind == 'label': continue
            if x.kind == 'mfma':
                if gap is not None:
                    c = flush(gap[0]); tot += c; per[gap[2]] = per.get(gap[2], 0) + c
                gap = [8, True, name, 'mfma']
            else:
                cost = 4
                if x.kind in ('trans', 'vmem'): cost = 8
                if x.text.startswith('s_nop'): cost = 4 * (int(x.text.split()[1]) + 1)
                if gap is None:
                    tot += cost; per[name] = per.get(name, 0) + cost; continue
                if x.kind in ('salu', 'wait', 'barrier', 'branch') and gap[1] and cost == 4: cost = 0
                if x.kind == 'ds' and gap[3] in ('valu', 'trans'): cost += 8
                if x.kind == 'ds' and gap[3] == 'ds': cost += 4
                gap[1] = False; gap[0] += cost; gap[3] = x.kind
        if gap is not None:
            c = flush(gap[0]); tot += c; per[gap[2]] = per.get(gap[2], 0) + c
        return tot, per

def states(y):
    if y.text.startswith('s_nop'): return int(y.text.split()[1]) + 1
    return 1

def _vregs(s): return {r for r in s if r[0] in 'va' and r[1:].isdigit()}
def _sregs(s): return {r for r in s if (r[0] == 's' and r[1:].isdigit()) or r == 'vcc'}

def hazard(y, x):
    req = 0
    yv = y.kind in ('valu', 'trans')
    xv = x.kind in ('valu', 'trans')
    if y.kind == 'mfma':
        big = '32x32' in y.text
        D = y.writes
        ops = [o.strip() for o in y.text.split(None, 1)[1].split(',')]
        C = set(_expand(ops[3]))
        if x.kind == 'mfma':
            xo = [o.strip() for o in x.text.split(None, 1)[1].split(',')]
            if D & (set(_expand(xo[1])) | set(_expand(xo[2]))): req = max(req, 12 if big else 8)
            xc = set(_expand(xo[3]))
            if D & xc and xc != D: req = max(req, 10 if big else 6)
            if D & x.writes and not (D & xc): req = max(req, 10 if big else 6)
        elif xv or x.kind in ('ds', 'vmem'):
            if D & (x.reads | x.writes): req = max(req, 12 if big else 8)
            if xv and (C & x.writes): req = max(req, 7 if big else 3)
    if yv:
        W = _vregs(y.writes)
        if x.kind == 'mfma' and W & x.reads: req = max(req, 2)
        if 'permlane' in x.text and W & x.reads: req = max(req, 2)
        if ('dpp' in x.text or 'row_' in x.text or 'quad_perm' in x.text) and W & x.reads: req = max(req, 2)
        if (x.text.startswith('v_readfirstlane') or x.text.startswith('v_readlane')) and W & x.reads: req = max(req, 1)
        if y.kind == 'trans' and x.kind == 'valu' and W & x.reads: req = max(req, 1)
        S = _sregs(y.writes)
        if S:
            if x.kind == 'vmem' and S & x.reads: req = max(req, 5)
            if xv and S & x.reads: req = max(req, 2)
            if x.kind in ('salu', 'branch') and S & x.reads: req = max(req, 2)
        if 'exec' in y.writes: req = max(req, 5)
    if y.kind == 'salu' and 'm0' in y.writes and x.kind == 'vmem' and 'm0' in x.reads: req = max(req, 1)
    if y.kind == 'vmem' and ('store_dwordx4' in y.text or 'store_dwordx3' in y.text):
        data = set(_expand(y.text.split(None, 1)[1].split(',')[0 if y.text.startswith('buffer') else 1]))
        if data & x.writes: req = max(req, 2)
    return req


def isize(x):
    if x.kind == 'label': return 0
    if x.kind in ('mfma', 'ds', 'vmem', 'smem'): return 8
    t = x.text
    lit = 4 if re.search(r'(?<![\w\[:])(0x[0-9a-f]+|\d{3,}|6[5-9]|[7-9]\d)(?![\w\]:])', t.split(None, 1)[1] if ' ' in t else '') else 0
    if x.kind in ('valu', 'trans'):
        mn = t.split()[0]
        if mn.startswith(('v_cvt_pk', 'v_max3', 'v_lshl_add', 'v_fma_', 'v_pk_', 'v_bfe', 'v_or3', 'v_accvgpr', 'v_mad', 'v_writelane', 'v_readlane')) or 'dpp' in mn: return 8
        return 4 + lit
    if x.kind in ('wait', 'barrier', 'branch'): return 4
    return 4 + lit
```

```python
import sys, math, struct, os
from asmlib import *
KN = set(os.environ.get("KN", "").split(","))
def PAR(name, default): return type(default)(os.environ.get(name, default))
NAME = "recurrent_scan__sliding_block_cached__glu_gated_bilinear__prompt"
KNAME = NAME + "_kernel"
XN_OFF = 0; OH_OFF = 0x400000; GP_OFF = 0x2200000; WOP_OFF = 0x2600000; WDP_OFF = 0x2E00000; PART_OFF = 0x3000000
FL_OFF = 0x3A00000
FXN = FL_OFF; FO = FL_OFF + 0x8000; FH = FL_OFF + 0x10000; FP = FL_OFF + 0x18000; FG = FL_OFF + 0x20000; FW = FL_OFF + 0x21000
WS_SIZE = 0x3B00000
STAMP_OFF = 0x8000000
SLOT = 28672; SL2 = 36864
LDS_X = 147456
LDS_TOTAL = 163840
STAMPS = False
SPIN_MAX = 200000
def sbase(st):
    if st <= 28: return (st % 5) * SLOT
    return {29: 0, 30: 110592, 31: 135168}[st]
OPERM = [1, 2, 0, 3]
def obase(sg): return OPERM[sg % 4] * SL2

def f2u(x): return struct.unpack('<I', struct.pack('<f', x))[0]
def vr(a, n): return f"v[{a}:{a+n-1}]" if n > 1 else f"v{a}"
def ar(a, n): return f"a[{a}:{a+n-1}]" if n > 1 else f"a{a}"
def sr(a, n): return f"s[{a}:{a+n-1}]" if n > 1 else f"s{a}"
def rr(x, n=4): return vr(x[1], n) if x[0] == 'v' else ar(x[1], n)
def L(txt): return [I(t) for t in txt.strip().split("\n") if t.strip()]
def mfma(d, a, b, c): return I(f"v_mfma_f32_16x16x32_bf16 {d}, {a}, {b}, {c}")

sWq, sK, sWS, sR = 4, 8, 12, 16
(sOffX, sOffY, sOffK, sOffV, sM6, sM3, sM1, sOffB, sH, sB, sW, sT0, sT1, sT2, sOffO, sScale,
 sOffG, sOffH0, sOffH1, sOffH2, sNonce, sOffR, sOffD, sOffRo, sOffRd, sOffDo, sOffDd,
 sS, sMb, sNb, sFl, sSpin, sT3, sOffP, sQg, sFg, sOffA, sOffBB, sM5, sM4, sPf, sQd) = range(20, 62)
sOffH = sOffH0
pX, pK, pV, pWq, pWo, pBx, pWg, pWu, pWd, pOut, pDbg, pWs = range(64, 88, 2)
sSt = 88; sV = 92; sXin = 96
sOut = sWq
vL16 = 1; vWo = 2; vKo = 5; vVo = 8; vRo = 11; vRo2 = 12; vL128 = 13; vFo = 14; vNon = 15
vRa = 16; vWa = 17; vKa = 19; vVa = 21; vGa = 25
vLs = 26; vT = 36; vSt = 31; vNm = 32; vTmp = 48
vAcc = 64; vQ = 64
vS01 = 160; vS23 = 176; vP01 = 208; vP23 = 224; vVs = 232
aK = 192; aR = 240; aA1 = 128; aDum = 255
vDum = 30
NSLICE = 10

class Addr:
    def __init__(self, reg, base): self.reg = reg; self.base = base
    def use(self, base, off):
        pre = []
        d = base + off - self.base
        if not (0 <= d < 65536):
            pre = [I(f"v_add_u32 v{self.reg}, {hex((base - self.base) & 0xffffffff)}, v{self.reg}")]
            self.base = base; d = off
        return pre, d
AD = {}
def dsr(op, dst, reg, base, off, **kw):
    pre, d = AD[reg].use(base, off)
    return pre + [I(f"{op} {dst}, v{reg} offset:{d}", **kw)]

def srd(d, base, size):
    return [I(f"s_mov_b32 s{d}, s{base}"), I(f"s_mov_b32 s{d+1}, s{base+1}"), I(f"s_mov_b32 s{d+2}, {hex(size)}"), I(f"s_mov_b32 s{d+3}, 0x20000")]
def xreduce(v, t, op):
    return L(f"""v_mov_b32 v{t}, v{v}
v_permlane16_swap_b32 v{v}, v{t}
{op} v{v}, v{v}, v{t}
v_mov_b32 v{t}, v{v}
v_permlane32_swap_b32 v{v}, v{t}
{op} v{v}, v{v}, v{t}""")
def divmod_const(q, r, src, c):
    magic = (65536 + c - 1) // c
    for x in range(1400): assert (x * magic) >> 16 == x // c
    return L(f"v_mul_u32_u24 v{q}, {magic}, v{src}\nv_lshrrev_b32 v{q}, 16, v{q}\nv_mul_u32_u24 v{r}, {c}, v{q}\nv_sub_u32 v{r}, v{src}, v{r}")
def sdivmod(q, r, src, c):
    magic = (65536 + c - 1) // c
    for x in range(1400): assert (x * magic) >> 16 == x // c
    return L(f"s_mul_i32 s{q}, s{src}, {magic}\ns_lshr_b32 s{q}, s{q}, 16\ns_mul_i32 s{r}, s{q}, {c}\ns_sub_u32 s{r}, s{src}, s{r}")

def stamp(k):
    if not STAMPS: return []
    return L(f"""s_memrealtime s[{sSt}:{sSt+1}]
s_memtime s[{sSt+2}:{sSt+3}]
s_waitcnt lgkmcnt(0)
v_writelane_b32 v{vSt}, s{sSt}, {2*k}
v_writelane_b32 v{vSt}, s{sSt+2}, {2*k+1}""")
def stamp_store(n):
    if not STAMPS: return []
    return stamp(n - 1) + L("s_waitcnt vmcnt(0)") + stamp(n) + L(f"""s_add_u32 s{sK}, s{pWs}, {hex(STAMP_OFF)}
s_addc_u32 s{sK+1}, s{pWs+1}, 0
s_mov_b32 s{sK+2}, {1024*256}
s_mov_b32 s{sK+3}, 0x20000
s_lshl2_add_u32 s{sT0}, s2, s{sW}
s_lshl_b32 s{sT0}, s{sT0}, 8
v_lshlrev_b32 v2, 2, v0
buffer_store_dword v{vSt}, v2, {sr(sK,4)}, s{sT0} offen""")

OUTL = []
def poll_load(dst, vaddr, soff, n=1, **kw):
    op = "buffer_load_dword" if n == 1 else "buffer_load_dwordx4"
    return I(f"{op} {vr(dst,n)}, v{vaddr}, {sr(sWS,4)}, {soff} offen sc1", **kw)
def poll_cmp(dst, n):
    if n == 1: return L(f"v_cmp_ne_u32 vcc, s{sNonce}, v{dst}")
    return L(f"""v_xor_b32 v{dst}, s{sNonce}, v{dst}
v_xor_b32 v{dst+1}, s{sNonce}, v{dst+1}
v_xor_b32 v{dst+2}, s{sNonce}, v{dst+2}
v_xor_b32 v{dst+3}, s{sNonce}, v{dst+3}
v_or3_b32 v{dst}, v{dst}, v{dst+1}, v{dst+2}
v_or_b32 v{dst}, v{dst}, v{dst+3}
v_cmp_ne_u32 vcc, 0, v{dst}""")
def poll_branch(name, dst, vaddr, soff, n=1):
    o = L(f"L_spin_{name}:\ns_mov_b32 s{sSpin}, {SPIN_MAX}\nL_spin2_{name}:")
    o += [poll_load(dst, vaddr, soff, n)] + L("s_waitcnt vmcnt(0)") + poll_cmp(dst, n)
    o += L(f"""s_nop 4
s_cbranch_vccz L_back_{name}
s_sleep 1
s_sub_u32 s{sSpin}, s{sSpin}, 1
s_cmp_lg_u32 s{sSpin}, 0
s_cbranch_scc1 L_spin2_{name}
s_branch L_back_{name}""")
    OUTL.append((f"spin_{name}", o))
    return L(f"s_cbranch_vccnz L_spin_{name}\nL_back_{name}:")
def late(lst, g):
    for x in lst: x.after = g
    return lst
def set_flag(soff, tag, **kw):
    return I(f"buffer_store_dword v{vNon}, v{vFo}, {sr(sWS,4)}, {soff} offen sc1", tag_r=tag, **kw)

KVF = os.environ.get("KVF", "")
def grp3(st, srdn, vo, so, mreg, moff, inc, flags=""):
    r = [I(f"s_add_u32 m0, s{mreg}, {sbase(st)+moff}")]
    for n in range(3):
        v = vo + n if vo != vL16 else vL16
        r.append(I(f"buffer_load_dwordx4 v{v}, {sr(srdn,4)}, s{so} offen offset:{1024*n} {flags} lds", tag_w=f"st{st}", rd=['stg']))
    if inc: r.append(I(f"s_add_u32 s{so}, s{so}, {inc}"))
    return r
def dma_stage(st):
    r = []
    if st <= 9:
        r += grp3(st, sWq, vWo, sOffX, sM6, 0, 16 * 12288, KVF) + grp3(st, sWq, vWo, sOffX, sM6, 3072, 48 * 12288, KVF)
    elif st <= 26:
        t = st - 10
        if t <= 15: r += grp3(st, sK, vKo, sOffK, sM3, 0, 12288, KVF)
        if t >= 1: r += grp3(st, sV, vVo, sOffV, sM3, 12288, 12288, KVF)
        u = st - 12
        if 0 <= u < 14:
            if u == 4: r += srd(sR, pWo, 6144 * 640 * 2)[:3] + L(f"s_mov_b32 s{sOffR}, s{sOffRo}")
            if u == 12: r += srd(sR, pWd, 1536 * 640 * 2)[:3] + L(f"s_mov_b32 s{sOffR}, s{sOffRd}")
            r.append(I(f"s_add_u32 m0, s{sM1}, {sbase(st)+24576}"))
            r.append(I(f"buffer_load_dwordx4 v{vRo if u < 4 else vRo2}, {sr(sR,4)}, s{sOffR} offen {KVF} lds", tag_w=f"st{st}", rd=['stg']))
            r.append(I(f"s_add_u32 s{sOffR}, s{sOffR}, {32*3072 if u < 4 else 32*1280}"))
    else:
        r += grp3(st, sWS, vL16, sOffG, sM6, 0, 3072, "sc1") + grp3(st, sWS, vL16, sOffG, sM6, 3072, 24576 - 3072, "sc1")
    return r
def pace(lst, lo, hi):
    vm = [x for x in lst if x.kind == 'vmem']
    for k, x in enumerate(vm): x.after = int(lo + k * (hi - lo) / len(vm))
    return lst
def barrier(tag, after=None): return I("s_barrier", tag_r=tag, wr=['stg'], after=after)

def acc1(T, j): return vAcc + ((T // 2) * 4 + j) * 8 + (T % 2) * 4
def w_reads(st, T):
    slot = aA1 + (T % 3) * 8
    p, t = T // 2, T % 2
    r = []
    for ks in range(2):
        for u in range(2): r += dsr("ds_read_b64_tr_b16", ar(slot + ks * 4 + u * 2, 2), vWa + p % 2, sbase(st), ks * 12288 + u * 6144 + (p // 2) * 128 + 8 * t, rd=['stg'])
    return r
def b_loads(base):
    r = []
    for u in range(2):
        for j in range(4):
            r.append(I(f"buffer_load_dwordx4 {rr((base[0], base[1]+(u*4+j)*4))}, v{vL16}, {sr(sWS,4)}, s{sOffB} offen offset:{1024*j} sc1"))
        r.append(I(f"s_add_u32 s{sOffB}, s{sOffB}, 4096"))
    return r
def k_reads(st, kt):
    r = []
    for s in range(6): r += dsr("ds_read_b128", ar(aK + kt * 24 + s * 4, 4), vKa + s % 2, sbase(st), kt * 6144 + (s // 2) * 128, rd=['stg'])
    return r
def v_reads(st, T):
    r = []
    for u in range(2): r += dsr("ds_read_b64_tr_b16", vr(vVs + (T % 6) * 4 + u * 2, 2), vVa + T % 4, sbase(st), 12288 + u * 6144 + (T // 4) * 128, rd=['stg'])
    return r
def prefetch(srdn, soff, flags=""):
    return I(f"buffer_load_dword v{vDum}, v{vL128}, {sr(srdn,4)}, {soff} offen {flags}")

BD1 = 2
def p1_step(sg, extra=()):
    last = sg == 9
    s = []
    vm = []
    if sg + BD1 <= 9: vm += b_loads(('a', 32 * ((sg + BD1) % 4)))
    vm += dma_stage(sg + 3) + list(extra)
    s += pace(vm, 1, 72)
    for T in range(12):
        if T + 2 < 12: s += w_reads(sg, T + 2)
        elif T == 10:
            s.append(barrier(f"st{sg+1}", after=72))
            s += w_reads(sg + 1, 0) if not last else k_reads(10, 0)
        elif not last: s += w_reads(sg + 1, 1)
        slot = aA1 + (T % 3) * 8
        for j in range(4):
            for ks in range(2):
                d = vr(acc1(T, j), 4)
                s.append(mfma(d, ar(slot + ks * 4, 4), ar(32 * (sg % 4) + (ks * 4 + j) * 4, 4), "0" if (sg == 0 and ks == 0) else d))
        if last and T % 2 == 1:
            p = T // 2
            for j in range(4):
                a = acc1(2 * p, j); q = vQ + (p * 4 + j) * 4
                for i in range(8): s.append(I(f"v_mul_f32 v{a+i}, s{sScale}, v{a+i}"))
                for i in range(4): s.append(I(f"v_cvt_pk_bf16_f32 v{q+i}, v{a+2*i}, v{a+2*i+1}"))
    return s

def Sreg(kt, j, t):
    if j < 2: return (vTmp if t == 0 else vS01) + (j * 2 + kt) * 4
    return vS23 + (t % 2) * 16 + ((j - 2) * 2 + kt) * 4
def Preg(j, t):
    if j < 2: return vP01 + (t % 2) * 8 + j * 4
    return (vTmp + 8 if t == 15 else vP23) + (j - 2) * 4
def qk(kt, t):
    s = []
    for j in range(4):
        d = vr(Sreg(kt, j, t), 4)
        for p in range(6):
            c = d if p else ("0" if t == 0 else vr(vNm + 4 * j, 4))
            s.append(mfma(d, ar(aK + kt * 24 + p * 4, 4), vr(vQ + (p * 4 + j) * 4, 4), c))
    return s
def softmax(j, t):
    s = []
    for kt in range(2):
        a = Sreg(kt, j, t)
        for i in range(4): s.append(I(f"v_exp_f32 v{a+i}, v{a+i}"))
        for i in range(4): s.append(I(f"v_add_f32 v{vLs+j}, v{vLs+j}, v{a+i}"))
        for i in range(2): s.append(I(f"v_cvt_pk_bf16_f32 v{Preg(j,t)+kt*2+i}, v{a+2*i}, v{a+2*i+1}"))
    return s
def pv_T(T, t):
    s = []
    for j in range(4):
        d = ar((T * 4 + j) * 4, 4)
        s.append(mfma(d, vr(vVs + (T % 6) * 4, 4), vr(Preg(j, t), 4), "0" if t == 0 else d))
    return s

def p2_iter(t, base=0, extra=(), post=(), btag=()):
    st = 11 + t
    s = []
    s += k_reads(st, 1)
    u = st - 12
    if u >= 0:
        for h in range(2): s += dsr("ds_read_b64_tr_b16", ar(aR + 2 * h, 2), vRa, sbase(st), 24576 + 2048 * h, rd=['stg'])
    s += pace(dma_stage(st + 3) + list(extra), base + 4, base + 68)
    if t > 0: s += softmax(2, t) + softmax(3, t)
    s += qk(0, t + 1) + qk(1, t + 1)
    for T in range(6): s += v_reads(st, T)
    s += softmax(0, t + 1) + softmax(1, t + 1)
    if t == 14: s += softmax(2, 15) + softmax(3, 15)
    for T in range(12):
        s += pv_T(T, t)
        if T < 6: s += v_reads(st, T + 6)
        if T == 5:
            s.append(barrier([f"st{st+1}"] + list(btag), after=base + 70))
            if t < 14: s += k_reads(st + 1, 0)
            if u >= 0:
                if u == 4: s += L(f"s_mov_b32 s{sOffD}, s{sOffDo}")
                if u == 12: s += L(f"s_mov_b32 s{sOffD}, s{sOffDd}")
                s.append(I(f"buffer_store_dwordx4 {ar(aR,4)}, v{vL16}, {sr(sWS,4)}, s{sOffD} offen sc1", after=base + 80, tag_w="Gst" if u < 4 else "Wst"))
                s.append(I(f"s_add_u32 s{sOffD}, s{sOffD}, {6144 if u < 4 else 10240 if u < 12 else 5120}"))
        if t == 14 and T >= 6: s += v_reads(st + 1, T - 6)
    s += list(post)
    return s

def first_tile():
    s = []
    s += k_reads(10, 1)
    s += pace(dma_stage(13), 96 + 2, 96 + 30)
    s += qk(0, 0)
    s.append(barrier("st11", after=96 + 28))
    s += k_reads(11, 0)
    s += qk(1, 0)
    for j in range(4):
        a = Sreg(0, j, 0); b = Sreg(1, j, 0); m = vNm + 4 * j; t = m + 1
        s += L(f"""v_max3_f32 v{m}, v{a}, v{a+1}, v{a+2}
v_max3_f32 v{m}, v{m}, v{a+3}, v{b}
v_max3_f32 v{m}, v{m}, v{b+1}, v{b+2}
v_max_f32 v{m}, v{m}, v{b+3}""")
        s += xreduce(m, t, "v_max_f32")
        s += L(f"v_sub_f32 v{m+1}, 0, v{m}\nv_sub_f32 v{m+2}, 0, v{m}\nv_sub_f32 v{m+3}, 0, v{m}\nv_sub_f32 v{m}, 0, v{m}")
        for i in range(4):
            s.append(I(f"v_add_f32 v{a+i}, v{a+i}, v{m}")); s.append(I(f"v_add_f32 v{b+i}, v{b+i}, v{m}"))
    for j in range(4): s += softmax(j, 0)
    return s

vGA = 160; vOP = 184
BBUF = [('a', 192), ('a', 224), ('v', 208), ('a', 0)]
def g_reads(n, tagr='stg'):
    ds, grp = n // 6, n % 6
    slot = vGA + (n % 3) * 8
    r = []
    for ks in range(2): r += dsr("ds_read_b128", vr(slot + ks * 4, 4), vGa, sbase(27 + ds // 2), (((ds % 2) * 2 + ks) * 6 + grp) * 1024, rd=[tagr])
    return r
def acc3(grp, j): return vAcc + (grp * 4 + j) * 4

def tail_pv(base):
    s = L(f"s_sub_u32 s{sOffB}, s{sOffB}, {20*4096}")
    s += pace(b_loads(BBUF[0]), base - 8, base + 22)
    for T in range(12):
        s += pv_T(T, 15)
        if T < 6: s += v_reads(26, T + 6)
        if T == 5:
            s.append(barrier("st27", after=base + 24))
            s += g_reads(0) + g_reads(1)
            s += pace(b_loads(BBUF[1]), base + 22, base + 48)
    for j in range(4): s += xreduce(vLs + j, vTmp + j, "v_add_f32")
    s += L(f"""v_add_f32 v{vTmp}, v{vLs}, v{vLs+1}
v_add_f32 v{vTmp+1}, v{vLs+2}, v{vLs+3}
v_add_f32 v{vTmp}, v{vTmp}, v{vTmp+1}
v_cmp_ngt_f32 vcc, {hex(f2u(2.0**40))}, v{vTmp}""")
    for j in range(4): s.append(I(f"v_rcp_f32 v{vLs+j}, v{vLs+j}"))
    return s

def split(lst):
    ch = []; cur = []
    for x in lst:
        cur.append(x)
        if x.kind == 'vmem': ch.append(cur); cur = []
    if cur: ch[-1] += cur
    return ch
def merge(qs):
    qs = [list(q) for q in qs]
    w = [len(q) for q in qs]; tot = sum(w); acc = [0.0] * len(qs); seq = []
    for k in range(tot):
        for z in range(len(qs)): acc[z] += w[z]
        z = max((z for z in range(len(qs)) if qs[z]), key=lambda z: acc[z])
        acc[z] -= tot; seq.append(qs[z].pop(0))
    return seq

vOA = 32; vOB = 33; vDA = 34; vDB = 35
vOa = 40; vPo = 41; vFa = 42; vFa2 = 43; vFl = 44
vAc = 64; vDc = 144; vPk = 164; vXr = 204; vPl = 64
def fA(e, t, ks): return e * 72 + (t * 2 + ks) * 4
def fB(e, j, ks): return 40 + e * 72 + (ks * 4 + j) * 4
def dA(e, n): return (144 if e == 0 else 0) + n * 4
def dB(e, ks): return (144 if e == 0 else 0) + 80 + ks * 4
def dmaA(sg, rd='stg'):
    r = []
    if sg == 24: r += L(f"s_mov_b32 s{sOffA}, s{sOffRo}")
    r.append(I(f"s_add_u32 m0, s{sM5}, {obase(sg)}"))
    for n in range(5):
        if n == 4: r += L(f"s_add_u32 m0, s{sM5}, {obase(sg)+4096}\ns_add_u32 s{sOffA}, s{sOffA}, 4096")
        r.append(I(f"buffer_load_dwordx4 v{vL16}, {sr(sWS,4)}, s{sOffA} offen offset:{1024*(n%4)} sc1 lds", tag_w=f"ot{sg}", rd=[rd]))
    r.append(I(f"s_add_u32 s{sOffA}, s{sOffA}, {20480-4096}"))
    return r
def dmaB(sg, rd='stg'):
    r = []
    if sg == 24: r += L(f"s_mov_b32 s{sOffBB}, s{sOffRd}")
    r.append(I(f"s_add_u32 m0, s{sM4}, {obase(sg)+20480}"))
    for n in range(4):
        r.append(I(f"buffer_load_dwordx4 v{vL16}, {sr(sWS,4)}, s{sOffBB} offen offset:{1024*n} sc1 lds", tag_w=f"ot{sg}", rd=[rd]))
    r.append(I(f"s_add_u32 s{sOffBB}, s{sOffBB}, {8192 if sg < 24 else 16384}"))
    return r
def o_reads(sg):
    e = sg % 2; kw = dict(rd=['stg'], tag_w=f"rd{sg}")
    r = []
    if sg < 24:
        for ks in range(2): r += dsr("ds_read_b128", ar(fA(e, 0, ks), 4), vOA, obase(sg), ks * 10240, **kw)
        for j in range(4):
            for ks in range(2): r += dsr("ds_read_b128", ar(fB(e, j, ks), 4), vOB, obase(sg), ks * 8192 + j * 1024, **kw)
        for t in range(1, 5):
            for ks in range(2): r += dsr("ds_read_b128", ar(fA(e, t, ks), 4), vOA, obase(sg), (ks * 10 + t) * 1024, **kw)
    else:
        for ks in range(4): r += dsr("ds_read_b128", ar(dB(e, ks), 4), vDB, obase(sg), ks * 4096, **kw)
        for T in range(5):
            for ks in range(4): r += dsr("ds_read_b128", ar(dA(e, ks * 5 + T), 4), vDA, obase(sg), (ks * 5 + T) * 1024, **kw)
    return r
def o_block(sg, extra=(), pre=(), mid=(), exfirst=False):
    e = sg % 2
    n = 40 if sg < 24 else 20
    s = list(pre)
    if sg < 35:
        s += [I("s_barrier", tag_r=[f"ot{sg+1}", f"rd{sg}"], wr=['stg'], after=2 if sg < 24 else 0)]
        s += o_reads(sg + 1)
    vm = []
    if sg + 4 <= 35:
        db = dmaB(sg + 4)
        vm = split(db[:2] + list(mid) + db[2:] + dmaA(sg + 4))
    ex = split(list(extra)) if any(x.kind == 'vmem' for x in extra) else []
    if exfirst: seq = list(extra) + [x for ch in vm for x in ch]
    else: seq = [x for ch in merge([vm, ex]) for x in ch] if ex else [x for ch in vm for x in ch] + list(extra)
    if any(x.kind == 'vmem' for x in seq): pace(seq, 3 if sg < 24 else 1, n)
    s += seq
    if sg < 24:
        for t in range(5):
            for j in range(4):
                for ks in range(2):
                    d = vr(vAc + (t * 4 + j) * 4, 4)
                    s.append(mfma(d, ar(fA(e, t, ks), 4), ar(fB(e, j, ks), 4), "0" if (sg == 0 and ks == 0) else d))
    else:
        for T in range(5):
            d = vr(vDc + T * 4, 4)
            for ks in range(4): s.append(mfma(d, ar(dA(e, ks * 5 + T), 4), ar(dB(e, ks), 4), "0" if (sg == 24 and ks == 0) else d))
    return s

OF = PAR('OF', 4); OC = PAR('OC', 7); WC = PAR('WC', 5)
vFo2 = 37
def p3_steps():
    oe = []
    n = 0
    for p in range(6):
        for j in range(4):
            t = vTmp + (n % 2) * 8; o = vOP + (n % 6) * 4
            it = []
            for tt in range(2):
                for i in range(4): it.append(I(f"v_accvgpr_read_b32 v{t+tt*4+i}, a{((2*p+tt)*4+j)*4+i}"))
            for i in range(8): it.append(I(f"v_mul_f32 v{t+i}, v{t+i}, v{vLs+j}"))
            for i in range(4): it.append(I(f"v_cvt_pk_bf16_f32 v{o+i}, v{t+2*i}, v{t+2*i+1}"))
            it.append(I(f"buffer_store_dwordx4 {vr(o,4)}, v{vL16}, {sr(sWS,4)}, s{sOffO} offen offset:{1024*j} sc1", tag_w="Ost"))
            if j == 3: it.append(I(f"s_add_u32 s{sOffO}, s{sOffO}, 4096"))
            oe.append(it); n += 1
    nst = [int(x) for x in os.environ.get("NST", "6,6,6,6,0,0,0,0,0,0").split(",")]
    g29, g30, g31 = split(dma_stage(29)), split(dma_stage(30)), split(dma_stage(31))
    dm = {0: g29[:3], 1: g29[3:], 2: g30[:3], 3: g30[3:], 4: g31}
    dm[WC + 1] = split(dmaA(0, 'x'))
    for k, stp in ((1, 6), (2, 8)):
        dm.setdefault(max(stp, WC + 2), []); dm[max(stp, WC + 2)] += split(dmaA(k, 'x'))
    for k, stp in ((0, OC + 1), (1, OC + 1), (2, max(8, OC + 1))):
        if stp <= 9: dm.setdefault(stp, []); dm[stp] = dm[stp] + split(dmaB(k, 'x'))
    steps = []
    for ds in range(10):
        s = []
        take = split(b_loads(BBUF[(ds + 2) % 4])) if ds + 2 < 10 else []
        st = [oe.pop(0) for _ in range(nst[ds])]
        seq = merge([take, dm.get(ds, []), st])
        if ds == 2: seq.insert(0, [set_flag(f"s{sFg}", None)])
        if ds == WC: seq.insert(0, L(f"s_mov_b32 s{sT0}, {hex(FW)}") + [poll_load(vFl, vL16, f"s{sT0}", 4)])
        if ds == OF: seq.append([set_flag(f"s{sFl}", "Ost")])
        if ds == OC: seq.insert(len(seq) // 3, [poll_load(vFo2, vFa, f"s{sT1}")])
        flat = [x for ch in seq for x in ch]
        s += ('pace', flat),
        for grp in range(6):
            n = ds * 6 + grp
            if n + 2 < 60:
                if (n + 2) % 12 == 0:
                    stg = 27 + (n + 2) // 12
                    tags = [f"st{stg}"] + (["Wst"] if stg == 28 else [])
                    s.append(I("s_barrier", tag_r=tags, wr=['stg2'], after=24))
                s += g_reads(n + 2, 'stg2')
            slot = vGA + (n % 3) * 8
            B = BBUF[ds % 4]
            for j in range(4):
                for ks in range(2):
                    d = vr(acc3(grp, j), 4)
                    s.append(mfma(d, vr(slot + ks * 4, 4), rr((B[0], B[1] + (ks * 4 + j) * 4)), "0" if (ds == 0 and ks == 0) else d))
            if ds == 9 and grp % 2 == 1: s += h_epilogue(grp // 2)
        steps.append(s)
    assert not oe
    return steps
def h_epilogue(T3):
    s = []
    if True:
        for jp in range(2):
            o = vOP + ((T3 * 2 + jp) % 6) * 4
            for jj in range(2):
                j = jp * 2 + jj
                g = acc3(2 * T3, j); u = acc3(2 * T3 + 1, j)
                for i in range(4): s.append(I(f"v_mul_f32 v{g+i}, v{g+i}, v{u+i}"))
                for i in range(2): s.append(I(f"v_cvt_pk_bf16_f32 v{o+jj*2+i}, v{g+2*i}, v{g+2*i+1}"))
            for i in range(2): s.append(I(f"v_permlane32_swap_b32 v{o+i}, v{o+2+i}"))
            s.append(I(f"buffer_store_dwordx4 {vr(o,4)}, v{vT}, {sr(sWS,4)}, s{sOffH+T3} offen offset:{2048*jp} sc1", tag_w="Hst"))
    return s
def join_steps(steps, n=48):
    out = []
    for k, s in enumerate(steps):
        base = k * n
        for x in s:
            if isinstance(x, tuple):
                if any(y.kind == 'vmem' for y in x[1]): pace(x[1], base, base + n - 1)
                out += x[1]
            else:
                if x.after is not None: x.after += base
                out.append(x)
    return out

def gen_fallback():
    F = Prog()
    vK = 232; vS = 176; vP = 208
    vf, vv, va = 48, 49, 50
    sK_, sV_ = sK, sV
    def kload():
        return [I(f"buffer_load_dwordx4 {vr(vK+4*p,4)}, v{vf}, {sr(sK_,4)}, s{sT0} offen offset:{64*p}") for p in range(6)] + L(f"s_add_u32 s{sT0}, s{sT0}, 6144")
    def chains(kt, c0):
        s = []
        for j in range(4):
            d = vr(vS + (j * 2 + kt) * 4, 4)
            for p in range(6): s.append(mfma(d, vr(vK + 4 * p, 4), vr(vQ + (p * 4 + j) * 4, 4), d if p else c0(j)))
        return s
    c = L("L_fb:\ns_waitcnt vmcnt(0) lgkmcnt(0)\ns_nop 15")
    c += L(f"""v_and_b32 v54, 15, v0
v_lshrrev_b32 v55, 4, v0
v_mul_u32_u24 v{vf}, 384, v54
v_lshl_add_u32 v{vf}, v55, 4, v{vf}
v_lshrrev_b32 v56, 3, v0
v_and_b32 v57, 7, v0
v_and_b32 v58, 6, v56
v_xor_b32 v57, v57, v58
v_mul_u32_u24 v{vv}, 384, v56
v_lshl_add_u32 v{vv}, v57, 4, v{vv}
v_lshrrev_b32 v56, 2, v54
v_lshl_add_u32 v56, v55, 2, v56
v_bfe_u32 v57, v56, 1, 2
v_lshlrev_b32 v56, 7, v56
v_and_b32 v58, 3, v0
v_lshl_add_u32 v56, v58, 3, v56
s_lshl_b32 s{sT2}, s{sW}, 12
s_add_u32 s{sT2}, s{sT2}, {LDS_X}
v_add_u32 v56, s{sT2}, v56""")
    for x in range(4): c += L(f"v_xor_b32 v58, {x}, v57\nv_lshl_add_u32 v{va+x}, v58, 5, v56")
    c += L(f"""s_mul_i32 s{sT1}, s{sH}, 786432
s_add_u32 s{sT1}, s{sT1}, {1536*384}
s_mov_b32 s{sT0}, s{sT1}
s_mov_b32 s{sSpin}, 0""")
    for j in range(4): c += L(f"v_mov_b32 v{vNm+4*j}, 0xff800000")
    F.block("a", c)
    c = L("L_fb1:") + kload() + chains(0, lambda j: "0")
    for j in range(4):
        a = vS + j * 8; m = vNm + 4 * j
        c += L(f"v_max3_f32 v{m}, v{m}, v{a}, v{a+1}\nv_max3_f32 v{m}, v{m}, v{a+2}, v{a+3}")
    c += L(f"s_add_u32 s{sSpin}, s{sSpin}, 1\ns_cmp_lt_u32 s{sSpin}, 32\ns_cbranch_scc1 L_fb1")
    F.block("b", c)
    c = []
    for j in range(4):
        m = vNm + 4 * j
        c += xreduce(m, m + 1, "v_max_f32")
        c += L(f"v_sub_f32 v{m+1}, 0, v{m}\nv_sub_f32 v{m+2}, 0, v{m}\nv_sub_f32 v{m+3}, 0, v{m}\nv_sub_f32 v{m}, 0, v{m}\nv_mov_b32 v{vLs+j}, 0")
    for i in range(192): c.append(I(f"v_accvgpr_write_b32 a{i}, 0"))
    c += L(f"s_mov_b32 s{sT0}, s{sT1}\ns_mov_b32 s{sSpin}, 0")
    F.block("c", c)
    c = L("L_fb2:")
    for kt in range(2): c += kload() + chains(kt, lambda j: vr(vNm + 4 * j, 4)) + L("s_nop 7")
    for j in range(4):
        for kt in range(2):
            a = vS + (j * 2 + kt) * 4
            for i in range(4): c.append(I(f"v_exp_f32 v{a+i}, v{a+i}"))
            for i in range(4): c.append(I(f"v_add_f32 v{vLs+j}, v{vLs+j}, v{a+i}"))
            for i in range(2): c.append(I(f"v_cvt_pk_bf16_f32 v{vP+j*4+kt*2+i}, v{a+2*i}, v{a+2*i+1}"))
    for cg in range(3):
        for a in range(4):
            c += L(f"""s_add_u32 m0, s{sT2}, {1024*a}
s_add_u32 s{sOffP}, s{sT1}, {3072*a+128*cg}
buffer_load_dwordx4 v{vv}, {sr(sV_,4)}, s{sOffP} offen lds""")
        c += L("s_waitcnt vmcnt(0)")
        for x in range(4):
            for u in range(2): c.append(I(f"ds_read_b64_tr_b16 {vr(vK+4*x+2*u,2)}, v{va+x} offset:{2048*u}"))
        c += L("s_waitcnt lgkmcnt(0)")
        for x in range(4):
            for j in range(4):
                d = ar(((cg * 4 + x) * 4 + j) * 4, 4)
                c.append(mfma(d, vr(vK + 4 * x, 4), vr(vP + 4 * j, 4), d))
        c += L("s_nop 7")
    c += L(f"s_add_u32 s{sT1}, s{sT1}, 12288\ns_add_u32 s{sSpin}, s{sSpin}, 1\ns_cmp_lt_u32 s{sSpin}, 16\ns_cbranch_scc1 L_fb2")
    F.block("d", c)
    c = []
    for j in range(4): c += xreduce(vLs + j, vTmp + j, "v_add_f32")
    for j in range(4): c.append(I(f"v_rcp_f32 v{vLs+j}, v{vLs+j}"))
    c += L("s_nop 15\ns_branch L_fb_back")
    F.block("e", c)
    F.trace = [("a", {}), ("b", {}), ("b", {}), ("c", {}), ("d", {}), ("d", {}), ("e", {})]
    F.insert_waits(); F.fix_hazards()
    return F.text()


def gen(dbg=False):
    P = Prog()
    OUTL.clear(); AD.clear()
    for i in range(2): AD[vWa + i] = Addr(vWa + i, 0); AD[vKa + i] = Addr(vKa + i, 0)
    for i in range(4): AD[vVa + i] = Addr(vVa + i, 0)
    AD[vRa] = Addr(vRa, sbase(12)); AD[vGa] = Addr(vGa, sbase(27))
    AD[vOA] = Addr(vOA, obase(0)); AD[vOB] = Addr(vOB, obase(0)); AD[vDA] = Addr(vDA, obase(24)); AD[vDB] = Addr(vDB, obase(24))
    nblk = [0]
    def blk(ins, name=None):
        nm = name or f"b{nblk[0]}"; nblk[0] += 1
        P.block(nm, ins); P.trace.append((nm, {}))
    CPA = PAR("CPA", 10000)
    cp = [3]
    def sch(s, name, **kw):
        if name.startswith("p3"):
            if "p3nost" in KN: s = [x for x in s if not (x.kind == 'vmem' and 'store_dwordx4' in x.text)]
            if "p3nob" in KN: s = [x for x in s if not (x.kind == 'vmem' and 'load_dwordx4' in x.text and ' lds' not in x.text and f"s{sOffB} " in x.text)]
            if "p3novalu" in KN: s = [x for x in s if not (x.kind == 'valu' and x.text.startswith(('v_accvgpr', 'v_mul_f32', 'v_cvt')))]
            if "p3plain" in KN:
                for x in s:
                    if 'store_dwordx4' in x.text: x.text = x.text.replace(" sc1", "")
            if "p3nt" in KN:
                for x in s:
                    if 'store_dwordx4' in x.text: x.text = x.text.replace(" sc1", " sc1 nt")
        pos = sum(isize(x) for b in P.blocks for x in b[1]) * 1.03
        end = pos + sum(isize(x) for x in s) * 1.03
        nm = sum(1 for x in s if x.kind == 'mfma')
        while "nocp" not in KN and cp[0] * 8192 < end + CPA and cp[0] < NSLICE:
            g = int(max(0, min(nm - 2, (cp[0] * 8192 - CPA - pos) / (end - pos) * nm)))
            k = next((i for i, x in enumerate(s) if x.kind == 'vmem' and x.after is not None and x.after > g), len(s))
            s = s[:k] + [I(f"global_load_dword v{vDum}, v{vL16}, s[62:63]", after=g), I("s_add_u32 s62, s62, 0x2000"), I("s_addc_u32 s63, s63, 0")] + s[k:]
            cp[0] += 1
        blk(schedule(s, name, verbose=dbg and "v" in KN, **kw), name)
    c = L(f"""s_cmp_ge_u32 s2, 256
s_cbranch_scc1 L_end
s_load_dwordx16 s[64:79], s[0:1], 0
s_load_dwordx8 s[80:87], s[0:1], 64
s_memrealtime s[{sSt}:{sSt+1}]
s_getpc_b64 s[62:63]
v_lshrrev_b32 v30, 6, v0
v_and_b32 v0, 63, v0
v_readfirstlane_b32 s{sW}, v30
v_lshlrev_b32 v{vL16}, 4, v0
v_lshlrev_b32 v{vL128}, 7, v0
v_and_b32 v48, 7, v0
v_lshrrev_b32 v49, 3, v0
v_mul_u32_u24 v60, 1280, v48
v_lshl_add_u32 v50, v49, 4, v60
v_lshl_add_u32 v50, v30, 7, v50
s_mul_i32 s{sT0}, s2, {8*1280}
s_and_b32 s{sT1}, s2, 7
s_lshr_b32 s{sT2}, s2, 3
s_and_b32 s{sH}, s{sT2}, 3
s_lshl2_add_u32 s{sH}, s{sT1}, s{sH}
s_lshr_b32 s{sB}, s{sT2}, 2
s_lshr_b32 s{sS}, s{sT1}, 1
s_and_b32 s{sT1}, s{sT1}, 1
s_lshl3_add_u32 s{sMb}, s{sT1}, s{sB}
s_and_b32 s{sNb}, s{sT2}, 3
v_cmp_eq_u32 vcc, 0, v0
v_bfrev_b32 v51, 1
v_cndmask_b32 v{vFo}, v51, 0, vcc
v_cmp_gt_u32 vcc, 2, v30
v_add_u32 v53, 1024, v50
v_cndmask_b32 v53, v51, v53, vcc
s_lshl2_add_u32 s{sT2}, s{sT2}, s{sW}
s_and_b32 s{sT2}, s{sT2}, 15
s_min_u32 s{sT2}, s{sT2}, CODE_SLICES-1
s_lshl_b32 s{sT2}, s{sT2}, 13
v_add_u32 v52, s{sT2}, v{vL128}
global_load_dword a{aDum}, v52, s[62:63]""")
    if STAMPS: c += L(f"v_mov_b32 v{vSt}, 0")
    c += L("s_waitcnt lgkmcnt(0)")
    c += srd(sXin, pX, 2048 * 640 * 2)
    c += L(f"""buffer_load_dwordx4 v[64:67], v50, {sr(sXin,4)}, s{sT0} offen
buffer_load_dwordx4 v[68:71], v50, {sr(sXin,4)}, s{sT0} offen offset:512
buffer_load_dwordx4 v[72:75], v53, {sr(sXin,4)}, s{sT0} offen
buffer_load_ushort v76, v60, {sr(sXin,4)}, s{sT0} offen""")
    c += srd(sR, pDbg, 256)
    c += L(f"""s_or_b32 s{sNonce}, s{sSt}, 1
v_mov_b32 v54, s{sNonce}
s_or_b32 s{sT1}, s2, s{sW}
s_cmp_eq_u32 s{sT1}, 0
s_cselect_b32 s{sT1}, 0, 0x100
buffer_store_dword v54, v{vFo}, {sr(sR,4)}, s{sT1} offen sc1""")
    c += stamp(0)
    for n in range(3):
        c.append(I(f"v_add_u32 v54, {64*n}, v0"))
        c += divmod_const(55, 56, 54, 24)
        c += L(f"""v_and_b32 v57, 6, v55
v_xor_b32 v57, v56, v57
v_lshlrev_b32 v57, 4, v57
v_subrev_u32 v57, {1024*n}, v57
v_mul_u32_u24 v58, 384, v55
v_add_u32 v{vVo+n}, v58, v57
v_and_b32 v59, 4, v55
v_add_u32 v59, v59, v55
v_mul_u32_u24 v59, 12288, v59
v_add_u32 v{vWo+n}, v59, v57
v_lshrrev_b32 v59, 1, v55
v_lshl_add_u32 v59, v30, 2, v59
v_and_b32 v59, 7, v59
v_xor_b32 v59, v56, v59
v_lshlrev_b32 v59, 4, v59
v_subrev_u32 v59, {1024*n}, v59
v_add_u32 v{vKo+n}, v58, v59""")
    c += srd(sWq, pWq, 640 * 6144 * 2) + srd(sWS, pWs, WS_SIZE)
    c += L(f"""s_lshr_b32 s{sT0}, s{sW}, 1
s_and_b32 s{sT1}, s{sW}, 1
s_lshl_b32 s{sT2}, s{sT0}, 5
s_lshl2_add_u32 s{sT2}, s{sT1}, s{sT2}
s_mul_i32 s{sOffX}, s{sT2}, 12288
s_mul_i32 s{sT2}, s{sH}, 384
s_add_u32 s{sOffX}, s{sOffX}, s{sT2}
s_mul_i32 s{sM6}, s{sW}, 6144""")
    c += dma_stage(0) + dma_stage(1) + dma_stage(2)
    c += L(f"v_mov_b32 v60, 0\nbuffer_load_dword v{vNon}, v60, {sr(sR,4)}, 0 offen sc1")
    c += L(f"""v_lshlrev_b32 v58, 3, v48
v_add_u32 v58, {LDS_X}, v58
v_lshl_add_u32 v59, v30, 6, v58
v_lshrrev_b32 v56, 2, v49
v_lshl_add_u32 v56, v30, 1, v56
v_lshlrev_b32 v56, 12, v56
v_and_b32 v57, 3, v49
v_lshl_add_u32 v56, v57, 8, v56
v_lshl_add_u32 v56, v48, 4, v56
v_add_u32 v57, {16*4096}, v56
v_cndmask_b32 v57, v51, v57, vcc
s_lshr_b32 s{sT2}, s2, 3
s_mul_i32 s{sT2}, s{sT2}, {20*4096}
s_bfe_u32 s{sT3}, s2, 0x20001
s_lshl_b32 s{sT3}, s{sT3}, 10
s_add_u32 s{sT2}, s{sT2}, s{sT3}
s_and_b32 s{sT3}, s2, 1
s_lshl_b32 s{sT3}, s{sT3}, 7
s_add_u32 s{sT2}, s{sT2}, s{sT3}
s_add_u32 s{sT3}, s{sT2}, {8*4096}
s_cmp_lt_u32 s{sW}, 2
s_cselect_b32 s{sSpin}, 1.0, 0""")
    c += L("v_lshlrev_b32 v76, 16, v76\nv_mov_b32 v77, v76")
    for i in range(12):
        c += L(f"v_lshlrev_b32 v{80+2*i}, 16, v{64+i}\nv_and_b32 v{81+2*i}, 0xffff0000, v{64+i}")
        c += L(f"v_pk_add_f32 v[{112+2*i}:{113+2*i}], v[{80+2*i}:{81+2*i}], v[76:77] neg_lo:[0,1] neg_hi:[0,1]")
    for i in range(12):
        a = 104 if i < 8 else 108
        d = vr(112 + 2 * i, 2)
        if i in (0, 8): c += L(f"v_pk_mul_f32 v[{a+2}:{a+3}], {d}, {d}\nv_mov_b32 v{a}, v{112+2*i}\nv_mov_b32 v{a+1}, v{113+2*i}")
        else: c += L(f"v_pk_fma_f32 v[{a+2}:{a+3}], {d}, {d}, v[{a+2}:{a+3}]\nv_pk_add_f32 v[{a}:{a+1}], v[{a}:{a+1}], {d}")
    c += L(f"""v_add_f32 v104, v104, v105
v_add_f32 v105, v106, v107
v_add_f32 v108, v108, v109
v_add_f32 v109, v110, v111
v_fmac_f32 v104, s{sSpin}, v108
v_fmac_f32 v105, s{sSpin}, v109
s_nop 1
v_add_f32_dpp v104, v104, v104 row_ror:8 row_mask:0xf bank_mask:0xf
v_add_f32_dpp v105, v105, v105 row_ror:8 row_mask:0xf bank_mask:0xf""")
    ra, rb = xreduce(104, 106, "v_add_f32"), xreduce(105, 107, "v_add_f32")
    for x, y in zip(ra, rb): c += [x, y]
    c += L(f"""ds_write_b64 v59, v[104:105]
s_waitcnt lgkmcnt(0)
s_barrier
ds_read_b64 v[104:105], v58
ds_read_b64 v[106:107], v58 offset:64
ds_read_b64 v[108:109], v58 offset:128
ds_read_b64 v[110:111], v58 offset:192
v_pk_add_f32 v[104:105], v[104:105], v[106:107]
v_pk_add_f32 v[108:109], v[108:109], v[110:111]
v_pk_add_f32 v[104:105], v[104:105], v[108:109]
v_mul_f32 v104, {hex(f2u(1.0/640))}, v104
v_mul_f32 v105, {hex(f2u(1.0/640))}, v105
v_fma_f32 v105, -v104, v104, v105
v_max_f32 v105, 0, v105
v_add_f32 v104, v104, v76
v_cvt_pk_bf16_f32 v104, v105, v104
v_and_b32 v108, 0xffff0000, v104
v_lshlrev_b32 v104, 16, v104
v_add_f32 v104, {hex(f2u(1e-5))}, v104
v_cvt_pk_bf16_f32 v104, v104, v104
v_lshlrev_b32 v104, 16, v104
v_sqrt_f32 v104, v104
v_mov_b32 v109, v108
v_cvt_pk_bf16_f32 v104, v104, v104
v_lshlrev_b32 v104, 16, v104
v_rcp_f32 v104, v104
s_nop 0
v_mov_b32 v105, v104""")
    for i in range(12):
        d = vr(80 + 2 * i, 2)
        c += L(f"""v_pk_add_f32 {d}, {d}, v[108:109] neg_lo:[0,1] neg_hi:[0,1]
v_pk_mul_f32 {d}, {d}, v[104:105]
v_cvt_pk_bf16_f32 v{64+i}, v{80+2*i}, v{81+2*i}""")
        if i == 3: c.append(I(f"buffer_store_dwordx4 v[64:67], v56, {sr(sWS,4)}, s{sT2} offen sc1"))
        if i == 7: c.append(I(f"buffer_store_dwordx4 v[68:71], v56, {sr(sWS,4)}, s{sT3} offen sc1"))
        if i == 11: c.append(I(f"buffer_store_dwordx4 v[72:75], v57, {sr(sWS,4)}, s{sT2} offen sc1"))
    c += stamp(1)
    c += L(f"""s_lshl2_add_u32 s{sQg}, s{sB}, s{sW}
s_mul_i32 s{sOffB}, s{sQg}, {20*4096}
s_mul_i32 s{sOffG}, s{sH}, {20*6144}
s_add_u32 s{sOffG}, s{sOffG}, s{sM6}
s_add_u32 s{sOffG}, s{sOffG}, {hex(GP_OFF)}
s_mul_i32 s{sM3}, s{sW}, 3072
s_lshl_b32 s{sM1}, s{sW}, 10
s_mul_i32 s{sM5}, s{sW}, 5120
s_lshl_b32 s{sM4}, s{sW}, 12
s_mul_i32 s{sOffK}, s{sH}, 786432
s_add_u32 s{sOffK}, s{sOffK}, {1536*384}
s_mul_i32 s{sPf}, s{sQg}, 6144
s_add_u32 s{sPf}, s{sPf}, s{sOffK}
s_add_u32 s{sOffK}, s{sOffK}, s{sM3}
s_mov_b32 s{sOffV}, s{sOffK}
s_mul_i32 s{sT2}, s{sQg}, {240*4096}
s_add_u32 s{sT2}, s{sT2}, {hex(OH_OFF)}
s_mul_i32 s{sT3}, s{sH}, {6*4096}
s_add_u32 s{sOffO}, s{sT2}, s{sT3}
s_add_u32 s{sT2}, s{sT2}, {192*4096}
s_mul_i32 s{sT3}, s{sH}, 3""")
    for T3 in range(3):
        c += L(f"""s_lshr_b32 s{sSpin}, s{sT3}, 1
s_lshl_b32 s{sSpin}, s{sSpin}, 12
s_add_u32 s{sOffH+T3}, s{sT2}, s{sSpin}
s_and_b32 s{sSpin}, s{sT3}, 1
s_lshl_b32 s{sSpin}, s{sSpin}, 9
s_add_u32 s{sOffH+T3}, s{sOffH+T3}, s{sSpin}
s_add_u32 s{sT3}, s{sT3}, 1""")
    c += L(f"""v_lshrrev_b32 v54, 4, v0
v_and_b32 v55, 15, v0
v_lshrrev_b32 v56, 2, v55
v_and_b32 v57, 3, v0
v_lshl_add_u32 v58, v54, 2, v56
v_bfe_u32 v59, v58, 1, 2
v_mul_u32_u24 v62, 384, v58
v_lshlrev_b32 v63, 1, v59
v_xor_b32 v63, v63, v57
v_lshl_add_u32 v{vWa}, v63, 4, v62
v_xor_b32 v63, 4, v63
v_lshl_add_u32 v{vWa+1}, v63, 4, v62
v_lshl_add_u32 v62, v57, 3, v62""")
    for x in range(4): c += L(f"v_xor_b32 v63, {x}, v59\nv_lshl_add_u32 v{vVa+x}, v63, 5, v62")
    c += L(f"""v_lshlrev_b32 v62, 7, v58
v_lshl_add_u32 v62, v57, 3, v62
v_xor_b32 v63, v30, v59
v_lshl_add_u32 v62, v63, 5, v62
v_add_u32 v{vRa}, {sbase(12)}, v62
v_add_u32 v{vGa}, {sbase(27)}, v{vL16}
v_mul_u32_u24 v62, 384, v55
v_lshrrev_b32 v63, 1, v55
v_xor_b32 v63, v63, v54
v_lshl_add_u32 v{vKa}, v63, 4, v62
v_xor_b32 v63, 4, v63
v_lshl_add_u32 v{vKa+1}, v63, 4, v62
v_bfe_u32 v56, v0, 2, 3
v_lshlrev_b32 v56, 7, v56
v_lshl_add_u32 v56, v57, 2, v56
s_lshl_b32 s{sT2}, s2, 7
s_lshl2_add_u32 s{sT2}, s{sW}, s{sT2}
s_add_u32 s{sT2}, s{sT2}, {hex(FXN)}
s_mov_b32 s{sSpin}, {SPIN_MAX}
L_nonce:
s_waitcnt vmcnt(0)
v_readfirstlane_b32 s{sNonce}, v{vNon}
s_nop 3
s_cmp_lg_u32 s{sNonce}, 0
s_cbranch_scc1 L_nonce_ok
buffer_load_dword v{vNon}, v60, {sr(sR,4)}, 0 offen sc1
s_sub_u32 s{sSpin}, s{sSpin}, 1
s_cmp_lg_u32 s{sSpin}, 0
s_cbranch_scc1 L_nonce
s_waitcnt vmcnt(0)
L_nonce_ok:
buffer_store_dword v{vNon}, v{vFo}, {sr(sWS,4)}, s{sT2} offen sc1""")
    c += L(f"""s_mov_b32 s{sScale}, {hex(f2u(math.log2(math.e) / math.sqrt(192.0)))}
s_sub_u32 s{sT2}, s2, 240
s_cmp_lt_u32 s2, 240
s_cselect_b32 s{sT2}, s2, s{sT2}""")
    c += sdivmod(sT3, sSpin, sT2, 10)
    c += L(f"""s_lshl_b32 s{sOffRo}, s{sT3}, 8
s_lshl3_add_u32 s{sOffRo}, s{sW}, s{sOffRo}
s_mul_i32 s{sOffRo}, s{sOffRo}, 1280
s_lshl_b32 s{sFl}, s{sSpin}, 7
s_add_u32 s{sOffRo}, s{sOffRo}, s{sFl}
s_lshl_b32 s{sOffRd}, s{sT3}, 6
s_lshl4_add_u32 s{sOffRd}, s{sT1}, s{sOffRd}
s_lshl3_add_u32 s{sOffRd}, s{sT0}, s{sOffRd}
s_mul_i32 s{sOffRd}, s{sOffRd}, 1280
s_add_u32 s{sOffRd}, s{sOffRd}, s{sFl}
s_lshl2_add_u32 s{sSpin}, s{sSpin}, s{sW}""")
    c += sdivmod(sFl, sOffP, sSpin, 10)
    c += L(f"""s_mul_i32 s{sFl}, s{sFl}, 192
s_lshl3_add_u32 s{sFl}, s{sT3}, s{sFl}
s_mul_i32 s{sFl}, s{sFl}, 10
s_add_u32 s{sFl}, s{sFl}, s{sOffP}
s_lshl_b32 s{sFl}, s{sFl}, 10
s_add_u32 s{sOffDo}, s{sFl}, {hex(WOP_OFF)}""")
    c += sdivmod(sFl, sOffP, sSpin, 5)
    c += L(f"""s_mul_i32 s{sFl}, s{sFl}, 48
s_lshl1_add_u32 s{sFl}, s{sT3}, s{sFl}
s_mul_i32 s{sFl}, s{sFl}, 5
s_add_u32 s{sFl}, s{sFl}, s{sOffP}
s_lshl_b32 s{sFl}, s{sFl}, 10
s_add_u32 s{sOffDd}, s{sFl}, {hex(WDP_OFF)}""")
    c += sdivmod(sT3, sSpin, sT2, 48)
    c += L(f"""s_cmp_ge_u32 s{sSpin}, 24
s_cselect_b32 s{pBx}, s{pWu}, s{pWg}
s_cselect_b32 s{pBx+1}, s{pWu+1}, s{pWg+1}
s_cselect_b32 s{sT2}, 1, 0
s_cselect_b32 s{sFl}, 24, 0
s_sub_u32 s{sSpin}, s{sSpin}, s{sFl}
s_lshl_b32 s{sOffR}, s{sT3}, 7
s_lshl4_add_u32 s{sOffR}, s{sT1}, s{sOffR}
s_lshl2_add_u32 s{sOffR}, s{sT0}, s{sOffR}
s_mul_i32 s{sOffR}, s{sOffR}, 3072
s_lshl_b32 s{sFl}, s{sSpin}, 7
s_add_u32 s{sOffR}, s{sOffR}, s{sFl}
s_lshl2_add_u32 s{sSpin}, s{sSpin}, s{sW}""")
    c += sdivmod(sFl, sOffP, sSpin, 3)
    c += L(f"""s_mul_i32 s{sFl}, s{sFl}, 20
s_lshl2_add_u32 s{sFl}, s{sT3}, s{sFl}
s_mul_i32 s{sFl}, s{sFl}, 6
s_lshl1_add_u32 s{sFl}, s{sOffP}, s{sFl}
s_add_u32 s{sFl}, s{sFl}, s{sT2}
s_lshl_b32 s{sFl}, s{sFl}, 10
s_add_u32 s{sOffD}, s{sFl}, {hex(GP_OFF)}
s_lshl_b32 s{sT3}, s{sQg}, 10
s_add_u32 s{sT3}, s{sT3}, {hex(FXN)}""")
    c += [poll_load(57, 56, f"s{sT3}")]
    c += L(f"""v_and_b32 v54, 6, v49
v_xor_b32 v54, v54, v48
v_lshlrev_b32 v54, 4, v54
v_mul_u32_u24 v55, 1280, v49
v_add_u32 v{vRo2}, v55, v54
v_and_b32 v55, 4, v49
v_add_u32 v55, v55, v49
v_mul_u32_u24 v55, 3072, v55
v_add_u32 v{vRo}, v55, v54
s_lshr_b32 s{sT2}, s2, 3
s_lshl2_add_u32 s{sT2}, s{sT2}, s{sW}
s_and_b32 s{sT2}, s{sT2}, 7
s_lshl_b32 s{sT2}, s{sT2}, 10
s_add_u32 s{sT2}, s{sT2}, {3*8192}
s_add_u32 s62, s62, s{sT2}
s_addc_u32 s63, s63, 0
s_lshl_b32 s{sFg}, s2, 2
s_add_u32 s{sFg}, s{sFg}, {hex(FG)}
s_cmp_eq_u32 s{sW}, 0
s_cselect_b32 s{sFg}, s{sFg}, 0x40000000
s_lshl_b32 s{sFl}, s{sB}, 5
s_add_u32 s{sFl}, s{sFl}, s{sH}
s_lshl_b32 s{sFl}, s{sFl}, 7
s_lshl2_add_u32 s{sFl}, s{sW}, s{sFl}
s_add_u32 s{sFl}, s{sFl}, {hex(FO)}
s_mul_i32 s{sOffA}, s{sNb}, 192
s_mul_i32 s{sT2}, s{sS}, 48
s_add_u32 s{sOffA}, s{sOffA}, s{sT2}
s_mul_i32 s{sOffA}, s{sOffA}, 10240
s_add_u32 s{sOffA}, s{sOffA}, s{sM5}
s_add_u32 s{sOffA}, s{sOffA}, {hex(WOP_OFF)}
s_lshl1_add_u32 s{sOffBB}, s{sMb}, s{sT1}
s_mul_i32 s{sOffBB}, s{sOffBB}, 240
s_add_u32 s{sOffBB}, s{sOffBB}, s{sT2}
s_add_u32 s{sOffBB}, s{sOffBB}, s{sT0}
s_lshl_b32 s{sOffBB}, s{sOffBB}, 12
s_add_u32 s{sOffBB}, s{sOffBB}, {hex(OH_OFF)}
s_lshr_b32 s{sT2}, s{sS}, 1
s_lshl1_add_u32 s{sQd}, s{sMb}, s{sT2}""")
    c += srd(sR, pBx, 640 * 1536 * 2) + srd(sK, pK, 32 * 2048 * 192 * 2) + srd(sV, pV, 32 * 2048 * 192 * 2)
    for i in range(4): c.append(I(f"v_mov_b32 v{vLs+i}, 0"))
    c.append(barrier("st0"))
    c += w_reads(0, 0) + w_reads(0, 1)
    c += poll_cmp(57, 1) + poll_branch("xn", 57, 56, f"s{sT3}")
    c += stamp(2)
    for k in range(BD1): c += b_loads(('a', 32 * k))
    blk(c, "pro")
    for sg in range(9):
        ex = []
        if "kvpf" in KN:
            if sg == 1: ex = [prefetch(sK, f"s{sPf}")]
            if sg == 3: ex = [prefetch(sV, f"s{sPf}")]
        sch(p1_step(sg, ex), f"p1_{sg}")
    blk(stamp(3))
    sch(p1_step(9) + first_tile() + p2_iter(0, base=96 + 48), "p1_last")
    blk(stamp(4))
    XP = PAR("XP", 9)
    for t in range(1, 14):
        ex = []; post = []; btag = []
        if t == 6: btag = ["Gst"]
        if t == 7: ex += [set_flag(f"s{sFg}", None)] + L(f"s_add_u32 s{sFg}, s{sFg}, {FW-FG}")
        if t == 10: ex += L(f"s_mov_b32 s{sT0}, {hex(FG)}") + [poll_load(vTmp, vL16, f"s{sT0}", 4)]
        if t == 12: post += late(poll_cmp(vTmp, 4), 60)
        if "xpf" in KN and XP <= t < XP + 3:
            if t == XP: ex += L(f"""s_and_b32 s{sPf}, s{sH}, 3
s_mul_i32 s{sPf}, s{sPf}, 2048
s_mul_i32 s{sT2}, s{sQg}, {20*4096}
s_add_u32 s{sPf}, s{sPf}, s{sT2}
v_lshrrev_b32 v{vTmp+4}, 4, v0
v_and_b32 v{vTmp+5}, 15, v0
v_lshlrev_b32 v{vTmp+4}, 13, v{vTmp+4}
v_lshl_add_u32 v{vL128}, v{vTmp+5}, 7, v{vTmp+4}""")
            ex += [prefetch(sWS, f"s{sPf}", "sc1")] + L(f"s_add_u32 s{sPf}, s{sPf}, 32768")
        sch(p2_iter(t, extra=ex, post=post, btag=btag), f"p2_{t}")
        if t == 12: blk(poll_branch("g", vTmp, vL16, f"s{sT0}", 4))
    blk(stamp(5))
    sch(p2_iter(14) + tail_pv(96), "tail", vm_min=3)
    blk(L("s_cbranch_vccnz L_fb\nL_fb_back:") + stamp(6))
    steps = p3_steps()
    setup = L(f"""v_and_b32 v{vT}, 32, v0
v_lshlrev_b32 v{vT}, 4, v{vT}
v_add_u32 v{vT}, v{vT}, v{vL16}
s_lshr_b32 s{sT1}, s{sMb}, 1
s_lshl_b32 s{sT1}, s{sT1}, 5
s_lshl3_add_u32 s{sT1}, s{sS}, s{sT1}
s_lshl_b32 s{sT1}, s{sT1}, 7
s_and_b32 s{sT2}, s{sMb}, 1
s_and_b32 s{sT3}, s{sW}, 1
s_lshl1_add_u32 s{sT2}, s{sT2}, s{sT3}
s_lshl2_add_u32 s{sT1}, s{sT2}, s{sT1}
s_add_u32 s{sT1}, s{sT1}, {hex(FO)}
v_and_b32 v{vFa}, 7, v0
v_lshlrev_b32 v{vFa}, 7, v{vFa}
s_mul_i32 s{sT3}, s{sT3}, 5120
s_add_u32 s{sT3}, s{sT3}, {obase(0)}
v_add_u32 v{vOA}, s{sT3}, v{vL16}
s_lshr_b32 s{sT2}, s{sW}, 1
s_lshl_b32 s{sT2}, s{sT2}, 12
s_add_u32 s{sT2}, s{sT2}, {20480+obase(0)}
v_add_u32 v{vOB}, s{sT2}, v{vL16}
v_add_u32 v{vDA}, {obase(24)}, v{vL16}
s_add_u32 s{sT2}, s{sM1}, {20480+obase(24)}
v_add_u32 v{vDB}, s{sT2}, v{vL16}""")
    for k in range(10):
        body = (setup if k == 3 else []) + join_steps(steps[k:k+1])
        if k == 9 and OC < 9:
            body += [I("s_barrier", tag_r="ot0", wr=['stg'], rd=['stg2'], after=34)] + o_reads(0)
        sch(body, f"p3s{k}", vm_min=2)
        if k == WC: blk(poll_cmp(vFl, 4) + poll_branch("w", vFl, vL16, f"s{sT0}", 4))
        if k == OC: blk(poll_cmp(vFo2, 1) + poll_branch("o", vFo2, vFa, f"s{sT1}"))
        if "fine" in KN: blk(stamp(14 + k))
    c = stamp(7) + stamp(8)
    if OC == 9:
        c += dmaB(0) + dmaB(1) + dmaB(2)
        c.append(I("s_barrier", tag_r="ot0"))
        c += o_reads(0)
    c += stamp(9)
    blk(c, "o_pro")
    osetup = L(f"""s_lshr_b32 s{sT1}, s{sMb}, 1
s_lshl_b32 s{sT1}, s{sT1}, 12
s_and_b32 s{sT2}, s{sQd}, 3
s_lshl2_add_u32 s{sT1}, s{sT2}, s{sT1}
s_add_u32 s{sT1}, s{sT1}, {hex(FH)}
v_and_b32 v{vFa}, 31, v0
v_lshlrev_b32 v{vFa}, 7, v{vFa}
s_and_b32 s{sT2}, s{sS}, 1
s_lshl1_add_u32 s{sT2}, s{sNb}, s{sT2}
s_mul_i32 s{sOffRo}, s{sT2}, {48*5120}
s_add_u32 s{sOffRo}, s{sOffRo}, s{sM5}
s_add_u32 s{sOffRo}, s{sOffRo}, {hex(WDP_OFF)}
s_mul_i32 s{sT2}, s{sT2}, 160
s_lshl2_add_u32 s{sOffO}, s{sQd}, s{sW}
s_mul_i32 s{sOffO}, s{sOffO}, {16*1280}
s_add_u32 s{sOffO}, s{sOffO}, s{sT2}
s_mul_i32 s{sOffRd}, s{sQd}, 240
s_add_u32 s{sOffRd}, s{sOffRd}, s{sW}
s_add_u32 s{sOffRd}, s{sOffRd}, 192
s_lshl_b32 s{sOffRd}, s{sOffRd}, 12
s_add_u32 s{sOffRd}, s{sOffRd}, {hex(OH_OFF)}
s_lshl2_add_u32 s{sT0}, s{sMb}, s{sNb}
s_lshl2_add_u32 s{sT3}, s{sT0}, s{sS}
s_lshl2_add_u32 s{sT2}, s{sT3}, s{sW}
s_mul_i32 s{sOffP}, s{sT2}, 10240
s_add_u32 s{sOffP}, s{sOffP}, {hex(PART_OFF)}
s_lshl_b32 s{sFl}, s{sT3}, 7
s_lshl2_add_u32 s{sFl}, s{sW}, s{sFl}
s_add_u32 s{sFl}, s{sFl}, {hex(FP)}
v_and_b32 v{vOa}, 15, v0
v_mul_u32_u24 v{vOa}, 1280, v{vOa}
v_lshrrev_b32 v{vPo}, 4, v0
v_lshl_add_u32 v{vOa}, v{vPo}, 3, v{vOa}
v_and_b32 v{vFa2}, 3, v0
v_lshlrev_b32 v{vFa2}, 7, v{vFa2}""") + srd(sOut, pOut, 2048 * 640 * 2) + L(f"""s_lshl_b32 s{sFg}, s{sT0}, 9
s_lshl2_add_u32 s{sFg}, s{sS}, s{sFg}
s_add_u32 s{sFg}, s{sFg}, {hex(FP)}
s_lshl4_add_u32 s{sT2}, s{sT0}, s{sS}
s_mul_i32 s{sT3}, s{sT2}, 10240
s_add_u32 s{sT3}, s{sT3}, {hex(PART_OFF)}
s_lshl_b32 s{sT2}, s{sW}, 11
s_add_u32 s{sOffH0}, s{sT3}, s{sT2}
s_lshr_b32 s{sT2}, s{sW}, 1
s_lshl_b32 s{sT2}, s{sT2}, 10
s_add_u32 s{sT3}, s{sT3}, s{sT2}
s_and_b32 s{sT2}, s{sW}, 1
s_lshl3_add_u32 s{sT3}, s{sT2}, s{sT3}
s_add_u32 s{sOffH1}, s{sT3}, 8192""")
    assert len(osetup) <= 56
    for sg in range(4):
        ex = []
        if sg == 0: ex = dmaB(3) + dmaA(3)
        if sg == 3: ex = L(f"s_add_u32 s{sQg}, s{sQg}, {FH-FO}") + [set_flag(f"s{sQg}", "Hst")]
        pre = L(f"s_mov_b32 s{sQg}, s{sFl}") if sg == 0 else []
        sch(o_block(sg, ex, pre=pre, mid=osetup[sg * 14:(sg + 1) * 14], exfirst=(sg == 0)), f"o{sg}", vm_min=2)
    base_state = {r: AD[r].base for r in (vOA, vOB)}
    P.block("ol_top", L(f"s_mov_b32 s{sH}, 0") + L(".p2align 6\nL_o:")); P.trace.append(("ol_top", {}))
    lb = []
    for q in range(4):
        ex = [poll_load(vFl, vFa, f"s{sT1}")] if q == 0 else []
        b = o_block(4 + q, ex)
        for x in b:
            for attr in ('tag_r', 'tag_w'):
                t = getattr(x, attr)
                if t is None: continue
                ts = t if isinstance(t, list) else [t]
                setattr(x, attr, (lambda ts: lambda env: [u[:2] + str(int(u[2:]) + 4 * env['it']) for u in ts])(ts))
        b = schedule(b, f"ol{q}", verbose=dbg and "v" in KN, vm_min=3)
        if q == 3: b += L(f"s_add_u32 s{sH}, s{sH}, 1\ns_cmp_lt_u32 s{sH}, 4\ns_cbranch_scc1 L_o")
        P.block(f"ol{q}", b)
    assert base_state == {r: AD[r].base for r in (vOA, vOB)}, "loop address state"
    for it in range(4): P.trace += [(f"ol{q}", {'it': it}) for q in range(4)]
    blk(poll_cmp(vFl, 1) + poll_branch("h", vFl, vFa, f"s{sT1}"))
    for sg in range(20, 24): sch(o_block(sg), f"o{sg}")
    blk(stamp(10))
    def pk(dst, t, j):
        a = vAc + (t * 4 + j) * 4
        return L(f"v_cvt_pk_bf16_f32 v{dst}, v{a}, v{a+1}\nv_cvt_pk_bf16_f32 v{dst+1}, v{a+2}, v{a+3}")
    ps = []; n = 0
    for j in range(4):
        for tp in range(2):
            o = vPk + n * 4
            it = pk(o, 2 * tp, j) + pk(o + 2, 2 * tp + 1, j)
            it.append(I(f"buffer_store_dwordx4 {vr(o,4)}, v{vL16}, {sr(sWS,4)}, s{sOffP} offen offset:{(n%4)*1024} sc1", tag_w="Pst"))
            n += 1
            if n % 4 == 0: it.append(I(f"s_add_u32 s{sOffP}, s{sOffP}, 4096"))
            ps.append(it)
    for jp in range(2):
        o = vPk + n * 4
        ps.append(pk(o, 4, 2 * jp) + pk(o + 2, 4, 2 * jp + 1) + [I(f"buffer_store_dwordx4 {vr(o,4)}, v{vL16}, {sr(sWS,4)}, s{sOffP} offen offset:{jp*1024} sc1", tag_w="Pst")])
        n += 1
    xl = [I(f"buffer_load_dwordx2 {vr(vXr+2*t,2)}, v{vOa}, {sr(sXin,4)}, s{sOffO} offen offset:{32*t}") for t in range(5)]
    pl = []
    for sd in range(4):
        for tp in range(2): pl.append(I(f"buffer_load_dwordx4 {vr(vPl+sd*12+tp*4,4)}, v{vL16}, {sr(sWS,4)}, s{sOffH0} offen offset:{1024*tp} sc1"))
        pl.append(I(f"buffer_load_dwordx2 {vr(vPl+sd*12+8,2)}, v{vL16}, {sr(sWS,4)}, s{sOffH1} offen sc1"))
        pl += L(f"s_add_u32 s{sOffH0}, s{sOffH0}, {4*10240}\ns_add_u32 s{sOffH1}, s{sOffH1}, {4*10240}")
    PF, PL, PC = PAR("PF", 29), PAR("PL", 31), PAR("PC", 33)
    for sg in range(24, 36):
        ex = []
        if sg == 24: ex = [x for it in ps[:4] for x in it]
        if sg == 25: ex = [x for it in ps[4:7] for x in it]
        if sg == 26: ex = [x for it in ps[7:] for x in it]
        if sg == PF: ex = [set_flag(f"s{sFl}", "Pst")]
        if sg == PL: ex = ex + [poll_load(vFl, vFa2, f"s{sFg}")]
        if sg == PAR("XL", 32): ex = ex + xl
        if sg == 27 and "outpf" in KN: ex = ex + [I(f"buffer_load_dword v{vDum}, v{vOa}, {sr(sOut,4)}, s{sOffO} offen offset:{o}") for o in (0, 128)]
        sch(o_block(sg, ex), f"d{sg}", vm_min=1)
        if sg == PC: blk(poll_cmp(vFl, 1) + poll_branch("p", vFl, vFa2, f"s{sFg}") + pl)
    c = stamp(11)
    t0 = 112
    for t in range(5):
        h = vDc + 4 * t
        for i in range(4): c += L(f"v_mul_f32 v{t0+4*t+i}, {hex(f2u(-math.log2(math.e)))}, v{h+i}\nv_exp_f32 v{t0+4*t+i}, v{t0+4*t+i}")
        for i in range(4): c += L(f"v_add_f32 v{t0+4*t+i}, 1.0, v{t0+4*t+i}\nv_rcp_f32 v{t0+4*t+i}, v{t0+4*t+i}")
        for i in range(4): c += L(f"v_mul_f32 v{h+i}, v{h+i}, v{t0+4*t+i}")
    for t in range(5):
        h = vDc + 4 * t; a = t0 + 4 * t; u = 132
        for sd in range(4):
            for hf in range(2):
                src = vPl + sd * 12 + 2 * t + hf
                if sd == 0: c += L(f"v_lshlrev_b32 v{a+2*hf}, 16, v{src}\nv_and_b32 v{a+2*hf+1}, 0xffff0000, v{src}")
                else: c += L(f"""v_lshlrev_b32 v{u+2*hf}, 16, v{src}
v_and_b32 v{u+2*hf+1}, 0xffff0000, v{src}
v_pk_add_f32 v[{a+2*hf}:{a+2*hf+1}], v[{a+2*hf}:{a+2*hf+1}], v[{u+2*hf}:{u+2*hf+1}]""")
        c += L(f"""v_lshlrev_b32 v{u+4}, 16, v{vXr+2*t}
v_and_b32 v{u+5}, 0xffff0000, v{vXr+2*t}
v_lshlrev_b32 v{u+6}, 16, v{vXr+2*t+1}
v_and_b32 v{u+7}, 0xffff0000, v{vXr+2*t+1}""")
        for i in range(4): c.append(I(f"v_fmac_f32 v{u+4+i}, v{a+i}, v{h+i}"))
        c += L(f"""v_cvt_pk_bf16_f32 v{a}, v{u+4}, v{u+5}
v_cvt_pk_bf16_f32 v{a+1}, v{u+6}, v{u+7}
buffer_store_dwordx2 {vr(a,2)}, v{vOa}, {sr(sOut,4)}, s{sOffO} offen offset:{32*t} {os.environ.get("OUTF", "")}""")
    c += stamp_store(13)
    amp = os.environ.get("AMP")
    if amp and STAMPS:
        k1, k2, mult = map(int, amp.split(","))
        first = f"v_readlane_b32 s{sT0}, v{vSt}, {2*k1}" if k1 >= 0 else f"s_mov_b32 s{sT0}, s{sNonce}"
        c += L(f"""{first}
v_readlane_b32 s{sT1}, v{vSt}, {2*k2}
v_readlane_b32 s{sT2}, v{vSt}, 26
s_nop 4
s_sub_u32 s{sT0}, s{sT1}, s{sT0}
s_mul_i32 s{sT0}, s{sT0}, {mult}
s_min_u32 s{sT0}, s{sT0}, 100000
L_amp:
s_memrealtime s[{sSt}:{sSt+1}]
s_waitcnt lgkmcnt(0)
s_sub_u32 s{sT1}, s{sSt}, s{sT2}
s_cmp_lt_u32 s{sT1}, s{sT0}
s_cbranch_scc1 L_amp""")
    c += L("L_end:\ns_endpgm")
    blk(c, "fin")
    for nm, ins in OUTL: P.block(nm, ins)
    P.insert_waits()
    n = P.fix_hazards(verbose=False)
    if dbg:
        tot, per = P.estimate()
        agg = {}
        for k, v in per.items():
            kk = k.rstrip('0123456789') if k[0] in 'od' or k.startswith('p1_') or k.startswith('p2_') else k
            agg[kk] = agg.get(kk, 0) + v
        print("; estimate", tot, agg, "pads", n)
    return P.text() + "\n" + gen_fallback()

def build(path, dbg=False):
    body = gen(dbg)
    body = "\n".join(l.strip() for l in body.split("\n"))
    txt = f"""; @launch grid=(256,1,1) block=(256,1,1) lds={LDS_TOTAL}
.amdgcn_target "amdgcn-amd-amdhsa--gfx950"
.text
.globl {KNAME}
.p2align 8
.type {KNAME},@function
{KNAME}:
L_code_begin:
{body}
L_code_end:
.set CODE_SLICES, (L_code_end-L_code_begin+8191)/8192
.fill 2112, 4, 0xbf800000
s_endpgm
.section .rodata,"a"
.p2align 6
.amdhsa_kernel {KNAME}
  .amdhsa_next_free_vgpr 512
  .amdhsa_next_free_sgpr 102
  .amdhsa_accum_offset 256
  .amdhsa_group_segment_fixed_size 0
  .amdhsa_kernarg_size 96
  .amdhsa_user_sgpr_count 2
  .amdhsa_user_sgpr_kernarg_segment_ptr 1
  .amdhsa_system_sgpr_workgroup_id_x 1
  .amdhsa_float_denorm_mode_32 3
.end_amdhsa_kernel
"""
    open(path, "w").write(txt)

if __name__ == "__main__":
    if "--stamps" in sys.argv:
        STAMPS = True; sys.argv.remove("--stamps")
    build(sys.argv[1], dbg=True)
```

```python
import sys, math, struct, os
from asmlib import *
KN = set(os.environ.get("KN", "").split(","))
def PAR(name, default): return type(default)(os.environ.get(name, default))
NAME = "recurrent_scan__sliding_block_cached__glu_gated_bilinear__prompt"
KNAME = NAME + "_kernel"
XN_OFF = 0; OH_OFF = 0x400000; GP_OFF = 0x2200000; WOP_OFF = 0x2600000; WDP_OFF = 0x2E00000; PART_OFF = 0x3000000
FL_OFF = 0x3A00000
FXN = FL_OFF; FO = FL_OFF + 0x8000; FH = FL_OFF + 0x10000; FP = FL_OFF + 0x18000; FG = FL_OFF + 0x20000; FW = FL_OFF + 0x21000
WS_SIZE = 0x3B00000
STAMP_OFF = 0x8000000
SLOT = 28672; SL2 = 36864
LDS_X = 147456
LDS_TOTAL = 163840
STAMPS = False
SPIN_MAX = 200000
def sbase(st):
    if st <= 28: return (st % 5) * SLOT
    return {29: 0, 30: 110592, 31: 135168}[st]
OPERM = [1, 2, 0, 3]
def obase(sg): return OPERM[sg % 4] * SL2

def f2u(x): return struct.unpack('<I', struct.pack('<f', x))[0]
def vr(a, n): return f"v[{a}:{a+n-1}]" if n > 1 else f"v{a}"
def ar(a, n): return f"a[{a}:{a+n-1}]" if n > 1 else f"a{a}"
def sr(a, n): return f"s[{a}:{a+n-1}]" if n > 1 else f"s{a}"
def rr(x, n=4): return vr(x[1], n) if x[0] == 'v' else ar(x[1], n)
def L(txt): return [I(t) for t in txt.strip().split("\n") if t.strip()]
def mfma(d, a, b, c): return I(f"v_mfma_f32_16x16x32_bf16 {d}, {a}, {b}, {c}")

sWq, sK, sWS, sR = 4, 8, 12, 16
(sOffX, sOffY, sOffK, sOffV, sM6, sM3, sM1, sOffB, sH, sB, sW, sT0, sT1, sT2, sOffO, sScale,
 sOffG, sOffH0, sOffH1, sOffH2, sNonce, sOffR, sOffD, sOffRo, sOffRd, sOffDo, sOffDd,
 sS, sMb, sNb, sFl, sSpin, sT3, sOffP, sQg, sFg, sOffA, sOffBB, sM5, sM4, sPf, sQd) = range(20, 62)
sOffH = sOffH0
pX, pK, pV, pWq, pWo, pBx, pWg, pWu, pWd, pOut, pDbg, pWs = range(64, 88, 2)
sSt = 88; sV = 92; sXin = 96
sOut = sWq
vL16 = 1; vWo = 2; vKo = 5; vVo = 8; vRo = 11; vRo2 = 12; vL128 = 13; vFo = 14; vNon = 15
vRa = 16; vWa = 17; vKa = 19; vVa = 21; vGa = 25
vLs = 26; vT = 36; vSt = 31; vNm = 32; vTmp = 48
vAcc = 64; vQ = 64
vS01 = 160; vS23 = 176; vP01 = 208; vP23 = 224; vVs = 232
aK = 192; aR = 240; aA1 = 128; aDum = 255
vDum = 30
NSLICE = 10

class Addr:
    def __init__(self, reg, base): self.reg = reg; self.base = base
    def use(self, base, off):
        pre = []
        d = base + off - self.base
        if not (0 <= d < 65536):
            pre = [I(f"v_add_u32 v{self.reg}, {hex((base - self.base) & 0xffffffff)}, v{self.reg}")]
            self.base = base; d = off
        return pre, d
AD = {}
def dsr(op, dst, reg, base, off, **kw):
    pre, d = AD[reg].use(base, off)
    return pre + [I(f"{op} {dst}, v{reg} offset:{d}", **kw)]

def srd(d, base, size):
    return [I(f"s_mov_b32 s{d}, s{base}"), I(f"s_mov_b32 s{d+1}, s{base+1}"), I(f"s_mov_b32 s{d+2}, {hex(size)}"), I(f"s_mov_b32 s{d+3}, 0x20000")]
def xreduce(v, t, op):
    return L(f"""v_mov_b32 v{t}, v{v}
v_permlane16_swap_b32 v{v}, v{t}
{op} v{v}, v{v}, v{t}
v_mov_b32 v{t}, v{v}
v_permlane32_swap_b32 v{v}, v{t}
{op} v{v}, v{v}, v{t}""")
def divmod_const(q, r, src, c):
    magic = (65536 + c - 1) // c
    for x in range(1400): assert (x * magic) >> 16 == x // c
    return L(f"v_mul_u32_u24 v{q}, {magic}, v{src}\nv_lshrrev_b32 v{q}, 16, v{q}\nv_mul_u32_u24 v{r}, {c}, v{q}\nv_sub_u32 v{r}, v{src}, v{r}")
def sdivmod(q, r, src, c):
    magic = (65536 + c - 1) // c
    for x in range(1400): assert (x * magic) >> 16 == x // c
    return L(f"s_mul_i32 s{q}, s{src}, {magic}\ns_lshr_b32 s{q}, s{q}, 16\ns_mul_i32 s{r}, s{q}, {c}\ns_sub_u32 s{r}, s{src}, s{r}")

def stamp(k):
    if not STAMPS: return []
    return L(f"""s_memrealtime s[{sSt}:{sSt+1}]
s_memtime s[{sSt+2}:{sSt+3}]
s_waitcnt lgkmcnt(0)
v_writelane_b32 v{vSt}, s{sSt}, {2*k}
v_writelane_b32 v{vSt}, s{sSt+2}, {2*k+1}""")
def stamp_store(n):
    if not STAMPS: return []
    return stamp(n - 1) + L("s_waitcnt vmcnt(0)") + stamp(n) + L(f"""s_add_u32 s{sK}, s{pWs}, {hex(STAMP_OFF)}
s_addc_u32 s{sK+1}, s{pWs+1}, 0
s_mov_b32 s{sK+2}, {1024*256}
s_mov_b32 s{sK+3}, 0x20000
s_lshl2_add_u32 s{sT0}, s2, s{sW}
s_lshl_b32 s{sT0}, s{sT0}, 8
v_lshlrev_b32 v2, 2, v0
buffer_store_dword v{vSt}, v2, {sr(sK,4)}, s{sT0} offen""")

OUTL = []
def poll_load(dst, vaddr, soff, n=1, **kw):
    op = "buffer_load_dword" if n == 1 else "buffer_load_dwordx4"
    return I(f"{op} {vr(dst,n)}, v{vaddr}, {sr(sWS,4)}, {soff} offen sc1", **kw)
def poll_cmp(dst, n):
    if n == 1: return L(f"v_cmp_ne_u32 vcc, s{sNonce}, v{dst}")
    return L(f"""v_xor_b32 v{dst}, s{sNonce}, v{dst}
v_xor_b32 v{dst+1}, s{sNonce}, v{dst+1}
v_xor_b32 v{dst+2}, s{sNonce}, v{dst+2}
v_xor_b32 v{dst+3}, s{sNonce}, v{dst+3}
v_or3_b32 v{dst}, v{dst}, v{dst+1}, v{dst+2}
v_or_b32 v{dst}, v{dst}, v{dst+3}
v_cmp_ne_u32 vcc, 0, v{dst}""")
def poll_branch(name, dst, vaddr, soff, n=1):
    o = L(f"L_spin_{name}:\ns_mov_b32 s{sSpin}, {SPIN_MAX}\nL_spin2_{name}:")
    o += [poll_load(dst, vaddr, soff, n)] + L("s_waitcnt vmcnt(0)") + poll_cmp(dst, n)
    o += L(f"""s_nop 4
s_cbranch_vccz L_back_{name}
s_sleep 1
s_sub_u32 s{sSpin}, s{sSpin}, 1
s_cmp_lg_u32 s{sSpin}, 0
s_cbranch_scc1 L_spin2_{name}
s_branch L_back_{name}""")
    OUTL.append((f"spin_{name}", o))
    return L(f"s_cbranch_vccnz L_spin_{name}\nL_back_{name}:")
def late(lst, g):
    for x in lst: x.after = g
    return lst
def set_flag(soff, tag, **kw):
    return I(f"buffer_store_dword v{vNon}, v{vFo}, {sr(sWS,4)}, {soff} offen sc1", tag_r=tag, **kw)

KVF = os.environ.get("KVF", "")
def grp3(st, srdn, vo, so, mreg, moff, inc, flags=""):
    r = [I(f"s_add_u32 m0, s{mreg}, {sbase(st)+moff}")]
    for n in range(3):
        v = vo + n if vo != vL16 else vL16
        r.append(I(f"buffer_load_dwordx4 v{v}, {sr(srdn,4)}, s{so} offen offset:{1024*n} {flags} lds", tag_w=f"st{st}", rd=['stg']))
    if inc: r.append(I(f"s_add_u32 s{so}, s{so}, {inc}"))
    return r
def dma_stage(st):
    r = []
    if st <= 9:
        r += grp3(st, sWq, vWo, sOffX, sM6, 0, 16 * 12288, KVF) + grp3(st, sWq, vWo, sOffX, sM6, 3072, 48 * 12288, KVF)
    elif st <= 26:
        t = st - 10
        if t <= 15: r += grp3(st, sK, vKo, sOffK, sM3, 0, 12288, KVF)
        if t >= 1: r += grp3(st, sV, vVo, sOffV, sM3, 12288, 12288, KVF)
        u = st - 12
        if 0 <= u < 14:
            if u == 4: r += srd(sR, pWo, 6144 * 640 * 2)[:3] + L(f"s_mov_b32 s{sOffR}, s{sOffRo}")
            if u == 12: r += srd(sR, pWd, 1536 * 640 * 2)[:3] + L(f"s_mov_b32 s{sOffR}, s{sOffRd}")
            r.append(I(f"s_add_u32 m0, s{sM1}, {sbase(st)+24576}"))
            r.append(I(f"buffer_load_dwordx4 v{vRo if u < 4 else vRo2}, {sr(sR,4)}, s{sOffR} offen {KVF} lds", tag_w=f"st{st}", rd=['stg']))
            r.append(I(f"s_add_u32 s{sOffR}, s{sOffR}, {32*3072 if u < 4 else 32*1280}"))
    else:
        r += grp3(st, sWS, vL16, sOffG, sM6, 0, 3072, "sc1") + grp3(st, sWS, vL16, sOffG, sM6, 3072, 24576 - 3072, "sc1")
    return r
def pace(lst, lo, hi):
    vm = [x for x in lst if x.kind == 'vmem']
    for k, x in enumerate(vm): x.after = int(lo + k * (hi - lo) / len(vm))
    return lst
def barrier(tag, after=None): return I("s_barrier", tag_r=tag, wr=['stg'], after=after)

def acc1(T, j): return vAcc + ((T // 2) * 4 + j) * 8 + (T % 2) * 4
def w_reads(st, T):
    slot = aA1 + (T % 3) * 8
    p, t = T // 2, T % 2
    r = []
    for ks in range(2):
        for u in range(2): r += dsr("ds_read_b64_tr_b16", ar(slot + ks * 4 + u * 2, 2), vWa + p % 2, sbase(st), ks * 12288 + u * 6144 + (p // 2) * 128 + 8 * t, rd=['stg'])
    return r
def b_loads(base):
    r = []
    for u in range(2):
        for j in range(4):
            r.append(I(f"buffer_load_dwordx4 {rr((base[0], base[1]+(u*4+j)*4))}, v{vL16}, {sr(sWS,4)}, s{sOffB} offen offset:{1024*j} sc1"))
        r.append(I(f"s_add_u32 s{sOffB}, s{sOffB}, 4096"))
    return r
def k_reads(st, kt):
    r = []
    for s in range(6): r += dsr("ds_read_b128", ar(aK + kt * 24 + s * 4, 4), vKa + s % 2, sbase(st), kt * 6144 + (s // 2) * 128, rd=['stg'])
    return r
def v_reads(st, T):
    r = []
    for u in range(2): r += dsr("ds_read_b64_tr_b16", vr(vVs + (T % 6) * 4 + u * 2, 2), vVa + T % 4, sbase(st), 12288 + u * 6144 + (T // 4) * 128, rd=['stg'])
    return r
def prefetch(srdn, soff, flags=""):
    return I(f"buffer_load_dword v{vDum}, v{vL128}, {sr(srdn,4)}, {soff} offen {flags}")

BD1 = 2
def p1_step(sg, extra=()):
    last = sg == 9
    s = []
    vm = []
    if sg + BD1 <= 9: vm += b_loads(('a', 32 * ((sg + BD1) % 4)))
    vm += dma_stage(sg + 3) + list(extra)
    s += pace(vm, 1, 72)
    for T in range(12):
        if T + 2 < 12: s += w_reads(sg, T + 2)
        elif T == 10:
            s.append(barrier(f"st{sg+1}", after=72))
            s += w_reads(sg + 1, 0) if not last else k_reads(10, 0)
        elif not last: s += w_reads(sg + 1, 1)
        slot = aA1 + (T % 3) * 8
        for j in range(4):
            for ks in range(2):
                d = vr(acc1(T, j), 4)
                s.append(mfma(d, ar(slot + ks * 4, 4), ar(32 * (sg % 4) + (ks * 4 + j) * 4, 4), "0" if (sg == 0 and ks == 0) else d))
        if last and T % 2 == 1:
            p = T // 2
            for j in range(4):
                a = acc1(2 * p, j); q = vQ + (p * 4 + j) * 4
                for i in range(8): s.append(I(f"v_mul_f32 v{a+i}, s{sScale}, v{a+i}"))
                for i in range(4): s.append(I(f"v_cvt_pk_bf16_f32 v{q+i}, v{a+2*i}, v{a+2*i+1}"))
    return s

def Sreg(kt, j, t):
    if j < 2: return (vTmp if t == 0 else vS01) + (j * 2 + kt) * 4
    return vS23 + (t % 2) * 16 + ((j - 2) * 2 + kt) * 4
def Preg(j, t):
    if j < 2: return vP01 + (t % 2) * 8 + j * 4
    return (vTmp + 8 if t == 15 else vP23) + (j - 2) * 4
def qk(kt, t):
    s = []
    for j in range(4):
        d = vr(Sreg(kt, j, t), 4)
        for p in range(6):
            c = d if p else ("0" if t == 0 else vr(vNm + 4 * j, 4))
            s.append(mfma(d, ar(aK + kt * 24 + p * 4, 4), vr(vQ + (p * 4 + j) * 4, 4), c))
    return s
def softmax(j, t):
    s = []
    for kt in range(2):
        a = Sreg(kt, j, t)
        for i in range(4): s.append(I(f"v_exp_f32 v{a+i}, v{a+i}"))
        for i in range(4): s.append(I(f"v_add_f32 v{vLs+j}, v{vLs+j}, v{a+i}"))
        for i in range(2): s.append(I(f"v_cvt_pk_bf16_f32 v{Preg(j,t)+kt*2+i}, v{a+2*i}, v{a+2*i+1}"))
    return s
def pv_T(T, t):
    s = []
    for j in range(4):
        d = ar((T * 4 + j) * 4, 4)
        s.append(mfma(d, vr(vVs + (T % 6) * 4, 4), vr(Preg(j, t), 4), "0" if t == 0 else d))
    return s

def p2_iter(t, base=0, extra=(), post=(), btag=()):
    st = 11 + t
    s = []
    s += k_reads(st, 1)
    u = st - 12
    if u >= 0:
        for h in range(2): s += dsr("ds_read_b64_tr_b16", ar(aR + 2 * h, 2), vRa, sbase(st), 24576 + 2048 * h, rd=['stg'])
    s += pace(dma_stage(st + 3) + list(extra), base + 4, base + 68)
    if t > 0: s += softmax(2, t) + softmax(3, t)
    s += qk(0, t + 1) + qk(1, t + 1)
    for T in range(6): s += v_reads(st, T)
    s += softmax(0, t + 1) + softmax(1, t + 1)
    if t == 14: s += softmax(2, 15) + softmax(3, 15)
    for T in range(12):
        s += pv_T(T, t)
        if T < 6: s += v_reads(st, T + 6)
        if T == 5:
            s.append(barrier([f"st{st+1}"] + list(btag), after=base + 70))
            if t < 14: s += k_reads(st + 1, 0)
            if u >= 0:
                if u == 4: s += L(f"s_mov_b32 s{sOffD}, s{sOffDo}")
                if u == 12: s += L(f"s_mov_b32 s{sOffD}, s{sOffDd}")
                s.append(I(f"buffer_store_dwordx4 {ar(aR,4)}, v{vL16}, {sr(sWS,4)}, s{sOffD} offen sc1", after=base + 80, tag_w="Gst" if u < 4 else "Wst"))
                s.append(I(f"s_add_u32 s{sOffD}, s{sOffD}, {6144 if u < 4 else 10240 if u < 12 else 5120}"))
        if t == 14 and T >= 6: s += v_reads(st + 1, T - 6)
    s += list(post)
    return s

def first_tile():
    s = []
    s += k_reads(10, 1)
    s += pace(dma_stage(13), 96 + 2, 96 + 30)
    s += qk(0, 0)
    s.append(barrier("st11", after=96 + 28))
    s += k_reads(11, 0)
    s += qk(1, 0)
    for j in range(4):
        a = Sreg(0, j, 0); b = Sreg(1, j, 0); m = vNm + 4 * j; t = m + 1
        s += L(f"""v_max3_f32 v{m}, v{a}, v{a+1}, v{a+2}
v_max3_f32 v{m}, v{m}, v{a+3}, v{b}
v_max3_f32 v{m}, v{m}, v{b+1}, v{b+2}
v_max_f32 v{m}, v{m}, v{b+3}""")
        s += xreduce(m, t, "v_max_f32")
        s += L(f"v_sub_f32 v{m+1}, 0, v{m}\nv_sub_f32 v{m+2}, 0, v{m}\nv_sub_f32 v{m+3}, 0, v{m}\nv_sub_f32 v{m}, 0, v{m}")
        for i in range(4):
            s.append(I(f"v_add_f32 v{a+i}, v{a+i}, v{m}")); s.append(I(f"v_add_f32 v{b+i}, v{b+i}, v{m}"))
    for j in range(4): s += softmax(j, 0)
    return s

vGA = 160; vOP = 184
BBUF = [('a', 192), ('a', 224), ('v', 208), ('a', 0)]
def g_reads(n, tagr='stg'):
    ds, grp = n // 6, n % 6
    slot = vGA + (n % 3) * 8
    r = []
    for ks in range(2): r += dsr("ds_read_b128", vr(slot + ks * 4, 4), vGa, sbase(27 + ds // 2), (((ds % 2) * 2 + ks) * 6 + grp) * 1024, rd=[tagr])
    return r
def acc3(grp, j): return vAcc + (grp * 4 + j) * 4

def tail_pv(base):
    s = L(f"s_sub_u32 s{sOffB}, s{sOffB}, {20*4096}")
    s += pace(b_loads(BBUF[0]), base - 8, base + 22)
    for T in range(12):
        s += pv_T(T, 15)
        if T < 6: s += v_reads(26, T + 6)
        if T == 5:
            s.append(barrier("st27", after=base + 24))
            s += g_reads(0) + g_reads(1)
            s += pace(b_loads(BBUF[1]), base + 22, base + 48)
    for j in range(4): s += xreduce(vLs + j, vTmp + j, "v_add_f32")
    s += L(f"""v_add_f32 v{vTmp}, v{vLs}, v{vLs+1}
v_add_f32 v{vTmp+1}, v{vLs+2}, v{vLs+3}
v_add_f32 v{vTmp}, v{vTmp}, v{vTmp+1}
v_cmp_ngt_f32 vcc, {hex(f2u(2.0**40))}, v{vTmp}""")
    for j in range(4): s.append(I(f"v_rcp_f32 v{vLs+j}, v{vLs+j}"))
    return s

def split(lst):
    ch = []; cur = []
    for x in lst:
        cur.append(x)
        if x.kind == 'vmem': ch.append(cur); cur = []
    if cur: ch[-1] += cur
    return ch
def merge(qs):
    qs = [list(q) for q in qs]
    w = [len(q) for q in qs]; tot = sum(w); acc = [0.0] * len(qs); seq = []
    for k in range(tot):
        for z in range(len(qs)): acc[z] += w[z]
        z = max((z for z in range(len(qs)) if qs[z]), key=lambda z: acc[z])
        acc[z] -= tot; seq.append(qs[z].pop(0))
    return seq

vOA = 32; vOB = 33; vDA = 34; vDB = 35
vOa = 40; vPo = 41; vFa = 42; vFa2 = 43; vFl = 44
vAc = 64; vDc = 144; vPk = 164; vXr = 204; vPl = 64
def fA(e, t, ks): return e * 72 + (t * 2 + ks) * 4
def fB(e, j, ks): return 40 + e * 72 + (ks * 4 + j) * 4
def dA(e, n): return (144 if e == 0 else 0) + n * 4
def dB(e, ks): return (144 if e == 0 else 0) + 80 + ks * 4
def dmaA(sg, rd='stg'):
    r = []
    if sg == 24: r += L(f"s_mov_b32 s{sOffA}, s{sOffRo}")
    r.append(I(f"s_add_u32 m0, s{sM5}, {obase(sg)}"))
    for n in range(5):
        if n == 4: r += L(f"s_add_u32 m0, s{sM5}, {obase(sg)+4096}\ns_add_u32 s{sOffA}, s{sOffA}, 4096")
        r.append(I(f"buffer_load_dwordx4 v{vL16}, {sr(sWS,4)}, s{sOffA} offen offset:{1024*(n%4)} sc1 lds", tag_w=f"ot{sg}", rd=[rd]))
    r.append(I(f"s_add_u32 s{sOffA}, s{sOffA}, {20480-4096}"))
    return r
def dmaB(sg, rd='stg'):
    r = []
    if sg == 24: r += L(f"s_mov_b32 s{sOffBB}, s{sOffRd}")
    r.append(I(f"s_add_u32 m0, s{sM4}, {obase(sg)+20480}"))
    for n in range(4):
        r.append(I(f"buffer_load_dwordx4 v{vL16}, {sr(sWS,4)}, s{sOffBB} offen offset:{1024*n} sc1 lds", tag_w=f"ot{sg}", rd=[rd]))
    r.append(I(f"s_add_u32 s{sOffBB}, s{sOffBB}, {8192 if sg < 24 else 16384}"))
    return r
def o_reads(sg):
    e = sg % 2; kw = dict(rd=['stg'], tag_w=f"rd{sg}")
    r = []
    if sg < 24:
        for ks in range(2): r += dsr("ds_read_b128", ar(fA(e, 0, ks), 4), vOA, obase(sg), ks * 10240, **kw)
        for j in range(4):
            for ks in range(2): r += dsr("ds_read_b128", ar(fB(e, j, ks), 4), vOB, obase(sg), ks * 8192 + j * 1024, **kw)
        for t in range(1, 5):
            for ks in range(2): r += dsr("ds_read_b128", ar(fA(e, t, ks), 4), vOA, obase(sg), (ks * 10 + t) * 1024, **kw)
    else:
        for ks in range(4): r += dsr("ds_read_b128", ar(dB(e, ks), 4), vDB, obase(sg), ks * 4096, **kw)
        for T in range(5):
            for ks in range(4): r += dsr("ds_read_b128", ar(dA(e, ks * 5 + T), 4), vDA, obase(sg), (ks * 5 + T) * 1024, **kw)
    return r
def o_block(sg, extra=(), pre=(), mid=(), exfirst=False):
    e = sg % 2
    n = 40 if sg < 24 else 20
    s = list(pre)
    if sg < 35:
        s += [I("s_barrier", tag_r=[f"ot{sg+1}", f"rd{sg}"], wr=['stg'], after=2 if sg < 24 else 0)]
        s += o_reads(sg + 1)
    vm = []
    if sg + 4 <= 35:
        db = dmaB(sg + 4)
        vm = split(db[:2] + list(mid) + db[2:] + dmaA(sg + 4))
    ex = split(list(extra)) if any(x.kind == 'vmem' for x in extra) else []
    if exfirst: seq = list(extra) + [x for ch in vm for x in ch]
    else: seq = [x for ch in merge([vm, ex]) for x in ch] if ex else [x for ch in vm for x in ch] + list(extra)
    if any(x.kind == 'vmem' for x in seq): pace(seq, 3 if sg < 24 else 1, n)
    s += seq
    if sg < 24:
        for t in range(5):
            for j in range(4):
                for ks in range(2):
                    d = vr(vAc + (t * 4 + j) * 4, 4)
                    s.append(mfma(d, ar(fA(e, t, ks), 4), ar(fB(e, j, ks), 4), "0" if (sg == 0 and ks == 0) else d))
    else:
        for T in range(5):
            d = vr(vDc + T * 4, 4)
            for ks in range(4): s.append(mfma(d, ar(dA(e, ks * 5 + T), 4), ar(dB(e, ks), 4), "0" if (sg == 24 and ks == 0) else d))
    return s

OF = PAR('OF', 4); OC = PAR('OC', 7); WC = PAR('WC', 5)
vFo2 = 37
def p3_steps():
    oe = []
    n = 0
    for p in range(6):
        for j in range(4):
            t = vTmp + (n % 2) * 8; o = vOP + (n % 6) * 4
            it = []
            for tt in range(2):
                for i in range(4): it.append(I(f"v_accvgpr_read_b32 v{t+tt*4+i}, a{((2*p+tt)*4+j)*4+i}"))
            for i in range(8): it.append(I(f"v_mul_f32 v{t+i}, v{t+i}, v{vLs+j}"))
            for i in range(4): it.append(I(f"v_cvt_pk_bf16_f32 v{o+i}, v{t+2*i}, v{t+2*i+1}"))
            it.append(I(f"buffer_store_dwordx4 {vr(o,4)}, v{vL16}, {sr(sWS,4)}, s{sOffO} offen offset:{1024*j} sc1", tag_w="Ost"))
            if j == 3: it.append(I(f"s_add_u32 s{sOffO}, s{sOffO}, 4096"))
            oe.append(it); n += 1
    nst = [int(x) for x in os.environ.get("NST", "6,6,6,6,0,0,0,0,0,0").split(",")]
    g29, g30, g31 = split(dma_stage(29)), split(dma_stage(30)), split(dma_stage(31))
    dm = {0: g29[:3], 1: g29[3:], 2: g30[:3], 3: g30[3:], 4: g31}
    dm[WC + 1] = split(dmaA(0, 'x'))
    for k, stp in ((1, 6), (2, 8)):
        dm.setdefault(max(stp, WC + 2), []); dm[max(stp, WC + 2)] += split(dmaA(k, 'x'))
    for k, stp in ((0, OC + 1), (1, OC + 1), (2, max(8, OC + 1))):
        if stp <= 9: dm.setdefault(stp, []); dm[stp] = dm[stp] + split(dmaB(k, 'x'))
    steps = []
    for ds in range(10):
        s = []
        take = split(b_loads(BBUF[(ds + 2) % 4])) if ds + 2 < 10 else []
        st = [oe.pop(0) for _ in range(nst[ds])]
        seq = merge([take, dm.get(ds, []), st])
        if ds == 2: seq.insert(0, [set_flag(f"s{sFg}", None)])
        if ds == WC: seq.insert(0, L(f"s_mov_b32 s{sT0}, {hex(FW)}") + [poll_load(vFl, vL16, f"s{sT0}", 4)])
        if ds == OF: seq.append([set_flag(f"s{sFl}", "Ost")])
        if ds == OC: seq.insert(len(seq) // 3, [poll_load(vFo2, vFa, f"s{sT1}")])
        flat = [x for ch in seq for x in ch]
        s += ('pace', flat),
        for grp in range(6):
            n = ds * 6 + grp
            if n + 2 < 60:
                if (n + 2) % 12 == 0:
                    stg = 27 + (n + 2) // 12
                    tags = [f"st{stg}"] + (["Wst"] if stg == 28 else [])
                    s.append(I("s_barrier", tag_r=tags, wr=['stg2'], after=24))
                s += g_reads(n + 2, 'stg2')
            slot = vGA + (n % 3) * 8
            B = BBUF[ds % 4]
            for j in range(4):
                for ks in range(2):
                    d = vr(acc3(grp, j), 4)
                    s.append(mfma(d, vr(slot + ks * 4, 4), rr((B[0], B[1] + (ks * 4 + j) * 4)), "0" if (ds == 0 and ks == 0) else d))
            if ds == 9 and grp % 2 == 1: s += h_epilogue(grp // 2)
        steps.append(s)
    assert not oe
    return steps
def h_epilogue(T3):
    s = []
    if True:
        for jp in range(2):
            o = vOP + ((T3 * 2 + jp) % 6) * 4
            for jj in range(2):
                j = jp * 2 + jj
                g = acc3(2 * T3, j); u = acc3(2 * T3 + 1, j)
                for i in range(4): s.append(I(f"v_mul_f32 v{g+i}, v{g+i}, v{u+i}"))
                for i in range(2): s.append(I(f"v_cvt_pk_bf16_f32 v{o+jj*2+i}, v{g+2*i}, v{g+2*i+1}"))
            for i in range(2): s.append(I(f"v_permlane32_swap_b32 v{o+i}, v{o+2+i}"))
            s.append(I(f"buffer_store_dwordx4 {vr(o,4)}, v{vT}, {sr(sWS,4)}, s{sOffH+T3} offen offset:{2048*jp} sc1", tag_w="Hst"))
    return s
def join_steps(steps, n=48):
    out = []
    for k, s in enumerate(steps):
        base = k * n
        for x in s:
            if isinstance(x, tuple):
                if any(y.kind == 'vmem' for y in x[1]): pace(x[1], base, base + n - 1)
                out += x[1]
            else:
                if x.after is not None: x.after += base
                out.append(x)
    return out

def gen_fallback():
    F = Prog()
    vK = 232; vS = 176; vP = 208
    vf, vv, va = 48, 49, 50
    sK_, sV_ = sK, sV
    def kload():
        return [I(f"buffer_load_dwordx4 {vr(vK+4*p,4)}, v{vf}, {sr(sK_,4)}, s{sT0} offen offset:{64*p}") for p in range(6)] + L(f"s_add_u32 s{sT0}, s{sT0}, 6144")
    def chains(kt, c0):
        s = []
        for j in range(4):
            d = vr(vS + (j * 2 + kt) * 4, 4)
            for p in range(6): s.append(mfma(d, vr(vK + 4 * p, 4), vr(vQ + (p * 4 + j) * 4, 4), d if p else c0(j)))
        return s
    c = L("L_fb:\ns_waitcnt vmcnt(0) lgkmcnt(0)\ns_nop 15")
    c += L(f"""v_and_b32 v54, 15, v0
v_lshrrev_b32 v55, 4, v0
v_mul_u32_u24 v{vf}, 384, v54
v_lshl_add_u32 v{vf}, v55, 4, v{vf}
v_lshrrev_b32 v56, 3, v0
v_and_b32 v57, 7, v0
v_and_b32 v58, 6, v56
v_xor_b32 v57, v57, v58
v_mul_u32_u24 v{vv}, 384, v56
v_lshl_add_u32 v{vv}, v57, 4, v{vv}
v_lshrrev_b32 v56, 2, v54
v_lshl_add_u32 v56, v55, 2, v56
v_bfe_u32 v57, v56, 1, 2
v_lshlrev_b32 v56, 7, v56
v_and_b32 v58, 3, v0
v_lshl_add_u32 v56, v58, 3, v56
s_lshl_b32 s{sT2}, s{sW}, 12
s_add_u32 s{sT2}, s{sT2}, {LDS_X}
v_add_u32 v56, s{sT2}, v56""")
    for x in range(4): c += L(f"v_xor_b32 v58, {x}, v57\nv_lshl_add_u32 v{va+x}, v58, 5, v56")
    c += L(f"""s_mul_i32 s{sT1}, s{sH}, 786432
s_add_u32 s{sT1}, s{sT1}, {1536*384}
s_mov_b32 s{sT0}, s{sT1}
s_mov_b32 s{sSpin}, 0""")
    for j in range(4): c += L(f"v_mov_b32 v{vNm+4*j}, 0xff800000")
    F.block("a", c)
    c = L("L_fb1:") + kload() + chains(0, lambda j: "0")
    for j in range(4):
        a = vS + j * 8; m = vNm + 4 * j
        c += L(f"v_max3_f32 v{m}, v{m}, v{a}, v{a+1}\nv_max3_f32 v{m}, v{m}, v{a+2}, v{a+3}")
    c += L(f"s_add_u32 s{sSpin}, s{sSpin}, 1\ns_cmp_lt_u32 s{sSpin}, 32\ns_cbranch_scc1 L_fb1")
    F.block("b", c)
    c = []
    for j in range(4):
        m = vNm + 4 * j
        c += xreduce(m, m + 1, "v_max_f32")
        c += L(f"v_sub_f32 v{m+1}, 0, v{m}\nv_sub_f32 v{m+2}, 0, v{m}\nv_sub_f32 v{m+3}, 0, v{m}\nv_sub_f32 v{m}, 0, v{m}\nv_mov_b32 v{vLs+j}, 0")
    for i in range(192): c.append(I(f"v_accvgpr_write_b32 a{i}, 0"))
    c += L(f"s_mov_b32 s{sT0}, s{sT1}\ns_mov_b32 s{sSpin}, 0")
    F.block("c", c)
    c = L("L_fb2:")
    for kt in range(2): c += kload() + chains(kt, lambda j: vr(vNm + 4 * j, 4)) + L("s_nop 7")
    for j in range(4):
        for kt in range(2):
            a = vS + (j * 2 + kt) * 4
            for i in range(4): c.append(I(f"v_exp_f32 v{a+i}, v{a+i}"))
            for i in range(4): c.append(I(f"v_add_f32 v{vLs+j}, v{vLs+j}, v{a+i}"))
            for i in range(2): c.append(I(f"v_cvt_pk_bf16_f32 v{vP+j*4+kt*2+i}, v{a+2*i}, v{a+2*i+1}"))
    for cg in range(3):
        for a in range(4):
            c += L(f"""s_add_u32 m0, s{sT2}, {1024*a}
s_add_u32 s{sOffP}, s{sT1}, {3072*a+128*cg}
buffer_load_dwordx4 v{vv}, {sr(sV_,4)}, s{sOffP} offen lds""")
        c += L("s_waitcnt vmcnt(0)")
        for x in range(4):
            for u in range(2): c.append(I(f"ds_read_b64_tr_b16 {vr(vK+4*x+2*u,2)}, v{va+x} offset:{2048*u}"))
        c += L("s_waitcnt lgkmcnt(0)")
        for x in range(4):
            for j in range(4):
                d = ar(((cg * 4 + x) * 4 + j) * 4, 4)
                c.append(mfma(d, vr(vK + 4 * x, 4), vr(vP + 4 * j, 4), d))
        c += L("s_nop 7")
    c += L(f"s_add_u32 s{sT1}, s{sT1}, 12288\ns_add_u32 s{sSpin}, s{sSpin}, 1\ns_cmp_lt_u32 s{sSpin}, 16\ns_cbranch_scc1 L_fb2")
    F.block("d", c)
    c = []
    for j in range(4): c += xreduce(vLs + j, vTmp + j, "v_add_f32")
    for j in range(4): c.append(I(f"v_rcp_f32 v{vLs+j}, v{vLs+j}"))
    c += L("s_nop 15\ns_branch L_fb_back")
    F.block("e", c)
    F.trace = [("a", {}), ("b", {}), ("b", {}), ("c", {}), ("d", {}), ("d", {}), ("e", {})]
    F.insert_waits(); F.fix_hazards()
    return F.text()


def gen(dbg=False):
    P = Prog()
    OUTL.clear(); AD.clear()
    for i in range(2): AD[vWa + i] = Addr(vWa + i, 0); AD[vKa + i] = Addr(vKa + i, 0)
    for i in range(4): AD[vVa + i] = Addr(vVa + i, 0)
    AD[vRa] = Addr(vRa, sbase(12)); AD[vGa] = Addr(vGa, sbase(27))
    AD[vOA] = Addr(vOA, obase(0)); AD[vOB] = Addr(vOB, obase(0)); AD[vDA] = Addr(vDA, obase(24)); AD[vDB] = Addr(vDB, obase(24))
    nblk = [0]
    def blk(ins, name=None):
        nm = name or f"b{nblk[0]}"; nblk[0] += 1
        P.block(nm, ins); P.trace.append((nm, {}))
    CPA = PAR("CPA", 10000)
    cp = [3]
    def sch(s, name, **kw):
        if name.startswith("p2_") or name.startswith("p1_"):
            if "nost" in KN: s = [x for x in s if not (x.kind == 'vmem' and 'store_dwordx4' in x.text)]
            if "nobar" in KN: s = [x for x in s if x.kind != 'barrier']
            if "novm" in KN: s = [x for x in s if not (x.kind == 'vmem' and 'dwordx4' in x.text and 'v[48:51]' not in x.text)]
            if "novalu" in KN and name.startswith("p2_"): s = [x for x in s if not (x.kind in ('valu', 'trans') and x.text.startswith(('v_exp', 'v_add_f32', 'v_cvt')))]
        if name.startswith("p3"):
            if "p3nost" in KN: s = [x for x in s if not (x.kind == 'vmem' and 'store_dwordx4' in x.text)]
            if "p3nob" in KN: s = [x for x in s if not (x.kind == 'vmem' and 'load_dwordx4' in x.text and ' lds' not in x.text and f"s{sOffB} " in x.text)]
            if "p3novalu" in KN: s = [x for x in s if not (x.kind == 'valu' and x.text.startswith(('v_accvgpr', 'v_mul_f32', 'v_cvt')))]
            if "p3plain" in KN:
                for x in s:
                    if 'store_dwordx4' in x.text: x.text = x.text.replace(" sc1", "")
            if "p3nt" in KN:
                for x in s:
                    if 'store_dwordx4' in x.text: x.text = x.text.replace(" sc1", " sc1 nt")
        pos = sum(isize(x) for b in P.blocks for x in b[1]) * 1.03
        end = pos + sum(isize(x) for x in s) * 1.03
        nm = sum(1 for x in s if x.kind == 'mfma')
        while "nocp" not in KN and cp[0] * 8192 < end + CPA and cp[0] < NSLICE:
            g = int(max(0, min(nm - 2, (cp[0] * 8192 - CPA - pos) / (end - pos) * nm)))
            k = next((i for i, x in enumerate(s) if x.kind == 'vmem' and x.after is not None and x.after > g), len(s))
            s = s[:k] + [I(f"global_load_dword v{vDum}, v{vL16}, s[62:63]", after=g), I("s_add_u32 s62, s62, 0x2000"), I("s_addc_u32 s63, s63, 0")] + s[k:]
            cp[0] += 1
        blk(schedule(s, name, verbose=dbg and "v" in KN, **kw), name)
    c = L(f"""s_cmp_ge_u32 s2, 256
s_cbranch_scc1 L_end
s_load_dwordx16 s[64:79], s[0:1], 0
s_load_dwordx8 s[80:87], s[0:1], 64
s_memrealtime s[{sSt}:{sSt+1}]
s_getpc_b64 s[62:63]
v_lshrrev_b32 v30, 6, v0
v_and_b32 v0, 63, v0
v_readfirstlane_b32 s{sW}, v30
v_lshlrev_b32 v{vL16}, 4, v0
v_lshlrev_b32 v{vL128}, 7, v0
v_and_b32 v48, 7, v0
v_lshrrev_b32 v49, 3, v0
v_mul_u32_u24 v60, 1280, v48
v_lshl_add_u32 v50, v49, 4, v60
v_lshl_add_u32 v50, v30, 7, v50
s_mul_i32 s{sT0}, s2, {8*1280}
s_and_b32 s{sT1}, s2, 7
s_lshr_b32 s{sT2}, s2, 3
s_and_b32 s{sH}, s{sT2}, 3
s_lshl2_add_u32 s{sH}, s{sT1}, s{sH}
s_lshr_b32 s{sB}, s{sT2}, 2
s_lshr_b32 s{sS}, s{sT1}, 1
s_and_b32 s{sT1}, s{sT1}, 1
s_lshl3_add_u32 s{sMb}, s{sT1}, s{sB}
s_and_b32 s{sNb}, s{sT2}, 3
v_cmp_eq_u32 vcc, 0, v0
v_bfrev_b32 v51, 1
v_cndmask_b32 v{vFo}, v51, 0, vcc
v_cmp_gt_u32 vcc, 2, v30
v_add_u32 v53, 1024, v50
v_cndmask_b32 v53, v51, v53, vcc
s_lshl2_add_u32 s{sT2}, s{sT2}, s{sW}
s_and_b32 s{sT2}, s{sT2}, 15
s_min_u32 s{sT2}, s{sT2}, CODE_SLICES-1
s_lshl_b32 s{sT2}, s{sT2}, 13
v_add_u32 v52, s{sT2}, v{vL128}
global_load_dword a{aDum}, v52, s[62:63]""")
    if STAMPS: c += L(f"v_mov_b32 v{vSt}, 0")
    c += L("s_waitcnt lgkmcnt(0)")
    c += srd(sXin, pX, 2048 * 640 * 2)
    c += L(f"""buffer_load_dwordx4 v[64:67], v50, {sr(sXin,4)}, s{sT0} offen
buffer_load_dwordx4 v[68:71], v50, {sr(sXin,4)}, s{sT0} offen offset:512
buffer_load_dwordx4 v[72:75], v53, {sr(sXin,4)}, s{sT0} offen
buffer_load_ushort v76, v60, {sr(sXin,4)}, s{sT0} offen""")
    c += srd(sR, pDbg, 256)
    c += L(f"""s_or_b32 s{sNonce}, s{sSt}, 1
v_mov_b32 v54, s{sNonce}
v_mov_b32 v55, 0
s_or_b32 s{sT1}, s2, s{sW}
s_cmp_eq_u32 s{sT1}, 0
s_cselect_b32 s{sT1}, 0, 0x100
buffer_atomic_cmpswap v[54:55], v{vFo}, {sr(sR,4)}, s{sT1} offen sc1
s_nop 1""")
    c += stamp(0)
    for n in range(3):
        c.append(I(f"v_add_u32 v54, {64*n}, v0"))
        c += divmod_const(55, 56, 54, 24)
        c += L(f"""v_and_b32 v57, 6, v55
v_xor_b32 v57, v56, v57
v_lshlrev_b32 v57, 4, v57
v_subrev_u32 v57, {1024*n}, v57
v_mul_u32_u24 v58, 384, v55
v_add_u32 v{vVo+n}, v58, v57
v_and_b32 v59, 4, v55
v_add_u32 v59, v59, v55
v_mul_u32_u24 v59, 12288, v59
v_add_u32 v{vWo+n}, v59, v57
v_lshrrev_b32 v59, 1, v55
v_lshl_add_u32 v59, v30, 2, v59
v_and_b32 v59, 7, v59
v_xor_b32 v59, v56, v59
v_lshlrev_b32 v59, 4, v59
v_subrev_u32 v59, {1024*n}, v59
v_add_u32 v{vKo+n}, v58, v59""")
    c += srd(sWq, pWq, 640 * 6144 * 2) + srd(sWS, pWs, WS_SIZE)
    c += L(f"""s_lshr_b32 s{sT0}, s{sW}, 1
s_and_b32 s{sT1}, s{sW}, 1
s_lshl_b32 s{sT2}, s{sT0}, 5
s_lshl2_add_u32 s{sT2}, s{sT1}, s{sT2}
s_mul_i32 s{sOffX}, s{sT2}, 12288
s_mul_i32 s{sT2}, s{sH}, 384
s_add_u32 s{sOffX}, s{sOffX}, s{sT2}
s_mul_i32 s{sM6}, s{sW}, 6144""")
    c += dma_stage(0) + dma_stage(1) + dma_stage(2)
    c += L(f"v_mov_b32 v60, 0\nbuffer_load_dword v{vNon}, v60, {sr(sR,4)}, 0 offen sc1")
    c += L(f"""v_lshlrev_b32 v58, 3, v48
v_add_u32 v58, {LDS_X}, v58
v_lshl_add_u32 v59, v30, 6, v58
v_lshrrev_b32 v56, 2, v49
v_lshl_add_u32 v56, v30, 1, v56
v_lshlrev_b32 v56, 12, v56
v_and_b32 v57, 3, v49
v_lshl_add_u32 v56, v57, 8, v56
v_lshl_add_u32 v56, v48, 4, v56
v_add_u32 v57, {16*4096}, v56
v_cndmask_b32 v57, v51, v57, vcc
s_lshr_b32 s{sT2}, s2, 3
s_mul_i32 s{sT2}, s{sT2}, {20*4096}
s_bfe_u32 s{sT3}, s2, 0x20001
s_lshl_b32 s{sT3}, s{sT3}, 10
s_add_u32 s{sT2}, s{sT2}, s{sT3}
s_and_b32 s{sT3}, s2, 1
s_lshl_b32 s{sT3}, s{sT3}, 7
s_add_u32 s{sT2}, s{sT2}, s{sT3}
s_add_u32 s{sT3}, s{sT2}, {8*4096}
s_cmp_lt_u32 s{sW}, 2
s_cselect_b32 s{sSpin}, 1.0, 0""")
    c += L("v_lshlrev_b32 v76, 16, v76\nv_mov_b32 v77, v76")
    for i in range(12):
        c += L(f"v_lshlrev_b32 v{80+2*i}, 16, v{64+i}\nv_and_b32 v{81+2*i}, 0xffff0000, v{64+i}")
        c += L(f"v_pk_add_f32 v[{112+2*i}:{113+2*i}], v[{80+2*i}:{81+2*i}], v[76:77] neg_lo:[0,1] neg_hi:[0,1]")
    for i in range(12):
        a = 104 if i < 8 else 108
        d = vr(112 + 2 * i, 2)
        if i in (0, 8): c += L(f"v_pk_mul_f32 v[{a+2}:{a+3}], {d}, {d}\nv_mov_b32 v{a}, v{112+2*i}\nv_mov_b32 v{a+1}, v{113+2*i}")
        else: c += L(f"v_pk_fma_f32 v[{a+2}:{a+3}], {d}, {d}, v[{a+2}:{a+3}]\nv_pk_add_f32 v[{a}:{a+1}], v[{a}:{a+1}], {d}")
    c += L(f"""v_add_f32 v104, v104, v105
v_add_f32 v105, v106, v107
v_add_f32 v108, v108, v109
v_add_f32 v109, v110, v111
v_fmac_f32 v104, s{sSpin}, v108
v_fmac_f32 v105, s{sSpin}, v109
s_nop 1
v_add_f32_dpp v104, v104, v104 row_ror:8 row_mask:0xf bank_mask:0xf
v_add_f32_dpp v105, v105, v105 row_ror:8 row_mask:0xf bank_mask:0xf""")
    ra, rb = xreduce(104, 106, "v_add_f32"), xreduce(105, 107, "v_add_f32")
    for x, y in zip(ra, rb): c += [x, y]
    c += L(f"""ds_write_b64 v59, v[104:105]
s_waitcnt lgkmcnt(0)
s_barrier
ds_read_b64 v[104:105], v58
ds_read_b64 v[106:107], v58 offset:64
ds_read_b64 v[108:109], v58 offset:128
ds_read_b64 v[110:111], v58 offset:192
v_pk_add_f32 v[104:105], v[104:105], v[106:107]
v_pk_add_f32 v[108:109], v[108:109], v[110:111]
v_pk_add_f32 v[104:105], v[104:105], v[108:109]
v_mul_f32 v104, {hex(f2u(1.0/640))}, v104
v_mul_f32 v105, {hex(f2u(1.0/640))}, v105
v_fma_f32 v105, -v104, v104, v105
v_max_f32 v105, 0, v105
v_add_f32 v104, v104, v76
v_cvt_pk_bf16_f32 v104, v105, v104
v_and_b32 v108, 0xffff0000, v104
v_lshlrev_b32 v104, 16, v104
v_add_f32 v104, {hex(f2u(1e-5))}, v104
v_cvt_pk_bf16_f32 v104, v104, v104
v_lshlrev_b32 v104, 16, v104
v_sqrt_f32 v104, v104
v_mov_b32 v109, v108
v_cvt_pk_bf16_f32 v104, v104, v104
v_lshlrev_b32 v104, 16, v104
v_rcp_f32 v104, v104
s_nop 0
v_mov_b32 v105, v104""")
    for i in range(12):
        d = vr(80 + 2 * i, 2)
        c += L(f"""v_pk_add_f32 {d}, {d}, v[108:109] neg_lo:[0,1] neg_hi:[0,1]
v_pk_mul_f32 {d}, {d}, v[104:105]
v_cvt_pk_bf16_f32 v{64+i}, v{80+2*i}, v{81+2*i}""")
        if i == 3: c.append(I(f"buffer_store_dwordx4 v[64:67], v56, {sr(sWS,4)}, s{sT2} offen sc1"))
        if i == 7: c.append(I(f"buffer_store_dwordx4 v[68:71], v56, {sr(sWS,4)}, s{sT3} offen sc1"))
        if i == 11: c.append(I(f"buffer_store_dwordx4 v[72:75], v57, {sr(sWS,4)}, s{sT2} offen sc1"))
    c += stamp(1)
    c += L(f"""s_lshl2_add_u32 s{sQg}, s{sB}, s{sW}
s_mul_i32 s{sOffB}, s{sQg}, {20*4096}
s_mul_i32 s{sOffG}, s{sH}, {20*6144}
s_add_u32 s{sOffG}, s{sOffG}, s{sM6}
s_add_u32 s{sOffG}, s{sOffG}, {hex(GP_OFF)}
s_mul_i32 s{sM3}, s{sW}, 3072
s_lshl_b32 s{sM1}, s{sW}, 10
s_mul_i32 s{sM5}, s{sW}, 5120
s_lshl_b32 s{sM4}, s{sW}, 12
s_mul_i32 s{sOffK}, s{sH}, 786432
s_add_u32 s{sOffK}, s{sOffK}, {1536*384}
s_mul_i32 s{sPf}, s{sQg}, 6144
s_add_u32 s{sPf}, s{sPf}, s{sOffK}
s_add_u32 s{sOffK}, s{sOffK}, s{sM3}
s_mov_b32 s{sOffV}, s{sOffK}
s_mul_i32 s{sT2}, s{sQg}, {240*4096}
s_add_u32 s{sT2}, s{sT2}, {hex(OH_OFF)}
s_mul_i32 s{sT3}, s{sH}, {6*4096}
s_add_u32 s{sOffO}, s{sT2}, s{sT3}
s_add_u32 s{sT2}, s{sT2}, {192*4096}
s_mul_i32 s{sT3}, s{sH}, 3""")
    for T3 in range(3):
        c += L(f"""s_lshr_b32 s{sSpin}, s{sT3}, 1
s_lshl_b32 s{sSpin}, s{sSpin}, 12
s_add_u32 s{sOffH+T3}, s{sT2}, s{sSpin}
s_and_b32 s{sSpin}, s{sT3}, 1
s_lshl_b32 s{sSpin}, s{sSpin}, 9
s_add_u32 s{sOffH+T3}, s{sOffH+T3}, s{sSpin}
s_add_u32 s{sT3}, s{sT3}, 1""")
    c += L(f"""v_lshrrev_b32 v54, 4, v0
v_and_b32 v55, 15, v0
v_lshrrev_b32 v56, 2, v55
v_and_b32 v57, 3, v0
v_lshl_add_u32 v58, v54, 2, v56
v_bfe_u32 v59, v58, 1, 2
v_mul_u32_u24 v62, 384, v58
v_lshlrev_b32 v63, 1, v59
v_xor_b32 v63, v63, v57
v_lshl_add_u32 v{vWa}, v63, 4, v62
v_xor_b32 v63, 4, v63
v_lshl_add_u32 v{vWa+1}, v63, 4, v62
v_lshl_add_u32 v62, v57, 3, v62""")
    for x in range(4): c += L(f"v_xor_b32 v63, {x}, v59\nv_lshl_add_u32 v{vVa+x}, v63, 5, v62")
    c += L(f"""v_lshlrev_b32 v62, 7, v58
v_lshl_add_u32 v62, v57, 3, v62
v_xor_b32 v63, v30, v59
v_lshl_add_u32 v62, v63, 5, v62
v_add_u32 v{vRa}, {sbase(12)}, v62
v_add_u32 v{vGa}, {sbase(27)}, v{vL16}
v_mul_u32_u24 v62, 384, v55
v_lshrrev_b32 v63, 1, v55
v_xor_b32 v63, v63, v54
v_lshl_add_u32 v{vKa}, v63, 4, v62
v_xor_b32 v63, 4, v63
v_lshl_add_u32 v{vKa+1}, v63, 4, v62
v_bfe_u32 v56, v0, 2, 3
v_lshlrev_b32 v56, 7, v56
v_lshl_add_u32 v56, v57, 2, v56
s_lshl_b32 s{sT2}, s2, 7
s_lshl2_add_u32 s{sT2}, s{sW}, s{sT2}
s_add_u32 s{sT2}, s{sT2}, {hex(FXN)}
s_mov_b32 s{sSpin}, {SPIN_MAX}
L_nonce:
s_waitcnt vmcnt(0)
v_readfirstlane_b32 s{sNonce}, v{vNon}
s_nop 3
s_cmp_lg_u32 s{sNonce}, 0
s_cbranch_scc1 L_nonce_ok
buffer_load_dword v{vNon}, v60, {sr(sR,4)}, 0 offen sc1
s_sub_u32 s{sSpin}, s{sSpin}, 1
s_cmp_lg_u32 s{sSpin}, 0
s_cbranch_scc1 L_nonce
s_waitcnt vmcnt(0)
L_nonce_ok:
buffer_store_dword v{vNon}, v{vFo}, {sr(sWS,4)}, s{sT2} offen sc1""")
    c += L(f"""s_mov_b32 s{sScale}, {hex(f2u(math.log2(math.e) / math.sqrt(192.0)))}
s_sub_u32 s{sT2}, s2, 240
s_cmp_lt_u32 s2, 240
s_cselect_b32 s{sT2}, s2, s{sT2}""")
    c += sdivmod(sT3, sSpin, sT2, 10)
    c += L(f"""s_lshl_b32 s{sOffRo}, s{sT3}, 8
s_lshl3_add_u32 s{sOffRo}, s{sW}, s{sOffRo}
s_mul_i32 s{sOffRo}, s{sOffRo}, 1280
s_lshl_b32 s{sFl}, s{sSpin}, 7
s_add_u32 s{sOffRo}, s{sOffRo}, s{sFl}
s_lshl_b32 s{sOffRd}, s{sT3}, 6
s_lshl4_add_u32 s{sOffRd}, s{sT1}, s{sOffRd}
s_lshl3_add_u32 s{sOffRd}, s{sT0}, s{sOffRd}
s_mul_i32 s{sOffRd}, s{sOffRd}, 1280
s_add_u32 s{sOffRd}, s{sOffRd}, s{sFl}
s_lshl2_add_u32 s{sSpin}, s{sSpin}, s{sW}""")
    c += sdivmod(sFl, sOffP, sSpin, 10)
    c += L(f"""s_mul_i32 s{sFl}, s{sFl}, 192
s_lshl3_add_u32 s{sFl}, s{sT3}, s{sFl}
s_mul_i32 s{sFl}, s{sFl}, 10
s_add_u32 s{sFl}, s{sFl}, s{sOffP}
s_lshl_b32 s{sFl}, s{sFl}, 10
s_add_u32 s{sOffDo}, s{sFl}, {hex(WOP_OFF)}""")
    c += sdivmod(sFl, sOffP, sSpin, 5)
    c += L(f"""s_mul_i32 s{sFl}, s{sFl}, 48
s_lshl1_add_u32 s{sFl}, s{sT3}, s{sFl}
s_mul_i32 s{sFl}, s{sFl}, 5
s_add_u32 s{sFl}, s{sFl}, s{sOffP}
s_lshl_b32 s{sFl}, s{sFl}, 10
s_add_u32 s{sOffDd}, s{sFl}, {hex(WDP_OFF)}""")
    c += sdivmod(sT3, sSpin, sT2, 48)
    c += L(f"""s_cmp_ge_u32 s{sSpin}, 24
s_cselect_b32 s{pBx}, s{pWu}, s{pWg}
s_cselect_b32 s{pBx+1}, s{pWu+1}, s{pWg+1}
s_cselect_b32 s{sT2}, 1, 0
s_cselect_b32 s{sFl}, 24, 0
s_sub_u32 s{sSpin}, s{sSpin}, s{sFl}
s_lshl_b32 s{sOffR}, s{sT3}, 7
s_lshl4_add_u32 s{sOffR}, s{sT1}, s{sOffR}
s_lshl2_add_u32 s{sOffR}, s{sT0}, s{sOffR}
s_mul_i32 s{sOffR}, s{sOffR}, 3072
s_lshl_b32 s{sFl}, s{sSpin}, 7
s_add_u32 s{sOffR}, s{sOffR}, s{sFl}
s_lshl2_add_u32 s{sSpin}, s{sSpin}, s{sW}""")
    c += sdivmod(sFl, sOffP, sSpin, 3)
    c += L(f"""s_mul_i32 s{sFl}, s{sFl}, 20
s_lshl2_add_u32 s{sFl}, s{sT3}, s{sFl}
s_mul_i32 s{sFl}, s{sFl}, 6
s_lshl1_add_u32 s{sFl}, s{sOffP}, s{sFl}
s_add_u32 s{sFl}, s{sFl}, s{sT2}
s_lshl_b32 s{sFl}, s{sFl}, 10
s_add_u32 s{sOffD}, s{sFl}, {hex(GP_OFF)}
s_lshl_b32 s{sT3}, s{sQg}, 10
s_add_u32 s{sT3}, s{sT3}, {hex(FXN)}""")
    c += [poll_load(57, 56, f"s{sT3}")]
    c += L(f"""v_and_b32 v54, 6, v49
v_xor_b32 v54, v54, v48
v_lshlrev_b32 v54, 4, v54
v_mul_u32_u24 v55, 1280, v49
v_add_u32 v{vRo2}, v55, v54
v_and_b32 v55, 4, v49
v_add_u32 v55, v55, v49
v_mul_u32_u24 v55, 3072, v55
v_add_u32 v{vRo}, v55, v54
s_lshr_b32 s{sT2}, s2, 3
s_lshl2_add_u32 s{sT2}, s{sT2}, s{sW}
s_and_b32 s{sT2}, s{sT2}, 7
s_lshl_b32 s{sT2}, s{sT2}, 10
s_add_u32 s{sT2}, s{sT2}, {3*8192}
s_add_u32 s62, s62, s{sT2}
s_addc_u32 s63, s63, 0
s_lshl_b32 s{sFg}, s2, 2
s_add_u32 s{sFg}, s{sFg}, {hex(FG)}
s_cmp_eq_u32 s{sW}, 0
s_cselect_b32 s{sFg}, s{sFg}, 0x40000000
s_lshl_b32 s{sFl}, s{sB}, 5
s_add_u32 s{sFl}, s{sFl}, s{sH}
s_lshl_b32 s{sFl}, s{sFl}, 7
s_lshl2_add_u32 s{sFl}, s{sW}, s{sFl}
s_add_u32 s{sFl}, s{sFl}, {hex(FO)}
s_mul_i32 s{sOffA}, s{sNb}, 192
s_mul_i32 s{sT2}, s{sS}, 48
s_add_u32 s{sOffA}, s{sOffA}, s{sT2}
s_mul_i32 s{sOffA}, s{sOffA}, 10240
s_add_u32 s{sOffA}, s{sOffA}, s{sM5}
s_add_u32 s{sOffA}, s{sOffA}, {hex(WOP_OFF)}
s_lshl1_add_u32 s{sOffBB}, s{sMb}, s{sT1}
s_mul_i32 s{sOffBB}, s{sOffBB}, 240
s_add_u32 s{sOffBB}, s{sOffBB}, s{sT2}
s_add_u32 s{sOffBB}, s{sOffBB}, s{sT0}
s_lshl_b32 s{sOffBB}, s{sOffBB}, 12
s_add_u32 s{sOffBB}, s{sOffBB}, {hex(OH_OFF)}
s_lshr_b32 s{sT2}, s{sS}, 1
s_lshl1_add_u32 s{sQd}, s{sMb}, s{sT2}""")
    c += srd(sR, pBx, 640 * 1536 * 2) + srd(sK, pK, 32 * 2048 * 192 * 2) + srd(sV, pV, 32 * 2048 * 192 * 2)
    for i in range(4): c.append(I(f"v_mov_b32 v{vLs+i}, 0"))
    c.append(barrier("st0"))
    c += w_reads(0, 0) + w_reads(0, 1)
    c += poll_cmp(57, 1) + poll_branch("xn", 57, 56, f"s{sT3}")
    c += stamp(2)
    for k in range(BD1): c += b_loads(('a', 32 * k))
    blk(c, "pro")
    for sg in range(9):
        ex = []
        if "kvpf" in KN:
            if sg == 1: ex = [prefetch(sK, f"s{sPf}")]
            if sg == 3: ex = [prefetch(sV, f"s{sPf}")]
        sch(p1_step(sg, ex), f"p1_{sg}")
    blk(stamp(3))
    sch(p1_step(9) + first_tile() + p2_iter(0, base=96 + 48), "p1_last")
    blk(stamp(4))
    XP = PAR("XP", 9)
    for t in range(1, 14):
        ex = []; post = []; btag = []
        if t == 6: btag = ["Gst"]
        if t == 7: ex += [set_flag(f"s{sFg}", None)] + L(f"s_add_u32 s{sFg}, s{sFg}, {FW-FG}")
        if t == 10: ex += L(f"s_mov_b32 s{sT0}, {hex(FG)}") + [poll_load(vTmp, vL16, f"s{sT0}", 4)]
        if t == 12: post += late(poll_cmp(vTmp, 4), 60)
        if "xpf" in KN and XP <= t < XP + 3:
            if t == XP: ex += L(f"""s_and_b32 s{sPf}, s{sH}, 3
s_mul_i32 s{sPf}, s{sPf}, 2048
s_mul_i32 s{sT2}, s{sQg}, {20*4096}
s_add_u32 s{sPf}, s{sPf}, s{sT2}
v_lshrrev_b32 v{vTmp+4}, 4, v0
v_and_b32 v{vTmp+5}, 15, v0
v_lshlrev_b32 v{vTmp+4}, 13, v{vTmp+4}
v_lshl_add_u32 v{vL128}, v{vTmp+5}, 7, v{vTmp+4}""")
            ex += [prefetch(sWS, f"s{sPf}", "sc1")] + L(f"s_add_u32 s{sPf}, s{sPf}, 32768")
        sch(p2_iter(t, extra=ex, post=post, btag=btag), f"p2_{t}")
        if t == 12: blk(poll_branch("g", vTmp, vL16, f"s{sT0}", 4))
    blk(stamp(5))
    sch(p2_iter(14) + tail_pv(96), "tail", vm_min=3)
    blk(L("s_cbranch_vccnz L_fb\nL_fb_back:") + stamp(6))
    steps = p3_steps()
    setup = L(f"""v_and_b32 v{vT}, 32, v0
v_lshlrev_b32 v{vT}, 4, v{vT}
v_add_u32 v{vT}, v{vT}, v{vL16}
s_lshr_b32 s{sT1}, s{sMb}, 1
s_lshl_b32 s{sT1}, s{sT1}, 5
s_lshl3_add_u32 s{sT1}, s{sS}, s{sT1}
s_lshl_b32 s{sT1}, s{sT1}, 7
s_and_b32 s{sT2}, s{sMb}, 1
s_and_b32 s{sT3}, s{sW}, 1
s_lshl1_add_u32 s{sT2}, s{sT2}, s{sT3}
s_lshl2_add_u32 s{sT1}, s{sT2}, s{sT1}
s_add_u32 s{sT1}, s{sT1}, {hex(FO)}
v_and_b32 v{vFa}, 7, v0
v_lshlrev_b32 v{vFa}, 7, v{vFa}
s_mul_i32 s{sT3}, s{sT3}, 5120
s_add_u32 s{sT3}, s{sT3}, {obase(0)}
v_add_u32 v{vOA}, s{sT3}, v{vL16}
s_lshr_b32 s{sT2}, s{sW}, 1
s_lshl_b32 s{sT2}, s{sT2}, 12
s_add_u32 s{sT2}, s{sT2}, {20480+obase(0)}
v_add_u32 v{vOB}, s{sT2}, v{vL16}
v_add_u32 v{vDA}, {obase(24)}, v{vL16}
s_add_u32 s{sT2}, s{sM1}, {20480+obase(24)}
v_add_u32 v{vDB}, s{sT2}, v{vL16}""")
    for k in range(10):
        body = (setup if k == 3 else []) + join_steps(steps[k:k+1])
        if k == 9 and OC < 9:
            body += [I("s_barrier", tag_r="ot0", wr=['stg'], rd=['stg2'], after=34)] + o_reads(0)
        sch(body, f"p3s{k}", vm_min=2)
        if k == WC: blk(poll_cmp(vFl, 4) + poll_branch("w", vFl, vL16, f"s{sT0}", 4))
        if k == OC: blk(poll_cmp(vFo2, 1) + poll_branch("o", vFo2, vFa, f"s{sT1}"))
        if "fine" in KN: blk(stamp(14 + k))
    c = stamp(7) + stamp(8)
    if OC == 9:
        c += dmaB(0) + dmaB(1) + dmaB(2)
        c.append(I("s_barrier", tag_r="ot0"))
        c += o_reads(0)
    c += stamp(9)
    blk(c, "o_pro")
    osetup = L(f"""s_lshr_b32 s{sT1}, s{sMb}, 1
s_lshl_b32 s{sT1}, s{sT1}, 12
s_and_b32 s{sT2}, s{sQd}, 3
s_lshl2_add_u32 s{sT1}, s{sT2}, s{sT1}
s_add_u32 s{sT1}, s{sT1}, {hex(FH)}
v_and_b32 v{vFa}, 31, v0
v_lshlrev_b32 v{vFa}, 7, v{vFa}
s_and_b32 s{sT2}, s{sS}, 1
s_lshl1_add_u32 s{sT2}, s{sNb}, s{sT2}
s_mul_i32 s{sOffRo}, s{sT2}, {48*5120}
s_add_u32 s{sOffRo}, s{sOffRo}, s{sM5}
s_add_u32 s{sOffRo}, s{sOffRo}, {hex(WDP_OFF)}
s_mul_i32 s{sT2}, s{sT2}, 160
s_lshl2_add_u32 s{sOffO}, s{sQd}, s{sW}
s_mul_i32 s{sOffO}, s{sOffO}, {16*1280}
s_add_u32 s{sOffO}, s{sOffO}, s{sT2}
s_mul_i32 s{sOffRd}, s{sQd}, 240
s_add_u32 s{sOffRd}, s{sOffRd}, s{sW}
s_add_u32 s{sOffRd}, s{sOffRd}, 192
s_lshl_b32 s{sOffRd}, s{sOffRd}, 12
s_add_u32 s{sOffRd}, s{sOffRd}, {hex(OH_OFF)}
s_lshl2_add_u32 s{sT0}, s{sMb}, s{sNb}
s_lshl2_add_u32 s{sT3}, s{sT0}, s{sS}
s_lshl2_add_u32 s{sT2}, s{sT3}, s{sW}
s_mul_i32 s{sOffP}, s{sT2}, 10240
s_add_u32 s{sOffP}, s{sOffP}, {hex(PART_OFF)}
s_lshl_b32 s{sFl}, s{sT3}, 7
s_lshl2_add_u32 s{sFl}, s{sW}, s{sFl}
s_add_u32 s{sFl}, s{sFl}, {hex(FP)}
v_and_b32 v{vOa}, 15, v0
v_mul_u32_u24 v{vOa}, 1280, v{vOa}
v_lshrrev_b32 v{vPo}, 4, v0
v_lshl_add_u32 v{vOa}, v{vPo}, 3, v{vOa}
v_and_b32 v{vFa2}, 3, v0
v_lshlrev_b32 v{vFa2}, 7, v{vFa2}""") + srd(sOut, pOut, 2048 * 640 * 2) + L(f"""s_lshl_b32 s{sFg}, s{sT0}, 9
s_lshl2_add_u32 s{sFg}, s{sS}, s{sFg}
s_add_u32 s{sFg}, s{sFg}, {hex(FP)}
s_lshl4_add_u32 s{sT2}, s{sT0}, s{sS}
s_mul_i32 s{sT3}, s{sT2}, 10240
s_add_u32 s{sT3}, s{sT3}, {hex(PART_OFF)}
s_lshl_b32 s{sT2}, s{sW}, 11
s_add_u32 s{sOffH0}, s{sT3}, s{sT2}
s_lshr_b32 s{sT2}, s{sW}, 1
s_lshl_b32 s{sT2}, s{sT2}, 10
s_add_u32 s{sT3}, s{sT3}, s{sT2}
s_and_b32 s{sT2}, s{sW}, 1
s_lshl3_add_u32 s{sT3}, s{sT2}, s{sT3}
s_add_u32 s{sOffH1}, s{sT3}, 8192""")
    assert len(osetup) <= 56
    for sg in range(4):
        ex = []
        if sg == 0: ex = dmaB(3) + dmaA(3)
        if sg == 3: ex = L(f"s_add_u32 s{sQg}, s{sQg}, {FH-FO}") + [set_flag(f"s{sQg}", "Hst")]
        pre = L(f"s_mov_b32 s{sQg}, s{sFl}") if sg == 0 else []
        sch(o_block(sg, ex, pre=pre, mid=osetup[sg * 14:(sg + 1) * 14], exfirst=(sg == 0)), f"o{sg}", vm_min=2)
    base_state = {r: AD[r].base for r in (vOA, vOB)}
    P.block("ol_top", L(f"s_mov_b32 s{sH}, 0") + L(".p2align 6\nL_o:")); P.trace.append(("ol_top", {}))
    lb = []
    for q in range(4):
        ex = [poll_load(vFl, vFa, f"s{sT1}")] if q == 0 else []
        b = o_block(4 + q, ex)
        for x in b:
            for attr in ('tag_r', 'tag_w'):
                t = getattr(x, attr)
                if t is None: continue
                ts = t if isinstance(t, list) else [t]
                setattr(x, attr, (lambda ts: lambda env: [u[:2] + str(int(u[2:]) + 4 * env['it']) for u in ts])(ts))
        b = schedule(b, f"ol{q}", verbose=dbg and "v" in KN, vm_min=3)
        if q == 3: b += L(f"s_add_u32 s{sH}, s{sH}, 1\ns_cmp_lt_u32 s{sH}, 4\ns_cbranch_scc1 L_o")
        P.block(f"ol{q}", b)
    assert base_state == {r: AD[r].base for r in (vOA, vOB)}, "loop address state"
    for it in range(4): P.trace += [(f"ol{q}", {'it': it}) for q in range(4)]
    blk(poll_cmp(vFl, 1) + poll_branch("h", vFl, vFa, f"s{sT1}"))
    for sg in range(20, 24): sch(o_block(sg), f"o{sg}")
    blk(stamp(10))
    def pk(dst, t, j):
        a = vAc + (t * 4 + j) * 4
        return L(f"v_cvt_pk_bf16_f32 v{dst}, v{a}, v{a+1}\nv_cvt_pk_bf16_f32 v{dst+1}, v{a+2}, v{a+3}")
    ps = []; n = 0
    for j in range(4):
        for tp in range(2):
            o = vPk + n * 4
            it = pk(o, 2 * tp, j) + pk(o + 2, 2 * tp + 1, j)
            it.append(I(f"buffer_store_dwordx4 {vr(o,4)}, v{vL16}, {sr(sWS,4)}, s{sOffP} offen offset:{(n%4)*1024} sc1", tag_w="Pst"))
            n += 1
            if n % 4 == 0: it.append(I(f"s_add_u32 s{sOffP}, s{sOffP}, 4096"))
            ps.append(it)
    for jp in range(2):
        o = vPk + n * 4
        ps.append(pk(o, 4, 2 * jp) + pk(o + 2, 4, 2 * jp + 1) + [I(f"buffer_store_dwordx4 {vr(o,4)}, v{vL16}, {sr(sWS,4)}, s{sOffP} offen offset:{jp*1024} sc1", tag_w="Pst")])
        n += 1
    xl = [I(f"buffer_load_dwordx2 {vr(vXr+2*t,2)}, v{vOa}, {sr(sXin,4)}, s{sOffO} offen offset:{32*t}") for t in range(5)]
    pl = []
    for sd in range(4):
        for tp in range(2): pl.append(I(f"buffer_load_dwordx4 {vr(vPl+sd*12+tp*4,4)}, v{vL16}, {sr(sWS,4)}, s{sOffH0} offen offset:{1024*tp} sc1"))
        pl.append(I(f"buffer_load_dwordx2 {vr(vPl+sd*12+8,2)}, v{vL16}, {sr(sWS,4)}, s{sOffH1} offen sc1"))
        pl += L(f"s_add_u32 s{sOffH0}, s{sOffH0}, {4*10240}\ns_add_u32 s{sOffH1}, s{sOffH1}, {4*10240}")
    PF, PL, PC = PAR("PF", 29), PAR("PL", 31), PAR("PC", 33)
    for sg in range(24, 36):
        ex = []
        if sg == 24: ex = [x for it in ps[:4] for x in it]
        if sg == 25: ex = [x for it in ps[4:7] for x in it]
        if sg == 26: ex = [x for it in ps[7:] for x in it]
        if sg == PF: ex = [set_flag(f"s{sFl}", "Pst")]
        if sg == PL: ex = ex + [poll_load(vFl, vFa2, f"s{sFg}")]
        if sg == PAR("XL", 32): ex = ex + xl
        if sg == 27 and "outpf" in KN: ex = ex + [I(f"buffer_load_dword v{vDum}, v{vOa}, {sr(sOut,4)}, s{sOffO} offen offset:{o}") for o in (0, 128)]
        sch(o_block(sg, ex), f"d{sg}", vm_min=1)
        if sg == PC: blk(poll_cmp(vFl, 1) + poll_branch("p", vFl, vFa2, f"s{sFg}") + pl)
    c = stamp(11)
    t0 = 112
    for t in range(5):
        h = vDc + 4 * t
        for i in range(4): c += L(f"v_mul_f32 v{t0+4*t+i}, {hex(f2u(-math.log2(math.e)))}, v{h+i}\nv_exp_f32 v{t0+4*t+i}, v{t0+4*t+i}")
        for i in range(4): c += L(f"v_add_f32 v{t0+4*t+i}, 1.0, v{t0+4*t+i}\nv_rcp_f32 v{t0+4*t+i}, v{t0+4*t+i}")
        for i in range(4): c += L(f"v_mul_f32 v{h+i}, v{h+i}, v{t0+4*t+i}")
    for t in range(5):
        h = vDc + 4 * t; a = t0 + 4 * t; u = 132
        for sd in range(4):
            for hf in range(2):
                src = vPl + sd * 12 + 2 * t + hf
                if sd == 0: c += L(f"v_lshlrev_b32 v{a+2*hf}, 16, v{src}\nv_and_b32 v{a+2*hf+1}, 0xffff0000, v{src}")
                else: c += L(f"""v_lshlrev_b32 v{u+2*hf}, 16, v{src}
v_and_b32 v{u+2*hf+1}, 0xffff0000, v{src}
v_pk_add_f32 v[{a+2*hf}:{a+2*hf+1}], v[{a+2*hf}:{a+2*hf+1}], v[{u+2*hf}:{u+2*hf+1}]""")
        c += L(f"""v_lshlrev_b32 v{u+4}, 16, v{vXr+2*t}
v_and_b32 v{u+5}, 0xffff0000, v{vXr+2*t}
v_lshlrev_b32 v{u+6}, 16, v{vXr+2*t+1}
v_and_b32 v{u+7}, 0xffff0000, v{vXr+2*t+1}""")
        for i in range(4): c.append(I(f"v_fmac_f32 v{u+4+i}, v{a+i}, v{h+i}"))
        c += L(f"""v_cvt_pk_bf16_f32 v{a}, v{u+4}, v{u+5}
v_cvt_pk_bf16_f32 v{a+1}, v{u+6}, v{u+7}
buffer_store_dwordx2 {vr(a,2)}, v{vOa}, {sr(sOut,4)}, s{sOffO} offen offset:{32*t} {os.environ.get("OUTF", "")}""")
    c += stamp_store(13)
    amp = os.environ.get("AMP")
    if amp and STAMPS:
        k1, k2, mult = map(int, amp.split(","))
        first = f"v_readlane_b32 s{sT0}, v{vSt}, {2*k1}" if k1 >= 0 else f"s_mov_b32 s{sT0}, s{sNonce}"
        c += L(f"""{first}
v_readlane_b32 s{sT1}, v{vSt}, {2*k2}
v_readlane_b32 s{sT2}, v{vSt}, 26
s_nop 4
s_sub_u32 s{sT0}, s{sT1}, s{sT0}
s_mul_i32 s{sT0}, s{sT0}, {mult}
s_min_u32 s{sT0}, s{sT0}, 100000
L_amp:
s_memrealtime s[{sSt}:{sSt+1}]
s_waitcnt lgkmcnt(0)
s_sub_u32 s{sT1}, s{sSt}, s{sT2}
s_cmp_lt_u32 s{sT1}, s{sT0}
s_cbranch_scc1 L_amp""")
    c += L("L_end:\ns_endpgm")
    blk(c, "fin")
    for nm, ins in OUTL: P.block(nm, ins)
    P.insert_waits()
    n = P.fix_hazards(verbose=False)
    if dbg:
        tot, per = P.estimate()
        agg = {}
        for k, v in per.items():
            kk = k.rstrip('0123456789') if k[0] in 'od' or k.startswith('p1_') or k.startswith('p2_') else k
            agg[kk] = agg.get(kk, 0) + v
        print("; estimate", tot, agg, "pads", n)
    return P.text() + "\n" + gen_fallback()

def build(path, dbg=False):
    body = gen(dbg)
    body = "\n".join(l.strip() for l in body.split("\n"))
    txt = f"""; @launch grid=(256,1,1) block=(256,1,1) lds={LDS_TOTAL}
.amdgcn_target "amdgcn-amd-amdhsa--gfx950"
.text
.globl {KNAME}
.p2align 8
.type {KNAME},@function
{KNAME}:
L_code_begin:
{body}
L_code_end:
.set CODE_SLICES, (L_code_end-L_code_begin+8191)/8192
.fill 2112, 4, 0xbf800000
s_endpgm
.section .rodata,"a"
.p2align 6
.amdhsa_kernel {KNAME}
  .amdhsa_next_free_vgpr 512
  .amdhsa_next_free_sgpr 102
  .amdhsa_accum_offset 256
  .amdhsa_group_segment_fixed_size 0
  .amdhsa_kernarg_size 96
  .amdhsa_user_sgpr_count 2
  .amdhsa_user_sgpr_kernarg_segment_ptr 1
  .amdhsa_system_sgpr_workgroup_id_x 1
  .amdhsa_float_denorm_mode_32 3
.end_amdhsa_kernel
"""
    open(path, "w").write(txt)

if __name__ == "__main__":
    if "--stamps" in sys.argv:
        STAMPS = True; sys.argv.remove("--stamps")
    build(sys.argv[1], dbg=True)
```

```python
import sys, math, struct, os
from asmlib import *
KN = set(os.environ.get("KN", "").split(","))
def PAR(name, default): return type(default)(os.environ.get(name, default))
NAME = "recurrent_scan__sliding_block_cached__glu_gated_bilinear__prompt"
KNAME = NAME + "_kernel"
XN_OFF = 0; OH_OFF = 0x400000; GP_OFF = 0x2200000; WOP_OFF = 0x2600000; WDP_OFF = 0x2E00000; PART_OFF = 0x3000000
FL_OFF = 0x3A00000
FXN = FL_OFF; FO = FL_OFF + 0x8000; FH = FL_OFF + 0x10000; FP = FL_OFF + 0x18000; FG = FL_OFF + 0x20000; FW = FL_OFF + 0x21000; ST_OFF = FL_OFF + 0x30000
WS_SIZE = 0x3B00000
STAMP_OFF = 0x8000000
SLOT = 28672; SL2 = 36864
LDS_X = 147456
LDS_TOTAL = 163840
STAMPS = False
SPIN_MAX = 200000
def sbase(st):
    if st < 10: return ((3, 4) if (st // 2) % 2 == 0 else (1, 2))[st % 2] * SLOT
    if st <= 28: return (st % 5) * SLOT
    return {29: 0, 30: 110592, 31: 135168}[st]
OPERM = [1, 2, 0, 3]
def obase(sg): return OPERM[sg % 4] * SL2

def f2u(x): return struct.unpack('<I', struct.pack('<f', x))[0]
def vr(a, n): return f"v[{a}:{a+n-1}]" if n > 1 else f"v{a}"
def ar(a, n): return f"a[{a}:{a+n-1}]" if n > 1 else f"a{a}"
def sr(a, n): return f"s[{a}:{a+n-1}]" if n > 1 else f"s{a}"
def rr(x, n=4): return vr(x[1], n) if x[0] == 'v' else ar(x[1], n)
def L(txt): return [I(t) for t in txt.strip().split("\n") if t.strip()]
def mfma(d, a, b, c): return I(f"v_mfma_f32_16x16x32_bf16 {d}, {a}, {b}, {c}")

sWq, sK, sWS, sR = 4, 8, 12, 16
(sOffX, sOffY, sOffK, sOffV, sM6, sM3, sM1, sOffB, sH, sB, sW, sT0, sT1, sT2, sOffO, sScale,
 sOffG, sOffH0, sOffH1, sOffH2, sNonce, sOffR, sOffD, sOffRo, sOffRd, sOffDo, sOffDd,
 sS, sMb, sNb, sFl, sSpin, sT3, sOffP, sQg, sFg, sOffA, sOffBB, sM5, sM4, sPf, sQd) = range(20, 62)
sOffH = sOffH0
pX, pK, pV, pWq, pWo, pBx, pWg, pWu, pWd, pOut, pDbg, pWs = range(64, 88, 2)
sSt = 88; sV = 92; sXin = 96
sOut = sWq
vL16 = 1; vWo = 2; vKo = 5; vVo = 8; vRo = 11; vRo2 = 12; vL128 = 13; vFo = 14; vNon = 15
vRa = 16; vWa = 17; vKa = 19; vVa = 21; vGa = 25
vLs = 26; vT = 36; vSt = 31; vNm = 32; vTmp = 48
vAcc = 64; vQ = 64
vS01 = 160; vS23 = 176; vP01 = 208; vP23 = 224; vVs = 232
aK = 192; aR = 240; aA1 = 128; aDum = 255; aCs = 160
vOne = 48; vSta = 32; vCsT = 52; vXo = 44; vXo2 = 46; vSo = 41; vPa = 42; vPd = 43
vDum = 30
NSLICE = 10

class Addr:
    def __init__(self, reg, base): self.reg = reg; self.base = base
    def use(self, base, off):
        pre = []
        d = base + off - self.base
        if not (0 <= d < 65536):
            pre = [I(f"v_add_u32 v{self.reg}, {hex((base - self.base) & 0xffffffff)}, v{self.reg}")]
            self.base = base; d = off
        return pre, d
AD = {}
def dsr(op, dst, reg, base, off, **kw):
    pre, d = AD[reg].use(base, off)
    return pre + [I(f"{op} {dst}, v{reg} offset:{d}", **kw)]

def srd(d, base, size):
    return [I(f"s_mov_b32 s{d}, s{base}"), I(f"s_mov_b32 s{d+1}, s{base+1}"), I(f"s_mov_b32 s{d+2}, {hex(size)}"), I(f"s_mov_b32 s{d+3}, 0x20000")]
def xreduce(v, t, op):
    return L(f"""v_mov_b32 v{t}, v{v}
v_permlane16_swap_b32 v{v}, v{t}
{op} v{v}, v{v}, v{t}
v_mov_b32 v{t}, v{v}
v_permlane32_swap_b32 v{v}, v{t}
{op} v{v}, v{v}, v{t}""")
def divmod_const(q, r, src, c):
    magic = (65536 + c - 1) // c
    for x in range(1400): assert (x * magic) >> 16 == x // c
    return L(f"v_mul_u32_u24 v{q}, {magic}, v{src}\nv_lshrrev_b32 v{q}, 16, v{q}\nv_mul_u32_u24 v{r}, {c}, v{q}\nv_sub_u32 v{r}, v{src}, v{r}")
def sdivmod(q, r, src, c):
    magic = (65536 + c - 1) // c
    for x in range(1400): assert (x * magic) >> 16 == x // c
    return L(f"s_mul_i32 s{q}, s{src}, {magic}\ns_lshr_b32 s{q}, s{q}, 16\ns_mul_i32 s{r}, s{q}, {c}\ns_sub_u32 s{r}, s{src}, s{r}")

def stamp(k):
    if not STAMPS: return []
    return L(f"""s_memrealtime s[{sSt}:{sSt+1}]
s_memtime s[{sSt+2}:{sSt+3}]
s_waitcnt lgkmcnt(0)
v_writelane_b32 v{vSt}, s{sSt}, {2*k}
v_writelane_b32 v{vSt}, s{sSt+2}, {2*k+1}""")
def stamp_store(n):
    if not STAMPS: return []
    return stamp(n - 1) + L("s_waitcnt vmcnt(0)") + stamp(n) + L(f"""s_add_u32 s{sK}, s{pWs}, {hex(STAMP_OFF)}
s_addc_u32 s{sK+1}, s{pWs+1}, 0
s_mov_b32 s{sK+2}, {1024*256}
s_mov_b32 s{sK+3}, 0x20000
s_lshl2_add_u32 s{sT0}, s2, s{sW}
s_lshl_b32 s{sT0}, s{sT0}, 8
v_lshlrev_b32 v2, 2, v0
buffer_store_dword v{vSt}, v2, {sr(sK,4)}, s{sT0} offen""")

OUTL = []
def poll_load(dst, vaddr, soff, n=1, **kw):
    op = "buffer_load_dword" if n == 1 else "buffer_load_dwordx4"
    return I(f"{op} {vr(dst,n)}, v{vaddr}, {sr(sWS,4)}, {soff} offen sc1", **kw)
def poll_cmp(dst, n):
    if n == 1: return L(f"v_cmp_ne_u32 vcc, s{sNonce}, v{dst}")
    return L(f"""v_xor_b32 v{dst}, s{sNonce}, v{dst}
v_xor_b32 v{dst+1}, s{sNonce}, v{dst+1}
v_xor_b32 v{dst+2}, s{sNonce}, v{dst+2}
v_xor_b32 v{dst+3}, s{sNonce}, v{dst+3}
v_or3_b32 v{dst}, v{dst}, v{dst+1}, v{dst+2}
v_or_b32 v{dst}, v{dst}, v{dst+3}
v_cmp_ne_u32 vcc, 0, v{dst}""")
def poll_branch(name, dst, vaddr, soff, n=1):
    o = L(f"L_spin_{name}:\ns_mov_b32 s{sSpin}, {SPIN_MAX}\nL_spin2_{name}:")
    o += [poll_load(dst, vaddr, soff, n)] + L("s_waitcnt vmcnt(0)") + poll_cmp(dst, n)
    o += L(f"""s_nop 4
s_cbranch_vccz L_back_{name}
s_sleep 1
s_sub_u32 s{sSpin}, s{sSpin}, 1
s_cmp_lg_u32 s{sSpin}, 0
s_cbranch_scc1 L_spin2_{name}
s_branch L_back_{name}""")
    OUTL.append((f"spin_{name}", o))
    return L(f"s_cbranch_vccnz L_spin_{name}\nL_back_{name}:")
def late(lst, g):
    for x in lst: x.after = g
    return lst
def set_flag(soff, tag, **kw):
    return I(f"buffer_store_dword v{vNon}, v{vFo}, {sr(sWS,4)}, {soff} offen sc1", tag_r=tag, **kw)

KVF = os.environ.get("KVF", "")
def grp3(st, srdn, vo, so, mreg, moff, inc, flags=""):
    r = [I(f"s_add_u32 m0, s{mreg}, {sbase(st)+moff}")]
    for n in range(3):
        v = vo + n if vo != vL16 else vL16
        r.append(I(f"buffer_load_dwordx4 v{v}, {sr(srdn,4)}, s{so} offen offset:{1024*n} {flags} lds", tag_w=f"st{st}", rd=['stg']))
    if inc: r.append(I(f"s_add_u32 s{so}, s{so}, {inc}"))
    return r
def dma_stage(st):
    r = []
    if st <= 9:
        r += grp3(st, sWq, vWo, sOffX, sM6, 0, 16 * 12288, KVF) + grp3(st, sWq, vWo, sOffX, sM6, 3072, 48 * 12288, KVF)
    elif st <= 26:
        t = st - 10
        if t <= 15: r += grp3(st, sK, vKo, sOffK, sM3, 0, 12288, KVF)
        if t >= 1: r += grp3(st, sV, vVo, sOffV, sM3, 12288, 12288, KVF)
        u = st - 12
        if 0 <= u < 14:
            if u == 4: r += srd(sR, pWo, 6144 * 640 * 2)[:3] + L(f"s_mov_b32 s{sOffR}, s{sOffRo}")
            if u == 12: r += srd(sR, pWd, 1536 * 640 * 2)[:3] + L(f"s_mov_b32 s{sOffR}, s{sOffRd}")
            r.append(I(f"s_add_u32 m0, s{sM1}, {sbase(st)+24576}"))
            r.append(I(f"buffer_load_dwordx4 v{vRo if u < 4 else vRo2}, {sr(sR,4)}, s{sOffR} offen {KVF} lds", tag_w=f"st{st}", rd=['stg']))
            r.append(I(f"s_add_u32 s{sOffR}, s{sOffR}, {32*3072 if u < 4 else 32*1280}"))
    else:
        r += grp3(st, sWS, vL16, sOffG, sM6, 0, 3072, "sc1") + grp3(st, sWS, vL16, sOffG, sM6, 3072, 24576 - 3072, "sc1")
    return r
def pace(lst, lo, hi):
    vm = [x for x in lst if x.kind == 'vmem']
    for k, x in enumerate(vm): x.after = int(lo + k * (hi - lo) / len(vm))
    return lst
def barrier(tag, after=None): return I("s_barrier", tag_r=tag, wr=['stg'], after=after)

def acc1(T, j): return vAcc + ((T // 2) * 4 + j) * 8 + (T % 2) * 4
def w_reads(k, T):
    slot = aA1 + (T % 2) * 16
    p, t = T // 2, T % 2
    r = []
    for ks in range(4):
        for u in range(2): r += dsr("ds_read_b64_tr_b16", ar(slot + ks * 4 + u * 2, 2), vWa + p % 2, sbase(2 * k), (ks // 2) * SLOT + (ks % 2) * 12288 + u * 6144 + (p // 2) * 128 + 8 * t, rd=['stg'], tag_w=f"wr{k}")
    return r
def b_loads(base):
    r = []
    for u in range(2):
        for j in range(4):
            r.append(I(f"buffer_load_dwordx4 {rr((base[0], base[1]+(u*4+j)*4))}, v{vL16}, {sr(sWS,4)}, s{sOffB} offen offset:{1024*j} sc1"))
        r.append(I(f"s_add_u32 s{sOffB}, s{sOffB}, 4096"))
    return r
def k_reads(st, kt):
    r = []
    for s in range(6): r += dsr("ds_read_b128", ar(aK + kt * 24 + s * 4, 4), vKa + s % 2, sbase(st), kt * 6144 + (s // 2) * 128, rd=['stg'])
    return r
def v_reads(st, T):
    r = []
    for u in range(2): r += dsr("ds_read_b64_tr_b16", vr(vVs + (T % 6) * 4 + u * 2, 2), vVa + T % 4, sbase(st), 12288 + u * 6144 + (T // 4) * 128, rd=['stg'])
    return r
def prefetch(srdn, soff, flags=""):
    return I(f"buffer_load_dword v{vDum}, v{vL128}, {sr(srdn,4)}, {soff} offen {flags}")

def csreg(T): return aCs + T * 4
def p1_quad(k, T0=0, T1=12, vm=(), vmspan=None, extra=()):
    last = k == 4
    per = 20 if k == 0 else 16
    n = (T1 - T0) * per
    s = []
    vm = list(vm)
    if any(x.kind == 'vmem' for x in vm): pace(vm, *(vmspan or (1, n - 20)))
    s += vm + list(extra)
    for T in range(T0, T1):
        if T + 1 < 12: s += w_reads(k, T + 1)
        else:
            s.append(barrier([f"st{2*k+2}", f"wr{k}"] + ([f"st{2*k+3}"] if not last else []), after=n - per - 1))
            s += w_reads(k + 1, 0) if not last else k_reads(10, 0)
        slot = aA1 + (T % 2) * 16
        for j in range(4):
            d = vr(acc1(T, j), 4)
            for ks in range(4):
                s.append(mfma(d, ar(slot + ks * 4, 4), ar(64 * (k % 2) + (ks * 4 + j) * 4, 4), "0" if (k == 0 and ks == 0) else d))
        if k == 0:
            d = ar(csreg(T), 4)
            for ks in range(4): s.append(mfma(d, ar(slot + ks * 4, 4), vr(vOne, 4), d if ks else "0"))
        if k in (2, 3) and T % 2 == k - 2:
            t = vCsT + ((T // 2) % 2) * 4
            for i in range(4): s.append(I(f"v_accvgpr_read_b32 v{t+i}, a{csreg(T)+i}"))
            for j in range(4):
                for i in range(4): s.append(I(f"v_fmac_f32 v{acc1(T,j)+i}, v{t+i}, v{vSta+2*j}"))
        if last and T % 2 == 1:
            p = T // 2
            for j in range(4):
                a = acc1(2 * p, j); q = vQ + (p * 4 + j) * 4
                for i in range(8): s.append(I(f"v_mul_f32 v{a+i}, v{vSta+2*j+1}, v{a+i}"))
                for i in range(4): s.append(I(f"v_cvt_pk_bf16_f32 v{q+i}, v{a+2*i}, v{a+2*i+1}"))
    return s
def w_reads0(n):
    h, T = n // 12, n % 12
    slot = aA1 + (n % 4) * 8
    p, t = T // 2, T % 2
    r = []
    for ks in range(2):
        for u in range(2): r += dsr("ds_read_b64_tr_b16", ar(slot + ks * 4 + u * 2, 2), vWa + p % 2, sbase(0), h * SLOT + ks * 12288 + u * 6144 + (p // 2) * 128 + 8 * t, rd=['stg'], tag_w="wr0")
    return r
def raw_reads(h):
    return [I(f"ds_read_b128 {ar(((2*h+ks)*4+j)*4,4)}, v{(vXo if h == 0 else vXo2) + ks} offset:{j*2048}", tag_r=f"raw{h}", tag_w=f"rawrd{h}") for j in range(4) for ks in range(2)]
def p1_first(n0, n1, extra=()):
    s = list(extra)
    for n in range(n0, n1):
        h, T = n // 12, n % 12
        if n == 8: s += late(raw_reads(1), (8 - n0) * 10)
        if n == 10: s.append(barrier(["st1"], after=(10 - n0) * 10 - 4))
        if n + 2 < 24: s += w_reads0(n + 2)
        elif n == 23:
            s.append(barrier(["st2", "st3", "wr0"], after=(22 - n0) * 10))
            s += w_reads(1, 0)
        slot = aA1 + (n % 4) * 8
        for j in range(4):
            d = vr(acc1(T, j), 4)
            for ks in range(2): s.append(mfma(d, ar(slot + ks * 4, 4), ar(((2 * h + ks) * 4 + j) * 4, 4), "0" if (h == 0 and ks == 0) else d))
        d = ar(csreg(T), 4)
        for ks in range(2): s.append(mfma(d, ar(slot + ks * 4, 4), vr(vOne, 4), "0" if (h == 0 and ks == 0) else d))
    return s
def stat_loads():
    return [I(f"buffer_load_dwordx2 {vr(vSta+2*j,2)}, v{vSo}, {sr(sWS,4)}, s{sScale} offen offset:{128*j} sc1") for j in range(4)]

def Sreg(kt, j, t):
    if j < 2: return (vTmp if t == 0 else vS01) + (j * 2 + kt) * 4
    return vS23 + (t % 2) * 16 + ((j - 2) * 2 + kt) * 4
def Preg(j, t):
    if j < 2: return vP01 + (t % 2) * 8 + j * 4
    return (vTmp + 8 if t == 15 else vP23) + (j - 2) * 4
def qk(kt, t):
    s = []
    for j in range(4):
        d = vr(Sreg(kt, j, t), 4)
        for p in range(6):
            c = d if p else ("0" if t == 0 else vr(vNm + 4 * j, 4))
            s.append(mfma(d, ar(aK + kt * 24 + p * 4, 4), vr(vQ + (p * 4 + j) * 4, 4), c))
    return s
def softmax(j, t):
    s = []
    for kt in range(2):
        a = Sreg(kt, j, t)
        for i in range(4): s.append(I(f"v_exp_f32 v{a+i}, v{a+i}"))
        for i in range(4): s.append(I(f"v_add_f32 v{vLs+j}, v{vLs+j}, v{a+i}"))
        for i in range(2): s.append(I(f"v_cvt_pk_bf16_f32 v{Preg(j,t)+kt*2+i}, v{a+2*i}, v{a+2*i+1}"))
    return s
def pv_T(T, t):
    s = []
    for j in range(4):
        d = ar((T * 4 + j) * 4, 4)
        s.append(mfma(d, vr(vVs + (T % 6) * 4, 4), vr(Preg(j, t), 4), "0" if t == 0 else d))
    return s

def p2_iter(t, base=0, extra=(), post=(), btag=()):
    st = 11 + t
    s = []
    s += k_reads(st, 1)
    u = st - 12
    if u >= 0:
        for h in range(2): s += dsr("ds_read_b64_tr_b16", ar(aR + 2 * h, 2), vRa, sbase(st), 24576 + 2048 * h, rd=['stg'])
    s += pace(dma_stage(st + 3) + list(extra), base + 4, base + 68)
    if t > 0: s += softmax(2, t) + softmax(3, t)
    s += qk(0, t + 1) + qk(1, t + 1)
    for T in range(6): s += v_reads(st, T)
    s += softmax(0, t + 1) + softmax(1, t + 1)
    if t == 14: s += softmax(2, 15) + softmax(3, 15)
    for T in range(12):
        s += pv_T(T, t)
        if T < 6: s += v_reads(st, T + 6)
        if T == 5:
            s.append(barrier([f"st{st+1}"] + list(btag), after=base + 70))
            if t < 14: s += k_reads(st + 1, 0)
            if u >= 0:
                if u == 4: s += L(f"s_mov_b32 s{sOffD}, s{sOffDo}")
                if u == 12: s += L(f"s_mov_b32 s{sOffD}, s{sOffDd}")
                s.append(I(f"buffer_store_dwordx4 {ar(aR,4)}, v{vL16}, {sr(sWS,4)}, s{sOffD} offen sc1", after=base + 80, tag_w="Gst" if u < 4 else "Wst"))
                s.append(I(f"s_add_u32 s{sOffD}, s{sOffD}, {6144 if u < 4 else 10240 if u < 12 else 5120}"))
        if t == 14 and T >= 6: s += v_reads(st + 1, T - 6)
    s += list(post)
    return s

def first_tile(base):
    s = []
    s += k_reads(10, 1)
    s += pace(dma_stage(13), base + 2, base + 30)
    s += qk(0, 0)
    s.append(barrier("st11", after=base + 28))
    s += k_reads(11, 0)
    s += qk(1, 0)
    for j in range(4):
        a = Sreg(0, j, 0); b = Sreg(1, j, 0); m = vNm + 4 * j; t = m + 1
        s += L(f"""v_max3_f32 v{m}, v{a}, v{a+1}, v{a+2}
v_max3_f32 v{m}, v{m}, v{a+3}, v{b}
v_max3_f32 v{m}, v{m}, v{b+1}, v{b+2}
v_max_f32 v{m}, v{m}, v{b+3}""")
        s += xreduce(m, t, "v_max_f32")
        s += L(f"v_sub_f32 v{m+1}, 0, v{m}\nv_sub_f32 v{m+2}, 0, v{m}\nv_sub_f32 v{m+3}, 0, v{m}\nv_sub_f32 v{m}, 0, v{m}")
        for i in range(4):
            s.append(I(f"v_add_f32 v{a+i}, v{a+i}, v{m}")); s.append(I(f"v_add_f32 v{b+i}, v{b+i}, v{m}"))
    for j in range(4): s += softmax(j, 0)
    return s

vGA = 160; vOP = 184
BBUF = [('a', 192), ('a', 224), ('v', 208), ('a', 0)]
def g_reads(n, tagr='stg'):
    ds, grp = n // 6, n % 6
    slot = vGA + (n % 3) * 8
    r = []
    for ks in range(2): r += dsr("ds_read_b128", vr(slot + ks * 4, 4), vGa, sbase(27 + ds // 2), (((ds % 2) * 2 + ks) * 6 + grp) * 1024, rd=[tagr])
    return r
def acc3(grp, j): return vAcc + (grp * 4 + j) * 4

def tail_pv(base):
    s = L(f"s_sub_u32 s{sOffB}, s{sOffB}, {20*4096}")
    s += pace(b_loads(BBUF[0]), base - 8, base + 22)
    for T in range(12):
        s += pv_T(T, 15)
        if T < 6: s += v_reads(26, T + 6)
        if T == 5:
            s.append(barrier("st27", after=base + 24))
            s += g_reads(0) + g_reads(1)
            s += pace(b_loads(BBUF[1]), base + 22, base + 48)
    for j in range(4): s += xreduce(vLs + j, vTmp + j, "v_add_f32")
    s += L(f"""v_add_f32 v{vTmp}, v{vLs}, v{vLs+1}
v_add_f32 v{vTmp+1}, v{vLs+2}, v{vLs+3}
v_add_f32 v{vTmp}, v{vTmp}, v{vTmp+1}
v_cmp_ngt_f32 vcc, {hex(f2u(2.0**40))}, v{vTmp}""")
    for j in range(4): s.append(I(f"v_rcp_f32 v{vLs+j}, v{vLs+j}"))
    return s

def split(lst):
    ch = []; cur = []
    for x in lst:
        cur.append(x)
        if x.kind == 'vmem': ch.append(cur); cur = []
    if cur: ch[-1] += cur
    return ch
def merge(qs):
    qs = [list(q) for q in qs]
    w = [len(q) for q in qs]; tot = sum(w); acc = [0.0] * len(qs); seq = []
    for k in range(tot):
        for z in range(len(qs)): acc[z] += w[z]
        z = max((z for z in range(len(qs)) if qs[z]), key=lambda z: acc[z])
        acc[z] -= tot; seq.append(qs[z].pop(0))
    return seq

vOA = 32; vOB = 33; vDA = 34; vDB = 35
vOa = 40; vPo = 41; vFa = 42; vFa2 = 43; vFl = 44
vAc = 64; vDc = 144; vPk = 164; vXr = 204; vPl = 64
def fA(e, t, ks): return e * 72 + (t * 2 + ks) * 4
def fB(e, j, ks): return 40 + e * 72 + (ks * 4 + j) * 4
def dA(e, n): return (144 if e == 0 else 0) + n * 4
def dB(e, ks): return (144 if e == 0 else 0) + 80 + ks * 4
def dmaA(sg, rd='stg'):
    r = []
    if sg == 24: r += L(f"s_mov_b32 s{sOffA}, s{sOffRo}")
    r.append(I(f"s_add_u32 m0, s{sM5}, {obase(sg)}"))
    for n in range(5):
        if n == 4: r += L(f"s_add_u32 m0, s{sM5}, {obase(sg)+4096}\ns_add_u32 s{sOffA}, s{sOffA}, 4096")
        r.append(I(f"buffer_load_dwordx4 v{vL16}, {sr(sWS,4)}, s{sOffA} offen offset:{1024*(n%4)} sc1 lds", tag_w=f"ot{sg}", rd=[rd]))
    r.append(I(f"s_add_u32 s{sOffA}, s{sOffA}, {20480-4096}"))
    return r
def dmaB(sg, rd='stg'):
    r = []
    if sg == 24: r += L(f"s_mov_b32 s{sOffBB}, s{sOffRd}")
    r.append(I(f"s_add_u32 m0, s{sM4}, {obase(sg)+20480}"))
    for n in range(4):
        r.append(I(f"buffer_load_dwordx4 v{vL16}, {sr(sWS,4)}, s{sOffBB} offen offset:{1024*n} sc1 lds", tag_w=f"ot{sg}", rd=[rd]))
    r.append(I(f"s_add_u32 s{sOffBB}, s{sOffBB}, {8192 if sg < 24 else 16384}"))
    return r
def o_reads(sg):
    e = sg % 2; kw = dict(rd=['stg'], tag_w=f"rd{sg}")
    r = []
    if sg < 24:
        for ks in range(2): r += dsr("ds_read_b128", ar(fA(e, 0, ks), 4), vOA, obase(sg), ks * 10240, **kw)
        for j in range(4):
            for ks in range(2): r += dsr("ds_read_b128", ar(fB(e, j, ks), 4), vOB, obase(sg), ks * 8192 + j * 1024, **kw)
        for t in range(1, 5):
            for ks in range(2): r += dsr("ds_read_b128", ar(fA(e, t, ks), 4), vOA, obase(sg), (ks * 10 + t) * 1024, **kw)
    else:
        for ks in range(4): r += dsr("ds_read_b128", ar(dB(e, ks), 4), vDB, obase(sg), ks * 4096, **kw)
        for T in range(5):
            for ks in range(4): r += dsr("ds_read_b128", ar(dA(e, ks * 5 + T), 4), vDA, obase(sg), (ks * 5 + T) * 1024, **kw)
    return r
def o_block(sg, extra=(), pre=(), mid=(), exfirst=False):
    e = sg % 2
    n = 40 if sg < 24 else 20
    s = list(pre)
    if sg < 35:
        s += [I("s_barrier", tag_r=[f"ot{sg+1}", f"rd{sg}"], wr=['stg'], after=2 if sg < 24 else 0)]
        s += o_reads(sg + 1)
    vm = []
    if sg + 4 <= 35:
        db = dmaB(sg + 4)
        vm = split(db[:2] + list(mid) + db[2:] + dmaA(sg + 4))
    ex = split(list(extra)) if any(x.kind == 'vmem' for x in extra) else []
    if exfirst: seq = list(extra) + [x for ch in vm for x in ch]
    else: seq = [x for ch in merge([vm, ex]) for x in ch] if ex else [x for ch in vm for x in ch] + list(extra)
    if any(x.kind == 'vmem' for x in seq): pace(seq, 3 if sg < 24 else 1, n)
    s += seq
    if sg < 24:
        for t in range(5):
            for j in range(4):
                for ks in range(2):
                    d = vr(vAc + (t * 4 + j) * 4, 4)
                    s.append(mfma(d, ar(fA(e, t, ks), 4), ar(fB(e, j, ks), 4), "0" if (sg == 0 and ks == 0) else d))
    else:
        for T in range(5):
            d = vr(vDc + T * 4, 4)
            for ks in range(4): s.append(mfma(d, ar(dA(e, ks * 5 + T), 4), ar(dB(e, ks), 4), "0" if (sg == 24 and ks == 0) else d))
    return s

OF = PAR('OF', 4); OC = PAR('OC', 7); WC = PAR('WC', 5)
vFo2 = 37
vHs = 48
def p3_steps():
    oe = []
    n = 0
    for p in range(6):
        for j in range(4):
            t = vTmp + (n % 2) * 8; o = vOP + (n % 6) * 4
            it = []
            for tt in range(2):
                for i in range(4): it.append(I(f"v_accvgpr_read_b32 v{t+tt*4+i}, a{((2*p+tt)*4+j)*4+i}"))
            for i in range(8): it.append(I(f"v_mul_f32 v{t+i}, v{t+i}, v{vLs+j}"))
            for i in range(4): it.append(I(f"v_cvt_pk_bf16_f32 v{o+i}, v{t+2*i}, v{t+2*i+1}"))
            it.append(I(f"buffer_store_dwordx4 {vr(o,4)}, v{vL16}, {sr(sWS,4)}, s{sOffO} offen offset:{1024*j} sc1", tag_w="Ost"))
            if j == 3: it.append(I(f"s_add_u32 s{sOffO}, s{sOffO}, 4096"))
            oe.append(it); n += 1
    nst = [int(x) for x in os.environ.get("NST", "6,6,6,6,0,0,0,0,0,0").split(",")]
    g29, g30, g31 = split(dma_stage(29)), split(dma_stage(30)), split(dma_stage(31))
    dm = {0: g29[:3], 1: g29[3:], 2: g30[:3], 3: g30[3:], 4: g31}
    dm[WC + 1] = split(dmaA(0, 'x'))
    for k, stp in ((1, 6), (2, 8)):
        dm.setdefault(max(stp, WC + 2), []); dm[max(stp, WC + 2)] += split(dmaA(k, 'x'))
    for k, stp in ((0, OC + 1), (1, OC + 1), (2, max(8, OC + 1))):
        if stp <= 9: dm.setdefault(stp, []); dm[stp] = dm[stp] + split(dmaB(k, 'x'))
    steps = []
    for ds in range(10):
        s = []
        take = split(b_loads(BBUF[(ds + 2) % 4])) if ds + 2 < 10 else []
        st = [oe.pop(0) for _ in range(nst[ds])]
        seq = merge([take, dm.get(ds, []), st])
        if ds == 2: seq.insert(0, [set_flag(f"s{sFg}", None)])
        if ds == WC: seq.insert(0, L(f"s_mov_b32 s{sT0}, {hex(FW)}") + [poll_load(vFl, vL16, f"s{sT0}", 4)])
        if ds == OF: seq.append([set_flag(f"s{sFl}", "Ost")])
        if ds == 7:
            seq.insert(0, L(f"v_and_b32 v{vHs+8}, 15, v0\nv_lshlrev_b32 v{vHs+8}, 3, v{vHs+8}"))
            for j in range(4): seq.append([I(f"buffer_load_dwordx2 {vr(vHs+2*j,2)}, v{vHs+8}, {sr(sWS,4)}, s{sScale} offen offset:{128*j} sc1")])
        if ds == 9:
            k2 = (math.sqrt(192.0) / math.log2(math.e)) ** 2
            for j in range(4): seq.insert(0, L(f"v_mul_f32 v{vHs+2*j+1}, v{vHs+2*j+1}, v{vHs+2*j+1}\nv_mul_f32 v{vHs+2*j+1}, {hex(f2u(k2))}, v{vHs+2*j+1}"))
        if ds == OC: seq.insert(len(seq) // 3, [poll_load(vFo2, vFa, f"s{sT1}")])
        flat = [x for ch in seq for x in ch]
        s += ('pace', flat),
        for grp in range(6):
            n = ds * 6 + grp
            if n + 2 < 60:
                if (n + 2) % 12 == 0:
                    stg = 27 + (n + 2) // 12
                    tags = [f"st{stg}"] + (["Wst"] if stg == 28 else [])
                    s.append(I("s_barrier", tag_r=tags, wr=['stg2'], after=24))
                s += g_reads(n + 2, 'stg2')
            slot = vGA + (n % 3) * 8
            B = BBUF[ds % 4]
            for j in range(4):
                for ks in range(2):
                    d = vr(acc3(grp, j), 4)
                    s.append(mfma(d, vr(slot + ks * 4, 4), rr((B[0], B[1] + (ks * 4 + j) * 4)), "0" if (ds == 0 and ks == 0) else d))
            if ds == 9 and grp % 2 == 1: s += h_epilogue(grp // 2)
        steps.append(s)
    assert not oe
    return steps
def h_epilogue(T3):
    s = []
    if True:
        for jp in range(2):
            o = vOP + ((T3 * 2 + jp) % 6) * 4
            for jj in range(2):
                j = jp * 2 + jj
                g = acc3(2 * T3, j); u = acc3(2 * T3 + 1, j)
                for i in range(4): s.append(I(f"v_mul_f32 v{g+i}, v{g+i}, v{vHs+2*j+1}"))
                for i in range(4): s.append(I(f"v_mul_f32 v{g+i}, v{g+i}, v{u+i}"))
                for i in range(2): s.append(I(f"v_cvt_pk_bf16_f32 v{o+jj*2+i}, v{g+2*i}, v{g+2*i+1}"))
            for i in range(2): s.append(I(f"v_permlane32_swap_b32 v{o+i}, v{o+2+i}"))
            s.append(I(f"buffer_store_dwordx4 {vr(o,4)}, v{vT}, {sr(sWS,4)}, s{sOffH+T3} offen offset:{2048*jp} sc1", tag_w="Hst"))
    return s
def join_steps(steps, n=48):
    out = []
    for k, s in enumerate(steps):
        base = k * n
        for x in s:
            if isinstance(x, tuple):
                if any(y.kind == 'vmem' for y in x[1]): pace(x[1], base, base + n - 1)
                out += x[1]
            else:
                if x.after is not None: x.after += base
                out.append(x)
    return out

def gen_fallback():
    F = Prog()
    vK = 232; vS = 176; vP = 208
    vf, vv, va = 48, 49, 50
    sK_, sV_ = sK, sV
    def kload():
        return [I(f"buffer_load_dwordx4 {vr(vK+4*p,4)}, v{vf}, {sr(sK_,4)}, s{sT0} offen offset:{64*p}") for p in range(6)] + L(f"s_add_u32 s{sT0}, s{sT0}, 6144")
    def chains(kt, c0):
        s = []
        for j in range(4):
            d = vr(vS + (j * 2 + kt) * 4, 4)
            for p in range(6): s.append(mfma(d, vr(vK + 4 * p, 4), vr(vQ + (p * 4 + j) * 4, 4), d if p else c0(j)))
        return s
    c = L("L_fb:\ns_waitcnt vmcnt(0) lgkmcnt(0)\ns_nop 15")
    c += L(f"""v_and_b32 v54, 15, v0
v_lshrrev_b32 v55, 4, v0
v_mul_u32_u24 v{vf}, 384, v54
v_lshl_add_u32 v{vf}, v55, 4, v{vf}
v_lshrrev_b32 v56, 3, v0
v_and_b32 v57, 7, v0
v_and_b32 v58, 6, v56
v_xor_b32 v57, v57, v58
v_mul_u32_u24 v{vv}, 384, v56
v_lshl_add_u32 v{vv}, v57, 4, v{vv}
v_lshrrev_b32 v56, 2, v54
v_lshl_add_u32 v56, v55, 2, v56
v_bfe_u32 v57, v56, 1, 2
v_lshlrev_b32 v56, 7, v56
v_and_b32 v58, 3, v0
v_lshl_add_u32 v56, v58, 3, v56
s_lshl_b32 s{sT2}, s{sW}, 12
s_add_u32 s{sT2}, s{sT2}, {LDS_X}
v_add_u32 v56, s{sT2}, v56""")
    for x in range(4): c += L(f"v_xor_b32 v58, {x}, v57\nv_lshl_add_u32 v{va+x}, v58, 5, v56")
    c += L(f"""s_mul_i32 s{sT1}, s{sH}, 786432
s_add_u32 s{sT1}, s{sT1}, {1536*384}
s_mov_b32 s{sT0}, s{sT1}
s_mov_b32 s{sSpin}, 0""")
    for j in range(4): c += L(f"v_mov_b32 v{vNm+4*j}, 0xff800000")
    F.block("a", c)
    c = L("L_fb1:") + kload() + chains(0, lambda j: "0")
    for j in range(4):
        a = vS + j * 8; m = vNm + 4 * j
        c += L(f"v_max3_f32 v{m}, v{m}, v{a}, v{a+1}\nv_max3_f32 v{m}, v{m}, v{a+2}, v{a+3}")
    c += L(f"s_add_u32 s{sSpin}, s{sSpin}, 1\ns_cmp_lt_u32 s{sSpin}, 32\ns_cbranch_scc1 L_fb1")
    F.block("b", c)
    c = []
    for j in range(4):
        m = vNm + 4 * j
        c += xreduce(m, m + 1, "v_max_f32")
        c += L(f"v_sub_f32 v{m+1}, 0, v{m}\nv_sub_f32 v{m+2}, 0, v{m}\nv_sub_f32 v{m+3}, 0, v{m}\nv_sub_f32 v{m}, 0, v{m}\nv_mov_b32 v{vLs+j}, 0")
    for i in range(192): c.append(I(f"v_accvgpr_write_b32 a{i}, 0"))
    c += L(f"s_mov_b32 s{sT0}, s{sT1}\ns_mov_b32 s{sSpin}, 0")
    F.block("c", c)
    c = L("L_fb2:")
    for kt in range(2): c += kload() + chains(kt, lambda j: vr(vNm + 4 * j, 4)) + L("s_nop 7")
    for j in range(4):
        for kt in range(2):
            a = vS + (j * 2 + kt) * 4
            for i in range(4): c.append(I(f"v_exp_f32 v{a+i}, v{a+i}"))
            for i in range(4): c.append(I(f"v_add_f32 v{vLs+j}, v{vLs+j}, v{a+i}"))
            for i in range(2): c.append(I(f"v_cvt_pk_bf16_f32 v{vP+j*4+kt*2+i}, v{a+2*i}, v{a+2*i+1}"))
    for cg in range(3):
        for a in range(4):
            c += L(f"""s_add_u32 m0, s{sT2}, {1024*a}
s_add_u32 s{sOffP}, s{sT1}, {3072*a+128*cg}
buffer_load_dwordx4 v{vv}, {sr(sV_,4)}, s{sOffP} offen lds""")
        c += L("s_waitcnt vmcnt(0)")
        for x in range(4):
            for u in range(2): c.append(I(f"ds_read_b64_tr_b16 {vr(vK+4*x+2*u,2)}, v{va+x} offset:{2048*u}"))
        c += L("s_waitcnt lgkmcnt(0)")
        for x in range(4):
            for j in range(4):
                d = ar(((cg * 4 + x) * 4 + j) * 4, 4)
                c.append(mfma(d, vr(vK + 4 * x, 4), vr(vP + 4 * j, 4), d))
        c += L("s_nop 7")
    c += L(f"s_add_u32 s{sT1}, s{sT1}, 12288\ns_add_u32 s{sSpin}, s{sSpin}, 1\ns_cmp_lt_u32 s{sSpin}, 16\ns_cbranch_scc1 L_fb2")
    F.block("d", c)
    c = []
    for j in range(4): c += xreduce(vLs + j, vTmp + j, "v_add_f32")
    for j in range(4): c.append(I(f"v_rcp_f32 v{vLs+j}, v{vLs+j}"))
    c += L("s_nop 15\ns_branch L_fb_back")
    F.block("e", c)
    F.trace = [("a", {}), ("b", {}), ("b", {}), ("c", {}), ("d", {}), ("d", {}), ("e", {})]
    F.insert_waits(); F.fix_hazards()
    return F.text()


def gen(dbg=False):
    P = Prog()
    OUTL.clear(); AD.clear()
    for i in range(2): AD[vWa + i] = Addr(vWa + i, sbase(0)); AD[vKa + i] = Addr(vKa + i, 0)
    for i in range(4): AD[vVa + i] = Addr(vVa + i, 0)
    AD[vRa] = Addr(vRa, sbase(12)); AD[vGa] = Addr(vGa, sbase(27))
    AD[vOA] = Addr(vOA, obase(0)); AD[vOB] = Addr(vOB, obase(0)); AD[vDA] = Addr(vDA, obase(24)); AD[vDB] = Addr(vDB, obase(24))
    nblk = [0]
    def blk(ins, name=None):
        nm = name or f"b{nblk[0]}"; nblk[0] += 1
        P.block(nm, ins); P.trace.append((nm, {}))
    CPA = PAR("CPA", 10000)
    cp = [3]
    def sch(s, name, **kw):
        if name.startswith("p2_") or name.startswith("p1_"):
            if "nost" in KN: s = [x for x in s if not (x.kind == 'vmem' and 'store_dwordx4' in x.text)]
            if "nobar" in KN: s = [x for x in s if x.kind != 'barrier']
            if "novm" in KN: s = [x for x in s if not (x.kind == 'vmem' and 'dwordx4' in x.text and 'v[48:51]' not in x.text)]
            if "novalu" in KN and name.startswith("p2_"): s = [x for x in s if not (x.kind in ('valu', 'trans') and x.text.startswith(('v_exp', 'v_add_f32', 'v_cvt')))]
        if name.startswith("p3"):
            if "p3nost" in KN: s = [x for x in s if not (x.kind == 'vmem' and 'store_dwordx4' in x.text)]
            if "p3nob" in KN: s = [x for x in s if not (x.kind == 'vmem' and 'load_dwordx4' in x.text and ' lds' not in x.text and f"s{sOffB} " in x.text)]
            if "p3novalu" in KN: s = [x for x in s if not (x.kind == 'valu' and x.text.startswith(('v_accvgpr', 'v_mul_f32', 'v_cvt')))]
            if "p3plain" in KN:
                for x in s:
                    if 'store_dwordx4' in x.text: x.text = x.text.replace(" sc1", "")
            if "p3nt" in KN:
                for x in s:
                    if 'store_dwordx4' in x.text: x.text = x.text.replace(" sc1", " sc1 nt")
        pos = sum(isize(x) for b in P.blocks for x in b[1]) * 1.03
        end = pos + sum(isize(x) for x in s) * 1.03
        nm = sum(1 for x in s if x.kind == 'mfma')
        while "nocp" not in KN and cp[0] * 8192 < end + CPA and cp[0] < NSLICE:
            g = int(max(0, min(nm - 2, (cp[0] * 8192 - CPA - pos) / (end - pos) * nm)))
            k = next((i for i, x in enumerate(s) if x.kind == 'vmem' and x.after is not None and x.after > g), len(s))
            s = s[:k] + [I(f"global_load_dword v{vDum}, v{vL16}, s[62:63]", after=g), I("s_add_u32 s62, s62, 0x2000"), I("s_addc_u32 s63, s63, 0")] + s[k:]
            cp[0] += 1
        blk(schedule(s, name, verbose=dbg and "v" in KN, **kw), name)
    CC = math.log2(math.e) / math.sqrt(192.0)
    c = L(f"""s_cmp_ge_u32 s2, 256
s_cbranch_scc1 L_end
s_load_dwordx16 s[64:79], s[0:1], 0
s_load_dwordx8 s[80:87], s[0:1], 64
s_memrealtime s[{sSt}:{sSt+1}]
s_getpc_b64 s[62:63]
v_lshrrev_b32 v30, 6, v0
v_and_b32 v0, 63, v0
v_readfirstlane_b32 s{sW}, v30
v_lshlrev_b32 v{vL16}, 4, v0
v_lshlrev_b32 v{vL128}, 7, v0
v_and_b32 v48, 7, v0
v_lshrrev_b32 v49, 3, v0
v_mul_u32_u24 v60, 1280, v48
v_lshl_add_u32 v50, v49, 4, v60
v_lshl_add_u32 v50, v30, 7, v50
s_mul_i32 s{sT0}, s2, {8*1280}
s_and_b32 s{sT1}, s2, 7
s_lshr_b32 s{sT2}, s2, 3
s_and_b32 s{sH}, s{sT2}, 3
s_lshl2_add_u32 s{sH}, s{sT1}, s{sH}
s_lshr_b32 s{sB}, s{sT2}, 2
s_lshr_b32 s{sS}, s{sT1}, 1
s_and_b32 s{sT1}, s{sT1}, 1
s_lshl3_add_u32 s{sMb}, s{sT1}, s{sB}
s_and_b32 s{sNb}, s{sT2}, 3
v_cmp_eq_u32 vcc, 0, v0
v_bfrev_b32 v51, 1
v_cndmask_b32 v{vFo}, v51, 0, vcc
v_cmp_gt_u32 vcc, 2, v30
v_add_u32 v53, 1024, v50
v_cndmask_b32 v53, v51, v53, vcc
s_lshl2_add_u32 s{sT2}, s{sT2}, s{sW}
s_and_b32 s{sT2}, s{sT2}, 15
s_min_u32 s{sT2}, s{sT2}, CODE_SLICES-1
s_lshl_b32 s{sT2}, s{sT2}, 13
v_add_u32 v52, s{sT2}, v{vL128}
global_load_dword a{aDum}, v52, s[62:63]
v_lshrrev_b32 v54, 4, v0
v_and_b32 v55, 15, v0
v_and_b32 v61, 6, v49
v_xor_b32 v61, v61, v48
v_lshlrev_b32 v61, 4, v61
v_mul_u32_u24 v62, 1280, v49
v_add_u32 v{vRo2}, v62, v61
v_and_b32 v62, 4, v49
v_add_u32 v62, v62, v49
v_mul_u32_u24 v62, 3072, v62
v_add_u32 v{vRo}, v62, v61
s_lshl_b32 s{sM5}, s{sW}, 13
s_add_u32 s{sM4}, s{sM5}, {SLOT}
s_cmp_eq_u32 s{sW}, 3
s_cmov_b32 s{sM5}, {LDS_X + 4096}
s_lshl2_add_u32 s{sQg}, s{sB}, s{sW}
s_mul_i32 s{sOffBB}, s{sQg}, {64*1280}""")
    if STAMPS: c += L(f"v_mov_b32 v{vSt}, 0")
    c += L("s_waitcnt lgkmcnt(0)")
    c += srd(sXin, pX, 2048 * 640 * 2)
    c += L(f"""buffer_load_dwordx4 v[64:67], v50, {sr(sXin,4)}, s{sT0} offen
buffer_load_dwordx4 v[68:71], v50, {sr(sXin,4)}, s{sT0} offen offset:512
buffer_load_dwordx4 v[72:75], v53, {sr(sXin,4)}, s{sT0} offen
buffer_load_ushort v76, v60, {sr(sXin,4)}, s{sT0} offen""")
    c += srd(sR, pDbg, 256)
    c += L(f"""s_or_b32 s{sNonce}, s{sSt}, 1
v_mov_b32 v56, s{sNonce}
v_mov_b32 v57, 0
s_or_b32 s{sT1}, s2, s{sW}
s_cmp_eq_u32 s{sT1}, 0
s_cselect_b32 s{sT1}, 0, 0x100
buffer_atomic_cmpswap v[56:57], v{vFo}, {sr(sR,4)}, s{sT1} offen sc1""")
    c += stamp(0)
    def rawdma(ds):
        r = []
        for a in range(8):
            r += L(f"s_add_u32 m0, s{sM4 if ds == 0 else sM5}, {a*1024}\ns_add_u32 s{sOffA}, s{sOffBB}, {a*8*1280+128*ds}")
            r.append(I(f"buffer_load_dwordx4 v{vRo2}, {sr(sXin,4)}, s{sOffA} offen lds", tag_w=f"raw{ds}"))
        return r
    def inter(vm, fill):
        ch = split(vm); out = []; per = -(-len(fill) // len(ch))
        for k, cc in enumerate(ch): out += cc + fill[k * per:(k + 1) * per]
        return out
    f1 = []
    for n in range(3):
        f1.append(I(f"v_add_u32 v61, {64*n}, v0"))
        f1 += divmod_const(62, 63, 61, 24)
        f1 += L(f"""v_and_b32 v57, 6, v62
v_xor_b32 v57, v63, v57
v_lshlrev_b32 v57, 4, v57
v_subrev_u32 v57, {1024*n}, v57
v_and_b32 v59, 4, v62
v_add_u32 v59, v59, v62
v_mul_u32_u24 v59, 12288, v59
v_add_u32 v{vWo+n}, v59, v57""")
    f1 += srd(sWq, pWq, 640 * 6144 * 2) + srd(sWS, pWs, WS_SIZE)
    f1 += L(f"""s_lshr_b32 s{sT0}, s{sW}, 1
s_and_b32 s{sOffY}, s{sW}, 1
s_lshl_b32 s{sT2}, s{sT0}, 5
s_lshl2_add_u32 s{sT2}, s{sOffY}, s{sT2}
s_mul_i32 s{sOffX}, s{sT2}, 12288
s_mul_i32 s{sT2}, s{sH}, 384
s_add_u32 s{sOffX}, s{sOffX}, s{sT2}
s_mul_i32 s{sM6}, s{sW}, 6144""")
    f2 = L(f"""v_lshrrev_b32 v56, 2, v55
v_and_b32 v57, 3, v0
v_lshl_add_u32 v58, v54, 2, v56
v_bfe_u32 v59, v58, 1, 2
v_mul_u32_u24 v62, 384, v58
v_add_u32 v62, {sbase(0)}, v62
v_lshlrev_b32 v63, 1, v59
v_xor_b32 v63, v63, v57
v_lshl_add_u32 v{vWa}, v63, 4, v62
v_xor_b32 v63, 4, v63
v_lshl_add_u32 v{vWa+1}, v63, 4, v62
v_bfe_u32 v{vPa}, v0, 2, 3
v_lshlrev_b32 v{vPa}, 7, v{vPa}
v_lshl_add_u32 v{vPa}, v57, 2, v{vPa}
v_lshlrev_b32 v{vSo}, 3, v55
v_lshlrev_b32 v62, 7, v55
v_and_b32 v63, 6, v55
v_xor_b32 v63, v63, v54
v_lshl_add_u32 v{vXo2}, v63, 4, v62
v_xor_b32 v63, 4, v63
v_lshl_add_u32 v{vXo2+1}, v63, 4, v62
v_add_u32 v{vXo}, s{sM4}, v{vXo2}
v_add_u32 v{vXo+1}, s{sM4}, v{vXo2+1}
v_add_u32 v{vXo2}, s{sM5}, v{vXo2}
v_add_u32 v{vXo2+1}, s{sM5}, v{vXo2+1}
v_lshlrev_b32 v58, 3, v48
v_add_u32 v58, {LDS_X}, v58
v_lshl_add_u32 v59, v30, 6, v58
v_lshrrev_b32 v56, 2, v49
v_lshl_add_u32 v56, v30, 1, v56
v_lshlrev_b32 v56, 12, v56
v_and_b32 v57, 3, v49
v_lshl_add_u32 v56, v57, 8, v56
v_lshl_add_u32 v56, v48, 4, v56
v_add_u32 v57, {16*4096}, v56
v_cndmask_b32 v57, v51, v57, vcc
v_or_b32 v61, v49, v30
v_cmp_eq_u32 vcc, 0, v61
v_lshlrev_b32 v61, 3, v48
v_cndmask_b32 v61, v51, v61, vcc
s_lshr_b32 s{sT2}, s2, 3
s_mul_i32 s{sT2}, s{sT2}, {20*4096}
s_bfe_u32 s{sOffK}, s2, 0x20001
s_lshl_b32 s{sOffK}, s{sOffK}, 10
s_add_u32 s{sT2}, s{sT2}, s{sOffK}
s_and_b32 s{sOffK}, s2, 1
s_lshl_b32 s{sOffK}, s{sOffK}, 7
s_add_u32 s{sT2}, s{sT2}, s{sOffK}
s_add_u32 s{sOffK}, s{sT2}, {8*4096}
s_lshl_b32 s{sOffP}, s2, 6
s_add_u32 s{sOffP}, s{sOffP}, {hex(ST_OFF)}
s_lshr_b32 s{sSpin}, s{sW}, 1
s_sub_u32 s{sSpin}, s{sSpin}, 1
s_and_b32 s{sSpin}, s{sSpin}, 0x3f800000""")
    pfv = divmod_const(62, 63, 0, 3) + L(f"""v_mul_u32_u24 v62, 12288, v62
v_lshl_add_u32 v62, v63, 7, v62
v_cmp_gt_u32 vcc, 12, v0
v_cndmask_b32 v{vL128}, v51, v62, vcc
s_lshl_b32 s{sQd}, s{sQg}, 2
s_add_u32 s{sQd}, s{sQd}, 256
s_mul_i32 s{sQd}, s{sQd}, 12288
s_mul_i32 s{sOffG}, s{sH}, 384
s_add_u32 s{sQd}, s{sQd}, s{sOffG}""")
    f2 += pfv
    for i in range(4): f2.append(I(f"v_mov_b32 v{vOne+i}, 0x3f803f80"))
    c += inter(rawdma(0), f1)
    c += inter(dma_stage(0), f2)
    c += L(f"v_mov_b32 v60, 0\nbuffer_load_dword v{vNon}, v60, {sr(sR,4)}, 0 offen sc1\ns_mov_b32 s{sT1}, s{sOffY}\ns_mov_b32 s{sT3}, s{sOffK}")
    su0 = L(f"""s_lshl_b32 s{sFl}, s2, 7
s_lshl2_add_u32 s{sFl}, s{sW}, s{sFl}
s_add_u32 s{sFl}, s{sFl}, {hex(FXN)}
s_lshl_b32 s{sFg}, s{sQg}, 10
s_add_u32 s{sFg}, s{sFg}, {hex(FXN)}
s_lshl_b32 s{sScale}, s{sQg}, 9
s_add_u32 s{sScale}, s{sScale}, {hex(ST_OFF)}
s_mul_i32 s{sOffB}, s{sQg}, {20*4096}
s_add_u32 s{sOffB}, s{sOffB}, {4*4096}
s_mul_i32 s{sM3}, s{sW}, 3072
s_mul_i32 s{sOffK}, s{sH}, 786432
s_add_u32 s{sOffK}, s{sOffK}, {1536*384}
s_add_u32 s{sOffK}, s{sOffK}, s{sM3}
s_mov_b32 s{sOffV}, s{sOffK}
s_lshr_b32 s{sPf}, s2, 3
s_lshl2_add_u32 s{sPf}, s{sPf}, s{sW}
s_and_b32 s{sPf}, s{sPf}, 7
s_lshl_b32 s{sPf}, s{sPf}, 10
s_add_u32 s{sPf}, s{sPf}, {3*8192}
s_add_u32 s62, s62, s{sPf}
s_addc_u32 s63, s63, 0""") + srd(sK, pK, 32 * 2048 * 192 * 2) + srd(sV, pV, 32 * 2048 * 192 * 2)
    wpf = lambda: ([prefetch(sWq, f"s{sQd}")] + L(f"s_add_u32 s{sQd}, s{sQd}, {128*12288}")) if "nowpf" not in KN else []
    vu = []
    for n in range(3):
        vu.append(I(f"v_add_u32 v61, {64*n}, v0"))
        vu += divmod_const(62, 63, 61, 24)
        vu += L(f"""v_and_b32 v57, 6, v62
v_xor_b32 v57, v63, v57
v_lshlrev_b32 v57, 4, v57
v_subrev_u32 v57, {1024*n}, v57
v_mul_u32_u24 v58, 384, v62
v_add_u32 v{vVo+n}, v58, v57
v_lshrrev_b32 v59, 1, v62
v_lshl_add_u32 v59, s{sW}, 2, v59
v_and_b32 v59, 7, v59
v_xor_b32 v59, v63, v59
v_lshlrev_b32 v59, 4, v59
v_subrev_u32 v59, {1024*n}, v59
v_add_u32 v{vKo+n}, v58, v59""")
    vu += L(f"""v_lshrrev_b32 v56, 2, v55
v_and_b32 v57, 3, v0
v_lshl_add_u32 v58, v54, 2, v56
v_bfe_u32 v59, v58, 1, 2
v_mul_u32_u24 v62, 384, v58
v_lshl_add_u32 v62, v57, 3, v62""")
    for x in range(4): vu += L(f"v_xor_b32 v63, {x}, v59\nv_lshl_add_u32 v{vVa+x}, v63, 5, v62")
    vu += L(f"""v_lshlrev_b32 v62, 7, v58
v_lshl_add_u32 v62, v57, 3, v62
v_xor_b32 v63, s{sW}, v59
v_lshl_add_u32 v62, v63, 5, v62
v_add_u32 v{vRa}, {sbase(12)}, v62
v_add_u32 v{vGa}, {sbase(27)}, v{vL16}
v_mul_u32_u24 v62, 384, v55
v_lshrrev_b32 v63, 1, v55
v_xor_b32 v63, v63, v54
v_lshl_add_u32 v{vKa}, v63, 4, v62
v_xor_b32 v63, 4, v63
v_lshl_add_u32 v{vKa+1}, v63, 4, v62""")
    for i in range(4): vu.append(I(f"v_mov_b32 v{vLs+i}, 0"))
    c += L("v_lshlrev_b32 v76, 16, v76\nv_mov_b32 v77, v76")
    for i in range(12):
        c += L(f"v_lshlrev_b32 v{80+2*i}, 16, v{64+i}\nv_and_b32 v{81+2*i}, 0xffff0000, v{64+i}")
        c += L(f"v_pk_add_f32 v[{112+2*i}:{113+2*i}], v[{80+2*i}:{81+2*i}], v[76:77] neg_lo:[0,1] neg_hi:[0,1]")
    for i in range(12):
        a = 104 if i < 8 else 108
        d = vr(112 + 2 * i, 2)
        if i in (0, 8): c += L(f"v_pk_mul_f32 v[{a+2}:{a+3}], {d}, {d}\nv_mov_b32 v{a}, v{112+2*i}\nv_mov_b32 v{a+1}, v{113+2*i}")
        else: c += L(f"v_pk_fma_f32 v[{a+2}:{a+3}], {d}, {d}, v[{a+2}:{a+3}]\nv_pk_add_f32 v[{a}:{a+1}], v[{a}:{a+1}], {d}")
    c += L(f"""v_add_f32 v104, v104, v105
v_add_f32 v105, v106, v107
v_add_f32 v108, v108, v109
v_add_f32 v109, v110, v111
v_fmac_f32 v104, s{sSpin}, v108
v_fmac_f32 v105, s{sSpin}, v109
s_nop 1
v_add_f32_dpp v104, v104, v104 row_ror:8 row_mask:0xf bank_mask:0xf
v_add_f32_dpp v105, v105, v105 row_ror:8 row_mask:0xf bank_mask:0xf""")
    ra, rb = xreduce(104, 106, "v_add_f32"), xreduce(105, 107, "v_add_f32")
    for x, y in zip(ra, rb): c += [x, y]
    c += L(f"""ds_write_b64 v59, v[104:105]
s_waitcnt lgkmcnt(0)
s_barrier
ds_read_b64 v[104:105], v58
ds_read_b64 v[106:107], v58 offset:64
ds_read_b64 v[108:109], v58 offset:128
ds_read_b64 v[110:111], v58 offset:192
v_pk_add_f32 v[104:105], v[104:105], v[106:107]
v_pk_add_f32 v[108:109], v[108:109], v[110:111]
v_pk_add_f32 v[104:105], v[104:105], v[108:109]
v_mul_f32 v104, {hex(f2u(1.0/640))}, v104
v_mul_f32 v105, {hex(f2u(1.0/640))}, v105
v_fma_f32 v105, -v104, v104, v105
v_max_f32 v105, 0, v105
v_add_f32 v104, v104, v76
v_cvt_pk_bf16_f32 v104, v105, v104
v_and_b32 v108, 0xffff0000, v104
v_mov_b32 v109, v108""")
    for i in range(12):
        d = vr(80 + 2 * i, 2)
        c += L(f"""v_pk_add_f32 {d}, {d}, v[108:109] neg_lo:[0,1] neg_hi:[0,1]
v_cvt_pk_bf16_f32 v{64+i}, v{80+2*i}, v{81+2*i}""")
        if i == 3: c.append(I(f"buffer_store_dwordx4 v[64:67], v56, {sr(sWS,4)}, s{sT2} offen sc1", tag_w="Xst"))
        if i == 7: c.append(I(f"buffer_store_dwordx4 v[68:71], v56, {sr(sWS,4)}, s{sT3} offen sc1", tag_w="Xst"))
        if i == 11: c.append(I(f"buffer_store_dwordx4 v[72:75], v57, {sr(sWS,4)}, s{sT2} offen sc1", tag_w="Xst"))
    c += L(f"""v_lshlrev_b32 v104, 16, v104
v_add_f32 v104, {hex(f2u(1e-5))}, v104
v_cvt_pk_bf16_f32 v104, v104, v104
v_lshlrev_b32 v104, 16, v104
v_sqrt_f32 v104, v104
v_xor_b32 v106, 0x80000000, v108
v_cvt_pk_bf16_f32 v104, v104, v104
v_lshlrev_b32 v104, 16, v104
v_rcp_f32 v104, v104
s_nop 0
v_mul_f32 v107, {hex(f2u(CC))}, v104""")
    c.append(I(f"buffer_store_dwordx2 v[106:107], v61, {sr(sWS,4)}, s{sOffP} offen sc1", tag_w="Xst"))
    c += stamp(1)
    c += raw_reads(0)
    c.append(barrier(["st0", "rawrd0"]))
    c += w_reads0(0) + w_reads0(1)
    c += L(f"""v_readfirstlane_b32 s{sNonce}, v{vNon}
s_nop 3
s_cmp_lg_u32 s{sNonce}, 0
s_cbranch_scc0 L_nonce
L_nonce_ok:""")
    OUTL.append(("nonce", L(f"""L_nonce:
s_mov_b32 s{sSpin}, {SPIN_MAX}
L_nonce2:
buffer_load_dword v{vNon}, v60, {sr(sR,4)}, 0 offen sc1
s_waitcnt vmcnt(0)
v_readfirstlane_b32 s{sNonce}, v{vNon}
s_nop 3
s_cmp_lg_u32 s{sNonce}, 0
s_cbranch_scc1 L_nonce_ok
s_sub_u32 s{sSpin}, s{sSpin}, 1
s_cmp_lg_u32 s{sSpin}, 0
s_cbranch_scc1 L_nonce2
s_branch L_nonce_ok""")))
    c += stamp(2)
    blk(c, "pro")
    su = L(f"""s_mul_i32 s{sOffG}, s{sH}, {20*6144}
s_add_u32 s{sOffG}, s{sOffG}, s{sM6}
s_add_u32 s{sOffG}, s{sOffG}, {hex(GP_OFF)}
s_lshl_b32 s{sM1}, s{sW}, 10
s_mul_i32 s{sM5}, s{sW}, 5120
s_lshl_b32 s{sM4}, s{sW}, 12
s_mul_i32 s{sT2}, s{sQg}, {240*4096}
s_add_u32 s{sT2}, s{sT2}, {hex(OH_OFF)}
s_mul_i32 s{sT3}, s{sH}, {6*4096}
s_add_u32 s{sOffO}, s{sT2}, s{sT3}
s_add_u32 s{sT2}, s{sT2}, {192*4096}
s_mul_i32 s{sT3}, s{sH}, 3""")
    for T3 in range(3):
        su += L(f"""s_lshr_b32 s{sSpin}, s{sT3}, 1
s_lshl_b32 s{sSpin}, s{sSpin}, 12
s_add_u32 s{sOffH+T3}, s{sT2}, s{sSpin}
s_and_b32 s{sSpin}, s{sT3}, 1
s_lshl_b32 s{sSpin}, s{sSpin}, 9
s_add_u32 s{sOffH+T3}, s{sOffH+T3}, s{sSpin}
s_add_u32 s{sT3}, s{sT3}, 1""")
    su += L(f"""s_sub_u32 s{sT2}, s2, 240
s_min_u32 s{sT2}, s2, s{sT2}""")
    su += sdivmod(sT3, sSpin, sT2, 10)
    su += L(f"""s_lshl_b32 s{sOffRo}, s{sT3}, 8
s_lshl3_add_u32 s{sOffRo}, s{sW}, s{sOffRo}
s_mul_i32 s{sOffRo}, s{sOffRo}, 1280
s_lshl_b32 s{sFl}, s{sSpin}, 7
s_add_u32 s{sOffRo}, s{sOffRo}, s{sFl}
s_lshl_b32 s{sOffRd}, s{sT3}, 6
s_lshl4_add_u32 s{sOffRd}, s{sT1}, s{sOffRd}
s_lshl3_add_u32 s{sOffRd}, s{sT0}, s{sOffRd}
s_mul_i32 s{sOffRd}, s{sOffRd}, 1280
s_add_u32 s{sOffRd}, s{sOffRd}, s{sFl}
s_lshl2_add_u32 s{sSpin}, s{sSpin}, s{sW}""")
    su += sdivmod(sFl, sOffP, sSpin, 10)
    su += L(f"""s_mul_i32 s{sFl}, s{sFl}, 192
s_lshl3_add_u32 s{sFl}, s{sT3}, s{sFl}
s_mul_i32 s{sFl}, s{sFl}, 10
s_add_u32 s{sFl}, s{sFl}, s{sOffP}
s_lshl_b32 s{sFl}, s{sFl}, 10
s_add_u32 s{sOffDo}, s{sFl}, {hex(WOP_OFF)}""")
    su += sdivmod(sFl, sOffP, sSpin, 5)
    su += L(f"""s_mul_i32 s{sFl}, s{sFl}, 48
s_lshl1_add_u32 s{sFl}, s{sT3}, s{sFl}
s_mul_i32 s{sFl}, s{sFl}, 5
s_add_u32 s{sFl}, s{sFl}, s{sOffP}
s_lshl_b32 s{sFl}, s{sFl}, 10
s_add_u32 s{sOffDd}, s{sFl}, {hex(WDP_OFF)}""")
    su2 = sdivmod(sT3, sSpin, sT2, 48)
    su2 += [L(f"""s_cmp_ge_u32 s{sSpin}, 24
s_cselect_b32 s{pBx}, s{pWu}, s{pWg}
s_cselect_b32 s{pBx+1}, s{pWu+1}, s{pWg+1}
s_cselect_b32 s{sT2}, 1, 0
s_cselect_b32 s{sFl}, 24, 0""")]
    su2 += L(f"""s_sub_u32 s{sSpin}, s{sSpin}, s{sFl}
s_lshl_b32 s{sOffR}, s{sT3}, 7
s_lshl4_add_u32 s{sOffR}, s{sT1}, s{sOffR}
s_lshl2_add_u32 s{sOffR}, s{sT0}, s{sOffR}
s_mul_i32 s{sOffR}, s{sOffR}, 3072
s_lshl_b32 s{sFl}, s{sSpin}, 7
s_add_u32 s{sOffR}, s{sOffR}, s{sFl}
s_lshl2_add_u32 s{sSpin}, s{sSpin}, s{sW}""")
    su2 += sdivmod(sFl, sOffP, sSpin, 3)
    su2 += L(f"""s_mul_i32 s{sFl}, s{sFl}, 20
s_lshl2_add_u32 s{sFl}, s{sT3}, s{sFl}
s_mul_i32 s{sFl}, s{sFl}, 6
s_lshl1_add_u32 s{sFl}, s{sOffP}, s{sFl}
s_add_u32 s{sFl}, s{sFl}, s{sT2}
s_lshl_b32 s{sFl}, s{sFl}, 10
s_add_u32 s{sOffD}, s{sFl}, {hex(GP_OFF)}
s_lshl_b32 s{sFg}, s2, 2
s_add_u32 s{sFg}, s{sFg}, {hex(FG)}""")
    su2 += [L(f"s_cmp_eq_u32 s{sW}, 0\ns_cselect_b32 s{sFg}, s{sFg}, 0x40000000")]
    su2 += L(f"""s_lshl_b32 s{sFl}, s{sB}, 5
s_add_u32 s{sFl}, s{sFl}, s{sH}
s_lshl_b32 s{sFl}, s{sFl}, 7
s_lshl2_add_u32 s{sFl}, s{sW}, s{sFl}
s_add_u32 s{sFl}, s{sFl}, {hex(FO)}
s_mul_i32 s{sOffA}, s{sNb}, 192
s_mul_i32 s{sT2}, s{sS}, 48
s_add_u32 s{sOffA}, s{sOffA}, s{sT2}
s_mul_i32 s{sOffA}, s{sOffA}, 10240
s_add_u32 s{sOffA}, s{sOffA}, s{sM5}
s_add_u32 s{sOffA}, s{sOffA}, {hex(WOP_OFF)}
s_lshl1_add_u32 s{sOffBB}, s{sMb}, s{sT1}
s_mul_i32 s{sOffBB}, s{sOffBB}, 240
s_add_u32 s{sOffBB}, s{sOffBB}, s{sT2}
s_add_u32 s{sOffBB}, s{sOffBB}, s{sT0}
s_lshl_b32 s{sOffBB}, s{sOffBB}, 12
s_add_u32 s{sOffBB}, s{sOffBB}, {hex(OH_OFF)}
s_lshr_b32 s{sT2}, s{sS}, 1
s_lshl1_add_u32 s{sQd}, s{sMb}, s{sT2}""") + srd(sR, pBx, 640 * 1536 * 2)
    def weave(vm, sal):
        ch = split(vm); out = []
        per = -(-len(sal) // len(ch))
        for k, cc in enumerate(ch):
            out += cc
            for y in sal[k * per:(k + 1) * per]: out += y if isinstance(y, list) else [y]
        return out
    XH = PAR("XH", 15)
    XF = PAR("XF", 50); XQ = PAR("XQ", 110)
    q0a = pace(rawdma(1) + dma_stage(1), 0, PAR("Q0", 44)) + pace(dma_stage(2) + wpf() + dma_stage(3) + wpf(), 56, XH * 10 - 2)
    fl = set_flag(f"s{sFl}", "Xst", after=XF); pl_ = poll_load(vPd, vPa, f"s{sFg}", after=XQ)
    ch = split(q0a)
    for x in (fl, pl_):
        k = next((i for i, cc in enumerate(ch) if [y for y in cc if y.kind == 'vmem'][0].after > x.after), len(ch))
        ch.insert(k, [x])
    for k in range(8, 14): ch[k] = ch[k] + su0[(k - 8) * 1:(k - 7) * 1]
    ch[15] = ch[15] + su0[6:13]; ch[16] = ch[16] + su0[13:21]; ch[17] = ch[17] + su0[21:]
    for cc in ch:
        for x in cc: x.reads.discard('stg')
    sch(p1_first(0, XH, extra=[x for cc in ch for x in cc] + vu), "p1_0a", vm_min=3)
    fs = lambda k: blk(stamp(k)) if "fine1" in KN else None
    fs(14)
    blk(poll_cmp(vPd, 1) + poll_branch("xn", vPd, vPa, f"s{sFg}"))
    fs(15)
    bl = lambda k: b_loads(('a', 64 * (k % 2))) + b_loads(('a', 64 * (k % 2) + 32))
    sch(p1_first(XH, 24, extra=pace(bl(1), 0, 56)), "p1_0b", vm_min=3); fs(16)
    sch(p1_quad(1, vm=weave(dma_stage(4) + dma_stage(5) + wpf() + stat_loads() + bl(2), su)), "p1_1"); fs(17)
    sch(p1_quad(2, vm=weave(dma_stage(6) + dma_stage(7) + bl(3), su2)), "p1_2"); fs(18)
    sch(p1_quad(3, vm=dma_stage(8) + dma_stage(9) + bl(4) + dma_stage(10)), "p1_3")
    blk(stamp(3))
    sch(p1_quad(4, vm=dma_stage(11) + dma_stage(12)) + first_tile(192) + p2_iter(0, base=192 + 48), "p1_last")
    blk(stamp(4))
    XP = PAR("XP", 9)
    for t in range(1, 14):
        ex = []; post = []; btag = []
        if t == 6: btag = ["Gst"]
        if t == 7: ex += [set_flag(f"s{sFg}", None)] + L(f"s_add_u32 s{sFg}, s{sFg}, {FW-FG}")
        if t == 10: ex += L(f"s_mov_b32 s{sT0}, {hex(FG)}") + [poll_load(vTmp, vL16, f"s{sT0}", 4)]
        if t == 12: post += late(poll_cmp(vTmp, 4), 60)
        if "xpf" in KN and XP <= t < XP + 3:
            if t == XP: ex += L(f"""s_and_b32 s{sPf}, s{sH}, 3
s_mul_i32 s{sPf}, s{sPf}, 2048
s_mul_i32 s{sT2}, s{sQg}, {20*4096}
s_add_u32 s{sPf}, s{sPf}, s{sT2}
v_lshrrev_b32 v{vTmp+4}, 4, v0
v_and_b32 v{vTmp+5}, 15, v0
v_lshlrev_b32 v{vTmp+4}, 13, v{vTmp+4}
v_lshl_add_u32 v{vL128}, v{vTmp+5}, 7, v{vTmp+4}""")
            ex += [prefetch(sWS, f"s{sPf}", "sc1")] + L(f"s_add_u32 s{sPf}, s{sPf}, 32768")
        sch(p2_iter(t, extra=ex, post=post, btag=btag), f"p2_{t}")
        if t == 12: blk(poll_branch("g", vTmp, vL16, f"s{sT0}", 4))
    blk(stamp(5))
    sch(p2_iter(14) + tail_pv(96), "tail", vm_min=3)
    blk(L("s_cbranch_vccnz L_fb\nL_fb_back:") + stamp(6))
    steps = p3_steps()
    setup = L(f"""v_and_b32 v{vT}, 32, v0
v_lshlrev_b32 v{vT}, 4, v{vT}
v_add_u32 v{vT}, v{vT}, v{vL16}
s_lshr_b32 s{sT1}, s{sMb}, 1
s_lshl_b32 s{sT1}, s{sT1}, 5
s_lshl3_add_u32 s{sT1}, s{sS}, s{sT1}
s_lshl_b32 s{sT1}, s{sT1}, 7
s_and_b32 s{sT2}, s{sMb}, 1
s_and_b32 s{sT3}, s{sW}, 1
s_lshl1_add_u32 s{sT2}, s{sT2}, s{sT3}
s_lshl2_add_u32 s{sT1}, s{sT2}, s{sT1}
s_add_u32 s{sT1}, s{sT1}, {hex(FO)}
v_and_b32 v{vFa}, 7, v0
v_lshlrev_b32 v{vFa}, 7, v{vFa}
s_mul_i32 s{sT3}, s{sT3}, 5120
s_add_u32 s{sT3}, s{sT3}, {obase(0)}
v_add_u32 v{vOA}, s{sT3}, v{vL16}
s_lshr_b32 s{sT2}, s{sW}, 1
s_lshl_b32 s{sT2}, s{sT2}, 12
s_add_u32 s{sT2}, s{sT2}, {20480+obase(0)}
v_add_u32 v{vOB}, s{sT2}, v{vL16}
v_add_u32 v{vDA}, {obase(24)}, v{vL16}
s_add_u32 s{sT2}, s{sM1}, {20480+obase(24)}
v_add_u32 v{vDB}, s{sT2}, v{vL16}""")
    for k in range(10):
        body = (setup if k == 3 else []) + join_steps(steps[k:k+1])
        if k == 9 and OC < 9:
            body += [I("s_barrier", tag_r="ot0", wr=['stg'], rd=['stg2'], after=34)] + o_reads(0)
        sch(body, f"p3s{k}", vm_min=2)
        if k == WC: blk(poll_cmp(vFl, 4) + poll_branch("w", vFl, vL16, f"s{sT0}", 4))
        if k == OC: blk(poll_cmp(vFo2, 1) + poll_branch("o", vFo2, vFa, f"s{sT1}"))
        if "fine" in KN: blk(stamp(14 + k))
    c = stamp(7) + stamp(8)
    if OC == 9:
        c += dmaB(0) + dmaB(1) + dmaB(2)
        c.append(I("s_barrier", tag_r="ot0"))
        c += o_reads(0)
    c += stamp(9)
    blk(c, "o_pro")
    osetup = L(f"""s_lshr_b32 s{sT1}, s{sMb}, 1
s_lshl_b32 s{sT1}, s{sT1}, 12
s_and_b32 s{sT2}, s{sQd}, 3
s_lshl2_add_u32 s{sT1}, s{sT2}, s{sT1}
s_add_u32 s{sT1}, s{sT1}, {hex(FH)}
v_and_b32 v{vFa}, 31, v0
v_lshlrev_b32 v{vFa}, 7, v{vFa}
s_and_b32 s{sT2}, s{sS}, 1
s_lshl1_add_u32 s{sT2}, s{sNb}, s{sT2}
s_mul_i32 s{sOffRo}, s{sT2}, {48*5120}
s_add_u32 s{sOffRo}, s{sOffRo}, s{sM5}
s_add_u32 s{sOffRo}, s{sOffRo}, {hex(WDP_OFF)}
s_mul_i32 s{sT2}, s{sT2}, 160
s_lshl2_add_u32 s{sOffO}, s{sQd}, s{sW}
s_mul_i32 s{sOffO}, s{sOffO}, {16*1280}
s_add_u32 s{sOffO}, s{sOffO}, s{sT2}
s_mul_i32 s{sOffRd}, s{sQd}, 240
s_add_u32 s{sOffRd}, s{sOffRd}, s{sW}
s_add_u32 s{sOffRd}, s{sOffRd}, 192
s_lshl_b32 s{sOffRd}, s{sOffRd}, 12
s_add_u32 s{sOffRd}, s{sOffRd}, {hex(OH_OFF)}
s_lshl2_add_u32 s{sT0}, s{sMb}, s{sNb}
s_lshl2_add_u32 s{sT3}, s{sT0}, s{sS}
s_lshl2_add_u32 s{sT2}, s{sT3}, s{sW}
s_mul_i32 s{sOffP}, s{sT2}, 10240
s_add_u32 s{sOffP}, s{sOffP}, {hex(PART_OFF)}
s_lshl_b32 s{sFl}, s{sT3}, 7
s_lshl2_add_u32 s{sFl}, s{sW}, s{sFl}
s_add_u32 s{sFl}, s{sFl}, {hex(FP)}
v_and_b32 v{vOa}, 15, v0
v_mul_u32_u24 v{vOa}, 1280, v{vOa}
v_lshrrev_b32 v{vPo}, 4, v0
v_lshl_add_u32 v{vOa}, v{vPo}, 3, v{vOa}
v_and_b32 v{vFa2}, 3, v0
v_lshlrev_b32 v{vFa2}, 7, v{vFa2}""") + srd(sOut, pOut, 2048 * 640 * 2) + L(f"""s_lshl_b32 s{sFg}, s{sT0}, 9
s_lshl2_add_u32 s{sFg}, s{sS}, s{sFg}
s_add_u32 s{sFg}, s{sFg}, {hex(FP)}
s_lshl4_add_u32 s{sT2}, s{sT0}, s{sS}
s_mul_i32 s{sT3}, s{sT2}, 10240
s_add_u32 s{sT3}, s{sT3}, {hex(PART_OFF)}
s_lshl_b32 s{sT2}, s{sW}, 11
s_add_u32 s{sOffH0}, s{sT3}, s{sT2}
s_lshr_b32 s{sT2}, s{sW}, 1
s_lshl_b32 s{sT2}, s{sT2}, 10
s_add_u32 s{sT3}, s{sT3}, s{sT2}
s_and_b32 s{sT2}, s{sW}, 1
s_lshl3_add_u32 s{sT3}, s{sT2}, s{sT3}
s_add_u32 s{sOffH1}, s{sT3}, 8192""")
    assert len(osetup) <= 56
    for sg in range(4):
        ex = []
        if sg == 0: ex = dmaB(3) + dmaA(3)
        if sg == 3: ex = L(f"s_add_u32 s{sQg}, s{sQg}, {FH-FO}") + [set_flag(f"s{sQg}", "Hst")]
        pre = L(f"s_mov_b32 s{sQg}, s{sFl}") if sg == 0 else []
        sch(o_block(sg, ex, pre=pre, mid=osetup[sg * 14:(sg + 1) * 14], exfirst=(sg == 0)), f"o{sg}", vm_min=2)
    base_state = {r: AD[r].base for r in (vOA, vOB)}
    P.block("ol_top", L(f"s_mov_b32 s{sH}, 0") + L(".p2align 6\nL_o:")); P.trace.append(("ol_top", {}))
    lb = []
    for q in range(4):
        ex = [poll_load(vFl, vFa, f"s{sT1}")] if q == 0 else []
        b = o_block(4 + q, ex)
        for x in b:
            for attr in ('tag_r', 'tag_w'):
                t = getattr(x, attr)
                if t is None: continue
                ts = t if isinstance(t, list) else [t]
                setattr(x, attr, (lambda ts: lambda env: [u[:2] + str(int(u[2:]) + 4 * env['it']) for u in ts])(ts))
        b = schedule(b, f"ol{q}", verbose=dbg and "v" in KN, vm_min=3)
        if q == 3: b += L(f"s_add_u32 s{sH}, s{sH}, 1\ns_cmp_lt_u32 s{sH}, 4\ns_cbranch_scc1 L_o")
        P.block(f"ol{q}", b)
    assert base_state == {r: AD[r].base for r in (vOA, vOB)}, "loop address state"
    for it in range(4): P.trace += [(f"ol{q}", {'it': it}) for q in range(4)]
    blk(poll_cmp(vFl, 1) + poll_branch("h", vFl, vFa, f"s{sT1}"))
    for sg in range(20, 24): sch(o_block(sg), f"o{sg}")
    blk(stamp(10))
    def pk(dst, t, j):
        a = vAc + (t * 4 + j) * 4
        return L(f"v_cvt_pk_bf16_f32 v{dst}, v{a}, v{a+1}\nv_cvt_pk_bf16_f32 v{dst+1}, v{a+2}, v{a+3}")
    ps = []; n = 0
    for j in range(4):
        for tp in range(2):
            o = vPk + n * 4
            it = pk(o, 2 * tp, j) + pk(o + 2, 2 * tp + 1, j)
            it.append(I(f"buffer_store_dwordx4 {vr(o,4)}, v{vL16}, {sr(sWS,4)}, s{sOffP} offen offset:{(n%4)*1024} sc1", tag_w="Pst"))
            n += 1
            if n % 4 == 0: it.append(I(f"s_add_u32 s{sOffP}, s{sOffP}, 4096"))
            ps.append(it)
    for jp in range(2):
        o = vPk + n * 4
        ps.append(pk(o, 4, 2 * jp) + pk(o + 2, 4, 2 * jp + 1) + [I(f"buffer_store_dwordx4 {vr(o,4)}, v{vL16}, {sr(sWS,4)}, s{sOffP} offen offset:{jp*1024} sc1", tag_w="Pst")])
        n += 1
    xl = [I(f"buffer_load_dwordx2 {vr(vXr+2*t,2)}, v{vOa}, {sr(sXin,4)}, s{sOffO} offen offset:{32*t}") for t in range(5)]
    pl = []
    for sd in range(4):
        for tp in range(2): pl.append(I(f"buffer_load_dwordx4 {vr(vPl+sd*12+tp*4,4)}, v{vL16}, {sr(sWS,4)}, s{sOffH0} offen offset:{1024*tp} sc1"))
        pl.append(I(f"buffer_load_dwordx2 {vr(vPl+sd*12+8,2)}, v{vL16}, {sr(sWS,4)}, s{sOffH1} offen sc1"))
        pl += L(f"s_add_u32 s{sOffH0}, s{sOffH0}, {4*10240}\ns_add_u32 s{sOffH1}, s{sOffH1}, {4*10240}")
    PF, PL, PC = PAR("PF", 29), PAR("PL", 31), PAR("PC", 33)
    for sg in range(24, 36):
        ex = []
        if sg == 24: ex = [x for it in ps[:4] for x in it]
        if sg == 25: ex = [x for it in ps[4:7] for x in it]
        if sg == 26: ex = [x for it in ps[7:] for x in it]
        if sg == PF: ex = [set_flag(f"s{sFl}", "Pst")]
        if sg == PL: ex = ex + [poll_load(vFl, vFa2, f"s{sFg}")]
        if sg == PAR("XL", 32): ex = ex + xl
        if sg == 27 and "outpf" in KN: ex = ex + [I(f"buffer_load_dword v{vDum}, v{vOa}, {sr(sOut,4)}, s{sOffO} offen offset:{o}") for o in (0, 128)]
        sch(o_block(sg, ex), f"d{sg}", vm_min=1)
        if sg == PC: blk(poll_cmp(vFl, 1) + poll_branch("p", vFl, vFa2, f"s{sFg}") + pl)
    c = stamp(11)
    t0 = 112
    for t in range(5):
        h = vDc + 4 * t
        for i in range(4): c += L(f"v_mul_f32 v{t0+4*t+i}, {hex(f2u(-math.log2(math.e)))}, v{h+i}\nv_exp_f32 v{t0+4*t+i}, v{t0+4*t+i}")
        for i in range(4): c += L(f"v_add_f32 v{t0+4*t+i}, 1.0, v{t0+4*t+i}\nv_rcp_f32 v{t0+4*t+i}, v{t0+4*t+i}")
        for i in range(4): c += L(f"v_mul_f32 v{h+i}, v{h+i}, v{t0+4*t+i}")
    for t in range(5):
        h = vDc + 4 * t; a = t0 + 4 * t; u = 132
        for sd in range(4):
            for hf in range(2):
                src = vPl + sd * 12 + 2 * t + hf
                if sd == 0: c += L(f"v_lshlrev_b32 v{a+2*hf}, 16, v{src}\nv_and_b32 v{a+2*hf+1}, 0xffff0000, v{src}")
                else: c += L(f"""v_lshlrev_b32 v{u+2*hf}, 16, v{src}
v_and_b32 v{u+2*hf+1}, 0xffff0000, v{src}
v_pk_add_f32 v[{a+2*hf}:{a+2*hf+1}], v[{a+2*hf}:{a+2*hf+1}], v[{u+2*hf}:{u+2*hf+1}]""")
        c += L(f"""v_lshlrev_b32 v{u+4}, 16, v{vXr+2*t}
v_and_b32 v{u+5}, 0xffff0000, v{vXr+2*t}
v_lshlrev_b32 v{u+6}, 16, v{vXr+2*t+1}
v_and_b32 v{u+7}, 0xffff0000, v{vXr+2*t+1}""")
        for i in range(4): c.append(I(f"v_fmac_f32 v{u+4+i}, v{a+i}, v{h+i}"))
        c += L(f"""v_cvt_pk_bf16_f32 v{a}, v{u+4}, v{u+5}
v_cvt_pk_bf16_f32 v{a+1}, v{u+6}, v{u+7}
buffer_store_dwordx2 {vr(a,2)}, v{vOa}, {sr(sOut,4)}, s{sOffO} offen offset:{32*t} {os.environ.get("OUTF", "")}""")
    c += stamp_store(13)
    amp = os.environ.get("AMP")
    if amp and STAMPS:
        k1, k2, mult = map(int, amp.split(","))
        first = f"v_readlane_b32 s{sT0}, v{vSt}, {2*k1}" if k1 >= 0 else f"s_mov_b32 s{sT0}, s{sNonce}"
        c += L(f"""{first}
v_readlane_b32 s{sT1}, v{vSt}, {2*k2}
v_readlane_b32 s{sT2}, v{vSt}, 26
s_nop 4
s_sub_u32 s{sT0}, s{sT1}, s{sT0}
s_mul_i32 s{sT0}, s{sT0}, {mult}
s_min_u32 s{sT0}, s{sT0}, 100000
L_amp:
s_memrealtime s[{sSt}:{sSt+1}]
s_waitcnt lgkmcnt(0)
s_sub_u32 s{sT1}, s{sSt}, s{sT2}
s_cmp_lt_u32 s{sT1}, s{sT0}
s_cbranch_scc1 L_amp""")
    c += L("L_end:\ns_endpgm")
    blk(c, "fin")
    for nm, ins in OUTL: P.block(nm, ins)
    P.insert_waits()
    n = P.fix_hazards(verbose=False)
    if dbg:
        tot, per = P.estimate()
        agg = {}
        for k, v in per.items():
            kk = k.rstrip('0123456789') if k[0] in 'od' or k.startswith('p1_') or k.startswith('p2_') else k
            agg[kk] = agg.get(kk, 0) + v
        print("; estimate", tot, agg, "pads", n)
    return P.text() + "\n" + gen_fallback()

def build(path, dbg=False):
    body = gen(dbg)
    body = "\n".join(l.strip() for l in body.split("\n"))
    txt = f"""; @launch grid=(256,1,1) block=(256,1,1) lds={LDS_TOTAL}
.amdgcn_target "amdgcn-amd-amdhsa--gfx950"
.text
.globl {KNAME}
.p2align 8
.type {KNAME},@function
{KNAME}:
L_code_begin:
{body}
L_code_end:
.set CODE_SLICES, (L_code_end-L_code_begin+8191)/8192
.fill 2112, 4, 0xbf800000
s_endpgm
.section .rodata,"a"
.p2align 6
.amdhsa_kernel {KNAME}
  .amdhsa_next_free_vgpr 512
  .amdhsa_next_free_sgpr 102
  .amdhsa_accum_offset 256
  .amdhsa_group_segment_fixed_size 0
  .amdhsa_kernarg_size 96
  .amdhsa_user_sgpr_count 2
  .amdhsa_user_sgpr_kernarg_segment_ptr 1
  .amdhsa_system_sgpr_workgroup_id_x 1
  .amdhsa_float_denorm_mode_32 3
.end_amdhsa_kernel
"""
    open(path, "w").write(txt)

if __name__ == "__main__":
    if "--stamps" in sys.argv:
        STAMPS = True; sys.argv.remove("--stamps")
    build(sys.argv[1], dbg=True)
```

```python
import sys, math, struct, os
from asmlib import *
KN = set(os.environ.get("KN", "").split(","))
def PAR(name, default): return type(default)(os.environ.get(name, default))
NAME = "recurrent_scan__sliding_block_cached__glu_gated_bilinear__prompt"
KNAME = NAME + "_kernel"
XN_OFF = 0; OH_OFF = 0x400000; GP_OFF = 0x2200000; WOP_OFF = 0x2600000; WDP_OFF = 0x2E00000; PART_OFF = 0x3000000
FL_OFF = 0x3A00000
FXN = FL_OFF; FO = FL_OFF + 0x8000; FH = FL_OFF + 0x10000; FP = FL_OFF + 0x18000; FG = FL_OFF + 0x20000; FW = FL_OFF + 0x21000; FW2 = FL_OFF + 0x22000; ST_OFF = FL_OFF + 0x30000
XR_OFF = 0x3B00000
WS_SIZE = 0x3E00000
STAMP_OFF = 0x8000000
SLOT = 28672; SL2 = 36864
LDS_X = 147456
LDS_TOTAL = 163840
STAMPS = False
SPIN_MAX = 200000
def sbase(st):
    if st < 10: return ((3, 4) if (st // 2) % 2 == 0 else (1, 2))[st % 2] * SLOT
    if st <= 28: return (st % 5) * SLOT
    return {29: 0, 30: 110592, 31: 135168}[st]
OPERM = [1, 2, 0, 3]
def obase(sg): return OPERM[sg % 4] * SL2

def f2u(x): return struct.unpack('<I', struct.pack('<f', x))[0]
def vr(a, n): return f"v[{a}:{a+n-1}]" if n > 1 else f"v{a}"
def ar(a, n): return f"a[{a}:{a+n-1}]" if n > 1 else f"a{a}"
def sr(a, n): return f"s[{a}:{a+n-1}]" if n > 1 else f"s{a}"
def rr(x, n=4): return vr(x[1], n) if x[0] == 'v' else ar(x[1], n)
def L(txt): return [I(t) for t in txt.strip().split("\n") if t.strip()]
def mfma(d, a, b, c): return I(f"v_mfma_f32_16x16x32_bf16 {d}, {a}, {b}, {c}")

sWq, sK, sWS, sR = 4, 8, 12, 16
(sOffX, sOffY, sOffK, sOffV, sM6, sM3, sM1, sOffB, sH, sB, sW, sT0, sT1, sT2, sOffO, sScale,
 sOffG, sOffH0, sOffH1, sOffH2, sNonce, sOffR, sOffD, sOffRo, sOffRd, sOffDo, sOffDd,
 sS, sMb, sNb, sFl, sSpin, sT3, sOffP, sQg, sFg, sOffA, sOffBB, sM5, sM4, sPf, sQd) = range(20, 62)
sOffH = sOffH0
pX, pK, pV, pWq, pWo, pBx, pWg, pWu, pWd, pOut, pDbg, pWs = range(64, 88, 2)
sSt = 88; sV = 92; sXin = 96
sOut = sWq
vL16 = 1; vWo = 2; vKo = 5; vVo = 8; vRo = 11; vRo2 = 12; vL128 = 13; vFo = 14; vNon = 15
vRa = 16; vWa = 17; vKa = 19; vVa = 21; vGa = 25
vLs = 26; vT = 36; vSt = 31; vNm = 32; vTmp = 48
vAcc = 64; vQ = 64
vS01 = 160; vS23 = 176; vP01 = 208; vP23 = 224; vVs = 232
aK = 192; aR = 240; aA1 = 128; aDum = 255; aCs = 160
vOne = 48; vSta = 32; vCsT = 52; vXo = 44; vXo2 = 46; vSo = 41; vPa = 42; vPd = 43
vDum = 30
NSLICE = 10

class Addr:
    def __init__(self, reg, base): self.reg = reg; self.base = base
    def use(self, base, off):
        pre = []
        d = base + off - self.base
        if not (0 <= d < 65536):
            pre = [I(f"v_add_u32 v{self.reg}, {hex((base - self.base) & 0xffffffff)}, v{self.reg}")]
            self.base = base; d = off
        return pre, d
AD = {}
def dsr(op, dst, reg, base, off, **kw):
    pre, d = AD[reg].use(base, off)
    return pre + [I(f"{op} {dst}, v{reg} offset:{d}", **kw)]

def srd(d, base, size):
    return [I(f"s_mov_b32 s{d}, s{base}"), I(f"s_mov_b32 s{d+1}, s{base+1}"), I(f"s_mov_b32 s{d+2}, {hex(size)}"), I(f"s_mov_b32 s{d+3}, 0x20000")]
def xreduce(v, t, op):
    return L(f"""v_mov_b32 v{t}, v{v}
v_permlane16_swap_b32 v{v}, v{t}
{op} v{v}, v{v}, v{t}
v_mov_b32 v{t}, v{v}
v_permlane32_swap_b32 v{v}, v{t}
{op} v{v}, v{v}, v{t}""")
def divmod_const(q, r, src, c):
    magic = (65536 + c - 1) // c
    for x in range(1400): assert (x * magic) >> 16 == x // c
    return L(f"v_mul_u32_u24 v{q}, {magic}, v{src}\nv_lshrrev_b32 v{q}, 16, v{q}\nv_mul_u32_u24 v{r}, {c}, v{q}\nv_sub_u32 v{r}, v{src}, v{r}")
def sdivmod(q, r, src, c):
    magic = (65536 + c - 1) // c
    for x in range(1400): assert (x * magic) >> 16 == x // c
    return L(f"s_mul_i32 s{q}, s{src}, {magic}\ns_lshr_b32 s{q}, s{q}, 16\ns_mul_i32 s{r}, s{q}, {c}\ns_sub_u32 s{r}, s{src}, s{r}")

def stamp(k):
    if not STAMPS: return []
    return L(f"""s_memrealtime s[{sSt}:{sSt+1}]
s_memtime s[{sSt+2}:{sSt+3}]
s_waitcnt lgkmcnt(0)
v_writelane_b32 v{vSt}, s{sSt}, {2*k}
v_writelane_b32 v{vSt}, s{sSt+2}, {2*k+1}""")
def stamp_store(n):
    if not STAMPS: return []
    return stamp(n - 1) + L("s_waitcnt vmcnt(0)") + stamp(n) + L(f"""s_add_u32 s{sK}, s{pWs}, {hex(STAMP_OFF)}
s_addc_u32 s{sK+1}, s{pWs+1}, 0
s_mov_b32 s{sK+2}, {1024*256}
s_mov_b32 s{sK+3}, 0x20000
s_lshl2_add_u32 s{sT0}, s2, s{sW}
s_lshl_b32 s{sT0}, s{sT0}, 8
v_lshlrev_b32 v2, 2, v0
buffer_store_dword v{vSt}, v2, {sr(sK,4)}, s{sT0} offen""")

OUTL = []
def poll_load(dst, vaddr, soff, n=1, **kw):
    op = "buffer_load_dword" if n == 1 else "buffer_load_dwordx4"
    return I(f"{op} {vr(dst,n)}, v{vaddr}, {sr(sWS,4)}, {soff} offen sc1", **kw)
def poll_cmp(dst, n):
    if n == 1: return L(f"v_cmp_ne_u32 vcc, s{sNonce}, v{dst}")
    return L(f"""v_xor_b32 v{dst}, s{sNonce}, v{dst}
v_xor_b32 v{dst+1}, s{sNonce}, v{dst+1}
v_xor_b32 v{dst+2}, s{sNonce}, v{dst+2}
v_xor_b32 v{dst+3}, s{sNonce}, v{dst+3}
v_or3_b32 v{dst}, v{dst}, v{dst+1}, v{dst+2}
v_or_b32 v{dst}, v{dst}, v{dst+3}
v_cmp_ne_u32 vcc, 0, v{dst}""")
def poll_branch(name, dst, vaddr, soff, n=1):
    o = L(f"L_spin_{name}:\ns_mov_b32 s{sSpin}, {SPIN_MAX}\nL_spin2_{name}:")
    o += [poll_load(dst, vaddr, soff, n)] + L("s_waitcnt vmcnt(0)") + poll_cmp(dst, n)
    o += L(f"""s_nop 4
s_cbranch_vccz L_back_{name}
s_sleep 1
s_sub_u32 s{sSpin}, s{sSpin}, 1
s_cmp_lg_u32 s{sSpin}, 0
s_cbranch_scc1 L_spin2_{name}
s_branch L_back_{name}""")
    OUTL.append((f"spin_{name}", o))
    return L(f"s_cbranch_vccnz L_spin_{name}\nL_back_{name}:")
def late(lst, g):
    for x in lst: x.after = g
    return lst
def set_flag(soff, tag, **kw):
    return I(f"buffer_store_dword v{vNon}, v{vFo}, {sr(sWS,4)}, {soff} offen sc1", tag_r=tag, **kw)

KVF = os.environ.get("KVF", "")
def grp3(st, srdn, vo, so, mreg, moff, inc, flags=""):
    r = [I(f"s_add_u32 m0, s{mreg}, {sbase(st)+moff}")]
    for n in range(3):
        v = vo + n if vo != vL16 else vL16
        r.append(I(f"buffer_load_dwordx4 v{v}, {sr(srdn,4)}, s{so} offen offset:{1024*n} {flags} lds", tag_w=f"st{st}", rd=['stg']))
    if inc: r.append(I(f"s_add_u32 s{so}, s{so}, {inc}"))
    return r
def dma_stage(st):
    r = []
    if st <= 9:
        r += grp3(st, sWq, vWo, sOffX, sM6, 0, 16 * 12288, KVF) + grp3(st, sWq, vWo, sOffX, sM6, 3072, 48 * 12288, KVF)
    elif st <= 26:
        t = st - 10
        if t <= 15: r += grp3(st, sK, vKo, sOffK, sM3, 0, 12288, KVF)
        if t >= 1: r += grp3(st, sV, vVo, sOffV, sM3, 12288, 12288, KVF)
        u = st - 12
        if 0 <= u < 14:
            if u == 4: r += srd(sR, pWo, 6144 * 640 * 2)[:3] + L(f"s_mov_b32 s{sOffR}, s{sOffRo}")
            if u == 12: r += srd(sR, pWd, 1536 * 640 * 2)[:3] + L(f"s_mov_b32 s{sOffR}, s{sOffRd}")
            r.append(I(f"s_add_u32 m0, s{sM1}, {sbase(st)+24576}"))
            r.append(I(f"buffer_load_dwordx4 v{vRo if u < 4 else vRo2}, {sr(sR,4)}, s{sOffR} offen {KVF} lds", tag_w=f"st{st}", rd=['stg']))
            r.append(I(f"s_add_u32 s{sOffR}, s{sOffR}, {32*3072 if u < 4 else 32*1280}"))
    else:
        r += grp3(st, sWS, vL16, sOffG, sM6, 0, 3072, "sc1") + grp3(st, sWS, vL16, sOffG, sM6, 3072, 24576 - 3072, "sc1")
    return r
def pace(lst, lo, hi):
    vm = [x for x in lst if x.kind == 'vmem']
    for k, x in enumerate(vm): x.after = int(lo + k * (hi - lo) / len(vm))
    return lst
def barrier(tag, after=None): return I("s_barrier", tag_r=tag, wr=['stg'], after=after)

def acc1(T, j): return vAcc + ((T // 2) * 4 + j) * 8 + (T % 2) * 4
def w_reads(k, T):
    slot = aA1 + (T % 2) * 16
    p, t = T // 2, T % 2
    r = []
    for ks in range(4):
        for u in range(2): r += dsr("ds_read_b64_tr_b16", ar(slot + ks * 4 + u * 2, 2), vWa + p % 2, sbase(2 * k), (ks // 2) * SLOT + (ks % 2) * 12288 + u * 6144 + (p // 2) * 128 + 8 * t, rd=['stg'], tag_w=f"wr{k}")
    return r
def b_loads(base):
    r = []
    for u in range(2):
        for j in range(4):
            r.append(I(f"buffer_load_dwordx4 {rr((base[0], base[1]+(u*4+j)*4))}, v{vL16}, {sr(sWS,4)}, s{sOffB} offen offset:{1024*j} sc1"))
        r.append(I(f"s_add_u32 s{sOffB}, s{sOffB}, 4096"))
    return r
def k_reads(st, kt):
    r = []
    for s in range(6): r += dsr("ds_read_b128", ar(aK + kt * 24 + s * 4, 4), vKa + s % 2, sbase(st), kt * 6144 + (s // 2) * 128, rd=['stg'])
    return r
def v_reads(st, T):
    r = []
    for u in range(2): r += dsr("ds_read_b64_tr_b16", vr(vVs + (T % 6) * 4 + u * 2, 2), vVa + T % 4, sbase(st), 12288 + u * 6144 + (T // 4) * 128, rd=['stg'])
    return r
def prefetch(srdn, soff, flags=""):
    return I(f"buffer_load_dword v{vDum}, v{vL128}, {sr(srdn,4)}, {soff} offen {flags}")

def csreg(T): return aCs + T * 4
def p1_quad(k, T0=0, T1=12, vm=(), vmspan=None, extra=()):
    last = k == 4
    per = 20 if k == 0 else 16
    n = (T1 - T0) * per
    s = []
    vm = list(vm)
    if any(x.kind == 'vmem' for x in vm): pace(vm, *(vmspan or (1, n - 20)))
    s += vm + list(extra)
    for T in range(T0, T1):
        if T + 1 < 12: s += w_reads(k, T + 1)
        else:
            s.append(barrier([f"st{2*k+2}", f"wr{k}"] + ([f"st{2*k+3}"] if not last else []), after=n - per - 1))
            s += w_reads(k + 1, 0) if not last else k_reads(10, 0)
        slot = aA1 + (T % 2) * 16
        for j in range(4):
            d = vr(acc1(T, j), 4)
            for ks in range(4):
                s.append(mfma(d, ar(slot + ks * 4, 4), ar(64 * (k % 2) + (ks * 4 + j) * 4, 4), "0" if (k == 0 and ks == 0) else d))
        if k == 0:
            d = ar(csreg(T), 4)
            for ks in range(4): s.append(mfma(d, ar(slot + ks * 4, 4), vr(vOne, 4), d if ks else "0"))
        if k in (2, 3) and T % 2 == k - 2:
            t = vCsT + ((T // 2) % 2) * 4
            for i in range(4): s.append(I(f"v_accvgpr_read_b32 v{t+i}, a{csreg(T)+i}"))
            for j in range(4):
                for i in range(4): s.append(I(f"v_fmac_f32 v{acc1(T,j)+i}, v{t+i}, v{vSta+2*j}"))
        if last and T % 2 == 1:
            p = T // 2
            for j in range(4):
                a = acc1(2 * p, j); q = vQ + (p * 4 + j) * 4
                for i in range(8): s.append(I(f"v_mul_f32 v{a+i}, v{vSta+2*j+1}, v{a+i}"))
                for i in range(4): s.append(I(f"v_cvt_pk_bf16_f32 v{q+i}, v{a+2*i}, v{a+2*i+1}"))
    return s
def w_reads0(n):
    h, T = n // 12, n % 12
    slot = aA1 + (n % 4) * 8
    p, t = T // 2, T % 2
    r = []
    for ks in range(2):
        for u in range(2): r += dsr("ds_read_b64_tr_b16", ar(slot + ks * 4 + u * 2, 2), vWa + p % 2, sbase(0), h * SLOT + ks * 12288 + u * 6144 + (p // 2) * 128 + 8 * t, rd=['stg'], tag_w="wr0")
    return r
def raw_reads(h):
    return [I(f"ds_read_b128 {ar(((2*h+ks)*4+j)*4,4)}, v{(vXo if h == 0 else vXo2) + ks} offset:{j*2048}", tag_r=f"raw{h}", tag_w=f"rawrd{h}") for j in range(4) for ks in range(2)]
def p1_first(n0, n1, extra=()):
    s = list(extra)
    for n in range(n0, n1):
        h, T = n // 12, n % 12
        if n == 8: s += late(raw_reads(1), (8 - n0) * 10)
        if n == 10: s.append(barrier(["st1"], after=(10 - n0) * 10 - 4))
        if n + 2 < 24: s += w_reads0(n + 2)
        elif n == 23:
            s.append(barrier(["st2", "st3", "wr0"], after=(22 - n0) * 10))
            s += w_reads(1, 0)
        slot = aA1 + (n % 4) * 8
        for j in range(4):
            d = vr(acc1(T, j), 4)
            for ks in range(2): s.append(mfma(d, ar(slot + ks * 4, 4), ar(((2 * h + ks) * 4 + j) * 4, 4), "0" if (h == 0 and ks == 0) else d))
        d = ar(csreg(T), 4)
        for ks in range(2): s.append(mfma(d, ar(slot + ks * 4, 4), vr(vOne, 4), "0" if (h == 0 and ks == 0) else d))
    return s
def stat_loads():
    return [I(f"buffer_load_dwordx2 {vr(vSta+2*j,2)}, v{vSo}, {sr(sWS,4)}, s{sScale} offen offset:{128*j} sc1") for j in range(4)]

def Sreg(kt, j, t):
    if j < 2: return (vTmp if t == 0 else vS01) + (j * 2 + kt) * 4
    return vS23 + (t % 2) * 16 + ((j - 2) * 2 + kt) * 4
def Preg(j, t):
    if j < 2: return vP01 + (t % 2) * 8 + j * 4
    return (vTmp + 8 if t == 15 else vP23) + (j - 2) * 4
def qk(kt, t):
    s = []
    for j in range(4):
        d = vr(Sreg(kt, j, t), 4)
        for p in range(6):
            c = d if p else ("0" if t == 0 else vr(vNm + 4 * j, 4))
            s.append(mfma(d, ar(aK + kt * 24 + p * 4, 4), vr(vQ + (p * 4 + j) * 4, 4), c))
    return s
def softmax(j, t):
    s = []
    for kt in range(2):
        a = Sreg(kt, j, t)
        for i in range(4): s.append(I(f"v_exp_f32 v{a+i}, v{a+i}"))
        for i in range(4): s.append(I(f"v_add_f32 v{vLs+j}, v{vLs+j}, v{a+i}"))
        for i in range(2): s.append(I(f"v_cvt_pk_bf16_f32 v{Preg(j,t)+kt*2+i}, v{a+2*i}, v{a+2*i+1}"))
    return s
def pv_T(T, t):
    s = []
    for j in range(4):
        d = ar((T * 4 + j) * 4, 4)
        s.append(mfma(d, vr(vVs + (T % 6) * 4, 4), vr(Preg(j, t), 4), "0" if t == 0 else d))
    return s

def p2_iter(t, base=0, extra=(), post=(), btag=()):
    st = 11 + t
    s = []
    s += k_reads(st, 1)
    u = st - 12
    if u >= 0:
        for h in range(2): s += dsr("ds_read_b64_tr_b16", ar(aR + 2 * h, 2), vRa, sbase(st), 24576 + 2048 * h, rd=['stg'])
    s += pace(dma_stage(st + 3) + list(extra), base + 4, base + 68)
    if t > 0: s += softmax(2, t) + softmax(3, t)
    s += qk(0, t + 1) + qk(1, t + 1)
    for T in range(6): s += v_reads(st, T)
    s += softmax(0, t + 1) + softmax(1, t + 1)
    if t == 14: s += softmax(2, 15) + softmax(3, 15)
    for T in range(12):
        s += pv_T(T, t)
        if T < 6: s += v_reads(st, T + 6)
        if T == 5:
            s.append(barrier([f"st{st+1}"] + list(btag), after=base + 70))
            if t < 14: s += k_reads(st + 1, 0)
            if u >= 0:
                if u == 4: s += L(f"s_mov_b32 s{sOffD}, s{sOffDo}")
                if u == 12: s += L(f"s_mov_b32 s{sOffD}, s{sOffDd}")
                s.append(I(f"buffer_store_dwordx4 {ar(aR,4)}, v{vL16}, {sr(sWS,4)}, s{sOffD} offen sc1", after=base + 80, tag_w="Gst" if u < 4 else "Wst" if u < 12 else "Dst"))
                s.append(I(f"s_add_u32 s{sOffD}, s{sOffD}, {6144 if u < 4 else 10240 if u < 12 else 5120}"))
        if t == 14 and T >= 6: s += v_reads(st + 1, T - 6)
    s += list(post)
    return s

def first_tile(base):
    s = []
    s += k_reads(10, 1)
    s += pace(dma_stage(13), base + 2, base + 30)
    s += qk(0, 0)
    s.append(barrier("st11", after=base + 28))
    s += k_reads(11, 0)
    s += qk(1, 0)
    for j in range(4):
        a = Sreg(0, j, 0); b = Sreg(1, j, 0); m = vNm + 4 * j; t = m + 1
        s += L(f"""v_max3_f32 v{m}, v{a}, v{a+1}, v{a+2}
v_max3_f32 v{m}, v{m}, v{a+3}, v{b}
v_max3_f32 v{m}, v{m}, v{b+1}, v{b+2}
v_max_f32 v{m}, v{m}, v{b+3}""")
        s += xreduce(m, t, "v_max_f32")
        s += L(f"v_sub_f32 v{m+1}, 0, v{m}\nv_sub_f32 v{m+2}, 0, v{m}\nv_sub_f32 v{m+3}, 0, v{m}\nv_sub_f32 v{m}, 0, v{m}")
        for i in range(4):
            s.append(I(f"v_add_f32 v{a+i}, v{a+i}, v{m}")); s.append(I(f"v_add_f32 v{b+i}, v{b+i}, v{m}"))
    for j in range(4): s += softmax(j, 0)
    return s

vGA = 160; vOP = 184
BBUF = [('a', 192), ('a', 224), ('v', 208), ('a', 0)]
def g_reads(n, tagr='stg', pos=None):
    ds, grp = n // 6, n % 6
    slot = vGA + ((n if pos is None else pos) % 3) * 8
    r = []
    for ks in range(2): r += dsr("ds_read_b128", vr(slot + ks * 4, 4), vGa, sbase(27 + ds // 2), (((ds % 2) * 2 + ks) * 6 + grp) * 1024, rd=[tagr])
    return r
def acc3(grp, j): return vAcc + (grp * 4 + j) * 4

def tail_pv(base):
    s = L(f"s_sub_u32 s{sOffB}, s{sOffB}, {20*4096}")
    wf = set_flag(f"s{sFg}", None, rd=['stg'])
    s += pace([wf] + L(f"s_add_u32 s{sFg}, s{sFg}, {FW2-FW}") + b_loads(BBUF[0]), base - 11, base + 22)
    for T in range(12):
        s += pv_T(T, 15)
        if T < 6: s += v_reads(26, T + 6)
        if T == 5:
            s.append(barrier("st27", after=base + 24))
            s += g_reads(0) + g_reads(1)
            s += pace(b_loads(BBUF[1]), base + 22, base + 48)
    for j in range(4): s += xreduce(vLs + j, vTmp + j, "v_add_f32")
    s += L(f"""v_add_f32 v{vTmp}, v{vLs}, v{vLs+1}
v_add_f32 v{vTmp+1}, v{vLs+2}, v{vLs+3}
v_add_f32 v{vTmp}, v{vTmp}, v{vTmp+1}
v_cmp_ngt_f32 vcc, {hex(f2u(2.0**40))}, v{vTmp}""")
    for j in range(4): s.append(I(f"v_rcp_f32 v{vLs+j}, v{vLs+j}"))
    return s

def split(lst):
    ch = []; cur = []
    for x in lst:
        cur.append(x)
        if x.kind == 'vmem': ch.append(cur); cur = []
    if cur: ch[-1] += cur
    return ch
def merge(qs):
    qs = [list(q) for q in qs]
    w = [len(q) for q in qs]; tot = sum(w); acc = [0.0] * len(qs); seq = []
    for k in range(tot):
        for z in range(len(qs)): acc[z] += w[z]
        z = max((z for z in range(len(qs)) if qs[z]), key=lambda z: acc[z])
        acc[z] -= tot; seq.append(qs[z].pop(0))
    return seq

vOA = 32; vOB = 33; vDA = 34; vDB = 35
vOa = 40; vPo = 41; vFa = 42; vFa2 = 43; vFl = 44
vAc = 64; vDc = 144; vPk = 164; vXr = 204; vPl = 64
def fA(e, t, ks): return e * 72 + (t * 2 + ks) * 4
def fB(e, j, ks): return 40 + e * 72 + (ks * 4 + j) * 4
def dA(e, n): return (144 if e == 0 else 0) + n * 4
def dB(e, ks): return (144 if e == 0 else 0) + 80 + ks * 4
def dmaA(sg, rd='stg'):
    r = []
    if sg == 24: r += L(f"s_mov_b32 s{sOffA}, s{sOffRo}")
    r.append(I(f"s_add_u32 m0, s{sM5}, {obase(sg)}"))
    for n in range(5):
        if n == 4: r += L(f"s_add_u32 m0, s{sM5}, {obase(sg)+4096}\ns_add_u32 s{sOffA}, s{sOffA}, 4096")
        r.append(I(f"buffer_load_dwordx4 v{vL16}, {sr(sWS,4)}, s{sOffA} offen offset:{1024*(n%4)} sc1 lds", tag_w=f"ot{sg}", rd=[rd]))
    r.append(I(f"s_add_u32 s{sOffA}, s{sOffA}, {20480-4096}"))
    return r
def dmaB(sg, rd='stg'):
    r = []
    if sg == 24: r += L(f"s_mov_b32 s{sOffBB}, s{sOffRd}")
    r.append(I(f"s_add_u32 m0, s{sM4}, {obase(sg)+20480}"))
    for n in range(4):
        r.append(I(f"buffer_load_dwordx4 v{vL16}, {sr(sWS,4)}, s{sOffBB} offen offset:{1024*n} sc1 lds", tag_w=f"ot{sg}", rd=[rd]))
    r.append(I(f"s_add_u32 s{sOffBB}, s{sOffBB}, {8192 if sg < 24 else 16384}"))
    return r
def apf():
    if "apf" not in KN: return []
    return [prefetch(sWS, f"s{sPf}", "sc1")] + L(f"s_add_u32 s{sPf}, s{sPf}, 81920")
def o_reads(sg):
    e = sg % 2; kw = dict(rd=['stg'], tag_w=f"rd{sg}")
    r = []
    if sg < 24:
        for ks in range(2): r += dsr("ds_read_b128", ar(fA(e, 0, ks), 4), vOA, obase(sg), ks * 10240, **kw)
        for j in range(4):
            for ks in range(2): r += dsr("ds_read_b128", ar(fB(e, j, ks), 4), vOB, obase(sg), ks * 8192 + j * 1024, **kw)
        for t in range(1, 5):
            for ks in range(2): r += dsr("ds_read_b128", ar(fA(e, t, ks), 4), vOA, obase(sg), (ks * 10 + t) * 1024, **kw)
    else:
        for ks in range(4): r += dsr("ds_read_b128", ar(dB(e, ks), 4), vDB, obase(sg), ks * 4096, **kw)
        for T in range(5):
            for ks in range(4): r += dsr("ds_read_b128", ar(dA(e, ks * 5 + T), 4), vDA, obase(sg), (ks * 5 + T) * 1024, **kw)
    return r
def o_block(sg, extra=(), pre=(), mid=(), exfirst=False):
    e = sg % 2
    n = 40 if sg < 24 else 20
    s = list(pre)
    if sg < 35:
        s += [I("s_barrier", tag_r=[f"ot{sg+1}", f"rd{sg}"], wr=['stg'], after=2 if sg < 24 else 0)]
        s += o_reads(sg + 1)
    vm = []
    if sg + 4 <= 35:
        db = dmaB(sg + 4)
        vm = split(db[:2] + list(mid) + db[2:] + dmaA(sg + 4))
    ex = split(list(extra)) if any(x.kind == 'vmem' for x in extra) else []
    if exfirst: seq = list(extra) + [x for ch in vm for x in ch]
    else: seq = [x for ch in merge([vm, ex]) for x in ch] if ex else [x for ch in vm for x in ch] + list(extra)
    if any(x.kind == 'vmem' for x in seq): pace(seq, 3 if sg < 24 else 1, n)
    s += seq
    if sg < 24:
        for t in range(5):
            for j in range(4):
                for ks in range(2):
                    d = vr(vAc + (t * 4 + j) * 4, 4)
                    s.append(mfma(d, ar(fA(e, t, ks), 4), ar(fB(e, j, ks), 4), "0" if (sg == 0 and ks == 0) else d))
    else:
        for T in range(5):
            d = vr(vDc + T * 4, 4)
            for ks in range(4): s.append(mfma(d, ar(dA(e, ks * 5 + T), 4), ar(dB(e, ks), 4), "0" if (sg == 24 and ks == 0) else d))
    return s

OF = PAR('OF', 4); OC = PAR('OC', 7); WC = PAR('WC', 5)
vFo2 = 37
vHs = 48
def p3_steps():
    oe = []
    n = 0
    for p in range(6):
        for j in range(4):
            t = vTmp + (n % 2) * 8; o = vOP + (n % 6) * 4
            it = []
            for tt in range(2):
                for i in range(4): it.append(I(f"v_accvgpr_read_b32 v{t+tt*4+i}, a{((2*p+tt)*4+j)*4+i}"))
            for i in range(8): it.append(I(f"v_mul_f32 v{t+i}, v{t+i}, v{vLs+j}"))
            for i in range(4): it.append(I(f"v_cvt_pk_bf16_f32 v{o+i}, v{t+2*i}, v{t+2*i+1}"))
            it.append(I(f"buffer_store_dwordx4 {vr(o,4)}, v{vL16}, {sr(sWS,4)}, s{sOffO} offen offset:{1024*j} sc1", tag_w="Ost"))
            if j == 3: it.append(I(f"s_add_u32 s{sOffO}, s{sOffO}, 4096"))
            oe.append(it); n += 1
    nst = [int(x) for x in os.environ.get("NST", "6,6,6,6,0,0,0,0,0,0").split(",")]
    g29, g30, g31 = split(dma_stage(29)), split(dma_stage(30)), split(dma_stage(31))
    dm = {0: g29[:3], 1: g29[3:], 2: g30[:3], 3: g30[3:], 4: g31[:3], 5: g31[3:]}
    a0, a1, a2 = [split(dmaA(k, 'x')) for k in range(3)]
    b0, b1, b2 = [split(dmaB(k, 'x')) for k in range(3)]
    assert WC <= 5 and OC == 7
    dm[6] = a0; dm[7] = a1; dm[8] = b0 + b1 + a2[:2]; dm[9] = a2[2:] + b2
    allb = [c for d in range(2, 10) for c in split(b_loads(BBUF[d % 4]))]
    cnt = [int(x) for x in os.environ.get("NB", "8,8,8,8,9,9,8,6,0,0").split(",")]
    BQ = []
    for k in cnt: BQ.append(allb[:k]); allb = allb[k:]
    assert not allb
    steps = []
    for ds in range(10):
        s = []
        take = BQ[ds]
        st = [oe.pop(0) for _ in range(nst[ds])]
        seq = merge([take, dm.get(ds, []), st])
        if ds == 2: seq.insert(0, [set_flag(f"s{sFg}", None)])
        if ds == WC - 1: seq.insert(0, L(f"s_mov_b32 s{sT0}, {hex(FW)}") + [poll_load(vFl, vL16, f"s{sT0}", 4)])
        if ds == OF: seq.insert(int(len(seq) * PAR("OFP", 0.5)), [set_flag(f"s{sFl}", "Ost")])
        if ds == PAR("OP", 6): seq.insert(int(len(seq) * PAR("OPP", 0.6)), [poll_load(vFo2, vFa, f"s{sT1}")])
        flat = [x for ch in seq for x in ch]
        s += ('pace', flat),
        for grp in range(6):
            n = ds * 6 + grp
            real = lambda m: m if m < 48 else 48 + ((m - 48) % 2) * 6 + (m - 48) // 2
            if n + 2 < 60:
                if (n + 2) % 12 == 0:
                    stg = 27 + (n + 2) // 12
                    tags = [f"st{stg}"] + (["Dst"] if stg == 28 else [])
                    s.append(I("s_barrier", tag_r=tags, wr=['stg2'], after=24))
                s += g_reads(real(n + 2), 'stg2', n + 2)
            slot = vGA + (n % 3) * 8
            rds, rg = real(n) // 6, real(n) % 6
            B = BBUF[rds % 4]
            for j in range(4):
                for ks in range(2):
                    d = vr(acc3(rg, j), 4)
                    s.append(mfma(d, vr(slot + ks * 4, 4), rr((B[0], B[1] + (ks * 4 + j) * 4)), "0" if (ds == 0 and ks == 0) else d))
            if rds == 9 and rg % 2 == 1: s += h_epilogue(rg // 2)
        steps.append(s)
    assert not oe
    return steps
HST = []
def h_epilogue(T3):
    s = []
    if True:
        for jp in range(2):
            o = vOP + ((T3 * 2 + jp) % 6) * 4
            for jj in range(2):
                j = jp * 2 + jj
                g = acc3(2 * T3, j); u = acc3(2 * T3 + 1, j)
                for i in range(4): s.append(I(f"v_mul_f32 v{g+i}, v{g+i}, v{u+i}"))
                for i in range(2): s.append(I(f"v_cvt_pk_bf16_f32 v{o+jj*2+i}, v{g+2*i}, v{g+2*i+1}"))
            for i in range(2): s.append(I(f"v_permlane32_swap_b32 v{o+i}, v{o+2+i}"))
            HST.append(I(f"buffer_store_dwordx4 {vr(o,4)}, v{vT}, {sr(sWS,4)}, s{sOffH+T3} offen offset:{2048*jp} sc1", tag_w="Hst"))
    return s
def join_steps(steps, n=48):
    out = []
    for k, s in enumerate(steps):
        base = k * n
        for x in s:
            if isinstance(x, tuple):
                if any(y.kind == 'vmem' for y in x[1]): pace(x[1], base, base + n - 1)
                out += x[1]
            else:
                if x.after is not None: x.after += base
                out.append(x)
    return out

def gen_fallback():
    F = Prog()
    vK = 232; vS = 176; vP = 208
    vf, vv, va = 48, 49, 50
    sK_, sV_ = sK, sV
    def kload():
        return [I(f"buffer_load_dwordx4 {vr(vK+4*p,4)}, v{vf}, {sr(sK_,4)}, s{sT0} offen offset:{64*p}") for p in range(6)] + L(f"s_add_u32 s{sT0}, s{sT0}, 6144")
    def chains(kt, c0):
        s = []
        for j in range(4):
            d = vr(vS + (j * 2 + kt) * 4, 4)
            for p in range(6): s.append(mfma(d, vr(vK + 4 * p, 4), vr(vQ + (p * 4 + j) * 4, 4), d if p else c0(j)))
        return s
    c = L("L_fb:\ns_waitcnt vmcnt(0) lgkmcnt(0)\ns_nop 15")
    c += L(f"""v_and_b32 v54, 15, v0
v_lshrrev_b32 v55, 4, v0
v_mul_u32_u24 v{vf}, 384, v54
v_lshl_add_u32 v{vf}, v55, 4, v{vf}
v_lshrrev_b32 v56, 3, v0
v_and_b32 v57, 7, v0
v_and_b32 v58, 6, v56
v_xor_b32 v57, v57, v58
v_mul_u32_u24 v{vv}, 384, v56
v_lshl_add_u32 v{vv}, v57, 4, v{vv}
v_lshrrev_b32 v56, 2, v54
v_lshl_add_u32 v56, v55, 2, v56
v_bfe_u32 v57, v56, 1, 2
v_lshlrev_b32 v56, 7, v56
v_and_b32 v58, 3, v0
v_lshl_add_u32 v56, v58, 3, v56
s_lshl_b32 s{sT2}, s{sW}, 12
s_add_u32 s{sT2}, s{sT2}, {LDS_X}
v_add_u32 v56, s{sT2}, v56""")
    for x in range(4): c += L(f"v_xor_b32 v58, {x}, v57\nv_lshl_add_u32 v{va+x}, v58, 5, v56")
    c += L(f"""s_mul_i32 s{sT1}, s{sH}, 786432
s_add_u32 s{sT1}, s{sT1}, {1536*384}
s_mov_b32 s{sT0}, s{sT1}
s_mov_b32 s{sSpin}, 0""")
    for j in range(4): c += L(f"v_mov_b32 v{vNm+4*j}, 0xff800000")
    F.block("a", c)
    c = L("L_fb1:") + kload() + chains(0, lambda j: "0")
    for j in range(4):
        a = vS + j * 8; m = vNm + 4 * j
        c += L(f"v_max3_f32 v{m}, v{m}, v{a}, v{a+1}\nv_max3_f32 v{m}, v{m}, v{a+2}, v{a+3}")
    c += L(f"s_add_u32 s{sSpin}, s{sSpin}, 1\ns_cmp_lt_u32 s{sSpin}, 32\ns_cbranch_scc1 L_fb1")
    F.block("b", c)
    c = []
    for j in range(4):
        m = vNm + 4 * j
        c += xreduce(m, m + 1, "v_max_f32")
        c += L(f"v_sub_f32 v{m+1}, 0, v{m}\nv_sub_f32 v{m+2}, 0, v{m}\nv_sub_f32 v{m+3}, 0, v{m}\nv_sub_f32 v{m}, 0, v{m}\nv_mov_b32 v{vLs+j}, 0")
    for i in range(192): c.append(I(f"v_accvgpr_write_b32 a{i}, 0"))
    c += L(f"s_mov_b32 s{sT0}, s{sT1}\ns_mov_b32 s{sSpin}, 0")
    F.block("c", c)
    c = L("L_fb2:")
    for kt in range(2): c += kload() + chains(kt, lambda j: vr(vNm + 4 * j, 4)) + L("s_nop 7")
    for j in range(4):
        for kt in range(2):
            a = vS + (j * 2 + kt) * 4
            for i in range(4): c.append(I(f"v_exp_f32 v{a+i}, v{a+i}"))
            for i in range(4): c.append(I(f"v_add_f32 v{vLs+j}, v{vLs+j}, v{a+i}"))
            for i in range(2): c.append(I(f"v_cvt_pk_bf16_f32 v{vP+j*4+kt*2+i}, v{a+2*i}, v{a+2*i+1}"))
    for cg in range(3):
        for a in range(4):
            c += L(f"""s_add_u32 m0, s{sT2}, {1024*a}
s_add_u32 s{sOffP}, s{sT1}, {3072*a+128*cg}
buffer_load_dwordx4 v{vv}, {sr(sV_,4)}, s{sOffP} offen lds""")
        c += L("s_waitcnt vmcnt(0)")
        for x in range(4):
            for u in range(2): c.append(I(f"ds_read_b64_tr_b16 {vr(vK+4*x+2*u,2)}, v{va+x} offset:{2048*u}"))
        c += L("s_waitcnt lgkmcnt(0)")
        for x in range(4):
            for j in range(4):
                d = ar(((cg * 4 + x) * 4 + j) * 4, 4)
                c.append(mfma(d, vr(vK + 4 * x, 4), vr(vP + 4 * j, 4), d))
        c += L("s_nop 7")
    c += L(f"s_add_u32 s{sT1}, s{sT1}, 12288\ns_add_u32 s{sSpin}, s{sSpin}, 1\ns_cmp_lt_u32 s{sSpin}, 16\ns_cbranch_scc1 L_fb2")
    F.block("d", c)
    c = []
    for j in range(4): c += xreduce(vLs + j, vTmp + j, "v_add_f32")
    for j in range(4): c.append(I(f"v_rcp_f32 v{vLs+j}, v{vLs+j}"))
    c += L("s_nop 15\ns_branch L_fb_back")
    F.block("e", c)
    F.trace = [("a", {}), ("b", {}), ("b", {}), ("c", {}), ("d", {}), ("d", {}), ("e", {})]
    F.insert_waits(); F.fix_hazards()
    return F.text()


def gen(dbg=False):
    P = Prog()
    OUTL.clear(); AD.clear(); HST.clear()
    for i in range(2): AD[vWa + i] = Addr(vWa + i, sbase(0)); AD[vKa + i] = Addr(vKa + i, 0)
    for i in range(4): AD[vVa + i] = Addr(vVa + i, 0)
    AD[vRa] = Addr(vRa, sbase(12)); AD[vGa] = Addr(vGa, sbase(27))
    AD[vOA] = Addr(vOA, obase(0)); AD[vOB] = Addr(vOB, obase(0)); AD[vDA] = Addr(vDA, obase(24)); AD[vDB] = Addr(vDB, obase(24))
    nblk = [0]
    def blk(ins, name=None):
        nm = name or f"b{nblk[0]}"; nblk[0] += 1
        P.block(nm, ins); P.trace.append((nm, {}))
    CPA = PAR("CPA", 10000)
    cp = [3]
    def sch(s, name, **kw):
        if name.startswith("p2_") or name.startswith("p1_"):
            if "nost" in KN: s = [x for x in s if not (x.kind == 'vmem' and 'store_dwordx4' in x.text)]
            if "nobar" in KN: s = [x for x in s if x.kind != 'barrier']
            if "novm" in KN: s = [x for x in s if not (x.kind == 'vmem' and 'dwordx4' in x.text and 'v[48:51]' not in x.text)]
            if "novalu" in KN and name.startswith("p2_"): s = [x for x in s if not (x.kind in ('valu', 'trans') and x.text.startswith(('v_exp', 'v_add_f32', 'v_cvt')))]
        if name.startswith("p3"):
            if "p3nost" in KN: s = [x for x in s if not (x.kind == 'vmem' and 'store_dwordx4' in x.text)]
            if "p3nob" in KN: s = [x for x in s if not (x.kind == 'vmem' and 'load_dwordx4' in x.text and ' lds' not in x.text and f"s{sOffB} " in x.text)]
            if "p3novalu" in KN: s = [x for x in s if not (x.kind == 'valu' and x.text.startswith(('v_accvgpr', 'v_mul_f32', 'v_cvt')))]
            if "p3plain" in KN:
                for x in s:
                    if 'store_dwordx4' in x.text: x.text = x.text.replace(" sc1", "")
            if "p3nt" in KN:
                for x in s:
                    if 'store_dwordx4' in x.text: x.text = x.text.replace(" sc1", " sc1 nt")
        pos = sum(isize(x) for b in P.blocks for x in b[1]) * 1.03
        end = pos + sum(isize(x) for x in s) * 1.03
        nm = sum(1 for x in s if x.kind == 'mfma')
        while "nocp" not in KN and cp[0] * 8192 < end + CPA and cp[0] < NSLICE:
            g = int(max(0, min(nm - 2, (cp[0] * 8192 - CPA - pos) / (end - pos) * nm)))
            k = next((i for i, x in enumerate(s) if x.kind == 'vmem' and x.after is not None and x.after > g), len(s))
            s = s[:k] + [I(f"global_load_dword v{vDum}, v{vL16}, s[62:63]", after=g), I("s_add_u32 s62, s62, 0x2000"), I("s_addc_u32 s63, s63, 0")] + s[k:]
            cp[0] += 1
        blk(schedule(s, name, verbose=dbg and "v" in KN, **kw), name)
    CC = math.log2(math.e) / math.sqrt(192.0)
    c = L(f"""s_cmp_ge_u32 s2, 256
s_cbranch_scc1 L_end
s_load_dwordx16 s[64:79], s[0:1], 0
s_load_dwordx8 s[80:87], s[0:1], 64
s_memrealtime s[{sSt}:{sSt+1}]
s_getpc_b64 s[62:63]
v_lshrrev_b32 v30, 6, v0
v_and_b32 v0, 63, v0
v_readfirstlane_b32 s{sW}, v30
v_lshlrev_b32 v{vL16}, 4, v0
v_lshlrev_b32 v{vL128}, 7, v0
v_and_b32 v48, 7, v0
v_lshrrev_b32 v49, 3, v0
v_mul_u32_u24 v60, 1280, v48
v_lshl_add_u32 v50, v49, 4, v60
v_lshl_add_u32 v50, v30, 7, v50
s_mul_i32 s{sT0}, s2, {8*1280}
s_and_b32 s{sT1}, s2, 7
s_lshr_b32 s{sT2}, s2, 3
s_and_b32 s{sH}, s{sT2}, 3
s_lshl2_add_u32 s{sH}, s{sT1}, s{sH}
s_lshr_b32 s{sB}, s{sT2}, 2
s_lshr_b32 s{sS}, s{sT1}, 1
s_and_b32 s{sT1}, s{sT1}, 1
s_lshl3_add_u32 s{sMb}, s{sT1}, s{sB}
s_and_b32 s{sNb}, s{sT2}, 3
v_cmp_eq_u32 vcc, 0, v0
v_bfrev_b32 v51, 1
v_cndmask_b32 v{vFo}, v51, 0, vcc
v_cmp_gt_u32 vcc, 2, v30
v_add_u32 v53, 1024, v50
v_cndmask_b32 v53, v51, v53, vcc
s_lshl2_add_u32 s{sT2}, s{sT2}, s{sW}
s_and_b32 s{sT2}, s{sT2}, 15
s_min_u32 s{sT2}, s{sT2}, CODE_SLICES-1
s_lshl_b32 s{sT2}, s{sT2}, 13
v_add_u32 v52, s{sT2}, v{vL128}
global_load_dword a{aDum}, v52, s[62:63]
v_lshrrev_b32 v54, 4, v0
v_and_b32 v55, 15, v0
v_and_b32 v61, 6, v49
v_xor_b32 v61, v61, v48
v_lshlrev_b32 v61, 4, v61
v_mul_u32_u24 v62, 1280, v49
v_add_u32 v{vRo2}, v62, v61
v_and_b32 v62, 4, v49
v_add_u32 v62, v62, v49
v_mul_u32_u24 v62, 3072, v62
v_add_u32 v{vRo}, v62, v61
s_lshl_b32 s{sM5}, s{sW}, 13
s_add_u32 s{sM4}, s{sM5}, {SLOT}
s_cmp_eq_u32 s{sW}, 3
s_cmov_b32 s{sM5}, {LDS_X + 4096}
s_lshl2_add_u32 s{sQg}, s{sB}, s{sW}
s_mul_i32 s{sOffBB}, s{sQg}, {64*1280}""")
    if STAMPS: c += L(f"v_mov_b32 v{vSt}, 0")
    c += L("s_waitcnt lgkmcnt(0)")
    c += srd(sXin, pX, 2048 * 640 * 2)
    c += L(f"""buffer_load_dwordx4 v[64:67], v50, {sr(sXin,4)}, s{sT0} offen
buffer_load_dwordx4 v[68:71], v50, {sr(sXin,4)}, s{sT0} offen offset:512
buffer_load_dwordx4 v[72:75], v53, {sr(sXin,4)}, s{sT0} offen
buffer_load_ushort v76, v60, {sr(sXin,4)}, s{sT0} offen""")
    c += srd(sR, pDbg, 256)
    c += L(f"""s_or_b32 s{sNonce}, s{sSt}, 1
v_mov_b32 v56, s{sNonce}
v_mov_b32 v57, 0
s_or_b32 s{sT1}, s2, s{sW}
s_cmp_eq_u32 s{sT1}, 0
s_cselect_b32 s{sT1}, 0, 0x100
buffer_atomic_cmpswap v[56:57], v{vFo}, {sr(sR,4)}, s{sT1} offen sc1""")
    c += stamp(0)
    def rawdma(ds):
        r = []
        for a in range(8):
            r += L(f"s_add_u32 m0, s{sM4 if ds == 0 else sM5}, {a*1024}\ns_add_u32 s{sOffA}, s{sOffBB}, {a*8*1280+128*ds}")
            r.append(I(f"buffer_load_dwordx4 v{vRo2}, {sr(sXin,4)}, s{sOffA} offen lds", tag_w=f"raw{ds}"))
        return r
    def inter(vm, fill):
        ch = split(vm); out = []; per = -(-len(fill) // len(ch))
        for k, cc in enumerate(ch): out += cc + fill[k * per:(k + 1) * per]
        return out
    f1 = []
    for n in range(3):
        f1.append(I(f"v_add_u32 v61, {64*n}, v0"))
        f1 += divmod_const(62, 63, 61, 24)
        f1 += L(f"""v_and_b32 v57, 6, v62
v_xor_b32 v57, v63, v57
v_lshlrev_b32 v57, 4, v57
v_subrev_u32 v57, {1024*n}, v57
v_and_b32 v59, 4, v62
v_add_u32 v59, v59, v62
v_mul_u32_u24 v59, 12288, v59
v_add_u32 v{vWo+n}, v59, v57""")
    f1 += srd(sWq, pWq, 640 * 6144 * 2) + srd(sWS, pWs, WS_SIZE)
    f1 += L(f"""s_lshr_b32 s{sT0}, s{sW}, 1
s_and_b32 s{sOffY}, s{sW}, 1
s_lshl_b32 s{sT2}, s{sT0}, 5
s_lshl2_add_u32 s{sT2}, s{sOffY}, s{sT2}
s_mul_i32 s{sOffX}, s{sT2}, 12288
s_mul_i32 s{sT2}, s{sH}, 384
s_add_u32 s{sOffX}, s{sOffX}, s{sT2}
s_mul_i32 s{sM6}, s{sW}, 6144""")
    f2 = L(f"""v_lshrrev_b32 v56, 2, v55
v_and_b32 v57, 3, v0
v_lshl_add_u32 v58, v54, 2, v56
v_bfe_u32 v59, v58, 1, 2
v_mul_u32_u24 v62, 384, v58
v_add_u32 v62, {sbase(0)}, v62
v_lshlrev_b32 v63, 1, v59
v_xor_b32 v63, v63, v57
v_lshl_add_u32 v{vWa}, v63, 4, v62
v_xor_b32 v63, 4, v63
v_lshl_add_u32 v{vWa+1}, v63, 4, v62
v_bfe_u32 v{vPa}, v0, 2, 3
v_lshlrev_b32 v{vPa}, 7, v{vPa}
v_lshl_add_u32 v{vPa}, v57, 2, v{vPa}
v_lshlrev_b32 v{vSo}, 3, v55
v_lshlrev_b32 v62, 7, v55
v_and_b32 v63, 6, v55
v_xor_b32 v63, v63, v54
v_lshl_add_u32 v{vXo2}, v63, 4, v62
v_xor_b32 v63, 4, v63
v_lshl_add_u32 v{vXo2+1}, v63, 4, v62
v_add_u32 v{vXo}, s{sM4}, v{vXo2}
v_add_u32 v{vXo+1}, s{sM4}, v{vXo2+1}
v_add_u32 v{vXo2}, s{sM5}, v{vXo2}
v_add_u32 v{vXo2+1}, s{sM5}, v{vXo2+1}
v_lshlrev_b32 v58, 3, v48
v_add_u32 v58, {LDS_X}, v58
v_lshl_add_u32 v59, v30, 6, v58
v_lshrrev_b32 v56, 2, v49
v_lshl_add_u32 v56, v30, 1, v56
v_lshlrev_b32 v56, 12, v56
v_and_b32 v57, 3, v49
v_lshl_add_u32 v56, v57, 8, v56
v_lshl_add_u32 v56, v48, 4, v56
v_add_u32 v57, {16*4096}, v56
v_cndmask_b32 v57, v51, v57, vcc
v_or_b32 v61, v49, v30
v_cmp_eq_u32 vcc, 0, v61
v_lshlrev_b32 v61, 3, v48
v_cndmask_b32 v61, v51, v61, vcc
s_lshr_b32 s{sT2}, s2, 3
s_mul_i32 s{sT2}, s{sT2}, {20*4096}
s_bfe_u32 s{sOffK}, s2, 0x20001
s_lshl_b32 s{sOffK}, s{sOffK}, 10
s_add_u32 s{sT2}, s{sT2}, s{sOffK}
s_and_b32 s{sOffK}, s2, 1
s_lshl_b32 s{sOffK}, s{sOffK}, 7
s_add_u32 s{sT2}, s{sT2}, s{sOffK}
s_add_u32 s{sOffK}, s{sT2}, {8*4096}
s_lshl_b32 s{sOffP}, s2, 6
s_add_u32 s{sOffP}, s{sOffP}, {hex(ST_OFF)}
s_lshr_b32 s{sSpin}, s{sW}, 1
s_sub_u32 s{sSpin}, s{sSpin}, 1
s_and_b32 s{sSpin}, s{sSpin}, 0x3f800000""")
    pfv = divmod_const(62, 63, 0, 3) + L(f"""v_mul_u32_u24 v62, 12288, v62
v_lshl_add_u32 v62, v63, 7, v62
v_cmp_gt_u32 vcc, 12, v0
v_cndmask_b32 v{vL128}, v51, v62, vcc
s_lshl_b32 s{sQd}, s{sQg}, 2
s_add_u32 s{sQd}, s{sQd}, 256
s_mul_i32 s{sQd}, s{sQd}, 12288
s_mul_i32 s{sOffG}, s{sH}, 384
s_add_u32 s{sQd}, s{sQd}, s{sOffG}""")
    f2 += pfv
    for i in range(4): f2.append(I(f"v_mov_b32 v{vOne+i}, 0x3f803f80"))
    c += inter(rawdma(0), f1)
    c += inter(dma_stage(0), f2)
    c += L(f"v_mov_b32 v60, 0\nbuffer_load_dword v{vNon}, v60, {sr(sR,4)}, 0 offen sc1\ns_mov_b32 s{sT1}, s{sOffY}\ns_mov_b32 s{sT3}, s{sOffK}")
    su0 = L(f"""s_lshl_b32 s{sFl}, s2, 7
s_lshl2_add_u32 s{sFl}, s{sW}, s{sFl}
s_add_u32 s{sFl}, s{sFl}, {hex(FXN)}
s_lshl_b32 s{sFg}, s{sQg}, 10
s_add_u32 s{sFg}, s{sFg}, {hex(FXN)}
s_lshl_b32 s{sScale}, s{sQg}, 9
s_add_u32 s{sScale}, s{sScale}, {hex(ST_OFF)}
s_mul_i32 s{sOffB}, s{sQg}, {20*4096}
s_add_u32 s{sOffB}, s{sOffB}, {4*4096}
s_mul_i32 s{sM3}, s{sW}, 3072
s_mul_i32 s{sOffK}, s{sH}, 786432
s_add_u32 s{sOffK}, s{sOffK}, {1536*384}
s_add_u32 s{sOffK}, s{sOffK}, s{sM3}
s_mov_b32 s{sOffV}, s{sOffK}
s_lshr_b32 s{sPf}, s2, 3
s_lshl2_add_u32 s{sPf}, s{sPf}, s{sW}
s_and_b32 s{sPf}, s{sPf}, 7
s_lshl_b32 s{sPf}, s{sPf}, 10
s_add_u32 s{sPf}, s{sPf}, {3*8192}
s_add_u32 s62, s62, s{sPf}
s_addc_u32 s63, s63, 0""") + srd(sK, pK, 32 * 2048 * 192 * 2) + srd(sV, pV, 32 * 2048 * 192 * 2)
    wpf = lambda: ([prefetch(sWq, f"s{sQd}")] + L(f"s_add_u32 s{sQd}, s{sQd}, {128*12288}")) if "nowpf" not in KN else []
    vu = []
    for n in range(3):
        vu.append(I(f"v_add_u32 v61, {64*n}, v0"))
        vu += divmod_const(62, 63, 61, 24)
        vu += L(f"""v_and_b32 v57, 6, v62
v_xor_b32 v57, v63, v57
v_lshlrev_b32 v57, 4, v57
v_subrev_u32 v57, {1024*n}, v57
v_mul_u32_u24 v58, 384, v62
v_add_u32 v{vVo+n}, v58, v57
v_lshrrev_b32 v59, 1, v62
v_lshl_add_u32 v59, s{sW}, 2, v59
v_and_b32 v59, 7, v59
v_xor_b32 v59, v63, v59
v_lshlrev_b32 v59, 4, v59
v_subrev_u32 v59, {1024*n}, v59
v_add_u32 v{vKo+n}, v58, v59""")
    vu += L(f"""v_lshrrev_b32 v56, 2, v55
v_and_b32 v57, 3, v0
v_lshl_add_u32 v58, v54, 2, v56
v_bfe_u32 v59, v58, 1, 2
v_mul_u32_u24 v62, 384, v58
v_lshl_add_u32 v62, v57, 3, v62""")
    for x in range(4): vu += L(f"v_xor_b32 v63, {x}, v59\nv_lshl_add_u32 v{vVa+x}, v63, 5, v62")
    vu += L(f"""v_lshlrev_b32 v62, 7, v58
v_lshl_add_u32 v62, v57, 3, v62
v_xor_b32 v63, s{sW}, v59
v_lshl_add_u32 v62, v63, 5, v62
v_add_u32 v{vRa}, {sbase(12)}, v62
v_add_u32 v{vGa}, {sbase(27)}, v{vL16}
v_mul_u32_u24 v62, 384, v55
v_lshrrev_b32 v63, 1, v55
v_xor_b32 v63, v63, v54
v_lshl_add_u32 v{vKa}, v63, 4, v62
v_xor_b32 v63, 4, v63
v_lshl_add_u32 v{vKa+1}, v63, 4, v62""")
    for i in range(4): vu.append(I(f"v_mov_b32 v{vLs+i}, 0"))
    xr = L(f"""v_and_b32 v61, 7, v0
v_lshrrev_b32 v62, 3, v0
v_mul_u32_u24 v63, 1280, v61
v_lshl_add_u32 v63, v62, 4, v63
s_mul_i32 s{sOffY}, s2, {8*1280}
s_lshl_b32 s{sPf}, s{sW}, 7
s_add_u32 s{sOffY}, s{sOffY}, s{sPf}
buffer_load_dwordx4 a[244:247], v63, {sr(sXin,4)}, s{sOffY} offen
buffer_load_dwordx4 a[248:251], v63, {sr(sXin,4)}, s{sOffY} offen offset:512
buffer_load_dwordx4 a[252:255], v63, {sr(sXin,4)}, s{sOffY} offen offset:1024""")
    xs = L(f"""v_lshrrev_b32 v63, 2, v62
v_lshlrev_b32 v63, 12, v63
v_and_b32 v62, 3, v62
v_lshl_add_u32 v63, v62, 8, v63
v_lshl_add_u32 v63, v61, 4, v63
s_lshr_b32 s{sOffY}, s2, 3
s_mul_i32 s{sOffY}, s{sOffY}, {20*4096}
s_bfe_u32 s{sPf}, s2, 0x20001
s_lshl_b32 s{sPf}, s{sPf}, 10
s_add_u32 s{sOffY}, s{sOffY}, s{sPf}
s_and_b32 s{sPf}, s2, 1
s_lshl_b32 s{sPf}, s{sPf}, 7
s_add_u32 s{sOffY}, s{sOffY}, s{sPf}
s_lshl_b32 s{sPf}, s{sW}, 13
s_add_u32 s{sOffY}, s{sOffY}, s{sPf}
s_add_u32 s{sOffY}, s{sOffY}, {hex(XR_OFF)}""")
    for i in range(3):
        if i == 2: xs += L(f"s_cmp_lt_u32 s{sW}, 2\ns_cselect_b32 s{sOffY}, s{sOffY}, 0x40000000")
        xs.append(I(f"buffer_store_dwordx4 {ar(244+4*i,4)}, v63, {sr(sWS,4)}, s{sOffY} offen sc1", tag_w="Gst"))
        if i < 2: xs += L(f"s_add_u32 s{sOffY}, s{sOffY}, {8*4096}")
    c += L("v_lshlrev_b32 v76, 16, v76\nv_mov_b32 v77, v76")
    for i in range(12):
        c += L(f"v_lshlrev_b32 v{80+2*i}, 16, v{64+i}\nv_and_b32 v{81+2*i}, 0xffff0000, v{64+i}")
        c += L(f"v_pk_add_f32 v[{112+2*i}:{113+2*i}], v[{80+2*i}:{81+2*i}], v[76:77] neg_lo:[0,1] neg_hi:[0,1]")
    for i in range(12):
        a = 104 if i < 8 else 108
        d = vr(112 + 2 * i, 2)
        if i in (0, 8): c += L(f"v_pk_mul_f32 v[{a+2}:{a+3}], {d}, {d}\nv_mov_b32 v{a}, v{112+2*i}\nv_mov_b32 v{a+1}, v{113+2*i}")
        else: c += L(f"v_pk_fma_f32 v[{a+2}:{a+3}], {d}, {d}, v[{a+2}:{a+3}]\nv_pk_add_f32 v[{a}:{a+1}], v[{a}:{a+1}], {d}")
    c += L(f"""v_add_f32 v104, v104, v105
v_add_f32 v105, v106, v107
v_add_f32 v108, v108, v109
v_add_f32 v109, v110, v111
v_fmac_f32 v104, s{sSpin}, v108
v_fmac_f32 v105, s{sSpin}, v109
s_nop 1
v_add_f32_dpp v104, v104, v104 row_ror:8 row_mask:0xf bank_mask:0xf
v_add_f32_dpp v105, v105, v105 row_ror:8 row_mask:0xf bank_mask:0xf""")
    ra, rb = xreduce(104, 106, "v_add_f32"), xreduce(105, 107, "v_add_f32")
    for x, y in zip(ra, rb): c += [x, y]
    c += L(f"""ds_write_b64 v59, v[104:105]
s_waitcnt lgkmcnt(0)
s_barrier
ds_read_b64 v[104:105], v58
ds_read_b64 v[106:107], v58 offset:64
ds_read_b64 v[108:109], v58 offset:128
ds_read_b64 v[110:111], v58 offset:192
v_pk_add_f32 v[104:105], v[104:105], v[106:107]
v_pk_add_f32 v[108:109], v[108:109], v[110:111]
v_pk_add_f32 v[104:105], v[104:105], v[108:109]
v_mul_f32 v104, {hex(f2u(1.0/640))}, v104
v_mul_f32 v105, {hex(f2u(1.0/640))}, v105
v_fma_f32 v105, -v104, v104, v105
v_max_f32 v105, 0, v105
v_add_f32 v104, v104, v76
v_cvt_pk_bf16_f32 v104, v105, v104
v_and_b32 v108, 0xffff0000, v104
v_mov_b32 v109, v108""")
    for i in range(12):
        d = vr(80 + 2 * i, 2)
        c += L(f"""v_pk_add_f32 {d}, {d}, v[108:109] neg_lo:[0,1] neg_hi:[0,1]
v_cvt_pk_bf16_f32 v{64+i}, v{80+2*i}, v{81+2*i}""")
        if i == 3: c.append(I(f"buffer_store_dwordx4 v[64:67], v56, {sr(sWS,4)}, s{sT2} offen sc1", tag_w="Xst"))
        if i == 7: c.append(I(f"buffer_store_dwordx4 v[68:71], v56, {sr(sWS,4)}, s{sT3} offen sc1", tag_w="Xst"))
        if i == 11: c.append(I(f"buffer_store_dwordx4 v[72:75], v57, {sr(sWS,4)}, s{sT2} offen sc1", tag_w="Xst"))
    c += L(f"""v_lshlrev_b32 v104, 16, v104
v_add_f32 v104, {hex(f2u(1e-5))}, v104
v_cvt_pk_bf16_f32 v104, v104, v104
v_lshlrev_b32 v104, 16, v104
v_sqrt_f32 v104, v104
v_xor_b32 v106, 0x80000000, v108
v_cvt_pk_bf16_f32 v104, v104, v104
v_lshlrev_b32 v104, 16, v104
v_rcp_f32 v104, v104
s_nop 0
v_mul_f32 v107, {hex(f2u(CC))}, v104""")
    c.append(I(f"buffer_store_dwordx2 v[106:107], v61, {sr(sWS,4)}, s{sOffP} offen sc1", tag_w="Xst"))
    c += stamp(1)
    c += raw_reads(0)
    c.append(barrier(["st0", "rawrd0"]))
    c += w_reads0(0) + w_reads0(1)
    c += L(f"""v_readfirstlane_b32 s{sNonce}, v{vNon}
s_nop 3
s_cmp_lg_u32 s{sNonce}, 0
s_cbranch_scc0 L_nonce
L_nonce_ok:""")
    OUTL.append(("nonce", L(f"""L_nonce:
s_mov_b32 s{sSpin}, {SPIN_MAX}
L_nonce2:
buffer_load_dword v{vNon}, v60, {sr(sR,4)}, 0 offen sc1
s_waitcnt vmcnt(0)
v_readfirstlane_b32 s{sNonce}, v{vNon}
s_nop 3
s_cmp_lg_u32 s{sNonce}, 0
s_cbranch_scc1 L_nonce_ok
s_sub_u32 s{sSpin}, s{sSpin}, 1
s_cmp_lg_u32 s{sSpin}, 0
s_cbranch_scc1 L_nonce2
s_branch L_nonce_ok""")))
    c += stamp(2)
    blk(c, "pro")
    su = L(f"""s_mul_i32 s{sOffG}, s{sH}, {20*6144}
s_add_u32 s{sOffG}, s{sOffG}, s{sM6}
s_add_u32 s{sOffG}, s{sOffG}, {hex(GP_OFF)}
s_lshl_b32 s{sM1}, s{sW}, 10
s_mul_i32 s{sM5}, s{sW}, 5120
s_lshl_b32 s{sM4}, s{sW}, 12
s_mul_i32 s{sT2}, s{sQg}, {240*4096}
s_add_u32 s{sT2}, s{sT2}, {hex(OH_OFF)}
s_mul_i32 s{sT3}, s{sH}, {6*4096}
s_add_u32 s{sOffO}, s{sT2}, s{sT3}
s_add_u32 s{sT2}, s{sT2}, {192*4096}
s_mul_i32 s{sT3}, s{sH}, 3""")
    for T3 in range(3):
        su += L(f"""s_lshr_b32 s{sSpin}, s{sT3}, 1
s_lshl_b32 s{sSpin}, s{sSpin}, 12
s_add_u32 s{sOffH+T3}, s{sT2}, s{sSpin}
s_and_b32 s{sSpin}, s{sT3}, 1
s_lshl_b32 s{sSpin}, s{sSpin}, 9
s_add_u32 s{sOffH+T3}, s{sOffH+T3}, s{sSpin}
s_add_u32 s{sT3}, s{sT3}, 1""")
    su += L(f"""s_sub_u32 s{sT2}, s2, 240
s_min_u32 s{sT2}, s2, s{sT2}""")
    su += sdivmod(sT3, sSpin, sT2, 10)
    su += L(f"""s_lshl_b32 s{sOffRo}, s{sT3}, 8
s_lshl3_add_u32 s{sOffRo}, s{sW}, s{sOffRo}
s_mul_i32 s{sOffRo}, s{sOffRo}, 1280
s_lshl_b32 s{sFl}, s{sSpin}, 7
s_add_u32 s{sOffRo}, s{sOffRo}, s{sFl}
s_lshl_b32 s{sOffRd}, s{sT3}, 6
s_lshl4_add_u32 s{sOffRd}, s{sT1}, s{sOffRd}
s_lshl3_add_u32 s{sOffRd}, s{sT0}, s{sOffRd}
s_mul_i32 s{sOffRd}, s{sOffRd}, 1280
s_add_u32 s{sOffRd}, s{sOffRd}, s{sFl}
s_lshl2_add_u32 s{sSpin}, s{sSpin}, s{sW}""")
    su += sdivmod(sFl, sOffP, sSpin, 10)
    su += L(f"""s_mul_i32 s{sFl}, s{sFl}, 192
s_lshl3_add_u32 s{sFl}, s{sT3}, s{sFl}
s_mul_i32 s{sFl}, s{sFl}, 10
s_add_u32 s{sFl}, s{sFl}, s{sOffP}
s_lshl_b32 s{sFl}, s{sFl}, 10
s_add_u32 s{sOffDo}, s{sFl}, {hex(WOP_OFF)}""")
    su += sdivmod(sFl, sOffP, sSpin, 5)
    su += L(f"""s_mul_i32 s{sFl}, s{sFl}, 48
s_lshl1_add_u32 s{sFl}, s{sT3}, s{sFl}
s_mul_i32 s{sFl}, s{sFl}, 5
s_add_u32 s{sFl}, s{sFl}, s{sOffP}
s_lshl_b32 s{sFl}, s{sFl}, 10
s_add_u32 s{sOffDd}, s{sFl}, {hex(WDP_OFF)}""")
    su2 = sdivmod(sT3, sSpin, sT2, 48)
    su2 += [L(f"""s_cmp_ge_u32 s{sSpin}, 24
s_cselect_b32 s{pBx}, s{pWu}, s{pWg}
s_cselect_b32 s{pBx+1}, s{pWu+1}, s{pWg+1}
s_cselect_b32 s{sT2}, 1, 0
s_cselect_b32 s{sFl}, 24, 0""")]
    su2 += L(f"""s_sub_u32 s{sSpin}, s{sSpin}, s{sFl}
s_lshl_b32 s{sOffR}, s{sT3}, 7
s_lshl4_add_u32 s{sOffR}, s{sT1}, s{sOffR}
s_lshl2_add_u32 s{sOffR}, s{sT0}, s{sOffR}
s_mul_i32 s{sOffR}, s{sOffR}, 3072
s_lshl_b32 s{sFl}, s{sSpin}, 7
s_add_u32 s{sOffR}, s{sOffR}, s{sFl}
s_lshl2_add_u32 s{sSpin}, s{sSpin}, s{sW}""")
    su2 += sdivmod(sFl, sOffP, sSpin, 3)
    su2 += L(f"""s_mul_i32 s{sFl}, s{sFl}, 20
s_lshl2_add_u32 s{sFl}, s{sT3}, s{sFl}
s_mul_i32 s{sFl}, s{sFl}, 6
s_lshl1_add_u32 s{sFl}, s{sOffP}, s{sFl}
s_add_u32 s{sFl}, s{sFl}, s{sT2}
s_lshl_b32 s{sFl}, s{sFl}, 10
s_add_u32 s{sOffD}, s{sFl}, {hex(GP_OFF)}
s_lshl_b32 s{sFg}, s2, 2
s_add_u32 s{sFg}, s{sFg}, {hex(FG)}""")
    su2 += [L(f"s_cmp_eq_u32 s{sW}, 0\ns_cselect_b32 s{sFg}, s{sFg}, 0x40000000")]
    su2 += L(f"""s_lshr_b32 s{sT2}, s{sH}, 3
s_lshl2_add_u32 s{sFl}, s{sQg}, s{sT2}
s_lshl_b32 s{sFl}, s{sFl}, 7
s_and_b32 s{sT2}, s{sH}, 7
s_lshl2_add_u32 s{sFl}, s{sT2}, s{sFl}
s_add_u32 s{sFl}, s{sFl}, {hex(FO)}
s_mul_i32 s{sOffA}, s{sNb}, 192
s_mul_i32 s{sT2}, s{sS}, 48
s_add_u32 s{sOffA}, s{sOffA}, s{sT2}
s_mul_i32 s{sOffA}, s{sOffA}, 10240
s_add_u32 s{sOffA}, s{sOffA}, s{sM5}
s_add_u32 s{sOffA}, s{sOffA}, {hex(WOP_OFF)}
s_lshl1_add_u32 s{sOffBB}, s{sMb}, s{sT1}
s_mul_i32 s{sOffBB}, s{sOffBB}, 240
s_add_u32 s{sOffBB}, s{sOffBB}, s{sT2}
s_add_u32 s{sOffBB}, s{sOffBB}, s{sT0}
s_lshl_b32 s{sOffBB}, s{sOffBB}, 12
s_add_u32 s{sOffBB}, s{sOffBB}, {hex(OH_OFF)}
s_lshr_b32 s{sT2}, s{sS}, 1
s_lshl1_add_u32 s{sQd}, s{sMb}, s{sT2}""") + srd(sR, pBx, 640 * 1536 * 2)
    def weave(vm, sal):
        ch = split(vm); out = []
        per = -(-len(sal) // len(ch))
        for k, cc in enumerate(ch):
            out += cc
            for y in sal[k * per:(k + 1) * per]: out += y if isinstance(y, list) else [y]
        return out
    XH = PAR("XH", 15)
    XF = PAR("XF", 50); XQ = PAR("XQ", 110)
    q0a = pace(rawdma(1) + dma_stage(1), 0, PAR("Q0", 44)) + pace(dma_stage(2) + wpf() + dma_stage(3) + wpf(), 56, XH * 10 - 2)
    fl = set_flag(f"s{sFl}", "Xst", after=XF); pl_ = poll_load(vPd, vPa, f"s{sFg}", after=XQ)
    ch = split(q0a)
    for x in (fl, pl_):
        k = next((i for i, cc in enumerate(ch) if [y for y in cc if y.kind == 'vmem'][0].after > x.after), len(ch))
        ch.insert(k, [x])
    for k in range(8, 14): ch[k] = ch[k] + su0[(k - 8) * 1:(k - 7) * 1]
    ch[15] = ch[15] + su0[6:13]; ch[16] = ch[16] + su0[13:21]; ch[17] = ch[17] + su0[21:]
    for cc in ch:
        for x in cc: x.reads.discard('stg')
    sch(p1_first(0, XH, extra=[x for cc in ch for x in cc] + vu), "p1_0a", vm_min=3)
    fs = lambda k: blk(stamp(k)) if "fine1" in KN else None
    fs(14)
    blk(poll_cmp(vPd, 1) + poll_branch("xn", vPd, vPa, f"s{sFg}"))
    fs(15)
    bl = lambda k: b_loads(('a', 64 * (k % 2))) + b_loads(('a', 64 * (k % 2) + 32))
    sch(p1_first(XH, 24, extra=pace(bl(1), 0, 56)), "p1_0b", vm_min=3); fs(16)
    sch(p1_quad(1, vm=weave(dma_stage(4) + dma_stage(5) + wpf() + stat_loads() + bl(2), su)), "p1_1"); fs(17)
    sch(p1_quad(2, vm=weave(dma_stage(6) + dma_stage(7) + bl(3), su2)), "p1_2"); fs(18)
    sch(p1_quad(3, vm=dma_stage(8) + dma_stage(9) + bl(4) + dma_stage(10)), "p1_3")
    if "stagtest" in KN:
        blk(L(f"""s_and_b32 s{sSpin}, s{sH}, 1
s_mul_i32 s{sSpin}, s{sSpin}, 150
L_stag:
s_cmp_eq_u32 s{sSpin}, 0
s_cbranch_scc1 L_stag2
s_sleep 1
s_sub_u32 s{sSpin}, s{sSpin}, 1
s_branch L_stag
L_stag2:"""))
    blk(stamp(3))
    sch(p1_quad(4, vm=dma_stage(11) + dma_stage(12)) + first_tile(192) + p2_iter(0, base=192 + 48), "p1_last")
    blk(stamp(4))
    XP = PAR("XP", 9)
    for t in range(1, 14):
        ex = []; post = []; btag = []
        if t == 1: ex += xr
        if t == 3: ex += xs
        if t == 6: btag = ["Gst"]
        if t == 7: ex += [set_flag(f"s{sFg}", None)] + L(f"s_add_u32 s{sFg}, s{sFg}, {FW-FG}")
        if t == 10: ex += L(f"s_mov_b32 s{sT0}, {hex(FG)}") + [poll_load(vTmp, vL16, f"s{sT0}", 4)]
        if t == 12: post += late(poll_cmp(vTmp, 4), 60)
        XN_ = PAR("XN", 2)
        if "xpf" in KN and XP <= t <= 13:
            if t == XP: ex += L(f"""s_and_b32 s{sPf}, s{sH}, 3
s_lshl_b32 s{sPf}, s{sPf}, 11
s_mul_i32 s{sT2}, s{sQg}, {20*4096}
s_add_u32 s{sPf}, s{sPf}, s{sT2}""")
            for k in range(XN_):
                if (t - XP) * XN_ + k < 10:
                    for o in (0, 1024):
                        x = I(f"buffer_load_dwordx4 v[60:63], v{vL16}, {sr(sWS,4)}, s{sPf} offen offset:{o} sc1")
                        if (t - XP) * XN_ + k < 9 or o == 0: x.writes = set()
                        ex.append(x)
                    ex += L(f"s_add_u32 s{sPf}, s{sPf}, 8192")
        sch(p2_iter(t, extra=ex, post=post, btag=btag), f"p2_{t}")
        if t == 12 and "stagtest" not in KN: blk(poll_branch("g", vTmp, vL16, f"s{sT0}", 4))
    blk(stamp(5))
    sch(p2_iter(14, btag=["Wst"]) + tail_pv(96), "tail", vm_min=3)
    blk(L("s_cbranch_vccnz L_fb\nL_fb_back:") + stamp(6))
    steps = p3_steps()
    setup = L(f"""v_and_b32 v{vT}, 32, v0
v_lshlrev_b32 v{vT}, 4, v{vT}
v_add_u32 v{vT}, v{vT}, v{vL16}
s_and_b32 s{sT3}, s{sW}, 1
s_lshl1_add_u32 s{sT1}, s{sMb}, s{sT3}
s_lshl2_add_u32 s{sT1}, s{sT1}, s{sS}
s_lshl_b32 s{sT1}, s{sT1}, 7
s_add_u32 s{sT1}, s{sT1}, {hex(FO)}
v_and_b32 v{vFa}, 7, v0
v_lshlrev_b32 v{vFa}, 2, v{vFa}
s_mul_i32 s{sT3}, s{sT3}, 5120
s_add_u32 s{sT3}, s{sT3}, {obase(0)}
v_add_u32 v{vOA}, s{sT3}, v{vL16}
s_lshr_b32 s{sT2}, s{sW}, 1
s_lshl_b32 s{sT2}, s{sT2}, 12
s_add_u32 s{sT2}, s{sT2}, {20480+obase(0)}
v_add_u32 v{vOB}, s{sT2}, v{vL16}
v_add_u32 v{vDA}, {obase(24)}, v{vL16}
s_add_u32 s{sT2}, s{sM1}, {20480+obase(24)}
v_add_u32 v{vDB}, s{sT2}, v{vL16}
v_lshlrev_b32 v{vL128}, 7, v0
v_bfrev_b32 v38, 1
v_cmp_gt_u32 vcc, 20, v0
v_cndmask_b32 v{vL128}, v38, v{vL128}, vcc
s_and_b32 s{sT2}, s{sMb}, 7
s_lshl2_add_u32 s{sT2}, s{sT2}, s{sW}
s_mul_i32 s{sOffX}, s{sT2}, 2560
s_sub_u32 s{sOffX}, s{sOffX}, s{sM5}
s_add_u32 s{sPf}, s{sOffA}, s{sOffX}
s_add_u32 s{sPf}, s{sPf}, 81920""")
    for k in range(9):
        body = (setup if k == 3 else []) + join_steps(steps[k:k+1] if k < 8 else steps[8:])
        if k == 8:
            body += [I("s_barrier", tag_r="ot0", wr=['stg'], rd=['stg2'], after=48 + 26)] + o_reads(0)
        sch(body, f"p3s{k}", vm_min=2)
        if k == WC and "stagtest" not in KN: blk(poll_cmp(vFl, 4) + poll_branch("w", vFl, vL16, f"s{sT0}", 4))
        if k == OC and "stagtest" not in KN: blk(poll_cmp(vFo2, 1) + poll_branch("o", vFo2, vFa, f"s{sT1}"))
        if "fine" in KN: blk(stamp(14 + k))
    c = stamp(7) + stamp(8)
    if OC == 9:
        c += dmaB(0) + dmaB(1) + dmaB(2)
        c.append(I("s_barrier", tag_r="ot0"))
        c += o_reads(0)
    c += stamp(9)
    blk(c, "o_pro")
    osetup = L(f"""s_lshl_b32 s{sT1}, s{sQd}, 7
s_add_u32 s{sT1}, s{sT1}, {hex(FH)}
v_and_b32 v{vFa}, 31, v0
v_lshlrev_b32 v{vFa}, 2, v{vFa}
s_and_b32 s{sT2}, s{sS}, 1
s_lshl1_add_u32 s{sT2}, s{sNb}, s{sT2}
s_mul_i32 s{sOffRo}, s{sT2}, {48*5120}
s_add_u32 s{sOffRo}, s{sOffRo}, s{sM5}
s_add_u32 s{sOffRo}, s{sOffRo}, {hex(WDP_OFF)}
s_mul_i32 s{sT2}, s{sT2}, 160
s_lshl2_add_u32 s{sOffO}, s{sQd}, s{sW}
s_mul_i32 s{sOffO}, s{sOffO}, {16*1280}
s_add_u32 s{sOffO}, s{sOffO}, s{sT2}
s_mul_i32 s{sOffRd}, s{sQd}, 240
s_add_u32 s{sOffRd}, s{sOffRd}, s{sW}
s_add_u32 s{sOffRd}, s{sOffRd}, 192
s_lshl_b32 s{sOffRd}, s{sOffRd}, 12
s_add_u32 s{sOffRd}, s{sOffRd}, {hex(OH_OFF)}
s_lshl2_add_u32 s{sT0}, s{sMb}, s{sNb}
s_lshl2_add_u32 s{sT3}, s{sT0}, s{sS}
s_lshl2_add_u32 s{sT2}, s{sT3}, s{sW}
s_mul_i32 s{sOffP}, s{sT2}, 10240
s_add_u32 s{sOffP}, s{sOffP}, {hex(PART_OFF)}
s_lshl2_add_u32 s{sFl}, s{sT0}, s{sW}
s_lshl_b32 s{sFl}, s{sFl}, 7
s_lshl2_add_u32 s{sFl}, s{sS}, s{sFl}
s_add_u32 s{sFl}, s{sFl}, {hex(FP)}
v_and_b32 v{vOa}, 15, v0
v_mul_u32_u24 v{vOa}, 1280, v{vOa}
v_lshrrev_b32 v{vPo}, 4, v0
v_lshl_add_u32 v{vOa}, v{vPo}, 3, v{vOa}
v_and_b32 v{vFa2}, 3, v0
v_lshlrev_b32 v{vFa2}, 2, v{vFa2}""") + srd(sOut, pOut, 2048 * 640 * 2) + L(f"""s_lshl_b32 s{sFg}, s{sT3}, 7
s_add_u32 s{sFg}, s{sFg}, {hex(FP)}
s_lshl4_add_u32 s{sT2}, s{sT0}, s{sS}
s_mul_i32 s{sOffK}, s{sT2}, 10240
s_add_u32 s{sOffK}, s{sOffK}, {hex(PART_OFF)}""")
    assert len(osetup) <= 56
    for sg in range(4):
        ex = []
        if sg == 0: ex = dmaB(3) + dmaA(3)
        if sg == 0: ex = ex + HST[:2]
        if sg == 1: ex = HST[2:]
        if sg == 2: ex = L(f"s_mov_b32 s{sOffV}, {hex(FW2)}") + [poll_load(48, vL16, f"s{sOffV}", 4)]
        if sg == 3: ex = ex + L(f"s_add_u32 s{sQg}, s{sQg}, {hex(FH)}\ns_add_u32 s{sOffX}, s{sOffX}, s{sOffRo}")
        pre = L(f"s_lshl_b32 s{sQg}, s{sQg}, 7\ns_lshl2_add_u32 s{sQg}, s{sH}, s{sQg}") if sg == 0 else []
        sch(o_block(sg, ex, pre=pre, mid=osetup[sg * 14:(sg + 1) * 14], exfirst=(sg == 0)), f"o{sg}", vm_min=2)
    base_state = {r: AD[r].base for r in (vOA, vOB)}
    if "fine2" in KN: blk(stamp(14))
    P.block("ol_top", L(f"s_mov_b32 s{sH}, 0") + L(".p2align 6\nL_o:")); P.trace.append(("ol_top", {}))
    lb = []
    NIT = PAR('NIT', 4)
    for q in range(4):
        ex = L(f"s_cmp_eq_u32 s{sH}, {NIT-1}\ns_cselect_b32 s{sT2}, s{sT1}, 0x40000000") + [poll_load(vFl, vFa, f"s{sT2}")] if q == 0 else []
        if q == 1: ex = L(f"s_cmp_eq_u32 s{sH}, 0\ns_cselect_b32 s{sT2}, s{sQg}, 0x40000000") + [set_flag(f"s{sT2}", "Hst")]
        b = o_block(4 + q, ex)
        for x in b:
            for attr in ('tag_r', 'tag_w'):
                t = getattr(x, attr)
                if t is None: continue
                if t == "Hst": continue
                ts = t if isinstance(t, list) else [t]
                setattr(x, attr, (lambda ts: lambda env: [u[:2] + str(int(u[2:]) + 4 * env['it']) for u in ts])(ts))
        if "ohitA" in KN: b = [x for x in b if not x.text.startswith(f"s_add_u32 s{sOffA}, s{sOffA}")]
        if "ohitB" in KN: b = [x for x in b if not x.text.startswith(f"s_add_u32 s{sOffBB}, s{sOffBB}")]
        if "onods" in KN: b = [x for x in b if x.kind != 'ds']
        if "onodma" in KN: b = [x for x in b if not (x.kind == 'vmem' and ' lds' in x.text)]
        if "onobar" in KN: b = [x for x in b if x.kind != 'barrier']
        if "onosc1" in KN:
            for x in b:
                if ' lds' in x.text: x.text = x.text.replace(" sc1", "")
        b = schedule(b, f"ol{q}", verbose=dbg and "v" in KN, vm_min=3)
        if q == 3: b += L(f"s_add_u32 s{sH}, s{sH}, 1\ns_cmp_lt_u32 s{sH}, {NIT}\ns_cbranch_scc1 L_o")
        P.block(f"ol{q}", b)
    assert base_state == {r: AD[r].base for r in (vOA, vOB)}, "loop address state"
    for it in range(NIT): P.trace += [(f"ol{q}", {'it': it}) for q in range(4)]
    if "fine2" in KN: blk(stamp(15))
    blk(poll_cmp(48, 4) + poll_branch("w2", 48, vL16, f"s{sOffV}", 4))
    blk(poll_cmp(vFl, 1) + poll_branch("h", vFl, vFa, f"s{sT1}"))
    dsetup = L(f"""s_lshl_b32 s{sT2}, s{sW}, 11
v_add_u32 v45, s{sT2}, v{vL16}
s_lshr_b32 s{sT2}, s{sW}, 1
s_lshl_b32 s{sT2}, s{sT2}, 10
s_and_b32 s{sT3}, s{sW}, 1
s_lshl3_add_u32 s{sT2}, s{sT3}, s{sT2}
s_add_u32 s{sT2}, s{sT2}, 8192
v_add_u32 v46, s{sT2}, v{vL16}
v_add_u32 v47, {LDS_X}, v{vL16}
v_and_b32 v38, 15, v0
v_mul_u32_u24 v38, 1280, v38
v_bfe_u32 v39, v0, 4, 1
v_lshl_add_u32 v38, v39, 5, v38
v_lshrrev_b32 v39, 5, v0
v_lshl_add_u32 v38, v39, 4, v38
s_cmp_eq_u32 s{sW}, s{sS}
s_cmov_b32 s{sOffP}, 0x40000000""")
    pfs = L(f"""s_mov_b32 s{sPf}, s{sOffX}
s_lshl_b32 s{sT2}, s{sNb}, 14
s_add_u32 s{sOffX}, s{sOffRd}, s{sT2}
v_lshlrev_b32 v39, 7, v0
v_bfrev_b32 v38, 1
v_cmp_gt_u32 vcc, 32, v0
v_cndmask_b32 v37, v38, v39, vcc""")
    def nodep(x): x.writes = set(); return x
    pa = lambda: [nodep(I(f"buffer_load_dwordx4 v[216:219], v{vL16}, {sr(sWS,4)}, s{sPf} offen offset:{o} sc1")) for o in (0, 1024, 1536)] + L(f"s_add_u32 s{sPf}, s{sPf}, 81920")
    pb = lambda: [nodep(I(f"buffer_load_dwordx4 v[216:219], v{vL16}, {sr(sWS,4)}, s{sOffX} offen offset:{o} sc1")) for o in (0, 1024, 2048, 3072)] + L(f"s_add_u32 s{sOffX}, s{sOffX}, 65536")
    plan = {}
    if "dpf" in KN:
        pos = [int(x) for x in os.environ.get("DPF", "16,16,18,19,21,22").split(",")]
        for k, b_ in enumerate(pos): plan.setdefault(b_, []); plan[b_] += (pb() if k % 2 == 0 else pa())
    for sg in range(4 + 4 * NIT, 24): sch(o_block(sg, plan.get(sg, []), pre=pfs if (sg == 4 + 4 * NIT and plan) else [], mid=dsetup if sg == 23 else []), f"o{sg}", vm_min=2)
    blk(stamp(10))
    vQ4, vQ2, vLw, vOw = 45, 46, 47, 38
    def pk(dst, t, j):
        a = vAc + (t * 4 + j) * 4
        return L(f"v_cvt_pk_bf16_f32 v{dst}, v{a}, v{a+1}\nv_cvt_pk_bf16_f32 v{dst+1}, v{a+2}, v{a+3}")
    pkall = []; ps = []; n = 0
    for j in range(4):
        for tp in range(2):
            o = vPk + n * 4
            pkall += pk(o, 2 * tp, j) + pk(o + 2, 2 * tp + 1, j)
            it = [I(f"buffer_store_dwordx4 {vr(o,4)}, v{vL16}, {sr(sWS,4)}, s{sOffP} offen offset:{(n%4)*1024} sc1", tag_w="Pst")]
            n += 1
            if n % 4 == 0: it.append(I(f"s_add_u32 s{sOffP}, s{sOffP}, 4096"))
            ps.append(it)
    for jp in range(2):
        o = vPk + n * 4
        pkall += pk(o, 4, 2 * jp) + pk(o + 2, 4, 2 * jp + 1)
        ps.append([I(f"buffer_store_dwordx4 {vr(o,4)}, v{vL16}, {sr(sWS,4)}, s{sOffP} offen offset:{jp*1024} sc1", tag_w="Pst")])
        n += 1
    own = L(f"s_cmp_lg_u32 s{sW}, s{sS}\ns_cbranch_scc1 L_own")
    for k in range(10):
        x = I(f"ds_write_b128 v{vLw}, {vr(vPk+4*k,4)} offset:{1024*k}"); x.kind = 'wait'; own.append(x)
    own += L("L_own:")
    xl = L(f"""s_and_b32 s{sT2}, s{sS}, 1
s_lshl1_add_u32 s{sT2}, s{sNb}, s{sT2}
s_mul_i32 s{sT2}, s{sT2}, 10
s_mul_i32 s{sT3}, s{sQd}, {20*4096}
s_add_u32 s{sT3}, s{sT3}, s{sM1}
s_add_u32 s{sT3}, s{sT3}, {hex(XR_OFF)}
v_bfe_u32 v2, v0, 4, 1
v_lshrrev_b32 v3, 5, v0
v_lshl_add_u32 v4, v2, 1, v3
v_add_u32 v4, s{sT2}, v4
v_and_b32 v5, 15, v0
v_lshlrev_b32 v5, 4, v5
v_lshrrev_b32 v6, 2, v4
v_lshl_add_u32 v6, v6, 12, v5
v_and_b32 v4, 3, v4
v_lshl_add_u32 v6, v4, 8, v6
v_add_u32 v7, 4096, v6
v_add_u32 v4, s{sT2}, v3
v_add_u32 v4, 8, v4
v_lshrrev_b32 v8, 2, v4
v_lshl_add_u32 v8, v8, 12, v5
v_and_b32 v4, 3, v4
v_lshl_add_u32 v8, v4, 8, v8
v_lshl_add_u32 v8, v2, 3, v8
buffer_load_dwordx4 {vr(vXr,4)}, v6, {sr(sWS,4)}, s{sT3} offen sc1
buffer_load_dwordx4 {vr(vXr+4,4)}, v7, {sr(sWS,4)}, s{sT3} offen sc1
buffer_load_dwordx2 {vr(vXr+8,2)}, v8, {sr(sWS,4)}, s{sT3} offen sc1
s_lshl2_add_u32 s{sT2}, s{sQd}, s{sW}
s_lshl_b32 s{sT2}, s{sT2}, 7
s_add_u32 s{sT2}, s{sT2}, {hex(ST_OFF)}
v_lshrrev_b32 v9, 1, v5
buffer_load_dword v10, v9, {sr(sWS,4)}, s{sT2} offen offset:4 sc1""")
    pl = []
    for i in range(1, 4):
        pl += L(f"s_add_u32 s{sT2}, s{sS}, {i}\ns_and_b32 s{sT2}, s{sT2}, 3\ns_mul_i32 s{sT2}, s{sT2}, {4*10240}\ns_add_u32 s{sT2}, s{sT2}, s{sOffK}")
        for tp in range(2): pl.append(I(f"buffer_load_dwordx4 {vr(vPl+i*12+tp*4,4)}, v{vQ4}, {sr(sWS,4)}, s{sT2} offen offset:{1024*tp} sc1"))
        pl.append(I(f"buffer_load_dwordx2 {vr(vPl+i*12+8,2)}, v{vQ2}, {sr(sWS,4)}, s{sT2} offen sc1"))
    ownrd = L(f"""v_add_u32 v{vLw}, {LDS_X}, v{vQ4}
ds_read_b128 {vr(vPl,4)}, v{vLw}
ds_read_b128 {vr(vPl+4,4)}, v{vLw} offset:1024
v_add_u32 v{vLw}, {LDS_X}, v{vQ2}
ds_read_b64 {vr(vPl+8,2)}, v{vLw}""")
    t0 = 112; vSm = 164; vXf = 184
    xun = []
    for tp in range(2):
        for i in range(2): xun.append(I(f"v_permlane16_swap_b32 v{vXr+4*tp+i}, v{vXr+4*tp+2+i}"))
    for k in range(10): xun += L(f"v_lshlrev_b32 v{vXf+2*k}, 16, v{vXr+k}\nv_and_b32 v{vXf+2*k+1}, 0xffff0000, v{vXr+k}")
    k2 = (math.sqrt(192.0) / math.log2(math.e)) ** 2
    xun += L(f"v_mul_f32 v10, v10, v10\nv_mul_f32 v10, {hex(f2u(k2))}, v10\nv_mul_f32 v11, {hex(f2u(-math.log2(math.e)))}, v10")
    own0 = []
    for k in range(10): own0 += L(f"v_lshlrev_b32 v{vSm+2*k}, 16, v{vPl+k}\nv_and_b32 v{vSm+2*k+1}, 0xffff0000, v{vPl+k}\nv_mul_f32 v{vSm+2*k}, v10, v{vSm+2*k}\nv_mul_f32 v{vSm+2*k+1}, v10, v{vSm+2*k+1}")
    psum = []
    for i in range(1, 4):
        for k in range(10):
            s_ = vPl + i * 12 + k; u = 132 + (k % 4) * 2
            psum += L(f"v_lshlrev_b32 v{u}, 16, v{s_}\nv_and_b32 v{u+1}, 0xffff0000, v{s_}\nv_fmac_f32 v{vSm+2*k}, v10, v{u}\nv_fmac_f32 v{vSm+2*k+1}, v10, v{u+1}")
    fin = []
    for t in range(5):
        h = vDc + 4 * t
        for i in range(4): fin += L(f"v_mul_f32 v{t0+4*t+i}, v11, v{h+i}\nv_exp_f32 v{t0+4*t+i}, v{t0+4*t+i}")
        for i in range(4): fin += L(f"v_mul_f32 v{h+i}, v{h+i}, v{vSm+4*t+i}")
        for i in range(4): fin += L(f"v_add_f32 v{t0+4*t+i}, 1.0, v{t0+4*t+i}\nv_rcp_f32 v{t0+4*t+i}, v{t0+4*t+i}")
        for i in range(4): fin.append(I(f"v_fmac_f32 v{vXf+4*t+i}, v{h+i}, v{t0+4*t+i}"))
        for i in range(2): fin.append(I(f"v_cvt_pk_bf16_f32 v{vXr+2*t+i}, v{vXf+4*t+2*i}, v{vXf+4*t+2*i+1}"))
        if t in (1, 3):
            tp = t // 2
            for i in range(2): fin.append(I(f"v_permlane16_swap_b32 v{vXr+4*tp+i}, v{vXr+4*tp+2+i}"))
            fin.append(I(f"buffer_store_dwordx4 {vr(vXr+4*tp,4)}, v{vOw}, {sr(sOut,4)}, s{sOffO} offen offset:{64*tp}"))
    fin.append(I(f"buffer_store_dwordx2 {vr(vXr+8,2)}, v{vOa}, {sr(sOut,4)}, s{sOffO} offen offset:128"))
    PF, PL, PC = PAR("PF", 28), PAR("PL", 30), PAR("PC", 31)
    for sg in range(24, 36):
        ex = []; post = []
        if sg == 24: ex = pkall + [x for it in ps[:4] for x in it]
        if sg == 25: ex = [x for it in ps[4:7] for x in it]
        if sg == 26: ex = [x for it in ps[7:] for x in it]
        if sg == PAR('XL', 27): ex = xl
        if sg == PF: ex = ex + [set_flag(f"s{sFl}", "Pst")]
        if sg == PL: ex = ex + [poll_load(vFl, vFa2, f"s{sFg}")]
        if sg == 29: post = ownrd
        if sg == 30: post = xun
        if sg == 31: post = own0
        PS = PAR("PS", 34)
        if PS <= sg <= 35:
            k0 = (sg - PS) * len(psum) // (36 - PS) // 4 * 4; k1 = (sg + 1 - PS) * len(psum) // (36 - PS) // 4 * 4
            post = psum[k0:k1]
        if sg == 35:
            blk(stamp(11)); post = post + fin
        body = o_block(sg, ex) + post
        if "dnost" in KN: body = [x for x in body if x.tag_w != "Pst"]
        if "dnodma" in KN: body = [x for x in body if not (x.kind == 'vmem' and ' lds' in x.text)]
        if "dnods" in KN: body = [x for x in body if x.kind != 'ds']
        sch(body, f"d{sg}", vm_min=1)
        if sg == 24: blk(own)
        if "fine3" in KN and sg < 35: blk(stamp(14 + sg - 24))
        if sg == PC: blk(poll_cmp(vFl, 1) + poll_branch("p", vFl, vFa2, f"s{sFg}") + pl)
    c = []
    c += stamp_store(13)
    amp = os.environ.get("AMP")
    if amp and STAMPS:
        k1, k2, mult = map(int, amp.split(","))
        first = f"v_readlane_b32 s{sT0}, v{vSt}, {2*k1}" if k1 >= 0 else f"s_mov_b32 s{sT0}, s{sNonce}"
        c += L(f"""{first}
v_readlane_b32 s{sT1}, v{vSt}, {2*k2}
v_readlane_b32 s{sT2}, v{vSt}, 26
s_nop 4
s_sub_u32 s{sT0}, s{sT1}, s{sT0}
s_mul_i32 s{sT0}, s{sT0}, {mult}
s_min_u32 s{sT0}, s{sT0}, 100000
L_amp:
s_memrealtime s[{sSt}:{sSt+1}]
s_waitcnt lgkmcnt(0)
s_sub_u32 s{sT1}, s{sSt}, s{sT2}
s_cmp_lt_u32 s{sT1}, s{sT0}
s_cbranch_scc1 L_amp""")
    c += L("L_end:\ns_endpgm")
    blk(c, "fin")
    for nm, ins in OUTL: P.block(nm, ins)
    P.insert_waits()
    n = P.fix_hazards(verbose=False)
    if dbg:
        tot, per = P.estimate()
        agg = {}
        for k, v in per.items():
            kk = k.rstrip('0123456789') if k[0] in 'od' or k.startswith('p1_') or k.startswith('p2_') else k
            agg[kk] = agg.get(kk, 0) + v
        print("; estimate", tot, agg, "pads", n)
    return P.text() + "\n" + gen_fallback()

def build(path, dbg=False):
    body = gen(dbg)
    body = "\n".join(l.strip() for l in body.split("\n"))
    txt = f"""; @launch grid=(256,1,1) block=(256,1,1) lds={LDS_TOTAL}
.amdgcn_target "amdgcn-amd-amdhsa--gfx950"
.text
.globl {KNAME}
.p2align 8
.type {KNAME},@function
{KNAME}:
L_code_begin:
{body}
L_code_end:
.set CODE_SLICES, (L_code_end-L_code_begin+8191)/8192
.fill 2112, 4, 0xbf800000
s_endpgm
.section .rodata,"a"
.p2align 6
.amdhsa_kernel {KNAME}
  .amdhsa_next_free_vgpr 512
  .amdhsa_next_free_sgpr 102
  .amdhsa_accum_offset 256
  .amdhsa_group_segment_fixed_size 0
  .amdhsa_kernarg_size 96
  .amdhsa_user_sgpr_count 2
  .amdhsa_user_sgpr_kernarg_segment_ptr 1
  .amdhsa_system_sgpr_workgroup_id_x 1
  .amdhsa_float_denorm_mode_32 3
.end_amdhsa_kernel
"""
    open(path, "w").write(txt)

if __name__ == "__main__":
    if "--stamps" in sys.argv:
        STAMPS = True; sys.argv.remove("--stamps")
    build(sys.argv[1], dbg=True)
```

```python
import re

def _expand(op):
    op = op.strip()
    op = op.lstrip('-')
    if op.startswith('abs(') or op.startswith('|'):
        op = op.replace('abs(', '').replace(')', '').replace('|', '')
    m = re.fullmatch(r'([vas])\[(\d+):(\d+)\]', op)
    if m:
        return [f"{m.group(1)}{i}" for i in range(int(m.group(2)), int(m.group(3)) + 1)]
    m = re.fullmatch(r'([vas])(\d+)', op)
    if m:
        return [op]
    if op in ('vcc', 'm0', 'exec', 'scc'):
        return [op]
    if op in ('vcc_lo', 'vcc_hi'):
        return ['vcc']
    return []

TRANS = ('v_exp_f32', 'v_log_f32', 'v_rcp_f32', 'v_rsq_f32', 'v_sqrt_f32', 'v_sin_f32', 'v_cos_f32')
SCC_W = ('s_add_', 's_sub_', 's_addc_', 's_subb_', 's_and_', 's_or_', 's_xor_', 's_lshl_', 's_lshr_', 's_ashr_', 's_cmp', 's_min_', 's_max_', 's_andn2', 's_addk', 's_bfe', 's_not', 's_lshl1', 's_lshl2', 's_lshl3', 's_lshl4')

class Ins:
    __slots__ = ('text', 'kind', 'reads', 'writes', 'after', 'before', 'tag_r', 'tag_w', 'prio', 'uid', 'wait_lgkm', 'wait_vm', 'comment', 'gap')
    _n = 0
    def __init__(self, text, rd=(), wr=(), after=None, before=None, tag_r=None, tag_w=None, prio=0):
        self.text = text.strip()
        self.after = after; self.before = before
        self.tag_r = tag_r; self.tag_w = tag_w
        self.prio = prio
        self.uid = Ins._n; Ins._n += 1
        self.gap = None
        self._parse()
        self.reads |= set(rd); self.writes |= set(wr)
    def _parse(self):
        t = self.text
        self.reads = set(); self.writes = set()
        if t.endswith(':') or t.startswith('.') or t.startswith(';') or not t:
            self.kind = 'label'; return
        parts = t.split(None, 1)
        mn = parts[0]
        rest = parts[1] if len(parts) > 1 else ''
        rest = re.sub(r'\s+(neg_lo|neg_hi|op_sel|op_sel_hi):\[[^\]]*\]', '', rest)
        ops = [o.strip() for o in rest.split(',')] if rest else []
        mods = ''
        if ops:
            sp = ops[-1].split(None, 1)
            ops[-1] = sp[0]
            mods = sp[1] if len(sp) > 1 else ''
        R = lambda i: set(_expand(ops[i])) if i < len(ops) else set()
        allr = lambda a: set().union(*[R(i) for i in range(a, len(ops))]) if len(ops) > a else set()
        if mn.startswith('v_mfma'):
            self.kind = 'mfma'; self.writes = R(0); self.reads = allr(1)
        elif mn.startswith('ds_read') or mn.startswith('ds_bpermute') or mn.startswith('ds_swizzle'):
            self.kind = 'ds'; self.writes = R(0); self.reads = allr(1)
        elif mn.startswith('ds_write') or mn.startswith('ds_add') or mn.startswith('ds_or'):
            self.kind = 'ds'; self.reads = allr(0)
        elif mn.startswith('buffer_load') or mn.startswith('global_load'):
            self.kind = 'vmem'
            if re.search(r'\blds\b', mods) or 'load_lds' in mn:
                self.reads = allr(0) | {'m0'}
            else:
                self.writes = R(0); self.reads = allr(1)
        elif mn.startswith('buffer_store') or mn.startswith('global_store'):
            self.kind = 'vmem'; self.reads = allr(0)
        elif mn.startswith('buffer_atomic') or mn.startswith('global_atomic'):
            self.kind = 'vmem'; self.reads = allr(0)
            if 'sc0' in mods: self.writes = R(0)
        elif mn.startswith('buffer_wbl2') or mn.startswith('buffer_inv'):
            self.kind = 'vmem'
        elif mn.startswith('s_waitcnt') or mn == 's_nop' or mn == 's_sleep' or mn == 's_setprio':
            self.kind = 'wait'
        elif mn == 's_barrier':
            self.kind = 'barrier'
        elif mn.startswith('s_cbranch') or mn == 's_branch' or mn == 's_endpgm':
            self.kind = 'branch'
            if 'scc' in mn: self.reads = {'scc'}
            if 'vcc' in mn: self.reads = {'vcc'}
            if 'exec' in mn: self.reads = {'exec'}
        elif mn.startswith('s_load') or mn.startswith('s_memtime') or mn.startswith('s_memrealtime') or mn.startswith('s_buffer_load'):
            self.kind = 'smem'; self.writes = R(0); self.reads = allr(1)
        elif mn.startswith('s_'):
            self.kind = 'salu'
            if mn.startswith('s_cmp') or mn.startswith('s_bitcmp'):
                self.reads = allr(0); self.writes = {'scc'}
            else:
                self.writes = R(0); self.reads = allr(1)
                if mn.startswith(SCC_W): self.writes.add('scc')
                if mn.startswith('s_cselect') or mn.startswith('s_addc') or mn.startswith('s_subb') or mn.startswith('s_cmov'): self.reads.add('scc')
                if mn.startswith('s_cmov') or mn.startswith('s_addk') or mn.startswith('s_mulk'): self.reads |= R(0)
                if 'saveexec' in mn: self.writes |= {'exec', 'scc'}; self.reads.add('exec')
        elif mn.startswith('v_'):
            base = mn.replace('_e32', '').replace('_e64', '')
            self.kind = 'trans' if base in TRANS else 'valu'
            if 'swap' in mn:
                self.writes = R(0) | R(1); self.reads = R(0) | R(1)
            else:
                self.writes = R(0); self.reads = allr(1)
                if base.startswith('v_fmac') or base.startswith('v_dot2c') or base.startswith('v_writelane') or 'dpp' in mn or 'row_' in mods or 'quad_perm' in mods: self.reads |= R(0)
                if base.startswith('v_add_co') or base.startswith('v_addc_co') or base.startswith('v_sub_co'):
                    self.writes |= R(1); self.reads = allr(2)
                if base.startswith('v_cmpx'): self.writes.add('exec')
        else:
            raise ValueError("unknown instr: " + t)
    def __repr__(self): return self.text

def I(text, **kw): return Ins(text, **kw)

import os
MFMA_RAW_GAPS = int(os.environ.get('RG', 4))
import os
PAIR_SLACK = int(os.environ.get('PSL', 3)) if os.environ.get('PSL', '3') != 'off' else None
DS_LAT_GAPS = 8

def schedule(serial, name="", ds_lat=DS_LAT_GAPS, verbose=False, vm_min=4):
    mf = [x for x in serial if x.kind == 'mfma']
    n = len(mf)
    midx = {x.uid: i for i, x in enumerate(mf)}
    fill = [x for x in serial if x.kind != 'mfma']
    preds = {x.uid: [] for x in fill}
    lo = {x.uid: -1 for x in fill}
    hi = {x.uid: n - 1 for x in fill}
    soft = {x.uid: n - 1 for x in fill}
    lastw = {}; readers = {}
    succs = {x.uid: [] for x in fill}
    def dep(a, b, typ):
        if a is b: return
        if a.kind == 'mfma' and b.kind == 'mfma': return
        if a.kind == 'mfma':
            i = midx[a.uid]
            if typ in ('raw', 'waw'): lo[b.uid] = max(lo[b.uid], min(i + MFMA_RAW_GAPS, n - 1))
            elif typ == 'warc': lo[b.uid] = max(lo[b.uid], min(i + 2, n - 1))
            else: lo[b.uid] = max(lo[b.uid], i)
        elif b.kind == 'mfma':
            i = midx[b.uid]
            if typ == 'raw':
                if a.kind in ('ds',):
                    hi[a.uid] = min(hi[a.uid], i - 1); soft[a.uid] = min(soft[a.uid], i - 1 - ds_lat)
                else:
                    hi[a.uid] = min(hi[a.uid], i - 1); soft[a.uid] = min(soft[a.uid], i - 2)
            else:
                hi[a.uid] = min(hi[a.uid], i - 1); soft[a.uid] = min(soft[a.uid], i - 1)
        else:
            preds[b.uid].append((a, typ)); succs[a.uid].append((b, typ))
    prev_by_kind = {}
    for x in serial:
        for r in x.reads:
            if r in lastw: dep(lastw[r], x, 'raw')
        for r in x.writes:
            if r in lastw: dep(lastw[r], x, 'waw')
            for y in readers.get(r, []):
                typ = 'war'
                if y.kind == 'mfma':
                    ops = [o.strip() for o in y.text.split(None, 1)[1].split(',')]
                    if r in _expand(ops[3]): typ = 'warc'
                dep(y, x, typ)
        for r in x.reads: readers.setdefault(r, []).append(x)
        for r in x.writes: lastw[r] = x; readers[r] = []
        if x.kind in ('ds', 'vmem', 'barrier'):
            k = x.kind
            if k in prev_by_kind: dep(prev_by_kind[k], x, 'order')
            prev_by_kind[k] = x
    for x in fill:
        if x.kind == 'vmem' and x.after is not None and x.before is None:
            soft[x.uid] = min(soft[x.uid], x.after - 6)
        if x.after is not None: lo[x.uid] = max(lo[x.uid], x.after)
        if x.before is not None:
            soft[x.uid] = min(soft[x.uid], x.before)
    for x in reversed(fill):
        for (b, typ) in succs[x.uid]:
            hi[x.uid] = min(hi[x.uid], hi[b.uid])
            d = 1 if (typ == 'raw' or x.kind in ('ds', 'vmem', 'trans')) else 0
            soft[x.uid] = min(soft[x.uid], soft[b.uid] - d)
    for x in fill:
        for (a, typ) in preds[x.uid]:
            lo[x.uid] = max(lo[x.uid], lo[a.uid])
        if lo[x.uid] > hi[x.uid]:
            lo[x.uid] = hi[x.uid]
    wantwait = set()
    seen = set()
    dsw = {}
    for x in serial:
        if x.kind == 'mfma':
            for r in x.reads:
                key = (r, dsw.get(r, -1))
                if (r in dsw or r.startswith('a') or r.startswith('v')) and key not in seen and r in dsw:
                    wantwait.add(midx[x.uid] - 1)
                seen.add(key)
        if x.kind == 'ds':
            for r in x.writes: dsw[r] = x.uid
    placed = {}
    gaps = {g: [] for g in range(-1, n)}
    npred = {x.uid: len(set(a.uid for a, _ in preds[x.uid])) for x in fill}
    succ_u = {x.uid: {} for x in fill}
    for x in fill:
        for (b, typ) in succs[x.uid]: succ_u[x.uid][b.uid] = b
    ready = [x for x in fill if npred[x.uid] == 0]
    nleft = len(fill)
    over = 0
    last_vm = -100
    for g in range(-1, n):
        scalar_free = (g not in wantwait)
        vec = 2
        has_ds = False
        while True:
            cands = [x for x in ready if lo[x.uid] <= g]
            if not cands: break
            cands.sort(key=lambda x: (soft[x.uid], -x.prio, x.uid))
            if vec == 2 and PAIR_SLACK is not None:
                vecs = [x for x in cands if x.kind in ('ds', 'valu', 'trans', 'vmem')]
                if vecs and vecs[0].kind == 'ds' and soft[vecs[0].uid] - g > PAIR_SLACK and not any(x.kind == 'valu' for x in vecs):
                    tr = next((x for x in vecs if x.kind == 'trans'), None)
                    if tr is not None:
                        cands.remove(tr); cands.insert(0, tr)
                elif vecs and vecs[0].kind == 'valu' and soft[vecs[0].uid] - g > PAIR_SLACK:
                    o = next((x for x in vecs if x.kind == 'ds'), None) or next((x for x in vecs if x.kind == 'trans'), None)
                    if o is not None:
                        cands.remove(o); cands.insert(0, o)
            pick = None
            for x in cands:
                forced = hi[x.uid] <= g
                samegap_raw = any(placed[a.uid] == g and typ == 'raw' and not (a.kind == 'valu' and x.kind == 'valu') for (a, typ) in preds[x.uid])
                samegap_any = any(placed[a.uid] == g for (a, typ) in preds[x.uid])
                fits = False
                if g >= 0 and not samegap_raw:
                    if x.kind in ('salu', 'wait', 'barrier'):
                        fits = scalar_free and not samegap_any
                    elif x.kind == 'ds':
                        fits = vec >= 1 and not has_ds and not any(placed[a.uid] == g and a.kind in ('valu', 'trans') for (a, typ) in preds[x.uid])
                    elif x.kind == 'valu':
                        fits = vec >= 1
                    elif x.kind == 'trans':
                        fits = vec >= 2
                    elif x.kind == 'vmem':
                        fits = vec >= 2 and g - last_vm >= vm_min
                if fits or forced:
                    pick = x; pfits = fits; break
            if pick is None: break
            x = pick
            if not pfits: over += 1
            if x.kind in ('salu', 'wait', 'barrier'):
                scalar_free = False
            elif x.kind == 'ds': vec -= 1; has_ds = True
            elif x.kind == 'valu': vec -= 1
            else: vec -= 2
            if x.kind == 'vmem': last_vm = g
            placed[x.uid] = g; x.gap = g
            gaps[g].append((x, pfits))
            ready.remove(x); nleft -= 1
            for b in succ_u[x.uid].values():
                npred[b.uid] -= 1
                if npred[b.uid] == 0: ready.append(b)
    assert nleft == 0
    out = []
    for g in range(-1, n):
        if g >= 0: out.append(mf[g])
        items = gaps[g]
        if all(f for _, f in items):
            order = {'salu': 0, 'wait': 0, 'barrier': 0, 'ds': 1, 'vmem': 1, 'valu': 2, 'trans': 2}
            items = sorted(items, key=lambda it: order[it[0].kind])
        out += [x for x, _ in items]
    if verbose: print(f"; schedule {name}: {n} mfma, {len(fill)} fillers, {over} overflow")
    return out

class Prog:
    def __init__(self):
        self.blocks = []
        self.trace = []
    def block(self, name, ins):
        self.blocks.append([name, list(ins)])
    def get(self, name):
        if not hasattr(self, '_idx') or len(self._idx) != len(self.blocks):
            self._idx = {b[0]: b for b in self.blocks}
        return self._idx[name]
    def dyn(self):
        for (name, env) in self.trace:
            for x in self.get(name)[1]:
                yield x, env, name

    def insert_waits(self):
        need = {}
        anchor_of = {}
        for name, ins in self.blocks:
            last_after_mfma = None
            for i, x in enumerate(ins):
                if i > 0 and ins[i - 1].kind == 'mfma': last_after_mfma = x
                if x.kind in ('label', 'branch'): last_after_mfma = None
                anchor_of[x.uid] = last_after_mfma if (last_after_mfma is not None and x.kind == 'mfma') else x
        for _pass in range(6):
            changed = False
            q = {'lgkm': [], 'vm': []}
            seq = {'lgkm': 0, 'vm': 0}
            at_anchor = {}
            smem_out = False
            for x, env, name in self.dyn():
                at_anchor[x.uid] = (seq['lgkm'], seq['vm'])
                if x.uid in need:
                    l, v = need[x.uid]
                    if l is not None: q['lgkm'] = q['lgkm'][len(q['lgkm']) - l:] if l < len(q['lgkm']) and l > 0 else ([] if l == 0 else q['lgkm'])
                    if v is not None: q['vm'] = q['vm'][len(q['vm']) - v:] if v < len(q['vm']) and v > 0 else ([] if v == 0 else q['vm'])
                if x.kind == 'wait' and x.text.startswith('s_waitcnt'):
                    m = re.search(r'lgkmcnt\((\d+)\)', x.text)
                    if m:
                        l = int(m.group(1)); q['lgkm'] = q['lgkm'][len(q['lgkm']) - l:] if 0 < l < len(q['lgkm']) else ([] if l == 0 else q['lgkm'])
                    m = re.search(r'vmcnt\((\d+)\)', x.text)
                    if m:
                        v = int(m.group(1)); q['vm'] = q['vm'][len(q['vm']) - v:] if 0 < v < len(q['vm']) else ([] if v == 0 else q['vm'])
                touched = set(x.reads) | set(x.writes)
                if x.tag_r is not None:
                    t = x.tag_r(env) if callable(x.tag_r) else x.tag_r
                    touched |= set(t if isinstance(t, (list, tuple, set)) else [t])
                for ci, c in enumerate(('lgkm', 'vm')):
                    hit = None
                    for (s, regs, issm) in q[c]:
                        if regs & touched: hit = (s, issm)
                    if hit is not None:
                        a = anchor_of[x.uid]
                        sa = at_anchor[a.uid][ci]
                        if hit[0] >= sa:
                            a = x; sa = seq[c]
                        N = sa - hit[0] - 1
                        if any(sm for (_, _, sm) in q[c]): N = 0; a = x
                        N = min(N, 15 if c == 'lgkm' else 63)
                        cur = need.setdefault(a.uid, [None, None])
                        if cur[ci] is None or N < cur[ci]:
                            cur[ci] = N; changed = True
                        q[c] = [e for e in q[c] if e[0] > hit[0]] if N > 0 or a is not x else []
                if x.kind in ('ds', 'smem'):
                    w = set(r for r in x.writes if r[1:].isdigit())
                    if x.tag_w is not None:
                        t = x.tag_w(env) if callable(x.tag_w) else x.tag_w
                        w |= set(t if isinstance(t, (list, tuple, set)) else [t])
                    q['lgkm'].append((seq['lgkm'], w, x.kind == 'smem')); seq['lgkm'] += 1
                elif x.kind == 'vmem':
                    w = set(x.writes)
                    if x.tag_w is not None:
                        t = x.tag_w(env) if callable(x.tag_w) else x.tag_w
                        w |= set(t if isinstance(t, (list, tuple, set)) else [t])
                    q['vm'].append((seq['vm'], w, False)); seq['vm'] += 1
            if not changed: break
        else:
            raise RuntimeError("wait insertion did not converge")
        for b in self.blocks:
            out = []
            for x in b[1]:
                if x.uid in need:
                    l, v = need[x.uid]
                    s = "s_waitcnt" + (f" vmcnt({v})" if v is not None else "") + (f" lgkmcnt({l})" if l is not None else "")
                    out.append(I(s))
                out.append(x)
            b[1] = out

    def fix_hazards(self, verbose=False):
        total = 0
        for _pass in range(8):
            pad = {}
            hist = []
            for x, env, name in self.dyn():
                if x.kind == 'label': continue
                need = 0
                dist = 0
                for y in reversed(hist):
                    req = hazard(y, x)
                    if req > dist: need = max(need, req - dist)
                    dist += states(y)
                    if dist > 20: break
                if need:
                    pad[x.uid] = max(pad.get(x.uid, 0), need)
                    hist.append(I(f"s_nop {need-1}"))
                hist.append(x)
                if len(hist) > 40: hist = hist[-30:]
            if not pad: break
            for b in self.blocks:
                out = []
                for x in b[1]:
                    if x.uid in pad:
                        out.append(I(f"s_nop {pad[x.uid]-1}")); total += 1
                        if verbose: print(f"; hazard pad {pad[x.uid]} before {x.text} in {b[0]}")
                    out.append(x)
                b[1] = out
        return total

    def text(self):
        L = []
        for name, ins in self.blocks:
            L.append(f"; ---- {name}")
            for x in ins:
                L.append(x.text if x.kind == 'label' else "  " + x.text)
        return "\n".join(L)

    def estimate(self):
        tot = 0; cur = None; per = {}
        def flush(c):
            return max(16, c)
        gap = None
        for x, env, name in self.dyn():
            if x.kind == 'label': continue
            if x.kind == 'mfma':
                if gap is not None:
                    c = flush(gap[0]); tot += c; per[gap[2]] = per.get(gap[2], 0) + c
                gap = [8, True, name, 'mfma']
            else:
                cost = 4
                if x.kind in ('trans', 'vmem'): cost = 8
                if x.text.startswith('s_nop'): cost = 4 * (int(x.text.split()[1]) + 1)
                if gap is None:
                    tot += cost; per[name] = per.get(name, 0) + cost; continue
                if x.kind in ('salu', 'wait', 'barrier', 'branch') and gap[1] and cost == 4: cost = 0
                if x.kind == 'ds' and gap[3] in ('valu', 'trans'): cost += 8
                if x.kind == 'ds' and gap[3] == 'ds': cost += 4
                gap[1] = False; gap[0] += cost; gap[3] = x.kind
        if gap is not None:
            c = flush(gap[0]); tot += c; per[gap[2]] = per.get(gap[2], 0) + c
        return tot, per

def states(y):
    if y.text.startswith('s_nop'): return int(y.text.split()[1]) + 1
    return 1

def _vregs(s): return {r for r in s if r[0] in 'va' and r[1:].isdigit()}
def _sregs(s): return {r for r in s if (r[0] == 's' and r[1:].isdigit()) or r == 'vcc'}

def hazard(y, x):
    req = 0
    yv = y.kind in ('valu', 'trans')
    xv = x.kind in ('valu', 'trans')
    if y.kind == 'mfma':
        big = '32x32' in y.text
        D = y.writes
        ops = [o.strip() for o in y.text.split(None, 1)[1].split(',')]
        C = set(_expand(ops[3]))
        if x.kind == 'mfma':
            xo = [o.strip() for o in x.text.split(None, 1)[1].split(',')]
            if D & (set(_expand(xo[1])) | set(_expand(xo[2]))): req = max(req, 12 if big else 8)
            xc = set(_expand(xo[3]))
            if D & xc and xc != D: req = max(req, 10 if big else 6)
            if D & x.writes and not (D & xc): req = max(req, 10 if big else 6)
        elif xv or x.kind in ('ds', 'vmem'):
            if D & (x.reads | x.writes): req = max(req, 12 if big else 8)
            if xv and (C & x.writes): req = max(req, 7 if big else 3)
    if yv:
        W = _vregs(y.writes)
        if x.kind == 'mfma' and W & x.reads: req = max(req, 2)
        if 'permlane' in x.text and W & x.reads: req = max(req, 2)
        if ('dpp' in x.text or 'row_' in x.text or 'quad_perm' in x.text) and W & x.reads: req = max(req, 2)
        if (x.text.startswith('v_readfirstlane') or x.text.startswith('v_readlane')) and W & x.reads: req = max(req, 1)
        if y.kind == 'trans' and x.kind == 'valu' and W & x.reads: req = max(req, 1)
        S = _sregs(y.writes)
        if S:
            if x.kind == 'vmem' and S & x.reads: req = max(req, 5)
            if xv and S & x.reads: req = max(req, 2)
            if x.kind in ('salu', 'branch') and S & x.reads: req = max(req, 2)
        if 'exec' in y.writes: req = max(req, 5)
    if y.kind == 'salu' and 'm0' in y.writes and x.kind == 'vmem' and 'm0' in x.reads: req = max(req, 1)
    if y.kind == 'vmem' and ('store_dwordx4' in y.text or 'store_dwordx3' in y.text):
        data = set(_expand(y.text.split(None, 1)[1].split(',')[0 if y.text.startswith('buffer') else 1]))
        if data & x.writes: req = max(req, 2)
    return req


def isize(x):
    if x.kind == 'label': return 0
    if x.kind in ('mfma', 'ds', 'vmem', 'smem'): return 8
    t = x.text
    lit = 4 if re.search(r'(?<![\w\[:])(0x[0-9a-f]+|\d{3,}|6[5-9]|[7-9]\d)(?![\w\]:])', t.split(None, 1)[1] if ' ' in t else '') else 0
    if x.kind in ('valu', 'trans'):
        mn = t.split()[0]
        if mn.startswith(('v_cvt_pk', 'v_max3', 'v_lshl_add', 'v_fma_', 'v_pk_', 'v_bfe', 'v_or3', 'v_accvgpr', 'v_mad', 'v_writelane', 'v_readlane')) or 'dpp' in mn: return 8
        return 4 + lit
    if x.kind in ('wait', 'barrier', 'branch'): return 4
    return 4 + lit
```

```python
import sys, math, struct, os
from asmlib import *
KN = set(os.environ.get("KN", "").split(","))
def PAR(name, default): return type(default)(os.environ.get(name, default))
NAME = "recurrent_scan__sliding_block_cached__glu_gated_bilinear__prompt"
KNAME = NAME + "_kernel"
XN_OFF = 0; OH_OFF = 0x400000; GP_OFF = 0x2200000; WOP_OFF = 0x2600000; WDP_OFF = 0x2E00000; PART_OFF = 0x3000000
FL_OFF = 0x3A00000
FXN = FL_OFF; FO = FL_OFF + 0x8000; FH = FL_OFF + 0x10000; FP = FL_OFF + 0x18000; FG = FL_OFF + 0x20000; FW = FL_OFF + 0x21000; FW2 = FL_OFF + 0x22000; ST_OFF = FL_OFF + 0x30000
XR_OFF = 0x3B00000; HP_OFF = 0x3E00000
WS_SIZE = 0x4100000
STAMP_OFF = 0x8000000
SLOT = 28672; SL2 = 36864
LDS_X = 147456
LDS_TOTAL = 163840
STAMPS = False
SPIN_MAX = 200000
def sbase(st):
    if st < 10: return ((3, 4) if (st // 2) % 2 == 0 else (1, 2))[st % 2] * SLOT
    if st <= 28: return (st % 5) * SLOT
    return {29: 0, 30: 110592, 31: 135168}[st]
OPERM = [1, 2, 0, 3]
def obase(sg): return OPERM[sg % 4] * SL2

def f2u(x): return struct.unpack('<I', struct.pack('<f', x))[0]
def vr(a, n): return f"v[{a}:{a+n-1}]" if n > 1 else f"v{a}"
def ar(a, n): return f"a[{a}:{a+n-1}]" if n > 1 else f"a{a}"
def sr(a, n): return f"s[{a}:{a+n-1}]" if n > 1 else f"s{a}"
def rr(x, n=4): return vr(x[1], n) if x[0] == 'v' else ar(x[1], n)
def L(txt): return [I(t) for t in txt.strip().split("\n") if t.strip()]
def mfma(d, a, b, c): return I(f"v_mfma_f32_16x16x32_bf16 {d}, {a}, {b}, {c}")

sWq, sK, sWS, sR = 4, 8, 12, 16
(sOffX, sOffY, sOffK, sOffV, sM6, sM3, sM1, sOffB, sH, sB, sW, sT0, sT1, sT2, sOffO, sScale,
 sOffG, sOffH0, sOffH1, sOffH2, sNonce, sOffR, sOffD, sOffRo, sOffRd, sOffDo, sOffDd,
 sS, sMb, sNb, sFl, sSpin, sT3, sOffP, sQg, sFg, sOffA, sOffBB, sM5, sM4, sPf, sQd) = range(20, 62)
sOffH = sOffH0
pX, pK, pV, pWq, pWo, pBx, pWg, pWu, pWd, pOut, pDbg, pWs = range(64, 88, 2)
sSt = 88; sV = 92; sXin = 96
sOut = sWq
vL16 = 1; vWo = 2; vKo = 5; vVo = 8; vRo = 11; vRo2 = 12; vL128 = 13; vFo = 14; vNon = 15
vRa = 16; vWa = 17; vKa = 19; vVa = 21; vGa = 25
vLs = 26; vT = 36; vSt = 31; vNm = 32; vTmp = 48
vAcc = 64; vQ = 64
vS01 = 160; vS23 = 176; vP01 = 208; vP23 = 224; vVs = 232
aK = 192; aR = 240; aA1 = 128; aDum = 255; aCs = 160
vOne = 48; vSta = 40; vCsT = 52; vXo = 44; vXo2 = 46; vSo = 32; vPa = 42; vPd = 43
vDum = 30
NSLICE = 10

class Addr:
    def __init__(self, reg, base): self.reg = reg; self.base = base
    def use(self, base, off):
        pre = []
        d = base + off - self.base
        if not (0 <= d < 65536):
            pre = [I(f"v_add_u32 v{self.reg}, {hex((base - self.base) & 0xffffffff)}, v{self.reg}")]
            self.base = base; d = off
        return pre, d
AD = {}
def dsr(op, dst, reg, base, off, **kw):
    pre, d = AD[reg].use(base, off)
    return pre + [I(f"{op} {dst}, v{reg} offset:{d}", **kw)]

def srd(d, base, size):
    return [I(f"s_mov_b32 s{d}, s{base}"), I(f"s_mov_b32 s{d+1}, s{base+1}"), I(f"s_mov_b32 s{d+2}, {hex(size)}"), I(f"s_mov_b32 s{d+3}, 0x20000")]
def xreduce(v, t, op):
    return L(f"""v_mov_b32 v{t}, v{v}
v_permlane16_swap_b32 v{v}, v{t}
{op} v{v}, v{v}, v{t}
v_mov_b32 v{t}, v{v}
v_permlane32_swap_b32 v{v}, v{t}
{op} v{v}, v{v}, v{t}""")
def divmod_const(q, r, src, c):
    magic = (65536 + c - 1) // c
    for x in range(1400): assert (x * magic) >> 16 == x // c
    return L(f"v_mul_u32_u24 v{q}, {magic}, v{src}\nv_lshrrev_b32 v{q}, 16, v{q}\nv_mul_u32_u24 v{r}, {c}, v{q}\nv_sub_u32 v{r}, v{src}, v{r}")
def sdivmod(q, r, src, c):
    magic = (65536 + c - 1) // c
    for x in range(1400): assert (x * magic) >> 16 == x // c
    return L(f"s_mul_i32 s{q}, s{src}, {magic}\ns_lshr_b32 s{q}, s{q}, 16\ns_mul_i32 s{r}, s{q}, {c}\ns_sub_u32 s{r}, s{src}, s{r}")

def stamp(k):
    if not STAMPS: return []
    return L(f"""s_memrealtime s[{sSt}:{sSt+1}]
s_memtime s[{sSt+2}:{sSt+3}]
s_waitcnt lgkmcnt(0)
v_writelane_b32 v{vSt}, s{sSt}, {2*k}
v_writelane_b32 v{vSt}, s{sSt+2}, {2*k+1}""")
def stamp_store(n):
    if not STAMPS: return []
    return stamp(n - 1) + L("s_waitcnt vmcnt(0)") + stamp(n) + L(f"""s_add_u32 s{sK}, s{pWs}, {hex(STAMP_OFF)}
s_addc_u32 s{sK+1}, s{pWs+1}, 0
s_mov_b32 s{sK+2}, {1024*256}
s_mov_b32 s{sK+3}, 0x20000
s_lshl2_add_u32 s{sT0}, s2, s{sW}
s_lshl_b32 s{sT0}, s{sT0}, 8
v_lshlrev_b32 v2, 2, v0
buffer_store_dword v{vSt}, v2, {sr(sK,4)}, s{sT0} offen""")

OUTL = []
def poll_load(dst, vaddr, soff, n=1, **kw):
    op = "buffer_load_dword" if n == 1 else "buffer_load_dwordx4"
    return I(f"{op} {vr(dst,n)}, v{vaddr}, {sr(sWS,4)}, {soff} offen sc1", **kw)
def poll_cmp(dst, n):
    if n == 1: return L(f"v_cmp_ne_u32 vcc, s{sNonce}, v{dst}")
    return L(f"""v_xor_b32 v{dst}, s{sNonce}, v{dst}
v_xor_b32 v{dst+1}, s{sNonce}, v{dst+1}
v_xor_b32 v{dst+2}, s{sNonce}, v{dst+2}
v_xor_b32 v{dst+3}, s{sNonce}, v{dst+3}
v_or3_b32 v{dst}, v{dst}, v{dst+1}, v{dst+2}
v_or_b32 v{dst}, v{dst}, v{dst+3}
v_cmp_ne_u32 vcc, 0, v{dst}""")
def poll_branch(name, dst, vaddr, soff, n=1):
    o = L(f"L_spin_{name}:\ns_mov_b32 s{sSpin}, {SPIN_MAX}\nL_spin2_{name}:")
    o += [poll_load(dst, vaddr, soff, n)] + L("s_waitcnt vmcnt(0)") + poll_cmp(dst, n)
    o += L(f"""s_nop 4
s_cbranch_vccz L_back_{name}
s_sleep 1
s_sub_u32 s{sSpin}, s{sSpin}, 1
s_cmp_lg_u32 s{sSpin}, 0
s_cbranch_scc1 L_spin2_{name}
s_branch L_back_{name}""")
    OUTL.append((f"spin_{name}", o))
    return L(f"s_cbranch_vccnz L_spin_{name}\nL_back_{name}:")
def late(lst, g):
    for x in lst: x.after = g
    return lst
def set_flag(soff, tag, **kw):
    return I(f"buffer_store_dword v{vNon}, v{vFo}, {sr(sWS,4)}, {soff} offen sc1", tag_r=tag, **kw)

KVF = os.environ.get("KVF", "")
def grp3(st, srdn, vo, so, mreg, moff, inc, flags=""):
    r = [I(f"s_add_u32 m0, s{mreg}, {sbase(st)+moff}")]
    for n in range(3):
        v = vo + n if vo != vL16 else vL16
        r.append(I(f"buffer_load_dwordx4 v{v}, {sr(srdn,4)}, s{so} offen offset:{1024*n} {flags} lds", tag_w=f"st{st}", rd=['stg']))
    if inc: r.append(I(f"s_add_u32 s{so}, s{so}, {inc}"))
    return r
def dma_stage(st):
    r = []
    if st <= 9:
        r += grp3(st, sWq, vWo, sOffX, sM6, 0, 16 * 12288, KVF) + grp3(st, sWq, vWo, sOffX, sM6, 3072, 48 * 12288, KVF)
    elif st <= 26:
        t = st - 10
        if t <= 15: r += grp3(st, sK, vKo, sOffK, sM3, 0, 12288, KVF)
        if t >= 1: r += grp3(st, sV, vVo, sOffV, sM3, 12288, 12288, KVF)
        u = st - 12
        if 0 <= u < 14:
            if u == 4: r += srd(sR, pWo, 6144 * 640 * 2)[:3] + L(f"s_mov_b32 s{sOffR}, s{sOffRo}")
            if u == 12: r += srd(sR, pWd, 1536 * 640 * 2)[:3] + L(f"s_mov_b32 s{sOffR}, s{sOffRd}")
            r.append(I(f"s_add_u32 m0, s{sM1}, {sbase(st)+24576}"))
            r.append(I(f"buffer_load_dwordx4 v{vRo if u < 4 else vRo2}, {sr(sR,4)}, s{sOffR} offen {KVF} lds", tag_w=f"st{st}", rd=['stg']))
            r.append(I(f"s_add_u32 s{sOffR}, s{sOffR}, {32*3072 if u < 4 else 32*1280}"))
    else:
        r += grp3(st, sWS, vL16, sOffG, sM6, 0, 3072, "sc1") + grp3(st, sWS, vL16, sOffG, sM6, 3072, 24576 - 3072, "sc1")
    return r
def pace(lst, lo, hi):
    vm = [x for x in lst if x.kind == 'vmem']
    for k, x in enumerate(vm): x.after = int(lo + k * (hi - lo) / len(vm))
    return lst
def barrier(tag, after=None): return I("s_barrier", tag_r=tag, wr=['stg'], after=after)

def acc1(T, j): return vAcc + ((T // 2) * 4 + j) * 8 + (T % 2) * 4
def w_reads(k, T):
    slot = aA1 + (T % 2) * 16
    p, t = T // 2, T % 2
    r = []
    for ks in range(4):
        for u in range(2): r += dsr("ds_read_b64_tr_b16", ar(slot + ks * 4 + u * 2, 2), vWa + p % 2, sbase(2 * k), (ks // 2) * SLOT + (ks % 2) * 12288 + u * 6144 + (p // 2) * 128 + 8 * t, rd=['stg'], tag_w=f"wr{k}")
    return r
def b_loads(base):
    r = []
    for u in range(2):
        for j in range(4):
            r.append(I(f"buffer_load_dwordx4 {rr((base[0], base[1]+(u*4+j)*4))}, v{vL16}, {sr(sWS,4)}, s{sOffB} offen offset:{1024*j} sc1"))
        r.append(I(f"s_add_u32 s{sOffB}, s{sOffB}, 4096"))
    return r
def k_reads(st, kt):
    r = []
    for s in range(6): r += dsr("ds_read_b128", ar(aK + kt * 24 + s * 4, 4), vKa + s % 2, sbase(st), kt * 6144 + (s // 2) * 128, rd=['stg'])
    return r
def v_reads(st, T):
    r = []
    for u in range(2): r += dsr("ds_read_b64_tr_b16", vr(vVs + (T % 6) * 4 + u * 2, 2), vVa + T % 4, sbase(st), 12288 + u * 6144 + (T // 4) * 128, rd=['stg'], tag_w=f"vr{st}")
    return r
def prefetch(srdn, soff, flags=""):
    x = I(f"buffer_load_dword v{vDum}, v{vL128}, {sr(srdn,4)}, {soff} offen {flags}"); x.writes = set(); return x

def csreg(T): return aCs + T * 4
def p1_quad(k, T0=0, T1=12, vm=(), vmspan=None, extra=()):
    last = k == 4
    per = 20 if k == 0 else 16
    n = (T1 - T0) * per
    s = []
    vm = list(vm)
    if any(x.kind == 'vmem' for x in vm): pace(vm, *(vmspan or (1, n - 20)))
    s += vm + list(extra)
    for T in range(T0, T1):
        if T + 1 < 12: s += w_reads(k, T + 1)
        else:
            s.append(barrier([f"st{2*k+2}", f"wr{k}"] + ([f"st{2*k+3}"] if not last else []), after=n - per - 1))
            s += w_reads(k + 1, 0) if not last else k_reads(10, 0)
        slot = aA1 + (T % 2) * 16
        for j in range(4):
            d = vr(acc1(T, j), 4)
            for ks in range(4):
                s.append(mfma(d, ar(slot + ks * 4, 4), ar(64 * (k % 2) + (ks * 4 + j) * 4, 4), "0" if (k == 0 and ks == 0) else d))
        if k == 0:
            d = ar(csreg(T), 4)
            for ks in range(4): s.append(mfma(d, ar(slot + ks * 4, 4), vr(vOne, 4), d if ks else "0"))
        if k in (2, 3) and T % 2 == k - 2:
            t = vCsT + ((T // 2) % 2) * 4
            for i in range(4): s.append(I(f"v_accvgpr_read_b32 v{t+i}, a{csreg(T)+i}"))
            for j in range(4):
                for i in range(4): s.append(I(f"v_fmac_f32 v{acc1(T,j)+i}, v{t+i}, v{vSta+2*j}"))
        if last and T % 2 == 1:
            p = T // 2
            for j in range(4):
                a = acc1(2 * p, j); q = vQ + (p * 4 + j) * 4
                for i in range(8): s.append(I(f"v_mul_f32 v{a+i}, v{vSta+2*j+1}, v{a+i}"))
                for i in range(4): s.append(I(f"v_cvt_pk_bf16_f32 v{q+i}, v{a+2*i}, v{a+2*i+1}"))
    return s
def w_reads0(n):
    h, T = n // 12, n % 12
    slot = aA1 + (n % 4) * 8
    p, t = T // 2, T % 2
    r = []
    for ks in range(2):
        for u in range(2): r += dsr("ds_read_b64_tr_b16", ar(slot + ks * 4 + u * 2, 2), vWa + p % 2, sbase(0), h * SLOT + ks * 12288 + u * 6144 + (p // 2) * 128 + 8 * t, rd=['stg'], tag_w="wr0")
    return r
def raw_reads(h):
    return [I(f"ds_read_b128 {ar(((2*h+ks)*4+j)*4,4)}, v{(vXo if h == 0 else vXo2) + ks} offset:{j*2048}", tag_r=f"raw{h}", tag_w=f"rawrd{h}") for j in range(4) for ks in range(2)]
def p1_first(n0, n1, extra=()):
    s = list(extra)
    for n in range(n0, n1):
        h, T = n // 12, n % 12
        if n == 8: s += late(raw_reads(1), (8 - n0) * 10)
        if n == 10: s.append(barrier(["st1"], after=(10 - n0) * 10 - 4))
        if n + 2 < 24: s += w_reads0(n + 2)
        elif n == 23:
            s.append(barrier(["st2", "st3", "wr0"], after=(22 - n0) * 10))
            s += w_reads(1, 0)
        slot = aA1 + (n % 4) * 8
        for j in range(4):
            d = vr(acc1(T, j), 4)
            for ks in range(2): s.append(mfma(d, ar(slot + ks * 4, 4), ar(((2 * h + ks) * 4 + j) * 4, 4), "0" if (h == 0 and ks == 0) else d))
        d = ar(csreg(T), 4)
        for ks in range(2): s.append(mfma(d, ar(slot + ks * 4, 4), vr(vOne, 4), "0" if (h == 0 and ks == 0) else d))
    return s
def stat_loads():
    return [I(f"buffer_load_dwordx2 {vr(vSta+2*j,2)}, v{vSo}, {sr(sWS,4)}, s{sScale} offen offset:{128*j} sc1") for j in range(4)]

def Sreg(kt, j, t):
    if j < 2: return (vTmp if t == 0 else vS01) + (j * 2 + kt) * 4
    return vS23 + (t % 2) * 16 + ((j - 2) * 2 + kt) * 4
def Preg(j, t):
    if j < 2: return vP01 + (t % 2) * 8 + j * 4
    return (vTmp + 8 if t == 15 else vP23) + (j - 2) * 4
def qk(kt, t):
    s = []
    for j in range(4):
        d = vr(Sreg(kt, j, t), 4)
        for p in range(6):
            c = d if p else ("0" if (t == 0 and kt == 0) else vr(vNm + 4 * j, 4))
            s.append(mfma(d, ar(aK + kt * 24 + p * 4, 4), vr(vQ + (p * 4 + j) * 4, 4), c))
    return s
def softmax(j, t):
    s = []
    for kt in range(2):
        a = Sreg(kt, j, t)
        for i in range(4): s.append(I(f"v_exp_f32 v{a+i}, v{a+i}"))
        for i in range(4): s.append(I(f"v_add_f32 v{vLs+j}, v{vLs+j}, v{a+i}"))
        for i in range(2): s.append(I(f"v_cvt_pk_bf16_f32 v{Preg(j,t)+kt*2+i}, v{a+2*i}, v{a+2*i+1}"))
    return s
def pv_T(T, t):
    s = []
    for j in range(4):
        d = ar((T * 4 + j) * 4, 4)
        s.append(mfma(d, vr(vVs + (T % 6) * 4, 4), vr(Preg(j, t), 4), "0" if t == 0 else d))
    return s

HALFB = 'halfb' in KN
def p2_iter(t, base=0, extra=(), post=(), btag=()):
    st = 11 + t
    s = []
    s += k_reads(st, 1)
    u = st - 12
    if u >= 0:
        for h in range(2): s += dsr("ds_read_b64_tr_b16", ar(aR + 2 * h, 2), vRa, sbase(st), 24576 + 2048 * h, rd=['stg'])
    s += pace(dma_stage(st + 3) + list(extra), base + 4, base + (PAR("HP", 50) if (HALFB and t % 2) else 68))
    if t > 0: s += softmax(2, t) + softmax(3, t)
    s += qk(0, t + 1) + qk(1, t + 1)
    for T in range(6): s += v_reads(st, T)
    s += softmax(0, t + 1) + softmax(1, t + 1)
    if t == 14: s += softmax(2, 15) + softmax(3, 15)
    for T in range(12):
        s += pv_T(T, t)
        if T < 6: s += v_reads(st, T + 6)
        if T == 5:
            if not HALFB: s.append(barrier([f"st{st+1}"] + list(btag), after=base + 70))
            elif t % 2 == 0: s.append(barrier([f"st{st+1}", f"st{st+2}", f"vr{st}"] + list(btag), after=base + PAR("HB", 78)))
            else: assert not btag
            if t < 14: s += late(k_reads(st + 1, 0), base + 60) if (HALFB and t % 2) else k_reads(st + 1, 0)
            if u >= 0:
                if u == 4: s += L(f"s_mov_b32 s{sOffD}, s{sOffDo}")
                if u == 12: s += L(f"s_mov_b32 s{sOffD}, s{sOffDd}")
                s.append(I(f"buffer_store_dwordx4 {ar(aR,4)}, v{vL16}, {sr(sWS,4)}, s{sOffD} offen sc1", after=base + 80, tag_w="Gst" if u < 4 else "Wst" if u < 12 else "Dst"))
                s.append(I(f"s_add_u32 s{sOffD}, s{sOffD}, {6144 if u < 4 else 10240 if u < 12 else 5120}"))
        if t == 14 and T >= 6: s += v_reads(st + 1, T - 6)
    s += list(post)
    return s

def first_tile(base):
    s = []
    s += k_reads(10, 1)
    s += pace(dma_stage(13), base + 2, base + 30)
    s += qk(0, 0)
    for j in range(4):
        a = Sreg(0, j, 0); m = vNm + 4 * j; t = m + 1
        s += L(f"v_max3_f32 v{m}, v{a}, v{a+1}, v{a+2}\nv_max_f32 v{m}, v{m}, v{a+3}")
        s += xreduce(m, t, "v_max_f32")
        s += L(f"v_sub_f32 v{m+1}, 0, v{m}\nv_sub_f32 v{m+2}, 0, v{m}\nv_sub_f32 v{m+3}, 0, v{m}\nv_sub_f32 v{m}, 0, v{m}")
        for i in range(4): s.append(I(f"v_add_f32 v{a+i}, v{a+i}, v{m}"))
    s.append(barrier("st11", after=base + 28))
    s += k_reads(11, 0)
    s += qk(1, 0)
    for j in range(4): s += softmax(j, 0)
    return s

vGA = 160; vOP = 184
BBUF = [('a', 192), ('a', 224), ('v', 208), ('a', 0)]
def g_reads(n, tagr='stg', pos=None):
    ds, grp = n // 6, n % 6
    slot = vGA + ((n if pos is None else pos) % 3) * 8
    r = []
    for ks in range(2): r += dsr("ds_read_b128", vr(slot + ks * 4, 4), vGa, sbase(27 + ds // 2), (((ds % 2) * 2 + ks) * 6 + grp) * 1024, rd=[tagr])
    return r
def acc3(grp, j): return vAcc + (grp * 4 + j) * 4

def tail_pv(base):
    s = L(f"s_sub_u32 s{sOffB}, s{sOffB}, {20*4096}")
    wf = set_flag(f"s{sFg}", None, rd=['stg'])
    s += pace([wf] + L(f"s_add_u32 s{sFg}, s{sFg}, {FW2-FW}") + b_loads(BBUF[0]), base - 11, base + 22)
    for T in range(12):
        s += pv_T(T, 15)
        if T < 6: s += v_reads(26, T + 6)
        if T == 5:
            if not HALFB: s.append(barrier("st27", after=base + 24))
            s += g_reads(0) + g_reads(1)
            s += pace(b_loads(BBUF[1]), base + 22, base + 48)
    for j in range(4): s += xreduce(vLs + j, vTmp + j, "v_add_f32")
    s += L(f"""v_add_f32 v{vTmp}, v{vLs}, v{vLs+1}
v_add_f32 v{vTmp+1}, v{vLs+2}, v{vLs+3}
v_add_f32 v{vTmp}, v{vTmp}, v{vTmp+1}
v_cmp_ngt_f32 vcc, {hex(f2u(2.0**40))}, v{vTmp}""")
    for j in range(4): s.append(I(f"v_rcp_f32 v{vLs+j}, v{vLs+j}"))
    return s

def split(lst):
    ch = []; cur = []
    for x in lst:
        cur.append(x)
        if x.kind == 'vmem': ch.append(cur); cur = []
    if cur: ch[-1] += cur
    return ch
def merge(qs):
    qs = [list(q) for q in qs]
    w = [len(q) for q in qs]; tot = sum(w); acc = [0.0] * len(qs); seq = []
    for k in range(tot):
        for z in range(len(qs)): acc[z] += w[z]
        z = max((z for z in range(len(qs)) if qs[z]), key=lambda z: acc[z])
        acc[z] -= tot; seq.append(qs[z].pop(0))
    return seq

vOA = 32; vOB = 33; vDA = 34; vDB = 35
vOa = 40; vPo = 41; vFa = 42; vFa2 = 43; vFl = 44
vAc = 64; vDc = 144; vPk = 164; vXr = 204; vPl = 64
def fA(e, t, ks): return e * 72 + (t * 2 + ks) * 4
def fB(e, j, ks): return 40 + e * 72 + (ks * 4 + j) * 4
def dA(e, n): return (144 if e == 0 else 0) + n * 4
def dB(e, ks): return (144 if e == 0 else 0) + 80 + ks * 4
def dmaA(sg, rd='stg'):
    r = []
    if sg == 24: r += L(f"s_mov_b32 s{sOffA}, s{sOffRo}")
    r.append(I(f"s_add_u32 m0, s{sM5}, {obase(sg)}"))
    for n in range(5):
        if n == 4: r += L(f"s_add_u32 m0, s{sM5}, {obase(sg)+4096}\ns_add_u32 s{sOffA}, s{sOffA}, 4096")
        r.append(I(f"buffer_load_dwordx4 v{vL16}, {sr(sWS,4)}, s{sOffA} offen offset:{1024*(n%4)} sc1 lds", tag_w=f"ot{sg}", rd=[rd]))
    r.append(I(f"s_add_u32 s{sOffA}, s{sOffA}, {20480-4096}"))
    return r
def dmaB(sg, rd='stg'):
    r = []
    if sg == 24: r += L(f"s_mov_b32 s{sOffBB}, s{sOffRd}")
    r.append(I(f"s_add_u32 m0, s{sM4}, {obase(sg)+20480}"))
    for n in range(4):
        r.append(I(f"buffer_load_dwordx4 v{vL16}, {sr(sWS,4)}, s{sOffBB} offen offset:{1024*n} sc1 lds", tag_w=f"ot{sg}", rd=[rd]))
    r.append(I(f"s_add_u32 s{sOffBB}, s{sOffBB}, {8192 if sg < 24 else 16384}"))
    return r
def apf():
    if "apf" not in KN: return []
    return [prefetch(sWS, f"s{sPf}", "sc1")] + L(f"s_add_u32 s{sPf}, s{sPf}, 81920")
def o_reads(sg):
    e = sg % 2; kw = dict(rd=['stg'], tag_w=f"rd{sg}")
    r = []
    if sg < 24:
        for ks in range(2): r += dsr("ds_read_b128", ar(fA(e, 0, ks), 4), vOA, obase(sg), ks * 10240, **kw)
        for j in range(4):
            for ks in range(2): r += dsr("ds_read_b128", ar(fB(e, j, ks), 4), vOB, obase(sg), ks * 8192 + j * 1024, **kw)
        for t in range(1, 5):
            for ks in range(2): r += dsr("ds_read_b128", ar(fA(e, t, ks), 4), vOA, obase(sg), (ks * 10 + t) * 1024, **kw)
    else:
        for ks in range(4): r += dsr("ds_read_b128", ar(dB(e, ks), 4), vDB, obase(sg), ks * 4096, **kw)
        for T in range(5):
            for ks in range(4): r += dsr("ds_read_b128", ar(dA(e, ks * 5 + T), 4), vDA, obase(sg), (ks * 5 + T) * 1024, **kw)
    return r
def dmaD(g):
    r = []
    for h in range(2):
        r.append(I(f"s_add_u32 m0, s{sM3}, {obase(24+g)+4096*h}"))
        for n in range(4): r.append(I(f"buffer_load_dwordx4 v{vL16}, {sr(sWS,4)}, s{sOffRo} offen offset:{1024*n} sc1 lds", tag_w=f"ot{24+g}", rd=['stg']))
        r.append(I(f"s_add_u32 s{sOffRo}, s{sOffRo}, {4096 if h == 0 else 30720-4096}"))
    return r
DRING = [240, 244, 248, 252] + list(range(96, 144, 4))
vDo = 216; vHp = 236; vHr = 246
def dBreg(p, k): return (144 if p == 0 else 0) + 4 * k
def d_bload(p, k):
    so = sOffRd if p == 0 else sOffBB
    return [I(f"buffer_load_dwordx4 {ar(dBreg(p,k),4)}, v{vL16}, {sr(sWS,4)}, s{so} offen sc1"), I(f"s_add_u32 s{so}, s{so}, 4096")]
def d_read(n):
    g, T, k = (n % 120) // 30, (n % 30) // 6, n % 6
    return dsr("ds_read_b128", ar(DRING[n % 16], 4), vDA, obase(24 + g), (k * 5 + T) * 1024, rd=['stg'])
DLA = 12
def d_block(p, g, extra=(), post=()):
    s = list(extra)
    if any(x.kind == 'vmem' for x in s): pace(s, 0, 29)
    acc = vDo if p == 0 else vDc
    for i in range(30):
        n = p * 120 + g * 30 + i
        first = 4 if n == 0 else n + DLA
        for m in range(first, n + DLA + 1):
            if m < 240:
                if m < 120 and m % 30 == 0: s.append(I("s_barrier", tag_r=[f"ot{24+m//30}"], wr=['stg']))
                s += d_read(m)
        T, k = i // 6, i % 6
        d = vr(acc + 4 * T, 4)
        s.append(mfma(d, ar(DRING[n % 16], 4), ar(dBreg(p, g * 6 + k), 4), "0" if (g == 0 and k == 0) else d))
    return s + list(post)
def o_block(sg, extra=(), pre=(), mid=(), exfirst=False):
    e = sg % 2
    s = list(pre)
    s += [I("s_barrier", tag_r=[f"ot{sg+1}", f"rd{sg}"], wr=['stg'], after=2)]
    if sg < 23: s += o_reads(sg + 1)
    else:
        for m in range(4): s += d_read(m)
    db = dmaB(sg + 4) + dmaA(sg + 4) if sg < 20 else dmaD(sg - 20)
    vm = split(db[:2] + list(mid) + db[2:])
    ex = split(list(extra)) if any(x.kind == 'vmem' for x in extra) else []
    if exfirst: seq = list(extra) + [x for ch in vm for x in ch]
    else: seq = [x for ch in merge([vm, ex]) for x in ch] if ex else [x for ch in vm for x in ch] + list(extra)
    pace(seq, 3, 40)
    s += seq
    for t in range(5):
        for j in range(4):
            for ks in range(2):
                d = vr(vAc + (t * 4 + j) * 4, 4)
                s.append(mfma(d, ar(fA(e, t, ks), 4), ar(fB(e, j, ks), 4), "0" if (sg == 0 and ks == 0) else d))
    return s

OF = PAR('OF', 4); OC = PAR('OC', 7); WC = PAR('WC', 5)
vFo2 = 37
vHs = 48
def p3_steps():
    oe = []
    n = 0
    for p in range(6):
        for j in range(4):
            t = vTmp + (n % 2) * 8; o = vOP + (n % 6) * 4
            it = []
            for tt in range(2):
                for i in range(4): it.append(I(f"v_accvgpr_read_b32 v{t+tt*4+i}, a{((2*p+tt)*4+j)*4+i}"))
            for i in range(8): it.append(I(f"v_mul_f32 v{t+i}, v{t+i}, v{vLs+j}"))
            for i in range(4): it.append(I(f"v_cvt_pk_bf16_f32 v{o+i}, v{t+2*i}, v{t+2*i+1}"))
            it.append(I(f"buffer_store_dwordx4 {vr(o,4)}, v{vL16}, {sr(sWS,4)}, s{sOffO} offen offset:{1024*j} sc1", tag_w="Ost"))
            if j == 3: it.append(I(f"s_add_u32 s{sOffO}, s{sOffO}, 4096"))
            oe.append(it); n += 1
    nst = [int(x) for x in os.environ.get("NST", "6,6,6,6,0,0,0,0,0,0").split(",")]
    g29, g30, g31 = split(dma_stage(29)), split(dma_stage(30)), split(dma_stage(31))
    dm = {0: g29[:3], 1: g29[3:], 2: g30[:3], 3: g30[3:], 4: g31[:3], 5: g31[3:]}
    a0, a1, a2 = [split(dmaA(k, 'x')) for k in range(3)]
    b0, b1, b2 = [split(dmaB(k, 'x')) for k in range(3)]
    assert WC <= 5 and OC == 7
    dm[6] = a0; dm[7] = a1; dm[8] = b0 + b1 + a2[:2]; dm[9] = a2[2:] + b2
    allb = [c for d in range(2, 10) for c in split(b_loads(BBUF[d % 4]))]
    cnt = [int(x) for x in os.environ.get("NB", "8,8,8,8,9,9,8,6,0,0").split(",")]
    BQ = []
    for k in cnt: BQ.append(allb[:k]); allb = allb[k:]
    assert not allb
    steps = []
    for ds in range(10):
        s = []
        take = BQ[ds]
        st = [oe.pop(0) for _ in range(nst[ds])]
        seq = merge([take, dm.get(ds, []), st])
        if ds == 2: seq.insert(0, [set_flag(f"s{sFg}", None)])
        if ds == WC - 1: seq.insert(0, L(f"s_mov_b32 s{sT0}, {hex(FW)}") + [poll_load(vFl, vL16, f"s{sT0}", 4)])
        if ds == OF: seq.insert(int(len(seq) * PAR("OFP", 0.5)), [set_flag(f"s{sFl}", "Ost")])
        if ds == PAR("OP", 6): seq.insert(int(len(seq) * PAR("OPP", 0.6)), [poll_load(vFo2, vFa, f"s{sT1}")])
        flat = [x for ch in seq for x in ch]
        s += ('pace', flat),
        for grp in range(6):
            n = ds * 6 + grp
            real = lambda m: m if m < 48 else 48 + ((m - 48) % 2) * 6 + (m - 48) // 2
            if n + 2 < 60:
                if (n + 2) % 12 == 0:
                    stg = 27 + (n + 2) // 12
                    tags = [f"st{stg}"] + (["Dst"] if stg == 28 else [])
                    s.append(I("s_barrier", tag_r=tags, wr=['stg2'], after=24))
                s += g_reads(real(n + 2), 'stg2', n + 2)
            slot = vGA + (n % 3) * 8
            rds, rg = real(n) // 6, real(n) % 6
            B = BBUF[rds % 4]
            for j in range(4):
                for ks in range(2):
                    d = vr(acc3(rg, j), 4)
                    s.append(mfma(d, vr(slot + ks * 4, 4), rr((B[0], B[1] + (ks * 4 + j) * 4)), "0" if (ds == 0 and ks == 0) else d))
            if rds == 9 and rg % 2 == 1: s += h_epilogue(rg // 2)
        steps.append(s)
    assert not oe
    return steps
HST = []
def h_epilogue(T3):
    s = []
    if True:
        for jp in range(2):
            o = vOP + ((T3 * 2 + jp) % 6) * 4
            for jj in range(2):
                j = jp * 2 + jj
                g = acc3(2 * T3, j); u = acc3(2 * T3 + 1, j)
                for i in range(4): s.append(I(f"v_mul_f32 v{g+i}, v{g+i}, v{u+i}"))
                for i in range(2): s.append(I(f"v_cvt_pk_bf16_f32 v{o+jj*2+i}, v{g+2*i}, v{g+2*i+1}"))
            for i in range(2): s.append(I(f"v_permlane32_swap_b32 v{o+i}, v{o+2+i}"))
            HST.append(I(f"buffer_store_dwordx4 {vr(o,4)}, v{vT}, {sr(sWS,4)}, s{sOffH+T3} offen offset:{2048*jp} sc1", tag_w="Hst"))
    return s
def join_steps(steps, n=48):
    out = []
    for k, s in enumerate(steps):
        base = k * n
        for x in s:
            if isinstance(x, tuple):
                if any(y.kind == 'vmem' for y in x[1]): pace(x[1], base, base + n - 1)
                out += x[1]
            else:
                if x.after is not None: x.after += base
                out.append(x)
    return out

def gen_fallback():
    F = Prog()
    vK = 232; vS = 176; vP = 208
    vf, vv, va = 48, 49, 50
    sK_, sV_ = sK, sV
    def kload():
        return [I(f"buffer_load_dwordx4 {vr(vK+4*p,4)}, v{vf}, {sr(sK_,4)}, s{sT0} offen offset:{64*p}") for p in range(6)] + L(f"s_add_u32 s{sT0}, s{sT0}, 6144")
    def chains(kt, c0):
        s = []
        for j in range(4):
            d = vr(vS + (j * 2 + kt) * 4, 4)
            for p in range(6): s.append(mfma(d, vr(vK + 4 * p, 4), vr(vQ + (p * 4 + j) * 4, 4), d if p else c0(j)))
        return s
    c = L("L_fb:\ns_waitcnt vmcnt(0) lgkmcnt(0)\ns_nop 15")
    c += L(f"""v_and_b32 v54, 15, v0
v_lshrrev_b32 v55, 4, v0
v_mul_u32_u24 v{vf}, 384, v54
v_lshl_add_u32 v{vf}, v55, 4, v{vf}
v_lshrrev_b32 v56, 3, v0
v_and_b32 v57, 7, v0
v_and_b32 v58, 6, v56
v_xor_b32 v57, v57, v58
v_mul_u32_u24 v{vv}, 384, v56
v_lshl_add_u32 v{vv}, v57, 4, v{vv}
v_lshrrev_b32 v56, 2, v54
v_lshl_add_u32 v56, v55, 2, v56
v_bfe_u32 v57, v56, 1, 2
v_lshlrev_b32 v56, 7, v56
v_and_b32 v58, 3, v0
v_lshl_add_u32 v56, v58, 3, v56
s_lshl_b32 s{sT2}, s{sW}, 12
s_add_u32 s{sT2}, s{sT2}, {LDS_X}
v_add_u32 v56, s{sT2}, v56""")
    for x in range(4): c += L(f"v_xor_b32 v58, {x}, v57\nv_lshl_add_u32 v{va+x}, v58, 5, v56")
    c += L(f"""s_mul_i32 s{sT1}, s{sH}, 786432
s_add_u32 s{sT1}, s{sT1}, {1536*384}
s_mov_b32 s{sT0}, s{sT1}
s_mov_b32 s{sSpin}, 0""")
    for j in range(4): c += L(f"v_mov_b32 v{vNm+4*j}, 0xff800000")
    F.block("a", c)
    c = L("L_fb1:") + kload() + chains(0, lambda j: "0")
    for j in range(4):
        a = vS + j * 8; m = vNm + 4 * j
        c += L(f"v_max3_f32 v{m}, v{m}, v{a}, v{a+1}\nv_max3_f32 v{m}, v{m}, v{a+2}, v{a+3}")
    c += L(f"s_add_u32 s{sSpin}, s{sSpin}, 1\ns_cmp_lt_u32 s{sSpin}, 32\ns_cbranch_scc1 L_fb1")
    F.block("b", c)
    c = []
    for j in range(4):
        m = vNm + 4 * j
        c += xreduce(m, m + 1, "v_max_f32")
        c += L(f"v_sub_f32 v{m+1}, 0, v{m}\nv_sub_f32 v{m+2}, 0, v{m}\nv_sub_f32 v{m+3}, 0, v{m}\nv_sub_f32 v{m}, 0, v{m}\nv_mov_b32 v{vLs+j}, 0")
    for i in range(192): c.append(I(f"v_accvgpr_write_b32 a{i}, 0"))
    c += L(f"s_mov_b32 s{sT0}, s{sT1}\ns_mov_b32 s{sSpin}, 0")
    F.block("c", c)
    c = L("L_fb2:")
    for kt in range(2): c += kload() + chains(kt, lambda j: vr(vNm + 4 * j, 4)) + L("s_nop 7")
    for j in range(4):
        for kt in range(2):
            a = vS + (j * 2 + kt) * 4
            for i in range(4): c.append(I(f"v_exp_f32 v{a+i}, v{a+i}"))
            for i in range(4): c.append(I(f"v_add_f32 v{vLs+j}, v{vLs+j}, v{a+i}"))
            for i in range(2): c.append(I(f"v_cvt_pk_bf16_f32 v{vP+j*4+kt*2+i}, v{a+2*i}, v{a+2*i+1}"))
    for cg in range(3):
        for a in range(4):
            c += L(f"""s_add_u32 m0, s{sT2}, {1024*a}
s_add_u32 s{sOffP}, s{sT1}, {3072*a+128*cg}
buffer_load_dwordx4 v{vv}, {sr(sV_,4)}, s{sOffP} offen lds""")
        c += L("s_waitcnt vmcnt(0)")
        for x in range(4):
            for u in range(2): c.append(I(f"ds_read_b64_tr_b16 {vr(vK+4*x+2*u,2)}, v{va+x} offset:{2048*u}"))
        c += L("s_waitcnt lgkmcnt(0)")
        for x in range(4):
            for j in range(4):
                d = ar(((cg * 4 + x) * 4 + j) * 4, 4)
                c.append(mfma(d, vr(vK + 4 * x, 4), vr(vP + 4 * j, 4), d))
        c += L("s_nop 7")
    c += L(f"s_add_u32 s{sT1}, s{sT1}, 12288\ns_add_u32 s{sSpin}, s{sSpin}, 1\ns_cmp_lt_u32 s{sSpin}, 16\ns_cbranch_scc1 L_fb2")
    F.block("d", c)
    c = []
    for j in range(4): c += xreduce(vLs + j, vTmp + j, "v_add_f32")
    for j in range(4): c.append(I(f"v_rcp_f32 v{vLs+j}, v{vLs+j}"))
    c += L("s_nop 15\ns_branch L_fb_back")
    F.block("e", c)
    F.trace = [("a", {}), ("b", {}), ("b", {}), ("c", {}), ("d", {}), ("d", {}), ("e", {})]
    F.insert_waits(); F.fix_hazards()
    return F.text()


def gen(dbg=False):
    P = Prog()
    OUTL.clear(); AD.clear(); HST.clear()
    for i in range(2): AD[vWa + i] = Addr(vWa + i, sbase(0)); AD[vKa + i] = Addr(vKa + i, 0)
    for i in range(4): AD[vVa + i] = Addr(vVa + i, 0)
    AD[vRa] = Addr(vRa, sbase(12)); AD[vGa] = Addr(vGa, sbase(27))
    AD[vOA] = Addr(vOA, obase(0)); AD[vOB] = Addr(vOB, obase(0)); AD[vDA] = Addr(vDA, obase(24)); AD[vDB] = Addr(vDB, obase(24))
    nblk = [0]
    def blk(ins, name=None):
        nm = name or f"b{nblk[0]}"; nblk[0] += 1
        P.block(nm, ins); P.trace.append((nm, {}))
    CPA = PAR("CPA", 10000)
    cp = [3]
    def sch(s, name, **kw):
        if name.startswith("p2_") or name.startswith("p1_"):
            if "nost" in KN: s = [x for x in s if not (x.kind == 'vmem' and 'store_dwordx4' in x.text)]
            if "nobar" in KN: s = [x for x in s if x.kind != 'barrier']
            if "novm" in KN: s = [x for x in s if not (x.kind == 'vmem' and 'dwordx4' in x.text and 'v[48:51]' not in x.text)]
            if "novalu" in KN and name.startswith("p2_"): s = [x for x in s if not (x.kind in ('valu', 'trans') and x.text.startswith(('v_exp', 'v_add_f32', 'v_cvt')))]
        if name.startswith("p3"):
            if "p3nost" in KN: s = [x for x in s if not (x.kind == 'vmem' and 'store_dwordx4' in x.text)]
            if "p3nob" in KN: s = [x for x in s if not (x.kind == 'vmem' and 'load_dwordx4' in x.text and ' lds' not in x.text and f"s{sOffB} " in x.text)]
            if "p3novalu" in KN: s = [x for x in s if not (x.kind == 'valu' and x.text.startswith(('v_accvgpr', 'v_mul_f32', 'v_cvt')))]
            if "p3plain" in KN:
                for x in s:
                    if 'store_dwordx4' in x.text: x.text = x.text.replace(" sc1", "")
            if "p3nt" in KN:
                for x in s:
                    if 'store_dwordx4' in x.text: x.text = x.text.replace(" sc1", " sc1 nt")
        pos = sum(isize(x) for b in P.blocks for x in b[1]) * 1.03
        end = pos + sum(isize(x) for x in s) * 1.03
        nm = sum(1 for x in s if x.kind == 'mfma')
        while "nocp" not in KN and cp[0] * 8192 < end + CPA and cp[0] < NSLICE:
            g = int(max(0, min(nm - 2, (cp[0] * 8192 - CPA - pos) / (end - pos) * nm)))
            k = next((i for i, x in enumerate(s) if x.kind == 'vmem' and x.after is not None and x.after > g), len(s))
            cpl = I(f"global_load_dword v{vDum}, v{vL16}, s[62:63]", after=g); cpl.writes = set()
            s = s[:k] + [cpl, I("s_add_u32 s62, s62, 0x2000"), I("s_addc_u32 s63, s63, 0")] + s[k:]
            cp[0] += 1
        blk(schedule(s, name, verbose=dbg and "v" in KN, **kw), name)
    CC = math.log2(math.e) / math.sqrt(192.0)
    c = L(f"""s_cmp_ge_u32 s2, 256
s_cbranch_scc1 L_end
s_load_dwordx16 s[64:79], s[0:1], 0
s_load_dwordx8 s[80:87], s[0:1], 64
s_memrealtime s[{sSt}:{sSt+1}]
s_getpc_b64 s[62:63]
v_lshrrev_b32 v30, 6, v0
v_and_b32 v0, 63, v0
v_readfirstlane_b32 s{sW}, v30
v_lshlrev_b32 v{vL16}, 4, v0
v_lshlrev_b32 v{vL128}, 7, v0
v_and_b32 v48, 7, v0
v_lshrrev_b32 v49, 3, v0
v_mul_u32_u24 v60, 1280, v48
v_lshl_add_u32 v50, v49, 4, v60
v_lshl_add_u32 v50, v30, 7, v50
s_mul_i32 s{sT0}, s2, {8*1280}
s_and_b32 s{sT1}, s2, 7
s_lshr_b32 s{sT2}, s2, 3
s_and_b32 s{sH}, s{sT2}, 3
s_lshl2_add_u32 s{sH}, s{sT1}, s{sH}
s_lshr_b32 s{sB}, s{sT2}, 2
s_lshr_b32 s{sS}, s{sT1}, 1
s_and_b32 s{sT1}, s{sT1}, 1
s_lshl3_add_u32 s{sMb}, s{sT1}, s{sB}
s_and_b32 s{sNb}, s{sT2}, 3
v_cmp_eq_u32 vcc, 0, v0
v_bfrev_b32 v51, 1
v_cndmask_b32 v{vFo}, v51, 0, vcc
v_cmp_gt_u32 vcc, 2, v30
v_add_u32 v53, 1024, v50
v_cndmask_b32 v53, v51, v53, vcc
s_lshl2_add_u32 s{sT2}, s{sT2}, s{sW}
s_and_b32 s{sT2}, s{sT2}, 15
s_min_u32 s{sT2}, s{sT2}, CODE_SLICES-1
s_lshl_b32 s{sT2}, s{sT2}, 13
v_add_u32 v52, s{sT2}, v{vL128}
global_load_dword a{aDum}, v52, s[62:63]
v_lshrrev_b32 v54, 4, v0
v_and_b32 v55, 15, v0
v_and_b32 v61, 6, v49
v_xor_b32 v61, v61, v48
v_lshlrev_b32 v61, 4, v61
v_mul_u32_u24 v62, 1280, v49
v_add_u32 v{vRo2}, v62, v61
v_and_b32 v62, 4, v49
v_add_u32 v62, v62, v49
v_mul_u32_u24 v62, 3072, v62
v_add_u32 v{vRo}, v62, v61
s_lshl_b32 s{sM5}, s{sW}, 13
s_add_u32 s{sM4}, s{sM5}, {SLOT}
s_cmp_eq_u32 s{sW}, 3
s_cmov_b32 s{sM5}, {LDS_X + 4096}
s_lshl2_add_u32 s{sQg}, s{sB}, s{sW}
s_mul_i32 s{sOffBB}, s{sQg}, {64*1280}""")
    if STAMPS: c += L(f"v_mov_b32 v{vSt}, 0")
    c += L("s_waitcnt lgkmcnt(0)")
    c += srd(sXin, pX, 2048 * 640 * 2)
    c += L(f"""buffer_load_dwordx4 v[64:67], v50, {sr(sXin,4)}, s{sT0} offen
buffer_load_dwordx4 v[68:71], v50, {sr(sXin,4)}, s{sT0} offen offset:512
buffer_load_dwordx4 v[72:75], v53, {sr(sXin,4)}, s{sT0} offen
buffer_load_ushort v76, v60, {sr(sXin,4)}, s{sT0} offen""")
    c += srd(sR, pDbg, 256)
    c += L(f"""s_or_b32 s{sNonce}, s{sSt}, 1
v_mov_b32 v56, s{sNonce}
v_mov_b32 v57, 0
s_or_b32 s{sT1}, s2, s{sW}
s_cmp_eq_u32 s{sT1}, 0
s_cselect_b32 s{sT1}, 0, 0x100
buffer_atomic_cmpswap v[56:57], v{vFo}, {sr(sR,4)}, s{sT1} offen sc1""")
    c += stamp(0)
    def rawdma(ds):
        r = []
        for a in range(8):
            r += L(f"s_add_u32 m0, s{sM4 if ds == 0 else sM5}, {a*1024}\ns_add_u32 s{sOffA}, s{sOffBB}, {a*8*1280+128*ds}")
            r.append(I(f"buffer_load_dwordx4 v{vRo2}, {sr(sXin,4)}, s{sOffA} offen lds", tag_w=f"raw{ds}"))
        return r
    def inter(vm, fill):
        ch = split(vm); out = []; per = -(-len(fill) // len(ch))
        for k, cc in enumerate(ch): out += cc + fill[k * per:(k + 1) * per]
        return out
    f1 = []
    for n in range(3):
        f1.append(I(f"v_add_u32 v61, {64*n}, v0"))
        f1 += divmod_const(62, 63, 61, 24)
        f1 += L(f"""v_and_b32 v57, 6, v62
v_xor_b32 v57, v63, v57
v_lshlrev_b32 v57, 4, v57
v_subrev_u32 v57, {1024*n}, v57
v_and_b32 v59, 4, v62
v_add_u32 v59, v59, v62
v_mul_u32_u24 v59, 12288, v59
v_add_u32 v{vWo+n}, v59, v57""")
    f1 += srd(sWq, pWq, 640 * 6144 * 2) + srd(sWS, pWs, WS_SIZE)
    f1 += L(f"""s_lshr_b32 s{sT0}, s{sW}, 1
s_and_b32 s{sOffY}, s{sW}, 1
s_lshl_b32 s{sT2}, s{sT0}, 5
s_lshl2_add_u32 s{sT2}, s{sOffY}, s{sT2}
s_mul_i32 s{sOffX}, s{sT2}, 12288
s_mul_i32 s{sT2}, s{sH}, 384
s_add_u32 s{sOffX}, s{sOffX}, s{sT2}
s_mul_i32 s{sM6}, s{sW}, 6144""")
    f2 = L(f"""v_lshrrev_b32 v56, 2, v55
v_and_b32 v57, 3, v0
v_lshl_add_u32 v58, v54, 2, v56
v_bfe_u32 v59, v58, 1, 2
v_mul_u32_u24 v62, 384, v58
v_add_u32 v62, {sbase(0)}, v62
v_lshlrev_b32 v63, 1, v59
v_xor_b32 v63, v63, v57
v_lshl_add_u32 v{vWa}, v63, 4, v62
v_xor_b32 v63, 4, v63
v_lshl_add_u32 v{vWa+1}, v63, 4, v62
v_bfe_u32 v{vPa}, v0, 2, 3
v_lshlrev_b32 v{vPa}, 7, v{vPa}
v_lshl_add_u32 v{vPa}, v57, 2, v{vPa}
v_lshlrev_b32 v{vSo}, 3, v55
v_lshlrev_b32 v62, 7, v55
v_and_b32 v63, 6, v55
v_xor_b32 v63, v63, v54
v_lshl_add_u32 v{vXo2}, v63, 4, v62
v_xor_b32 v63, 4, v63
v_lshl_add_u32 v{vXo2+1}, v63, 4, v62
v_add_u32 v{vXo}, s{sM4}, v{vXo2}
v_add_u32 v{vXo+1}, s{sM4}, v{vXo2+1}
v_add_u32 v{vXo2}, s{sM5}, v{vXo2}
v_add_u32 v{vXo2+1}, s{sM5}, v{vXo2+1}
v_lshlrev_b32 v58, 3, v48
v_add_u32 v58, {LDS_X}, v58
v_lshl_add_u32 v59, v30, 6, v58
v_lshrrev_b32 v56, 2, v49
v_lshl_add_u32 v56, v30, 1, v56
v_lshlrev_b32 v56, 12, v56
v_and_b32 v57, 3, v49
v_lshl_add_u32 v56, v57, 8, v56
v_lshl_add_u32 v56, v48, 4, v56
v_add_u32 v57, {16*4096}, v56
v_cndmask_b32 v57, v51, v57, vcc
v_or_b32 v61, v49, v30
v_cmp_eq_u32 vcc, 0, v61
v_lshlrev_b32 v61, 3, v48
v_cndmask_b32 v61, v51, v61, vcc
s_lshr_b32 s{sT2}, s2, 3
s_mul_i32 s{sT2}, s{sT2}, {20*4096}
s_bfe_u32 s{sOffK}, s2, 0x20001
s_lshl_b32 s{sOffK}, s{sOffK}, 10
s_add_u32 s{sT2}, s{sT2}, s{sOffK}
s_and_b32 s{sOffK}, s2, 1
s_lshl_b32 s{sOffK}, s{sOffK}, 7
s_add_u32 s{sT2}, s{sT2}, s{sOffK}
s_add_u32 s{sOffK}, s{sT2}, {8*4096}
s_lshl_b32 s{sOffP}, s2, 6
s_add_u32 s{sOffP}, s{sOffP}, {hex(ST_OFF)}
s_lshr_b32 s{sSpin}, s{sW}, 1
s_sub_u32 s{sSpin}, s{sSpin}, 1
s_and_b32 s{sSpin}, s{sSpin}, 0x3f800000""")
    pfv = divmod_const(62, 63, 0, 3) + L(f"""v_mul_u32_u24 v62, 12288, v62
v_lshl_add_u32 v62, v63, 7, v62
v_cmp_gt_u32 vcc, 12, v0
v_cndmask_b32 v{vL128}, v51, v62, vcc
s_lshl_b32 s{sQd}, s{sQg}, 2
s_add_u32 s{sQd}, s{sQd}, 256
s_mul_i32 s{sQd}, s{sQd}, 12288
s_mul_i32 s{sOffG}, s{sH}, 384
s_add_u32 s{sQd}, s{sQd}, s{sOffG}""")
    f2 += pfv
    for i in range(4): f2.append(I(f"v_mov_b32 v{vOne+i}, 0x3f803f80"))
    c += inter(rawdma(0), f1)
    c += inter(dma_stage(0), f2)
    c += L(f"v_mov_b32 v60, 0\nbuffer_load_dword v{vNon}, v60, {sr(sR,4)}, 0 offen sc1\ns_mov_b32 s{sT1}, s{sOffY}\ns_mov_b32 s{sT3}, s{sOffK}")
    su0 = L(f"""s_lshl_b32 s{sFl}, s2, 7
s_lshl2_add_u32 s{sFl}, s{sW}, s{sFl}
s_add_u32 s{sFl}, s{sFl}, {hex(FXN)}
s_lshl_b32 s{sFg}, s{sQg}, 10
s_add_u32 s{sFg}, s{sFg}, {hex(FXN)}
s_lshl_b32 s{sScale}, s{sQg}, 9
s_add_u32 s{sScale}, s{sScale}, {hex(ST_OFF)}
s_mul_i32 s{sOffB}, s{sQg}, {20*4096}
s_add_u32 s{sOffB}, s{sOffB}, {4*4096}
s_mul_i32 s{sM3}, s{sW}, 3072
s_mul_i32 s{sOffK}, s{sH}, 786432
s_add_u32 s{sOffK}, s{sOffK}, {1536*384}
s_add_u32 s{sOffK}, s{sOffK}, s{sM3}
s_mov_b32 s{sOffV}, s{sOffK}
s_lshr_b32 s{sPf}, s2, 3
s_lshl2_add_u32 s{sPf}, s{sPf}, s{sW}
s_and_b32 s{sPf}, s{sPf}, 7
s_lshl_b32 s{sPf}, s{sPf}, 10
s_add_u32 s{sPf}, s{sPf}, {3*8192}
s_add_u32 s62, s62, s{sPf}
s_addc_u32 s63, s63, 0""") + srd(sK, pK, 32 * 2048 * 192 * 2) + srd(sV, pV, 32 * 2048 * 192 * 2)
    wpf = lambda: ([prefetch(sWq, f"s{sQd}")] + L(f"s_add_u32 s{sQd}, s{sQd}, {128*12288}")) if "nowpf" not in KN else []
    vu = []
    for n in range(3):
        vu.append(I(f"v_add_u32 v61, {64*n}, v0"))
        vu += divmod_const(62, 63, 61, 24)
        vu += L(f"""v_and_b32 v57, 6, v62
v_xor_b32 v57, v63, v57
v_lshlrev_b32 v57, 4, v57
v_subrev_u32 v57, {1024*n}, v57
v_mul_u32_u24 v58, 384, v62
v_add_u32 v{vVo+n}, v58, v57
v_lshrrev_b32 v59, 1, v62
v_lshl_add_u32 v59, s{sW}, 2, v59
v_and_b32 v59, 7, v59
v_xor_b32 v59, v63, v59
v_lshlrev_b32 v59, 4, v59
v_subrev_u32 v59, {1024*n}, v59
v_add_u32 v{vKo+n}, v58, v59""")
    vu += L(f"""v_lshrrev_b32 v56, 2, v55
v_and_b32 v57, 3, v0
v_lshl_add_u32 v58, v54, 2, v56
v_bfe_u32 v59, v58, 1, 2
v_mul_u32_u24 v62, 384, v58
v_lshl_add_u32 v62, v57, 3, v62""")
    for x in range(4): vu += L(f"v_xor_b32 v63, {x}, v59\nv_lshl_add_u32 v{vVa+x}, v63, 5, v62")
    vu += L(f"""v_lshlrev_b32 v62, 7, v58
v_lshl_add_u32 v62, v57, 3, v62
v_xor_b32 v63, s{sW}, v59
v_lshl_add_u32 v62, v63, 5, v62
v_add_u32 v{vRa}, {sbase(12)}, v62
v_add_u32 v{vGa}, {sbase(27)}, v{vL16}
v_mul_u32_u24 v62, 384, v55
v_lshrrev_b32 v63, 1, v55
v_xor_b32 v63, v63, v54
v_lshl_add_u32 v{vKa}, v63, 4, v62
v_xor_b32 v63, 4, v63
v_lshl_add_u32 v{vKa+1}, v63, 4, v62""")
    for i in range(4): vu.append(I(f"v_mov_b32 v{vLs+i}, 0"))
    xr = L(f"""v_and_b32 v61, 7, v0
v_lshrrev_b32 v62, 3, v0
v_mul_u32_u24 v63, 1280, v61
v_lshl_add_u32 v63, v62, 4, v63
s_mul_i32 s{sOffY}, s2, {8*1280}
s_lshl_b32 s{sPf}, s{sW}, 7
s_add_u32 s{sOffY}, s{sOffY}, s{sPf}
buffer_load_dwordx4 a[244:247], v63, {sr(sXin,4)}, s{sOffY} offen
buffer_load_dwordx4 a[248:251], v63, {sr(sXin,4)}, s{sOffY} offen offset:512
buffer_load_dwordx4 a[252:255], v63, {sr(sXin,4)}, s{sOffY} offen offset:1024""")
    xs = L(f"""v_lshrrev_b32 v63, 2, v62
v_lshlrev_b32 v63, 12, v63
v_and_b32 v62, 3, v62
v_lshl_add_u32 v63, v62, 8, v63
v_lshl_add_u32 v63, v61, 4, v63
s_lshr_b32 s{sOffY}, s2, 3
s_mul_i32 s{sOffY}, s{sOffY}, {20*4096}
s_bfe_u32 s{sPf}, s2, 0x20001
s_lshl_b32 s{sPf}, s{sPf}, 10
s_add_u32 s{sOffY}, s{sOffY}, s{sPf}
s_and_b32 s{sPf}, s2, 1
s_lshl_b32 s{sPf}, s{sPf}, 7
s_add_u32 s{sOffY}, s{sOffY}, s{sPf}
s_lshl_b32 s{sPf}, s{sW}, 13
s_add_u32 s{sOffY}, s{sOffY}, s{sPf}
s_add_u32 s{sOffY}, s{sOffY}, {hex(XR_OFF)}""")
    for i in range(3):
        if i == 2: xs += L(f"s_cmp_lt_u32 s{sW}, 2\ns_cselect_b32 s{sOffY}, s{sOffY}, 0x40000000")
        xs.append(I(f"buffer_store_dwordx4 {ar(244+4*i,4)}, v63, {sr(sWS,4)}, s{sOffY} offen sc1", tag_w="Gst"))
        if i < 2: xs += L(f"s_add_u32 s{sOffY}, s{sOffY}, {8*4096}")
    c += L("v_lshlrev_b32 v76, 16, v76\nv_mov_b32 v77, v76")
    for i in range(12):
        c += L(f"v_lshlrev_b32 v{80+2*i}, 16, v{64+i}\nv_and_b32 v{81+2*i}, 0xffff0000, v{64+i}")
        c += L(f"v_pk_add_f32 v[{112+2*i}:{113+2*i}], v[{80+2*i}:{81+2*i}], v[76:77] neg_lo:[0,1] neg_hi:[0,1]")
    for i in range(12):
        a = 104 if i < 8 else 108
        d = vr(112 + 2 * i, 2)
        if i in (0, 8): c += L(f"v_pk_mul_f32 v[{a+2}:{a+3}], {d}, {d}\nv_mov_b32 v{a}, v{112+2*i}\nv_mov_b32 v{a+1}, v{113+2*i}")
        else: c += L(f"v_pk_fma_f32 v[{a+2}:{a+3}], {d}, {d}, v[{a+2}:{a+3}]\nv_pk_add_f32 v[{a}:{a+1}], v[{a}:{a+1}], {d}")
    c += L(f"""v_add_f32 v104, v104, v105
v_add_f32 v105, v106, v107
v_add_f32 v108, v108, v109
v_add_f32 v109, v110, v111
v_fmac_f32 v104, s{sSpin}, v108
v_fmac_f32 v105, s{sSpin}, v109
s_nop 1
v_add_f32_dpp v104, v104, v104 row_ror:8 row_mask:0xf bank_mask:0xf
v_add_f32_dpp v105, v105, v105 row_ror:8 row_mask:0xf bank_mask:0xf""")
    ra, rb = xreduce(104, 106, "v_add_f32"), xreduce(105, 107, "v_add_f32")
    for x, y in zip(ra, rb): c += [x, y]
    c += L(f"""ds_write_b64 v59, v[104:105]
s_waitcnt lgkmcnt(0)
s_barrier
ds_read_b64 v[104:105], v58
ds_read_b64 v[106:107], v58 offset:64
ds_read_b64 v[108:109], v58 offset:128
ds_read_b64 v[110:111], v58 offset:192
v_pk_add_f32 v[104:105], v[104:105], v[106:107]
v_pk_add_f32 v[108:109], v[108:109], v[110:111]
v_pk_add_f32 v[104:105], v[104:105], v[108:109]
v_mul_f32 v104, {hex(f2u(1.0/640))}, v104
v_mul_f32 v105, {hex(f2u(1.0/640))}, v105
v_fma_f32 v105, -v104, v104, v105
v_max_f32 v105, 0, v105
v_add_f32 v104, v104, v76
v_cvt_pk_bf16_f32 v104, v105, v104
v_and_b32 v108, 0xffff0000, v104
v_mov_b32 v109, v108""")
    for i in range(12):
        d = vr(80 + 2 * i, 2)
        c += L(f"""v_pk_add_f32 {d}, {d}, v[108:109] neg_lo:[0,1] neg_hi:[0,1]
v_cvt_pk_bf16_f32 v{64+i}, v{80+2*i}, v{81+2*i}""")
        if i == 3: c.append(I(f"buffer_store_dwordx4 v[64:67], v56, {sr(sWS,4)}, s{sT2} offen sc1", tag_w="Xst"))
        if i == 7: c.append(I(f"buffer_store_dwordx4 v[68:71], v56, {sr(sWS,4)}, s{sT3} offen sc1", tag_w="Xst"))
        if i == 11: c.append(I(f"buffer_store_dwordx4 v[72:75], v57, {sr(sWS,4)}, s{sT2} offen sc1", tag_w="Xst"))
    c += L(f"""v_lshlrev_b32 v104, 16, v104
v_add_f32 v104, {hex(f2u(1e-5))}, v104
v_cvt_pk_bf16_f32 v104, v104, v104
v_lshlrev_b32 v104, 16, v104
v_sqrt_f32 v104, v104
v_xor_b32 v106, 0x80000000, v108
v_cvt_pk_bf16_f32 v104, v104, v104
v_lshlrev_b32 v104, 16, v104
v_rcp_f32 v104, v104
s_nop 0
v_mul_f32 v107, {hex(f2u(CC))}, v104""")
    c.append(I(f"buffer_store_dwordx2 v[106:107], v61, {sr(sWS,4)}, s{sOffP} offen sc1", tag_w="Xst"))
    c += stamp(1)
    c += raw_reads(0)
    c.append(barrier(["st0", "rawrd0"]))
    c += w_reads0(0) + w_reads0(1)
    c += L(f"""v_readfirstlane_b32 s{sNonce}, v{vNon}
s_nop 3
s_cmp_lg_u32 s{sNonce}, 0
s_cbranch_scc0 L_nonce
L_nonce_ok:""")
    OUTL.append(("nonce", L(f"""L_nonce:
s_mov_b32 s{sSpin}, {SPIN_MAX}
L_nonce2:
buffer_load_dword v{vNon}, v60, {sr(sR,4)}, 0 offen sc1
s_waitcnt vmcnt(0)
v_readfirstlane_b32 s{sNonce}, v{vNon}
s_nop 3
s_cmp_lg_u32 s{sNonce}, 0
s_cbranch_scc1 L_nonce_ok
s_sub_u32 s{sSpin}, s{sSpin}, 1
s_cmp_lg_u32 s{sSpin}, 0
s_cbranch_scc1 L_nonce2
s_branch L_nonce_ok""")))
    c += stamp(2)
    blk(c, "pro")
    su = L(f"""s_mul_i32 s{sOffG}, s{sH}, {20*6144}
s_add_u32 s{sOffG}, s{sOffG}, s{sM6}
s_add_u32 s{sOffG}, s{sOffG}, {hex(GP_OFF)}
s_lshl_b32 s{sM1}, s{sW}, 10
s_mul_i32 s{sM5}, s{sW}, 5120
s_lshl_b32 s{sM4}, s{sW}, 12
s_mul_i32 s{sT2}, s{sQg}, {240*4096}
s_add_u32 s{sT2}, s{sT2}, {hex(OH_OFF)}
s_mul_i32 s{sT3}, s{sH}, {6*4096}
s_add_u32 s{sOffO}, s{sT2}, s{sT3}
s_add_u32 s{sT2}, s{sT2}, {192*4096}
s_mul_i32 s{sT3}, s{sH}, 3""")
    for T3 in range(3):
        su += L(f"""s_lshr_b32 s{sSpin}, s{sT3}, 1
s_lshl_b32 s{sSpin}, s{sSpin}, 12
s_add_u32 s{sOffH+T3}, s{sT2}, s{sSpin}
s_and_b32 s{sSpin}, s{sT3}, 1
s_lshl_b32 s{sSpin}, s{sSpin}, 9
s_add_u32 s{sOffH+T3}, s{sOffH+T3}, s{sSpin}
s_add_u32 s{sT3}, s{sT3}, 1""")
    su += L(f"""s_sub_u32 s{sT2}, s2, 240
s_min_u32 s{sT2}, s2, s{sT2}""")
    su += sdivmod(sT3, sSpin, sT2, 10)
    su += L(f"""s_lshl_b32 s{sOffRo}, s{sT3}, 8
s_lshl3_add_u32 s{sOffRo}, s{sW}, s{sOffRo}
s_mul_i32 s{sOffRo}, s{sOffRo}, 1280
s_lshl_b32 s{sFl}, s{sSpin}, 7
s_add_u32 s{sOffRo}, s{sOffRo}, s{sFl}
s_lshl_b32 s{sOffRd}, s{sT3}, 6
s_lshl4_add_u32 s{sOffRd}, s{sT1}, s{sOffRd}
s_lshl3_add_u32 s{sOffRd}, s{sT0}, s{sOffRd}
s_mul_i32 s{sOffRd}, s{sOffRd}, 1280
s_add_u32 s{sOffRd}, s{sOffRd}, s{sFl}
s_lshl2_add_u32 s{sSpin}, s{sSpin}, s{sW}""")
    su += sdivmod(sFl, sOffP, sSpin, 10)
    su += L(f"""s_mul_i32 s{sFl}, s{sFl}, 192
s_lshl3_add_u32 s{sFl}, s{sT3}, s{sFl}
s_mul_i32 s{sFl}, s{sFl}, 10
s_add_u32 s{sFl}, s{sFl}, s{sOffP}
s_lshl_b32 s{sFl}, s{sFl}, 10
s_add_u32 s{sOffDo}, s{sFl}, {hex(WOP_OFF)}""")
    su += sdivmod(sFl, sOffP, sSpin, 5)
    su += L(f"""s_mul_i32 s{sFl}, s{sFl}, 48
s_lshl1_add_u32 s{sFl}, s{sT3}, s{sFl}
s_mul_i32 s{sFl}, s{sFl}, 5
s_add_u32 s{sFl}, s{sFl}, s{sOffP}
s_lshl_b32 s{sFl}, s{sFl}, 10
s_add_u32 s{sOffDd}, s{sFl}, {hex(WDP_OFF)}""")
    su2 = sdivmod(sT3, sSpin, sT2, 48)
    su2 += [L(f"""s_cmp_ge_u32 s{sSpin}, 24
s_cselect_b32 s{pBx}, s{pWu}, s{pWg}
s_cselect_b32 s{pBx+1}, s{pWu+1}, s{pWg+1}
s_cselect_b32 s{sT2}, 1, 0
s_cselect_b32 s{sFl}, 24, 0""")]
    su2 += L(f"""s_sub_u32 s{sSpin}, s{sSpin}, s{sFl}
s_lshl_b32 s{sOffR}, s{sT3}, 7
s_lshl4_add_u32 s{sOffR}, s{sT1}, s{sOffR}
s_lshl2_add_u32 s{sOffR}, s{sT0}, s{sOffR}
s_mul_i32 s{sOffR}, s{sOffR}, 3072
s_lshl_b32 s{sFl}, s{sSpin}, 7
s_add_u32 s{sOffR}, s{sOffR}, s{sFl}
s_lshl2_add_u32 s{sSpin}, s{sSpin}, s{sW}""")
    su2 += sdivmod(sFl, sOffP, sSpin, 3)
    su2 += L(f"""s_mul_i32 s{sFl}, s{sFl}, 20
s_lshl2_add_u32 s{sFl}, s{sT3}, s{sFl}
s_mul_i32 s{sFl}, s{sFl}, 6
s_lshl1_add_u32 s{sFl}, s{sOffP}, s{sFl}
s_add_u32 s{sFl}, s{sFl}, s{sT2}
s_lshl_b32 s{sFl}, s{sFl}, 10
s_add_u32 s{sOffD}, s{sFl}, {hex(GP_OFF)}
s_lshl_b32 s{sFg}, s2, 2
s_add_u32 s{sFg}, s{sFg}, {hex(FG)}""")
    su2 += [L(f"s_cmp_eq_u32 s{sW}, 0\ns_cselect_b32 s{sFg}, s{sFg}, 0x40000000")]
    su2 += L(f"""s_lshr_b32 s{sT2}, s{sH}, 3
s_lshl2_add_u32 s{sFl}, s{sQg}, s{sT2}
s_lshl_b32 s{sFl}, s{sFl}, 7
s_and_b32 s{sT2}, s{sH}, 7
s_lshl2_add_u32 s{sFl}, s{sT2}, s{sFl}
s_add_u32 s{sFl}, s{sFl}, {hex(FO)}
s_mul_i32 s{sOffA}, s{sNb}, 192
s_mul_i32 s{sT2}, s{sS}, 48
s_add_u32 s{sOffA}, s{sOffA}, s{sT2}
s_mul_i32 s{sOffA}, s{sOffA}, 10240
s_add_u32 s{sOffA}, s{sOffA}, s{sM5}
s_add_u32 s{sOffA}, s{sOffA}, {hex(WOP_OFF)}
s_lshl1_add_u32 s{sOffBB}, s{sMb}, s{sT1}
s_mul_i32 s{sOffBB}, s{sOffBB}, 240
s_add_u32 s{sOffBB}, s{sOffBB}, s{sT2}
s_add_u32 s{sOffBB}, s{sOffBB}, s{sT0}
s_lshl_b32 s{sOffBB}, s{sOffBB}, 12
s_add_u32 s{sOffBB}, s{sOffBB}, {hex(OH_OFF)}
s_lshr_b32 s{sT2}, s{sS}, 1
s_lshl1_add_u32 s{sQd}, s{sMb}, s{sT2}""") + srd(sR, pBx, 640 * 1536 * 2)
    def weave(vm, sal):
        ch = split(vm); out = []
        per = -(-len(sal) // len(ch))
        for k, cc in enumerate(ch):
            out += cc
            for y in sal[k * per:(k + 1) * per]: out += y if isinstance(y, list) else [y]
        return out
    XH = PAR("XH", 15)
    XF = PAR("XF", 50); XQ = PAR("XQ", 110)
    q0a = pace(rawdma(1) + dma_stage(1), 0, PAR("Q0", 44)) + pace(dma_stage(2) + wpf() + dma_stage(3) + wpf(), 56, XH * 10 - 2)
    fl = set_flag(f"s{sFl}", "Xst", after=XF); pl_ = poll_load(vPd, vPa, f"s{sFg}", after=XQ)
    ch = split(q0a)
    for x in (fl, pl_):
        k = next((i for i, cc in enumerate(ch) if [y for y in cc if y.kind == 'vmem'][0].after > x.after), len(ch))
        ch.insert(k, [x])
    for k in range(8, 14): ch[k] = ch[k] + su0[(k - 8) * 1:(k - 7) * 1]
    ch[15] = ch[15] + su0[6:13]; ch[16] = ch[16] + su0[13:21]; ch[17] = ch[17] + su0[21:]
    for cc in ch:
        for x in cc: x.reads.discard('stg')
    sch(p1_first(0, XH, extra=[x for cc in ch for x in cc] + vu), "p1_0a", vm_min=3)
    fs = lambda k: blk(stamp(k)) if "fine1" in KN else None
    fs(14)
    blk(poll_cmp(vPd, 1) + poll_branch("xn", vPd, vPa, f"s{sFg}"))
    fs(15)
    bl = lambda k: b_loads(('a', 64 * (k % 2))) + b_loads(('a', 64 * (k % 2) + 32))
    sch(p1_first(XH, 24, extra=pace(bl(1), 0, 56)), "p1_0b", vm_min=3); fs(16)
    sch(p1_quad(1, vm=weave(dma_stage(4) + dma_stage(5) + wpf() + stat_loads() + bl(2), su)), "p1_1"); fs(17)
    sch(p1_quad(2, vm=weave(dma_stage(6) + dma_stage(7) + bl(3), su2)), "p1_2"); fs(18)
    sch(p1_quad(3, vm=dma_stage(8) + dma_stage(9) + bl(4) + dma_stage(10)), "p1_3")
    if "stagtest" in KN:
        blk(L(f"""s_and_b32 s{sSpin}, s{sH}, 1
s_mul_i32 s{sSpin}, s{sSpin}, 150
L_stag:
s_cmp_eq_u32 s{sSpin}, 0
s_cbranch_scc1 L_stag2
s_sleep 1
s_sub_u32 s{sSpin}, s{sSpin}, 1
s_branch L_stag
L_stag2:"""))
    blk(stamp(3))
    MERGE = "nomerge" not in KN
    big = p1_quad(4, vm=dma_stage(11) + dma_stage(12)) + first_tile(192) + p2_iter(0, base=192 + 48)
    nbig = 336
    if not MERGE:
        sch(big, "p1_last"); big = []; nbig = 0
    blk(stamp(4))
    XP = PAR("XP", 9)
    for t in range(1, 14):
        ex = []; post = []; btag = []
        if t == 1: ex += xr
        if t == 3: ex += xs
        if t == 6: btag = ["Gst"]
        if t == 7: ex += [set_flag(f"s{sFg}", None)] + L(f"s_add_u32 s{sFg}, s{sFg}, {FW-FG}")
        if t == 10: ex += L(f"s_mov_b32 s{sT0}, {hex(FG)}") + [poll_load(vTmp, vL16, f"s{sT0}", 4)]
        if t == 12: post += late(poll_cmp(vTmp, 4), nbig + 60)
        XN_ = PAR("XN", 2)
        if "xpf" in KN and XP <= t <= 13:
            if t == XP: ex += L(f"""s_and_b32 s{sPf}, s{sH}, 3
s_lshl_b32 s{sPf}, s{sPf}, 11
s_mul_i32 s{sT2}, s{sQg}, {20*4096}
s_add_u32 s{sPf}, s{sPf}, s{sT2}""")
            for k in range(XN_):
                if (t - XP) * XN_ + k < 10:
                    for o in (0, 1024):
                        x = I(f"buffer_load_dwordx4 v[60:63], v{vL16}, {sr(sWS,4)}, s{sPf} offen offset:{o} sc1")
                        if (t - XP) * XN_ + k < 9 or o == 0: x.writes = set()
                        ex.append(x)
                    ex += L(f"s_add_u32 s{sPf}, s{sPf}, 8192")
        big += p2_iter(t, base=nbig, extra=ex, post=post, btag=btag); nbig += 96
        if not MERGE or t == 12:
            sch(big, f"p2_{t}"); big = []; nbig = 0
        if t == 12 and "stagtest" not in KN: blk(poll_branch("g", vTmp, vL16, f"s{sT0}", 4))
    blk(stamp(5))
    sch(big + p2_iter(14, base=nbig, btag=["Wst"]) + tail_pv(nbig + 96), "tail", vm_min=3)
    blk(L("s_cbranch_vccnz L_fb\nL_fb_back:") + stamp(6))
    steps = p3_steps()
    setup = L(f"""v_and_b32 v{vT}, 32, v0
v_lshlrev_b32 v{vT}, 4, v{vT}
v_add_u32 v{vT}, v{vT}, v{vL16}
s_and_b32 s{sT3}, s{sW}, 1
s_lshl1_add_u32 s{sT1}, s{sMb}, s{sT3}
s_lshl2_add_u32 s{sT1}, s{sT1}, s{sS}
s_lshl_b32 s{sT1}, s{sT1}, 7
s_add_u32 s{sT1}, s{sT1}, {hex(FO)}
v_and_b32 v{vFa}, 7, v0
v_lshlrev_b32 v{vFa}, 2, v{vFa}
s_mul_i32 s{sT3}, s{sT3}, 5120
s_add_u32 s{sT3}, s{sT3}, {obase(0)}
v_add_u32 v{vOA}, s{sT3}, v{vL16}
s_lshr_b32 s{sT2}, s{sW}, 1
s_lshl_b32 s{sT2}, s{sT2}, 12
s_add_u32 s{sT2}, s{sT2}, {20480+obase(0)}
v_add_u32 v{vOB}, s{sT2}, v{vL16}
v_add_u32 v{vDA}, {obase(24)}, v{vL16}
s_add_u32 s{sT2}, s{sM1}, {20480+obase(24)}
v_add_u32 v{vDB}, s{sT2}, v{vL16}
v_lshlrev_b32 v{vL128}, 7, v0
v_bfrev_b32 v38, 1
v_cmp_gt_u32 vcc, 20, v0
v_cndmask_b32 v{vL128}, v38, v{vL128}, vcc
s_and_b32 s{sT2}, s{sMb}, 7
s_lshl2_add_u32 s{sT2}, s{sT2}, s{sW}
s_mul_i32 s{sOffX}, s{sT2}, 2560
s_sub_u32 s{sOffX}, s{sOffX}, s{sM5}
s_add_u32 s{sPf}, s{sOffA}, s{sOffX}
s_add_u32 s{sPf}, s{sPf}, 81920""")
    for k in range(9):
        body = (setup if k == 3 else []) + join_steps(steps[k:k+1] if k < 8 else steps[8:])
        if k == 8:
            body += [I("s_barrier", tag_r="ot0", wr=['stg'], rd=['stg2'], after=48 + 26)] + o_reads(0)
        sch(body, f"p3s{k}", vm_min=2)
        if k == WC and "stagtest" not in KN: blk(poll_cmp(vFl, 4) + poll_branch("w", vFl, vL16, f"s{sT0}", 4))
        if k == OC and "stagtest" not in KN: blk(poll_cmp(vFo2, 1) + poll_branch("o", vFo2, vFa, f"s{sT1}"))
        if "fine" in KN: blk(stamp(14 + k))
    c = stamp(7) + stamp(8)
    if OC == 9:
        c += dmaB(0) + dmaB(1) + dmaB(2)
        c.append(I("s_barrier", tag_r="ot0"))
        c += o_reads(0)
    c += stamp(9)
    blk(c, "o_pro")
    osetup = L(f"""s_lshl_b32 s{sT1}, s{sMb}, 8
s_add_u32 s{sT1}, s{sT1}, {hex(FH)}
v_lshlrev_b32 v{vFa}, 2, v0
s_and_b32 s{sT2}, s{sS}, 1
s_lshl1_add_u32 s{sT2}, s{sNb}, s{sT2}
s_lshr_b32 s{sT3}, s{sS}, 1
s_lshl1_add_u32 s{sOffRo}, s{sT2}, s{sT3}
s_mul_i32 s{sOffRo}, s{sOffRo}, {24*5120}
s_lshl_b32 s{sM3}, s{sW}, 13
s_add_u32 s{sOffRo}, s{sOffRo}, s{sM3}
s_add_u32 s{sOffRo}, s{sOffRo}, {hex(WDP_OFF)}
s_mul_i32 s{sT2}, s{sT2}, 160
s_lshl2_add_u32 s{sOffO}, s{sQd}, s{sW}
s_mul_i32 s{sOffO}, s{sOffO}, {16*1280}
s_add_u32 s{sOffO}, s{sOffO}, s{sT2}
s_mul_i32 s{sT3}, s{sT3}, 24
s_add_u32 s{sT3}, s{sT3}, 192
s_lshl_b32 s{sT3}, s{sT3}, 12
s_add_u32 s{sT3}, s{sT3}, s{sM1}
s_add_u32 s{sT3}, s{sT3}, {hex(OH_OFF)}
s_xor_b32 s{sOffRd}, s{sQd}, 1
s_mul_i32 s{sOffRd}, s{sOffRd}, {240*4096}
s_add_u32 s{sOffRd}, s{sOffRd}, s{sT3}
s_mul_i32 s{sOffG}, s{sQd}, {240*4096}
s_add_u32 s{sOffG}, s{sOffG}, s{sT3}
s_lshl2_add_u32 s{sT0}, s{sMb}, s{sNb}
s_lshl2_add_u32 s{sT3}, s{sT0}, s{sS}
s_lshl2_add_u32 s{sT2}, s{sT3}, s{sW}
s_mul_i32 s{sOffP}, s{sT2}, 10240
s_add_u32 s{sOffP}, s{sOffP}, {hex(PART_OFF)}
s_lshl2_add_u32 s{sFl}, s{sT0}, s{sW}
s_lshl_b32 s{sFl}, s{sFl}, 7
s_lshl2_add_u32 s{sFl}, s{sS}, s{sFl}
s_add_u32 s{sFl}, s{sFl}, {hex(FP)}
v_and_b32 v{vOa}, 15, v0
v_mul_u32_u24 v{vOa}, 1280, v{vOa}
v_lshrrev_b32 v{vPo}, 4, v0
v_lshl_add_u32 v{vOa}, v{vPo}, 3, v{vOa}
v_and_b32 v{vFa2}, 7, v0
v_lshlrev_b32 v{vFa2}, 2, v{vFa2}""") + srd(sOut, pOut, 2048 * 640 * 2) + L(f"""s_lshl_b32 s{sFg}, s{sT3}, 7
s_add_u32 s{sFg}, s{sFg}, {hex(FP)}
s_lshl4_add_u32 s{sT2}, s{sT0}, s{sS}
s_mul_i32 s{sOffK}, s{sT2}, 10240
s_add_u32 s{sOffK}, s{sOffK}, {hex(PART_OFF)}
s_lshl2_add_u32 s{sT2}, s{sT3}, s{sW}
s_mul_i32 s{sOffD}, s{sT2}, 2560
s_add_u32 s{sOffD}, s{sOffD}, {hex(HP_OFF)}
s_xor_b32 s{sT2}, s{sT2}, 8
s_mul_i32 s{sOffDo}, s{sT2}, 2560
s_add_u32 s{sOffDo}, s{sOffDo}, {hex(HP_OFF)}
s_xor_b32 s{sOffDd}, s{sFg}, 0x100
s_lshl2_add_u32 s{sOffDd}, s{sW}, s{sOffDd}
s_add_u32 s{sOffDd}, s{sOffDd}, 16""")
    assert len(osetup) <= 60
    for sg in range(4):
        ex = []
        if sg == 0: ex = dmaB(3) + dmaA(3)
        if sg == 0: ex = ex + HST[:2]
        if sg == 1: ex = HST[2:]
        if sg == 2: ex = L(f"s_mov_b32 s{sOffV}, {hex(FW2)}") + [poll_load(48, vL16, f"s{sOffV}", 4)]
        if sg == 3: ex = ex + L(f"s_add_u32 s{sQg}, s{sQg}, {hex(FH)}")
        pre = L(f"s_lshl_b32 s{sQg}, s{sQg}, 7\ns_lshl2_add_u32 s{sQg}, s{sH}, s{sQg}") if sg == 0 else []
        sch(o_block(sg, ex, pre=pre, mid=osetup[sg * 15:(sg + 1) * 15], exfirst=(sg == 0)), f"o{sg}", vm_min=2)
    base_state = {r: AD[r].base for r in (vOA, vOB)}
    if "fine2" in KN: blk(stamp(14))
    P.block("ol_top", L(f"s_mov_b32 s{sH}, 0") + L(".p2align 6\nL_o:")); P.trace.append(("ol_top", {}))
    lb = []
    NIT = PAR('NIT', 4)
    for q in range(4):
        ex = L(f"s_cmp_eq_u32 s{sH}, {NIT-1}\ns_cselect_b32 s{sT2}, s{sT1}, 0x40000000") + [poll_load(vFl, vFa, f"s{sT2}")] if q == 0 else []
        if q == 1: ex = L(f"s_cmp_eq_u32 s{sH}, 0\ns_cselect_b32 s{sT2}, s{sQg}, 0x40000000") + [set_flag(f"s{sT2}", "Hst")]
        b = o_block(4 + q, ex)
        for x in b:
            for attr in ('tag_r', 'tag_w'):
                t = getattr(x, attr)
                if t is None: continue
                if t == "Hst": continue
                ts = t if isinstance(t, list) else [t]
                setattr(x, attr, (lambda ts: lambda env: [u[:2] + str(int(u[2:]) + 4 * env['it']) for u in ts])(ts))
        if "ohitA" in KN: b = [x for x in b if not x.text.startswith(f"s_add_u32 s{sOffA}, s{sOffA}")]
        if "ohitB" in KN: b = [x for x in b if not x.text.startswith(f"s_add_u32 s{sOffBB}, s{sOffBB}")]
        if "onods" in KN: b = [x for x in b if x.kind != 'ds']
        if "onodma" in KN: b = [x for x in b if not (x.kind == 'vmem' and ' lds' in x.text)]
        if "onobar" in KN: b = [x for x in b if x.kind != 'barrier']
        if "onosc1" in KN:
            for x in b:
                if ' lds' in x.text: x.text = x.text.replace(" sc1", "")
        b = schedule(b, f"ol{q}", verbose=dbg and "v" in KN, vm_min=3)
        if q == 3: b += L(f"s_add_u32 s{sH}, s{sH}, 1\ns_cmp_lt_u32 s{sH}, {NIT}\ns_cbranch_scc1 L_o")
        P.block(f"ol{q}", b)
    assert base_state == {r: AD[r].base for r in (vOA, vOB)}, "loop address state"
    for it in range(NIT): P.trace += [(f"ol{q}", {'it': it}) for q in range(4)]
    if "rewind" in KN:
        pos = sum(isize(x) for b_ in P.blocks for x in b_[1]) * 1.03
        new = int(pos + 1500) // 8192
        if new < cp[0]:
            blk(L(f"s_sub_u32 s62, s62, {(cp[0]-new)*8192}\ns_subb_u32 s63, s63, 0")); cp[0] = new
    if "fine2" in KN: blk(stamp(15))
    blk(poll_cmp(48, 4) + poll_branch("w2", 48, vL16, f"s{sOffV}", 4))
    blk(poll_cmp(vFl, 1) + poll_branch("h", vFl, vFa, f"s{sT1}"))
    dsetup = L(f"""s_lshl_b32 s{sT2}, s{sW}, 11
v_add_u32 v45, s{sT2}, v{vL16}
s_lshr_b32 s{sT2}, s{sW}, 1
s_lshl_b32 s{sT2}, s{sT2}, 10
s_and_b32 s{sT3}, s{sW}, 1
s_lshl3_add_u32 s{sT2}, s{sT3}, s{sT2}
s_add_u32 s{sT2}, s{sT2}, 8192
v_add_u32 v46, s{sT2}, v{vL16}
v_add_u32 v47, {LDS_X}, v{vL16}
v_and_b32 v38, 15, v0
v_mul_u32_u24 v38, 1280, v38
v_bfe_u32 v39, v0, 4, 1
v_lshl_add_u32 v38, v39, 5, v38
v_lshrrev_b32 v39, 5, v0
v_lshl_add_u32 v38, v39, 4, v38
s_cmp_eq_u32 s{sW}, s{sS}
s_cmov_b32 s{sOffP}, 0x40000000""")
    NB1 = [int(x) for x in os.environ.get("NB1", "4,4,5,5").split(",")]
    nb1 = 0
    dsetup += L(f"s_mov_b32 s{sOffBB}, s{sOffG}\nv_lshlrev_b32 v37, 3, v0")
    for sg in range(20, 24):
        ex = [x for k in range(nb1, nb1 + NB1[sg - 20]) for x in d_bload(0, k)]; nb1 += NB1[sg - 20]
        sch(o_block(sg, ex, mid=dsetup if sg == 23 else []), f"o{sg}", vm_min=2)
    blk(stamp(10))
    vQ4, vQ2, vLw, vOw = 45, 46, 47, 38
    def pk(dst, t, j):
        a = vAc + (t * 4 + j) * 4
        return L(f"v_cvt_pk_bf16_f32 v{dst}, v{a}, v{a+1}\nv_cvt_pk_bf16_f32 v{dst+1}, v{a+2}, v{a+3}")
    pkall = []; ps = []; n = 0
    for j in range(4):
        for tp in range(2):
            o = vPk + n * 4
            pkall += pk(o, 2 * tp, j) + pk(o + 2, 2 * tp + 1, j)
            it = [I(f"buffer_store_dwordx4 {vr(o,4)}, v{vL16}, {sr(sWS,4)}, s{sOffP} offen offset:{(n%4)*1024} sc1", tag_w="Pst")]
            n += 1
            if n % 4 == 0: it.append(I(f"s_add_u32 s{sOffP}, s{sOffP}, 4096"))
            ps.append(it)
    for jp in range(2):
        o = vPk + n * 4
        pkall += pk(o, 4, 2 * jp) + pk(o + 2, 4, 2 * jp + 1)
        ps.append([I(f"buffer_store_dwordx4 {vr(o,4)}, v{vL16}, {sr(sWS,4)}, s{sOffP} offen offset:{jp*1024} sc1", tag_w="Pst")])
        n += 1
    own = L(f"s_cmp_lg_u32 s{sW}, s{sS}\ns_cbranch_scc1 L_own")
    for k in range(10):
        x = I(f"ds_write_b128 v{vLw}, {vr(vPk+4*k,4)} offset:{1024*k}"); x.kind = 'wait'; own.append(x)
    x = I("s_waitcnt lgkmcnt(0)"); x.kind = 'label'; own.append(x)
    own += L("L_own:")
    xl = L(f"""s_and_b32 s{sT2}, s{sS}, 1
s_lshl1_add_u32 s{sT2}, s{sNb}, s{sT2}
s_mul_i32 s{sT2}, s{sT2}, 10
s_mul_i32 s{sT3}, s{sQd}, {20*4096}
s_add_u32 s{sT3}, s{sT3}, s{sM1}
s_add_u32 s{sT3}, s{sT3}, {hex(XR_OFF)}
v_bfe_u32 v2, v0, 4, 1
v_lshrrev_b32 v3, 5, v0
v_lshl_add_u32 v4, v2, 1, v3
v_add_u32 v4, s{sT2}, v4
v_and_b32 v5, 15, v0
v_lshlrev_b32 v5, 4, v5
v_lshrrev_b32 v6, 2, v4
v_lshl_add_u32 v6, v6, 12, v5
v_and_b32 v4, 3, v4
v_lshl_add_u32 v6, v4, 8, v6
v_add_u32 v7, 4096, v6
v_add_u32 v4, s{sT2}, v3
v_add_u32 v4, 8, v4
v_lshrrev_b32 v8, 2, v4
v_lshl_add_u32 v8, v8, 12, v5
v_and_b32 v4, 3, v4
v_lshl_add_u32 v8, v4, 8, v8
v_lshl_add_u32 v8, v2, 3, v8
buffer_load_dwordx4 {vr(vXr,4)}, v6, {sr(sWS,4)}, s{sT3} offen sc1
buffer_load_dwordx4 {vr(vXr+4,4)}, v7, {sr(sWS,4)}, s{sT3} offen sc1
buffer_load_dwordx2 {vr(vXr+8,2)}, v8, {sr(sWS,4)}, s{sT3} offen sc1
s_lshl2_add_u32 s{sT2}, s{sQd}, s{sW}
s_lshl_b32 s{sT2}, s{sT2}, 7
s_add_u32 s{sT2}, s{sT2}, {hex(ST_OFF)}
v_lshrrev_b32 v9, 1, v5
buffer_load_dword v10, v9, {sr(sWS,4)}, s{sT2} offen offset:4 sc1""")
    pl = []
    for i in range(1, 4):
        pl += L(f"s_add_u32 s{sT2}, s{sS}, {i}\ns_and_b32 s{sT2}, s{sT2}, 3\ns_mul_i32 s{sT2}, s{sT2}, {4*10240}\ns_add_u32 s{sT2}, s{sT2}, s{sOffK}")
        for tp in range(2): pl.append(I(f"buffer_load_dwordx4 {vr(vPl+i*12+tp*4,4)}, v{vQ4}, {sr(sWS,4)}, s{sT2} offen offset:{1024*tp} sc1"))
        pl.append(I(f"buffer_load_dwordx2 {vr(vPl+i*12+8,2)}, v{vQ2}, {sr(sWS,4)}, s{sT2} offen sc1"))
    ownrd = L(f"""v_add_u32 v{vLw}, {LDS_X}, v{vQ4}
ds_read_b128 {vr(vPl,4)}, v{vLw}
ds_read_b128 {vr(vPl+4,4)}, v{vLw} offset:1024
v_add_u32 v{vLw}, {LDS_X}, v{vQ2}
ds_read_b64 {vr(vPl+8,2)}, v{vLw}""")
    t0 = 112; vSm = 164; vXf = 184
    xun = []
    for tp in range(2):
        for i in range(2): xun.append(I(f"v_permlane16_swap_b32 v{vXr+4*tp+i}, v{vXr+4*tp+2+i}"))
    for k in range(10): xun += L(f"v_lshlrev_b32 v{vXf+2*k}, 16, v{vXr+k}\nv_and_b32 v{vXf+2*k+1}, 0xffff0000, v{vXr+k}")
    k2 = (math.sqrt(192.0) / math.log2(math.e)) ** 2
    xun += L(f"v_mul_f32 v10, v10, v10\nv_mul_f32 v10, {hex(f2u(k2))}, v10\nv_mul_f32 v11, {hex(f2u(-math.log2(math.e)))}, v10")
    own0 = []
    for k in range(10): own0 += L(f"v_lshlrev_b32 v{vSm+2*k}, 16, v{vPl+k}\nv_and_b32 v{vSm+2*k+1}, 0xffff0000, v{vPl+k}\nv_mul_f32 v{vSm+2*k}, v10, v{vSm+2*k}\nv_mul_f32 v{vSm+2*k+1}, v10, v{vSm+2*k+1}")
    psum = []
    for i in range(1, 4):
        for k in range(10):
            s_ = vPl + i * 12 + k; u = 132 + (k % 4) * 2
            psum += L(f"v_lshlrev_b32 v{u}, 16, v{s_}\nv_and_b32 v{u+1}, 0xffff0000, v{s_}\nv_fmac_f32 v{vSm+2*k}, v10, v{u}\nv_fmac_f32 v{vSm+2*k+1}, v10, v{u+1}")
    fin = []
    for t in range(5):
        h = vDc + 4 * t
        for i in range(4): fin += L(f"v_mul_f32 v{t0+4*t+i}, v11, v{h+i}\nv_exp_f32 v{t0+4*t+i}, v{t0+4*t+i}")
        for i in range(4): fin += L(f"v_mul_f32 v{h+i}, v{h+i}, v{vSm+4*t+i}")
        for i in range(4): fin += L(f"v_add_f32 v{t0+4*t+i}, 1.0, v{t0+4*t+i}\nv_rcp_f32 v{t0+4*t+i}, v{t0+4*t+i}")
        for i in range(4): fin.append(I(f"v_fmac_f32 v{vXf+4*t+i}, v{h+i}, v{t0+4*t+i}"))
        for i in range(2): fin.append(I(f"v_cvt_pk_bf16_f32 v{vXr+2*t+i}, v{vXf+4*t+2*i}, v{vXf+4*t+2*i+1}"))
        if t in (1, 3):
            tp = t // 2
            for i in range(2): fin.append(I(f"v_permlane16_swap_b32 v{vXr+4*tp+i}, v{vXr+4*tp+2+i}"))
            fin.append(I(f"buffer_store_dwordx4 {vr(vXr+4*tp,4)}, v{vOw}, {sr(sOut,4)}, s{sOffO} offen offset:{64*tp}"))
    fin.append(I(f"buffer_store_dwordx2 {vr(vXr+8,2)}, v{vOa}, {sr(sOut,4)}, s{sOffO} offen offset:128"))
    flat = lambda l: [x for it in l for x in it]
    hs = []
    for t in range(5):
        for i in range(2): hs.append(I(f"v_cvt_pk_bf16_f32 v{vHp+2*t+i}, v{vDo+4*t+2*i}, v{vDo+4*t+2*i+1}"))
        if t in (1, 3): hs.append(I(f"buffer_store_dwordx4 {vr(vHp+2*t-2,4)}, v{vL16}, {sr(sWS,4)}, s{sOffD} offen offset:{(t//2)*1024} sc1", tag_w="Pst"))
    hs.append(I(f"buffer_store_dwordx2 {vr(vHp+8,2)}, v37, {sr(sWS,4)}, s{sOffD} offen offset:2048 sc1", tag_w="Pst"))
    hl = [I(f"buffer_load_dwordx4 {vr(vHr+4*k,4)}, v{vL16}, {sr(sWS,4)}, s{sOffDo} offen offset:{1024*k} sc1") for k in range(2)]
    hl.append(I(f"buffer_load_dwordx2 {vr(vHr+8,2)}, v37, {sr(sWS,4)}, s{sOffDo} offen offset:2048 sc1"))
    hadd = []
    for k in range(10):
        u = 132 + (k % 4) * 2
        hadd += L(f"v_lshlrev_b32 v{u}, 16, v{vHr+k}\nv_and_b32 v{u+1}, 0xffff0000, v{vHr+k}\nv_add_f32 v{vDc+2*k}, v{vDc+2*k}, v{u}\nv_add_f32 v{vDc+2*k+1}, v{vDc+2*k+1}, v{u+1}")
    f3 = lambda k: blk(stamp(14 + k)) if "fine3" in KN else None
    B1 = [d_bload(0, k) for k in range(nb1, 24)]; B2 = [d_bload(1, k) for k in range(24)]
    psq = [pkall[4 * k:4 * k + 4] + ps[k] for k in range(10)]
    cfg = [[int(y) for y in x.split(".")] for x in os.environ.get("DC", "3.5.0,3.5.0,0.0.9,0.0.9,0.0.6").split(",")]
    def take(c_):
        q = [[B1.pop(0) for _ in range(c_[0])], [psq.pop(0) for _ in range(c_[1])], [B2.pop(0) for _ in range(c_[2])]]
        return flat(merge(q))
    PFG = PAR("PFG", 2)
    owndone = False
    for g in range(4):
        ex = take(cfg[g])
        XE = PAR("XE", 0)
        if XE and g == 3: ex = ex + xl
        if g == PFG: ex = ex + [set_flag(f"s{sFl}", "Pst")]
        sch(d_block(0, g, ex), f"d0{g}", vm_min=1)
        if not psq and not owndone: blk(own); owndone = True; assert g < 2
        f3(g)
    for x in hs:
        if x.tag_w: x.tag_w = "Qst"
    pollP = L(f"v_and_b32 v12, 12, v{vFa2}") + [poll_load(vFl, 12, f"s{sFg}")]
    setH = L(f"s_lshl2_add_u32 s{sT1}, s{sW}, s{sFg}\ns_add_u32 s{sT1}, s{sT1}, 16\nv_mov_b32 v13, 0")
    blk(hs); f3(4)
    PP = PAR("PP", 0)
    PC = PAR("PC", 1)
    QP = PAR("QP", 3)
    chkP = lambda: blk(poll_cmp(vFl, 1) + poll_branch("p", vFl, 12, f"s{sFg}") + pl)
    pq = [poll_load(16, 13, f"s{sT1}")]
    QF = PAR("QF", 1)
    qf = [set_flag(f"s{sOffDd}", "Qst")]
    sch(d_block(1, 0, (pollP if PP == 0 else []) + take(cfg[4]) + ([] if XE else xl) + (qf if QF == 0 else []), ownrd + setH), "d10", vm_min=1); f3(5)
    assert not B1 and not B2 and not psq
    if PC == 0: chkP()
    sch(d_block(1, 1, (qf if QF == 1 else []) + (pollP if PP == 1 else [])), "d11", vm_min=1); f3(6)
    if PC == 1: chkP()
    f3(7)
    PSK = PAR("PSK", 40)
    sch(d_block(1, 2, pq if QP == 2 else [], xun + own0 + (psum[:PSK] if PC == 0 else [])), "d12", vm_min=1); f3(8)
    chkQ = lambda: blk(poll_cmp(16, 1) + poll_branch("q", 16, 13, f"s{sT1}") + hl)
    if QP == 2: chkQ()
    rest = psum[PSK:] if PC == 0 else psum
    PSJ = PAR("PSJ", 0)
    sch(d_block(1, 3, pq if QP == 3 else [], rest[:PSJ]), "d13", vm_min=1); f3(9)
    if QP == 3: chkQ()
    f3(10)
    blk(stamp(11))
    blk(rest[PSJ:] + hadd + fin)
    c = []
    c += stamp_store(13)
    amp = os.environ.get("AMP")
    if amp and STAMPS:
        k1, k2, mult = map(int, amp.split(","))
        first = f"v_readlane_b32 s{sT0}, v{vSt}, {2*k1}" if k1 >= 0 else f"s_mov_b32 s{sT0}, s{sNonce}"
        c += L(f"""{first}
v_readlane_b32 s{sT1}, v{vSt}, {2*k2}
v_readlane_b32 s{sT2}, v{vSt}, 26
s_nop 4
s_sub_u32 s{sT0}, s{sT1}, s{sT0}
s_mul_i32 s{sT0}, s{sT0}, {mult}
s_min_u32 s{sT0}, s{sT0}, 100000
L_amp:
s_memrealtime s[{sSt}:{sSt+1}]
s_waitcnt lgkmcnt(0)
s_sub_u32 s{sT1}, s{sSt}, s{sT2}
s_cmp_lt_u32 s{sT1}, s{sT0}
s_cbranch_scc1 L_amp""")
    c += L("L_end:\ns_endpgm")
    blk(c, "fin")
    for nm, ins in OUTL: P.block(nm, ins)
    P.insert_waits()
    n = P.fix_hazards(verbose=False)
    if dbg:
        tot, per = P.estimate()
        agg = {}
        for k, v in per.items():
            kk = k.rstrip('0123456789') if k[0] in 'od' or k.startswith('p1_') or k.startswith('p2_') else k
            agg[kk] = agg.get(kk, 0) + v
        print("; estimate", tot, agg, "pads", n)
    return P.text() + "\n" + gen_fallback()

def build(path, dbg=False):
    body = gen(dbg)
    body = "\n".join(l.strip() for l in body.split("\n"))
    txt = f"""; @launch grid=(256,1,1) block=(256,1,1) lds={LDS_TOTAL}
.amdgcn_target "amdgcn-amd-amdhsa--gfx950"
.text
.globl {KNAME}
.p2align 8
.type {KNAME},@function
{KNAME}:
L_code_begin:
{body}
L_code_end:
.set CODE_SLICES, (L_code_end-L_code_begin+8191)/8192
.fill 2112, 4, 0xbf800000
s_endpgm
.section .rodata,"a"
.p2align 6
.amdhsa_kernel {KNAME}
  .amdhsa_next_free_vgpr 512
  .amdhsa_next_free_sgpr 102
  .amdhsa_accum_offset 256
  .amdhsa_group_segment_fixed_size 0
  .amdhsa_kernarg_size 96
  .amdhsa_user_sgpr_count 2
  .amdhsa_user_sgpr_kernarg_segment_ptr 1
  .amdhsa_system_sgpr_workgroup_id_x 1
  .amdhsa_float_denorm_mode_32 3
.end_amdhsa_kernel
"""
    open(path, "w").write(txt)

if __name__ == "__main__":
    if "--stamps" in sys.argv:
        STAMPS = True; sys.argv.remove("--stamps")
    build(sys.argv[1], dbg=True)
```

```python
import sys, math, struct, os
from asmlib import *
KN = set(os.environ.get("KN", "").split(","))
def PAR(name, default): return type(default)(os.environ.get(name, default))
NAME = "recurrent_scan__sliding_block_cached__glu_gated_bilinear__prompt"
KNAME = NAME + "_kernel"
XN_OFF = 0; OH_OFF = 0x400000; GP_OFF = 0x2200000; WOP_OFF = 0x2600000; WDP_OFF = 0x2E00000; PART_OFF = 0x3000000
FL_OFF = 0x3A00000
FXN = FL_OFF; FO = FL_OFF + 0x8000; FH = FL_OFF + 0x10000; FP = FL_OFF + 0x18000; FG = FL_OFF + 0x20000; FW = FL_OFF + 0x21000; FW2 = FL_OFF + 0x22000; ST_OFF = FL_OFF + 0x30000
XR_OFF = 0x3B00000; HP_OFF = 0x3E00000
WS_SIZE = 0x4100000
STAMP_OFF = 0x8000000
SLOT = 28672; SL2 = 36864
LDS_X = 147456
LDS_TOTAL = 163840
STAMPS = False
SPIN_MAX = 200000
def sbase(st):
    if st < 10: return ((3, 4) if (st // 2) % 2 == 0 else (1, 2))[st % 2] * SLOT
    if st <= 28: return (st % 5) * SLOT
    return {29: 0, 30: 110592, 31: 135168}[st]
OPERM = [1, 2, 0, 3]
def obase(sg): return OPERM[sg % 4] * SL2

def f2u(x): return struct.unpack('<I', struct.pack('<f', x))[0]
def vr(a, n): return f"v[{a}:{a+n-1}]" if n > 1 else f"v{a}"
def ar(a, n): return f"a[{a}:{a+n-1}]" if n > 1 else f"a{a}"
def sr(a, n): return f"s[{a}:{a+n-1}]" if n > 1 else f"s{a}"
def rr(x, n=4): return vr(x[1], n) if x[0] == 'v' else ar(x[1], n)
def L(txt): return [I(t) for t in txt.strip().split("\n") if t.strip()]
def mfma(d, a, b, c): return I(f"v_mfma_f32_16x16x32_bf16 {d}, {a}, {b}, {c}")

sWq, sK, sWS, sR = 4, 8, 12, 16
(sOffX, sOffY, sOffK, sOffV, sM6, sM3, sM1, sOffB, sH, sB, sW, sT0, sT1, sT2, sOffO, sScale,
 sOffG, sOffH0, sOffH1, sOffH2, sNonce, sOffR, sOffD, sOffRo, sOffRd, sOffDo, sOffDd,
 sS, sMb, sNb, sFl, sSpin, sT3, sOffP, sQg, sFg, sOffA, sOffBB, sM5, sM4, sPf, sQd) = range(20, 62)
sOffH = sOffH0
pX, pK, pV, pWq, pWo, pBx, pWg, pWu, pWd, pOut, pDbg, pWs = range(64, 88, 2)
sSt = 88; sV = 92; sXin = 96
sOut = sWq
vL16 = 1; vWo = 2; vKo = 5; vVo = 8; vRo = 11; vRo2 = 12; vL128 = 13; vFo = 14; vNon = 15
vRa = 16; vWa = 17; vKa = 19; vVa = 21; vGa = 25
vLs = 26; vT = 36; vSt = 31; vNm = 32; vTmp = 48
vAcc = 64; vQ = 64
vS01 = 160; vS23 = 176; vP01 = 208; vP23 = 224; vVs = 232
aK = 192; aR = 240; aA1 = 128; aDum = 255; aCs = 160
vOne = 48; vSta = 40; vCsT = 52; vXo = 44; vXo2 = 46; vSo = 32; vPa = 42; vPd = 43
vDum = 30
NSLICE = 10

class Addr:
    def __init__(self, reg, base): self.reg = reg; self.base = base
    def use(self, base, off):
        pre = []
        d = base + off - self.base
        if not (0 <= d < 65536):
            pre = [I(f"v_add_u32 v{self.reg}, {hex((base - self.base) & 0xffffffff)}, v{self.reg}")]
            self.base = base; d = off
        return pre, d
AD = {}
def dsr(op, dst, reg, base, off, **kw):
    pre, d = AD[reg].use(base, off)
    return pre + [I(f"{op} {dst}, v{reg} offset:{d}", **kw)]

def srd(d, base, size):
    return [I(f"s_mov_b32 s{d}, s{base}"), I(f"s_mov_b32 s{d+1}, s{base+1}"), I(f"s_mov_b32 s{d+2}, {hex(size)}"), I(f"s_mov_b32 s{d+3}, 0x20000")]
def xreduce(v, t, op):
    return L(f"""v_mov_b32 v{t}, v{v}
v_permlane16_swap_b32 v{v}, v{t}
{op} v{v}, v{v}, v{t}
v_mov_b32 v{t}, v{v}
v_permlane32_swap_b32 v{v}, v{t}
{op} v{v}, v{v}, v{t}""")
def divmod_const(q, r, src, c):
    magic = (65536 + c - 1) // c
    for x in range(1400): assert (x * magic) >> 16 == x // c
    return L(f"v_mul_u32_u24 v{q}, {magic}, v{src}\nv_lshrrev_b32 v{q}, 16, v{q}\nv_mul_u32_u24 v{r}, {c}, v{q}\nv_sub_u32 v{r}, v{src}, v{r}")
def sdivmod(q, r, src, c):
    magic = (65536 + c - 1) // c
    for x in range(1400): assert (x * magic) >> 16 == x // c
    return L(f"s_mul_i32 s{q}, s{src}, {magic}\ns_lshr_b32 s{q}, s{q}, 16\ns_mul_i32 s{r}, s{q}, {c}\ns_sub_u32 s{r}, s{src}, s{r}")

def stamp(k):
    if not STAMPS: return []
    return L(f"""s_memrealtime s[{sSt}:{sSt+1}]
s_memtime s[{sSt+2}:{sSt+3}]
s_waitcnt lgkmcnt(0)
v_writelane_b32 v{vSt}, s{sSt}, {2*k}
v_writelane_b32 v{vSt}, s{sSt+2}, {2*k+1}""")
def stamp_store(n):
    if not STAMPS: return []
    return stamp(n - 1) + L("s_waitcnt vmcnt(0)") + stamp(n) + L(f"""s_add_u32 s{sK}, s{pWs}, {hex(STAMP_OFF)}
s_addc_u32 s{sK+1}, s{pWs+1}, 0
s_mov_b32 s{sK+2}, {1024*256}
s_mov_b32 s{sK+3}, 0x20000
s_lshl2_add_u32 s{sT0}, s2, s{sW}
s_lshl_b32 s{sT0}, s{sT0}, 8
v_lshlrev_b32 v2, 2, v0
buffer_store_dword v{vSt}, v2, {sr(sK,4)}, s{sT0} offen""")

OUTL = []
def poll_load(dst, vaddr, soff, n=1, **kw):
    op = "buffer_load_dword" if n == 1 else "buffer_load_dwordx4"
    return I(f"{op} {vr(dst,n)}, v{vaddr}, {sr(sWS,4)}, {soff} offen sc1", **kw)
def poll_cmp(dst, n):
    if n == 1: return L(f"v_cmp_ne_u32 vcc, s{sNonce}, v{dst}")
    return L(f"""v_xor_b32 v{dst}, s{sNonce}, v{dst}
v_xor_b32 v{dst+1}, s{sNonce}, v{dst+1}
v_xor_b32 v{dst+2}, s{sNonce}, v{dst+2}
v_xor_b32 v{dst+3}, s{sNonce}, v{dst+3}
v_or3_b32 v{dst}, v{dst}, v{dst+1}, v{dst+2}
v_or_b32 v{dst}, v{dst}, v{dst+3}
v_cmp_ne_u32 vcc, 0, v{dst}""")
def poll_branch(name, dst, vaddr, soff, n=1):
    o = L(f"L_spin_{name}:\ns_mov_b32 s{sSpin}, {SPIN_MAX}\nL_spin2_{name}:")
    o += [poll_load(dst, vaddr, soff, n)] + L("s_waitcnt vmcnt(0)") + poll_cmp(dst, n)
    o += L(f"""s_nop 4
s_cbranch_vccz L_back_{name}
s_sleep 1
s_sub_u32 s{sSpin}, s{sSpin}, 1
s_cmp_lg_u32 s{sSpin}, 0
s_cbranch_scc1 L_spin2_{name}
s_branch L_back_{name}""")
    OUTL.append((f"spin_{name}", o))
    return L(f"s_cbranch_vccnz L_spin_{name}\nL_back_{name}:")
def late(lst, g):
    for x in lst: x.after = g
    return lst
def set_flag(soff, tag, **kw):
    return I(f"buffer_store_dword v{vNon}, v{vFo}, {sr(sWS,4)}, {soff} offen sc1", tag_r=tag, **kw)

RF = os.environ.get("RF", ""); WQF = os.environ.get("WQF", "")
KVF = os.environ.get("KVF", "")
def grp3(st, srdn, vo, so, mreg, moff, inc, flags=""):
    r = [I(f"s_add_u32 m0, s{mreg}, {sbase(st)+moff}")]
    for n in range(3):
        v = vo + n if vo != vL16 else vL16
        r.append(I(f"buffer_load_dwordx4 v{v}, {sr(srdn,4)}, s{so} offen offset:{1024*n} {flags} lds", tag_w=f"st{st}", rd=['stg']))
    if inc: r.append(I(f"s_add_u32 s{so}, s{so}, {inc}"))
    return r
def dma_stage(st):
    r = []
    if st <= 9:
        r += grp3(st, sWq, vWo, sOffX, sM6, 0, 16 * 12288, WQF) + grp3(st, sWq, vWo, sOffX, sM6, 3072, 48 * 12288, WQF)
    elif st <= 26:
        t = st - 10
        if t <= 15: r += grp3(st, sK, vKo, sOffK, sM3, 0, 12288, KVF)
        if t >= 1: r += grp3(st, sV, vVo, sOffV, sM3, 12288, 12288, KVF)
        u = st - 12
        if 0 <= u < 14:
            if u == 4: r += srd(sR, pWo, 6144 * 640 * 2)[:3] + L(f"s_mov_b32 s{sOffR}, s{sOffRo}")
            if u == 12: r += srd(sR, pWd, 1536 * 640 * 2)[:3] + L(f"s_mov_b32 s{sOffR}, s{sOffRd}")
            r.append(I(f"s_add_u32 m0, s{sM1}, {sbase(st)+24576}"))
            r.append(I(f"buffer_load_dwordx4 v{vRo if u < 4 else vRo2}, {sr(sR,4)}, s{sOffR} offen {RF} lds", tag_w=f"st{st}", rd=['stg']))
            r.append(I(f"s_add_u32 s{sOffR}, s{sOffR}, {32*3072 if u < 4 else 32*1280}"))
    else:
        r += grp3(st, sWS, vL16, sOffG, sM6, 0, 3072, "sc1") + grp3(st, sWS, vL16, sOffG, sM6, 3072, 24576 - 3072, "sc1")
    return r
def pace(lst, lo, hi):
    vm = [x for x in lst if x.kind == 'vmem']
    for k, x in enumerate(vm): x.after = int(lo + k * (hi - lo) / len(vm))
    return lst
def barrier(tag, after=None): return I("s_barrier", tag_r=tag, wr=['stg'], after=after)

def acc1(T, j): return vAcc + ((T // 2) * 4 + j) * 8 + (T % 2) * 4
def w_reads(k, T):
    slot = aA1 + (T % 2) * 16
    p, t = T // 2, T % 2
    r = []
    for ks in range(4):
        for u in range(2): r += dsr("ds_read_b64_tr_b16", ar(slot + ks * 4 + u * 2, 2), vWa + p % 2, sbase(2 * k), (ks // 2) * SLOT + (ks % 2) * 12288 + u * 6144 + (p // 2) * 128 + 8 * t, rd=['stg'], tag_w=f"wr{k}")
    return r
def b_loads(base):
    r = []
    for u in range(2):
        for j in range(4):
            r.append(I(f"buffer_load_dwordx4 {rr((base[0], base[1]+(u*4+j)*4))}, v{vL16}, {sr(sWS,4)}, s{sOffB} offen offset:{1024*j} sc1"))
        r.append(I(f"s_add_u32 s{sOffB}, s{sOffB}, 4096"))
    return r
def k_reads(st, kt):
    r = []
    for s in range(6): r += dsr("ds_read_b128", ar(aK + kt * 24 + s * 4, 4), vKa + s % 2, sbase(st), kt * 6144 + (s // 2) * 128, rd=['stg'])
    return r
def v_reads(st, T):
    r = []
    for u in range(2): r += dsr("ds_read_b64_tr_b16", vr(vVs + (T % 6) * 4 + u * 2, 2), vVa + T % 4, sbase(st), 12288 + u * 6144 + (T // 4) * 128, rd=['stg'], tag_w=f"vr{st}")
    return r
def prefetch(srdn, soff, flags=""):
    x = I(f"buffer_load_dword v{vDum}, v{vL128}, {sr(srdn,4)}, {soff} offen {flags}"); x.writes = set(); return x

def csreg(T): return aCs + T * 4
def p1_quad(k, T0=0, T1=12, vm=(), vmspan=None, extra=()):
    last = k == 4
    per = 20 if k == 0 else 16
    n = (T1 - T0) * per
    s = []
    vm = list(vm)
    if any(x.kind == 'vmem' for x in vm): pace(vm, *(vmspan or (1, n - 20)))
    s += vm + list(extra)
    for T in range(T0, T1):
        if T + 1 < 12: s += w_reads(k, T + 1)
        else:
            s.append(barrier([f"st{2*k+2}", f"wr{k}"] + ([f"st{2*k+3}"] if not last else []), after=n - per - 1))
            s += w_reads(k + 1, 0) if not last else k_reads(10, 0)
        slot = aA1 + (T % 2) * 16
        for j in range(4):
            d = vr(acc1(T, j), 4)
            for ks in range(4):
                s.append(mfma(d, ar(slot + ks * 4, 4), ar(64 * (k % 2) + (ks * 4 + j) * 4, 4), "0" if (k == 0 and ks == 0) else d))
        if k == 0:
            d = ar(csreg(T), 4)
            for ks in range(4): s.append(mfma(d, ar(slot + ks * 4, 4), vr(vOne, 4), d if ks else "0"))
        if k in (2, 3) and T % 2 == k - 2:
            t = vCsT + ((T // 2) % 2) * 4
            for i in range(4): s.append(I(f"v_accvgpr_read_b32 v{t+i}, a{csreg(T)+i}"))
            for j in range(4):
                for i in range(4): s.append(I(f"v_fmac_f32 v{acc1(T,j)+i}, v{t+i}, v{vSta+2*j}"))
        if last and T % 2 == 1:
            p = T // 2
            for j in range(4):
                a = acc1(2 * p, j); q = vQ + (p * 4 + j) * 4
                for i in range(8): s.append(I(f"v_mul_f32 v{a+i}, v{vSta+2*j+1}, v{a+i}"))
                for i in range(4): s.append(I(f"v_cvt_pk_bf16_f32 v{q+i}, v{a+2*i}, v{a+2*i+1}"))
    return s
def w_reads0(n):
    h, T = n // 12, n % 12
    slot = aA1 + (n % 4) * 8
    p, t = T // 2, T % 2
    r = []
    for ks in range(2):
        for u in range(2): r += dsr("ds_read_b64_tr_b16", ar(slot + ks * 4 + u * 2, 2), vWa + p % 2, sbase(0), h * SLOT + ks * 12288 + u * 6144 + (p // 2) * 128 + 8 * t, rd=['stg'], tag_w="wr0")
    return r
def raw_reads(h):
    return [I(f"ds_read_b128 {ar(((2*h+ks)*4+j)*4,4)}, v{(vXo if h == 0 else vXo2) + ks} offset:{j*2048}", tag_r=f"raw{h}", tag_w=f"rawrd{h}") for j in range(4) for ks in range(2)]
def p1_first(n0, n1, extra=()):
    s = list(extra)
    for n in range(n0, n1):
        h, T = n // 12, n % 12
        if n == 8: s += late(raw_reads(1), (8 - n0) * 10)
        if n == 10: s.append(barrier(["st1"], after=(10 - n0) * 10 - 4))
        if n + 2 < 24: s += w_reads0(n + 2)
        elif n == 23:
            s.append(barrier(["st2", "st3", "wr0"], after=(22 - n0) * 10))
            s += w_reads(1, 0)
        slot = aA1 + (n % 4) * 8
        for j in range(4):
            d = vr(acc1(T, j), 4)
            for ks in range(2): s.append(mfma(d, ar(slot + ks * 4, 4), ar(((2 * h + ks) * 4 + j) * 4, 4), "0" if (h == 0 and ks == 0) else d))
        d = ar(csreg(T), 4)
        for ks in range(2): s.append(mfma(d, ar(slot + ks * 4, 4), vr(vOne, 4), "0" if (h == 0 and ks == 0) else d))
    return s
def stat_loads():
    return [I(f"buffer_load_dwordx2 {vr(vSta+2*j,2)}, v{vSo}, {sr(sWS,4)}, s{sScale} offen offset:{128*j} sc1") for j in range(4)]

def Sreg(kt, j, t):
    if j < 2: return (vTmp if t == 0 else vS01) + (j * 2 + kt) * 4
    return vS23 + (t % 2) * 16 + ((j - 2) * 2 + kt) * 4
def Preg(j, t):
    if j < 2: return vP01 + (t % 2) * 8 + j * 4
    return (vTmp + 8 if t == 15 else vP23) + (j - 2) * 4
def qk(kt, t):
    s = []
    for j in range(4):
        d = vr(Sreg(kt, j, t), 4)
        for p in range(6):
            c = d if p else ("0" if (t == 0 and kt == 0) else vr(vNm + 4 * j, 4))
            s.append(mfma(d, ar(aK + kt * 24 + p * 4, 4), vr(vQ + (p * 4 + j) * 4, 4), c))
    return s
def softmax(j, t):
    s = []
    for kt in range(2):
        a = Sreg(kt, j, t)
        for i in range(4): s.append(I(f"v_exp_f32 v{a+i}, v{a+i}"))
        for i in range(4): s.append(I(f"v_add_f32 v{vLs+j}, v{vLs+j}, v{a+i}"))
        for i in range(2): s.append(I(f"v_cvt_pk_bf16_f32 v{Preg(j,t)+kt*2+i}, v{a+2*i}, v{a+2*i+1}"))
    return s
def pv_T(T, t):
    s = []
    for j in range(4):
        d = ar((T * 4 + j) * 4, 4)
        s.append(mfma(d, vr(vVs + (T % 6) * 4, 4), vr(Preg(j, t), 4), "0" if t == 0 else d))
    return s

HALFB = 'halfb' in KN
def p2_iter(t, base=0, extra=(), post=(), btag=()):
    st = 11 + t
    s = []
    s += k_reads(st, 1)
    u = st - 12
    if u >= 0:
        for h in range(2): s += dsr("ds_read_b64_tr_b16", ar(aR + 2 * h, 2), vRa, sbase(st), 24576 + 2048 * h, rd=['stg'])
    s += pace(dma_stage(st + 3) + list(extra), base + 4, base + (PAR("HP", 50) if (HALFB and t % 2) else 68))
    if t > 0: s += softmax(2, t) + softmax(3, t)
    s += qk(0, t + 1) + qk(1, t + 1)
    for T in range(6): s += v_reads(st, T)
    s += softmax(0, t + 1) + softmax(1, t + 1)
    if t == 14: s += softmax(2, 15) + softmax(3, 15)
    for T in range(12):
        s += pv_T(T, t)
        if T < 6: s += v_reads(st, T + 6)
        if T == 5:
            if not HALFB: s.append(barrier([f"st{st+1}"] + list(btag), after=base + 70))
            elif t % 2 == 0: s.append(barrier([f"st{st+1}", f"st{st+2}", f"vr{st}"] + list(btag), after=base + PAR("HB", 78)))
            else: assert not btag
            if t < 14: s += late(k_reads(st + 1, 0), base + 60) if (HALFB and t % 2) else k_reads(st + 1, 0)
            if u >= 0:
                if u == 4: s += L(f"s_mov_b32 s{sOffD}, s{sOffDo}")
                if u == 12: s += L(f"s_mov_b32 s{sOffD}, s{sOffDd}")
                s.append(I(f"buffer_store_dwordx4 {ar(aR,4)}, v{vL16}, {sr(sWS,4)}, s{sOffD} offen sc1", after=base + 80, tag_w="Gst" if u < 4 else "Wst" if u < 12 else "Dst"))
                s.append(I(f"s_add_u32 s{sOffD}, s{sOffD}, {6144 if u < 4 else 10240 if u < 12 else 5120}"))
        if t == 14 and T >= 6: s += v_reads(st + 1, T - 6)
    s += list(post)
    return s

def first_tile(base):
    s = []
    s += k_reads(10, 1)
    s += pace(dma_stage(13), base + 2, base + 30)
    s += qk(0, 0)
    for j in range(4):
        a = Sreg(0, j, 0); m = vNm + 4 * j; t = m + 1
        s += L(f"v_max3_f32 v{m}, v{a}, v{a+1}, v{a+2}\nv_max_f32 v{m}, v{m}, v{a+3}")
        s += xreduce(m, t, "v_max_f32")
        s += L(f"v_sub_f32 v{m+1}, 0, v{m}\nv_sub_f32 v{m+2}, 0, v{m}\nv_sub_f32 v{m+3}, 0, v{m}\nv_sub_f32 v{m}, 0, v{m}")
        for i in range(4): s.append(I(f"v_add_f32 v{a+i}, v{a+i}, v{m}"))
    s.append(barrier("st11", after=base + 28))
    s += k_reads(11, 0)
    s += qk(1, 0)
    for j in range(4): s += softmax(j, 0)
    return s

vGA = 160; vOP = 184
BBUF = [('a', 192), ('a', 224), ('v', 208), ('a', 0)]
def g_reads(n, tagr='stg', pos=None):
    ds, grp = n // 6, n % 6
    slot = vGA + ((n if pos is None else pos) % 3) * 8
    r = []
    for ks in range(2): r += dsr("ds_read_b128", vr(slot + ks * 4, 4), vGa, sbase(27 + ds // 2), (((ds % 2) * 2 + ks) * 6 + grp) * 1024, rd=[tagr])
    return r
def acc3(grp, j): return vAcc + (grp * 4 + j) * 4

def tail_pv(base):
    s = L(f"s_sub_u32 s{sOffB}, s{sOffB}, {20*4096}")
    wf = set_flag(f"s{sFg}", None, rd=['stg'])
    s += pace([wf] + L(f"s_add_u32 s{sFg}, s{sFg}, {FW2-FW}") + b_loads(BBUF[0]), base - 11, base + 22)
    for T in range(12):
        s += pv_T(T, 15)
        if T < 6: s += v_reads(26, T + 6)
        if T == 5:
            if not HALFB: s.append(barrier("st27", after=base + 24))
            s += g_reads(0) + g_reads(1)
            s += pace(b_loads(BBUF[1]), base + 22, base + 48)
    for j in range(4): s += xreduce(vLs + j, vTmp + j, "v_add_f32")
    s += L(f"""v_add_f32 v{vTmp}, v{vLs}, v{vLs+1}
v_add_f32 v{vTmp+1}, v{vLs+2}, v{vLs+3}
v_add_f32 v{vTmp}, v{vTmp}, v{vTmp+1}
v_cmp_ngt_f32 vcc, {hex(f2u(2.0**40))}, v{vTmp}""")
    for j in range(4): s.append(I(f"v_rcp_f32 v{vLs+j}, v{vLs+j}"))
    return s

def split(lst):
    ch = []; cur = []
    for x in lst:
        cur.append(x)
        if x.kind == 'vmem': ch.append(cur); cur = []
    if cur: ch[-1] += cur
    return ch
def merge(qs):
    qs = [list(q) for q in qs]
    w = [len(q) for q in qs]; tot = sum(w); acc = [0.0] * len(qs); seq = []
    for k in range(tot):
        for z in range(len(qs)): acc[z] += w[z]
        z = max((z for z in range(len(qs)) if qs[z]), key=lambda z: acc[z])
        acc[z] -= tot; seq.append(qs[z].pop(0))
    return seq

vOA = 32; vOB = 33; vDA = 34; vDB = 35
vOa = 40; vPo = 41; vFa = 42; vFa2 = 43; vFl = 44
vAc = 64; vDc = 144; vPk = 164; vXr = 204; vPl = 64
def fA(e, t, ks): return e * 72 + (t * 2 + ks) * 4
def fB(e, j, ks): return 40 + e * 72 + (ks * 4 + j) * 4
def dA(e, n): return (144 if e == 0 else 0) + n * 4
def dB(e, ks): return (144 if e == 0 else 0) + 80 + ks * 4
def dmaA(sg, rd='stg'):
    r = []
    if sg == 24: r += L(f"s_mov_b32 s{sOffA}, s{sOffRo}")
    r.append(I(f"s_add_u32 m0, s{sM5}, {obase(sg)}"))
    for n in range(5):
        if n == 4: r += L(f"s_add_u32 m0, s{sM5}, {obase(sg)+4096}\ns_add_u32 s{sOffA}, s{sOffA}, 4096")
        r.append(I(f"buffer_load_dwordx4 v{vL16}, {sr(sWS,4)}, s{sOffA} offen offset:{1024*(n%4)} sc1 lds", tag_w=f"ot{sg}", rd=[rd]))
    r.append(I(f"s_add_u32 s{sOffA}, s{sOffA}, {20480-4096}"))
    return r
def dmaB(sg, rd='stg'):
    r = []
    if sg == 24: r += L(f"s_mov_b32 s{sOffBB}, s{sOffRd}")
    r.append(I(f"s_add_u32 m0, s{sM4}, {obase(sg)+20480}"))
    for n in range(4):
        r.append(I(f"buffer_load_dwordx4 v{vL16}, {sr(sWS,4)}, s{sOffBB} offen offset:{1024*n} sc1 lds", tag_w=f"ot{sg}", rd=[rd]))
    r.append(I(f"s_add_u32 s{sOffBB}, s{sOffBB}, {8192 if sg < 24 else 16384}"))
    return r
def apf():
    if "apf" not in KN: return []
    return [prefetch(sWS, f"s{sPf}", "sc1")] + L(f"s_add_u32 s{sPf}, s{sPf}, 81920")
def o_reads(sg):
    e = sg % 2; kw = dict(rd=['stg'], tag_w=f"rd{sg}")
    r = []
    if sg < 24:
        for ks in range(2): r += dsr("ds_read_b128", ar(fA(e, 0, ks), 4), vOA, obase(sg), ks * 10240, **kw)
        for j in range(4):
            for ks in range(2): r += dsr("ds_read_b128", ar(fB(e, j, ks), 4), vOB, obase(sg), ks * 8192 + j * 1024, **kw)
        for t in range(1, 5):
            for ks in range(2): r += dsr("ds_read_b128", ar(fA(e, t, ks), 4), vOA, obase(sg), (ks * 10 + t) * 1024, **kw)
    else:
        for ks in range(4): r += dsr("ds_read_b128", ar(dB(e, ks), 4), vDB, obase(sg), ks * 4096, **kw)
        for T in range(5):
            for ks in range(4): r += dsr("ds_read_b128", ar(dA(e, ks * 5 + T), 4), vDA, obase(sg), (ks * 5 + T) * 1024, **kw)
    return r
def dmaD(g):
    r = []
    for h in range(2):
        r.append(I(f"s_add_u32 m0, s{sM3}, {obase(24+g)+4096*h}"))
        for n in range(4): r.append(I(f"buffer_load_dwordx4 v{vL16}, {sr(sWS,4)}, s{sOffRo} offen offset:{1024*n} sc1 lds", tag_w=f"ot{24+g}", rd=['stg']))
        r.append(I(f"s_add_u32 s{sOffRo}, s{sOffRo}, {4096 if h == 0 else 30720-4096}"))
    return r
DRING = [240, 244, 248, 252] + list(range(96, 144, 4))
vDo = 216; vHp = 236; vHr = 246
def dBreg(p, k): return (144 if p == 0 else 0) + 4 * k
def d_bload(p, k):
    so = sOffRd if p == 0 else sOffBB
    return [I(f"buffer_load_dwordx4 {ar(dBreg(p,k),4)}, v{vL16}, {sr(sWS,4)}, s{so} offen sc1"), I(f"s_add_u32 s{so}, s{so}, 4096")]
def d_read(n):
    g, T, k = (n % 120) // 30, (n % 30) // 6, n % 6
    return dsr("ds_read_b128", ar(DRING[n % 16], 4), vDA, obase(24 + g), (k * 5 + T) * 1024, rd=['stg'])
DLA = 12
def d_block(p, g, extra=(), post=()):
    s = list(extra)
    if any(x.kind == 'vmem' for x in s): pace(s, 0, 29)
    acc = vDo if p == 0 else vDc
    for i in range(30):
        n = p * 120 + g * 30 + i
        first = 4 if n == 0 else n + DLA
        for m in range(first, n + DLA + 1):
            if m < 240:
                if m < 120 and m % 30 == 0: s.append(I("s_barrier", tag_r=[f"ot{24+m//30}"], wr=['stg']))
                s += d_read(m)
        T, k = i // 6, i % 6
        d = vr(acc + 4 * T, 4)
        s.append(mfma(d, ar(DRING[n % 16], 4), ar(dBreg(p, g * 6 + k), 4), "0" if (g == 0 and k == 0) else d))
    return s + list(post)
def o_block(sg, extra=(), pre=(), mid=(), exfirst=False):
    e = sg % 2
    s = list(pre)
    s += [I("s_barrier", tag_r=[f"ot{sg+1}", f"rd{sg}"], wr=['stg'], after=2)]
    if sg < 23: s += o_reads(sg + 1)
    else:
        for m in range(4): s += d_read(m)
    db = dmaB(sg + 4) + dmaA(sg + 4) if sg < 20 else dmaD(sg - 20)
    vm = split(db[:2] + list(mid) + db[2:])
    ex = split(list(extra)) if any(x.kind == 'vmem' for x in extra) else []
    if exfirst: seq = list(extra) + [x for ch in vm for x in ch]
    else: seq = [x for ch in merge([vm, ex]) for x in ch] if ex else [x for ch in vm for x in ch] + list(extra)
    pace(seq, 3, 40)
    s += seq
    for t in range(5):
        for j in range(4):
            for ks in range(2):
                d = vr(vAc + (t * 4 + j) * 4, 4)
                s.append(mfma(d, ar(fA(e, t, ks), 4), ar(fB(e, j, ks), 4), "0" if (sg == 0 and ks == 0) else d))
    return s

OF = PAR('OF', 4); OC = PAR('OC', 7); WC = PAR('WC', 5)
vFo2 = 37
vHs = 48
def p3_steps():
    oe = []
    n = 0
    for p in range(6):
        for j in range(4):
            t = vTmp + (n % 2) * 8; o = vOP + (n % 6) * 4
            it = []
            for tt in range(2):
                for i in range(4): it.append(I(f"v_accvgpr_read_b32 v{t+tt*4+i}, a{((2*p+tt)*4+j)*4+i}"))
            for i in range(8): it.append(I(f"v_mul_f32 v{t+i}, v{t+i}, v{vLs+j}"))
            for i in range(4): it.append(I(f"v_cvt_pk_bf16_f32 v{o+i}, v{t+2*i}, v{t+2*i+1}"))
            it.append(I(f"buffer_store_dwordx4 {vr(o,4)}, v{vL16}, {sr(sWS,4)}, s{sOffO} offen offset:{1024*j} sc1", tag_w="Ost"))
            if j == 3: it.append(I(f"s_add_u32 s{sOffO}, s{sOffO}, 4096"))
            oe.append(it); n += 1
    nst = [int(x) for x in os.environ.get("NST", "6,6,6,6,0,0,0,0,0,0").split(",")]
    g29, g30, g31 = split(dma_stage(29)), split(dma_stage(30)), split(dma_stage(31))
    dm = {0: g29[:3], 1: g29[3:], 2: g30[:3], 3: g30[3:], 4: g31[:3], 5: g31[3:]}
    a0, a1, a2 = [split(dmaA(k, 'x')) for k in range(3)]
    b0, b1, b2 = [split(dmaB(k, 'x')) for k in range(3)]
    assert WC <= 5 and OC == 7
    dm[6] = a0; dm[7] = a1; dm[8] = b0 + b1 + a2[:2]; dm[9] = a2[2:] + b2
    allb = [c for d in range(2, 10) for c in split(b_loads(BBUF[d % 4]))]
    cnt = [int(x) for x in os.environ.get("NB", "8,8,8,8,9,9,8,6,0,0").split(",")]
    BQ = []
    for k in cnt: BQ.append(allb[:k]); allb = allb[k:]
    assert not allb
    steps = []
    for ds in range(10):
        s = []
        take = BQ[ds]
        st = [oe.pop(0) for _ in range(nst[ds])]
        seq = merge([take, dm.get(ds, []), st])
        if ds == 2: seq.insert(0, [set_flag(f"s{sFg}", None)])
        if ds == WC - 1: seq.insert(0, L(f"s_mov_b32 s{sT0}, {hex(FW)}") + [poll_load(vFl, vL16, f"s{sT0}", 4)])
        if ds == OF: seq.insert(int(len(seq) * PAR("OFP", 0.5)), [set_flag(f"s{sFl}", "Ost")])
        if ds == PAR("OP", 6): seq.insert(int(len(seq) * PAR("OPP", 0.6)), [poll_load(vFo2, vFa, f"s{sT1}")])
        flat = [x for ch in seq for x in ch]
        s += ('pace', flat),
        for grp in range(6):
            n = ds * 6 + grp
            real = lambda m: m if m < 48 else 48 + ((m - 48) % 2) * 6 + (m - 48) // 2
            if n + 2 < 60:
                if (n + 2) % 12 == 0:
                    stg = 27 + (n + 2) // 12
                    tags = [f"st{stg}"] + (["Dst"] if stg == 28 else [])
                    s.append(I("s_barrier", tag_r=tags, wr=['stg2'], after=24))
                s += g_reads(real(n + 2), 'stg2', n + 2)
            slot = vGA + (n % 3) * 8
            rds, rg = real(n) // 6, real(n) % 6
            B = BBUF[rds % 4]
            for j in range(4):
                for ks in range(2):
                    d = vr(acc3(rg, j), 4)
                    s.append(mfma(d, vr(slot + ks * 4, 4), rr((B[0], B[1] + (ks * 4 + j) * 4)), "0" if (ds == 0 and ks == 0) else d))
            if rds == 9 and rg % 2 == 1: s += h_epilogue(rg // 2)
        steps.append(s)
    assert not oe
    return steps
HST = []
def h_epilogue(T3):
    s = []
    if True:
        for jp in range(2):
            o = vOP + ((T3 * 2 + jp) % 6) * 4
            for jj in range(2):
                j = jp * 2 + jj
                g = acc3(2 * T3, j); u = acc3(2 * T3 + 1, j)
                for i in range(4): s.append(I(f"v_mul_f32 v{g+i}, v{g+i}, v{u+i}"))
                for i in range(2): s.append(I(f"v_cvt_pk_bf16_f32 v{o+jj*2+i}, v{g+2*i}, v{g+2*i+1}"))
            for i in range(2): s.append(I(f"v_permlane32_swap_b32 v{o+i}, v{o+2+i}"))
            HST.append(I(f"buffer_store_dwordx4 {vr(o,4)}, v{vT}, {sr(sWS,4)}, s{sOffH+T3} offen offset:{2048*jp} sc1", tag_w="Hst"))
    return s
def join_steps(steps, n=48):
    out = []
    for k, s in enumerate(steps):
        base = k * n
        for x in s:
            if isinstance(x, tuple):
                if any(y.kind == 'vmem' for y in x[1]): pace(x[1], base, base + n - 1)
                out += x[1]
            else:
                if x.after is not None: x.after += base
                out.append(x)
    return out

def gen_fallback():
    F = Prog()
    vK = 232; vS = 176; vP = 208
    vf, vv, va = 48, 49, 50
    sK_, sV_ = sK, sV
    def kload():
        return [I(f"buffer_load_dwordx4 {vr(vK+4*p,4)}, v{vf}, {sr(sK_,4)}, s{sT0} offen offset:{64*p}") for p in range(6)] + L(f"s_add_u32 s{sT0}, s{sT0}, 6144")
    def chains(kt, c0):
        s = []
        for j in range(4):
            d = vr(vS + (j * 2 + kt) * 4, 4)
            for p in range(6): s.append(mfma(d, vr(vK + 4 * p, 4), vr(vQ + (p * 4 + j) * 4, 4), d if p else c0(j)))
        return s
    c = L("L_fb:\ns_waitcnt vmcnt(0) lgkmcnt(0)\ns_nop 15")
    c += L(f"""v_and_b32 v54, 15, v0
v_lshrrev_b32 v55, 4, v0
v_mul_u32_u24 v{vf}, 384, v54
v_lshl_add_u32 v{vf}, v55, 4, v{vf}
v_lshrrev_b32 v56, 3, v0
v_and_b32 v57, 7, v0
v_and_b32 v58, 6, v56
v_xor_b32 v57, v57, v58
v_mul_u32_u24 v{vv}, 384, v56
v_lshl_add_u32 v{vv}, v57, 4, v{vv}
v_lshrrev_b32 v56, 2, v54
v_lshl_add_u32 v56, v55, 2, v56
v_bfe_u32 v57, v56, 1, 2
v_lshlrev_b32 v56, 7, v56
v_and_b32 v58, 3, v0
v_lshl_add_u32 v56, v58, 3, v56
s_lshl_b32 s{sT2}, s{sW}, 12
s_add_u32 s{sT2}, s{sT2}, {LDS_X}
v_add_u32 v56, s{sT2}, v56""")
    for x in range(4): c += L(f"v_xor_b32 v58, {x}, v57\nv_lshl_add_u32 v{va+x}, v58, 5, v56")
    c += L(f"""s_mul_i32 s{sT1}, s{sH}, 786432
s_add_u32 s{sT1}, s{sT1}, {1536*384}
s_mov_b32 s{sT0}, s{sT1}
s_mov_b32 s{sSpin}, 0""")
    for j in range(4): c += L(f"v_mov_b32 v{vNm+4*j}, 0xff800000")
    F.block("a", c)
    c = L("L_fb1:") + kload() + chains(0, lambda j: "0")
    for j in range(4):
        a = vS + j * 8; m = vNm + 4 * j
        c += L(f"v_max3_f32 v{m}, v{m}, v{a}, v{a+1}\nv_max3_f32 v{m}, v{m}, v{a+2}, v{a+3}")
    c += L(f"s_add_u32 s{sSpin}, s{sSpin}, 1\ns_cmp_lt_u32 s{sSpin}, 32\ns_cbranch_scc1 L_fb1")
    F.block("b", c)
    c = []
    for j in range(4):
        m = vNm + 4 * j
        c += xreduce(m, m + 1, "v_max_f32")
        c += L(f"v_sub_f32 v{m+1}, 0, v{m}\nv_sub_f32 v{m+2}, 0, v{m}\nv_sub_f32 v{m+3}, 0, v{m}\nv_sub_f32 v{m}, 0, v{m}\nv_mov_b32 v{vLs+j}, 0")
    for i in range(192): c.append(I(f"v_accvgpr_write_b32 a{i}, 0"))
    c += L(f"s_mov_b32 s{sT0}, s{sT1}\ns_mov_b32 s{sSpin}, 0")
    F.block("c", c)
    c = L("L_fb2:")
    for kt in range(2): c += kload() + chains(kt, lambda j: vr(vNm + 4 * j, 4)) + L("s_nop 7")
    for j in range(4):
        for kt in range(2):
            a = vS + (j * 2 + kt) * 4
            for i in range(4): c.append(I(f"v_exp_f32 v{a+i}, v{a+i}"))
            for i in range(4): c.append(I(f"v_add_f32 v{vLs+j}, v{vLs+j}, v{a+i}"))
            for i in range(2): c.append(I(f"v_cvt_pk_bf16_f32 v{vP+j*4+kt*2+i}, v{a+2*i}, v{a+2*i+1}"))
    for cg in range(3):
        for a in range(4):
            c += L(f"""s_add_u32 m0, s{sT2}, {1024*a}
s_add_u32 s{sOffP}, s{sT1}, {3072*a+128*cg}
buffer_load_dwordx4 v{vv}, {sr(sV_,4)}, s{sOffP} offen lds""")
        c += L("s_waitcnt vmcnt(0)")
        for x in range(4):
            for u in range(2): c.append(I(f"ds_read_b64_tr_b16 {vr(vK+4*x+2*u,2)}, v{va+x} offset:{2048*u}"))
        c += L("s_waitcnt lgkmcnt(0)")
        for x in range(4):
            for j in range(4):
                d = ar(((cg * 4 + x) * 4 + j) * 4, 4)
                c.append(mfma(d, vr(vK + 4 * x, 4), vr(vP + 4 * j, 4), d))
        c += L("s_nop 7")
    c += L(f"s_add_u32 s{sT1}, s{sT1}, 12288\ns_add_u32 s{sSpin}, s{sSpin}, 1\ns_cmp_lt_u32 s{sSpin}, 16\ns_cbranch_scc1 L_fb2")
    F.block("d", c)
    c = []
    for j in range(4): c += xreduce(vLs + j, vTmp + j, "v_add_f32")
    for j in range(4): c.append(I(f"v_rcp_f32 v{vLs+j}, v{vLs+j}"))
    c += L("s_nop 15\ns_branch L_fb_back")
    F.block("e", c)
    F.trace = [("a", {}), ("b", {}), ("b", {}), ("c", {}), ("d", {}), ("d", {}), ("e", {})]
    F.insert_waits(); F.fix_hazards()
    return F.text()


def gen(dbg=False):
    P = Prog()
    OUTL.clear(); AD.clear(); HST.clear()
    for i in range(2): AD[vWa + i] = Addr(vWa + i, sbase(0)); AD[vKa + i] = Addr(vKa + i, 0)
    for i in range(4): AD[vVa + i] = Addr(vVa + i, 0)
    AD[vRa] = Addr(vRa, sbase(12)); AD[vGa] = Addr(vGa, sbase(27))
    AD[vOA] = Addr(vOA, obase(0)); AD[vOB] = Addr(vOB, obase(0)); AD[vDA] = Addr(vDA, obase(24)); AD[vDB] = Addr(vDB, obase(24))
    nblk = [0]
    def blk(ins, name=None):
        nm = name or f"b{nblk[0]}"; nblk[0] += 1
        P.block(nm, ins); P.trace.append((nm, {}))
    CPA = PAR("CPA", 10000)
    cp = [3]
    def sch(s, name, **kw):
        if name.startswith("p2_") or name.startswith("p1_"):
            if "nost" in KN: s = [x for x in s if not (x.kind == 'vmem' and 'store_dwordx4' in x.text)]
            if "norl" in KN: s = [x for x in s if not (x.kind == 'vmem' and f"s[{sR}:{sR+3}]" in x.text)]
            if "kvhit" in KN: s = [x for x in s if not x.text.startswith((f"s_add_u32 s{sOffK}, s{sOffK}, 12288", f"s_add_u32 s{sOffV}, s{sOffV}, 12288"))]
            if "nobar" in KN: s = [x for x in s if x.kind != 'barrier']
            if "novm" in KN: s = [x for x in s if not (x.kind == 'vmem' and 'dwordx4' in x.text and 'v[48:51]' not in x.text)]
            if "novalu" in KN and name.startswith("p2_"): s = [x for x in s if not (x.kind in ('valu', 'trans') and x.text.startswith(('v_exp', 'v_add_f32', 'v_cvt')))]
        if name.startswith("p3"):
            if "p3nost" in KN: s = [x for x in s if not (x.kind == 'vmem' and 'store_dwordx4' in x.text)]
            if "p3nob" in KN: s = [x for x in s if not (x.kind == 'vmem' and 'load_dwordx4' in x.text and ' lds' not in x.text and f"s{sOffB} " in x.text)]
            if "p3novalu" in KN: s = [x for x in s if not (x.kind == 'valu' and x.text.startswith(('v_accvgpr', 'v_mul_f32', 'v_cvt')))]
            if "p3plain" in KN:
                for x in s:
                    if 'store_dwordx4' in x.text: x.text = x.text.replace(" sc1", "")
            if "p3nt" in KN:
                for x in s:
                    if 'store_dwordx4' in x.text: x.text = x.text.replace(" sc1", " sc1 nt")
        pos = sum(isize(x) for b in P.blocks for x in b[1]) * 1.03
        end = pos + sum(isize(x) for x in s) * 1.03
        nm = sum(1 for x in s if x.kind == 'mfma')
        while "nocp" not in KN and cp[0] * 8192 < end + CPA and cp[0] < NSLICE:
            g = int(max(0, min(nm - 2, (cp[0] * 8192 - CPA - pos) / (end - pos) * nm)))
            k = next((i for i, x in enumerate(s) if x.kind == 'vmem' and x.after is not None and x.after > g), len(s))
            cpl = I(f"global_load_dword v{vDum}, v{vL16}, s[62:63]", after=g); cpl.writes = set()
            s = s[:k] + [cpl, I("s_add_u32 s62, s62, 0x2000"), I("s_addc_u32 s63, s63, 0")] + s[k:]
            cp[0] += 1
        blk(schedule(s, name, verbose=dbg and "v" in KN, **kw), name)
    CC = math.log2(math.e) / math.sqrt(192.0)
    c = L(f"""s_cmp_ge_u32 s2, 256
s_cbranch_scc1 L_end
s_load_dwordx16 s[64:79], s[0:1], 0
s_load_dwordx8 s[80:87], s[0:1], 64
s_memrealtime s[{sSt}:{sSt+1}]
s_getpc_b64 s[62:63]
v_lshrrev_b32 v30, 6, v0
v_and_b32 v0, 63, v0
v_readfirstlane_b32 s{sW}, v30
v_lshlrev_b32 v{vL16}, 4, v0
v_lshlrev_b32 v{vL128}, 7, v0
v_and_b32 v48, 7, v0
v_lshrrev_b32 v49, 3, v0
v_mul_u32_u24 v60, 1280, v48
v_lshl_add_u32 v50, v49, 4, v60
v_lshl_add_u32 v50, v30, 7, v50
s_mul_i32 s{sT0}, s2, {8*1280}
s_and_b32 s{sT1}, s2, 7
s_lshr_b32 s{sT2}, s2, 3
s_and_b32 s{sH}, s{sT2}, 3
s_lshl2_add_u32 s{sH}, s{sT1}, s{sH}
s_lshr_b32 s{sB}, s{sT2}, 2
s_lshr_b32 s{sS}, s{sT1}, 1
s_and_b32 s{sT1}, s{sT1}, 1
s_lshl3_add_u32 s{sMb}, s{sT1}, s{sB}
s_and_b32 s{sNb}, s{sT2}, 3
v_cmp_eq_u32 vcc, 0, v0
v_bfrev_b32 v51, 1
v_cndmask_b32 v{vFo}, v51, 0, vcc
v_cmp_gt_u32 vcc, 2, v30
v_add_u32 v53, 1024, v50
v_cndmask_b32 v53, v51, v53, vcc
s_lshl2_add_u32 s{sT2}, s{sT2}, s{sW}
s_and_b32 s{sT2}, s{sT2}, 15
s_min_u32 s{sT2}, s{sT2}, CODE_SLICES-1
s_lshl_b32 s{sT2}, s{sT2}, 13
v_add_u32 v52, s{sT2}, v{vL128}
global_load_dword a{aDum}, v52, s[62:63]
v_lshrrev_b32 v54, 4, v0
v_and_b32 v55, 15, v0
v_and_b32 v61, 6, v49
v_xor_b32 v61, v61, v48
v_lshlrev_b32 v61, 4, v61
v_mul_u32_u24 v62, 1280, v49
v_add_u32 v{vRo2}, v62, v61
v_and_b32 v62, 4, v49
v_add_u32 v62, v62, v49
v_mul_u32_u24 v62, 3072, v62
v_add_u32 v{vRo}, v62, v61
s_lshl_b32 s{sM5}, s{sW}, 13
s_add_u32 s{sM4}, s{sM5}, {SLOT}
s_cmp_eq_u32 s{sW}, 3
s_cmov_b32 s{sM5}, {LDS_X + 4096}
s_lshl2_add_u32 s{sQg}, s{sB}, s{sW}
s_mul_i32 s{sOffBB}, s{sQg}, {64*1280}""")
    if STAMPS: c += L(f"v_mov_b32 v{vSt}, 0")
    c += L("s_waitcnt lgkmcnt(0)")
    c += srd(sXin, pX, 2048 * 640 * 2)
    c += L(f"""buffer_load_dwordx4 v[64:67], v50, {sr(sXin,4)}, s{sT0} offen
buffer_load_dwordx4 v[68:71], v50, {sr(sXin,4)}, s{sT0} offen offset:512
buffer_load_dwordx4 v[72:75], v53, {sr(sXin,4)}, s{sT0} offen
buffer_load_ushort v76, v60, {sr(sXin,4)}, s{sT0} offen""")
    c += srd(sR, pDbg, 256)
    c += L(f"""s_or_b32 s{sNonce}, s{sSt}, 1
v_mov_b32 v56, s{sNonce}
v_mov_b32 v57, 0
s_or_b32 s{sT1}, s2, s{sW}
s_cmp_eq_u32 s{sT1}, 0
s_cselect_b32 s{sT1}, 0, 0x100
buffer_atomic_cmpswap v[56:57], v{vFo}, {sr(sR,4)}, s{sT1} offen sc1""")
    c += stamp(0)
    def rawdma(ds):
        r = []
        for a in range(8):
            r += L(f"s_add_u32 m0, s{sM4 if ds == 0 else sM5}, {a*1024}\ns_add_u32 s{sOffA}, s{sOffBB}, {a*8*1280+128*ds}")
            r.append(I(f"buffer_load_dwordx4 v{vRo2}, {sr(sXin,4)}, s{sOffA} offen lds", tag_w=f"raw{ds}"))
        return r
    def inter(vm, fill):
        ch = split(vm); out = []; per = -(-len(fill) // len(ch))
        for k, cc in enumerate(ch): out += cc + fill[k * per:(k + 1) * per]
        return out
    f1 = []
    for n in range(3):
        f1.append(I(f"v_add_u32 v61, {64*n}, v0"))
        f1 += divmod_const(62, 63, 61, 24)
        f1 += L(f"""v_and_b32 v57, 6, v62
v_xor_b32 v57, v63, v57
v_lshlrev_b32 v57, 4, v57
v_subrev_u32 v57, {1024*n}, v57
v_and_b32 v59, 4, v62
v_add_u32 v59, v59, v62
v_mul_u32_u24 v59, 12288, v59
v_add_u32 v{vWo+n}, v59, v57""")
    f1 += srd(sWq, pWq, 640 * 6144 * 2) + srd(sWS, pWs, WS_SIZE) + (L(f"s_add_u32 s{sWS}, s{sWS}, {hex(PAR('WSB', 0) << 20)}\ns_addc_u32 s{sWS+1}, s{sWS+1}, 0") if PAR('WSB', 0) else [])
    f1 += L(f"""s_lshr_b32 s{sT0}, s{sW}, 1
s_and_b32 s{sOffY}, s{sW}, 1
s_lshl_b32 s{sT2}, s{sT0}, 5
s_lshl2_add_u32 s{sT2}, s{sOffY}, s{sT2}
s_mul_i32 s{sOffX}, s{sT2}, 12288
s_mul_i32 s{sT2}, s{sH}, 384
s_add_u32 s{sOffX}, s{sOffX}, s{sT2}
s_mul_i32 s{sM6}, s{sW}, 6144""")
    f2 = L(f"""v_lshrrev_b32 v56, 2, v55
v_and_b32 v57, 3, v0
v_lshl_add_u32 v58, v54, 2, v56
v_bfe_u32 v59, v58, 1, 2
v_mul_u32_u24 v62, 384, v58
v_add_u32 v62, {sbase(0)}, v62
v_lshlrev_b32 v63, 1, v59
v_xor_b32 v63, v63, v57
v_lshl_add_u32 v{vWa}, v63, 4, v62
v_xor_b32 v63, 4, v63
v_lshl_add_u32 v{vWa+1}, v63, 4, v62
v_bfe_u32 v{vPa}, v0, 2, 3
v_lshlrev_b32 v{vPa}, 7, v{vPa}
v_lshl_add_u32 v{vPa}, v57, 2, v{vPa}
v_lshlrev_b32 v{vSo}, 3, v55
v_lshlrev_b32 v62, 7, v55
v_and_b32 v63, 6, v55
v_xor_b32 v63, v63, v54
v_lshl_add_u32 v{vXo2}, v63, 4, v62
v_xor_b32 v63, 4, v63
v_lshl_add_u32 v{vXo2+1}, v63, 4, v62
v_add_u32 v{vXo}, s{sM4}, v{vXo2}
v_add_u32 v{vXo+1}, s{sM4}, v{vXo2+1}
v_add_u32 v{vXo2}, s{sM5}, v{vXo2}
v_add_u32 v{vXo2+1}, s{sM5}, v{vXo2+1}
v_lshlrev_b32 v58, 3, v48
v_add_u32 v58, {LDS_X}, v58
v_lshl_add_u32 v59, v30, 6, v58
v_lshrrev_b32 v56, 2, v49
v_lshl_add_u32 v56, v30, 1, v56
v_lshlrev_b32 v56, 12, v56
v_and_b32 v57, 3, v49
v_lshl_add_u32 v56, v57, 8, v56
v_lshl_add_u32 v56, v48, 4, v56
v_add_u32 v57, {16*4096}, v56
v_cndmask_b32 v57, v51, v57, vcc
v_or_b32 v61, v49, v30
v_cmp_eq_u32 vcc, 0, v61
v_lshlrev_b32 v61, 3, v48
v_cndmask_b32 v61, v51, v61, vcc
s_lshr_b32 s{sT2}, s2, 3
s_mul_i32 s{sT2}, s{sT2}, {20*4096}
s_bfe_u32 s{sOffK}, s2, 0x20001
s_lshl_b32 s{sOffK}, s{sOffK}, 10
s_add_u32 s{sT2}, s{sT2}, s{sOffK}
s_and_b32 s{sOffK}, s2, 1
s_lshl_b32 s{sOffK}, s{sOffK}, 7
s_add_u32 s{sT2}, s{sT2}, s{sOffK}
s_add_u32 s{sOffK}, s{sT2}, {8*4096}
s_lshl_b32 s{sOffP}, s2, 6
s_add_u32 s{sOffP}, s{sOffP}, {hex(ST_OFF)}
s_lshr_b32 s{sSpin}, s{sW}, 1
s_sub_u32 s{sSpin}, s{sSpin}, 1
s_and_b32 s{sSpin}, s{sSpin}, 0x3f800000""")
    pfv = divmod_const(62, 63, 0, 3) + L(f"""v_mul_u32_u24 v62, 12288, v62
v_lshl_add_u32 v62, v63, 7, v62
v_cmp_gt_u32 vcc, 12, v0
v_cndmask_b32 v{vL128}, v51, v62, vcc
s_lshl_b32 s{sQd}, s{sQg}, 2
s_add_u32 s{sQd}, s{sQd}, 256
s_mul_i32 s{sQd}, s{sQd}, 12288
s_mul_i32 s{sOffG}, s{sH}, 384
s_add_u32 s{sQd}, s{sQd}, s{sOffG}""")
    f2 += pfv
    for i in range(4): f2.append(I(f"v_mov_b32 v{vOne+i}, 0x3f803f80"))
    c += inter(rawdma(0), f1)
    c += inter(dma_stage(0), f2)
    c += L(f"v_mov_b32 v60, 0\nbuffer_load_dword v{vNon}, v60, {sr(sR,4)}, 0 offen sc1\ns_mov_b32 s{sT1}, s{sOffY}\ns_mov_b32 s{sT3}, s{sOffK}")
    su0 = L(f"""s_lshl_b32 s{sFl}, s2, 7
s_lshl2_add_u32 s{sFl}, s{sW}, s{sFl}
s_add_u32 s{sFl}, s{sFl}, {hex(FXN)}
s_lshl_b32 s{sFg}, s{sQg}, 10
s_add_u32 s{sFg}, s{sFg}, {hex(FXN)}
s_lshl_b32 s{sScale}, s{sQg}, 9
s_add_u32 s{sScale}, s{sScale}, {hex(ST_OFF)}
s_mul_i32 s{sOffB}, s{sQg}, {20*4096}
s_add_u32 s{sOffB}, s{sOffB}, {4*4096}
s_mul_i32 s{sM3}, s{sW}, 3072
s_mul_i32 s{sOffK}, s{sH}, 786432
s_add_u32 s{sOffK}, s{sOffK}, {1536*384}
s_add_u32 s{sOffK}, s{sOffK}, s{sM3}
s_mov_b32 s{sOffV}, s{sOffK}
s_lshr_b32 s{sPf}, s2, 3
s_lshl2_add_u32 s{sPf}, s{sPf}, s{sW}
s_and_b32 s{sPf}, s{sPf}, 7
s_lshl_b32 s{sPf}, s{sPf}, 10
s_add_u32 s{sPf}, s{sPf}, {3*8192}
s_add_u32 s62, s62, s{sPf}
s_addc_u32 s63, s63, 0""") + srd(sK, pK, 32 * 2048 * 192 * 2) + srd(sV, pV, 32 * 2048 * 192 * 2)
    wpf = lambda: ([prefetch(sWq, f"s{sQd}")] + L(f"s_add_u32 s{sQd}, s{sQd}, {128*12288}")) if "nowpf" not in KN else []
    vu = []
    for n in range(3):
        vu.append(I(f"v_add_u32 v61, {64*n}, v0"))
        vu += divmod_const(62, 63, 61, 24)
        vu += L(f"""v_and_b32 v57, 6, v62
v_xor_b32 v57, v63, v57
v_lshlrev_b32 v57, 4, v57
v_subrev_u32 v57, {1024*n}, v57
v_mul_u32_u24 v58, 384, v62
v_add_u32 v{vVo+n}, v58, v57
v_lshrrev_b32 v59, 1, v62
v_lshl_add_u32 v59, s{sW}, 2, v59
v_and_b32 v59, 7, v59
v_xor_b32 v59, v63, v59
v_lshlrev_b32 v59, 4, v59
v_subrev_u32 v59, {1024*n}, v59
v_add_u32 v{vKo+n}, v58, v59""")
    vu += L(f"""v_lshrrev_b32 v56, 2, v55
v_and_b32 v57, 3, v0
v_lshl_add_u32 v58, v54, 2, v56
v_bfe_u32 v59, v58, 1, 2
v_mul_u32_u24 v62, 384, v58
v_lshl_add_u32 v62, v57, 3, v62""")
    for x in range(4): vu += L(f"v_xor_b32 v63, {x}, v59\nv_lshl_add_u32 v{vVa+x}, v63, 5, v62")
    vu += L(f"""v_lshlrev_b32 v62, 7, v58
v_lshl_add_u32 v62, v57, 3, v62
v_xor_b32 v63, s{sW}, v59
v_lshl_add_u32 v62, v63, 5, v62
v_add_u32 v{vRa}, {sbase(12)}, v62
v_add_u32 v{vGa}, {sbase(27)}, v{vL16}
v_mul_u32_u24 v62, 384, v55
v_lshrrev_b32 v63, 1, v55
v_xor_b32 v63, v63, v54
v_lshl_add_u32 v{vKa}, v63, 4, v62
v_xor_b32 v63, 4, v63
v_lshl_add_u32 v{vKa+1}, v63, 4, v62""")
    for i in range(4): vu.append(I(f"v_mov_b32 v{vLs+i}, 0"))
    xr = L(f"""v_and_b32 v61, 7, v0
v_lshrrev_b32 v62, 3, v0
v_mul_u32_u24 v63, 1280, v61
v_lshl_add_u32 v63, v62, 4, v63
s_mul_i32 s{sOffY}, s2, {8*1280}
s_lshl_b32 s{sPf}, s{sW}, 7
s_add_u32 s{sOffY}, s{sOffY}, s{sPf}
buffer_load_dwordx4 a[244:247], v63, {sr(sXin,4)}, s{sOffY} offen
buffer_load_dwordx4 a[248:251], v63, {sr(sXin,4)}, s{sOffY} offen offset:512
buffer_load_dwordx4 a[252:255], v63, {sr(sXin,4)}, s{sOffY} offen offset:1024""")
    xs = L(f"""v_lshrrev_b32 v63, 2, v62
v_lshlrev_b32 v63, 12, v63
v_and_b32 v62, 3, v62
v_lshl_add_u32 v63, v62, 8, v63
v_lshl_add_u32 v63, v61, 4, v63
s_lshr_b32 s{sOffY}, s2, 3
s_mul_i32 s{sOffY}, s{sOffY}, {20*4096}
s_bfe_u32 s{sPf}, s2, 0x20001
s_lshl_b32 s{sPf}, s{sPf}, 10
s_add_u32 s{sOffY}, s{sOffY}, s{sPf}
s_and_b32 s{sPf}, s2, 1
s_lshl_b32 s{sPf}, s{sPf}, 7
s_add_u32 s{sOffY}, s{sOffY}, s{sPf}
s_lshl_b32 s{sPf}, s{sW}, 13
s_add_u32 s{sOffY}, s{sOffY}, s{sPf}
s_add_u32 s{sOffY}, s{sOffY}, {hex(XR_OFF)}""")
    for i in range(3):
        if i == 2: xs += L(f"s_cmp_lt_u32 s{sW}, 2\ns_cselect_b32 s{sOffY}, s{sOffY}, 0x40000000")
        xs.append(I(f"buffer_store_dwordx4 {ar(244+4*i,4)}, v63, {sr(sWS,4)}, s{sOffY} offen sc1", tag_w="Gst"))
        if i < 2: xs += L(f"s_add_u32 s{sOffY}, s{sOffY}, {8*4096}")
    c += L("v_lshlrev_b32 v76, 16, v76\nv_mov_b32 v77, v76")
    for i in range(12):
        c += L(f"v_lshlrev_b32 v{80+2*i}, 16, v{64+i}\nv_and_b32 v{81+2*i}, 0xffff0000, v{64+i}")
        c += L(f"v_pk_add_f32 v[{112+2*i}:{113+2*i}], v[{80+2*i}:{81+2*i}], v[76:77] neg_lo:[0,1] neg_hi:[0,1]")
    for i in range(12):
        a = 104 if i < 8 else 108
        d = vr(112 + 2 * i, 2)
        if i in (0, 8): c += L(f"v_pk_mul_f32 v[{a+2}:{a+3}], {d}, {d}\nv_mov_b32 v{a}, v{112+2*i}\nv_mov_b32 v{a+1}, v{113+2*i}")
        else: c += L(f"v_pk_fma_f32 v[{a+2}:{a+3}], {d}, {d}, v[{a+2}:{a+3}]\nv_pk_add_f32 v[{a}:{a+1}], v[{a}:{a+1}], {d}")
    c += L(f"""v_add_f32 v104, v104, v105
v_add_f32 v105, v106, v107
v_add_f32 v108, v108, v109
v_add_f32 v109, v110, v111
v_fmac_f32 v104, s{sSpin}, v108
v_fmac_f32 v105, s{sSpin}, v109
s_nop 1
v_add_f32_dpp v104, v104, v104 row_ror:8 row_mask:0xf bank_mask:0xf
v_add_f32_dpp v105, v105, v105 row_ror:8 row_mask:0xf bank_mask:0xf""")
    ra, rb = xreduce(104, 106, "v_add_f32"), xreduce(105, 107, "v_add_f32")
    for x, y in zip(ra, rb): c += [x, y]
    c += L(f"""ds_write_b64 v59, v[104:105]
s_waitcnt lgkmcnt(0)
s_barrier
ds_read_b64 v[104:105], v58
ds_read_b64 v[106:107], v58 offset:64
ds_read_b64 v[108:109], v58 offset:128
ds_read_b64 v[110:111], v58 offset:192
v_pk_add_f32 v[104:105], v[104:105], v[106:107]
v_pk_add_f32 v[108:109], v[108:109], v[110:111]
v_pk_add_f32 v[104:105], v[104:105], v[108:109]
v_mul_f32 v104, {hex(f2u(1.0/640))}, v104
v_mul_f32 v105, {hex(f2u(1.0/640))}, v105
v_fma_f32 v105, -v104, v104, v105
v_max_f32 v105, 0, v105
v_add_f32 v104, v104, v76
v_cvt_pk_bf16_f32 v104, v105, v104
v_and_b32 v108, 0xffff0000, v104
v_mov_b32 v109, v108""")
    for i in range(12):
        d = vr(80 + 2 * i, 2)
        c += L(f"""v_pk_add_f32 {d}, {d}, v[108:109] neg_lo:[0,1] neg_hi:[0,1]
v_cvt_pk_bf16_f32 v{64+i}, v{80+2*i}, v{81+2*i}""")
        if i == 3: c.append(I(f"buffer_store_dwordx4 v[64:67], v56, {sr(sWS,4)}, s{sT2} offen sc1", tag_w="Xst"))
        if i == 7: c.append(I(f"buffer_store_dwordx4 v[68:71], v56, {sr(sWS,4)}, s{sT3} offen sc1", tag_w="Xst"))
        if i == 11: c.append(I(f"buffer_store_dwordx4 v[72:75], v57, {sr(sWS,4)}, s{sT2} offen sc1", tag_w="Xst"))
    c += L(f"""v_lshlrev_b32 v104, 16, v104
v_add_f32 v104, {hex(f2u(1e-5))}, v104
v_cvt_pk_bf16_f32 v104, v104, v104
v_lshlrev_b32 v104, 16, v104
v_sqrt_f32 v104, v104
v_xor_b32 v106, 0x80000000, v108
v_cvt_pk_bf16_f32 v104, v104, v104
v_lshlrev_b32 v104, 16, v104
v_rcp_f32 v104, v104
s_nop 0
v_mul_f32 v107, {hex(f2u(CC))}, v104""")
    c.append(I(f"buffer_store_dwordx2 v[106:107], v61, {sr(sWS,4)}, s{sOffP} offen sc1", tag_w="Xst"))
    c += stamp(1)
    c += raw_reads(0)
    c.append(barrier(["st0", "rawrd0"]))
    c += w_reads0(0) + w_reads0(1)
    c += L(f"""v_readfirstlane_b32 s{sNonce}, v{vNon}
s_nop 3
s_cmp_lg_u32 s{sNonce}, 0
s_cbranch_scc0 L_nonce
L_nonce_ok:""")
    OUTL.append(("nonce", L(f"""L_nonce:
s_mov_b32 s{sSpin}, {SPIN_MAX}
L_nonce2:
buffer_load_dword v{vNon}, v60, {sr(sR,4)}, 0 offen sc1
s_waitcnt vmcnt(0)
v_readfirstlane_b32 s{sNonce}, v{vNon}
s_nop 3
s_cmp_lg_u32 s{sNonce}, 0
s_cbranch_scc1 L_nonce_ok
s_sub_u32 s{sSpin}, s{sSpin}, 1
s_cmp_lg_u32 s{sSpin}, 0
s_cbranch_scc1 L_nonce2
s_branch L_nonce_ok""")))
    c += stamp(2)
    blk(c, "pro")
    su = L(f"""s_mul_i32 s{sOffG}, s{sH}, {20*6144}
s_add_u32 s{sOffG}, s{sOffG}, s{sM6}
s_add_u32 s{sOffG}, s{sOffG}, {hex(GP_OFF)}
s_lshl_b32 s{sM1}, s{sW}, 10
s_mul_i32 s{sM5}, s{sW}, 5120
s_lshl_b32 s{sM4}, s{sW}, 12
s_mul_i32 s{sT2}, s{sQg}, {240*4096}
s_add_u32 s{sT2}, s{sT2}, {hex(OH_OFF)}
s_mul_i32 s{sT3}, s{sH}, {6*4096}
s_add_u32 s{sOffO}, s{sT2}, s{sT3}
s_add_u32 s{sT2}, s{sT2}, {192*4096}
s_mul_i32 s{sT3}, s{sH}, 3""")
    for T3 in range(3):
        su += L(f"""s_lshr_b32 s{sSpin}, s{sT3}, 1
s_lshl_b32 s{sSpin}, s{sSpin}, 12
s_add_u32 s{sOffH+T3}, s{sT2}, s{sSpin}
s_and_b32 s{sSpin}, s{sT3}, 1
s_lshl_b32 s{sSpin}, s{sSpin}, 9
s_add_u32 s{sOffH+T3}, s{sOffH+T3}, s{sSpin}
s_add_u32 s{sT3}, s{sT3}, 1""")
    su += L(f"""s_sub_u32 s{sT2}, s2, 240
s_min_u32 s{sT2}, s2, s{sT2}""")
    su += sdivmod(sT3, sSpin, sT2, 10)
    su += L(f"""s_lshl_b32 s{sOffRo}, s{sT3}, 8
s_lshl3_add_u32 s{sOffRo}, s{sW}, s{sOffRo}
s_mul_i32 s{sOffRo}, s{sOffRo}, 1280
s_lshl_b32 s{sFl}, s{sSpin}, 7
s_add_u32 s{sOffRo}, s{sOffRo}, s{sFl}
s_lshl_b32 s{sOffRd}, s{sT3}, 6
s_lshl4_add_u32 s{sOffRd}, s{sT1}, s{sOffRd}
s_lshl3_add_u32 s{sOffRd}, s{sT0}, s{sOffRd}
s_mul_i32 s{sOffRd}, s{sOffRd}, 1280
s_add_u32 s{sOffRd}, s{sOffRd}, s{sFl}
s_lshl2_add_u32 s{sSpin}, s{sSpin}, s{sW}""")
    su += sdivmod(sFl, sOffP, sSpin, 10)
    su += L(f"""s_mul_i32 s{sFl}, s{sFl}, 192
s_lshl3_add_u32 s{sFl}, s{sT3}, s{sFl}
s_mul_i32 s{sFl}, s{sFl}, 10
s_add_u32 s{sFl}, s{sFl}, s{sOffP}
s_lshl_b32 s{sFl}, s{sFl}, 10
s_add_u32 s{sOffDo}, s{sFl}, {hex(WOP_OFF)}""")
    su += sdivmod(sFl, sOffP, sSpin, 5)
    su += L(f"""s_mul_i32 s{sFl}, s{sFl}, 48
s_lshl1_add_u32 s{sFl}, s{sT3}, s{sFl}
s_mul_i32 s{sFl}, s{sFl}, 5
s_add_u32 s{sFl}, s{sFl}, s{sOffP}
s_lshl_b32 s{sFl}, s{sFl}, 10
s_add_u32 s{sOffDd}, s{sFl}, {hex(WDP_OFF)}""")
    su2 = sdivmod(sT3, sSpin, sT2, 48)
    su2 += [L(f"""s_cmp_ge_u32 s{sSpin}, 24
s_cselect_b32 s{pBx}, s{pWu}, s{pWg}
s_cselect_b32 s{pBx+1}, s{pWu+1}, s{pWg+1}
s_cselect_b32 s{sT2}, 1, 0
s_cselect_b32 s{sFl}, 24, 0""")]
    su2 += L(f"""s_sub_u32 s{sSpin}, s{sSpin}, s{sFl}
s_lshl_b32 s{sOffR}, s{sT3}, 7
s_lshl4_add_u32 s{sOffR}, s{sT1}, s{sOffR}
s_lshl2_add_u32 s{sOffR}, s{sT0}, s{sOffR}
s_mul_i32 s{sOffR}, s{sOffR}, 3072
s_lshl_b32 s{sFl}, s{sSpin}, 7
s_add_u32 s{sOffR}, s{sOffR}, s{sFl}
s_lshl2_add_u32 s{sSpin}, s{sSpin}, s{sW}""")
    su2 += sdivmod(sFl, sOffP, sSpin, 3)
    su2 += L(f"""s_mul_i32 s{sFl}, s{sFl}, 20
s_lshl2_add_u32 s{sFl}, s{sT3}, s{sFl}
s_mul_i32 s{sFl}, s{sFl}, 6
s_lshl1_add_u32 s{sFl}, s{sOffP}, s{sFl}
s_add_u32 s{sFl}, s{sFl}, s{sT2}
s_lshl_b32 s{sFl}, s{sFl}, 10
s_add_u32 s{sOffD}, s{sFl}, {hex(GP_OFF)}
s_lshl_b32 s{sFg}, s2, 2
s_add_u32 s{sFg}, s{sFg}, {hex(FG)}""")
    su2 += [L(f"s_cmp_eq_u32 s{sW}, 0\ns_cselect_b32 s{sFg}, s{sFg}, 0x40000000")]
    su2 += L(f"""s_lshr_b32 s{sT2}, s{sH}, 3
s_lshl2_add_u32 s{sFl}, s{sQg}, s{sT2}
s_lshl_b32 s{sFl}, s{sFl}, 7
s_and_b32 s{sT2}, s{sH}, 7
s_lshl2_add_u32 s{sFl}, s{sT2}, s{sFl}
s_add_u32 s{sFl}, s{sFl}, {hex(FO)}
s_mul_i32 s{sOffA}, s{sNb}, 192
s_mul_i32 s{sT2}, s{sS}, 48
s_add_u32 s{sOffA}, s{sOffA}, s{sT2}
s_mul_i32 s{sOffA}, s{sOffA}, 10240
s_add_u32 s{sOffA}, s{sOffA}, s{sM5}
s_add_u32 s{sOffA}, s{sOffA}, {hex(WOP_OFF)}
s_lshl1_add_u32 s{sOffBB}, s{sMb}, s{sT1}
s_mul_i32 s{sOffBB}, s{sOffBB}, 240
s_add_u32 s{sOffBB}, s{sOffBB}, s{sT2}
s_add_u32 s{sOffBB}, s{sOffBB}, s{sT0}
s_lshl_b32 s{sOffBB}, s{sOffBB}, 12
s_add_u32 s{sOffBB}, s{sOffBB}, {hex(OH_OFF)}
s_lshr_b32 s{sT2}, s{sS}, 1
s_lshl1_add_u32 s{sQd}, s{sMb}, s{sT2}""") + srd(sR, pBx, 640 * 1536 * 2)
    def weave(vm, sal):
        ch = split(vm); out = []
        per = -(-len(sal) // len(ch))
        for k, cc in enumerate(ch):
            out += cc
            for y in sal[k * per:(k + 1) * per]: out += y if isinstance(y, list) else [y]
        return out
    XH = PAR("XH", 15)
    XF = PAR("XF", 50); XQ = PAR("XQ", 110)
    q0a = pace(rawdma(1) + dma_stage(1), 0, PAR("Q0", 44)) + pace(dma_stage(2) + wpf() + dma_stage(3) + wpf(), 56, XH * 10 - 2)
    fl = set_flag(f"s{sFl}", "Xst", after=XF); pl_ = poll_load(vPd, vPa, f"s{sFg}", after=XQ)
    ch = split(q0a)
    for x in (fl, pl_):
        k = next((i for i, cc in enumerate(ch) if [y for y in cc if y.kind == 'vmem'][0].after > x.after), len(ch))
        ch.insert(k, [x])
    for k in range(8, 14): ch[k] = ch[k] + su0[(k - 8) * 1:(k - 7) * 1]
    ch[15] = ch[15] + su0[6:13]; ch[16] = ch[16] + su0[13:21]; ch[17] = ch[17] + su0[21:]
    for cc in ch:
        for x in cc: x.reads.discard('stg')
    sch(p1_first(0, XH, extra=[x for cc in ch for x in cc] + vu), "p1_0a", vm_min=3)
    fs = lambda k: blk(stamp(k)) if "fine1" in KN else None
    fs(14)
    blk(poll_cmp(vPd, 1) + poll_branch("xn", vPd, vPa, f"s{sFg}"))
    fs(15)
    bl = lambda k: b_loads(('a', 64 * (k % 2))) + b_loads(('a', 64 * (k % 2) + 32))
    sch(p1_first(XH, 24, extra=pace(bl(1), 0, 56)), "p1_0b", vm_min=3); fs(16)
    sch(p1_quad(1, vm=weave(dma_stage(4) + dma_stage(5) + wpf() + stat_loads() + bl(2), su)), "p1_1"); fs(17)
    sch(p1_quad(2, vm=weave(dma_stage(6) + dma_stage(7) + bl(3), su2)), "p1_2"); fs(18)
    sch(p1_quad(3, vm=dma_stage(8) + dma_stage(9) + bl(4) + dma_stage(10)), "p1_3")
    if "stagtest" in KN:
        blk(L(f"""s_and_b32 s{sSpin}, s{sH}, 1
s_mul_i32 s{sSpin}, s{sSpin}, 150
L_stag:
s_cmp_eq_u32 s{sSpin}, 0
s_cbranch_scc1 L_stag2
s_sleep 1
s_sub_u32 s{sSpin}, s{sSpin}, 1
s_branch L_stag
L_stag2:"""))
    blk(stamp(3))
    MERGE = "nomerge" not in KN
    big = p1_quad(4, vm=dma_stage(11) + dma_stage(12)) + first_tile(192) + p2_iter(0, base=192 + 48)
    nbig = 336
    if not MERGE:
        sch(big, "p1_last"); big = []; nbig = 0
    blk(stamp(4))
    XP = PAR("XP", 9)
    for t in range(1, 14):
        ex = []; post = []; btag = []
        if t == 1: ex += xr
        if t == 3: ex += xs
        if t == 6: btag = ["Gst"]
        if t == 7: ex += [set_flag(f"s{sFg}", None)] + L(f"s_add_u32 s{sFg}, s{sFg}, {FW-FG}")
        if t == 10: ex += L(f"s_mov_b32 s{sT0}, {hex(FG)}") + [poll_load(vTmp, vL16, f"s{sT0}", 4)]
        if t == 12: post += late(poll_cmp(vTmp, 4), nbig + 60)
        XN_ = PAR("XN", 2)
        if "xpf" in KN and XP <= t <= 13:
            if t == XP: ex += L(f"""s_and_b32 s{sPf}, s{sH}, 3
s_lshl_b32 s{sPf}, s{sPf}, 11
s_mul_i32 s{sT2}, s{sQg}, {20*4096}
s_add_u32 s{sPf}, s{sPf}, s{sT2}""")
            for k in range(XN_):
                if (t - XP) * XN_ + k < 10:
                    for o in (0, 1024):
                        x = I(f"buffer_load_dwordx4 v[60:63], v{vL16}, {sr(sWS,4)}, s{sPf} offen offset:{o} sc1")
                        if (t - XP) * XN_ + k < 9 or o == 0: x.writes = set()
                        ex.append(x)
                    ex += L(f"s_add_u32 s{sPf}, s{sPf}, 8192")
        big += p2_iter(t, base=nbig, extra=ex, post=post, btag=btag); nbig += 96
        if not MERGE or t == 12:
            sch(big, f"p2_{t}"); big = []; nbig = 0
        if t == 12 and "stagtest" not in KN: blk(poll_branch("g", vTmp, vL16, f"s{sT0}", 4))
    blk(stamp(5))
    sch(big + p2_iter(14, base=nbig, btag=["Wst"]) + tail_pv(nbig + 96), "tail", vm_min=3)
    blk(L("s_cbranch_vccnz L_fb\nL_fb_back:") + stamp(6))
    steps = p3_steps()
    setup = L(f"""v_and_b32 v{vT}, 32, v0
v_lshlrev_b32 v{vT}, 4, v{vT}
v_add_u32 v{vT}, v{vT}, v{vL16}
s_and_b32 s{sT3}, s{sW}, 1
s_lshl1_add_u32 s{sT1}, s{sMb}, s{sT3}
s_lshl2_add_u32 s{sT1}, s{sT1}, s{sS}
s_lshl_b32 s{sT1}, s{sT1}, 7
s_add_u32 s{sT1}, s{sT1}, {hex(FO)}
v_and_b32 v{vFa}, 7, v0
v_lshlrev_b32 v{vFa}, 2, v{vFa}
s_mul_i32 s{sT3}, s{sT3}, 5120
s_add_u32 s{sT3}, s{sT3}, {obase(0)}
v_add_u32 v{vOA}, s{sT3}, v{vL16}
s_lshr_b32 s{sT2}, s{sW}, 1
s_lshl_b32 s{sT2}, s{sT2}, 12
s_add_u32 s{sT2}, s{sT2}, {20480+obase(0)}
v_add_u32 v{vOB}, s{sT2}, v{vL16}
v_add_u32 v{vDA}, {obase(24)}, v{vL16}
s_add_u32 s{sT2}, s{sM1}, {20480+obase(24)}
v_add_u32 v{vDB}, s{sT2}, v{vL16}
v_lshlrev_b32 v{vL128}, 7, v0
v_bfrev_b32 v38, 1
v_cmp_gt_u32 vcc, 20, v0
v_cndmask_b32 v{vL128}, v38, v{vL128}, vcc
s_and_b32 s{sT2}, s{sMb}, 7
s_lshl2_add_u32 s{sT2}, s{sT2}, s{sW}
s_mul_i32 s{sOffX}, s{sT2}, 2560
s_sub_u32 s{sOffX}, s{sOffX}, s{sM5}
s_add_u32 s{sPf}, s{sOffA}, s{sOffX}
s_add_u32 s{sPf}, s{sPf}, 81920""")
    for k in range(9):
        body = (setup if k == 3 else []) + join_steps(steps[k:k+1] if k < 8 else steps[8:])
        if k == 8:
            body += [I("s_barrier", tag_r="ot0", wr=['stg'], rd=['stg2'], after=48 + 26)] + o_reads(0)
        sch(body, f"p3s{k}", vm_min=2)
        if k == WC and "stagtest" not in KN: blk(poll_cmp(vFl, 4) + poll_branch("w", vFl, vL16, f"s{sT0}", 4))
        if k == OC and "stagtest" not in KN: blk(poll_cmp(vFo2, 1) + poll_branch("o", vFo2, vFa, f"s{sT1}"))
        if "fine" in KN: blk(stamp(14 + k))
    c = stamp(7) + stamp(8)
    if OC == 9:
        c += dmaB(0) + dmaB(1) + dmaB(2)
        c.append(I("s_barrier", tag_r="ot0"))
        c += o_reads(0)
    c += stamp(9)
    blk(c, "o_pro")
    osetup = L(f"""s_lshl_b32 s{sT1}, s{sMb}, 8
s_add_u32 s{sT1}, s{sT1}, {hex(FH)}
v_lshlrev_b32 v{vFa}, 2, v0
s_and_b32 s{sT2}, s{sS}, 1
s_lshl1_add_u32 s{sT2}, s{sNb}, s{sT2}
s_lshr_b32 s{sT3}, s{sS}, 1
s_lshl1_add_u32 s{sOffRo}, s{sT2}, s{sT3}
s_mul_i32 s{sOffRo}, s{sOffRo}, {24*5120}
s_lshl_b32 s{sM3}, s{sW}, 13
s_add_u32 s{sOffRo}, s{sOffRo}, s{sM3}
s_add_u32 s{sOffRo}, s{sOffRo}, {hex(WDP_OFF)}
s_mul_i32 s{sT2}, s{sT2}, 160
s_lshl2_add_u32 s{sOffO}, s{sQd}, s{sW}
s_mul_i32 s{sOffO}, s{sOffO}, {16*1280}
s_add_u32 s{sOffO}, s{sOffO}, s{sT2}
s_mul_i32 s{sT3}, s{sT3}, 24
s_add_u32 s{sT3}, s{sT3}, 192
s_lshl_b32 s{sT3}, s{sT3}, 12
s_add_u32 s{sT3}, s{sT3}, s{sM1}
s_add_u32 s{sT3}, s{sT3}, {hex(OH_OFF)}
s_xor_b32 s{sOffRd}, s{sQd}, 1
s_mul_i32 s{sOffRd}, s{sOffRd}, {240*4096}
s_add_u32 s{sOffRd}, s{sOffRd}, s{sT3}
s_mul_i32 s{sOffG}, s{sQd}, {240*4096}
s_add_u32 s{sOffG}, s{sOffG}, s{sT3}
s_lshl2_add_u32 s{sT0}, s{sMb}, s{sNb}
s_lshl2_add_u32 s{sT3}, s{sT0}, s{sS}
s_lshl2_add_u32 s{sT2}, s{sT3}, s{sW}
s_mul_i32 s{sOffP}, s{sT2}, 10240
s_add_u32 s{sOffP}, s{sOffP}, {hex(PART_OFF)}
s_lshl2_add_u32 s{sFl}, s{sT0}, s{sW}
s_lshl_b32 s{sFl}, s{sFl}, 7
s_lshl2_add_u32 s{sFl}, s{sS}, s{sFl}
s_add_u32 s{sFl}, s{sFl}, {hex(FP)}
v_and_b32 v{vOa}, 15, v0
v_mul_u32_u24 v{vOa}, 1280, v{vOa}
v_lshrrev_b32 v{vPo}, 4, v0
v_lshl_add_u32 v{vOa}, v{vPo}, 3, v{vOa}
v_and_b32 v{vFa2}, 7, v0
v_lshlrev_b32 v{vFa2}, 2, v{vFa2}""") + srd(sOut, pOut, 2048 * 640 * 2) + L(f"""s_lshl_b32 s{sFg}, s{sT3}, 7
s_add_u32 s{sFg}, s{sFg}, {hex(FP)}
s_lshl4_add_u32 s{sT2}, s{sT0}, s{sS}
s_mul_i32 s{sOffK}, s{sT2}, 10240
s_add_u32 s{sOffK}, s{sOffK}, {hex(PART_OFF)}
s_lshl2_add_u32 s{sT2}, s{sT3}, s{sW}
s_mul_i32 s{sOffD}, s{sT2}, 2560
s_add_u32 s{sOffD}, s{sOffD}, {hex(HP_OFF)}
s_xor_b32 s{sT2}, s{sT2}, 8
s_mul_i32 s{sOffDo}, s{sT2}, 2560
s_add_u32 s{sOffDo}, s{sOffDo}, {hex(HP_OFF)}
s_xor_b32 s{sOffDd}, s{sFg}, 0x100
s_lshl2_add_u32 s{sOffDd}, s{sW}, s{sOffDd}
s_add_u32 s{sOffDd}, s{sOffDd}, 16""")
    assert len(osetup) <= 60
    for sg in range(4):
        ex = []
        if sg == 0: ex = dmaB(3) + dmaA(3)
        if sg == 0: ex = ex + HST[:2]
        if sg == 1: ex = HST[2:]
        if sg == 2: ex = L(f"s_mov_b32 s{sOffV}, {hex(FW2)}") + [poll_load(48, vL16, f"s{sOffV}", 4)]
        if sg == 3: ex = ex + L(f"s_add_u32 s{sQg}, s{sQg}, {hex(FH)}")
        pre = L(f"s_lshl_b32 s{sQg}, s{sQg}, 7\ns_lshl2_add_u32 s{sQg}, s{sH}, s{sQg}") if sg == 0 else []
        sch(o_block(sg, ex, pre=pre, mid=osetup[sg * 15:(sg + 1) * 15], exfirst=(sg == 0)), f"o{sg}", vm_min=2)
    base_state = {r: AD[r].base for r in (vOA, vOB)}
    if "fine2" in KN: blk(stamp(14))
    P.block("ol_top", L(f"s_mov_b32 s{sH}, 0") + L(".p2align 6\nL_o:")); P.trace.append(("ol_top", {}))
    lb = []
    NIT = PAR('NIT', 4)
    for q in range(4):
        ex = L(f"s_cmp_eq_u32 s{sH}, {NIT-1}\ns_cselect_b32 s{sT2}, s{sT1}, 0x40000000") + [poll_load(vFl, vFa, f"s{sT2}")] if q == 0 else []
        if q == 1: ex = L(f"s_cmp_eq_u32 s{sH}, 0\ns_cselect_b32 s{sT2}, s{sQg}, 0x40000000") + [set_flag(f"s{sT2}", "Hst")]
        b = o_block(4 + q, ex)
        for x in b:
            for attr in ('tag_r', 'tag_w'):
                t = getattr(x, attr)
                if t is None: continue
                if t == "Hst": continue
                ts = t if isinstance(t, list) else [t]
                setattr(x, attr, (lambda ts: lambda env: [u[:2] + str(int(u[2:]) + 4 * env['it']) for u in ts])(ts))
        if "ohitA" in KN: b = [x for x in b if not x.text.startswith(f"s_add_u32 s{sOffA}, s{sOffA}")]
        if "ohitB" in KN: b = [x for x in b if not x.text.startswith(f"s_add_u32 s{sOffBB}, s{sOffBB}")]
        if "onods" in KN: b = [x for x in b if x.kind != 'ds']
        if "onodma" in KN: b = [x for x in b if not (x.kind == 'vmem' and ' lds' in x.text)]
        if "onobar" in KN: b = [x for x in b if x.kind != 'barrier']
        if "onosc1" in KN:
            for x in b:
                if ' lds' in x.text: x.text = x.text.replace(" sc1", "")
        b = schedule(b, f"ol{q}", verbose=dbg and "v" in KN, vm_min=3)
        if q == 3: b += L(f"s_add_u32 s{sH}, s{sH}, 1\ns_cmp_lt_u32 s{sH}, {NIT}\ns_cbranch_scc1 L_o")
        P.block(f"ol{q}", b)
    assert base_state == {r: AD[r].base for r in (vOA, vOB)}, "loop address state"
    for it in range(NIT): P.trace += [(f"ol{q}", {'it': it}) for q in range(4)]
    if "rewind" in KN:
        pos = sum(isize(x) for b_ in P.blocks for x in b_[1]) * 1.03
        new = int(pos + 1500) // 8192
        if new < cp[0]:
            blk(L(f"s_sub_u32 s62, s62, {(cp[0]-new)*8192}\ns_subb_u32 s63, s63, 0")); cp[0] = new
    if "fine2" in KN: blk(stamp(15))
    blk(poll_cmp(48, 4) + poll_branch("w2", 48, vL16, f"s{sOffV}", 4))
    blk(poll_cmp(vFl, 1) + poll_branch("h", vFl, vFa, f"s{sT1}"))
    dsetup = L(f"""s_lshl_b32 s{sT2}, s{sW}, 11
v_add_u32 v45, s{sT2}, v{vL16}
s_lshr_b32 s{sT2}, s{sW}, 1
s_lshl_b32 s{sT2}, s{sT2}, 10
s_and_b32 s{sT3}, s{sW}, 1
s_lshl3_add_u32 s{sT2}, s{sT3}, s{sT2}
s_add_u32 s{sT2}, s{sT2}, 8192
v_add_u32 v46, s{sT2}, v{vL16}
v_add_u32 v47, {LDS_X}, v{vL16}
v_and_b32 v38, 15, v0
v_mul_u32_u24 v38, 1280, v38
v_bfe_u32 v39, v0, 4, 1
v_lshl_add_u32 v38, v39, 5, v38
v_lshrrev_b32 v39, 5, v0
v_lshl_add_u32 v38, v39, 4, v38
s_cmp_eq_u32 s{sW}, s{sS}
s_cmov_b32 s{sOffP}, 0x40000000""")
    NB1 = [int(x) for x in os.environ.get("NB1", "4,4,5,5").split(",")]
    nb1 = 0
    dsetup += L(f"s_mov_b32 s{sOffBB}, s{sOffG}\nv_lshlrev_b32 v37, 3, v0")
    for sg in range(20, 24):
        ex = [x for k in range(nb1, nb1 + NB1[sg - 20]) for x in d_bload(0, k)]; nb1 += NB1[sg - 20]
        sch(o_block(sg, ex, mid=dsetup if sg == 23 else []), f"o{sg}", vm_min=2)
    blk(stamp(10))
    vQ4, vQ2, vLw, vOw = 45, 46, 47, 38
    def pk(dst, t, j):
        a = vAc + (t * 4 + j) * 4
        return L(f"v_cvt_pk_bf16_f32 v{dst}, v{a}, v{a+1}\nv_cvt_pk_bf16_f32 v{dst+1}, v{a+2}, v{a+3}")
    pkall = []; ps = []; n = 0
    for j in range(4):
        for tp in range(2):
            o = vPk + n * 4
            pkall += pk(o, 2 * tp, j) + pk(o + 2, 2 * tp + 1, j)
            it = [I(f"buffer_store_dwordx4 {vr(o,4)}, v{vL16}, {sr(sWS,4)}, s{sOffP} offen offset:{(n%4)*1024} sc1", tag_w="Pst")]
            n += 1
            if n % 4 == 0: it.append(I(f"s_add_u32 s{sOffP}, s{sOffP}, 4096"))
            ps.append(it)
    for jp in range(2):
        o = vPk + n * 4
        pkall += pk(o, 4, 2 * jp) + pk(o + 2, 4, 2 * jp + 1)
        ps.append([I(f"buffer_store_dwordx4 {vr(o,4)}, v{vL16}, {sr(sWS,4)}, s{sOffP} offen offset:{jp*1024} sc1", tag_w="Pst")])
        n += 1
    own = L(f"s_cmp_lg_u32 s{sW}, s{sS}\ns_cbranch_scc1 L_own")
    for k in range(10):
        x = I(f"ds_write_b128 v{vLw}, {vr(vPk+4*k,4)} offset:{1024*k}"); x.kind = 'wait'; own.append(x)
    x = I("s_waitcnt lgkmcnt(0)"); x.kind = 'label'; own.append(x)
    own += L("L_own:")
    xl = L(f"""s_and_b32 s{sT2}, s{sS}, 1
s_lshl1_add_u32 s{sT2}, s{sNb}, s{sT2}
s_mul_i32 s{sT2}, s{sT2}, 10
s_mul_i32 s{sT3}, s{sQd}, {20*4096}
s_add_u32 s{sT3}, s{sT3}, s{sM1}
s_add_u32 s{sT3}, s{sT3}, {hex(XR_OFF)}
v_bfe_u32 v2, v0, 4, 1
v_lshrrev_b32 v3, 5, v0
v_lshl_add_u32 v4, v2, 1, v3
v_add_u32 v4, s{sT2}, v4
v_and_b32 v5, 15, v0
v_lshlrev_b32 v5, 4, v5
v_lshrrev_b32 v6, 2, v4
v_lshl_add_u32 v6, v6, 12, v5
v_and_b32 v4, 3, v4
v_lshl_add_u32 v6, v4, 8, v6
v_add_u32 v7, 4096, v6
v_add_u32 v4, s{sT2}, v3
v_add_u32 v4, 8, v4
v_lshrrev_b32 v8, 2, v4
v_lshl_add_u32 v8, v8, 12, v5
v_and_b32 v4, 3, v4
v_lshl_add_u32 v8, v4, 8, v8
v_lshl_add_u32 v8, v2, 3, v8
buffer_load_dwordx4 {vr(vXr,4)}, v6, {sr(sWS,4)}, s{sT3} offen sc1
buffer_load_dwordx4 {vr(vXr+4,4)}, v7, {sr(sWS,4)}, s{sT3} offen sc1
buffer_load_dwordx2 {vr(vXr+8,2)}, v8, {sr(sWS,4)}, s{sT3} offen sc1
s_lshl2_add_u32 s{sT2}, s{sQd}, s{sW}
s_lshl_b32 s{sT2}, s{sT2}, 7
s_add_u32 s{sT2}, s{sT2}, {hex(ST_OFF)}
v_lshrrev_b32 v9, 1, v5
buffer_load_dword v10, v9, {sr(sWS,4)}, s{sT2} offen offset:4 sc1""")
    pl = []
    for i in range(1, 4):
        pl += L(f"s_add_u32 s{sT2}, s{sS}, {i}\ns_and_b32 s{sT2}, s{sT2}, 3\ns_mul_i32 s{sT2}, s{sT2}, {4*10240}\ns_add_u32 s{sT2}, s{sT2}, s{sOffK}")
        for tp in range(2): pl.append(I(f"buffer_load_dwordx4 {vr(vPl+i*12+tp*4,4)}, v{vQ4}, {sr(sWS,4)}, s{sT2} offen offset:{1024*tp} sc1"))
        pl.append(I(f"buffer_load_dwordx2 {vr(vPl+i*12+8,2)}, v{vQ2}, {sr(sWS,4)}, s{sT2} offen sc1"))
    ownrd = L(f"""v_add_u32 v{vLw}, {LDS_X}, v{vQ4}
ds_read_b128 {vr(vPl,4)}, v{vLw}
ds_read_b128 {vr(vPl+4,4)}, v{vLw} offset:1024
v_add_u32 v{vLw}, {LDS_X}, v{vQ2}
ds_read_b64 {vr(vPl+8,2)}, v{vLw}""")
    t0 = 112; vSm = 164; vXf = 184
    xun = []
    for tp in range(2):
        for i in range(2): xun.append(I(f"v_permlane16_swap_b32 v{vXr+4*tp+i}, v{vXr+4*tp+2+i}"))
    for k in range(10): xun += L(f"v_lshlrev_b32 v{vXf+2*k}, 16, v{vXr+k}\nv_and_b32 v{vXf+2*k+1}, 0xffff0000, v{vXr+k}")
    k2 = (math.sqrt(192.0) / math.log2(math.e)) ** 2
    xun += L(f"v_mul_f32 v10, v10, v10\nv_mul_f32 v10, {hex(f2u(k2))}, v10\nv_mul_f32 v11, {hex(f2u(-math.log2(math.e)))}, v10")
    own0 = []
    for k in range(10): own0 += L(f"v_lshlrev_b32 v{vSm+2*k}, 16, v{vPl+k}\nv_and_b32 v{vSm+2*k+1}, 0xffff0000, v{vPl+k}\nv_mul_f32 v{vSm+2*k}, v10, v{vSm+2*k}\nv_mul_f32 v{vSm+2*k+1}, v10, v{vSm+2*k+1}")
    psum = []
    for i in range(1, 4):
        for k in range(10):
            s_ = vPl + i * 12 + k; u = 132 + (k % 4) * 2
            psum += L(f"v_lshlrev_b32 v{u}, 16, v{s_}\nv_and_b32 v{u+1}, 0xffff0000, v{s_}\nv_fmac_f32 v{vSm+2*k}, v10, v{u}\nv_fmac_f32 v{vSm+2*k+1}, v10, v{u+1}")
    fin = []
    for t in range(5):
        h = vDc + 4 * t
        for i in range(4): fin += L(f"v_mul_f32 v{t0+4*t+i}, v11, v{h+i}\nv_exp_f32 v{t0+4*t+i}, v{t0+4*t+i}")
        for i in range(4): fin += L(f"v_mul_f32 v{h+i}, v{h+i}, v{vSm+4*t+i}")
        for i in range(4): fin += L(f"v_add_f32 v{t0+4*t+i}, 1.0, v{t0+4*t+i}\nv_rcp_f32 v{t0+4*t+i}, v{t0+4*t+i}")
        for i in range(4): fin.append(I(f"v_fmac_f32 v{vXf+4*t+i}, v{h+i}, v{t0+4*t+i}"))
        for i in range(2): fin.append(I(f"v_cvt_pk_bf16_f32 v{vXr+2*t+i}, v{vXf+4*t+2*i}, v{vXf+4*t+2*i+1}"))
        if t in (1, 3):
            tp = t // 2
            for i in range(2): fin.append(I(f"v_permlane16_swap_b32 v{vXr+4*tp+i}, v{vXr+4*tp+2+i}"))
            fin.append(I(f"buffer_store_dwordx4 {vr(vXr+4*tp,4)}, v{vOw}, {sr(sOut,4)}, s{sOffO} offen offset:{64*tp}"))
    fin.append(I(f"buffer_store_dwordx2 {vr(vXr+8,2)}, v{vOa}, {sr(sOut,4)}, s{sOffO} offen offset:128"))
    flat = lambda l: [x for it in l for x in it]
    hs = []
    for t in range(5):
        for i in range(2): hs.append(I(f"v_cvt_pk_bf16_f32 v{vHp+2*t+i}, v{vDo+4*t+2*i}, v{vDo+4*t+2*i+1}"))
        if t in (1, 3): hs.append(I(f"buffer_store_dwordx4 {vr(vHp+2*t-2,4)}, v{vL16}, {sr(sWS,4)}, s{sOffD} offen offset:{(t//2)*1024} sc1", tag_w="Pst"))
    hs.append(I(f"buffer_store_dwordx2 {vr(vHp+8,2)}, v37, {sr(sWS,4)}, s{sOffD} offen offset:2048 sc1", tag_w="Pst"))
    hl = [I(f"buffer_load_dwordx4 {vr(vHr+4*k,4)}, v{vL16}, {sr(sWS,4)}, s{sOffDo} offen offset:{1024*k} sc1") for k in range(2)]
    hl.append(I(f"buffer_load_dwordx2 {vr(vHr+8,2)}, v37, {sr(sWS,4)}, s{sOffDo} offen offset:2048 sc1"))
    hadd = []
    for k in range(10):
        u = 132 + (k % 4) * 2
        hadd += L(f"v_lshlrev_b32 v{u}, 16, v{vHr+k}\nv_and_b32 v{u+1}, 0xffff0000, v{vHr+k}\nv_add_f32 v{vDc+2*k}, v{vDc+2*k}, v{u}\nv_add_f32 v{vDc+2*k+1}, v{vDc+2*k+1}, v{u+1}")
    f3 = lambda k: blk(stamp(14 + k)) if "fine3" in KN else None
    B1 = [d_bload(0, k) for k in range(nb1, 24)]; B2 = [d_bload(1, k) for k in range(24)]
    psq = [pkall[4 * k:4 * k + 4] + ps[k] for k in range(10)]
    cfg = [[int(y) for y in x.split(".")] for x in os.environ.get("DC", "3.5.0,3.5.0,0.0.9,0.0.9,0.0.6").split(",")]
    def take(c_):
        q = [[B1.pop(0) for _ in range(c_[0])], [psq.pop(0) for _ in range(c_[1])], [B2.pop(0) for _ in range(c_[2])]]
        return flat(merge(q))
    PFG = PAR("PFG", 2)
    owndone = False
    for g in range(4):
        ex = take(cfg[g])
        XE = PAR("XE", 0)
        if XE and g == 3: ex = ex + xl
        if g == PFG: ex = ex + [set_flag(f"s{sFl}", "Pst")]
        sch(d_block(0, g, ex), f"d0{g}", vm_min=1)
        if not psq and not owndone: blk(own); owndone = True; assert g < 2
        f3(g)
    for x in hs:
        if x.tag_w: x.tag_w = "Qst"
    pollP = L(f"v_and_b32 v12, 12, v{vFa2}") + [poll_load(vFl, 12, f"s{sFg}")]
    setH = L(f"s_lshl2_add_u32 s{sT1}, s{sW}, s{sFg}\ns_add_u32 s{sT1}, s{sT1}, 16\nv_mov_b32 v13, 0")
    blk(hs); f3(4)
    PP = PAR("PP", 0)
    PC = PAR("PC", 1)
    QP = PAR("QP", 3)
    chkP = lambda: blk(poll_cmp(vFl, 1) + poll_branch("p", vFl, 12, f"s{sFg}") + pl)
    pq = [poll_load(16, 13, f"s{sT1}")]
    QF = PAR("QF", 1)
    qf = [set_flag(f"s{sOffDd}", "Qst")]
    sch(d_block(1, 0, (pollP if PP == 0 else []) + take(cfg[4]) + ([] if XE else xl) + (qf if QF == 0 else []), ownrd + setH), "d10", vm_min=1); f3(5)
    assert not B1 and not B2 and not psq
    if PC == 0: chkP()
    sch(d_block(1, 1, (qf if QF == 1 else []) + (pollP if PP == 1 else [])), "d11", vm_min=1); f3(6)
    if PC == 1: chkP()
    f3(7)
    PSK = PAR("PSK", 40)
    sch(d_block(1, 2, pq if QP == 2 else [], xun + own0 + (psum[:PSK] if PC == 0 else [])), "d12", vm_min=1); f3(8)
    chkQ = lambda: blk(poll_cmp(16, 1) + poll_branch("q", 16, 13, f"s{sT1}") + hl)
    if QP == 2: chkQ()
    rest = psum[PSK:] if PC == 0 else psum
    PSJ = PAR("PSJ", 0)
    sch(d_block(1, 3, pq if QP == 3 else [], rest[:PSJ]), "d13", vm_min=1); f3(9)
    if QP == 3: chkQ()
    f3(10)
    blk(stamp(11))
    blk(rest[PSJ:] + hadd + fin)
    c = []
    c += stamp_store(13)
    amp = os.environ.get("AMP")
    if amp and STAMPS:
        k1, k2, mult = map(int, amp.split(","))
        first = f"v_readlane_b32 s{sT0}, v{vSt}, {2*k1}" if k1 >= 0 else f"s_mov_b32 s{sT0}, s{sNonce}"
        c += L(f"""{first}
v_readlane_b32 s{sT1}, v{vSt}, {2*k2}
v_readlane_b32 s{sT2}, v{vSt}, 26
s_nop 4
s_sub_u32 s{sT0}, s{sT1}, s{sT0}
s_mul_i32 s{sT0}, s{sT0}, {mult}
s_min_u32 s{sT0}, s{sT0}, 100000
L_amp:
s_memrealtime s[{sSt}:{sSt+1}]
s_waitcnt lgkmcnt(0)
s_sub_u32 s{sT1}, s{sSt}, s{sT2}
s_cmp_lt_u32 s{sT1}, s{sT0}
s_cbranch_scc1 L_amp""")
    c += L("L_end:\ns_endpgm")
    blk(c, "fin")
    for nm, ins in OUTL: P.block(nm, ins)
    P.insert_waits()
    n = P.fix_hazards(verbose=False)
    if dbg:
        tot, per = P.estimate()
        agg = {}
        for k, v in per.items():
            kk = k.rstrip('0123456789') if k[0] in 'od' or k.startswith('p1_') or k.startswith('p2_') else k
            agg[kk] = agg.get(kk, 0) + v
        print("; estimate", tot, agg, "pads", n)
    return P.text() + "\n" + gen_fallback()

def build(path, dbg=False):
    body = gen(dbg)
    body = "\n".join(l.strip() for l in body.split("\n"))
    txt = f"""; @launch grid=(256,1,1) block=(256,1,1) lds={LDS_TOTAL}
.amdgcn_target "amdgcn-amd-amdhsa--gfx950"
.text
.globl {KNAME}
.p2align 8
.type {KNAME},@function
{KNAME}:
L_code_begin:
{body}
L_code_end:
.set CODE_SLICES, (L_code_end-L_code_begin+8191)/8192
.fill 2112, 4, 0xbf800000
s_endpgm
.section .rodata,"a"
.p2align 6
.amdhsa_kernel {KNAME}
  .amdhsa_next_free_vgpr 512
  .amdhsa_next_free_sgpr 102
  .amdhsa_accum_offset 256
  .amdhsa_group_segment_fixed_size 0
  .amdhsa_kernarg_size 96
  .amdhsa_user_sgpr_count 2
  .amdhsa_user_sgpr_kernarg_segment_ptr 1
  .amdhsa_system_sgpr_workgroup_id_x 1
  .amdhsa_float_denorm_mode_32 3
.end_amdhsa_kernel
"""
    open(path, "w").write(txt)

if __name__ == "__main__":
    if "--stamps" in sys.argv:
        STAMPS = True; sys.argv.remove("--stamps")
    build(sys.argv[1], dbg=True)
```

```python
import sys, math, struct, os
from asmlib import *
KN = set(os.environ.get("KN", "").split(","))
def PAR(name, default): return type(default)(os.environ.get(name, default))
NAME = "recurrent_scan__sliding_block_cached__glu_gated_bilinear__prompt"
KNAME = NAME + "_kernel"
XN_OFF = 0; OH_OFF = 0x400000; GP_OFF = 0x2200000; WOP_OFF = 0x2600000; WDP_OFF = 0x2E00000; PART_OFF = 0x3000000
FL_OFF = 0x3A00000
FXN = FL_OFF; FO = FL_OFF + 0x8000; FH = FL_OFF + 0x10000; FP = FL_OFF + 0x18000; FG = FL_OFF + 0x20000; FW = FL_OFF + 0x21000; FW2 = FL_OFF + 0x22000; ST_OFF = FL_OFF + 0x30000
XR_OFF = 0x3B00000; HP_OFF = 0x3E00000
WS_SIZE = 0x4100000
STAMP_OFF = 0x8000000
SLOT = 28672; SL2 = 36864
LDS_X = 147456
LDS_TOTAL = 163840
STAMPS = False
SPIN_MAX = 200000
def sbase(st):
    if st < 10: return ((3, 4) if (st // 2) % 2 == 0 else (1, 2))[st % 2] * SLOT
    if st <= 28: return (st % 5) * SLOT
    return {29: 0, 30: 110592, 31: 135168}[st]
OPERM = [1, 2, 0, 3]
def obase(sg): return OPERM[sg % 4] * SL2

def f2u(x): return struct.unpack('<I', struct.pack('<f', x))[0]
def vr(a, n): return f"v[{a}:{a+n-1}]" if n > 1 else f"v{a}"
def ar(a, n): return f"a[{a}:{a+n-1}]" if n > 1 else f"a{a}"
def sr(a, n): return f"s[{a}:{a+n-1}]" if n > 1 else f"s{a}"
def rr(x, n=4): return vr(x[1], n) if x[0] == 'v' else ar(x[1], n)
def L(txt): return [I(t) for t in txt.strip().split("\n") if t.strip()]
def mfma(d, a, b, c): return I(f"v_mfma_f32_16x16x32_bf16 {d}, {a}, {b}, {c}")

sWq, sK, sWS, sR = 4, 8, 12, 16
(sOffX, sOffY, sOffK, sOffV, sM6, sM3, sM1, sOffB, sH, sB, sW, sT0, sT1, sT2, sOffO, sScale,
 sOffG, sOffH0, sOffH1, sOffH2, sNonce, sOffR, sOffD, sOffRo, sOffRd, sOffDo, sOffDd,
 sS, sMb, sNb, sFl, sSpin, sT3, sOffP, sQg, sFg, sOffA, sOffBB, sM5, sM4, sPf, sQd) = range(20, 62)
sOffH = sOffH0
pX, pK, pV, pWq, pWo, pBx, pWg, pWu, pWd, pOut, pDbg, pWs = range(64, 88, 2)
sSt = 88; sV = 92; sXin = 96
sOut = sWq
vL16 = 1; vWo = 2; vKo = 5; vVo = 8; vRo = 11; vRo2 = 12; vL128 = 13; vFo = 14; vNon = 15
vRa = 16; vWa = 17; vKa = 19; vVa = 21; vGa = 25
vLs = 26; vT = 36; vSt = 31; vNm = 32; vTmp = 48
vAcc = 64; vQ = 64
vS01 = 160; vS23 = 176; vP01 = 208; vP23 = 224; vVs = 232
aK = 192; aR = 240; aA1 = 128; aDum = 255; aCs = 160
vOne = 48; vSta = 40; vCsT = 52; vXo = 44; vXo2 = 46; vSo = 32; vPa = 42; vPd = 43
vDum = 30
NSLICE = 10

class Addr:
    def __init__(self, reg, base): self.reg = reg; self.base = base
    def use(self, base, off):
        pre = []
        d = base + off - self.base
        if not (0 <= d < 65536):
            pre = [I(f"v_add_u32 v{self.reg}, {hex((base - self.base) & 0xffffffff)}, v{self.reg}")]
            self.base = base; d = off
        return pre, d
AD = {}
def dsr(op, dst, reg, base, off, **kw):
    pre, d = AD[reg].use(base, off)
    return pre + [I(f"{op} {dst}, v{reg} offset:{d}", **kw)]

def srd(d, base, size):
    return [I(f"s_mov_b32 s{d}, s{base}"), I(f"s_mov_b32 s{d+1}, s{base+1}"), I(f"s_mov_b32 s{d+2}, {hex(size)}"), I(f"s_mov_b32 s{d+3}, 0x20000")]
def xreduce(v, t, op):
    return L(f"""v_mov_b32 v{t}, v{v}
v_permlane16_swap_b32 v{v}, v{t}
{op} v{v}, v{v}, v{t}
v_mov_b32 v{t}, v{v}
v_permlane32_swap_b32 v{v}, v{t}
{op} v{v}, v{v}, v{t}""")
def divmod_const(q, r, src, c):
    magic = (65536 + c - 1) // c
    for x in range(1400): assert (x * magic) >> 16 == x // c
    return L(f"v_mul_u32_u24 v{q}, {magic}, v{src}\nv_lshrrev_b32 v{q}, 16, v{q}\nv_mul_u32_u24 v{r}, {c}, v{q}\nv_sub_u32 v{r}, v{src}, v{r}")
def sdivmod(q, r, src, c):
    magic = (65536 + c - 1) // c
    for x in range(1400): assert (x * magic) >> 16 == x // c
    return L(f"s_mul_i32 s{q}, s{src}, {magic}\ns_lshr_b32 s{q}, s{q}, 16\ns_mul_i32 s{r}, s{q}, {c}\ns_sub_u32 s{r}, s{src}, s{r}")

def stamp(k):
    if not STAMPS: return []
    return L(f"""s_memrealtime s[{sSt}:{sSt+1}]
s_memtime s[{sSt+2}:{sSt+3}]
s_waitcnt lgkmcnt(0)
v_writelane_b32 v{vSt}, s{sSt}, {2*k}
v_writelane_b32 v{vSt}, s{sSt+2}, {2*k+1}""")
def stamp_store(n):
    if not STAMPS: return []
    return stamp(n - 1) + L("s_waitcnt vmcnt(0)") + stamp(n) + L(f"""s_add_u32 s{sK}, s{pWs}, {hex(STAMP_OFF)}
s_addc_u32 s{sK+1}, s{pWs+1}, 0
s_mov_b32 s{sK+2}, {1024*256}
s_mov_b32 s{sK+3}, 0x20000
s_lshl2_add_u32 s{sT0}, s2, s{sW}
s_lshl_b32 s{sT0}, s{sT0}, 8
v_lshlrev_b32 v2, 2, v0
buffer_store_dword v{vSt}, v2, {sr(sK,4)}, s{sT0} offen""")

OUTL = []
def poll_load(dst, vaddr, soff, n=1, **kw):
    op = "buffer_load_dword" if n == 1 else "buffer_load_dwordx4"
    return I(f"{op} {vr(dst,n)}, v{vaddr}, {sr(sWS,4)}, {soff} offen sc1", **kw)
def poll_cmp(dst, n):
    if n == 1: return L(f"v_cmp_ne_u32 vcc, s{sNonce}, v{dst}")
    return L(f"""v_xor_b32 v{dst}, s{sNonce}, v{dst}
v_xor_b32 v{dst+1}, s{sNonce}, v{dst+1}
v_xor_b32 v{dst+2}, s{sNonce}, v{dst+2}
v_xor_b32 v{dst+3}, s{sNonce}, v{dst+3}
v_or3_b32 v{dst}, v{dst}, v{dst+1}, v{dst+2}
v_or_b32 v{dst}, v{dst}, v{dst+3}
v_cmp_ne_u32 vcc, 0, v{dst}""")
def poll_branch(name, dst, vaddr, soff, n=1):
    o = L(f"L_spin_{name}:\ns_mov_b32 s{sSpin}, {SPIN_MAX}\nL_spin2_{name}:")
    o += [poll_load(dst, vaddr, soff, n)] + L("s_waitcnt vmcnt(0)") + poll_cmp(dst, n)
    o += L(f"""s_nop 4
s_cbranch_vccz L_back_{name}
s_sleep 1
s_sub_u32 s{sSpin}, s{sSpin}, 1
s_cmp_lg_u32 s{sSpin}, 0
s_cbranch_scc1 L_spin2_{name}
s_branch L_back_{name}""")
    OUTL.append((f"spin_{name}", o))
    return L(f"s_cbranch_vccnz L_spin_{name}\nL_back_{name}:")
def late(lst, g):
    for x in lst: x.after = g
    return lst
def set_flag(soff, tag, **kw):
    return I(f"buffer_store_dword v{vNon}, v{vFo}, {sr(sWS,4)}, {soff} offen sc1", tag_r=tag, **kw)

RF = os.environ.get("RF", "nt"); WQF = os.environ.get("WQF", "")
KVF = os.environ.get("KVF", "nt")
def grp3(st, srdn, vo, so, mreg, moff, inc, flags=""):
    r = [I(f"s_add_u32 m0, s{mreg}, {sbase(st)+moff}")]
    for n in range(3):
        v = vo + n if vo != vL16 else vL16
        r.append(I(f"buffer_load_dwordx4 v{v}, {sr(srdn,4)}, s{so} offen offset:{1024*n} {flags} lds", tag_w=f"st{st}", rd=['stg']))
    if inc: r.append(I(f"s_add_u32 s{so}, s{so}, {inc}"))
    return r
def dma_stage(st):
    r = []
    if st <= 9:
        r += grp3(st, sWq, vWo, sOffX, sM6, 0, 16 * 12288, WQF) + grp3(st, sWq, vWo, sOffX, sM6, 3072, 48 * 12288, WQF)
    elif st <= 26:
        t = st - 10
        if t <= 15: r += grp3(st, sK, vKo, sOffK, sM3, 0, 12288, KVF)
        if t >= 1: r += grp3(st, sV, vVo, sOffV, sM3, 12288, 12288, KVF)
        u = st - 12
        if 0 <= u < 14:
            if u == 4: r += srd(sR, pWo, 6144 * 640 * 2)[:3] + L(f"s_mov_b32 s{sOffR}, s{sOffRo}")
            if u == 12: r += srd(sR, pWd, 1536 * 640 * 2)[:3] + L(f"s_mov_b32 s{sOffR}, s{sOffRd}")
            r.append(I(f"s_add_u32 m0, s{sM1}, {sbase(st)+24576}"))
            r.append(I(f"buffer_load_dwordx4 v{vRo if u < 4 else vRo2}, {sr(sR,4)}, s{sOffR} offen {RF} lds", tag_w=f"st{st}", rd=['stg']))
            r.append(I(f"s_add_u32 s{sOffR}, s{sOffR}, {32*3072 if u < 4 else 32*1280}"))
    else:
        r += grp3(st, sWS, vL16, sOffG, sM6, 0, 3072, "sc1") + grp3(st, sWS, vL16, sOffG, sM6, 3072, 24576 - 3072, "sc1")
    return r
def pace(lst, lo, hi):
    vm = [x for x in lst if x.kind == 'vmem']
    for k, x in enumerate(vm): x.after = int(lo + k * (hi - lo) / len(vm))
    return lst
def barrier(tag, after=None): return I("s_barrier", tag_r=tag, wr=['stg'], after=after)

def acc1(T, j): return vAcc + ((T // 2) * 4 + j) * 8 + (T % 2) * 4
def w_reads(k, T):
    slot = aA1 + (T % 2) * 16
    p, t = T // 2, T % 2
    r = []
    for ks in range(4):
        for u in range(2): r += dsr("ds_read_b64_tr_b16", ar(slot + ks * 4 + u * 2, 2), vWa + p % 2, sbase(2 * k), (ks // 2) * SLOT + (ks % 2) * 12288 + u * 6144 + (p // 2) * 128 + 8 * t, rd=['stg'], tag_w=f"wr{k}")
    return r
def b_loads(base):
    r = []
    for u in range(2):
        for j in range(4):
            r.append(I(f"buffer_load_dwordx4 {rr((base[0], base[1]+(u*4+j)*4))}, v{vL16}, {sr(sWS,4)}, s{sOffB} offen offset:{1024*j} sc1"))
        r.append(I(f"s_add_u32 s{sOffB}, s{sOffB}, 4096"))
    return r
def k_reads(st, kt):
    r = []
    for s in range(6): r += dsr("ds_read_b128", ar(aK + kt * 24 + s * 4, 4), vKa + s % 2, sbase(st), kt * 6144 + (s // 2) * 128, rd=['stg'])
    return r
def v_reads(st, T):
    r = []
    for u in range(2): r += dsr("ds_read_b64_tr_b16", vr(vVs + (T % 6) * 4 + u * 2, 2), vVa + T % 4, sbase(st), 12288 + u * 6144 + (T // 4) * 128, rd=['stg'], tag_w=f"vr{st}")
    return r
def prefetch(srdn, soff, flags=""):
    x = I(f"buffer_load_dword v{vDum}, v{vL128}, {sr(srdn,4)}, {soff} offen {flags}"); x.writes = set(); return x

def csreg(T): return aCs + T * 4
def p1_quad(k, T0=0, T1=12, vm=(), vmspan=None, extra=()):
    last = k == 4
    per = 20 if k == 0 else 16
    n = (T1 - T0) * per
    s = []
    vm = list(vm)
    if any(x.kind == 'vmem' for x in vm): pace(vm, *(vmspan or (1, n - 20)))
    s += vm + list(extra)
    for T in range(T0, T1):
        if T + 1 < 12: s += w_reads(k, T + 1)
        else:
            s.append(barrier([f"st{2*k+2}", f"wr{k}"] + ([f"st{2*k+3}"] if not last else []), after=n - per - 1))
            s += w_reads(k + 1, 0) if not last else k_reads(10, 0)
        slot = aA1 + (T % 2) * 16
        for j in range(4):
            d = vr(acc1(T, j), 4)
            for ks in range(4):
                s.append(mfma(d, ar(slot + ks * 4, 4), ar(64 * (k % 2) + (ks * 4 + j) * 4, 4), "0" if (k == 0 and ks == 0) else d))
        if k == 0:
            d = ar(csreg(T), 4)
            for ks in range(4): s.append(mfma(d, ar(slot + ks * 4, 4), vr(vOne, 4), d if ks else "0"))
        if k in (2, 3) and T % 2 == k - 2:
            t = vCsT + ((T // 2) % 2) * 4
            for i in range(4): s.append(I(f"v_accvgpr_read_b32 v{t+i}, a{csreg(T)+i}"))
            for j in range(4):
                for i in range(4): s.append(I(f"v_fmac_f32 v{acc1(T,j)+i}, v{t+i}, v{vSta+2*j}"))
        if last and T % 2 == 1:
            p = T // 2
            for j in range(4):
                a = acc1(2 * p, j); q = vQ + (p * 4 + j) * 4
                for i in range(8): s.append(I(f"v_mul_f32 v{a+i}, v{vSta+2*j+1}, v{a+i}"))
                for i in range(4): s.append(I(f"v_cvt_pk_bf16_f32 v{q+i}, v{a+2*i}, v{a+2*i+1}"))
    return s
def w_reads0(n):
    h, T = n // 12, n % 12
    slot = aA1 + (n % 4) * 8
    p, t = T // 2, T % 2
    r = []
    for ks in range(2):
        for u in range(2): r += dsr("ds_read_b64_tr_b16", ar(slot + ks * 4 + u * 2, 2), vWa + p % 2, sbase(0), h * SLOT + ks * 12288 + u * 6144 + (p // 2) * 128 + 8 * t, rd=['stg'], tag_w="wr0")
    return r
def raw_reads(h):
    return [I(f"ds_read_b128 {ar(((2*h+ks)*4+j)*4,4)}, v{(vXo if h == 0 else vXo2) + ks} offset:{j*2048}", tag_r=f"raw{h}", tag_w=f"rawrd{h}") for j in range(4) for ks in range(2)]
def p1_first(n0, n1, extra=()):
    s = list(extra)
    for n in range(n0, n1):
        h, T = n // 12, n % 12
        if n == 8: s += late(raw_reads(1), (8 - n0) * 10)
        if n == 10: s.append(barrier(["st1"], after=(10 - n0) * 10 - 4))
        if n + 2 < 24: s += w_reads0(n + 2)
        elif n == 23:
            s.append(barrier(["st2", "st3", "wr0"], after=(22 - n0) * 10))
            s += w_reads(1, 0)
        slot = aA1 + (n % 4) * 8
        for j in range(4):
            d = vr(acc1(T, j), 4)
            for ks in range(2): s.append(mfma(d, ar(slot + ks * 4, 4), ar(((2 * h + ks) * 4 + j) * 4, 4), "0" if (h == 0 and ks == 0) else d))
        d = ar(csreg(T), 4)
        for ks in range(2): s.append(mfma(d, ar(slot + ks * 4, 4), vr(vOne, 4), "0" if (h == 0 and ks == 0) else d))
    return s
def stat_loads():
    return [I(f"buffer_load_dwordx2 {vr(vSta+2*j,2)}, v{vSo}, {sr(sWS,4)}, s{sScale} offen offset:{128*j} sc1") for j in range(4)]

def Sreg(kt, j, t):
    if j < 2: return (vTmp if t == 0 else vS01) + (j * 2 + kt) * 4
    return vS23 + (t % 2) * 16 + ((j - 2) * 2 + kt) * 4
def Preg(j, t):
    if j < 2: return vP01 + (t % 2) * 8 + j * 4
    return (vTmp + 8 if t == 15 else vP23) + (j - 2) * 4
def qk(kt, t):
    s = []
    for j in range(4):
        d = vr(Sreg(kt, j, t), 4)
        for p in range(6):
            c = d if p else ("0" if (t == 0 and kt == 0) else vr(vNm + 4 * j, 4))
            s.append(mfma(d, ar(aK + kt * 24 + p * 4, 4), vr(vQ + (p * 4 + j) * 4, 4), c))
    return s
def softmax(j, t):
    s = []
    for kt in range(2):
        a = Sreg(kt, j, t)
        for i in range(4): s.append(I(f"v_exp_f32 v{a+i}, v{a+i}"))
        for i in range(4): s.append(I(f"v_add_f32 v{vLs+j}, v{vLs+j}, v{a+i}"))
        for i in range(2): s.append(I(f"v_cvt_pk_bf16_f32 v{Preg(j,t)+kt*2+i}, v{a+2*i}, v{a+2*i+1}"))
    return s
def pv_T(T, t):
    s = []
    for j in range(4):
        d = ar((T * 4 + j) * 4, 4)
        s.append(mfma(d, vr(vVs + (T % 6) * 4, 4), vr(Preg(j, t), 4), "0" if t == 0 else d))
    return s

HALFB = 'halfb' in KN
def p2_iter(t, base=0, extra=(), post=(), btag=()):
    st = 11 + t
    s = []
    s += k_reads(st, 1)
    u = st - 12
    if u >= 0:
        for h in range(2): s += dsr("ds_read_b64_tr_b16", ar(aR + 2 * h, 2), vRa, sbase(st), 24576 + 2048 * h, rd=['stg'])
    s += pace(dma_stage(st + 3) + list(extra), base + 4, base + (PAR("HP", 50) if (HALFB and t % 2) else 68))
    if t > 0: s += softmax(2, t) + softmax(3, t)
    s += qk(0, t + 1) + qk(1, t + 1)
    for T in range(6): s += v_reads(st, T)
    s += softmax(0, t + 1) + softmax(1, t + 1)
    if t == 14: s += softmax(2, 15) + softmax(3, 15)
    for T in range(12):
        s += pv_T(T, t)
        if T < 6: s += v_reads(st, T + 6)
        if T == 5:
            if not HALFB: s.append(barrier([f"st{st+1}"] + list(btag), after=base + 70))
            elif t % 2 == 0: s.append(barrier([f"st{st+1}", f"st{st+2}", f"vr{st}"] + list(btag), after=base + PAR("HB", 78)))
            else: assert not btag
            if t < 14: s += late(k_reads(st + 1, 0), base + 60) if (HALFB and t % 2) else k_reads(st + 1, 0)
            if u >= 0:
                if u == 4: s += L(f"s_mov_b32 s{sOffD}, s{sOffDo}")
                if u == 12: s += L(f"s_mov_b32 s{sOffD}, s{sOffDd}")
                s.append(I(f"buffer_store_dwordx4 {ar(aR,4)}, v{vL16}, {sr(sWS,4)}, s{sOffD} offen sc1", after=base + 80, tag_w="Gst" if u < 4 else "Wst" if u < 12 else "Dst"))
                s.append(I(f"s_add_u32 s{sOffD}, s{sOffD}, {6144 if u < 4 else 10240 if u < 12 else 5120}"))
        if t == 14 and T >= 6: s += v_reads(st + 1, T - 6)
    s += list(post)
    return s

def first_tile(base):
    s = []
    s += k_reads(10, 1)
    s += pace(dma_stage(13), base + 2, base + 30)
    s += qk(0, 0)
    for j in range(4):
        a = Sreg(0, j, 0); m = vNm + 4 * j; t = m + 1
        s += L(f"v_max3_f32 v{m}, v{a}, v{a+1}, v{a+2}\nv_max_f32 v{m}, v{m}, v{a+3}")
        s += xreduce(m, t, "v_max_f32")
        s += L(f"v_sub_f32 v{m+1}, 0, v{m}\nv_sub_f32 v{m+2}, 0, v{m}\nv_sub_f32 v{m+3}, 0, v{m}\nv_sub_f32 v{m}, 0, v{m}")
        for i in range(4): s.append(I(f"v_add_f32 v{a+i}, v{a+i}, v{m}"))
    s.append(barrier("st11", after=base + 28))
    s += k_reads(11, 0)
    s += qk(1, 0)
    for j in range(4): s += softmax(j, 0)
    return s

vGA = 160; vOP = 184
BBUF = [('a', 192), ('a', 224), ('v', 208), ('a', 0)]
def g_reads(n, tagr='stg', pos=None):
    ds, grp = n // 6, n % 6
    slot = vGA + ((n if pos is None else pos) % 3) * 8
    r = []
    for ks in range(2): r += dsr("ds_read_b128", vr(slot + ks * 4, 4), vGa, sbase(27 + ds // 2), (((ds % 2) * 2 + ks) * 6 + grp) * 1024, rd=[tagr])
    return r
def acc3(grp, j): return vAcc + (grp * 4 + j) * 4

def tail_pv(base):
    s = L(f"s_sub_u32 s{sOffB}, s{sOffB}, {20*4096}")
    wf = set_flag(f"s{sFg}", None, rd=['stg'])
    s += pace([wf] + L(f"s_add_u32 s{sFg}, s{sFg}, {FW2-FW}") + b_loads(BBUF[0]), base - 11, base + 22)
    for T in range(12):
        s += pv_T(T, 15)
        if T < 6: s += v_reads(26, T + 6)
        if T == 5:
            if not HALFB: s.append(barrier("st27", after=base + 24))
            s += g_reads(0) + g_reads(1)
            s += pace(b_loads(BBUF[1]), base + 22, base + 48)
    for j in range(4): s += xreduce(vLs + j, vTmp + j, "v_add_f32")
    s += L(f"""v_add_f32 v{vTmp}, v{vLs}, v{vLs+1}
v_add_f32 v{vTmp+1}, v{vLs+2}, v{vLs+3}
v_add_f32 v{vTmp}, v{vTmp}, v{vTmp+1}
v_cmp_ngt_f32 vcc, {hex(f2u(2.0**40))}, v{vTmp}""")
    for j in range(4): s.append(I(f"v_rcp_f32 v{vLs+j}, v{vLs+j}"))
    return s

def split(lst):
    ch = []; cur = []
    for x in lst:
        cur.append(x)
        if x.kind == 'vmem': ch.append(cur); cur = []
    if cur: ch[-1] += cur
    return ch
def merge(qs):
    qs = [list(q) for q in qs]
    w = [len(q) for q in qs]; tot = sum(w); acc = [0.0] * len(qs); seq = []
    for k in range(tot):
        for z in range(len(qs)): acc[z] += w[z]
        z = max((z for z in range(len(qs)) if qs[z]), key=lambda z: acc[z])
        acc[z] -= tot; seq.append(qs[z].pop(0))
    return seq

vOA = 32; vOB = 33; vDA = 34; vDB = 35
vOa = 40; vPo = 41; vFa = 42; vFa2 = 43; vFl = 44
vAc = 64; vDc = 144; vPk = 164; vXr = 204; vPl = 64
def fA(e, t, ks): return e * 72 + (t * 2 + ks) * 4
def fB(e, j, ks): return 40 + e * 72 + (ks * 4 + j) * 4
def dA(e, n): return (144 if e == 0 else 0) + n * 4
def dB(e, ks): return (144 if e == 0 else 0) + 80 + ks * 4
def dmaA(sg, rd='stg'):
    r = []
    if sg == 24: r += L(f"s_mov_b32 s{sOffA}, s{sOffRo}")
    r.append(I(f"s_add_u32 m0, s{sM5}, {obase(sg)}"))
    for n in range(5):
        if n == 4: r += L(f"s_add_u32 m0, s{sM5}, {obase(sg)+4096}\ns_add_u32 s{sOffA}, s{sOffA}, 4096")
        r.append(I(f"buffer_load_dwordx4 v{vL16}, {sr(sWS,4)}, s{sOffA} offen offset:{1024*(n%4)} sc1 lds", tag_w=f"ot{sg}", rd=[rd]))
    r.append(I(f"s_add_u32 s{sOffA}, s{sOffA}, {20480-4096}"))
    return r
def dmaB(sg, rd='stg'):
    r = []
    if sg == 24: r += L(f"s_mov_b32 s{sOffBB}, s{sOffRd}")
    r.append(I(f"s_add_u32 m0, s{sM4}, {obase(sg)+20480}"))
    for n in range(4):
        r.append(I(f"buffer_load_dwordx4 v{vL16}, {sr(sWS,4)}, s{sOffBB} offen offset:{1024*n} sc1 lds", tag_w=f"ot{sg}", rd=[rd]))
    r.append(I(f"s_add_u32 s{sOffBB}, s{sOffBB}, {8192 if sg < 24 else 16384}"))
    return r
def apf():
    if "apf" not in KN: return []
    return [prefetch(sWS, f"s{sPf}", "sc1")] + L(f"s_add_u32 s{sPf}, s{sPf}, 81920")
def o_reads(sg):
    e = sg % 2; kw = dict(rd=['stg'], tag_w=f"rd{sg}")
    r = []
    if sg < 24:
        for ks in range(2): r += dsr("ds_read_b128", ar(fA(e, 0, ks), 4), vOA, obase(sg), ks * 10240, **kw)
        for j in range(4):
            for ks in range(2): r += dsr("ds_read_b128", ar(fB(e, j, ks), 4), vOB, obase(sg), ks * 8192 + j * 1024, **kw)
        for t in range(1, 5):
            for ks in range(2): r += dsr("ds_read_b128", ar(fA(e, t, ks), 4), vOA, obase(sg), (ks * 10 + t) * 1024, **kw)
    else:
        for ks in range(4): r += dsr("ds_read_b128", ar(dB(e, ks), 4), vDB, obase(sg), ks * 4096, **kw)
        for T in range(5):
            for ks in range(4): r += dsr("ds_read_b128", ar(dA(e, ks * 5 + T), 4), vDA, obase(sg), (ks * 5 + T) * 1024, **kw)
    return r
def dmaD(g):
    r = []
    for h in range(2):
        r.append(I(f"s_add_u32 m0, s{sM3}, {obase(24+g)+4096*h}"))
        for n in range(4): r.append(I(f"buffer_load_dwordx4 v{vL16}, {sr(sWS,4)}, s{sOffRo} offen offset:{1024*n} sc1 lds", tag_w=f"ot{24+g}", rd=['stg']))
        r.append(I(f"s_add_u32 s{sOffRo}, s{sOffRo}, {4096 if h == 0 else 30720-4096}"))
    return r
DRING = [240, 244, 248, 252] + list(range(96, 144, 4))
vDo = 216; vHp = 236; vHr = 246
def dBreg(p, k): return (144 if p == 0 else 0) + 4 * k
def d_bload(p, k):
    so = sOffRd if p == 0 else sOffBB
    return [I(f"buffer_load_dwordx4 {ar(dBreg(p,k),4)}, v{vL16}, {sr(sWS,4)}, s{so} offen sc1"), I(f"s_add_u32 s{so}, s{so}, 4096")]
def d_read(n):
    g, T, k = (n % 120) // 30, (n % 30) // 6, n % 6
    return dsr("ds_read_b128", ar(DRING[n % 16], 4), vDA, obase(24 + g), (k * 5 + T) * 1024, rd=['stg'])
DLA = 12
def d_block(p, g, extra=(), post=()):
    s = list(extra)
    if any(x.kind == 'vmem' for x in s): pace(s, 0, 29)
    acc = vDo if p == 0 else vDc
    for i in range(30):
        n = p * 120 + g * 30 + i
        first = 4 if n == 0 else n + DLA
        for m in range(first, n + DLA + 1):
            if m < 240:
                if m < 120 and m % 30 == 0: s.append(I("s_barrier", tag_r=[f"ot{24+m//30}"], wr=['stg']))
                s += d_read(m)
        T, k = i // 6, i % 6
        d = vr(acc + 4 * T, 4)
        s.append(mfma(d, ar(DRING[n % 16], 4), ar(dBreg(p, g * 6 + k), 4), "0" if (g == 0 and k == 0) else d))
    return s + list(post)
def o_block(sg, extra=(), pre=(), mid=(), exfirst=False):
    e = sg % 2
    s = list(pre)
    s += [I("s_barrier", tag_r=[f"ot{sg+1}", f"rd{sg}"], wr=['stg'], after=2)]
    if sg < 23: s += o_reads(sg + 1)
    else:
        for m in range(4): s += d_read(m)
    db = dmaB(sg + 4) + dmaA(sg + 4) if sg < 20 else dmaD(sg - 20)
    vm = split(db[:2] + list(mid) + db[2:])
    ex = split(list(extra)) if any(x.kind == 'vmem' for x in extra) else []
    if exfirst: seq = list(extra) + [x for ch in vm for x in ch]
    else: seq = [x for ch in merge([vm, ex]) for x in ch] if ex else [x for ch in vm for x in ch] + list(extra)
    pace(seq, 3, 40)
    s += seq
    for t in range(5):
        for j in range(4):
            for ks in range(2):
                d = vr(vAc + (t * 4 + j) * 4, 4)
                s.append(mfma(d, ar(fA(e, t, ks), 4), ar(fB(e, j, ks), 4), "0" if (sg == 0 and ks == 0) else d))
    return s

OF = PAR('OF', 4); OC = PAR('OC', 7); WC = PAR('WC', 5)
vFo2 = 37
vHs = 48
def p3_steps():
    oe = []
    n = 0
    for p in range(6):
        for j in range(4):
            t = vTmp + (n % 2) * 8; o = vOP + (n % 6) * 4
            it = []
            for tt in range(2):
                for i in range(4): it.append(I(f"v_accvgpr_read_b32 v{t+tt*4+i}, a{((2*p+tt)*4+j)*4+i}"))
            for i in range(8): it.append(I(f"v_mul_f32 v{t+i}, v{t+i}, v{vLs+j}"))
            for i in range(4): it.append(I(f"v_cvt_pk_bf16_f32 v{o+i}, v{t+2*i}, v{t+2*i+1}"))
            it.append(I(f"buffer_store_dwordx4 {vr(o,4)}, v{vL16}, {sr(sWS,4)}, s{sOffO} offen offset:{1024*j} sc1", tag_w="Ost"))
            if j == 3: it.append(I(f"s_add_u32 s{sOffO}, s{sOffO}, 4096"))
            oe.append(it); n += 1
    nst = [int(x) for x in os.environ.get("NST", "6,6,6,6,0,0,0,0,0,0").split(",")]
    g29, g30, g31 = split(dma_stage(29)), split(dma_stage(30)), split(dma_stage(31))
    dm = {0: g29[:3], 1: g29[3:], 2: g30[:3], 3: g30[3:], 4: g31[:3], 5: g31[3:]}
    a0, a1, a2 = [split(dmaA(k, 'x')) for k in range(3)]
    b0, b1, b2 = [split(dmaB(k, 'x')) for k in range(3)]
    assert WC <= 5 and OC == 7
    dm[6] = a0; dm[7] = a1; dm[8] = b0 + b1 + a2[:2]; dm[9] = a2[2:] + b2
    allb = [c for d in range(2, 10) for c in split(b_loads(BBUF[d % 4]))]
    cnt = [int(x) for x in os.environ.get("NB", "8,8,8,8,9,9,8,6,0,0").split(",")]
    BQ = []
    for k in cnt: BQ.append(allb[:k]); allb = allb[k:]
    assert not allb
    steps = []
    for ds in range(10):
        s = []
        take = BQ[ds]
        st = [oe.pop(0) for _ in range(nst[ds])]
        seq = merge([take, dm.get(ds, []), st])
        if ds == 2: seq.insert(0, [set_flag(f"s{sFg}", None)])
        if ds == WC - 1: seq.insert(0, L(f"s_mov_b32 s{sT0}, {hex(FW)}") + [poll_load(vFl, vL16, f"s{sT0}", 4)])
        if ds == OF: seq.insert(int(len(seq) * PAR("OFP", 0.5)), [set_flag(f"s{sFl}", "Ost")])
        if ds == PAR("OP", 6): seq.insert(int(len(seq) * PAR("OPP", 0.6)), [poll_load(vFo2, vFa, f"s{sT1}")])
        flat = [x for ch in seq for x in ch]
        s += ('pace', flat),
        for grp in range(6):
            n = ds * 6 + grp
            real = lambda m: m if m < 48 else 48 + ((m - 48) % 2) * 6 + (m - 48) // 2
            if n + 2 < 60:
                if (n + 2) % 12 == 0:
                    stg = 27 + (n + 2) // 12
                    tags = [f"st{stg}"] + (["Dst"] if stg == 28 else [])
                    s.append(I("s_barrier", tag_r=tags, wr=['stg2'], after=24))
                s += g_reads(real(n + 2), 'stg2', n + 2)
            slot = vGA + (n % 3) * 8
            rds, rg = real(n) // 6, real(n) % 6
            B = BBUF[rds % 4]
            for j in range(4):
                for ks in range(2):
                    d = vr(acc3(rg, j), 4)
                    s.append(mfma(d, vr(slot + ks * 4, 4), rr((B[0], B[1] + (ks * 4 + j) * 4)), "0" if (ds == 0 and ks == 0) else d))
            if rds == 9 and rg % 2 == 1: s += h_epilogue(rg // 2)
        steps.append(s)
    assert not oe
    return steps
HST = []
def h_epilogue(T3):
    s = []
    if True:
        for jp in range(2):
            o = vOP + ((T3 * 2 + jp) % 6) * 4
            for jj in range(2):
                j = jp * 2 + jj
                g = acc3(2 * T3, j); u = acc3(2 * T3 + 1, j)
                for i in range(4): s.append(I(f"v_mul_f32 v{g+i}, v{g+i}, v{u+i}"))
                for i in range(2): s.append(I(f"v_cvt_pk_bf16_f32 v{o+jj*2+i}, v{g+2*i}, v{g+2*i+1}"))
            for i in range(2): s.append(I(f"v_permlane32_swap_b32 v{o+i}, v{o+2+i}"))
            HST.append(I(f"buffer_store_dwordx4 {vr(o,4)}, v{vT}, {sr(sWS,4)}, s{sOffH+T3} offen offset:{2048*jp} sc1", tag_w="Hst"))
    return s
def join_steps(steps, n=48):
    out = []
    for k, s in enumerate(steps):
        base = k * n
        for x in s:
            if isinstance(x, tuple):
                if any(y.kind == 'vmem' for y in x[1]): pace(x[1], base, base + n - 1)
                out += x[1]
            else:
                if x.after is not None: x.after += base
                out.append(x)
    return out

def gen_fallback():
    F = Prog()
    vK = 232; vS = 176; vP = 208
    vf, vv, va = 48, 49, 50
    sK_, sV_ = sK, sV
    def kload():
        return [I(f"buffer_load_dwordx4 {vr(vK+4*p,4)}, v{vf}, {sr(sK_,4)}, s{sT0} offen offset:{64*p}") for p in range(6)] + L(f"s_add_u32 s{sT0}, s{sT0}, 6144")
    def chains(kt, c0):
        s = []
        for j in range(4):
            d = vr(vS + (j * 2 + kt) * 4, 4)
            for p in range(6): s.append(mfma(d, vr(vK + 4 * p, 4), vr(vQ + (p * 4 + j) * 4, 4), d if p else c0(j)))
        return s
    c = L("L_fb:\ns_waitcnt vmcnt(0) lgkmcnt(0)\ns_nop 15")
    c += L(f"""v_and_b32 v54, 15, v0
v_lshrrev_b32 v55, 4, v0
v_mul_u32_u24 v{vf}, 384, v54
v_lshl_add_u32 v{vf}, v55, 4, v{vf}
v_lshrrev_b32 v56, 3, v0
v_and_b32 v57, 7, v0
v_and_b32 v58, 6, v56
v_xor_b32 v57, v57, v58
v_mul_u32_u24 v{vv}, 384, v56
v_lshl_add_u32 v{vv}, v57, 4, v{vv}
v_lshrrev_b32 v56, 2, v54
v_lshl_add_u32 v56, v55, 2, v56
v_bfe_u32 v57, v56, 1, 2
v_lshlrev_b32 v56, 7, v56
v_and_b32 v58, 3, v0
v_lshl_add_u32 v56, v58, 3, v56
s_lshl_b32 s{sT2}, s{sW}, 12
s_add_u32 s{sT2}, s{sT2}, {LDS_X}
v_add_u32 v56, s{sT2}, v56""")
    for x in range(4): c += L(f"v_xor_b32 v58, {x}, v57\nv_lshl_add_u32 v{va+x}, v58, 5, v56")
    c += L(f"""s_mul_i32 s{sT1}, s{sH}, 786432
s_add_u32 s{sT1}, s{sT1}, {1536*384}
s_mov_b32 s{sT0}, s{sT1}
s_mov_b32 s{sSpin}, 0""")
    for j in range(4): c += L(f"v_mov_b32 v{vNm+4*j}, 0xff800000")
    F.block("a", c)
    c = L("L_fb1:") + kload() + chains(0, lambda j: "0")
    for j in range(4):
        a = vS + j * 8; m = vNm + 4 * j
        c += L(f"v_max3_f32 v{m}, v{m}, v{a}, v{a+1}\nv_max3_f32 v{m}, v{m}, v{a+2}, v{a+3}")
    c += L(f"s_add_u32 s{sSpin}, s{sSpin}, 1\ns_cmp_lt_u32 s{sSpin}, 32\ns_cbranch_scc1 L_fb1")
    F.block("b", c)
    c = []
    for j in range(4):
        m = vNm + 4 * j
        c += xreduce(m, m + 1, "v_max_f32")
        c += L(f"v_sub_f32 v{m+1}, 0, v{m}\nv_sub_f32 v{m+2}, 0, v{m}\nv_sub_f32 v{m+3}, 0, v{m}\nv_sub_f32 v{m}, 0, v{m}\nv_mov_b32 v{vLs+j}, 0")
    for i in range(192): c.append(I(f"v_accvgpr_write_b32 a{i}, 0"))
    c += L(f"s_mov_b32 s{sT0}, s{sT1}\ns_mov_b32 s{sSpin}, 0")
    F.block("c", c)
    c = L("L_fb2:")
    for kt in range(2): c += kload() + chains(kt, lambda j: vr(vNm + 4 * j, 4)) + L("s_nop 7")
    for j in range(4):
        for kt in range(2):
            a = vS + (j * 2 + kt) * 4
            for i in range(4): c.append(I(f"v_exp_f32 v{a+i}, v{a+i}"))
            for i in range(4): c.append(I(f"v_add_f32 v{vLs+j}, v{vLs+j}, v{a+i}"))
            for i in range(2): c.append(I(f"v_cvt_pk_bf16_f32 v{vP+j*4+kt*2+i}, v{a+2*i}, v{a+2*i+1}"))
    for cg in range(3):
        for a in range(4):
            c += L(f"""s_add_u32 m0, s{sT2}, {1024*a}
s_add_u32 s{sOffP}, s{sT1}, {3072*a+128*cg}
buffer_load_dwordx4 v{vv}, {sr(sV_,4)}, s{sOffP} offen lds""")
        c += L("s_waitcnt vmcnt(0)")
        for x in range(4):
            for u in range(2): c.append(I(f"ds_read_b64_tr_b16 {vr(vK+4*x+2*u,2)}, v{va+x} offset:{2048*u}"))
        c += L("s_waitcnt lgkmcnt(0)")
        for x in range(4):
            for j in range(4):
                d = ar(((cg * 4 + x) * 4 + j) * 4, 4)
                c.append(mfma(d, vr(vK + 4 * x, 4), vr(vP + 4 * j, 4), d))
        c += L("s_nop 7")
    c += L(f"s_add_u32 s{sT1}, s{sT1}, 12288\ns_add_u32 s{sSpin}, s{sSpin}, 1\ns_cmp_lt_u32 s{sSpin}, 16\ns_cbranch_scc1 L_fb2")
    F.block("d", c)
    c = []
    for j in range(4): c += xreduce(vLs + j, vTmp + j, "v_add_f32")
    for j in range(4): c.append(I(f"v_rcp_f32 v{vLs+j}, v{vLs+j}"))
    c += L("s_nop 15\ns_branch L_fb_back")
    F.block("e", c)
    F.trace = [("a", {}), ("b", {}), ("b", {}), ("c", {}), ("d", {}), ("d", {}), ("e", {})]
    F.insert_waits(); F.fix_hazards()
    return F.text()


def gen(dbg=False):
    P = Prog()
    OUTL.clear(); AD.clear(); HST.clear()
    for i in range(2): AD[vWa + i] = Addr(vWa + i, sbase(0)); AD[vKa + i] = Addr(vKa + i, 0)
    for i in range(4): AD[vVa + i] = Addr(vVa + i, 0)
    AD[vRa] = Addr(vRa, sbase(12)); AD[vGa] = Addr(vGa, sbase(27))
    AD[vOA] = Addr(vOA, obase(0)); AD[vOB] = Addr(vOB, obase(0)); AD[vDA] = Addr(vDA, obase(24)); AD[vDB] = Addr(vDB, obase(24))
    nblk = [0]
    def blk(ins, name=None):
        nm = name or f"b{nblk[0]}"; nblk[0] += 1
        P.block(nm, ins); P.trace.append((nm, {}))
    CPA = PAR("CPA", 10000)
    cp = [3]
    def sch(s, name, **kw):
        if name.startswith("p2_") or name.startswith("p1_"):
            if "nost" in KN: s = [x for x in s if not (x.kind == 'vmem' and 'store_dwordx4' in x.text)]
            if "norl" in KN: s = [x for x in s if not (x.kind == 'vmem' and f"s[{sR}:{sR+3}]" in x.text)]
            if "kvhit" in KN: s = [x for x in s if not x.text.startswith((f"s_add_u32 s{sOffK}, s{sOffK}, 12288", f"s_add_u32 s{sOffV}, s{sOffV}, 12288"))]
            if "nobar" in KN: s = [x for x in s if x.kind != 'barrier']
            if "novm" in KN: s = [x for x in s if not (x.kind == 'vmem' and 'dwordx4' in x.text and 'v[48:51]' not in x.text)]
            if "novalu" in KN and name.startswith("p2_"): s = [x for x in s if not (x.kind in ('valu', 'trans') and x.text.startswith(('v_exp', 'v_add_f32', 'v_cvt')))]
        if name.startswith("p3"):
            if "p3nost" in KN: s = [x for x in s if not (x.kind == 'vmem' and 'store_dwordx4' in x.text)]
            if "p3nob" in KN: s = [x for x in s if not (x.kind == 'vmem' and 'load_dwordx4' in x.text and ' lds' not in x.text and f"s{sOffB} " in x.text)]
            if "p3novalu" in KN: s = [x for x in s if not (x.kind == 'valu' and x.text.startswith(('v_accvgpr', 'v_mul_f32', 'v_cvt')))]
            if "p3plain" in KN:
                for x in s:
                    if 'store_dwordx4' in x.text: x.text = x.text.replace(" sc1", "")
            if "p3nt" in KN:
                for x in s:
                    if 'store_dwordx4' in x.text: x.text = x.text.replace(" sc1", " sc1 nt")
        pos = sum(isize(x) for b in P.blocks for x in b[1]) * 1.03
        end = pos + sum(isize(x) for x in s) * 1.03
        nm = sum(1 for x in s if x.kind == 'mfma')
        while "nocp" not in KN and cp[0] * 8192 < end + CPA and cp[0] < NSLICE:
            g = int(max(0, min(nm - 2, (cp[0] * 8192 - CPA - pos) / (end - pos) * nm)))
            k = next((i for i, x in enumerate(s) if x.kind == 'vmem' and x.after is not None and x.after > g), len(s))
            cpl = I(f"global_load_dword v{vDum}, v{vL16}, s[62:63]", after=g); cpl.writes = set()
            s = s[:k] + [cpl, I("s_add_u32 s62, s62, 0x2000"), I("s_addc_u32 s63, s63, 0")] + s[k:]
            cp[0] += 1
        blk(schedule(s, name, verbose=dbg and "v" in KN, **kw), name)
    CC = math.log2(math.e) / math.sqrt(192.0)
    c = L(f"""s_cmp_ge_u32 s2, 256
s_cbranch_scc1 L_end
s_load_dwordx16 s[64:79], s[0:1], 0
s_load_dwordx8 s[80:87], s[0:1], 64
s_memrealtime s[{sSt}:{sSt+1}]
s_getpc_b64 s[62:63]
v_lshrrev_b32 v30, 6, v0
v_and_b32 v0, 63, v0
v_readfirstlane_b32 s{sW}, v30
v_lshlrev_b32 v{vL16}, 4, v0
v_lshlrev_b32 v{vL128}, 7, v0
v_and_b32 v48, 7, v0
v_lshrrev_b32 v49, 3, v0
v_mul_u32_u24 v60, 1280, v48
v_lshl_add_u32 v50, v49, 4, v60
v_lshl_add_u32 v50, v30, 7, v50
s_mul_i32 s{sT0}, s2, {8*1280}
s_and_b32 s{sT1}, s2, 7
s_lshr_b32 s{sT2}, s2, 3
s_and_b32 s{sH}, s{sT2}, 3
s_lshl2_add_u32 s{sH}, s{sT1}, s{sH}
s_lshr_b32 s{sB}, s{sT2}, 2
s_lshr_b32 s{sS}, s{sT1}, 1
s_and_b32 s{sT1}, s{sT1}, 1
s_lshl3_add_u32 s{sMb}, s{sT1}, s{sB}
s_and_b32 s{sNb}, s{sT2}, 3
v_cmp_eq_u32 vcc, 0, v0
v_bfrev_b32 v51, 1
v_cndmask_b32 v{vFo}, v51, 0, vcc
v_cmp_gt_u32 vcc, 2, v30
v_add_u32 v53, 1024, v50
v_cndmask_b32 v53, v51, v53, vcc
s_lshl2_add_u32 s{sT2}, s{sT2}, s{sW}
s_and_b32 s{sT2}, s{sT2}, 15
s_min_u32 s{sT2}, s{sT2}, CODE_SLICES-1
s_lshl_b32 s{sT2}, s{sT2}, 13
v_add_u32 v52, s{sT2}, v{vL128}
global_load_dword a{aDum}, v52, s[62:63]
v_lshrrev_b32 v54, 4, v0
v_and_b32 v55, 15, v0
v_and_b32 v61, 6, v49
v_xor_b32 v61, v61, v48
v_lshlrev_b32 v61, 4, v61
v_mul_u32_u24 v62, 1280, v49
v_add_u32 v{vRo2}, v62, v61
v_and_b32 v62, 4, v49
v_add_u32 v62, v62, v49
v_mul_u32_u24 v62, 3072, v62
v_add_u32 v{vRo}, v62, v61
s_lshl_b32 s{sM5}, s{sW}, 13
s_add_u32 s{sM4}, s{sM5}, {SLOT}
s_cmp_eq_u32 s{sW}, 3
s_cmov_b32 s{sM5}, {LDS_X + 4096}
s_lshl2_add_u32 s{sQg}, s{sB}, s{sW}
s_mul_i32 s{sOffBB}, s{sQg}, {64*1280}""")
    if STAMPS: c += L(f"v_mov_b32 v{vSt}, 0")
    c += L("s_waitcnt lgkmcnt(0)")
    c += srd(sXin, pX, 2048 * 640 * 2)
    c += L(f"""buffer_load_dwordx4 v[64:67], v50, {sr(sXin,4)}, s{sT0} offen
buffer_load_dwordx4 v[68:71], v50, {sr(sXin,4)}, s{sT0} offen offset:512
buffer_load_dwordx4 v[72:75], v53, {sr(sXin,4)}, s{sT0} offen
buffer_load_ushort v76, v60, {sr(sXin,4)}, s{sT0} offen""")
    c += srd(sR, pDbg, 256)
    c += L(f"""s_or_b32 s{sNonce}, s{sSt}, 1
v_mov_b32 v56, s{sNonce}
v_mov_b32 v57, 0
s_or_b32 s{sT1}, s2, s{sW}
s_cmp_eq_u32 s{sT1}, 0
s_cselect_b32 s{sT1}, 0, 0x100
buffer_atomic_cmpswap v[56:57], v{vFo}, {sr(sR,4)}, s{sT1} offen sc1""")
    c += stamp(0)
    def rawdma(ds):
        r = []
        for a in range(8):
            r += L(f"s_add_u32 m0, s{sM4 if ds == 0 else sM5}, {a*1024}\ns_add_u32 s{sOffA}, s{sOffBB}, {a*8*1280+128*ds}")
            r.append(I(f"buffer_load_dwordx4 v{vRo2}, {sr(sXin,4)}, s{sOffA} offen lds", tag_w=f"raw{ds}"))
        return r
    def inter(vm, fill):
        ch = split(vm); out = []; per = -(-len(fill) // len(ch))
        for k, cc in enumerate(ch): out += cc + fill[k * per:(k + 1) * per]
        return out
    f1 = []
    for n in range(3):
        f1.append(I(f"v_add_u32 v61, {64*n}, v0"))
        f1 += divmod_const(62, 63, 61, 24)
        f1 += L(f"""v_and_b32 v57, 6, v62
v_xor_b32 v57, v63, v57
v_lshlrev_b32 v57, 4, v57
v_subrev_u32 v57, {1024*n}, v57
v_and_b32 v59, 4, v62
v_add_u32 v59, v59, v62
v_mul_u32_u24 v59, 12288, v59
v_add_u32 v{vWo+n}, v59, v57""")
    f1 += srd(sWq, pWq, 640 * 6144 * 2) + srd(sWS, pWs, WS_SIZE)
    f1 += L(f"""s_lshr_b32 s{sT0}, s{sW}, 1
s_and_b32 s{sOffY}, s{sW}, 1
s_lshl_b32 s{sT2}, s{sT0}, 5
s_lshl2_add_u32 s{sT2}, s{sOffY}, s{sT2}
s_mul_i32 s{sOffX}, s{sT2}, 12288
s_mul_i32 s{sT2}, s{sH}, 384
s_add_u32 s{sOffX}, s{sOffX}, s{sT2}
s_mul_i32 s{sM6}, s{sW}, 6144""")
    f2 = L(f"""v_lshrrev_b32 v56, 2, v55
v_and_b32 v57, 3, v0
v_lshl_add_u32 v58, v54, 2, v56
v_bfe_u32 v59, v58, 1, 2
v_mul_u32_u24 v62, 384, v58
v_add_u32 v62, {sbase(0)}, v62
v_lshlrev_b32 v63, 1, v59
v_xor_b32 v63, v63, v57
v_lshl_add_u32 v{vWa}, v63, 4, v62
v_xor_b32 v63, 4, v63
v_lshl_add_u32 v{vWa+1}, v63, 4, v62
v_bfe_u32 v{vPa}, v0, 2, 3
v_lshlrev_b32 v{vPa}, 7, v{vPa}
v_lshl_add_u32 v{vPa}, v57, 2, v{vPa}
v_lshlrev_b32 v{vSo}, 3, v55
v_lshlrev_b32 v62, 7, v55
v_and_b32 v63, 6, v55
v_xor_b32 v63, v63, v54
v_lshl_add_u32 v{vXo2}, v63, 4, v62
v_xor_b32 v63, 4, v63
v_lshl_add_u32 v{vXo2+1}, v63, 4, v62
v_add_u32 v{vXo}, s{sM4}, v{vXo2}
v_add_u32 v{vXo+1}, s{sM4}, v{vXo2+1}
v_add_u32 v{vXo2}, s{sM5}, v{vXo2}
v_add_u32 v{vXo2+1}, s{sM5}, v{vXo2+1}
v_lshlrev_b32 v58, 3, v48
v_add_u32 v58, {LDS_X}, v58
v_lshl_add_u32 v59, v30, 6, v58
v_lshrrev_b32 v56, 2, v49
v_lshl_add_u32 v56, v30, 1, v56
v_lshlrev_b32 v56, 12, v56
v_and_b32 v57, 3, v49
v_lshl_add_u32 v56, v57, 8, v56
v_lshl_add_u32 v56, v48, 4, v56
v_add_u32 v57, {16*4096}, v56
v_cndmask_b32 v57, v51, v57, vcc
v_or_b32 v61, v49, v30
v_cmp_eq_u32 vcc, 0, v61
v_lshlrev_b32 v61, 3, v48
v_cndmask_b32 v61, v51, v61, vcc
s_lshr_b32 s{sT2}, s2, 3
s_mul_i32 s{sT2}, s{sT2}, {20*4096}
s_bfe_u32 s{sOffK}, s2, 0x20001
s_lshl_b32 s{sOffK}, s{sOffK}, 10
s_add_u32 s{sT2}, s{sT2}, s{sOffK}
s_and_b32 s{sOffK}, s2, 1
s_lshl_b32 s{sOffK}, s{sOffK}, 7
s_add_u32 s{sT2}, s{sT2}, s{sOffK}
s_add_u32 s{sOffK}, s{sT2}, {8*4096}
s_lshl_b32 s{sOffP}, s2, 6
s_add_u32 s{sOffP}, s{sOffP}, {hex(ST_OFF)}
s_lshr_b32 s{sSpin}, s{sW}, 1
s_sub_u32 s{sSpin}, s{sSpin}, 1
s_and_b32 s{sSpin}, s{sSpin}, 0x3f800000""")
    pfv = divmod_const(62, 63, 0, 3) + L(f"""v_mul_u32_u24 v62, 12288, v62
v_lshl_add_u32 v62, v63, 7, v62
v_cmp_gt_u32 vcc, 12, v0
v_cndmask_b32 v{vL128}, v51, v62, vcc
s_lshl_b32 s{sQd}, s{sQg}, 2
s_add_u32 s{sQd}, s{sQd}, 256
s_mul_i32 s{sQd}, s{sQd}, 12288
s_mul_i32 s{sOffG}, s{sH}, 384
s_add_u32 s{sQd}, s{sQd}, s{sOffG}""")
    f2 += pfv
    for i in range(4): f2.append(I(f"v_mov_b32 v{vOne+i}, 0x3f803f80"))
    c += inter(rawdma(0), f1)
    c += inter(dma_stage(0), f2)
    c += L(f"v_mov_b32 v60, 0\nbuffer_load_dword v{vNon}, v60, {sr(sR,4)}, 0 offen sc1\ns_mov_b32 s{sT1}, s{sOffY}\ns_mov_b32 s{sT3}, s{sOffK}")
    su0 = L(f"""s_lshl_b32 s{sFl}, s2, 7
s_lshl2_add_u32 s{sFl}, s{sW}, s{sFl}
s_add_u32 s{sFl}, s{sFl}, {hex(FXN)}
s_lshl_b32 s{sFg}, s{sQg}, 10
s_add_u32 s{sFg}, s{sFg}, {hex(FXN)}
s_lshl_b32 s{sScale}, s{sQg}, 9
s_add_u32 s{sScale}, s{sScale}, {hex(ST_OFF)}
s_mul_i32 s{sOffB}, s{sQg}, {20*4096}
s_add_u32 s{sOffB}, s{sOffB}, {4*4096}
s_mul_i32 s{sM3}, s{sW}, 3072
s_mul_i32 s{sOffK}, s{sH}, 786432
s_add_u32 s{sOffK}, s{sOffK}, {1536*384}
s_add_u32 s{sOffK}, s{sOffK}, s{sM3}
s_mov_b32 s{sOffV}, s{sOffK}
s_lshr_b32 s{sPf}, s2, 3
s_lshl2_add_u32 s{sPf}, s{sPf}, s{sW}
s_and_b32 s{sPf}, s{sPf}, 7
s_lshl_b32 s{sPf}, s{sPf}, 10
s_add_u32 s{sPf}, s{sPf}, {3*8192}
s_add_u32 s62, s62, s{sPf}
s_addc_u32 s63, s63, 0""") + srd(sK, pK, 32 * 2048 * 192 * 2) + srd(sV, pV, 32 * 2048 * 192 * 2)
    wpf = lambda: ([prefetch(sWq, f"s{sQd}")] + L(f"s_add_u32 s{sQd}, s{sQd}, {128*12288}")) if "nowpf" not in KN else []
    vu = []
    for n in range(3):
        vu.append(I(f"v_add_u32 v61, {64*n}, v0"))
        vu += divmod_const(62, 63, 61, 24)
        vu += L(f"""v_and_b32 v57, 6, v62
v_xor_b32 v57, v63, v57
v_lshlrev_b32 v57, 4, v57
v_subrev_u32 v57, {1024*n}, v57
v_mul_u32_u24 v58, 384, v62
v_add_u32 v{vVo+n}, v58, v57
v_lshrrev_b32 v59, 1, v62
v_lshl_add_u32 v59, s{sW}, 2, v59
v_and_b32 v59, 7, v59
v_xor_b32 v59, v63, v59
v_lshlrev_b32 v59, 4, v59
v_subrev_u32 v59, {1024*n}, v59
v_add_u32 v{vKo+n}, v58, v59""")
    vu += L(f"""v_lshrrev_b32 v56, 2, v55
v_and_b32 v57, 3, v0
v_lshl_add_u32 v58, v54, 2, v56
v_bfe_u32 v59, v58, 1, 2
v_mul_u32_u24 v62, 384, v58
v_lshl_add_u32 v62, v57, 3, v62""")
    for x in range(4): vu += L(f"v_xor_b32 v63, {x}, v59\nv_lshl_add_u32 v{vVa+x}, v63, 5, v62")
    vu += L(f"""v_lshlrev_b32 v62, 7, v58
v_lshl_add_u32 v62, v57, 3, v62
v_xor_b32 v63, s{sW}, v59
v_lshl_add_u32 v62, v63, 5, v62
v_add_u32 v{vRa}, {sbase(12)}, v62
v_add_u32 v{vGa}, {sbase(27)}, v{vL16}
v_mul_u32_u24 v62, 384, v55
v_lshrrev_b32 v63, 1, v55
v_xor_b32 v63, v63, v54
v_lshl_add_u32 v{vKa}, v63, 4, v62
v_xor_b32 v63, 4, v63
v_lshl_add_u32 v{vKa+1}, v63, 4, v62""")
    for i in range(4): vu.append(I(f"v_mov_b32 v{vLs+i}, 0"))
    xr = L(f"""v_and_b32 v61, 7, v0
v_lshrrev_b32 v62, 3, v0
v_mul_u32_u24 v63, 1280, v61
v_lshl_add_u32 v63, v62, 4, v63
s_mul_i32 s{sOffY}, s2, {8*1280}
s_lshl_b32 s{sPf}, s{sW}, 7
s_add_u32 s{sOffY}, s{sOffY}, s{sPf}
buffer_load_dwordx4 a[244:247], v63, {sr(sXin,4)}, s{sOffY} offen
buffer_load_dwordx4 a[248:251], v63, {sr(sXin,4)}, s{sOffY} offen offset:512
buffer_load_dwordx4 a[252:255], v63, {sr(sXin,4)}, s{sOffY} offen offset:1024""")
    xs = L(f"""v_lshrrev_b32 v63, 2, v62
v_lshlrev_b32 v63, 12, v63
v_and_b32 v62, 3, v62
v_lshl_add_u32 v63, v62, 8, v63
v_lshl_add_u32 v63, v61, 4, v63
s_lshr_b32 s{sOffY}, s2, 3
s_mul_i32 s{sOffY}, s{sOffY}, {20*4096}
s_bfe_u32 s{sPf}, s2, 0x20001
s_lshl_b32 s{sPf}, s{sPf}, 10
s_add_u32 s{sOffY}, s{sOffY}, s{sPf}
s_and_b32 s{sPf}, s2, 1
s_lshl_b32 s{sPf}, s{sPf}, 7
s_add_u32 s{sOffY}, s{sOffY}, s{sPf}
s_lshl_b32 s{sPf}, s{sW}, 13
s_add_u32 s{sOffY}, s{sOffY}, s{sPf}
s_add_u32 s{sOffY}, s{sOffY}, {hex(XR_OFF)}""")
    for i in range(3):
        if i == 2: xs += L(f"s_cmp_lt_u32 s{sW}, 2\ns_cselect_b32 s{sOffY}, s{sOffY}, 0x40000000")
        xs.append(I(f"buffer_store_dwordx4 {ar(244+4*i,4)}, v63, {sr(sWS,4)}, s{sOffY} offen sc1", tag_w="Gst"))
        if i < 2: xs += L(f"s_add_u32 s{sOffY}, s{sOffY}, {8*4096}")
    c += L("v_lshlrev_b32 v76, 16, v76\nv_mov_b32 v77, v76")
    for i in range(12):
        c += L(f"v_lshlrev_b32 v{80+2*i}, 16, v{64+i}\nv_and_b32 v{81+2*i}, 0xffff0000, v{64+i}")
        c += L(f"v_pk_add_f32 v[{112+2*i}:{113+2*i}], v[{80+2*i}:{81+2*i}], v[76:77] neg_lo:[0,1] neg_hi:[0,1]")
    for i in range(12):
        a = 104 if i < 8 else 108
        d = vr(112 + 2 * i, 2)
        if i in (0, 8): c += L(f"v_pk_mul_f32 v[{a+2}:{a+3}], {d}, {d}\nv_mov_b32 v{a}, v{112+2*i}\nv_mov_b32 v{a+1}, v{113+2*i}")
        else: c += L(f"v_pk_fma_f32 v[{a+2}:{a+3}], {d}, {d}, v[{a+2}:{a+3}]\nv_pk_add_f32 v[{a}:{a+1}], v[{a}:{a+1}], {d}")
    c += L(f"""v_add_f32 v104, v104, v105
v_add_f32 v105, v106, v107
v_add_f32 v108, v108, v109
v_add_f32 v109, v110, v111
v_fmac_f32 v104, s{sSpin}, v108
v_fmac_f32 v105, s{sSpin}, v109
s_nop 1
v_add_f32_dpp v104, v104, v104 row_ror:8 row_mask:0xf bank_mask:0xf
v_add_f32_dpp v105, v105, v105 row_ror:8 row_mask:0xf bank_mask:0xf""")
    ra, rb = xreduce(104, 106, "v_add_f32"), xreduce(105, 107, "v_add_f32")
    for x, y in zip(ra, rb): c += [x, y]
    c += L(f"""ds_write_b64 v59, v[104:105]
s_waitcnt lgkmcnt(0)
s_barrier
ds_read_b64 v[104:105], v58
ds_read_b64 v[106:107], v58 offset:64
ds_read_b64 v[108:109], v58 offset:128
ds_read_b64 v[110:111], v58 offset:192
v_pk_add_f32 v[104:105], v[104:105], v[106:107]
v_pk_add_f32 v[108:109], v[108:109], v[110:111]
v_pk_add_f32 v[104:105], v[104:105], v[108:109]
v_mul_f32 v104, {hex(f2u(1.0/640))}, v104
v_mul_f32 v105, {hex(f2u(1.0/640))}, v105
v_fma_f32 v105, -v104, v104, v105
v_max_f32 v105, 0, v105
v_add_f32 v104, v104, v76
v_cvt_pk_bf16_f32 v104, v105, v104
v_and_b32 v108, 0xffff0000, v104
v_mov_b32 v109, v108""")
    for i in range(12):
        d = vr(80 + 2 * i, 2)
        c += L(f"""v_pk_add_f32 {d}, {d}, v[108:109] neg_lo:[0,1] neg_hi:[0,1]
v_cvt_pk_bf16_f32 v{64+i}, v{80+2*i}, v{81+2*i}""")
        if i == 3: c.append(I(f"buffer_store_dwordx4 v[64:67], v56, {sr(sWS,4)}, s{sT2} offen sc1", tag_w="Xst"))
        if i == 7: c.append(I(f"buffer_store_dwordx4 v[68:71], v56, {sr(sWS,4)}, s{sT3} offen sc1", tag_w="Xst"))
        if i == 11: c.append(I(f"buffer_store_dwordx4 v[72:75], v57, {sr(sWS,4)}, s{sT2} offen sc1", tag_w="Xst"))
    c += L(f"""v_lshlrev_b32 v104, 16, v104
v_add_f32 v104, {hex(f2u(1e-5))}, v104
v_cvt_pk_bf16_f32 v104, v104, v104
v_lshlrev_b32 v104, 16, v104
v_sqrt_f32 v104, v104
v_xor_b32 v106, 0x80000000, v108
v_cvt_pk_bf16_f32 v104, v104, v104
v_lshlrev_b32 v104, 16, v104
v_rcp_f32 v104, v104
s_nop 0
v_mul_f32 v107, {hex(f2u(CC))}, v104""")
    c.append(I(f"buffer_store_dwordx2 v[106:107], v61, {sr(sWS,4)}, s{sOffP} offen sc1", tag_w="Xst"))
    c += stamp(1)
    c += raw_reads(0)
    c.append(barrier(["st0", "rawrd0"]))
    c += w_reads0(0) + w_reads0(1)
    c += L(f"""v_readfirstlane_b32 s{sNonce}, v{vNon}
s_nop 3
s_cmp_lg_u32 s{sNonce}, 0
s_cbranch_scc0 L_nonce
L_nonce_ok:""")
    OUTL.append(("nonce", L(f"""L_nonce:
s_mov_b32 s{sSpin}, {SPIN_MAX}
L_nonce2:
buffer_load_dword v{vNon}, v60, {sr(sR,4)}, 0 offen sc1
s_waitcnt vmcnt(0)
v_readfirstlane_b32 s{sNonce}, v{vNon}
s_nop 3
s_cmp_lg_u32 s{sNonce}, 0
s_cbranch_scc1 L_nonce_ok
s_sub_u32 s{sSpin}, s{sSpin}, 1
s_cmp_lg_u32 s{sSpin}, 0
s_cbranch_scc1 L_nonce2
s_branch L_nonce_ok""")))
    c += stamp(2)
    blk(c, "pro")
    su = L(f"""s_mul_i32 s{sOffG}, s{sH}, {20*6144}
s_add_u32 s{sOffG}, s{sOffG}, s{sM6}
s_add_u32 s{sOffG}, s{sOffG}, {hex(GP_OFF)}
s_lshl_b32 s{sM1}, s{sW}, 10
s_mul_i32 s{sM5}, s{sW}, 5120
s_lshl_b32 s{sM4}, s{sW}, 12
s_mul_i32 s{sT2}, s{sQg}, {240*4096}
s_add_u32 s{sT2}, s{sT2}, {hex(OH_OFF)}
s_mul_i32 s{sT3}, s{sH}, {6*4096}
s_add_u32 s{sOffO}, s{sT2}, s{sT3}
s_add_u32 s{sT2}, s{sT2}, {192*4096}
s_mul_i32 s{sT3}, s{sH}, 3""")
    for T3 in range(3):
        su += L(f"""s_lshr_b32 s{sSpin}, s{sT3}, 1
s_lshl_b32 s{sSpin}, s{sSpin}, 12
s_add_u32 s{sOffH+T3}, s{sT2}, s{sSpin}
s_and_b32 s{sSpin}, s{sT3}, 1
s_lshl_b32 s{sSpin}, s{sSpin}, 9
s_add_u32 s{sOffH+T3}, s{sOffH+T3}, s{sSpin}
s_add_u32 s{sT3}, s{sT3}, 1""")
    su += L(f"""s_sub_u32 s{sT2}, s2, 240
s_min_u32 s{sT2}, s2, s{sT2}""")
    su += sdivmod(sT3, sSpin, sT2, 10)
    su += L(f"""s_lshl_b32 s{sOffRo}, s{sT3}, 8
s_lshl3_add_u32 s{sOffRo}, s{sW}, s{sOffRo}
s_mul_i32 s{sOffRo}, s{sOffRo}, 1280
s_lshl_b32 s{sFl}, s{sSpin}, 7
s_add_u32 s{sOffRo}, s{sOffRo}, s{sFl}
s_lshl_b32 s{sOffRd}, s{sT3}, 6
s_lshl4_add_u32 s{sOffRd}, s{sT1}, s{sOffRd}
s_lshl3_add_u32 s{sOffRd}, s{sT0}, s{sOffRd}
s_mul_i32 s{sOffRd}, s{sOffRd}, 1280
s_add_u32 s{sOffRd}, s{sOffRd}, s{sFl}
s_lshl2_add_u32 s{sSpin}, s{sSpin}, s{sW}""")
    su += sdivmod(sFl, sOffP, sSpin, 10)
    su += L(f"""s_mul_i32 s{sFl}, s{sFl}, 192
s_lshl3_add_u32 s{sFl}, s{sT3}, s{sFl}
s_mul_i32 s{sFl}, s{sFl}, 10
s_add_u32 s{sFl}, s{sFl}, s{sOffP}
s_lshl_b32 s{sFl}, s{sFl}, 10
s_add_u32 s{sOffDo}, s{sFl}, {hex(WOP_OFF)}""")
    su += sdivmod(sFl, sOffP, sSpin, 5)
    su += L(f"""s_mul_i32 s{sFl}, s{sFl}, 48
s_lshl1_add_u32 s{sFl}, s{sT3}, s{sFl}
s_mul_i32 s{sFl}, s{sFl}, 5
s_add_u32 s{sFl}, s{sFl}, s{sOffP}
s_lshl_b32 s{sFl}, s{sFl}, 10
s_add_u32 s{sOffDd}, s{sFl}, {hex(WDP_OFF)}""")
    su2 = sdivmod(sT3, sSpin, sT2, 48)
    su2 += [L(f"""s_cmp_ge_u32 s{sSpin}, 24
s_cselect_b32 s{pBx}, s{pWu}, s{pWg}
s_cselect_b32 s{pBx+1}, s{pWu+1}, s{pWg+1}
s_cselect_b32 s{sT2}, 1, 0
s_cselect_b32 s{sFl}, 24, 0""")]
    su2 += L(f"""s_sub_u32 s{sSpin}, s{sSpin}, s{sFl}
s_lshl_b32 s{sOffR}, s{sT3}, 7
s_lshl4_add_u32 s{sOffR}, s{sT1}, s{sOffR}
s_lshl2_add_u32 s{sOffR}, s{sT0}, s{sOffR}
s_mul_i32 s{sOffR}, s{sOffR}, 3072
s_lshl_b32 s{sFl}, s{sSpin}, 7
s_add_u32 s{sOffR}, s{sOffR}, s{sFl}
s_lshl2_add_u32 s{sSpin}, s{sSpin}, s{sW}""")
    su2 += sdivmod(sFl, sOffP, sSpin, 3)
    su2 += L(f"""s_mul_i32 s{sFl}, s{sFl}, 20
s_lshl2_add_u32 s{sFl}, s{sT3}, s{sFl}
s_mul_i32 s{sFl}, s{sFl}, 6
s_lshl1_add_u32 s{sFl}, s{sOffP}, s{sFl}
s_add_u32 s{sFl}, s{sFl}, s{sT2}
s_lshl_b32 s{sFl}, s{sFl}, 10
s_add_u32 s{sOffD}, s{sFl}, {hex(GP_OFF)}
s_lshl_b32 s{sFg}, s2, 2
s_add_u32 s{sFg}, s{sFg}, {hex(FG)}""")
    su2 += [L(f"s_cmp_eq_u32 s{sW}, 0\ns_cselect_b32 s{sFg}, s{sFg}, 0x40000000")]
    su2 += L(f"""s_lshr_b32 s{sT2}, s{sH}, 3
s_lshl2_add_u32 s{sFl}, s{sQg}, s{sT2}
s_lshl_b32 s{sFl}, s{sFl}, 7
s_and_b32 s{sT2}, s{sH}, 7
s_lshl2_add_u32 s{sFl}, s{sT2}, s{sFl}
s_add_u32 s{sFl}, s{sFl}, {hex(FO)}
s_mul_i32 s{sOffA}, s{sNb}, 192
s_mul_i32 s{sT2}, s{sS}, 48
s_add_u32 s{sOffA}, s{sOffA}, s{sT2}
s_mul_i32 s{sOffA}, s{sOffA}, 10240
s_add_u32 s{sOffA}, s{sOffA}, s{sM5}
s_add_u32 s{sOffA}, s{sOffA}, {hex(WOP_OFF)}
s_lshl1_add_u32 s{sOffBB}, s{sMb}, s{sT1}
s_mul_i32 s{sOffBB}, s{sOffBB}, 240
s_add_u32 s{sOffBB}, s{sOffBB}, s{sT2}
s_add_u32 s{sOffBB}, s{sOffBB}, s{sT0}
s_lshl_b32 s{sOffBB}, s{sOffBB}, 12
s_add_u32 s{sOffBB}, s{sOffBB}, {hex(OH_OFF)}
s_lshr_b32 s{sT2}, s{sS}, 1
s_lshl1_add_u32 s{sQd}, s{sMb}, s{sT2}""") + srd(sR, pBx, 640 * 1536 * 2)
    def weave(vm, sal):
        ch = split(vm); out = []
        per = -(-len(sal) // len(ch))
        for k, cc in enumerate(ch):
            out += cc
            for y in sal[k * per:(k + 1) * per]: out += y if isinstance(y, list) else [y]
        return out
    XH = PAR("XH", 15)
    XF = PAR("XF", 50); XQ = PAR("XQ", 110)
    q0a = pace(rawdma(1) + dma_stage(1), 0, PAR("Q0", 44)) + pace(dma_stage(2) + wpf() + dma_stage(3) + wpf(), 56, XH * 10 - 2)
    fl = set_flag(f"s{sFl}", "Xst", after=XF); pl_ = poll_load(vPd, vPa, f"s{sFg}", after=XQ)
    ch = split(q0a)
    for x in (fl, pl_):
        k = next((i for i, cc in enumerate(ch) if [y for y in cc if y.kind == 'vmem'][0].after > x.after), len(ch))
        ch.insert(k, [x])
    for k in range(8, 14): ch[k] = ch[k] + su0[(k - 8) * 1:(k - 7) * 1]
    ch[15] = ch[15] + su0[6:13]; ch[16] = ch[16] + su0[13:21]; ch[17] = ch[17] + su0[21:]
    for cc in ch:
        for x in cc: x.reads.discard('stg')
    sch(p1_first(0, XH, extra=[x for cc in ch for x in cc] + vu), "p1_0a", vm_min=3)
    fs = lambda k: blk(stamp(k)) if "fine1" in KN else None
    fs(14)
    blk(poll_cmp(vPd, 1) + poll_branch("xn", vPd, vPa, f"s{sFg}"))
    fs(15)
    bl = lambda k: b_loads(('a', 64 * (k % 2))) + b_loads(('a', 64 * (k % 2) + 32))
    sch(p1_first(XH, 24, extra=pace(bl(1), 0, 56)), "p1_0b", vm_min=3); fs(16)
    sch(p1_quad(1, vm=weave(dma_stage(4) + dma_stage(5) + wpf() + stat_loads() + bl(2), su)), "p1_1"); fs(17)
    sch(p1_quad(2, vm=weave(dma_stage(6) + dma_stage(7) + bl(3), su2)), "p1_2"); fs(18)
    sch(p1_quad(3, vm=dma_stage(8) + dma_stage(9) + bl(4) + dma_stage(10)), "p1_3")
    if "stagtest" in KN:
        blk(L(f"""s_and_b32 s{sSpin}, s{sH}, 1
s_mul_i32 s{sSpin}, s{sSpin}, 150
L_stag:
s_cmp_eq_u32 s{sSpin}, 0
s_cbranch_scc1 L_stag2
s_sleep 1
s_sub_u32 s{sSpin}, s{sSpin}, 1
s_branch L_stag
L_stag2:"""))
    blk(stamp(3))
    MERGE = "nomerge" not in KN
    big = p1_quad(4, vm=dma_stage(11) + dma_stage(12)) + first_tile(192) + p2_iter(0, base=192 + 48)
    nbig = 336
    if not MERGE:
        sch(big, "p1_last"); big = []; nbig = 0
    blk(stamp(4))
    XP = PAR("XP", 9)
    for t in range(1, 14):
        ex = []; post = []; btag = []
        if t == 1: ex += xr
        if t == 3: ex += xs
        if t == 6: btag = ["Gst"]
        if t == 7: ex += [set_flag(f"s{sFg}", None)] + L(f"s_add_u32 s{sFg}, s{sFg}, {FW-FG}")
        if t == 10: ex += L(f"s_mov_b32 s{sT0}, {hex(FG)}") + [poll_load(vTmp, vL16, f"s{sT0}", 4)]
        if t == 12: post += late(poll_cmp(vTmp, 4), nbig + 60)
        XN_ = PAR("XN", 2)
        if "xpf" in KN and XP <= t <= 13:
            if t == XP: ex += L(f"""s_and_b32 s{sPf}, s{sH}, 3
s_lshl_b32 s{sPf}, s{sPf}, 11
s_mul_i32 s{sT2}, s{sQg}, {20*4096}
s_add_u32 s{sPf}, s{sPf}, s{sT2}""")
            for k in range(XN_):
                if (t - XP) * XN_ + k < 10:
                    for o in (0, 1024):
                        x = I(f"buffer_load_dwordx4 v[60:63], v{vL16}, {sr(sWS,4)}, s{sPf} offen offset:{o} sc1")
                        if (t - XP) * XN_ + k < 9 or o == 0: x.writes = set()
                        ex.append(x)
                    ex += L(f"s_add_u32 s{sPf}, s{sPf}, 8192")
        big += p2_iter(t, base=nbig, extra=ex, post=post, btag=btag); nbig += 96
        if not MERGE or t == 12:
            sch(big, f"p2_{t}"); big = []; nbig = 0
        if t == 12 and "stagtest" not in KN: blk(poll_branch("g", vTmp, vL16, f"s{sT0}", 4))
    blk(stamp(5))
    sch(big + p2_iter(14, base=nbig, btag=["Wst"]) + tail_pv(nbig + 96), "tail", vm_min=3)
    blk(L("s_cbranch_vccnz L_fb\nL_fb_back:") + stamp(6))
    steps = p3_steps()
    setup = L(f"""v_and_b32 v{vT}, 32, v0
v_lshlrev_b32 v{vT}, 4, v{vT}
v_add_u32 v{vT}, v{vT}, v{vL16}
s_and_b32 s{sT3}, s{sW}, 1
s_lshl1_add_u32 s{sT1}, s{sMb}, s{sT3}
s_lshl2_add_u32 s{sT1}, s{sT1}, s{sS}
s_lshl_b32 s{sT1}, s{sT1}, 7
s_add_u32 s{sT1}, s{sT1}, {hex(FO)}
v_and_b32 v{vFa}, 7, v0
v_lshlrev_b32 v{vFa}, 2, v{vFa}
s_mul_i32 s{sT3}, s{sT3}, 5120
s_add_u32 s{sT3}, s{sT3}, {obase(0)}
v_add_u32 v{vOA}, s{sT3}, v{vL16}
s_lshr_b32 s{sT2}, s{sW}, 1
s_lshl_b32 s{sT2}, s{sT2}, 12
s_add_u32 s{sT2}, s{sT2}, {20480+obase(0)}
v_add_u32 v{vOB}, s{sT2}, v{vL16}
v_add_u32 v{vDA}, {obase(24)}, v{vL16}
s_add_u32 s{sT2}, s{sM1}, {20480+obase(24)}
v_add_u32 v{vDB}, s{sT2}, v{vL16}
v_lshlrev_b32 v{vL128}, 7, v0
v_bfrev_b32 v38, 1
v_cmp_gt_u32 vcc, 20, v0
v_cndmask_b32 v{vL128}, v38, v{vL128}, vcc
s_and_b32 s{sT2}, s{sMb}, 7
s_lshl2_add_u32 s{sT2}, s{sT2}, s{sW}
s_mul_i32 s{sOffX}, s{sT2}, 2560
s_sub_u32 s{sOffX}, s{sOffX}, s{sM5}
s_add_u32 s{sPf}, s{sOffA}, s{sOffX}
s_add_u32 s{sPf}, s{sPf}, 81920""")
    for k in range(9):
        body = (setup if k == 3 else []) + join_steps(steps[k:k+1] if k < 8 else steps[8:])
        if k == 8:
            body += [I("s_barrier", tag_r="ot0", wr=['stg'], rd=['stg2'], after=48 + 26)] + o_reads(0)
        sch(body, f"p3s{k}", vm_min=2)
        if k == WC and "stagtest" not in KN: blk(poll_cmp(vFl, 4) + poll_branch("w", vFl, vL16, f"s{sT0}", 4))
        if k == OC and "stagtest" not in KN: blk(poll_cmp(vFo2, 1) + poll_branch("o", vFo2, vFa, f"s{sT1}"))
        if "fine" in KN: blk(stamp(14 + k))
    c = stamp(7) + stamp(8)
    if OC == 9:
        c += dmaB(0) + dmaB(1) + dmaB(2)
        c.append(I("s_barrier", tag_r="ot0"))
        c += o_reads(0)
    c += stamp(9)
    blk(c, "o_pro")
    osetup = L(f"""s_lshl_b32 s{sT1}, s{sMb}, 8
s_add_u32 s{sT1}, s{sT1}, {hex(FH)}
v_lshlrev_b32 v{vFa}, 2, v0
s_and_b32 s{sT2}, s{sS}, 1
s_lshl1_add_u32 s{sT2}, s{sNb}, s{sT2}
s_lshr_b32 s{sT3}, s{sS}, 1
s_lshl1_add_u32 s{sOffRo}, s{sT2}, s{sT3}
s_mul_i32 s{sOffRo}, s{sOffRo}, {24*5120}
s_lshl_b32 s{sM3}, s{sW}, 13
s_add_u32 s{sOffRo}, s{sOffRo}, s{sM3}
s_add_u32 s{sOffRo}, s{sOffRo}, {hex(WDP_OFF)}
s_mul_i32 s{sT2}, s{sT2}, 160
s_lshl2_add_u32 s{sOffO}, s{sQd}, s{sW}
s_mul_i32 s{sOffO}, s{sOffO}, {16*1280}
s_add_u32 s{sOffO}, s{sOffO}, s{sT2}
s_mul_i32 s{sT3}, s{sT3}, 24
s_add_u32 s{sT3}, s{sT3}, 192
s_lshl_b32 s{sT3}, s{sT3}, 12
s_add_u32 s{sT3}, s{sT3}, s{sM1}
s_add_u32 s{sT3}, s{sT3}, {hex(OH_OFF)}
s_xor_b32 s{sOffRd}, s{sQd}, 1
s_mul_i32 s{sOffRd}, s{sOffRd}, {240*4096}
s_add_u32 s{sOffRd}, s{sOffRd}, s{sT3}
s_mul_i32 s{sOffG}, s{sQd}, {240*4096}
s_add_u32 s{sOffG}, s{sOffG}, s{sT3}
s_lshl2_add_u32 s{sT0}, s{sMb}, s{sNb}
s_lshl2_add_u32 s{sT3}, s{sT0}, s{sS}
s_lshl2_add_u32 s{sT2}, s{sT3}, s{sW}
s_mul_i32 s{sOffP}, s{sT2}, 10240
s_add_u32 s{sOffP}, s{sOffP}, {hex(PART_OFF)}
s_lshl2_add_u32 s{sFl}, s{sT0}, s{sW}
s_lshl_b32 s{sFl}, s{sFl}, 7
s_lshl2_add_u32 s{sFl}, s{sS}, s{sFl}
s_add_u32 s{sFl}, s{sFl}, {hex(FP)}
v_and_b32 v{vOa}, 15, v0
v_mul_u32_u24 v{vOa}, 1280, v{vOa}
v_lshrrev_b32 v{vPo}, 4, v0
v_lshl_add_u32 v{vOa}, v{vPo}, 3, v{vOa}
v_and_b32 v{vFa2}, 7, v0
v_lshlrev_b32 v{vFa2}, 2, v{vFa2}""") + srd(sOut, pOut, 2048 * 640 * 2) + L(f"""s_lshl_b32 s{sFg}, s{sT3}, 7
s_add_u32 s{sFg}, s{sFg}, {hex(FP)}
s_lshl4_add_u32 s{sT2}, s{sT0}, s{sS}
s_mul_i32 s{sOffK}, s{sT2}, 10240
s_add_u32 s{sOffK}, s{sOffK}, {hex(PART_OFF)}
s_lshl2_add_u32 s{sT2}, s{sT3}, s{sW}
s_mul_i32 s{sOffD}, s{sT2}, 2560
s_add_u32 s{sOffD}, s{sOffD}, {hex(HP_OFF)}
s_xor_b32 s{sT2}, s{sT2}, 8
s_mul_i32 s{sOffDo}, s{sT2}, 2560
s_add_u32 s{sOffDo}, s{sOffDo}, {hex(HP_OFF)}
s_xor_b32 s{sOffDd}, s{sFg}, 0x100
s_lshl2_add_u32 s{sOffDd}, s{sW}, s{sOffDd}
s_add_u32 s{sOffDd}, s{sOffDd}, 16""")
    assert len(osetup) <= 60
    for sg in range(4):
        ex = []
        if sg == 0: ex = dmaB(3) + dmaA(3)
        if sg == 0: ex = ex + HST[:2]
        if sg == 1: ex = HST[2:]
        if sg == 2: ex = L(f"s_mov_b32 s{sOffV}, {hex(FW2)}") + [poll_load(48, vL16, f"s{sOffV}", 4)]
        if sg == 3: ex = ex + L(f"s_add_u32 s{sQg}, s{sQg}, {hex(FH)}")
        pre = L(f"s_lshl_b32 s{sQg}, s{sQg}, 7\ns_lshl2_add_u32 s{sQg}, s{sH}, s{sQg}") if sg == 0 else []
        sch(o_block(sg, ex, pre=pre, mid=osetup[sg * 15:(sg + 1) * 15], exfirst=(sg == 0)), f"o{sg}", vm_min=2)
    base_state = {r: AD[r].base for r in (vOA, vOB)}
    if "fine2" in KN: blk(stamp(14))
    P.block("ol_top", L(f"s_mov_b32 s{sH}, 0") + L(".p2align 6\nL_o:")); P.trace.append(("ol_top", {}))
    lb = []
    NIT = PAR('NIT', 4)
    for q in range(4):
        ex = L(f"s_cmp_eq_u32 s{sH}, {NIT-1}\ns_cselect_b32 s{sT2}, s{sT1}, 0x40000000") + [poll_load(vFl, vFa, f"s{sT2}")] if q == 0 else []
        if q == 1: ex = L(f"s_cmp_eq_u32 s{sH}, 0\ns_cselect_b32 s{sT2}, s{sQg}, 0x40000000") + [set_flag(f"s{sT2}", "Hst")]
        b = o_block(4 + q, ex)
        for x in b:
            for attr in ('tag_r', 'tag_w'):
                t = getattr(x, attr)
                if t is None: continue
                if t == "Hst": continue
                ts = t if isinstance(t, list) else [t]
                setattr(x, attr, (lambda ts: lambda env: [u[:2] + str(int(u[2:]) + 4 * env['it']) for u in ts])(ts))
        if "ohitA" in KN: b = [x for x in b if not x.text.startswith(f"s_add_u32 s{sOffA}, s{sOffA}")]
        if "ohitB" in KN: b = [x for x in b if not x.text.startswith(f"s_add_u32 s{sOffBB}, s{sOffBB}")]
        if "onods" in KN: b = [x for x in b if x.kind != 'ds']
        if "onodma" in KN: b = [x for x in b if not (x.kind == 'vmem' and ' lds' in x.text)]
        if "onobar" in KN: b = [x for x in b if x.kind != 'barrier']
        if "onosc1" in KN:
            for x in b:
                if ' lds' in x.text: x.text = x.text.replace(" sc1", "")
        b = schedule(b, f"ol{q}", verbose=dbg and "v" in KN, vm_min=3)
        if q == 3: b += L(f"s_add_u32 s{sH}, s{sH}, 1\ns_cmp_lt_u32 s{sH}, {NIT}\ns_cbranch_scc1 L_o")
        P.block(f"ol{q}", b)
    assert base_state == {r: AD[r].base for r in (vOA, vOB)}, "loop address state"
    for it in range(NIT): P.trace += [(f"ol{q}", {'it': it}) for q in range(4)]
    if "rewind" in KN:
        pos = sum(isize(x) for b_ in P.blocks for x in b_[1]) * 1.03
        new = int(pos + 1500) // 8192
        if new < cp[0]:
            blk(L(f"s_sub_u32 s62, s62, {(cp[0]-new)*8192}\ns_subb_u32 s63, s63, 0")); cp[0] = new
    if "fine2" in KN: blk(stamp(15))
    blk(poll_cmp(48, 4) + poll_branch("w2", 48, vL16, f"s{sOffV}", 4))
    blk(poll_cmp(vFl, 1) + poll_branch("h", vFl, vFa, f"s{sT1}"))
    dsetup = L(f"""s_lshl_b32 s{sT2}, s{sW}, 11
v_add_u32 v45, s{sT2}, v{vL16}
s_lshr_b32 s{sT2}, s{sW}, 1
s_lshl_b32 s{sT2}, s{sT2}, 10
s_and_b32 s{sT3}, s{sW}, 1
s_lshl3_add_u32 s{sT2}, s{sT3}, s{sT2}
s_add_u32 s{sT2}, s{sT2}, 8192
v_add_u32 v46, s{sT2}, v{vL16}
v_add_u32 v47, {LDS_X}, v{vL16}
v_and_b32 v38, 15, v0
v_mul_u32_u24 v38, 1280, v38
v_bfe_u32 v39, v0, 4, 1
v_lshl_add_u32 v38, v39, 5, v38
v_lshrrev_b32 v39, 5, v0
v_lshl_add_u32 v38, v39, 4, v38
s_cmp_eq_u32 s{sW}, s{sS}
s_cmov_b32 s{sOffP}, 0x40000000""")
    NB1 = [int(x) for x in os.environ.get("NB1", "4,4,5,5").split(",")]
    nb1 = 0
    dsetup += L(f"s_mov_b32 s{sOffBB}, s{sOffG}\nv_lshlrev_b32 v37, 3, v0")
    for sg in range(20, 24):
        ex = [x for k in range(nb1, nb1 + NB1[sg - 20]) for x in d_bload(0, k)]; nb1 += NB1[sg - 20]
        sch(o_block(sg, ex, mid=dsetup if sg == 23 else []), f"o{sg}", vm_min=2)
    blk(stamp(10))
    vQ4, vQ2, vLw, vOw = 45, 46, 47, 38
    def pk(dst, t, j):
        a = vAc + (t * 4 + j) * 4
        return L(f"v_cvt_pk_bf16_f32 v{dst}, v{a}, v{a+1}\nv_cvt_pk_bf16_f32 v{dst+1}, v{a+2}, v{a+3}")
    pkall = []; ps = []; n = 0
    for j in range(4):
        for tp in range(2):
            o = vPk + n * 4
            pkall += pk(o, 2 * tp, j) + pk(o + 2, 2 * tp + 1, j)
            it = [I(f"buffer_store_dwordx4 {vr(o,4)}, v{vL16}, {sr(sWS,4)}, s{sOffP} offen offset:{(n%4)*1024} sc1", tag_w="Pst")]
            n += 1
            if n % 4 == 0: it.append(I(f"s_add_u32 s{sOffP}, s{sOffP}, 4096"))
            ps.append(it)
    for jp in range(2):
        o = vPk + n * 4
        pkall += pk(o, 4, 2 * jp) + pk(o + 2, 4, 2 * jp + 1)
        ps.append([I(f"buffer_store_dwordx4 {vr(o,4)}, v{vL16}, {sr(sWS,4)}, s{sOffP} offen offset:{jp*1024} sc1", tag_w="Pst")])
        n += 1
    own = L(f"s_cmp_lg_u32 s{sW}, s{sS}\ns_cbranch_scc1 L_own")
    for k in range(10):
        x = I(f"ds_write_b128 v{vLw}, {vr(vPk+4*k,4)} offset:{1024*k}"); x.kind = 'wait'; own.append(x)
    x = I("s_waitcnt lgkmcnt(0)"); x.kind = 'label'; own.append(x)
    own += L("L_own:")
    xl = L(f"""s_and_b32 s{sT2}, s{sS}, 1
s_lshl1_add_u32 s{sT2}, s{sNb}, s{sT2}
s_mul_i32 s{sT2}, s{sT2}, 10
s_mul_i32 s{sT3}, s{sQd}, {20*4096}
s_add_u32 s{sT3}, s{sT3}, s{sM1}
s_add_u32 s{sT3}, s{sT3}, {hex(XR_OFF)}
v_bfe_u32 v2, v0, 4, 1
v_lshrrev_b32 v3, 5, v0
v_lshl_add_u32 v4, v2, 1, v3
v_add_u32 v4, s{sT2}, v4
v_and_b32 v5, 15, v0
v_lshlrev_b32 v5, 4, v5
v_lshrrev_b32 v6, 2, v4
v_lshl_add_u32 v6, v6, 12, v5
v_and_b32 v4, 3, v4
v_lshl_add_u32 v6, v4, 8, v6
v_add_u32 v7, 4096, v6
v_add_u32 v4, s{sT2}, v3
v_add_u32 v4, 8, v4
v_lshrrev_b32 v8, 2, v4
v_lshl_add_u32 v8, v8, 12, v5
v_and_b32 v4, 3, v4
v_lshl_add_u32 v8, v4, 8, v8
v_lshl_add_u32 v8, v2, 3, v8
buffer_load_dwordx4 {vr(vXr,4)}, v6, {sr(sWS,4)}, s{sT3} offen sc1
buffer_load_dwordx4 {vr(vXr+4,4)}, v7, {sr(sWS,4)}, s{sT3} offen sc1
buffer_load_dwordx2 {vr(vXr+8,2)}, v8, {sr(sWS,4)}, s{sT3} offen sc1
s_lshl2_add_u32 s{sT2}, s{sQd}, s{sW}
s_lshl_b32 s{sT2}, s{sT2}, 7
s_add_u32 s{sT2}, s{sT2}, {hex(ST_OFF)}
v_lshrrev_b32 v9, 1, v5
buffer_load_dword v10, v9, {sr(sWS,4)}, s{sT2} offen offset:4 sc1""")
    pl = []
    for i in range(1, 4):
        pl += L(f"s_add_u32 s{sT2}, s{sS}, {i}\ns_and_b32 s{sT2}, s{sT2}, 3\ns_mul_i32 s{sT2}, s{sT2}, {4*10240}\ns_add_u32 s{sT2}, s{sT2}, s{sOffK}")
        for tp in range(2): pl.append(I(f"buffer_load_dwordx4 {vr(vPl+i*12+tp*4,4)}, v{vQ4}, {sr(sWS,4)}, s{sT2} offen offset:{1024*tp} sc1"))
        pl.append(I(f"buffer_load_dwordx2 {vr(vPl+i*12+8,2)}, v{vQ2}, {sr(sWS,4)}, s{sT2} offen sc1"))
    ownrd = L(f"""v_add_u32 v{vLw}, {LDS_X}, v{vQ4}
ds_read_b128 {vr(vPl,4)}, v{vLw}
ds_read_b128 {vr(vPl+4,4)}, v{vLw} offset:1024
v_add_u32 v{vLw}, {LDS_X}, v{vQ2}
ds_read_b64 {vr(vPl+8,2)}, v{vLw}""")
    t0 = 112; vSm = 164; vXf = 184
    xun = []
    for tp in range(2):
        for i in range(2): xun.append(I(f"v_permlane16_swap_b32 v{vXr+4*tp+i}, v{vXr+4*tp+2+i}"))
    for k in range(10): xun += L(f"v_lshlrev_b32 v{vXf+2*k}, 16, v{vXr+k}\nv_and_b32 v{vXf+2*k+1}, 0xffff0000, v{vXr+k}")
    k2 = (math.sqrt(192.0) / math.log2(math.e)) ** 2
    xun += L(f"v_mul_f32 v10, v10, v10\nv_mul_f32 v10, {hex(f2u(k2))}, v10\nv_mul_f32 v11, {hex(f2u(-math.log2(math.e)))}, v10")
    own0 = []
    for k in range(10): own0 += L(f"v_lshlrev_b32 v{vSm+2*k}, 16, v{vPl+k}\nv_and_b32 v{vSm+2*k+1}, 0xffff0000, v{vPl+k}\nv_mul_f32 v{vSm+2*k}, v10, v{vSm+2*k}\nv_mul_f32 v{vSm+2*k+1}, v10, v{vSm+2*k+1}")
    psum = []
    for i in range(1, 4):
        for k in range(10):
            s_ = vPl + i * 12 + k; u = 132 + (k % 4) * 2
            psum += L(f"v_lshlrev_b32 v{u}, 16, v{s_}\nv_and_b32 v{u+1}, 0xffff0000, v{s_}\nv_fmac_f32 v{vSm+2*k}, v10, v{u}\nv_fmac_f32 v{vSm+2*k+1}, v10, v{u+1}")
    fin = []
    for t in range(5):
        h = vDc + 4 * t
        for i in range(4): fin += L(f"v_mul_f32 v{t0+4*t+i}, v11, v{h+i}\nv_exp_f32 v{t0+4*t+i}, v{t0+4*t+i}")
        for i in range(4): fin += L(f"v_mul_f32 v{h+i}, v{h+i}, v{vSm+4*t+i}")
        for i in range(4): fin += L(f"v_add_f32 v{t0+4*t+i}, 1.0, v{t0+4*t+i}\nv_rcp_f32 v{t0+4*t+i}, v{t0+4*t+i}")
        for i in range(4): fin.append(I(f"v_fmac_f32 v{vXf+4*t+i}, v{h+i}, v{t0+4*t+i}"))
        for i in range(2): fin.append(I(f"v_cvt_pk_bf16_f32 v{vXr+2*t+i}, v{vXf+4*t+2*i}, v{vXf+4*t+2*i+1}"))
        if t in (1, 3):
            tp = t // 2
            for i in range(2): fin.append(I(f"v_permlane16_swap_b32 v{vXr+4*tp+i}, v{vXr+4*tp+2+i}"))
            fin.append(I(f"buffer_store_dwordx4 {vr(vXr+4*tp,4)}, v{vOw}, {sr(sOut,4)}, s{sOffO} offen offset:{64*tp}"))
    fin.append(I(f"buffer_store_dwordx2 {vr(vXr+8,2)}, v{vOa}, {sr(sOut,4)}, s{sOffO} offen offset:128"))
    flat = lambda l: [x for it in l for x in it]
    hs = []
    for t in range(5):
        for i in range(2): hs.append(I(f"v_cvt_pk_bf16_f32 v{vHp+2*t+i}, v{vDo+4*t+2*i}, v{vDo+4*t+2*i+1}"))
        if t in (1, 3): hs.append(I(f"buffer_store_dwordx4 {vr(vHp+2*t-2,4)}, v{vL16}, {sr(sWS,4)}, s{sOffD} offen offset:{(t//2)*1024} sc1", tag_w="Pst"))
    hs.append(I(f"buffer_store_dwordx2 {vr(vHp+8,2)}, v37, {sr(sWS,4)}, s{sOffD} offen offset:2048 sc1", tag_w="Pst"))
    hl = [I(f"buffer_load_dwordx4 {vr(vHr+4*k,4)}, v{vL16}, {sr(sWS,4)}, s{sOffDo} offen offset:{1024*k} sc1") for k in range(2)]
    hl.append(I(f"buffer_load_dwordx2 {vr(vHr+8,2)}, v37, {sr(sWS,4)}, s{sOffDo} offen offset:2048 sc1"))
    hadd = []
    for k in range(10):
        u = 132 + (k % 4) * 2
        hadd += L(f"v_lshlrev_b32 v{u}, 16, v{vHr+k}\nv_and_b32 v{u+1}, 0xffff0000, v{vHr+k}\nv_add_f32 v{vDc+2*k}, v{vDc+2*k}, v{u}\nv_add_f32 v{vDc+2*k+1}, v{vDc+2*k+1}, v{u+1}")
    f3 = lambda k: blk(stamp(14 + k)) if "fine3" in KN else None
    B1 = [d_bload(0, k) for k in range(nb1, 24)]; B2 = [d_bload(1, k) for k in range(24)]
    psq = [pkall[4 * k:4 * k + 4] + ps[k] for k in range(10)]
    cfg = [[int(y) for y in x.split(".")] for x in os.environ.get("DC", "3.5.0,3.5.0,0.0.9,0.0.9,0.0.6").split(",")]
    def take(c_):
        q = [[B1.pop(0) for _ in range(c_[0])], [psq.pop(0) for _ in range(c_[1])], [B2.pop(0) for _ in range(c_[2])]]
        return flat(merge(q))
    PFG = PAR("PFG", 2)
    owndone = False
    for g in range(4):
        ex = take(cfg[g])
        XE = PAR("XE", 0)
        if XE and g == 3: ex = ex + xl
        if g == PFG: ex = ex + [set_flag(f"s{sFl}", "Pst")]
        sch(d_block(0, g, ex), f"d0{g}", vm_min=1)
        if not psq and not owndone: blk(own); owndone = True; assert g < 2
        f3(g)
    for x in hs:
        if x.tag_w: x.tag_w = "Qst"
    pollP = L(f"v_and_b32 v12, 12, v{vFa2}") + [poll_load(vFl, 12, f"s{sFg}")]
    setH = L(f"s_lshl2_add_u32 s{sT1}, s{sW}, s{sFg}\ns_add_u32 s{sT1}, s{sT1}, 16\nv_mov_b32 v13, 0")
    blk(hs); f3(4)
    PP = PAR("PP", 0)
    PC = PAR("PC", 1)
    QP = PAR("QP", 3)
    chkP = lambda: blk(poll_cmp(vFl, 1) + poll_branch("p", vFl, 12, f"s{sFg}") + pl)
    pq = [poll_load(16, 13, f"s{sT1}")]
    QF = PAR("QF", 1)
    qf = [set_flag(f"s{sOffDd}", "Qst")]
    sch(d_block(1, 0, (pollP if PP == 0 else []) + take(cfg[4]) + ([] if XE else xl) + (qf if QF == 0 else []), ownrd + setH), "d10", vm_min=1); f3(5)
    assert not B1 and not B2 and not psq
    if PC == 0: chkP()
    sch(d_block(1, 1, (qf if QF == 1 else []) + (pollP if PP == 1 else [])), "d11", vm_min=1); f3(6)
    if PC == 1: chkP()
    f3(7)
    PSK = PAR("PSK", 40)
    sch(d_block(1, 2, pq if QP == 2 else [], xun + own0 + (psum[:PSK] if PC == 0 else [])), "d12", vm_min=1); f3(8)
    chkQ = lambda: blk(poll_cmp(16, 1) + poll_branch("q", 16, 13, f"s{sT1}") + hl)
    if QP == 2: chkQ()
    rest = psum[PSK:] if PC == 0 else psum
    PSJ = PAR("PSJ", 0)
    sch(d_block(1, 3, pq if QP == 3 else [], rest[:PSJ]), "d13", vm_min=1); f3(9)
    if QP == 3: chkQ()
    f3(10)
    blk(stamp(11))
    blk(rest[PSJ:] + hadd + fin)
    c = []
    c += stamp_store(13)
    amp = os.environ.get("AMP")
    if amp and STAMPS:
        k1, k2, mult = map(int, amp.split(","))
        cy = 1 if mult == 0 else 0
        first = f"v_readlane_b32 s{sT0}, v{vSt}, {2*k1+cy}" if k1 >= 0 else f"s_mov_b32 s{sT0}, s{sNonce}"
        c += L(f"""{first}
v_readlane_b32 s{sT1}, v{vSt}, {2*k2+cy}
v_readlane_b32 s{sT2}, v{vSt}, 26
s_nop 4
s_sub_u32 s{sT0}, s{sT1}, s{sT0}
{f"s_mul_i32 s{sT0}, s{sT0}, {mult}" if mult else f"s_lshr_b32 s{sT0}, s{sT0}, 2"}
s_min_u32 s{sT0}, s{sT0}, 100000
L_amp:
s_memrealtime s[{sSt}:{sSt+1}]
s_waitcnt lgkmcnt(0)
s_sub_u32 s{sT1}, s{sSt}, s{sT2}
s_cmp_lt_u32 s{sT1}, s{sT0}
s_cbranch_scc1 L_amp""")
    c += L("L_end:\ns_endpgm")
    blk(c, "fin")
    for nm, ins in OUTL: P.block(nm, ins)
    P.insert_waits()
    n = P.fix_hazards(verbose=False)
    if dbg:
        tot, per = P.estimate()
        agg = {}
        for k, v in per.items():
            kk = k.rstrip('0123456789') if k[0] in 'od' or k.startswith('p1_') or k.startswith('p2_') else k
            agg[kk] = agg.get(kk, 0) + v
        print("; estimate", tot, agg, "pads", n)
    return P.text() + "\n" + gen_fallback()

def build(path, dbg=False):
    body = gen(dbg)
    body = "\n".join(l.strip() for l in body.split("\n"))
    txt = f"""; @launch grid=(256,1,1) block=(256,1,1) lds={LDS_TOTAL}
.amdgcn_target "amdgcn-amd-amdhsa--gfx950"
.text
.globl {KNAME}
.p2align 8
.type {KNAME},@function
{KNAME}:
L_code_begin:
{body}
L_code_end:
.set CODE_SLICES, (L_code_end-L_code_begin+8191)/8192
.fill 2112, 4, 0xbf800000
s_endpgm
.section .rodata,"a"
.p2align 6
.amdhsa_kernel {KNAME}
  .amdhsa_next_free_vgpr 512
  .amdhsa_next_free_sgpr 102
  .amdhsa_accum_offset 256
  .amdhsa_group_segment_fixed_size 0
  .amdhsa_kernarg_size 96
  .amdhsa_user_sgpr_count 2
  .amdhsa_user_sgpr_kernarg_segment_ptr 1
  .amdhsa_system_sgpr_workgroup_id_x 1
  .amdhsa_float_denorm_mode_32 3
.end_amdhsa_kernel
"""
    open(path, "w").write(txt)

if __name__ == "__main__":
    if "--stamps" in sys.argv:
        STAMPS = True; sys.argv.remove("--stamps")
    build(sys.argv[1], dbg=True)
```

```python
import sys, math, struct, os
from asmlib import *
KN = set(os.environ.get("KN", "").split(","))
def PAR(name, default): return type(default)(os.environ.get(name, default))
NAME = "recurrent_scan__sliding_block_cached__glu_gated_bilinear__prompt"
KNAME = NAME + "_kernel"
XN_OFF = 0; OH_OFF = 0x400000; GP_OFF = 0x2200000; WOP_OFF = 0x2600000; WDP_OFF = 0x2E00000; PART_OFF = 0x3000000
FL_OFF = 0x3A00000
FXN = FL_OFF; FO = FL_OFF + 0x8000; FH = FL_OFF + 0x10000; FP = FL_OFF + 0x18000; FG = FL_OFF + 0x20000; FW = FL_OFF + 0x21000; FW2 = FL_OFF + 0x22000; ST_OFF = FL_OFF + 0x30000
XR_OFF = 0x3B00000; HP_OFF = 0x3E00000
WS_SIZE = 0x4100000
STAMP_OFF = 0x8000000
SLOT = 28672; SL2 = 36864
LDS_X = 147456
LDS_TOTAL = 163840
STAMPS = False
SPIN_MAX = 200000
def sbase(st):
    if st < 10: return ((3, 4) if (st // 2) % 2 == 0 else (1, 2))[st % 2] * SLOT
    if st <= 28: return (st % 5) * SLOT
    return {29: 0, 30: 110592, 31: 135168}[st]
OPERM = [1, 2, 0, 3]
def obase(sg): return OPERM[sg % 4] * SL2

def f2u(x): return struct.unpack('<I', struct.pack('<f', x))[0]
def vr(a, n): return f"v[{a}:{a+n-1}]" if n > 1 else f"v{a}"
def ar(a, n): return f"a[{a}:{a+n-1}]" if n > 1 else f"a{a}"
def sr(a, n): return f"s[{a}:{a+n-1}]" if n > 1 else f"s{a}"
def rr(x, n=4): return vr(x[1], n) if x[0] == 'v' else ar(x[1], n)
def L(txt): return [I(t) for t in txt.strip().split("\n") if t.strip()]
def mfma(d, a, b, c): return I(f"v_mfma_f32_16x16x32_bf16 {d}, {a}, {b}, {c}")

sWq, sK, sWS, sR = 4, 8, 12, 16
(sOffX, sOffY, sOffK, sOffV, sM6, sM3, sM1, sOffB, sH, sB, sW, sT0, sT1, sT2, sOffO, sScale,
 sOffG, sOffH0, sOffH1, sOffH2, sNonce, sOffR, sOffD, sOffRo, sOffRd, sOffDo, sOffDd,
 sS, sMb, sNb, sFl, sSpin, sT3, sOffP, sQg, sFg, sOffA, sOffBB, sM5, sM4, sPf, sQd) = range(20, 62)
sOffH = sOffH0
pX, pK, pV, pWq, pWo, pBx, pWg, pWu, pWd, pOut, pDbg, pWs = range(64, 88, 2)
sSt = 88; sV = 92; sXin = 96
sOut = sWq
vL16 = 1; vWo = 2; vKo = 5; vVo = 8; vRo = 11; vRo2 = 12; vL128 = 13; vFo = 14; vNon = 15
vRa = 16; vWa = 17; vKa = 19; vVa = 21; vGa = 25
vLs = 26; vT = 36; vSt = 31; vNm = 32; vTmp = 48
vAcc = 64; vQ = 64
vS01 = 160; vS23 = 176; vP01 = 208; vP23 = 224; vVs = 232
aK = 192; aR = 240; aA1 = 128; aDum = 255; aCs = 160
vOne = 48; vSta = 40; vCsT = 52; vXo = 44; vXo2 = 46; vSo = 32; vPa = 42; vPd = 43
vDum = 30
NSLICE = 10

class Addr:
    def __init__(self, reg, base): self.reg = reg; self.base = base
    def use(self, base, off):
        pre = []
        d = base + off - self.base
        if not (0 <= d < 65536):
            pre = [I(f"v_add_u32 v{self.reg}, {hex((base - self.base) & 0xffffffff)}, v{self.reg}")]
            self.base = base; d = off
        return pre, d
AD = {}
def dsr(op, dst, reg, base, off, **kw):
    pre, d = AD[reg].use(base, off)
    return pre + [I(f"{op} {dst}, v{reg} offset:{d}", **kw)]

def srd(d, base, size):
    return [I(f"s_mov_b32 s{d}, s{base}"), I(f"s_mov_b32 s{d+1}, s{base+1}"), I(f"s_mov_b32 s{d+2}, {hex(size)}"), I(f"s_mov_b32 s{d+3}, 0x20000")]
def xreduce(v, t, op):
    return L(f"""v_mov_b32 v{t}, v{v}
v_permlane16_swap_b32 v{v}, v{t}
{op} v{v}, v{v}, v{t}
v_mov_b32 v{t}, v{v}
v_permlane32_swap_b32 v{v}, v{t}
{op} v{v}, v{v}, v{t}""")
def divmod_const(q, r, src, c):
    magic = (65536 + c - 1) // c
    for x in range(1400): assert (x * magic) >> 16 == x // c
    return L(f"v_mul_u32_u24 v{q}, {magic}, v{src}\nv_lshrrev_b32 v{q}, 16, v{q}\nv_mul_u32_u24 v{r}, {c}, v{q}\nv_sub_u32 v{r}, v{src}, v{r}")
def sdivmod(q, r, src, c):
    magic = (65536 + c - 1) // c
    for x in range(1400): assert (x * magic) >> 16 == x // c
    return L(f"s_mul_i32 s{q}, s{src}, {magic}\ns_lshr_b32 s{q}, s{q}, 16\ns_mul_i32 s{r}, s{q}, {c}\ns_sub_u32 s{r}, s{src}, s{r}")

def stamp(k):
    if not STAMPS: return []
    return L(f"""s_memrealtime s[{sSt}:{sSt+1}]
s_memtime s[{sSt+2}:{sSt+3}]
s_waitcnt lgkmcnt(0)
v_writelane_b32 v{vSt}, s{sSt}, {2*k}
v_writelane_b32 v{vSt}, s{sSt+2}, {2*k+1}""")
def stamp_store(n):
    if not STAMPS: return []
    return stamp(n - 1) + L("s_waitcnt vmcnt(0)") + stamp(n) + L(f"""s_add_u32 s{sK}, s{pWs}, {hex(STAMP_OFF)}
s_addc_u32 s{sK+1}, s{pWs+1}, 0
s_mov_b32 s{sK+2}, {1024*256}
s_mov_b32 s{sK+3}, 0x20000
s_lshl2_add_u32 s{sT0}, s2, s{sW}
s_lshl_b32 s{sT0}, s{sT0}, 8
v_lshlrev_b32 v2, 2, v0
buffer_store_dword v{vSt}, v2, {sr(sK,4)}, s{sT0} offen""")

OUTL = []
def poll_load(dst, vaddr, soff, n=1, **kw):
    op = "buffer_load_dword" if n == 1 else "buffer_load_dwordx4"
    return I(f"{op} {vr(dst,n)}, v{vaddr}, {sr(sWS,4)}, {soff} offen sc1", **kw)
def poll_cmp(dst, n):
    if n == 1: return L(f"v_cmp_ne_u32 vcc, s{sNonce}, v{dst}")
    return L(f"""v_xor_b32 v{dst}, s{sNonce}, v{dst}
v_xor_b32 v{dst+1}, s{sNonce}, v{dst+1}
v_xor_b32 v{dst+2}, s{sNonce}, v{dst+2}
v_xor_b32 v{dst+3}, s{sNonce}, v{dst+3}
v_or3_b32 v{dst}, v{dst}, v{dst+1}, v{dst+2}
v_or_b32 v{dst}, v{dst}, v{dst+3}
v_cmp_ne_u32 vcc, 0, v{dst}""")
def poll_branch(name, dst, vaddr, soff, n=1):
    o = L(f"L_spin_{name}:\ns_mov_b32 s{sSpin}, {SPIN_MAX}\nL_spin2_{name}:")
    o += [poll_load(dst, vaddr, soff, n)] + L("s_waitcnt vmcnt(0)") + poll_cmp(dst, n)
    o += L(f"""s_nop 4
s_cbranch_vccz L_back_{name}
s_sleep 1
s_sub_u32 s{sSpin}, s{sSpin}, 1
s_cmp_lg_u32 s{sSpin}, 0
s_cbranch_scc1 L_spin2_{name}
s_branch L_back_{name}""")
    OUTL.append((f"spin_{name}", o))
    return L(f"s_cbranch_vccnz L_spin_{name}\nL_back_{name}:")
def late(lst, g):
    for x in lst: x.after = g
    return lst
def set_flag(soff, tag, **kw):
    return I(f"buffer_store_dword v{vNon}, v{vFo}, {sr(sWS,4)}, {soff} offen sc1", tag_r=tag, **kw)

RF = os.environ.get("RF", "nt"); WQF = os.environ.get("WQF", "")
KVF = os.environ.get("KVF", "nt")
def grp3(st, srdn, vo, so, mreg, moff, inc, flags=""):
    r = [I(f"s_add_u32 m0, s{mreg}, {sbase(st)+moff}")]
    for n in range(3):
        v = vo + n if vo != vL16 else vL16
        r.append(I(f"buffer_load_dwordx4 v{v}, {sr(srdn,4)}, s{so} offen offset:{1024*n} {flags} lds", tag_w=f"st{st}", rd=['stg']))
    if inc: r.append(I(f"s_add_u32 s{so}, s{so}, {inc}"))
    return r
def dma_stage(st):
    r = []
    if st <= 9:
        r += grp3(st, sWq, vWo, sOffX, sM6, 0, 16 * 12288, WQF) + grp3(st, sWq, vWo, sOffX, sM6, 3072, 48 * 12288, WQF)
    elif st <= 26:
        t = st - 10
        if t <= 15: r += grp3(st, sK, vKo, sOffK, sM3, 0, 12288, KVF)
        if t >= 1: r += grp3(st, sV, vVo, sOffV, sM3, 12288, 12288, KVF)
        u = st - 12
        if 0 <= u < 14:
            if u == 4: r += srd(sR, pWo, 6144 * 640 * 2)[:3] + L(f"s_mov_b32 s{sOffR}, s{sOffRo}")
            if u == 12: r += srd(sR, pWd, 1536 * 640 * 2)[:3] + L(f"s_mov_b32 s{sOffR}, s{sOffRd}")
            r.append(I(f"s_add_u32 m0, s{sM1}, {sbase(st)+24576}"))
            r.append(I(f"buffer_load_dwordx4 v{vRo if u < 4 else vRo2}, {sr(sR,4)}, s{sOffR} offen {RF} lds", tag_w=f"st{st}", rd=['stg']))
            r.append(I(f"s_add_u32 s{sOffR}, s{sOffR}, {32*3072 if u < 4 else 32*1280}"))
    else:
        r += grp3(st, sWS, vL16, sOffG, sM6, 0, 3072, "sc1") + grp3(st, sWS, vL16, sOffG, sM6, 3072, 24576 - 3072, "sc1")
    return r
def pace(lst, lo, hi):
    vm = [x for x in lst if x.kind == 'vmem']
    for k, x in enumerate(vm): x.after = int(lo + k * (hi - lo) / len(vm))
    return lst
def barrier(tag, after=None): return I("s_barrier", tag_r=tag, wr=['stg'], after=after)

def acc1(T, j): return vAcc + ((T // 2) * 4 + j) * 8 + (T % 2) * 4
def w_reads(k, T):
    slot = aA1 + (T % 2) * 16
    p, t = T // 2, T % 2
    r = []
    for ks in range(4):
        for u in range(2): r += dsr("ds_read_b64_tr_b16", ar(slot + ks * 4 + u * 2, 2), vWa + p % 2, sbase(2 * k), (ks // 2) * SLOT + (ks % 2) * 12288 + u * 6144 + (p // 2) * 128 + 8 * t, rd=['stg'], tag_w=f"wr{k}")
    return r
def b_loads(base):
    r = []
    for u in range(2):
        for j in range(4):
            r.append(I(f"buffer_load_dwordx4 {rr((base[0], base[1]+(u*4+j)*4))}, v{vL16}, {sr(sWS,4)}, s{sOffB} offen offset:{1024*j} sc1"))
        r.append(I(f"s_add_u32 s{sOffB}, s{sOffB}, 4096"))
    return r
def k_reads(st, kt):
    r = []
    for s in range(6): r += dsr("ds_read_b128", ar(aK + kt * 24 + s * 4, 4), vKa + s % 2, sbase(st), kt * 6144 + (s // 2) * 128, rd=['stg'])
    return r
def v_reads(st, T):
    r = []
    for u in range(2): r += dsr("ds_read_b64_tr_b16", vr(vVs + (T % 6) * 4 + u * 2, 2), vVa + T % 4, sbase(st), 12288 + u * 6144 + (T // 4) * 128, rd=['stg'], tag_w=f"vr{st}")
    return r
def prefetch(srdn, soff, flags=""):
    x = I(f"buffer_load_dword v{vDum}, v{vL128}, {sr(srdn,4)}, {soff} offen {flags}"); x.writes = set(); return x

def csreg(T): return aCs + T * 4
def p1_quad(k, T0=0, T1=12, vm=(), vmspan=None, extra=()):
    last = k == 4
    per = 20 if k == 0 else 16
    n = (T1 - T0) * per
    s = []
    vm = list(vm)
    if any(x.kind == 'vmem' for x in vm): pace(vm, *(vmspan or (1, n - 20)))
    s += vm + list(extra)
    for T in range(T0, T1):
        if T + 1 < 12: s += w_reads(k, T + 1)
        else:
            s.append(barrier([f"st{2*k+2}", f"wr{k}"] + ([f"st{2*k+3}"] if not last else []), after=n - per - 1))
            s += w_reads(k + 1, 0) if not last else k_reads(10, 0)
        slot = aA1 + (T % 2) * 16
        for j in range(4):
            d = vr(acc1(T, j), 4)
            for ks in range(4):
                s.append(mfma(d, ar(slot + ks * 4, 4), ar(64 * (k % 2) + (ks * 4 + j) * 4, 4), "0" if (k == 0 and ks == 0) else d))
        if k == 0:
            d = ar(csreg(T), 4)
            for ks in range(4): s.append(mfma(d, ar(slot + ks * 4, 4), vr(vOne, 4), d if ks else "0"))
        if k in (2, 3) and T % 2 == k - 2:
            t = vCsT + ((T // 2) % 2) * 4
            for i in range(4): s.append(I(f"v_accvgpr_read_b32 v{t+i}, a{csreg(T)+i}"))
            for j in range(4):
                for i in range(4): s.append(I(f"v_fmac_f32 v{acc1(T,j)+i}, v{t+i}, v{vSta+2*j}"))
        if last and T % 2 == 1:
            p = T // 2
            for j in range(4):
                a = acc1(2 * p, j); q = vQ + (p * 4 + j) * 4
                for i in range(8): s.append(I(f"v_mul_f32 v{a+i}, v{vSta+2*j+1}, v{a+i}"))
                for i in range(4): s.append(I(f"v_cvt_pk_bf16_f32 v{q+i}, v{a+2*i}, v{a+2*i+1}"))
    return s
def w_reads0(n):
    h, T = n // 12, n % 12
    slot = aA1 + (n % 4) * 8
    p, t = T // 2, T % 2
    r = []
    for ks in range(2):
        for u in range(2): r += dsr("ds_read_b64_tr_b16", ar(slot + ks * 4 + u * 2, 2), vWa + p % 2, sbase(h & 2), (h & 1) * SLOT + ks * 12288 + u * 6144 + (p // 2) * 128 + 8 * t, rd=['stg'], tag_w=f"wr{h//2}")
    return r
def raw_reads(h):
    return [I(f"ds_read_b128 {ar(((2*h+ks)*4+j)*4,4)}, v{(vXo if h == 0 else vXo2) + ks} offset:{j*2048}", tag_r=f"raw{h}", tag_w=f"rawrd{h}", wr=[f"rawarea"]) for j in range(4) for ks in range(2)]
def gpos(n): return n * 10 if n <= 36 else 360 + (n - 36) * 8
def p1_first(n0, n1, extra=(), at={}):
    s = list(extra)
    g0 = gpos(n0)
    for n in range(n0, n1):
        h, T = n // 12, n % 12
        if n in (8, 20): s += late(raw_reads(n // 12 + 1), gpos(n) - g0)
        s += at.get(n, [])
        if n in (10, 22, 34): s.append(barrier([f"st{h+1}"], after=gpos(n) - g0 - 4))
        if n == 24: s.append(I("s_barrier", tag_r=["wr0"], wr=['stgw'], after=gpos(n) - g0))
        if n + 2 < 48: s += w_reads0(n + 2)
        elif n == 47:
            s.append(barrier(["st4", "st5", "wr1"], after=gpos(46) - g0))
            s += w_reads(2, 0)
        slot = aA1 + (n % 4) * 8
        for j in range(4):
            d = vr(acc1(T, j), 4)
            for ks in range(2): s.append(mfma(d, ar(slot + ks * 4, 4), ar(((2 * h + ks) * 4 + j) * 4, 4), "0" if (h == 0 and ks == 0) else d))
        if h < 3:
            d = ar(csreg(T), 4)
            for ks in range(2): s.append(mfma(d, ar(slot + ks * 4, 4), vr(vOne, 4), "0" if (h == 0 and ks == 0) else d))
    return s
def stat_loads():
    return [I(f"buffer_load_dwordx2 {vr(vSta+2*j,2)}, v{vSo}, {sr(sWS,4)}, s{sScale} offen offset:{128*j} sc1") for j in range(4)]

def Sreg(kt, j, t):
    if j < 2: return (vTmp if t == 0 else vS01) + (j * 2 + kt) * 4
    return vS23 + (t % 2) * 16 + ((j - 2) * 2 + kt) * 4
def Preg(j, t):
    if j < 2: return vP01 + (t % 2) * 8 + j * 4
    return (vTmp + 8 if t == 15 else vP23) + (j - 2) * 4
def qk(kt, t):
    s = []
    for j in range(4):
        d = vr(Sreg(kt, j, t), 4)
        for p in range(6):
            c = d if p else ("0" if (t == 0 and kt == 0) else vr(vNm + 4 * j, 4))
            s.append(mfma(d, ar(aK + kt * 24 + p * 4, 4), vr(vQ + (p * 4 + j) * 4, 4), c))
    return s
def softmax(j, t):
    s = []
    for kt in range(2):
        a = Sreg(kt, j, t)
        for i in range(4): s.append(I(f"v_exp_f32 v{a+i}, v{a+i}"))
        for i in range(4): s.append(I(f"v_add_f32 v{vLs+j}, v{vLs+j}, v{a+i}"))
        for i in range(2): s.append(I(f"v_cvt_pk_bf16_f32 v{Preg(j,t)+kt*2+i}, v{a+2*i}, v{a+2*i+1}"))
    return s
def pv_T(T, t):
    s = []
    for j in range(4):
        d = ar((T * 4 + j) * 4, 4)
        s.append(mfma(d, vr(vVs + (T % 6) * 4, 4), vr(Preg(j, t), 4), "0" if t == 0 else d))
    return s

HALFB = 'halfb' in KN
def p2_iter(t, base=0, extra=(), post=(), btag=()):
    st = 11 + t
    s = []
    s += k_reads(st, 1)
    u = st - 12
    if u >= 0:
        for h in range(2): s += dsr("ds_read_b64_tr_b16", ar(aR + 2 * h, 2), vRa, sbase(st), 24576 + 2048 * h, rd=['stg'])
    s += pace(dma_stage(st + 3) + list(extra), base + 4, base + (PAR("HP", 50) if (HALFB and t % 2) else 68))
    if t > 0: s += softmax(2, t) + softmax(3, t)
    s += qk(0, t + 1) + qk(1, t + 1)
    for T in range(6): s += v_reads(st, T)
    s += softmax(0, t + 1) + softmax(1, t + 1)
    if t == 14: s += softmax(2, 15) + softmax(3, 15)
    for T in range(12):
        s += pv_T(T, t)
        if T < 6: s += v_reads(st, T + 6)
        if T == 5:
            if not HALFB: s.append(barrier([f"st{st+1}"] + list(btag), after=base + 70))
            elif t % 2 == 0: s.append(barrier([f"st{st+1}", f"st{st+2}", f"vr{st}"] + list(btag), after=base + PAR("HB", 78)))
            else: assert not btag
            if t < 14: s += late(k_reads(st + 1, 0), base + 60) if (HALFB and t % 2) else k_reads(st + 1, 0)
            if u >= 0:
                if u == 4: s += L(f"s_mov_b32 s{sOffD}, s{sOffDo}")
                if u == 12: s += L(f"s_mov_b32 s{sOffD}, s{sOffDd}")
                s.append(I(f"buffer_store_dwordx4 {ar(aR,4)}, v{vL16}, {sr(sWS,4)}, s{sOffD} offen sc1", after=base + 80, tag_w="Gst" if u < 4 else "Wst" if u < 12 else "Dst"))
                s.append(I(f"s_add_u32 s{sOffD}, s{sOffD}, {6144 if u < 4 else 10240 if u < 12 else 5120}"))
        if t == 14 and T >= 6: s += v_reads(st + 1, T - 6)
    s += list(post)
    return s

def first_tile(base):
    s = []
    s += k_reads(10, 1)
    s += pace(dma_stage(13), base + 2, base + 30)
    s += qk(0, 0)
    for j in range(4):
        a = Sreg(0, j, 0); m = vNm + 4 * j; t = m + 1
        s += L(f"v_max3_f32 v{m}, v{a}, v{a+1}, v{a+2}\nv_max_f32 v{m}, v{m}, v{a+3}")
        s += xreduce(m, t, "v_max_f32")
        s += L(f"v_sub_f32 v{m+1}, 0, v{m}\nv_sub_f32 v{m+2}, 0, v{m}\nv_sub_f32 v{m+3}, 0, v{m}\nv_sub_f32 v{m}, 0, v{m}")
        for i in range(4): s.append(I(f"v_add_f32 v{a+i}, v{a+i}, v{m}"))
    s.append(barrier("st11", after=base + 28))
    s += k_reads(11, 0)
    s += qk(1, 0)
    for j in range(4): s += softmax(j, 0)
    return s

vGA = 160; vOP = 184
BBUF = [('a', 192), ('a', 224), ('v', 208), ('a', 0)]
def g_reads(n, tagr='stg', pos=None):
    ds, grp = n // 6, n % 6
    slot = vGA + ((n if pos is None else pos) % 3) * 8
    r = []
    for ks in range(2): r += dsr("ds_read_b128", vr(slot + ks * 4, 4), vGa, sbase(27 + ds // 2), (((ds % 2) * 2 + ks) * 6 + grp) * 1024, rd=[tagr])
    return r
def acc3(grp, j): return vAcc + (grp * 4 + j) * 4

def tail_pv(base):
    s = L(f"s_sub_u32 s{sOffB}, s{sOffB}, {20*4096}")
    wf = set_flag(f"s{sFg}", None, rd=['stg'])
    s += pace([wf] + L(f"s_add_u32 s{sFg}, s{sFg}, {FW2-FW}") + b_loads(BBUF[0]), base - 11, base + 22)
    for T in range(12):
        s += pv_T(T, 15)
        if T < 6: s += v_reads(26, T + 6)
        if T == 5:
            if not HALFB: s.append(barrier("st27", after=base + 24))
            s += g_reads(0) + g_reads(1)
            s += pace(b_loads(BBUF[1]), base + 22, base + 48)
    for j in range(4): s += xreduce(vLs + j, vTmp + j, "v_add_f32")
    s += L(f"""v_add_f32 v{vTmp}, v{vLs}, v{vLs+1}
v_add_f32 v{vTmp+1}, v{vLs+2}, v{vLs+3}
v_add_f32 v{vTmp}, v{vTmp}, v{vTmp+1}
v_cmp_ngt_f32 vcc, {hex(f2u(2.0**40))}, v{vTmp}""")
    for j in range(4): s.append(I(f"v_rcp_f32 v{vLs+j}, v{vLs+j}"))
    return s

def split(lst):
    ch = []; cur = []
    for x in lst:
        cur.append(x)
        if x.kind == 'vmem': ch.append(cur); cur = []
    if cur: ch[-1] += cur
    return ch
def merge(qs):
    qs = [list(q) for q in qs]
    w = [len(q) for q in qs]; tot = sum(w); acc = [0.0] * len(qs); seq = []
    for k in range(tot):
        for z in range(len(qs)): acc[z] += w[z]
        z = max((z for z in range(len(qs)) if qs[z]), key=lambda z: acc[z])
        acc[z] -= tot; seq.append(qs[z].pop(0))
    return seq

vOA = 32; vOB = 33; vDA = 34; vDB = 35
vOa = 40; vPo = 41; vFa = 42; vFa2 = 43; vFl = 44
vAc = 64; vDc = 144; vPk = 164; vXr = 204; vPl = 64
def fA(e, t, ks): return e * 72 + (t * 2 + ks) * 4
def fB(e, j, ks): return 40 + e * 72 + (ks * 4 + j) * 4
def dA(e, n): return (144 if e == 0 else 0) + n * 4
def dB(e, ks): return (144 if e == 0 else 0) + 80 + ks * 4
def dmaA(sg, rd='stg'):
    r = []
    if sg == 24: r += L(f"s_mov_b32 s{sOffA}, s{sOffRo}")
    r.append(I(f"s_add_u32 m0, s{sM5}, {obase(sg)}"))
    for n in range(5):
        if n == 4: r += L(f"s_add_u32 m0, s{sM5}, {obase(sg)+4096}\ns_add_u32 s{sOffA}, s{sOffA}, 4096")
        r.append(I(f"buffer_load_dwordx4 v{vL16}, {sr(sWS,4)}, s{sOffA} offen offset:{1024*(n%4)} sc1 lds", tag_w=f"ot{sg}", rd=[rd]))
    r.append(I(f"s_add_u32 s{sOffA}, s{sOffA}, {20480-4096}"))
    return r
def dmaB(sg, rd='stg'):
    r = []
    if sg == 24: r += L(f"s_mov_b32 s{sOffBB}, s{sOffRd}")
    r.append(I(f"s_add_u32 m0, s{sM4}, {obase(sg)+20480}"))
    for n in range(4):
        r.append(I(f"buffer_load_dwordx4 v{vL16}, {sr(sWS,4)}, s{sOffBB} offen offset:{1024*n} sc1 lds", tag_w=f"ot{sg}", rd=[rd]))
    r.append(I(f"s_add_u32 s{sOffBB}, s{sOffBB}, {8192 if sg < 24 else 16384}"))
    return r
def apf():
    if "apf" not in KN: return []
    return [prefetch(sWS, f"s{sPf}", "sc1")] + L(f"s_add_u32 s{sPf}, s{sPf}, 81920")
def o_reads(sg):
    e = sg % 2; kw = dict(rd=['stg'], tag_w=f"rd{sg}")
    r = []
    if sg < 24:
        for ks in range(2): r += dsr("ds_read_b128", ar(fA(e, 0, ks), 4), vOA, obase(sg), ks * 10240, **kw)
        for j in range(4):
            for ks in range(2): r += dsr("ds_read_b128", ar(fB(e, j, ks), 4), vOB, obase(sg), ks * 8192 + j * 1024, **kw)
        for t in range(1, 5):
            for ks in range(2): r += dsr("ds_read_b128", ar(fA(e, t, ks), 4), vOA, obase(sg), (ks * 10 + t) * 1024, **kw)
    else:
        for ks in range(4): r += dsr("ds_read_b128", ar(dB(e, ks), 4), vDB, obase(sg), ks * 4096, **kw)
        for T in range(5):
            for ks in range(4): r += dsr("ds_read_b128", ar(dA(e, ks * 5 + T), 4), vDA, obase(sg), (ks * 5 + T) * 1024, **kw)
    return r
def dmaD(g):
    r = []
    for h in range(2):
        r.append(I(f"s_add_u32 m0, s{sM3}, {obase(24+g)+4096*h}"))
        for n in range(4): r.append(I(f"buffer_load_dwordx4 v{vL16}, {sr(sWS,4)}, s{sOffRo} offen offset:{1024*n} sc1 lds", tag_w=f"ot{24+g}", rd=['stg']))
        r.append(I(f"s_add_u32 s{sOffRo}, s{sOffRo}, {4096 if h == 0 else 30720-4096}"))
    return r
DRING = [240, 244, 248, 252] + list(range(96, 144, 4))
vDo = 216; vHp = 236; vHr = 246
def dBreg(p, k): return (144 if p == 0 else 0) + 4 * k
def d_bload(p, k):
    so = sOffRd if p == 0 else sOffBB
    return [I(f"buffer_load_dwordx4 {ar(dBreg(p,k),4)}, v{vL16}, {sr(sWS,4)}, s{so} offen sc1"), I(f"s_add_u32 s{so}, s{so}, 4096")]
def d_read(n):
    g, T, k = (n % 120) // 30, (n % 30) // 6, n % 6
    return dsr("ds_read_b128", ar(DRING[n % 16], 4), vDA, obase(24 + g), (k * 5 + T) * 1024, rd=['stg'])
DLA = 12
def d_block(p, g, extra=(), post=()):
    s = list(extra)
    if any(x.kind == 'vmem' for x in s): pace(s, 0, 29)
    acc = vDo if p == 0 else vDc
    for i in range(30):
        n = p * 120 + g * 30 + i
        first = 4 if n == 0 else n + DLA
        for m in range(first, n + DLA + 1):
            if m < 240:
                if m < 120 and m % 30 == 0: s.append(I("s_barrier", tag_r=[f"ot{24+m//30}"], wr=['stg']))
                s += d_read(m)
        T, k = i // 6, i % 6
        d = vr(acc + 4 * T, 4)
        s.append(mfma(d, ar(DRING[n % 16], 4), ar(dBreg(p, g * 6 + k), 4), "0" if (g == 0 and k == 0) else d))
    return s + list(post)
def o_block(sg, extra=(), pre=(), mid=(), exfirst=False):
    e = sg % 2
    s = list(pre)
    s += [I("s_barrier", tag_r=[f"ot{sg+1}", f"rd{sg}"], wr=['stg'], after=2)]
    if sg < 23: s += o_reads(sg + 1)
    else:
        for m in range(4): s += d_read(m)
    db = dmaB(sg + 4) + dmaA(sg + 4) if sg < 20 else dmaD(sg - 20)
    vm = split(db[:2] + list(mid) + db[2:])
    ex = split(list(extra)) if any(x.kind == 'vmem' for x in extra) else []
    if exfirst: seq = list(extra) + [x for ch in vm for x in ch]
    else: seq = [x for ch in merge([vm, ex]) for x in ch] if ex else [x for ch in vm for x in ch] + list(extra)
    pace(seq, 3, 40)
    s += seq
    for t in range(5):
        for j in range(4):
            for ks in range(2):
                d = vr(vAc + (t * 4 + j) * 4, 4)
                s.append(mfma(d, ar(fA(e, t, ks), 4), ar(fB(e, j, ks), 4), "0" if (sg == 0 and ks == 0) else d))
    return s

OF = PAR('OF', 4); OC = PAR('OC', 7); WC = PAR('WC', 5)
vFo2 = 37
vHs = 48
def p3_steps():
    oe = []
    n = 0
    for p in range(6):
        for j in range(4):
            t = vTmp + (n % 2) * 8; o = vOP + (n % 6) * 4
            it = []
            for tt in range(2):
                for i in range(4): it.append(I(f"v_accvgpr_read_b32 v{t+tt*4+i}, a{((2*p+tt)*4+j)*4+i}"))
            for i in range(8): it.append(I(f"v_mul_f32 v{t+i}, v{t+i}, v{vLs+j}"))
            for i in range(4): it.append(I(f"v_cvt_pk_bf16_f32 v{o+i}, v{t+2*i}, v{t+2*i+1}"))
            it.append(I(f"buffer_store_dwordx4 {vr(o,4)}, v{vL16}, {sr(sWS,4)}, s{sOffO} offen offset:{1024*j} sc1", tag_w="Ost"))
            if j == 3: it.append(I(f"s_add_u32 s{sOffO}, s{sOffO}, 4096"))
            oe.append(it); n += 1
    nst = [int(x) for x in os.environ.get("NST", "6,6,6,6,0,0,0,0,0,0").split(",")]
    g29, g30, g31 = split(dma_stage(29)), split(dma_stage(30)), split(dma_stage(31))
    dm = {0: g29[:3], 1: g29[3:], 2: g30[:3], 3: g30[3:], 4: g31[:3], 5: g31[3:]}
    a0, a1, a2 = [split(dmaA(k, 'x')) for k in range(3)]
    b0, b1, b2 = [split(dmaB(k, 'x')) for k in range(3)]
    assert WC <= 5 and OC == 7
    dm[6] = a0; dm[7] = a1; dm[8] = b0 + b1 + a2[:2]; dm[9] = a2[2:] + b2
    allb = [c for d in range(2, 10) for c in split(b_loads(BBUF[d % 4]))]
    cnt = [int(x) for x in os.environ.get("NB", "8,8,8,8,9,9,8,6,0,0").split(",")]
    BQ = []
    for k in cnt: BQ.append(allb[:k]); allb = allb[k:]
    assert not allb
    steps = []
    for ds in range(10):
        s = []
        take = BQ[ds]
        st = [oe.pop(0) for _ in range(nst[ds])]
        seq = merge([take, dm.get(ds, []), st])
        if ds == 2: seq.insert(0, [set_flag(f"s{sFg}", None)])
        if ds == WC - 1: seq.insert(0, L(f"s_mov_b32 s{sT0}, {hex(FW)}") + [poll_load(vFl, vL16, f"s{sT0}", 4)])
        if ds == OF: seq.insert(int(len(seq) * PAR("OFP", 0.5)), [set_flag(f"s{sFl}", "Ost")])
        if ds == PAR("OP", 6): seq.insert(int(len(seq) * PAR("OPP", 0.6)), [poll_load(vFo2, vFa, f"s{sT1}")])
        flat = [x for ch in seq for x in ch]
        s += ('pace', flat),
        for grp in range(6):
            n = ds * 6 + grp
            real = lambda m: m if m < 48 else 48 + ((m - 48) % 2) * 6 + (m - 48) // 2
            if n + 2 < 60:
                if (n + 2) % 12 == 0:
                    stg = 27 + (n + 2) // 12
                    tags = [f"st{stg}"] + (["Dst"] if stg == 28 else [])
                    s.append(I("s_barrier", tag_r=tags, wr=['stg2'], after=24))
                s += g_reads(real(n + 2), 'stg2', n + 2)
            slot = vGA + (n % 3) * 8
            rds, rg = real(n) // 6, real(n) % 6
            B = BBUF[rds % 4]
            for j in range(4):
                for ks in range(2):
                    d = vr(acc3(rg, j), 4)
                    s.append(mfma(d, vr(slot + ks * 4, 4), rr((B[0], B[1] + (ks * 4 + j) * 4)), "0" if (ds == 0 and ks == 0) else d))
            if rds == 9 and rg % 2 == 1: s += h_epilogue(rg // 2)
        steps.append(s)
    assert not oe
    return steps
HST = []
def h_epilogue(T3):
    s = []
    if True:
        for jp in range(2):
            o = vOP + ((T3 * 2 + jp) % 6) * 4
            for jj in range(2):
                j = jp * 2 + jj
                g = acc3(2 * T3, j); u = acc3(2 * T3 + 1, j)
                for i in range(4): s.append(I(f"v_mul_f32 v{g+i}, v{g+i}, v{u+i}"))
                for i in range(2): s.append(I(f"v_cvt_pk_bf16_f32 v{o+jj*2+i}, v{g+2*i}, v{g+2*i+1}"))
            for i in range(2): s.append(I(f"v_permlane32_swap_b32 v{o+i}, v{o+2+i}"))
            HST.append(I(f"buffer_store_dwordx4 {vr(o,4)}, v{vT}, {sr(sWS,4)}, s{sOffH+T3} offen offset:{2048*jp} sc1", tag_w="Hst"))
    return s
def join_steps(steps, n=48):
    out = []
    for k, s in enumerate(steps):
        base = k * n
        for x in s:
            if isinstance(x, tuple):
                if any(y.kind == 'vmem' for y in x[1]): pace(x[1], base, base + n - 1)
                out += x[1]
            else:
                if x.after is not None: x.after += base
                out.append(x)
    return out

def gen_fallback():
    F = Prog()
    vK = 232; vS = 176; vP = 208
    vf, vv, va = 48, 49, 50
    sK_, sV_ = sK, sV
    def kload():
        return [I(f"buffer_load_dwordx4 {vr(vK+4*p,4)}, v{vf}, {sr(sK_,4)}, s{sT0} offen offset:{64*p}") for p in range(6)] + L(f"s_add_u32 s{sT0}, s{sT0}, 6144")
    def chains(kt, c0):
        s = []
        for j in range(4):
            d = vr(vS + (j * 2 + kt) * 4, 4)
            for p in range(6): s.append(mfma(d, vr(vK + 4 * p, 4), vr(vQ + (p * 4 + j) * 4, 4), d if p else c0(j)))
        return s
    c = L("L_fb:\ns_waitcnt vmcnt(0) lgkmcnt(0)\ns_nop 15")
    c += L(f"""v_and_b32 v54, 15, v0
v_lshrrev_b32 v55, 4, v0
v_mul_u32_u24 v{vf}, 384, v54
v_lshl_add_u32 v{vf}, v55, 4, v{vf}
v_lshrrev_b32 v56, 3, v0
v_and_b32 v57, 7, v0
v_and_b32 v58, 6, v56
v_xor_b32 v57, v57, v58
v_mul_u32_u24 v{vv}, 384, v56
v_lshl_add_u32 v{vv}, v57, 4, v{vv}
v_lshrrev_b32 v56, 2, v54
v_lshl_add_u32 v56, v55, 2, v56
v_bfe_u32 v57, v56, 1, 2
v_lshlrev_b32 v56, 7, v56
v_and_b32 v58, 3, v0
v_lshl_add_u32 v56, v58, 3, v56
s_lshl_b32 s{sT2}, s{sW}, 12
s_add_u32 s{sT2}, s{sT2}, {LDS_X}
v_add_u32 v56, s{sT2}, v56""")
    for x in range(4): c += L(f"v_xor_b32 v58, {x}, v57\nv_lshl_add_u32 v{va+x}, v58, 5, v56")
    c += L(f"""s_mul_i32 s{sT1}, s{sH}, 786432
s_add_u32 s{sT1}, s{sT1}, {1536*384}
s_mov_b32 s{sT0}, s{sT1}
s_mov_b32 s{sSpin}, 0""")
    for j in range(4): c += L(f"v_mov_b32 v{vNm+4*j}, 0xff800000")
    F.block("a", c)
    c = L("L_fb1:") + kload() + chains(0, lambda j: "0")
    for j in range(4):
        a = vS + j * 8; m = vNm + 4 * j
        c += L(f"v_max3_f32 v{m}, v{m}, v{a}, v{a+1}\nv_max3_f32 v{m}, v{m}, v{a+2}, v{a+3}")
    c += L(f"s_add_u32 s{sSpin}, s{sSpin}, 1\ns_cmp_lt_u32 s{sSpin}, 32\ns_cbranch_scc1 L_fb1")
    F.block("b", c)
    c = []
    for j in range(4):
        m = vNm + 4 * j
        c += xreduce(m, m + 1, "v_max_f32")
        c += L(f"v_sub_f32 v{m+1}, 0, v{m}\nv_sub_f32 v{m+2}, 0, v{m}\nv_sub_f32 v{m+3}, 0, v{m}\nv_sub_f32 v{m}, 0, v{m}\nv_mov_b32 v{vLs+j}, 0")
    for i in range(192): c.append(I(f"v_accvgpr_write_b32 a{i}, 0"))
    c += L(f"s_mov_b32 s{sT0}, s{sT1}\ns_mov_b32 s{sSpin}, 0")
    F.block("c", c)
    c = L("L_fb2:")
    for kt in range(2): c += kload() + chains(kt, lambda j: vr(vNm + 4 * j, 4)) + L("s_nop 7")
    for j in range(4):
        for kt in range(2):
            a = vS + (j * 2 + kt) * 4
            for i in range(4): c.append(I(f"v_exp_f32 v{a+i}, v{a+i}"))
            for i in range(4): c.append(I(f"v_add_f32 v{vLs+j}, v{vLs+j}, v{a+i}"))
            for i in range(2): c.append(I(f"v_cvt_pk_bf16_f32 v{vP+j*4+kt*2+i}, v{a+2*i}, v{a+2*i+1}"))
    for cg in range(3):
        for a in range(4):
            c += L(f"""s_add_u32 m0, s{sT2}, {1024*a}
s_add_u32 s{sOffP}, s{sT1}, {3072*a+128*cg}
buffer_load_dwordx4 v{vv}, {sr(sV_,4)}, s{sOffP} offen lds""")
        c += L("s_waitcnt vmcnt(0)")
        for x in range(4):
            for u in range(2): c.append(I(f"ds_read_b64_tr_b16 {vr(vK+4*x+2*u,2)}, v{va+x} offset:{2048*u}"))
        c += L("s_waitcnt lgkmcnt(0)")
        for x in range(4):
            for j in range(4):
                d = ar(((cg * 4 + x) * 4 + j) * 4, 4)
                c.append(mfma(d, vr(vK + 4 * x, 4), vr(vP + 4 * j, 4), d))
        c += L("s_nop 7")
    c += L(f"s_add_u32 s{sT1}, s{sT1}, 12288\ns_add_u32 s{sSpin}, s{sSpin}, 1\ns_cmp_lt_u32 s{sSpin}, 16\ns_cbranch_scc1 L_fb2")
    F.block("d", c)
    c = []
    for j in range(4): c += xreduce(vLs + j, vTmp + j, "v_add_f32")
    for j in range(4): c.append(I(f"v_rcp_f32 v{vLs+j}, v{vLs+j}"))
    c += L("s_nop 15\ns_branch L_fb_back")
    F.block("e", c)
    F.trace = [("a", {}), ("b", {}), ("b", {}), ("c", {}), ("d", {}), ("d", {}), ("e", {})]
    F.insert_waits(); F.fix_hazards()
    return F.text()


def gen(dbg=False):
    P = Prog()
    OUTL.clear(); AD.clear(); HST.clear()
    for i in range(2): AD[vWa + i] = Addr(vWa + i, sbase(0)); AD[vKa + i] = Addr(vKa + i, 0)
    for i in range(4): AD[vVa + i] = Addr(vVa + i, 0)
    AD[vRa] = Addr(vRa, sbase(12)); AD[vGa] = Addr(vGa, sbase(27))
    AD[vOA] = Addr(vOA, obase(0)); AD[vOB] = Addr(vOB, obase(0)); AD[vDA] = Addr(vDA, obase(24)); AD[vDB] = Addr(vDB, obase(24))
    nblk = [0]
    def blk(ins, name=None):
        nm = name or f"b{nblk[0]}"; nblk[0] += 1
        P.block(nm, ins); P.trace.append((nm, {}))
    CPA = PAR("CPA", 10000)
    cp = [3]
    def sch(s, name, **kw):
        if name.startswith("p2_") or name.startswith("p1_"):
            if "nost" in KN: s = [x for x in s if not (x.kind == 'vmem' and 'store_dwordx4' in x.text)]
            if "norl" in KN: s = [x for x in s if not (x.kind == 'vmem' and f"s[{sR}:{sR+3}]" in x.text)]
            if "kvhit" in KN: s = [x for x in s if not x.text.startswith((f"s_add_u32 s{sOffK}, s{sOffK}, 12288", f"s_add_u32 s{sOffV}, s{sOffV}, 12288"))]
            if "nobar" in KN: s = [x for x in s if x.kind != 'barrier']
            if "novm" in KN: s = [x for x in s if not (x.kind == 'vmem' and 'dwordx4' in x.text and 'v[48:51]' not in x.text)]
            if "novalu" in KN and name.startswith("p2_"): s = [x for x in s if not (x.kind in ('valu', 'trans') and x.text.startswith(('v_exp', 'v_add_f32', 'v_cvt')))]
        if name.startswith("p3"):
            if "p3nost" in KN: s = [x for x in s if not (x.kind == 'vmem' and 'store_dwordx4' in x.text)]
            if "p3nob" in KN: s = [x for x in s if not (x.kind == 'vmem' and 'load_dwordx4' in x.text and ' lds' not in x.text and f"s{sOffB} " in x.text)]
            if "p3novalu" in KN: s = [x for x in s if not (x.kind == 'valu' and x.text.startswith(('v_accvgpr', 'v_mul_f32', 'v_cvt')))]
            if "p3plain" in KN:
                for x in s:
                    if 'store_dwordx4' in x.text: x.text = x.text.replace(" sc1", "")
            if "p3nt" in KN:
                for x in s:
                    if 'store_dwordx4' in x.text: x.text = x.text.replace(" sc1", " sc1 nt")
        pos = sum(isize(x) for b in P.blocks for x in b[1]) * 1.03
        end = pos + sum(isize(x) for x in s) * 1.03
        nm = sum(1 for x in s if x.kind == 'mfma')
        while "nocp" not in KN and cp[0] * 8192 < end + CPA and cp[0] < NSLICE:
            g = int(max(0, min(nm - 2, (cp[0] * 8192 - CPA - pos) / (end - pos) * nm)))
            k = next((i for i, x in enumerate(s) if x.kind == 'vmem' and x.after is not None and x.after > g), len(s))
            cpl = I(f"global_load_dword v{vDum}, v{vL16}, s[62:63]", after=g); cpl.writes = set()
            s = s[:k] + [cpl, I("s_add_u32 s62, s62, 0x2000"), I("s_addc_u32 s63, s63, 0")] + s[k:]
            cp[0] += 1
        if "jitter" in KN:
            k = nblk[0]
            blk(L(f"""s_memtime s[100:101]
s_waitcnt lgkmcnt(0)
s_mul_i32 s100, s100, {2654435761 & 0x7fffffff}
s_lshr_b32 s100, s100, 20
s_and_b32 s101, s100, 7
s_cmp_lg_u32 s101, 0
s_cbranch_scc1 L_j{k}b
s_lshr_b32 s100, s100, 3
s_and_b32 s100, s100, {PAR("JM", 127)}
L_j{k}:
s_sleep 1
s_sub_u32 s100, s100, 1
s_cmp_gt_i32 s100, 0
s_cbranch_scc1 L_j{k}
L_j{k}b:"""))
        blk(schedule(s, name, verbose=dbg and "v" in KN, **kw), name)
    CC = math.log2(math.e) / math.sqrt(192.0)
    if "cpold" in KN:
        CP0 = f"""s_and_b32 s{sT2}, s{sT2}, 15
s_min_u32 s{sT2}, s{sT2}, CODE_SLICES-1
s_lshl_b32 s{sT2}, s{sT2}, 13
v_add_u32 v52, s{sT2}, v{vL128}
global_load_dword a{aDum}, v52, s[62:63]"""
    else:
        CP0 = f"""s_min_u32 s{sT2}, s{sT2}, CODE_SLICES*8-1
s_lshl_b32 s{sT2}, s{sT2}, 10
v_add_u32 v52, s{sT2}, v{vL16}
global_load_dword a{aDum}, v52, s[62:63]"""
    c = L(f"""s_cmp_ge_u32 s2, 256
s_cbranch_scc1 L_end
s_load_dwordx16 s[64:79], s[0:1], 0
s_load_dwordx8 s[80:87], s[0:1], 64
s_memrealtime s[{sSt}:{sSt+1}]
s_getpc_b64 s[62:63]
v_lshrrev_b32 v30, 6, v0
v_and_b32 v0, 63, v0
v_readfirstlane_b32 s{sW}, v30
v_lshlrev_b32 v{vL16}, 4, v0
v_lshlrev_b32 v{vL128}, 7, v0
v_and_b32 v48, 7, v0
v_lshrrev_b32 v49, 3, v0
v_mul_u32_u24 v60, 1280, v48
v_lshl_add_u32 v50, v49, 4, v60
v_lshl_add_u32 v50, v30, 7, v50
s_mul_i32 s{sT0}, s2, {8*1280}
s_and_b32 s{sT1}, s2, 7
s_lshr_b32 s{sT2}, s2, 3
s_and_b32 s{sH}, s{sT2}, 3
s_lshl2_add_u32 s{sH}, s{sT1}, s{sH}
s_lshr_b32 s{sB}, s{sT2}, 2
s_lshr_b32 s{sS}, s{sT1}, 1
s_and_b32 s{sT1}, s{sT1}, 1
s_lshl3_add_u32 s{sMb}, s{sT1}, s{sB}
s_and_b32 s{sNb}, s{sT2}, 3
v_cmp_eq_u32 vcc, 0, v0
v_bfrev_b32 v51, 1
v_cndmask_b32 v{vFo}, v51, 0, vcc
v_cmp_gt_u32 vcc, 2, v30
v_add_u32 v53, 1024, v50
v_cndmask_b32 v53, v51, v53, vcc
s_lshl2_add_u32 s{sT2}, s{sT2}, s{sW}
{CP0}
v_lshrrev_b32 v54, 4, v0
v_and_b32 v55, 15, v0
v_and_b32 v61, 6, v49
v_xor_b32 v61, v61, v48
v_lshlrev_b32 v61, 4, v61
v_mul_u32_u24 v62, 1280, v49
v_add_u32 v{vRo2}, v62, v61
v_and_b32 v62, 4, v49
v_add_u32 v62, v62, v49
v_mul_u32_u24 v62, 3072, v62
v_add_u32 v{vRo}, v62, v61
s_lshl_b32 s{sM5}, s{sW}, 13
s_add_u32 s{sM4}, s{sM5}, {SLOT}
s_cmp_eq_u32 s{sW}, 3
s_cmov_b32 s{sM5}, {LDS_X + 4096}
s_lshl2_add_u32 s{sQg}, s{sB}, s{sW}
s_mul_i32 s{sOffBB}, s{sQg}, {64*1280}""")
    if STAMPS: c += L(f"v_mov_b32 v{vSt}, 0")
    c += L("s_waitcnt lgkmcnt(0)")
    c += srd(sXin, pX, 2048 * 640 * 2)
    c += L(f"""buffer_load_dwordx4 v[64:67], v50, {sr(sXin,4)}, s{sT0} offen {os.environ.get("XF_", "")}
buffer_load_dwordx4 v[68:71], v50, {sr(sXin,4)}, s{sT0} offen offset:512 {os.environ.get("XF_", "")}
buffer_load_dwordx4 v[72:75], v53, {sr(sXin,4)}, s{sT0} offen {os.environ.get("XF_", "")}
buffer_load_ushort v76, v60, {sr(sXin,4)}, s{sT0} offen""")
    c += srd(sR, pDbg, 256)
    c += L(f"""s_or_b32 s{sNonce}, s{sSt}, 1
v_mov_b32 v56, s{sNonce}
v_mov_b32 v57, 0
s_or_b32 s{sT1}, s2, s{sW}
s_cmp_eq_u32 s{sT1}, 0
s_cselect_b32 s{sT1}, 0, 0x100
buffer_atomic_cmpswap v[56:57], v{vFo}, {sr(sR,4)}, s{sT1} offen sc1""")
    c += stamp(0)
    def rawdma(ds):
        r = []
        for a in range(8):
            r += L(f"s_add_u32 m0, s{sM4 if ds == 0 else sM5}, {a*1024}\ns_add_u32 s{sOffA}, s{sOffBB}, {a*8*1280+128*ds}")
            r.append(I(f"buffer_load_dwordx4 v{vRo2}, {sr(sXin,4)}, s{sOffA} offen lds", tag_w=f"raw{ds}", tag_r="rawrd1" if ds == 2 else None, rd=["rawarea"] if ds == 2 else []))
        return r
    def inter(vm, fill):
        ch = split(vm); out = []; per = -(-len(fill) // len(ch))
        for k, cc in enumerate(ch): out += cc + fill[k * per:(k + 1) * per]
        return out
    f1 = []
    for n in range(3):
        f1.append(I(f"v_add_u32 v61, {64*n}, v0"))
        f1 += divmod_const(62, 63, 61, 24)
        f1 += L(f"""v_and_b32 v57, 6, v62
v_xor_b32 v57, v63, v57
v_lshlrev_b32 v57, 4, v57
v_subrev_u32 v57, {1024*n}, v57
v_and_b32 v59, 4, v62
v_add_u32 v59, v59, v62
v_mul_u32_u24 v59, 12288, v59
v_add_u32 v{vWo+n}, v59, v57""")
    f1 += srd(sWq, pWq, 640 * 6144 * 2) + srd(sWS, pWs, WS_SIZE)
    f1 += L(f"""s_lshr_b32 s{sT0}, s{sW}, 1
s_and_b32 s{sOffY}, s{sW}, 1
s_lshl_b32 s{sT2}, s{sT0}, 5
s_lshl2_add_u32 s{sT2}, s{sOffY}, s{sT2}
s_mul_i32 s{sOffX}, s{sT2}, 12288
s_mul_i32 s{sT2}, s{sH}, 384
s_add_u32 s{sOffX}, s{sOffX}, s{sT2}
s_mul_i32 s{sM6}, s{sW}, 6144""")
    f2 = L(f"""v_lshrrev_b32 v56, 2, v55
v_and_b32 v57, 3, v0
v_lshl_add_u32 v58, v54, 2, v56
v_bfe_u32 v59, v58, 1, 2
v_mul_u32_u24 v62, 384, v58
v_add_u32 v62, {sbase(0)}, v62
v_lshlrev_b32 v63, 1, v59
v_xor_b32 v63, v63, v57
v_lshl_add_u32 v{vWa}, v63, 4, v62
v_xor_b32 v63, 4, v63
v_lshl_add_u32 v{vWa+1}, v63, 4, v62
v_bfe_u32 v{vPa}, v0, 2, 3
v_lshlrev_b32 v{vPa}, 7, v{vPa}
v_lshl_add_u32 v{vPa}, v57, 2, v{vPa}
v_lshlrev_b32 v{vSo}, 3, v55
v_lshlrev_b32 v62, 7, v55
v_and_b32 v63, 6, v55
v_xor_b32 v63, v63, v54
v_lshl_add_u32 v{vXo2}, v63, 4, v62
v_xor_b32 v63, 4, v63
v_lshl_add_u32 v{vXo2+1}, v63, 4, v62
v_add_u32 v{vXo}, s{sM4}, v{vXo2}
v_add_u32 v{vXo+1}, s{sM4}, v{vXo2+1}
v_add_u32 v{vXo2}, s{sM5}, v{vXo2}
v_add_u32 v{vXo2+1}, s{sM5}, v{vXo2+1}
v_lshlrev_b32 v58, 3, v48
v_add_u32 v58, {LDS_X}, v58
v_lshl_add_u32 v59, v30, 6, v58
v_lshrrev_b32 v56, 2, v49
v_lshl_add_u32 v56, v30, 1, v56
v_lshlrev_b32 v56, 12, v56
v_and_b32 v57, 3, v49
v_lshl_add_u32 v56, v57, 8, v56
v_lshl_add_u32 v56, v48, 4, v56
v_add_u32 v57, {16*4096}, v56
v_cndmask_b32 v57, v51, v57, vcc
v_or_b32 v61, v49, v30
v_cmp_eq_u32 vcc, 0, v61
v_lshlrev_b32 v61, 3, v48
v_cndmask_b32 v61, v51, v61, vcc
s_lshr_b32 s{sT2}, s2, 3
s_mul_i32 s{sT2}, s{sT2}, {20*4096}
s_bfe_u32 s{sOffK}, s2, 0x20001
s_lshl_b32 s{sOffK}, s{sOffK}, 10
s_add_u32 s{sT2}, s{sT2}, s{sOffK}
s_and_b32 s{sOffK}, s2, 1
s_lshl_b32 s{sOffK}, s{sOffK}, 7
s_add_u32 s{sT2}, s{sT2}, s{sOffK}
s_add_u32 s{sOffK}, s{sT2}, {8*4096}
s_lshl_b32 s{sOffP}, s2, 6
s_add_u32 s{sOffP}, s{sOffP}, {hex(ST_OFF)}
s_lshr_b32 s{sSpin}, s{sW}, 1
s_sub_u32 s{sSpin}, s{sSpin}, 1
s_and_b32 s{sSpin}, s{sSpin}, 0x3f800000""")
    pfv = divmod_const(62, 63, 0, 3) + L(f"""v_mul_u32_u24 v62, 12288, v62
v_lshl_add_u32 v62, v63, 7, v62
v_cmp_gt_u32 vcc, 12, v0
v_cndmask_b32 v{vL128}, v51, v62, vcc
s_lshl_b32 s{sQd}, s{sQg}, 2
s_add_u32 s{sQd}, s{sQd}, 256
s_mul_i32 s{sQd}, s{sQd}, 12288
s_mul_i32 s{sOffG}, s{sH}, 384
s_add_u32 s{sQd}, s{sQd}, s{sOffG}""")
    f2 += pfv
    for i in range(4): f2.append(I(f"v_mov_b32 v{vOne+i}, 0x3f803f80"))
    c += inter(rawdma(0), f1)
    c += inter(dma_stage(0), f2)
    c += L(f"v_mov_b32 v60, 0\nbuffer_load_dword v{vNon}, v60, {sr(sR,4)}, 0 offen sc1\ns_mov_b32 s{sT1}, s{sOffY}\ns_mov_b32 s{sT3}, s{sOffK}")
    su0 = L(f"""s_lshl_b32 s{sFl}, s2, 7
s_lshl2_add_u32 s{sFl}, s{sW}, s{sFl}
s_add_u32 s{sFl}, s{sFl}, {hex(FXN)}
s_lshl_b32 s{sFg}, s{sQg}, 10
s_add_u32 s{sFg}, s{sFg}, {hex(FXN)}
s_lshl_b32 s{sScale}, s{sQg}, 9
s_add_u32 s{sScale}, s{sScale}, {hex(ST_OFF)}
s_mul_i32 s{sOffB}, s{sQg}, {20*4096}
s_add_u32 s{sOffB}, s{sOffB}, {6*4096}
s_mul_i32 s{sM3}, s{sW}, 3072
s_mul_i32 s{sOffK}, s{sH}, 786432
s_add_u32 s{sOffK}, s{sOffK}, {1536*384}
s_add_u32 s{sOffK}, s{sOffK}, s{sM3}
s_mov_b32 s{sOffV}, s{sOffK}
s_lshr_b32 s{sPf}, s2, 3
s_lshl2_add_u32 s{sPf}, s{sPf}, s{sW}
s_and_b32 s{sPf}, s{sPf}, 7
s_lshl_b32 s{sPf}, s{sPf}, 10
s_add_u32 s{sPf}, s{sPf}, {3*8192}
s_add_u32 s62, s62, s{sPf}
s_addc_u32 s63, s63, 0""") + srd(sK, pK, 32 * 2048 * 192 * 2) + srd(sV, pV, 32 * 2048 * 192 * 2)
    wpf = lambda: ([prefetch(sWq, f"s{sQd}")] + L(f"s_add_u32 s{sQd}, s{sQd}, {128*12288}")) if "nowpf" not in KN else []
    vu = []
    for n in range(3):
        vu.append(I(f"v_add_u32 v61, {64*n}, v0"))
        vu += divmod_const(62, 63, 61, 24)
        vu += L(f"""v_and_b32 v57, 6, v62
v_xor_b32 v57, v63, v57
v_lshlrev_b32 v57, 4, v57
v_subrev_u32 v57, {1024*n}, v57
v_mul_u32_u24 v58, 384, v62
v_add_u32 v{vVo+n}, v58, v57
v_lshrrev_b32 v59, 1, v62
v_lshl_add_u32 v59, s{sW}, 2, v59
v_and_b32 v59, 7, v59
v_xor_b32 v59, v63, v59
v_lshlrev_b32 v59, 4, v59
v_subrev_u32 v59, {1024*n}, v59
v_add_u32 v{vKo+n}, v58, v59""")
    vu += L(f"""v_lshrrev_b32 v56, 2, v55
v_and_b32 v57, 3, v0
v_lshl_add_u32 v58, v54, 2, v56
v_bfe_u32 v59, v58, 1, 2
v_mul_u32_u24 v62, 384, v58
v_lshl_add_u32 v62, v57, 3, v62""")
    for x in range(4): vu += L(f"v_xor_b32 v63, {x}, v59\nv_lshl_add_u32 v{vVa+x}, v63, 5, v62")
    vu += L(f"""v_lshlrev_b32 v62, 7, v58
v_lshl_add_u32 v62, v57, 3, v62
v_xor_b32 v63, s{sW}, v59
v_lshl_add_u32 v62, v63, 5, v62
v_add_u32 v{vRa}, {sbase(12)}, v62
v_add_u32 v{vGa}, {sbase(27)}, v{vL16}
v_mul_u32_u24 v62, 384, v55
v_lshrrev_b32 v63, 1, v55
v_xor_b32 v63, v63, v54
v_lshl_add_u32 v{vKa}, v63, 4, v62
v_xor_b32 v63, 4, v63
v_lshl_add_u32 v{vKa+1}, v63, 4, v62""")
    for i in range(4): vu.append(I(f"v_mov_b32 v{vLs+i}, 0"))
    xr = L(f"""v_and_b32 v61, 7, v0
v_lshrrev_b32 v62, 3, v0
v_mul_u32_u24 v63, 1280, v61
v_lshl_add_u32 v63, v62, 4, v63
s_mul_i32 s{sOffY}, s2, {8*1280}
s_lshl_b32 s{sPf}, s{sW}, 7
s_add_u32 s{sOffY}, s{sOffY}, s{sPf}
buffer_load_dwordx4 a[244:247], v63, {sr(sXin,4)}, s{sOffY} offen
buffer_load_dwordx4 a[248:251], v63, {sr(sXin,4)}, s{sOffY} offen offset:512
buffer_load_dwordx4 a[252:255], v63, {sr(sXin,4)}, s{sOffY} offen offset:1024""")
    xs = L(f"""v_lshrrev_b32 v63, 2, v62
v_lshlrev_b32 v63, 12, v63
v_and_b32 v62, 3, v62
v_lshl_add_u32 v63, v62, 8, v63
v_lshl_add_u32 v63, v61, 4, v63
s_lshr_b32 s{sOffY}, s2, 3
s_mul_i32 s{sOffY}, s{sOffY}, {20*4096}
s_bfe_u32 s{sPf}, s2, 0x20001
s_lshl_b32 s{sPf}, s{sPf}, 10
s_add_u32 s{sOffY}, s{sOffY}, s{sPf}
s_and_b32 s{sPf}, s2, 1
s_lshl_b32 s{sPf}, s{sPf}, 7
s_add_u32 s{sOffY}, s{sOffY}, s{sPf}
s_lshl_b32 s{sPf}, s{sW}, 13
s_add_u32 s{sOffY}, s{sOffY}, s{sPf}
s_add_u32 s{sOffY}, s{sOffY}, {hex(XR_OFF)}""")
    for i in range(3):
        if i == 2: xs += L(f"s_cmp_lt_u32 s{sW}, 2\ns_cselect_b32 s{sOffY}, s{sOffY}, 0x40000000")
        xs.append(I(f"buffer_store_dwordx4 {ar(244+4*i,4)}, v63, {sr(sWS,4)}, s{sOffY} offen sc1", tag_w="Gst"))
        if i < 2: xs += L(f"s_add_u32 s{sOffY}, s{sOffY}, {8*4096}")
    c += L("v_lshlrev_b32 v76, 16, v76\nv_mov_b32 v77, v76")
    for i in range(12):
        c += L(f"v_lshlrev_b32 v{80+2*i}, 16, v{64+i}\nv_and_b32 v{81+2*i}, 0xffff0000, v{64+i}")
        c += L(f"v_pk_add_f32 v[{112+2*i}:{113+2*i}], v[{80+2*i}:{81+2*i}], v[76:77] neg_lo:[0,1] neg_hi:[0,1]")
    for i in range(12):
        a = 104 if i < 8 else 108
        d = vr(112 + 2 * i, 2)
        if i in (0, 8): c += L(f"v_pk_mul_f32 v[{a+2}:{a+3}], {d}, {d}\nv_mov_b32 v{a}, v{112+2*i}\nv_mov_b32 v{a+1}, v{113+2*i}")
        else: c += L(f"v_pk_fma_f32 v[{a+2}:{a+3}], {d}, {d}, v[{a+2}:{a+3}]\nv_pk_add_f32 v[{a}:{a+1}], v[{a}:{a+1}], {d}")
    c += L(f"""v_add_f32 v104, v104, v105
v_add_f32 v105, v106, v107
v_add_f32 v108, v108, v109
v_add_f32 v109, v110, v111
v_fmac_f32 v104, s{sSpin}, v108
v_fmac_f32 v105, s{sSpin}, v109
s_nop 1
v_add_f32_dpp v104, v104, v104 row_ror:8 row_mask:0xf bank_mask:0xf
v_add_f32_dpp v105, v105, v105 row_ror:8 row_mask:0xf bank_mask:0xf""")
    ra, rb = xreduce(104, 106, "v_add_f32"), xreduce(105, 107, "v_add_f32")
    for x, y in zip(ra, rb): c += [x, y]
    c += L(f"""ds_write_b64 v59, v[104:105]
s_waitcnt lgkmcnt(0)
s_barrier
ds_read_b64 v[104:105], v58
ds_read_b64 v[106:107], v58 offset:64
ds_read_b64 v[108:109], v58 offset:128
ds_read_b64 v[110:111], v58 offset:192
v_pk_add_f32 v[104:105], v[104:105], v[106:107]
v_pk_add_f32 v[108:109], v[108:109], v[110:111]
v_pk_add_f32 v[104:105], v[104:105], v[108:109]
v_mul_f32 v104, {hex(f2u(1.0/640))}, v104
v_mul_f32 v105, {hex(f2u(1.0/640))}, v105
v_fma_f32 v105, -v104, v104, v105
v_max_f32 v105, 0, v105
v_add_f32 v104, v104, v76
v_cvt_pk_bf16_f32 v104, v105, v104
v_and_b32 v108, 0xffff0000, v104
v_mov_b32 v109, v108""")
    for i in range(12):
        d = vr(80 + 2 * i, 2)
        c += L(f"""v_pk_add_f32 {d}, {d}, v[108:109] neg_lo:[0,1] neg_hi:[0,1]
v_cvt_pk_bf16_f32 v{64+i}, v{80+2*i}, v{81+2*i}""")
        if i == 3: c.append(I(f"buffer_store_dwordx4 v[64:67], v56, {sr(sWS,4)}, s{sT2} offen sc1", tag_w="Xst"))
        if i == 7: c.append(I(f"buffer_store_dwordx4 v[68:71], v56, {sr(sWS,4)}, s{sT3} offen sc1", tag_w="Xst"))
        if i == 11: c.append(I(f"buffer_store_dwordx4 v[72:75], v57, {sr(sWS,4)}, s{sT2} offen sc1", tag_w="Xst"))
    c += L(f"""v_lshlrev_b32 v104, 16, v104
v_add_f32 v104, {hex(f2u(1e-5))}, v104
v_cvt_pk_bf16_f32 v104, v104, v104
v_lshlrev_b32 v104, 16, v104
v_sqrt_f32 v104, v104
v_xor_b32 v106, 0x80000000, v108
v_cvt_pk_bf16_f32 v104, v104, v104
v_lshlrev_b32 v104, 16, v104
v_rcp_f32 v104, v104
s_nop 0
v_mul_f32 v107, {hex(f2u(CC))}, v104""")
    c.append(I(f"buffer_store_dwordx2 v[106:107], v61, {sr(sWS,4)}, s{sOffP} offen sc1", tag_w="Xst"))
    c += stamp(1)
    c += raw_reads(0)
    c.append(barrier(["st0", "rawrd0"]))
    c += w_reads0(0) + w_reads0(1)
    c += L(f"""v_readfirstlane_b32 s{sNonce}, v{vNon}
s_nop 3
s_cmp_lg_u32 s{sNonce}, 0
s_cbranch_scc0 L_nonce
L_nonce_ok:""")
    OUTL.append(("nonce", L(f"""L_nonce:
s_mov_b32 s{sSpin}, {SPIN_MAX}
L_nonce2:
buffer_load_dword v{vNon}, v60, {sr(sR,4)}, 0 offen sc1
s_waitcnt vmcnt(0)
v_readfirstlane_b32 s{sNonce}, v{vNon}
s_nop 3
s_cmp_lg_u32 s{sNonce}, 0
s_cbranch_scc1 L_nonce_ok
s_sub_u32 s{sSpin}, s{sSpin}, 1
s_cmp_lg_u32 s{sSpin}, 0
s_cbranch_scc1 L_nonce2
s_branch L_nonce_ok""")))
    c += stamp(2)
    blk(c, "pro")
    su = L(f"""s_mul_i32 s{sOffG}, s{sH}, {20*6144}
s_add_u32 s{sOffG}, s{sOffG}, s{sM6}
s_add_u32 s{sOffG}, s{sOffG}, {hex(GP_OFF)}
s_lshl_b32 s{sM1}, s{sW}, 10
s_mul_i32 s{sM5}, s{sW}, 5120
s_lshl_b32 s{sM4}, s{sW}, 12
s_mul_i32 s{sT2}, s{sQg}, {240*4096}
s_add_u32 s{sT2}, s{sT2}, {hex(OH_OFF)}
s_mul_i32 s{sT3}, s{sH}, {6*4096}
s_add_u32 s{sOffO}, s{sT2}, s{sT3}
s_add_u32 s{sT2}, s{sT2}, {192*4096}
s_mul_i32 s{sT3}, s{sH}, 3""")
    for T3 in range(3):
        su += L(f"""s_lshr_b32 s{sSpin}, s{sT3}, 1
s_lshl_b32 s{sSpin}, s{sSpin}, 12
s_add_u32 s{sOffH+T3}, s{sT2}, s{sSpin}
s_and_b32 s{sSpin}, s{sT3}, 1
s_lshl_b32 s{sSpin}, s{sSpin}, 9
s_add_u32 s{sOffH+T3}, s{sOffH+T3}, s{sSpin}
s_add_u32 s{sT3}, s{sT3}, 1""")
    su += L(f"""s_sub_u32 s{sT2}, s2, 240
s_min_u32 s{sT2}, s2, s{sT2}""")
    su += sdivmod(sT3, sSpin, sT2, 10)
    su += L(f"""s_lshl_b32 s{sOffRo}, s{sT3}, 8
s_lshl3_add_u32 s{sOffRo}, s{sW}, s{sOffRo}
s_mul_i32 s{sOffRo}, s{sOffRo}, 1280
s_lshl_b32 s{sFl}, s{sSpin}, 7
s_add_u32 s{sOffRo}, s{sOffRo}, s{sFl}
s_lshl_b32 s{sOffRd}, s{sT3}, 6
s_lshl4_add_u32 s{sOffRd}, s{sT1}, s{sOffRd}
s_lshl3_add_u32 s{sOffRd}, s{sT0}, s{sOffRd}
s_mul_i32 s{sOffRd}, s{sOffRd}, 1280
s_add_u32 s{sOffRd}, s{sOffRd}, s{sFl}
s_lshl2_add_u32 s{sSpin}, s{sSpin}, s{sW}""")
    su += sdivmod(sFl, sOffP, sSpin, 10)
    su += L(f"""s_mul_i32 s{sFl}, s{sFl}, 192
s_lshl3_add_u32 s{sFl}, s{sT3}, s{sFl}
s_mul_i32 s{sFl}, s{sFl}, 10
s_add_u32 s{sFl}, s{sFl}, s{sOffP}
s_lshl_b32 s{sFl}, s{sFl}, 10
s_add_u32 s{sOffDo}, s{sFl}, {hex(WOP_OFF)}""")
    su += sdivmod(sFl, sOffP, sSpin, 5)
    su += L(f"""s_mul_i32 s{sFl}, s{sFl}, 48
s_lshl1_add_u32 s{sFl}, s{sT3}, s{sFl}
s_mul_i32 s{sFl}, s{sFl}, 5
s_add_u32 s{sFl}, s{sFl}, s{sOffP}
s_lshl_b32 s{sFl}, s{sFl}, 10
s_add_u32 s{sOffDd}, s{sFl}, {hex(WDP_OFF)}""")
    su2 = sdivmod(sT3, sSpin, sT2, 48)
    su2 += [L(f"""s_cmp_ge_u32 s{sSpin}, 24
s_cselect_b32 s{pBx}, s{pWu}, s{pWg}
s_cselect_b32 s{pBx+1}, s{pWu+1}, s{pWg+1}
s_cselect_b32 s{sT2}, 1, 0
s_cselect_b32 s{sFl}, 24, 0""")]
    su2 += L(f"""s_sub_u32 s{sSpin}, s{sSpin}, s{sFl}
s_lshl_b32 s{sOffR}, s{sT3}, 7
s_lshl4_add_u32 s{sOffR}, s{sT1}, s{sOffR}
s_lshl2_add_u32 s{sOffR}, s{sT0}, s{sOffR}
s_mul_i32 s{sOffR}, s{sOffR}, 3072
s_lshl_b32 s{sFl}, s{sSpin}, 7
s_add_u32 s{sOffR}, s{sOffR}, s{sFl}
s_lshl2_add_u32 s{sSpin}, s{sSpin}, s{sW}""")
    su2 += sdivmod(sFl, sOffP, sSpin, 3)
    su2 += L(f"""s_mul_i32 s{sFl}, s{sFl}, 20
s_lshl2_add_u32 s{sFl}, s{sT3}, s{sFl}
s_mul_i32 s{sFl}, s{sFl}, 6
s_lshl1_add_u32 s{sFl}, s{sOffP}, s{sFl}
s_add_u32 s{sFl}, s{sFl}, s{sT2}
s_lshl_b32 s{sFl}, s{sFl}, 10
s_add_u32 s{sOffD}, s{sFl}, {hex(GP_OFF)}
s_lshl_b32 s{sFg}, s2, 2
s_add_u32 s{sFg}, s{sFg}, {hex(FG)}""")
    su2 += [L(f"s_cmp_eq_u32 s{sW}, 0\ns_cselect_b32 s{sFg}, s{sFg}, 0x40000000")]
    su2 += L(f"""s_lshr_b32 s{sT2}, s{sH}, 3
s_lshl2_add_u32 s{sFl}, s{sQg}, s{sT2}
s_lshl_b32 s{sFl}, s{sFl}, 7
s_and_b32 s{sT2}, s{sH}, 7
s_lshl2_add_u32 s{sFl}, s{sT2}, s{sFl}
s_add_u32 s{sFl}, s{sFl}, {hex(FO)}
s_mul_i32 s{sOffA}, s{sNb}, 192
s_mul_i32 s{sT2}, s{sS}, 48
s_add_u32 s{sOffA}, s{sOffA}, s{sT2}
s_mul_i32 s{sOffA}, s{sOffA}, 10240
s_add_u32 s{sOffA}, s{sOffA}, s{sM5}
s_add_u32 s{sOffA}, s{sOffA}, {hex(WOP_OFF)}
s_lshl1_add_u32 s{sOffBB}, s{sMb}, s{sT1}
s_mul_i32 s{sOffBB}, s{sOffBB}, 240
s_add_u32 s{sOffBB}, s{sOffBB}, s{sT2}
s_add_u32 s{sOffBB}, s{sOffBB}, s{sT0}
s_lshl_b32 s{sOffBB}, s{sOffBB}, 12
s_add_u32 s{sOffBB}, s{sOffBB}, {hex(OH_OFF)}
s_lshr_b32 s{sT2}, s{sS}, 1
s_lshl1_add_u32 s{sQd}, s{sMb}, s{sT2}""") + srd(sR, pBx, 640 * 1536 * 2)
    def weave(vm, sal):
        ch = split(vm); out = []
        per = -(-len(sal) // len(ch))
        for k, cc in enumerate(ch):
            out += cc
            for y in sal[k * per:(k + 1) * per]: out += y if isinstance(y, list) else [y]
        return out
    XH = PAR("XH", 27)
    XF = PAR("XF", 60); XQ = PAR("XQ", 215)
    nostg = lambda l: [x.reads.discard('stg') or x for x in l]
    A0 = split(pace(nostg(rawdma(1) + dma_stage(1)), 0, PAR("Q0", 56)))
    for k in range(8, 14): A0[k] = A0[k] + su0[(k - 8) * 1:(k - 7) * 1]
    A0 = [x for cc in A0 for x in cc] + [set_flag(f"s{sFl}", "Xst", after=XF)] + su0[6:] + pace(nostg(dma_stage(2)), XF + 6, 96)
    A1 = pace(nostg(rawdma(2) + dma_stage(3)) + wpf() + wpf(), 100, 200) + [poll_load(vPd, vPa, f"s{sFg}", after=XQ)]
    st4 = nostg(dma_stage(4)); st5 = nostg(dma_stage(5))
    nearly = 1 + 3 + 1
    for x in st4[:nearly]:
        if x.kind == 'vmem': x.reads.add('stgw')
    A2 = pace(st4[:nearly], 244, XH * 10 - 2)
    sch(p1_first(0, XH, extra=A0 + vu, at={9: A1, 25: A2}), "p1_0a", vm_min=3)
    fs = lambda k: blk(stamp(k)) if "fine1" in KN else None
    fs(14)
    blk(poll_cmp(vPd, 1) + poll_branch("xn", vPd, vPa, f"s{sFg}"))
    fs(15)
    bl = lambda k: b_loads(('a', 64 * (k % 2))) + b_loads(('a', 64 * (k % 2) + 32))
    rest = weave(b_loads(('a', 96)) + st4[nearly:] + st5 + wpf() + bl(2) + stat_loads(), su)
    sch(p1_first(XH, 48, extra=pace(rest, 0, gpos(48) - gpos(XH) - 24)), "p1_0b", vm_min=3); fs(16); fs(17)
    sch(p1_quad(2, vm=weave(dma_stage(6) + dma_stage(7) + bl(3), su2)), "p1_2"); fs(18)
    sch(p1_quad(3, vm=dma_stage(8) + dma_stage(9) + bl(4) + dma_stage(10)), "p1_3")
    if "stagtest" in KN:
        blk(L(f"""s_and_b32 s{sSpin}, s{sH}, 1
s_mul_i32 s{sSpin}, s{sSpin}, 150
L_stag:
s_cmp_eq_u32 s{sSpin}, 0
s_cbranch_scc1 L_stag2
s_sleep 1
s_sub_u32 s{sSpin}, s{sSpin}, 1
s_branch L_stag
L_stag2:"""))
    blk(stamp(3))
    MERGE = "nomerge" not in KN
    big = p1_quad(4, vm=dma_stage(11) + dma_stage(12)) + first_tile(192) + p2_iter(0, base=192 + 48)
    nbig = 336
    if not MERGE:
        sch(big, "p1_last"); big = []; nbig = 0
    blk(stamp(4))
    XP = PAR("XP", 9)
    for t in range(1, 14):
        ex = []; post = []; btag = []
        if "tlb" in KN and t == PAR("TT", 8):
            x = I(f"buffer_load_dword v{vDum}, v60, {sr(sWS,4)}, 0 offen"); x.writes = set()
            ex += L(f"v_lshlrev_b32 v60, {PAR('TS', 21)}, v0") + [x]
        if t == 1: ex += xr
        if t == 3: ex += xs
        if t == 6: btag = ["Gst"]
        if t == 7: ex += [set_flag(f"s{sFg}", None)] + L(f"s_add_u32 s{sFg}, s{sFg}, {FW-FG}")
        if t == 10: ex += L(f"s_mov_b32 s{sT0}, {hex(FG)}") + [poll_load(vTmp, vL16, f"s{sT0}", 4)]
        if t == 12: post += late(poll_cmp(vTmp, 4), nbig + 60)
        XN_ = PAR("XN", 2)
        if "xpf" in KN and XP <= t <= 13:
            if t == XP: ex += L(f"""s_and_b32 s{sPf}, s{sH}, 3
s_lshl_b32 s{sPf}, s{sPf}, 11
s_mul_i32 s{sT2}, s{sQg}, {20*4096}
s_add_u32 s{sPf}, s{sPf}, s{sT2}""")
            for k in range(XN_):
                if (t - XP) * XN_ + k < 10:
                    for o in (0, 1024):
                        x = I(f"buffer_load_dwordx4 v[60:63], v{vL16}, {sr(sWS,4)}, s{sPf} offen offset:{o} sc1")
                        if (t - XP) * XN_ + k < 9 or o == 0: x.writes = set()
                        ex.append(x)
                    ex += L(f"s_add_u32 s{sPf}, s{sPf}, 8192")
        big += p2_iter(t, base=nbig, extra=ex, post=post, btag=btag); nbig += 96
        if not MERGE or t == 12:
            sch(big, f"p2_{t}"); big = []; nbig = 0
        if t == 12 and "stagtest" not in KN: blk(poll_branch("g", vTmp, vL16, f"s{sT0}", 4))
    blk(stamp(5))
    sch(big + p2_iter(14, base=nbig, btag=["Wst"]) + tail_pv(nbig + 96), "tail", vm_min=3)
    blk(L("s_cbranch_vccnz L_fb\nL_fb_back:") + stamp(6))
    steps = p3_steps()
    setup = L(f"""v_and_b32 v{vT}, 32, v0
v_lshlrev_b32 v{vT}, 4, v{vT}
v_add_u32 v{vT}, v{vT}, v{vL16}
s_and_b32 s{sT3}, s{sW}, 1
s_lshl1_add_u32 s{sT1}, s{sMb}, s{sT3}
s_lshl2_add_u32 s{sT1}, s{sT1}, s{sS}
s_lshl_b32 s{sT1}, s{sT1}, 7
s_add_u32 s{sT1}, s{sT1}, {hex(FO)}
v_and_b32 v{vFa}, 7, v0
v_lshlrev_b32 v{vFa}, 2, v{vFa}
s_mul_i32 s{sT3}, s{sT3}, 5120
s_add_u32 s{sT3}, s{sT3}, {obase(0)}
v_add_u32 v{vOA}, s{sT3}, v{vL16}
s_lshr_b32 s{sT2}, s{sW}, 1
s_lshl_b32 s{sT2}, s{sT2}, 12
s_add_u32 s{sT2}, s{sT2}, {20480+obase(0)}
v_add_u32 v{vOB}, s{sT2}, v{vL16}
v_add_u32 v{vDA}, {obase(24)}, v{vL16}
s_add_u32 s{sT2}, s{sM1}, {20480+obase(24)}
v_add_u32 v{vDB}, s{sT2}, v{vL16}
v_lshlrev_b32 v{vL128}, 7, v0
v_bfrev_b32 v38, 1
v_cmp_gt_u32 vcc, 20, v0
v_cndmask_b32 v{vL128}, v38, v{vL128}, vcc
s_and_b32 s{sT2}, s{sMb}, 7
s_lshl2_add_u32 s{sT2}, s{sT2}, s{sW}
s_mul_i32 s{sOffX}, s{sT2}, 2560
s_sub_u32 s{sOffX}, s{sOffX}, s{sM5}
s_add_u32 s{sPf}, s{sOffA}, s{sOffX}
s_add_u32 s{sPf}, s{sPf}, 81920""")
    for k in range(9):
        body = (setup if k == 3 else []) + join_steps(steps[k:k+1] if k < 8 else steps[8:])
        if k == 8:
            body += [I("s_barrier", tag_r="ot0", wr=['stg'], rd=['stg2'], after=48 + 26)] + o_reads(0)
        sch(body, f"p3s{k}", vm_min=2)
        if k == WC and "stagtest" not in KN: blk(poll_cmp(vFl, 4) + poll_branch("w", vFl, vL16, f"s{sT0}", 4))
        if k == OC and "stagtest" not in KN: blk(poll_cmp(vFo2, 1) + poll_branch("o", vFo2, vFa, f"s{sT1}"))
        if "fine" in KN: blk(stamp(14 + k))
    c = stamp(7) + stamp(8)
    if OC == 9:
        c += dmaB(0) + dmaB(1) + dmaB(2)
        c.append(I("s_barrier", tag_r="ot0"))
        c += o_reads(0)
    c += stamp(9)
    blk(c, "o_pro")
    osetup = L(f"""s_lshl_b32 s{sT1}, s{sMb}, 8
s_add_u32 s{sT1}, s{sT1}, {hex(FH)}
v_lshlrev_b32 v{vFa}, 2, v0
s_and_b32 s{sT2}, s{sS}, 1
s_lshl1_add_u32 s{sT2}, s{sNb}, s{sT2}
s_lshr_b32 s{sT3}, s{sS}, 1
s_lshl1_add_u32 s{sOffRo}, s{sT2}, s{sT3}
s_mul_i32 s{sOffRo}, s{sOffRo}, {24*5120}
s_lshl_b32 s{sM3}, s{sW}, 13
s_add_u32 s{sOffRo}, s{sOffRo}, s{sM3}
s_add_u32 s{sOffRo}, s{sOffRo}, {hex(WDP_OFF)}
s_mul_i32 s{sT2}, s{sT2}, 160
s_lshl2_add_u32 s{sOffO}, s{sQd}, s{sW}
s_mul_i32 s{sOffO}, s{sOffO}, {16*1280}
s_add_u32 s{sOffO}, s{sOffO}, s{sT2}
s_mul_i32 s{sT3}, s{sT3}, 24
s_add_u32 s{sT3}, s{sT3}, 192
s_lshl_b32 s{sT3}, s{sT3}, 12
s_add_u32 s{sT3}, s{sT3}, s{sM1}
s_add_u32 s{sT3}, s{sT3}, {hex(OH_OFF)}
s_xor_b32 s{sOffRd}, s{sQd}, 1
s_mul_i32 s{sOffRd}, s{sOffRd}, {240*4096}
s_add_u32 s{sOffRd}, s{sOffRd}, s{sT3}
s_mul_i32 s{sOffG}, s{sQd}, {240*4096}
s_add_u32 s{sOffG}, s{sOffG}, s{sT3}
s_lshl2_add_u32 s{sT0}, s{sMb}, s{sNb}
s_lshl2_add_u32 s{sT3}, s{sT0}, s{sS}
s_lshl2_add_u32 s{sT2}, s{sT3}, s{sW}
s_mul_i32 s{sOffP}, s{sT2}, 10240
s_add_u32 s{sOffP}, s{sOffP}, {hex(PART_OFF)}
s_lshl2_add_u32 s{sFl}, s{sT0}, s{sW}
s_lshl_b32 s{sFl}, s{sFl}, 7
s_lshl2_add_u32 s{sFl}, s{sS}, s{sFl}
s_add_u32 s{sFl}, s{sFl}, {hex(FP)}
v_and_b32 v{vOa}, 15, v0
v_mul_u32_u24 v{vOa}, 1280, v{vOa}
v_lshrrev_b32 v{vPo}, 4, v0
v_lshl_add_u32 v{vOa}, v{vPo}, 3, v{vOa}
v_and_b32 v{vFa2}, 7, v0
v_lshlrev_b32 v{vFa2}, 2, v{vFa2}""") + srd(sOut, pOut, 2048 * 640 * 2) + L(f"""s_lshl_b32 s{sFg}, s{sT3}, 7
s_add_u32 s{sFg}, s{sFg}, {hex(FP)}
s_lshl4_add_u32 s{sT2}, s{sT0}, s{sS}
s_mul_i32 s{sOffK}, s{sT2}, 10240
s_add_u32 s{sOffK}, s{sOffK}, {hex(PART_OFF)}
s_lshl2_add_u32 s{sT2}, s{sT3}, s{sW}
s_mul_i32 s{sOffD}, s{sT2}, 2560
s_add_u32 s{sOffD}, s{sOffD}, {hex(HP_OFF)}
s_xor_b32 s{sT2}, s{sT2}, 8
s_mul_i32 s{sOffDo}, s{sT2}, 2560
s_add_u32 s{sOffDo}, s{sOffDo}, {hex(HP_OFF)}
s_xor_b32 s{sOffDd}, s{sFg}, 0x100
s_lshl2_add_u32 s{sOffDd}, s{sW}, s{sOffDd}
s_add_u32 s{sOffDd}, s{sOffDd}, 16""")
    assert len(osetup) <= 60
    for sg in range(4):
        ex = []
        if sg == 0: ex = dmaB(3) + dmaA(3)
        if sg == 0: ex = ex + HST[:2]
        if sg == 1: ex = HST[2:]
        if sg == 2: ex = L(f"s_mov_b32 s{sOffV}, {hex(FW2)}") + [poll_load(48, vL16, f"s{sOffV}", 4)]
        if sg == 3: ex = ex + L(f"s_add_u32 s{sQg}, s{sQg}, {hex(FH)}")
        pre = L(f"s_lshl_b32 s{sQg}, s{sQg}, 7\ns_lshl2_add_u32 s{sQg}, s{sH}, s{sQg}") if sg == 0 else []
        sch(o_block(sg, ex, pre=pre, mid=osetup[sg * 15:(sg + 1) * 15], exfirst=(sg == 0)), f"o{sg}", vm_min=2)
    base_state = {r: AD[r].base for r in (vOA, vOB)}
    if "fine2" in KN: blk(stamp(14))
    P.block("ol_top", L(f"s_mov_b32 s{sH}, 0") + L(".p2align 6\nL_o:")); P.trace.append(("ol_top", {}))
    lb = []
    NIT = PAR('NIT', 4)
    for q in range(4):
        ex = L(f"s_cmp_eq_u32 s{sH}, {NIT-1}\ns_cselect_b32 s{sT2}, s{sT1}, 0x40000000") + [poll_load(vFl, vFa, f"s{sT2}")] if q == 0 else []
        if q == 1: ex = L(f"s_cmp_eq_u32 s{sH}, 0\ns_cselect_b32 s{sT2}, s{sQg}, 0x40000000") + [set_flag(f"s{sT2}", "Hst")]
        b = o_block(4 + q, ex)
        for x in b:
            for attr in ('tag_r', 'tag_w'):
                t = getattr(x, attr)
                if t is None: continue
                if t == "Hst": continue
                ts = t if isinstance(t, list) else [t]
                setattr(x, attr, (lambda ts: lambda env: [u[:2] + str(int(u[2:]) + 4 * env['it']) for u in ts])(ts))
        if "ohitA" in KN: b = [x for x in b if not x.text.startswith(f"s_add_u32 s{sOffA}, s{sOffA}")]
        if "ohitB" in KN: b = [x for x in b if not x.text.startswith(f"s_add_u32 s{sOffBB}, s{sOffBB}")]
        if "onods" in KN: b = [x for x in b if x.kind != 'ds']
        if "onodma" in KN: b = [x for x in b if not (x.kind == 'vmem' and ' lds' in x.text)]
        if "onobar" in KN: b = [x for x in b if x.kind != 'barrier']
        if "onosc1" in KN:
            for x in b:
                if ' lds' in x.text: x.text = x.text.replace(" sc1", "")
        b = schedule(b, f"ol{q}", verbose=dbg and "v" in KN, vm_min=3)
        if q == 3: b += L(f"s_add_u32 s{sH}, s{sH}, 1\ns_cmp_lt_u32 s{sH}, {NIT}\ns_cbranch_scc1 L_o")
        P.block(f"ol{q}", b)
    assert base_state == {r: AD[r].base for r in (vOA, vOB)}, "loop address state"
    for it in range(NIT): P.trace += [(f"ol{q}", {'it': it}) for q in range(4)]
    if "rewind" in KN:
        pos = sum(isize(x) for b_ in P.blocks for x in b_[1]) * 1.03
        new = int(pos + 1500) // 8192
        if new < cp[0]:
            blk(L(f"s_sub_u32 s62, s62, {(cp[0]-new)*8192}\ns_subb_u32 s63, s63, 0")); cp[0] = new
    if "fine2" in KN: blk(stamp(15))
    blk(poll_cmp(48, 4) + poll_branch("w2", 48, vL16, f"s{sOffV}", 4))
    blk(poll_cmp(vFl, 1) + poll_branch("h", vFl, vFa, f"s{sT1}"))
    dsetup = L(f"""s_lshl_b32 s{sT2}, s{sW}, 11
v_add_u32 v45, s{sT2}, v{vL16}
s_lshr_b32 s{sT2}, s{sW}, 1
s_lshl_b32 s{sT2}, s{sT2}, 10
s_and_b32 s{sT3}, s{sW}, 1
s_lshl3_add_u32 s{sT2}, s{sT3}, s{sT2}
s_add_u32 s{sT2}, s{sT2}, 8192
v_add_u32 v46, s{sT2}, v{vL16}
v_add_u32 v47, {LDS_X}, v{vL16}
v_and_b32 v38, 15, v0
v_mul_u32_u24 v38, 1280, v38
v_bfe_u32 v39, v0, 4, 1
v_lshl_add_u32 v38, v39, 5, v38
v_lshrrev_b32 v39, 5, v0
v_lshl_add_u32 v38, v39, 4, v38
s_cmp_eq_u32 s{sW}, s{sS}
s_cmov_b32 s{sOffP}, 0x40000000""")
    NB1 = [int(x) for x in os.environ.get("NB1", "4,4,5,5").split(",")]
    nb1 = 0
    dsetup += L(f"s_mov_b32 s{sOffBB}, s{sOffG}\nv_lshlrev_b32 v37, 3, v0")
    for sg in range(20, 24):
        ex = [x for k in range(nb1, nb1 + NB1[sg - 20]) for x in d_bload(0, k)]; nb1 += NB1[sg - 20]
        sch(o_block(sg, ex, mid=dsetup if sg == 23 else []), f"o{sg}", vm_min=2)
    blk(stamp(10))
    vQ4, vQ2, vLw, vOw = 45, 46, 47, 38
    def pk(dst, t, j):
        a = vAc + (t * 4 + j) * 4
        return L(f"v_cvt_pk_bf16_f32 v{dst}, v{a}, v{a+1}\nv_cvt_pk_bf16_f32 v{dst+1}, v{a+2}, v{a+3}")
    pkall = []; ps = []; n = 0
    for j in range(4):
        for tp in range(2):
            o = vPk + n * 4
            pkall += pk(o, 2 * tp, j) + pk(o + 2, 2 * tp + 1, j)
            it = [I(f"buffer_store_dwordx4 {vr(o,4)}, v{vL16}, {sr(sWS,4)}, s{sOffP} offen offset:{(n%4)*1024} sc1", tag_w="Pst")]
            n += 1
            if n % 4 == 0: it.append(I(f"s_add_u32 s{sOffP}, s{sOffP}, 4096"))
            ps.append(it)
    for jp in range(2):
        o = vPk + n * 4
        pkall += pk(o, 4, 2 * jp) + pk(o + 2, 4, 2 * jp + 1)
        ps.append([I(f"buffer_store_dwordx4 {vr(o,4)}, v{vL16}, {sr(sWS,4)}, s{sOffP} offen offset:{jp*1024} sc1", tag_w="Pst")])
        n += 1
    own = L(f"s_cmp_lg_u32 s{sW}, s{sS}\ns_cbranch_scc1 L_own")
    for k in range(10):
        x = I(f"ds_write_b128 v{vLw}, {vr(vPk+4*k,4)} offset:{1024*k}"); x.kind = 'wait'; own.append(x)
    x = I("s_waitcnt lgkmcnt(0)"); x.kind = 'label'; own.append(x)
    own += L("L_own:")
    xl = L(f"""s_and_b32 s{sT2}, s{sS}, 1
s_lshl1_add_u32 s{sT2}, s{sNb}, s{sT2}
s_mul_i32 s{sT2}, s{sT2}, 10
s_mul_i32 s{sT3}, s{sQd}, {20*4096}
s_add_u32 s{sT3}, s{sT3}, s{sM1}
s_add_u32 s{sT3}, s{sT3}, {hex(XR_OFF)}
v_bfe_u32 v2, v0, 4, 1
v_lshrrev_b32 v3, 5, v0
v_lshl_add_u32 v4, v2, 1, v3
v_add_u32 v4, s{sT2}, v4
v_and_b32 v5, 15, v0
v_lshlrev_b32 v5, 4, v5
v_lshrrev_b32 v6, 2, v4
v_lshl_add_u32 v6, v6, 12, v5
v_and_b32 v4, 3, v4
v_lshl_add_u32 v6, v4, 8, v6
v_add_u32 v7, 4096, v6
v_add_u32 v4, s{sT2}, v3
v_add_u32 v4, 8, v4
v_lshrrev_b32 v8, 2, v4
v_lshl_add_u32 v8, v8, 12, v5
v_and_b32 v4, 3, v4
v_lshl_add_u32 v8, v4, 8, v8
v_lshl_add_u32 v8, v2, 3, v8
buffer_load_dwordx4 {vr(vXr,4)}, v6, {sr(sWS,4)}, s{sT3} offen sc1
buffer_load_dwordx4 {vr(vXr+4,4)}, v7, {sr(sWS,4)}, s{sT3} offen sc1
buffer_load_dwordx2 {vr(vXr+8,2)}, v8, {sr(sWS,4)}, s{sT3} offen sc1
s_lshl2_add_u32 s{sT2}, s{sQd}, s{sW}
s_lshl_b32 s{sT2}, s{sT2}, 7
s_add_u32 s{sT2}, s{sT2}, {hex(ST_OFF)}
v_lshrrev_b32 v9, 1, v5
buffer_load_dword v10, v9, {sr(sWS,4)}, s{sT2} offen offset:4 sc1""")
    pl = []
    for i in range(1, 4):
        pl += L(f"s_add_u32 s{sT2}, s{sS}, {i}\ns_and_b32 s{sT2}, s{sT2}, 3\ns_mul_i32 s{sT2}, s{sT2}, {4*10240}\ns_add_u32 s{sT2}, s{sT2}, s{sOffK}")
        for tp in range(2): pl.append(I(f"buffer_load_dwordx4 {vr(vPl+i*12+tp*4,4)}, v{vQ4}, {sr(sWS,4)}, s{sT2} offen offset:{1024*tp} sc1"))
        pl.append(I(f"buffer_load_dwordx2 {vr(vPl+i*12+8,2)}, v{vQ2}, {sr(sWS,4)}, s{sT2} offen sc1"))
    ownrd = L(f"""v_add_u32 v{vLw}, {LDS_X}, v{vQ4}
ds_read_b128 {vr(vPl,4)}, v{vLw}
ds_read_b128 {vr(vPl+4,4)}, v{vLw} offset:1024
v_add_u32 v{vLw}, {LDS_X}, v{vQ2}
ds_read_b64 {vr(vPl+8,2)}, v{vLw}""")
    t0 = 112; vSm = 164; vXf = 184
    xun = []
    for tp in range(2):
        for i in range(2): xun.append(I(f"v_permlane16_swap_b32 v{vXr+4*tp+i}, v{vXr+4*tp+2+i}"))
    for k in range(10): xun += L(f"v_lshlrev_b32 v{vXf+2*k}, 16, v{vXr+k}\nv_and_b32 v{vXf+2*k+1}, 0xffff0000, v{vXr+k}")
    k2 = (math.sqrt(192.0) / math.log2(math.e)) ** 2
    xun += L(f"v_mul_f32 v10, v10, v10\nv_mul_f32 v10, {hex(f2u(k2))}, v10\nv_mul_f32 v11, {hex(f2u(-math.log2(math.e)))}, v10")
    own0 = []
    for k in range(10): own0 += L(f"v_lshlrev_b32 v{vSm+2*k}, 16, v{vPl+k}\nv_and_b32 v{vSm+2*k+1}, 0xffff0000, v{vPl+k}\nv_mul_f32 v{vSm+2*k}, v10, v{vSm+2*k}\nv_mul_f32 v{vSm+2*k+1}, v10, v{vSm+2*k+1}")
    psum = []
    for i in range(1, 4):
        for k in range(10):
            s_ = vPl + i * 12 + k; u = 132 + (k % 4) * 2
            psum += L(f"v_lshlrev_b32 v{u}, 16, v{s_}\nv_and_b32 v{u+1}, 0xffff0000, v{s_}\nv_fmac_f32 v{vSm+2*k}, v10, v{u}\nv_fmac_f32 v{vSm+2*k+1}, v10, v{u+1}")
    fin = []
    for t in range(5):
        h = vDc + 4 * t
        for i in range(4): fin += L(f"v_mul_f32 v{t0+4*t+i}, v11, v{h+i}\nv_exp_f32 v{t0+4*t+i}, v{t0+4*t+i}")
        for i in range(4): fin += L(f"v_mul_f32 v{h+i}, v{h+i}, v{vSm+4*t+i}")
        for i in range(4): fin += L(f"v_add_f32 v{t0+4*t+i}, 1.0, v{t0+4*t+i}\nv_rcp_f32 v{t0+4*t+i}, v{t0+4*t+i}")
        for i in range(4): fin.append(I(f"v_fmac_f32 v{vXf+4*t+i}, v{h+i}, v{t0+4*t+i}"))
        for i in range(2): fin.append(I(f"v_cvt_pk_bf16_f32 v{vXr+2*t+i}, v{vXf+4*t+2*i}, v{vXf+4*t+2*i+1}"))
        if t in (1, 3):
            tp = t // 2
            for i in range(2): fin.append(I(f"v_permlane16_swap_b32 v{vXr+4*tp+i}, v{vXr+4*tp+2+i}"))
            fin.append(I(f"buffer_store_dwordx4 {vr(vXr+4*tp,4)}, v{vOw}, {sr(sOut,4)}, s{sOffO} offen offset:{64*tp}"))
    fin.append(I(f"buffer_store_dwordx2 {vr(vXr+8,2)}, v{vOa}, {sr(sOut,4)}, s{sOffO} offen offset:128"))
    flat = lambda l: [x for it in l for x in it]
    hs = []
    for t in range(5):
        for i in range(2): hs.append(I(f"v_cvt_pk_bf16_f32 v{vHp+2*t+i}, v{vDo+4*t+2*i}, v{vDo+4*t+2*i+1}"))
        if t in (1, 3): hs.append(I(f"buffer_store_dwordx4 {vr(vHp+2*t-2,4)}, v{vL16}, {sr(sWS,4)}, s{sOffD} offen offset:{(t//2)*1024} sc1", tag_w="Pst"))
    hs.append(I(f"buffer_store_dwordx2 {vr(vHp+8,2)}, v37, {sr(sWS,4)}, s{sOffD} offen offset:2048 sc1", tag_w="Pst"))
    hl = [I(f"buffer_load_dwordx4 {vr(vHr+4*k,4)}, v{vL16}, {sr(sWS,4)}, s{sOffDo} offen offset:{1024*k} sc1") for k in range(2)]
    hl.append(I(f"buffer_load_dwordx2 {vr(vHr+8,2)}, v37, {sr(sWS,4)}, s{sOffDo} offen offset:2048 sc1"))
    hadd = []
    for k in range(10):
        u = 132 + (k % 4) * 2
        hadd += L(f"v_lshlrev_b32 v{u}, 16, v{vHr+k}\nv_and_b32 v{u+1}, 0xffff0000, v{vHr+k}\nv_add_f32 v{vDc+2*k}, v{vDc+2*k}, v{u}\nv_add_f32 v{vDc+2*k+1}, v{vDc+2*k+1}, v{u+1}")
    f3 = lambda k: blk(stamp(14 + k)) if "fine3" in KN else None
    B1 = [d_bload(0, k) for k in range(nb1, 24)]; B2 = [d_bload(1, k) for k in range(24)]
    psq = [pkall[4 * k:4 * k + 4] + ps[k] for k in range(10)]
    cfg = [[int(y) for y in x.split(".")] for x in os.environ.get("DC", "3.5.0,3.5.0,0.0.9,0.0.9,0.0.6").split(",")]
    def take(c_):
        q = [[B1.pop(0) for _ in range(c_[0])], [psq.pop(0) for _ in range(c_[1])], [B2.pop(0) for _ in range(c_[2])]]
        return flat(merge(q))
    PFG = PAR("PFG", 2)
    owndone = False
    for g in range(4):
        ex = take(cfg[g])
        XE = PAR("XE", 0)
        if XE and g == 3: ex = ex + xl
        if g == PFG: ex = ex + [set_flag(f"s{sFl}", "Pst")]
        sch(d_block(0, g, ex), f"d0{g}", vm_min=1)
        if not psq and not owndone: blk(own); owndone = True; assert g < 2
        f3(g)
    for x in hs:
        if x.tag_w: x.tag_w = "Qst"
    pollP = L(f"v_and_b32 v12, 12, v{vFa2}") + [poll_load(vFl, 12, f"s{sFg}")]
    setH = L(f"s_lshl2_add_u32 s{sT1}, s{sW}, s{sFg}\ns_add_u32 s{sT1}, s{sT1}, 16\nv_mov_b32 v13, 0")
    blk(hs); f3(4)
    PP = PAR("PP", 0)
    PC = PAR("PC", 1)
    QP = PAR("QP", 3)
    chkP = lambda: blk(poll_cmp(vFl, 1) + poll_branch("p", vFl, 12, f"s{sFg}") + pl)
    pq = [poll_load(16, 13, f"s{sT1}")]
    QF = PAR("QF", 1)
    qf = [set_flag(f"s{sOffDd}", "Qst")]
    sch(d_block(1, 0, (pollP if PP == 0 else []) + take(cfg[4]) + ([] if XE else xl) + (qf if QF == 0 else []), ownrd + setH), "d10", vm_min=1); f3(5)
    assert not B1 and not B2 and not psq
    if PC == 0: chkP()
    sch(d_block(1, 1, (qf if QF == 1 else []) + (pollP if PP == 1 else [])), "d11", vm_min=1); f3(6)
    if PC == 1: chkP()
    f3(7)
    PSK = PAR("PSK", 40)
    sch(d_block(1, 2, pq if QP == 2 else [], xun + own0 + (psum[:PSK] if PC == 0 else [])), "d12", vm_min=1); f3(8)
    chkQ = lambda: blk(poll_cmp(16, 1) + poll_branch("q", 16, 13, f"s{sT1}") + hl)
    if QP == 2: chkQ()
    rest = psum[PSK:] if PC == 0 else psum
    PSJ = PAR("PSJ", 0)
    sch(d_block(1, 3, pq if QP == 3 else [], rest[:PSJ]), "d13", vm_min=1); f3(9)
    if QP == 3: chkQ()
    f3(10)
    blk(stamp(11))
    blk(rest[PSJ:] + hadd + fin)
    c = []
    c += stamp_store(13)
    amp = os.environ.get("AMP")
    if amp and STAMPS:
        k1, k2, mult = map(int, amp.split(","))
        cy = 1 if mult == 0 else 0
        first = f"v_readlane_b32 s{sT0}, v{vSt}, {2*k1+cy}" if k1 >= 0 else f"s_mov_b32 s{sT0}, s{sNonce}"
        c += L(f"""{first}
v_readlane_b32 s{sT1}, v{vSt}, {2*k2+cy}
v_readlane_b32 s{sT2}, v{vSt}, 26
s_nop 4
s_sub_u32 s{sT0}, s{sT1}, s{sT0}
{f"s_mul_i32 s{sT0}, s{sT0}, {mult}" if mult else f"s_lshr_b32 s{sT0}, s{sT0}, 2"}
s_min_u32 s{sT0}, s{sT0}, 100000
L_amp:
s_memrealtime s[{sSt}:{sSt+1}]
s_waitcnt lgkmcnt(0)
s_sub_u32 s{sT1}, s{sSt}, s{sT2}
s_cmp_lt_u32 s{sT1}, s{sT0}
s_cbranch_scc1 L_amp""")
    c += L("L_end:\ns_endpgm")
    blk(c, "fin")
    for nm, ins in OUTL: P.block(nm, ins)
    P.insert_waits()
    n = P.fix_hazards(verbose=False)
    if dbg:
        tot, per = P.estimate()
        agg = {}
        for k, v in per.items():
            kk = k.rstrip('0123456789') if k[0] in 'od' or k.startswith('p1_') or k.startswith('p2_') else k
            agg[kk] = agg.get(kk, 0) + v
        print("; estimate", tot, agg, "pads", n)
    return P.text() + "\n" + gen_fallback()

def build(path, dbg=False):
    body = gen(dbg)
    body = "\n".join(l.strip() for l in body.split("\n"))
    txt = f"""; @launch grid=(256,1,1) block=(256,1,1) lds={LDS_TOTAL}
.amdgcn_target "amdgcn-amd-amdhsa--gfx950"
.text
.globl {KNAME}
.p2align 8
.type {KNAME},@function
{KNAME}:
L_code_begin:
{body}
L_code_end:
.set CODE_SLICES, (L_code_end-L_code_begin+8191)/8192
.fill 2112, 4, 0xbf800000
s_endpgm
.section .rodata,"a"
.p2align 6
.amdhsa_kernel {KNAME}
  .amdhsa_next_free_vgpr 512
  .amdhsa_next_free_sgpr 102
  .amdhsa_accum_offset 256
  .amdhsa_group_segment_fixed_size 0
  .amdhsa_kernarg_size 96
  .amdhsa_user_sgpr_count 2
  .amdhsa_user_sgpr_kernarg_segment_ptr 1
  .amdhsa_system_sgpr_workgroup_id_x 1
  .amdhsa_float_denorm_mode_32 3
.end_amdhsa_kernel
"""
    open(path, "w").write(txt)

if __name__ == "__main__":
    if "--stamps" in sys.argv:
        STAMPS = True; sys.argv.remove("--stamps")
    build(sys.argv[1], dbg=True)
```

```python
import sys, math, struct, os
from asmlib import *
KN = set(os.environ.get("KN", "").split(","))
def PAR(name, default): return type(default)(os.environ.get(name, default))
NAME = "recurrent_scan__sliding_block_cached__glu_gated_bilinear__prompt"
KNAME = NAME + "_kernel"
XN_OFF = 0; OH_OFF = 0x400000; GP_OFF = 0x2200000; WOP_OFF = 0x2600000; WDP_OFF = 0x2E00000; PART_OFF = 0x3000000
FL_OFF = 0x3A00000
FXN = FL_OFF; FO = FL_OFF + 0x8000; FH = FL_OFF + 0x10000; FP = FL_OFF + 0x18000; FG = FL_OFF + 0x20000; FW = FL_OFF + 0x21000; FW2 = FL_OFF + 0x22000; ST_OFF = FL_OFF + 0x30000
XR_OFF = 0x3B00000; HP_OFF = 0x3E00000
WS_SIZE = 0x4100000
STAMP_OFF = 0x8000000
SLOT = 28672; SL2 = 36864
LDS_X = 147456
LDS_TOTAL = 163840
STAMPS = False
SPIN_MAX = 200000
def sbase(st):
    if st < 10: return ((3, 4) if (st // 2) % 2 == 0 else (1, 2))[st % 2] * SLOT
    if st <= 28: return (st % 5) * SLOT
    return {29: 0, 30: 110592, 31: 135168}[st]
OPERM = [1, 2, 0, 3]
def obase(sg): return OPERM[sg % 4] * SL2

def f2u(x): return struct.unpack('<I', struct.pack('<f', x))[0]
def vr(a, n): return f"v[{a}:{a+n-1}]" if n > 1 else f"v{a}"
def ar(a, n): return f"a[{a}:{a+n-1}]" if n > 1 else f"a{a}"
def sr(a, n): return f"s[{a}:{a+n-1}]" if n > 1 else f"s{a}"
def rr(x, n=4): return vr(x[1], n) if x[0] == 'v' else ar(x[1], n)
def L(txt): return [I(t) for t in txt.strip().split("\n") if t.strip()]
def mfma(d, a, b, c): return I(f"v_mfma_f32_16x16x32_bf16 {d}, {a}, {b}, {c}")

sWq, sK, sWS, sR = 4, 8, 12, 16
(sOffX, sOffY, sOffK, sOffV, sM6, sM3, sM1, sOffB, sH, sB, sW, sT0, sT1, sT2, sOffO, sScale,
 sOffG, sOffH0, sOffH1, sOffH2, sNonce, sOffR, sOffD, sOffRo, sOffRd, sOffDo, sOffDd,
 sS, sMb, sNb, sFl, sSpin, sT3, sOffP, sQg, sFg, sOffA, sOffBB, sM5, sM4, sPf, sQd) = range(20, 62)
sOffH = sOffH0
pX, pK, pV, pWq, pWo, pBx, pWg, pWu, pWd, pOut, pDbg, pWs = range(64, 88, 2)
sSt = 88; sV = 92; sXin = 96
sOut = sWq
vL16 = 1; vWo = 2; vKo = 5; vVo = 8; vRo = 11; vRo2 = 12; vL128 = 13; vFo = 14; vNon = 15
vRa = 16; vWa = 17; vKa = 19; vVa = 21; vGa = 25
vLs = 26; vT = 36; vSt = 31; vNm = 32; vTmp = 48
vAcc = 64; vQ = 64
vS01 = 160; vS23 = 176; vP01 = 208; vP23 = 224; vVs = 232
aK = 192; aR = 240; aA1 = 128; aDum = 255; aCs = 160
vOne = 48; vSta = 40; vCsT = 52; vXo = 44; vXo2 = 46; vSo = 32; vPa = 42; vPd = 43
vDum = 30
NSLICE = 10

class Addr:
    def __init__(self, reg, base): self.reg = reg; self.base = base
    def use(self, base, off):
        pre = []
        d = base + off - self.base
        if not (0 <= d < 65536):
            pre = [I(f"v_add_u32 v{self.reg}, {hex((base - self.base) & 0xffffffff)}, v{self.reg}")]
            self.base = base; d = off
        return pre, d
AD = {}
def dsr(op, dst, reg, base, off, **kw):
    pre, d = AD[reg].use(base, off)
    return pre + [I(f"{op} {dst}, v{reg} offset:{d}", **kw)]

def srd(d, base, size):
    return [I(f"s_mov_b32 s{d}, s{base}"), I(f"s_mov_b32 s{d+1}, s{base+1}"), I(f"s_mov_b32 s{d+2}, {hex(size)}"), I(f"s_mov_b32 s{d+3}, 0x20000")]
def xreduce(v, t, op):
    return L(f"""v_mov_b32 v{t}, v{v}
v_permlane16_swap_b32 v{v}, v{t}
{op} v{v}, v{v}, v{t}
v_mov_b32 v{t}, v{v}
v_permlane32_swap_b32 v{v}, v{t}
{op} v{v}, v{v}, v{t}""")
def divmod_const(q, r, src, c):
    magic = (65536 + c - 1) // c
    for x in range(1400): assert (x * magic) >> 16 == x // c
    return L(f"v_mul_u32_u24 v{q}, {magic}, v{src}\nv_lshrrev_b32 v{q}, 16, v{q}\nv_mul_u32_u24 v{r}, {c}, v{q}\nv_sub_u32 v{r}, v{src}, v{r}")
def sdivmod(q, r, src, c):
    magic = (65536 + c - 1) // c
    for x in range(1400): assert (x * magic) >> 16 == x // c
    return L(f"s_mul_i32 s{q}, s{src}, {magic}\ns_lshr_b32 s{q}, s{q}, 16\ns_mul_i32 s{r}, s{q}, {c}\ns_sub_u32 s{r}, s{src}, s{r}")

def stamp(k):
    if not STAMPS: return []
    return L(f"""s_memrealtime s[{sSt}:{sSt+1}]
s_memtime s[{sSt+2}:{sSt+3}]
s_waitcnt lgkmcnt(0)
v_writelane_b32 v{vSt}, s{sSt}, {2*k}
v_writelane_b32 v{vSt}, s{sSt+2}, {2*k+1}""")
def stamp_store(n):
    if not STAMPS: return []
    return stamp(n - 1) + L("s_waitcnt vmcnt(0)") + stamp(n) + L(f"""s_add_u32 s{sK}, s{pWs}, {hex(STAMP_OFF)}
s_addc_u32 s{sK+1}, s{pWs+1}, 0
s_mov_b32 s{sK+2}, {1024*256}
s_mov_b32 s{sK+3}, 0x20000
s_lshl2_add_u32 s{sT0}, s2, s{sW}
s_lshl_b32 s{sT0}, s{sT0}, 8
v_lshlrev_b32 v2, 2, v0
buffer_store_dword v{vSt}, v2, {sr(sK,4)}, s{sT0} offen""")

OUTL = []
def poll_load(dst, vaddr, soff, n=1, **kw):
    op = "buffer_load_dword" if n == 1 else "buffer_load_dwordx4"
    return I(f"{op} {vr(dst,n)}, v{vaddr}, {sr(sWS,4)}, {soff} offen sc1", **kw)
def poll_cmp(dst, n):
    if n == 1: return L(f"v_cmp_ne_u32 vcc, s{sNonce}, v{dst}")
    return L(f"""v_xor_b32 v{dst}, s{sNonce}, v{dst}
v_xor_b32 v{dst+1}, s{sNonce}, v{dst+1}
v_xor_b32 v{dst+2}, s{sNonce}, v{dst+2}
v_xor_b32 v{dst+3}, s{sNonce}, v{dst+3}
v_or3_b32 v{dst}, v{dst}, v{dst+1}, v{dst+2}
v_or_b32 v{dst}, v{dst}, v{dst+3}
v_cmp_ne_u32 vcc, 0, v{dst}""")
def poll_branch(name, dst, vaddr, soff, n=1):
    o = L(f"L_spin_{name}:\ns_mov_b32 s{sSpin}, {SPIN_MAX}\nL_spin2_{name}:")
    o += [poll_load(dst, vaddr, soff, n)] + L("s_waitcnt vmcnt(0)") + poll_cmp(dst, n)
    o += L(f"""s_nop 4
s_cbranch_vccz L_back_{name}
s_sleep 1
s_sub_u32 s{sSpin}, s{sSpin}, 1
s_cmp_lg_u32 s{sSpin}, 0
s_cbranch_scc1 L_spin2_{name}
s_branch L_back_{name}""")
    OUTL.append((f"spin_{name}", o))
    return L(f"s_cbranch_vccnz L_spin_{name}\nL_back_{name}:")
def late(lst, g):
    for x in lst: x.after = g
    return lst
def set_flag(soff, tag, **kw):
    return I(f"buffer_store_dword v{vNon}, v{vFo}, {sr(sWS,4)}, {soff} offen sc1", tag_r=tag, **kw)

RF = os.environ.get("RF", "nt"); WQF = os.environ.get("WQF", "")
KVF = os.environ.get("KVF", "nt")
def grp3(st, srdn, vo, so, mreg, moff, inc, flags=""):
    r = [I(f"s_add_u32 m0, s{mreg}, {sbase(st)+moff}")]
    for n in range(3):
        v = vo + n if vo != vL16 else vL16
        r.append(I(f"buffer_load_dwordx4 v{v}, {sr(srdn,4)}, s{so} offen offset:{1024*n} {flags} lds", tag_w=f"st{st}", rd=['stg']))
    if inc: r.append(I(f"s_add_u32 s{so}, s{so}, {inc}"))
    return r
def dma_stage(st):
    r = []
    if st <= 9:
        r += grp3(st, sWq, vWo, sOffX, sM6, 0, 16 * 12288, WQF) + grp3(st, sWq, vWo, sOffX, sM6, 3072, 48 * 12288, WQF)
    elif st <= 26:
        t = st - 10
        if t <= 15: r += grp3(st, sK, vKo, sOffK, sM3, 0, 12288, KVF)
        if t >= 1: r += grp3(st, sV, vVo, sOffV, sM3, 12288, 12288, KVF)
        u = st - 12
        if 0 <= u < 14:
            if u == 4: r += srd(sR, pWo, 6144 * 640 * 2)[:3] + L(f"s_mov_b32 s{sOffR}, s{sOffRo}")
            if u == 12: r += srd(sR, pWd, 1536 * 640 * 2)[:3] + L(f"s_mov_b32 s{sOffR}, s{sOffRd}")
            r.append(I(f"s_add_u32 m0, s{sM1}, {sbase(st)+24576}"))
            r.append(I(f"buffer_load_dwordx4 v{vRo if u < 4 else vRo2}, {sr(sR,4)}, s{sOffR} offen {RF} lds", tag_w=f"st{st}", rd=['stg']))
            r.append(I(f"s_add_u32 s{sOffR}, s{sOffR}, {32*3072 if u < 4 else 32*1280}"))
    else:
        r += grp3(st, sWS, vL16, sOffG, sM6, 0, 3072, "sc1") + grp3(st, sWS, vL16, sOffG, sM6, 3072, 24576 - 3072, "sc1")
    return r
def pace(lst, lo, hi):
    vm = [x for x in lst if x.kind == 'vmem']
    for k, x in enumerate(vm): x.after = int(lo + k * (hi - lo) / len(vm))
    return lst
def barrier(tag, after=None): return I("s_barrier", tag_r=tag, wr=['stg'], after=after)

def acc1(T, j): return vAcc + ((T // 2) * 4 + j) * 8 + (T % 2) * 4
def w_reads(k, T):
    slot = aA1 + (T % 2) * 16
    p, t = T // 2, T % 2
    r = []
    for ks in range(4):
        for u in range(2): r += dsr("ds_read_b64_tr_b16", ar(slot + ks * 4 + u * 2, 2), vWa + p % 2, sbase(2 * k), (ks // 2) * SLOT + (ks % 2) * 12288 + u * 6144 + (p // 2) * 128 + 8 * t, rd=['stg'], tag_w=f"wr{k}")
    return r
def b_loads(base):
    r = []
    for u in range(2):
        for j in range(4):
            r.append(I(f"buffer_load_dwordx4 {rr((base[0], base[1]+(u*4+j)*4))}, v{vL16}, {sr(sWS,4)}, s{sOffB} offen offset:{1024*j} sc1"))
        r.append(I(f"s_add_u32 s{sOffB}, s{sOffB}, 4096"))
    return r
def k_reads(st, kt):
    r = []
    for s in range(6): r += dsr("ds_read_b128", ar(aK + kt * 24 + s * 4, 4), vKa + s % 2, sbase(st), kt * 6144 + (s // 2) * 128, rd=['stg'])
    return r
def v_reads(st, T):
    r = []
    for u in range(2): r += dsr("ds_read_b64_tr_b16", vr(vVs + (T % 6) * 4 + u * 2, 2), vVa + T % 4, sbase(st), 12288 + u * 6144 + (T // 4) * 128, rd=['stg'], tag_w=f"vr{st}")
    return r
def prefetch(srdn, soff, flags=""):
    x = I(f"buffer_load_dword v{vDum}, v{vL128}, {sr(srdn,4)}, {soff} offen {flags}"); x.writes = set(); return x

def csreg(T): return aCs + T * 4
def p1_quad(k, T0=0, T1=12, vm=(), vmspan=None, extra=()):
    last = k == 4
    per = 20 if k == 0 else 16
    n = (T1 - T0) * per
    s = []
    vm = list(vm)
    if any(x.kind == 'vmem' for x in vm): pace(vm, *(vmspan or (1, n - 20)))
    s += vm + list(extra)
    for T in range(T0, T1):
        if T + 1 < 12: s += w_reads(k, T + 1)
        else:
            s.append(barrier([f"st{2*k+2}", f"wr{k}"] + ([f"st{2*k+3}"] if not last else []), after=n - per - 1))
            s += w_reads(k + 1, 0) if not last else k_reads(10, 0)
        slot = aA1 + (T % 2) * 16
        for j in range(4):
            d = vr(acc1(T, j), 4)
            for ks in range(4):
                s.append(mfma(d, ar(slot + ks * 4, 4), ar(64 * (k % 2) + (ks * 4 + j) * 4, 4), "0" if (k == 0 and ks == 0) else d))
        if k == 0:
            d = ar(csreg(T), 4)
            for ks in range(4): s.append(mfma(d, ar(slot + ks * 4, 4), vr(vOne, 4), d if ks else "0"))
        if k in (2, 3) and T % 2 == k - 2:
            t = vCsT + ((T // 2) % 2) * 4
            for i in range(4): s.append(I(f"v_accvgpr_read_b32 v{t+i}, a{csreg(T)+i}"))
            for j in range(4):
                for i in range(4): s.append(I(f"v_fmac_f32 v{acc1(T,j)+i}, v{t+i}, v{vSta+2*j}"))
        if last and T % 2 == 1:
            p = T // 2
            for j in range(4):
                a = acc1(2 * p, j); q = vQ + (p * 4 + j) * 4
                for i in range(8): s.append(I(f"v_mul_f32 v{a+i}, v{vSta+2*j+1}, v{a+i}"))
                for i in range(4): s.append(I(f"v_cvt_pk_bf16_f32 v{q+i}, v{a+2*i}, v{a+2*i+1}"))
    return s
def w_reads0(n):
    h, T = n // 12, n % 12
    slot = aA1 + (n % 4) * 8
    p, t = T // 2, T % 2
    r = []
    for ks in range(2):
        for u in range(2): r += dsr("ds_read_b64_tr_b16", ar(slot + ks * 4 + u * 2, 2), vWa + p % 2, sbase(0), h * SLOT + ks * 12288 + u * 6144 + (p // 2) * 128 + 8 * t, rd=['stg'], tag_w="wr0")
    return r
def raw_reads(h):
    return [I(f"ds_read_b128 {ar(((2*h+ks)*4+j)*4,4)}, v{(vXo if h == 0 else vXo2) + ks} offset:{j*2048}", tag_r=f"raw{h}", tag_w=f"rawrd{h}") for j in range(4) for ks in range(2)]
def p1_first(n0, n1, extra=()):
    s = list(extra)
    for n in range(n0, n1):
        h, T = n // 12, n % 12
        if n == 8: s += late(raw_reads(1), (8 - n0) * 10)
        if n == 10: s.append(barrier(["st1"], after=(10 - n0) * 10 - 4))
        if n + 2 < 24: s += w_reads0(n + 2)
        elif n == 23:
            s.append(barrier(["st2", "st3", "wr0"], after=(22 - n0) * 10))
            s += w_reads(1, 0)
        slot = aA1 + (n % 4) * 8
        for j in range(4):
            d = vr(acc1(T, j), 4)
            for ks in range(2): s.append(mfma(d, ar(slot + ks * 4, 4), ar(((2 * h + ks) * 4 + j) * 4, 4), "0" if (h == 0 and ks == 0) else d))
        d = ar(csreg(T), 4)
        for ks in range(2): s.append(mfma(d, ar(slot + ks * 4, 4), vr(vOne, 4), "0" if (h == 0 and ks == 0) else d))
    return s
def stat_loads():
    return [I(f"buffer_load_dwordx2 {vr(vSta+2*j,2)}, v{vSo}, {sr(sWS,4)}, s{sScale} offen offset:{128*j} sc1") for j in range(4)]

def Sreg(kt, j, t):
    if j < 2: return (vTmp if t == 0 else vS01) + (j * 2 + kt) * 4
    return vS23 + (t % 2) * 16 + ((j - 2) * 2 + kt) * 4
def Preg(j, t):
    if j < 2: return vP01 + (t % 2) * 8 + j * 4
    return (vTmp + 8 if t == 15 else vP23) + (j - 2) * 4
def qk(kt, t):
    s = []
    for j in range(4):
        d = vr(Sreg(kt, j, t), 4)
        for p in range(6):
            c = d if p else ("0" if (t == 0 and kt == 0) else vr(vNm + 4 * j, 4))
            s.append(mfma(d, ar(aK + kt * 24 + p * 4, 4), vr(vQ + (p * 4 + j) * 4, 4), c))
    return s
def softmax(j, t):
    s = []
    for kt in range(2):
        a = Sreg(kt, j, t)
        for i in range(4): s.append(I(f"v_exp_f32 v{a+i}, v{a+i}"))
        for i in range(4): s.append(I(f"v_add_f32 v{vLs+j}, v{vLs+j}, v{a+i}"))
        for i in range(2): s.append(I(f"v_cvt_pk_bf16_f32 v{Preg(j,t)+kt*2+i}, v{a+2*i}, v{a+2*i+1}"))
    return s
def pv_T(T, t):
    s = []
    for j in range(4):
        d = ar((T * 4 + j) * 4, 4)
        s.append(mfma(d, vr(vVs + (T % 6) * 4, 4), vr(Preg(j, t), 4), "0" if t == 0 else d))
    return s

HALFB = 'halfb' in KN
def p2_iter(t, base=0, extra=(), post=(), btag=()):
    st = 11 + t
    s = []
    s += k_reads(st, 1)
    u = st - 12
    if u >= 0:
        for h in range(2): s += dsr("ds_read_b64_tr_b16", ar(aR + 2 * h, 2), vRa, sbase(st), 24576 + 2048 * h, rd=['stg'])
    s += pace(dma_stage(st + 3) + list(extra), base + 4, base + (PAR("HP", 50) if (HALFB and t % 2) else 68))
    if t > 0: s += softmax(2, t) + softmax(3, t)
    s += qk(0, t + 1) + qk(1, t + 1)
    for T in range(6): s += v_reads(st, T)
    s += softmax(0, t + 1) + softmax(1, t + 1)
    if t == 14: s += softmax(2, 15) + softmax(3, 15)
    for T in range(12):
        s += pv_T(T, t)
        if T < 6: s += v_reads(st, T + 6)
        if T == 5:
            if not HALFB: s.append(barrier([f"st{st+1}"] + list(btag), after=base + 70))
            elif t % 2 == 0: s.append(barrier([f"st{st+1}", f"st{st+2}", f"vr{st}"] + list(btag), after=base + PAR("HB", 78)))
            else: assert not btag
            if t < 14: s += late(k_reads(st + 1, 0), base + 60) if (HALFB and t % 2) else k_reads(st + 1, 0)
            if u >= 0:
                if u == 4: s += L(f"s_mov_b32 s{sOffD}, s{sOffDo}")
                if u == 12: s += L(f"s_mov_b32 s{sOffD}, s{sOffDd}")
                s.append(I(f"buffer_store_dwordx4 {ar(aR,4)}, v{vL16}, {sr(sWS,4)}, s{sOffD} offen sc1", after=base + 80, tag_w="Gst" if u < 4 else "Wst" if u < 12 else "Dst"))
                s.append(I(f"s_add_u32 s{sOffD}, s{sOffD}, {6144 if u < 4 else 10240 if u < 12 else 5120}"))
        if t == 14 and T >= 6: s += v_reads(st + 1, T - 6)
    s += list(post)
    return s

def first_tile(base):
    s = []
    s += k_reads(10, 1)
    s += pace(dma_stage(13), base + 2, base + 30)
    s += qk(0, 0)
    for j in range(4):
        a = Sreg(0, j, 0); m = vNm + 4 * j; t = m + 1
        s += L(f"v_max3_f32 v{m}, v{a}, v{a+1}, v{a+2}\nv_max_f32 v{m}, v{m}, v{a+3}")
        s += xreduce(m, t, "v_max_f32")
        s += L(f"v_sub_f32 v{m+1}, 0, v{m}\nv_sub_f32 v{m+2}, 0, v{m}\nv_sub_f32 v{m+3}, 0, v{m}\nv_sub_f32 v{m}, 0, v{m}")
        for i in range(4): s.append(I(f"v_add_f32 v{a+i}, v{a+i}, v{m}"))
    s.append(barrier("st11", after=base + 28))
    s += k_reads(11, 0)
    s += qk(1, 0)
    for j in range(4): s += softmax(j, 0)
    return s

vGA = 160; vOP = 184
BBUF = [('a', 192), ('a', 224), ('v', 208)]
def g_reads(n, tagr='stg', pos=None):
    ds, grp = n // 6, n % 6
    slot = vGA + ((n if pos is None else pos) % 3) * 8
    r = []
    for ks in range(2): r += dsr("ds_read_b128", vr(slot + ks * 4, 4), vGa, sbase(27 + ds // 2), (((ds % 2) * 2 + ks) * 6 + grp) * 1024, rd=[tagr])
    return r
def acc3(grp, j): return vAcc + (grp * 4 + j) * 4

def tail_pv(base):
    s = L(f"s_mul_i32 s{sOffB}, s100, {20*4096}")
    wf = set_flag(f"s{sFg}", None, rd=['stg'])
    s += pace([wf] + L(f"s_add_u32 s{sFg}, s{sFg}, {FW2-FW}") + b_loads(BBUF[0]), base - 11, base + 22)
    for T in range(12):
        s += pv_T(T, 15)
        if T < 6: s += v_reads(26, T + 6)
        if T == 5:
            if not HALFB: s.append(barrier("st27", after=base + 24))
            s += g_reads(0) + g_reads(1)
            s += pace(b_loads(BBUF[1]), base + 22, base + 48)
    for j in range(4): s += xreduce(vLs + j, vTmp + j, "v_add_f32")
    s += L(f"""v_add_f32 v{vTmp}, v{vLs}, v{vLs+1}
v_add_f32 v{vTmp+1}, v{vLs+2}, v{vLs+3}
v_add_f32 v{vTmp}, v{vTmp}, v{vTmp+1}
v_cmp_ngt_f32 vcc, {hex(f2u(2.0**40))}, v{vTmp}""")
    for j in range(4): s.append(I(f"v_rcp_f32 v{vLs+j}, v{vLs+j}"))
    return s

def split(lst):
    ch = []; cur = []
    for x in lst:
        cur.append(x)
        if x.kind == 'vmem': ch.append(cur); cur = []
    if cur: ch[-1] += cur
    return ch
def merge(qs):
    qs = [list(q) for q in qs]
    w = [len(q) for q in qs]; tot = sum(w); acc = [0.0] * len(qs); seq = []
    for k in range(tot):
        for z in range(len(qs)): acc[z] += w[z]
        z = max((z for z in range(len(qs)) if qs[z]), key=lambda z: acc[z])
        acc[z] -= tot; seq.append(qs[z].pop(0))
    return seq

vOA = 32; vOB = 33; vDA = 34; vDB = 35
vOa = 40; vPo = 41; vFa = 42; vFa2 = 43; vFl = 44
vAc = 64; vDc = 144; vPk = 164; vXr = 204; vPl = 64
def fA(e, t, ks): return e * 72 + (t * 2 + ks) * 4
def fB(e, j, ks): return 40 + e * 72 + (ks * 4 + j) * 4
def dA(e, n): return (144 if e == 0 else 0) + n * 4
def dB(e, ks): return (144 if e == 0 else 0) + 80 + ks * 4
sAbeg, sAend, sBbeg, sBend = sScale, sOffX, sOffY, sPf
vWr = 35
def dmaA(sg, rd='stg'):
    r = []
    if sg == 24: r += L(f"s_mov_b32 s{sOffA}, s{sOffRo}")
    r.append(I(f"s_add_u32 m0, s{sM5}, {obase(sg)}"))
    for n in range(5):
        if n == 4: r += L(f"s_add_u32 m0, s{sM5}, {obase(sg)+4096}\ns_add_u32 s{sOffA}, s{sOffA}, 4096")
        r.append(I(f"buffer_load_dwordx4 v{vL16}, {sr(sWS,4)}, s{sOffA} offen offset:{1024*(n%4)} sc1 lds", tag_w=f"ot{sg}", rd=[rd]))
    r.append(I(f"s_add_u32 s{sOffA}, s{sOffA}, {20480-4096}"))
    if sg == 2: r += L(f"s_mov_b32 s{sOffA}, s{sOffR}")
    if sg >= 2: r += L(f"s_cmp_eq_u32 s{sOffA}, s{sAend}\ns_cmov_b32 s{sOffA}, s{sAbeg}")
    return r
def dmaB(sg, rd='stg'):
    r = []
    r += L(f"s_cmp_eq_u32 s{sOffBB}, s{sBend}\ns_cmov_b32 s{sOffBB}, s{sBbeg}")
    r.append(I(f"s_add_u32 m0, s{sM4}, {obase(sg)+20480}"))
    for n in range(4):
        r.append(I(f"buffer_load_dwordx4 v{vL16}, {sr(sWS,4)}, s{sOffBB} offen offset:{1024*n} sc1 lds", tag_w=f"ot{sg}", rd=[rd]))
    r.append(I(f"s_add_u32 s{sOffBB}, s{sOffBB}, {8192 if sg < 24 else 16384}"))
    return r
def apf():
    if "apf" not in KN: return []
    return [prefetch(sWS, f"s{sPf}", "sc1")] + L(f"s_add_u32 s{sPf}, s{sPf}, 81920")
def o_reads(sg):
    e = sg % 2; kw = dict(rd=['stg'], tag_w=f"rd{sg}")
    r = []
    if sg < 24:
        for ks in range(2): r += dsr("ds_read_b128", ar(fA(e, 0, ks), 4), vOA, obase(sg), ks * 10240, **kw)
        for j in range(4):
            for ks in range(2): r += dsr("ds_read_b128", ar(fB(e, j, ks), 4), vOB, obase(sg), ks * 8192 + j * 1024, **kw)
        for t in range(1, 5):
            for ks in range(2): r += dsr("ds_read_b128", ar(fA(e, t, ks), 4), vOA, obase(sg), (ks * 10 + t) * 1024, **kw)
    else:
        for ks in range(4): r += dsr("ds_read_b128", ar(dB(e, ks), 4), vDB, obase(sg), ks * 4096, **kw)
        for T in range(5):
            for ks in range(4): r += dsr("ds_read_b128", ar(dA(e, ks * 5 + T), 4), vDA, obase(sg), (ks * 5 + T) * 1024, **kw)
    return r
def dmaD(g):
    r = []
    for h in range(2):
        r.append(I(f"s_add_u32 m0, s{sM3}, {obase(24+g)+4096*h}"))
        for n in range(4): r.append(I(f"buffer_load_dwordx4 v{vL16}, {sr(sWS,4)}, s{sOffRo} offen offset:{1024*n} sc1 lds", tag_w=f"ot{24+g}", rd=['stg']))
        r.append(I(f"s_add_u32 s{sOffRo}, s{sOffRo}, {4096 if h == 0 else 30720-4096}"))
    return r
DRING = [240, 244, 248, 252] + list(range(96, 144, 4))
vDo = 216; vHp = 236; vHr = 246
def dBreg(p, k): return (144 if p == 0 else 0) + 4 * k
def d_bload(p, k):
    so = sOffRd if p == 0 else sOffBB
    return [I(f"buffer_load_dwordx4 {ar(dBreg(p,k),4)}, v{vL16}, {sr(sWS,4)}, s{so} offen sc1"), I(f"s_add_u32 s{so}, s{so}, 4096")]
def d_read(n):
    g, T, k = (n % 120) // 30, (n % 30) // 6, n % 6
    return dsr("ds_read_b128", ar(DRING[n % 16], 4), vDA, obase(24 + g), (k * 5 + T) * 1024, rd=['stg'])
DLA = 12
def d_block(p, g, extra=(), post=()):
    s = list(extra)
    if any(x.kind == 'vmem' for x in s): pace(s, 0, 29)
    acc = vDo if p == 0 else vDc
    for i in range(30):
        n = p * 120 + g * 30 + i
        first = 4 if n == 0 else n + DLA
        for m in range(first, n + DLA + 1):
            if m < 240:
                if m < 120 and m % 30 == 0: s.append(I("s_barrier", tag_r=[f"ot{24+m//30}"], wr=['stg']))
                s += d_read(m)
        T, k = i // 6, i % 6
        d = vr(acc + 4 * T, 4)
        s.append(mfma(d, ar(DRING[n % 16], 4), ar(dBreg(p, g * 6 + k), 4), "0" if (g == 0 and k == 0) else d))
    return s + list(post)
def o_block(sg, extra=(), pre=(), mid=(), exfirst=False, dbo=None):
    e = sg % 2
    s = list(pre)
    s += [I("s_barrier", tag_r=[f"ot{sg+1}", f"rd{sg}"], wr=['stg'], after=2)]
    if sg < 23: s += o_reads(sg + 1)
    else:
        for m in range(4): s += d_read(m)
    db = dbo if dbo is not None else dmaB(sg + 4) + dmaA(sg + 4) if sg < 20 else dmaD(sg - 20)
    k_ = next(i for i, x in enumerate(db) if x.kind == 'vmem') + 1
    vm = split(db[:k_] + list(mid) + db[k_:])
    ex = split(list(extra)) if any(x.kind == 'vmem' for x in extra) else []
    if exfirst: seq = list(extra) + [x for ch in vm for x in ch]
    else: seq = [x for ch in merge([vm, ex]) for x in ch] if ex else [x for ch in vm for x in ch] + list(extra)
    pace(seq, 3, 40)
    s += seq
    for t in range(5):
        for j in range(4):
            for ks in range(2):
                d = vr(vAc + (t * 4 + j) * 4, 4)
                s.append(mfma(d, ar(fA(e, t, ks), 4), ar(fB(e, j, ks), 4), "0" if (sg == 0 and ks == 0) else d))
    return s

EARLY = PAR('EARLY', 1); OF = PAR('OF', 8); OC = 8 if EARLY else 99; WC = PAR('WC', 5)
vFo2 = 37
vHs = 48
def p3_steps():
    oe = []
    n = 0
    for p in range(6):
        for j in range(4):
            t = vTmp + (n % 2) * 8; o = vOP + (n % 6) * 4
            it = []
            for tt in range(2):
                for i in range(4): it.append(I(f"v_accvgpr_read_b32 v{t+tt*4+i}, a{((2*p+tt)*4+j)*4+i}"))
            for i in range(8): it.append(I(f"v_mul_f32 v{t+i}, v{t+i}, v{vLs+j}"))
            for i in range(4): it.append(I(f"v_cvt_pk_bf16_f32 v{o+i}, v{t+2*i}, v{t+2*i+1}"))
            for i in range(4): it.append(I(f"v_accvgpr_write_b32 a{(8*p+j)*4+i}, v{o+i}"))
            oe.append(it); n += 1
            st_ = [I(f"buffer_store_dwordx4 {ar((8*p+j)*4,4)}, v{vL16}, {sr(sWS,4)}, s{sOffO} offen offset:{1024*j} sc1", tag_w="Ost")]
            if j == 3: st_.append(I(f"s_add_u32 s{sOffO}, s{sOffO}, 4096"))
            OST.append(st_)
    nss = [int(x) for x in os.environ.get("NSS", "2,3,3,3,3,3,3,4,0,0").split(",")]
    nst = [int(x) for x in os.environ.get("NST", "4,3,3,3,3,3,3,2,0,0").split(",")]
    g29, g30, g31 = split(dma_stage(29)), split(dma_stage(30)), split(dma_stage(31))
    dm = {0: g29[:3], 1: g29[3:], 2: g30[:3], 3: g30[3:], 4: g31[:3], 5: g31[3:]}
    a0, a1, a2 = [split(dmaA(k, 'x')) for k in range(3)]
    assert WC <= 5
    dm[6] = a0; dm[8] = a1; dm[9] = a2
    allb = [c for d in range(2, 10) for c in split(b_loads(BBUF[d % 3]))]
    cnt = [int(x) for x in os.environ.get("NB", "8,8,8,8,8,8,8,8,0,0").split(",")]
    BQ = []
    for k in cnt: BQ.append(allb[:k]); allb = allb[k:]
    assert not allb
    steps = []
    for ds in range(10):
        s = []
        take = BQ[ds]
        s += [x for _ in range(nst[ds]) for x in oe.pop(0)]
        st = [OST.pop(0) for _ in range(nss[ds])]
        seq = merge([take, dm.get(ds, []), st]) if ds < 7 else take + st + dm.get(ds, [])
        if ds == 2: seq.insert(0, [set_flag(f"s{sFg}", None)])
        if ds == WC - 1: seq.insert(0, L(f"s_mov_b32 s{sT0}, {hex(FW)}") + [poll_load(vFl, vL16, f"s{sT0}", 4)])
        if ds == OF: seq.insert(int(len(seq) * PAR("OFP", 0.6)), [set_flag(f"s{sFl}", "Ost")])
        if EARLY and ds == PAR("OP", 9): seq.insert(int(len(seq) * PAR("OPP", 0.4)), [poll_load(vFo2, vFa, f"s{sT1}")])
        flat = [x for ch in seq for x in ch]
        s += ('pace', flat),
        for grp in range(6):
            n = ds * 6 + grp
            real = lambda m: m if m < 48 else 48 + ((m - 48) % 2) * 6 + (m - 48) // 2
            if n + 2 < 60:
                if (n + 2) % 12 == 0:
                    stg = 27 + (n + 2) // 12
                    tags = [f"st{stg}"] + (["Dst"] if stg == 28 else [])
                    s.append(I("s_barrier", tag_r=tags, wr=['stg2'], after=24))
                s += g_reads(real(n + 2), 'stg2', n + 2)
            slot = vGA + (n % 3) * 8
            rds, rg = real(n) // 6, real(n) % 6
            B = BBUF[rds % 3]
            for j in range(4):
                for ks in range(2):
                    d = vr(acc3(rg, j), 4)
                    s.append(mfma(d, vr(slot + ks * 4, 4), rr((B[0], B[1] + (ks * 4 + j) * 4)), "0" if (ds == 0 and ks == 0) else d))
            if rds == 9 and rg % 2 == 1: s += h_epilogue(rg // 2)
        steps.append(s)
    assert not oe and not OST
    return steps
HST = []; OST = []
def h_epilogue(T3):
    s = []
    if True:
        for jp in range(2):
            o = vOP + ((T3 * 2 + jp) % 6) * 4
            for jj in range(2):
                j = jp * 2 + jj
                g = acc3(2 * T3, j); u = acc3(2 * T3 + 1, j)
                for i in range(4): s.append(I(f"v_mul_f32 v{g+i}, v{g+i}, v{u+i}"))
                for i in range(2): s.append(I(f"v_cvt_pk_bf16_f32 v{o+jj*2+i}, v{g+2*i}, v{g+2*i+1}"))
            for i in range(2): s.append(I(f"v_permlane32_swap_b32 v{o+i}, v{o+2+i}"))
            HST.append(I(f"buffer_store_dwordx4 {vr(o,4)}, v{vT}, {sr(sWS,4)}, s{sOffH+T3} offen offset:{2048*jp} sc1", tag_w="Hst"))
    return s
def join_steps(steps, n=48):
    out = []
    for k, s in enumerate(steps):
        base = k * n
        for x in s:
            if isinstance(x, tuple):
                if any(y.kind == 'vmem' for y in x[1]): pace(x[1], base, base + n - 1)
                out += x[1]
            else:
                if x.after is not None: x.after += base
                out.append(x)
    return out

def gen_fallback():
    F = Prog()
    vK = 232; vS = 176; vP = 208
    vf, vv, va = 48, 49, 50
    sK_, sV_ = sK, sV
    def kload():
        return [I(f"buffer_load_dwordx4 {vr(vK+4*p,4)}, v{vf}, {sr(sK_,4)}, s{sT0} offen offset:{64*p}") for p in range(6)] + L(f"s_add_u32 s{sT0}, s{sT0}, 6144")
    def chains(kt, c0):
        s = []
        for j in range(4):
            d = vr(vS + (j * 2 + kt) * 4, 4)
            for p in range(6): s.append(mfma(d, vr(vK + 4 * p, 4), vr(vQ + (p * 4 + j) * 4, 4), d if p else c0(j)))
        return s
    c = L("L_fb:\ns_waitcnt vmcnt(0) lgkmcnt(0)\ns_nop 15")
    c += L(f"""v_and_b32 v54, 15, v0
v_lshrrev_b32 v55, 4, v0
v_mul_u32_u24 v{vf}, 384, v54
v_lshl_add_u32 v{vf}, v55, 4, v{vf}
v_lshrrev_b32 v56, 3, v0
v_and_b32 v57, 7, v0
v_and_b32 v58, 6, v56
v_xor_b32 v57, v57, v58
v_mul_u32_u24 v{vv}, 384, v56
v_lshl_add_u32 v{vv}, v57, 4, v{vv}
v_lshrrev_b32 v56, 2, v54
v_lshl_add_u32 v56, v55, 2, v56
v_bfe_u32 v57, v56, 1, 2
v_lshlrev_b32 v56, 7, v56
v_and_b32 v58, 3, v0
v_lshl_add_u32 v56, v58, 3, v56
s_lshl_b32 s{sT2}, s{sW}, 12
s_add_u32 s{sT2}, s{sT2}, {LDS_X}
v_add_u32 v56, s{sT2}, v56""")
    for x in range(4): c += L(f"v_xor_b32 v58, {x}, v57\nv_lshl_add_u32 v{va+x}, v58, 5, v56")
    c += L(f"""s_mul_i32 s{sT1}, s{sH}, 786432
s_add_u32 s{sT1}, s{sT1}, {1536*384}
s_mov_b32 s{sT0}, s{sT1}
s_mov_b32 s{sSpin}, 0""")
    for j in range(4): c += L(f"v_mov_b32 v{vNm+4*j}, 0xff800000")
    F.block("a", c)
    c = L("L_fb1:") + kload() + chains(0, lambda j: "0")
    for j in range(4):
        a = vS + j * 8; m = vNm + 4 * j
        c += L(f"v_max3_f32 v{m}, v{m}, v{a}, v{a+1}\nv_max3_f32 v{m}, v{m}, v{a+2}, v{a+3}")
    c += L(f"s_add_u32 s{sSpin}, s{sSpin}, 1\ns_cmp_lt_u32 s{sSpin}, 32\ns_cbranch_scc1 L_fb1")
    F.block("b", c)
    c = []
    for j in range(4):
        m = vNm + 4 * j
        c += xreduce(m, m + 1, "v_max_f32")
        c += L(f"v_sub_f32 v{m+1}, 0, v{m}\nv_sub_f32 v{m+2}, 0, v{m}\nv_sub_f32 v{m+3}, 0, v{m}\nv_sub_f32 v{m}, 0, v{m}\nv_mov_b32 v{vLs+j}, 0")
    for i in range(192): c.append(I(f"v_accvgpr_write_b32 a{i}, 0"))
    c += L(f"s_mov_b32 s{sT0}, s{sT1}\ns_mov_b32 s{sSpin}, 0")
    F.block("c", c)
    c = L("L_fb2:")
    for kt in range(2): c += kload() + chains(kt, lambda j: vr(vNm + 4 * j, 4)) + L("s_nop 7")
    for j in range(4):
        for kt in range(2):
            a = vS + (j * 2 + kt) * 4
            for i in range(4): c.append(I(f"v_exp_f32 v{a+i}, v{a+i}"))
            for i in range(4): c.append(I(f"v_add_f32 v{vLs+j}, v{vLs+j}, v{a+i}"))
            for i in range(2): c.append(I(f"v_cvt_pk_bf16_f32 v{vP+j*4+kt*2+i}, v{a+2*i}, v{a+2*i+1}"))
    for cg in range(3):
        for a in range(4):
            c += L(f"""s_add_u32 m0, s{sT2}, {1024*a}
s_add_u32 s{sOffP}, s{sT1}, {3072*a+128*cg}
buffer_load_dwordx4 v{vv}, {sr(sV_,4)}, s{sOffP} offen lds""")
        c += L("s_waitcnt vmcnt(0)")
        for x in range(4):
            for u in range(2): c.append(I(f"ds_read_b64_tr_b16 {vr(vK+4*x+2*u,2)}, v{va+x} offset:{2048*u}"))
        c += L("s_waitcnt lgkmcnt(0)")
        for x in range(4):
            for j in range(4):
                d = ar(((cg * 4 + x) * 4 + j) * 4, 4)
                c.append(mfma(d, vr(vK + 4 * x, 4), vr(vP + 4 * j, 4), d))
        c += L("s_nop 7")
    c += L(f"s_add_u32 s{sT1}, s{sT1}, 12288\ns_add_u32 s{sSpin}, s{sSpin}, 1\ns_cmp_lt_u32 s{sSpin}, 16\ns_cbranch_scc1 L_fb2")
    F.block("d", c)
    c = []
    for j in range(4): c += xreduce(vLs + j, vTmp + j, "v_add_f32")
    for j in range(4): c.append(I(f"v_rcp_f32 v{vLs+j}, v{vLs+j}"))
    c += L("s_nop 15\ns_branch L_fb_back")
    F.block("e", c)
    F.trace = [("a", {}), ("b", {}), ("b", {}), ("c", {}), ("d", {}), ("d", {}), ("e", {})]
    F.insert_waits(); F.fix_hazards()
    return F.text()


def gen(dbg=False):
    P = Prog()
    OUTL.clear(); AD.clear(); HST.clear(); OST.clear()
    for i in range(2): AD[vWa + i] = Addr(vWa + i, sbase(0)); AD[vKa + i] = Addr(vKa + i, 0)
    for i in range(4): AD[vVa + i] = Addr(vVa + i, 0)
    AD[vRa] = Addr(vRa, sbase(12)); AD[vGa] = Addr(vGa, sbase(27))
    AD[vOA] = Addr(vOA, obase(0)); AD[vOB] = Addr(vOB, obase(0)); AD[vDA] = Addr(vDA, obase(24)); AD[vDB] = Addr(vDB, obase(24))
    nblk = [0]
    def blk(ins, name=None):
        nm = name or f"b{nblk[0]}"; nblk[0] += 1
        P.block(nm, ins); P.trace.append((nm, {}))
    CPA = PAR("CPA", 10000)
    cp = [3]
    def sch(s, name, **kw):
        if name.startswith("p2_") or name.startswith("p1_"):
            if "nost" in KN: s = [x for x in s if not (x.kind == 'vmem' and 'store_dwordx4' in x.text)]
            if "norl" in KN: s = [x for x in s if not (x.kind == 'vmem' and f"s[{sR}:{sR+3}]" in x.text)]
            if "kvhit" in KN: s = [x for x in s if not x.text.startswith((f"s_add_u32 s{sOffK}, s{sOffK}, 12288", f"s_add_u32 s{sOffV}, s{sOffV}, 12288"))]
            if "nobar" in KN: s = [x for x in s if x.kind != 'barrier']
            if "novm" in KN: s = [x for x in s if not (x.kind == 'vmem' and 'dwordx4' in x.text and 'v[48:51]' not in x.text)]
            if "novalu" in KN and name.startswith("p2_"): s = [x for x in s if not (x.kind in ('valu', 'trans') and x.text.startswith(('v_exp', 'v_add_f32', 'v_cvt')))]
        if name.startswith("p3"):
            if "p3nost" in KN: s = [x for x in s if not (x.kind == 'vmem' and 'store_dwordx4' in x.text)]
            if "p3nob" in KN: s = [x for x in s if not (x.kind == 'vmem' and 'load_dwordx4' in x.text and ' lds' not in x.text and f"s{sOffB} " in x.text)]
            if "p3novalu" in KN: s = [x for x in s if not (x.kind == 'valu' and x.text.startswith(('v_accvgpr', 'v_mul_f32', 'v_cvt')))]
            if "p3plain" in KN:
                for x in s:
                    if 'store_dwordx4' in x.text: x.text = x.text.replace(" sc1", "")
            if "p3nt" in KN:
                for x in s:
                    if 'store_dwordx4' in x.text: x.text = x.text.replace(" sc1", " sc1 nt")
        pos = sum(isize(x) for b in P.blocks for x in b[1]) * 1.03
        end = pos + sum(isize(x) for x in s) * 1.03
        nm = sum(1 for x in s if x.kind == 'mfma')
        while "nocp" not in KN and cp[0] * 8192 < end + CPA and cp[0] < NSLICE:
            g = int(max(0, min(nm - 2, (cp[0] * 8192 - CPA - pos) / (end - pos) * nm)))
            k = next((i for i, x in enumerate(s) if x.kind == 'vmem' and x.after is not None and x.after > g), len(s))
            cpl = I(f"global_load_dword v{vDum}, v{vL16}, s[62:63]", after=g); cpl.writes = set()
            s = s[:k] + [cpl, I("s_add_u32 s62, s62, 0x2000"), I("s_addc_u32 s63, s63, 0")] + s[k:]
            cp[0] += 1
        if "jitter" in KN:
            k = nblk[0]
            blk(L(f"""s_memtime s[90:91]
s_waitcnt lgkmcnt(0)
s_mul_i32 s90, s90, {2654435761 & 0x7fffffff}
s_lshr_b32 s90, s90, 20
s_and_b32 s91, s90, 7
s_cmp_lg_u32 s91, 0
s_cbranch_scc1 L_j{k}b
s_lshr_b32 s90, s90, 3
s_and_b32 s90, s90, {PAR("JM", 127)}
L_j{k}:
s_sleep 1
s_sub_u32 s90, s90, 1
s_cmp_gt_i32 s90, 0
s_cbranch_scc1 L_j{k}
L_j{k}b:"""))
        blk(schedule(s, name, verbose=dbg and "v" in KN, **kw), name)
    CC = math.log2(math.e) / math.sqrt(192.0)
    if "cpold" in KN:
        CP0 = f"""s_and_b32 s{sT2}, s{sT2}, 15
s_min_u32 s{sT2}, s{sT2}, CODE_SLICES-1
s_lshl_b32 s{sT2}, s{sT2}, 13
v_add_u32 v52, s{sT2}, v{vL128}
global_load_dword a{aDum}, v52, s[62:63]"""
    else:
        CP0 = f"""s_min_u32 s{sT2}, s{sT2}, CODE_SLICES*8-1
s_lshl_b32 s{sT2}, s{sT2}, 10
v_add_u32 v52, s{sT2}, v{vL16}
global_load_dword a{aDum}, v52, s[62:63]"""
    c = L(f"""s_cmp_ge_u32 s2, 256
s_cbranch_scc1 L_end
s_load_dwordx16 s[64:79], s[0:1], 0
s_load_dwordx8 s[80:87], s[0:1], 64
s_memrealtime s[{sSt}:{sSt+1}]
s_getpc_b64 s[62:63]
v_lshrrev_b32 v30, 6, v0
v_and_b32 v0, 63, v0
v_readfirstlane_b32 s{sW}, v30
v_lshlrev_b32 v{vL16}, 4, v0
v_lshlrev_b32 v{vL128}, 7, v0
v_and_b32 v48, 7, v0
v_lshrrev_b32 v49, 3, v0
v_mul_u32_u24 v60, 1280, v48
v_lshl_add_u32 v50, v49, 4, v60
v_lshl_add_u32 v50, v30, 7, v50
s_mul_i32 s{sT0}, s2, {8*1280}
s_and_b32 s{sT1}, s2, 7
s_lshr_b32 s{sT2}, s2, 3
s_and_b32 s{sH}, s{sT2}, 3
s_lshl2_add_u32 s{sH}, s{sT1}, s{sH}
s_lshr_b32 s{sB}, s{sT2}, 2
s_lshr_b32 s{sS}, s{sT1}, 1
s_and_b32 s{sT1}, s{sT1}, 1
s_lshl1_add_u32 s{sMb}, s{sB}, s{sT1}
s_and_b32 s{sNb}, s{sT2}, 3
v_cmp_eq_u32 vcc, 0, v0
v_bfrev_b32 v51, 1
v_cndmask_b32 v{vFo}, v51, 0, vcc
v_cmp_gt_u32 vcc, 2, v30
v_add_u32 v53, 1024, v50
v_cndmask_b32 v53, v51, v53, vcc
s_lshl2_add_u32 s{sT2}, s{sT2}, s{sW}
{CP0}
v_lshrrev_b32 v54, 4, v0
v_and_b32 v55, 15, v0
v_and_b32 v61, 6, v49
v_xor_b32 v61, v61, v48
v_lshlrev_b32 v61, 4, v61
v_mul_u32_u24 v62, 1280, v49
v_add_u32 v{vRo2}, v62, v61
v_and_b32 v62, 4, v49
v_add_u32 v62, v62, v49
v_mul_u32_u24 v62, 3072, v62
v_add_u32 v{vRo}, v62, v61
s_lshl_b32 s{sM5}, s{sW}, 13
s_add_u32 s{sM4}, s{sM5}, {SLOT}
s_cmp_eq_u32 s{sW}, 3
s_cmov_b32 s{sM5}, {LDS_X + 4096}
s_lshl2_add_u32 s{sQg}, s{sB}, s{sW}
s_mul_i32 s{sOffBB}, s{sQg}, {64*1280}""")
    if STAMPS: c += L(f"v_mov_b32 v{vSt}, 0")
    c += L("s_waitcnt lgkmcnt(0)")
    c += srd(sXin, pX, 2048 * 640 * 2)
    c += L(f"""buffer_load_dwordx4 v[64:67], v50, {sr(sXin,4)}, s{sT0} offen {os.environ.get("XF_", "")}
buffer_load_dwordx4 v[68:71], v50, {sr(sXin,4)}, s{sT0} offen offset:512 {os.environ.get("XF_", "")}
buffer_load_dwordx4 v[72:75], v53, {sr(sXin,4)}, s{sT0} offen {os.environ.get("XF_", "")}
buffer_load_ushort v76, v60, {sr(sXin,4)}, s{sT0} offen""")
    c += srd(sR, pDbg, 256)
    c += L(f"""s_or_b32 s{sNonce}, s{sSt}, 1
v_mov_b32 v56, s{sNonce}
v_mov_b32 v57, 0
s_or_b32 s{sT1}, s2, s{sW}
s_cmp_eq_u32 s{sT1}, 0
s_cselect_b32 s{sT1}, 0, 0x100
buffer_atomic_cmpswap v[56:57], v{vFo}, {sr(sR,4)}, s{sT1} offen sc1""")
    c += stamp(0)
    def rawdma(ds):
        r = []
        for a in range(8):
            r += L(f"s_add_u32 m0, s{sM4 if ds == 0 else sM5}, {a*1024}\ns_add_u32 s{sOffA}, s{sOffBB}, {a*8*1280+128*ds}")
            r.append(I(f"buffer_load_dwordx4 v{vRo2}, {sr(sXin,4)}, s{sOffA} offen lds", tag_w=f"raw{ds}"))
        return r
    def inter(vm, fill):
        ch = split(vm); out = []; per = -(-len(fill) // len(ch))
        for k, cc in enumerate(ch): out += cc + fill[k * per:(k + 1) * per]
        return out
    f1 = []
    for n in range(3):
        f1.append(I(f"v_add_u32 v61, {64*n}, v0"))
        f1 += divmod_const(62, 63, 61, 24)
        f1 += L(f"""v_and_b32 v57, 6, v62
v_xor_b32 v57, v63, v57
v_lshlrev_b32 v57, 4, v57
v_subrev_u32 v57, {1024*n}, v57
v_and_b32 v59, 4, v62
v_add_u32 v59, v59, v62
v_mul_u32_u24 v59, 12288, v59
v_add_u32 v{vWo+n}, v59, v57""")
    f1 += srd(sWq, pWq, 640 * 6144 * 2) + srd(sWS, pWs, WS_SIZE)
    f1 += L(f"""s_lshr_b32 s{sT0}, s{sW}, 1
s_and_b32 s{sOffY}, s{sW}, 1
s_lshl_b32 s{sT2}, s{sT0}, 5
s_lshl2_add_u32 s{sT2}, s{sOffY}, s{sT2}
s_mul_i32 s{sOffX}, s{sT2}, 12288
s_mul_i32 s{sT2}, s{sH}, 384
s_add_u32 s{sOffX}, s{sOffX}, s{sT2}
s_mul_i32 s{sM6}, s{sW}, 6144""")
    f2 = L(f"""v_lshrrev_b32 v56, 2, v55
v_and_b32 v57, 3, v0
v_lshl_add_u32 v58, v54, 2, v56
v_bfe_u32 v59, v58, 1, 2
v_mul_u32_u24 v62, 384, v58
v_add_u32 v62, {sbase(0)}, v62
v_lshlrev_b32 v63, 1, v59
v_xor_b32 v63, v63, v57
v_lshl_add_u32 v{vWa}, v63, 4, v62
v_xor_b32 v63, 4, v63
v_lshl_add_u32 v{vWa+1}, v63, 4, v62
v_bfe_u32 v{vPa}, v0, 2, 3
v_lshlrev_b32 v{vPa}, 7, v{vPa}
v_lshl_add_u32 v{vPa}, v57, 2, v{vPa}
v_lshlrev_b32 v{vSo}, 3, v55
v_lshlrev_b32 v62, 7, v55
v_and_b32 v63, 6, v55
v_xor_b32 v63, v63, v54
v_lshl_add_u32 v{vXo2}, v63, 4, v62
v_xor_b32 v63, 4, v63
v_lshl_add_u32 v{vXo2+1}, v63, 4, v62
v_add_u32 v{vXo}, s{sM4}, v{vXo2}
v_add_u32 v{vXo+1}, s{sM4}, v{vXo2+1}
v_add_u32 v{vXo2}, s{sM5}, v{vXo2}
v_add_u32 v{vXo2+1}, s{sM5}, v{vXo2+1}
v_lshlrev_b32 v58, 3, v48
v_add_u32 v58, {LDS_X}, v58
v_lshl_add_u32 v59, v30, 6, v58
v_lshrrev_b32 v56, 2, v49
v_lshl_add_u32 v56, v30, 1, v56
v_lshlrev_b32 v56, 12, v56
v_and_b32 v57, 3, v49
v_lshl_add_u32 v56, v57, 8, v56
v_lshl_add_u32 v56, v48, 4, v56
v_add_u32 v57, {16*4096}, v56
v_cndmask_b32 v57, v51, v57, vcc
v_or_b32 v61, v49, v30
v_cmp_eq_u32 vcc, 0, v61
v_lshlrev_b32 v61, 3, v48
v_cndmask_b32 v61, v51, v61, vcc
s_lshr_b32 s{sT2}, s2, 3
s_mul_i32 s{sT2}, s{sT2}, {20*4096}
s_bfe_u32 s{sOffK}, s2, 0x20001
s_lshl_b32 s{sOffK}, s{sOffK}, 10
s_add_u32 s{sT2}, s{sT2}, s{sOffK}
s_and_b32 s{sOffK}, s2, 1
s_lshl_b32 s{sOffK}, s{sOffK}, 7
s_add_u32 s{sT2}, s{sT2}, s{sOffK}
s_add_u32 s{sOffK}, s{sT2}, {8*4096}
s_lshl_b32 s{sOffP}, s2, 6
s_add_u32 s{sOffP}, s{sOffP}, {hex(ST_OFF)}
s_lshr_b32 s{sSpin}, s{sW}, 1
s_sub_u32 s{sSpin}, s{sSpin}, 1
s_and_b32 s{sSpin}, s{sSpin}, 0x3f800000""")
    pfv = divmod_const(62, 63, 0, 3) + L(f"""v_mul_u32_u24 v62, 12288, v62
v_lshl_add_u32 v62, v63, 7, v62
v_cmp_gt_u32 vcc, 12, v0
v_cndmask_b32 v{vL128}, v51, v62, vcc
s_lshl_b32 s{sQd}, s{sQg}, 2
s_add_u32 s{sQd}, s{sQd}, 256
s_mul_i32 s{sQd}, s{sQd}, 12288
s_mul_i32 s{sOffG}, s{sH}, 384
s_add_u32 s{sQd}, s{sQd}, s{sOffG}""")
    f2 += pfv
    for i in range(4): f2.append(I(f"v_mov_b32 v{vOne+i}, 0x3f803f80"))
    c += inter(rawdma(0), f1)
    c += inter(dma_stage(0), f2)
    c += L(f"v_mov_b32 v60, 0\nbuffer_load_dword v{vNon}, v60, {sr(sR,4)}, 0 offen sc1\ns_mov_b32 s{sT1}, s{sOffY}\ns_mov_b32 s{sT3}, s{sOffK}")
    su0 = L(f"""s_lshl_b32 s{sFl}, s2, 7
s_lshl2_add_u32 s{sFl}, s{sW}, s{sFl}
s_add_u32 s{sFl}, s{sFl}, {hex(FXN)}
s_lshl_b32 s{sFg}, s{sQg}, 10
s_add_u32 s{sFg}, s{sFg}, {hex(FXN)}
s_lshl_b32 s{sScale}, s{sQg}, 9
s_add_u32 s{sScale}, s{sScale}, {hex(ST_OFF)}
s_mul_i32 s{sOffB}, s{sQg}, {20*4096}
s_add_u32 s{sOffB}, s{sOffB}, {4*4096}
s_mul_i32 s{sM3}, s{sW}, 3072
s_mul_i32 s{sOffK}, s{sH}, 786432
s_add_u32 s{sOffK}, s{sOffK}, {1536*384}
s_add_u32 s{sOffK}, s{sOffK}, s{sM3}
s_mov_b32 s{sOffV}, s{sOffK}
s_lshr_b32 s{sPf}, s2, 3
s_lshl2_add_u32 s{sPf}, s{sPf}, s{sW}
s_and_b32 s{sPf}, s{sPf}, 7
s_lshl_b32 s{sPf}, s{sPf}, 10
s_add_u32 s{sPf}, s{sPf}, {3*8192}
s_add_u32 s62, s62, s{sPf}
s_addc_u32 s63, s63, 0""") + srd(sK, pK, 32 * 2048 * 192 * 2) + srd(sV, pV, 32 * 2048 * 192 * 2)
    wpf = lambda: ([prefetch(sWq, f"s{sQd}")] + L(f"s_add_u32 s{sQd}, s{sQd}, {128*12288}")) if "nowpf" not in KN else []
    vu = []
    for n in range(3):
        vu.append(I(f"v_add_u32 v61, {64*n}, v0"))
        vu += divmod_const(62, 63, 61, 24)
        vu += L(f"""v_and_b32 v57, 6, v62
v_xor_b32 v57, v63, v57
v_lshlrev_b32 v57, 4, v57
v_subrev_u32 v57, {1024*n}, v57
v_mul_u32_u24 v58, 384, v62
v_add_u32 v{vVo+n}, v58, v57
v_lshrrev_b32 v59, 1, v62
v_lshl_add_u32 v59, s{sW}, 2, v59
v_and_b32 v59, 7, v59
v_xor_b32 v59, v63, v59
v_lshlrev_b32 v59, 4, v59
v_subrev_u32 v59, {1024*n}, v59
v_add_u32 v{vKo+n}, v58, v59""")
    vu += L(f"""v_lshrrev_b32 v56, 2, v55
v_and_b32 v57, 3, v0
v_lshl_add_u32 v58, v54, 2, v56
v_bfe_u32 v59, v58, 1, 2
v_mul_u32_u24 v62, 384, v58
v_lshl_add_u32 v62, v57, 3, v62""")
    for x in range(4): vu += L(f"v_xor_b32 v63, {x}, v59\nv_lshl_add_u32 v{vVa+x}, v63, 5, v62")
    vu += L(f"""v_lshlrev_b32 v62, 7, v58
v_lshl_add_u32 v62, v57, 3, v62
v_xor_b32 v63, s{sW}, v59
v_lshl_add_u32 v62, v63, 5, v62
v_add_u32 v{vRa}, {sbase(12)}, v62
v_add_u32 v{vGa}, {sbase(27)}, v{vL16}
v_mul_u32_u24 v62, 384, v55
v_lshrrev_b32 v63, 1, v55
v_xor_b32 v63, v63, v54
v_lshl_add_u32 v{vKa}, v63, 4, v62
v_xor_b32 v63, 4, v63
v_lshl_add_u32 v{vKa+1}, v63, 4, v62""")
    for i in range(4): vu.append(I(f"v_mov_b32 v{vLs+i}, 0"))
    xr = L(f"""v_and_b32 v61, 7, v0
v_lshrrev_b32 v62, 3, v0
v_mul_u32_u24 v63, 1280, v61
v_lshl_add_u32 v63, v62, 4, v63
s_mul_i32 s{sOffY}, s2, {8*1280}
s_lshl_b32 s{sPf}, s{sW}, 7
s_add_u32 s{sOffY}, s{sOffY}, s{sPf}
buffer_load_dwordx4 a[244:247], v63, {sr(sXin,4)}, s{sOffY} offen
buffer_load_dwordx4 a[248:251], v63, {sr(sXin,4)}, s{sOffY} offen offset:512
buffer_load_dwordx4 a[252:255], v63, {sr(sXin,4)}, s{sOffY} offen offset:1024""")
    xs = L(f"""v_lshrrev_b32 v63, 2, v62
v_lshlrev_b32 v63, 12, v63
v_and_b32 v62, 3, v62
v_lshl_add_u32 v63, v62, 8, v63
v_lshl_add_u32 v63, v61, 4, v63
s_lshr_b32 s{sOffY}, s2, 3
s_mul_i32 s{sOffY}, s{sOffY}, {20*4096}
s_bfe_u32 s{sPf}, s2, 0x20001
s_lshl_b32 s{sPf}, s{sPf}, 10
s_add_u32 s{sOffY}, s{sOffY}, s{sPf}
s_and_b32 s{sPf}, s2, 1
s_lshl_b32 s{sPf}, s{sPf}, 7
s_add_u32 s{sOffY}, s{sOffY}, s{sPf}
s_lshl_b32 s{sPf}, s{sW}, 13
s_add_u32 s{sOffY}, s{sOffY}, s{sPf}
s_add_u32 s{sOffY}, s{sOffY}, {hex(XR_OFF)}""")
    for i in range(3):
        if i == 2: xs += L(f"s_cmp_lt_u32 s{sW}, 2\ns_cselect_b32 s{sOffY}, s{sOffY}, 0x40000000")
        xs.append(I(f"buffer_store_dwordx4 {ar(244+4*i,4)}, v63, {sr(sWS,4)}, s{sOffY} offen sc1", tag_w="Gst"))
        if i < 2: xs += L(f"s_add_u32 s{sOffY}, s{sOffY}, {8*4096}")
    c += L("v_lshlrev_b32 v76, 16, v76\nv_mov_b32 v77, v76")
    for i in range(12):
        c += L(f"v_lshlrev_b32 v{80+2*i}, 16, v{64+i}\nv_and_b32 v{81+2*i}, 0xffff0000, v{64+i}")
        c += L(f"v_pk_add_f32 v[{112+2*i}:{113+2*i}], v[{80+2*i}:{81+2*i}], v[76:77] neg_lo:[0,1] neg_hi:[0,1]")
    for i in range(12):
        a = 104 if i < 8 else 108
        d = vr(112 + 2 * i, 2)
        if i in (0, 8): c += L(f"v_pk_mul_f32 v[{a+2}:{a+3}], {d}, {d}\nv_mov_b32 v{a}, v{112+2*i}\nv_mov_b32 v{a+1}, v{113+2*i}")
        else: c += L(f"v_pk_fma_f32 v[{a+2}:{a+3}], {d}, {d}, v[{a+2}:{a+3}]\nv_pk_add_f32 v[{a}:{a+1}], v[{a}:{a+1}], {d}")
    c += L(f"""v_add_f32 v104, v104, v105
v_add_f32 v105, v106, v107
v_add_f32 v108, v108, v109
v_add_f32 v109, v110, v111
v_fmac_f32 v104, s{sSpin}, v108
v_fmac_f32 v105, s{sSpin}, v109
s_nop 1
v_add_f32_dpp v104, v104, v104 row_ror:8 row_mask:0xf bank_mask:0xf
v_add_f32_dpp v105, v105, v105 row_ror:8 row_mask:0xf bank_mask:0xf""")
    ra, rb = xreduce(104, 106, "v_add_f32"), xreduce(105, 107, "v_add_f32")
    for x, y in zip(ra, rb): c += [x, y]
    c += L(f"""ds_write_b64 v59, v[104:105]
s_waitcnt lgkmcnt(0)
s_barrier
ds_read_b64 v[104:105], v58
ds_read_b64 v[106:107], v58 offset:64
ds_read_b64 v[108:109], v58 offset:128
ds_read_b64 v[110:111], v58 offset:192
v_pk_add_f32 v[104:105], v[104:105], v[106:107]
v_pk_add_f32 v[108:109], v[108:109], v[110:111]
v_pk_add_f32 v[104:105], v[104:105], v[108:109]
v_mul_f32 v104, {hex(f2u(1.0/640))}, v104
v_mul_f32 v105, {hex(f2u(1.0/640))}, v105
v_fma_f32 v105, -v104, v104, v105
v_max_f32 v105, 0, v105
v_add_f32 v104, v104, v76
v_cvt_pk_bf16_f32 v104, v105, v104
v_and_b32 v108, 0xffff0000, v104
v_mov_b32 v109, v108""")
    for i in range(12):
        d = vr(80 + 2 * i, 2)
        c += L(f"""v_pk_add_f32 {d}, {d}, v[108:109] neg_lo:[0,1] neg_hi:[0,1]
v_cvt_pk_bf16_f32 v{64+i}, v{80+2*i}, v{81+2*i}""")
        if i == 3: c.append(I(f"buffer_store_dwordx4 v[64:67], v56, {sr(sWS,4)}, s{sT2} offen sc1", tag_w="Xst"))
        if i == 7: c.append(I(f"buffer_store_dwordx4 v[68:71], v56, {sr(sWS,4)}, s{sT3} offen sc1", tag_w="Xst"))
        if i == 11: c.append(I(f"buffer_store_dwordx4 v[72:75], v57, {sr(sWS,4)}, s{sT2} offen sc1", tag_w="Xst"))
    c += L(f"""v_lshlrev_b32 v104, 16, v104
v_add_f32 v104, {hex(f2u(1e-5))}, v104
v_cvt_pk_bf16_f32 v104, v104, v104
v_lshlrev_b32 v104, 16, v104
v_sqrt_f32 v104, v104
v_xor_b32 v106, 0x80000000, v108
v_cvt_pk_bf16_f32 v104, v104, v104
v_lshlrev_b32 v104, 16, v104
v_rcp_f32 v104, v104
s_nop 0
v_mul_f32 v107, {hex(f2u(CC))}, v104""")
    c.append(I(f"buffer_store_dwordx2 v[106:107], v61, {sr(sWS,4)}, s{sOffP} offen sc1", tag_w="Xst"))
    c += stamp(1)
    c += raw_reads(0)
    c.append(barrier(["st0", "rawrd0"]))
    c += w_reads0(0) + w_reads0(1)
    c += L(f"""v_readfirstlane_b32 s{sNonce}, v{vNon}
s_nop 3
s_cmp_lg_u32 s{sNonce}, 0
s_cbranch_scc0 L_nonce
L_nonce_ok:""")
    OUTL.append(("nonce", L(f"""L_nonce:
s_mov_b32 s{sSpin}, {SPIN_MAX}
L_nonce2:
buffer_load_dword v{vNon}, v60, {sr(sR,4)}, 0 offen sc1
s_waitcnt vmcnt(0)
v_readfirstlane_b32 s{sNonce}, v{vNon}
s_nop 3
s_cmp_lg_u32 s{sNonce}, 0
s_cbranch_scc1 L_nonce_ok
s_sub_u32 s{sSpin}, s{sSpin}, 1
s_cmp_lg_u32 s{sSpin}, 0
s_cbranch_scc1 L_nonce2
s_branch L_nonce_ok""")))
    c += stamp(2)
    blk(c, "pro")
    RM = PAR("RM", 2)
    sQ3, sH3 = 100, 101
    pre3 = f"""s_and_b32 s{sT2}, s2, 7
s_lshr_b32 s{sT3}, s2, 3
s_and_b32 s{sQ3}, s{sT2}, {(1 << (3 - RM)) - 1}
s_lshl_b32 s{sQ3}, s{sQ3}, {RM}
s_lshr_b32 s{sH3}, s{sT3}, {5 - RM}
s_add_u32 s{sQ3}, s{sQ3}, s{sH3}
s_lshl2_add_u32 s{sQ3}, s{sQ3}, s{sW}
s_lshr_b32 s{sH3}, s{sT2}, {3 - RM}
s_lshl_b32 s{sH3}, s{sH3}, {5 - RM}
s_and_b32 s{sT3}, s{sT3}, {(1 << (5 - RM)) - 1}
s_add_u32 s{sH3}, s{sH3}, s{sT3}"""
    su = L(pre3) + L(f"""s_mul_i32 s{sOffG}, s{sH3}, {20*6144}
s_add_u32 s{sOffG}, s{sOffG}, s{sM6}
s_add_u32 s{sOffG}, s{sOffG}, {hex(GP_OFF)}
s_lshl_b32 s{sM1}, s{sW}, 10
s_mul_i32 s{sM5}, s{sW}, 5120
s_lshl_b32 s{sM4}, s{sW}, 12
s_mul_i32 s{sT2}, s{sQg}, {240*4096}
s_add_u32 s{sT2}, s{sT2}, {hex(OH_OFF)}
s_mul_i32 s{sT3}, s{sH}, {6*4096}
s_add_u32 s{sOffO}, s{sT2}, s{sT3}
s_mul_i32 s{sT2}, s{sQ3}, {240*4096}
s_add_u32 s{sT2}, s{sT2}, {hex(OH_OFF + 192*4096)}
s_mul_i32 s{sT3}, s{sH3}, 3""")
    for T3 in range(3):
        su += L(f"""s_lshr_b32 s{sSpin}, s{sT3}, 1
s_lshl_b32 s{sSpin}, s{sSpin}, 12
s_add_u32 s{sOffH+T3}, s{sT2}, s{sSpin}
s_and_b32 s{sSpin}, s{sT3}, 1
s_lshl_b32 s{sSpin}, s{sSpin}, 9
s_add_u32 s{sOffH+T3}, s{sOffH+T3}, s{sSpin}
s_add_u32 s{sT3}, s{sT3}, 1""")
    su += L(f"""s_sub_u32 s{sT2}, s2, 240
s_min_u32 s{sT2}, s2, s{sT2}""")
    su += sdivmod(sT3, sSpin, sT2, 10)
    su += L(f"""s_lshl_b32 s{sOffRo}, s{sT3}, 8
s_lshl3_add_u32 s{sOffRo}, s{sW}, s{sOffRo}
s_mul_i32 s{sOffRo}, s{sOffRo}, 1280
s_lshl_b32 s{sFl}, s{sSpin}, 7
s_add_u32 s{sOffRo}, s{sOffRo}, s{sFl}
s_lshl_b32 s{sOffRd}, s{sT3}, 6
s_lshl4_add_u32 s{sOffRd}, s{sT1}, s{sOffRd}
s_lshl3_add_u32 s{sOffRd}, s{sT0}, s{sOffRd}
s_mul_i32 s{sOffRd}, s{sOffRd}, 1280
s_add_u32 s{sOffRd}, s{sOffRd}, s{sFl}
s_lshl2_add_u32 s{sSpin}, s{sSpin}, s{sW}""")
    su += sdivmod(sFl, sOffP, sSpin, 10)
    su += L(f"""s_mul_i32 s{sFl}, s{sFl}, 192
s_lshl3_add_u32 s{sFl}, s{sT3}, s{sFl}
s_mul_i32 s{sFl}, s{sFl}, 10
s_add_u32 s{sFl}, s{sFl}, s{sOffP}
s_lshl_b32 s{sFl}, s{sFl}, 10
s_add_u32 s{sOffDo}, s{sFl}, {hex(WOP_OFF)}""")
    su += sdivmod(sFl, sOffP, sSpin, 5)
    su += L(f"""s_mul_i32 s{sFl}, s{sFl}, 48
s_lshl1_add_u32 s{sFl}, s{sT3}, s{sFl}
s_mul_i32 s{sFl}, s{sFl}, 5
s_add_u32 s{sFl}, s{sFl}, s{sOffP}
s_lshl_b32 s{sFl}, s{sFl}, 10
s_add_u32 s{sOffDd}, s{sFl}, {hex(WDP_OFF)}""")
    su2 = sdivmod(sT3, sSpin, sT2, 48)
    su2 += [L(f"""s_cmp_ge_u32 s{sSpin}, 24
s_cselect_b32 s{pBx}, s{pWu}, s{pWg}
s_cselect_b32 s{pBx+1}, s{pWu+1}, s{pWg+1}
s_cselect_b32 s{sT2}, 1, 0
s_cselect_b32 s{sFl}, 24, 0""")]
    su2 += L(f"""s_sub_u32 s{sSpin}, s{sSpin}, s{sFl}
s_lshl_b32 s{sOffR}, s{sT3}, 7
s_lshl4_add_u32 s{sOffR}, s{sT1}, s{sOffR}
s_lshl2_add_u32 s{sOffR}, s{sT0}, s{sOffR}
s_mul_i32 s{sOffR}, s{sOffR}, 3072
s_lshl_b32 s{sFl}, s{sSpin}, 7
s_add_u32 s{sOffR}, s{sOffR}, s{sFl}
s_lshl2_add_u32 s{sSpin}, s{sSpin}, s{sW}""")
    su2 += sdivmod(sFl, sOffP, sSpin, 3)
    su2 += L(f"""s_mul_i32 s{sFl}, s{sFl}, 20
s_lshl2_add_u32 s{sFl}, s{sT3}, s{sFl}
s_mul_i32 s{sFl}, s{sFl}, 6
s_lshl1_add_u32 s{sFl}, s{sOffP}, s{sFl}
s_add_u32 s{sFl}, s{sFl}, s{sT2}
s_lshl_b32 s{sFl}, s{sFl}, 10
s_add_u32 s{sOffD}, s{sFl}, {hex(GP_OFF)}
s_lshl_b32 s{sFg}, s2, 2
s_add_u32 s{sFg}, s{sFg}, {hex(FG)}""")
    su2 += [L(f"s_cmp_eq_u32 s{sW}, 0\ns_cselect_b32 s{sFg}, s{sFg}, 0x40000000")]
    su2 += L(f"""s_lshr_b32 s{sT2}, s{sH}, 3
s_lshl2_add_u32 s{sFl}, s{sQg}, s{sT2}
s_lshl_b32 s{sFl}, s{sFl}, 7
s_and_b32 s{sT2}, s{sH}, 7
s_lshl2_add_u32 s{sFl}, s{sT2}, s{sFl}
s_add_u32 s{sFl}, s{sFl}, {hex(FO)}
s_mul_i32 s{sOffA}, s{sNb}, 192
s_mul_i32 s{sT2}, s{sS}, 48
s_add_u32 s{sOffA}, s{sOffA}, s{sT2}
s_mul_i32 s{sOffA}, s{sOffA}, 10240
s_add_u32 s{sOffA}, s{sOffA}, s{sM5}
s_add_u32 s{sOffA}, s{sOffA}, {hex(WOP_OFF)}
s_lshl1_add_u32 s{sOffBB}, s{sMb}, s{sT1}
s_mul_i32 s{sOffBB}, s{sOffBB}, 240
s_add_u32 s{sOffBB}, s{sOffBB}, s{sT2}
s_add_u32 s{sOffBB}, s{sOffBB}, s{sT0}
s_lshl_b32 s{sOffBB}, s{sOffBB}, 12
s_add_u32 s{sOffBB}, s{sOffBB}, {hex(OH_OFF)}
s_lshr_b32 s{sT2}, s{sS}, 1
s_lshl1_add_u32 s{sQd}, s{sMb}, s{sT2}""") + srd(sR, pBx, 640 * 1536 * 2)
    def weave(vm, sal):
        ch = split(vm); out = []
        per = -(-len(sal) // len(ch))
        for k, cc in enumerate(ch):
            out += cc
            for y in sal[k * per:(k + 1) * per]: out += y if isinstance(y, list) else [y]
        return out
    XH = PAR("XH", 15)
    XF = PAR("XF", 50); XQ = PAR("XQ", 110)
    q0a = pace(rawdma(1) + dma_stage(1), 0, PAR("Q0", 44)) + pace(dma_stage(2) + wpf() + dma_stage(3) + wpf(), 56, XH * 10 - 2)
    fl = set_flag(f"s{sFl}", "Xst", after=XF); pl_ = poll_load(vPd, vPa, f"s{sFg}", after=XQ)
    ch = split(q0a)
    for x in (fl, pl_):
        k = next((i for i, cc in enumerate(ch) if [y for y in cc if y.kind == 'vmem'][0].after > x.after), len(ch))
        ch.insert(k, [x])
    for k in range(8, 14): ch[k] = ch[k] + su0[(k - 8) * 1:(k - 7) * 1]
    ch[15] = ch[15] + su0[6:13]; ch[16] = ch[16] + su0[13:21]; ch[17] = ch[17] + su0[21:]
    for cc in ch:
        for x in cc: x.reads.discard('stg')
    sch(p1_first(0, XH, extra=[x for cc in ch for x in cc] + vu), "p1_0a", vm_min=3)
    fs = lambda k: blk(stamp(k)) if "fine1" in KN else None
    fs(14)
    blk(poll_cmp(vPd, 1) + poll_branch("xn", vPd, vPa, f"s{sFg}"))
    fs(15)
    bl = lambda k: b_loads(('a', 64 * (k % 2))) + b_loads(('a', 64 * (k % 2) + 32))
    sch(p1_first(XH, 24, extra=pace(bl(1), 0, 56)), "p1_0b", vm_min=3); fs(16)
    sch(p1_quad(1, vm=weave(dma_stage(4) + dma_stage(5) + wpf() + stat_loads() + bl(2), su)), "p1_1"); fs(17)
    sch(p1_quad(2, vm=weave(dma_stage(6) + dma_stage(7) + bl(3), su2)), "p1_2"); fs(18)
    sch(p1_quad(3, vm=dma_stage(8) + dma_stage(9) + bl(4) + dma_stage(10)), "p1_3")
    if "stagtest" in KN:
        blk(L(f"""s_and_b32 s{sSpin}, s{sH}, 1
s_mul_i32 s{sSpin}, s{sSpin}, 150
L_stag:
s_cmp_eq_u32 s{sSpin}, 0
s_cbranch_scc1 L_stag2
s_sleep 1
s_sub_u32 s{sSpin}, s{sSpin}, 1
s_branch L_stag
L_stag2:"""))
    blk(stamp(3))
    MERGE = "nomerge" not in KN
    big = p1_quad(4, vm=dma_stage(11) + dma_stage(12)) + first_tile(192) + p2_iter(0, base=192 + 48)
    nbig = 336
    if not MERGE:
        sch(big, "p1_last"); big = []; nbig = 0
    blk(stamp(4))
    XP = PAR("XP", 9)
    for t in range(1, 14):
        ex = []; post = []; btag = []
        if "tlb" in KN and t == PAR("TT", 8):
            x = I(f"buffer_load_dword v{vDum}, v60, {sr(sWS,4)}, 0 offen"); x.writes = set()
            ex += L(f"v_lshlrev_b32 v60, {PAR('TS', 21)}, v0") + [x]
        if t == 1: ex += xr
        if t == 3: ex += xs
        if t == 6: btag = ["Gst"]
        if t == 7: ex += [set_flag(f"s{sFg}", None)] + L(f"s_add_u32 s{sFg}, s{sFg}, {FW-FG}")
        if t == 10: ex += L(f"s_mov_b32 s{sT0}, {hex(FG)}") + [poll_load(vTmp, vL16, f"s{sT0}", 4)]
        if t == 12: post += late(poll_cmp(vTmp, 4), nbig + 60)
        XN_ = PAR("XN", 2)
        if "xpf" in KN and XP <= t <= 13:
            if t == XP: ex += L(f"""s_and_b32 s{sPf}, s{sH}, 3
s_lshl_b32 s{sPf}, s{sPf}, 11
s_mul_i32 s{sT2}, s{sQg}, {20*4096}
s_add_u32 s{sPf}, s{sPf}, s{sT2}""")
            for k in range(XN_):
                if (t - XP) * XN_ + k < 10:
                    for o in (0, 1024):
                        x = I(f"buffer_load_dwordx4 v[60:63], v{vL16}, {sr(sWS,4)}, s{sPf} offen offset:{o} sc1")
                        if (t - XP) * XN_ + k < 9 or o == 0: x.writes = set()
                        ex.append(x)
                    ex += L(f"s_add_u32 s{sPf}, s{sPf}, 8192")
        big += p2_iter(t, base=nbig, extra=ex, post=post, btag=btag); nbig += 96
        if not MERGE or t == 12:
            sch(big, f"p2_{t}"); big = []; nbig = 0
        if t == 12 and "stagtest" not in KN: blk(poll_branch("g", vTmp, vL16, f"s{sT0}", 4))
    blk(stamp(5))
    sch(big + p2_iter(14, base=nbig, btag=["Wst"]) + tail_pv(nbig + 96), "tail", vm_min=3)
    blk(L("s_cbranch_vccnz L_fb\nL_fb_back:") + stamp(6))
    steps = p3_steps()
    setup = L(f"""v_and_b32 v{vT}, 32, v0
v_lshlrev_b32 v{vT}, 4, v{vT}
v_add_u32 v{vT}, v{vT}, v{vL16}
s_and_b32 s{sT3}, s{sW}, 1
s_lshl1_add_u32 s{sT1}, s{sMb}, s{sT3}
s_lshl2_add_u32 s{sT1}, s{sT1}, s{sS}
s_lshl_b32 s{sT1}, s{sT1}, 7
s_add_u32 s{sT1}, s{sT1}, {hex(FO)}
v_and_b32 v{vFa}, 7, v0
v_lshlrev_b32 v{vFa}, 2, v{vFa}
s_mul_i32 s{sT3}, s{sT3}, 5120
s_add_u32 s{sT3}, s{sT3}, {obase(0)}
v_add_u32 v{vOA}, s{sT3}, v{vL16}
s_lshr_b32 s{sT2}, s{sW}, 1
s_lshl_b32 s{sT2}, s{sT2}, 12
s_add_u32 s{sT2}, s{sT2}, {20480+obase(0)}
v_add_u32 v{vOB}, s{sT2}, v{vL16}
v_add_u32 v{vDA}, {obase(24)}, v{vL16}
s_and_b32 s{sT2}, s{sW}, 1
s_lshl_b32 s{sT2}, s{sT2}, 12
v_add_u32 v{vWr}, s{sT2}, v{vL16}
s_mov_b32 s{sOffR}, s{sOffA}
s_and_b32 s{sT2}, s{sH}, 7
s_mul_i32 s{sT3}, s{sT2}, {3*20480}
s_add_u32 s{sOffA}, s{sOffA}, s{sT3}
s_mov_b32 s{sAend}, s{sOffA}
s_add_u32 s{sAbeg}, s{sOffA}, {3*20480}
s_mul_i32 s{sT3}, s{sT2}, {3*8192}
s_add_u32 s{sBend}, s{sOffBB}, s{sT3}
s_add_u32 s{sBbeg}, s{sBend}, {3*8192}""")
    def ownw(sg):
        base = obase(sg) + 20480
        r = L(f"s_lshr_b32 s{sT2}, s{sW}, 1\ns_xor_b32 s{sT2}, s{sT2}, s{sMb}\ns_bitcmp1_b32 s{sT2}, 0\ns_cbranch_scc1 L_ow{sg}\nv_add_u32 v38, {base}, v{vWr}")
        for ks in range(2):
            for j in range(4):
                x = I(f"ds_write_b128 v38, {ar((8*(2*sg+ks)+j)*4,4)} offset:{ks*8192+j*1024}"); x.kind = 'wait'; r.append(x)
        x = I("s_waitcnt lgkmcnt(0)"); x.kind = 'label'; r.append(x)
        return r + L(f"L_ow{sg}:")
    for k in range(9):
        body = (setup if k == 3 else []) + join_steps(steps[k:k+1] if k < 8 else steps[8:])
        if k == 8:
            body += [I("s_barrier", tag_r="ot0", wr=['stg'], rd=['stg2'], after=48 + 26)] + o_reads(0)
        sch(body, f"p3s{k}", vm_min=2)
        if k == WC and "stagtest" not in KN: blk(poll_cmp(vFl, 4) + poll_branch("w", vFl, vL16, f"s{sT0}", 4))
        if k == OC and "stagtest" not in KN: blk(poll_cmp(vFo2, 1) + poll_branch("o", vFo2, vFa, f"s{sT1}"))
        if k in (5, 6, 7): blk(ownw(k - 5))
        if "fine" in KN: blk(stamp(14 + k))
    c = stamp(7) + stamp(8)
    if OC == 9:
        c += dmaB(0) + dmaB(1) + dmaB(2)
        c.append(I("s_barrier", tag_r="ot0"))
        c += o_reads(0)
    c += stamp(9)
    blk(c, "o_pro")
    osetup = L(f"""s_lshl_b32 s{sT1}, s{sMb}, 8
s_add_u32 s{sT1}, s{sT1}, {hex(FH)}
v_lshlrev_b32 v{vFa}, 2, v0
s_and_b32 s{sT2}, s{sS}, 1
s_lshl1_add_u32 s{sT2}, s{sNb}, s{sT2}
s_lshr_b32 s{sT3}, s{sS}, 1
s_lshl1_add_u32 s{sOffRo}, s{sT2}, s{sT3}
s_mul_i32 s{sOffRo}, s{sOffRo}, {24*5120}
s_lshl_b32 s{sM3}, s{sW}, 13
s_add_u32 s{sOffRo}, s{sOffRo}, s{sM3}
s_add_u32 s{sOffRo}, s{sOffRo}, {hex(WDP_OFF)}
s_mul_i32 s{sT2}, s{sT2}, 160
s_lshl2_add_u32 s{sOffO}, s{sQd}, s{sW}
s_mul_i32 s{sOffO}, s{sOffO}, {16*1280}
s_add_u32 s{sOffO}, s{sOffO}, s{sT2}
s_mul_i32 s{sT3}, s{sT3}, 24
s_add_u32 s{sT3}, s{sT3}, 192
s_lshl_b32 s{sT3}, s{sT3}, 12
s_add_u32 s{sT3}, s{sT3}, s{sM1}
s_add_u32 s{sT3}, s{sT3}, {hex(OH_OFF)}
s_xor_b32 s{sOffRd}, s{sQd}, 1
s_mul_i32 s{sOffRd}, s{sOffRd}, {240*4096}
s_add_u32 s{sOffRd}, s{sOffRd}, s{sT3}
s_mul_i32 s{sOffG}, s{sQd}, {240*4096}
s_add_u32 s{sOffG}, s{sOffG}, s{sT3}
s_lshl2_add_u32 s{sT0}, s{sMb}, s{sNb}
s_lshl2_add_u32 s{sT3}, s{sT0}, s{sS}
s_lshl2_add_u32 s{sT2}, s{sT3}, s{sW}
s_mul_i32 s{sOffP}, s{sT2}, 10240
s_add_u32 s{sOffP}, s{sOffP}, {hex(PART_OFF)}
s_lshl2_add_u32 s{sFl}, s{sT0}, s{sW}
s_lshl_b32 s{sFl}, s{sFl}, 7
s_lshl2_add_u32 s{sFl}, s{sS}, s{sFl}
s_add_u32 s{sFl}, s{sFl}, {hex(FP)}
v_and_b32 v{vOa}, 15, v0
v_mul_u32_u24 v{vOa}, 1280, v{vOa}
v_lshrrev_b32 v{vPo}, 4, v0
v_lshl_add_u32 v{vOa}, v{vPo}, 3, v{vOa}
v_and_b32 v{vFa2}, 7, v0
v_lshlrev_b32 v{vFa2}, 2, v{vFa2}""") + srd(sOut, pOut, 2048 * 640 * 2) + L(f"""s_lshl_b32 s{sFg}, s{sT3}, 7
s_add_u32 s{sFg}, s{sFg}, {hex(FP)}
s_lshl4_add_u32 s{sT2}, s{sT0}, s{sS}
s_mul_i32 s{sOffK}, s{sT2}, 10240
s_add_u32 s{sOffK}, s{sOffK}, {hex(PART_OFF)}
s_lshl2_add_u32 s{sT2}, s{sT3}, s{sW}
s_mul_i32 s{sOffD}, s{sT2}, 2560
s_add_u32 s{sOffD}, s{sOffD}, {hex(HP_OFF)}
s_xor_b32 s{sT2}, s{sT2}, 8
s_mul_i32 s{sOffDo}, s{sT2}, 2560
s_add_u32 s{sOffDo}, s{sOffDo}, {hex(HP_OFF)}
s_xor_b32 s{sOffDd}, s{sFg}, 0x100
s_lshl2_add_u32 s{sOffDd}, s{sW}, s{sOffDd}
s_add_u32 s{sOffDd}, s{sOffDd}, 16""")
    assert len(osetup) <= 60
    opoll = L(f"s_mov_b32 s{sOffB}, s{sT1}\nv_mov_b32 v39, v{vFa}") + [poll_load(vFo2, 39, f"s{sOffB}")]
    for sg in range(4):
        ex = []; dbo = None
        if EARLY:
            if sg == 0: dbo = dmaB(3) + dmaA(3) + dmaB(4)
            if sg == 1: dbo = dmaA(4) + dmaB(5) + dmaA(5)
        else:
            if sg == 0: dbo = dmaA(3) + dmaA(4)
            if sg == 1: dbo = dmaB(3) + dmaB(4) + dmaB(5) + dmaA(5)
        if sg == 2: ex = HST[:3] + L(f"s_mov_b32 s{sOffV}, {hex(FW2)}") + [poll_load(48, vL16, f"s{sOffV}", 4)]
        if sg == 3: ex = HST[3:] + L(f"s_add_u32 s{sQg}, s{sQg}, {hex(FH)}")
        pre = ([] if EARLY else opoll) + L(f"s_lshl_b32 s{sQg}, s{sQ3}, 7\ns_lshl2_add_u32 s{sQg}, s{sH3}, s{sQg}") if sg == 0 else []
        sch(o_block(sg, ex, pre=pre, mid=osetup[sg * 15:(sg + 1) * 15], dbo=dbo), f"o{sg}", vm_min=2)
        if sg == 0 and not EARLY: blk(poll_cmp(vFo2, 1) + poll_branch("o", vFo2, 39, f"s{sOffB}"))
        if "fine2" in KN: blk(stamp(16 + sg))
    base_state = {r: AD[r].base for r in (vOA, vOB)}
    if "fine2" in KN: blk(stamp(14))
    P.block("ol_top", L(f"s_mov_b32 s{sH}, 0") + L(".p2align 6\nL_o:")); P.trace.append(("ol_top", {}))
    lb = []
    NIT = PAR('NIT', 4)
    for q in range(4):
        ex = L(f"s_cmp_eq_u32 s{sH}, {NIT-1}\ns_cselect_b32 s{sT2}, s{sT1}, 0x40000000") + [poll_load(vFl, vFa, f"s{sT2}")] if q == 0 else []
        if q == 3: ex = L(f"s_cmp_eq_u32 s{sH}, 0\ns_cselect_b32 s{sT2}, s{sQg}, 0x40000000") + [set_flag(f"s{sT2}", "Hst")]
        b = o_block(4 + q, ex)
        for x in b:
            for attr in ('tag_r', 'tag_w'):
                t = getattr(x, attr)
                if t is None: continue
                if t == "Hst": continue
                ts = t if isinstance(t, list) else [t]
                setattr(x, attr, (lambda ts: lambda env: [u[:2] + str(int(u[2:]) + 4 * env['it']) for u in ts])(ts))
        if "ohitA" in KN: b = [x for x in b if not x.text.startswith(f"s_add_u32 s{sOffA}, s{sOffA}")]
        if "ohitB" in KN: b = [x for x in b if not x.text.startswith(f"s_add_u32 s{sOffBB}, s{sOffBB}")]
        if "onods" in KN: b = [x for x in b if x.kind != 'ds']
        if "onodma" in KN: b = [x for x in b if not (x.kind == 'vmem' and ' lds' in x.text)]
        if "onobar" in KN: b = [x for x in b if x.kind != 'barrier']
        if "onosc1" in KN:
            for x in b:
                if ' lds' in x.text: x.text = x.text.replace(" sc1", "")
        b = schedule(b, f"ol{q}", verbose=dbg and "v" in KN, vm_min=3)
        if q == 3: b += L(f"s_add_u32 s{sH}, s{sH}, 1\ns_cmp_lt_u32 s{sH}, {NIT}\ns_cbranch_scc1 L_o")
        P.block(f"ol{q}", b)
    assert base_state == {r: AD[r].base for r in (vOA, vOB)}, "loop address state"
    for it in range(NIT): P.trace += [(f"ol{q}", {'it': it}) for q in range(4)]
    if "rewind" in KN:
        pos = sum(isize(x) for b_ in P.blocks for x in b_[1]) * 1.03
        new = int(pos + 1500) // 8192
        if new < cp[0]:
            blk(L(f"s_sub_u32 s62, s62, {(cp[0]-new)*8192}\ns_subb_u32 s63, s63, 0")); cp[0] = new
    if "fine2" in KN: blk(stamp(15))
    blk(poll_cmp(48, 4) + poll_branch("w2", 48, vL16, f"s{sOffV}", 4))
    blk(poll_cmp(vFl, 1) + poll_branch("h", vFl, vFa, f"s{sT1}"))
    dsetup = L(f"""s_lshl_b32 s{sT2}, s{sW}, 11
v_add_u32 v45, s{sT2}, v{vL16}
s_lshr_b32 s{sT2}, s{sW}, 1
s_lshl_b32 s{sT2}, s{sT2}, 10
s_and_b32 s{sT3}, s{sW}, 1
s_lshl3_add_u32 s{sT2}, s{sT3}, s{sT2}
s_add_u32 s{sT2}, s{sT2}, 8192
v_add_u32 v46, s{sT2}, v{vL16}
v_add_u32 v47, {LDS_X}, v{vL16}
v_and_b32 v38, 15, v0
v_mul_u32_u24 v38, 1280, v38
v_bfe_u32 v39, v0, 4, 1
v_lshl_add_u32 v38, v39, 5, v38
v_lshrrev_b32 v39, 5, v0
v_lshl_add_u32 v38, v39, 4, v38
s_cmp_eq_u32 s{sW}, s{sS}
s_cmov_b32 s{sOffP}, 0x40000000""")
    NB1 = [int(x) for x in os.environ.get("NB1", "4,4,5,5").split(",")]
    nb1 = 0
    dsetup += L(f"s_mov_b32 s{sOffBB}, s{sOffG}\nv_lshlrev_b32 v37, 3, v0")
    for sg in range(20, 24):
        ex = [x for k in range(nb1, nb1 + NB1[sg - 20]) for x in d_bload(0, k)]; nb1 += NB1[sg - 20]
        sch(o_block(sg, ex, mid=dsetup if sg == 23 else []), f"o{sg}", vm_min=2)
    blk(stamp(10))
    vQ4, vQ2, vLw, vOw = 45, 46, 47, 38
    def pk(dst, t, j):
        a = vAc + (t * 4 + j) * 4
        return L(f"v_cvt_pk_bf16_f32 v{dst}, v{a}, v{a+1}\nv_cvt_pk_bf16_f32 v{dst+1}, v{a+2}, v{a+3}")
    pkall = []; ps = []; n = 0
    for j in range(4):
        for tp in range(2):
            o = vPk + n * 4
            pkall += pk(o, 2 * tp, j) + pk(o + 2, 2 * tp + 1, j)
            it = [I(f"buffer_store_dwordx4 {vr(o,4)}, v{vL16}, {sr(sWS,4)}, s{sOffP} offen offset:{(n%4)*1024} sc1", tag_w="Pst")]
            n += 1
            if n % 4 == 0: it.append(I(f"s_add_u32 s{sOffP}, s{sOffP}, 4096"))
            ps.append(it)
    for jp in range(2):
        o = vPk + n * 4
        pkall += pk(o, 4, 2 * jp) + pk(o + 2, 4, 2 * jp + 1)
        ps.append([I(f"buffer_store_dwordx4 {vr(o,4)}, v{vL16}, {sr(sWS,4)}, s{sOffP} offen offset:{jp*1024} sc1", tag_w="Pst")])
        n += 1
    own = L(f"s_cmp_lg_u32 s{sW}, s{sS}\ns_cbranch_scc1 L_own")
    for k in range(10):
        x = I(f"ds_write_b128 v{vLw}, {vr(vPk+4*k,4)} offset:{1024*k}"); x.kind = 'wait'; own.append(x)
    x = I("s_waitcnt lgkmcnt(0)"); x.kind = 'label'; own.append(x)
    own += L("L_own:")
    xl = L(f"""s_and_b32 s{sT2}, s{sS}, 1
s_lshl1_add_u32 s{sT2}, s{sNb}, s{sT2}
s_mul_i32 s{sT2}, s{sT2}, 10
s_mul_i32 s{sT3}, s{sQd}, {20*4096}
s_add_u32 s{sT3}, s{sT3}, s{sM1}
s_add_u32 s{sT3}, s{sT3}, {hex(XR_OFF)}
v_bfe_u32 v2, v0, 4, 1
v_lshrrev_b32 v3, 5, v0
v_lshl_add_u32 v4, v2, 1, v3
v_add_u32 v4, s{sT2}, v4
v_and_b32 v5, 15, v0
v_lshlrev_b32 v5, 4, v5
v_lshrrev_b32 v6, 2, v4
v_lshl_add_u32 v6, v6, 12, v5
v_and_b32 v4, 3, v4
v_lshl_add_u32 v6, v4, 8, v6
v_add_u32 v7, 4096, v6
v_add_u32 v4, s{sT2}, v3
v_add_u32 v4, 8, v4
v_lshrrev_b32 v8, 2, v4
v_lshl_add_u32 v8, v8, 12, v5
v_and_b32 v4, 3, v4
v_lshl_add_u32 v8, v4, 8, v8
v_lshl_add_u32 v8, v2, 3, v8
buffer_load_dwordx4 {vr(vXr,4)}, v6, {sr(sWS,4)}, s{sT3} offen sc1
buffer_load_dwordx4 {vr(vXr+4,4)}, v7, {sr(sWS,4)}, s{sT3} offen sc1
buffer_load_dwordx2 {vr(vXr+8,2)}, v8, {sr(sWS,4)}, s{sT3} offen sc1
s_lshl2_add_u32 s{sT2}, s{sQd}, s{sW}
s_lshl_b32 s{sT2}, s{sT2}, 7
s_add_u32 s{sT2}, s{sT2}, {hex(ST_OFF)}
v_lshrrev_b32 v9, 1, v5
buffer_load_dword v10, v9, {sr(sWS,4)}, s{sT2} offen offset:4 sc1""")
    pl = []
    for i in range(1, 4):
        pl += L(f"s_add_u32 s{sT2}, s{sS}, {i}\ns_and_b32 s{sT2}, s{sT2}, 3\ns_mul_i32 s{sT2}, s{sT2}, {4*10240}\ns_add_u32 s{sT2}, s{sT2}, s{sOffK}")
        for tp in range(2): pl.append(I(f"buffer_load_dwordx4 {vr(vPl+i*12+tp*4,4)}, v{vQ4}, {sr(sWS,4)}, s{sT2} offen offset:{1024*tp} sc1"))
        pl.append(I(f"buffer_load_dwordx2 {vr(vPl+i*12+8,2)}, v{vQ2}, {sr(sWS,4)}, s{sT2} offen sc1"))
    ownrd = L(f"""v_add_u32 v{vLw}, {LDS_X}, v{vQ4}
ds_read_b128 {vr(vPl,4)}, v{vLw}
ds_read_b128 {vr(vPl+4,4)}, v{vLw} offset:1024
v_add_u32 v{vLw}, {LDS_X}, v{vQ2}
ds_read_b64 {vr(vPl+8,2)}, v{vLw}""")
    t0 = 112; vSm = 164; vXf = 184
    xun = []
    for tp in range(2):
        for i in range(2): xun.append(I(f"v_permlane16_swap_b32 v{vXr+4*tp+i}, v{vXr+4*tp+2+i}"))
    for k in range(10): xun += L(f"v_lshlrev_b32 v{vXf+2*k}, 16, v{vXr+k}\nv_and_b32 v{vXf+2*k+1}, 0xffff0000, v{vXr+k}")
    k2 = (math.sqrt(192.0) / math.log2(math.e)) ** 2
    xun += L(f"v_mul_f32 v10, v10, v10\nv_mul_f32 v10, {hex(f2u(k2))}, v10\nv_mul_f32 v11, {hex(f2u(-math.log2(math.e)))}, v10")
    own0 = []
    for k in range(10): own0 += L(f"v_lshlrev_b32 v{vSm+2*k}, 16, v{vPl+k}\nv_and_b32 v{vSm+2*k+1}, 0xffff0000, v{vPl+k}\nv_mul_f32 v{vSm+2*k}, v10, v{vSm+2*k}\nv_mul_f32 v{vSm+2*k+1}, v10, v{vSm+2*k+1}")
    psum = []
    for i in range(1, 4):
        for k in range(10):
            s_ = vPl + i * 12 + k; u = 132 + (k % 4) * 2
            psum += L(f"v_lshlrev_b32 v{u}, 16, v{s_}\nv_and_b32 v{u+1}, 0xffff0000, v{s_}\nv_fmac_f32 v{vSm+2*k}, v10, v{u}\nv_fmac_f32 v{vSm+2*k+1}, v10, v{u+1}")
    fin = []
    for t in range(5):
        h = vDc + 4 * t
        for i in range(4): fin += L(f"v_mul_f32 v{t0+4*t+i}, v11, v{h+i}\nv_exp_f32 v{t0+4*t+i}, v{t0+4*t+i}")
        for i in range(4): fin += L(f"v_mul_f32 v{h+i}, v{h+i}, v{vSm+4*t+i}")
        for i in range(4): fin += L(f"v_add_f32 v{t0+4*t+i}, 1.0, v{t0+4*t+i}\nv_rcp_f32 v{t0+4*t+i}, v{t0+4*t+i}")
        for i in range(4): fin.append(I(f"v_fmac_f32 v{vXf+4*t+i}, v{h+i}, v{t0+4*t+i}"))
        for i in range(2): fin.append(I(f"v_cvt_pk_bf16_f32 v{vXr+2*t+i}, v{vXf+4*t+2*i}, v{vXf+4*t+2*i+1}"))
        if t in (1, 3):
            tp = t // 2
            for i in range(2): fin.append(I(f"v_permlane16_swap_b32 v{vXr+4*tp+i}, v{vXr+4*tp+2+i}"))
            fin.append(I(f"buffer_store_dwordx4 {vr(vXr+4*tp,4)}, v{vOw}, {sr(sOut,4)}, s{sOffO} offen offset:{64*tp}"))
    fin.append(I(f"buffer_store_dwordx2 {vr(vXr+8,2)}, v{vOa}, {sr(sOut,4)}, s{sOffO} offen offset:128"))
    flat = lambda l: [x for it in l for x in it]
    hs = []
    for t in range(5):
        for i in range(2): hs.append(I(f"v_cvt_pk_bf16_f32 v{vHp+2*t+i}, v{vDo+4*t+2*i}, v{vDo+4*t+2*i+1}"))
        if t in (1, 3): hs.append(I(f"buffer_store_dwordx4 {vr(vHp+2*t-2,4)}, v{vL16}, {sr(sWS,4)}, s{sOffD} offen offset:{(t//2)*1024} sc1", tag_w="Pst"))
    hs.append(I(f"buffer_store_dwordx2 {vr(vHp+8,2)}, v37, {sr(sWS,4)}, s{sOffD} offen offset:2048 sc1", tag_w="Pst"))
    hl = [I(f"buffer_load_dwordx4 {vr(vHr+4*k,4)}, v{vL16}, {sr(sWS,4)}, s{sOffDo} offen offset:{1024*k} sc1") for k in range(2)]
    hl.append(I(f"buffer_load_dwordx2 {vr(vHr+8,2)}, v37, {sr(sWS,4)}, s{sOffDo} offen offset:2048 sc1"))
    hadd = []
    for k in range(10):
        u = 132 + (k % 4) * 2
        hadd += L(f"v_lshlrev_b32 v{u}, 16, v{vHr+k}\nv_and_b32 v{u+1}, 0xffff0000, v{vHr+k}\nv_add_f32 v{vDc+2*k}, v{vDc+2*k}, v{u}\nv_add_f32 v{vDc+2*k+1}, v{vDc+2*k+1}, v{u+1}")
    f3 = lambda k: blk(stamp(14 + k)) if "fine3" in KN else None
    B1 = [d_bload(0, k) for k in range(nb1, 24)]; B2 = [d_bload(1, k) for k in range(24)]
    psq = [pkall[4 * k:4 * k + 4] + ps[k] for k in range(10)]
    cfg = [[int(y) for y in x.split(".")] for x in os.environ.get("DC", "3.5.0,3.5.0,0.0.9,0.0.9,0.0.6").split(",")]
    def take(c_):
        q = [[B1.pop(0) for _ in range(c_[0])], [psq.pop(0) for _ in range(c_[1])], [B2.pop(0) for _ in range(c_[2])]]
        return flat(merge(q))
    PFG = PAR("PFG", 2)
    owndone = False
    for g in range(4):
        ex = take(cfg[g])
        XE = PAR("XE", 0)
        if XE and g == 3: ex = ex + xl
        if g == PFG: ex = ex + [set_flag(f"s{sFl}", "Pst")]
        sch(d_block(0, g, ex), f"d0{g}", vm_min=1)
        if not psq and not owndone: blk(own); owndone = True; assert g < 2
        f3(g)
    for x in hs:
        if x.tag_w: x.tag_w = "Qst"
    pollP = L(f"v_and_b32 v12, 12, v{vFa2}") + [poll_load(vFl, 12, f"s{sFg}")]
    setH = L(f"s_lshl2_add_u32 s{sT1}, s{sW}, s{sFg}\ns_add_u32 s{sT1}, s{sT1}, 16\nv_mov_b32 v13, 0")
    blk(hs); f3(4)
    PP = PAR("PP", 0)
    PC = PAR("PC", 1)
    QP = PAR("QP", 3)
    chkP = lambda: blk(poll_cmp(vFl, 1) + poll_branch("p", vFl, 12, f"s{sFg}") + pl)
    pq = [poll_load(16, 13, f"s{sT1}")]
    QF = PAR("QF", 1)
    qf = [set_flag(f"s{sOffDd}", "Qst")]
    sch(d_block(1, 0, (pollP if PP == 0 else []) + take(cfg[4]) + ([] if XE else xl) + (qf if QF == 0 else []), ownrd + setH), "d10", vm_min=1); f3(5)
    assert not B1 and not B2 and not psq
    if PC == 0: chkP()
    sch(d_block(1, 1, (qf if QF == 1 else []) + (pollP if PP == 1 else [])), "d11", vm_min=1); f3(6)
    if PC == 1: chkP()
    f3(7)
    PSK = PAR("PSK", 40)
    sch(d_block(1, 2, pq if QP == 2 else [], xun + own0 + (psum[:PSK] if PC == 0 else [])), "d12", vm_min=1); f3(8)
    chkQ = lambda: blk(poll_cmp(16, 1) + poll_branch("q", 16, 13, f"s{sT1}") + hl)
    if QP == 2: chkQ()
    rest = psum[PSK:] if PC == 0 else psum
    PSJ = PAR("PSJ", 0)
    sch(d_block(1, 3, pq if QP == 3 else [], rest[:PSJ]), "d13", vm_min=1); f3(9)
    if QP == 3: chkQ()
    f3(10)
    blk(stamp(11))
    blk(rest[PSJ:] + hadd + fin)
    c = []
    c += stamp_store(13)
    amp = os.environ.get("AMP")
    if amp and STAMPS:
        k1, k2, mult = map(int, amp.split(","))
        cy = 1 if mult == 0 else 0
        first = f"v_readlane_b32 s{sT0}, v{vSt}, {2*k1+cy}" if k1 >= 0 else f"s_mov_b32 s{sT0}, s{sNonce}"
        c += L(f"""{first}
v_readlane_b32 s{sT1}, v{vSt}, {2*k2+cy}
v_readlane_b32 s{sT2}, v{vSt}, 26
s_nop 4
s_sub_u32 s{sT0}, s{sT1}, s{sT0}
{f"s_mul_i32 s{sT0}, s{sT0}, {mult}" if mult else f"s_lshr_b32 s{sT0}, s{sT0}, 2"}
s_min_u32 s{sT0}, s{sT0}, 100000
L_amp:
s_memrealtime s[{sSt}:{sSt+1}]
s_waitcnt lgkmcnt(0)
s_sub_u32 s{sT1}, s{sSt}, s{sT2}
s_cmp_lt_u32 s{sT1}, s{sT0}
s_cbranch_scc1 L_amp""")
    c += L("L_end:\ns_endpgm")
    blk(c, "fin")
    for nm, ins in OUTL: P.block(nm, ins)
    P.insert_waits()
    n = P.fix_hazards(verbose=False)
    if dbg:
        tot, per = P.estimate()
        agg = {}
        for k, v in per.items():
            kk = k.rstrip('0123456789') if k[0] in 'od' or k.startswith('p1_') or k.startswith('p2_') else k
            agg[kk] = agg.get(kk, 0) + v
        print("; estimate", tot, agg, "pads", n)
    return P.text() + "\n" + gen_fallback()

def build(path, dbg=False):
    body = gen(dbg)
    body = "\n".join(l.strip() for l in body.split("\n"))
    txt = f"""; @launch grid=(256,1,1) block=(256,1,1) lds={LDS_TOTAL}
.amdgcn_target "amdgcn-amd-amdhsa--gfx950"
.text
.globl {KNAME}
.p2align 8
.type {KNAME},@function
{KNAME}:
L_code_begin:
{body}
L_code_end:
.set CODE_SLICES, (L_code_end-L_code_begin+8191)/8192
.fill 2112, 4, 0xbf800000
s_endpgm
.section .rodata,"a"
.p2align 6
.amdhsa_kernel {KNAME}
  .amdhsa_next_free_vgpr 512
  .amdhsa_next_free_sgpr 102
  .amdhsa_accum_offset 256
  .amdhsa_group_segment_fixed_size 0
  .amdhsa_kernarg_size 96
  .amdhsa_user_sgpr_count 2
  .amdhsa_user_sgpr_kernarg_segment_ptr 1
  .amdhsa_system_sgpr_workgroup_id_x 1
  .amdhsa_float_denorm_mode_32 3
.end_amdhsa_kernel
"""
    open(path, "w").write(txt)

if __name__ == "__main__":
    if "--stamps" in sys.argv:
        STAMPS = True; sys.argv.remove("--stamps")
    build(sys.argv[1], dbg=True)
```

```python
import sys, math, struct, os
from asmlib import *
KN = set(os.environ.get("KN", "").split(","))
def PAR(name, default): return type(default)(os.environ.get(name, default))
NAME = "recurrent_scan__sliding_block_cached__glu_gated_bilinear__prompt"
KNAME = NAME + "_kernel"
XN_OFF = 0; OH_OFF = 0x400000; GP_OFF = 0x2200000; WOP_OFF = 0x2600000; WDP_OFF = 0x2E00000; PART_OFF = 0x3000000
FL_OFF = 0x3A00000
FXN = FL_OFF; FO = FL_OFF + 0x8000; FH = FL_OFF + 0x10000; FP = FL_OFF + 0x18000; FG = FL_OFF + 0x20000; FW = FL_OFF + 0x21000; FW2 = FL_OFF + 0x22000; ST_OFF = FL_OFF + 0x30000
XR_OFF = 0x3B00000; HP_OFF = 0x3E00000
WS_SIZE = 0x4100000
STAMP_OFF = 0x8000000
SLOT = 28672; SL2 = 36864
LDS_X = 147456
LDS_TOTAL = 163840
STAMPS = False
SPIN_MAX = 200000
PSTR = 24576; LN_X = 86016
def sbase(st):
    if st < 10: return (114688 if (st // 2) % 2 == 0 else 0) + (st % 2) * PSTR
    if st <= 26: return (st % 4) * SLOT
    return {27: 114688, 28: 139264, 29: 86016, 30: 0, 31: 36864}[st]
OPERM = [3, 2, 0, 1]
def obase(sg): return OPERM[sg % 4] * SL2

def f2u(x): return struct.unpack('<I', struct.pack('<f', x))[0]
def vr(a, n): return f"v[{a}:{a+n-1}]" if n > 1 else f"v{a}"
def ar(a, n): return f"a[{a}:{a+n-1}]" if n > 1 else f"a{a}"
def sr(a, n): return f"s[{a}:{a+n-1}]" if n > 1 else f"s{a}"
def rr(x, n=4): return vr(x[1], n) if x[0] == 'v' else ar(x[1], n)
def L(txt): return [I(t) for t in txt.strip().split("\n") if t.strip()]
def mfma(d, a, b, c): return I(f"v_mfma_f32_16x16x32_bf16 {d}, {a}, {b}, {c}")

sWq, sK, sWS, sR = 4, 8, 12, 16
(sOffX, sOffY, sOffK, sOffV, sM6, sM3, sM1, sOffB, sH, sB, sW, sT0, sT1, sT2, sOffO, sScale,
 sOffG, sOffH0, sOffH1, sOffH2, sNonce, sOffR, sOffD, sOffRo, sOffRd, sOffDo, sOffDd,
 sS, sMb, sNb, sFl, sSpin, sT3, sOffP, sQg, sFg, sOffA, sOffBB, sM5, sM4, sPf, sQd) = range(20, 62)
sOffH = sOffH0
pX, pK, pV, pWq, pWo, pBx, pWg, pWu, pWd, pOut, pDbg, pWs = range(64, 88, 2)
sSt = 88; sV = 92; sXin = 96
sOut = sWq
vL16 = 1; vWo = 2; vKo = 5; vVo = 8; vRo = 11; vRo2 = 12; vL128 = 13; vFo = 14; vNon = 15
vRa = 16; vWa = 17; vKa = 19; vVa = 21; vGa = 25
vLs = 26; vT = 36; vSt = 31; vNm = 32; vTmp = 48
vAcc = 64; vQ = 64
vS01 = 160; vS23 = 176; vP01 = 208; vP23 = 224; vVs = 232
aK = 192; aR = 240; aA1 = 128; aDum = 255; aCs = 160
vOne = 48; vSta = 40; vCsT = 52; vXo = 44; vXo2 = 46; vSo = 32; vPa = 42; vPd = 43
vDum = 30
NSLICE = 10

class Addr:
    def __init__(self, reg, base): self.reg = reg; self.base = base
    def use(self, base, off):
        pre = []
        d = base + off - self.base
        if not (0 <= d < 65536):
            pre = [I(f"v_add_u32 v{self.reg}, {hex((base - self.base) & 0xffffffff)}, v{self.reg}")]
            self.base = base; d = off
        return pre, d
AD = {}
def dsr(op, dst, reg, base, off, **kw):
    pre, d = AD[reg].use(base, off)
    return pre + [I(f"{op} {dst}, v{reg} offset:{d}", **kw)]

def srd(d, base, size):
    return [I(f"s_mov_b32 s{d}, s{base}"), I(f"s_mov_b32 s{d+1}, s{base+1}"), I(f"s_mov_b32 s{d+2}, {hex(size)}"), I(f"s_mov_b32 s{d+3}, 0x20000")]
def xreduce(v, t, op):
    return L(f"""v_mov_b32 v{t}, v{v}
v_permlane16_swap_b32 v{v}, v{t}
{op} v{v}, v{v}, v{t}
v_mov_b32 v{t}, v{v}
v_permlane32_swap_b32 v{v}, v{t}
{op} v{v}, v{v}, v{t}""")
def divmod_const(q, r, src, c):
    magic = (65536 + c - 1) // c
    for x in range(1400): assert (x * magic) >> 16 == x // c
    return L(f"v_mul_u32_u24 v{q}, {magic}, v{src}\nv_lshrrev_b32 v{q}, 16, v{q}\nv_mul_u32_u24 v{r}, {c}, v{q}\nv_sub_u32 v{r}, v{src}, v{r}")
def sdivmod(q, r, src, c):
    magic = (65536 + c - 1) // c
    for x in range(1400): assert (x * magic) >> 16 == x // c
    return L(f"s_mul_i32 s{q}, s{src}, {magic}\ns_lshr_b32 s{q}, s{q}, 16\ns_mul_i32 s{r}, s{q}, {c}\ns_sub_u32 s{r}, s{src}, s{r}")

def stamp(k):
    if not STAMPS: return []
    return L(f"""s_memrealtime s[{sSt}:{sSt+1}]
s_memtime s[{sSt+2}:{sSt+3}]
s_waitcnt lgkmcnt(0)
v_writelane_b32 v{vSt}, s{sSt}, {2*k}
v_writelane_b32 v{vSt}, s{sSt+2}, {2*k+1}""")
def stamp_store(n):
    if not STAMPS: return []
    return stamp(n - 1) + L("s_waitcnt vmcnt(0)") + stamp(n) + L(f"""s_add_u32 s{sK}, s{pWs}, {hex(STAMP_OFF)}
s_addc_u32 s{sK+1}, s{pWs+1}, 0
s_mov_b32 s{sK+2}, {1024*256}
s_mov_b32 s{sK+3}, 0x20000
s_lshl2_add_u32 s{sT0}, s2, s{sW}
s_lshl_b32 s{sT0}, s{sT0}, 8
v_lshlrev_b32 v2, 2, v0
buffer_store_dword v{vSt}, v2, {sr(sK,4)}, s{sT0} offen""")

OUTL = []
def poll_load(dst, vaddr, soff, n=1, **kw):
    op = "buffer_load_dword" if n == 1 else "buffer_load_dwordx4"
    return I(f"{op} {vr(dst,n)}, v{vaddr}, {sr(sWS,4)}, {soff} offen sc1", **kw)
def poll_cmp(dst, n):
    if n == 1: return L(f"v_cmp_ne_u32 vcc, s{sNonce}, v{dst}")
    return L(f"""v_xor_b32 v{dst}, s{sNonce}, v{dst}
v_xor_b32 v{dst+1}, s{sNonce}, v{dst+1}
v_xor_b32 v{dst+2}, s{sNonce}, v{dst+2}
v_xor_b32 v{dst+3}, s{sNonce}, v{dst+3}
v_or3_b32 v{dst}, v{dst}, v{dst+1}, v{dst+2}
v_or_b32 v{dst}, v{dst}, v{dst+3}
v_cmp_ne_u32 vcc, 0, v{dst}""")
def poll_branch(name, dst, vaddr, soff, n=1):
    o = L(f"L_spin_{name}:\ns_mov_b32 s{sSpin}, {SPIN_MAX}\nL_spin2_{name}:")
    o += [poll_load(dst, vaddr, soff, n)] + L("s_waitcnt vmcnt(0)") + poll_cmp(dst, n)
    o += L(f"""s_nop 4
s_cbranch_vccz L_back_{name}
s_sleep 1
s_sub_u32 s{sSpin}, s{sSpin}, 1
s_cmp_lg_u32 s{sSpin}, 0
s_cbranch_scc1 L_spin2_{name}
s_branch L_back_{name}""")
    OUTL.append((f"spin_{name}", o))
    return L(f"s_cbranch_vccnz L_spin_{name}\nL_back_{name}:")
def late(lst, g):
    for x in lst: x.after = g
    return lst
def set_flag(soff, tag, **kw):
    return I(f"buffer_store_dword v{vNon}, v{vFo}, {sr(sWS,4)}, {soff} offen sc1", tag_r=tag, **kw)

RF = os.environ.get("RF", "nt"); WQF = os.environ.get("WQF", "")
KVF = os.environ.get("KVF", "nt")
def grp3(st, srdn, vo, so, mreg, moff, inc, flags=""):
    r = [I(f"s_add_u32 m0, s{mreg}, {sbase(st)+moff}")]
    for n in range(3):
        v = vo + n if vo != vL16 else vL16
        r.append(I(f"buffer_load_dwordx4 v{v}, {sr(srdn,4)}, s{so} offen offset:{1024*n} {flags} lds", tag_w=f"st{st}", rd=['stg']))
    if inc: r.append(I(f"s_add_u32 s{so}, s{so}, {inc}"))
    return r
def dma_stage(st):
    r = []
    if st <= 9:
        r += grp3(st, sWq, vWo, sOffX, sM6, 0, 16 * 12288, WQF) + grp3(st, sWq, vWo, sOffX, sM6, 3072, 48 * 12288, WQF)
    elif st <= 26:
        t = st - 10
        if t <= 15: r += grp3(st, sK, vKo, sOffK, sM3, 0, 12288, KVF)
        if t >= 1: r += grp3(st, sV, vVo, sOffV, sM3, 12288, 12288, KVF)
        u = st - 12
        if 0 <= u < 14:
            if u == 4: r += srd(sR, pWo, 6144 * 640 * 2)[:3] + L(f"s_mov_b32 s{sOffR}, s{sOffRo}")
            if u == 12: r += srd(sR, pWd, 1536 * 640 * 2)[:3] + L(f"s_mov_b32 s{sOffR}, s{sOffRd}")
            r.append(I(f"s_add_u32 m0, s{sM1}, {sbase(st)+24576}"))
            r.append(I(f"buffer_load_dwordx4 v{vRo if u < 4 else vRo2}, {sr(sR,4)}, s{sOffR} offen {RF} lds", tag_w=f"st{st}", rd=['stg']))
            r.append(I(f"s_add_u32 s{sOffR}, s{sOffR}, {32*3072 if u < 4 else 32*1280}"))
    else:
        r += grp3(st, sWS, vL16, sOffG, sM6, 0, 3072, "sc1") + grp3(st, sWS, vL16, sOffG, sM6, 3072, 24576 - 3072, "sc1")
    return r
def pace(lst, lo, hi):
    vm = [x for x in lst if x.kind == 'vmem']
    for k, x in enumerate(vm): x.after = int(lo + k * (hi - lo) / len(vm))
    return lst
def barrier(tag, after=None): return I("s_barrier", tag_r=tag, wr=['stg'], after=after)

def acc1(T, j): return vAcc + ((T // 2) * 4 + j) * 8 + (T % 2) * 4
def w_reads(k, T):
    slot = aA1 + (T % 2) * 16
    p, t = T // 2, T % 2
    r = []
    for ks in range(4):
        for u in range(2): r += dsr("ds_read_b64_tr_b16", ar(slot + ks * 4 + u * 2, 2), vWa + p % 2, sbase(2 * k), (ks // 2) * PSTR + (ks % 2) * 12288 + u * 6144 + (p // 2) * 128 + 8 * t, rd=['stg'], tag_w=f"wr{k}")
    return r
def b_loads(base):
    r = []
    for u in range(2):
        for j in range(4):
            r.append(I(f"buffer_load_dwordx4 {rr((base[0], base[1]+(u*4+j)*4))}, v{vL16}, {sr(sWS,4)}, s{sOffB} offen offset:{1024*j} sc1"))
        r.append(I(f"s_add_u32 s{sOffB}, s{sOffB}, 4096"))
    return r
def k_reads(st, kt):
    r = []
    for s in range(6): r += dsr("ds_read_b128", ar(aK + kt * 24 + s * 4, 4), vKa + s % 2, sbase(st), kt * 6144 + (s // 2) * 128, rd=['stg'], tag_w=f"vr{st}")
    return r
def v_reads(st, T):
    r = []
    for u in range(2): r += dsr("ds_read_b64_tr_b16", vr(vVs + (T % 6) * 4 + u * 2, 2), vVa + T % 4, sbase(st), 12288 + u * 6144 + (T // 4) * 128, rd=['stg'], tag_w=f"vr{st}")
    return r
def prefetch(srdn, soff, flags=""):
    x = I(f"buffer_load_dword v{vDum}, v{vL128}, {sr(srdn,4)}, {soff} offen {flags}"); x.writes = set(); return x

def csreg(T): return aCs + T * 4
def p1_quad(k, T0=0, T1=12, vm=(), vmspan=None, extra=()):
    last = k == 4
    per = 20 if k == 0 else 16
    n = (T1 - T0) * per
    s = []
    vm = list(vm)
    if any(x.kind == 'vmem' for x in vm): pace(vm, *(vmspan or (1, n - 20)))
    s += vm + list(extra)
    for T in range(T0, T1):
        if T + 1 < 12: s += w_reads(k, T + 1)
        else:
            s.append(barrier([f"st{2*k+2}", f"wr{k}"] + ([f"st{2*k+3}"] if not last else []), after=n - per - 1))
            s += w_reads(k + 1, 0) if not last else k_reads(10, 0)
        slot = aA1 + (T % 2) * 16
        for j in range(4):
            d = vr(acc1(T, j), 4)
            for ks in range(4):
                s.append(mfma(d, ar(slot + ks * 4, 4), ar(64 * (k % 2) + (ks * 4 + j) * 4, 4), "0" if (k == 0 and ks == 0) else d))
        if k == 0:
            d = ar(csreg(T), 4)
            for ks in range(4): s.append(mfma(d, ar(slot + ks * 4, 4), vr(vOne, 4), d if ks else "0"))
        if k in (2, 3) and T % 2 == k - 2:
            t = vCsT + ((T // 2) % 2) * 4
            for i in range(4): s.append(I(f"v_accvgpr_read_b32 v{t+i}, a{csreg(T)+i}"))
            for j in range(4):
                for i in range(4): s.append(I(f"v_fmac_f32 v{acc1(T,j)+i}, v{t+i}, v{vSta+2*j}"))
        if last and T % 2 == 1:
            p = T // 2
            for j in range(4):
                a = acc1(2 * p, j); q = vQ + (p * 4 + j) * 4
                for i in range(8): s.append(I(f"v_mul_f32 v{a+i}, v{vSta+2*j+1}, v{a+i}"))
                for i in range(4): s.append(I(f"v_cvt_pk_bf16_f32 v{q+i}, v{a+2*i}, v{a+2*i+1}"))
    return s
def w_reads0(n):
    h, T = n // 12, n % 12
    slot = aA1 + (n % 4) * 8
    p, t = T // 2, T % 2
    r = []
    for ks in range(2):
        for u in range(2): r += dsr("ds_read_b64_tr_b16", ar(slot + ks * 4 + u * 2, 2), vWa + p % 2, sbase(0), h * PSTR + ks * 12288 + u * 6144 + (p // 2) * 128 + 8 * t, rd=['stg'], tag_w="wr0")
    return r
def raw_reads(h):
    return [I(f"ds_read_b128 {ar(((2*h+ks)*4+j)*4,4)}, v{(vXo if h == 0 else vXo2) + ks} offset:{j*2048}", tag_r=f"raw{h}", tag_w=f"rawrd{h}") for j in range(4) for ks in range(2)]
def p1_first(n0, n1, extra=()):
    s = list(extra)
    for n in range(n0, n1):
        h, T = n // 12, n % 12
        if n == 8: s += late(raw_reads(1), (8 - n0) * 10)
        if n == 10: s.append(barrier(["st1"], after=(10 - n0) * 10 - 4))
        if n + 2 < 24: s += w_reads0(n + 2)
        elif n == 23:
            s.append(barrier(["st2", "st3", "wr0"], after=(22 - n0) * 10))
            s += w_reads(1, 0)
        slot = aA1 + (n % 4) * 8
        for j in range(4):
            d = vr(acc1(T, j), 4)
            for ks in range(2): s.append(mfma(d, ar(slot + ks * 4, 4), ar(((2 * h + ks) * 4 + j) * 4, 4), "0" if (h == 0 and ks == 0) else d))
        d = ar(csreg(T), 4)
        for ks in range(2): s.append(mfma(d, ar(slot + ks * 4, 4), vr(vOne, 4), "0" if (h == 0 and ks == 0) else d))
    return s
def stat_loads():
    return [I(f"buffer_load_dwordx2 {vr(vSta+2*j,2)}, v{vSo}, {sr(sWS,4)}, s{sScale} offen offset:{128*j} sc1") for j in range(4)]

def Sreg(kt, j, t):
    if j < 2: return (vTmp if t == 0 else vS01) + (j * 2 + kt) * 4
    return vS23 + (t % 2) * 16 + ((j - 2) * 2 + kt) * 4
def Preg(j, t):
    if j < 2: return vP01 + (t % 2) * 8 + j * 4
    return (vTmp + 8 if t == 15 else vP23) + (j - 2) * 4
def qk(kt, t):
    s = []
    for j in range(4):
        d = vr(Sreg(kt, j, t), 4)
        for p in range(6):
            c = d if p else ("0" if (t == 0 and kt == 0) else vr(vNm + 4 * j, 4))
            s.append(mfma(d, ar(aK + kt * 24 + p * 4, 4), vr(vQ + (p * 4 + j) * 4, 4), c))
    return s
def softmax(j, t):
    s = []
    for kt in range(2):
        a = Sreg(kt, j, t)
        for i in range(4): s.append(I(f"v_exp_f32 v{a+i}, v{a+i}"))
        for i in range(4): s.append(I(f"v_add_f32 v{vLs+j}, v{vLs+j}, v{a+i}"))
        for i in range(2): s.append(I(f"v_cvt_pk_bf16_f32 v{Preg(j,t)+kt*2+i}, v{a+2*i}, v{a+2*i+1}"))
    return s
def pv_T(T, t):
    s = []
    for j in range(4):
        d = ar((T * 4 + j) * 4, 4)
        s.append(mfma(d, vr(vVs + (T % 6) * 4, 4), vr(Preg(j, t), 4), "0" if t == 0 else d))
    return s

G4T = PAR('G4T', 0)
def p2_iter(t, base=0, extra=(), post=(), btag=()):
    st = 11 + t
    s = []
    s += k_reads(st, 1)
    u = st - 12
    if u >= 0:
        for h in range(2): s += dsr("ds_read_b64_tr_b16", ar(aR + 2 * h, 2), vRa, sbase(st), 24576 + 2048 * h, rd=['stg'])
    s += pace(dma_stage(st + 3 if st + 3 <= 26 else st + 5) + list(extra), base + 2, base + PAR("HP", 72))
    if t > 0: s += softmax(2, t) + softmax(3, t)
    s += qk(0, t + 1) + qk(1, t + 1)
    for T in range(6): s += v_reads(st, T)
    s += softmax(0, t + 1) + softmax(1, t + 1)
    if t == 14: s += softmax(2, 15) + softmax(3, 15)
    for T in range(12):
        s += pv_T(T, t)
        if T < 6: s += v_reads(st, T + 6)
        if T == 5:
            s.append(barrier([f"st{st+1}", f"vr{st}"] + list(btag), after=base + PAR("HB", 78)))
            if t < 14: s += k_reads(st + 1, 0)
            if u >= 0:
                if u == 4: s += L(f"s_mov_b32 s{sOffD}, s{sOffDo}")
                if u == 12: s += L(f"s_mov_b32 s{sOffD}, s{sOffDd}")
                s.append(I(f"buffer_store_dwordx4 {ar(aR,4)}, v{vL16}, {sr(sWS,4)}, s{sOffD} offen sc1", after=base + 84, tag_w="Gst" if u < 4 else "Wst" if u < 12 else "Dst"))
                s.append(I(f"s_add_u32 s{sOffD}, s{sOffD}, {6144 if u < 4 else 10240 if u < 12 else 5120}"))
        if t == 14 and T >= 6: s += v_reads(st + 1, T - 6)
    s += list(post)
    return s

def first_tile(base):
    s = []
    s += k_reads(10, 1)
    s += pace(dma_stage(13), base + 2, base + 30)
    s += qk(0, 0)
    for j in range(4):
        a = Sreg(0, j, 0); m = vNm + 4 * j; t = m + 1
        s += L(f"v_max3_f32 v{m}, v{a}, v{a+1}, v{a+2}\nv_max_f32 v{m}, v{m}, v{a+3}")
        s += xreduce(m, t, "v_max_f32")
        s += L(f"v_sub_f32 v{m+1}, 0, v{m}\nv_sub_f32 v{m+2}, 0, v{m}\nv_sub_f32 v{m+3}, 0, v{m}\nv_sub_f32 v{m}, 0, v{m}")
        for i in range(4): s.append(I(f"v_add_f32 v{a+i}, v{a+i}, v{m}"))
    s.append(barrier(["st11", "vr10"], after=base + 28))
    s += k_reads(11, 0)
    s += qk(1, 0)
    for j in range(4): s += softmax(j, 0)
    return s

vGA = 160; vOP = 184
BBUF = [('a', 192), ('a', 224), ('v', 208)]
def g_reads(n, tagr='stg', pos=None):
    ds, grp = n // 6, n % 6
    slot = vGA + ((n if pos is None else pos) % 3) * 8
    r = []
    for ks in range(2): r += dsr("ds_read_b128", vr(slot + ks * 4, 4), vGa, sbase(27 + ds // 2), (((ds % 2) * 2 + ks) * 6 + grp) * 1024, rd=[tagr], tag_w=f"gr{27 + ds // 2}")
    return r
def acc3(grp, j): return vAcc + (grp * 4 + j) * 4

def tail_pv(base):
    s = L(f"s_mul_i32 s{sOffB}, s100, {20*4096}")
    wf = set_flag(f"s{sFg}", None, rd=['stg'])
    s += pace([wf] + L(f"s_add_u32 s{sFg}, s{sFg}, {FW2-FW}") + b_loads(BBUF[0]), base - 11, base + 16)
    for T in range(12):
        s += pv_T(T, 15)
        if T < 6: s += v_reads(26, T + 6)
        if T == 5:
            s += g_reads(0) + g_reads(1)
            s += pace(b_loads(BBUF[1]) + (dma_stage(31) if G4T else []), base + 16, base + 48)
    for j in range(4): s += xreduce(vLs + j, vTmp + j, "v_add_f32")
    s += L(f"""v_add_f32 v{vTmp}, v{vLs}, v{vLs+1}
v_add_f32 v{vTmp+1}, v{vLs+2}, v{vLs+3}
v_add_f32 v{vTmp}, v{vTmp}, v{vTmp+1}
v_cmp_ngt_f32 vcc, {hex(f2u(2.0**40))}, v{vTmp}""")
    for j in range(4): s.append(I(f"v_rcp_f32 v{vLs+j}, v{vLs+j}"))
    return s

def split(lst):
    ch = []; cur = []
    for x in lst:
        cur.append(x)
        if x.kind == 'vmem': ch.append(cur); cur = []
    if cur: ch[-1] += cur
    return ch
def merge(qs):
    qs = [list(q) for q in qs]
    w = [len(q) for q in qs]; tot = sum(w); acc = [0.0] * len(qs); seq = []
    for k in range(tot):
        for z in range(len(qs)): acc[z] += w[z]
        z = max((z for z in range(len(qs)) if qs[z]), key=lambda z: acc[z])
        acc[z] -= tot; seq.append(qs[z].pop(0))
    return seq

vOA = 32; vOB = 33; vDA = 34; vDB = 35
vOa = 40; vPo = 41; vFa = 42; vFa2 = 43; vFl = 44
vAc = 64; vDc = 144; vPk = 164; vXr = 204; vPl = 64
def fA(e, t, ks): return e * 72 + (t * 2 + ks) * 4
def fB(e, j, ks): return 40 + e * 72 + (ks * 4 + j) * 4
def dA(e, n): return (144 if e == 0 else 0) + n * 4
def dB(e, ks): return (144 if e == 0 else 0) + 80 + ks * 4
sAbeg, sAend, sBbeg, sBend = sScale, sOffX, sOffY, sPf
vWr = 35
def dmaA(sg, rd='stg'):
    r = []
    if sg == 24: r += L(f"s_mov_b32 s{sOffA}, s{sOffRo}")
    r.append(I(f"s_add_u32 m0, s{sM5}, {obase(sg)}"))
    for n in range(5):
        if n == 4: r += L(f"s_add_u32 m0, s{sM5}, {obase(sg)+4096}\ns_add_u32 s{sOffA}, s{sOffA}, 4096")
        r.append(I(f"buffer_load_dwordx4 v{vL16}, {sr(sWS,4)}, s{sOffA} offen offset:{1024*(n%4)} sc1 lds", tag_w=f"ot{sg}", rd=[rd]))
    r.append(I(f"s_add_u32 s{sOffA}, s{sOffA}, {20480-4096}"))
    if sg == 2: r += L(f"s_mov_b32 s{sOffA}, s{sOffR}")
    if sg >= 2: r += L(f"s_cmp_eq_u32 s{sOffA}, s{sAend}\ns_cmov_b32 s{sOffA}, s{sAbeg}")
    return r
def dmaB(sg, rd='stg'):
    r = []
    r += L(f"s_cmp_eq_u32 s{sOffBB}, s{sBend}\ns_cmov_b32 s{sOffBB}, s{sBbeg}")
    r.append(I(f"s_add_u32 m0, s{sM4}, {obase(sg)+20480}"))
    for n in range(4):
        r.append(I(f"buffer_load_dwordx4 v{vL16}, {sr(sWS,4)}, s{sOffBB} offen offset:{1024*n} sc1 lds", tag_w=f"ot{sg}", rd=[rd]))
    r.append(I(f"s_add_u32 s{sOffBB}, s{sOffBB}, {8192 if sg < 24 else 16384}"))
    return r
def apf():
    if "apf" not in KN: return []
    return [prefetch(sWS, f"s{sPf}", "sc1")] + L(f"s_add_u32 s{sPf}, s{sPf}, 81920")
def o_reads(sg):
    e = sg % 2; kw = dict(rd=['stg'], tag_w=f"rd{sg}")
    r = []
    if sg < 24:
        for ks in range(2): r += dsr("ds_read_b128", ar(fA(e, 0, ks), 4), vOA, obase(sg), ks * 10240, **kw)
        for j in range(4):
            for ks in range(2): r += dsr("ds_read_b128", ar(fB(e, j, ks), 4), vOB, obase(sg), ks * 8192 + j * 1024, **kw)
        for t in range(1, 5):
            for ks in range(2): r += dsr("ds_read_b128", ar(fA(e, t, ks), 4), vOA, obase(sg), (ks * 10 + t) * 1024, **kw)
    else:
        for ks in range(4): r += dsr("ds_read_b128", ar(dB(e, ks), 4), vDB, obase(sg), ks * 4096, **kw)
        for T in range(5):
            for ks in range(4): r += dsr("ds_read_b128", ar(dA(e, ks * 5 + T), 4), vDA, obase(sg), (ks * 5 + T) * 1024, **kw)
    return r
def dmaD(g):
    r = []
    for h in range(2):
        r.append(I(f"s_add_u32 m0, s{sM3}, {obase(24+g)+4096*h}"))
        for n in range(4): r.append(I(f"buffer_load_dwordx4 v{vL16}, {sr(sWS,4)}, s{sOffRo} offen offset:{1024*n} sc1 lds", tag_w=f"ot{24+g}", rd=['stg']))
        r.append(I(f"s_add_u32 s{sOffRo}, s{sOffRo}, {4096 if h == 0 else 30720-4096}"))
    return r
DRING = [240, 244, 248, 252] + list(range(96, 144, 4))
vDo = 216; vHp = 236; vHr = 246
def dBreg(p, k): return (144 if p == 0 else 0) + 4 * k
def d_bload(p, k):
    so = sOffRd if p == 0 else sOffBB
    return [I(f"buffer_load_dwordx4 {ar(dBreg(p,k),4)}, v{vL16}, {sr(sWS,4)}, s{so} offen sc1"), I(f"s_add_u32 s{so}, s{so}, 4096")]
def d_read(n):
    g, T, k = (n % 120) // 30, (n % 30) // 6, n % 6
    return dsr("ds_read_b128", ar(DRING[n % 16], 4), vDA, obase(24 + g), (k * 5 + T) * 1024, rd=['stg'])
DLA = 12
def d_block(p, g, extra=(), post=()):
    s = list(extra)
    if any(x.kind == 'vmem' for x in s): pace(s, 0, 29)
    acc = vDo if p == 0 else vDc
    for i in range(30):
        n = p * 120 + g * 30 + i
        first = 4 if n == 0 else n + DLA
        for m in range(first, n + DLA + 1):
            if m < 240:
                if m < 120 and m % 30 == 0: s.append(I("s_barrier", tag_r=[f"ot{24+m//30}"], wr=['stg']))
                s += d_read(m)
        T, k = i // 6, i % 6
        d = vr(acc + 4 * T, 4)
        s.append(mfma(d, ar(DRING[n % 16], 4), ar(dBreg(p, g * 6 + k), 4), "0" if (g == 0 and k == 0) else d))
    return s + list(post)
def o_block(sg, extra=(), pre=(), mid=(), exfirst=False, dbo=None):
    e = sg % 2
    s = list(pre)
    s += [I("s_barrier", tag_r=[f"ot{sg+1}", f"rd{sg}"], wr=['stg'], after=2)]
    if sg < 23: s += o_reads(sg + 1)
    else:
        for m in range(4): s += d_read(m)
    db = dbo if dbo is not None else dmaB(sg + 4) + dmaA(sg + 4) if sg < 20 else dmaD(sg - 20)
    k_ = next(i for i, x in enumerate(db) if x.kind == 'vmem') + 1
    vm = split(db[:k_] + list(mid) + db[k_:])
    ex = split(list(extra)) if any(x.kind == 'vmem' for x in extra) else []
    if exfirst: seq = list(extra) + [x for ch in vm for x in ch]
    else: seq = [x for ch in merge([vm, ex]) for x in ch] if ex else [x for ch in vm for x in ch] + list(extra)
    pace(seq, 3, 40)
    s += seq
    for t in range(5):
        for j in range(4):
            for ks in range(2):
                d = vr(vAc + (t * 4 + j) * 4, 4)
                s.append(mfma(d, ar(fA(e, t, ks), 4), ar(fB(e, j, ks), 4), "0" if (sg == 0 and ks == 0) else d))
    return s

EARLY = PAR('EARLY', 0); OF = PAR('OF', 8); OC = 8 if EARLY else 99; WC = PAR('WC', 5)
vFo2 = 37
vHs = 48
def p3_steps():
    oe = []
    n = 0
    for p in range(6):
        for j in range(4):
            t = vTmp + (n % 2) * 8; o = vOP + (n % 6) * 4
            it = []
            for tt in range(2):
                for i in range(4): it.append(I(f"v_accvgpr_read_b32 v{t+tt*4+i}, a{((2*p+tt)*4+j)*4+i}"))
            for i in range(8): it.append(I(f"v_mul_f32 v{t+i}, v{t+i}, v{vLs+j}"))
            for i in range(4): it.append(I(f"v_cvt_pk_bf16_f32 v{o+i}, v{t+2*i}, v{t+2*i+1}"))
            for i in range(4): it.append(I(f"v_accvgpr_write_b32 a{(8*p+j)*4+i}, v{o+i}"))
            oe.append(it); n += 1
            st_ = [I(f"buffer_store_dwordx4 {ar((8*p+j)*4,4)}, v{vL16}, {sr(sWS,4)}, s{sOffO} offen offset:{1024*j} sc1", tag_w="Ost")]
            if j == 3: st_.append(I(f"s_add_u32 s{sOffO}, s{sOffO}, 4096"))
            OST.append(st_)
    nss = [int(x) for x in os.environ.get("NSS", "2,3,3,3,3,3,3,4,0,0").split(",")]
    nst = [int(x) for x in os.environ.get("NST", "4,3,3,3,3,3,3,2,0,0").split(",")]
    dm = {}
    if not G4T:
        g31 = split(dma_stage(31)); dm = {0: g31[:3], 1: g31[3:]}
    a0, a1, a2 = [split(dmaA(k, 'x')) for k in range(3)]
    assert WC <= 5
    dm[6] = a0; dm[8] = a1; dm[9] = a2
    allb = [c for d in range(2, 10) for c in split(b_loads(BBUF[d % 3]))]
    cnt = [int(x) for x in os.environ.get("NB", "8,8,8,8,8,8,8,8,0,0").split(",")]
    BQ = []
    for k in cnt: BQ.append(allb[:k]); allb = allb[k:]
    assert not allb
    steps = []
    for ds in range(10):
        s = []
        take = BQ[ds]
        s += [x for _ in range(nst[ds]) for x in oe.pop(0)]
        st = [OST.pop(0) for _ in range(nss[ds])]
        seq = merge([take, dm.get(ds, []), st]) if ds < 7 else take + st + dm.get(ds, [])
        if ds == 2: seq.insert(0, [set_flag(f"s{sFg}", None)])
        if ds == WC - 1: seq.insert(0, L(f"s_mov_b32 s{sT0}, {hex(FW)}") + [poll_load(vFl, vL16, f"s{sT0}", 4)])
        if ds == OF: seq.insert(int(len(seq) * PAR("OFP", 0.6)), [set_flag(f"s{sFl}", "Ost")])
        if EARLY and ds == PAR("OP", 9): seq.insert(int(len(seq) * PAR("OPP", 0.4)), [poll_load(vFo2, vFa, f"s{sT1}")])
        flat = [x for ch in seq for x in ch]
        s += ('pace', flat),
        for grp in range(6):
            n = ds * 6 + grp
            real = lambda m: m if m < 48 else 48 + ((m - 48) % 2) * 6 + (m - 48) // 2
            if n + 2 < 60:
                if (n + 2) % 12 == 0:
                    stg = 27 + (n + 2) // 12
                    tags = [f"st{stg}"] + (["Dst"] if stg == 28 else []) + ([f"gr{stg-1}"] if stg >= 30 else [])
                    s.append(I("s_barrier", tag_r=tags, wr=['stg2'], after=24 if stg < 30 else 30))
                s += g_reads(real(n + 2), 'stg2', n + 2)
            slot = vGA + (n % 3) * 8
            rds, rg = real(n) // 6, real(n) % 6
            B = BBUF[rds % 3]
            for j in range(4):
                for ks in range(2):
                    d = vr(acc3(rg, j), 4)
                    s.append(mfma(d, vr(slot + ks * 4, 4), rr((B[0], B[1] + (ks * 4 + j) * 4)), "0" if (ds == 0 and ks == 0) else d))
            if rds == 9 and rg % 2 == 1: s += h_epilogue(rg // 2)
        steps.append(s)
    assert not oe and not OST
    return steps
HST = []; OST = []
def h_epilogue(T3):
    s = []
    if True:
        for jp in range(2):
            o = vOP + ((T3 * 2 + jp) % 6) * 4
            for jj in range(2):
                j = jp * 2 + jj
                g = acc3(2 * T3, j); u = acc3(2 * T3 + 1, j)
                for i in range(4): s.append(I(f"v_mul_f32 v{g+i}, v{g+i}, v{u+i}"))
                for i in range(2): s.append(I(f"v_cvt_pk_bf16_f32 v{o+jj*2+i}, v{g+2*i}, v{g+2*i+1}"))
            for i in range(2): s.append(I(f"v_permlane32_swap_b32 v{o+i}, v{o+2+i}"))
            HST.append(I(f"buffer_store_dwordx4 {vr(o,4)}, v{vT}, {sr(sWS,4)}, s{sOffH+T3} offen offset:{2048*jp} sc1", tag_w="Hst"))
    return s
def join_steps(steps, n=48):
    out = []
    for k, s in enumerate(steps):
        base = k * n
        for x in s:
            if isinstance(x, tuple):
                if any(y.kind == 'vmem' for y in x[1]): pace(x[1], base, base + n - 1)
                out += x[1]
            else:
                if x.after is not None: x.after += base
                out.append(x)
    return out

def gen_fallback():
    F = Prog()
    vK = 232; vS = 176; vP = 208
    vf, vv, va = 48, 49, 50
    sK_, sV_ = sK, sV
    def kload():
        return [I(f"buffer_load_dwordx4 {vr(vK+4*p,4)}, v{vf}, {sr(sK_,4)}, s{sT0} offen offset:{64*p}") for p in range(6)] + L(f"s_add_u32 s{sT0}, s{sT0}, 6144")
    def chains(kt, c0):
        s = []
        for j in range(4):
            d = vr(vS + (j * 2 + kt) * 4, 4)
            for p in range(6): s.append(mfma(d, vr(vK + 4 * p, 4), vr(vQ + (p * 4 + j) * 4, 4), d if p else c0(j)))
        return s
    c = L("L_fb:\ns_waitcnt vmcnt(0) lgkmcnt(0)\ns_nop 15")
    c += L(f"""v_and_b32 v54, 15, v0
v_lshrrev_b32 v55, 4, v0
v_mul_u32_u24 v{vf}, 384, v54
v_lshl_add_u32 v{vf}, v55, 4, v{vf}
v_lshrrev_b32 v56, 3, v0
v_and_b32 v57, 7, v0
v_and_b32 v58, 6, v56
v_xor_b32 v57, v57, v58
v_mul_u32_u24 v{vv}, 384, v56
v_lshl_add_u32 v{vv}, v57, 4, v{vv}
v_lshrrev_b32 v56, 2, v54
v_lshl_add_u32 v56, v55, 2, v56
v_bfe_u32 v57, v56, 1, 2
v_lshlrev_b32 v56, 7, v56
v_and_b32 v58, 3, v0
v_lshl_add_u32 v56, v58, 3, v56
s_lshl_b32 s{sT2}, s{sW}, 12
s_add_u32 s{sT2}, s{sT2}, 57344
s_cmp_eq_u32 s{sW}, 0
s_cmov_b32 s{sT2}, 110592
s_cmp_eq_u32 s{sW}, 3
s_cmov_b32 s{sT2}, 81920
v_add_u32 v56, s{sT2}, v56""")
    for x in range(4): c += L(f"v_xor_b32 v58, {x}, v57\nv_lshl_add_u32 v{va+x}, v58, 5, v56")
    c += L(f"""s_mul_i32 s{sT1}, s{sH}, 786432
s_add_u32 s{sT1}, s{sT1}, {1536*384}
s_mov_b32 s{sT0}, s{sT1}
s_mov_b32 s{sSpin}, 0""")
    for j in range(4): c += L(f"v_mov_b32 v{vNm+4*j}, 0xff800000")
    F.block("a", c)
    c = L("L_fb1:") + kload() + chains(0, lambda j: "0")
    for j in range(4):
        a = vS + j * 8; m = vNm + 4 * j
        c += L(f"v_max3_f32 v{m}, v{m}, v{a}, v{a+1}\nv_max3_f32 v{m}, v{m}, v{a+2}, v{a+3}")
    c += L(f"s_add_u32 s{sSpin}, s{sSpin}, 1\ns_cmp_lt_u32 s{sSpin}, 32\ns_cbranch_scc1 L_fb1")
    F.block("b", c)
    c = []
    for j in range(4):
        m = vNm + 4 * j
        c += xreduce(m, m + 1, "v_max_f32")
        c += L(f"v_sub_f32 v{m+1}, 0, v{m}\nv_sub_f32 v{m+2}, 0, v{m}\nv_sub_f32 v{m+3}, 0, v{m}\nv_sub_f32 v{m}, 0, v{m}\nv_mov_b32 v{vLs+j}, 0")
    for i in range(192): c.append(I(f"v_accvgpr_write_b32 a{i}, 0"))
    c += L(f"s_mov_b32 s{sT0}, s{sT1}\ns_mov_b32 s{sSpin}, 0")
    F.block("c", c)
    c = L("L_fb2:")
    for kt in range(2): c += kload() + chains(kt, lambda j: vr(vNm + 4 * j, 4)) + L("s_nop 7")
    for j in range(4):
        for kt in range(2):
            a = vS + (j * 2 + kt) * 4
            for i in range(4): c.append(I(f"v_exp_f32 v{a+i}, v{a+i}"))
            for i in range(4): c.append(I(f"v_add_f32 v{vLs+j}, v{vLs+j}, v{a+i}"))
            for i in range(2): c.append(I(f"v_cvt_pk_bf16_f32 v{vP+j*4+kt*2+i}, v{a+2*i}, v{a+2*i+1}"))
    for cg in range(3):
        for a in range(4):
            c += L(f"""s_add_u32 m0, s{sT2}, {1024*a}
s_add_u32 s{sOffP}, s{sT1}, {3072*a+128*cg}
buffer_load_dwordx4 v{vv}, {sr(sV_,4)}, s{sOffP} offen lds""")
        c += L("s_waitcnt vmcnt(0)")
        for x in range(4):
            for u in range(2): c.append(I(f"ds_read_b64_tr_b16 {vr(vK+4*x+2*u,2)}, v{va+x} offset:{2048*u}"))
        c += L("s_waitcnt lgkmcnt(0)")
        for x in range(4):
            for j in range(4):
                d = ar(((cg * 4 + x) * 4 + j) * 4, 4)
                c.append(mfma(d, vr(vK + 4 * x, 4), vr(vP + 4 * j, 4), d))
        c += L("s_nop 7")
    c += L(f"s_add_u32 s{sT1}, s{sT1}, 12288\ns_add_u32 s{sSpin}, s{sSpin}, 1\ns_cmp_lt_u32 s{sSpin}, 16\ns_cbranch_scc1 L_fb2")
    F.block("d", c)
    c = []
    for j in range(4): c += xreduce(vLs + j, vTmp + j, "v_add_f32")
    for j in range(4): c.append(I(f"v_rcp_f32 v{vLs+j}, v{vLs+j}"))
    c += L("s_nop 15\ns_branch L_fb_back")
    F.block("e", c)
    F.trace = [("a", {}), ("b", {}), ("b", {}), ("c", {}), ("d", {}), ("d", {}), ("e", {})]
    F.insert_waits(); F.fix_hazards()
    return F.text()


def gen(dbg=False):
    P = Prog()
    OUTL.clear(); AD.clear(); HST.clear(); OST.clear()
    for i in range(2): AD[vWa + i] = Addr(vWa + i, sbase(0)); AD[vKa + i] = Addr(vKa + i, 0)
    for i in range(4): AD[vVa + i] = Addr(vVa + i, 0)
    AD[vRa] = Addr(vRa, sbase(12)); AD[vGa] = Addr(vGa, sbase(27))
    AD[vOA] = Addr(vOA, obase(0)); AD[vOB] = Addr(vOB, obase(0)); AD[vDA] = Addr(vDA, obase(24)); AD[vDB] = Addr(vDB, obase(24))
    nblk = [0]
    def blk(ins, name=None):
        nm = name or f"b{nblk[0]}"; nblk[0] += 1
        P.block(nm, ins); P.trace.append((nm, {}))
    CPA = PAR("CPA", 10000)
    cp = [3]
    def sch(s, name, **kw):
        if name.startswith("p2_") or name.startswith("p1_"):
            if "nost" in KN: s = [x for x in s if not (x.kind == 'vmem' and 'store_dwordx4' in x.text)]
            if "norl" in KN: s = [x for x in s if not (x.kind == 'vmem' and f"s[{sR}:{sR+3}]" in x.text)]
            if "kvhit" in KN: s = [x for x in s if not x.text.startswith((f"s_add_u32 s{sOffK}, s{sOffK}, 12288", f"s_add_u32 s{sOffV}, s{sOffV}, 12288"))]
            if "nobar" in KN: s = [x for x in s if x.kind != 'barrier']
            if "novm" in KN: s = [x for x in s if not (x.kind == 'vmem' and 'dwordx4' in x.text and 'v[48:51]' not in x.text)]
            if "novalu" in KN and name.startswith("p2_"): s = [x for x in s if not (x.kind in ('valu', 'trans') and x.text.startswith(('v_exp', 'v_add_f32', 'v_cvt')))]
        if name.startswith("p3"):
            if "p3nost" in KN: s = [x for x in s if not (x.kind == 'vmem' and 'store_dwordx4' in x.text)]
            if "p3nob" in KN: s = [x for x in s if not (x.kind == 'vmem' and 'load_dwordx4' in x.text and ' lds' not in x.text and f"s{sOffB} " in x.text)]
            if "p3novalu" in KN: s = [x for x in s if not (x.kind == 'valu' and x.text.startswith(('v_accvgpr', 'v_mul_f32', 'v_cvt')))]
            if "p3plain" in KN:
                for x in s:
                    if 'store_dwordx4' in x.text: x.text = x.text.replace(" sc1", "")
            if "p3nt" in KN:
                for x in s:
                    if 'store_dwordx4' in x.text: x.text = x.text.replace(" sc1", " sc1 nt")
        pos = sum(isize(x) for b in P.blocks for x in b[1]) * 1.03
        end = pos + sum(isize(x) for x in s) * 1.03
        nm = sum(1 for x in s if x.kind == 'mfma')
        while "nocp" not in KN and cp[0] * 8192 < end + CPA and cp[0] < NSLICE:
            g = int(max(0, min(nm - 2, (cp[0] * 8192 - CPA - pos) / (end - pos) * nm)))
            k = next((i for i, x in enumerate(s) if x.kind == 'vmem' and x.after is not None and x.after > g), len(s))
            cpl = I(f"global_load_dword v{vDum}, v{vL16}, s[62:63]", after=g); cpl.writes = set()
            s = s[:k] + [cpl, I("s_add_u32 s62, s62, 0x2000"), I("s_addc_u32 s63, s63, 0")] + s[k:]
            cp[0] += 1
        if "jitter" in KN:
            k = nblk[0]
            blk(L(f"""s_memtime s[90:91]
s_waitcnt lgkmcnt(0)
s_mul_i32 s90, s90, {2654435761 & 0x7fffffff}
s_lshr_b32 s90, s90, 20
s_and_b32 s91, s90, 7
s_cmp_lg_u32 s91, 0
s_cbranch_scc1 L_j{k}b
s_lshr_b32 s90, s90, 3
s_and_b32 s90, s90, {PAR("JM", 127)}
L_j{k}:
s_sleep 1
s_sub_u32 s90, s90, 1
s_cmp_gt_i32 s90, 0
s_cbranch_scc1 L_j{k}
L_j{k}b:"""))
        blk(schedule(s, name, verbose=dbg and "v" in KN, **kw), name)
    CC = math.log2(math.e) / math.sqrt(192.0)
    if "cpold" in KN:
        CP0 = f"""s_and_b32 s{sT2}, s{sT2}, 15
s_min_u32 s{sT2}, s{sT2}, CODE_SLICES-1
s_lshl_b32 s{sT2}, s{sT2}, 13
v_add_u32 v52, s{sT2}, v{vL128}
global_load_dword a{aDum}, v52, s[62:63]"""
    else:
        CP0 = f"""s_min_u32 s{sT2}, s{sT2}, CODE_SLICES*8-1
s_lshl_b32 s{sT2}, s{sT2}, 10
v_add_u32 v52, s{sT2}, v{vL16}
global_load_dword a{aDum}, v52, s[62:63]"""
    c = L(f"""s_cmp_ge_u32 s2, 256
s_cbranch_scc1 L_end
s_load_dwordx16 s[64:79], s[0:1], 0
s_load_dwordx8 s[80:87], s[0:1], 64
s_memrealtime s[{sSt}:{sSt+1}]
s_getpc_b64 s[62:63]
v_lshrrev_b32 v30, 6, v0
v_and_b32 v0, 63, v0
v_readfirstlane_b32 s{sW}, v30
v_lshlrev_b32 v{vL16}, 4, v0
v_lshlrev_b32 v{vL128}, 7, v0
v_and_b32 v48, 7, v0
v_lshrrev_b32 v49, 3, v0
v_mul_u32_u24 v60, 1280, v48
v_lshl_add_u32 v50, v49, 4, v60
v_lshl_add_u32 v50, v30, 7, v50
s_mul_i32 s{sT0}, s2, {8*1280}
s_and_b32 s{sT1}, s2, 7
s_lshr_b32 s{sT2}, s2, 3
s_and_b32 s{sH}, s{sT2}, 3
s_lshl2_add_u32 s{sH}, s{sT1}, s{sH}
s_lshr_b32 s{sB}, s{sT2}, 2
s_lshr_b32 s{sS}, s{sT1}, 1
s_and_b32 s{sT1}, s{sT1}, 1
s_lshl1_add_u32 s{sMb}, s{sB}, s{sT1}
s_and_b32 s{sNb}, s{sT2}, 3
v_cmp_eq_u32 vcc, 0, v0
v_bfrev_b32 v51, 1
v_cndmask_b32 v{vFo}, v51, 0, vcc
v_cmp_gt_u32 vcc, 2, v30
v_add_u32 v53, 1024, v50
v_cndmask_b32 v53, v51, v53, vcc
s_lshl2_add_u32 s{sT2}, s{sT2}, s{sW}
{CP0}
v_lshrrev_b32 v54, 4, v0
v_and_b32 v55, 15, v0
v_and_b32 v61, 6, v49
v_xor_b32 v61, v61, v48
v_lshlrev_b32 v61, 4, v61
v_mul_u32_u24 v62, 1280, v49
v_add_u32 v{vRo2}, v62, v61
v_and_b32 v62, 4, v49
v_add_u32 v62, v62, v49
v_mul_u32_u24 v62, 3072, v62
v_add_u32 v{vRo}, v62, v61
s_lshl_b32 s{sM4}, s{sW}, 13
s_add_u32 s{sM5}, s{sM4}, 49152
s_lshl2_add_u32 s{sQg}, s{sB}, s{sW}
s_mul_i32 s{sOffBB}, s{sQg}, {64*1280}""")
    if STAMPS: c += L(f"v_mov_b32 v{vSt}, 0")
    c += L("s_waitcnt lgkmcnt(0)")
    c += srd(sXin, pX, 2048 * 640 * 2)
    c += L(f"""buffer_load_dwordx4 v[64:67], v50, {sr(sXin,4)}, s{sT0} offen {os.environ.get("XF_", "")}
buffer_load_dwordx4 v[68:71], v50, {sr(sXin,4)}, s{sT0} offen offset:512 {os.environ.get("XF_", "")}
buffer_load_dwordx4 v[72:75], v53, {sr(sXin,4)}, s{sT0} offen {os.environ.get("XF_", "")}
buffer_load_ushort v76, v60, {sr(sXin,4)}, s{sT0} offen""")
    c += srd(sR, pDbg, 256)
    c += L(f"""s_or_b32 s{sNonce}, s{sSt}, 1
v_mov_b32 v56, s{sNonce}
v_mov_b32 v57, 0
s_or_b32 s{sT1}, s2, s{sW}
s_cmp_eq_u32 s{sT1}, 0
s_cselect_b32 s{sT1}, 0, 0x100
buffer_atomic_cmpswap v[56:57], v{vFo}, {sr(sR,4)}, s{sT1} offen sc1""")
    c += stamp(0)
    def rawdma(ds):
        r = []
        for a in range(8):
            r += L(f"s_add_u32 m0, s{sM4 if ds == 0 else sM5}, {a*1024}\ns_add_u32 s{sOffA}, s{sOffBB}, {a*8*1280+128*ds}")
            r.append(I(f"buffer_load_dwordx4 v{vRo2}, {sr(sXin,4)}, s{sOffA} offen lds", tag_w=f"raw{ds}"))
        return r
    def inter(vm, fill):
        ch = split(vm); out = []; per = -(-len(fill) // len(ch))
        for k, cc in enumerate(ch): out += cc + fill[k * per:(k + 1) * per]
        return out
    f1 = []
    for n in range(3):
        f1.append(I(f"v_add_u32 v61, {64*n}, v0"))
        f1 += divmod_const(62, 63, 61, 24)
        f1 += L(f"""v_and_b32 v57, 6, v62
v_xor_b32 v57, v63, v57
v_lshlrev_b32 v57, 4, v57
v_subrev_u32 v57, {1024*n}, v57
v_and_b32 v59, 4, v62
v_add_u32 v59, v59, v62
v_mul_u32_u24 v59, 12288, v59
v_add_u32 v{vWo+n}, v59, v57""")
    f1 += srd(sWq, pWq, 640 * 6144 * 2) + srd(sWS, pWs, WS_SIZE)
    f1 += L(f"""s_lshr_b32 s{sT0}, s{sW}, 1
s_and_b32 s{sOffY}, s{sW}, 1
s_lshl_b32 s{sT2}, s{sT0}, 5
s_lshl2_add_u32 s{sT2}, s{sOffY}, s{sT2}
s_mul_i32 s{sOffX}, s{sT2}, 12288
s_mul_i32 s{sT2}, s{sH}, 384
s_add_u32 s{sOffX}, s{sOffX}, s{sT2}
s_mul_i32 s{sM6}, s{sW}, 6144""")
    f2 = L(f"""v_lshrrev_b32 v56, 2, v55
v_and_b32 v57, 3, v0
v_lshl_add_u32 v58, v54, 2, v56
v_bfe_u32 v59, v58, 1, 2
v_mul_u32_u24 v62, 384, v58
v_add_u32 v62, {sbase(0)}, v62
v_lshlrev_b32 v63, 1, v59
v_xor_b32 v63, v63, v57
v_lshl_add_u32 v{vWa}, v63, 4, v62
v_xor_b32 v63, 4, v63
v_lshl_add_u32 v{vWa+1}, v63, 4, v62
v_bfe_u32 v{vPa}, v0, 2, 3
v_lshlrev_b32 v{vPa}, 7, v{vPa}
v_lshl_add_u32 v{vPa}, v57, 2, v{vPa}
v_lshlrev_b32 v{vSo}, 3, v55
v_lshlrev_b32 v62, 7, v55
v_and_b32 v63, 6, v55
v_xor_b32 v63, v63, v54
v_lshl_add_u32 v{vXo2}, v63, 4, v62
v_xor_b32 v63, 4, v63
v_lshl_add_u32 v{vXo2+1}, v63, 4, v62
v_add_u32 v{vXo}, s{sM4}, v{vXo2}
v_add_u32 v{vXo+1}, s{sM4}, v{vXo2+1}
v_add_u32 v{vXo2}, s{sM5}, v{vXo2}
v_add_u32 v{vXo2+1}, s{sM5}, v{vXo2+1}
v_lshlrev_b32 v58, 3, v48
v_add_u32 v58, {LN_X}, v58
v_lshl_add_u32 v59, v30, 6, v58
v_lshrrev_b32 v56, 2, v49
v_lshl_add_u32 v56, v30, 1, v56
v_lshlrev_b32 v56, 12, v56
v_and_b32 v57, 3, v49
v_lshl_add_u32 v56, v57, 8, v56
v_lshl_add_u32 v56, v48, 4, v56
v_add_u32 v57, {16*4096}, v56
v_cndmask_b32 v57, v51, v57, vcc
v_or_b32 v61, v49, v30
v_cmp_eq_u32 vcc, 0, v61
v_lshlrev_b32 v61, 3, v48
v_cndmask_b32 v61, v51, v61, vcc
s_lshr_b32 s{sT2}, s2, 3
s_mul_i32 s{sT2}, s{sT2}, {20*4096}
s_bfe_u32 s{sOffK}, s2, 0x20001
s_lshl_b32 s{sOffK}, s{sOffK}, 10
s_add_u32 s{sT2}, s{sT2}, s{sOffK}
s_and_b32 s{sOffK}, s2, 1
s_lshl_b32 s{sOffK}, s{sOffK}, 7
s_add_u32 s{sT2}, s{sT2}, s{sOffK}
s_add_u32 s{sOffK}, s{sT2}, {8*4096}
s_lshl_b32 s{sOffP}, s2, 6
s_add_u32 s{sOffP}, s{sOffP}, {hex(ST_OFF)}
s_lshr_b32 s{sSpin}, s{sW}, 1
s_sub_u32 s{sSpin}, s{sSpin}, 1
s_and_b32 s{sSpin}, s{sSpin}, 0x3f800000""")
    pfv = divmod_const(62, 63, 0, 3) + L(f"""v_mul_u32_u24 v62, 12288, v62
v_lshl_add_u32 v62, v63, 7, v62
v_cmp_gt_u32 vcc, 12, v0
v_cndmask_b32 v{vL128}, v51, v62, vcc
s_lshl_b32 s{sQd}, s{sQg}, 2
s_add_u32 s{sQd}, s{sQd}, 256
s_mul_i32 s{sQd}, s{sQd}, 12288
s_mul_i32 s{sOffG}, s{sH}, 384
s_add_u32 s{sQd}, s{sQd}, s{sOffG}""")
    f2 += pfv
    for i in range(4): f2.append(I(f"v_mov_b32 v{vOne+i}, 0x3f803f80"))
    c += inter(rawdma(0), f1)
    c += inter(dma_stage(0), f2)
    c += L(f"v_mov_b32 v60, 0\nbuffer_load_dword v{vNon}, v60, {sr(sR,4)}, 0 offen sc1\ns_mov_b32 s{sT1}, s{sOffY}\ns_mov_b32 s{sT3}, s{sOffK}")
    su0 = L(f"""s_lshl_b32 s{sFl}, s2, 7
s_lshl2_add_u32 s{sFl}, s{sW}, s{sFl}
s_add_u32 s{sFl}, s{sFl}, {hex(FXN)}
s_lshl_b32 s{sFg}, s{sQg}, 10
s_add_u32 s{sFg}, s{sFg}, {hex(FXN)}
s_lshl_b32 s{sScale}, s{sQg}, 9
s_add_u32 s{sScale}, s{sScale}, {hex(ST_OFF)}
s_mul_i32 s{sOffB}, s{sQg}, {20*4096}
s_add_u32 s{sOffB}, s{sOffB}, {4*4096}
s_mul_i32 s{sM3}, s{sW}, 3072
s_mul_i32 s{sOffK}, s{sH}, 786432
s_add_u32 s{sOffK}, s{sOffK}, {1536*384}
s_add_u32 s{sOffK}, s{sOffK}, s{sM3}
s_mov_b32 s{sOffV}, s{sOffK}
s_lshr_b32 s{sPf}, s2, 3
s_lshl2_add_u32 s{sPf}, s{sPf}, s{sW}
s_and_b32 s{sPf}, s{sPf}, 7
s_lshl_b32 s{sPf}, s{sPf}, 10
s_add_u32 s{sPf}, s{sPf}, {3*8192}
s_add_u32 s62, s62, s{sPf}
s_addc_u32 s63, s63, 0""") + srd(sK, pK, 32 * 2048 * 192 * 2) + srd(sV, pV, 32 * 2048 * 192 * 2)
    wpf = lambda: ([prefetch(sWq, f"s{sQd}")] + L(f"s_add_u32 s{sQd}, s{sQd}, {128*12288}")) if "nowpf" not in KN else []
    vu = []
    for n in range(3):
        vu.append(I(f"v_add_u32 v61, {64*n}, v0"))
        vu += divmod_const(62, 63, 61, 24)
        vu += L(f"""v_and_b32 v57, 6, v62
v_xor_b32 v57, v63, v57
v_lshlrev_b32 v57, 4, v57
v_subrev_u32 v57, {1024*n}, v57
v_mul_u32_u24 v58, 384, v62
v_add_u32 v{vVo+n}, v58, v57
v_lshrrev_b32 v59, 1, v62
v_lshl_add_u32 v59, s{sW}, 2, v59
v_and_b32 v59, 7, v59
v_xor_b32 v59, v63, v59
v_lshlrev_b32 v59, 4, v59
v_subrev_u32 v59, {1024*n}, v59
v_add_u32 v{vKo+n}, v58, v59""")
    vu += L(f"""v_lshrrev_b32 v56, 2, v55
v_and_b32 v57, 3, v0
v_lshl_add_u32 v58, v54, 2, v56
v_bfe_u32 v59, v58, 1, 2
v_mul_u32_u24 v62, 384, v58
v_lshl_add_u32 v62, v57, 3, v62""")
    for x in range(4): vu += L(f"v_xor_b32 v63, {x}, v59\nv_lshl_add_u32 v{vVa+x}, v63, 5, v62")
    vu += L(f"""v_lshlrev_b32 v62, 7, v58
v_lshl_add_u32 v62, v57, 3, v62
v_xor_b32 v63, s{sW}, v59
v_lshl_add_u32 v62, v63, 5, v62
v_add_u32 v{vRa}, {sbase(12)}, v62
v_add_u32 v{vGa}, {sbase(27)}, v{vL16}
v_mul_u32_u24 v62, 384, v55
v_lshrrev_b32 v63, 1, v55
v_xor_b32 v63, v63, v54
v_lshl_add_u32 v{vKa}, v63, 4, v62
v_xor_b32 v63, 4, v63
v_lshl_add_u32 v{vKa+1}, v63, 4, v62""")
    for i in range(4): vu.append(I(f"v_mov_b32 v{vLs+i}, 0"))
    xr = L(f"""v_and_b32 v61, 7, v0
v_lshrrev_b32 v62, 3, v0
v_mul_u32_u24 v63, 1280, v61
v_lshl_add_u32 v63, v62, 4, v63
s_mul_i32 s{sOffY}, s2, {8*1280}
s_lshl_b32 s{sPf}, s{sW}, 7
s_add_u32 s{sOffY}, s{sOffY}, s{sPf}
buffer_load_dwordx4 a[244:247], v63, {sr(sXin,4)}, s{sOffY} offen
buffer_load_dwordx4 a[248:251], v63, {sr(sXin,4)}, s{sOffY} offen offset:512
buffer_load_dwordx4 a[252:255], v63, {sr(sXin,4)}, s{sOffY} offen offset:1024""")
    xs = L(f"""v_lshrrev_b32 v63, 2, v62
v_lshlrev_b32 v63, 12, v63
v_and_b32 v62, 3, v62
v_lshl_add_u32 v63, v62, 8, v63
v_lshl_add_u32 v63, v61, 4, v63
s_lshr_b32 s{sOffY}, s2, 3
s_mul_i32 s{sOffY}, s{sOffY}, {20*4096}
s_bfe_u32 s{sPf}, s2, 0x20001
s_lshl_b32 s{sPf}, s{sPf}, 10
s_add_u32 s{sOffY}, s{sOffY}, s{sPf}
s_and_b32 s{sPf}, s2, 1
s_lshl_b32 s{sPf}, s{sPf}, 7
s_add_u32 s{sOffY}, s{sOffY}, s{sPf}
s_lshl_b32 s{sPf}, s{sW}, 13
s_add_u32 s{sOffY}, s{sOffY}, s{sPf}
s_add_u32 s{sOffY}, s{sOffY}, {hex(XR_OFF)}""")
    for i in range(3):
        if i == 2: xs += L(f"s_cmp_lt_u32 s{sW}, 2\ns_cselect_b32 s{sOffY}, s{sOffY}, 0x40000000")
        xs.append(I(f"buffer_store_dwordx4 {ar(244+4*i,4)}, v63, {sr(sWS,4)}, s{sOffY} offen sc1", tag_w="Gst"))
        if i < 2: xs += L(f"s_add_u32 s{sOffY}, s{sOffY}, {8*4096}")
    c += L("v_lshlrev_b32 v76, 16, v76\nv_mov_b32 v77, v76")
    for i in range(12):
        c += L(f"v_lshlrev_b32 v{80+2*i}, 16, v{64+i}\nv_and_b32 v{81+2*i}, 0xffff0000, v{64+i}")
        c += L(f"v_pk_add_f32 v[{112+2*i}:{113+2*i}], v[{80+2*i}:{81+2*i}], v[76:77] neg_lo:[0,1] neg_hi:[0,1]")
    for i in range(12):
        a = 104 if i < 8 else 108
        d = vr(112 + 2 * i, 2)
        if i in (0, 8): c += L(f"v_pk_mul_f32 v[{a+2}:{a+3}], {d}, {d}\nv_mov_b32 v{a}, v{112+2*i}\nv_mov_b32 v{a+1}, v{113+2*i}")
        else: c += L(f"v_pk_fma_f32 v[{a+2}:{a+3}], {d}, {d}, v[{a+2}:{a+3}]\nv_pk_add_f32 v[{a}:{a+1}], v[{a}:{a+1}], {d}")
    c += L(f"""v_add_f32 v104, v104, v105
v_add_f32 v105, v106, v107
v_add_f32 v108, v108, v109
v_add_f32 v109, v110, v111
v_fmac_f32 v104, s{sSpin}, v108
v_fmac_f32 v105, s{sSpin}, v109
s_nop 1
v_add_f32_dpp v104, v104, v104 row_ror:8 row_mask:0xf bank_mask:0xf
v_add_f32_dpp v105, v105, v105 row_ror:8 row_mask:0xf bank_mask:0xf""")
    ra, rb = xreduce(104, 106, "v_add_f32"), xreduce(105, 107, "v_add_f32")
    for x, y in zip(ra, rb): c += [x, y]
    c += L(f"""ds_write_b64 v59, v[104:105]
s_waitcnt lgkmcnt(0)
s_barrier
ds_read_b64 v[104:105], v58
ds_read_b64 v[106:107], v58 offset:64
ds_read_b64 v[108:109], v58 offset:128
ds_read_b64 v[110:111], v58 offset:192
v_pk_add_f32 v[104:105], v[104:105], v[106:107]
v_pk_add_f32 v[108:109], v[108:109], v[110:111]
v_pk_add_f32 v[104:105], v[104:105], v[108:109]
v_mul_f32 v104, {hex(f2u(1.0/640))}, v104
v_mul_f32 v105, {hex(f2u(1.0/640))}, v105
v_fma_f32 v105, -v104, v104, v105
v_max_f32 v105, 0, v105
v_add_f32 v104, v104, v76
v_cvt_pk_bf16_f32 v104, v105, v104
v_and_b32 v108, 0xffff0000, v104
v_mov_b32 v109, v108""")
    for i in range(12):
        d = vr(80 + 2 * i, 2)
        c += L(f"""v_pk_add_f32 {d}, {d}, v[108:109] neg_lo:[0,1] neg_hi:[0,1]
v_cvt_pk_bf16_f32 v{64+i}, v{80+2*i}, v{81+2*i}""")
        if i == 3: c.append(I(f"buffer_store_dwordx4 v[64:67], v56, {sr(sWS,4)}, s{sT2} offen sc1", tag_w="Xst"))
        if i == 7: c.append(I(f"buffer_store_dwordx4 v[68:71], v56, {sr(sWS,4)}, s{sT3} offen sc1", tag_w="Xst"))
        if i == 11: c.append(I(f"buffer_store_dwordx4 v[72:75], v57, {sr(sWS,4)}, s{sT2} offen sc1", tag_w="Xst"))
    c += L(f"""v_lshlrev_b32 v104, 16, v104
v_add_f32 v104, {hex(f2u(1e-5))}, v104
v_cvt_pk_bf16_f32 v104, v104, v104
v_lshlrev_b32 v104, 16, v104
v_sqrt_f32 v104, v104
v_xor_b32 v106, 0x80000000, v108
v_cvt_pk_bf16_f32 v104, v104, v104
v_lshlrev_b32 v104, 16, v104
v_rcp_f32 v104, v104
s_nop 0
v_mul_f32 v107, {hex(f2u(CC))}, v104""")
    c.append(I(f"buffer_store_dwordx2 v[106:107], v61, {sr(sWS,4)}, s{sOffP} offen sc1", tag_w="Xst"))
    c += stamp(1)
    c += raw_reads(0)
    c.append(barrier(["st0", "rawrd0"]))
    c += w_reads0(0) + w_reads0(1)
    c += L(f"""v_readfirstlane_b32 s{sNonce}, v{vNon}
s_nop 3
s_cmp_lg_u32 s{sNonce}, 0
s_cbranch_scc0 L_nonce
L_nonce_ok:""")
    OUTL.append(("nonce", L(f"""L_nonce:
s_mov_b32 s{sSpin}, {SPIN_MAX}
L_nonce2:
buffer_load_dword v{vNon}, v60, {sr(sR,4)}, 0 offen sc1
s_waitcnt vmcnt(0)
v_readfirstlane_b32 s{sNonce}, v{vNon}
s_nop 3
s_cmp_lg_u32 s{sNonce}, 0
s_cbranch_scc1 L_nonce_ok
s_sub_u32 s{sSpin}, s{sSpin}, 1
s_cmp_lg_u32 s{sSpin}, 0
s_cbranch_scc1 L_nonce2
s_branch L_nonce_ok""")))
    c += stamp(2)
    blk(c, "pro")
    RM = PAR("RM", 2)
    sQ3, sH3 = 100, 101
    pre3 = f"""s_and_b32 s{sT2}, s2, 7
s_lshr_b32 s{sT3}, s2, 3
s_and_b32 s{sQ3}, s{sT2}, {(1 << (3 - RM)) - 1}
s_lshl_b32 s{sQ3}, s{sQ3}, {RM}
s_lshr_b32 s{sH3}, s{sT3}, {5 - RM}
s_add_u32 s{sQ3}, s{sQ3}, s{sH3}
s_lshl2_add_u32 s{sQ3}, s{sQ3}, s{sW}
s_lshr_b32 s{sH3}, s{sT2}, {3 - RM}
s_lshl_b32 s{sH3}, s{sH3}, {5 - RM}
s_and_b32 s{sT3}, s{sT3}, {(1 << (5 - RM)) - 1}
s_add_u32 s{sH3}, s{sH3}, s{sT3}"""
    su = L(pre3) + L(f"""s_mul_i32 s{sOffG}, s{sH3}, {20*6144}
s_add_u32 s{sOffG}, s{sOffG}, s{sM6}
s_add_u32 s{sOffG}, s{sOffG}, {hex(GP_OFF)}
s_lshl_b32 s{sM1}, s{sW}, 10
s_mul_i32 s{sM5}, s{sW}, 5120
s_lshl_b32 s{sM4}, s{sW}, 12
s_mul_i32 s{sT2}, s{sQg}, {240*4096}
s_add_u32 s{sT2}, s{sT2}, {hex(OH_OFF)}
s_mul_i32 s{sT3}, s{sH}, {6*4096}
s_add_u32 s{sOffO}, s{sT2}, s{sT3}
s_mul_i32 s{sT2}, s{sQ3}, {240*4096}
s_add_u32 s{sT2}, s{sT2}, {hex(OH_OFF + 192*4096)}
s_mul_i32 s{sT3}, s{sH3}, 3""")
    for T3 in range(3):
        su += L(f"""s_lshr_b32 s{sSpin}, s{sT3}, 1
s_lshl_b32 s{sSpin}, s{sSpin}, 12
s_add_u32 s{sOffH+T3}, s{sT2}, s{sSpin}
s_and_b32 s{sSpin}, s{sT3}, 1
s_lshl_b32 s{sSpin}, s{sSpin}, 9
s_add_u32 s{sOffH+T3}, s{sOffH+T3}, s{sSpin}
s_add_u32 s{sT3}, s{sT3}, 1""")
    su += L(f"""s_sub_u32 s{sT2}, s2, 240
s_min_u32 s{sT2}, s2, s{sT2}""")
    su += sdivmod(sT3, sSpin, sT2, 10)
    su += L(f"""s_lshl_b32 s{sOffRo}, s{sT3}, 8
s_lshl3_add_u32 s{sOffRo}, s{sW}, s{sOffRo}
s_mul_i32 s{sOffRo}, s{sOffRo}, 1280
s_lshl_b32 s{sFl}, s{sSpin}, 7
s_add_u32 s{sOffRo}, s{sOffRo}, s{sFl}
s_lshl_b32 s{sOffRd}, s{sT3}, 6
s_lshl4_add_u32 s{sOffRd}, s{sT1}, s{sOffRd}
s_lshl3_add_u32 s{sOffRd}, s{sT0}, s{sOffRd}
s_mul_i32 s{sOffRd}, s{sOffRd}, 1280
s_add_u32 s{sOffRd}, s{sOffRd}, s{sFl}
s_lshl2_add_u32 s{sSpin}, s{sSpin}, s{sW}""")
    su += sdivmod(sFl, sOffP, sSpin, 10)
    su += L(f"""s_mul_i32 s{sFl}, s{sFl}, 192
s_lshl3_add_u32 s{sFl}, s{sT3}, s{sFl}
s_mul_i32 s{sFl}, s{sFl}, 10
s_add_u32 s{sFl}, s{sFl}, s{sOffP}
s_lshl_b32 s{sFl}, s{sFl}, 10
s_add_u32 s{sOffDo}, s{sFl}, {hex(WOP_OFF)}""")
    su += sdivmod(sFl, sOffP, sSpin, 5)
    su += L(f"""s_mul_i32 s{sFl}, s{sFl}, 48
s_lshl1_add_u32 s{sFl}, s{sT3}, s{sFl}
s_mul_i32 s{sFl}, s{sFl}, 5
s_add_u32 s{sFl}, s{sFl}, s{sOffP}
s_lshl_b32 s{sFl}, s{sFl}, 10
s_add_u32 s{sOffDd}, s{sFl}, {hex(WDP_OFF)}""")
    su2 = sdivmod(sT3, sSpin, sT2, 48)
    su2 += [L(f"""s_cmp_ge_u32 s{sSpin}, 24
s_cselect_b32 s{pBx}, s{pWu}, s{pWg}
s_cselect_b32 s{pBx+1}, s{pWu+1}, s{pWg+1}
s_cselect_b32 s{sT2}, 1, 0
s_cselect_b32 s{sFl}, 24, 0""")]
    su2 += L(f"""s_sub_u32 s{sSpin}, s{sSpin}, s{sFl}
s_lshl_b32 s{sOffR}, s{sT3}, 7
s_lshl4_add_u32 s{sOffR}, s{sT1}, s{sOffR}
s_lshl2_add_u32 s{sOffR}, s{sT0}, s{sOffR}
s_mul_i32 s{sOffR}, s{sOffR}, 3072
s_lshl_b32 s{sFl}, s{sSpin}, 7
s_add_u32 s{sOffR}, s{sOffR}, s{sFl}
s_lshl2_add_u32 s{sSpin}, s{sSpin}, s{sW}""")
    su2 += sdivmod(sFl, sOffP, sSpin, 3)
    su2 += L(f"""s_mul_i32 s{sFl}, s{sFl}, 20
s_lshl2_add_u32 s{sFl}, s{sT3}, s{sFl}
s_mul_i32 s{sFl}, s{sFl}, 6
s_lshl1_add_u32 s{sFl}, s{sOffP}, s{sFl}
s_add_u32 s{sFl}, s{sFl}, s{sT2}
s_lshl_b32 s{sFl}, s{sFl}, 10
s_add_u32 s{sOffD}, s{sFl}, {hex(GP_OFF)}
s_lshl_b32 s{sFg}, s2, 2
s_add_u32 s{sFg}, s{sFg}, {hex(FG)}""")
    su2 += [L(f"s_cmp_eq_u32 s{sW}, 0\ns_cselect_b32 s{sFg}, s{sFg}, 0x40000000")]
    su2 += L(f"""s_lshr_b32 s{sT2}, s{sH}, 3
s_lshl2_add_u32 s{sFl}, s{sQg}, s{sT2}
s_lshl_b32 s{sFl}, s{sFl}, 7
s_and_b32 s{sT2}, s{sH}, 7
s_lshl2_add_u32 s{sFl}, s{sT2}, s{sFl}
s_add_u32 s{sFl}, s{sFl}, {hex(FO)}
s_mul_i32 s{sOffA}, s{sNb}, 192
s_mul_i32 s{sT2}, s{sS}, 48
s_add_u32 s{sOffA}, s{sOffA}, s{sT2}
s_mul_i32 s{sOffA}, s{sOffA}, 10240
s_add_u32 s{sOffA}, s{sOffA}, s{sM5}
s_add_u32 s{sOffA}, s{sOffA}, {hex(WOP_OFF)}
s_lshl1_add_u32 s{sOffBB}, s{sMb}, s{sT1}
s_mul_i32 s{sOffBB}, s{sOffBB}, 240
s_add_u32 s{sOffBB}, s{sOffBB}, s{sT2}
s_add_u32 s{sOffBB}, s{sOffBB}, s{sT0}
s_lshl_b32 s{sOffBB}, s{sOffBB}, 12
s_add_u32 s{sOffBB}, s{sOffBB}, {hex(OH_OFF)}
s_lshr_b32 s{sT2}, s{sS}, 1
s_lshl1_add_u32 s{sQd}, s{sMb}, s{sT2}""") + srd(sR, pBx, 640 * 1536 * 2)
    def weave(vm, sal):
        ch = split(vm); out = []
        per = -(-len(sal) // len(ch))
        for k, cc in enumerate(ch):
            out += cc
            for y in sal[k * per:(k + 1) * per]: out += y if isinstance(y, list) else [y]
        return out
    XH = PAR("XH", 15)
    XF = PAR("XF", 50); XQ = PAR("XQ", 110)
    q0a = pace(rawdma(1) + dma_stage(1), 0, PAR("Q0", 44)) + pace(dma_stage(2) + wpf() + dma_stage(3) + wpf(), 56, XH * 10 - 2)
    fl = set_flag(f"s{sFl}", "Xst", after=XF); pl_ = poll_load(vPd, vPa, f"s{sFg}", after=XQ)
    ch = split(q0a)
    for x in (fl, pl_):
        k = next((i for i, cc in enumerate(ch) if [y for y in cc if y.kind == 'vmem'][0].after > x.after), len(ch))
        ch.insert(k, [x])
    for k in range(8, 14): ch[k] = ch[k] + su0[(k - 8) * 1:(k - 7) * 1]
    ch[15] = ch[15] + su0[6:13]; ch[16] = ch[16] + su0[13:21]; ch[17] = ch[17] + su0[21:]
    for cc in ch:
        for x in cc: x.reads.discard('stg')
    sch(p1_first(0, XH, extra=[x for cc in ch for x in cc] + vu), "p1_0a", vm_min=3)
    fs = lambda k: blk(stamp(k)) if "fine1" in KN else None
    fs(14)
    blk(poll_cmp(vPd, 1) + poll_branch("xn", vPd, vPa, f"s{sFg}"))
    fs(15)
    bl = lambda k: b_loads(('a', 64 * (k % 2))) + b_loads(('a', 64 * (k % 2) + 32))
    sch(p1_first(XH, 24, extra=pace(bl(1), 0, 56)), "p1_0b", vm_min=3); fs(16)
    sch(p1_quad(1, vm=weave(dma_stage(4) + dma_stage(5) + wpf() + stat_loads() + bl(2), su)), "p1_1"); fs(17)
    sch(p1_quad(2, vm=weave(dma_stage(6) + dma_stage(7) + bl(3), su2)), "p1_2"); fs(18)
    sch(p1_quad(3, vm=dma_stage(8) + dma_stage(9) + bl(4) + dma_stage(10)), "p1_3")
    if "stagtest" in KN:
        blk(L(f"""s_and_b32 s{sSpin}, s{sH}, 1
s_mul_i32 s{sSpin}, s{sSpin}, 150
L_stag:
s_cmp_eq_u32 s{sSpin}, 0
s_cbranch_scc1 L_stag2
s_sleep 1
s_sub_u32 s{sSpin}, s{sSpin}, 1
s_branch L_stag
L_stag2:"""))
    blk(stamp(3))
    MERGE = "nomerge" not in KN
    big = p1_quad(4, vm=dma_stage(11) + dma_stage(12)) + first_tile(192) + p2_iter(0, base=192 + 48)
    nbig = 336
    if not MERGE:
        sch(big, "p1_last"); big = []; nbig = 0
    blk(stamp(4))
    GC = PAR("GC", 9)
    XP = PAR("XP", 9)
    for t in range(1, 14):
        ex = []; post = []; btag = []
        if "tlb" in KN and t == PAR("TT", 8):
            x = I(f"buffer_load_dword v{vDum}, v60, {sr(sWS,4)}, 0 offen"); x.writes = set()
            ex += L(f"v_lshlrev_b32 v60, {PAR('TS', 21)}, v0") + [x]
        if t == 1: ex += xr
        if t == 3: ex += xs
        if t == 5: btag = ["Gst"]
        if t == 6: ex += [set_flag(f"s{sFg}", None)] + L(f"s_add_u32 s{sFg}, s{sFg}, {FW-FG}")
        if t == GC + 1: gq = split(dma_stage(27) + dma_stage(28))
        if GC < t <= 12:
            n_ = -(-len(gq) // 3 // (13 - t)) * 3
            ex += [x for ch in gq[:n_] for x in ch]; gq = gq[n_:]
        if t == GC - 1: ex += L(f"s_mov_b32 s{sT0}, {hex(FG)}") + [poll_load(vTmp, vL16, f"s{sT0}", 4)]
        if t == GC: post += late(poll_cmp(vTmp, 4), nbig + 60)
        XN_ = PAR("XN", 2)
        if "xpf" in KN and XP <= t <= 13:
            if t == XP: ex += L(f"""s_and_b32 s{sPf}, s{sH}, 3
s_lshl_b32 s{sPf}, s{sPf}, 11
s_mul_i32 s{sT2}, s{sQg}, {20*4096}
s_add_u32 s{sPf}, s{sPf}, s{sT2}""")
            for k in range(XN_):
                if (t - XP) * XN_ + k < 10:
                    for o in (0, 1024):
                        x = I(f"buffer_load_dwordx4 v[60:63], v{vL16}, {sr(sWS,4)}, s{sPf} offen offset:{o} sc1")
                        if (t - XP) * XN_ + k < 9 or o == 0: x.writes = set()
                        ex.append(x)
                    ex += L(f"s_add_u32 s{sPf}, s{sPf}, 8192")
        big += p2_iter(t, base=nbig, extra=ex, post=post, btag=btag); nbig += 96
        if not MERGE or t == GC:
            sch(big, f"p2_{t}"); big = []; nbig = 0
        if t == GC and "stagtest" not in KN: blk(poll_branch("g", vTmp, vL16, f"s{sT0}", 4))
    blk(stamp(5))
    sch(big + p2_iter(14, base=nbig, btag=["Wst", "st27"]) + tail_pv(nbig + 96), "tail", vm_min=3)
    blk(L("s_cbranch_vccnz L_fb\nL_fb_back:") + stamp(6))
    steps = p3_steps()
    setup = L(f"""v_and_b32 v{vT}, 32, v0
v_lshlrev_b32 v{vT}, 4, v{vT}
v_add_u32 v{vT}, v{vT}, v{vL16}
s_and_b32 s{sT3}, s{sW}, 1
s_lshl1_add_u32 s{sT1}, s{sMb}, s{sT3}
s_lshl2_add_u32 s{sT1}, s{sT1}, s{sS}
s_lshl_b32 s{sT1}, s{sT1}, 7
s_add_u32 s{sT1}, s{sT1}, {hex(FO)}
v_and_b32 v{vFa}, 7, v0
v_lshlrev_b32 v{vFa}, 2, v{vFa}
s_mul_i32 s{sT3}, s{sT3}, 5120
s_add_u32 s{sT3}, s{sT3}, {obase(0)}
v_add_u32 v{vOA}, s{sT3}, v{vL16}
s_lshr_b32 s{sT2}, s{sW}, 1
s_lshl_b32 s{sT2}, s{sT2}, 12
s_add_u32 s{sT2}, s{sT2}, {20480+obase(0)}
v_add_u32 v{vOB}, s{sT2}, v{vL16}
v_add_u32 v{vDA}, {obase(24)}, v{vL16}
s_and_b32 s{sT2}, s{sW}, 1
s_lshl_b32 s{sT2}, s{sT2}, 12
v_add_u32 v{vWr}, s{sT2}, v{vL16}
s_mov_b32 s{sOffR}, s{sOffA}
s_and_b32 s{sT2}, s{sH}, 7
s_mul_i32 s{sT3}, s{sT2}, {3*20480}
s_add_u32 s{sOffA}, s{sOffA}, s{sT3}
s_mov_b32 s{sAend}, s{sOffA}
s_add_u32 s{sAbeg}, s{sOffA}, {3*20480}
s_mul_i32 s{sT3}, s{sT2}, {3*8192}
s_add_u32 s{sBend}, s{sOffBB}, s{sT3}
s_add_u32 s{sBbeg}, s{sBend}, {3*8192}""")
    def ownw(sg):
        base = obase(sg) + 20480
        r = L(f"s_lshr_b32 s{sT2}, s{sW}, 1\ns_xor_b32 s{sT2}, s{sT2}, s{sMb}\ns_bitcmp1_b32 s{sT2}, 0\ns_cbranch_scc1 L_ow{sg}\nv_add_u32 v38, {base}, v{vWr}")
        for ks in range(2):
            for j in range(4):
                x = I(f"ds_write_b128 v38, {ar((8*(2*sg+ks)+j)*4,4)} offset:{ks*8192+j*1024}"); x.kind = 'wait'; r.append(x)
        x = I("s_waitcnt lgkmcnt(0)"); x.kind = 'label'; r.append(x)
        return r + L(f"L_ow{sg}:")
    for k in range(9):
        body = (setup if k == 3 else []) + join_steps(steps[k:k+1] if k < 8 else steps[8:])
        if k == 8:
            body += [I("s_barrier", tag_r="ot0", wr=['stg'], rd=['stg2'], after=48 + 26)] + o_reads(0)
        sch(body, f"p3s{k}", vm_min=2)
        if k == WC and "stagtest" not in KN: blk(poll_cmp(vFl, 4) + poll_branch("w", vFl, vL16, f"s{sT0}", 4))
        if k == OC and "stagtest" not in KN: blk(poll_cmp(vFo2, 1) + poll_branch("o", vFo2, vFa, f"s{sT1}"))
        if k in (5, 6, 7): blk(ownw(k - 5))
        if "fine" in KN: blk(stamp(14 + k))
    c = stamp(7) + stamp(8)
    if OC == 9:
        c += dmaB(0) + dmaB(1) + dmaB(2)
        c.append(I("s_barrier", tag_r="ot0"))
        c += o_reads(0)
    c += stamp(9)
    blk(c, "o_pro")
    osetup = L(f"""s_lshl_b32 s{sT1}, s{sMb}, 8
s_add_u32 s{sT1}, s{sT1}, {hex(FH)}
v_lshlrev_b32 v{vFa}, 2, v0
s_and_b32 s{sT2}, s{sS}, 1
s_lshl1_add_u32 s{sT2}, s{sNb}, s{sT2}
s_lshr_b32 s{sT3}, s{sS}, 1
s_lshl1_add_u32 s{sOffRo}, s{sT2}, s{sT3}
s_mul_i32 s{sOffRo}, s{sOffRo}, {24*5120}
s_lshl_b32 s{sM3}, s{sW}, 13
s_add_u32 s{sOffRo}, s{sOffRo}, s{sM3}
s_add_u32 s{sOffRo}, s{sOffRo}, {hex(WDP_OFF)}
s_mul_i32 s{sT2}, s{sT2}, 160
s_lshl2_add_u32 s{sOffO}, s{sQd}, s{sW}
s_mul_i32 s{sOffO}, s{sOffO}, {16*1280}
s_add_u32 s{sOffO}, s{sOffO}, s{sT2}
s_mul_i32 s{sT3}, s{sT3}, 24
s_add_u32 s{sT3}, s{sT3}, 192
s_lshl_b32 s{sT3}, s{sT3}, 12
s_add_u32 s{sT3}, s{sT3}, s{sM1}
s_add_u32 s{sT3}, s{sT3}, {hex(OH_OFF)}
s_xor_b32 s{sOffRd}, s{sQd}, 1
s_mul_i32 s{sOffRd}, s{sOffRd}, {240*4096}
s_add_u32 s{sOffRd}, s{sOffRd}, s{sT3}
s_mul_i32 s{sOffG}, s{sQd}, {240*4096}
s_add_u32 s{sOffG}, s{sOffG}, s{sT3}
s_lshl2_add_u32 s{sT0}, s{sMb}, s{sNb}
s_lshl2_add_u32 s{sT3}, s{sT0}, s{sS}
s_lshl2_add_u32 s{sT2}, s{sT3}, s{sW}
s_mul_i32 s{sOffP}, s{sT2}, 10240
s_add_u32 s{sOffP}, s{sOffP}, {hex(PART_OFF)}
s_lshl2_add_u32 s{sFl}, s{sT0}, s{sW}
s_lshl_b32 s{sFl}, s{sFl}, 7
s_lshl2_add_u32 s{sFl}, s{sS}, s{sFl}
s_add_u32 s{sFl}, s{sFl}, {hex(FP)}
v_and_b32 v{vOa}, 15, v0
v_mul_u32_u24 v{vOa}, 1280, v{vOa}
v_lshrrev_b32 v{vPo}, 4, v0
v_lshl_add_u32 v{vOa}, v{vPo}, 3, v{vOa}
v_and_b32 v{vFa2}, 7, v0
v_lshlrev_b32 v{vFa2}, 2, v{vFa2}""") + srd(sOut, pOut, 2048 * 640 * 2) + L(f"""s_lshl_b32 s{sFg}, s{sT3}, 7
s_add_u32 s{sFg}, s{sFg}, {hex(FP)}
s_lshl4_add_u32 s{sT2}, s{sT0}, s{sS}
s_mul_i32 s{sOffK}, s{sT2}, 10240
s_add_u32 s{sOffK}, s{sOffK}, {hex(PART_OFF)}
s_lshl2_add_u32 s{sT2}, s{sT3}, s{sW}
s_mul_i32 s{sOffD}, s{sT2}, 2560
s_add_u32 s{sOffD}, s{sOffD}, {hex(HP_OFF)}
s_xor_b32 s{sT2}, s{sT2}, 8
s_mul_i32 s{sOffDo}, s{sT2}, 2560
s_add_u32 s{sOffDo}, s{sOffDo}, {hex(HP_OFF)}
s_xor_b32 s{sOffDd}, s{sFg}, 0x100
s_lshl2_add_u32 s{sOffDd}, s{sW}, s{sOffDd}
s_add_u32 s{sOffDd}, s{sOffDd}, 16""")
    assert len(osetup) <= 60
    opoll = L(f"s_mov_b32 s{sOffB}, s{sT1}\nv_mov_b32 v39, v{vFa}") + [poll_load(vFo2, 39, f"s{sOffB}")]
    for sg in range(4):
        ex = []; dbo = None
        if EARLY:
            if sg == 0: dbo = dmaB(3) + dmaA(3) + dmaB(4)
            if sg == 1: dbo = dmaA(4) + dmaB(5) + dmaA(5)
        else:
            if sg == 0: dbo = dmaA(3) + dmaA(4)
            if sg == 1: dbo = dmaB(3) + dmaB(4) + dmaB(5) + dmaA(5)
        if sg == 2: ex = HST[:3] + L(f"s_mov_b32 s{sOffV}, {hex(FW2)}") + [poll_load(48, vL16, f"s{sOffV}", 4)]
        if sg == 3: ex = HST[3:] + L(f"s_add_u32 s{sQg}, s{sQg}, {hex(FH)}")
        pre = ([] if EARLY else opoll) + L(f"s_lshl_b32 s{sQg}, s{sQ3}, 7\ns_lshl2_add_u32 s{sQg}, s{sH3}, s{sQg}") if sg == 0 else []
        sch(o_block(sg, ex, pre=pre, mid=osetup[sg * 15:(sg + 1) * 15], dbo=dbo), f"o{sg}", vm_min=2)
        if sg == 0 and not EARLY: blk(poll_cmp(vFo2, 1) + poll_branch("o", vFo2, 39, f"s{sOffB}"))
        if "fine2" in KN: blk(stamp(16 + sg))
    base_state = {r: AD[r].base for r in (vOA, vOB)}
    if "fine2" in KN: blk(stamp(14))
    P.block("ol_top", L(f"s_mov_b32 s{sH}, 0") + L(".p2align 6\nL_o:")); P.trace.append(("ol_top", {}))
    lb = []
    NIT = PAR('NIT', 4)
    for q in range(4):
        ex = L(f"s_cmp_eq_u32 s{sH}, {NIT-1}\ns_cselect_b32 s{sT2}, s{sT1}, 0x40000000") + [poll_load(vFl, vFa, f"s{sT2}")] if q == 0 else []
        if q == 3: ex = L(f"s_cmp_eq_u32 s{sH}, 0\ns_cselect_b32 s{sT2}, s{sQg}, 0x40000000") + [set_flag(f"s{sT2}", "Hst")]
        b = o_block(4 + q, ex)
        for x in b:
            for attr in ('tag_r', 'tag_w'):
                t = getattr(x, attr)
                if t is None: continue
                if t == "Hst": continue
                ts = t if isinstance(t, list) else [t]
                setattr(x, attr, (lambda ts: lambda env: [u[:2] + str(int(u[2:]) + 4 * env['it']) for u in ts])(ts))
        if "ohitA" in KN: b = [x for x in b if not x.text.startswith(f"s_add_u32 s{sOffA}, s{sOffA}")]
        if "ohitB" in KN: b = [x for x in b if not x.text.startswith(f"s_add_u32 s{sOffBB}, s{sOffBB}")]
        if "onods" in KN: b = [x for x in b if x.kind != 'ds']
        if "onodma" in KN: b = [x for x in b if not (x.kind == 'vmem' and ' lds' in x.text)]
        if "onobar" in KN: b = [x for x in b if x.kind != 'barrier']
        if "onosc1" in KN:
            for x in b:
                if ' lds' in x.text: x.text = x.text.replace(" sc1", "")
        b = schedule(b, f"ol{q}", verbose=dbg and "v" in KN, vm_min=3)
        if q == 3: b += L(f"s_add_u32 s{sH}, s{sH}, 1\ns_cmp_lt_u32 s{sH}, {NIT}\ns_cbranch_scc1 L_o")
        P.block(f"ol{q}", b)
    assert base_state == {r: AD[r].base for r in (vOA, vOB)}, "loop address state"
    for it in range(NIT): P.trace += [(f"ol{q}", {'it': it}) for q in range(4)]
    if "rewind" in KN:
        pos = sum(isize(x) for b_ in P.blocks for x in b_[1]) * 1.03
        new = int(pos + 1500) // 8192
        if new < cp[0]:
            blk(L(f"s_sub_u32 s62, s62, {(cp[0]-new)*8192}\ns_subb_u32 s63, s63, 0")); cp[0] = new
    if "fine2" in KN: blk(stamp(15))
    blk(poll_cmp(48, 4) + poll_branch("w2", 48, vL16, f"s{sOffV}", 4))
    blk(poll_cmp(vFl, 1) + poll_branch("h", vFl, vFa, f"s{sT1}"))
    dsetup = L(f"""s_lshl_b32 s{sT2}, s{sW}, 11
v_add_u32 v45, s{sT2}, v{vL16}
s_lshr_b32 s{sT2}, s{sW}, 1
s_lshl_b32 s{sT2}, s{sT2}, 10
s_and_b32 s{sT3}, s{sW}, 1
s_lshl3_add_u32 s{sT2}, s{sT3}, s{sT2}
s_add_u32 s{sT2}, s{sT2}, 8192
v_add_u32 v46, s{sT2}, v{vL16}
v_add_u32 v47, {LDS_X}, v{vL16}
v_and_b32 v38, 15, v0
v_mul_u32_u24 v38, 1280, v38
v_bfe_u32 v39, v0, 4, 1
v_lshl_add_u32 v38, v39, 5, v38
v_lshrrev_b32 v39, 5, v0
v_lshl_add_u32 v38, v39, 4, v38
s_cmp_eq_u32 s{sW}, s{sS}
s_cmov_b32 s{sOffP}, 0x40000000""")
    NB1 = [int(x) for x in os.environ.get("NB1", "4,4,5,5").split(",")]
    nb1 = 0
    dsetup += L(f"s_mov_b32 s{sOffBB}, s{sOffG}\nv_lshlrev_b32 v37, 3, v0")
    for sg in range(20, 24):
        ex = [x for k in range(nb1, nb1 + NB1[sg - 20]) for x in d_bload(0, k)]; nb1 += NB1[sg - 20]
        sch(o_block(sg, ex, mid=dsetup if sg == 23 else []), f"o{sg}", vm_min=2)
    blk(stamp(10))
    vQ4, vQ2, vLw, vOw = 45, 46, 47, 38
    def pk(dst, t, j):
        a = vAc + (t * 4 + j) * 4
        return L(f"v_cvt_pk_bf16_f32 v{dst}, v{a}, v{a+1}\nv_cvt_pk_bf16_f32 v{dst+1}, v{a+2}, v{a+3}")
    pkall = []; ps = []; n = 0
    for j in range(4):
        for tp in range(2):
            o = vPk + n * 4
            pkall += pk(o, 2 * tp, j) + pk(o + 2, 2 * tp + 1, j)
            it = [I(f"buffer_store_dwordx4 {vr(o,4)}, v{vL16}, {sr(sWS,4)}, s{sOffP} offen offset:{(n%4)*1024} sc1", tag_w="Pst")]
            n += 1
            if n % 4 == 0: it.append(I(f"s_add_u32 s{sOffP}, s{sOffP}, 4096"))
            ps.append(it)
    for jp in range(2):
        o = vPk + n * 4
        pkall += pk(o, 4, 2 * jp) + pk(o + 2, 4, 2 * jp + 1)
        ps.append([I(f"buffer_store_dwordx4 {vr(o,4)}, v{vL16}, {sr(sWS,4)}, s{sOffP} offen offset:{jp*1024} sc1", tag_w="Pst")])
        n += 1
    own = L(f"s_cmp_lg_u32 s{sW}, s{sS}\ns_cbranch_scc1 L_own")
    for k in range(10):
        x = I(f"ds_write_b128 v{vLw}, {vr(vPk+4*k,4)} offset:{1024*k}"); x.kind = 'wait'; own.append(x)
    x = I("s_waitcnt lgkmcnt(0)"); x.kind = 'label'; own.append(x)
    own += L("L_own:")
    xl = L(f"""s_and_b32 s{sT2}, s{sS}, 1
s_lshl1_add_u32 s{sT2}, s{sNb}, s{sT2}
s_mul_i32 s{sT2}, s{sT2}, 10
s_mul_i32 s{sT3}, s{sQd}, {20*4096}
s_add_u32 s{sT3}, s{sT3}, s{sM1}
s_add_u32 s{sT3}, s{sT3}, {hex(XR_OFF)}
v_bfe_u32 v2, v0, 4, 1
v_lshrrev_b32 v3, 5, v0
v_lshl_add_u32 v4, v2, 1, v3
v_add_u32 v4, s{sT2}, v4
v_and_b32 v5, 15, v0
v_lshlrev_b32 v5, 4, v5
v_lshrrev_b32 v6, 2, v4
v_lshl_add_u32 v6, v6, 12, v5
v_and_b32 v4, 3, v4
v_lshl_add_u32 v6, v4, 8, v6
v_add_u32 v7, 4096, v6
v_add_u32 v4, s{sT2}, v3
v_add_u32 v4, 8, v4
v_lshrrev_b32 v8, 2, v4
v_lshl_add_u32 v8, v8, 12, v5
v_and_b32 v4, 3, v4
v_lshl_add_u32 v8, v4, 8, v8
v_lshl_add_u32 v8, v2, 3, v8
buffer_load_dwordx4 {vr(vXr,4)}, v6, {sr(sWS,4)}, s{sT3} offen sc1
buffer_load_dwordx4 {vr(vXr+4,4)}, v7, {sr(sWS,4)}, s{sT3} offen sc1
buffer_load_dwordx2 {vr(vXr+8,2)}, v8, {sr(sWS,4)}, s{sT3} offen sc1
s_lshl2_add_u32 s{sT2}, s{sQd}, s{sW}
s_lshl_b32 s{sT2}, s{sT2}, 7
s_add_u32 s{sT2}, s{sT2}, {hex(ST_OFF)}
v_lshrrev_b32 v9, 1, v5
buffer_load_dword v10, v9, {sr(sWS,4)}, s{sT2} offen offset:4 sc1""")
    pl = []
    for i in range(1, 4):
        pl += L(f"s_add_u32 s{sT2}, s{sS}, {i}\ns_and_b32 s{sT2}, s{sT2}, 3\ns_mul_i32 s{sT2}, s{sT2}, {4*10240}\ns_add_u32 s{sT2}, s{sT2}, s{sOffK}")
        for tp in range(2): pl.append(I(f"buffer_load_dwordx4 {vr(vPl+i*12+tp*4,4)}, v{vQ4}, {sr(sWS,4)}, s{sT2} offen offset:{1024*tp} sc1"))
        pl.append(I(f"buffer_load_dwordx2 {vr(vPl+i*12+8,2)}, v{vQ2}, {sr(sWS,4)}, s{sT2} offen sc1"))
    ownrd = L(f"""v_add_u32 v{vLw}, {LDS_X}, v{vQ4}
ds_read_b128 {vr(vPl,4)}, v{vLw}
ds_read_b128 {vr(vPl+4,4)}, v{vLw} offset:1024
v_add_u32 v{vLw}, {LDS_X}, v{vQ2}
ds_read_b64 {vr(vPl+8,2)}, v{vLw}""")
    t0 = 112; vSm = 164; vXf = 184
    xun = []
    for tp in range(2):
        for i in range(2): xun.append(I(f"v_permlane16_swap_b32 v{vXr+4*tp+i}, v{vXr+4*tp+2+i}"))
    for k in range(10): xun += L(f"v_lshlrev_b32 v{vXf+2*k}, 16, v{vXr+k}\nv_and_b32 v{vXf+2*k+1}, 0xffff0000, v{vXr+k}")
    k2 = (math.sqrt(192.0) / math.log2(math.e)) ** 2
    xun += L(f"v_mul_f32 v10, v10, v10\nv_mul_f32 v10, {hex(f2u(k2))}, v10\nv_mul_f32 v11, {hex(f2u(-math.log2(math.e)))}, v10")
    own0 = []
    for k in range(10): own0 += L(f"v_lshlrev_b32 v{vSm+2*k}, 16, v{vPl+k}\nv_and_b32 v{vSm+2*k+1}, 0xffff0000, v{vPl+k}\nv_mul_f32 v{vSm+2*k}, v10, v{vSm+2*k}\nv_mul_f32 v{vSm+2*k+1}, v10, v{vSm+2*k+1}")
    psum = []
    for i in range(1, 4):
        for k in range(10):
            s_ = vPl + i * 12 + k; u = 132 + (k % 4) * 2
            psum += L(f"v_lshlrev_b32 v{u}, 16, v{s_}\nv_and_b32 v{u+1}, 0xffff0000, v{s_}\nv_fmac_f32 v{vSm+2*k}, v10, v{u}\nv_fmac_f32 v{vSm+2*k+1}, v10, v{u+1}")
    fin = []
    for t in range(5):
        h = vDc + 4 * t
        for i in range(4): fin += L(f"v_mul_f32 v{t0+4*t+i}, v11, v{h+i}\nv_exp_f32 v{t0+4*t+i}, v{t0+4*t+i}")
        for i in range(4): fin += L(f"v_mul_f32 v{h+i}, v{h+i}, v{vSm+4*t+i}")
        for i in range(4): fin += L(f"v_add_f32 v{t0+4*t+i}, 1.0, v{t0+4*t+i}\nv_rcp_f32 v{t0+4*t+i}, v{t0+4*t+i}")
        for i in range(4): fin.append(I(f"v_fmac_f32 v{vXf+4*t+i}, v{h+i}, v{t0+4*t+i}"))
        for i in range(2): fin.append(I(f"v_cvt_pk_bf16_f32 v{vXr+2*t+i}, v{vXf+4*t+2*i}, v{vXf+4*t+2*i+1}"))
        if t in (1, 3):
            tp = t // 2
            for i in range(2): fin.append(I(f"v_permlane16_swap_b32 v{vXr+4*tp+i}, v{vXr+4*tp+2+i}"))
            fin.append(I(f"buffer_store_dwordx4 {vr(vXr+4*tp,4)}, v{vOw}, {sr(sOut,4)}, s{sOffO} offen offset:{64*tp}"))
    fin.append(I(f"buffer_store_dwordx2 {vr(vXr+8,2)}, v{vOa}, {sr(sOut,4)}, s{sOffO} offen offset:128"))
    flat = lambda l: [x for it in l for x in it]
    hs = []
    for t in range(5):
        for i in range(2): hs.append(I(f"v_cvt_pk_bf16_f32 v{vHp+2*t+i}, v{vDo+4*t+2*i}, v{vDo+4*t+2*i+1}"))
        if t in (1, 3): hs.append(I(f"buffer_store_dwordx4 {vr(vHp+2*t-2,4)}, v{vL16}, {sr(sWS,4)}, s{sOffD} offen offset:{(t//2)*1024} sc1", tag_w="Pst"))
    hs.append(I(f"buffer_store_dwordx2 {vr(vHp+8,2)}, v37, {sr(sWS,4)}, s{sOffD} offen offset:2048 sc1", tag_w="Pst"))
    hl = [I(f"buffer_load_dwordx4 {vr(vHr+4*k,4)}, v{vL16}, {sr(sWS,4)}, s{sOffDo} offen offset:{1024*k} sc1") for k in range(2)]
    hl.append(I(f"buffer_load_dwordx2 {vr(vHr+8,2)}, v37, {sr(sWS,4)}, s{sOffDo} offen offset:2048 sc1"))
    hadd = []
    for k in range(10):
        u = 132 + (k % 4) * 2
        hadd += L(f"v_lshlrev_b32 v{u}, 16, v{vHr+k}\nv_and_b32 v{u+1}, 0xffff0000, v{vHr+k}\nv_add_f32 v{vDc+2*k}, v{vDc+2*k}, v{u}\nv_add_f32 v{vDc+2*k+1}, v{vDc+2*k+1}, v{u+1}")
    f3 = lambda k: blk(stamp(14 + k)) if "fine3" in KN else None
    B1 = [d_bload(0, k) for k in range(nb1, 24)]; B2 = [d_bload(1, k) for k in range(24)]
    psq = [pkall[4 * k:4 * k + 4] + ps[k] for k in range(10)]
    cfg = [[int(y) for y in x.split(".")] for x in os.environ.get("DC", "3.5.0,3.5.0,0.0.9,0.0.9,0.0.6").split(",")]
    def take(c_):
        q = [[B1.pop(0) for _ in range(c_[0])], [psq.pop(0) for _ in range(c_[1])], [B2.pop(0) for _ in range(c_[2])]]
        return flat(merge(q))
    PFG = PAR("PFG", 2)
    owndone = False
    for g in range(4):
        ex = take(cfg[g])
        XE = PAR("XE", 0)
        if XE and g == 3: ex = ex + xl
        if g == PFG: ex = ex + [set_flag(f"s{sFl}", "Pst")]
        sch(d_block(0, g, ex), f"d0{g}", vm_min=1)
        if not psq and not owndone: blk(own); owndone = True; assert g < 2
        f3(g)
    for x in hs:
        if x.tag_w: x.tag_w = "Qst"
    pollP = L(f"v_and_b32 v12, 12, v{vFa2}") + [poll_load(vFl, 12, f"s{sFg}")]
    setH = L(f"s_lshl2_add_u32 s{sT1}, s{sW}, s{sFg}\ns_add_u32 s{sT1}, s{sT1}, 16\nv_mov_b32 v13, 0")
    blk(hs); f3(4)
    PP = PAR("PP", 0)
    PC = PAR("PC", 1)
    QP = PAR("QP", 3)
    chkP = lambda: blk(poll_cmp(vFl, 1) + poll_branch("p", vFl, 12, f"s{sFg}") + pl)
    pq = [poll_load(16, 13, f"s{sT1}")]
    QF = PAR("QF", 1)
    qf = [set_flag(f"s{sOffDd}", "Qst")]
    sch(d_block(1, 0, (pollP if PP == 0 else []) + take(cfg[4]) + ([] if XE else xl) + (qf if QF == 0 else []), ownrd + setH), "d10", vm_min=1); f3(5)
    assert not B1 and not B2 and not psq
    if PC == 0: chkP()
    sch(d_block(1, 1, (qf if QF == 1 else []) + (pollP if PP == 1 else [])), "d11", vm_min=1); f3(6)
    if PC == 1: chkP()
    f3(7)
    PSK = PAR("PSK", 40)
    sch(d_block(1, 2, pq if QP == 2 else [], xun + own0 + (psum[:PSK] if PC == 0 else [])), "d12", vm_min=1); f3(8)
    chkQ = lambda: blk(poll_cmp(16, 1) + poll_branch("q", 16, 13, f"s{sT1}") + hl)
    if QP == 2: chkQ()
    rest = psum[PSK:] if PC == 0 else psum
    PSJ = PAR("PSJ", 0)
    sch(d_block(1, 3, pq if QP == 3 else [], rest[:PSJ]), "d13", vm_min=1); f3(9)
    if QP == 3: chkQ()
    f3(10)
    blk(stamp(11))
    blk(rest[PSJ:] + hadd + fin)
    c = []
    c += stamp_store(13)
    amp = os.environ.get("AMP")
    if amp and STAMPS:
        k1, k2, mult = map(int, amp.split(","))
        cy = 1 if mult == 0 else 0
        first = f"v_readlane_b32 s{sT0}, v{vSt}, {2*k1+cy}" if k1 >= 0 else f"s_mov_b32 s{sT0}, s{sNonce}"
        c += L(f"""{first}
v_readlane_b32 s{sT1}, v{vSt}, {2*k2+cy}
v_readlane_b32 s{sT2}, v{vSt}, 26
s_nop 4
s_sub_u32 s{sT0}, s{sT1}, s{sT0}
{f"s_mul_i32 s{sT0}, s{sT0}, {mult}" if mult else f"s_lshr_b32 s{sT0}, s{sT0}, 2"}
s_min_u32 s{sT0}, s{sT0}, 100000
L_amp:
s_memrealtime s[{sSt}:{sSt+1}]
s_waitcnt lgkmcnt(0)
s_sub_u32 s{sT1}, s{sSt}, s{sT2}
s_cmp_lt_u32 s{sT1}, s{sT0}
s_cbranch_scc1 L_amp""")
    c += L("L_end:\ns_endpgm")
    blk(c, "fin")
    for nm, ins in OUTL: P.block(nm, ins)
    P.insert_waits()
    n = P.fix_hazards(verbose=False)
    if dbg:
        tot, per = P.estimate()
        agg = {}
        for k, v in per.items():
            kk = k.rstrip('0123456789') if k[0] in 'od' or k.startswith('p1_') or k.startswith('p2_') else k
            agg[kk] = agg.get(kk, 0) + v
        print("; estimate", tot, agg, "pads", n)
    return P.text() + "\n" + gen_fallback()

def build(path, dbg=False):
    body = gen(dbg)
    body = "\n".join(l.strip() for l in body.split("\n"))
    txt = f"""; @launch grid=(256,1,1) block=(256,1,1) lds={LDS_TOTAL}
.amdgcn_target "amdgcn-amd-amdhsa--gfx950"
.text
.globl {KNAME}
.p2align 8
.type {KNAME},@function
{KNAME}:
L_code_begin:
{body}
L_code_end:
.set CODE_SLICES, (L_code_end-L_code_begin+8191)/8192
.fill 2112, 4, 0xbf800000
s_endpgm
.section .rodata,"a"
.p2align 6
.amdhsa_kernel {KNAME}
  .amdhsa_next_free_vgpr 512
  .amdhsa_next_free_sgpr 102
  .amdhsa_accum_offset 256
  .amdhsa_group_segment_fixed_size 0
  .amdhsa_kernarg_size 96
  .amdhsa_user_sgpr_count 2
  .amdhsa_user_sgpr_kernarg_segment_ptr 1
  .amdhsa_system_sgpr_workgroup_id_x 1
  .amdhsa_float_denorm_mode_32 3
.end_amdhsa_kernel
"""
    open(path, "w").write(txt)

if __name__ == "__main__":
    if "--stamps" in sys.argv:
        STAMPS = True; sys.argv.remove("--stamps")
    build(sys.argv[1], dbg=True)
```

```python
import sys, math, struct, os
from asmlib import *
KN = set(os.environ.get("KN", "").split(","))
def PAR(name, default): return type(default)(os.environ.get(name, default))
NAME = "recurrent_scan__sliding_block_cached__glu_gated_bilinear__prompt"
KNAME = NAME + "_kernel"
XN_OFF = 0; OH_OFF = 0x400000; GP_OFF = 0x2200000; WOP_OFF = 0x2600000; WDP_OFF = 0x2E00000; PART_OFF = 0x3000000
FL_OFF = 0x3A00000
FXN = FL_OFF; FO = FL_OFF + 0x8000; FH = FL_OFF + 0x10000; FP = FL_OFF + 0x18000; FG = FL_OFF + 0x20000; FW = FL_OFF + 0x21000; FW2 = FL_OFF + 0x22000; ST_OFF = FL_OFF + 0x30000
XR_OFF = 0x3B00000; HP_OFF = 0x3E00000
WS_SIZE = 0x4100000
STAMP_OFF = 0x8000000
SLOT = 28672; SL2 = 36864
LDS_X = 147456
LDS_TOTAL = 163840
STAMPS = False
SPIN_MAX = 200000
PSTR = 24576; LN_X = 86016
def sbase(st):
    if st < 10: return (114688 if (st // 2) % 2 == 0 else 0) + (st % 2) * PSTR
    if st <= 26: return (st % 4) * SLOT
    return {27: 114688, 28: 139264, 29: 86016, 30: 0, 31: 36864}[st]
OPERM = [3, 2, 0, 1]
def obase(sg): return OPERM[sg % 4] * SL2

def f2u(x): return struct.unpack('<I', struct.pack('<f', x))[0]
def vr(a, n): return f"v[{a}:{a+n-1}]" if n > 1 else f"v{a}"
def ar(a, n): return f"a[{a}:{a+n-1}]" if n > 1 else f"a{a}"
def sr(a, n): return f"s[{a}:{a+n-1}]" if n > 1 else f"s{a}"
def rr(x, n=4): return vr(x[1], n) if x[0] == 'v' else ar(x[1], n)
def L(txt): return [I(t) for t in txt.strip().split("\n") if t.strip()]
def mfma(d, a, b, c): return I(f"v_mfma_f32_16x16x32_bf16 {d}, {a}, {b}, {c}")

sWq, sK, sWS, sR = 4, 8, 12, 16
(sOffX, sOffY, sOffK, sOffV, sM6, sM3, sM1, sOffB, sH, sB, sW, sT0, sT1, sT2, sOffO, sScale,
 sOffG, sOffH0, sOffH1, sOffH2, sNonce, sOffR, sOffD, sOffRo, sOffRd, sOffDo, sOffDd,
 sS, sMb, sNb, sFl, sSpin, sT3, sOffP, sQg, sFg, sOffA, sOffBB, sM5, sM4, sPf, sQd) = range(20, 62)
sOffH = sOffH0
pX, pK, pV, pWq, pWo, pBx, pWg, pWu, pWd, pOut, pDbg, pWs = range(64, 88, 2)
sSt = 88; sV = 92; sXin = 96
sOut = sWq
vL16 = 1; vWo = 2; vKo = 5; vVo = 8; vRo = 11; vRo2 = 12; vL128 = 13; vFo = 14; vNon = 15
vRa = 16; vWa = 17; vKa = 19; vVa = 21; vGa = 25
vLs = 26; vT = 36; vSt = 31; vNm = 32; vTmp = 48
vAcc = 64; vQ = 64
vS01 = 160; vS23 = 176; vP01 = 208; vP23 = 224; vVs = 232
aK = 192; aR = 240; aA1 = 128; aDum = 255; aCs = 160
vOne = 48; vSta = 40; vCsT = 52; vXo = 44; vXo2 = 46; vSo = 32; vPa = 42; vPd = 43
vDum = 30
NSLICE = 10

class Addr:
    def __init__(self, reg, base): self.reg = reg; self.base = base
    def use(self, base, off):
        pre = []
        d = base + off - self.base
        if not (0 <= d < 65536):
            pre = [I(f"v_add_u32 v{self.reg}, {hex((base - self.base) & 0xffffffff)}, v{self.reg}")]
            self.base = base; d = off
        return pre, d
AD = {}
def dsr(op, dst, reg, base, off, **kw):
    pre, d = AD[reg].use(base, off)
    return pre + [I(f"{op} {dst}, v{reg} offset:{d}", **kw)]

def srd(d, base, size):
    return [I(f"s_mov_b32 s{d}, s{base}"), I(f"s_mov_b32 s{d+1}, s{base+1}"), I(f"s_mov_b32 s{d+2}, {hex(size)}"), I(f"s_mov_b32 s{d+3}, 0x20000")]
def xreduce(v, t, op):
    return L(f"""v_mov_b32 v{t}, v{v}
v_permlane16_swap_b32 v{v}, v{t}
{op} v{v}, v{v}, v{t}
v_mov_b32 v{t}, v{v}
v_permlane32_swap_b32 v{v}, v{t}
{op} v{v}, v{v}, v{t}""")
def divmod_const(q, r, src, c):
    magic = (65536 + c - 1) // c
    for x in range(1400): assert (x * magic) >> 16 == x // c
    return L(f"v_mul_u32_u24 v{q}, {magic}, v{src}\nv_lshrrev_b32 v{q}, 16, v{q}\nv_mul_u32_u24 v{r}, {c}, v{q}\nv_sub_u32 v{r}, v{src}, v{r}")
def sdivmod(q, r, src, c):
    magic = (65536 + c - 1) // c
    for x in range(1400): assert (x * magic) >> 16 == x // c
    return L(f"s_mul_i32 s{q}, s{src}, {magic}\ns_lshr_b32 s{q}, s{q}, 16\ns_mul_i32 s{r}, s{q}, {c}\ns_sub_u32 s{r}, s{src}, s{r}")

LIGHT = "light" in KN
def stamp(k):
    if not STAMPS or (LIGHT and k not in (0, 13)): return []
    return L(f"""s_memrealtime s[{sSt}:{sSt+1}]
s_memtime s[{sSt+2}:{sSt+3}]
s_waitcnt lgkmcnt(0)
v_writelane_b32 v{vSt}, s{sSt}, {2*k}
v_writelane_b32 v{vSt}, s{sSt+2}, {2*k+1}""")
def stamp_store(n):
    if not STAMPS: return []
    return stamp(n - 1) + L("s_waitcnt vmcnt(0)") + stamp(n) + L(f"""s_add_u32 s{sK}, s{pWs}, {hex(STAMP_OFF)}
s_addc_u32 s{sK+1}, s{pWs+1}, 0
s_mov_b32 s{sK+2}, {1024*256}
s_mov_b32 s{sK+3}, 0x20000
s_lshl2_add_u32 s{sT0}, s2, s{sW}
s_lshl_b32 s{sT0}, s{sT0}, 8
v_lshlrev_b32 v2, 2, v0
buffer_store_dword v{vSt}, v2, {sr(sK,4)}, s{sT0} offen""")

OUTL = []
def poll_load(dst, vaddr, soff, n=1, **kw):
    op = "buffer_load_dword" if n == 1 else "buffer_load_dwordx4"
    return I(f"{op} {vr(dst,n)}, v{vaddr}, {sr(sWS,4)}, {soff} offen sc1", **kw)
def poll_cmp(dst, n):
    if n == 1: return L(f"v_cmp_ne_u32 vcc, s{sNonce}, v{dst}")
    return L(f"""v_xor_b32 v{dst}, s{sNonce}, v{dst}
v_xor_b32 v{dst+1}, s{sNonce}, v{dst+1}
v_xor_b32 v{dst+2}, s{sNonce}, v{dst+2}
v_xor_b32 v{dst+3}, s{sNonce}, v{dst+3}
v_or3_b32 v{dst}, v{dst}, v{dst+1}, v{dst+2}
v_or_b32 v{dst}, v{dst}, v{dst+3}
v_cmp_ne_u32 vcc, 0, v{dst}""")
def poll_branch(name, dst, vaddr, soff, n=1):
    o = L(f"L_spin_{name}:\ns_mov_b32 s{sSpin}, {SPIN_MAX}\nL_spin2_{name}:")
    o += [poll_load(dst, vaddr, soff, n)] + L("s_waitcnt vmcnt(0)") + poll_cmp(dst, n)
    o += L(f"""s_nop 4
s_cbranch_vccz L_back_{name}
s_sleep 1
s_sub_u32 s{sSpin}, s{sSpin}, 1
s_cmp_lg_u32 s{sSpin}, 0
s_cbranch_scc1 L_spin2_{name}
s_branch L_back_{name}""")
    OUTL.append((f"spin_{name}", o))
    return L(f"s_cbranch_vccnz L_spin_{name}\nL_back_{name}:")
def late(lst, g):
    for x in lst: x.after = g
    return lst
def set_flag(soff, tag, **kw):
    return I(f"buffer_store_dword v{vNon}, v{vFo}, {sr(sWS,4)}, {soff} offen sc1", tag_r=tag, **kw)

RF = os.environ.get("RF", "nt"); WQF = os.environ.get("WQF", "")
KVF = os.environ.get("KVF", "nt")
def grp3(st, srdn, vo, so, mreg, moff, inc, flags=""):
    r = [I(f"s_add_u32 m0, s{mreg}, {sbase(st)+moff}")]
    for n in range(3):
        v = vo + n if vo != vL16 else vL16
        r.append(I(f"buffer_load_dwordx4 v{v}, {sr(srdn,4)}, s{so} offen offset:{1024*n} {flags} lds", tag_w=f"st{st}", rd=['stg']))
    if inc: r.append(I(f"s_add_u32 s{so}, s{so}, {inc}"))
    return r
def dma_stage(st):
    r = []
    if st <= 9:
        r += grp3(st, sWq, vWo, sOffX, sM6, 0, 16 * 12288, WQF) + grp3(st, sWq, vWo, sOffX, sM6, 3072, 48 * 12288, WQF)
    elif st <= 26:
        t = st - 10
        if t <= 15: r += grp3(st, sK, vKo, sOffK, sM3, 0, 12288, KVF)
        if t >= 1: r += grp3(st, sV, vVo, sOffV, sM3, 12288, 12288, KVF)
        u = st - 12
        if 0 <= u < 14:
            if u == 4: r += srd(sR, pWo, 6144 * 640 * 2)[:3] + L(f"s_mov_b32 s{sOffR}, s{sOffRo}")
            if u == 12: r += srd(sR, pWd, 1536 * 640 * 2)[:3] + L(f"s_mov_b32 s{sOffR}, s{sOffRd}")
            r.append(I(f"s_add_u32 m0, s{sM1}, {sbase(st)+24576}"))
            r.append(I(f"buffer_load_dwordx4 v{vRo if u < 4 else vRo2}, {sr(sR,4)}, s{sOffR} offen {RF} lds", tag_w=f"st{st}", rd=['stg']))
            r.append(I(f"s_add_u32 s{sOffR}, s{sOffR}, {32*3072 if u < 4 else 32*1280}"))
    else:
        r += grp3(st, sWS, vL16, sOffG, sM6, 0, 3072, "sc1") + grp3(st, sWS, vL16, sOffG, sM6, 3072, 24576 - 3072, "sc1")
    return r
def pace(lst, lo, hi):
    vm = [x for x in lst if x.kind == 'vmem']
    for k, x in enumerate(vm): x.after = int(lo + k * (hi - lo) / len(vm))
    return lst
def barrier(tag, after=None): return I("s_barrier", tag_r=tag, wr=['stg'], after=after)

def acc1(T, j): return vAcc + ((T // 2) * 4 + j) * 8 + (T % 2) * 4
def w_reads(k, T):
    slot = aA1 + (T % 2) * 16
    p, t = T // 2, T % 2
    r = []
    for ks in range(4):
        for u in range(2): r += dsr("ds_read_b64_tr_b16", ar(slot + ks * 4 + u * 2, 2), vWa + p % 2, sbase(2 * k), (ks // 2) * PSTR + (ks % 2) * 12288 + u * 6144 + (p // 2) * 128 + 8 * t, rd=['stg'], tag_w=f"wr{k}")
    return r
def b_loads(base):
    r = []
    for u in range(2):
        for j in range(4):
            r.append(I(f"buffer_load_dwordx4 {rr((base[0], base[1]+(u*4+j)*4))}, v{vL16}, {sr(sWS,4)}, s{sOffB} offen offset:{1024*j} sc1"))
        r.append(I(f"s_add_u32 s{sOffB}, s{sOffB}, 4096"))
    return r
def k_reads(st, kt):
    r = []
    for s in range(6): r += dsr("ds_read_b128", ar(aK + kt * 24 + s * 4, 4), vKa + s % 2, sbase(st), kt * 6144 + (s // 2) * 128, rd=['stg'], tag_w=f"vr{st}")
    return r
def v_reads(st, T):
    r = []
    for u in range(2): r += dsr("ds_read_b64_tr_b16", vr(vVs + (T % 6) * 4 + u * 2, 2), vVa + T % 4, sbase(st), 12288 + u * 6144 + (T // 4) * 128, rd=['stg'], tag_w=f"vr{st}")
    return r
def prefetch(srdn, soff, flags=""):
    x = I(f"buffer_load_dword v{vDum}, v{vL128}, {sr(srdn,4)}, {soff} offen {flags}"); x.writes = set(); return x

def csreg(T): return aCs + T * 4
def p1_quad(k, T0=0, T1=12, vm=(), vmspan=None, extra=()):
    last = k == 4
    per = 20 if k == 0 else 16
    n = (T1 - T0) * per
    s = []
    vm = list(vm)
    if any(x.kind == 'vmem' for x in vm): pace(vm, *(vmspan or (1, n - 20)))
    s += vm + list(extra)
    for T in range(T0, T1):
        if T + 1 < 12: s += w_reads(k, T + 1)
        else:
            s.append(barrier([f"st{2*k+2}", f"wr{k}"] + ([f"st{2*k+3}"] if not last else []), after=n - per - 1))
            s += w_reads(k + 1, 0) if not last else k_reads(10, 0)
        slot = aA1 + (T % 2) * 16
        for j in range(4):
            d = vr(acc1(T, j), 4)
            for ks in range(4):
                s.append(mfma(d, ar(slot + ks * 4, 4), ar(64 * (k % 2) + (ks * 4 + j) * 4, 4), "0" if (k == 0 and ks == 0) else d))
        if k == 0:
            d = ar(csreg(T), 4)
            for ks in range(4): s.append(mfma(d, ar(slot + ks * 4, 4), vr(vOne, 4), d if ks else "0"))
        if k in (2, 3) and T % 2 == k - 2:
            t = vCsT + ((T // 2) % 2) * 4
            for i in range(4): s.append(I(f"v_accvgpr_read_b32 v{t+i}, a{csreg(T)+i}"))
            for j in range(4):
                for i in range(4): s.append(I(f"v_fmac_f32 v{acc1(T,j)+i}, v{t+i}, v{vSta+2*j}"))
        if last and T % 2 == 1:
            p = T // 2
            for j in range(4):
                a = acc1(2 * p, j); q = vQ + (p * 4 + j) * 4
                for i in range(8): s.append(I(f"v_mul_f32 v{a+i}, v{vSta+2*j+1}, v{a+i}"))
                for i in range(4): s.append(I(f"v_cvt_pk_bf16_f32 v{q+i}, v{a+2*i}, v{a+2*i+1}"))
    return s
def w_reads0(n):
    h, T = n // 12, n % 12
    slot = aA1 + (n % 4) * 8
    p, t = T // 2, T % 2
    r = []
    for ks in range(2):
        for u in range(2): r += dsr("ds_read_b64_tr_b16", ar(slot + ks * 4 + u * 2, 2), vWa + p % 2, sbase(0), h * PSTR + ks * 12288 + u * 6144 + (p // 2) * 128 + 8 * t, rd=['stg'], tag_w="wr0")
    return r
def raw_reads(h):
    return [I(f"ds_read_b128 {ar(((2*h+ks)*4+j)*4,4)}, v{(vXo if h == 0 else vXo2) + ks} offset:{j*2048}", tag_r=f"raw{h}", tag_w=f"rawrd{h}") for j in range(4) for ks in range(2)]
def p1_first(n0, n1, extra=()):
    s = list(extra)
    for n in range(n0, n1):
        h, T = n // 12, n % 12
        if n == 8: s += late(raw_reads(1), (8 - n0) * 10)
        if n == 10: s.append(barrier(["st1"], after=(10 - n0) * 10 - 4))
        if n + 2 < 24: s += w_reads0(n + 2)
        elif n == 23:
            s.append(barrier(["st2", "st3", "wr0"], after=(22 - n0) * 10))
            s += w_reads(1, 0)
        slot = aA1 + (n % 4) * 8
        for j in range(4):
            d = vr(acc1(T, j), 4)
            for ks in range(2): s.append(mfma(d, ar(slot + ks * 4, 4), ar(((2 * h + ks) * 4 + j) * 4, 4), "0" if (h == 0 and ks == 0) else d))
        d = ar(csreg(T), 4)
        for ks in range(2): s.append(mfma(d, ar(slot + ks * 4, 4), vr(vOne, 4), "0" if (h == 0 and ks == 0) else d))
    return s
def stat_loads():
    return [I(f"buffer_load_dwordx2 {vr(vSta+2*j,2)}, v{vSo}, {sr(sWS,4)}, s{sScale} offen offset:{128*j} sc1") for j in range(4)]

def Sreg(kt, j, t):
    if j < 2: return (vTmp if t == 0 else vS01) + (j * 2 + kt) * 4
    return vS23 + (t % 2) * 16 + ((j - 2) * 2 + kt) * 4
def Preg(j, t):
    if j < 2: return vP01 + (t % 2) * 8 + j * 4
    return (vTmp + 8 if t == 15 else vP23) + (j - 2) * 4
def qk(kt, t):
    s = []
    for j in range(4):
        d = vr(Sreg(kt, j, t), 4)
        for p in range(6):
            c = d if p else ("0" if (t == 0 and kt == 0) else vr(vNm + 4 * j, 4))
            s.append(mfma(d, ar(aK + kt * 24 + p * 4, 4), vr(vQ + (p * 4 + j) * 4, 4), c))
    return s
def softmax(j, t):
    s = []
    for kt in range(2):
        a = Sreg(kt, j, t)
        for i in range(4): s.append(I(f"v_exp_f32 v{a+i}, v{a+i}"))
        for i in range(4): s.append(I(f"v_add_f32 v{vLs+j}, v{vLs+j}, v{a+i}"))
        for i in range(2): s.append(I(f"v_cvt_pk_bf16_f32 v{Preg(j,t)+kt*2+i}, v{a+2*i}, v{a+2*i+1}"))
    return s
def pv_T(T, t):
    s = []
    for j in range(4):
        d = ar((T * 4 + j) * 4, 4)
        s.append(mfma(d, vr(vVs + (T % 6) * 4, 4), vr(Preg(j, t), 4), "0" if t == 0 else d))
    return s

G4T = PAR('G4T', 0)
def p2_iter(t, base=0, extra=(), post=(), btag=()):
    st = 11 + t
    s = []
    s += k_reads(st, 1)
    u = st - 12
    if u >= 0:
        for h in range(2): s += dsr("ds_read_b64_tr_b16", ar(aR + 2 * h, 2), vRa, sbase(st), 24576 + 2048 * h, rd=['stg'])
    s += pace(dma_stage(st + 3 if st + 3 <= 26 else st + 5) + list(extra), base + 2, base + PAR("HP", 72))
    if t > 0: s += softmax(2, t) + softmax(3, t)
    s += qk(0, t + 1) + qk(1, t + 1)
    for T in range(6): s += v_reads(st, T)
    s += softmax(0, t + 1) + softmax(1, t + 1)
    if t == 14: s += softmax(2, 15) + softmax(3, 15)
    for T in range(12):
        s += pv_T(T, t)
        if T < 6: s += v_reads(st, T + 6)
        if T == 5:
            s.append(barrier([f"st{st+1}", f"vr{st}"] + list(btag), after=base + PAR("HB", 78)))
            if t < 14: s += k_reads(st + 1, 0)
            if u >= 0:
                if u == 4: s += L(f"s_mov_b32 s{sOffD}, s{sOffDo}")
                if u == 12: s += L(f"s_mov_b32 s{sOffD}, s{sOffDd}")
                s.append(I(f"buffer_store_dwordx4 {ar(aR,4)}, v{vL16}, {sr(sWS,4)}, s{sOffD} offen sc1", after=base + 84, tag_w="Gst" if u < 4 else "Wst" if u < 12 else "Dst"))
                s.append(I(f"s_add_u32 s{sOffD}, s{sOffD}, {6144 if u < 4 else 10240 if u < 12 else 5120}"))
        if t == 14 and T >= 6: s += v_reads(st + 1, T - 6)
    s += list(post)
    return s

def first_tile(base):
    s = []
    s += k_reads(10, 1)
    s += pace(dma_stage(13), base + 2, base + 30)
    s += qk(0, 0)
    for j in range(4):
        a = Sreg(0, j, 0); m = vNm + 4 * j; t = m + 1
        s += L(f"v_max3_f32 v{m}, v{a}, v{a+1}, v{a+2}\nv_max_f32 v{m}, v{m}, v{a+3}")
        s += xreduce(m, t, "v_max_f32")
        s += L(f"v_sub_f32 v{m+1}, 0, v{m}\nv_sub_f32 v{m+2}, 0, v{m}\nv_sub_f32 v{m+3}, 0, v{m}\nv_sub_f32 v{m}, 0, v{m}")
        for i in range(4): s.append(I(f"v_add_f32 v{a+i}, v{a+i}, v{m}"))
    s.append(barrier(["st11", "vr10"], after=base + 28))
    s += k_reads(11, 0)
    s += qk(1, 0)
    for j in range(4): s += softmax(j, 0)
    return s

vGA = 160; vOP = 184
BBUF = [('a', 192), ('a', 224), ('v', 208)]
def g_reads(n, tagr='stg', pos=None):
    ds, grp = n // 6, n % 6
    slot = vGA + ((n if pos is None else pos) % 3) * 8
    r = []
    for ks in range(2): r += dsr("ds_read_b128", vr(slot + ks * 4, 4), vGa, sbase(27 + ds // 2), (((ds % 2) * 2 + ks) * 6 + grp) * 1024, rd=[tagr], tag_w=f"gr{27 + ds // 2}")
    return r
def acc3(grp, j): return vAcc + (grp * 4 + j) * 4

def tail_pv(base):
    s = L(f"s_mul_i32 s{sOffB}, s100, {20*4096}")
    wf = set_flag(f"s{sFg}", None, rd=['stg'])
    s += pace([wf] + L(f"s_add_u32 s{sFg}, s{sFg}, {FW2-FW}") + b_loads(BBUF[0]), base - 11, base + 16)
    for T in range(12):
        s += pv_T(T, 15)
        if T < 6: s += v_reads(26, T + 6)
        if T == 5:
            s += g_reads(0) + g_reads(1)
            s += pace(b_loads(BBUF[1]) + (dma_stage(31) if G4T else []), base + 16, base + 48)
    for j in range(4): s += xreduce(vLs + j, vTmp + j, "v_add_f32")
    s += L(f"""v_add_f32 v{vTmp}, v{vLs}, v{vLs+1}
v_add_f32 v{vTmp+1}, v{vLs+2}, v{vLs+3}
v_add_f32 v{vTmp}, v{vTmp}, v{vTmp+1}
v_cmp_ngt_f32 vcc, {hex(f2u(2.0**80))}, v{vTmp}""")
    for j in range(4): s.append(I(f"v_rcp_f32 v{vLs+j}, v{vLs+j}"))
    return s

def split(lst):
    ch = []; cur = []
    for x in lst:
        cur.append(x)
        if x.kind == 'vmem': ch.append(cur); cur = []
    if cur: ch[-1] += cur
    return ch
def merge(qs):
    qs = [list(q) for q in qs]
    w = [len(q) for q in qs]; tot = sum(w); acc = [0.0] * len(qs); seq = []
    for k in range(tot):
        for z in range(len(qs)): acc[z] += w[z]
        z = max((z for z in range(len(qs)) if qs[z]), key=lambda z: acc[z])
        acc[z] -= tot; seq.append(qs[z].pop(0))
    return seq

vOA = 32; vOB = 33; vDA = 34; vDB = 35
vOa = 40; vPo = 41; vFa = 42; vFa2 = 43; vFl = 44
vAc = 64; vDc = 144; vPk = 164; vXr = 204; vPl = 64
def fA(e, t, ks): return e * 72 + (t * 2 + ks) * 4
def fB(e, j, ks): return 40 + e * 72 + (ks * 4 + j) * 4
def dA(e, n): return (144 if e == 0 else 0) + n * 4
def dB(e, ks): return (144 if e == 0 else 0) + 80 + ks * 4
sAbeg, sAend, sBbeg, sBend = sScale, sOffX, sOffY, sPf
vWr = 35
def dmaA(sg, rd='stg'):
    r = []
    if sg == 24: r += L(f"s_mov_b32 s{sOffA}, s{sOffRo}")
    r.append(I(f"s_add_u32 m0, s{sM5}, {obase(sg)}"))
    for n in range(5):
        if n == 4: r += L(f"s_add_u32 m0, s{sM5}, {obase(sg)+4096}\ns_add_u32 s{sOffA}, s{sOffA}, 4096")
        r.append(I(f"buffer_load_dwordx4 v{vL16}, {sr(sWS,4)}, s{sOffA} offen offset:{1024*(n%4)} sc1 lds", tag_w=f"ot{sg}", rd=[rd]))
    r.append(I(f"s_add_u32 s{sOffA}, s{sOffA}, {20480-4096}"))
    if sg == 2: r += L(f"s_mov_b32 s{sOffA}, s{sOffR}")
    if sg >= 2: r += L(f"s_cmp_eq_u32 s{sOffA}, s{sAend}\ns_cmov_b32 s{sOffA}, s{sAbeg}")
    return r
def dmaB(sg, rd='stg'):
    r = []
    r += L(f"s_cmp_eq_u32 s{sOffBB}, s{sBend}\ns_cmov_b32 s{sOffBB}, s{sBbeg}")
    r.append(I(f"s_add_u32 m0, s{sM4}, {obase(sg)+20480}"))
    for n in range(4):
        r.append(I(f"buffer_load_dwordx4 v{vL16}, {sr(sWS,4)}, s{sOffBB} offen offset:{1024*n} sc1 lds", tag_w=f"ot{sg}", rd=[rd]))
    r.append(I(f"s_add_u32 s{sOffBB}, s{sOffBB}, {8192 if sg < 24 else 16384}"))
    return r
def apf():
    if "apf" not in KN: return []
    return [prefetch(sWS, f"s{sPf}", "sc1")] + L(f"s_add_u32 s{sPf}, s{sPf}, 81920")
def o_reads(sg):
    e = sg % 2; kw = dict(rd=['stg'], tag_w=f"rd{sg}")
    r = []
    if sg < 24:
        for ks in range(2): r += dsr("ds_read_b128", ar(fA(e, 0, ks), 4), vOA, obase(sg), ks * 10240, **kw)
        for j in range(4):
            for ks in range(2): r += dsr("ds_read_b128", ar(fB(e, j, ks), 4), vOB, obase(sg), ks * 8192 + j * 1024, **kw)
        for t in range(1, 5):
            for ks in range(2): r += dsr("ds_read_b128", ar(fA(e, t, ks), 4), vOA, obase(sg), (ks * 10 + t) * 1024, **kw)
    else:
        for ks in range(4): r += dsr("ds_read_b128", ar(dB(e, ks), 4), vDB, obase(sg), ks * 4096, **kw)
        for T in range(5):
            for ks in range(4): r += dsr("ds_read_b128", ar(dA(e, ks * 5 + T), 4), vDA, obase(sg), (ks * 5 + T) * 1024, **kw)
    return r
def dmaD(g):
    r = []
    for h in range(2):
        r.append(I(f"s_add_u32 m0, s{sM3}, {obase(24+g)+4096*h}"))
        for n in range(4):
            so = sOffRo
            if h == 1 and n >= 2 and "dover" not in KN:
                so = sOffA
                if n == 2: r += L(f"s_cmp_eq_u32 s{sW}, 3\ns_cselect_b32 s{sOffA}, 0x40000000, s{sOffRo}")
            r.append(I(f"buffer_load_dwordx4 v{vL16}, {sr(sWS,4)}, s{so} offen offset:{1024*n} sc1 lds", tag_w=f"ot{24+g}", rd=['stg']))
        r.append(I(f"s_add_u32 s{sOffRo}, s{sOffRo}, {4096 if h == 0 else 30720-4096}"))
    return r
DRING = [240, 244, 248, 252] + list(range(96, 144, 4))
vDo = 216; vHp = 236; vHr = 246
def dBreg(p, k): return (144 if p == 0 else 0) + 4 * k
def d_bload(p, k):
    so = sOffRd if p == 0 else sOffBB
    return [I(f"buffer_load_dwordx4 {ar(dBreg(p,k),4)}, v{vL16}, {sr(sWS,4)}, s{so} offen sc1"), I(f"s_add_u32 s{so}, s{so}, 4096")]
def d_read(n):
    g, T, k = (n % 120) // 30, (n % 30) // 6, n % 6
    return dsr("ds_read_b128", ar(DRING[n % 16], 4), vDA, obase(24 + g), (k * 5 + T) * 1024, rd=['stg'])
DLA = 12
def d_block(p, g, extra=(), post=()):
    s = list(extra)
    if any(x.kind == 'vmem' for x in s): pace(s, 0, 29)
    acc = vDo if p == 0 else vDc
    for i in range(30):
        n = p * 120 + g * 30 + i
        first = 4 if n == 0 else n + DLA
        for m in range(first, n + DLA + 1):
            if m < 240:
                if m < 120 and m % 30 == 0: s.append(I("s_barrier", tag_r=[f"ot{24+m//30}"], wr=['stg']))
                s += d_read(m)
        T, k = i // 6, i % 6
        d = vr(acc + 4 * T, 4)
        s.append(mfma(d, ar(DRING[n % 16], 4), ar(dBreg(p, g * 6 + k), 4), "0" if (g == 0 and k == 0) else d))
    return s + list(post)
def o_block(sg, extra=(), pre=(), mid=(), exfirst=False, dbo=None):
    e = sg % 2
    s = list(pre)
    s += [I("s_barrier", tag_r=[f"ot{sg+1}", f"rd{sg}"], wr=['stg'], after=2)]
    if sg < 23: s += o_reads(sg + 1)
    else:
        for m in range(4): s += d_read(m)
    db = dbo if dbo is not None else dmaB(sg + 4) + dmaA(sg + 4) if sg < 20 else dmaD(sg - 20)
    k_ = next(i for i, x in enumerate(db) if x.kind == 'vmem') + 1
    vm = split(db[:k_] + list(mid) + db[k_:])
    ex = split(list(extra)) if any(x.kind == 'vmem' for x in extra) else []
    if exfirst: seq = list(extra) + [x for ch in vm for x in ch]
    else: seq = [x for ch in merge([vm, ex]) for x in ch] if ex else [x for ch in vm for x in ch] + list(extra)
    pace(seq, 3, 40)
    s += seq
    for t in range(5):
        for j in range(4):
            for ks in range(2):
                d = vr(vAc + (t * 4 + j) * 4, 4)
                s.append(mfma(d, ar(fA(e, t, ks), 4), ar(fB(e, j, ks), 4), "0" if (sg == 0 and ks == 0) else d))
    return s

EARLY = PAR('EARLY', 0); OF = PAR('OF', 8); OC = 8 if EARLY else 99; WC = PAR('WC', 5)
vFo2 = 37
vHs = 48
def p3_steps():
    oe = []
    n = 0
    for p in range(6):
        for j in range(4):
            t = vTmp + (n % 2) * 8; o = vOP + (n % 6) * 4
            it = []
            for tt in range(2):
                for i in range(4): it.append(I(f"v_accvgpr_read_b32 v{t+tt*4+i}, a{((2*p+tt)*4+j)*4+i}"))
            for i in range(8): it.append(I(f"v_mul_f32 v{t+i}, v{t+i}, v{vLs+j}"))
            for i in range(4): it.append(I(f"v_cvt_pk_bf16_f32 v{o+i}, v{t+2*i}, v{t+2*i+1}"))
            for i in range(4): it.append(I(f"v_accvgpr_write_b32 a{(8*p+j)*4+i}, v{o+i}"))
            oe.append(it); n += 1
            st_ = [I(f"buffer_store_dwordx4 {ar((8*p+j)*4,4)}, v{vL16}, {sr(sWS,4)}, s{sOffO} offen offset:{1024*j} sc1", tag_w="Ost")]
            if j == 3: st_.append(I(f"s_add_u32 s{sOffO}, s{sOffO}, 4096"))
            OST.append(st_)
    nss = [int(x) for x in os.environ.get("NSS", "2,3,3,3,3,3,3,4,0,0").split(",")]
    nst = [int(x) for x in os.environ.get("NST", "4,3,3,3,3,3,3,2,0,0").split(",")]
    dm = {}
    if not G4T:
        g31 = split(dma_stage(31)); dm = {0: g31[:3], 1: g31[3:]}
    a0, a1, a2 = [split(dmaA(k, 'x')) for k in range(3)]
    assert WC <= 5
    dm[6] = a0; dm[8] = a1; dm[9] = a2
    allb = [c for d in range(2, 10) for c in split(b_loads(BBUF[d % 3]))]
    cnt = [int(x) for x in os.environ.get("NB", "8,8,8,8,8,8,8,8,0,0").split(",")]
    BQ = []
    for k in cnt: BQ.append(allb[:k]); allb = allb[k:]
    assert not allb
    steps = []
    for ds in range(10):
        s = []
        take = BQ[ds]
        s += [x for _ in range(nst[ds]) for x in oe.pop(0)]
        st = [OST.pop(0) for _ in range(nss[ds])]
        seq = merge([take, dm.get(ds, []), st]) if ds < 7 else take + st + dm.get(ds, [])
        if ds == 2: seq.insert(0, [set_flag(f"s{sFg}", None)])
        if ds == WC - 1: seq.insert(0, L(f"s_mov_b32 s{sT0}, {hex(FW)}") + [poll_load(vFl, vL16, f"s{sT0}", 4)])
        if ds == OF: seq.insert(int(len(seq) * PAR("OFP", 0.6)), [set_flag(f"s{sFl}", "Ost")])
        if EARLY and ds == PAR("OP", 9): seq.insert(int(len(seq) * PAR("OPP", 0.4)), [poll_load(vFo2, vFa, f"s{sT1}")])
        flat = [x for ch in seq for x in ch]
        s += ('pace', flat),
        for grp in range(6):
            n = ds * 6 + grp
            real = lambda m: m if m < 48 else 48 + ((m - 48) % 2) * 6 + (m - 48) // 2
            if n + 2 < 60:
                if (n + 2) % 12 == 0:
                    stg = 27 + (n + 2) // 12
                    tags = [f"st{stg}"] + (["Dst"] if stg == 28 else []) + ([f"gr{stg-1}"] if stg >= 30 else [])
                    s.append(I("s_barrier", tag_r=tags, wr=['stg2'], after=24 if stg < 30 else 30))
                s += g_reads(real(n + 2), 'stg2', n + 2)
            slot = vGA + (n % 3) * 8
            rds, rg = real(n) // 6, real(n) % 6
            B = BBUF[rds % 3]
            for j in range(4):
                for ks in range(2):
                    d = vr(acc3(rg, j), 4)
                    s.append(mfma(d, vr(slot + ks * 4, 4), rr((B[0], B[1] + (ks * 4 + j) * 4)), "0" if (ds == 0 and ks == 0) else d))
            if rds == 9 and rg % 2 == 1: s += h_epilogue(rg // 2)
        steps.append(s)
    assert not oe and not OST
    return steps
HST = []; OST = []
def h_epilogue(T3):
    s = []
    if True:
        for jp in range(2):
            o = vOP + ((T3 * 2 + jp) % 6) * 4
            for jj in range(2):
                j = jp * 2 + jj
                g = acc3(2 * T3, j); u = acc3(2 * T3 + 1, j)
                for i in range(4): s.append(I(f"v_mul_f32 v{g+i}, v{g+i}, v{u+i}"))
                for i in range(2): s.append(I(f"v_cvt_pk_bf16_f32 v{o+jj*2+i}, v{g+2*i}, v{g+2*i+1}"))
            for i in range(2): s.append(I(f"v_permlane32_swap_b32 v{o+i}, v{o+2+i}"))
            HST.append(I(f"buffer_store_dwordx4 {vr(o,4)}, v{vT}, {sr(sWS,4)}, s{sOffH+T3} offen offset:{2048*jp} sc1", tag_w="Hst"))
    return s
def join_steps(steps, n=48):
    out = []
    for k, s in enumerate(steps):
        base = k * n
        for x in s:
            if isinstance(x, tuple):
                if any(y.kind == 'vmem' for y in x[1]): pace(x[1], base, base + n - 1)
                out += x[1]
            else:
                if x.after is not None: x.after += base
                out.append(x)
    return out

def gen_fallback():
    F = Prog()
    vK = 232; vS = 176; vP = 208
    vf, vv, va = 48, 49, 50
    sK_, sV_ = sK, sV
    def kload():
        return [I(f"buffer_load_dwordx4 {vr(vK+4*p,4)}, v{vf}, {sr(sK_,4)}, s{sT0} offen offset:{64*p}") for p in range(6)] + L(f"s_add_u32 s{sT0}, s{sT0}, 6144")
    def chains(kt, c0):
        s = []
        for j in range(4):
            d = vr(vS + (j * 2 + kt) * 4, 4)
            for p in range(6): s.append(mfma(d, vr(vK + 4 * p, 4), vr(vQ + (p * 4 + j) * 4, 4), d if p else c0(j)))
        return s
    c = L("L_fb:\ns_waitcnt vmcnt(0) lgkmcnt(0)\ns_nop 15")
    c += L(f"""v_and_b32 v54, 15, v0
v_lshrrev_b32 v55, 4, v0
v_mul_u32_u24 v{vf}, 384, v54
v_lshl_add_u32 v{vf}, v55, 4, v{vf}
v_lshrrev_b32 v56, 3, v0
v_and_b32 v57, 7, v0
v_and_b32 v58, 6, v56
v_xor_b32 v57, v57, v58
v_mul_u32_u24 v{vv}, 384, v56
v_lshl_add_u32 v{vv}, v57, 4, v{vv}
v_lshrrev_b32 v56, 2, v54
v_lshl_add_u32 v56, v55, 2, v56
v_bfe_u32 v57, v56, 1, 2
v_lshlrev_b32 v56, 7, v56
v_and_b32 v58, 3, v0
v_lshl_add_u32 v56, v58, 3, v56
s_lshl_b32 s{sT2}, s{sW}, 12
s_add_u32 s{sT2}, s{sT2}, 57344
s_cmp_eq_u32 s{sW}, 0
s_cmov_b32 s{sT2}, 110592
s_cmp_eq_u32 s{sW}, 3
s_cmov_b32 s{sT2}, 81920
v_add_u32 v56, s{sT2}, v56""")
    for x in range(4): c += L(f"v_xor_b32 v58, {x}, v57\nv_lshl_add_u32 v{va+x}, v58, 5, v56")
    c += L(f"""s_mul_i32 s{sT1}, s{sH}, 786432
s_add_u32 s{sT1}, s{sT1}, {1536*384}
s_mov_b32 s{sT0}, s{sT1}
s_mov_b32 s{sSpin}, 0""")
    for j in range(4): c += L(f"v_mov_b32 v{vNm+4*j}, 0xff800000")
    F.block("a", c)
    c = L("L_fb1:") + kload() + chains(0, lambda j: "0")
    for j in range(4):
        a = vS + j * 8; m = vNm + 4 * j
        c += L(f"v_max3_f32 v{m}, v{m}, v{a}, v{a+1}\nv_max3_f32 v{m}, v{m}, v{a+2}, v{a+3}")
    c += L(f"s_add_u32 s{sSpin}, s{sSpin}, 1\ns_cmp_lt_u32 s{sSpin}, 32\ns_cbranch_scc1 L_fb1")
    F.block("b", c)
    c = []
    for j in range(4):
        m = vNm + 4 * j
        c += xreduce(m, m + 1, "v_max_f32")
        c += L(f"v_sub_f32 v{m+1}, 0, v{m}\nv_sub_f32 v{m+2}, 0, v{m}\nv_sub_f32 v{m+3}, 0, v{m}\nv_sub_f32 v{m}, 0, v{m}\nv_mov_b32 v{vLs+j}, 0")
    for i in range(192): c.append(I(f"v_accvgpr_write_b32 a{i}, 0"))
    c += L(f"s_mov_b32 s{sT0}, s{sT1}\ns_mov_b32 s{sSpin}, 0")
    F.block("c", c)
    c = L("L_fb2:")
    for kt in range(2): c += kload() + chains(kt, lambda j: vr(vNm + 4 * j, 4)) + L("s_nop 7")
    for j in range(4):
        for kt in range(2):
            a = vS + (j * 2 + kt) * 4
            for i in range(4): c.append(I(f"v_exp_f32 v{a+i}, v{a+i}"))
            for i in range(4): c.append(I(f"v_add_f32 v{vLs+j}, v{vLs+j}, v{a+i}"))
            for i in range(2): c.append(I(f"v_cvt_pk_bf16_f32 v{vP+j*4+kt*2+i}, v{a+2*i}, v{a+2*i+1}"))
    for cg in range(3):
        for a in range(4):
            c += L(f"""s_add_u32 m0, s{sT2}, {1024*a}
s_add_u32 s{sOffP}, s{sT1}, {3072*a+128*cg}
buffer_load_dwordx4 v{vv}, {sr(sV_,4)}, s{sOffP} offen lds""")
        c += L("s_waitcnt vmcnt(0)")
        for x in range(4):
            for u in range(2): c.append(I(f"ds_read_b64_tr_b16 {vr(vK+4*x+2*u,2)}, v{va+x} offset:{2048*u}"))
        c += L("s_waitcnt lgkmcnt(0)")
        for x in range(4):
            for j in range(4):
                d = ar(((cg * 4 + x) * 4 + j) * 4, 4)
                c.append(mfma(d, vr(vK + 4 * x, 4), vr(vP + 4 * j, 4), d))
        c += L("s_nop 7")
    c += L(f"s_add_u32 s{sT1}, s{sT1}, 12288\ns_add_u32 s{sSpin}, s{sSpin}, 1\ns_cmp_lt_u32 s{sSpin}, 16\ns_cbranch_scc1 L_fb2")
    F.block("d", c)
    c = []
    for j in range(4): c += xreduce(vLs + j, vTmp + j, "v_add_f32")
    for j in range(4): c.append(I(f"v_rcp_f32 v{vLs+j}, v{vLs+j}"))
    c += L("s_nop 15\ns_branch L_fb_back")
    F.block("e", c)
    F.trace = [("a", {}), ("b", {}), ("b", {}), ("c", {}), ("d", {}), ("d", {}), ("e", {})]
    F.insert_waits(); F.fix_hazards()
    return F.text()


def gen(dbg=False):
    P = Prog()
    OUTL.clear(); AD.clear(); HST.clear(); OST.clear()
    for i in range(2): AD[vWa + i] = Addr(vWa + i, sbase(0)); AD[vKa + i] = Addr(vKa + i, 0)
    for i in range(4): AD[vVa + i] = Addr(vVa + i, 0)
    AD[vRa] = Addr(vRa, sbase(12)); AD[vGa] = Addr(vGa, sbase(27))
    AD[vOA] = Addr(vOA, obase(0)); AD[vOB] = Addr(vOB, obase(0)); AD[vDA] = Addr(vDA, obase(24)); AD[vDB] = Addr(vDB, obase(24))
    nblk = [0]
    def blk(ins, name=None):
        nm = name or f"b{nblk[0]}"; nblk[0] += 1
        P.block(nm, ins); P.trace.append((nm, {}))
    CPA = PAR("CPA", 10000)
    cp = [3]
    def sch(s, name, **kw):
        if name.startswith("p2_") or name.startswith("p1_"):
            if "nost" in KN: s = [x for x in s if not (x.kind == 'vmem' and 'store_dwordx4' in x.text)]
            if "norl" in KN: s = [x for x in s if not (x.kind == 'vmem' and f"s[{sR}:{sR+3}]" in x.text)]
            if "kvhit" in KN: s = [x for x in s if not x.text.startswith((f"s_add_u32 s{sOffK}, s{sOffK}, 12288", f"s_add_u32 s{sOffV}, s{sOffV}, 12288"))]
            if "nobar" in KN: s = [x for x in s if x.kind != 'barrier']
            if "novm" in KN: s = [x for x in s if not (x.kind == 'vmem' and 'dwordx4' in x.text and 'v[48:51]' not in x.text)]
            if "novalu" in KN and name.startswith("p2_"): s = [x for x in s if not (x.kind in ('valu', 'trans') and x.text.startswith(('v_exp', 'v_add_f32', 'v_cvt')))]
        if name.startswith("p3"):
            if "p3nost" in KN: s = [x for x in s if not (x.kind == 'vmem' and 'store_dwordx4' in x.text)]
            if "p3nob" in KN: s = [x for x in s if not (x.kind == 'vmem' and 'load_dwordx4' in x.text and ' lds' not in x.text and f"s{sOffB} " in x.text)]
            if "p3novalu" in KN: s = [x for x in s if not (x.kind == 'valu' and x.text.startswith(('v_accvgpr', 'v_mul_f32', 'v_cvt')))]
            if "p3plain" in KN:
                for x in s:
                    if 'store_dwordx4' in x.text: x.text = x.text.replace(" sc1", "")
            if "p3nt" in KN:
                for x in s:
                    if 'store_dwordx4' in x.text: x.text = x.text.replace(" sc1", " sc1 nt")
        pos = sum(isize(x) for b in P.blocks for x in b[1]) * 1.03
        end = pos + sum(isize(x) for x in s) * 1.03
        nm = sum(1 for x in s if x.kind == 'mfma')
        while "nocp" not in KN and cp[0] * 8192 < end + CPA and cp[0] < NSLICE:
            g = int(max(0, min(nm - 2, (cp[0] * 8192 - CPA - pos) / (end - pos) * nm)))
            k = next((i for i, x in enumerate(s) if x.kind == 'vmem' and x.after is not None and x.after > g), len(s))
            cpl = I(f"global_load_dword v{vDum}, v{vL16}, s[62:63]", after=g); cpl.writes = set()
            s = s[:k] + [cpl, I("s_add_u32 s62, s62, 0x2000"), I("s_addc_u32 s63, s63, 0")] + s[k:]
            cp[0] += 1
        if "jitter" in KN:
            k = nblk[0]
            blk(L(f"""s_memtime s[90:91]
s_waitcnt lgkmcnt(0)
s_mul_i32 s90, s90, {2654435761 & 0x7fffffff}
s_lshr_b32 s90, s90, 20
s_and_b32 s91, s90, 7
s_cmp_lg_u32 s91, 0
s_cbranch_scc1 L_j{k}b
s_lshr_b32 s90, s90, 3
s_and_b32 s90, s90, {PAR("JM", 127)}
L_j{k}:
s_sleep 1
s_sub_u32 s90, s90, 1
s_cmp_gt_i32 s90, 0
s_cbranch_scc1 L_j{k}
L_j{k}b:"""))
        blk(schedule(s, name, verbose=dbg and "v" in KN, **kw), name)
    CC = math.log2(math.e) / math.sqrt(192.0)
    if "cpold" in KN:
        CP0 = f"""s_and_b32 s{sT2}, s{sT2}, 15
s_min_u32 s{sT2}, s{sT2}, CODE_SLICES-1
s_lshl_b32 s{sT2}, s{sT2}, 13
v_add_u32 v52, s{sT2}, v{vL128}
global_load_dword a{aDum}, v52, s[62:63]"""
    else:
        CP0 = f"""s_min_u32 s{sT2}, s{sT2}, CODE_SLICES*8-1
s_lshl_b32 s{sT2}, s{sT2}, 10
v_add_u32 v52, s{sT2}, v{vL16}
global_load_dword a{aDum}, v52, s[62:63]"""
    c = L(f"""s_cmp_ge_u32 s2, 256
s_cbranch_scc1 L_end
s_load_dwordx16 s[64:79], s[0:1], 0
s_load_dwordx8 s[80:87], s[0:1], 64
s_memrealtime s[{sSt}:{sSt+1}]
s_getpc_b64 s[62:63]
v_lshrrev_b32 v30, 6, v0
v_and_b32 v0, 63, v0
v_readfirstlane_b32 s{sW}, v30
v_lshlrev_b32 v{vL16}, 4, v0
v_lshlrev_b32 v{vL128}, 7, v0
v_and_b32 v48, 7, v0
v_lshrrev_b32 v49, 3, v0
v_mul_u32_u24 v60, 1280, v48
v_lshl_add_u32 v50, v49, 4, v60
v_lshl_add_u32 v50, v30, 7, v50
s_mul_i32 s{sT0}, s2, {8*1280}
s_and_b32 s{sT1}, s2, 7
s_lshr_b32 s{sT2}, s2, 3
s_and_b32 s{sH}, s{sT2}, 3
s_lshl2_add_u32 s{sH}, s{sT1}, s{sH}
s_lshr_b32 s{sB}, s{sT2}, 2
s_lshr_b32 s{sS}, s{sT1}, 1
s_and_b32 s{sT1}, s{sT1}, 1
s_lshl1_add_u32 s{sMb}, s{sB}, s{sT1}
s_and_b32 s{sNb}, s{sT2}, 3
v_cmp_eq_u32 vcc, 0, v0
v_bfrev_b32 v51, 1
v_cndmask_b32 v{vFo}, v51, 0, vcc
v_cmp_gt_u32 vcc, 2, v30
v_add_u32 v53, 1024, v50
v_cndmask_b32 v53, v51, v53, vcc
s_lshl2_add_u32 s{sT2}, s{sT2}, s{sW}
{CP0}
v_lshrrev_b32 v54, 4, v0
v_and_b32 v55, 15, v0
v_and_b32 v61, 6, v49
v_xor_b32 v61, v61, v48
v_lshlrev_b32 v61, 4, v61
v_mul_u32_u24 v62, 1280, v49
v_add_u32 v{vRo2}, v62, v61
v_and_b32 v62, 4, v49
v_add_u32 v62, v62, v49
v_mul_u32_u24 v62, 3072, v62
v_add_u32 v{vRo}, v62, v61
s_lshl_b32 s{sM4}, s{sW}, 13
s_add_u32 s{sM5}, s{sM4}, 49152
s_lshl2_add_u32 s{sQg}, s{sB}, s{sW}
s_mul_i32 s{sOffBB}, s{sQg}, {64*1280}""")
    if STAMPS: c += L(f"v_mov_b32 v{vSt}, 0")
    c += L("s_waitcnt lgkmcnt(0)")
    c += srd(sXin, pX, 2048 * 640 * 2)
    c += L(f"""buffer_load_dwordx4 v[64:67], v50, {sr(sXin,4)}, s{sT0} offen {os.environ.get("XF_", "")}
buffer_load_dwordx4 v[68:71], v50, {sr(sXin,4)}, s{sT0} offen offset:512 {os.environ.get("XF_", "")}
buffer_load_dwordx4 v[72:75], v53, {sr(sXin,4)}, s{sT0} offen {os.environ.get("XF_", "")}
buffer_load_ushort v76, v60, {sr(sXin,4)}, s{sT0} offen""")
    c += srd(sR, pDbg, 256)
    c += L(f"""s_or_b32 s{sNonce}, s{sSt}, 1
v_mov_b32 v56, s{sNonce}
v_mov_b32 v57, 0
s_or_b32 s{sT1}, s2, s{sW}
s_cmp_eq_u32 s{sT1}, 0
s_cselect_b32 s{sT1}, 0, 0x100
buffer_atomic_cmpswap v[56:57], v{vFo}, {sr(sR,4)}, s{sT1} offen sc1""")
    c += stamp(0)
    def rawdma(ds):
        r = []
        for a in range(8):
            r += L(f"s_add_u32 m0, s{sM4 if ds == 0 else sM5}, {a*1024}\ns_add_u32 s{sOffA}, s{sOffBB}, {a*8*1280+128*ds}")
            r.append(I(f"buffer_load_dwordx4 v{vRo2}, {sr(sXin,4)}, s{sOffA} offen lds", tag_w=f"raw{ds}"))
        return r
    def inter(vm, fill):
        ch = split(vm); out = []; per = -(-len(fill) // len(ch))
        for k, cc in enumerate(ch): out += cc + fill[k * per:(k + 1) * per]
        return out
    f1 = []
    for n in range(3):
        f1.append(I(f"v_add_u32 v61, {64*n}, v0"))
        f1 += divmod_const(62, 63, 61, 24)
        f1 += L(f"""v_and_b32 v57, 6, v62
v_xor_b32 v57, v63, v57
v_lshlrev_b32 v57, 4, v57
v_subrev_u32 v57, {1024*n}, v57
v_and_b32 v59, 4, v62
v_add_u32 v59, v59, v62
v_mul_u32_u24 v59, 12288, v59
v_add_u32 v{vWo+n}, v59, v57""")
    f1 += srd(sWq, pWq, 640 * 6144 * 2) + srd(sWS, pWs, WS_SIZE)
    f1 += L(f"""s_lshr_b32 s{sT0}, s{sW}, 1
s_and_b32 s{sOffY}, s{sW}, 1
s_lshl_b32 s{sT2}, s{sT0}, 5
s_lshl2_add_u32 s{sT2}, s{sOffY}, s{sT2}
s_mul_i32 s{sOffX}, s{sT2}, 12288
s_mul_i32 s{sT2}, s{sH}, 384
s_add_u32 s{sOffX}, s{sOffX}, s{sT2}
s_mul_i32 s{sM6}, s{sW}, 6144""")
    f2 = L(f"""v_lshrrev_b32 v56, 2, v55
v_and_b32 v57, 3, v0
v_lshl_add_u32 v58, v54, 2, v56
v_bfe_u32 v59, v58, 1, 2
v_mul_u32_u24 v62, 384, v58
v_add_u32 v62, {sbase(0)}, v62
v_lshlrev_b32 v63, 1, v59
v_xor_b32 v63, v63, v57
v_lshl_add_u32 v{vWa}, v63, 4, v62
v_xor_b32 v63, 4, v63
v_lshl_add_u32 v{vWa+1}, v63, 4, v62
v_bfe_u32 v{vPa}, v0, 2, 3
v_lshlrev_b32 v{vPa}, 7, v{vPa}
v_lshl_add_u32 v{vPa}, v57, 2, v{vPa}
v_lshlrev_b32 v{vSo}, 3, v55
v_lshlrev_b32 v62, 7, v55
v_and_b32 v63, 6, v55
v_xor_b32 v63, v63, v54
v_lshl_add_u32 v{vXo2}, v63, 4, v62
v_xor_b32 v63, 4, v63
v_lshl_add_u32 v{vXo2+1}, v63, 4, v62
v_add_u32 v{vXo}, s{sM4}, v{vXo2}
v_add_u32 v{vXo+1}, s{sM4}, v{vXo2+1}
v_add_u32 v{vXo2}, s{sM5}, v{vXo2}
v_add_u32 v{vXo2+1}, s{sM5}, v{vXo2+1}
v_lshlrev_b32 v58, 3, v48
v_add_u32 v58, {LN_X}, v58
v_lshl_add_u32 v59, v30, 6, v58
v_lshrrev_b32 v56, 2, v49
v_lshl_add_u32 v56, v30, 1, v56
v_lshlrev_b32 v56, 12, v56
v_and_b32 v57, 3, v49
v_lshl_add_u32 v56, v57, 8, v56
v_lshl_add_u32 v56, v48, 4, v56
v_add_u32 v57, {16*4096}, v56
v_cndmask_b32 v57, v51, v57, vcc
v_or_b32 v61, v49, v30
v_cmp_eq_u32 vcc, 0, v61
v_lshlrev_b32 v61, 3, v48
v_cndmask_b32 v61, v51, v61, vcc
s_lshr_b32 s{sT2}, s2, 3
s_mul_i32 s{sT2}, s{sT2}, {20*4096}
s_bfe_u32 s{sOffK}, s2, 0x20001
s_lshl_b32 s{sOffK}, s{sOffK}, 10
s_add_u32 s{sT2}, s{sT2}, s{sOffK}
s_and_b32 s{sOffK}, s2, 1
s_lshl_b32 s{sOffK}, s{sOffK}, 7
s_add_u32 s{sT2}, s{sT2}, s{sOffK}
s_add_u32 s{sOffK}, s{sT2}, {8*4096}
s_lshl_b32 s{sOffP}, s2, 6
s_add_u32 s{sOffP}, s{sOffP}, {hex(ST_OFF)}
s_lshr_b32 s{sSpin}, s{sW}, 1
s_sub_u32 s{sSpin}, s{sSpin}, 1
s_and_b32 s{sSpin}, s{sSpin}, 0x3f800000""")
    pfv = divmod_const(62, 63, 0, 3) + L(f"""v_mul_u32_u24 v62, 12288, v62
v_lshl_add_u32 v62, v63, 7, v62
v_cmp_gt_u32 vcc, 12, v0
v_cndmask_b32 v{vL128}, v51, v62, vcc
s_lshl_b32 s{sQd}, s{sQg}, 2
s_add_u32 s{sQd}, s{sQd}, 256
s_mul_i32 s{sQd}, s{sQd}, 12288
s_mul_i32 s{sOffG}, s{sH}, 384
s_add_u32 s{sQd}, s{sQd}, s{sOffG}""")
    if 'wpf' in KN: f2 += pfv
    for i in range(4): f2.append(I(f"v_mov_b32 v{vOne+i}, 0x3f803f80"))
    c += inter(rawdma(0), f1)
    c += inter(dma_stage(0), f2)
    c += L(f"v_mov_b32 v60, 0\nbuffer_load_dword v{vNon}, v60, {sr(sR,4)}, 0 offen sc1\ns_mov_b32 s{sT1}, s{sOffY}\ns_mov_b32 s{sT3}, s{sOffK}")
    su0 = L(f"""s_lshl_b32 s{sFl}, s2, 7
s_lshl2_add_u32 s{sFl}, s{sW}, s{sFl}
s_add_u32 s{sFl}, s{sFl}, {hex(FXN)}
s_lshl_b32 s{sFg}, s{sQg}, 10
s_add_u32 s{sFg}, s{sFg}, {hex(FXN)}
s_lshl_b32 s{sScale}, s{sQg}, 9
s_add_u32 s{sScale}, s{sScale}, {hex(ST_OFF)}
s_mul_i32 s{sOffB}, s{sQg}, {20*4096}
s_add_u32 s{sOffB}, s{sOffB}, {4*4096}
s_mul_i32 s{sM3}, s{sW}, 3072
s_mul_i32 s{sOffK}, s{sH}, 786432
s_add_u32 s{sOffK}, s{sOffK}, {1536*384}
s_add_u32 s{sOffK}, s{sOffK}, s{sM3}
s_mov_b32 s{sOffV}, s{sOffK}
s_lshr_b32 s{sPf}, s2, 3
s_lshl2_add_u32 s{sPf}, s{sPf}, s{sW}
s_and_b32 s{sPf}, s{sPf}, 7
s_lshl_b32 s{sPf}, s{sPf}, 10
s_add_u32 s{sPf}, s{sPf}, {3*8192}
s_add_u32 s62, s62, s{sPf}
s_addc_u32 s63, s63, 0""") + srd(sK, pK, 32 * 2048 * 192 * 2) + srd(sV, pV, 32 * 2048 * 192 * 2)
    wpf = lambda: ([prefetch(sWq, f"s{sQd}")] + L(f"s_add_u32 s{sQd}, s{sQd}, {128*12288}")) if "wpf" in KN else []
    vu = []
    for n in range(3):
        vu.append(I(f"v_add_u32 v61, {64*n}, v0"))
        vu += divmod_const(62, 63, 61, 24)
        vu += L(f"""v_and_b32 v57, 6, v62
v_xor_b32 v57, v63, v57
v_lshlrev_b32 v57, 4, v57
v_subrev_u32 v57, {1024*n}, v57
v_mul_u32_u24 v58, 384, v62
v_add_u32 v{vVo+n}, v58, v57
v_lshrrev_b32 v59, 1, v62
v_lshl_add_u32 v59, s{sW}, 2, v59
v_and_b32 v59, 7, v59
v_xor_b32 v59, v63, v59
v_lshlrev_b32 v59, 4, v59
v_subrev_u32 v59, {1024*n}, v59
v_add_u32 v{vKo+n}, v58, v59""")
    vu += L(f"""v_lshrrev_b32 v56, 2, v55
v_and_b32 v57, 3, v0
v_lshl_add_u32 v58, v54, 2, v56
v_bfe_u32 v59, v58, 1, 2
v_mul_u32_u24 v62, 384, v58
v_lshl_add_u32 v62, v57, 3, v62""")
    for x in range(4): vu += L(f"v_xor_b32 v63, {x}, v59\nv_lshl_add_u32 v{vVa+x}, v63, 5, v62")
    vu += L(f"""v_lshlrev_b32 v62, 7, v58
v_lshl_add_u32 v62, v57, 3, v62
v_xor_b32 v63, s{sW}, v59
v_lshl_add_u32 v62, v63, 5, v62
v_add_u32 v{vRa}, {sbase(12)}, v62
v_add_u32 v{vGa}, {sbase(27)}, v{vL16}
v_mul_u32_u24 v62, 384, v55
v_lshrrev_b32 v63, 1, v55
v_xor_b32 v63, v63, v54
v_lshl_add_u32 v{vKa}, v63, 4, v62
v_xor_b32 v63, 4, v63
v_lshl_add_u32 v{vKa+1}, v63, 4, v62""")
    for i in range(4): vu.append(I(f"v_mov_b32 v{vLs+i}, 0"))
    xr = L(f"""v_and_b32 v61, 7, v0
v_lshrrev_b32 v62, 3, v0
v_mul_u32_u24 v63, 1280, v61
v_lshl_add_u32 v63, v62, 4, v63
s_mul_i32 s{sOffY}, s2, {8*1280}
s_lshl_b32 s{sPf}, s{sW}, 7
s_add_u32 s{sOffY}, s{sOffY}, s{sPf}
buffer_load_dwordx4 a[244:247], v63, {sr(sXin,4)}, s{sOffY} offen
buffer_load_dwordx4 a[248:251], v63, {sr(sXin,4)}, s{sOffY} offen offset:512
buffer_load_dwordx4 a[252:255], v63, {sr(sXin,4)}, s{sOffY} offen offset:1024""")
    xs = L(f"""v_lshrrev_b32 v63, 2, v62
v_lshlrev_b32 v63, 12, v63
v_and_b32 v62, 3, v62
v_lshl_add_u32 v63, v62, 8, v63
v_lshl_add_u32 v63, v61, 4, v63
s_lshr_b32 s{sOffY}, s2, 3
s_mul_i32 s{sOffY}, s{sOffY}, {20*4096}
s_bfe_u32 s{sPf}, s2, 0x20001
s_lshl_b32 s{sPf}, s{sPf}, 10
s_add_u32 s{sOffY}, s{sOffY}, s{sPf}
s_and_b32 s{sPf}, s2, 1
s_lshl_b32 s{sPf}, s{sPf}, 7
s_add_u32 s{sOffY}, s{sOffY}, s{sPf}
s_lshl_b32 s{sPf}, s{sW}, 13
s_add_u32 s{sOffY}, s{sOffY}, s{sPf}
s_add_u32 s{sOffY}, s{sOffY}, {hex(XR_OFF)}""")
    for i in range(3):
        if i == 2: xs += L(f"s_cmp_lt_u32 s{sW}, 2\ns_cselect_b32 s{sOffY}, s{sOffY}, 0x40000000")
        xs.append(I(f"buffer_store_dwordx4 {ar(244+4*i,4)}, v63, {sr(sWS,4)}, s{sOffY} offen sc1", tag_w="Gst"))
        if i < 2: xs += L(f"s_add_u32 s{sOffY}, s{sOffY}, {8*4096}")
    c += L("v_lshlrev_b32 v76, 16, v76\nv_mov_b32 v77, v76")
    for i in range(12):
        c += L(f"v_lshlrev_b32 v{80+2*i}, 16, v{64+i}\nv_and_b32 v{81+2*i}, 0xffff0000, v{64+i}")
        c += L(f"v_pk_add_f32 v[{112+2*i}:{113+2*i}], v[{80+2*i}:{81+2*i}], v[76:77] neg_lo:[0,1] neg_hi:[0,1]")
    for i in range(12):
        a = 104 if i < 8 else 108
        d = vr(112 + 2 * i, 2)
        if i in (0, 8): c += L(f"v_pk_mul_f32 v[{a+2}:{a+3}], {d}, {d}\nv_mov_b32 v{a}, v{112+2*i}\nv_mov_b32 v{a+1}, v{113+2*i}")
        else: c += L(f"v_pk_fma_f32 v[{a+2}:{a+3}], {d}, {d}, v[{a+2}:{a+3}]\nv_pk_add_f32 v[{a}:{a+1}], v[{a}:{a+1}], {d}")
    c += L(f"""v_add_f32 v104, v104, v105
v_add_f32 v105, v106, v107
v_add_f32 v108, v108, v109
v_add_f32 v109, v110, v111
v_fmac_f32 v104, s{sSpin}, v108
v_fmac_f32 v105, s{sSpin}, v109
s_nop 1
v_add_f32_dpp v104, v104, v104 row_ror:8 row_mask:0xf bank_mask:0xf
v_add_f32_dpp v105, v105, v105 row_ror:8 row_mask:0xf bank_mask:0xf""")
    ra, rb = xreduce(104, 106, "v_add_f32"), xreduce(105, 107, "v_add_f32")
    for x, y in zip(ra, rb): c += [x, y]
    c += L(f"""ds_write_b64 v59, v[104:105]
s_waitcnt lgkmcnt(0)
s_barrier
ds_read_b64 v[104:105], v58
ds_read_b64 v[106:107], v58 offset:64
ds_read_b64 v[108:109], v58 offset:128
ds_read_b64 v[110:111], v58 offset:192
v_pk_add_f32 v[104:105], v[104:105], v[106:107]
v_pk_add_f32 v[108:109], v[108:109], v[110:111]
v_pk_add_f32 v[104:105], v[104:105], v[108:109]
v_mul_f32 v104, {hex(f2u(1.0/640))}, v104
v_mul_f32 v105, {hex(f2u(1.0/640))}, v105
v_fma_f32 v105, -v104, v104, v105
v_max_f32 v105, 0, v105
v_add_f32 v104, v104, v76
v_cvt_pk_bf16_f32 v104, v105, v104
v_and_b32 v108, 0xffff0000, v104
v_mov_b32 v109, v108""")
    for i in range(12):
        d = vr(80 + 2 * i, 2)
        c += L(f"""v_pk_add_f32 {d}, {d}, v[108:109] neg_lo:[0,1] neg_hi:[0,1]
v_cvt_pk_bf16_f32 v{64+i}, v{80+2*i}, v{81+2*i}""")
        if i == 3: c.append(I(f"buffer_store_dwordx4 v[64:67], v56, {sr(sWS,4)}, s{sT2} offen sc1", tag_w="Xst"))
        if i == 7: c.append(I(f"buffer_store_dwordx4 v[68:71], v56, {sr(sWS,4)}, s{sT3} offen sc1", tag_w="Xst"))
        if i == 11: c.append(I(f"buffer_store_dwordx4 v[72:75], v57, {sr(sWS,4)}, s{sT2} offen sc1", tag_w="Xst"))
    c += L(f"""v_lshlrev_b32 v104, 16, v104
v_add_f32 v104, {hex(f2u(1e-5))}, v104
v_cvt_pk_bf16_f32 v104, v104, v104
v_lshlrev_b32 v104, 16, v104
v_sqrt_f32 v104, v104
v_xor_b32 v106, 0x80000000, v108
v_cvt_pk_bf16_f32 v104, v104, v104
v_lshlrev_b32 v104, 16, v104
v_rcp_f32 v104, v104
s_nop 0
v_mul_f32 v107, {hex(f2u(CC))}, v104""")
    c.append(I(f"buffer_store_dwordx2 v[106:107], v61, {sr(sWS,4)}, s{sOffP} offen sc1", tag_w="Xst"))
    c += stamp(1)
    c += raw_reads(0)
    c.append(barrier(["st0", "rawrd0"]))
    c += w_reads0(0) + w_reads0(1)
    c += L(f"""v_readfirstlane_b32 s{sNonce}, v{vNon}
s_nop 3
s_cmp_lg_u32 s{sNonce}, 0
s_cbranch_scc0 L_nonce
L_nonce_ok:""")
    OUTL.append(("nonce", L(f"""L_nonce:
s_mov_b32 s{sSpin}, {SPIN_MAX}
L_nonce2:
buffer_load_dword v{vNon}, v60, {sr(sR,4)}, 0 offen sc1
s_waitcnt vmcnt(0)
v_readfirstlane_b32 s{sNonce}, v{vNon}
s_nop 3
s_cmp_lg_u32 s{sNonce}, 0
s_cbranch_scc1 L_nonce_ok
s_sub_u32 s{sSpin}, s{sSpin}, 1
s_cmp_lg_u32 s{sSpin}, 0
s_cbranch_scc1 L_nonce2
s_branch L_nonce_ok""")))
    c += stamp(2)
    blk(c, "pro")
    RM = PAR("RM", 2)
    sQ3, sH3 = 100, 101
    pre3 = f"""s_and_b32 s{sT2}, s2, 7
s_lshr_b32 s{sT3}, s2, 3
s_and_b32 s{sQ3}, s{sT2}, {(1 << (3 - RM)) - 1}
s_lshl_b32 s{sQ3}, s{sQ3}, {RM}
s_lshr_b32 s{sH3}, s{sT3}, {5 - RM}
s_add_u32 s{sQ3}, s{sQ3}, s{sH3}
s_lshl2_add_u32 s{sQ3}, s{sQ3}, s{sW}
s_lshr_b32 s{sH3}, s{sT2}, {3 - RM}
s_lshl_b32 s{sH3}, s{sH3}, {5 - RM}
s_and_b32 s{sT3}, s{sT3}, {(1 << (5 - RM)) - 1}
s_add_u32 s{sH3}, s{sH3}, s{sT3}"""
    su = L(pre3) + L(f"""s_mul_i32 s{sOffG}, s{sH3}, {20*6144}
s_add_u32 s{sOffG}, s{sOffG}, s{sM6}
s_add_u32 s{sOffG}, s{sOffG}, {hex(GP_OFF)}
s_lshl_b32 s{sM1}, s{sW}, 10
s_mul_i32 s{sM5}, s{sW}, 5120
s_lshl_b32 s{sM4}, s{sW}, 12
s_mul_i32 s{sT2}, s{sQg}, {240*4096}
s_add_u32 s{sT2}, s{sT2}, {hex(OH_OFF)}
s_mul_i32 s{sT3}, s{sH}, {6*4096}
s_add_u32 s{sOffO}, s{sT2}, s{sT3}
s_mul_i32 s{sT2}, s{sQ3}, {240*4096}
s_add_u32 s{sT2}, s{sT2}, {hex(OH_OFF + 192*4096)}
s_mul_i32 s{sT3}, s{sH3}, 3""")
    for T3 in range(3):
        su += L(f"""s_lshr_b32 s{sSpin}, s{sT3}, 1
s_lshl_b32 s{sSpin}, s{sSpin}, 12
s_add_u32 s{sOffH+T3}, s{sT2}, s{sSpin}
s_and_b32 s{sSpin}, s{sT3}, 1
s_lshl_b32 s{sSpin}, s{sSpin}, 9
s_add_u32 s{sOffH+T3}, s{sOffH+T3}, s{sSpin}
s_add_u32 s{sT3}, s{sT3}, 1""")
    su += L(f"""s_sub_u32 s{sT2}, s2, 240
s_min_u32 s{sT2}, s2, s{sT2}""")
    su += sdivmod(sT3, sSpin, sT2, 10)
    su += L(f"""s_lshl_b32 s{sOffRo}, s{sT3}, 8
s_lshl3_add_u32 s{sOffRo}, s{sW}, s{sOffRo}
s_mul_i32 s{sOffRo}, s{sOffRo}, 1280
s_lshl_b32 s{sFl}, s{sSpin}, 7
s_add_u32 s{sOffRo}, s{sOffRo}, s{sFl}
s_lshl_b32 s{sOffRd}, s{sT3}, 6
s_lshl4_add_u32 s{sOffRd}, s{sT1}, s{sOffRd}
s_lshl3_add_u32 s{sOffRd}, s{sT0}, s{sOffRd}
s_mul_i32 s{sOffRd}, s{sOffRd}, 1280
s_add_u32 s{sOffRd}, s{sOffRd}, s{sFl}
s_lshl2_add_u32 s{sSpin}, s{sSpin}, s{sW}""")
    su += sdivmod(sFl, sOffP, sSpin, 10)
    su += L(f"""s_mul_i32 s{sFl}, s{sFl}, 192
s_lshl3_add_u32 s{sFl}, s{sT3}, s{sFl}
s_mul_i32 s{sFl}, s{sFl}, 10
s_add_u32 s{sFl}, s{sFl}, s{sOffP}
s_lshl_b32 s{sFl}, s{sFl}, 10
s_add_u32 s{sOffDo}, s{sFl}, {hex(WOP_OFF)}""")
    su += sdivmod(sFl, sOffP, sSpin, 5)
    su += L(f"""s_mul_i32 s{sFl}, s{sFl}, 48
s_lshl1_add_u32 s{sFl}, s{sT3}, s{sFl}
s_mul_i32 s{sFl}, s{sFl}, 5
s_add_u32 s{sFl}, s{sFl}, s{sOffP}
s_lshl_b32 s{sFl}, s{sFl}, 10
s_add_u32 s{sOffDd}, s{sFl}, {hex(WDP_OFF)}""")
    su2 = sdivmod(sT3, sSpin, sT2, 48)
    su2 += [L(f"""s_cmp_ge_u32 s{sSpin}, 24
s_cselect_b32 s{pBx}, s{pWu}, s{pWg}
s_cselect_b32 s{pBx+1}, s{pWu+1}, s{pWg+1}
s_cselect_b32 s{sT2}, 1, 0
s_cselect_b32 s{sFl}, 24, 0""")]
    su2 += L(f"""s_sub_u32 s{sSpin}, s{sSpin}, s{sFl}
s_lshl_b32 s{sOffR}, s{sT3}, 7
s_lshl4_add_u32 s{sOffR}, s{sT1}, s{sOffR}
s_lshl2_add_u32 s{sOffR}, s{sT0}, s{sOffR}
s_mul_i32 s{sOffR}, s{sOffR}, 3072
s_lshl_b32 s{sFl}, s{sSpin}, 7
s_add_u32 s{sOffR}, s{sOffR}, s{sFl}
s_lshl2_add_u32 s{sSpin}, s{sSpin}, s{sW}""")
    su2 += sdivmod(sFl, sOffP, sSpin, 3)
    su2 += L(f"""s_mul_i32 s{sFl}, s{sFl}, 20
s_lshl2_add_u32 s{sFl}, s{sT3}, s{sFl}
s_mul_i32 s{sFl}, s{sFl}, 6
s_lshl1_add_u32 s{sFl}, s{sOffP}, s{sFl}
s_add_u32 s{sFl}, s{sFl}, s{sT2}
s_lshl_b32 s{sFl}, s{sFl}, 10
s_add_u32 s{sOffD}, s{sFl}, {hex(GP_OFF)}
s_lshl_b32 s{sFg}, s2, 2
s_add_u32 s{sFg}, s{sFg}, {hex(FG)}""")
    su2 += [L(f"s_cmp_eq_u32 s{sW}, 0\ns_cselect_b32 s{sFg}, s{sFg}, 0x40000000")]
    su2 += L(f"""s_lshr_b32 s{sT2}, s{sH}, 3
s_lshl2_add_u32 s{sFl}, s{sQg}, s{sT2}
s_lshl_b32 s{sFl}, s{sFl}, 7
s_and_b32 s{sT2}, s{sH}, 7
s_lshl2_add_u32 s{sFl}, s{sT2}, s{sFl}
s_add_u32 s{sFl}, s{sFl}, {hex(FO)}
s_mul_i32 s{sOffA}, s{sNb}, 192
s_mul_i32 s{sT2}, s{sS}, 48
s_add_u32 s{sOffA}, s{sOffA}, s{sT2}
s_mul_i32 s{sOffA}, s{sOffA}, 10240
s_add_u32 s{sOffA}, s{sOffA}, s{sM5}
s_add_u32 s{sOffA}, s{sOffA}, {hex(WOP_OFF)}
s_lshl1_add_u32 s{sOffBB}, s{sMb}, s{sT1}
s_mul_i32 s{sOffBB}, s{sOffBB}, 240
s_add_u32 s{sOffBB}, s{sOffBB}, s{sT2}
s_add_u32 s{sOffBB}, s{sOffBB}, s{sT0}
s_lshl_b32 s{sOffBB}, s{sOffBB}, 12
s_add_u32 s{sOffBB}, s{sOffBB}, {hex(OH_OFF)}
s_lshr_b32 s{sT2}, s{sS}, 1
s_lshl1_add_u32 s{sQd}, s{sMb}, s{sT2}""") + srd(sR, pBx, 640 * 1536 * 2)
    def weave(vm, sal):
        ch = split(vm); out = []
        per = -(-len(sal) // len(ch))
        for k, cc in enumerate(ch):
            out += cc
            for y in sal[k * per:(k + 1) * per]: out += y if isinstance(y, list) else [y]
        return out
    XH = PAR("XH", 15)
    XF = PAR("XF", 50); XQ = PAR("XQ", 110)
    q0a = pace(rawdma(1) + dma_stage(1), 0, PAR("Q0", 44)) + pace(dma_stage(2) + wpf() + dma_stage(3) + wpf(), 56, XH * 10 - 2)
    fl = set_flag(f"s{sFl}", "Xst", after=XF); pl_ = poll_load(vPd, vPa, f"s{sFg}", after=XQ)
    ch = split(q0a)
    for x in (fl, pl_):
        k = next((i for i, cc in enumerate(ch) if [y for y in cc if y.kind == 'vmem'][0].after > x.after), len(ch))
        ch.insert(k, [x])
    for k in range(8, 14): ch[k] = ch[k] + su0[(k - 8) * 1:(k - 7) * 1]
    ch[15] = ch[15] + su0[6:13]; ch[16] = ch[16] + su0[13:21]; ch[17] = ch[17] + su0[21:]
    for cc in ch:
        for x in cc: x.reads.discard('stg')
    sch(p1_first(0, XH, extra=[x for cc in ch for x in cc] + vu), "p1_0a", vm_min=3)
    fs = lambda k: blk(stamp(k)) if "fine1" in KN else None
    fs(14)
    blk(poll_cmp(vPd, 1) + poll_branch("xn", vPd, vPa, f"s{sFg}"))
    fs(15)
    bl = lambda k: b_loads(('a', 64 * (k % 2))) + b_loads(('a', 64 * (k % 2) + 32))
    sch(p1_first(XH, 24, extra=pace(bl(1), 0, 56)), "p1_0b", vm_min=3); fs(16)
    sch(p1_quad(1, vm=weave(dma_stage(4) + dma_stage(5) + wpf() + stat_loads() + bl(2), su)), "p1_1"); fs(17)
    sch(p1_quad(2, vm=weave(dma_stage(6) + dma_stage(7) + bl(3), su2)), "p1_2"); fs(18)
    sch(p1_quad(3, vm=dma_stage(8) + dma_stage(9) + bl(4) + dma_stage(10)), "p1_3")
    if "stagtest" in KN:
        blk(L(f"""s_and_b32 s{sSpin}, s{sH}, 1
s_mul_i32 s{sSpin}, s{sSpin}, 150
L_stag:
s_cmp_eq_u32 s{sSpin}, 0
s_cbranch_scc1 L_stag2
s_sleep 1
s_sub_u32 s{sSpin}, s{sSpin}, 1
s_branch L_stag
L_stag2:"""))
    blk(stamp(3))
    MERGE = "nomerge" not in KN
    big = p1_quad(4, vm=dma_stage(11) + dma_stage(12)) + first_tile(192) + p2_iter(0, base=192 + 48)
    nbig = 336
    if not MERGE:
        sch(big, "p1_last"); big = []; nbig = 0
    blk(stamp(4))
    GC = PAR("GC", 9)
    XP = PAR("XP", 9)
    for t in range(1, 14):
        ex = []; post = []; btag = []
        if "tlb" in KN and t == PAR("TT", 8):
            x = I(f"buffer_load_dword v{vDum}, v60, {sr(sWS,4)}, 0 offen"); x.writes = set()
            ex += L(f"v_lshlrev_b32 v60, {PAR('TS', 21)}, v0") + [x]
        if t == 1: ex += xr
        if t == 3: ex += xs
        if t == 5: btag = ["Gst"]
        if t == 6: ex += [set_flag(f"s{sFg}", None)] + L(f"s_add_u32 s{sFg}, s{sFg}, {FW-FG}")
        if t == GC + 1: gq = split(dma_stage(27) + dma_stage(28))
        if GC < t <= 12:
            n_ = -(-len(gq) // 3 // (13 - t)) * 3
            ex += [x for ch in gq[:n_] for x in ch]; gq = gq[n_:]
        if t == GC - 1: ex += L(f"s_mov_b32 s{sT0}, {hex(FG)}") + [poll_load(vTmp, vL16, f"s{sT0}", 4)]
        if t == GC: post += late(poll_cmp(vTmp, 4), nbig + 60)
        XN_ = PAR("XN", 2)
        if "xpf" in KN and XP <= t <= 13:
            if t == XP: ex += L(f"""s_and_b32 s{sPf}, s{sH}, 3
s_lshl_b32 s{sPf}, s{sPf}, 11
s_mul_i32 s{sT2}, s{sQg}, {20*4096}
s_add_u32 s{sPf}, s{sPf}, s{sT2}""")
            for k in range(XN_):
                if (t - XP) * XN_ + k < 10:
                    for o in (0, 1024):
                        x = I(f"buffer_load_dwordx4 v[60:63], v{vL16}, {sr(sWS,4)}, s{sPf} offen offset:{o} sc1")
                        if (t - XP) * XN_ + k < 9 or o == 0: x.writes = set()
                        ex.append(x)
                    ex += L(f"s_add_u32 s{sPf}, s{sPf}, 8192")
        big += p2_iter(t, base=nbig, extra=ex, post=post, btag=btag); nbig += 96
        if not MERGE or t == GC:
            sch(big, f"p2_{t}"); big = []; nbig = 0
        if t == GC and "stagtest" not in KN: blk(poll_branch("g", vTmp, vL16, f"s{sT0}", 4))
    blk(stamp(5))
    sch(big + p2_iter(14, base=nbig, btag=["Wst", "st27"]) + tail_pv(nbig + 96), "tail", vm_min=3)
    blk(L("s_cbranch_vccnz L_fb\nL_fb_back:") + stamp(6))
    steps = p3_steps()
    setup = L(f"""v_and_b32 v{vT}, 32, v0
v_lshlrev_b32 v{vT}, 4, v{vT}
v_add_u32 v{vT}, v{vT}, v{vL16}
s_and_b32 s{sT3}, s{sW}, 1
s_lshl1_add_u32 s{sT1}, s{sMb}, s{sT3}
s_lshl2_add_u32 s{sT1}, s{sT1}, s{sS}
s_lshl_b32 s{sT1}, s{sT1}, 7
s_add_u32 s{sT1}, s{sT1}, {hex(FO)}
v_and_b32 v{vFa}, 7, v0
v_lshlrev_b32 v{vFa}, 2, v{vFa}
s_mul_i32 s{sT3}, s{sT3}, 5120
s_add_u32 s{sT3}, s{sT3}, {obase(0)}
v_add_u32 v{vOA}, s{sT3}, v{vL16}
s_lshr_b32 s{sT2}, s{sW}, 1
s_lshl_b32 s{sT2}, s{sT2}, 12
s_add_u32 s{sT2}, s{sT2}, {20480+obase(0)}
v_add_u32 v{vOB}, s{sT2}, v{vL16}
v_add_u32 v{vDA}, {obase(24)}, v{vL16}
s_and_b32 s{sT2}, s{sW}, 1
s_lshl_b32 s{sT2}, s{sT2}, 12
v_add_u32 v{vWr}, s{sT2}, v{vL16}
s_mov_b32 s{sOffR}, s{sOffA}
s_and_b32 s{sT2}, s{sH}, 7
s_mul_i32 s{sT3}, s{sT2}, {3*20480}
s_add_u32 s{sOffA}, s{sOffA}, s{sT3}
s_mov_b32 s{sAend}, s{sOffA}
s_add_u32 s{sAbeg}, s{sOffA}, {3*20480}
s_mul_i32 s{sT3}, s{sT2}, {3*8192}
s_add_u32 s{sBend}, s{sOffBB}, s{sT3}
s_add_u32 s{sBbeg}, s{sBend}, {3*8192}""")
    def ownw(sg):
        base = obase(sg) + 20480
        r = L(f"s_lshr_b32 s{sT2}, s{sW}, 1\ns_xor_b32 s{sT2}, s{sT2}, s{sMb}\ns_bitcmp1_b32 s{sT2}, 0\ns_cbranch_scc1 L_ow{sg}\nv_add_u32 v38, {base}, v{vWr}")
        for ks in range(2):
            for j in range(4):
                x = I(f"ds_write_b128 v38, {ar((8*(2*sg+ks)+j)*4,4)} offset:{ks*8192+j*1024}"); x.kind = 'wait'; r.append(x)
        x = I("s_waitcnt lgkmcnt(0)"); x.kind = 'label'; r.append(x)
        return r + L(f"L_ow{sg}:")
    for k in range(9):
        body = (setup if k == 3 else []) + join_steps(steps[k:k+1] if k < 8 else steps[8:])
        if k == 8:
            body += [I("s_barrier", tag_r="ot0", wr=['stg'], rd=['stg2'], after=48 + 26)] + o_reads(0)
        sch(body, f"p3s{k}", vm_min=2)
        if k == WC and "stagtest" not in KN: blk(poll_cmp(vFl, 4) + poll_branch("w", vFl, vL16, f"s{sT0}", 4))
        if k == OC and "stagtest" not in KN: blk(poll_cmp(vFo2, 1) + poll_branch("o", vFo2, vFa, f"s{sT1}"))
        if k in (5, 6, 7): blk(ownw(k - 5))
        if "fine" in KN: blk(stamp(14 + k))
    c = stamp(7) + stamp(8)
    if OC == 9:
        c += dmaB(0) + dmaB(1) + dmaB(2)
        c.append(I("s_barrier", tag_r="ot0"))
        c += o_reads(0)
    c += stamp(9)
    blk(c, "o_pro")
    osetup = L(f"""s_lshl_b32 s{sT1}, s{sMb}, 8
s_add_u32 s{sT1}, s{sT1}, {hex(FH)}
v_lshlrev_b32 v{vFa}, 2, v0
s_and_b32 s{sT2}, s{sS}, 1
s_lshl1_add_u32 s{sT2}, s{sNb}, s{sT2}
s_lshr_b32 s{sT3}, s{sS}, 1
s_lshl1_add_u32 s{sOffRo}, s{sT2}, s{sT3}
s_mul_i32 s{sOffRo}, s{sOffRo}, {24*5120}
s_lshl_b32 s{sM3}, s{sW}, 13
s_add_u32 s{sOffRo}, s{sOffRo}, s{sM3}
s_add_u32 s{sOffRo}, s{sOffRo}, {hex(WDP_OFF)}
s_mul_i32 s{sT2}, s{sT2}, 160
s_lshl2_add_u32 s{sOffO}, s{sQd}, s{sW}
s_mul_i32 s{sOffO}, s{sOffO}, {16*1280}
s_add_u32 s{sOffO}, s{sOffO}, s{sT2}
s_mul_i32 s{sT3}, s{sT3}, 24
s_add_u32 s{sT3}, s{sT3}, 192
s_lshl_b32 s{sT3}, s{sT3}, 12
s_add_u32 s{sT3}, s{sT3}, s{sM1}
s_add_u32 s{sT3}, s{sT3}, {hex(OH_OFF)}
s_xor_b32 s{sOffRd}, s{sQd}, 1
s_mul_i32 s{sOffRd}, s{sOffRd}, {240*4096}
s_add_u32 s{sOffRd}, s{sOffRd}, s{sT3}
s_mul_i32 s{sOffG}, s{sQd}, {240*4096}
s_add_u32 s{sOffG}, s{sOffG}, s{sT3}
s_lshl2_add_u32 s{sT0}, s{sMb}, s{sNb}
s_lshl2_add_u32 s{sT3}, s{sT0}, s{sS}
s_lshl2_add_u32 s{sT2}, s{sT3}, s{sW}
s_mul_i32 s{sOffP}, s{sT2}, 10240
s_add_u32 s{sOffP}, s{sOffP}, {hex(PART_OFF)}
s_lshl2_add_u32 s{sFl}, s{sT0}, s{sW}
s_lshl_b32 s{sFl}, s{sFl}, 7
s_lshl2_add_u32 s{sFl}, s{sS}, s{sFl}
s_add_u32 s{sFl}, s{sFl}, {hex(FP)}
v_and_b32 v{vOa}, 15, v0
v_mul_u32_u24 v{vOa}, 1280, v{vOa}
v_lshrrev_b32 v{vPo}, 4, v0
v_lshl_add_u32 v{vOa}, v{vPo}, 3, v{vOa}
v_and_b32 v{vFa2}, 7, v0
v_lshlrev_b32 v{vFa2}, 2, v{vFa2}""") + srd(sOut, pOut, 2048 * 640 * 2) + L(f"""s_lshl_b32 s{sFg}, s{sT3}, 7
s_add_u32 s{sFg}, s{sFg}, {hex(FP)}
s_lshl4_add_u32 s{sT2}, s{sT0}, s{sS}
s_mul_i32 s{sOffK}, s{sT2}, 10240
s_add_u32 s{sOffK}, s{sOffK}, {hex(PART_OFF)}
s_lshl2_add_u32 s{sT2}, s{sT3}, s{sW}
s_mul_i32 s{sOffD}, s{sT2}, 2560
s_add_u32 s{sOffD}, s{sOffD}, {hex(HP_OFF)}
s_xor_b32 s{sT2}, s{sT2}, 8
s_mul_i32 s{sOffDo}, s{sT2}, 2560
s_add_u32 s{sOffDo}, s{sOffDo}, {hex(HP_OFF)}
s_xor_b32 s{sOffDd}, s{sFg}, 0x100
s_lshl2_add_u32 s{sOffDd}, s{sW}, s{sOffDd}
s_add_u32 s{sOffDd}, s{sOffDd}, 16""")
    assert len(osetup) <= 60
    opoll = L(f"s_mov_b32 s{sOffB}, s{sT1}\nv_mov_b32 v39, v{vFa}") + [poll_load(vFo2, 39, f"s{sOffB}")]
    for sg in range(4):
        ex = []; dbo = None
        if EARLY:
            if sg == 0: dbo = dmaB(3) + dmaA(3) + dmaB(4)
            if sg == 1: dbo = dmaA(4) + dmaB(5) + dmaA(5)
        else:
            if sg == 0: dbo = dmaA(3) + dmaA(4)
            if sg == 1: dbo = dmaB(3) + dmaB(4) + dmaB(5) + dmaA(5)
        HS0 = PAR("HS0", 2)
        if sg == 0: ex = HST[:HS0]
        if sg == 2: ex = HST[HS0:3 + HS0 // 2] + L(f"s_mov_b32 s{sOffV}, {hex(FW2)}") + [poll_load(48, vL16, f"s{sOffV}", 4)]
        if sg == 3: ex = HST[3 + HS0 // 2:] + L(f"s_add_u32 s{sQg}, s{sQg}, {hex(FH)}")
        pre = ([] if EARLY else opoll) + L(f"s_lshl_b32 s{sQg}, s{sQ3}, 7\ns_lshl2_add_u32 s{sQg}, s{sH3}, s{sQg}") if sg == 0 else []
        sch(o_block(sg, ex, pre=pre, mid=osetup[sg * 15:(sg + 1) * 15], dbo=dbo), f"o{sg}", vm_min=2)
        if sg == 0 and not EARLY: blk(poll_cmp(vFo2, 1) + poll_branch("o", vFo2, 39, f"s{sOffB}"))
        if "fine2" in KN: blk(stamp(16 + sg))
    base_state = {r: AD[r].base for r in (vOA, vOB)}
    if "fine2" in KN: blk(stamp(14))
    P.block("ol_top", L(f"s_mov_b32 s{sH}, 0") + L(".p2align 6\nL_o:")); P.trace.append(("ol_top", {}))
    lb = []
    NIT = PAR('NIT', 4)
    for q in range(4):
        ex = L(f"s_cmp_eq_u32 s{sH}, {NIT-1}\ns_cselect_b32 s{sT2}, s{sT1}, 0x40000000") + [poll_load(vFl, vFa, f"s{sT2}")] if q == 0 else []
        if q == 3: ex = L(f"s_cmp_eq_u32 s{sH}, 0\ns_cselect_b32 s{sT2}, s{sQg}, 0x40000000") + [set_flag(f"s{sT2}", "Hst")]
        b = o_block(4 + q, ex)
        for x in b:
            for attr in ('tag_r', 'tag_w'):
                t = getattr(x, attr)
                if t is None: continue
                if t == "Hst": continue
                ts = t if isinstance(t, list) else [t]
                setattr(x, attr, (lambda ts: lambda env: [u[:2] + str(int(u[2:]) + 4 * env['it']) for u in ts])(ts))
        if "ohitA" in KN: b = [x for x in b if not x.text.startswith(f"s_add_u32 s{sOffA}, s{sOffA}")]
        if "ohitB" in KN: b = [x for x in b if not x.text.startswith(f"s_add_u32 s{sOffBB}, s{sOffBB}")]
        if "onods" in KN: b = [x for x in b if x.kind != 'ds']
        if "onodma" in KN: b = [x for x in b if not (x.kind == 'vmem' and ' lds' in x.text)]
        if "onobar" in KN: b = [x for x in b if x.kind != 'barrier']
        if "onosc1" in KN:
            for x in b:
                if ' lds' in x.text: x.text = x.text.replace(" sc1", "")
        b = schedule(b, f"ol{q}", verbose=dbg and "v" in KN, vm_min=3)
        if q == 3: b += L(f"s_add_u32 s{sH}, s{sH}, 1\ns_cmp_lt_u32 s{sH}, {NIT}\ns_cbranch_scc1 L_o")
        P.block(f"ol{q}", b)
    assert base_state == {r: AD[r].base for r in (vOA, vOB)}, "loop address state"
    for it in range(NIT): P.trace += [(f"ol{q}", {'it': it}) for q in range(4)]
    if "rewind" in KN:
        pos = sum(isize(x) for b_ in P.blocks for x in b_[1]) * 1.03
        new = int(pos + 1500) // 8192
        if new < cp[0]:
            blk(L(f"s_sub_u32 s62, s62, {(cp[0]-new)*8192}\ns_subb_u32 s63, s63, 0")); cp[0] = new
    if "fine2" in KN: blk(stamp(15))
    blk(poll_cmp(48, 4) + poll_branch("w2", 48, vL16, f"s{sOffV}", 4))
    blk(poll_cmp(vFl, 1) + poll_branch("h", vFl, vFa, f"s{sT1}"))
    dsetup = L(f"""s_lshl_b32 s{sT2}, s{sW}, 11
v_add_u32 v45, s{sT2}, v{vL16}
s_lshl_b32 s{sT2}, s{sW}, 9
s_add_u32 s{sT2}, s{sT2}, 8192
v_and_b32 v46, 31, v0
v_lshlrev_b32 v46, 4, v46
v_lshrrev_b32 v39, 5, v0
v_lshl_add_u32 v46, v39, 3, v46
v_add_u32 v46, s{sT2}, v46
v_add_u32 v47, {LDS_X}, v{vL16}
v_and_b32 v38, 15, v0
v_mul_u32_u24 v38, 1280, v38
v_bfe_u32 v39, v0, 4, 1
v_lshl_add_u32 v38, v39, 5, v38
v_lshrrev_b32 v39, 5, v0
v_lshl_add_u32 v38, v39, 4, v38
s_cmp_eq_u32 s{sW}, s{sS}
s_cmov_b32 s{sOffP}, 0x40000000""")
    NB1 = [int(x) for x in os.environ.get("NB1", "4,4,5,5").split(",")]
    nb1 = 0
    dsetup += L(f"s_mov_b32 s{sOffBB}, s{sOffG}\nv_lshlrev_b32 v37, 3, v0")
    for sg in range(20, 24):
        ex = [x for k in range(nb1, nb1 + NB1[sg - 20]) for x in d_bload(0, k)]; nb1 += NB1[sg - 20]
        sch(o_block(sg, ex, mid=dsetup if sg == 23 else []), f"o{sg}", vm_min=2)
    blk(stamp(10))
    vQ4, vQ2, vLw, vOw = 45, 46, 47, 38
    def pk(dst, t, j):
        a = vAc + (t * 4 + j) * 4
        return L(f"v_cvt_pk_bf16_f32 v{dst}, v{a}, v{a+1}\nv_cvt_pk_bf16_f32 v{dst+1}, v{a+2}, v{a+3}")
    pkall = []; ps = []; n = 0
    for j in range(4):
        for tp in range(2):
            o = vPk + n * 4
            pkall += pk(o, 2 * tp, j) + pk(o + 2, 2 * tp + 1, j)
            it = [I(f"buffer_store_dwordx4 {vr(o,4)}, v{vL16}, {sr(sWS,4)}, s{sOffP} offen offset:{(n%4)*1024} sc1", tag_w="Pst")]
            n += 1
            if n % 4 == 0: it.append(I(f"s_add_u32 s{sOffP}, s{sOffP}, 4096"))
            ps.append(it)
    for jp in range(2):
        o = vPk + n * 4
        pkall += pk(o, 4, 2 * jp) + pk(o + 2, 4, 2 * jp + 1)
        ps.append(L(f"v_permlane32_swap_b32 v{o}, v{o+2}\nv_permlane32_swap_b32 v{o+1}, v{o+3}") + [I(f"buffer_store_dwordx4 {vr(o,4)}, v{vL16}, {sr(sWS,4)}, s{sOffP} offen offset:{jp*1024} sc1", tag_w="Pst")])
        n += 1
    own = L(f"s_cmp_lg_u32 s{sW}, s{sS}\ns_cbranch_scc1 L_own")
    for k in range(10):
        x = I(f"ds_write_b128 v{vLw}, {vr(vPk+4*k,4)} offset:{1024*k}"); x.kind = 'wait'; own.append(x)
    x = I("s_waitcnt lgkmcnt(0)"); x.kind = 'label'; own.append(x)
    own += L("L_own:")
    xl = L(f"""s_and_b32 s{sT2}, s{sS}, 1
s_lshl1_add_u32 s{sT2}, s{sNb}, s{sT2}
s_mul_i32 s{sT2}, s{sT2}, 10
s_mul_i32 s{sT3}, s{sQd}, {20*4096}
s_add_u32 s{sT3}, s{sT3}, s{sM1}
s_add_u32 s{sT3}, s{sT3}, {hex(XR_OFF)}
v_bfe_u32 v2, v0, 4, 1
v_lshrrev_b32 v3, 5, v0
v_lshl_add_u32 v4, v2, 1, v3
v_add_u32 v4, s{sT2}, v4
v_and_b32 v5, 15, v0
v_lshlrev_b32 v5, 4, v5
v_lshrrev_b32 v6, 2, v4
v_lshl_add_u32 v6, v6, 12, v5
v_and_b32 v4, 3, v4
v_lshl_add_u32 v6, v4, 8, v6
v_add_u32 v7, 4096, v6
v_add_u32 v4, s{sT2}, v3
v_add_u32 v4, 8, v4
v_lshrrev_b32 v8, 2, v4
v_lshl_add_u32 v8, v8, 12, v5
v_and_b32 v4, 3, v4
v_lshl_add_u32 v8, v4, 8, v8
v_lshl_add_u32 v8, v2, 3, v8
buffer_load_dwordx4 {vr(vXr,4)}, v6, {sr(sWS,4)}, s{sT3} offen sc1
buffer_load_dwordx4 {vr(vXr+4,4)}, v7, {sr(sWS,4)}, s{sT3} offen sc1
buffer_load_dwordx2 {vr(vXr+8,2)}, v8, {sr(sWS,4)}, s{sT3} offen sc1
s_lshl2_add_u32 s{sT2}, s{sQd}, s{sW}
s_lshl_b32 s{sT2}, s{sT2}, 7
s_add_u32 s{sT2}, s{sT2}, {hex(ST_OFF)}
v_lshrrev_b32 v9, 1, v5
buffer_load_dword v10, v9, {sr(sWS,4)}, s{sT2} offen offset:4 sc1""")
    pl = []
    for i in range(1, 4):
        pl += L(f"s_add_u32 s{sT2}, s{sS}, {i}\ns_and_b32 s{sT2}, s{sT2}, 3\ns_mul_i32 s{sT2}, s{sT2}, {4*10240}\ns_add_u32 s{sT2}, s{sT2}, s{sOffK}")
        for tp in range(2): pl.append(I(f"buffer_load_dwordx4 {vr(vPl+i*12+tp*4,4)}, v{vQ4}, {sr(sWS,4)}, s{sT2} offen offset:{1024*tp} sc1"))
        pl.append(I(f"buffer_load_dwordx2 {vr(vPl+i*12+8,2)}, v{vQ2}, {sr(sWS,4)}, s{sT2} offen sc1"))
    ownrd = L(f"""v_add_u32 v{vLw}, {LDS_X}, v{vQ4}
ds_read_b128 {vr(vPl,4)}, v{vLw}
ds_read_b128 {vr(vPl+4,4)}, v{vLw} offset:1024
v_add_u32 v{vLw}, {LDS_X}, v{vQ2}
ds_read_b64 {vr(vPl+8,2)}, v{vLw}""")
    t0 = 112; vSm = 164; vXf = 184
    xun = []
    for tp in range(2):
        for i in range(2): xun.append(I(f"v_permlane16_swap_b32 v{vXr+4*tp+i}, v{vXr+4*tp+2+i}"))
    for k in range(10): xun += L(f"v_lshlrev_b32 v{vXf+2*k}, 16, v{vXr+k}\nv_and_b32 v{vXf+2*k+1}, 0xffff0000, v{vXr+k}")
    k2 = (math.sqrt(192.0) / math.log2(math.e)) ** 2
    xun += L(f"v_mul_f32 v10, v10, v10\nv_mul_f32 v10, {hex(f2u(k2))}, v10\nv_mul_f32 v11, {hex(f2u(-math.log2(math.e)))}, v10")
    own0 = []
    for k in range(10): own0 += L(f"v_lshlrev_b32 v{vSm+2*k}, 16, v{vPl+k}\nv_and_b32 v{vSm+2*k+1}, 0xffff0000, v{vPl+k}\nv_mul_f32 v{vSm+2*k}, v10, v{vSm+2*k}\nv_mul_f32 v{vSm+2*k+1}, v10, v{vSm+2*k+1}")
    psum = []
    for i in range(1, 4):
        for k in range(10):
            s_ = vPl + i * 12 + k; u = 132 + (k % 4) * 2
            psum += L(f"v_lshlrev_b32 v{u}, 16, v{s_}\nv_and_b32 v{u+1}, 0xffff0000, v{s_}\nv_fmac_f32 v{vSm+2*k}, v10, v{u}\nv_fmac_f32 v{vSm+2*k+1}, v10, v{u+1}")
    fin = []
    for t in range(5):
        h = vDc + 4 * t
        for i in range(4): fin += L(f"v_mul_f32 v{t0+4*t+i}, v11, v{h+i}\nv_exp_f32 v{t0+4*t+i}, v{t0+4*t+i}")
        for i in range(4): fin += L(f"v_mul_f32 v{h+i}, v{h+i}, v{vSm+4*t+i}")
        for i in range(4): fin += L(f"v_add_f32 v{t0+4*t+i}, 1.0, v{t0+4*t+i}\nv_rcp_f32 v{t0+4*t+i}, v{t0+4*t+i}")
        for i in range(4): fin.append(I(f"v_fmac_f32 v{vXf+4*t+i}, v{h+i}, v{t0+4*t+i}"))
        for i in range(2): fin.append(I(f"v_cvt_pk_bf16_f32 v{vXr+2*t+i}, v{vXf+4*t+2*i}, v{vXf+4*t+2*i+1}"))
        if t in (1, 3):
            tp = t // 2
            for i in range(2): fin.append(I(f"v_permlane16_swap_b32 v{vXr+4*tp+i}, v{vXr+4*tp+2+i}"))
            fin.append(I(f"buffer_store_dwordx4 {vr(vXr+4*tp,4)}, v{vOw}, {sr(sOut,4)}, s{sOffO} offen offset:{64*tp}"))
    fin.append(I(f"buffer_store_dwordx2 {vr(vXr+8,2)}, v{vOa}, {sr(sOut,4)}, s{sOffO} offen offset:128"))
    flat = lambda l: [x for it in l for x in it]
    hs = []
    for t in range(5):
        for i in range(2): hs.append(I(f"v_cvt_pk_bf16_f32 v{vHp+2*t+i}, v{vDo+4*t+2*i}, v{vDo+4*t+2*i+1}"))
        if t in (1, 3): hs.append(I(f"buffer_store_dwordx4 {vr(vHp+2*t-2,4)}, v{vL16}, {sr(sWS,4)}, s{sOffD} offen offset:{(t//2)*1024} sc1", tag_w="Pst"))
    hs.append(I(f"buffer_store_dwordx2 {vr(vHp+8,2)}, v37, {sr(sWS,4)}, s{sOffD} offen offset:2048 sc1", tag_w="Pst"))
    hl = [I(f"buffer_load_dwordx4 {vr(vHr+4*k,4)}, v{vL16}, {sr(sWS,4)}, s{sOffDo} offen offset:{1024*k} sc1") for k in range(2)]
    hl.append(I(f"buffer_load_dwordx2 {vr(vHr+8,2)}, v37, {sr(sWS,4)}, s{sOffDo} offen offset:2048 sc1"))
    hadd = []
    for k in range(10):
        u = 132 + (k % 4) * 2
        hadd += L(f"v_lshlrev_b32 v{u}, 16, v{vHr+k}\nv_and_b32 v{u+1}, 0xffff0000, v{vHr+k}\nv_add_f32 v{vDc+2*k}, v{vDc+2*k}, v{u}\nv_add_f32 v{vDc+2*k+1}, v{vDc+2*k+1}, v{u+1}")
    f3 = lambda k: blk(stamp(14 + k)) if "fine3" in KN else None
    B1 = [d_bload(0, k) for k in range(nb1, 24)]; B2 = [d_bload(1, k) for k in range(24)]
    psq = [pkall[4 * k:4 * k + 4] + ps[k] for k in range(10)]
    cfg = [[int(y) for y in x.split(".")] for x in os.environ.get("DC", "3.5.0,3.5.0,0.0.9,0.0.9,0.0.6").split(",")]
    def take(c_):
        q = [[B1.pop(0) for _ in range(c_[0])], [psq.pop(0) for _ in range(c_[1])], [B2.pop(0) for _ in range(c_[2])]]
        return flat(merge(q))
    PFG = PAR("PFG", 2)
    owndone = False
    for g in range(4):
        ex = take(cfg[g])
        XE = PAR("XE", 0)
        if XE and g == 3: ex = ex + xl
        if g == PFG: ex = ex + [set_flag(f"s{sFl}", "Pst")]
        sch(d_block(0, g, ex), f"d0{g}", vm_min=1)
        if not psq and not owndone: blk(own); owndone = True; assert g < 2
        f3(g)
    for x in hs:
        if x.tag_w: x.tag_w = "Qst"
    pollP = L(f"v_and_b32 v12, 12, v{vFa2}") + [poll_load(vFl, 12, f"s{sFg}")]
    setH = L(f"s_lshl2_add_u32 s{sT1}, s{sW}, s{sFg}\ns_add_u32 s{sT1}, s{sT1}, 16\nv_mov_b32 v13, 0")
    blk(hs); f3(4)
    PP = PAR("PP", 0)
    PC = PAR("PC", 1)
    QP = PAR("QP", 3)
    chkP = lambda: blk(poll_cmp(vFl, 1) + poll_branch("p", vFl, 12, f"s{sFg}") + pl)
    pq = [poll_load(16, 13, f"s{sT1}")]
    QF = PAR("QF", 1)
    qf = [set_flag(f"s{sOffDd}", "Qst")]
    sch(d_block(1, 0, (pollP if PP == 0 else []) + take(cfg[4]) + ([] if XE else xl) + (qf if QF == 0 else []), ownrd + setH), "d10", vm_min=1); f3(5)
    assert not B1 and not B2 and not psq
    if PC == 0: chkP()
    sch(d_block(1, 1, (qf if QF == 1 else []) + (pollP if PP == 1 else [])), "d11", vm_min=1); f3(6)
    if PC == 1: chkP()
    f3(7)
    PSK = PAR("PSK", 40)
    sch(d_block(1, 2, pq if QP == 2 else [], xun + own0 + (psum[:PSK] if PC == 0 else [])), "d12", vm_min=1); f3(8)
    chkQ = lambda: blk(poll_cmp(16, 1) + poll_branch("q", 16, 13, f"s{sT1}") + hl)
    if QP == 2: chkQ()
    rest = psum[PSK:] if PC == 0 else psum
    PSJ = PAR("PSJ", 0)
    sch(d_block(1, 3, pq if QP == 3 else [], rest[:PSJ]), "d13", vm_min=1); f3(9)
    if QP == 3: chkQ()
    f3(10)
    blk(stamp(11))
    if "nopk" in KN: blk(rest[PSJ:] + hadd + fin)
    else:
        assert PSJ == 0 and PC != 0
        last = L("v_mov_b32 v12, v10\nv_mov_b32 v13, v10")
        for i in range(1, 4):
            for k in range(10):
                s_ = vPl + i * 12 + k; u = 132 + (k % 4) * 2
                last += L(f"v_lshlrev_b32 v{u}, 16, v{s_}\nv_and_b32 v{u+1}, 0xffff0000, v{s_}\nv_pk_fma_f32 v[{vSm+2*k}:{vSm+2*k+1}], v[{u}:{u+1}], v[12:13], v[{vSm+2*k}:{vSm+2*k+1}]")
        last += L("v_mov_b32 v10, v11\nv_mov_b32 v12, 1.0\nv_mov_b32 v13, 1.0")
        for t in range(5):
            h = vDc + 4 * t; e_ = t0 + 4 * t
            p2 = lambda a, i: f"v[{a+i}:{a+i+1}]"
            for hf in range(2):
                u = 132 + hf * 2
                last += L(f"v_lshlrev_b32 v{u}, 16, v{vHr+2*t+hf}\nv_and_b32 v{u+1}, 0xffff0000, v{vHr+2*t+hf}\nv_pk_add_f32 {p2(h,2*hf)}, {p2(h,2*hf)}, v[{u}:{u+1}]")
            for i in (0, 2): last += L(f"v_pk_mul_f32 {p2(e_,i)}, {p2(h,i)}, v[10:11]")
            for i in range(4): last += L(f"v_exp_f32 v{e_+i}, v{e_+i}")
            for i in (0, 2): last += L(f"v_pk_mul_f32 {p2(h,i)}, {p2(h,i)}, {p2(vSm+4*t,i)}")
            for i in (0, 2): last += L(f"v_pk_add_f32 {p2(e_,i)}, {p2(e_,i)}, v[12:13]")
            for i in range(4): last += L(f"v_rcp_f32 v{e_+i}, v{e_+i}")
            for i in (0, 2): last += L(f"v_pk_fma_f32 {p2(vXf+4*t,i)}, {p2(h,i)}, {p2(e_,i)}, {p2(vXf+4*t,i)}")
            for i in range(2): last.append(I(f"v_cvt_pk_bf16_f32 v{vXr+2*t+i}, v{vXf+4*t+2*i}, v{vXf+4*t+2*i+1}"))
            if t in (1, 3):
                tp = t // 2
                for i in range(2): last.append(I(f"v_permlane16_swap_b32 v{vXr+4*tp+i}, v{vXr+4*tp+2+i}"))
                last.append(I(f"buffer_store_dwordx4 {vr(vXr+4*tp,4)}, v{vOw}, {sr(sOut,4)}, s{sOffO} offen offset:{64*tp}"))
        last.append(I(f"buffer_store_dwordx2 {vr(vXr+8,2)}, v{vOa}, {sr(sOut,4)}, s{sOffO} offen offset:128"))
        blk(last)
    c = []
    c += stamp_store(13)
    amp = os.environ.get("AMP")
    if amp and STAMPS:
        k1, k2, mult = map(int, amp.split(","))
        cy = 1 if mult == 0 else 0
        first = f"v_readlane_b32 s{sT0}, v{vSt}, {2*k1+cy}" if k1 >= 0 else f"s_mov_b32 s{sT0}, s{sNonce}"
        c += L(f"""{first}
v_readlane_b32 s{sT1}, v{vSt}, {2*k2+cy}
v_readlane_b32 s{sT2}, v{vSt}, 26
s_nop 4
s_sub_u32 s{sT0}, s{sT1}, s{sT0}
{f"s_mul_i32 s{sT0}, s{sT0}, {mult}" if mult else f"s_lshr_b32 s{sT0}, s{sT0}, 2"}
s_min_u32 s{sT0}, s{sT0}, 100000
L_amp:
s_memrealtime s[{sSt}:{sSt+1}]
s_waitcnt lgkmcnt(0)
s_sub_u32 s{sT1}, s{sSt}, s{sT2}
s_cmp_lt_u32 s{sT1}, s{sT0}
s_cbranch_scc1 L_amp""")
    c += L("L_end:\ns_endpgm")
    blk(c, "fin")
    for nm, ins in OUTL: P.block(nm, ins)
    P.insert_waits()
    n = P.fix_hazards(verbose=False)
    if dbg:
        tot, per = P.estimate()
        agg = {}
        for k, v in per.items():
            kk = k.rstrip('0123456789') if k[0] in 'od' or k.startswith('p1_') or k.startswith('p2_') else k
            agg[kk] = agg.get(kk, 0) + v
        print("; estimate", tot, agg, "pads", n)
    return P.text() + "\n" + gen_fallback()

def build(path, dbg=False):
    body = gen(dbg)
    body = "\n".join(l.strip() for l in body.split("\n"))
    txt = f"""; @launch grid=(256,1,1) block=(256,1,1) lds={LDS_TOTAL}
.amdgcn_target "amdgcn-amd-amdhsa--gfx950"
.text
.globl {KNAME}
.p2align 8
.type {KNAME},@function
{KNAME}:
L_code_begin:
{body}
L_code_end:
.set CODE_SLICES, (L_code_end-L_code_begin+8191)/8192
.fill 2112, 4, 0xbf800000
s_endpgm
.section .rodata,"a"
.p2align 6
.amdhsa_kernel {KNAME}
  .amdhsa_next_free_vgpr 512
  .amdhsa_next_free_sgpr 102
  .amdhsa_accum_offset 256
  .amdhsa_group_segment_fixed_size 0
  .amdhsa_kernarg_size 96
  .amdhsa_user_sgpr_count 2
  .amdhsa_user_sgpr_kernarg_segment_ptr 1
  .amdhsa_system_sgpr_workgroup_id_x 1
  .amdhsa_float_denorm_mode_32 3
.end_amdhsa_kernel
"""
    open(path, "w").write(txt)

if __name__ == "__main__":
    if "--stamps" in sys.argv:
        STAMPS = True; sys.argv.remove("--stamps")
    build(sys.argv[1], dbg=True)
```

```python
import re

def _expand(op):
    op = op.strip()
    op = op.lstrip('-')
    if op.startswith('abs(') or op.startswith('|'):
        op = op.replace('abs(', '').replace(')', '').replace('|', '')
    m = re.fullmatch(r'([vas])\[(\d+):(\d+)\]', op)
    if m:
        return [f"{m.group(1)}{i}" for i in range(int(m.group(2)), int(m.group(3)) + 1)]
    m = re.fullmatch(r'([vas])(\d+)', op)
    if m:
        return [op]
    if op in ('vcc', 'm0', 'exec', 'scc'):
        return [op]
    if op in ('vcc_lo', 'vcc_hi'):
        return ['vcc']
    return []

TRANS = ('v_exp_f32', 'v_log_f32', 'v_rcp_f32', 'v_rsq_f32', 'v_sqrt_f32', 'v_sin_f32', 'v_cos_f32')
SCC_W = ('s_add_', 's_sub_', 's_addc_', 's_subb_', 's_and_', 's_or_', 's_xor_', 's_lshl_', 's_lshr_', 's_ashr_', 's_cmp', 's_min_', 's_max_', 's_andn2', 's_addk', 's_bfe', 's_not', 's_lshl1', 's_lshl2', 's_lshl3', 's_lshl4')

class Ins:
    __slots__ = ('text', 'kind', 'reads', 'writes', 'after', 'before', 'tag_r', 'tag_w', 'prio', 'uid', 'wait_lgkm', 'wait_vm', 'comment', 'gap')
    _n = 0
    def __init__(self, text, rd=(), wr=(), after=None, before=None, tag_r=None, tag_w=None, prio=0):
        self.text = text.strip()
        self.after = after; self.before = before
        self.tag_r = tag_r; self.tag_w = tag_w
        self.prio = prio
        self.uid = Ins._n; Ins._n += 1
        self.gap = None
        self._parse()
        self.reads |= set(rd); self.writes |= set(wr)
    def _parse(self):
        t = self.text
        self.reads = set(); self.writes = set()
        if t.endswith(':') or t.startswith('.') or t.startswith(';') or not t:
            self.kind = 'label'; return
        parts = t.split(None, 1)
        mn = parts[0]
        rest = parts[1] if len(parts) > 1 else ''
        rest = re.sub(r'\s+(neg_lo|neg_hi|op_sel|op_sel_hi):\[[^\]]*\]', '', rest)
        ops = [o.strip() for o in rest.split(',')] if rest else []
        mods = ''
        if ops:
            sp = ops[-1].split(None, 1)
            ops[-1] = sp[0]
            mods = sp[1] if len(sp) > 1 else ''
        R = lambda i: set(_expand(ops[i])) if i < len(ops) else set()
        allr = lambda a: set().union(*[R(i) for i in range(a, len(ops))]) if len(ops) > a else set()
        if mn.startswith('v_mfma'):
            self.kind = 'mfma'; self.writes = R(0); self.reads = allr(1)
        elif mn.startswith('ds_read') or mn.startswith('ds_bpermute') or mn.startswith('ds_swizzle'):
            self.kind = 'ds'; self.writes = R(0); self.reads = allr(1)
        elif mn.startswith('ds_write') or mn.startswith('ds_add') or mn.startswith('ds_or'):
            self.kind = 'ds'; self.reads = allr(0)
        elif mn.startswith('buffer_load') or mn.startswith('global_load'):
            self.kind = 'vmem'
            if re.search(r'\blds\b', mods) or 'load_lds' in mn:
                self.reads = allr(0) | {'m0'}
            else:
                self.writes = R(0); self.reads = allr(1)
        elif mn.startswith('buffer_store') or mn.startswith('global_store'):
            self.kind = 'vmem'; self.reads = allr(0)
        elif mn.startswith('buffer_atomic') or mn.startswith('global_atomic'):
            self.kind = 'vmem'; self.reads = allr(0)
            if 'sc0' in mods: self.writes = R(0)
        elif mn.startswith('buffer_wbl2') or mn.startswith('buffer_inv'):
            self.kind = 'vmem'
        elif mn.startswith('s_waitcnt') or mn == 's_nop' or mn == 's_sleep' or mn == 's_setprio':
            self.kind = 'wait'
        elif mn == 's_barrier':
            self.kind = 'barrier'
        elif mn.startswith('s_cbranch') or mn == 's_branch' or mn == 's_endpgm':
            self.kind = 'branch'
            if 'scc' in mn: self.reads = {'scc'}
            if 'vcc' in mn: self.reads = {'vcc'}
            if 'exec' in mn: self.reads = {'exec'}
        elif mn.startswith('s_load') or mn.startswith('s_memtime') or mn.startswith('s_memrealtime') or mn.startswith('s_buffer_load'):
            self.kind = 'smem'; self.writes = R(0); self.reads = allr(1)
        elif mn.startswith('s_'):
            self.kind = 'salu'
            if mn.startswith('s_cmp') or mn.startswith('s_bitcmp'):
                self.reads = allr(0); self.writes = {'scc'}
            else:
                self.writes = R(0); self.reads = allr(1)
                if mn.startswith(SCC_W): self.writes.add('scc')
                if mn.startswith('s_cselect') or mn.startswith('s_addc') or mn.startswith('s_subb') or mn.startswith('s_cmov'): self.reads.add('scc')
                if mn.startswith('s_cmov') or mn.startswith('s_addk') or mn.startswith('s_mulk'): self.reads |= R(0)
                if 'saveexec' in mn: self.writes |= {'exec', 'scc'}; self.reads.add('exec')
        elif mn.startswith('v_'):
            base = mn.replace('_e32', '').replace('_e64', '')
            self.kind = 'trans' if base in TRANS else 'valu'
            if 'swap' in mn:
                self.writes = R(0) | R(1); self.reads = R(0) | R(1)
            else:
                self.writes = R(0); self.reads = allr(1)
                if base.startswith('v_fmac') or base.startswith('v_dot2c') or base.startswith('v_writelane') or 'dpp' in mn or 'row_' in mods or 'quad_perm' in mods: self.reads |= R(0)
                if base.startswith('v_add_co') or base.startswith('v_addc_co') or base.startswith('v_sub_co'):
                    self.writes |= R(1); self.reads = allr(2)
                if base.startswith('v_cmpx'): self.writes.add('exec')
        else:
            raise ValueError("unknown instr: " + t)
    def __repr__(self): return self.text

def I(text, **kw): return Ins(text, **kw)

import os
MFMA_RAW_GAPS = int(os.environ.get('RG', 4))
import os
PAIR_SLACK = int(os.environ.get('PSL', 3)) if os.environ.get('PSL', '3') != 'off' else None
BARPRIO = os.environ.get('BP', '1') == '1'
DS_LAT_GAPS = 8

def schedule(serial, name="", ds_lat=DS_LAT_GAPS, verbose=False, vm_min=4):
    mf = [x for x in serial if x.kind == 'mfma']
    n = len(mf)
    midx = {x.uid: i for i, x in enumerate(mf)}
    fill = [x for x in serial if x.kind != 'mfma']
    preds = {x.uid: [] for x in fill}
    lo = {x.uid: -1 for x in fill}
    hi = {x.uid: n - 1 for x in fill}
    soft = {x.uid: n - 1 for x in fill}
    lastw = {}; readers = {}
    succs = {x.uid: [] for x in fill}
    def dep(a, b, typ):
        if a is b: return
        if a.kind == 'mfma' and b.kind == 'mfma': return
        if a.kind == 'mfma':
            i = midx[a.uid]
            if typ in ('raw', 'waw'): lo[b.uid] = max(lo[b.uid], min(i + MFMA_RAW_GAPS, n - 1))
            elif typ == 'warc': lo[b.uid] = max(lo[b.uid], min(i + 2, n - 1))
            else: lo[b.uid] = max(lo[b.uid], i)
        elif b.kind == 'mfma':
            i = midx[b.uid]
            if typ == 'raw':
                if a.kind in ('ds',):
                    hi[a.uid] = min(hi[a.uid], i - 1); soft[a.uid] = min(soft[a.uid], i - 1 - ds_lat)
                else:
                    hi[a.uid] = min(hi[a.uid], i - 1); soft[a.uid] = min(soft[a.uid], i - 2)
            else:
                hi[a.uid] = min(hi[a.uid], i - 1); soft[a.uid] = min(soft[a.uid], i - 1)
        else:
            preds[b.uid].append((a, typ)); succs[a.uid].append((b, typ))
    prev_by_kind = {}
    for x in serial:
        for r in x.reads:
            if r in lastw: dep(lastw[r], x, 'raw')
        for r in x.writes:
            if r in lastw: dep(lastw[r], x, 'waw')
            for y in readers.get(r, []):
                typ = 'war'
                if y.kind == 'mfma':
                    ops = [o.strip() for o in y.text.split(None, 1)[1].split(',')]
                    if r in _expand(ops[3]): typ = 'warc'
                dep(y, x, typ)
        for r in x.reads: readers.setdefault(r, []).append(x)
        for r in x.writes: lastw[r] = x; readers[r] = []
        if x.kind in ('ds', 'vmem', 'barrier'):
            k = x.kind
            if k in prev_by_kind: dep(prev_by_kind[k], x, 'order')
            prev_by_kind[k] = x
    for x in fill:
        if x.kind == 'vmem' and x.after is not None and x.before is None:
            soft[x.uid] = min(soft[x.uid], x.after - 6)
        if x.after is not None: lo[x.uid] = max(lo[x.uid], x.after)
        if x.before is not None:
            soft[x.uid] = min(soft[x.uid], x.before)
    for x in reversed(fill):
        for (b, typ) in succs[x.uid]:
            hi[x.uid] = min(hi[x.uid], hi[b.uid])
            d = 1 if (typ == 'raw' or x.kind in ('ds', 'vmem', 'trans')) else 0
            soft[x.uid] = min(soft[x.uid], soft[b.uid] - d)
    for x in fill:
        for (a, typ) in preds[x.uid]:
            lo[x.uid] = max(lo[x.uid], lo[a.uid])
        if lo[x.uid] > hi[x.uid]:
            lo[x.uid] = hi[x.uid]
    wantwait = set()
    seen = set()
    dsw = {}
    for x in serial:
        if x.kind == 'mfma':
            for r in x.reads:
                key = (r, dsw.get(r, -1))
                if (r in dsw or r.startswith('a') or r.startswith('v')) and key not in seen and r in dsw:
                    wantwait.add(midx[x.uid] - 1)
                seen.add(key)
        if x.kind == 'ds':
            for r in x.writes: dsw[r] = x.uid
    placed = {}
    gaps = {g: [] for g in range(-1, n)}
    npred = {x.uid: len(set(a.uid for a, _ in preds[x.uid])) for x in fill}
    succ_u = {x.uid: {} for x in fill}
    for x in fill:
        for (b, typ) in succs[x.uid]: succ_u[x.uid][b.uid] = b
    ready = [x for x in fill if npred[x.uid] == 0]
    nleft = len(fill)
    over = 0
    last_vm = -100
    for g in range(-1, n):
        scalar_free = (g not in wantwait)
        vec = 2
        has_ds = False
        while True:
            cands = [x for x in ready if lo[x.uid] <= g]
            if not cands: break
            cands.sort(key=lambda x: (soft[x.uid], -x.prio, x.uid))
            if BARPRIO:
                bs = [x for x in cands if x.kind == 'barrier']
                for x in bs: cands.remove(x); cands.insert(0, x)
                ds_ = next((x for x in cands if x.kind == 'ds'), None)
                if ds_ is not None and soft[ds_.uid] <= g and not bs:
                    cands.remove(ds_); cands.insert(0, ds_)
            if vec == 2 and PAIR_SLACK is not None:
                vecs = [x for x in cands if x.kind in ('ds', 'valu', 'trans', 'vmem')]
                if vecs and vecs[0].kind == 'ds' and soft[vecs[0].uid] - g > PAIR_SLACK and not any(x.kind == 'valu' for x in vecs):
                    tr = next((x for x in vecs if x.kind == 'trans'), None)
                    if tr is not None:
                        cands.remove(tr); cands.insert(0, tr)
                elif vecs and vecs[0].kind == 'valu' and soft[vecs[0].uid] - g > PAIR_SLACK:
                    o = next((x for x in vecs if x.kind == 'ds'), None) or next((x for x in vecs if x.kind == 'trans'), None)
                    if o is not None:
                        cands.remove(o); cands.insert(0, o)
            pick = None
            for x in cands:
                forced = hi[x.uid] <= g
                samegap_raw = any(placed[a.uid] == g and typ == 'raw' and not (a.kind == 'valu' and x.kind == 'valu') for (a, typ) in preds[x.uid])
                samegap_any = any(placed[a.uid] == g for (a, typ) in preds[x.uid])
                fits = False
                if g >= 0 and not samegap_raw:
                    if x.kind == 'barrier' and BARPRIO:
                        fits = not samegap_any
                    elif x.kind in ('salu', 'wait', 'barrier'):
                        fits = scalar_free and not samegap_any
                    elif x.kind == 'ds':
                        fits = vec >= 1 and not has_ds and not any(placed[a.uid] == g and a.kind in ('valu', 'trans') for (a, typ) in preds[x.uid])
                    elif x.kind == 'valu':
                        fits = vec >= 1
                    elif x.kind == 'trans':
                        fits = vec >= 2
                    elif x.kind == 'vmem':
                        fits = vec >= 2 and g - last_vm >= vm_min
                if fits or forced:
                    pick = x; pfits = fits; break
            if pick is None: break
            x = pick
            if not pfits: over += 1
            if x.kind in ('salu', 'wait', 'barrier'):
                scalar_free = False
            elif x.kind == 'ds': vec -= 1; has_ds = True
            elif x.kind == 'valu': vec -= 1
            else: vec -= 2
            if x.kind == 'vmem': last_vm = g
            placed[x.uid] = g; x.gap = g
            gaps[g].append((x, pfits))
            ready.remove(x); nleft -= 1
            for b in succ_u[x.uid].values():
                npred[b.uid] -= 1
                if npred[b.uid] == 0: ready.append(b)
    assert nleft == 0
    out = []
    for g in range(-1, n):
        if g >= 0: out.append(mf[g])
        items = gaps[g]
        if all(f for _, f in items):
            order = {'salu': 0, 'wait': 0, 'barrier': 0, 'ds': 1, 'vmem': 1, 'valu': 2, 'trans': 2}
            items = sorted(items, key=lambda it: order[it[0].kind])
        out += [x for x, _ in items]
    if verbose: print(f"; schedule {name}: {n} mfma, {len(fill)} fillers, {over} overflow")
    return out

class Prog:
    def __init__(self):
        self.blocks = []
        self.trace = []
    def block(self, name, ins):
        self.blocks.append([name, list(ins)])
    def get(self, name):
        if not hasattr(self, '_idx') or len(self._idx) != len(self.blocks):
            self._idx = {b[0]: b for b in self.blocks}
        return self._idx[name]
    def dyn(self):
        for (name, env) in self.trace:
            for x in self.get(name)[1]:
                yield x, env, name

    def insert_waits(self):
        need = {}
        anchor_of = {}
        for name, ins in self.blocks:
            last_after_mfma = None
            for i, x in enumerate(ins):
                if i > 0 and ins[i - 1].kind == 'mfma': last_after_mfma = x
                if x.kind in ('label', 'branch'): last_after_mfma = None
                anchor_of[x.uid] = last_after_mfma if (last_after_mfma is not None and x.kind == 'mfma') else x
        for _pass in range(6):
            changed = False
            q = {'lgkm': [], 'vm': []}
            seq = {'lgkm': 0, 'vm': 0}
            at_anchor = {}
            smem_out = False
            for x, env, name in self.dyn():
                at_anchor[x.uid] = (seq['lgkm'], seq['vm'])
                if x.uid in need:
                    l, v = need[x.uid]
                    if l is not None: q['lgkm'] = q['lgkm'][len(q['lgkm']) - l:] if l < len(q['lgkm']) and l > 0 else ([] if l == 0 else q['lgkm'])
                    if v is not None: q['vm'] = q['vm'][len(q['vm']) - v:] if v < len(q['vm']) and v > 0 else ([] if v == 0 else q['vm'])
                if x.kind == 'wait' and x.text.startswith('s_waitcnt'):
                    m = re.search(r'lgkmcnt\((\d+)\)', x.text)
                    if m:
                        l = int(m.group(1)); q['lgkm'] = q['lgkm'][len(q['lgkm']) - l:] if 0 < l < len(q['lgkm']) else ([] if l == 0 else q['lgkm'])
                    m = re.search(r'vmcnt\((\d+)\)', x.text)
                    if m:
                        v = int(m.group(1)); q['vm'] = q['vm'][len(q['vm']) - v:] if 0 < v < len(q['vm']) else ([] if v == 0 else q['vm'])
                touched = set(x.reads) | set(x.writes)
                if x.tag_r is not None:
                    t = x.tag_r(env) if callable(x.tag_r) else x.tag_r
                    touched |= set(t if isinstance(t, (list, tuple, set)) else [t])
                for ci, c in enumerate(('lgkm', 'vm')):
                    hit = None
                    for (s, regs, issm) in q[c]:
                        if regs & touched: hit = (s, issm)
                    if hit is not None:
                        a = anchor_of[x.uid]
                        sa = at_anchor[a.uid][ci]
                        if hit[0] >= sa:
                            a = x; sa = seq[c]
                        N = sa - hit[0] - 1
                        if any(sm for (_, _, sm) in q[c]): N = 0; a = x
                        N = min(N, 15 if c == 'lgkm' else 63)
                        cur = need.setdefault(a.uid, [None, None])
                        if cur[ci] is None or N < cur[ci]:
                            cur[ci] = N; changed = True
                        q[c] = [e for e in q[c] if e[0] > hit[0]] if N > 0 or a is not x else []
                if x.kind in ('ds', 'smem'):
                    w = set(r for r in x.writes if r[1:].isdigit())
                    if x.tag_w is not None:
                        t = x.tag_w(env) if callable(x.tag_w) else x.tag_w
                        w |= set(t if isinstance(t, (list, tuple, set)) else [t])
                    q['lgkm'].append((seq['lgkm'], w, x.kind == 'smem')); seq['lgkm'] += 1
                elif x.kind == 'vmem':
                    w = set(x.writes)
                    if x.tag_w is not None:
                        t = x.tag_w(env) if callable(x.tag_w) else x.tag_w
                        w |= set(t if isinstance(t, (list, tuple, set)) else [t])
                    q['vm'].append((seq['vm'], w, False)); seq['vm'] += 1
            if not changed: break
        else:
            raise RuntimeError("wait insertion did not converge")
        for b in self.blocks:
            out = []
            for x in b[1]:
                if x.uid in need:
                    l, v = need[x.uid]
                    s = "s_waitcnt" + (f" vmcnt({v})" if v is not None else "") + (f" lgkmcnt({l})" if l is not None else "")
                    out.append(I(s))
                out.append(x)
            b[1] = out

    def fix_hazards(self, verbose=False):
        total = 0
        for _pass in range(8):
            pad = {}
            hist = []
            for x, env, name in self.dyn():
                if x.kind == 'label': continue
                need = 0
                dist = 0
                for y in reversed(hist):
                    req = hazard(y, x)
                    if req > dist: need = max(need, req - dist)
                    dist += states(y)
                    if dist > 20: break
                if need:
                    pad[x.uid] = max(pad.get(x.uid, 0), need)
                    hist.append(I(f"s_nop {need-1}"))
                hist.append(x)
                if len(hist) > 40: hist = hist[-30:]
            if not pad: break
            for b in self.blocks:
                out = []
                for x in b[1]:
                    if x.uid in pad:
                        out.append(I(f"s_nop {pad[x.uid]-1}")); total += 1
                        if verbose: print(f"; hazard pad {pad[x.uid]} before {x.text} in {b[0]}")
                    out.append(x)
                b[1] = out
        return total

    def text(self):
        L = []
        for name, ins in self.blocks:
            L.append(f"; ---- {name}")
            for x in ins:
                L.append(x.text if x.kind == 'label' else "  " + x.text)
        return "\n".join(L)

    def estimate(self):
        tot = 0; cur = None; per = {}
        def flush(c):
            return max(16, c)
        gap = None
        for x, env, name in self.dyn():
            if x.kind == 'label': continue
            if x.kind == 'mfma':
                if gap is not None:
                    c = flush(gap[0]); tot += c; per[gap[2]] = per.get(gap[2], 0) + c
                gap = [8, True, name, 'mfma']
            else:
                cost = 4
                if x.kind in ('trans', 'vmem'): cost = 8
                if x.text.startswith('s_nop'): cost = 4 * (int(x.text.split()[1]) + 1)
                if gap is None:
                    tot += cost; per[name] = per.get(name, 0) + cost; continue
                if x.kind in ('salu', 'wait', 'barrier', 'branch') and gap[1] and cost == 4: cost = 0
                if x.kind == 'ds' and gap[3] in ('valu', 'trans'): cost += 8
                if x.kind == 'ds' and gap[3] == 'ds': cost += 4
                gap[1] = False; gap[0] += cost; gap[3] = x.kind
        if gap is not None:
            c = flush(gap[0]); tot += c; per[gap[2]] = per.get(gap[2], 0) + c
        return tot, per

def states(y):
    if y.text.startswith('s_nop'): return int(y.text.split()[1]) + 1
    return 1

def _vregs(s): return {r for r in s if r[0] in 'va' and r[1:].isdigit()}
def _sregs(s): return {r for r in s if (r[0] == 's' and r[1:].isdigit()) or r == 'vcc'}

def hazard(y, x):
    req = 0
    yv = y.kind in ('valu', 'trans')
    xv = x.kind in ('valu', 'trans')
    if y.kind == 'mfma':
        big = '32x32' in y.text
        D = y.writes
        ops = [o.strip() for o in y.text.split(None, 1)[1].split(',')]
        C = set(_expand(ops[3]))
        if x.kind == 'mfma':
            xo = [o.strip() for o in x.text.split(None, 1)[1].split(',')]
            if D & (set(_expand(xo[1])) | set(_expand(xo[2]))): req = max(req, 12 if big else 8)
            xc = set(_expand(xo[3]))
            if D & xc and xc != D: req = max(req, 10 if big else 6)
            if D & x.writes and not (D & xc): req = max(req, 10 if big else 6)
        elif xv or x.kind in ('ds', 'vmem'):
            if D & (x.reads | x.writes): req = max(req, 12 if big else 8)
            if xv and (C & x.writes): req = max(req, 7 if big else 3)
    if yv:
        W = _vregs(y.writes)
        if x.kind == 'mfma' and W & x.reads: req = max(req, 2)
        if 'permlane' in x.text and W & x.reads: req = max(req, 2)
        if ('dpp' in x.text or 'row_' in x.text or 'quad_perm' in x.text) and W & x.reads: req = max(req, 2)
        if (x.text.startswith('v_readfirstlane') or x.text.startswith('v_readlane')) and W & x.reads: req = max(req, 1)
        if y.kind == 'trans' and x.kind == 'valu' and W & x.reads: req = max(req, 1)
        S = _sregs(y.writes)
        if S:
            if x.kind == 'vmem' and S & x.reads: req = max(req, 5)
            if xv and S & x.reads: req = max(req, 2)
            if x.kind in ('salu', 'branch') and S & x.reads: req = max(req, 2)
        if 'exec' in y.writes: req = max(req, 5)
    if y.kind == 'salu' and 'm0' in y.writes and x.kind == 'vmem' and 'm0' in x.reads: req = max(req, 1)
    if y.kind == 'vmem' and ('store_dwordx4' in y.text or 'store_dwordx3' in y.text):
        data = set(_expand(y.text.split(None, 1)[1].split(',')[0 if y.text.startswith('buffer') else 1]))
        if data & x.writes: req = max(req, 2)
    return req


def isize(x):
    if x.kind == 'label': return 0
    if x.kind in ('mfma', 'ds', 'vmem', 'smem'): return 8
    t = x.text
    lit = 4 if re.search(r'(?<![\w\[:])(0x[0-9a-f]+|\d{3,}|6[5-9]|[7-9]\d)(?![\w\]:])', t.split(None, 1)[1] if ' ' in t else '') else 0
    if x.kind in ('valu', 'trans'):
        mn = t.split()[0]
        if mn.startswith(('v_cvt_pk', 'v_max3', 'v_lshl_add', 'v_fma_', 'v_pk_', 'v_bfe', 'v_or3', 'v_accvgpr', 'v_mad', 'v_writelane', 'v_readlane')) or 'dpp' in mn: return 8
        return 4 + lit
    if x.kind in ('wait', 'barrier', 'branch'): return 4
    return 4 + lit
```

```python
import sys, math, struct, os
from asmlib import *
KN = set(os.environ.get("KN", "").split(","))
def PAR(name, default): return type(default)(os.environ.get(name, default))
NAME = "recurrent_scan__sliding_block_cached__glu_gated_bilinear__prompt"
KNAME = NAME + "_kernel"
XN_OFF = 0; OH_OFF = 0x400000; GP_OFF = 0x2200000; WOP_OFF = 0x2600000; WDP_OFF = 0x2E00000; PART_OFF = 0x3000000
FL_OFF = 0x3A00000
FXN = FL_OFF; FO = FL_OFF + 0x8000; FH = FL_OFF + 0x10000; FP = FL_OFF + 0x18000; FG = FL_OFF + 0x20000; FW = FL_OFF + 0x21000; FW2 = FL_OFF + 0x22000; ST_OFF = FL_OFF + 0x30000
XR_OFF = 0x3B00000; HP_OFF = 0x3E00000
WS_SIZE = 0x4100000
STAMP_OFF = 0x8000000
SLOT = 28672; SL2 = 36864
LDS_X = 147456
LDS_TOTAL = 163840
STAMPS = False
SPIN_MAX = 200000
PSTR = 24576; LN_X = 86016
def sbase(st):
    if st < 10: return (114688 if (st // 2) % 2 == 0 else 0) + (st % 2) * PSTR
    if st <= 26: return (st % 4) * SLOT
    return {27: 114688, 28: 139264, 29: 86016, 30: 0, 31: 36864}[st]
OPERM = [3, 2, 0, 1]
def obase(sg): return OPERM[sg % 4] * SL2

def f2u(x): return struct.unpack('<I', struct.pack('<f', x))[0]
def vr(a, n): return f"v[{a}:{a+n-1}]" if n > 1 else f"v{a}"
def ar(a, n): return f"a[{a}:{a+n-1}]" if n > 1 else f"a{a}"
def sr(a, n): return f"s[{a}:{a+n-1}]" if n > 1 else f"s{a}"
def rr(x, n=4): return vr(x[1], n) if x[0] == 'v' else ar(x[1], n)
def L(txt): return [I(t) for t in txt.strip().split("\n") if t.strip()]
def mfma(d, a, b, c): return I(f"v_mfma_f32_16x16x32_bf16 {d}, {a}, {b}, {c}")

sWq, sK, sWS, sR = 4, 8, 12, 16
(sOffX, sOffY, sOffK, sOffV, sM6, sM3, sM1, sOffB, sH, sB, sW, sT0, sT1, sT2, sOffO, sScale,
 sOffG, sOffH0, sOffH1, sOffH2, sNonce, sOffR, sOffD, sOffRo, sOffRd, sOffDo, sOffDd,
 sS, sMb, sNb, sFl, sSpin, sT3, sOffP, sQg, sFg, sOffA, sOffBB, sM5, sM4, sPf, sQd) = range(20, 62)
sOffH = sOffH0
pX, pK, pV, pWq, pWo, pBx, pWg, pWu, pWd, pOut, pDbg, pWs = range(64, 88, 2)
sSt = 88; sV = 92; sXin = 96
sOut = sWq
vL16 = 1; vWo = 2; vKo = 5; vVo = 8; vRo = 11; vRo2 = 12; vL128 = 13; vFo = 14; vNon = 15
vRa = 16; vWa = 17; vKa = 19; vVa = 21; vGa = 25
vLs = 26; vT = 36; vSt = 31; vNm = 32; vTmp = 48
vAcc = 64; vQ = 64
vS01 = 160; vS23 = 176; vP01 = 208; vP23 = 224; vVs = 232
aK = 192; aR = 240; aA1 = 128; aDum = 255; aCs = 160
vOne = 48; vSta = 40; vCsT = 52; vXo = 44; vXo2 = 46; vSo = 32; vPa = 42; vPd = 43
vDum = 30
NSLICE = 11 if 'ostatic' in KN else 10

class Addr:
    def __init__(self, reg, base): self.reg = reg; self.base = base
    def use(self, base, off):
        pre = []
        d = base + off - self.base
        if not (0 <= d < 65536):
            pre = [I(f"v_add_u32 v{self.reg}, {hex((base - self.base) & 0xffffffff)}, v{self.reg}")]
            self.base = base; d = off
        return pre, d
AD = {}
def dsr(op, dst, reg, base, off, **kw):
    pre, d = AD[reg].use(base, off)
    return pre + [I(f"{op} {dst}, v{reg} offset:{d}", **kw)]

def srd(d, base, size):
    return [I(f"s_mov_b32 s{d}, s{base}"), I(f"s_mov_b32 s{d+1}, s{base+1}"), I(f"s_mov_b32 s{d+2}, {hex(size)}"), I(f"s_mov_b32 s{d+3}, 0x20000")]
def xreduce(v, t, op):
    return L(f"""v_mov_b32 v{t}, v{v}
v_permlane16_swap_b32 v{v}, v{t}
{op} v{v}, v{v}, v{t}
v_mov_b32 v{t}, v{v}
v_permlane32_swap_b32 v{v}, v{t}
{op} v{v}, v{v}, v{t}""")
def divmod_const(q, r, src, c):
    magic = (65536 + c - 1) // c
    for x in range(1400): assert (x * magic) >> 16 == x // c
    return L(f"v_mul_u32_u24 v{q}, {magic}, v{src}\nv_lshrrev_b32 v{q}, 16, v{q}\nv_mul_u32_u24 v{r}, {c}, v{q}\nv_sub_u32 v{r}, v{src}, v{r}")
def sdivmod(q, r, src, c):
    magic = (65536 + c - 1) // c
    for x in range(1400): assert (x * magic) >> 16 == x // c
    return L(f"s_mul_i32 s{q}, s{src}, {magic}\ns_lshr_b32 s{q}, s{q}, 16\ns_mul_i32 s{r}, s{q}, {c}\ns_sub_u32 s{r}, s{src}, s{r}")

LIGHT = "light" in KN
def stamp(k):
    if not STAMPS or (LIGHT and k not in (0, 13)): return []
    return L(f"""s_memrealtime s[{sSt}:{sSt+1}]
s_memtime s[{sSt+2}:{sSt+3}]
s_waitcnt lgkmcnt(0)
v_writelane_b32 v{vSt}, s{sSt}, {2*k}
v_writelane_b32 v{vSt}, s{sSt+2}, {2*k+1}""")
def stamp_store(n):
    if not STAMPS: return []
    return stamp(n - 1) + L("s_waitcnt vmcnt(0)") + stamp(n) + L(f"""s_add_u32 s{sK}, s{pWs}, {hex(STAMP_OFF)}
s_addc_u32 s{sK+1}, s{pWs+1}, 0
s_mov_b32 s{sK+2}, {1024*256}
s_mov_b32 s{sK+3}, 0x20000
s_lshl2_add_u32 s{sT0}, s2, s{sW}
s_lshl_b32 s{sT0}, s{sT0}, 8
v_lshlrev_b32 v2, 2, v0
buffer_store_dword v{vSt}, v2, {sr(sK,4)}, s{sT0} offen""")

OUTL = []
def poll_load(dst, vaddr, soff, n=1, **kw):
    op = "buffer_load_dword" if n == 1 else "buffer_load_dwordx4"
    return I(f"{op} {vr(dst,n)}, v{vaddr}, {sr(sWS,4)}, {soff} offen sc1", **kw)
def poll_cmp(dst, n):
    if n == 1: return L(f"v_cmp_ne_u32 vcc, s{sNonce}, v{dst}")
    return L(f"""v_xor_b32 v{dst}, s{sNonce}, v{dst}
v_xor_b32 v{dst+1}, s{sNonce}, v{dst+1}
v_xor_b32 v{dst+2}, s{sNonce}, v{dst+2}
v_xor_b32 v{dst+3}, s{sNonce}, v{dst+3}
v_or3_b32 v{dst}, v{dst}, v{dst+1}, v{dst+2}
v_or_b32 v{dst}, v{dst}, v{dst+3}
v_cmp_ne_u32 vcc, 0, v{dst}""")
def poll_branch(name, dst, vaddr, soff, n=1):
    o = L(f"L_spin_{name}:\ns_mov_b32 s{sSpin}, {SPIN_MAX}\nL_spin2_{name}:")
    o += [poll_load(dst, vaddr, soff, n)] + L("s_waitcnt vmcnt(0)") + poll_cmp(dst, n)
    o += L(f"""s_nop 4
s_cbranch_vccz L_back_{name}
s_sleep 1
s_sub_u32 s{sSpin}, s{sSpin}, 1
s_cmp_lg_u32 s{sSpin}, 0
s_cbranch_scc1 L_spin2_{name}
s_branch L_back_{name}""")
    OUTL.append((f"spin_{name}", o))
    return L(f"s_cbranch_vccnz L_spin_{name}\nL_back_{name}:")
def late(lst, g):
    for x in lst: x.after = g
    return lst
def set_flag(soff, tag, **kw):
    return I(f"buffer_store_dword v{vNon}, v{vFo}, {sr(sWS,4)}, {soff} offen sc1", tag_r=tag, **kw)

RF = os.environ.get("RF", "nt"); WQF = os.environ.get("WQF", "")
KVF = os.environ.get("KVF", "nt")
def grp3(st, srdn, vo, so, mreg, moff, inc, flags=""):
    r = [I(f"s_add_u32 m0, s{mreg}, {sbase(st)+moff}")]
    for n in range(3):
        v = vo + n if vo != vL16 else vL16
        r.append(I(f"buffer_load_dwordx4 v{v}, {sr(srdn,4)}, s{so} offen offset:{1024*n} {flags} lds", tag_w=f"st{st}", rd=['stg']))
    if inc: r.append(I(f"s_add_u32 s{so}, s{so}, {inc}"))
    return r
def dma_stage(st):
    r = []
    if st <= 9:
        r += grp3(st, sWq, vWo, sOffX, sM6, 0, 16 * 12288, WQF) + grp3(st, sWq, vWo, sOffX, sM6, 3072, 48 * 12288, WQF)
    elif st <= 26:
        t = st - 10
        if t <= 15: r += grp3(st, sK, vKo, sOffK, sM3, 0, 12288, KVF)
        if t >= 1: r += grp3(st, sV, vVo, sOffV, sM3, 12288, 12288, KVF)
        u = st - 12
        if 0 <= u < 14:
            if u == 4: r += srd(sR, pWo, 6144 * 640 * 2)[:3] + L(f"s_mov_b32 s{sOffR}, s{sOffRo}")
            if u == 12: r += srd(sR, pWd, 1536 * 640 * 2)[:3] + L(f"s_mov_b32 s{sOffR}, s{sOffRd}")
            r.append(I(f"s_add_u32 m0, s{sM1}, {sbase(st)+24576}"))
            r.append(I(f"buffer_load_dwordx4 v{vRo if u < 4 else vRo2}, {sr(sR,4)}, s{sOffR} offen {RF} lds", tag_w=f"st{st}", rd=['stg']))
            r.append(I(f"s_add_u32 s{sOffR}, s{sOffR}, {32*3072 if u < 4 else 32*1280}"))
    else:
        r += grp3(st, sWS, vL16, sOffG, sM6, 0, 3072, "sc1") + grp3(st, sWS, vL16, sOffG, sM6, 3072, 24576 - 3072, "sc1")
    return r
def pace(lst, lo, hi):
    vm = [x for x in lst if x.kind == 'vmem']
    for k, x in enumerate(vm): x.after = int(lo + k * (hi - lo) / len(vm))
    return lst
def barrier(tag, after=None): return I("s_barrier", tag_r=tag, wr=['stg'], after=after)

def acc1(T, j): return vAcc + ((T // 2) * 4 + j) * 8 + (T % 2) * 4
def w_reads(k, T):
    slot = aA1 + (T % 2) * 16
    p, t = T // 2, T % 2
    r = []
    for ks in range(4):
        for u in range(2): r += dsr("ds_read_b64_tr_b16", ar(slot + ks * 4 + u * 2, 2), vWa + p % 2, sbase(2 * k), (ks // 2) * PSTR + (ks % 2) * 12288 + u * 6144 + (p // 2) * 128 + 8 * t, rd=['stg'], tag_w=f"wr{k}")
    return r
def b_loads(base):
    r = []
    for u in range(2):
        for j in range(4):
            r.append(I(f"buffer_load_dwordx4 {rr((base[0], base[1]+(u*4+j)*4))}, v{vL16}, {sr(sWS,4)}, s{sOffB} offen offset:{1024*j} sc1"))
        r.append(I(f"s_add_u32 s{sOffB}, s{sOffB}, 4096"))
    return r
def k_reads(st, kt):
    r = []
    for s in range(6): r += dsr("ds_read_b128", ar(aK + kt * 24 + s * 4, 4), vKa + s % 2, sbase(st), kt * 6144 + (s // 2) * 128, rd=['stg'], tag_w=f"vr{st}")
    return r
def v_reads(st, T):
    r = []
    for u in range(2): r += dsr("ds_read_b64_tr_b16", vr(vVs + (T % 6) * 4 + u * 2, 2), vVa + T % 4, sbase(st), 12288 + u * 6144 + (T // 4) * 128, rd=['stg'], tag_w=f"vr{st}")
    return r
def prefetch(srdn, soff, flags=""):
    x = I(f"buffer_load_dword v{vDum}, v{vL128}, {sr(srdn,4)}, {soff} offen {flags}"); x.writes = set(); return x

def csreg(T): return aCs + T * 4
def p1_quad(k, T0=0, T1=12, vm=(), vmspan=None, extra=()):
    last = k == 4
    per = 20 if k == 0 else 16
    n = (T1 - T0) * per
    s = []
    vm = list(vm)
    if any(x.kind == 'vmem' for x in vm): pace(vm, *(vmspan or (1, n - 20)))
    s += vm + list(extra)
    for T in range(T0, T1):
        if T + 1 < 12: s += w_reads(k, T + 1)
        else:
            s.append(barrier([f"st{2*k+2}", f"wr{k}"] + ([f"st{2*k+3}"] if not last else []), after=n - per - 1))
            s += w_reads(k + 1, 0) if not last else k_reads(10, 0)
        slot = aA1 + (T % 2) * 16
        for j in range(4):
            d = vr(acc1(T, j), 4)
            for ks in range(4):
                s.append(mfma(d, ar(slot + ks * 4, 4), ar(64 * (k % 2) + (ks * 4 + j) * 4, 4), "0" if (k == 0 and ks == 0) else d))
        if k == 0:
            d = ar(csreg(T), 4)
            for ks in range(4): s.append(mfma(d, ar(slot + ks * 4, 4), vr(vOne, 4), d if ks else "0"))
        if k in (2, 3) and T % 2 == k - 2:
            t = vCsT + ((T // 2) % 2) * 4
            for i in range(4): s.append(I(f"v_accvgpr_read_b32 v{t+i}, a{csreg(T)+i}"))
            for j in range(4):
                for i in range(4): s.append(I(f"v_fmac_f32 v{acc1(T,j)+i}, v{t+i}, v{vSta+2*j}"))
        if last and T % 2 == 1:
            p = T // 2
            for j in range(4):
                a = acc1(2 * p, j); q = vQ + (p * 4 + j) * 4
                for i in range(8): s.append(I(f"v_mul_f32 v{a+i}, v{vSta+2*j+1}, v{a+i}"))
                for i in range(4): s.append(I(f"v_cvt_pk_bf16_f32 v{q+i}, v{a+2*i}, v{a+2*i+1}"))
    return s
def w_reads0(n):
    h, T = n // 12, n % 12
    slot = aA1 + (n % 4) * 8
    p, t = T // 2, T % 2
    r = []
    for ks in range(2):
        for u in range(2): r += dsr("ds_read_b64_tr_b16", ar(slot + ks * 4 + u * 2, 2), vWa + p % 2, sbase(0), h * PSTR + ks * 12288 + u * 6144 + (p // 2) * 128 + 8 * t, rd=['stg'], tag_w="wr0")
    return r
def raw_reads(h):
    return [I(f"ds_read_b128 {ar(((2*h+ks)*4+j)*4,4)}, v{(vXo if h == 0 else vXo2) + ks} offset:{j*2048}", tag_r=f"raw{h}", tag_w=f"rawrd{h}") for j in range(4) for ks in range(2)]
def p1_first(n0, n1, extra=()):
    s = list(extra)
    for n in range(n0, n1):
        h, T = n // 12, n % 12
        if n == 8: s += late(raw_reads(1), (8 - n0) * 10)
        if n == 10: s.append(barrier(["st1"], after=(10 - n0) * 10 - 4))
        if n + 2 < 24: s += w_reads0(n + 2)
        elif n == 23:
            s.append(barrier(["st2", "st3", "wr0"], after=(22 - n0) * 10))
            s += w_reads(1, 0)
        slot = aA1 + (n % 4) * 8
        for j in range(4):
            d = vr(acc1(T, j), 4)
            for ks in range(2): s.append(mfma(d, ar(slot + ks * 4, 4), ar(((2 * h + ks) * 4 + j) * 4, 4), "0" if (h == 0 and ks == 0) else d))
        d = ar(csreg(T), 4)
        for ks in range(2): s.append(mfma(d, ar(slot + ks * 4, 4), vr(vOne, 4), "0" if (h == 0 and ks == 0) else d))
    return s
def stat_loads():
    return [I(f"buffer_load_dwordx2 {vr(vSta+2*j,2)}, v{vSo}, {sr(sWS,4)}, s{sScale} offen offset:{128*j} sc1") for j in range(4)]

def Sreg(kt, j, t):
    if j < 2: return (vTmp if t == 0 else vS01) + (j * 2 + kt) * 4
    return vS23 + (t % 2) * 16 + ((j - 2) * 2 + kt) * 4
def Preg(j, t):
    if j < 2: return vP01 + (t % 2) * 8 + j * 4
    return (vTmp + 8 if t == 15 else vP23) + (j - 2) * 4
def qk(kt, t):
    s = []
    for j in range(4):
        d = vr(Sreg(kt, j, t), 4)
        for p in range(6):
            c = d if p else ("0" if (t == 0 and kt == 0) else vr(vNm + 4 * j, 4))
            s.append(mfma(d, ar(aK + kt * 24 + p * 4, 4), vr(vQ + (p * 4 + j) * 4, 4), c))
    return s
def softmax(j, t):
    s = []
    for kt in range(2):
        a = Sreg(kt, j, t)
        for i in range(4): s.append(I(f"v_exp_f32 v{a+i}, v{a+i}"))
        for i in range(4): s.append(I(f"v_add_f32 v{vLs+j}, v{vLs+j}, v{a+i}"))
        for i in range(2): s.append(I(f"v_cvt_pk_bf16_f32 v{Preg(j,t)+kt*2+i}, v{a+2*i}, v{a+2*i+1}"))
    return s
def pv_T(T, t):
    s = []
    for j in range(4):
        d = ar((T * 4 + j) * 4, 4)
        s.append(mfma(d, vr(vVs + (T % 6) * 4, 4), vr(Preg(j, t), 4), "0" if t == 0 else d))
    return s

G4T = PAR('G4T', 0)
def p2_iter(t, base=0, extra=(), post=(), btag=()):
    st = 11 + t
    s = []
    s += k_reads(st, 1)
    u = st - 12
    if u >= 0:
        for h in range(2): s += dsr("ds_read_b64_tr_b16", ar(aR + 2 * h, 2), vRa, sbase(st), 24576 + 2048 * h, rd=['stg'])
    s += pace(dma_stage(st + 3 if st + 3 <= 26 else st + 5) + list(extra), base + 2, base + PAR("HP", 72))
    if t > 0: s += softmax(2, t) + softmax(3, t)
    s += qk(0, t + 1) + qk(1, t + 1)
    for T in range(6): s += v_reads(st, T)
    s += softmax(0, t + 1) + softmax(1, t + 1)
    if t == 14: s += softmax(2, 15) + softmax(3, 15)
    for T in range(12):
        s += pv_T(T, t)
        if T < 6: s += v_reads(st, T + 6)
        if T == 5:
            s.append(barrier([f"st{st+1}", f"vr{st}"] + list(btag), after=base + PAR("HB", 78)))
            if t < 14: s += k_reads(st + 1, 0)
            if u >= 0:
                if u == 4: s += L(f"s_mov_b32 s{sOffD}, s{sOffDo}")
                if u == 12: s += L(f"s_mov_b32 s{sOffD}, s{sOffDd}")
                s.append(I(f"buffer_store_dwordx4 {ar(aR,4)}, v{vL16}, {sr(sWS,4)}, s{sOffD} offen sc1", after=base + 84, tag_w="Gst" if u < 4 else "Wst" if u < 12 else "Dst"))
                s.append(I(f"s_add_u32 s{sOffD}, s{sOffD}, {6144 if u < 4 else 10240 if u < 12 else 5120}"))
        if t == 14 and T >= 6: s += v_reads(st + 1, T - 6)
    s += list(post)
    return s

def first_tile(base):
    s = []
    s += k_reads(10, 1)
    s += pace(dma_stage(13), base + 2, base + 30)
    s += qk(0, 0)
    for j in range(4):
        a = Sreg(0, j, 0); m = vNm + 4 * j; t = m + 1
        s += L(f"v_max3_f32 v{m}, v{a}, v{a+1}, v{a+2}\nv_max_f32 v{m}, v{m}, v{a+3}")
        s += xreduce(m, t, "v_max_f32")
        s += L(f"v_sub_f32 v{m+1}, 0, v{m}\nv_sub_f32 v{m+2}, 0, v{m}\nv_sub_f32 v{m+3}, 0, v{m}\nv_sub_f32 v{m}, 0, v{m}")
        for i in range(4): s.append(I(f"v_add_f32 v{a+i}, v{a+i}, v{m}"))
    s.append(barrier(["st11", "vr10"], after=base + 28))
    s += k_reads(11, 0)
    s += qk(1, 0)
    for j in range(4): s += softmax(j, 0)
    return s

vGA = 160; vOP = 184
BBUF = [('a', 192), ('a', 224), ('v', 208)]
def g_reads(n, tagr='stg', pos=None):
    ds, grp = n // 6, n % 6
    slot = vGA + ((n if pos is None else pos) % 3) * 8
    r = []
    for ks in range(2): r += dsr("ds_read_b128", vr(slot + ks * 4, 4), vGa, sbase(27 + ds // 2), (((ds % 2) * 2 + ks) * 6 + grp) * 1024, rd=[tagr], tag_w=f"gr{27 + ds // 2}")
    return r
def acc3(grp, j): return vAcc + (grp * 4 + j) * 4

def tail_pv(base):
    s = L(f"s_mul_i32 s{sOffB}, s100, {20*4096}")
    wf = set_flag(f"s{sFg}", None, rd=['stg'])
    s += pace([wf] + L(f"s_add_u32 s{sFg}, s{sFg}, {FW2-FW}") + b_loads(BBUF[0]), base - 11, base + 16)
    for T in range(12):
        s += pv_T(T, 15)
        if T < 6: s += v_reads(26, T + 6)
        if T == 5:
            s += g_reads(0) + g_reads(1)
            s += pace(b_loads(BBUF[1]) + (dma_stage(31) if G4T else []), base + 16, base + 48)
    for j in range(4): s += xreduce(vLs + j, vTmp + j, "v_add_f32")
    s += L(f"""v_add_f32 v{vTmp}, v{vLs}, v{vLs+1}
v_add_f32 v{vTmp+1}, v{vLs+2}, v{vLs+3}
v_add_f32 v{vTmp}, v{vTmp}, v{vTmp+1}
v_cmp_ngt_f32 vcc, {hex(f2u(2.0**80))}, v{vTmp}""")
    for j in range(4): s.append(I(f"v_rcp_f32 v{vLs+j}, v{vLs+j}"))
    return s

def split(lst):
    ch = []; cur = []
    for x in lst:
        cur.append(x)
        if x.kind == 'vmem': ch.append(cur); cur = []
    if cur: ch[-1] += cur
    return ch
def merge(qs):
    qs = [list(q) for q in qs]
    w = [len(q) for q in qs]; tot = sum(w); acc = [0.0] * len(qs); seq = []
    for k in range(tot):
        for z in range(len(qs)): acc[z] += w[z]
        z = max((z for z in range(len(qs)) if qs[z]), key=lambda z: acc[z])
        acc[z] -= tot; seq.append(qs[z].pop(0))
    return seq

vOA = 32; vOB = 33; vDA = 34; vDB = 35
vOa = 40; vPo = 41; vFa = 42; vFa2 = 43; vFl = 44
vAc = 64; vDc = 144; vPk = 164; vXr = 204; vPl = 64
def fA(e, t, ks): return e * 72 + (t * 2 + ks) * 4
def fB(e, j, ks): return 40 + e * 72 + (ks * 4 + j) * 4
def dA(e, n): return (144 if e == 0 else 0) + n * 4
def dB(e, ks): return (144 if e == 0 else 0) + 80 + ks * 4
sAbeg, sAend, sBbeg, sBend = sScale, sOffX, sOffY, sPf
vWr = 35
def dmaA(sg, rd='stg'):
    r = []
    if sg == 24: r += L(f"s_mov_b32 s{sOffA}, s{sOffRo}")
    r.append(I(f"s_add_u32 m0, s{sM5}, {obase(sg)}"))
    for n in range(5):
        if n == 4: r += L(f"s_add_u32 m0, s{sM5}, {obase(sg)+4096}\ns_add_u32 s{sOffA}, s{sOffA}, 4096")
        r.append(I(f"buffer_load_dwordx4 v{vL16}, {sr(sWS,4)}, s{sOffA} offen offset:{1024*(n%4)} sc1 lds", tag_w=f"ot{sg}", rd=[rd]))
    r.append(I(f"s_add_u32 s{sOffA}, s{sOffA}, {20480-4096}"))
    if sg == 2: r += L(f"s_mov_b32 s{sOffA}, s{sOffR}")
    if sg >= 2: r += L(f"s_cmp_eq_u32 s{sOffA}, s{sAend}\ns_cmov_b32 s{sOffA}, s{sAbeg}")
    return r
def dmaB(sg, rd='stg'):
    r = []
    r += L(f"s_cmp_eq_u32 s{sOffBB}, s{sBend}\ns_cmov_b32 s{sOffBB}, s{sBbeg}")
    r.append(I(f"s_add_u32 m0, s{sM4}, {obase(sg)+20480}"))
    for n in range(4):
        r.append(I(f"buffer_load_dwordx4 v{vL16}, {sr(sWS,4)}, s{sOffBB} offen offset:{1024*n} sc1 lds", tag_w=f"ot{sg}", rd=[rd]))
    r.append(I(f"s_add_u32 s{sOffBB}, s{sOffBB}, {8192 if sg < 24 else 16384}"))
    return r
def apf():
    if "apf" not in KN: return []
    return [prefetch(sWS, f"s{sPf}", "sc1")] + L(f"s_add_u32 s{sPf}, s{sPf}, 81920")
def o_reads(sg):
    e = sg % 2; kw = dict(rd=['stg'], tag_w=f"rd{sg}")
    r = []
    if sg < 24:
        for ks in range(2): r += dsr("ds_read_b128", ar(fA(e, 0, ks), 4), vOA, obase(sg), ks * 10240, **kw)
        for j in range(4):
            for ks in range(2): r += dsr("ds_read_b128", ar(fB(e, j, ks), 4), vOB, obase(sg), ks * 8192 + j * 1024, **kw)
        for t in range(1, 5):
            for ks in range(2): r += dsr("ds_read_b128", ar(fA(e, t, ks), 4), vOA, obase(sg), (ks * 10 + t) * 1024, **kw)
    else:
        for ks in range(4): r += dsr("ds_read_b128", ar(dB(e, ks), 4), vDB, obase(sg), ks * 4096, **kw)
        for T in range(5):
            for ks in range(4): r += dsr("ds_read_b128", ar(dA(e, ks * 5 + T), 4), vDA, obase(sg), (ks * 5 + T) * 1024, **kw)
    return r
def dmaD(g):
    r = []
    for h in range(2):
        r.append(I(f"s_add_u32 m0, s{sM3}, {obase(24+g)+4096*h}"))
        for n in range(4):
            so = sOffRo
            if h == 1 and n >= 2 and "dover" not in KN:
                so = sOffA
                if n == 2: r += L(f"s_cmp_eq_u32 s{sW}, 3\ns_cselect_b32 s{sOffA}, 0x40000000, s{sOffRo}")
            r.append(I(f"buffer_load_dwordx4 v{vL16}, {sr(sWS,4)}, s{so} offen offset:{1024*n} sc1 lds", tag_w=f"ot{24+g}", rd=['stg']))
        r.append(I(f"s_add_u32 s{sOffRo}, s{sOffRo}, {4096 if h == 0 else 30720-4096}"))
    return r
DRING = [240, 244, 248, 252] + list(range(0, 48, 4))
vDo = 216; vHp = 236; vHr = 246
def dBreg(p, k): return (144 if p == 0 else 48) + 4 * k
def d_bload(p, k):
    so = sOffRd if p == 0 else sOffBB
    return [I(f"buffer_load_dwordx4 {ar(dBreg(p,k),4)}, v{vL16}, {sr(sWS,4)}, s{so} offen sc1"), I(f"s_add_u32 s{so}, s{so}, 4096")]
def d_read(n):
    g, T, k = (n % 120) // 30, (n % 30) // 6, n % 6
    return dsr("ds_read_b128", ar(DRING[n % 16], 4), vDA, obase(24 + g), (k * 5 + T) * 1024, rd=['stg'])
DLA = 12
def d_block(p, g, extra=(), post=(), pre=()):
    acc = vDo if p == 0 else vDc
    ex = list(pre) + list(extra) + list(post)
    w = [3 if x.kind == 'vmem' else 0 if x.kind == 'salu' else 1 for x in ex]
    tot = max(sum(w), 1); c_ = 0; pos = []
    for k, x in enumerate(ex):
        pos.append(min(29, int(c_ * 30 / tot))); c_ += w[k]
    out = []
    for i in range(30):
        n = p * 120 + g * 30 + i
        T, k = i // 6, i % 6
        d = vr(acc + 4 * T, 4)
        out.append(mfma(d, ar(DRING[n % 16], 4), ar(dBreg(p, g * 6 + k), 4), "0" if (g == 0 and k == 0) else d))
        m = n + 1 + DLA
        if m < 240:
            if m < 120 and m % 30 == 0: out.append(I("s_barrier", tag_r=[f"ot{24+m//30}"]))
            out += d_read(m)
        out += [x for k_, x in enumerate(ex) if pos[k_] == i]
    return out
def o_block(sg, extra=(), pre=(), mid=(), exfirst=False, dbo=None):
    e = sg % 2
    s = list(pre)
    s += [I("s_barrier", tag_r=[f"ot{sg+1}", f"rd{sg}"], wr=['stg'], after=2)]
    if sg < 23: s += o_reads(sg + 1)
    else:
        for m in range(DLA + 1): s += d_read(m)
    db = dbo if dbo is not None else dmaB(sg + 4) + dmaA(sg + 4) if sg < 20 else dmaD(sg - 20)
    k_ = next(i for i, x in enumerate(db) if x.kind == 'vmem') + 1
    vm = split(db[:k_] + list(mid) + db[k_:])
    ex = split(list(extra)) if any(x.kind == 'vmem' for x in extra) else []
    if exfirst: seq = list(extra) + [x for ch in vm for x in ch]
    else: seq = [x for ch in merge([vm, ex]) for x in ch] if ex else [x for ch in vm for x in ch] + list(extra)
    pace(seq, 3, 40)
    s += seq
    for t in range(5):
        for j in range(4):
            for ks in range(2):
                d = vr(vAc + (t * 4 + j) * 4, 4)
                s.append(mfma(d, ar(fA(e, t, ks), 4), ar(fB(e, j, ks), 4), "0" if (sg == 0 and ks == 0) else d))
    return s

EARLY = PAR('EARLY', 0); OF = PAR('OF', 8); OC = 8 if EARLY else 99; WC = PAR('WC', 5)
vFo2 = 37
vHs = 48
def p3_steps():
    oe = []
    n = 0
    for p in range(6):
        for j in range(4):
            t = vTmp + (n % 2) * 8; o = vOP + (n % 6) * 4
            it = []
            for tt in range(2):
                for i in range(4): it.append(I(f"v_accvgpr_read_b32 v{t+tt*4+i}, a{((2*p+tt)*4+j)*4+i}"))
            for i in range(8): it.append(I(f"v_mul_f32 v{t+i}, v{t+i}, v{vLs+j}"))
            for i in range(4): it.append(I(f"v_cvt_pk_bf16_f32 v{o+i}, v{t+2*i}, v{t+2*i+1}"))
            for i in range(4): it.append(I(f"v_accvgpr_write_b32 a{(8*p+j)*4+i}, v{o+i}"))
            oe.append(it); n += 1
            st_ = [I(f"buffer_store_dwordx4 {ar((8*p+j)*4,4)}, v{vL16}, {sr(sWS,4)}, s{sOffO} offen offset:{1024*j} sc1", tag_w="Ost")]
            if j == 3: st_.append(I(f"s_add_u32 s{sOffO}, s{sOffO}, 4096"))
            OST.append(st_)
    nss = [int(x) for x in os.environ.get("NSS", "2,3,3,3,3,3,3,4,0,0").split(",")]
    nst = [int(x) for x in os.environ.get("NST", "4,3,3,3,3,3,3,2,0,0").split(",")]
    dm = {}
    if not G4T:
        g31 = split(dma_stage(31)); dm = {0: g31[:3], 1: g31[3:]}
    a0, a1, a2 = [split(dmaA(k, 'x')) for k in range(3)]
    assert WC <= 5
    dm[6] = a0; dm[8] = a1; dm[9] = a2
    allb = [c for d in range(2, 10) for c in split(b_loads(BBUF[d % 3]))]
    cnt = [int(x) for x in os.environ.get("NB", "8,8,8,8,8,8,8,8,0,0").split(",")]
    BQ = []
    for k in cnt: BQ.append(allb[:k]); allb = allb[k:]
    assert not allb
    steps = []
    for ds in range(10):
        s = []
        take = BQ[ds]
        s += [x for _ in range(nst[ds]) for x in oe.pop(0)]
        st = [OST.pop(0) for _ in range(nss[ds])]
        seq = merge([take, dm.get(ds, []), st]) if ds < 7 else take + st + dm.get(ds, [])
        if ds == 2: seq.insert(0, [set_flag(f"s{sFg}", None)])
        if ds == WC - 1: seq.insert(0, L(f"s_mov_b32 s{sT0}, {hex(FW)}") + [poll_load(vFl, vL16, f"s{sT0}", 4)])
        if ds == OF: seq.insert(int(len(seq) * PAR("OFP", 0.6)), [set_flag(f"s{sFl}", "Ost")])
        if EARLY and ds == PAR("OP", 9): seq.insert(int(len(seq) * PAR("OPP", 0.4)), [poll_load(vFo2, vFa, f"s{sT1}")])
        flat = [x for ch in seq for x in ch]
        s += ('pace', flat),
        for grp in range(6):
            n = ds * 6 + grp
            real = lambda m: m if m < 48 else 48 + ((m - 48) % 2) * 6 + (m - 48) // 2
            if n + 2 < 60:
                if (n + 2) % 12 == 0:
                    stg = 27 + (n + 2) // 12
                    tags = [f"st{stg}"] + (["Dst"] if stg == 28 else []) + ([f"gr{stg-1}"] if stg >= 30 else [])
                    s.append(I("s_barrier", tag_r=tags, wr=['stg2'], after=24 if stg < 30 else 30))
                s += g_reads(real(n + 2), 'stg2', n + 2)
            slot = vGA + (n % 3) * 8
            rds, rg = real(n) // 6, real(n) % 6
            B = BBUF[rds % 3]
            for j in range(4):
                for ks in range(2):
                    d = vr(acc3(rg, j), 4)
                    s.append(mfma(d, vr(slot + ks * 4, 4), rr((B[0], B[1] + (ks * 4 + j) * 4)), "0" if (ds == 0 and ks == 0) else d))
            if rds == 9 and rg % 2 == 1:
                s += h_epilogue(rg // 2)
                if rg // 2 < PAR("HE", 3): s += [HST.pop(0), HST.pop(0)]
        steps.append(s)
    assert not oe and not OST
    return steps
HST = []; OST = []
def h_epilogue(T3):
    s = []
    if True:
        for jp in range(2):
            o = vOP + ((T3 * 2 + jp) % 6) * 4
            for jj in range(2):
                j = jp * 2 + jj
                g = acc3(2 * T3, j); u = acc3(2 * T3 + 1, j)
                for i in range(4): s.append(I(f"v_mul_f32 v{g+i}, v{g+i}, v{u+i}"))
                for i in range(2): s.append(I(f"v_cvt_pk_bf16_f32 v{o+jj*2+i}, v{g+2*i}, v{g+2*i+1}"))
            for i in range(2): s.append(I(f"v_permlane32_swap_b32 v{o+i}, v{o+2+i}"))
            HST.append(I(f"buffer_store_dwordx4 {vr(o,4)}, v{vT}, {sr(sWS,4)}, s{sOffH+T3} offen offset:{2048*jp} sc1", tag_w="Hst"))
    return s
def join_steps(steps, n=48):
    out = []
    for k, s in enumerate(steps):
        base = k * n
        for x in s:
            if isinstance(x, tuple):
                if any(y.kind == 'vmem' for y in x[1]): pace(x[1], base, base + n - 1)
                out += x[1]
            else:
                if x.after is not None: x.after += base
                out.append(x)
    return out

def gen_fallback():
    F = Prog()
    vK = 232; vS = 176; vP = 208
    vf, vv, va = 48, 49, 50
    sK_, sV_ = sK, sV
    def kload():
        return [I(f"buffer_load_dwordx4 {vr(vK+4*p,4)}, v{vf}, {sr(sK_,4)}, s{sT0} offen offset:{64*p}") for p in range(6)] + L(f"s_add_u32 s{sT0}, s{sT0}, 6144")
    def chains(kt, c0):
        s = []
        for j in range(4):
            d = vr(vS + (j * 2 + kt) * 4, 4)
            for p in range(6): s.append(mfma(d, vr(vK + 4 * p, 4), vr(vQ + (p * 4 + j) * 4, 4), d if p else c0(j)))
        return s
    c = L("L_fb:\ns_waitcnt vmcnt(0) lgkmcnt(0)\ns_nop 15")
    c += L(f"""v_and_b32 v54, 15, v0
v_lshrrev_b32 v55, 4, v0
v_mul_u32_u24 v{vf}, 384, v54
v_lshl_add_u32 v{vf}, v55, 4, v{vf}
v_lshrrev_b32 v56, 3, v0
v_and_b32 v57, 7, v0
v_and_b32 v58, 6, v56
v_xor_b32 v57, v57, v58
v_mul_u32_u24 v{vv}, 384, v56
v_lshl_add_u32 v{vv}, v57, 4, v{vv}
v_lshrrev_b32 v56, 2, v54
v_lshl_add_u32 v56, v55, 2, v56
v_bfe_u32 v57, v56, 1, 2
v_lshlrev_b32 v56, 7, v56
v_and_b32 v58, 3, v0
v_lshl_add_u32 v56, v58, 3, v56
s_lshl_b32 s{sT2}, s{sW}, 12
s_add_u32 s{sT2}, s{sT2}, 57344
s_cmp_eq_u32 s{sW}, 0
s_cmov_b32 s{sT2}, 110592
s_cmp_eq_u32 s{sW}, 3
s_cmov_b32 s{sT2}, 81920
v_add_u32 v56, s{sT2}, v56""")
    for x in range(4): c += L(f"v_xor_b32 v58, {x}, v57\nv_lshl_add_u32 v{va+x}, v58, 5, v56")
    c += L(f"""s_mul_i32 s{sT1}, s{sH}, 786432
s_add_u32 s{sT1}, s{sT1}, {1536*384}
s_mov_b32 s{sT0}, s{sT1}
s_mov_b32 s{sSpin}, 0""")
    for j in range(4): c += L(f"v_mov_b32 v{vNm+4*j}, 0xff800000")
    F.block("a", c)
    c = L("L_fb1:") + kload() + chains(0, lambda j: "0")
    for j in range(4):
        a = vS + j * 8; m = vNm + 4 * j
        c += L(f"v_max3_f32 v{m}, v{m}, v{a}, v{a+1}\nv_max3_f32 v{m}, v{m}, v{a+2}, v{a+3}")
    c += L(f"s_add_u32 s{sSpin}, s{sSpin}, 1\ns_cmp_lt_u32 s{sSpin}, 32\ns_cbranch_scc1 L_fb1")
    F.block("b", c)
    c = []
    for j in range(4):
        m = vNm + 4 * j
        c += xreduce(m, m + 1, "v_max_f32")
        c += L(f"v_sub_f32 v{m+1}, 0, v{m}\nv_sub_f32 v{m+2}, 0, v{m}\nv_sub_f32 v{m+3}, 0, v{m}\nv_sub_f32 v{m}, 0, v{m}\nv_mov_b32 v{vLs+j}, 0")
    for i in range(192): c.append(I(f"v_accvgpr_write_b32 a{i}, 0"))
    c += L(f"s_mov_b32 s{sT0}, s{sT1}\ns_mov_b32 s{sSpin}, 0")
    F.block("c", c)
    c = L("L_fb2:")
    for kt in range(2): c += kload() + chains(kt, lambda j: vr(vNm + 4 * j, 4)) + L("s_nop 7")
    for j in range(4):
        for kt in range(2):
            a = vS + (j * 2 + kt) * 4
            for i in range(4): c.append(I(f"v_exp_f32 v{a+i}, v{a+i}"))
            for i in range(4): c.append(I(f"v_add_f32 v{vLs+j}, v{vLs+j}, v{a+i}"))
            for i in range(2): c.append(I(f"v_cvt_pk_bf16_f32 v{vP+j*4+kt*2+i}, v{a+2*i}, v{a+2*i+1}"))
    for cg in range(3):
        for a in range(4):
            c += L(f"""s_add_u32 m0, s{sT2}, {1024*a}
s_add_u32 s{sOffP}, s{sT1}, {3072*a+128*cg}
buffer_load_dwordx4 v{vv}, {sr(sV_,4)}, s{sOffP} offen lds""")
        c += L("s_waitcnt vmcnt(0)")
        for x in range(4):
            for u in range(2): c.append(I(f"ds_read_b64_tr_b16 {vr(vK+4*x+2*u,2)}, v{va+x} offset:{2048*u}"))
        c += L("s_waitcnt lgkmcnt(0)")
        for x in range(4):
            for j in range(4):
                d = ar(((cg * 4 + x) * 4 + j) * 4, 4)
                c.append(mfma(d, vr(vK + 4 * x, 4), vr(vP + 4 * j, 4), d))
        c += L("s_nop 7")
    c += L(f"s_add_u32 s{sT1}, s{sT1}, 12288\ns_add_u32 s{sSpin}, s{sSpin}, 1\ns_cmp_lt_u32 s{sSpin}, 16\ns_cbranch_scc1 L_fb2")
    F.block("d", c)
    c = []
    for j in range(4): c += xreduce(vLs + j, vTmp + j, "v_add_f32")
    for j in range(4): c.append(I(f"v_rcp_f32 v{vLs+j}, v{vLs+j}"))
    c += L("s_nop 15\ns_branch L_fb_back")
    F.block("e", c)
    F.trace = [("a", {}), ("b", {}), ("b", {}), ("c", {}), ("d", {}), ("d", {}), ("e", {})]
    F.insert_waits(); F.fix_hazards()
    return F.text()


def gen(dbg=False):
    P = Prog()
    OUTL.clear(); AD.clear(); HST.clear(); OST.clear()
    for i in range(2): AD[vWa + i] = Addr(vWa + i, sbase(0)); AD[vKa + i] = Addr(vKa + i, 0)
    for i in range(4): AD[vVa + i] = Addr(vVa + i, 0)
    AD[vRa] = Addr(vRa, sbase(12)); AD[vGa] = Addr(vGa, sbase(27))
    AD[vOA] = Addr(vOA, obase(0)); AD[vOB] = Addr(vOB, obase(0)); AD[vDA] = Addr(vDA, obase(24)); AD[vDB] = Addr(vDB, obase(24))
    nblk = [0]
    def blk(ins, name=None):
        nm = name or f"b{nblk[0]}"; nblk[0] += 1
        P.block(nm, ins); P.trace.append((nm, {}))
    CPA = PAR("CPA", 10000)
    cp = [3]
    def sch(s, name, **kw):
        if name.startswith("p2_") or name.startswith("p1_"):
            if "nost" in KN: s = [x for x in s if not (x.kind == 'vmem' and 'store_dwordx4' in x.text)]
            if "norl" in KN: s = [x for x in s if not (x.kind == 'vmem' and f"s[{sR}:{sR+3}]" in x.text)]
            if "kvhit" in KN: s = [x for x in s if not x.text.startswith((f"s_add_u32 s{sOffK}, s{sOffK}, 12288", f"s_add_u32 s{sOffV}, s{sOffV}, 12288"))]
            if "nobar" in KN: s = [x for x in s if x.kind != 'barrier']
            if "novm" in KN: s = [x for x in s if not (x.kind == 'vmem' and 'dwordx4' in x.text and 'v[48:51]' not in x.text)]
            if "novalu" in KN and name.startswith("p2_"): s = [x for x in s if not (x.kind in ('valu', 'trans') and x.text.startswith(('v_exp', 'v_add_f32', 'v_cvt')))]
        if name.startswith("p3"):
            if "p3nost" in KN: s = [x for x in s if not (x.kind == 'vmem' and 'store_dwordx4' in x.text)]
            if "p3nob" in KN: s = [x for x in s if not (x.kind == 'vmem' and 'load_dwordx4' in x.text and ' lds' not in x.text and f"s{sOffB} " in x.text)]
            if "p3novalu" in KN: s = [x for x in s if not (x.kind == 'valu' and x.text.startswith(('v_accvgpr', 'v_mul_f32', 'v_cvt')))]
            if "p3plain" in KN:
                for x in s:
                    if 'store_dwordx4' in x.text: x.text = x.text.replace(" sc1", "")
            if "p3nt" in KN:
                for x in s:
                    if 'store_dwordx4' in x.text: x.text = x.text.replace(" sc1", " sc1 nt")
        pos = sum(isize(x) for b in P.blocks for x in b[1]) * 1.03
        end = pos + sum(isize(x) for x in s) * 1.03
        nm = sum(1 for x in s if x.kind == 'mfma')
        while "nocp" not in KN and cp[0] * 8192 < end + CPA and cp[0] < NSLICE:
            g = int(max(0, min(nm - 2, (cp[0] * 8192 - CPA - pos) / (end - pos) * nm)))
            k = next((i for i, x in enumerate(s) if x.kind == 'vmem' and x.after is not None and x.after > g), len(s))
            cpl = I(f"global_load_dword v{vDum}, v{vL16}, s[62:63]", after=g); cpl.writes = set()
            s = s[:k] + [cpl, I("s_add_u32 s62, s62, 0x2000"), I("s_addc_u32 s63, s63, 0")] + s[k:]
            cp[0] += 1
        if "jitter" in KN:
            k = nblk[0]
            blk(L(f"""s_memtime s[90:91]
s_waitcnt lgkmcnt(0)
s_mul_i32 s90, s90, {2654435761 & 0x7fffffff}
s_lshr_b32 s90, s90, 20
s_and_b32 s91, s90, 7
s_cmp_lg_u32 s91, 0
s_cbranch_scc1 L_j{k}b
s_lshr_b32 s90, s90, 3
s_and_b32 s90, s90, {PAR("JM", 127)}
L_j{k}:
s_sleep 1
s_sub_u32 s90, s90, 1
s_cmp_gt_i32 s90, 0
s_cbranch_scc1 L_j{k}
L_j{k}b:"""))
        blk(schedule(s, name, verbose=dbg and "v" in KN, **kw), name)
    CC = math.log2(math.e) / math.sqrt(192.0)
    if "cpold" in KN:
        CP0 = f"""s_and_b32 s{sT2}, s{sT2}, 15
s_min_u32 s{sT2}, s{sT2}, CODE_SLICES-1
s_lshl_b32 s{sT2}, s{sT2}, 13
v_add_u32 v52, s{sT2}, v{vL128}
global_load_dword a{aDum}, v52, s[62:63]"""
    else:
        CP0 = f"""s_min_u32 s{sT2}, s{sT2}, CODE_SLICES*8-1
s_lshl_b32 s{sT2}, s{sT2}, 10
v_add_u32 v52, s{sT2}, v{vL16}
global_load_dword a{aDum}, v52, s[62:63]"""
    c = L(f"""s_cmp_ge_u32 s2, 256
s_cbranch_scc1 L_end
s_load_dwordx16 s[64:79], s[0:1], 0
s_load_dwordx8 s[80:87], s[0:1], 64
s_memrealtime s[{sSt}:{sSt+1}]
s_getpc_b64 s[62:63]
v_lshrrev_b32 v30, 6, v0
v_and_b32 v0, 63, v0
v_readfirstlane_b32 s{sW}, v30
v_lshlrev_b32 v{vL16}, 4, v0
v_lshlrev_b32 v{vL128}, 7, v0
v_and_b32 v48, 7, v0
v_lshrrev_b32 v49, 3, v0
v_mul_u32_u24 v60, 1280, v48
v_lshl_add_u32 v50, v49, 4, v60
v_lshl_add_u32 v50, v30, 7, v50
s_mul_i32 s{sT0}, s2, {8*1280}
s_and_b32 s{sT1}, s2, 7
s_lshr_b32 s{sT2}, s2, 3
s_and_b32 s{sH}, s{sT2}, 3
s_lshl2_add_u32 s{sH}, s{sT1}, s{sH}
s_lshr_b32 s{sB}, s{sT2}, 2
s_lshr_b32 s{sS}, s{sT1}, 1
s_and_b32 s{sT1}, s{sT1}, 1
s_lshl1_add_u32 s{sMb}, s{sB}, s{sT1}
s_and_b32 s{sNb}, s{sT2}, 3
v_cmp_eq_u32 vcc, 0, v0
v_bfrev_b32 v51, 1
v_cndmask_b32 v{vFo}, v51, 0, vcc
v_cmp_gt_u32 vcc, 2, v30
v_add_u32 v53, 1024, v50
v_cndmask_b32 v53, v51, v53, vcc
s_lshl2_add_u32 s{sT2}, s{sT2}, s{sW}
{CP0}
v_lshrrev_b32 v54, 4, v0
v_and_b32 v55, 15, v0
v_and_b32 v61, 6, v49
v_xor_b32 v61, v61, v48
v_lshlrev_b32 v61, 4, v61
v_mul_u32_u24 v62, 1280, v49
v_add_u32 v{vRo2}, v62, v61
v_and_b32 v62, 4, v49
v_add_u32 v62, v62, v49
v_mul_u32_u24 v62, 3072, v62
v_add_u32 v{vRo}, v62, v61
s_lshl_b32 s{sM4}, s{sW}, 13
s_add_u32 s{sM5}, s{sM4}, 49152
s_lshl2_add_u32 s{sQg}, s{sB}, s{sW}
s_mul_i32 s{sOffBB}, s{sQg}, {64*1280}""")
    if STAMPS: c += L(f"v_mov_b32 v{vSt}, 0")
    c += L("s_waitcnt lgkmcnt(0)")
    c += srd(sXin, pX, 2048 * 640 * 2)
    c += L(f"""buffer_load_dwordx4 v[64:67], v50, {sr(sXin,4)}, s{sT0} offen {os.environ.get("XF_", "")}
buffer_load_dwordx4 v[68:71], v50, {sr(sXin,4)}, s{sT0} offen offset:512 {os.environ.get("XF_", "")}
buffer_load_dwordx4 v[72:75], v53, {sr(sXin,4)}, s{sT0} offen {os.environ.get("XF_", "")}
buffer_load_ushort v76, v60, {sr(sXin,4)}, s{sT0} offen""")
    c += srd(sR, pDbg, 256)
    c += L(f"""s_or_b32 s{sNonce}, s{sSt}, 1
v_mov_b32 v56, s{sNonce}
v_mov_b32 v57, 0
s_or_b32 s{sT1}, s2, s{sW}
s_cmp_eq_u32 s{sT1}, 0
s_cselect_b32 s{sT1}, 0, 0x100
buffer_atomic_cmpswap v[56:57], v{vFo}, {sr(sR,4)}, s{sT1} offen sc1""")
    c += stamp(0)
    def rawdma(ds):
        r = []
        for a in range(8):
            r += L(f"s_add_u32 m0, s{sM4 if ds == 0 else sM5}, {a*1024}\ns_add_u32 s{sOffA}, s{sOffBB}, {a*8*1280+128*ds}")
            r.append(I(f"buffer_load_dwordx4 v{vRo2}, {sr(sXin,4)}, s{sOffA} offen lds", tag_w=f"raw{ds}"))
        return r
    def inter(vm, fill):
        ch = split(vm); out = []; per = -(-len(fill) // len(ch))
        for k, cc in enumerate(ch): out += cc + fill[k * per:(k + 1) * per]
        return out
    f1 = []
    for n in range(3):
        f1.append(I(f"v_add_u32 v61, {64*n}, v0"))
        f1 += divmod_const(62, 63, 61, 24)
        f1 += L(f"""v_and_b32 v57, 6, v62
v_xor_b32 v57, v63, v57
v_lshlrev_b32 v57, 4, v57
v_subrev_u32 v57, {1024*n}, v57
v_and_b32 v59, 4, v62
v_add_u32 v59, v59, v62
v_mul_u32_u24 v59, 12288, v59
v_add_u32 v{vWo+n}, v59, v57""")
    f1 += srd(sWq, pWq, 640 * 6144 * 2) + srd(sWS, pWs, WS_SIZE)
    f1 += L(f"""s_lshr_b32 s{sT0}, s{sW}, 1
s_and_b32 s{sOffY}, s{sW}, 1
s_lshl_b32 s{sT2}, s{sT0}, 5
s_lshl2_add_u32 s{sT2}, s{sOffY}, s{sT2}
s_mul_i32 s{sOffX}, s{sT2}, 12288
s_mul_i32 s{sT2}, s{sH}, 384
s_add_u32 s{sOffX}, s{sOffX}, s{sT2}
s_mul_i32 s{sM6}, s{sW}, 6144""")
    f2 = L(f"""v_lshrrev_b32 v56, 2, v55
v_and_b32 v57, 3, v0
v_lshl_add_u32 v58, v54, 2, v56
v_bfe_u32 v59, v58, 1, 2
v_mul_u32_u24 v62, 384, v58
v_add_u32 v62, {sbase(0)}, v62
v_lshlrev_b32 v63, 1, v59
v_xor_b32 v63, v63, v57
v_lshl_add_u32 v{vWa}, v63, 4, v62
v_xor_b32 v63, 4, v63
v_lshl_add_u32 v{vWa+1}, v63, 4, v62
v_bfe_u32 v{vPa}, v0, 2, 3
v_lshlrev_b32 v{vPa}, 7, v{vPa}
v_lshl_add_u32 v{vPa}, v57, 2, v{vPa}
v_lshlrev_b32 v{vSo}, 3, v55
v_lshlrev_b32 v62, 7, v55
v_and_b32 v63, 6, v55
v_xor_b32 v63, v63, v54
v_lshl_add_u32 v{vXo2}, v63, 4, v62
v_xor_b32 v63, 4, v63
v_lshl_add_u32 v{vXo2+1}, v63, 4, v62
v_add_u32 v{vXo}, s{sM4}, v{vXo2}
v_add_u32 v{vXo+1}, s{sM4}, v{vXo2+1}
v_add_u32 v{vXo2}, s{sM5}, v{vXo2}
v_add_u32 v{vXo2+1}, s{sM5}, v{vXo2+1}
v_lshlrev_b32 v58, 3, v48
v_add_u32 v58, {LN_X}, v58
v_lshl_add_u32 v59, v30, 6, v58
v_lshrrev_b32 v56, 2, v49
v_lshl_add_u32 v56, v30, 1, v56
v_lshlrev_b32 v56, 12, v56
v_and_b32 v57, 3, v49
v_lshl_add_u32 v56, v57, 8, v56
v_lshl_add_u32 v56, v48, 4, v56
v_add_u32 v57, {16*4096}, v56
v_cndmask_b32 v57, v51, v57, vcc
v_or_b32 v61, v49, v30
v_cmp_eq_u32 vcc, 0, v61
v_lshlrev_b32 v61, 3, v48
v_cndmask_b32 v61, v51, v61, vcc
s_lshr_b32 s{sT2}, s2, 3
s_mul_i32 s{sT2}, s{sT2}, {20*4096}
s_bfe_u32 s{sOffK}, s2, 0x20001
s_lshl_b32 s{sOffK}, s{sOffK}, 10
s_add_u32 s{sT2}, s{sT2}, s{sOffK}
s_and_b32 s{sOffK}, s2, 1
s_lshl_b32 s{sOffK}, s{sOffK}, 7
s_add_u32 s{sT2}, s{sT2}, s{sOffK}
s_add_u32 s{sOffK}, s{sT2}, {8*4096}
s_lshl_b32 s{sOffP}, s2, 6
s_add_u32 s{sOffP}, s{sOffP}, {hex(ST_OFF)}
s_lshr_b32 s{sSpin}, s{sW}, 1
s_sub_u32 s{sSpin}, s{sSpin}, 1
s_and_b32 s{sSpin}, s{sSpin}, 0x3f800000""")
    pfv = divmod_const(62, 63, 0, 3) + L(f"""v_mul_u32_u24 v62, 12288, v62
v_lshl_add_u32 v62, v63, 7, v62
v_cmp_gt_u32 vcc, 12, v0
v_cndmask_b32 v{vL128}, v51, v62, vcc
s_lshl_b32 s{sQd}, s{sQg}, 2
s_add_u32 s{sQd}, s{sQd}, 256
s_mul_i32 s{sQd}, s{sQd}, 12288
s_mul_i32 s{sOffG}, s{sH}, 384
s_add_u32 s{sQd}, s{sQd}, s{sOffG}""")
    if 'wpf' in KN: f2 += pfv
    for i in range(4): f2.append(I(f"v_mov_b32 v{vOne+i}, 0x3f803f80"))
    c += inter(rawdma(0), f1)
    c += inter(dma_stage(0), f2)
    c += L(f"v_mov_b32 v60, 0\nbuffer_load_dword v{vNon}, v60, {sr(sR,4)}, 0 offen sc1\ns_mov_b32 s{sT1}, s{sOffY}\ns_mov_b32 s{sT3}, s{sOffK}")
    su0 = L(f"""s_lshl_b32 s{sFl}, s2, 7
s_lshl2_add_u32 s{sFl}, s{sW}, s{sFl}
s_add_u32 s{sFl}, s{sFl}, {hex(FXN)}
s_lshl_b32 s{sFg}, s{sQg}, 10
s_add_u32 s{sFg}, s{sFg}, {hex(FXN)}
s_lshl_b32 s{sScale}, s{sQg}, 9
s_add_u32 s{sScale}, s{sScale}, {hex(ST_OFF)}
s_mul_i32 s{sOffB}, s{sQg}, {20*4096}
s_add_u32 s{sOffB}, s{sOffB}, {4*4096}
s_mul_i32 s{sM3}, s{sW}, 3072
s_mul_i32 s{sOffK}, s{sH}, 786432
s_add_u32 s{sOffK}, s{sOffK}, {1536*384}
s_add_u32 s{sOffK}, s{sOffK}, s{sM3}
s_mov_b32 s{sOffV}, s{sOffK}
s_lshr_b32 s{sPf}, s2, 3
s_lshl2_add_u32 s{sPf}, s{sPf}, s{sW}
s_and_b32 s{sPf}, s{sPf}, 7
s_lshl_b32 s{sPf}, s{sPf}, 10
s_add_u32 s{sPf}, s{sPf}, {3*8192}
s_add_u32 s62, s62, s{sPf}
s_addc_u32 s63, s63, 0""") + srd(sK, pK, 32 * 2048 * 192 * 2) + srd(sV, pV, 32 * 2048 * 192 * 2)
    wpf = lambda: ([prefetch(sWq, f"s{sQd}")] + L(f"s_add_u32 s{sQd}, s{sQd}, {128*12288}")) if "wpf" in KN else []
    vu = []
    for n in range(3):
        vu.append(I(f"v_add_u32 v61, {64*n}, v0"))
        vu += divmod_const(62, 63, 61, 24)
        vu += L(f"""v_and_b32 v57, 6, v62
v_xor_b32 v57, v63, v57
v_lshlrev_b32 v57, 4, v57
v_subrev_u32 v57, {1024*n}, v57
v_mul_u32_u24 v58, 384, v62
v_add_u32 v{vVo+n}, v58, v57
v_lshrrev_b32 v59, 1, v62
v_lshl_add_u32 v59, s{sW}, 2, v59
v_and_b32 v59, 7, v59
v_xor_b32 v59, v63, v59
v_lshlrev_b32 v59, 4, v59
v_subrev_u32 v59, {1024*n}, v59
v_add_u32 v{vKo+n}, v58, v59""")
    vu += L(f"""v_lshrrev_b32 v56, 2, v55
v_and_b32 v57, 3, v0
v_lshl_add_u32 v58, v54, 2, v56
v_bfe_u32 v59, v58, 1, 2
v_mul_u32_u24 v62, 384, v58
v_lshl_add_u32 v62, v57, 3, v62""")
    for x in range(4): vu += L(f"v_xor_b32 v63, {x}, v59\nv_lshl_add_u32 v{vVa+x}, v63, 5, v62")
    vu += L(f"""v_lshlrev_b32 v62, 7, v58
v_lshl_add_u32 v62, v57, 3, v62
v_xor_b32 v63, s{sW}, v59
v_lshl_add_u32 v62, v63, 5, v62
v_add_u32 v{vRa}, {sbase(12)}, v62
v_add_u32 v{vGa}, {sbase(27)}, v{vL16}
v_mul_u32_u24 v62, 384, v55
v_lshrrev_b32 v63, 1, v55
v_xor_b32 v63, v63, v54
v_lshl_add_u32 v{vKa}, v63, 4, v62
v_xor_b32 v63, 4, v63
v_lshl_add_u32 v{vKa+1}, v63, 4, v62""")
    for i in range(4): vu.append(I(f"v_mov_b32 v{vLs+i}, 0"))
    xr = L(f"""v_and_b32 v61, 7, v0
v_lshrrev_b32 v62, 3, v0
v_mul_u32_u24 v63, 1280, v61
v_lshl_add_u32 v63, v62, 4, v63
s_mul_i32 s{sOffY}, s2, {8*1280}
s_lshl_b32 s{sPf}, s{sW}, 7
s_add_u32 s{sOffY}, s{sOffY}, s{sPf}
buffer_load_dwordx4 a[244:247], v63, {sr(sXin,4)}, s{sOffY} offen
buffer_load_dwordx4 a[248:251], v63, {sr(sXin,4)}, s{sOffY} offen offset:512
buffer_load_dwordx4 a[252:255], v63, {sr(sXin,4)}, s{sOffY} offen offset:1024""")
    xs = L(f"""v_lshrrev_b32 v63, 2, v62
v_lshlrev_b32 v63, 12, v63
v_and_b32 v62, 3, v62
v_lshl_add_u32 v63, v62, 8, v63
v_lshl_add_u32 v63, v61, 4, v63
s_lshr_b32 s{sOffY}, s2, 3
s_mul_i32 s{sOffY}, s{sOffY}, {20*4096}
s_bfe_u32 s{sPf}, s2, 0x20001
s_lshl_b32 s{sPf}, s{sPf}, 10
s_add_u32 s{sOffY}, s{sOffY}, s{sPf}
s_and_b32 s{sPf}, s2, 1
s_lshl_b32 s{sPf}, s{sPf}, 7
s_add_u32 s{sOffY}, s{sOffY}, s{sPf}
s_lshl_b32 s{sPf}, s{sW}, 13
s_add_u32 s{sOffY}, s{sOffY}, s{sPf}
s_add_u32 s{sOffY}, s{sOffY}, {hex(XR_OFF)}""")
    for i in range(3):
        if i == 2: xs += L(f"s_cmp_lt_u32 s{sW}, 2\ns_cselect_b32 s{sOffY}, s{sOffY}, 0x40000000")
        xs.append(I(f"buffer_store_dwordx4 {ar(244+4*i,4)}, v63, {sr(sWS,4)}, s{sOffY} offen sc1", tag_w="Gst"))
        if i < 2: xs += L(f"s_add_u32 s{sOffY}, s{sOffY}, {8*4096}")
    c += L("v_lshlrev_b32 v76, 16, v76\nv_mov_b32 v77, v76")
    for i in range(12):
        c += L(f"v_lshlrev_b32 v{80+2*i}, 16, v{64+i}\nv_and_b32 v{81+2*i}, 0xffff0000, v{64+i}")
        c += L(f"v_pk_add_f32 v[{112+2*i}:{113+2*i}], v[{80+2*i}:{81+2*i}], v[76:77] neg_lo:[0,1] neg_hi:[0,1]")
    for i in range(12):
        a = 104 if i < 8 else 108
        d = vr(112 + 2 * i, 2)
        if i in (0, 8): c += L(f"v_pk_mul_f32 v[{a+2}:{a+3}], {d}, {d}\nv_mov_b32 v{a}, v{112+2*i}\nv_mov_b32 v{a+1}, v{113+2*i}")
        else: c += L(f"v_pk_fma_f32 v[{a+2}:{a+3}], {d}, {d}, v[{a+2}:{a+3}]\nv_pk_add_f32 v[{a}:{a+1}], v[{a}:{a+1}], {d}")
    c += L(f"""v_add_f32 v104, v104, v105
v_add_f32 v105, v106, v107
v_add_f32 v108, v108, v109
v_add_f32 v109, v110, v111
v_fmac_f32 v104, s{sSpin}, v108
v_fmac_f32 v105, s{sSpin}, v109
s_nop 1
v_add_f32_dpp v104, v104, v104 row_ror:8 row_mask:0xf bank_mask:0xf
v_add_f32_dpp v105, v105, v105 row_ror:8 row_mask:0xf bank_mask:0xf""")
    ra, rb = xreduce(104, 106, "v_add_f32"), xreduce(105, 107, "v_add_f32")
    for x, y in zip(ra, rb): c += [x, y]
    c += L(f"""ds_write_b64 v59, v[104:105]
s_waitcnt lgkmcnt(0)
s_barrier
ds_read_b64 v[104:105], v58
ds_read_b64 v[106:107], v58 offset:64
ds_read_b64 v[108:109], v58 offset:128
ds_read_b64 v[110:111], v58 offset:192
v_pk_add_f32 v[104:105], v[104:105], v[106:107]
v_pk_add_f32 v[108:109], v[108:109], v[110:111]
v_pk_add_f32 v[104:105], v[104:105], v[108:109]
v_mul_f32 v104, {hex(f2u(1.0/640))}, v104
v_mul_f32 v105, {hex(f2u(1.0/640))}, v105
v_fma_f32 v105, -v104, v104, v105
v_max_f32 v105, 0, v105
v_add_f32 v104, v104, v76
v_cvt_pk_bf16_f32 v104, v105, v104
v_and_b32 v108, 0xffff0000, v104
v_mov_b32 v109, v108""")
    for i in range(12):
        d = vr(80 + 2 * i, 2)
        c += L(f"""v_pk_add_f32 {d}, {d}, v[108:109] neg_lo:[0,1] neg_hi:[0,1]
v_cvt_pk_bf16_f32 v{64+i}, v{80+2*i}, v{81+2*i}""")
        if i == 3: c.append(I(f"buffer_store_dwordx4 v[64:67], v56, {sr(sWS,4)}, s{sT2} offen sc1", tag_w="Xst"))
        if i == 7: c.append(I(f"buffer_store_dwordx4 v[68:71], v56, {sr(sWS,4)}, s{sT3} offen sc1", tag_w="Xst"))
        if i == 11: c.append(I(f"buffer_store_dwordx4 v[72:75], v57, {sr(sWS,4)}, s{sT2} offen sc1", tag_w="Xst"))
    c += L(f"""v_lshlrev_b32 v104, 16, v104
v_add_f32 v104, {hex(f2u(1e-5))}, v104
v_cvt_pk_bf16_f32 v104, v104, v104
v_lshlrev_b32 v104, 16, v104
v_sqrt_f32 v104, v104
v_xor_b32 v106, 0x80000000, v108
v_cvt_pk_bf16_f32 v104, v104, v104
v_lshlrev_b32 v104, 16, v104
v_rcp_f32 v104, v104
s_nop 0
v_mul_f32 v107, {hex(f2u(CC))}, v104""")
    c.append(I(f"buffer_store_dwordx2 v[106:107], v61, {sr(sWS,4)}, s{sOffP} offen sc1", tag_w="Xst"))
    c += stamp(1)
    c += raw_reads(0)
    c.append(barrier(["st0", "rawrd0"]))
    c += w_reads0(0) + w_reads0(1)
    c += L(f"""v_readfirstlane_b32 s{sNonce}, v{vNon}
s_nop 3
s_cmp_lg_u32 s{sNonce}, 0
s_cbranch_scc0 L_nonce
L_nonce_ok:""")
    OUTL.append(("nonce", L(f"""L_nonce:
s_mov_b32 s{sSpin}, {SPIN_MAX}
L_nonce2:
buffer_load_dword v{vNon}, v60, {sr(sR,4)}, 0 offen sc1
s_waitcnt vmcnt(0)
v_readfirstlane_b32 s{sNonce}, v{vNon}
s_nop 3
s_cmp_lg_u32 s{sNonce}, 0
s_cbranch_scc1 L_nonce_ok
s_sub_u32 s{sSpin}, s{sSpin}, 1
s_cmp_lg_u32 s{sSpin}, 0
s_cbranch_scc1 L_nonce2
s_branch L_nonce_ok""")))
    c += stamp(2)
    blk(c, "pro")
    RM = PAR("RM", 2)
    sQ3, sH3 = 100, 101
    pre3 = f"""s_and_b32 s{sT2}, s2, 7
s_lshr_b32 s{sT3}, s2, 3
s_and_b32 s{sQ3}, s{sT2}, {(1 << (3 - RM)) - 1}
s_lshl_b32 s{sQ3}, s{sQ3}, {RM}
s_lshr_b32 s{sH3}, s{sT3}, {5 - RM}
s_add_u32 s{sQ3}, s{sQ3}, s{sH3}
s_lshl2_add_u32 s{sQ3}, s{sQ3}, s{sW}
s_lshr_b32 s{sH3}, s{sT2}, {3 - RM}
s_lshl_b32 s{sH3}, s{sH3}, {5 - RM}
s_and_b32 s{sT3}, s{sT3}, {(1 << (5 - RM)) - 1}
s_add_u32 s{sH3}, s{sH3}, s{sT3}"""
    su = L(pre3) + L(f"""s_mul_i32 s{sOffG}, s{sH3}, {20*6144}
s_add_u32 s{sOffG}, s{sOffG}, s{sM6}
s_add_u32 s{sOffG}, s{sOffG}, {hex(GP_OFF)}
s_lshl_b32 s{sM1}, s{sW}, 10
s_mul_i32 s{sM5}, s{sW}, 5120
s_lshl_b32 s{sM4}, s{sW}, 12
s_mul_i32 s{sT2}, s{sQg}, {240*4096}
s_add_u32 s{sT2}, s{sT2}, {hex(OH_OFF)}
s_mul_i32 s{sT3}, s{sH}, {6*4096}
s_add_u32 s{sOffO}, s{sT2}, s{sT3}
s_mul_i32 s{sT2}, s{sQ3}, {240*4096}
s_add_u32 s{sT2}, s{sT2}, {hex(OH_OFF + 192*4096)}
s_mul_i32 s{sT3}, s{sH3}, 3""")
    for T3 in range(3):
        su += L(f"""s_lshr_b32 s{sSpin}, s{sT3}, 1
s_lshl_b32 s{sSpin}, s{sSpin}, 12
s_add_u32 s{sOffH+T3}, s{sT2}, s{sSpin}
s_and_b32 s{sSpin}, s{sT3}, 1
s_lshl_b32 s{sSpin}, s{sSpin}, 9
s_add_u32 s{sOffH+T3}, s{sOffH+T3}, s{sSpin}
s_add_u32 s{sT3}, s{sT3}, 1""")
    su += L(f"""s_sub_u32 s{sT2}, s2, 240
s_min_u32 s{sT2}, s2, s{sT2}""")
    su += sdivmod(sT3, sSpin, sT2, 10)
    su += L(f"""s_lshl_b32 s{sOffRo}, s{sT3}, 8
s_lshl3_add_u32 s{sOffRo}, s{sW}, s{sOffRo}
s_mul_i32 s{sOffRo}, s{sOffRo}, 1280
s_lshl_b32 s{sFl}, s{sSpin}, 7
s_add_u32 s{sOffRo}, s{sOffRo}, s{sFl}
s_lshl_b32 s{sOffRd}, s{sT3}, 6
s_lshl4_add_u32 s{sOffRd}, s{sT1}, s{sOffRd}
s_lshl3_add_u32 s{sOffRd}, s{sT0}, s{sOffRd}
s_mul_i32 s{sOffRd}, s{sOffRd}, 1280
s_add_u32 s{sOffRd}, s{sOffRd}, s{sFl}
s_lshl2_add_u32 s{sSpin}, s{sSpin}, s{sW}""")
    su += sdivmod(sFl, sOffP, sSpin, 10)
    su += L(f"""s_mul_i32 s{sFl}, s{sFl}, 192
s_lshl3_add_u32 s{sFl}, s{sT3}, s{sFl}
s_mul_i32 s{sFl}, s{sFl}, 10
s_add_u32 s{sFl}, s{sFl}, s{sOffP}
s_lshl_b32 s{sFl}, s{sFl}, 10
s_add_u32 s{sOffDo}, s{sFl}, {hex(WOP_OFF)}""")
    su += sdivmod(sFl, sOffP, sSpin, 5)
    su += L(f"""s_mul_i32 s{sFl}, s{sFl}, 48
s_lshl1_add_u32 s{sFl}, s{sT3}, s{sFl}
s_mul_i32 s{sFl}, s{sFl}, 5
s_add_u32 s{sFl}, s{sFl}, s{sOffP}
s_lshl_b32 s{sFl}, s{sFl}, 10
s_add_u32 s{sOffDd}, s{sFl}, {hex(WDP_OFF)}""")
    su2 = sdivmod(sT3, sSpin, sT2, 48)
    su2 += [L(f"""s_cmp_ge_u32 s{sSpin}, 24
s_cselect_b32 s{pBx}, s{pWu}, s{pWg}
s_cselect_b32 s{pBx+1}, s{pWu+1}, s{pWg+1}
s_cselect_b32 s{sT2}, 1, 0
s_cselect_b32 s{sFl}, 24, 0""")]
    su2 += L(f"""s_sub_u32 s{sSpin}, s{sSpin}, s{sFl}
s_lshl_b32 s{sOffR}, s{sT3}, 7
s_lshl4_add_u32 s{sOffR}, s{sT1}, s{sOffR}
s_lshl2_add_u32 s{sOffR}, s{sT0}, s{sOffR}
s_mul_i32 s{sOffR}, s{sOffR}, 3072
s_lshl_b32 s{sFl}, s{sSpin}, 7
s_add_u32 s{sOffR}, s{sOffR}, s{sFl}
s_lshl2_add_u32 s{sSpin}, s{sSpin}, s{sW}""")
    su2 += sdivmod(sFl, sOffP, sSpin, 3)
    su2 += L(f"""s_mul_i32 s{sFl}, s{sFl}, 20
s_lshl2_add_u32 s{sFl}, s{sT3}, s{sFl}
s_mul_i32 s{sFl}, s{sFl}, 6
s_lshl1_add_u32 s{sFl}, s{sOffP}, s{sFl}
s_add_u32 s{sFl}, s{sFl}, s{sT2}
s_lshl_b32 s{sFl}, s{sFl}, 10
s_add_u32 s{sOffD}, s{sFl}, {hex(GP_OFF)}
s_lshl_b32 s{sFg}, s2, 2
s_add_u32 s{sFg}, s{sFg}, {hex(FG)}""")
    su2 += [L(f"s_cmp_eq_u32 s{sW}, 0\ns_cselect_b32 s{sFg}, s{sFg}, 0x40000000")]
    su2 += L(f"""s_lshr_b32 s{sT2}, s{sH}, 3
s_lshl2_add_u32 s{sFl}, s{sQg}, s{sT2}
s_lshl_b32 s{sFl}, s{sFl}, 7
s_and_b32 s{sT2}, s{sH}, 7
s_lshl2_add_u32 s{sFl}, s{sT2}, s{sFl}
s_add_u32 s{sFl}, s{sFl}, {hex(FO)}
s_mul_i32 s{sOffA}, s{sNb}, 192
s_mul_i32 s{sT2}, s{sS}, 48
s_add_u32 s{sOffA}, s{sOffA}, s{sT2}
s_mul_i32 s{sOffA}, s{sOffA}, 10240
s_add_u32 s{sOffA}, s{sOffA}, s{sM5}
s_add_u32 s{sOffA}, s{sOffA}, {hex(WOP_OFF)}
s_lshl1_add_u32 s{sOffBB}, s{sMb}, s{sT1}
s_mul_i32 s{sOffBB}, s{sOffBB}, 240
s_add_u32 s{sOffBB}, s{sOffBB}, s{sT2}
s_add_u32 s{sOffBB}, s{sOffBB}, s{sT0}
s_lshl_b32 s{sOffBB}, s{sOffBB}, 12
s_add_u32 s{sOffBB}, s{sOffBB}, {hex(OH_OFF)}
s_lshr_b32 s{sT2}, s{sS}, 1
s_lshl1_add_u32 s{sQd}, s{sMb}, s{sT2}""") + srd(sR, pBx, 640 * 1536 * 2)
    def weave(vm, sal):
        ch = split(vm); out = []
        per = -(-len(sal) // len(ch))
        for k, cc in enumerate(ch):
            out += cc
            for y in sal[k * per:(k + 1) * per]: out += y if isinstance(y, list) else [y]
        return out
    XH = PAR("XH", 15)
    XF = PAR("XF", 50); XQ = PAR("XQ", 110)
    q0a = pace(rawdma(1) + dma_stage(1), 0, PAR("Q0", 44)) + pace(dma_stage(2) + wpf() + dma_stage(3) + wpf(), 56, XH * 10 - 2)
    fl = set_flag(f"s{sFl}", "Xst", after=XF); pl_ = poll_load(vPd, vPa, f"s{sFg}", after=XQ)
    ch = split(q0a)
    for x in (fl, pl_):
        k = next((i for i, cc in enumerate(ch) if [y for y in cc if y.kind == 'vmem'][0].after > x.after), len(ch))
        ch.insert(k, [x])
    for k in range(8, 14): ch[k] = ch[k] + su0[(k - 8) * 1:(k - 7) * 1]
    ch[15] = ch[15] + su0[6:13]; ch[16] = ch[16] + su0[13:21]; ch[17] = ch[17] + su0[21:]
    for cc in ch:
        for x in cc: x.reads.discard('stg')
    sch(p1_first(0, XH, extra=[x for cc in ch for x in cc] + vu), "p1_0a", vm_min=3)
    fs = lambda k: blk(stamp(k)) if "fine1" in KN else None
    fs(14)
    blk(poll_cmp(vPd, 1) + poll_branch("xn", vPd, vPa, f"s{sFg}"))
    fs(15)
    bl = lambda k: b_loads(('a', 64 * (k % 2))) + b_loads(('a', 64 * (k % 2) + 32))
    sch(p1_first(XH, 24, extra=pace(bl(1), 0, 56)), "p1_0b", vm_min=3); fs(16)
    sch(p1_quad(1, vm=weave(dma_stage(4) + dma_stage(5) + wpf() + stat_loads() + bl(2), su)), "p1_1"); fs(17)
    sch(p1_quad(2, vm=weave(dma_stage(6) + dma_stage(7) + bl(3), su2)), "p1_2"); fs(18)
    sch(p1_quad(3, vm=dma_stage(8) + dma_stage(9) + bl(4) + dma_stage(10)), "p1_3")
    if "stagtest" in KN:
        blk(L(f"""s_and_b32 s{sSpin}, s{sH}, 1
s_mul_i32 s{sSpin}, s{sSpin}, 150
L_stag:
s_cmp_eq_u32 s{sSpin}, 0
s_cbranch_scc1 L_stag2
s_sleep 1
s_sub_u32 s{sSpin}, s{sSpin}, 1
s_branch L_stag
L_stag2:"""))
    blk(stamp(3))
    MERGE = "nomerge" not in KN
    big = p1_quad(4, vm=dma_stage(11) + dma_stage(12)) + first_tile(192) + p2_iter(0, base=192 + 48)
    nbig = 336
    if not MERGE:
        sch(big, "p1_last"); big = []; nbig = 0
    blk(stamp(4))
    GC = PAR("GC", 9)
    XP = PAR("XP", 9)
    for t in range(1, 14):
        ex = []; post = []; btag = []
        if "tlb" in KN and t == PAR("TT", 8):
            x = I(f"buffer_load_dword v{vDum}, v60, {sr(sWS,4)}, 0 offen"); x.writes = set()
            ex += L(f"v_lshlrev_b32 v60, {PAR('TS', 21)}, v0") + [x]
        if t == 1: ex += xr
        if t == 3: ex += xs
        if t == 5: btag = ["Gst"]
        if t == 6: ex += [set_flag(f"s{sFg}", None)] + L(f"s_add_u32 s{sFg}, s{sFg}, {FW-FG}")
        if t == GC + 1: gq = split(dma_stage(27) + dma_stage(28))
        if GC < t <= 12:
            n_ = -(-len(gq) // 3 // (13 - t)) * 3
            ex += [x for ch in gq[:n_] for x in ch]; gq = gq[n_:]
        if t == GC - 1: ex += L(f"s_mov_b32 s{sT0}, {hex(FG)}") + [poll_load(vTmp, vL16, f"s{sT0}", 4)]
        if t == GC: post += late(poll_cmp(vTmp, 4), nbig + 60)
        XN_ = PAR("XN", 2)
        if "xpf" in KN and XP <= t <= 13:
            if t == XP: ex += L(f"""s_and_b32 s{sPf}, s{sH}, 3
s_lshl_b32 s{sPf}, s{sPf}, 11
s_mul_i32 s{sT2}, s{sQg}, {20*4096}
s_add_u32 s{sPf}, s{sPf}, s{sT2}""")
            for k in range(XN_):
                if (t - XP) * XN_ + k < 10:
                    for o in (0, 1024):
                        x = I(f"buffer_load_dwordx4 v[60:63], v{vL16}, {sr(sWS,4)}, s{sPf} offen offset:{o} sc1")
                        if (t - XP) * XN_ + k < 9 or o == 0: x.writes = set()
                        ex.append(x)
                    ex += L(f"s_add_u32 s{sPf}, s{sPf}, 8192")
        big += p2_iter(t, base=nbig, extra=ex, post=post, btag=btag); nbig += 96
        if not MERGE or t == GC:
            sch(big, f"p2_{t}"); big = []; nbig = 0
        if t == GC and "stagtest" not in KN: blk(poll_branch("g", vTmp, vL16, f"s{sT0}", 4))
    blk(stamp(5))
    sch(big + p2_iter(14, base=nbig, btag=["Wst", "st27"]) + tail_pv(nbig + 96), "tail", vm_min=3)
    blk(L("s_cbranch_vccnz L_fb\nL_fb_back:") + stamp(6))
    steps = p3_steps()
    setup = L(f"""v_and_b32 v{vT}, 32, v0
v_lshlrev_b32 v{vT}, 4, v{vT}
v_add_u32 v{vT}, v{vT}, v{vL16}
s_and_b32 s{sT3}, s{sW}, 1
s_lshl1_add_u32 s{sT1}, s{sMb}, s{sT3}
s_lshl2_add_u32 s{sT1}, s{sT1}, s{sS}
s_lshl_b32 s{sT1}, s{sT1}, 7
s_add_u32 s{sT1}, s{sT1}, {hex(FO)}
v_and_b32 v{vFa}, 7, v0
v_lshlrev_b32 v{vFa}, 2, v{vFa}
s_mul_i32 s{sT3}, s{sT3}, 5120
s_add_u32 s{sT3}, s{sT3}, {obase(0)}
v_add_u32 v{vOA}, s{sT3}, v{vL16}
s_lshr_b32 s{sT2}, s{sW}, 1
s_lshl_b32 s{sT2}, s{sT2}, 12
s_add_u32 s{sT2}, s{sT2}, {20480+obase(0)}
v_add_u32 v{vOB}, s{sT2}, v{vL16}
v_add_u32 v{vDA}, {obase(24)}, v{vL16}
s_and_b32 s{sT2}, s{sW}, 1
s_lshl_b32 s{sT2}, s{sT2}, 12
v_add_u32 v{vWr}, s{sT2}, v{vL16}
s_mov_b32 s{sOffR}, s{sOffA}
s_and_b32 s{sT2}, s{sH}, 7
s_mul_i32 s{sT3}, s{sT2}, {3*20480}
s_add_u32 s{sOffA}, s{sOffA}, s{sT3}
s_mov_b32 s{sAend}, s{sOffA}
s_add_u32 s{sAbeg}, s{sOffA}, {3*20480}
s_mul_i32 s{sT3}, s{sT2}, {3*8192}
s_add_u32 s{sBend}, s{sOffBB}, s{sT3}
s_add_u32 s{sBbeg}, s{sBend}, {3*8192}""")
    def ownw(sg):
        base = obase(sg) + 20480
        r = L(f"s_lshr_b32 s{sT2}, s{sW}, 1\ns_xor_b32 s{sT2}, s{sT2}, s{sMb}\ns_bitcmp1_b32 s{sT2}, 0\ns_cbranch_scc1 L_ow{sg}\nv_add_u32 v38, {base}, v{vWr}")
        for ks in range(2):
            for j in range(4):
                x = I(f"ds_write_b128 v38, {ar((8*(2*sg+ks)+j)*4,4)} offset:{ks*8192+j*1024}"); x.kind = 'wait'; r.append(x)
        x = I("s_waitcnt lgkmcnt(0)"); x.kind = 'label'; r.append(x)
        return r + L(f"L_ow{sg}:")
    for k in range(9):
        body = (setup if k == 3 else []) + join_steps(steps[k:k+1] if k < 8 else steps[8:])
        if k == 8:
            OB0 = PAR("OB0", 74)
            tailr = [I("s_barrier", tag_r="ot0", wr=['stg'], rd=['stg2'], after=OB0)] + o_reads(0)
            if OB0 < 70:
                idx = [i for i, x in enumerate(body) if x.kind == 'mfma'][OB0 - 8]
                body = body[:idx] + tailr + body[idx:]
            else: body += tailr
        sch(body, f"p3s{k}", vm_min=2)
        if k == WC and "stagtest" not in KN: blk(poll_cmp(vFl, 4) + poll_branch("w", vFl, vL16, f"s{sT0}", 4))
        if k == OC and "stagtest" not in KN: blk(poll_cmp(vFo2, 1) + poll_branch("o", vFo2, vFa, f"s{sT1}"))
        if k in (5, 6, 7): blk(ownw(k - 5))
        if "fine" in KN: blk(stamp(14 + k))
    c = stamp(7) + stamp(8)
    if OC == 9:
        c += dmaB(0) + dmaB(1) + dmaB(2)
        c.append(I("s_barrier", tag_r="ot0"))
        c += o_reads(0)
    c += stamp(9)
    blk(c, "o_pro")
    osetup = L(f"""s_lshl_b32 s{sT1}, s{sMb}, 8
s_add_u32 s{sT1}, s{sT1}, {hex(FH)}
v_lshlrev_b32 v{vFa}, 2, v0
s_and_b32 s{sT2}, s{sS}, 1
s_lshl1_add_u32 s{sT2}, s{sNb}, s{sT2}
s_lshr_b32 s{sT3}, s{sS}, 1
s_lshl1_add_u32 s{sOffRo}, s{sT2}, s{sT3}
s_mul_i32 s{sOffRo}, s{sOffRo}, {24*5120}
s_lshl_b32 s{sM3}, s{sW}, 13
s_add_u32 s{sOffRo}, s{sOffRo}, s{sM3}
s_add_u32 s{sOffRo}, s{sOffRo}, {hex(WDP_OFF)}
s_mul_i32 s{sT2}, s{sT2}, 160
s_lshl2_add_u32 s{sOffO}, s{sQd}, s{sW}
s_mul_i32 s{sOffO}, s{sOffO}, {16*1280}
s_add_u32 s{sOffO}, s{sOffO}, s{sT2}
s_mul_i32 s{sT3}, s{sT3}, 24
s_add_u32 s{sT3}, s{sT3}, 192
s_lshl_b32 s{sT3}, s{sT3}, 12
s_add_u32 s{sT3}, s{sT3}, s{sM1}
s_add_u32 s{sT3}, s{sT3}, {hex(OH_OFF)}
s_xor_b32 s{sOffRd}, s{sQd}, 1
s_mul_i32 s{sOffRd}, s{sOffRd}, {240*4096}
s_add_u32 s{sOffRd}, s{sOffRd}, s{sT3}
s_mul_i32 s{sOffG}, s{sQd}, {240*4096}
s_add_u32 s{sOffG}, s{sOffG}, s{sT3}
s_lshl2_add_u32 s{sT0}, s{sMb}, s{sNb}
s_lshl2_add_u32 s{sT3}, s{sT0}, s{sS}
s_lshl2_add_u32 s{sT2}, s{sT3}, s{sW}
s_mul_i32 s{sOffP}, s{sT2}, 10240
s_add_u32 s{sOffP}, s{sOffP}, {hex(PART_OFF)}
s_lshl2_add_u32 s{sFl}, s{sT0}, s{sW}
s_lshl_b32 s{sFl}, s{sFl}, 7
s_lshl2_add_u32 s{sFl}, s{sS}, s{sFl}
s_add_u32 s{sFl}, s{sFl}, {hex(FP)}
v_and_b32 v{vOa}, 15, v0
v_mul_u32_u24 v{vOa}, 1280, v{vOa}
v_lshrrev_b32 v{vPo}, 4, v0
v_lshl_add_u32 v{vOa}, v{vPo}, 3, v{vOa}
v_and_b32 v{vFa2}, 7, v0
v_lshlrev_b32 v{vFa2}, 2, v{vFa2}""") + srd(sOut, pOut, 2048 * 640 * 2) + L(f"""s_lshl_b32 s{sFg}, s{sT3}, 7
s_add_u32 s{sFg}, s{sFg}, {hex(FP)}
s_lshl4_add_u32 s{sT2}, s{sT0}, s{sS}
s_mul_i32 s{sOffK}, s{sT2}, 10240
s_add_u32 s{sOffK}, s{sOffK}, {hex(PART_OFF)}
s_lshl2_add_u32 s{sT2}, s{sT3}, s{sW}
s_mul_i32 s{sOffD}, s{sT2}, 2560
s_add_u32 s{sOffD}, s{sOffD}, {hex(HP_OFF)}
s_xor_b32 s{sT2}, s{sT2}, 8
s_mul_i32 s{sOffDo}, s{sT2}, 2560
s_add_u32 s{sOffDo}, s{sOffDo}, {hex(HP_OFF)}
s_xor_b32 s{sOffDd}, s{sFg}, 0x100
s_lshl2_add_u32 s{sOffDd}, s{sW}, s{sOffDd}
s_add_u32 s{sOffDd}, s{sOffDd}, 16""")
    assert len(osetup) <= 60
    OM = [int(x) for x in os.environ.get('OM', '0,15,15,37,60').split(',')]
    opoll = L(f"s_mov_b32 s{sOffB}, s{sT1}\nv_mov_b32 v39, v{vFa}") + [poll_load(vFo2, 39, f"s{sOffB}")]
    for sg in range(4):
        ex = []; dbo = None
        if EARLY:
            if sg == 0: dbo = dmaB(3) + dmaA(3) + dmaB(4)
            if sg == 1: dbo = dmaA(4) + dmaB(5) + dmaA(5)
        else:
            if sg == 0: dbo = dmaA(3) + dmaA(4)
            if sg == 1: dbo = dmaB(3) + dmaB(4) + dmaB(5) + dmaA(5)
        HS0 = PAR("HS0", 0); hm = (len(HST) + HS0) // 2
        if sg == 0: ex = HST[:HS0]
        if sg == 2: ex = HST[HS0:hm] + L(f"s_mov_b32 s{sOffV}, {hex(FW2)}") + [poll_load(48, vL16, f"s{sOffV}", 4)]
        if sg == 3: ex = HST[hm:] + L(f"s_add_u32 s{sQg}, s{sQg}, {hex(FH)}")
        pre = ([] if EARLY else opoll) + L(f"s_lshl_b32 s{sQg}, s{sQ3}, 7\ns_lshl2_add_u32 s{sQg}, s{sH3}, s{sQg}") if sg == 0 else []
        sch(o_block(sg, ex, pre=pre, mid=osetup[OM[sg]:OM[sg + 1]], dbo=dbo), f"o{sg}", vm_min=2)
        if sg == 0 and not EARLY: blk(poll_cmp(vFo2, 1) + poll_branch("o", vFo2, 39, f"s{sOffB}"))
        if "fine2" in KN: blk(stamp(16 + sg))
    if "ostatic" in KN:
        for sg in range(4, 20):
            ex = []
            if sg == 4: ex = [set_flag(f"s{sQg}", "Hst")]
            if sg == 15: ex = [poll_load(vFl, vFa, f"s{sT1}")]
            sch(o_block(sg, ex), f"o{sg}", vm_min=3)
    else:
        base_state = {r: AD[r].base for r in (vOA, vOB)}
        if "fine2" in KN: blk(stamp(14))
        P.block("ol_top", L(f"s_mov_b32 s{sH}, 0") + L(".p2align 6\nL_o:")); P.trace.append(("ol_top", {}))
        lb = []
        NIT = PAR('NIT', 4)
        for q in range(4):
            ex = L(f"s_cmp_eq_u32 s{sH}, {NIT-1}\ns_cselect_b32 s{sT2}, s{sT1}, 0x40000000") + [poll_load(vFl, vFa, f"s{sT2}")] if q == 0 else []
            if q == 3: ex = L(f"s_cmp_eq_u32 s{sH}, 0\ns_cselect_b32 s{sT2}, s{sQg}, 0x40000000") + [set_flag(f"s{sT2}", "Hst")]
            b = o_block(4 + q, ex)
            for x in b:
                for attr in ('tag_r', 'tag_w'):
                    t = getattr(x, attr)
                    if t is None: continue
                    if t == "Hst": continue
                    ts = t if isinstance(t, list) else [t]
                    setattr(x, attr, (lambda ts: lambda env: [u[:2] + str(int(u[2:]) + 4 * env['it']) for u in ts])(ts))
            if "ohitA" in KN: b = [x for x in b if not x.text.startswith(f"s_add_u32 s{sOffA}, s{sOffA}")]
            if "ohitB" in KN: b = [x for x in b if not x.text.startswith(f"s_add_u32 s{sOffBB}, s{sOffBB}")]
            if "onods" in KN: b = [x for x in b if x.kind != 'ds']
            if "onodma" in KN: b = [x for x in b if not (x.kind == 'vmem' and ' lds' in x.text)]
            if "onobar" in KN: b = [x for x in b if x.kind != 'barrier']
            if "onosc1" in KN:
                for x in b:
                    if ' lds' in x.text: x.text = x.text.replace(" sc1", "")
            b = schedule(b, f"ol{q}", verbose=dbg and "v" in KN, vm_min=3)
            if q == 3: b += L(f"s_add_u32 s{sH}, s{sH}, 1\ns_cmp_lt_u32 s{sH}, {NIT}\ns_cbranch_scc1 L_o")
            P.block(f"ol{q}", b)
        assert base_state == {r: AD[r].base for r in (vOA, vOB)}, "loop address state"
        for it in range(NIT): P.trace += [(f"ol{q}", {'it': it}) for q in range(4)]
    if "rewind" in KN:
        pos = sum(isize(x) for b_ in P.blocks for x in b_[1]) * 1.03
        new = int(pos + 1500) // 8192
        if new < cp[0]:
            blk(L(f"s_sub_u32 s62, s62, {(cp[0]-new)*8192}\ns_subb_u32 s63, s63, 0")); cp[0] = new
    if "fine2" in KN: blk(stamp(15))
    blk(poll_cmp(48, 4) + poll_branch("w2", 48, vL16, f"s{sOffV}", 4))
    blk(poll_cmp(vFl, 1) + poll_branch("h", vFl, vFa, f"s{sT1}"))
    dsetup = L(f"""s_lshl_b32 s{sT2}, s{sW}, 11
v_add_u32 v45, s{sT2}, v{vL16}
s_lshl_b32 s{sT2}, s{sW}, 9
s_add_u32 s{sT2}, s{sT2}, 8192
v_and_b32 v46, 31, v0
v_lshlrev_b32 v46, 4, v46
v_lshrrev_b32 v39, 5, v0
v_lshl_add_u32 v46, v39, 3, v46
v_add_u32 v46, s{sT2}, v46
v_add_u32 v47, {LDS_X}, v{vL16}
v_and_b32 v38, 15, v0
v_mul_u32_u24 v38, 1280, v38
v_bfe_u32 v39, v0, 4, 1
v_lshl_add_u32 v38, v39, 5, v38
v_lshrrev_b32 v39, 5, v0
v_lshl_add_u32 v38, v39, 4, v38
s_cmp_eq_u32 s{sW}, s{sS}
s_cmov_b32 s{sOffP}, 0x40000000""")
    NB1 = [int(x) for x in os.environ.get("NB1", "4,4,5,5").split(",")]
    nb1 = 0
    dsetup += L(f"s_mov_b32 s{sOffBB}, s{sOffG}\nv_lshlrev_b32 v37, 3, v0")
    for sg in range(20, 24):
        ex = [x for k in range(nb1, nb1 + NB1[sg - 20]) for x in d_bload(0, k)]; nb1 += NB1[sg - 20]
        sch(o_block(sg, ex, mid=dsetup if sg == 23 else []), f"o{sg}", vm_min=2)
    blk(stamp(10))
    def dsch(s, name):
        if "jitter" in KN: sch([], name + "j")
        blk(s, name)
    vQ4, vQ2, vLw, vOw = 45, 46, 47, 38
    def pk(dst, t, j):
        a = vAc + (t * 4 + j) * 4
        return L(f"v_cvt_pk_bf16_f32 v{dst}, v{a}, v{a+1}\nv_cvt_pk_bf16_f32 v{dst+1}, v{a+2}, v{a+3}")
    pkall = []; ps = []; n = 0
    for j in range(4):
        for tp in range(2):
            o = vPk + n * 4
            pkall += pk(o, 2 * tp, j) + pk(o + 2, 2 * tp + 1, j)
            it = [I(f"buffer_store_dwordx4 {vr(o,4)}, v{vL16}, {sr(sWS,4)}, s{sOffP} offen offset:{(n%4)*1024} sc1", tag_w="Pst")]
            n += 1
            if n % 4 == 0: it.append(I(f"s_add_u32 s{sOffP}, s{sOffP}, 4096"))
            ps.append(it)
    for jp in range(2):
        o = vPk + n * 4
        pkall += pk(o, 4, 2 * jp) + pk(o + 2, 4, 2 * jp + 1)
        ps.append(L(f"v_permlane32_swap_b32 v{o}, v{o+2}\nv_permlane32_swap_b32 v{o+1}, v{o+3}") + [I(f"buffer_store_dwordx4 {vr(o,4)}, v{vL16}, {sr(sWS,4)}, s{sOffP} offen offset:{jp*1024} sc1", tag_w="Pst")])
        n += 1
    own = L(f"s_cmp_lg_u32 s{sW}, s{sS}\ns_cbranch_scc1 L_own")
    for k in range(10):
        x = I(f"ds_write_b128 v{vLw}, {vr(vPk+4*k,4)} offset:{1024*k}"); x.kind = 'wait'; own.append(x)
    x = I("s_waitcnt lgkmcnt(0)"); x.kind = 'label'; own.append(x)
    own += L("L_own:")
    xl = L(f"""s_and_b32 s{sT2}, s{sS}, 1
s_lshl1_add_u32 s{sT2}, s{sNb}, s{sT2}
s_mul_i32 s{sT2}, s{sT2}, 10
s_mul_i32 s{sT3}, s{sQd}, {20*4096}
s_add_u32 s{sT3}, s{sT3}, s{sM1}
s_add_u32 s{sT3}, s{sT3}, {hex(XR_OFF)}
v_bfe_u32 v2, v0, 4, 1
v_lshrrev_b32 v3, 5, v0
v_lshl_add_u32 v4, v2, 1, v3
v_add_u32 v4, s{sT2}, v4
v_and_b32 v5, 15, v0
v_lshlrev_b32 v5, 4, v5
v_lshrrev_b32 v6, 2, v4
v_lshl_add_u32 v6, v6, 12, v5
v_and_b32 v4, 3, v4
v_lshl_add_u32 v6, v4, 8, v6
v_add_u32 v7, 4096, v6
v_add_u32 v4, s{sT2}, v3
v_add_u32 v4, 8, v4
v_lshrrev_b32 v8, 2, v4
v_lshl_add_u32 v8, v8, 12, v5
v_and_b32 v4, 3, v4
v_lshl_add_u32 v8, v4, 8, v8
v_lshl_add_u32 v8, v2, 3, v8
buffer_load_dwordx4 {vr(vXr,4)}, v6, {sr(sWS,4)}, s{sT3} offen sc1
buffer_load_dwordx4 {vr(vXr+4,4)}, v7, {sr(sWS,4)}, s{sT3} offen sc1
buffer_load_dwordx2 {vr(vXr+8,2)}, v8, {sr(sWS,4)}, s{sT3} offen sc1
s_lshl2_add_u32 s{sT2}, s{sQd}, s{sW}
s_lshl_b32 s{sT2}, s{sT2}, 7
s_add_u32 s{sT2}, s{sT2}, {hex(ST_OFF)}
v_lshrrev_b32 v9, 1, v5
buffer_load_dword v10, v9, {sr(sWS,4)}, s{sT2} offen offset:4 sc1""")
    pl = []
    for i in range(1, 4):
        pl += L(f"s_add_u32 s{sT2}, s{sS}, {i}\ns_and_b32 s{sT2}, s{sT2}, 3\ns_mul_i32 s{sT2}, s{sT2}, {4*10240}\ns_add_u32 s{sT2}, s{sT2}, s{sOffK}")
        for tp in range(2): pl.append(I(f"buffer_load_dwordx4 {vr(vPl+i*12+tp*4,4)}, v{vQ4}, {sr(sWS,4)}, s{sT2} offen offset:{1024*tp} sc1"))
        pl.append(I(f"buffer_load_dwordx2 {vr(vPl+i*12+8,2)}, v{vQ2}, {sr(sWS,4)}, s{sT2} offen sc1"))
    ownrd = L(f"""v_add_u32 v{vLw}, {LDS_X}, v{vQ4}
ds_read_b128 {vr(vPl,4)}, v{vLw}
ds_read_b128 {vr(vPl+4,4)}, v{vLw} offset:1024
v_add_u32 v{vLw}, {LDS_X}, v{vQ2}
ds_read_b64 {vr(vPl+8,2)}, v{vLw}""")
    t0 = 112; vSm = 164; vXf = 184
    xun = []
    for tp in range(2):
        for i in range(2): xun.append(I(f"v_permlane16_swap_b32 v{vXr+4*tp+i}, v{vXr+4*tp+2+i}"))
    for k in range(10): xun += L(f"v_lshlrev_b32 v{vXf+2*k}, 16, v{vXr+k}\nv_and_b32 v{vXf+2*k+1}, 0xffff0000, v{vXr+k}")
    k2 = (math.sqrt(192.0) / math.log2(math.e)) ** 2
    xun += L(f"v_mul_f32 v10, v10, v10\nv_mul_f32 v10, {hex(f2u(k2))}, v10\nv_mul_f32 v11, {hex(f2u(-math.log2(math.e)))}, v10")
    own0 = []
    for k in range(10): own0 += L(f"v_lshlrev_b32 v{vSm+2*k}, 16, v{vPl+k}\nv_and_b32 v{vSm+2*k+1}, 0xffff0000, v{vPl+k}\nv_mul_f32 v{vSm+2*k}, v10, v{vSm+2*k}\nv_mul_f32 v{vSm+2*k+1}, v10, v{vSm+2*k+1}")
    psum = []
    for i in range(1, 4):
        for k in range(10):
            s_ = vPl + i * 12 + k; u = 132 + (k % 4) * 2
            psum += L(f"v_lshlrev_b32 v{u}, 16, v{s_}\nv_and_b32 v{u+1}, 0xffff0000, v{s_}\nv_fmac_f32 v{vSm+2*k}, v10, v{u}\nv_fmac_f32 v{vSm+2*k+1}, v10, v{u+1}")
    fin = []
    for t in range(5):
        h = vDc + 4 * t
        for i in range(4): fin += L(f"v_mul_f32 v{t0+4*t+i}, v11, v{h+i}\nv_exp_f32 v{t0+4*t+i}, v{t0+4*t+i}")
        for i in range(4): fin += L(f"v_mul_f32 v{h+i}, v{h+i}, v{vSm+4*t+i}")
        for i in range(4): fin += L(f"v_add_f32 v{t0+4*t+i}, 1.0, v{t0+4*t+i}\nv_rcp_f32 v{t0+4*t+i}, v{t0+4*t+i}")
        for i in range(4): fin.append(I(f"v_fmac_f32 v{vXf+4*t+i}, v{h+i}, v{t0+4*t+i}"))
        for i in range(2): fin.append(I(f"v_cvt_pk_bf16_f32 v{vXr+2*t+i}, v{vXf+4*t+2*i}, v{vXf+4*t+2*i+1}"))
        if t in (1, 3):
            tp = t // 2
            for i in range(2): fin.append(I(f"v_permlane16_swap_b32 v{vXr+4*tp+i}, v{vXr+4*tp+2+i}"))
            fin.append(I(f"buffer_store_dwordx4 {vr(vXr+4*tp,4)}, v{vOw}, {sr(sOut,4)}, s{sOffO} offen offset:{64*tp}"))
    fin.append(I(f"buffer_store_dwordx2 {vr(vXr+8,2)}, v{vOa}, {sr(sOut,4)}, s{sOffO} offen offset:128"))
    flat = lambda l: [x for it in l for x in it]
    hs = []
    for t in range(5):
        for i in range(2): hs.append(I(f"v_cvt_pk_bf16_f32 v{vHp+2*t+i}, v{vDo+4*t+2*i}, v{vDo+4*t+2*i+1}"))
        if t in (1, 3): hs.append(I(f"buffer_store_dwordx4 {vr(vHp+2*t-2,4)}, v{vL16}, {sr(sWS,4)}, s{sOffD} offen offset:{(t//2)*1024} sc1", tag_w="Pst"))
    hs.append(I(f"buffer_store_dwordx2 {vr(vHp+8,2)}, v37, {sr(sWS,4)}, s{sOffD} offen offset:2048 sc1", tag_w="Pst"))
    hl = [I(f"buffer_load_dwordx4 {vr(vHr+4*k,4)}, v{vL16}, {sr(sWS,4)}, s{sOffDo} offen offset:{1024*k} sc1") for k in range(2)]
    hl.append(I(f"buffer_load_dwordx2 {vr(vHr+8,2)}, v37, {sr(sWS,4)}, s{sOffDo} offen offset:2048 sc1"))
    hadd = []
    for k in range(10):
        u = 132 + (k % 4) * 2
        hadd += L(f"v_lshlrev_b32 v{u}, 16, v{vHr+k}\nv_and_b32 v{u+1}, 0xffff0000, v{vHr+k}\nv_add_f32 v{vDc+2*k}, v{vDc+2*k}, v{u}\nv_add_f32 v{vDc+2*k+1}, v{vDc+2*k+1}, v{u+1}")
    f3 = lambda k: blk(stamp(14 + k)) if "fine3" in KN else None
    B1 = [d_bload(0, k) for k in range(nb1, 24)]; B2 = [d_bload(1, k) for k in range(24)]
    psq = [pkall[4 * k:4 * k + 4] + ps[k] for k in range(10)]
    cfg = [[int(y) for y in x.split(".")] for x in os.environ.get("DC", "3.5.0,3.5.0,0.0.9,0.0.6,0.0.9").split(",")]
    def take(c_):
        q = [[B1.pop(0) for _ in range(c_[0])], [psq.pop(0) for _ in range(c_[1])], [B2.pop(0) for _ in range(c_[2])]]
        return flat(merge(q))
    PFG = PAR("PFG", 3)
    owndone = False
    for g in range(4):
        ex = take(cfg[g])
        XE = PAR("XE", 1)
        if XE and g == 3: ex = ex + xl
        if g == PFG: ex = ex + [set_flag(f"s{sFl}", "Pst")]
        dsch(d_block(0, g, ex), f"d0{g}")
        if not psq and not owndone: blk(own); owndone = True; assert g < 2
        f3(g)
    for x in hs:
        if x.tag_w: x.tag_w = "Qst"
    pollP = L(f"v_and_b32 v12, 12, v{vFa2}") + [poll_load(vFl, 12, f"s{sFg}")]
    setH = L(f"s_lshl2_add_u32 s{sT1}, s{sW}, s{sFg}\ns_add_u32 s{sT1}, s{sT1}, 16\nv_mov_b32 v13, 0")
    blk(hs); f3(4)
    PP = PAR("PP", 0)
    PC = PAR("PC", 1)
    QP = PAR("QP", 3)
    chkP = lambda: blk(poll_cmp(vFl, 1) + poll_branch("p", vFl, 12, f"s{sFg}") + pl)
    pq = [poll_load(16, 13, f"s{sT1}")]
    QF = PAR("QF", 1)
    qf = [set_flag(f"s{sOffDd}", "Qst")]
    dsch(d_block(1, 0, (pollP if PP == 0 else []) + take(cfg[4]) + ([] if XE else xl) + (qf if QF == 0 else []), ownrd + setH), "d10"); f3(5)
    assert not B1 and not B2 and not psq
    if PC == 0: chkP()
    dsch(d_block(1, 1, (qf if QF == 1 else []) + (pollP if PP == 1 else [])), "d11"); f3(6)
    if PC == 1: chkP()
    f3(7)
    PSK = PAR("PSK", 40)
    dsch(d_block(1, 2, pq if QP == 2 else [], xun + own0 + (psum[:PSK] if PC == 0 else [])), "d12"); f3(8)
    chkQ = lambda: blk(poll_cmp(16, 1) + poll_branch("q", 16, 13, f"s{sT1}") + hl)
    if QP == 2: chkQ()
    rest = psum[PSK:] if PC == 0 else psum
    PSJ = PAR("PSJ", 0)
    dsch(d_block(1, 3, pq if QP == 3 else [], rest[:PSJ]), "d13"); f3(9)
    if QP == 3: chkQ()
    f3(10)
    blk(stamp(11))
    if "nopk" in KN: blk(rest[PSJ:] + hadd + fin)
    else:
        assert PSJ == 0 and PC != 0
        last = L("v_mov_b32 v12, v10\nv_mov_b32 v13, v10")
        for i in range(1, 4):
            for k in range(10):
                s_ = vPl + i * 12 + k; u = 132 + (k % 4) * 2
                last += L(f"v_lshlrev_b32 v{u}, 16, v{s_}\nv_and_b32 v{u+1}, 0xffff0000, v{s_}\nv_pk_fma_f32 v[{vSm+2*k}:{vSm+2*k+1}], v[{u}:{u+1}], v[12:13], v[{vSm+2*k}:{vSm+2*k+1}]")
        last += L("v_mov_b32 v10, v11\nv_mov_b32 v12, 1.0\nv_mov_b32 v13, 1.0")
        for t in range(5):
            h = vDc + 4 * t; e_ = t0 + 4 * t
            p2 = lambda a, i: f"v[{a+i}:{a+i+1}]"
            for hf in range(2):
                u = 132 + hf * 2
                last += L(f"v_lshlrev_b32 v{u}, 16, v{vHr+2*t+hf}\nv_and_b32 v{u+1}, 0xffff0000, v{vHr+2*t+hf}\nv_pk_add_f32 {p2(h,2*hf)}, {p2(h,2*hf)}, v[{u}:{u+1}]")
            for i in (0, 2): last += L(f"v_pk_mul_f32 {p2(e_,i)}, {p2(h,i)}, v[10:11]")
            for i in range(4): last += L(f"v_exp_f32 v{e_+i}, v{e_+i}")
            for i in (0, 2): last += L(f"v_pk_mul_f32 {p2(h,i)}, {p2(h,i)}, {p2(vSm+4*t,i)}")
            for i in (0, 2): last += L(f"v_pk_add_f32 {p2(e_,i)}, {p2(e_,i)}, v[12:13]")
            for i in range(4): last += L(f"v_rcp_f32 v{e_+i}, v{e_+i}")
            for i in (0, 2): last += L(f"v_pk_fma_f32 {p2(vXf+4*t,i)}, {p2(h,i)}, {p2(e_,i)}, {p2(vXf+4*t,i)}")
            for i in range(2): last.append(I(f"v_cvt_pk_bf16_f32 v{vXr+2*t+i}, v{vXf+4*t+2*i}, v{vXf+4*t+2*i+1}"))
            if t in (1, 3):
                tp = t // 2
                for i in range(2): last.append(I(f"v_permlane16_swap_b32 v{vXr+4*tp+i}, v{vXr+4*tp+2+i}"))
                last.append(I(f"buffer_store_dwordx4 {vr(vXr+4*tp,4)}, v{vOw}, {sr(sOut,4)}, s{sOffO} offen offset:{64*tp}"))
        last.append(I(f"buffer_store_dwordx2 {vr(vXr+8,2)}, v{vOa}, {sr(sOut,4)}, s{sOffO} offen offset:128"))
        blk(last)
    c = []
    c += stamp_store(13)
    amp = os.environ.get("AMP")
    if amp and STAMPS:
        k1, k2, mult = map(int, amp.split(","))
        cy = 1 if mult == 0 else 0
        first = f"v_readlane_b32 s{sT0}, v{vSt}, {2*k1+cy}" if k1 >= 0 else f"s_mov_b32 s{sT0}, s{sNonce}"
        c += L(f"""{first}
v_readlane_b32 s{sT1}, v{vSt}, {2*k2+cy}
v_readlane_b32 s{sT2}, v{vSt}, 26
s_nop 4
s_sub_u32 s{sT0}, s{sT1}, s{sT0}
{f"s_mul_i32 s{sT0}, s{sT0}, {mult}" if mult else f"s_lshr_b32 s{sT0}, s{sT0}, 2"}
s_min_u32 s{sT0}, s{sT0}, 100000
L_amp:
s_memrealtime s[{sSt}:{sSt+1}]
s_waitcnt lgkmcnt(0)
s_sub_u32 s{sT1}, s{sSt}, s{sT2}
s_cmp_lt_u32 s{sT1}, s{sT0}
s_cbranch_scc1 L_amp""")
    c += L("L_end:\ns_endpgm")
    blk(c, "fin")
    for nm, ins in OUTL: P.block(nm, ins)
    P.insert_waits()
    n = P.fix_hazards(verbose=False)
    if dbg:
        tot, per = P.estimate()
        agg = {}
        for k, v in per.items():
            kk = k.rstrip('0123456789') if k[0] in 'od' or k.startswith('p1_') or k.startswith('p2_') else k
            agg[kk] = agg.get(kk, 0) + v
        print("; estimate", tot, agg, "pads", n)
    return P.text() + "\n" + gen_fallback()

def build(path, dbg=False):
    body = gen(dbg)
    body = "\n".join(l.strip() for l in body.split("\n"))
    txt = f"""; @launch grid=(256,1,1) block=(256,1,1) lds={LDS_TOTAL}
;   p3    : gate/up GEMM, attention output normalised and published
; Hand-offs between workgroups: write-through stores, per-launch nonce in d_debug, flag words in d_ws, bounded polls.
.amdgcn_target "amdgcn-amd-amdhsa--gfx950"
.text
.globl {KNAME}
.p2align 8
.type {KNAME},@function
{KNAME}:
L_code_begin:
{body}
L_code_end:
.set CODE_SLICES, (L_code_end-L_code_begin+8191)/8192
.fill 2112, 4, 0xbf800000
s_endpgm
.section .rodata,"a"
.p2align 6
.amdhsa_kernel {KNAME}
  .amdhsa_next_free_vgpr 512
  .amdhsa_next_free_sgpr 102
  .amdhsa_accum_offset 256
  .amdhsa_group_segment_fixed_size 0
  .amdhsa_kernarg_size 96
  .amdhsa_user_sgpr_count 2
  .amdhsa_user_sgpr_kernarg_segment_ptr 1
  .amdhsa_system_sgpr_workgroup_id_x 1
  .amdhsa_float_denorm_mode_32 3
.end_amdhsa_kernel
"""
    open(path, "w").write(txt)

if __name__ == "__main__":
    if "--stamps" in sys.argv:
        STAMPS = True; sys.argv.remove("--stamps")
    build(sys.argv[1], dbg=True)
```

```python
import re

def _expand(op):
    op = op.strip()
    op = op.lstrip('-')
    if op.startswith('abs(') or op.startswith('|'):
        op = op.replace('abs(', '').replace(')', '').replace('|', '')
    m = re.fullmatch(r'([vas])\[(\d+):(\d+)\]', op)
    if m:
        return [f"{m.group(1)}{i}" for i in range(int(m.group(2)), int(m.group(3)) + 1)]
    m = re.fullmatch(r'([vas])(\d+)', op)
    if m:
        return [op]
    if op in ('vcc', 'm0', 'exec', 'scc'):
        return [op]
    if op in ('vcc_lo', 'vcc_hi'):
        return ['vcc']
    return []

TRANS = ('v_exp_f32', 'v_log_f32', 'v_rcp_f32', 'v_rsq_f32', 'v_sqrt_f32', 'v_sin_f32', 'v_cos_f32')
SCC_W = ('s_add_', 's_sub_', 's_addc_', 's_subb_', 's_and_', 's_or_', 's_xor_', 's_lshl_', 's_lshr_', 's_ashr_', 's_cmp', 's_min_', 's_max_', 's_andn2', 's_addk', 's_bfe', 's_not', 's_lshl1', 's_lshl2', 's_lshl3', 's_lshl4')

class Ins:
    __slots__ = ('text', 'kind', 'reads', 'writes', 'after', 'before', 'tag_r', 'tag_w', 'prio', 'uid', 'wait_lgkm', 'wait_vm', 'comment', 'gap')
    _n = 0
    def __init__(self, text, rd=(), wr=(), after=None, before=None, tag_r=None, tag_w=None, prio=0):
        self.text = text.strip()
        self.after = after; self.before = before
        self.tag_r = tag_r; self.tag_w = tag_w
        self.prio = prio
        self.uid = Ins._n; Ins._n += 1
        self.gap = None
        self._parse()
        self.reads |= set(rd); self.writes |= set(wr)
    def _parse(self):
        t = self.text
        self.reads = set(); self.writes = set()
        if t.endswith(':') or t.startswith('.') or t.startswith(';') or not t:
            self.kind = 'label'; return
        parts = t.split(None, 1)
        mn = parts[0]
        rest = parts[1] if len(parts) > 1 else ''
        rest = re.sub(r'\s+(neg_lo|neg_hi|op_sel|op_sel_hi):\[[^\]]*\]', '', rest)
        ops = [o.strip() for o in rest.split(',')] if rest else []
        mods = ''
        if ops:
            sp = ops[-1].split(None, 1)
            ops[-1] = sp[0]
            mods = sp[1] if len(sp) > 1 else ''
        R = lambda i: set(_expand(ops[i])) if i < len(ops) else set()
        allr = lambda a: set().union(*[R(i) for i in range(a, len(ops))]) if len(ops) > a else set()
        if mn.startswith('v_mfma'):
            self.kind = 'mfma'; self.writes = R(0); self.reads = allr(1)
        elif mn.startswith('ds_read') or mn.startswith('ds_bpermute') or mn.startswith('ds_swizzle'):
            self.kind = 'ds'; self.writes = R(0); self.reads = allr(1)
        elif mn.startswith('ds_write') or mn.startswith('ds_add') or mn.startswith('ds_or'):
            self.kind = 'ds'; self.reads = allr(0)
        elif mn.startswith('buffer_load') or mn.startswith('global_load'):
            self.kind = 'vmem'
            if re.search(r'\blds\b', mods) or 'load_lds' in mn:
                self.reads = allr(0) | {'m0'}
            else:
                self.writes = R(0); self.reads = allr(1)
        elif mn.startswith('buffer_store') or mn.startswith('global_store'):
            self.kind = 'vmem'; self.reads = allr(0)
        elif mn.startswith('buffer_atomic') or mn.startswith('global_atomic'):
            self.kind = 'vmem'; self.reads = allr(0)
            if 'sc0' in mods: self.writes = R(0)
        elif mn.startswith('buffer_wbl2') or mn.startswith('buffer_inv'):
            self.kind = 'vmem'
        elif mn.startswith('s_waitcnt') or mn == 's_nop' or mn == 's_sleep' or mn == 's_setprio':
            self.kind = 'wait'
        elif mn == 's_barrier':
            self.kind = 'barrier'
        elif mn.startswith('s_cbranch') or mn == 's_branch' or mn == 's_endpgm':
            self.kind = 'branch'
            if 'scc' in mn: self.reads = {'scc'}
            if 'vcc' in mn: self.reads = {'vcc'}
            if 'exec' in mn: self.reads = {'exec'}
        elif mn.startswith('s_load') or mn.startswith('s_memtime') or mn.startswith('s_memrealtime') or mn.startswith('s_buffer_load'):
            self.kind = 'smem'; self.writes = R(0); self.reads = allr(1)
        elif mn.startswith('s_'):
            self.kind = 'salu'
            if mn.startswith('s_cmp') or mn.startswith('s_bitcmp'):
                self.reads = allr(0); self.writes = {'scc'}
            else:
                self.writes = R(0); self.reads = allr(1)
                if mn.startswith(SCC_W): self.writes.add('scc')
                if mn.startswith('s_cselect') or mn.startswith('s_addc') or mn.startswith('s_subb') or mn.startswith('s_cmov'): self.reads.add('scc')
                if mn.startswith('s_cmov') or mn.startswith('s_addk') or mn.startswith('s_mulk'): self.reads |= R(0)
                if 'saveexec' in mn: self.writes |= {'exec', 'scc'}; self.reads.add('exec')
        elif mn.startswith('v_'):
            base = mn.replace('_e32', '').replace('_e64', '')
            self.kind = 'trans' if base in TRANS else 'valu'
            if 'swap' in mn:
                self.writes = R(0) | R(1); self.reads = R(0) | R(1)
            else:
                self.writes = R(0); self.reads = allr(1)
                if base.startswith('v_fmac') or base.startswith('v_dot2c') or base.startswith('v_writelane') or 'dpp' in mn or 'row_' in mods or 'quad_perm' in mods: self.reads |= R(0)
                if base.startswith('v_add_co') or base.startswith('v_addc_co') or base.startswith('v_sub_co'):
                    self.writes |= R(1); self.reads = allr(2)
                if base.startswith('v_cmpx'): self.writes.add('exec')
        else:
            raise ValueError("unknown instr: " + t)
    def __repr__(self): return self.text

def I(text, **kw): return Ins(text, **kw)

import os
MFMA_RAW_GAPS = int(os.environ.get('RG', 4))
import os
PAIR_SLACK = int(os.environ.get('PSL', 3)) if os.environ.get('PSL', '3') != 'off' else None
SMOOTH = int(os.environ.get('SM', 0)); SM_SLACK = int(os.environ.get('SMS', 20))
BARPRIO = os.environ.get('BP', '1') == '1'
DS_LAT_GAPS = 8

def schedule(serial, name="", ds_lat=DS_LAT_GAPS, verbose=False, vm_min=4):
    mf = [x for x in serial if x.kind == 'mfma']
    n = len(mf)
    midx = {x.uid: i for i, x in enumerate(mf)}
    fill = [x for x in serial if x.kind != 'mfma']
    preds = {x.uid: [] for x in fill}
    lo = {x.uid: -1 for x in fill}
    hi = {x.uid: n - 1 for x in fill}
    soft = {x.uid: n - 1 for x in fill}
    lastw = {}; readers = {}
    succs = {x.uid: [] for x in fill}
    def dep(a, b, typ):
        if a is b: return
        if a.kind == 'mfma' and b.kind == 'mfma': return
        if a.kind == 'mfma':
            i = midx[a.uid]
            if typ in ('raw', 'waw'): lo[b.uid] = max(lo[b.uid], min(i + MFMA_RAW_GAPS, n - 1))
            elif typ == 'warc': lo[b.uid] = max(lo[b.uid], min(i + 2, n - 1))
            else: lo[b.uid] = max(lo[b.uid], i)
        elif b.kind == 'mfma':
            i = midx[b.uid]
            if typ == 'raw':
                if a.kind in ('ds',):
                    hi[a.uid] = min(hi[a.uid], i - 1); soft[a.uid] = min(soft[a.uid], i - 1 - ds_lat)
                else:
                    hi[a.uid] = min(hi[a.uid], i - 1); soft[a.uid] = min(soft[a.uid], i - 2)
            else:
                hi[a.uid] = min(hi[a.uid], i - 1); soft[a.uid] = min(soft[a.uid], i - 1)
        else:
            preds[b.uid].append((a, typ)); succs[a.uid].append((b, typ))
    prev_by_kind = {}
    for x in serial:
        for r in x.reads:
            if r in lastw: dep(lastw[r], x, 'raw')
        for r in x.writes:
            if r in lastw: dep(lastw[r], x, 'waw')
            for y in readers.get(r, []):
                typ = 'war'
                if y.kind == 'mfma':
                    ops = [o.strip() for o in y.text.split(None, 1)[1].split(',')]
                    if r in _expand(ops[3]): typ = 'warc'
                dep(y, x, typ)
        for r in x.reads: readers.setdefault(r, []).append(x)
        for r in x.writes: lastw[r] = x; readers[r] = []
        if x.kind in ('ds', 'vmem', 'barrier'):
            k = x.kind
            if k in prev_by_kind: dep(prev_by_kind[k], x, 'order')
            prev_by_kind[k] = x
    for x in fill:
        if x.kind == 'vmem' and x.after is not None and x.before is None:
            soft[x.uid] = min(soft[x.uid], x.after - 6)
        if x.after is not None: lo[x.uid] = max(lo[x.uid], x.after)
        if x.before is not None:
            soft[x.uid] = min(soft[x.uid], x.before)
    for x in reversed(fill):
        for (b, typ) in succs[x.uid]:
            hi[x.uid] = min(hi[x.uid], hi[b.uid])
            d = 1 if (typ == 'raw' or x.kind in ('ds', 'vmem', 'trans')) else 0
            soft[x.uid] = min(soft[x.uid], soft[b.uid] - d)
    for x in fill:
        for (a, typ) in preds[x.uid]:
            lo[x.uid] = max(lo[x.uid], lo[a.uid])
        if lo[x.uid] > hi[x.uid]:
            lo[x.uid] = hi[x.uid]
    wantwait = set()
    seen = set()
    dsw = {}
    for x in serial:
        if x.kind == 'mfma':
            for r in x.reads:
                key = (r, dsw.get(r, -1))
                if (r in dsw or r.startswith('a') or r.startswith('v')) and key not in seen and r in dsw:
                    wantwait.add(midx[x.uid] - 1)
                seen.add(key)
        if x.kind == 'ds':
            for r in x.writes: dsw[r] = x.uid
    placed = {}
    gaps = {g: [] for g in range(-1, n)}
    npred = {x.uid: len(set(a.uid for a, _ in preds[x.uid])) for x in fill}
    succ_u = {x.uid: {} for x in fill}
    for x in fill:
        for (b, typ) in succs[x.uid]: succ_u[x.uid][b.uid] = b
    ready = [x for x in fill if npred[x.uid] == 0]
    nleft = len(fill)
    over = 0
    last_vm = -100; last_tr = -100
    for g in range(-1, n):
        scalar_free = (g not in wantwait)
        vec = 2
        has_ds = False
        while True:
            cands = [x for x in ready if lo[x.uid] <= g]
            if not cands: break
            cands.sort(key=lambda x: (soft[x.uid], -x.prio, x.uid))
            if BARPRIO:
                bs = [x for x in cands if x.kind == 'barrier']
                for x in bs: cands.remove(x); cands.insert(0, x)
                ds_ = next((x for x in cands if x.kind == 'ds'), None)
                if ds_ is not None and soft[ds_.uid] <= g and not bs:
                    cands.remove(ds_); cands.insert(0, ds_)
            if vec == 2 and PAIR_SLACK is not None:
                vecs = [x for x in cands if x.kind in ('ds', 'valu', 'trans', 'vmem')]
                if vecs and vecs[0].kind == 'ds' and soft[vecs[0].uid] - g > PAIR_SLACK and not any(x.kind == 'valu' for x in vecs):
                    tr = next((x for x in vecs if x.kind == 'trans'), None)
                    if tr is not None:
                        cands.remove(tr); cands.insert(0, tr)
                elif vecs and vecs[0].kind == 'valu' and soft[vecs[0].uid] - g > PAIR_SLACK:
                    o = next((x for x in vecs if x.kind == 'ds'), None) or next((x for x in vecs if x.kind == 'trans'), None)
                    if o is not None:
                        cands.remove(o); cands.insert(0, o)
            if SMOOTH and vec == 2:
                if g - last_tr < SMOOTH:
                    cands = [x for x in cands if not (x.kind == 'trans' and soft[x.uid] - g > SM_SLACK and hi[x.uid] > g)]
                else:
                    tr = next((x for x in cands if x.kind == 'trans'), None)
                    first = next((x for x in cands if x.kind in ('ds', 'valu', 'vmem', 'trans')), None)
                    if tr is not None and first is not None and first.kind in ('ds', 'valu') and soft[first.uid] - g > 1:
                        cands.remove(tr); cands.insert(0, tr)
            pick = None
            for x in cands:
                forced = hi[x.uid] <= g
                samegap_raw = any(placed[a.uid] == g and typ == 'raw' and not (a.kind == 'valu' and x.kind == 'valu') for (a, typ) in preds[x.uid])
                samegap_any = any(placed[a.uid] == g for (a, typ) in preds[x.uid])
                fits = False
                if g >= 0 and not samegap_raw:
                    if x.kind == 'barrier' and BARPRIO:
                        fits = not samegap_any
                    elif x.kind in ('salu', 'wait', 'barrier'):
                        fits = scalar_free and not samegap_any
                    elif x.kind == 'ds':
                        fits = vec >= 1 and not has_ds and not any(placed[a.uid] == g and a.kind in ('valu', 'trans') for (a, typ) in preds[x.uid])
                    elif x.kind == 'valu':
                        fits = vec >= 1
                    elif x.kind == 'trans':
                        fits = vec >= 2
                    elif x.kind == 'vmem':
                        fits = vec >= 2 and g - last_vm >= vm_min
                if fits or forced:
                    pick = x; pfits = fits; break
            if pick is None: break
            x = pick
            if not pfits: over += 1
            if x.kind in ('salu', 'wait', 'barrier'):
                scalar_free = False
            elif x.kind == 'ds': vec -= 1; has_ds = True
            elif x.kind == 'valu': vec -= 1
            else: vec -= 2
            if x.kind == 'vmem': last_vm = g
            if x.kind == 'trans': last_tr = g
            placed[x.uid] = g; x.gap = g
            gaps[g].append((x, pfits))
            ready.remove(x); nleft -= 1
            for b in succ_u[x.uid].values():
                npred[b.uid] -= 1
                if npred[b.uid] == 0: ready.append(b)
    assert nleft == 0
    out = []
    for g in range(-1, n):
        if g >= 0: out.append(mf[g])
        items = gaps[g]
        if all(f for _, f in items):
            order = {'salu': 0, 'wait': 0, 'barrier': 0, 'ds': 1, 'vmem': 1, 'valu': 2, 'trans': 2}
            items = sorted(items, key=lambda it: order[it[0].kind])
        out += [x for x, _ in items]
    if verbose: print(f"; schedule {name}: {n} mfma, {len(fill)} fillers, {over} overflow")
    return out

class Prog:
    def __init__(self):
        self.blocks = []
        self.trace = []
    def block(self, name, ins):
        self.blocks.append([name, list(ins)])
    def get(self, name):
        if not hasattr(self, '_idx') or len(self._idx) != len(self.blocks):
            self._idx = {b[0]: b for b in self.blocks}
        return self._idx[name]
    def dyn(self):
        for (name, env) in self.trace:
            for x in self.get(name)[1]:
                yield x, env, name

    def insert_waits(self):
        need = {}
        anchor_of = {}
        for name, ins in self.blocks:
            last_after_mfma = None
            for i, x in enumerate(ins):
                if i > 0 and ins[i - 1].kind == 'mfma': last_after_mfma = x
                if x.kind in ('label', 'branch'): last_after_mfma = None
                anchor_of[x.uid] = last_after_mfma if (last_after_mfma is not None and x.kind == 'mfma') else x
        for _pass in range(6):
            changed = False
            q = {'lgkm': [], 'vm': []}
            seq = {'lgkm': 0, 'vm': 0}
            at_anchor = {}
            smem_out = False
            for x, env, name in self.dyn():
                at_anchor[x.uid] = (seq['lgkm'], seq['vm'])
                if x.uid in need:
                    l, v = need[x.uid]
                    if l is not None: q['lgkm'] = q['lgkm'][len(q['lgkm']) - l:] if l < len(q['lgkm']) and l > 0 else ([] if l == 0 else q['lgkm'])
                    if v is not None: q['vm'] = q['vm'][len(q['vm']) - v:] if v < len(q['vm']) and v > 0 else ([] if v == 0 else q['vm'])
                if x.kind == 'wait' and x.text.startswith('s_waitcnt'):
                    m = re.search(r'lgkmcnt\((\d+)\)', x.text)
                    if m:
                        l = int(m.group(1)); q['lgkm'] = q['lgkm'][len(q['lgkm']) - l:] if 0 < l < len(q['lgkm']) else ([] if l == 0 else q['lgkm'])
                    m = re.search(r'vmcnt\((\d+)\)', x.text)
                    if m:
                        v = int(m.group(1)); q['vm'] = q['vm'][len(q['vm']) - v:] if 0 < v < len(q['vm']) else ([] if v == 0 else q['vm'])
                touched = set(x.reads) | set(x.writes)
                if x.tag_r is not None:
                    t = x.tag_r(env) if callable(x.tag_r) else x.tag_r
                    touched |= set(t if isinstance(t, (list, tuple, set)) else [t])
                for ci, c in enumerate(('lgkm', 'vm')):
                    hit = None
                    for (s, regs, issm) in q[c]:
                        if regs & touched: hit = (s, issm)
                    if hit is not None:
                        a = anchor_of[x.uid]
                        sa = at_anchor[a.uid][ci]
                        if hit[0] >= sa:
                            a = x; sa = seq[c]
                        N = sa - hit[0] - 1
                        if any(sm for (_, _, sm) in q[c]): N = 0; a = x
                        N = min(N, 15 if c == 'lgkm' else 63)
                        cur = need.setdefault(a.uid, [None, None])
                        if cur[ci] is None or N < cur[ci]:
                            cur[ci] = N; changed = True
                        q[c] = [e for e in q[c] if e[0] > hit[0]] if N > 0 or a is not x else []
                if x.kind in ('ds', 'smem'):
                    w = set(r for r in x.writes if r[1:].isdigit())
                    if x.tag_w is not None:
                        t = x.tag_w(env) if callable(x.tag_w) else x.tag_w
                        w |= set(t if isinstance(t, (list, tuple, set)) else [t])
                    q['lgkm'].append((seq['lgkm'], w, x.kind == 'smem')); seq['lgkm'] += 1
                elif x.kind == 'vmem':
                    w = set(x.writes)
                    if x.tag_w is not None:
                        t = x.tag_w(env) if callable(x.tag_w) else x.tag_w
                        w |= set(t if isinstance(t, (list, tuple, set)) else [t])
                    q['vm'].append((seq['vm'], w, False)); seq['vm'] += 1
            if not changed: break
        else:
            raise RuntimeError("wait insertion did not converge")
        for b in self.blocks:
            out = []
            for x in b[1]:
                if x.uid in need:
                    l, v = need[x.uid]
                    s = "s_waitcnt" + (f" vmcnt({v})" if v is not None else "") + (f" lgkmcnt({l})" if l is not None else "")
                    out.append(I(s))
                out.append(x)
            b[1] = out

    def fix_hazards(self, verbose=False):
        total = 0
        for _pass in range(8):
            pad = {}
            hist = []
            for x, env, name in self.dyn():
                if x.kind == 'label': continue
                need = 0
                dist = 0
                for y in reversed(hist):
                    req = hazard(y, x)
                    if req > dist: need = max(need, req - dist)
                    dist += states(y)
                    if dist > 20: break
                if need:
                    pad[x.uid] = max(pad.get(x.uid, 0), need)
                    hist.append(I(f"s_nop {need-1}"))
                hist.append(x)
                if len(hist) > 40: hist = hist[-30:]
            if not pad: break
            for b in self.blocks:
                out = []
                for x in b[1]:
                    if x.uid in pad:
                        out.append(I(f"s_nop {pad[x.uid]-1}")); total += 1
                        if verbose: print(f"; hazard pad {pad[x.uid]} before {x.text} in {b[0]}")
                    out.append(x)
                b[1] = out
        return total

    def text(self):
        L = []
        for name, ins in self.blocks:
            L.append(f"; ---- {name}")
            for x in ins:
                L.append(x.text if x.kind == 'label' else "  " + x.text)
        return "\n".join(L)

    def estimate(self):
        tot = 0; cur = None; per = {}
        def flush(c):
            return max(16, c)
        gap = None
        for x, env, name in self.dyn():
            if x.kind == 'label': continue
            if x.kind == 'mfma':
                if gap is not None:
                    c = flush(gap[0]); tot += c; per[gap[2]] = per.get(gap[2], 0) + c
                gap = [8, True, name, 'mfma']
            else:
                cost = 4
                if x.kind in ('trans', 'vmem'): cost = 8
                if x.text.startswith('s_nop'): cost = 4 * (int(x.text.split()[1]) + 1)
                if gap is None:
                    tot += cost; per[name] = per.get(name, 0) + cost; continue
                if x.kind in ('salu', 'wait', 'barrier', 'branch') and gap[1] and cost == 4: cost = 0
                if x.kind == 'ds' and gap[3] in ('valu', 'trans'): cost += 8
                if x.kind == 'ds' and gap[3] == 'ds': cost += 4
                gap[1] = False; gap[0] += cost; gap[3] = x.kind
        if gap is not None:
            c = flush(gap[0]); tot += c; per[gap[2]] = per.get(gap[2], 0) + c
        return tot, per

def states(y):
    if y.text.startswith('s_nop'): return int(y.text.split()[1]) + 1
    return 1

def _vregs(s): return {r for r in s if r[0] in 'va' and r[1:].isdigit()}
def _sregs(s): return {r for r in s if (r[0] == 's' and r[1:].isdigit()) or r == 'vcc'}

def hazard(y, x):
    req = 0
    yv = y.kind in ('valu', 'trans')
    xv = x.kind in ('valu', 'trans')
    if y.kind == 'mfma':
        big = '32x32' in y.text
        D = y.writes
        ops = [o.strip() for o in y.text.split(None, 1)[1].split(',')]
        C = set(_expand(ops[3]))
        if x.kind == 'mfma':
            xo = [o.strip() for o in x.text.split(None, 1)[1].split(',')]
            if D & (set(_expand(xo[1])) | set(_expand(xo[2]))): req = max(req, 12 if big else 8)
            xc = set(_expand(xo[3]))
            if D & xc and xc != D: req = max(req, 10 if big else 6)
            if D & x.writes and not (D & xc): req = max(req, 10 if big else 6)
        elif xv or x.kind in ('ds', 'vmem'):
            if D & (x.reads | x.writes): req = max(req, 12 if big else 8)
            if xv and (C & x.writes): req = max(req, 7 if big else 3)
    if yv:
        W = _vregs(y.writes)
        if x.kind == 'mfma' and W & x.reads: req = max(req, 2)
        if 'permlane' in x.text and W & x.reads: req = max(req, 2)
        if ('dpp' in x.text or 'row_' in x.text or 'quad_perm' in x.text) and W & x.reads: req = max(req, 2)
        if (x.text.startswith('v_readfirstlane') or x.text.startswith('v_readlane')) and W & x.reads: req = max(req, 1)
        if y.kind == 'trans' and x.kind == 'valu' and W & x.reads: req = max(req, 1)
        S = _sregs(y.writes)
        if S:
            if x.kind == 'vmem' and S & x.reads: req = max(req, 5)
            if xv and S & x.reads: req = max(req, 2)
            if x.kind in ('salu', 'branch') and S & x.reads: req = max(req, 2)
        if 'exec' in y.writes: req = max(req, 5)
    if y.kind == 'salu' and 'm0' in y.writes and x.kind == 'vmem' and 'm0' in x.reads: req = max(req, 1)
    if y.kind == 'vmem' and ('store_dwordx4' in y.text or 'store_dwordx3' in y.text):
        data = set(_expand(y.text.split(None, 1)[1].split(',')[0 if y.text.startswith('buffer') else 1]))
        if data & x.writes: req = max(req, 2)
    return req


def isize(x):
    if x.kind == 'label': return 0
    if x.kind in ('mfma', 'ds', 'vmem', 'smem'): return 8
    t = x.text
    lit = 4 if re.search(r'(?<![\w\[:])(0x[0-9a-f]+|\d{3,}|6[5-9]|[7-9]\d)(?![\w\]:])', t.split(None, 1)[1] if ' ' in t else '') else 0
    if x.kind in ('valu', 'trans'):
        mn = t.split()[0]
        if mn.startswith(('v_cvt_pk', 'v_max3', 'v_lshl_add', 'v_fma_', 'v_pk_', 'v_bfe', 'v_or3', 'v_accvgpr', 'v_mad', 'v_writelane', 'v_readlane')) or 'dpp' in mn: return 8
        return 4 + lit
    if x.kind in ('wait', 'barrier', 'branch'): return 4
    return 4 + lit
```

```python
import sys, math, struct, os
from asmlib import *
KN = set(os.environ.get("KN", "").split(","))
def PAR(name, default): return type(default)(os.environ.get(name, default))
NAME = "recurrent_scan__sliding_block_cached__glu_gated_bilinear__prompt"
KNAME = NAME + "_kernel"
XN_OFF = 0; OH_OFF = 0x400000; GP_OFF = 0x2200000; WOP_OFF = 0x2600000; WDP_OFF = 0x2E00000; PART_OFF = 0x3000000
FL_OFF = 0x3A00000
FXN = FL_OFF; FO = FL_OFF + 0x8000; FH = FL_OFF + 0x10000; FP = FL_OFF + 0x18000; FG = FL_OFF + 0x20000; FW = FL_OFF + 0x21000; FW2 = FL_OFF + 0x22000; ST_OFF = FL_OFF + 0x30000
XR_OFF = 0x3B00000; HP_OFF = 0x3E00000
WS_SIZE = 0x4100000
STAMP_OFF = 0x8000000
SLOT = 28672; SL2 = 36864
LDS_X = 147456
LDS_TOTAL = 163840
STAMPS = False
SPIN_MAX = 200000
PSTR = 24576; LN_X = 86016
def sbase(st):
    if st < 10: return (114688 if (st // 2) % 2 == 0 else 0) + (st % 2) * PSTR
    if st <= 26: return (st % 4) * SLOT
    return {27: 114688, 28: 139264, 29: 86016, 30: 0, 31: 36864}[st]
OPERM = [3, 2, 0, 1]
def obase(sg): return OPERM[sg % 4] * SL2

def f2u(x): return struct.unpack('<I', struct.pack('<f', x))[0]
def vr(a, n): return f"v[{a}:{a+n-1}]" if n > 1 else f"v{a}"
def ar(a, n): return f"a[{a}:{a+n-1}]" if n > 1 else f"a{a}"
def sr(a, n): return f"s[{a}:{a+n-1}]" if n > 1 else f"s{a}"
def rr(x, n=4): return vr(x[1], n) if x[0] == 'v' else ar(x[1], n)
def L(txt): return [I(t) for t in txt.strip().split("\n") if t.strip()]
def mfma(d, a, b, c): return I(f"v_mfma_f32_16x16x32_bf16 {d}, {a}, {b}, {c}")

sWq, sK, sWS, sR = 4, 8, 12, 16
(sOffX, sOffY, sOffK, sOffV, sM6, sM3, sM1, sOffB, sH, sB, sW, sT0, sT1, sT2, sOffO, sScale,
 sOffG, sOffH0, sOffH1, sOffH2, sNonce, sOffR, sOffD, sOffRo, sOffRd, sOffDo, sOffDd,
 sS, sMb, sNb, sFl, sSpin, sT3, sOffP, sQg, sFg, sOffA, sOffBB, sM5, sM4, sPf, sQd) = range(20, 62)
sOffH = sOffH0
pX, pK, pV, pWq, pWo, pBx, pWg, pWu, pWd, pOut, pDbg, pWs = range(64, 88, 2)
sSt = 88; sV = 92; sXin = 96
sOut = sWq
vL16 = 1; vWo = 2; vKo = 5; vVo = 8; vRo = 11; vRo2 = 12; vL128 = 13; vFo = 14; vNon = 15
vRa = 16; vWa = 17; vKa = 19; vVa = 21; vGa = 25
vLs = 26; vT = 36; vSt = 31; vNm = 32; vTmp = 48
vAcc = 64; vQ = 64
vS01 = 160; vS23 = 176; vP01 = 208; vP23 = 224; vVs = 232
aK = 192; aR = 240; aA1 = 128; aDum = 255; aCs = 160
vOne = 48; vSta = 40; vCsT = 52; vXo = 44; vXo2 = 46; vSo = 32; vPa = 42; vPd = 43
vDum = 30
NSLICE = 11 if 'ostatic' in KN else 10

class Addr:
    def __init__(self, reg, base): self.reg = reg; self.base = base
    def use(self, base, off):
        pre = []
        d = base + off - self.base
        if not (0 <= d < 65536):
            pre = [I(f"v_add_u32 v{self.reg}, {hex((base - self.base) & 0xffffffff)}, v{self.reg}")]
            self.base = base; d = off
        return pre, d
AD = {}
def dsr(op, dst, reg, base, off, **kw):
    pre, d = AD[reg].use(base, off)
    return pre + [I(f"{op} {dst}, v{reg} offset:{d}", **kw)]

def srd(d, base, size):
    return [I(f"s_mov_b32 s{d}, s{base}"), I(f"s_mov_b32 s{d+1}, s{base+1}"), I(f"s_mov_b32 s{d+2}, {hex(size)}"), I(f"s_mov_b32 s{d+3}, 0x20000")]
def xreduce(v, t, op):
    return L(f"""v_mov_b32 v{t}, v{v}
v_permlane16_swap_b32 v{v}, v{t}
{op} v{v}, v{v}, v{t}
v_mov_b32 v{t}, v{v}
v_permlane32_swap_b32 v{v}, v{t}
{op} v{v}, v{v}, v{t}""")
def divmod_const(q, r, src, c):
    magic = (65536 + c - 1) // c
    for x in range(1400): assert (x * magic) >> 16 == x // c
    return L(f"v_mul_u32_u24 v{q}, {magic}, v{src}\nv_lshrrev_b32 v{q}, 16, v{q}\nv_mul_u32_u24 v{r}, {c}, v{q}\nv_sub_u32 v{r}, v{src}, v{r}")
def sdivmod(q, r, src, c):
    magic = (65536 + c - 1) // c
    for x in range(1400): assert (x * magic) >> 16 == x // c
    return L(f"s_mul_i32 s{q}, s{src}, {magic}\ns_lshr_b32 s{q}, s{q}, 16\ns_mul_i32 s{r}, s{q}, {c}\ns_sub_u32 s{r}, s{src}, s{r}")

LIGHT = "light" in KN
def stamp(k):
    if not STAMPS or (LIGHT and k not in (0, 13)): return []
    return L(f"""s_memrealtime s[{sSt}:{sSt+1}]
s_memtime s[{sSt+2}:{sSt+3}]
s_waitcnt lgkmcnt(0)
v_writelane_b32 v{vSt}, s{sSt}, {2*k}
v_writelane_b32 v{vSt}, s{sSt+2}, {2*k+1}""")
def stamp_store(n):
    if not STAMPS: return []
    return stamp(n - 1) + L("s_waitcnt vmcnt(0)") + stamp(n) + L(f"""s_add_u32 s{sK}, s{pWs}, {hex(STAMP_OFF)}
s_addc_u32 s{sK+1}, s{pWs+1}, 0
s_mov_b32 s{sK+2}, {1024*256}
s_mov_b32 s{sK+3}, 0x20000
s_lshl2_add_u32 s{sT0}, s2, s{sW}
s_lshl_b32 s{sT0}, s{sT0}, 8
v_lshlrev_b32 v2, 2, v0
buffer_store_dword v{vSt}, v2, {sr(sK,4)}, s{sT0} offen""")

OUTL = []
def poll_load(dst, vaddr, soff, n=1, **kw):
    op = "buffer_load_dword" if n == 1 else "buffer_load_dwordx4"
    return I(f"{op} {vr(dst,n)}, v{vaddr}, {sr(sWS,4)}, {soff} offen sc1", **kw)
def poll_cmp(dst, n):
    if n == 1: return L(f"v_cmp_ne_u32 vcc, s{sNonce}, v{dst}")
    return L(f"""v_xor_b32 v{dst}, s{sNonce}, v{dst}
v_xor_b32 v{dst+1}, s{sNonce}, v{dst+1}
v_xor_b32 v{dst+2}, s{sNonce}, v{dst+2}
v_xor_b32 v{dst+3}, s{sNonce}, v{dst+3}
v_or3_b32 v{dst}, v{dst}, v{dst+1}, v{dst+2}
v_or_b32 v{dst}, v{dst}, v{dst+3}
v_cmp_ne_u32 vcc, 0, v{dst}""")
def poll_branch(name, dst, vaddr, soff, n=1):
    o = L(f"L_spin_{name}:\ns_mov_b32 s{sSpin}, {SPIN_MAX}\nL_spin2_{name}:")
    o += [poll_load(dst, vaddr, soff, n)] + L("s_waitcnt vmcnt(0)") + poll_cmp(dst, n)
    o += L(f"""s_nop 4
s_cbranch_vccz L_back_{name}
s_sleep 1
s_sub_u32 s{sSpin}, s{sSpin}, 1
s_cmp_lg_u32 s{sSpin}, 0
s_cbranch_scc1 L_spin2_{name}
s_branch L_back_{name}""")
    OUTL.append((f"spin_{name}", o))
    return L(f"s_cbranch_vccnz L_spin_{name}\nL_back_{name}:")
def late(lst, g):
    for x in lst: x.after = g
    return lst
def set_flag(soff, tag, **kw):
    return I(f"buffer_store_dword v{vNon}, v{vFo}, {sr(sWS,4)}, {soff} offen sc1", tag_r=tag, **kw)

RF = os.environ.get("RF", "nt"); WQF = os.environ.get("WQF", "")
KVF = os.environ.get("KVF", "nt")
def grp3(st, srdn, vo, so, mreg, moff, inc, flags=""):
    r = [I(f"s_add_u32 m0, s{mreg}, {sbase(st)+moff}")]
    for n in range(3):
        v = vo + n if vo != vL16 else vL16
        r.append(I(f"buffer_load_dwordx4 v{v}, {sr(srdn,4)}, s{so} offen offset:{1024*n} {flags} lds", tag_w=f"st{st}", rd=['stg']))
    if inc: r.append(I(f"s_add_u32 s{so}, s{so}, {inc}"))
    return r
def dma_stage(st):
    r = []
    if st <= 9:
        WQF = os.environ.get("WQF", "") if st < PAR("WQN", 10) else ""
        r += grp3(st, sWq, vWo, sOffX, sM6, 0, 16 * 12288, WQF) + grp3(st, sWq, vWo, sOffX, sM6, 3072, 48 * 12288, WQF)
    elif st <= 26:
        t = st - 10
        if t <= 15: r += grp3(st, sK, vKo, sOffK, sM3, 0, 12288, KVF)
        if t >= 1: r += grp3(st, sV, vVo, sOffV, sM3, 12288, 12288, KVF)
        u = st - 12
        if 0 <= u < 14:
            if u == 4: r += srd(sR, pWo, 6144 * 640 * 2)[:3] + L(f"s_mov_b32 s{sOffR}, s{sOffRo}")
            if u == 12: r += srd(sR, pWd, 1536 * 640 * 2)[:3] + L(f"s_mov_b32 s{sOffR}, s{sOffRd}")
            r.append(I(f"s_add_u32 m0, s{sM1}, {sbase(st)+24576}"))
            r.append(I(f"buffer_load_dwordx4 v{vRo if u < 4 else vRo2}, {sr(sR,4)}, s{sOffR} offen {RF} lds", tag_w=f"st{st}", rd=['stg']))
            r.append(I(f"s_add_u32 s{sOffR}, s{sOffR}, {32*3072 if u < 4 else 32*1280}"))
    else:
        r += grp3(st, sWS, vL16, sOffG, sM6, 0, 3072, "sc1") + grp3(st, sWS, vL16, sOffG, sM6, 3072, 24576 - 3072, "sc1")
    return r
def pace(lst, lo, hi):
    vm = [x for x in lst if x.kind == 'vmem']
    for k, x in enumerate(vm): x.after = int(lo + k * (hi - lo) / len(vm))
    return lst
def barrier(tag, after=None): return I("s_barrier", tag_r=tag, wr=['stg'], after=after)

def acc1(T, j): return vAcc + ((T // 2) * 4 + j) * 8 + (T % 2) * 4
def w_reads(k, T):
    slot = aA1 + (T % 2) * 16
    p, t = T // 2, T % 2
    r = []
    for ks in range(4):
        for u in range(2): r += dsr("ds_read_b64_tr_b16", ar(slot + ks * 4 + u * 2, 2), vWa + p % 2, sbase(2 * k), (ks // 2) * PSTR + (ks % 2) * 12288 + u * 6144 + (p // 2) * 128 + 8 * t, rd=['stg'], tag_w=f"wr{k}")
    return r
def b_loads(base):
    r = []
    for u in range(2):
        for j in range(4):
            r.append(I(f"buffer_load_dwordx4 {rr((base[0], base[1]+(u*4+j)*4))}, v{vL16}, {sr(sWS,4)}, s{sOffB} offen offset:{1024*j} sc1"))
        r.append(I(f"s_add_u32 s{sOffB}, s{sOffB}, 4096"))
    return r
def k_reads(st, kt):
    r = []
    for s in range(6): r += dsr("ds_read_b128", ar(aK + kt * 24 + s * 4, 4), vKa + s % 2, sbase(st), kt * 6144 + (s // 2) * 128, rd=['stg'], tag_w=f"vr{st}")
    return r
def v_reads(st, T):
    r = []
    for u in range(2): r += dsr("ds_read_b64_tr_b16", vr(vVs + (T % 6) * 4 + u * 2, 2), vVa + T % 4, sbase(st), 12288 + u * 6144 + (T // 4) * 128, rd=['stg'], tag_w=f"vr{st}")
    return r
def prefetch(srdn, soff, flags=""):
    x = I(f"buffer_load_dword v{vDum}, v{vL128}, {sr(srdn,4)}, {soff} offen {flags}"); x.writes = set(); return x

def csreg(T): return aCs + T * 4
def p1_quad(k, T0=0, T1=12, vm=(), vmspan=None, extra=()):
    last = k == 4
    per = 20 if k == 0 else 16
    n = (T1 - T0) * per
    s = []
    vm = list(vm)
    if any(x.kind == 'vmem' for x in vm): pace(vm, *(vmspan or (1, n - 20)))
    s += vm + list(extra)
    for T in range(T0, T1):
        if T + 1 < 12: s += w_reads(k, T + 1)
        else:
            s.append(barrier([f"st{2*k+2}", f"wr{k}"] + ([f"st{2*k+3}"] if not last else []), after=n - per - 1))
            s += w_reads(k + 1, 0) if not last else k_reads(10, 0)
        slot = aA1 + (T % 2) * 16
        for j in range(4):
            d = vr(acc1(T, j), 4)
            for ks in range(4):
                s.append(mfma(d, ar(slot + ks * 4, 4), ar(64 * (k % 2) + (ks * 4 + j) * 4, 4), "0" if (k == 0 and ks == 0) else d))
        if k == 0:
            d = ar(csreg(T), 4)
            for ks in range(4): s.append(mfma(d, ar(slot + ks * 4, 4), vr(vOne, 4), d if ks else "0"))
        if k in (2, 3) and T % 2 == k - 2:
            t = vCsT + ((T // 2) % 2) * 4
            for i in range(4): s.append(I(f"v_accvgpr_read_b32 v{t+i}, a{csreg(T)+i}"))
            for j in range(4):
                for i in range(4): s.append(I(f"v_fmac_f32 v{acc1(T,j)+i}, v{t+i}, v{vSta+2*j}"))
        if last and T % 2 == 1:
            p = T // 2
            for j in range(4):
                a = acc1(2 * p, j); q = vQ + (p * 4 + j) * 4
                for i in range(8): s.append(I(f"v_mul_f32 v{a+i}, v{vSta+2*j+1}, v{a+i}"))
                for i in range(4): s.append(I(f"v_cvt_pk_bf16_f32 v{q+i}, v{a+2*i}, v{a+2*i+1}"))
    return s
def w_reads0(n):
    h, T = n // 12, n % 12
    slot = aA1 + (n % 4) * 8
    p, t = T // 2, T % 2
    r = []
    for ks in range(2):
        for u in range(2): r += dsr("ds_read_b64_tr_b16", ar(slot + ks * 4 + u * 2, 2), vWa + p % 2, sbase(0), h * PSTR + ks * 12288 + u * 6144 + (p // 2) * 128 + 8 * t, rd=['stg'], tag_w="wr0")
    return r
def raw_reads(h):
    return [I(f"ds_read_b128 {ar(((2*h+ks)*4+j)*4,4)}, v{(vXo if h == 0 else vXo2) + ks} offset:{j*2048}", tag_r=f"raw{h}", tag_w=f"rawrd{h}") for j in range(4) for ks in range(2)]
def p1_first(n0, n1, extra=()):
    s = list(extra)
    for n in range(n0, n1):
        h, T = n // 12, n % 12
        if n == 8: s += late(raw_reads(1), (8 - n0) * 10)
        if n == 10: s.append(barrier(["st1"], after=(10 - n0) * 10 - 4))
        if n + 2 < 24: s += w_reads0(n + 2)
        elif n == 23:
            s.append(barrier(["st2", "st3", "wr0"], after=(22 - n0) * 10))
            s += w_reads(1, 0)
        slot = aA1 + (n % 4) * 8
        for j in range(4):
            d = vr(acc1(T, j), 4)
            for ks in range(2): s.append(mfma(d, ar(slot + ks * 4, 4), ar(((2 * h + ks) * 4 + j) * 4, 4), "0" if (h == 0 and ks == 0) else d))
        d = ar(csreg(T), 4)
        for ks in range(2): s.append(mfma(d, ar(slot + ks * 4, 4), vr(vOne, 4), "0" if (h == 0 and ks == 0) else d))
    return s
def stat_loads():
    return [I(f"buffer_load_dwordx2 {vr(vSta+2*j,2)}, v{vSo}, {sr(sWS,4)}, s{sScale} offen offset:{128*j} sc1") for j in range(4)]

def Sreg(kt, j, t):
    if j < 2: return (vTmp if t == 0 else vS01) + (j * 2 + kt) * 4
    return vS23 + (t % 2) * 16 + ((j - 2) * 2 + kt) * 4
def Preg(j, t):
    if j < 2: return vP01 + (t % 2) * 8 + j * 4
    return (vTmp + 8 if t == 15 else vP23) + (j - 2) * 4
def qk(kt, t):
    s = []
    for j in range(4):
        d = vr(Sreg(kt, j, t), 4)
        for p in range(6):
            c = d if p else ("0" if (t == 0 and kt == 0) else vr(vNm + 4 * j, 4))
            s.append(mfma(d, ar(aK + kt * 24 + p * 4, 4), vr(vQ + (p * 4 + j) * 4, 4), c))
    return s
def softmax(j, t):
    s = []
    for kt in range(2):
        a = Sreg(kt, j, t)
        for i in range(4): s.append(I(f"v_exp_f32 v{a+i}, v{a+i}"))
        for i in range(4): s.append(I(f"v_add_f32 v{vLs+j}, v{vLs+j}, v{a+i}"))
        for i in range(2): s.append(I(f"v_cvt_pk_bf16_f32 v{Preg(j,t)+kt*2+i}, v{a+2*i}, v{a+2*i+1}"))
    return s
def pv_T(T, t):
    s = []
    for j in range(4):
        d = ar((T * 4 + j) * 4, 4)
        s.append(mfma(d, vr(vVs + (T % 6) * 4, 4), vr(Preg(j, t), 4), "0" if t == 0 else d))
    return s

G4T = PAR('G4T', 0)
def p2_iter(t, base=0, extra=(), post=(), btag=()):
    st = 11 + t
    s = []
    s += k_reads(st, 1)
    u = st - 12
    if u >= 0:
        for h in range(2): s += dsr("ds_read_b64_tr_b16", ar(aR + 2 * h, 2), vRa, sbase(st), 24576 + 2048 * h, rd=['stg'])
    s += pace(dma_stage(st + 3 if st + 3 <= 26 else st + 5) + list(extra), base + 2, base + PAR("HP", 72))
    if t > 0: s += softmax(2, t) + softmax(3, t)
    s += qk(0, t + 1) + qk(1, t + 1)
    for T in range(6): s += v_reads(st, T)
    s += softmax(0, t + 1) + softmax(1, t + 1)
    if t == 14: s += softmax(2, 15) + softmax(3, 15)
    for T in range(12):
        s += pv_T(T, t)
        if T < 6: s += v_reads(st, T + 6)
        if T == 5:
            s.append(barrier([f"st{st+1}", f"vr{st}"] + list(btag), after=base + PAR("HB", 78)))
            if t < 14: s += k_reads(st + 1, 0)
            if u >= 0:
                if u == 4: s += L(f"s_mov_b32 s{sOffD}, s{sOffDo}")
                if u == 12: s += L(f"s_mov_b32 s{sOffD}, s{sOffDd}")
                s.append(I(f"buffer_store_dwordx4 {ar(aR,4)}, v{vL16}, {sr(sWS,4)}, s{sOffD} offen sc1", after=base + 84, tag_w="Gst" if u < 4 else "Wst" if u < 12 else "Dst"))
                s.append(I(f"s_add_u32 s{sOffD}, s{sOffD}, {6144 if u < 4 else 10240 if u < 12 else 5120}"))
        if t == 14 and T >= 6: s += v_reads(st + 1, T - 6)
    s += list(post)
    return s

def first_tile(base):
    s = []
    s += k_reads(10, 1)
    s += pace(dma_stage(13), base + 2, base + 30)
    s += qk(0, 0)
    for j in range(4):
        a = Sreg(0, j, 0); m = vNm + 4 * j; t = m + 1
        s += L(f"v_max3_f32 v{m}, v{a}, v{a+1}, v{a+2}\nv_max_f32 v{m}, v{m}, v{a+3}")
        s += xreduce(m, t, "v_max_f32")
        s += L(f"v_sub_f32 v{m+1}, 0, v{m}\nv_sub_f32 v{m+2}, 0, v{m}\nv_sub_f32 v{m+3}, 0, v{m}\nv_sub_f32 v{m}, 0, v{m}")
        for i in range(4): s.append(I(f"v_add_f32 v{a+i}, v{a+i}, v{m}"))
    s.append(barrier(["st11", "vr10"], after=base + 28))
    s += k_reads(11, 0)
    s += qk(1, 0)
    for j in range(4): s += softmax(j, 0)
    return s

vGA = 160; vOP = 184
BBUF = [('a', 192), ('a', 224), ('v', 208)]
def g_reads(n, tagr='stg', pos=None):
    ds, grp = n // 6, n % 6
    slot = vGA + ((n if pos is None else pos) % 3) * 8
    r = []
    for ks in range(2): r += dsr("ds_read_b128", vr(slot + ks * 4, 4), vGa, sbase(27 + ds // 2), (((ds % 2) * 2 + ks) * 6 + grp) * 1024, rd=[tagr], tag_w=f"gr{27 + ds // 2}")
    return r
def acc3(grp, j): return vAcc + (grp * 4 + j) * 4

def tail_pv(base):
    s = L(f"s_mul_i32 s{sOffB}, s100, {20*4096}")
    wf = set_flag(f"s{sFg}", None, rd=['stg'])
    s += pace([wf] + L(f"s_add_u32 s{sFg}, s{sFg}, {FW2-FW}") + b_loads(BBUF[0]), base - 11, base + 16)
    for T in range(12):
        s += pv_T(T, 15)
        if T < 6: s += v_reads(26, T + 6)
        if T == 5:
            s += g_reads(0) + g_reads(1)
            s += pace(b_loads(BBUF[1]) + (dma_stage(31) if G4T else []), base + 16, base + 48)
    for j in range(4): s += xreduce(vLs + j, vTmp + j, "v_add_f32")
    s += L(f"""v_add_f32 v{vTmp}, v{vLs}, v{vLs+1}
v_add_f32 v{vTmp+1}, v{vLs+2}, v{vLs+3}
v_add_f32 v{vTmp}, v{vTmp}, v{vTmp+1}
v_cmp_ngt_f32 vcc, {hex(f2u(2.0**80))}, v{vTmp}""")
    for j in range(4): s.append(I(f"v_rcp_f32 v{vLs+j}, v{vLs+j}"))
    return s

def split(lst):
    ch = []; cur = []
    for x in lst:
        cur.append(x)
        if x.kind == 'vmem': ch.append(cur); cur = []
    if cur: ch[-1] += cur
    return ch
def merge(qs):
    qs = [list(q) for q in qs]
    w = [len(q) for q in qs]; tot = sum(w); acc = [0.0] * len(qs); seq = []
    for k in range(tot):
        for z in range(len(qs)): acc[z] += w[z]
        z = max((z for z in range(len(qs)) if qs[z]), key=lambda z: acc[z])
        acc[z] -= tot; seq.append(qs[z].pop(0))
    return seq

vOA = 32; vOB = 33; vDA = 34; vDB = 35
vOa = 40; vPo = 41; vFa = 42; vFa2 = 43; vFl = 44
vAc = 64; vDc = 144; vPk = 164; vXr = 204; vPl = 64
def fA(e, t, ks): return e * 72 + (t * 2 + ks) * 4
def fB(e, j, ks): return 40 + e * 72 + (ks * 4 + j) * 4
def dA(e, n): return (144 if e == 0 else 0) + n * 4
def dB(e, ks): return (144 if e == 0 else 0) + 80 + ks * 4
sAbeg, sAend, sBbeg, sBend = sScale, sOffX, sOffY, sPf
vWr = 35
def dmaA(sg, rd='stg'):
    r = []
    if sg == 24: r += L(f"s_mov_b32 s{sOffA}, s{sOffRo}")
    r.append(I(f"s_add_u32 m0, s{sM5}, {obase(sg)}"))
    for n in range(5):
        if n == 4: r += L(f"s_add_u32 m0, s{sM5}, {obase(sg)+4096}\ns_add_u32 s{sOffA}, s{sOffA}, 4096")
        r.append(I(f"buffer_load_dwordx4 v{vL16}, {sr(sWS,4)}, s{sOffA} offen offset:{1024*(n%4)} sc1 lds", tag_w=f"ot{sg}", rd=[rd]))
    r.append(I(f"s_add_u32 s{sOffA}, s{sOffA}, {20480-4096}"))
    if sg == 2: r += L(f"s_mov_b32 s{sOffA}, s{sOffR}")
    if sg >= 2: r += L(f"s_cmp_eq_u32 s{sOffA}, s{sAend}\ns_cmov_b32 s{sOffA}, s{sAbeg}")
    return r
def dmaB(sg, rd='stg'):
    r = []
    r += L(f"s_cmp_eq_u32 s{sOffBB}, s{sBend}\ns_cmov_b32 s{sOffBB}, s{sBbeg}")
    r.append(I(f"s_add_u32 m0, s{sM4}, {obase(sg)+20480}"))
    for n in range(4):
        r.append(I(f"buffer_load_dwordx4 v{vL16}, {sr(sWS,4)}, s{sOffBB} offen offset:{1024*n} sc1 lds", tag_w=f"ot{sg}", rd=[rd]))
    r.append(I(f"s_add_u32 s{sOffBB}, s{sOffBB}, {8192 if sg < 24 else 16384}"))
    return r
def apf():
    if "apf" not in KN: return []
    return [prefetch(sWS, f"s{sPf}", "sc1")] + L(f"s_add_u32 s{sPf}, s{sPf}, 81920")
def o_reads(sg):
    e = sg % 2; kw = dict(rd=['stg'], tag_w=f"rd{sg}")
    r = []
    if sg < 24:
        for ks in range(2): r += dsr("ds_read_b128", ar(fA(e, 0, ks), 4), vOA, obase(sg), ks * 10240, **kw)
        for j in range(4):
            for ks in range(2): r += dsr("ds_read_b128", ar(fB(e, j, ks), 4), vOB, obase(sg), ks * 8192 + j * 1024, **kw)
        for t in range(1, 5):
            for ks in range(2): r += dsr("ds_read_b128", ar(fA(e, t, ks), 4), vOA, obase(sg), (ks * 10 + t) * 1024, **kw)
    else:
        for ks in range(4): r += dsr("ds_read_b128", ar(dB(e, ks), 4), vDB, obase(sg), ks * 4096, **kw)
        for T in range(5):
            for ks in range(4): r += dsr("ds_read_b128", ar(dA(e, ks * 5 + T), 4), vDA, obase(sg), (ks * 5 + T) * 1024, **kw)
    return r
def dmaD(g):
    r = []
    for h in range(2):
        r.append(I(f"s_add_u32 m0, s{sM3}, {obase(24+g)+4096*h}"))
        for n in range(4):
            so = sOffRo
            if h == 1 and n >= 2 and "dover" not in KN:
                so = sOffA
                if n == 2: r += L(f"s_cmp_eq_u32 s{sW}, 3\ns_cselect_b32 s{sOffA}, 0x40000000, s{sOffRo}")
            r.append(I(f"buffer_load_dwordx4 v{vL16}, {sr(sWS,4)}, s{so} offen offset:{1024*n} sc1 lds", tag_w=f"ot{24+g}", rd=['stg']))
        r.append(I(f"s_add_u32 s{sOffRo}, s{sOffRo}, {4096 if h == 0 else 30720-4096}"))
    return r
DRING = [240, 244, 248, 252] + list(range(0, 48, 4))
vDo = 216; vHp = 236; vHr = 246
def dBreg(p, k): return (144 if p == 0 else 48) + 4 * k
def d_bload(p, k):
    so = sOffRd if p == 0 else sOffBB
    return [I(f"buffer_load_dwordx4 {ar(dBreg(p,k),4)}, v{vL16}, {sr(sWS,4)}, s{so} offen sc1"), I(f"s_add_u32 s{so}, s{so}, 4096")]
def d_read(n):
    g, T, k = (n % 120) // 30, (n % 30) // 6, n % 6
    return dsr("ds_read_b128", ar(DRING[n % 16], 4), vDA, obase(24 + g), (k * 5 + T) * 1024, rd=['stg'])
DLA = 12
def d_block(p, g, extra=(), post=(), pre=()):
    acc = vDo if p == 0 else vDc
    ex = list(pre) + list(extra) + list(post)
    w = [3 if x.kind == 'vmem' else 0 if x.kind == 'salu' else 1 for x in ex]
    tot = max(sum(w), 1); c_ = 0; pos = []
    for k, x in enumerate(ex):
        pos.append(min(29, int(c_ * 30 / tot))); c_ += w[k]
    out = []
    for i in range(30):
        n = p * 120 + g * 30 + i
        T, k = i // 6, i % 6
        d = vr(acc + 4 * T, 4)
        out.append(mfma(d, ar(DRING[n % 16], 4), ar(dBreg(p, g * 6 + k), 4), "0" if (g == 0 and k == 0) else d))
        m = n + 1 + DLA
        if m < 240:
            if m < 120 and m % 30 == 0: out.append(I("s_barrier", tag_r=[f"ot{24+m//30}"]))
            out += d_read(m)
        out += [x for k_, x in enumerate(ex) if pos[k_] == i]
    return out
def o_block(sg, extra=(), pre=(), mid=(), exfirst=False, dbo=None):
    e = sg % 2
    s = list(pre)
    s += [I("s_barrier", tag_r=[f"ot{sg+1}", f"rd{sg}"], wr=['stg'], after=2)]
    if sg < 23: s += o_reads(sg + 1)
    else:
        for m in range(DLA + 1): s += d_read(m)
    db = dbo if dbo is not None else dmaB(sg + 4) + dmaA(sg + 4) if sg < 20 else dmaD(sg - 20)
    k_ = next(i for i, x in enumerate(db) if x.kind == 'vmem') + 1
    vm = split(db[:k_] + list(mid) + db[k_:])
    ex = split(list(extra)) if any(x.kind == 'vmem' for x in extra) else []
    if exfirst: seq = list(extra) + [x for ch in vm for x in ch]
    else: seq = [x for ch in merge([vm, ex]) for x in ch] if ex else [x for ch in vm for x in ch] + list(extra)
    pace(seq, 3, 40)
    s += seq
    for t in range(5):
        for j in range(4):
            for ks in range(2):
                d = vr(vAc + (t * 4 + j) * 4, 4)
                s.append(mfma(d, ar(fA(e, t, ks), 4), ar(fB(e, j, ks), 4), "0" if (sg == 0 and ks == 0) else d))
    return s

EARLY = PAR('EARLY', 0); OF = PAR('OF', 8); OC = 8 if EARLY else 99; WC = PAR('WC', 5)
vFo2 = 37
vHs = 48
def p3_steps():
    oe = []
    n = 0
    for p in range(6):
        for j in range(4):
            t = vTmp + (n % 2) * 8; o = vOP + (n % 6) * 4
            it = []
            for tt in range(2):
                for i in range(4): it.append(I(f"v_accvgpr_read_b32 v{t+tt*4+i}, a{((2*p+tt)*4+j)*4+i}"))
            for i in range(8): it.append(I(f"v_mul_f32 v{t+i}, v{t+i}, v{vLs+j}"))
            for i in range(4): it.append(I(f"v_cvt_pk_bf16_f32 v{o+i}, v{t+2*i}, v{t+2*i+1}"))
            for i in range(4): it.append(I(f"v_accvgpr_write_b32 a{(8*p+j)*4+i}, v{o+i}"))
            oe.append(it); n += 1
            st_ = [I(f"buffer_store_dwordx4 {ar((8*p+j)*4,4)}, v{vL16}, {sr(sWS,4)}, s{sOffO} offen offset:{1024*j} sc1", tag_w="Ost")]
            if j == 3: st_.append(I(f"s_add_u32 s{sOffO}, s{sOffO}, 4096"))
            OST.append(st_)
    nss = [int(x) for x in os.environ.get("NSS", "2,3,3,3,3,3,3,4,0,0").split(",")]
    nst = [int(x) for x in os.environ.get("NST", "4,3,3,3,3,3,3,2,0,0").split(",")]
    dm = {}
    if not G4T:
        g31 = split(dma_stage(31)); dm = {0: g31[:3], 1: g31[3:]}
    a0, a1, a2 = [split(dmaA(k, 'x')) for k in range(3)]
    assert WC <= 5
    dm[6] = a0; dm[8] = a1; dm[9] = a2
    allb = [c for d in range(2, 10) for c in split(b_loads(BBUF[d % 3]))]
    cnt = [int(x) for x in os.environ.get("NB", "8,8,8,8,8,8,8,8,0,0").split(",")]
    BQ = []
    for k in cnt: BQ.append(allb[:k]); allb = allb[k:]
    assert not allb
    steps = []
    for ds in range(10):
        s = []
        take = BQ[ds]
        s += [x for _ in range(nst[ds]) for x in oe.pop(0)]
        st = [OST.pop(0) for _ in range(nss[ds])]
        seq = merge([take, dm.get(ds, []), st]) if ds < 7 else take + st + dm.get(ds, [])
        if ds == 2: seq.insert(0, [set_flag(f"s{sFg}", None)])
        if ds == WC - 1: seq.insert(0, L(f"s_mov_b32 s{sT0}, {hex(FW)}") + [poll_load(vFl, vL16, f"s{sT0}", 4)])
        if ds == OF: seq.insert(int(len(seq) * PAR("OFP", 0.6)), [set_flag(f"s{sFl}", "Ost")])
        if EARLY and ds == PAR("OP", 9): seq.insert(int(len(seq) * PAR("OPP", 0.4)), [poll_load(vFo2, vFa, f"s{sT1}")])
        flat = [x for ch in seq for x in ch]
        s += ('pace', flat),
        for grp in range(6):
            n = ds * 6 + grp
            real = lambda m: m if m < 48 else 48 + ((m - 48) % 2) * 6 + (m - 48) // 2
            if n + 2 < 60:
                if (n + 2) % 12 == 0:
                    stg = 27 + (n + 2) // 12
                    tags = [f"st{stg}"] + (["Dst"] if stg == 28 else []) + ([f"gr{stg-1}"] if stg >= 30 else [])
                    s.append(I("s_barrier", tag_r=tags, wr=['stg2'], after=24 if stg < 30 else 30))
                s += g_reads(real(n + 2), 'stg2', n + 2)
            slot = vGA + (n % 3) * 8
            rds, rg = real(n) // 6, real(n) % 6
            B = BBUF[rds % 3]
            for j in range(4):
                for ks in range(2):
                    d = vr(acc3(rg, j), 4)
                    s.append(mfma(d, vr(slot + ks * 4, 4), rr((B[0], B[1] + (ks * 4 + j) * 4)), "0" if (ds == 0 and ks == 0) else d))
            if rds == 9 and rg % 2 == 1:
                s += h_epilogue(rg // 2)
                if rg // 2 < PAR("HE", 3): s += [HST.pop(0), HST.pop(0)]
        steps.append(s)
    assert not oe and not OST
    return steps
HST = []; OST = []
def h_epilogue(T3):
    s = []
    if True:
        for jp in range(2):
            o = vOP + ((T3 * 2 + jp) % 6) * 4
            for jj in range(2):
                j = jp * 2 + jj
                g = acc3(2 * T3, j); u = acc3(2 * T3 + 1, j)
                for i in range(4): s.append(I(f"v_mul_f32 v{g+i}, v{g+i}, v{u+i}"))
                for i in range(2): s.append(I(f"v_cvt_pk_bf16_f32 v{o+jj*2+i}, v{g+2*i}, v{g+2*i+1}"))
            for i in range(2): s.append(I(f"v_permlane32_swap_b32 v{o+i}, v{o+2+i}"))
            HST.append(I(f"buffer_store_dwordx4 {vr(o,4)}, v{vT}, {sr(sWS,4)}, s{sOffH+T3} offen offset:{2048*jp} sc1", tag_w="Hst"))
    return s
def join_steps(steps, n=48):
    out = []
    for k, s in enumerate(steps):
        base = k * n
        for x in s:
            if isinstance(x, tuple):
                if any(y.kind == 'vmem' for y in x[1]): pace(x[1], base, base + n - 1)
                out += x[1]
            else:
                if x.after is not None: x.after += base
                out.append(x)
    return out

def gen_fallback():
    F = Prog()
    vK = 232; vS = 176; vP = 208
    vf, vv, va = 48, 49, 50
    sK_, sV_ = sK, sV
    def kload():
        return [I(f"buffer_load_dwordx4 {vr(vK+4*p,4)}, v{vf}, {sr(sK_,4)}, s{sT0} offen offset:{64*p}") for p in range(6)] + L(f"s_add_u32 s{sT0}, s{sT0}, 6144")
    def chains(kt, c0):
        s = []
        for j in range(4):
            d = vr(vS + (j * 2 + kt) * 4, 4)
            for p in range(6): s.append(mfma(d, vr(vK + 4 * p, 4), vr(vQ + (p * 4 + j) * 4, 4), d if p else c0(j)))
        return s
    c = L("L_fb:\ns_waitcnt vmcnt(0) lgkmcnt(0)\ns_nop 15")
    c += L(f"""v_and_b32 v54, 15, v0
v_lshrrev_b32 v55, 4, v0
v_mul_u32_u24 v{vf}, 384, v54
v_lshl_add_u32 v{vf}, v55, 4, v{vf}
v_lshrrev_b32 v56, 3, v0
v_and_b32 v57, 7, v0
v_and_b32 v58, 6, v56
v_xor_b32 v57, v57, v58
v_mul_u32_u24 v{vv}, 384, v56
v_lshl_add_u32 v{vv}, v57, 4, v{vv}
v_lshrrev_b32 v56, 2, v54
v_lshl_add_u32 v56, v55, 2, v56
v_bfe_u32 v57, v56, 1, 2
v_lshlrev_b32 v56, 7, v56
v_and_b32 v58, 3, v0
v_lshl_add_u32 v56, v58, 3, v56
s_lshl_b32 s{sT2}, s{sW}, 12
s_add_u32 s{sT2}, s{sT2}, 57344
s_cmp_eq_u32 s{sW}, 0
s_cmov_b32 s{sT2}, 110592
s_cmp_eq_u32 s{sW}, 3
s_cmov_b32 s{sT2}, 81920
v_add_u32 v56, s{sT2}, v56""")
    for x in range(4): c += L(f"v_xor_b32 v58, {x}, v57\nv_lshl_add_u32 v{va+x}, v58, 5, v56")
    c += L(f"""s_mul_i32 s{sT1}, s{sH}, 786432
s_add_u32 s{sT1}, s{sT1}, {1536*384}
s_mov_b32 s{sT0}, s{sT1}
s_mov_b32 s{sSpin}, 0""")
    for j in range(4): c += L(f"v_mov_b32 v{vNm+4*j}, 0xff800000")
    F.block("a", c)
    c = L("L_fb1:") + kload() + chains(0, lambda j: "0")
    for j in range(4):
        a = vS + j * 8; m = vNm + 4 * j
        c += L(f"v_max3_f32 v{m}, v{m}, v{a}, v{a+1}\nv_max3_f32 v{m}, v{m}, v{a+2}, v{a+3}")
    c += L(f"s_add_u32 s{sSpin}, s{sSpin}, 1\ns_cmp_lt_u32 s{sSpin}, 32\ns_cbranch_scc1 L_fb1")
    F.block("b", c)
    c = []
    for j in range(4):
        m = vNm + 4 * j
        c += xreduce(m, m + 1, "v_max_f32")
        c += L(f"v_sub_f32 v{m+1}, 0, v{m}\nv_sub_f32 v{m+2}, 0, v{m}\nv_sub_f32 v{m+3}, 0, v{m}\nv_sub_f32 v{m}, 0, v{m}\nv_mov_b32 v{vLs+j}, 0")
    for i in range(192): c.append(I(f"v_accvgpr_write_b32 a{i}, 0"))
    c += L(f"s_mov_b32 s{sT0}, s{sT1}\ns_mov_b32 s{sSpin}, 0")
    F.block("c", c)
    c = L("L_fb2:")
    for kt in range(2): c += kload() + chains(kt, lambda j: vr(vNm + 4 * j, 4)) + L("s_nop 7")
    for j in range(4):
        for kt in range(2):
            a = vS + (j * 2 + kt) * 4
            for i in range(4): c.append(I(f"v_exp_f32 v{a+i}, v{a+i}"))
            for i in range(4): c.append(I(f"v_add_f32 v{vLs+j}, v{vLs+j}, v{a+i}"))
            for i in range(2): c.append(I(f"v_cvt_pk_bf16_f32 v{vP+j*4+kt*2+i}, v{a+2*i}, v{a+2*i+1}"))
    for cg in range(3):
        for a in range(4):
            c += L(f"""s_add_u32 m0, s{sT2}, {1024*a}
s_add_u32 s{sOffP}, s{sT1}, {3072*a+128*cg}
buffer_load_dwordx4 v{vv}, {sr(sV_,4)}, s{sOffP} offen lds""")
        c += L("s_waitcnt vmcnt(0)")
        for x in range(4):
            for u in range(2): c.append(I(f"ds_read_b64_tr_b16 {vr(vK+4*x+2*u,2)}, v{va+x} offset:{2048*u}"))
        c += L("s_waitcnt lgkmcnt(0)")
        for x in range(4):
            for j in range(4):
                d = ar(((cg * 4 + x) * 4 + j) * 4, 4)
                c.append(mfma(d, vr(vK + 4 * x, 4), vr(vP + 4 * j, 4), d))
        c += L("s_nop 7")
    c += L(f"s_add_u32 s{sT1}, s{sT1}, 12288\ns_add_u32 s{sSpin}, s{sSpin}, 1\ns_cmp_lt_u32 s{sSpin}, 16\ns_cbranch_scc1 L_fb2")
    F.block("d", c)
    c = []
    for j in range(4): c += xreduce(vLs + j, vTmp + j, "v_add_f32")
    for j in range(4): c.append(I(f"v_rcp_f32 v{vLs+j}, v{vLs+j}"))
    c += L("s_nop 15\ns_branch L_fb_back")
    F.block("e", c)
    F.trace = [("a", {}), ("b", {}), ("b", {}), ("c", {}), ("d", {}), ("d", {}), ("e", {})]
    F.insert_waits(); F.fix_hazards()
    return F.text()


def gen(dbg=False):
    P = Prog()
    OUTL.clear(); AD.clear(); HST.clear(); OST.clear()
    for i in range(2): AD[vWa + i] = Addr(vWa + i, sbase(0)); AD[vKa + i] = Addr(vKa + i, 0)
    for i in range(4): AD[vVa + i] = Addr(vVa + i, 0)
    AD[vRa] = Addr(vRa, sbase(12)); AD[vGa] = Addr(vGa, sbase(27))
    AD[vOA] = Addr(vOA, obase(0)); AD[vOB] = Addr(vOB, obase(0)); AD[vDA] = Addr(vDA, obase(24)); AD[vDB] = Addr(vDB, obase(24))
    nblk = [0]
    def blk(ins, name=None):
        nm = name or f"b{nblk[0]}"; nblk[0] += 1
        P.block(nm, ins); P.trace.append((nm, {}))
    CPA = PAR("CPA", 10000)
    cp = [3]
    def sch(s, name, **kw):
        if name.startswith("p2_") or name.startswith("p1_"):
            if "nost" in KN: s = [x for x in s if not (x.kind == 'vmem' and 'store_dwordx4' in x.text)]
            if "norl" in KN: s = [x for x in s if not (x.kind == 'vmem' and f"s[{sR}:{sR+3}]" in x.text)]
            if "kvhit" in KN: s = [x for x in s if not x.text.startswith((f"s_add_u32 s{sOffK}, s{sOffK}, 12288", f"s_add_u32 s{sOffV}, s{sOffV}, 12288"))]
            if "nobar" in KN: s = [x for x in s if x.kind != 'barrier']
            if "novm" in KN: s = [x for x in s if not (x.kind == 'vmem' and 'dwordx4' in x.text and 'v[48:51]' not in x.text)]
            if "novalu" in KN and name.startswith("p2_"): s = [x for x in s if not (x.kind in ('valu', 'trans') and x.text.startswith(('v_exp', 'v_add_f32', 'v_cvt')))]
        if name.startswith("p3"):
            if "p3nost" in KN: s = [x for x in s if not (x.kind == 'vmem' and 'store_dwordx4' in x.text)]
            if "p3nob" in KN: s = [x for x in s if not (x.kind == 'vmem' and 'load_dwordx4' in x.text and ' lds' not in x.text and f"s{sOffB} " in x.text)]
            if "p3novalu" in KN: s = [x for x in s if not (x.kind == 'valu' and x.text.startswith(('v_accvgpr', 'v_mul_f32', 'v_cvt')))]
            if "p3plain" in KN:
                for x in s:
                    if 'store_dwordx4' in x.text: x.text = x.text.replace(" sc1", "")
            if "p3nt" in KN:
                for x in s:
                    if 'store_dwordx4' in x.text: x.text = x.text.replace(" sc1", " sc1 nt")
        pos = sum(isize(x) for b in P.blocks for x in b[1]) * 1.03
        end = pos + sum(isize(x) for x in s) * 1.03
        nm = sum(1 for x in s if x.kind == 'mfma')
        while "nocp" not in KN and cp[0] * 8192 < end + CPA and cp[0] < NSLICE:
            g = int(max(0, min(nm - 2, (cp[0] * 8192 - CPA - pos) / (end - pos) * nm)))
            k = next((i for i, x in enumerate(s) if x.kind == 'vmem' and x.after is not None and x.after > g), len(s))
            cpl = I(f"global_load_dword v{vDum}, v{vL16}, s[62:63]", after=g); cpl.writes = set()
            s = s[:k] + [cpl, I("s_add_u32 s62, s62, 0x2000"), I("s_addc_u32 s63, s63, 0")] + s[k:]
            cp[0] += 1
        if "jitter" in KN:
            k = nblk[0]
            blk(L(f"""s_memtime s[90:91]
s_waitcnt lgkmcnt(0)
s_mul_i32 s90, s90, {2654435761 & 0x7fffffff}
s_lshr_b32 s90, s90, 20
s_and_b32 s91, s90, 7
s_cmp_lg_u32 s91, 0
s_cbranch_scc1 L_j{k}b
s_lshr_b32 s90, s90, 3
s_and_b32 s90, s90, {PAR("JM", 127)}
L_j{k}:
s_sleep 1
s_sub_u32 s90, s90, 1
s_cmp_gt_i32 s90, 0
s_cbranch_scc1 L_j{k}
L_j{k}b:"""))
        blk(schedule(s, name, verbose=dbg and "v" in KN, **kw), name)
    CC = math.log2(math.e) / math.sqrt(192.0)
    if "cpold" in KN:
        CP0 = f"""s_and_b32 s{sT2}, s{sT2}, 15
s_min_u32 s{sT2}, s{sT2}, CODE_SLICES-1
s_lshl_b32 s{sT2}, s{sT2}, 13
v_add_u32 v52, s{sT2}, v{vL128}
global_load_dword a{aDum}, v52, s[62:63]"""
    else:
        CP0 = f"""s_min_u32 s{sT2}, s{sT2}, CODE_SLICES*8-1
s_lshl_b32 s{sT2}, s{sT2}, 10
v_add_u32 v52, s{sT2}, v{vL16}
global_load_dword a{aDum}, v52, s[62:63]"""
    c = L(f"""s_cmp_ge_u32 s2, 256
s_cbranch_scc1 L_end
s_load_dwordx16 s[64:79], s[0:1], 0
s_load_dwordx8 s[80:87], s[0:1], 64
s_memrealtime s[{sSt}:{sSt+1}]
s_getpc_b64 s[62:63]
v_lshrrev_b32 v30, 6, v0
v_and_b32 v0, 63, v0
v_readfirstlane_b32 s{sW}, v30
v_lshlrev_b32 v{vL16}, 4, v0
v_lshlrev_b32 v{vL128}, 7, v0
v_and_b32 v48, 7, v0
v_lshrrev_b32 v49, 3, v0
v_mul_u32_u24 v60, 1280, v48
v_lshl_add_u32 v50, v49, 4, v60
v_lshl_add_u32 v50, v30, 7, v50
s_mul_i32 s{sT0}, s2, {8*1280}
s_and_b32 s{sT1}, s2, 7
s_lshr_b32 s{sT2}, s2, 3
s_and_b32 s{sH}, s{sT2}, 3
s_lshl2_add_u32 s{sH}, s{sT1}, s{sH}
s_lshr_b32 s{sB}, s{sT2}, 2
s_lshr_b32 s{sS}, s{sT1}, 1
s_and_b32 s{sT1}, s{sT1}, 1
s_lshl1_add_u32 s{sMb}, s{sB}, s{sT1}
s_and_b32 s{sNb}, s{sT2}, 3
v_cmp_eq_u32 vcc, 0, v0
v_bfrev_b32 v51, 1
v_cndmask_b32 v{vFo}, v51, 0, vcc
v_cmp_gt_u32 vcc, 2, v30
v_add_u32 v53, 1024, v50
v_cndmask_b32 v53, v51, v53, vcc
s_lshl2_add_u32 s{sT2}, s{sT2}, s{sW}
{CP0}
v_lshrrev_b32 v54, 4, v0
v_and_b32 v55, 15, v0
v_and_b32 v61, 6, v49
v_xor_b32 v61, v61, v48
v_lshlrev_b32 v61, 4, v61
v_mul_u32_u24 v62, 1280, v49
v_add_u32 v{vRo2}, v62, v61
v_and_b32 v62, 4, v49
v_add_u32 v62, v62, v49
v_mul_u32_u24 v62, 3072, v62
v_add_u32 v{vRo}, v62, v61
s_lshl_b32 s{sM4}, s{sW}, 13
s_add_u32 s{sM5}, s{sM4}, 49152
s_lshl2_add_u32 s{sQg}, s{sB}, s{sW}
s_mul_i32 s{sOffBB}, s{sQg}, {64*1280}""")
    if STAMPS: c += L(f"v_mov_b32 v{vSt}, 0")
    c += L("s_waitcnt lgkmcnt(0)")
    c += srd(sXin, pX, 2048 * 640 * 2)
    c += L(f"""buffer_load_dwordx4 v[64:67], v50, {sr(sXin,4)}, s{sT0} offen {os.environ.get("XF_", "")}
buffer_load_dwordx4 v[68:71], v50, {sr(sXin,4)}, s{sT0} offen offset:512 {os.environ.get("XF_", "")}
buffer_load_dwordx4 v[72:75], v53, {sr(sXin,4)}, s{sT0} offen {os.environ.get("XF_", "")}
buffer_load_ushort v76, v60, {sr(sXin,4)}, s{sT0} offen""")
    c += srd(sR, pDbg, 256)
    c += L(f"""s_or_b32 s{sNonce}, s{sSt}, 1
v_mov_b32 v56, s{sNonce}
v_mov_b32 v57, 0
s_or_b32 s{sT1}, s2, s{sW}
s_cmp_eq_u32 s{sT1}, 0
s_cselect_b32 s{sT1}, 0, 0x100
buffer_atomic_cmpswap v[56:57], v{vFo}, {sr(sR,4)}, s{sT1} offen sc1""")
    c += stamp(0)
    def rawdma(ds):
        r = []
        for a in range(8):
            r += L(f"s_add_u32 m0, s{sM4 if ds == 0 else sM5}, {a*1024}\ns_add_u32 s{sOffA}, s{sOffBB}, {a*8*1280+128*ds}")
            r.append(I(f"buffer_load_dwordx4 v{vRo2}, {sr(sXin,4)}, s{sOffA} offen {os.environ.get('RAWF', '')} lds", tag_w=f"raw{ds}"))
        return r
    def inter(vm, fill):
        ch = split(vm); out = []; per = -(-len(fill) // len(ch))
        for k, cc in enumerate(ch): out += cc + fill[k * per:(k + 1) * per]
        return out
    f1 = []
    for n in range(3):
        f1.append(I(f"v_add_u32 v61, {64*n}, v0"))
        f1 += divmod_const(62, 63, 61, 24)
        f1 += L(f"""v_and_b32 v57, 6, v62
v_xor_b32 v57, v63, v57
v_lshlrev_b32 v57, 4, v57
v_subrev_u32 v57, {1024*n}, v57
v_and_b32 v59, 4, v62
v_add_u32 v59, v59, v62
v_mul_u32_u24 v59, 12288, v59
v_add_u32 v{vWo+n}, v59, v57""")
    f1 += srd(sWq, pWq, 640 * 6144 * 2) + srd(sWS, pWs, WS_SIZE)
    f1 += L(f"""s_lshr_b32 s{sT0}, s{sW}, 1
s_and_b32 s{sOffY}, s{sW}, 1
s_lshl_b32 s{sT2}, s{sT0}, 5
s_lshl2_add_u32 s{sT2}, s{sOffY}, s{sT2}
s_mul_i32 s{sOffX}, s{sT2}, 12288
s_mul_i32 s{sT2}, s{sH}, 384
s_add_u32 s{sOffX}, s{sOffX}, s{sT2}
s_mul_i32 s{sM6}, s{sW}, 6144""")
    f2 = L(f"""v_lshrrev_b32 v56, 2, v55
v_and_b32 v57, 3, v0
v_lshl_add_u32 v58, v54, 2, v56
v_bfe_u32 v59, v58, 1, 2
v_mul_u32_u24 v62, 384, v58
v_add_u32 v62, {sbase(0)}, v62
v_lshlrev_b32 v63, 1, v59
v_xor_b32 v63, v63, v57
v_lshl_add_u32 v{vWa}, v63, 4, v62
v_xor_b32 v63, 4, v63
v_lshl_add_u32 v{vWa+1}, v63, 4, v62
v_bfe_u32 v{vPa}, v0, 2, 3
v_lshlrev_b32 v{vPa}, 7, v{vPa}
v_lshl_add_u32 v{vPa}, v57, 2, v{vPa}
v_lshlrev_b32 v{vSo}, 3, v55
v_lshlrev_b32 v62, 7, v55
v_and_b32 v63, 6, v55
v_xor_b32 v63, v63, v54
v_lshl_add_u32 v{vXo2}, v63, 4, v62
v_xor_b32 v63, 4, v63
v_lshl_add_u32 v{vXo2+1}, v63, 4, v62
v_add_u32 v{vXo}, s{sM4}, v{vXo2}
v_add_u32 v{vXo+1}, s{sM4}, v{vXo2+1}
v_add_u32 v{vXo2}, s{sM5}, v{vXo2}
v_add_u32 v{vXo2+1}, s{sM5}, v{vXo2+1}
v_lshlrev_b32 v58, 3, v48
v_add_u32 v58, {LN_X}, v58
v_lshl_add_u32 v59, v30, 6, v58
v_lshrrev_b32 v56, 2, v49
v_lshl_add_u32 v56, v30, 1, v56
v_lshlrev_b32 v56, 12, v56
v_and_b32 v57, 3, v49
v_lshl_add_u32 v56, v57, 8, v56
v_lshl_add_u32 v56, v48, 4, v56
v_add_u32 v57, {16*4096}, v56
v_cndmask_b32 v57, v51, v57, vcc
v_or_b32 v61, v49, v30
v_cmp_eq_u32 vcc, 0, v61
v_lshlrev_b32 v61, 3, v48
v_cndmask_b32 v61, v51, v61, vcc
s_lshr_b32 s{sT2}, s2, 3
s_mul_i32 s{sT2}, s{sT2}, {20*4096}
s_bfe_u32 s{sOffK}, s2, 0x20001
s_lshl_b32 s{sOffK}, s{sOffK}, 10
s_add_u32 s{sT2}, s{sT2}, s{sOffK}
s_and_b32 s{sOffK}, s2, 1
s_lshl_b32 s{sOffK}, s{sOffK}, 7
s_add_u32 s{sT2}, s{sT2}, s{sOffK}
s_add_u32 s{sOffK}, s{sT2}, {8*4096}
s_lshl_b32 s{sOffP}, s2, 6
s_add_u32 s{sOffP}, s{sOffP}, {hex(ST_OFF)}
s_lshr_b32 s{sSpin}, s{sW}, 1
s_sub_u32 s{sSpin}, s{sSpin}, 1
s_and_b32 s{sSpin}, s{sSpin}, 0x3f800000""")
    pfv = divmod_const(62, 63, 0, 3) + L(f"""v_mul_u32_u24 v62, 12288, v62
v_lshl_add_u32 v62, v63, 7, v62
v_cmp_gt_u32 vcc, 12, v0
v_cndmask_b32 v{vL128}, v51, v62, vcc
s_lshl_b32 s{sQd}, s{sQg}, 2
s_add_u32 s{sQd}, s{sQd}, 256
s_mul_i32 s{sQd}, s{sQd}, 12288
s_mul_i32 s{sOffG}, s{sH}, 384
s_add_u32 s{sQd}, s{sQd}, s{sOffG}""")
    if 'wpf' in KN: f2 += pfv
    for i in range(4): f2.append(I(f"v_mov_b32 v{vOne+i}, 0x3f803f80"))
    c += inter(rawdma(0), f1)
    c += inter(dma_stage(0), f2)
    c += L(f"v_mov_b32 v60, 0\nbuffer_load_dword v{vNon}, v60, {sr(sR,4)}, 0 offen sc1\ns_mov_b32 s{sT1}, s{sOffY}\ns_mov_b32 s{sT3}, s{sOffK}")
    su0 = L(f"""s_lshl_b32 s{sFl}, s2, 7
s_lshl2_add_u32 s{sFl}, s{sW}, s{sFl}
s_add_u32 s{sFl}, s{sFl}, {hex(FXN)}
s_lshl_b32 s{sFg}, s{sQg}, 10
s_add_u32 s{sFg}, s{sFg}, {hex(FXN)}
s_lshl_b32 s{sScale}, s{sQg}, 9
s_add_u32 s{sScale}, s{sScale}, {hex(ST_OFF)}
s_mul_i32 s{sOffB}, s{sQg}, {20*4096}
s_add_u32 s{sOffB}, s{sOffB}, {4*4096}
s_mul_i32 s{sM3}, s{sW}, 3072
s_mul_i32 s{sOffK}, s{sH}, 786432
s_add_u32 s{sOffK}, s{sOffK}, {1536*384}
s_add_u32 s{sOffK}, s{sOffK}, s{sM3}
s_mov_b32 s{sOffV}, s{sOffK}
s_lshr_b32 s{sPf}, s2, 3
s_lshl2_add_u32 s{sPf}, s{sPf}, s{sW}
s_and_b32 s{sPf}, s{sPf}, 7
s_lshl_b32 s{sPf}, s{sPf}, 10
s_add_u32 s{sPf}, s{sPf}, {3*8192}
s_add_u32 s62, s62, s{sPf}
s_addc_u32 s63, s63, 0""") + srd(sK, pK, 32 * 2048 * 192 * 2) + srd(sV, pV, 32 * 2048 * 192 * 2)
    wpf = lambda: ([prefetch(sWq, f"s{sQd}", os.environ.get("WPF", ""))] + L(f"s_add_u32 s{sQd}, s{sQd}, {128*12288}")) if "wpf" in KN else []
    vu = []
    for n in range(3):
        vu.append(I(f"v_add_u32 v61, {64*n}, v0"))
        vu += divmod_const(62, 63, 61, 24)
        vu += L(f"""v_and_b32 v57, 6, v62
v_xor_b32 v57, v63, v57
v_lshlrev_b32 v57, 4, v57
v_subrev_u32 v57, {1024*n}, v57
v_mul_u32_u24 v58, 384, v62
v_add_u32 v{vVo+n}, v58, v57
v_lshrrev_b32 v59, 1, v62
v_lshl_add_u32 v59, s{sW}, 2, v59
v_and_b32 v59, 7, v59
v_xor_b32 v59, v63, v59
v_lshlrev_b32 v59, 4, v59
v_subrev_u32 v59, {1024*n}, v59
v_add_u32 v{vKo+n}, v58, v59""")
    vu += L(f"""v_lshrrev_b32 v56, 2, v55
v_and_b32 v57, 3, v0
v_lshl_add_u32 v58, v54, 2, v56
v_bfe_u32 v59, v58, 1, 2
v_mul_u32_u24 v62, 384, v58
v_lshl_add_u32 v62, v57, 3, v62""")
    for x in range(4): vu += L(f"v_xor_b32 v63, {x}, v59\nv_lshl_add_u32 v{vVa+x}, v63, 5, v62")
    vu += L(f"""v_lshlrev_b32 v62, 7, v58
v_lshl_add_u32 v62, v57, 3, v62
v_xor_b32 v63, s{sW}, v59
v_lshl_add_u32 v62, v63, 5, v62
v_add_u32 v{vRa}, {sbase(12)}, v62
v_add_u32 v{vGa}, {sbase(27)}, v{vL16}
v_mul_u32_u24 v62, 384, v55
v_lshrrev_b32 v63, 1, v55
v_xor_b32 v63, v63, v54
v_lshl_add_u32 v{vKa}, v63, 4, v62
v_xor_b32 v63, 4, v63
v_lshl_add_u32 v{vKa+1}, v63, 4, v62""")
    for i in range(4): vu.append(I(f"v_mov_b32 v{vLs+i}, 0"))
    xr = L(f"""v_and_b32 v61, 7, v0
v_lshrrev_b32 v62, 3, v0
v_mul_u32_u24 v63, 1280, v61
v_lshl_add_u32 v63, v62, 4, v63
s_mul_i32 s{sOffY}, s2, {8*1280}
s_lshl_b32 s{sPf}, s{sW}, 7
s_add_u32 s{sOffY}, s{sOffY}, s{sPf}
buffer_load_dwordx4 a[244:247], v63, {sr(sXin,4)}, s{sOffY} offen
buffer_load_dwordx4 a[248:251], v63, {sr(sXin,4)}, s{sOffY} offen offset:512
buffer_load_dwordx4 a[252:255], v63, {sr(sXin,4)}, s{sOffY} offen offset:1024""")
    xs = L(f"""v_lshrrev_b32 v63, 2, v62
v_lshlrev_b32 v63, 12, v63
v_and_b32 v62, 3, v62
v_lshl_add_u32 v63, v62, 8, v63
v_lshl_add_u32 v63, v61, 4, v63
s_lshr_b32 s{sOffY}, s2, 3
s_mul_i32 s{sOffY}, s{sOffY}, {20*4096}
s_bfe_u32 s{sPf}, s2, 0x20001
s_lshl_b32 s{sPf}, s{sPf}, 10
s_add_u32 s{sOffY}, s{sOffY}, s{sPf}
s_and_b32 s{sPf}, s2, 1
s_lshl_b32 s{sPf}, s{sPf}, 7
s_add_u32 s{sOffY}, s{sOffY}, s{sPf}
s_lshl_b32 s{sPf}, s{sW}, 13
s_add_u32 s{sOffY}, s{sOffY}, s{sPf}
s_add_u32 s{sOffY}, s{sOffY}, {hex(XR_OFF)}""")
    for i in range(3):
        if i == 2: xs += L(f"s_cmp_lt_u32 s{sW}, 2\ns_cselect_b32 s{sOffY}, s{sOffY}, 0x40000000")
        xs.append(I(f"buffer_store_dwordx4 {ar(244+4*i,4)}, v63, {sr(sWS,4)}, s{sOffY} offen sc1", tag_w="Gst"))
        if i < 2: xs += L(f"s_add_u32 s{sOffY}, s{sOffY}, {8*4096}")
    c += L("v_lshlrev_b32 v76, 16, v76\nv_mov_b32 v77, v76")
    for i in range(12):
        c += L(f"v_lshlrev_b32 v{80+2*i}, 16, v{64+i}\nv_and_b32 v{81+2*i}, 0xffff0000, v{64+i}")
        c += L(f"v_pk_add_f32 v[{112+2*i}:{113+2*i}], v[{80+2*i}:{81+2*i}], v[76:77] neg_lo:[0,1] neg_hi:[0,1]")
    for i in range(12):
        a = 104 if i < 8 else 108
        d = vr(112 + 2 * i, 2)
        if i in (0, 8): c += L(f"v_pk_mul_f32 v[{a+2}:{a+3}], {d}, {d}\nv_mov_b32 v{a}, v{112+2*i}\nv_mov_b32 v{a+1}, v{113+2*i}")
        else: c += L(f"v_pk_fma_f32 v[{a+2}:{a+3}], {d}, {d}, v[{a+2}:{a+3}]\nv_pk_add_f32 v[{a}:{a+1}], v[{a}:{a+1}], {d}")
    c += L(f"""v_add_f32 v104, v104, v105
v_add_f32 v105, v106, v107
v_add_f32 v108, v108, v109
v_add_f32 v109, v110, v111
v_fmac_f32 v104, s{sSpin}, v108
v_fmac_f32 v105, s{sSpin}, v109
s_nop 1
v_add_f32_dpp v104, v104, v104 row_ror:8 row_mask:0xf bank_mask:0xf
v_add_f32_dpp v105, v105, v105 row_ror:8 row_mask:0xf bank_mask:0xf""")
    ra, rb = xreduce(104, 106, "v_add_f32"), xreduce(105, 107, "v_add_f32")
    for x, y in zip(ra, rb): c += [x, y]
    c += L(f"""ds_write_b64 v59, v[104:105]
s_waitcnt lgkmcnt(0)
s_barrier
ds_read_b64 v[104:105], v58
ds_read_b64 v[106:107], v58 offset:64
ds_read_b64 v[108:109], v58 offset:128
ds_read_b64 v[110:111], v58 offset:192
v_pk_add_f32 v[104:105], v[104:105], v[106:107]
v_pk_add_f32 v[108:109], v[108:109], v[110:111]
v_pk_add_f32 v[104:105], v[104:105], v[108:109]
v_mul_f32 v104, {hex(f2u(1.0/640))}, v104
v_mul_f32 v105, {hex(f2u(1.0/640))}, v105
v_fma_f32 v105, -v104, v104, v105
v_max_f32 v105, 0, v105
v_add_f32 v104, v104, v76
v_cvt_pk_bf16_f32 v104, v105, v104
v_and_b32 v108, 0xffff0000, v104
v_mov_b32 v109, v108""")
    for i in range(12):
        d = vr(80 + 2 * i, 2)
        c += L(f"""v_pk_add_f32 {d}, {d}, v[108:109] neg_lo:[0,1] neg_hi:[0,1]
v_cvt_pk_bf16_f32 v{64+i}, v{80+2*i}, v{81+2*i}""")
        if i == 3: c.append(I(f"buffer_store_dwordx4 v[64:67], v56, {sr(sWS,4)}, s{sT2} offen sc1", tag_w="Xst"))
        if i == 7: c.append(I(f"buffer_store_dwordx4 v[68:71], v56, {sr(sWS,4)}, s{sT3} offen sc1", tag_w="Xst"))
        if i == 11: c.append(I(f"buffer_store_dwordx4 v[72:75], v57, {sr(sWS,4)}, s{sT2} offen sc1", tag_w="Xst"))
    c += L(f"""v_lshlrev_b32 v104, 16, v104
v_add_f32 v104, {hex(f2u(1e-5))}, v104
v_cvt_pk_bf16_f32 v104, v104, v104
v_lshlrev_b32 v104, 16, v104
v_sqrt_f32 v104, v104
v_xor_b32 v106, 0x80000000, v108
v_cvt_pk_bf16_f32 v104, v104, v104
v_lshlrev_b32 v104, 16, v104
v_rcp_f32 v104, v104
s_nop 0
v_mul_f32 v107, {hex(f2u(CC))}, v104""")
    c.append(I(f"buffer_store_dwordx2 v[106:107], v61, {sr(sWS,4)}, s{sOffP} offen sc1", tag_w="Xst"))
    c += stamp(1)
    c += raw_reads(0)
    c.append(barrier(["st0", "rawrd0"]))
    c += w_reads0(0) + w_reads0(1)
    c += L(f"""v_readfirstlane_b32 s{sNonce}, v{vNon}
s_nop 3
s_cmp_lg_u32 s{sNonce}, 0
s_cbranch_scc0 L_nonce
L_nonce_ok:""")
    OUTL.append(("nonce", L(f"""L_nonce:
s_mov_b32 s{sSpin}, {SPIN_MAX}
L_nonce2:
buffer_load_dword v{vNon}, v60, {sr(sR,4)}, 0 offen sc1
s_waitcnt vmcnt(0)
v_readfirstlane_b32 s{sNonce}, v{vNon}
s_nop 3
s_cmp_lg_u32 s{sNonce}, 0
s_cbranch_scc1 L_nonce_ok
s_sub_u32 s{sSpin}, s{sSpin}, 1
s_cmp_lg_u32 s{sSpin}, 0
s_cbranch_scc1 L_nonce2
s_branch L_nonce_ok""")))
    c += stamp(2)
    blk(c, "pro")
    RM = PAR("RM", 2)
    sQ3, sH3 = 100, 101
    pre3 = f"""s_and_b32 s{sT2}, s2, 7
s_lshr_b32 s{sT3}, s2, 3
s_and_b32 s{sQ3}, s{sT2}, {(1 << (3 - RM)) - 1}
s_lshl_b32 s{sQ3}, s{sQ3}, {RM}
s_lshr_b32 s{sH3}, s{sT3}, {5 - RM}
s_add_u32 s{sQ3}, s{sQ3}, s{sH3}
s_lshl2_add_u32 s{sQ3}, s{sQ3}, s{sW}
s_lshr_b32 s{sH3}, s{sT2}, {3 - RM}
s_lshl_b32 s{sH3}, s{sH3}, {5 - RM}
s_and_b32 s{sT3}, s{sT3}, {(1 << (5 - RM)) - 1}
s_add_u32 s{sH3}, s{sH3}, s{sT3}"""
    su = L(pre3) + L(f"""s_mul_i32 s{sOffG}, s{sH3}, {20*6144}
s_add_u32 s{sOffG}, s{sOffG}, s{sM6}
s_add_u32 s{sOffG}, s{sOffG}, {hex(GP_OFF)}
s_lshl_b32 s{sM1}, s{sW}, 10
s_mul_i32 s{sM5}, s{sW}, 5120
s_lshl_b32 s{sM4}, s{sW}, 12
s_mul_i32 s{sT2}, s{sQg}, {240*4096}
s_add_u32 s{sT2}, s{sT2}, {hex(OH_OFF)}
s_mul_i32 s{sT3}, s{sH}, {6*4096}
s_add_u32 s{sOffO}, s{sT2}, s{sT3}
s_mul_i32 s{sT2}, s{sQ3}, {240*4096}
s_add_u32 s{sT2}, s{sT2}, {hex(OH_OFF + 192*4096)}
s_mul_i32 s{sT3}, s{sH3}, 3""")
    for T3 in range(3):
        su += L(f"""s_lshr_b32 s{sSpin}, s{sT3}, 1
s_lshl_b32 s{sSpin}, s{sSpin}, 12
s_add_u32 s{sOffH+T3}, s{sT2}, s{sSpin}
s_and_b32 s{sSpin}, s{sT3}, 1
s_lshl_b32 s{sSpin}, s{sSpin}, 9
s_add_u32 s{sOffH+T3}, s{sOffH+T3}, s{sSpin}
s_add_u32 s{sT3}, s{sT3}, 1""")
    su += L(f"""s_sub_u32 s{sT2}, s2, 240
s_min_u32 s{sT2}, s2, s{sT2}""")
    su += sdivmod(sT3, sSpin, sT2, 10)
    su += L(f"""s_lshl_b32 s{sOffRo}, s{sT3}, 8
s_lshl3_add_u32 s{sOffRo}, s{sW}, s{sOffRo}
s_mul_i32 s{sOffRo}, s{sOffRo}, 1280
s_lshl_b32 s{sFl}, s{sSpin}, 7
s_add_u32 s{sOffRo}, s{sOffRo}, s{sFl}
s_lshl_b32 s{sOffRd}, s{sT3}, 6
s_lshl4_add_u32 s{sOffRd}, s{sT1}, s{sOffRd}
s_lshl3_add_u32 s{sOffRd}, s{sT0}, s{sOffRd}
s_mul_i32 s{sOffRd}, s{sOffRd}, 1280
s_add_u32 s{sOffRd}, s{sOffRd}, s{sFl}
s_lshl2_add_u32 s{sSpin}, s{sSpin}, s{sW}""")
    su += sdivmod(sFl, sOffP, sSpin, 10)
    su += L(f"""s_mul_i32 s{sFl}, s{sFl}, 192
s_lshl3_add_u32 s{sFl}, s{sT3}, s{sFl}
s_mul_i32 s{sFl}, s{sFl}, 10
s_add_u32 s{sFl}, s{sFl}, s{sOffP}
s_lshl_b32 s{sFl}, s{sFl}, 10
s_add_u32 s{sOffDo}, s{sFl}, {hex(WOP_OFF)}""")
    su += sdivmod(sFl, sOffP, sSpin, 5)
    su += L(f"""s_mul_i32 s{sFl}, s{sFl}, 48
s_lshl1_add_u32 s{sFl}, s{sT3}, s{sFl}
s_mul_i32 s{sFl}, s{sFl}, 5
s_add_u32 s{sFl}, s{sFl}, s{sOffP}
s_lshl_b32 s{sFl}, s{sFl}, 10
s_add_u32 s{sOffDd}, s{sFl}, {hex(WDP_OFF)}""")
    su2 = sdivmod(sT3, sSpin, sT2, 48)
    su2 += [L(f"""s_cmp_ge_u32 s{sSpin}, 24
s_cselect_b32 s{pBx}, s{pWu}, s{pWg}
s_cselect_b32 s{pBx+1}, s{pWu+1}, s{pWg+1}
s_cselect_b32 s{sT2}, 1, 0
s_cselect_b32 s{sFl}, 24, 0""")]
    su2 += L(f"""s_sub_u32 s{sSpin}, s{sSpin}, s{sFl}
s_lshl_b32 s{sOffR}, s{sT3}, 7
s_lshl4_add_u32 s{sOffR}, s{sT1}, s{sOffR}
s_lshl2_add_u32 s{sOffR}, s{sT0}, s{sOffR}
s_mul_i32 s{sOffR}, s{sOffR}, 3072
s_lshl_b32 s{sFl}, s{sSpin}, 7
s_add_u32 s{sOffR}, s{sOffR}, s{sFl}
s_lshl2_add_u32 s{sSpin}, s{sSpin}, s{sW}""")
    su2 += sdivmod(sFl, sOffP, sSpin, 3)
    su2 += L(f"""s_mul_i32 s{sFl}, s{sFl}, 20
s_lshl2_add_u32 s{sFl}, s{sT3}, s{sFl}
s_mul_i32 s{sFl}, s{sFl}, 6
s_lshl1_add_u32 s{sFl}, s{sOffP}, s{sFl}
s_add_u32 s{sFl}, s{sFl}, s{sT2}
s_lshl_b32 s{sFl}, s{sFl}, 10
s_add_u32 s{sOffD}, s{sFl}, {hex(GP_OFF)}
s_lshl_b32 s{sFg}, s2, 2
s_add_u32 s{sFg}, s{sFg}, {hex(FG)}""")
    su2 += [L(f"s_cmp_eq_u32 s{sW}, 0\ns_cselect_b32 s{sFg}, s{sFg}, 0x40000000")]
    su2 += L(f"""s_lshr_b32 s{sT2}, s{sH}, 3
s_lshl2_add_u32 s{sFl}, s{sQg}, s{sT2}
s_lshl_b32 s{sFl}, s{sFl}, 7
s_and_b32 s{sT2}, s{sH}, 7
s_lshl2_add_u32 s{sFl}, s{sT2}, s{sFl}
s_add_u32 s{sFl}, s{sFl}, {hex(FO)}
s_mul_i32 s{sOffA}, s{sNb}, 192
s_mul_i32 s{sT2}, s{sS}, 48
s_add_u32 s{sOffA}, s{sOffA}, s{sT2}
s_mul_i32 s{sOffA}, s{sOffA}, 10240
s_add_u32 s{sOffA}, s{sOffA}, s{sM5}
s_add_u32 s{sOffA}, s{sOffA}, {hex(WOP_OFF)}
s_lshl1_add_u32 s{sOffBB}, s{sMb}, s{sT1}
s_mul_i32 s{sOffBB}, s{sOffBB}, 240
s_add_u32 s{sOffBB}, s{sOffBB}, s{sT2}
s_add_u32 s{sOffBB}, s{sOffBB}, s{sT0}
s_lshl_b32 s{sOffBB}, s{sOffBB}, 12
s_add_u32 s{sOffBB}, s{sOffBB}, {hex(OH_OFF)}
s_lshr_b32 s{sT2}, s{sS}, 1
s_lshl1_add_u32 s{sQd}, s{sMb}, s{sT2}""") + srd(sR, pBx, 640 * 1536 * 2)
    def weave(vm, sal):
        ch = split(vm); out = []
        per = -(-len(sal) // len(ch))
        for k, cc in enumerate(ch):
            out += cc
            for y in sal[k * per:(k + 1) * per]: out += y if isinstance(y, list) else [y]
        return out
    XH = PAR("XH", 15)
    XF = PAR("XF", 50); XQ = PAR("XQ", 110)
    q0a = pace(rawdma(1) + dma_stage(1), 0, PAR("Q0", 44)) + pace(dma_stage(2) + wpf() + dma_stage(3) + wpf(), 56, XH * 10 - 2)
    fl = set_flag(f"s{sFl}", "Xst", after=XF); pl_ = poll_load(vPd, vPa, f"s{sFg}", after=XQ)
    ch = split(q0a)
    for x in (fl, pl_):
        k = next((i for i, cc in enumerate(ch) if [y for y in cc if y.kind == 'vmem'][0].after > x.after), len(ch))
        ch.insert(k, [x])
    for k in range(8, 14): ch[k] = ch[k] + su0[(k - 8) * 1:(k - 7) * 1]
    ch[15] = ch[15] + su0[6:13]; ch[16] = ch[16] + su0[13:21]; ch[17] = ch[17] + su0[21:]
    for cc in ch:
        for x in cc: x.reads.discard('stg')
    sch(p1_first(0, XH, extra=[x for cc in ch for x in cc] + vu), "p1_0a", vm_min=3)
    fs = lambda k: blk(stamp(k)) if "fine1" in KN else None
    fs(14)
    blk(poll_cmp(vPd, 1) + poll_branch("xn", vPd, vPa, f"s{sFg}"))
    fs(15)
    bl = lambda k: b_loads(('a', 64 * (k % 2))) + b_loads(('a', 64 * (k % 2) + 32))
    sch(p1_first(XH, 24, extra=pace(bl(1), 0, 56)), "p1_0b", vm_min=3); fs(16)
    sch(p1_quad(1, vm=weave(dma_stage(4) + dma_stage(5) + wpf() + stat_loads() + bl(2), su)), "p1_1"); fs(17)
    sch(p1_quad(2, vm=weave(dma_stage(6) + dma_stage(7) + bl(3), su2)), "p1_2"); fs(18)
    sch(p1_quad(3, vm=dma_stage(8) + dma_stage(9) + bl(4) + dma_stage(10)), "p1_3")
    if "stagtest" in KN:
        blk(L(f"""s_and_b32 s{sSpin}, s{sH}, 1
s_mul_i32 s{sSpin}, s{sSpin}, 150
L_stag:
s_cmp_eq_u32 s{sSpin}, 0
s_cbranch_scc1 L_stag2
s_sleep 1
s_sub_u32 s{sSpin}, s{sSpin}, 1
s_branch L_stag
L_stag2:"""))
    blk(stamp(3))
    MERGE = "nomerge" not in KN
    big = p1_quad(4, vm=dma_stage(11) + dma_stage(12)) + first_tile(192) + p2_iter(0, base=192 + 48)
    nbig = 336
    if not MERGE:
        sch(big, "p1_last"); big = []; nbig = 0
    blk(stamp(4))
    GC = PAR("GC", 9)
    XP = PAR("XP", 9)
    for t in range(1, 14):
        ex = []; post = []; btag = []
        if "tlb" in KN and t == PAR("TT", 8):
            x = I(f"buffer_load_dword v{vDum}, v60, {sr(sWS,4)}, 0 offen"); x.writes = set()
            ex += L(f"v_lshlrev_b32 v60, {PAR('TS', 21)}, v0") + [x]
        OT0 = PAR("OT0", 1); OTN = PAR("OTN", 2)
        if "otouch" in KN and OT0 <= t and (t - OT0) * OTN < 24:
            if t == OT0: ex += L(f"s_mov_b32 s{sScale}, s{sOffO}")
            for k in range(OTN):
                x = I(f"buffer_load_dwordx4 v[56:59], v{vL16}, {sr(sWS,4)}, s{sScale} offen offset:{1024*k} {os.environ.get('OTF', 'sc1')}")
                if (t - OT0 + 1) * OTN < 24 or k < OTN - 1: x.writes = set()
                ex.append(x)
            ex += L(f"s_add_u32 s{sScale}, s{sScale}, {1024*OTN}")
        if "tl1" in KN and t == PAR("TT", 11):
            for so in (sOffO, sOffH0, sOffA, sOffBB):
                x = I(f"buffer_load_dword v{vDum}, v{vFo}, {sr(sWS,4)}, s{so} offen sc1"); x.writes = set(); ex.append(x)
        if t == 1: ex += xr
        if t == 3: ex += xs
        if t == 5: btag = ["Gst"]
        if t == 6: ex += [set_flag(f"s{sFg}", None)] + L(f"s_add_u32 s{sFg}, s{sFg}, {FW-FG}")
        if t == GC + 1: gq = split(dma_stage(27) + dma_stage(28))
        if GC < t <= 12:
            n_ = -(-len(gq) // 3 // (13 - t)) * 3
            ex += [x for ch in gq[:n_] for x in ch]; gq = gq[n_:]
        if t == GC - 1: ex += L(f"s_mov_b32 s{sT0}, {hex(FG)}") + [poll_load(vTmp, vL16, f"s{sT0}", 4)]
        if t == GC: post += late(poll_cmp(vTmp, 4), nbig + 60)
        XN_ = PAR("XN", 3)
        if "xpf" in KN and XP <= t <= 13:
            assert XP > GC and RM == 2
            if t == XP: ex += L(f"""s_and_b32 s{sPf}, s{sH3}, 7
s_lshl_b32 s{sPf}, s{sPf}, 10
s_mul_i32 s{sT2}, s{sQ3}, {20*4096}
s_add_u32 s{sPf}, s{sPf}, s{sT2}""")
            for k in range(XN_):
                if (t - XP) * XN_ + k < 10:
                    x = I(f"buffer_load_dwordx4 v[60:63], v{vL16}, {sr(sWS,4)}, s{sPf} offen sc1")
                    if (t - XP) * XN_ + k < 9: x.writes = set()
                    ex += [x] + L(f"s_add_u32 s{sPf}, s{sPf}, 8192")
        big += p2_iter(t, base=nbig, extra=ex, post=post, btag=btag); nbig += 96
        if not MERGE or t == GC:
            sch(big, f"p2_{t}"); big = []; nbig = 0
        if t == GC and "stagtest" not in KN: blk(poll_branch("g", vTmp, vL16, f"s{sT0}", 4))
    blk(stamp(5))
    sch(big + p2_iter(14, base=nbig, btag=["Wst", "st27"]) + tail_pv(nbig + 96), "tail", vm_min=3)
    blk(L("s_cbranch_vccnz L_fb\nL_fb_back:") + stamp(6))
    steps = p3_steps()
    setup = L(f"""v_and_b32 v{vT}, 32, v0
v_lshlrev_b32 v{vT}, 4, v{vT}
v_add_u32 v{vT}, v{vT}, v{vL16}
s_and_b32 s{sT3}, s{sW}, 1
s_lshl1_add_u32 s{sT1}, s{sMb}, s{sT3}
s_lshl2_add_u32 s{sT1}, s{sT1}, s{sS}
s_lshl_b32 s{sT1}, s{sT1}, 7
s_add_u32 s{sT1}, s{sT1}, {hex(FO)}
v_and_b32 v{vFa}, 7, v0
v_lshlrev_b32 v{vFa}, 2, v{vFa}
s_mul_i32 s{sT3}, s{sT3}, 5120
s_add_u32 s{sT3}, s{sT3}, {obase(0)}
v_add_u32 v{vOA}, s{sT3}, v{vL16}
s_lshr_b32 s{sT2}, s{sW}, 1
s_lshl_b32 s{sT2}, s{sT2}, 12
s_add_u32 s{sT2}, s{sT2}, {20480+obase(0)}
v_add_u32 v{vOB}, s{sT2}, v{vL16}
v_add_u32 v{vDA}, {obase(24)}, v{vL16}
s_and_b32 s{sT2}, s{sW}, 1
s_lshl_b32 s{sT2}, s{sT2}, 12
v_add_u32 v{vWr}, s{sT2}, v{vL16}
s_mov_b32 s{sOffR}, s{sOffA}
s_and_b32 s{sT2}, s{sH}, 7
s_mul_i32 s{sT3}, s{sT2}, {3*20480}
s_add_u32 s{sOffA}, s{sOffA}, s{sT3}
s_mov_b32 s{sAend}, s{sOffA}
s_add_u32 s{sAbeg}, s{sOffA}, {3*20480}
s_mul_i32 s{sT3}, s{sT2}, {3*8192}
s_add_u32 s{sBend}, s{sOffBB}, s{sT3}
s_add_u32 s{sBbeg}, s{sBend}, {3*8192}""")
    def ownw(sg):
        base = obase(sg) + 20480
        r = L(f"s_lshr_b32 s{sT2}, s{sW}, 1\ns_xor_b32 s{sT2}, s{sT2}, s{sMb}\ns_bitcmp1_b32 s{sT2}, 0\ns_cbranch_scc1 L_ow{sg}\nv_add_u32 v38, {base}, v{vWr}")
        for ks in range(2):
            for j in range(4):
                x = I(f"ds_write_b128 v38, {ar((8*(2*sg+ks)+j)*4,4)} offset:{ks*8192+j*1024}"); x.kind = 'wait'; r.append(x)
        x = I("s_waitcnt lgkmcnt(0)"); x.kind = 'label'; r.append(x)
        return r + L(f"L_ow{sg}:")
    for k in range(9):
        body = (setup if k == 3 else []) + join_steps(steps[k:k+1] if k < 8 else steps[8:])
        if k == 8:
            OB0 = PAR("OB0", 74)
            tailr = [I("s_barrier", tag_r="ot0", wr=['stg'], rd=['stg2'], after=OB0)] + o_reads(0)
            if OB0 < 70:
                idx = [i for i, x in enumerate(body) if x.kind == 'mfma'][OB0 - 8]
                body = body[:idx] + tailr + body[idx:]
            else: body += tailr
        sch(body, f"p3s{k}", vm_min=2)
        if k == WC and "stagtest" not in KN: blk(poll_cmp(vFl, 4) + poll_branch("w", vFl, vL16, f"s{sT0}", 4))
        if k == OC and "stagtest" not in KN: blk(poll_cmp(vFo2, 1) + poll_branch("o", vFo2, vFa, f"s{sT1}"))
        if k in (5, 6, 7): blk(ownw(k - 5))
        if "fine" in KN: blk(stamp(14 + k))
    c = stamp(7) + stamp(8)
    if OC == 9:
        c += dmaB(0) + dmaB(1) + dmaB(2)
        c.append(I("s_barrier", tag_r="ot0"))
        c += o_reads(0)
    c += stamp(9)
    blk(c, "o_pro")
    osetup = L(f"""s_lshl_b32 s{sT1}, s{sMb}, 8
s_add_u32 s{sT1}, s{sT1}, {hex(FH)}
v_lshlrev_b32 v{vFa}, 2, v0
s_and_b32 s{sT2}, s{sS}, 1
s_lshl1_add_u32 s{sT2}, s{sNb}, s{sT2}
s_lshr_b32 s{sT3}, s{sS}, 1
s_lshl1_add_u32 s{sOffRo}, s{sT2}, s{sT3}
s_mul_i32 s{sOffRo}, s{sOffRo}, {24*5120}
s_lshl_b32 s{sM3}, s{sW}, 13
s_add_u32 s{sOffRo}, s{sOffRo}, s{sM3}
s_add_u32 s{sOffRo}, s{sOffRo}, {hex(WDP_OFF)}
s_mul_i32 s{sT2}, s{sT2}, 160
s_lshl2_add_u32 s{sOffO}, s{sQd}, s{sW}
s_mul_i32 s{sOffO}, s{sOffO}, {16*1280}
s_add_u32 s{sOffO}, s{sOffO}, s{sT2}
s_mul_i32 s{sT3}, s{sT3}, 24
s_add_u32 s{sT3}, s{sT3}, 192
s_lshl_b32 s{sT3}, s{sT3}, 12
s_add_u32 s{sT3}, s{sT3}, s{sM1}
s_add_u32 s{sT3}, s{sT3}, {hex(OH_OFF)}
s_xor_b32 s{sOffRd}, s{sQd}, 1
s_mul_i32 s{sOffRd}, s{sOffRd}, {240*4096}
s_add_u32 s{sOffRd}, s{sOffRd}, s{sT3}
s_mul_i32 s{sOffG}, s{sQd}, {240*4096}
s_add_u32 s{sOffG}, s{sOffG}, s{sT3}
s_lshl2_add_u32 s{sT0}, s{sMb}, s{sNb}
s_lshl2_add_u32 s{sT3}, s{sT0}, s{sS}
s_lshl2_add_u32 s{sT2}, s{sT3}, s{sW}
s_mul_i32 s{sOffP}, s{sT2}, 10240
s_add_u32 s{sOffP}, s{sOffP}, {hex(PART_OFF)}
s_lshl2_add_u32 s{sFl}, s{sT0}, s{sW}
s_lshl_b32 s{sFl}, s{sFl}, 7
s_lshl2_add_u32 s{sFl}, s{sS}, s{sFl}
s_add_u32 s{sFl}, s{sFl}, {hex(FP)}
v_and_b32 v{vOa}, 15, v0
v_mul_u32_u24 v{vOa}, 1280, v{vOa}
v_lshrrev_b32 v{vPo}, 4, v0
v_lshl_add_u32 v{vOa}, v{vPo}, 3, v{vOa}
v_and_b32 v{vFa2}, 7, v0
v_lshlrev_b32 v{vFa2}, 2, v{vFa2}""") + srd(sOut, pOut, 2048 * 640 * 2) + L(f"""s_lshl_b32 s{sFg}, s{sT3}, 7
s_add_u32 s{sFg}, s{sFg}, {hex(FP)}
s_lshl4_add_u32 s{sT2}, s{sT0}, s{sS}
s_mul_i32 s{sOffK}, s{sT2}, 10240
s_add_u32 s{sOffK}, s{sOffK}, {hex(PART_OFF)}
s_lshl2_add_u32 s{sT2}, s{sT3}, s{sW}
s_mul_i32 s{sOffD}, s{sT2}, 2560
s_add_u32 s{sOffD}, s{sOffD}, {hex(HP_OFF)}
s_xor_b32 s{sT2}, s{sT2}, 8
s_mul_i32 s{sOffDo}, s{sT2}, 2560
s_add_u32 s{sOffDo}, s{sOffDo}, {hex(HP_OFF)}
s_xor_b32 s{sOffDd}, s{sFg}, 0x100
s_lshl2_add_u32 s{sOffDd}, s{sW}, s{sOffDd}
s_add_u32 s{sOffDd}, s{sOffDd}, 16""")
    assert len(osetup) <= 60
    OM = [int(x) for x in os.environ.get('OM', '0,15,15,37,60').split(',')]
    opoll = L(f"s_mov_b32 s{sOffB}, s{sT1}\nv_mov_b32 v39, v{vFa}") + [poll_load(vFo2, 39, f"s{sOffB}")]
    for sg in range(4):
        ex = []; dbo = None
        if EARLY:
            if sg == 0: dbo = dmaB(3) + dmaA(3) + dmaB(4)
            if sg == 1: dbo = dmaA(4) + dmaB(5) + dmaA(5)
        else:
            if sg == 0: dbo = dmaA(3) + dmaA(4)
            if sg == 1: dbo = dmaB(3) + dmaB(4) + dmaB(5) + dmaA(5)
        HS0 = PAR("HS0", 0); hm = (len(HST) + HS0) // 2
        if sg == 0: ex = HST[:HS0]
        if sg == 2: ex = HST[HS0:hm] + L(f"s_mov_b32 s{sOffV}, {hex(FW2)}") + [poll_load(48, vL16, f"s{sOffV}", 4)]
        if sg == 3: ex = HST[hm:] + L(f"s_add_u32 s{sQg}, s{sQg}, {hex(FH)}")
        pre = ([] if EARLY else opoll) + L(f"s_lshl_b32 s{sQg}, s{sQ3}, 7\ns_lshl2_add_u32 s{sQg}, s{sH3}, s{sQg}") if sg == 0 else []
        sch(o_block(sg, ex, pre=pre, mid=osetup[OM[sg]:OM[sg + 1]], dbo=dbo), f"o{sg}", vm_min=2)
        if sg == 0 and not EARLY: blk(poll_cmp(vFo2, 1) + poll_branch("o", vFo2, 39, f"s{sOffB}"))
        if "fine2" in KN: blk(stamp(16 + sg))
    if "ostatic" in KN:
        for sg in range(4, 20):
            ex = []
            if sg == 4: ex = [set_flag(f"s{sQg}", "Hst")]
            if sg == 15: ex = [poll_load(vFl, vFa, f"s{sT1}")]
            sch(o_block(sg, ex), f"o{sg}", vm_min=3)
    else:
        base_state = {r: AD[r].base for r in (vOA, vOB)}
        if "fine2" in KN: blk(stamp(14))
        P.block("ol_top", L(f"s_mov_b32 s{sH}, 0") + L(".p2align 6\nL_o:")); P.trace.append(("ol_top", {}))
        lb = []
        NIT = PAR('NIT', 4)
        for q in range(4):
            ex = L(f"s_cmp_eq_u32 s{sH}, {NIT-1}\ns_cselect_b32 s{sT2}, s{sT1}, 0x40000000") + [poll_load(vFl, vFa, f"s{sT2}")] if q == 0 else []
            if q == 3: ex = L(f"s_cmp_eq_u32 s{sH}, 0\ns_cselect_b32 s{sT2}, s{sQg}, 0x40000000") + [set_flag(f"s{sT2}", "Hst")]
            b = o_block(4 + q, ex)
            for x in b:
                for attr in ('tag_r', 'tag_w'):
                    t = getattr(x, attr)
                    if t is None: continue
                    if t == "Hst": continue
                    ts = t if isinstance(t, list) else [t]
                    setattr(x, attr, (lambda ts: lambda env: [u[:2] + str(int(u[2:]) + 4 * env['it']) for u in ts])(ts))
            if "ohitA" in KN: b = [x for x in b if not x.text.startswith(f"s_add_u32 s{sOffA}, s{sOffA}")]
            if "ohitB" in KN: b = [x for x in b if not x.text.startswith(f"s_add_u32 s{sOffBB}, s{sOffBB}")]
            if "onods" in KN: b = [x for x in b if x.kind != 'ds']
            if "onodma" in KN: b = [x for x in b if not (x.kind == 'vmem' and ' lds' in x.text)]
            if "onobar" in KN: b = [x for x in b if x.kind != 'barrier']
            if "onosc1" in KN:
                for x in b:
                    if ' lds' in x.text: x.text = x.text.replace(" sc1", "")
            b = schedule(b, f"ol{q}", verbose=dbg and "v" in KN, vm_min=3)
            if q == 3: b += L(f"s_add_u32 s{sH}, s{sH}, 1\ns_cmp_lt_u32 s{sH}, {NIT}\ns_cbranch_scc1 L_o")
            P.block(f"ol{q}", b)
        assert base_state == {r: AD[r].base for r in (vOA, vOB)}, "loop address state"
        for it in range(NIT): P.trace += [(f"ol{q}", {'it': it}) for q in range(4)]
    if "rewind" in KN:
        pos = sum(isize(x) for b_ in P.blocks for x in b_[1]) * 1.03
        new = int(pos + 1500) // 8192
        if new < cp[0]:
            blk(L(f"s_sub_u32 s62, s62, {(cp[0]-new)*8192}\ns_subb_u32 s63, s63, 0")); cp[0] = new
    if "fine2" in KN: blk(stamp(15))
    blk(poll_cmp(48, 4) + poll_branch("w2", 48, vL16, f"s{sOffV}", 4))
    blk(poll_cmp(vFl, 1) + poll_branch("h", vFl, vFa, f"s{sT1}"))
    dsetup = L(f"""s_lshl_b32 s{sT2}, s{sW}, 11
v_add_u32 v45, s{sT2}, v{vL16}
s_lshl_b32 s{sT2}, s{sW}, 9
s_add_u32 s{sT2}, s{sT2}, 8192
v_and_b32 v46, 31, v0
v_lshlrev_b32 v46, 4, v46
v_lshrrev_b32 v39, 5, v0
v_lshl_add_u32 v46, v39, 3, v46
v_add_u32 v46, s{sT2}, v46
v_add_u32 v47, {LDS_X}, v{vL16}
v_and_b32 v38, 15, v0
v_mul_u32_u24 v38, 1280, v38
v_bfe_u32 v39, v0, 4, 1
v_lshl_add_u32 v38, v39, 5, v38
v_lshrrev_b32 v39, 5, v0
v_lshl_add_u32 v38, v39, 4, v38
s_cmp_eq_u32 s{sW}, s{sS}
s_cmov_b32 s{sOffP}, 0x40000000""")
    NB1 = [int(x) for x in os.environ.get("NB1", "4,4,5,5").split(",")]
    nb1 = 0
    dsetup += L(f"s_mov_b32 s{sOffBB}, s{sOffG}\nv_lshlrev_b32 v37, 3, v0")
    for sg in range(20, 24):
        ex = [x for k in range(nb1, nb1 + NB1[sg - 20]) for x in d_bload(0, k)]; nb1 += NB1[sg - 20]
        sch(o_block(sg, ex, mid=dsetup if sg == 23 else []), f"o{sg}", vm_min=2)
    blk(stamp(10))
    def dsch(s, name):
        if "jitter" in KN: sch([], name + "j")
        blk(s, name)
    vQ4, vQ2, vLw, vOw = 45, 46, 47, 38
    def pk(dst, t, j):
        a = vAc + (t * 4 + j) * 4
        return L(f"v_cvt_pk_bf16_f32 v{dst}, v{a}, v{a+1}\nv_cvt_pk_bf16_f32 v{dst+1}, v{a+2}, v{a+3}")
    pkall = []; ps = []; n = 0
    for j in range(4):
        for tp in range(2):
            o = vPk + n * 4
            pkall += pk(o, 2 * tp, j) + pk(o + 2, 2 * tp + 1, j)
            it = [I(f"buffer_store_dwordx4 {vr(o,4)}, v{vL16}, {sr(sWS,4)}, s{sOffP} offen offset:{(n%4)*1024} sc1", tag_w="Pst")]
            n += 1
            if n % 4 == 0: it.append(I(f"s_add_u32 s{sOffP}, s{sOffP}, 4096"))
            ps.append(it)
    for jp in range(2):
        o = vPk + n * 4
        pkall += pk(o, 4, 2 * jp) + pk(o + 2, 4, 2 * jp + 1)
        ps.append(L(f"v_permlane32_swap_b32 v{o}, v{o+2}\nv_permlane32_swap_b32 v{o+1}, v{o+3}") + [I(f"buffer_store_dwordx4 {vr(o,4)}, v{vL16}, {sr(sWS,4)}, s{sOffP} offen offset:{jp*1024} sc1", tag_w="Pst")])
        n += 1
    own = L(f"s_cmp_lg_u32 s{sW}, s{sS}\ns_cbranch_scc1 L_own")
    for k in range(10):
        x = I(f"ds_write_b128 v{vLw}, {vr(vPk+4*k,4)} offset:{1024*k}"); x.kind = 'wait'; own.append(x)
    x = I("s_waitcnt lgkmcnt(0)"); x.kind = 'label'; own.append(x)
    own += L("L_own:")
    xl = L(f"""s_and_b32 s{sT2}, s{sS}, 1
s_lshl1_add_u32 s{sT2}, s{sNb}, s{sT2}
s_mul_i32 s{sT2}, s{sT2}, 10
s_mul_i32 s{sT3}, s{sQd}, {20*4096}
s_add_u32 s{sT3}, s{sT3}, s{sM1}
s_add_u32 s{sT3}, s{sT3}, {hex(XR_OFF)}
v_bfe_u32 v2, v0, 4, 1
v_lshrrev_b32 v3, 5, v0
v_lshl_add_u32 v4, v2, 1, v3
v_add_u32 v4, s{sT2}, v4
v_and_b32 v5, 15, v0
v_lshlrev_b32 v5, 4, v5
v_lshrrev_b32 v6, 2, v4
v_lshl_add_u32 v6, v6, 12, v5
v_and_b32 v4, 3, v4
v_lshl_add_u32 v6, v4, 8, v6
v_add_u32 v7, 4096, v6
v_add_u32 v4, s{sT2}, v3
v_add_u32 v4, 8, v4
v_lshrrev_b32 v8, 2, v4
v_lshl_add_u32 v8, v8, 12, v5
v_and_b32 v4, 3, v4
v_lshl_add_u32 v8, v4, 8, v8
v_lshl_add_u32 v8, v2, 3, v8
buffer_load_dwordx4 {vr(vXr,4)}, v6, {sr(sWS,4)}, s{sT3} offen sc1
buffer_load_dwordx4 {vr(vXr+4,4)}, v7, {sr(sWS,4)}, s{sT3} offen sc1
buffer_load_dwordx2 {vr(vXr+8,2)}, v8, {sr(sWS,4)}, s{sT3} offen sc1
s_lshl2_add_u32 s{sT2}, s{sQd}, s{sW}
s_lshl_b32 s{sT2}, s{sT2}, 7
s_add_u32 s{sT2}, s{sT2}, {hex(ST_OFF)}
v_lshrrev_b32 v9, 1, v5
buffer_load_dword v10, v9, {sr(sWS,4)}, s{sT2} offen offset:4 sc1""")
    pl = []
    for i in range(1, 4):
        pl += L(f"s_add_u32 s{sT2}, s{sS}, {i}\ns_and_b32 s{sT2}, s{sT2}, 3\ns_mul_i32 s{sT2}, s{sT2}, {4*10240}\ns_add_u32 s{sT2}, s{sT2}, s{sOffK}")
        for tp in range(2): pl.append(I(f"buffer_load_dwordx4 {vr(vPl+i*12+tp*4,4)}, v{vQ4}, {sr(sWS,4)}, s{sT2} offen offset:{1024*tp} sc1"))
        pl.append(I(f"buffer_load_dwordx2 {vr(vPl+i*12+8,2)}, v{vQ2}, {sr(sWS,4)}, s{sT2} offen sc1"))
    ownrd = L(f"""v_add_u32 v{vLw}, {LDS_X}, v{vQ4}
ds_read_b128 {vr(vPl,4)}, v{vLw}
ds_read_b128 {vr(vPl+4,4)}, v{vLw} offset:1024
v_add_u32 v{vLw}, {LDS_X}, v{vQ2}
ds_read_b64 {vr(vPl+8,2)}, v{vLw}""")
    t0 = 112; vSm = 164; vXf = 184
    xun = []
    for tp in range(2):
        for i in range(2): xun.append(I(f"v_permlane16_swap_b32 v{vXr+4*tp+i}, v{vXr+4*tp+2+i}"))
    for k in range(10): xun += L(f"v_lshlrev_b32 v{vXf+2*k}, 16, v{vXr+k}\nv_and_b32 v{vXf+2*k+1}, 0xffff0000, v{vXr+k}")
    k2 = (math.sqrt(192.0) / math.log2(math.e)) ** 2
    xun += L(f"v_mul_f32 v10, v10, v10\nv_mul_f32 v10, {hex(f2u(k2))}, v10\nv_mul_f32 v11, {hex(f2u(-math.log2(math.e)))}, v10")
    own0 = []
    for k in range(10): own0 += L(f"v_lshlrev_b32 v{vSm+2*k}, 16, v{vPl+k}\nv_and_b32 v{vSm+2*k+1}, 0xffff0000, v{vPl+k}\nv_mul_f32 v{vSm+2*k}, v10, v{vSm+2*k}\nv_mul_f32 v{vSm+2*k+1}, v10, v{vSm+2*k+1}")
    psum = []
    for i in range(1, 4):
        for k in range(10):
            s_ = vPl + i * 12 + k; u = 132 + (k % 4) * 2
            psum += L(f"v_lshlrev_b32 v{u}, 16, v{s_}\nv_and_b32 v{u+1}, 0xffff0000, v{s_}\nv_fmac_f32 v{vSm+2*k}, v10, v{u}\nv_fmac_f32 v{vSm+2*k+1}, v10, v{u+1}")
    fin = []
    for t in range(5):
        h = vDc + 4 * t
        for i in range(4): fin += L(f"v_mul_f32 v{t0+4*t+i}, v11, v{h+i}\nv_exp_f32 v{t0+4*t+i}, v{t0+4*t+i}")
        for i in range(4): fin += L(f"v_mul_f32 v{h+i}, v{h+i}, v{vSm+4*t+i}")
        for i in range(4): fin += L(f"v_add_f32 v{t0+4*t+i}, 1.0, v{t0+4*t+i}\nv_rcp_f32 v{t0+4*t+i}, v{t0+4*t+i}")
        for i in range(4): fin.append(I(f"v_fmac_f32 v{vXf+4*t+i}, v{h+i}, v{t0+4*t+i}"))
        for i in range(2): fin.append(I(f"v_cvt_pk_bf16_f32 v{vXr+2*t+i}, v{vXf+4*t+2*i}, v{vXf+4*t+2*i+1}"))
        if t in (1, 3):
            tp = t // 2
            for i in range(2): fin.append(I(f"v_permlane16_swap_b32 v{vXr+4*tp+i}, v{vXr+4*tp+2+i}"))
            fin.append(I(f"buffer_store_dwordx4 {vr(vXr+4*tp,4)}, v{vOw}, {sr(sOut,4)}, s{sOffO} offen offset:{64*tp}"))
    fin.append(I(f"buffer_store_dwordx2 {vr(vXr+8,2)}, v{vOa}, {sr(sOut,4)}, s{sOffO} offen offset:128"))
    flat = lambda l: [x for it in l for x in it]
    hs = []
    for t in range(5):
        for i in range(2): hs.append(I(f"v_cvt_pk_bf16_f32 v{vHp+2*t+i}, v{vDo+4*t+2*i}, v{vDo+4*t+2*i+1}"))
        if t in (1, 3): hs.append(I(f"buffer_store_dwordx4 {vr(vHp+2*t-2,4)}, v{vL16}, {sr(sWS,4)}, s{sOffD} offen offset:{(t//2)*1024} sc1", tag_w="Pst"))
    hs.append(I(f"buffer_store_dwordx2 {vr(vHp+8,2)}, v37, {sr(sWS,4)}, s{sOffD} offen offset:2048 sc1", tag_w="Pst"))
    hl = [I(f"buffer_load_dwordx4 {vr(vHr+4*k,4)}, v{vL16}, {sr(sWS,4)}, s{sOffDo} offen offset:{1024*k} sc1") for k in range(2)]
    hl.append(I(f"buffer_load_dwordx2 {vr(vHr+8,2)}, v37, {sr(sWS,4)}, s{sOffDo} offen offset:2048 sc1"))
    hadd = []
    for k in range(10):
        u = 132 + (k % 4) * 2
        hadd += L(f"v_lshlrev_b32 v{u}, 16, v{vHr+k}\nv_and_b32 v{u+1}, 0xffff0000, v{vHr+k}\nv_add_f32 v{vDc+2*k}, v{vDc+2*k}, v{u}\nv_add_f32 v{vDc+2*k+1}, v{vDc+2*k+1}, v{u+1}")
    f3 = lambda k: blk(stamp(14 + k)) if "fine3" in KN else None
    B1 = [d_bload(0, k) for k in range(nb1, 24)]; B2 = [d_bload(1, k) for k in range(24)]
    psq = [pkall[4 * k:4 * k + 4] + ps[k] for k in range(10)]
    cfg = [[int(y) for y in x.split(".")] for x in os.environ.get("DC", "3.5.0,3.5.0,0.0.9,0.0.6,0.0.9").split(",")]
    def take(c_):
        q = [[B1.pop(0) for _ in range(c_[0])], [psq.pop(0) for _ in range(c_[1])], [B2.pop(0) for _ in range(c_[2])]]
        return flat(merge(q))
    PFG = PAR("PFG", 3)
    owndone = False
    for g in range(4):
        ex = take(cfg[g])
        XE = PAR("XE", 1)
        if XE and g == 3: ex = ex + xl
        if g == PFG: ex = ex + [set_flag(f"s{sFl}", "Pst")]
        dsch(d_block(0, g, ex), f"d0{g}")
        if not psq and not owndone: blk(own); owndone = True; assert g < 2
        f3(g)
    for x in hs:
        if x.tag_w: x.tag_w = "Qst"
    pollP = L(f"v_and_b32 v12, 12, v{vFa2}") + [poll_load(vFl, 12, f"s{sFg}")]
    setH = L(f"s_lshl2_add_u32 s{sT1}, s{sW}, s{sFg}\ns_add_u32 s{sT1}, s{sT1}, 16\nv_mov_b32 v13, 0")
    blk(hs); f3(4)
    PP = PAR("PP", 0)
    PC = PAR("PC", 1)
    QP = PAR("QP", 3)
    chkP = lambda: blk(poll_cmp(vFl, 1) + poll_branch("p", vFl, 12, f"s{sFg}") + pl)
    pq = [poll_load(16, 13, f"s{sT1}")]
    QF = PAR("QF", 1)
    qf = [set_flag(f"s{sOffDd}", "Qst")]
    dsch(d_block(1, 0, (pollP if PP == 0 else []) + take(cfg[4]) + ([] if XE else xl) + (qf if QF == 0 else []), ownrd + setH), "d10"); f3(5)
    assert not B1 and not B2 and not psq
    if PC == 0: chkP()
    dsch(d_block(1, 1, (qf if QF == 1 else []) + (pollP if PP == 1 else [])), "d11"); f3(6)
    if PC == 1: chkP()
    f3(7)
    PSK = PAR("PSK", 40)
    dsch(d_block(1, 2, pq if QP == 2 else [], xun + own0 + (psum[:PSK] if PC == 0 else [])), "d12"); f3(8)
    chkQ = lambda: blk(poll_cmp(16, 1) + poll_branch("q", 16, 13, f"s{sT1}") + hl)
    if QP == 2: chkQ()
    rest = psum[PSK:] if PC == 0 else psum
    PSJ = PAR("PSJ", 0)
    dsch(d_block(1, 3, pq if QP == 3 else [], rest[:PSJ]), "d13"); f3(9)
    if QP == 3: chkQ()
    f3(10)
    blk(stamp(11))
    if "nopk" in KN: blk(rest[PSJ:] + hadd + fin)
    else:
        assert PSJ == 0 and PC != 0
        last = L("v_mov_b32 v12, v10\nv_mov_b32 v13, v10")
        for i in range(1, 4):
            for k in range(10):
                s_ = vPl + i * 12 + k; u = 132 + (k % 4) * 2
                last += L(f"v_lshlrev_b32 v{u}, 16, v{s_}\nv_and_b32 v{u+1}, 0xffff0000, v{s_}\nv_pk_fma_f32 v[{vSm+2*k}:{vSm+2*k+1}], v[{u}:{u+1}], v[12:13], v[{vSm+2*k}:{vSm+2*k+1}]")
        last += L("v_mov_b32 v10, v11\nv_mov_b32 v12, 1.0\nv_mov_b32 v13, 1.0")
        for t in range(5):
            h = vDc + 4 * t; e_ = t0 + 4 * t
            p2 = lambda a, i: f"v[{a+i}:{a+i+1}]"
            for hf in range(2):
                u = 132 + hf * 2
                last += L(f"v_lshlrev_b32 v{u}, 16, v{vHr+2*t+hf}\nv_and_b32 v{u+1}, 0xffff0000, v{vHr+2*t+hf}\nv_pk_add_f32 {p2(h,2*hf)}, {p2(h,2*hf)}, v[{u}:{u+1}]")
            for i in (0, 2): last += L(f"v_pk_mul_f32 {p2(e_,i)}, {p2(h,i)}, v[10:11]")
            for i in range(4): last += L(f"v_exp_f32 v{e_+i}, v{e_+i}")
            for i in (0, 2): last += L(f"v_pk_mul_f32 {p2(h,i)}, {p2(h,i)}, {p2(vSm+4*t,i)}")
            for i in (0, 2): last += L(f"v_pk_add_f32 {p2(e_,i)}, {p2(e_,i)}, v[12:13]")
            for i in range(4): last += L(f"v_rcp_f32 v{e_+i}, v{e_+i}")
            for i in (0, 2): last += L(f"v_pk_fma_f32 {p2(vXf+4*t,i)}, {p2(h,i)}, {p2(e_,i)}, {p2(vXf+4*t,i)}")
            for i in range(2): last.append(I(f"v_cvt_pk_bf16_f32 v{vXr+2*t+i}, v{vXf+4*t+2*i}, v{vXf+4*t+2*i+1}"))
            if t in (1, 3):
                tp = t // 2
                for i in range(2): last.append(I(f"v_permlane16_swap_b32 v{vXr+4*tp+i}, v{vXr+4*tp+2+i}"))
                last.append(I(f"buffer_store_dwordx4 {vr(vXr+4*tp,4)}, v{vOw}, {sr(sOut,4)}, s{sOffO} offen offset:{64*tp}"))
        last.append(I(f"buffer_store_dwordx2 {vr(vXr+8,2)}, v{vOa}, {sr(sOut,4)}, s{sOffO} offen offset:128"))
        blk(last)
    c = []
    c += stamp_store(13)
    amp = os.environ.get("AMP")
    if amp and STAMPS:
        k1, k2, mult = map(int, amp.split(","))
        cy = 1 if mult == 0 else 0
        first = f"v_readlane_b32 s{sT0}, v{vSt}, {2*k1+cy}" if k1 >= 0 else f"s_mov_b32 s{sT0}, s{sNonce}"
        c += L(f"""{first}
v_readlane_b32 s{sT1}, v{vSt}, {2*k2+cy}
v_readlane_b32 s{sT2}, v{vSt}, 26
s_nop 4
s_sub_u32 s{sT0}, s{sT1}, s{sT0}
{f"s_mul_i32 s{sT0}, s{sT0}, {mult}" if mult else f"s_lshr_b32 s{sT0}, s{sT0}, 2"}
s_min_u32 s{sT0}, s{sT0}, 100000
L_amp:
s_memrealtime s[{sSt}:{sSt+1}]
s_waitcnt lgkmcnt(0)
s_sub_u32 s{sT1}, s{sSt}, s{sT2}
s_cmp_lt_u32 s{sT1}, s{sT0}
s_cbranch_scc1 L_amp""")
    c += L("L_end:\ns_endpgm")
    blk(c, "fin")
    for nm, ins in OUTL: P.block(nm, ins)
    P.insert_waits()
    n = P.fix_hazards(verbose=False)
    if dbg:
        tot, per = P.estimate()
        agg = {}
        for k, v in per.items():
            kk = k.rstrip('0123456789') if k[0] in 'od' or k.startswith('p1_') or k.startswith('p2_') else k
            agg[kk] = agg.get(kk, 0) + v
        print("; estimate", tot, agg, "pads", n)
    return P.text() + "\n" + gen_fallback()

def build(path, dbg=False):
    body = gen(dbg)
    body = "\n".join(l.strip() for l in body.split("\n"))
    txt = f"""; @launch grid=(256,1,1) block=(256,1,1) lds={LDS_TOTAL}
;   p3    : gate/up GEMM, attention output normalised and published
; Hand-offs between workgroups: write-through stores, per-launch nonce in d_debug, flag words in d_ws, bounded polls.
.amdgcn_target "amdgcn-amd-amdhsa--gfx950"
.text
.globl {KNAME}
.p2align 8
.type {KNAME},@function
{KNAME}:
L_code_begin:
{body}
L_code_end:
.set CODE_SLICES, (L_code_end-L_code_begin+8191)/8192
.fill 2112, 4, 0xbf800000
s_endpgm
.section .rodata,"a"
.p2align 6
.amdhsa_kernel {KNAME}
  .amdhsa_next_free_vgpr 512
  .amdhsa_next_free_sgpr 102
  .amdhsa_accum_offset 256
  .amdhsa_group_segment_fixed_size 0
  .amdhsa_kernarg_size 96
  .amdhsa_user_sgpr_count 2
  .amdhsa_user_sgpr_kernarg_segment_ptr 1
  .amdhsa_system_sgpr_workgroup_id_x 1
  .amdhsa_float_denorm_mode_32 3
.end_amdhsa_kernel
"""
    open(path, "w").write(txt)

if __name__ == "__main__":
    if "--stamps" in sys.argv:
        STAMPS = True; sys.argv.remove("--stamps")
    build(sys.argv[1], dbg=True)
```
